```python
import torch

def _softmax(x, axis=-1):
    return torch.softmax(x, dim=axis)

def _gelu(x):
    return torch.nn.functional.gelu(x, approximate='tanh')

def _silu(x):
    return torch.nn.functional.silu(x)

def _sigmoid(x):
    return torch.sigmoid(x)

def _layernorm(x, axis=-1, eps=1e-05):
    m = x.mean(dim=axis, keepdim=True)
    v = x.var(dim=axis, keepdim=True, unbiased=False)
    return (x - m) / torch.sqrt(v + eps)

def _scatter_add(tgt, idx, src, axis=0):
    return tgt.clone().index_add_(axis, idx, src)

def _segment_sum(src, seg, n):
    out = torch.zeros((n,) + src.shape[1:], dtype=src.dtype)
    return out.index_add_(0, seg, src)

def _pad(x, pw):
    flat = tuple((v for pair in reversed(pw) for v in pair))
    return torch.nn.functional.pad(x, flat)
kernel_name = 'adaLN_cond__memory_aug_recurrent_mem_tr__mixer_s_mlp__prompt'

def setup_inputs():

    _w = lambda a: (lambda t: t.to(torch.bfloat16) if t.is_floating_point() else t)(torch.as_tensor(a))

    def _A_setup():
        B, S, Dm = (1, 2048, 1024)
        H, Dh = (32, 128)
        M, seg = (8, 32)
        seg = min(seg, S)
        S = S // seg * seg
        return {'x': _w((lambda *s: torch.randn(*s, dtype=torch.bfloat16) * 0.05)(B, S, Dm)), 'mem0': _w((lambda *s: torch.randn(*s, dtype=torch.bfloat16) * 0.4)(B, M, Dm)), 'Wq': _w((lambda *s: torch.randn(*s, dtype=torch.bfloat16) * 3.2)(Dm, H, Dh) * Dm ** (-0.5)), 'Wk': _w((lambda *s: torch.randn(*s, dtype=torch.bfloat16) * 3.2)(Dm, H, Dh) * Dm ** (-0.5)), 'Wv': _w((lambda *s: torch.randn(*s, dtype=torch.bfloat16) * 0.4)(Dm, H, Dh) * Dm ** (-0.5)), 'Wo': _w((lambda *s: torch.randn(*s, dtype=torch.bfloat16) * 0.4)(H, Dh, Dm) * (H * Dh) ** (-0.5)), 'seg_len': seg}
    _A_in = _A_setup()

    def _B_setup():
        B, S, D, F = (1, 2048, 1024, 3584)
        return {'x': _w((lambda *s: torch.randn(*s, dtype=torch.bfloat16) * 0.05)(B, S, D)), 'w1': _w((lambda *s: torch.randn(*s, dtype=torch.bfloat16) * 3.2)(D, D) * D ** (-0.5)), 'w2': _w((lambda *s: torch.randn(*s, dtype=torch.bfloat16) * 3.2)(D, D) * D ** (-0.5)), 'w3': _w((lambda *s: torch.randn(*s, dtype=torch.bfloat16) * 3.2)(D, F) * D ** (-0.5)), 'w4': _w((lambda *s: torch.randn(*s, dtype=torch.bfloat16) * 3.2)(F, D) * F ** (-0.5))}
    _B_in = _B_setup()
    return {'A_x': _A_in['x'], 'A_mem0': _A_in['mem0'], 'A_Wq': _A_in['Wq'], 'A_Wk': _A_in['Wk'], 'A_Wv': _A_in['Wv'], 'A_Wo': _A_in['Wo'], 'A_seg_len': _A_in['seg_len'], 'B_x': _B_in['x'], 'B_w1': _B_in['w1'], 'B_w2': _B_in['w2'], 'B_w3': _B_in['w3'], 'B_w4': _B_in['w4'], 'c': _w((lambda *s: torch.randn(*s, dtype=torch.bfloat16) * 0.1)(1, 1024) * 8.0), 'w_mod': _w((lambda *s: torch.randn(*s, dtype=torch.bfloat16) * 0.1)(1024, 6 * 1024) * 1024 ** (-0.5) * 8.0)}

def reference(A_x, A_mem0, A_Wq, A_Wk, A_Wv, A_Wo, A_seg_len, B_x, B_w1, B_w2, B_w3, B_w4, c, w_mod):

    def _A_ref(x, mem0, Wq, Wk, Wv, Wo, seg_len):
        B, S, Dm = x.shape
        H, Dh = (Wq.shape[1], Wq.shape[2])
        M = mem0.shape[1]
        scale = Dh ** (-0.5)
        n_seg = S // seg_len
        L = M + seg_len
        idx = torch.arange(L)
        mask = (idx[:, None] < M) | (idx[:, None] >= idx[None, :])
        mem = mem0
        outs = []
        for s in range(n_seg):
            xs = x[:, s * seg_len:(s + 1) * seg_len, :].clone()
            h = torch.concatenate([mem, xs], axis=1)
            q = torch.einsum('btd,dhe->bhte', h, Wq)
            k = torch.einsum('btd,dhe->bhte', h, Wk)
            v = torch.einsum('btd,dhe->bhte', h, Wv)
            scores = torch.einsum('bhqe,bhke->bhqk', q, k) * scale
            scores = torch.where(mask[None, None], scores, -1000000000.0)
            p = _softmax(scores, axis=-1)
            o = torch.einsum('bhqk,bhke->bhqe', p, v)
            o = torch.einsum('bhte,hed->btd', o, Wo)
            mem = o[:, :M, :].clone()
            outs.append(o[:, M:, :])
        return torch.concatenate(outs, axis=1)

    def _B_ref(x, w1, w2, w3, w4):
        B, S, D = x.shape
        h = _gelu(_layernorm(x, axis=-1) @ w1)
        c = D // 4
        g0 = _pad(h[:, :, 0 * c:1 * c], ((0, 0), (1, 0), (0, 0)))[:, :S, :]
        g1 = _pad(h[:, :, 1 * c:2 * c], ((0, 0), (0, 1), (0, 0)))[:, 1:, :]
        g2 = _pad(h[:, :, 2 * c:3 * c], ((0, 0), (2, 0), (0, 0)))[:, :S, :]
        g3 = _pad(h[:, :, 3 * c:], ((0, 0), (0, 2), (0, 0)))[:, 2:, :]
        hs = torch.concatenate([g0, g1, g2, g3], axis=-1) @ w2
        x1 = x + hs
        h2 = _gelu(_layernorm(x1, axis=-1) @ w3) @ w4
        return x1 + h2
    x = A_x
    mod = (_silu(c) @ w_mod).reshape(c.shape[0], 6, 1, -1)
    sa, ca, ga, sb, cb, gb = (mod[:, 0].clone(), mod[:, 1].clone(), mod[:, 2].clone(), mod[:, 3].clone(), mod[:, 4].clone(), mod[:, 5].clone())
    h = _layernorm(x, axis=-1) * (1 + ca) + sa
    x = x + ga * _A_ref(h, A_mem0, A_Wq, A_Wk, A_Wv, A_Wo, A_seg_len)
    h = _layernorm(x, axis=-1) * (1 + cb) + sb
    x = x + gb * _B_ref(h, B_w1, B_w2, B_w3, B_w4)
    return x
```

```python
import re

class Asm:
    def __init__(self):
        self.lines = []; self.launches = []; self.kernels = []; self.uid = 0; self.header = []
    def e(self, s):
        for l in s.strip("\n").split("\n"):
            l = l.strip()
            if l: self.lines.append("    " + l)
    def c(self, s): self.lines.append("    ; " + s)
    def label(self, l): self.lines.append(l + ":")
    def newlabel(self, p="L"):
        self.uid += 1; return f"{p}_{self.uid}"
    def begin_kernel(self, name):
        self.lines += [f".globl {name}", ".p2align 8", f".type {name},@function", f"{name}:"]
        self.cur = name
    def end_kernel(self, vgpr, sgpr=102, accum=None, wgy=False):
        if accum is None: accum = min(256, (vgpr + 3) // 4 * 4)
        self.kernels.append((self.cur, vgpr, sgpr, accum, wgy))
    def launch(self, name, grid, block, lds=0):
        g = tuple(grid) + (1,) * (3 - len(grid)); b = tuple(block) + (1,) * (3 - len(block))
        self.launches.append(f"; @launch kernel={name} grid=({g[0]},{g[1]},{g[2]}) block=({b[0]},{b[1]},{b[2]}) lds={lds}")
    def srd(self, d, base, nbytes, off=0):
        if off < 0:
            self.e(f"s_sub_u32 s{d}, s{base}, {-off:#x}\ns_subb_u32 s{d+1}, s{base+1}, 0\ns_and_b32 s{d+1}, s{d+1}, 0xffff")
        elif off:
            self.e(f"s_add_u32 s{d}, s{base}, {off:#x}\ns_addc_u32 s{d+1}, s{base+1}, 0\ns_and_b32 s{d+1}, s{d+1}, 0xffff")
        else:
            self.e(f"s_mov_b32 s{d}, s{base}\ns_and_b32 s{d+1}, s{base+1}, 0xffff")
        self.e(f"s_mov_b32 s{d+2}, {nbytes:#x}\ns_mov_b32 s{d+3}, 0x20000")
    def interleave(self, main, fill, start=0, end=None):
        n = len(main); end = n if end is None else end
        span = max(1, end - start); fi = 0
        for i, m in enumerate(main):
            self.e(m)
            if start <= i < end:
                tgt = ((i - start + 1) * len(fill) + span - 1) // span
                while fi < min(tgt, len(fill)):
                    self.e(fill[fi]); fi += 1
        while fi < len(fill):
            self.e(fill[fi]); fi += 1
    def text(self, kernarg=136):
        out = list(self.header) + self.launches
        def compact(l):
            if l.startswith("; TYPES"): return l
            return l.split(";")[0].strip().replace(", ", ",")
        out += ['.amdgcn_target "amdgcn-amd-amdhsa--gfx950"', ".text"] + [c for c in (compact(l) for l in self.lines) if c]
        out += ['.section .rodata,"a"']
        for (n, v, s, a, wgy) in self.kernels:
            out += [".p2align 6", f".amdhsa_kernel {n}", f"  .amdhsa_next_free_vgpr {v}", f"  .amdhsa_next_free_sgpr {s}",
                    f"  .amdhsa_accum_offset {a}", "  .amdhsa_group_segment_fixed_size 0", f"  .amdhsa_kernarg_size {kernarg}",
                    "  .amdhsa_user_sgpr_count 2", "  .amdhsa_user_sgpr_kernarg_segment_ptr 1", "  .amdhsa_system_sgpr_workgroup_id_x 1"]
            if wgy: out += ["  .amdhsa_system_sgpr_workgroup_id_y 1"]
            out += [".end_amdhsa_kernel"]
        return "\n".join(out) + "\n"

def vr(b, n=1, f="v"):
    return f"{f}{b}" if n == 1 else f"{f}[{b}:{b+n-1}]"
def ar(b, n=1): return vr(b, n, "a")
def sr(b, n=1): return vr(b, n, "s")

_REG = re.compile(r"^-?\|?(abs\()?([vas])(?:(\d+)|\[(\d+):(\d+)\])\)?\|?$")
def regs(tok):
    tok = tok.strip()
    if tok in ("vcc",): return {("s", 106), ("s", 107)}
    if tok == "vcc_lo": return {("s", 106)}
    if tok == "vcc_hi": return {("s", 107)}
    if tok == "exec": return {("s", 126), ("s", 127)}
    if tok == "exec_lo": return {("s", 126)}
    if tok == "exec_hi": return {("s", 127)}
    if tok == "m0": return {("s", 124)}
    m = _REG.match(tok)
    if not m: return set()
    f = m.group(2)
    if m.group(3) is not None: lo = hi = int(m.group(3))
    else: lo, hi = int(m.group(4)), int(m.group(5))
    return {(f, i) for i in range(lo, hi + 1)}

TRANS = ("v_exp_f32", "v_log_f32", "v_rcp_f32", "v_rsq_f32", "v_sqrt_f32", "v_sin_f32", "v_cos_f32", "v_rcp_iflag_f32")
def passes(mn):
    if "32x32x16" in mn or "32x32x8" in mn or "32x32x32" in mn: return 8
    if "16x16x32" in mn or "16x16x16" in mn or "16x16x64" in mn: return 4
    return 16

MFMA_WS = [1]
class Ins:
    def __init__(self, text, lineno):
        self.text = text; self.lineno = lineno
        t = text.split(";")[0].strip()
        parts = t.split(None, 1)
        self.mn = parts[0]
        rest = parts[1] if len(parts) > 1 else ""
        ops = []; cur = ""; depth = 0
        for ch in rest:
            if ch in "[(": depth += 1
            if ch in "])": depth -= 1
            if ch == "," and depth == 0: ops.append(cur.strip()); cur = ""
            else: cur += ch
        if cur.strip(): ops.append(cur.strip())
        self.mods = ""
        if ops:
            sp = ops[-1].split(None, 1)
            ops[-1] = sp[0]; self.mods = sp[1] if len(sp) > 1 else ""
        self.ops = ops
        mn = self.mn
        self.is_mfma = mn.startswith("v_mfma") or mn.startswith("v_smfmac")
        self.is_valu = mn.startswith("v_") and not self.is_mfma
        self.is_vmem = mn.startswith("buffer_") or mn.startswith("global_")
        self.is_ds = mn.startswith("ds_")
        self.is_salu = mn.startswith("s_")
        self.is_trans = any(mn.startswith(x) for x in TRANS)
        self.is_dpp = "_dpp" in mn or "row_" in self.mods or "quad_perm" in self.mods
        self.is_perm = mn.startswith("v_permlane")
        self.is_rl = mn.startswith("v_readlane") or mn.startswith("v_readfirstlane")
        self.ws = 1
        if mn == "s_nop": self.ws = int(ops[0], 0) + 1
        if self.is_mfma and passes(mn) == 4: self.ws = MFMA_WS[0]
        R = [regs(o) for o in ops]
        self.w = set(); self.r = set(); self.srcC = set(); self.srcAB = set(); self.stdata = set()
        self.is_dma = self.is_vmem and re.search(r"\blds\b", self.mods) is not None
        if self.is_mfma:
            self.w = R[0]; self.srcAB = R[1] | R[2]
            if mn.startswith("v_smfmac"): self.srcC = R[0]; self.srcAB |= R[3]
            else: self.srcC = R[3] if len(R) > 3 else set()
            self.r = self.srcAB | self.srcC
        elif self.is_perm:
            self.w = R[0] | R[1]; self.r = R[0] | R[1]
        elif self.is_valu and not R: pass
        elif self.is_valu:
            self.w = set(R[0]); srcs = R[1:]
            if "_co_" in mn or mn.startswith("v_div_scale") or mn.startswith("v_mad_u64"):
                self.w |= R[1]; srcs = R[2:]
            for s in srcs: self.r |= s
            if mn.startswith("v_fmac") or mn.startswith("v_pk_fmac") or mn.startswith("v_dot2c"): self.r |= R[0]
            if mn.startswith("v_cndmask") and len(ops) == 3: self.r |= regs("vcc")
            if mn.startswith("v_cmpx"): self.w |= regs("exec")
            if self.is_dpp: self.r |= R[0]
        elif self.is_vmem:
            if mn.startswith("buffer_inv") or mn.startswith("buffer_wbl2"): pass
            elif self.is_dma:
                for s in R: self.r |= s
                self.r |= regs("m0")
            elif "store" in mn:
                if mn.startswith("buffer"): self.stdata = R[0]
                else: self.stdata = R[1]
                for s in R: self.r |= s
            elif "atomic" in mn:
                for s in R: self.r |= s
                if "sc0" in self.mods: self.w = R[0]
            else:
                self.w = R[0]
                for s in R[1:]: self.r |= s
        elif self.is_ds:
            if "read" in mn or "permute" in mn or "swizzle" in mn:
                self.w = R[0]
                for s in R[1:]: self.r |= s
            else:
                for s in R: self.r |= s
        elif self.is_salu:
            nodst = ("s_cmp", "s_cbranch", "s_branch", "s_waitcnt", "s_barrier", "s_nop", "s_endpgm", "s_sleep", "s_setprio", "s_bitcmp", "s_setpc")
            if any(mn.startswith(x) for x in nodst):
                for s in R: self.r |= s
            else:
                if R: self.w = set(R[0])
                for s in R[1:]: self.r |= s
                if "saveexec" in mn: self.w |= regs("exec")

def need(p, c):
    n = 0
    vw = {x for x in p.w if x[0] in "va"}; sw = {x for x in p.w if x[0] == "s"}
    if p.is_valu:
        if c.is_mfma and (vw & c.r): n = max(n, 2)
        if c.is_perm and (vw & c.r): n = max(n, 2)
        if c.is_dpp and (vw & c.r): n = max(n, 2)
        if c.is_rl and (vw & c.r): n = max(n, 1)
        if p.mn.startswith("v_dot") and (vw & (c.r | c.w)) and not (c.mn == p.mn and len(c.ops) > 3 and regs(c.ops[3]) == p.w and not (p.w & (regs(c.ops[1]) | regs(c.ops[2])))): n = max(n, 3)
        if p.is_trans and c.is_valu and not c.is_trans and (vw & c.r): n = max(n, 1)
        if p.is_trans and (c.is_vmem or c.is_ds or c.is_mfma) and (vw & c.r): n = max(n, 2 if c.is_mfma else 1)
        if sw:
            if c.is_valu and (sw & c.r): n = max(n, 4 if c.is_rl else 2)
            if c.is_vmem and (sw & c.r): n = max(n, 5)
            if ("s", 126) in sw and (c.is_mfma or c.is_rl or c.is_perm): n = max(n, 4)
            if ("s", 126) in sw and c.is_dpp: n = max(n, 5)
        if ("sdwa" in p.mn or "op_sel" in p.mods) and "pk_" not in p.mn and c.is_valu and (vw & (c.r | c.w)): n = max(n, 1)
    if p.is_mfma:
        ps = passes(p.mn); big = {2: 5, 4: 8, 8: 12, 16: 20}[ps]
        if c.is_mfma:
            if p.w & c.srcAB: n = max(n, big)
            if p.w & c.srcC:
                if not (p.w == c.srcC and c.mn == p.mn): n = max(n, {2: 4, 4: 6, 8: 10, 16: 18}[ps])
                elif ps == 2: n = max(n, 2)
            elif (p.w & c.w) and not (p.text == c.text): n = max(n, big)
        elif (c.is_valu or c.is_vmem or c.is_ds) and (p.w & (c.r | c.w)): n = max(n, big)
        if c.is_valu and (p.srcC & c.w): n = max(n, {2: 1, 4: 3, 8: 7, 16: 15}[ps])
    if p.is_salu and ("s", 124) in p.w and c.is_dma: n = max(n, 1)
    if p.is_vmem and p.stdata and ("x4" in p.mn or "x3" in p.mn) and (p.stdata & c.w): n = max(n, 2 if c.is_valu else 1)
    return n

def check_hazards(text, verbose=True):
    lines = text.split("\n")
    ins = []; labels = {}
    for i, l in enumerate(lines):
        s = l.split(";")[0].strip()
        if not s or s.startswith("."): continue
        if s.endswith(":"): labels[s[:-1]] = len(ins); continue
        ins.append(Ins(s, i + 1))
    errs = []
    W = 24
    def scan(seq):
        for j in range(len(seq)):
            dist = 0
            for i in range(j - 1, max(-1, j - W), -1):
                p = seq[i]
                if p.mn in ("s_endpgm", "s_branch"): break
                n = need(p, seq[j])
                if n > dist: errs.append((p, seq[j], n, dist))
                dist += p.ws
                if dist >= 21: break
    scan(ins)
    for k, x in enumerate(ins):
        if x.mn.startswith("s_cbranch") or x.mn == "s_branch":
            t = labels.get(x.ops[0])
            if t is None: continue
            pre = ins[max(0, k - W):k]
            cut = 0
            for q, p in enumerate(pre):
                if p.mn in ("s_endpgm", "s_branch"): cut = q + 1
            pre = pre[cut:]
            fake = Ins("s_nop 0", x.lineno)
            seq = pre + [fake] + ins[t:t + W]
            base = len(pre) + 1
            for j in range(base, len(seq)):
                if seq[j - 1].mn in ("s_endpgm", "s_branch") and j - 1 >= base: break
                dist = sum(q.ws for q in seq[base - 1:j])
                for i in range(base - 2, -1, -1):
                    p = seq[i]
                    n = need(p, seq[j])
                    if n > dist: errs.append((p, seq[j], n, dist))
                    dist += p.ws
                    if dist >= 21: break
    seen = set(); out = []
    for (p, c, n, d) in errs:
        key = (p.lineno, c.lineno)
        if key in seen: continue
        seen.add(key); out.append(f"HAZARD need {n} have {d}: L{p.lineno} `{p.text}` -> L{c.lineno} `{c.text}`")
    if verbose:
        for o in out[:40]: print(o)
        print(f"hazard check: {len(ins)} instructions, {len(out)} violations")
    return out

def fix_hazards(lines):
    out = []; hist = []
    for l in lines:
        s = l.split(";")[0].strip()
        if not s or s.startswith(".") or s.endswith(":"):
            out.append(l); continue
        c = Ins(s, 0)
        dist = 0; deficit = 0
        for p in reversed(hist[-24:]):
            if p.mn in ("s_endpgm", "s_branch"): break
            n = need(p, c)
            if n > dist: deficit = max(deficit, n - dist)
            dist += p.ws
            if dist >= 21: break
        while deficit > 0:
            k = min(deficit, 16)
            out.append(f"    s_nop {k-1}"); hist.append(Ins(f"s_nop {k-1}", 0)); deficit -= k
        out.append(l); hist.append(c)
    return out

B128_GROUPS = [[0,1,2,3,12,13,14,15,20,21,22,23,24,25,26,27], [4,5,6,7,8,9,10,11,16,17,18,19,28,29,30,31]]
B128_GROUPS += [[x + 32 for x in g] for g in B128_GROUPS]
def conflicts(addrs, kind):
    if kind == "b128": groups, nb, w = B128_GROUPS, 64, 4
    elif kind == "b64": groups, nb, w = [list(range(32)), list(range(32, 64))], 64, 2
    else: raise ValueError
    tot = 0
    for g in groups:
        banks = {}
        for l in g:
            for d in range(w):
                a = addrs[l] // 4 + d
                banks.setdefault(a % nb, set()).add(a)
        tot += max(len(v) for v in banks.values()) - 1
    return tot
```

```python
ARG = dict(x=0, mem0=1, Wq=2, Wk=3, Wv=4, Wo=5, seg=6, Bx=7, w1=8, w2=9, w3=10, w4=11, c=12, wmod=13, out=14, dbg=15, ws=16)
KB = 1024; MB = 1 << 20
WS_BYTES = 256 * MB
S, D, H, DH, F = 2048, 1024, 32, 128, 3584
NSEG = 64
QKV = 0
KVM = 64 * MB
RING = 128 * MB
XR = 4
RSL = 512 * KB
R_PL = RING
R_O = RING + 32 * KB
R_PR = RING + 8 * MB
R_SX = RING + 256 * KB
RING_BYTES = XR * RSL
FLG = RING + 4 * MB
F_QKV = FLG
F_KVM = FLG + 16384
STAMP = 240 * MB
NU = 128
XCNT = FLG + 96 * KB
XMEAS = FLG + 112 * KB
FL2 = FLG + 128 * KB
def _fl(i): return FL2 + 256 * i
F_ATT = _fl(0); F_WO = _fl(16); F_LN = _fl(20); F_W1 = _fl(24); F_W2 = _fl(28); F_W3 = _fl(32); F_W4 = _fl(48); F_H = _fl(52)
F_W1L = _fl(64); F_LNL = _fl(96); F_W2R = _fl(128)
FLG_BYTES = 256 * KB
HB = 140 * MB
OB = 144 * MB
PW = 160 * MB
X1 = 192 * MB
H2 = 196 * MB
G1 = 200 * MB + 32 * KB
Y1 = 205 * MB
G3 = 209 * MB
P4 = 223 * MB
MOD = 255 * MB
STAMP2 = 255 * MB + 192 * KB
assert XMEAS & 0x2000 == 0 and (XMEAS >> 21) & 1 == 0
XP = 160 * MB
SCRATCH = FLG + 192 * KB
STAMP3 = 255 * MB + 96 * KB
```

```python
import sys
sys.path.insert(0, "..")
from asmgen import *
from lay import *
import struct
def f2u(x): return struct.unpack("<I", struct.pack("<f", x))[0]
LOG2E = 1.4426950408889634
SCL = (128 ** -0.5) * LOG2E
HALF = "0x00ff00ff"; HALFH = "0xff00ff00"
RS = 1040
T_Q = 0; T_K = 8448; T_V = 16896; T_P = T_V + 4096; PODD = 2048 + 32
L_WO = 32768
LDS_BYTES = 160 * 1024
V_L16, V_IDX, V_A1, V_A2, V_PRD, V_SEL, V_OST, V_WO, V_L4 = 0, 1, 2, 3, 4, 5, 6, 7, 127
V_C = 8
AF = 16; ACC = 48; XC = 96; XN = 104; KEEP = 112; PK = 120; TA, TB, VF = 124, 125, 126; KEEP2 = PK
WV = 128
NVR = 6
WVR = 208
def wo_reg(b): return WV + (b - 3) * 16
LV = lambda f: (f - NVR) * 2048
LO = lambda b: (16 - NVR) * 2048 + b * 4096
class Opt:
    PROF = False; DL = 22; DL0 = 10; DS = 32; DO = 10; DO01 = 4; NV1 = 2; BUDGET = 100000; B2POS = 1; NV2 = 0; CK = 5; PER = 4; PER2 = 2; FIXX = 0; FIXM = 0; RSH = 0; RQ = 0; VPF = 6; OPAIR = 1; S2 = 0; DS2 = 2; DO0 = 8; FPOS = 3; NOKVM = 0; NOX = 0; OI = 8; LI = 8; XS = {}; PN = 8; NVL = 0; WARM = 0; WL = 0; WO = 0; ZPER = 3; MEAS = 1; CKB = (5, 5, 5, 5, 5, 5, 5); RP = (0, 1, 2, 2); TG = 2; WD = 6; WV = 1; WN = 2; MWS = 3; TMJ = 6; RLAST = 0; KB = 4; KPOS = 0; KD = 12; EW = 1; KW2 = 0; KPAR = 0; NOFL = 0; NORS = 0; LATEL = 1; NPL = 4; NPR = 5; DPL = 4; DPR = 5
O = Opt

def delay(A, n):
    if O.WARM:
        for i in range(4 * n): A.e(f"v_mov_b32 v{TA}, v{TA}")
        return
    while n >= 4:
        A.e("s_nop 15"); n -= 4
    if n > 0: A.e(f"s_nop {4*n-1}")

def rec_setup(A):
    A.srd(28, 6, 8 * MB); A.srd(32, 8, 8 * MB); A.srd(36, 10, 8 * MB); A.srd(40, 12, 8 * MB); A.srd(44, 4, 16384)
    A.e(f"""
    s_lshr_b32 s58, s57, 5
    s_and_b32 s59, s57, 31
    v_and_b32 v20, 63, v0              ; lane
    v_and_b32 v21, 15, v20             ; lam
    v_lshrrev_b32 v22, 4, v20          ; g
    v_lshrrev_b32 v23, 3, v20
    v_and_b32 v24, 7, v20
    v_lshlrev_b32 v16, 13, v23
    v_lshl_add_u32 v16, v24, 4, v16
    v_lshrrev_b32 v23, 2, v20
    v_and_b32 v24, 3, v20
    v_lshlrev_b32 v17, 11, v23
    v_lshl_add_u32 v17, v24, 4, v17
    s_lshl_b32 s61, s50, 15
    s_add_u32 s61, s61, {L_WO}
    s_lshl_b32 s62, s50, 21
    s_lshl_b32 s64, s57, 7
    s_add_u32 s62, s62, s64
    s_lshl_b32 s63, s58, 22
    s_lshl_b32 s64, s50, 20
    s_add_u32 s63, s63, s64
    s_lshl_b32 s64, s59, 6
    s_add_u32 s63, s63, s64
    v_lshrrev_b32 v23, 1, v22          ; g>>1
    v_lshlrev_b32 v25, 4, v23
    v_and_b32 v23, 1, v22
    v_lshl_add_u32 v25, v23, 2, v25
    v_lshrrev_b32 v23, 3, v21          ; r'>>1
    v_lshl_add_u32 v25, v23, 3, v25
    v_bfe_u32 v23, v21, 2, 1           ; r'&1
    v_add_u32 v25, v25, v23
    v_lshlrev_b32 v28, 4, v23
    v_lshrrev_b32 v23, 1, v22
    v_lshl_add_u32 v28, v23, 3, v28
    v_lshrrev_b32 v23, 3, v21
    v_lshl_add_u32 v28, v23, 2, v28
    v_and_b32 v23, 1, v22
    v_lshl_add_u32 v28, v23, 1, v28
    v_and_b32 v24, 3, v21              ; c'
    v_lshlrev_b32 v26, 7, v28
    v_add_u32 v26, s61, v26
    v_lshl_add_u32 v18, v24, 3, v26
    v_lshl_add_u32 v19, v24, 4, v26    ; permuted
    v_lshlrev_b32 v26, 6, v25
    v_add_u32 v26, s61, v26
    v_lshl_add_u32 v27, v24, 3, v26
    v_lshlrev_b32 v{V_L16}, 4, v20
    v_add_u32 v{V_WO}, s61, v{V_L16}""")
    ST = [(0, 0), (0, 1), (1, 0), (1, 1), (3, 0), (3, 1), (2, 0), (2, 1)]
    def issue(st):
        mat, hh = ST[st]
        for J in range(16):
            if mat < 3: A.e(f"s_add_u32 s64, s62, {(hh*128 + J*8)*8192}\ns_add_u32 m0, s61, {hh*16384+J*1024}\nbuffer_load_dwordx4 v16, s[{28+mat*4}:{31+mat*4}], s64 offen lds")
            else: A.e(f"s_add_u32 s64, s63, {(hh*256 + J*16)*2048}\ns_add_u32 m0, s61, {hh*16384+J*1024}\nbuffer_load_dwordx4 v17, s[40:43], s64 offen lds")
    def vdst(f):
        if f < NVR: return WVR + f * 8
        if f < 8: return 96 + (f - NVR) * 8
        return None
    def read(st):
        mat, hh = ST[st]
        if mat < 2:
            for jj in range(2):
                j = hh * 2 + jj
                for t in range(4):
                    for R in range(2):
                        for h in range(2):
                            off = hh * 16384 + (64 * jj + 32 * R + h) * 128
                            A.e(f"ds_read_b64_tr_b16 {ar((j*8+mat*4+t)*8+4*R+2*h,2)}, v18 offset:{off + t*32}")
                A.e("s_waitcnt lgkmcnt(0)")
        elif mat == 3:
            for jj in range(4):
                b = hh * 4 + jj
                for t in range(2):
                    for R in range(2):
                        for h in range(2):
                            off = hh * 16384 + (64 * jj + 32 * R + 2 * h) * 64 + t * 32
                            A.e(f"ds_read_b64_tr_b16 {vr((48 + b*16 if b < 3 else wo_reg(b)) + t*8+4*R+2*h,2)}, v27 offset:{off}")
                if jj & 1: A.e("s_waitcnt lgkmcnt(0)")
        else:
            def rd(f, dst):
                jj, t = (f >> 2) & 1, f & 3
                for R in range(2):
                    for h in range(2):
                        off = hh * 16384 + (64 * jj + 32 * R + h) * 128
                        A.e(f"ds_read_b64_tr_b16 {vr(dst+4*R+2*h,2)}, v19 offset:{off + (t>>1)*64 + (t&1)*8}")
            if hh == 0:
                for f in range(8):
                    rd(f, vdst(f))
                    if f & 3 == 3: A.e("s_waitcnt lgkmcnt(0)")
            else:
                for f in range(NVR, 8):
                    for q in range(2): A.e(f"ds_write_b128 v{V_WO}, {vr(vdst(f)+q*4,4)} offset:{LV(f) + q*1024}")
                A.e("s_waitcnt lgkmcnt(0)")
                for f0 in (8, 10, 12, 14):
                    for f in (f0, f0 + 1): rd(f, 96 + (f - f0) * 8 + (16 if f0 == 14 else 0))
                    A.e("s_waitcnt lgkmcnt(0)")
                    if f0 < 14:
                        for f in (f0, f0 + 1):
                            for q in range(2): A.e(f"ds_write_b128 v{V_WO}, {vr(96+(f-f0)*8+q*4,4)} offset:{LV(f) + q*1024}")
                        A.e("s_waitcnt lgkmcnt(0)")
                for f in (14, 15):
                    for q in range(2): A.e(f"ds_write_b128 v{V_WO}, {vr(112+(f-14)*8+q*4,4)} offset:{LV(f) + q*1024}")
                for q in range(12): A.e(f"ds_write_b128 v{V_WO}, {vr(48+q*4,4)} offset:{LO(0) + q*1024}")
                A.e("s_waitcnt lgkmcnt(0)")
    issue(0); issue(1)
    for st in range(8):
        A.e(f"s_waitcnt vmcnt({16 if st < 7 else 0})")
        read(st)
        if st + 2 < 8: issue(st + 2)
    w23 = A.newlabel("w23"); jn = A.newlabel("jn")
    A.e(f"""
    v_and_b32 v23, 1, v21
    v_mov_b32 v{V_IDX}, 0x4444
    v_mov_b32 v24, 0xeeee
    v_cmp_eq_u32 vcc, 1, v23
    v_cndmask_b32 v{V_IDX}, v{V_IDX}, v24, vcc
    v_lshlrev_b32 v23, 1, v22
    v_sub_u32 v23, v21, v23            ; lam - 2g
    v_mov_b32 v{V_SEL}, 0
    v_mov_b32 v24, 0x3f80
    v_cmp_eq_u32 vcc, 0, v23
    v_cndmask_b32 v{V_SEL}, v{V_SEL}, v24, vcc
    v_mov_b32 v24, 0x3f800000
    v_cmp_eq_u32 vcc, 1, v23
    v_cndmask_b32 v{V_SEL}, v{V_SEL}, v24, vcc
    s_and_b32 s64, s50, 1
    s_lshl_b32 s64, s64, 11
    v_lshl_add_u32 v{V_L4}, v20, 2, s64
    v_and_b32 v23, 7, v21              ; i
    v_lshrrev_b32 v24, 3, v21
    v_lshlrev_b32 v25, 8, v24
    v_lshl_add_u32 v25, v22, 6, v25
    v_lshl_add_u32 v{V_PRD}, v23, 2, v25   ; p store: (e>>3)*256 + 2g*32 + (e&7)*4
    v_lshrrev_b32 v25, 1, v22
    v_lshl_add_u32 v25, v25, 3, v23
    v_lshlrev_b32 v25, 5, v25
    v_and_b32 v26, 1, v22
    v_lshl_add_u32 v{V_OST}, v26, 4, v25   ; o store: ((g>>1)*8+i)*32 + (g&1)*16
    v_lshl_add_u32 v27, v22, 3, v23
    v_lshlrev_b32 v27, 4, v27          ; (g*8+i)*16
    s_mov_b32 s80, {f2u(SCL):#x}
    s_mov_b32 s81, 0xfffffffe
    s_mov_b32 s84, {HALF}
    s_mov_b32 s85, {HALF}
    s_mov_b32 s86, -1
    s_mov_b32 s87, 0
    s_cmp_gt_u32 s50, 1
    s_cselect_b32 s82, {HALFH}, -1
    s_cselect_b32 s83, {HALFH}, 0
    s_lshl_b32 m0, s50, 8
    s_cmp_gt_u32 s50, 1
    s_cbranch_scc1 {w23}
    v_lshl_add_u32 v{V_A1}, v24, 9, v27    ; S poll x4
    v_lshrrev_b32 v25, 1, v22
    v_lshl_add_u32 v25, v25, 3, v23
    v_lshlrev_b32 v25, 4, v25
    v_lshl_add_u32 v26, v26, 1, v24
    v_lshl_add_u32 v{V_A2}, v26, 2, v25
    v_add_u32 v{V_A2}, 1024 + 256, v{V_A2}
    v_cndmask_b32 v{V_OST}, 2.0, v{V_OST}, s[84:85]""")
    for i in range(8): A.e(f"v_mov_b32 v{V_C+i}, {'0x3f803f80' if i < 5 else 0}")
    A.e(f"s_branch {jn}")
    A.label(w23)
    A.e(f"""
    s_sub_u32 s64, s50, 2
    s_mul_i32 s64, s64, {4*RS}
    v_lshrrev_b32 v25, 1, v22
    v_mul_u32_u24 v25, {2*RS}, v25
    v_and_b32 v28, 1, v23
    v_mul_u32_u24 v28, {RS}, v28
    v_add_u32 v25, v25, v28
    v_lshrrev_b32 v28, 1, v23
    v_lshl_add_u32 v25, v28, 6, v25
    v_lshl_add_u32 v25, v26, 5, v25
    v_mul_u32_u24 v28, {T_K}, v24
    v_add3_u32 v{V_A1}, v25, v28, s64
    v_cndmask_b32 v{V_A2}, 2.0, v27, s[84:85]""")
    for i in range(4): A.e(f"v_mov_b32 v{V_C+i}, -1")
    A.label(jn)

def rec_bases(A):
    A.e(f"""
    s_lshl_b32 s64, s58, 14
    s_lshl_b32 s65, s50, 12
    s_add_u32 s70, s64, s65
    s_add_u32 s70, s70, {R_PL}
    s_lshl_b32 s65, s59, 9
    s_add_u32 s71, s64, s65
    s_add_u32 s71, s71, {R_PL}
    s_xor_b32 s64, s58, 1
    s_lshl_b32 s64, s64, 15
    s_lshr_b32 s65, s50, 1
    s_lshl_b32 s65, s65, 14
    s_add_u32 s64, s64, s65
    s_and_b32 s65, s50, 1
    s_lshl_b32 s65, s65, 12
    s_add_u32 s64, s64, s65
    s_add_u32 s72, s64, s67
    s_add_u32 s72, s72, {R_PR}
    s_lshl_b32 s64, s58, 15
    s_lshr_b32 s65, s59, 4
    s_lshl_b32 s65, s65, 14
    s_add_u32 s64, s64, s65
    s_and_b32 s65, s59, 15
    s_lshl_b32 s65, s65, 9
    s_add_u32 s64, s64, s65
    s_add_u32 s73, s64, s67
    s_add_u32 s73, s73, {R_PR}
    s_cmp_eq_u32 s50, 1
    s_cselect_b32 s54, 2048 - 256, 0
    s_sub_u32 s71, s71, s54
    s_lshl_b32 s64, s58, 15
    s_lshl_b32 s65, s50, 13
    s_add_u32 s74, s64, s65
    s_add_u32 s74, s74, {R_O}           ; O gather
    s_lshl_b32 s64, s57, 10
    s_and_b32 s65, s50, 1
    s_lshl_b32 s65, s65, 9
    s_cmp_gt_u32 s50, 1
    s_cselect_b32 s65, 0, s65
    s_add_u32 s75, s64, s65
    s_add_u32 s75, s75, {R_O}
    s_lshl_b32 s64, s57, 12
    s_and_b32 s65, s64, 0xffffe000
    s_cmp_eq_u32 s50, 3
    s_cselect_b32 s66, 1536, 0
    s_add_u32 s64, s64, s66
    s_cmp_gt_u32 s50, 1
    s_cselect_b32 s76, s64, s65
    s_add_u32 s76, s76, {R_SX}
    s_lshl_b32 s64, s57, 14
    s_and_b32 s65, s50, 1
    s_lshl_b32 s66, s65, 11
    s_add_u32 s77, s64, s66
    s_cmp_gt_u32 s50, 1
    s_cselect_b32 s66, 0, 4096
    s_add_u32 s77, s77, s66
    s_add_u32 s77, s77, {QKV}
    s_lshl_b32 s66, s65, 9
    s_add_u32 s66, s66, 1024 + 128
    s_lshl_b32 s65, s65, 7
    s_cmp_gt_u32 s50, 1
    s_cselect_b32 s65, s65, s66
    s_add_u32 s78, s64, s65
    s_add_u32 s78, s78, {KVM - 128}
    s_lshl_b32 s64, s57, 6
    s_add_u32 s68, s64, s67
    s_add_u32 s69, s68, s64
    s_add_u32 s69, s69, {F_KVM}
    s_lshl_b32 s64, s50, 14
    s_add_u32 s69, s69, s64
    s_and_b32 s64, s50, 1
    s_lshl_b32 s64, s64, 11
    s_sub_u32 s69, s69, s64
    s_add_u32 s68, s68, {F_QKV}
    s_mov_b32 s79, 0
    s_mov_b32 s91, 0""")

def segoff(A, dst, sstep, add, base):
    A.e(f"""
    s_add_u32 s64, s{sstep}, {add}
    {'s_mov_b32 s64, 0' if (O.FIXX and base == 77) or (O.FIXM and base == 78) else ''}
    s_lshl_b32 s65, s64, 12
    s_and_b32 s65, s65, 0x2000
    s_xor_b32 s65, s65, s67
    {'s_xor_b32 s65, s65, 0x2000' if (O.KPAR and base == 78) else ''}
    s_lshl_b32 s64, s64, 20
    s_add_u32 s65, s65, s64
    s_add_u32 s{dst}, s65, s{base}""")

def rec_loop(A, lst, fin, nsteps=64):
    tail = []
    def stamp(i):
        if isinstance(i, str):
            if i not in O.XS: return
            i = O.XS[i]
        elif i in O.XS.values(): return
        if O.PROF in (1, 2, 5): A.e(f"{'s_memtime' if O.PROF != 1 else 's_memrealtime'} s[{2*i+24}:{2*i+25}]")
    def trace():
        if O.PROF == 6:
            A.e(f"s_memtime s[24:25]\ns_memrealtime s[26:27]\ns_waitcnt lgkmcnt(0)\nv_writelane_b32 v{TA}, s24, 0\nv_writelane_b32 v{TA}, s26, 1\nv_writelane_b32 v{TA}, s90, 2")
            A.e(f"s_lshl_b32 s64, s79, 6\ns_add_u32 s64, s64, s16\nv_lshrrev_b32 v{TB}, 2, v{V_L16}\ns_mov_b64 exec, 0xf\nbuffer_store_dword v{TA}, v{TB}, s[20:23], s64 offen\ns_mov_b64 exec, -1")
            return 6
        if O.PROF != 5: return 0
        A.e("s_waitcnt lgkmcnt(0)")
        for i in range(1, 13): A.e(f"v_writelane_b32 v{TA}, s{24+2*i}, {i}")
        A.e(f"v_writelane_b32 v{TA}, s56, 13\nv_writelane_b32 v{TA}, s51, 14")
        A.e(f"s_lshl_b32 s64, s79, 6\ns_add_u32 s64, s64, s16\nv_lshrrev_b32 v{TB}, 2, v{V_L16}\ns_mov_b64 exec, 0xffff\nbuffer_store_dword v{TA}, v{TB}, s[20:23], s64 offen\ns_mov_b64 exec, -1")
        return 8
    def cnt(k):
        if O.PROF and O.PROF != 6: A.e(f"s_add_u32 s56, s56, {1 << (8*k)}" if k < 4 else "s_add_u32 s51, s51, 1")
    def chk(b, n, nb=1):
        r = AF + b * 4
        o = [f"s_waitcnt vmcnt({n})", f"v_max3_u32 v{TA}, v{r}, v{r+1}, v{r+2}"]
        for q in range(2 * (nb - 1)): o += [f"v_max3_u32 v{TA}, v{TA}, v{r+3+2*q}, v{r+4+2*q}"]
        o += [f"v_max_u32 v{TA}, v{TA}, v{r+4*nb-1}", f"v_cmp_eq_u32 vcc, -1, v{TA}"]
        return o
    def flagwait(add):
        ok = A.newlabel("fok"); lp = A.newlabel("flp")
        A.e(f"s_add_u32 s64, s79, {add}\ns_cmp_gt_u32 s91, s64\ns_cbranch_scc0 {lp}")
        A.label(ok)
        def d():
            A.label(lp)
            A.e(f"""
            buffer_load_dword v{TA}, off, s[20:23], s68 sc1
            s_waitcnt vmcnt(0)
            v_readfirstlane_b32 s91, v{TA}
            s_cmp_gt_u32 s91, s64
            s_cbranch_scc1 {ok}
            s_sleep 2
            s_sub_u32 s90, s90, 1
            s_cmp_gt_i32 s90, 0
            s_cbranch_scc1 {lp}
            s_branch {ok}""")
        tail.append(d)
    smq = lambda t, b: f"v_smfmac_f32_16x16x64_bf16 {vr(ACC+t*4,4)}, {vr(AF+b*4,4)}, {ar(((b&3)*8+t)*8,8)}, v{V_IDX}"
    def vreg(f): return WVR + f * 8 if f < NVR else ACC + ((f - NVR) & 3) * 8
    smv = lambda i: f"v_smfmac_f32_16x16x64_bf16 {vr(ACC+32+((i>>1)&3)*4,4)}, {vr(AF+((i>>3)+4*(i&1))*4,4)}, {vr(vreg(i>>1),8)}, v{V_IDX}"
    rdV = lambda f: [f"ds_read_b128 {vr(vreg(f)+q*4,4)}, v{V_WO} offset:{LV(f)+q*1024}" for q in range(2)]
    vfill = [x for f in range(NVR, NVR + 4) for x in rdV(f)]
    def epi_v(t):
        a = ACC + 32 + t * 4
        return [f"v_add_f32 v{a}, v{a}, v{a+1}", f"v_add_f32 v{a+2}, v{a+2}, v{a+3}", f"v_cvt_pk_bf16_f32 v{a}, v{a}, v{a+2}",
                f"ds_write_addtid_b32 v{a} offset:{T_V + t*1024}"]
    def vstream(start, fillpos, extra=None, post=[]):
        out = []; extra = extra or {}
        for i in range(start, 32):
            f, r = i >> 1, i & 1
            if f >= NVR and r == 0: out.append(f"s_waitcnt lgkmcnt({2*min(3, 15-f)})")
            out.append(smv(i))
            if fillpos is not None and fillpos <= i < fillpos + 4: out += vfill[2 * (i - fillpos):2 * (i - fillpos) + 2]
            if f >= NVR and r == 1 and f + 4 < 16: out += rdV(f + 4)
            out += extra.get(i, [])
            if f"v{i}" in O.XS and O.PROF in (1, 2, 5): out.append(f"s_memtime s[{2*O.XS[f'v{i}']+24}:{2*O.XS[f'v{i}']+25}]")
            if O.EW == 0:
                if i == 30: out += epi_v(0)[:2]
                if i == 31: out += epi_v(0)[2:]
            else:
                e0 = epi_v(0); e1 = epi_v(1)
                out += {28: e0[:1], 29: e0[1:2], 30: e0[2:3], 31: e0[3:] + e1[:1]}.get(i, [])
        out += post
        if O.EW:
            out += epi_v(1)[1:3] + epi_v(2)[:3] + epi_v(3)[:3] + [epi_v(t)[3] for t in (1, 2, 3)]
        else:
            for t in range(1, 4): out += epi_v(t)
        return out
    ldA = lambda b, r=None: f"buffer_load_dwordx4 {vr(AF+b*4 if r is None else r,4)}, v{V_L16}, s[20:23], s{92 + (b>>2)} offen offset:{(b&3)*1024} sc1"
    def retry(b, br, go, rt, lds, n, k, nb=1):
        def d():
            A.label(rt)
            cnt(k)
            A.e(f"s_sub_u32 s90, s90, 1\ns_cmp_gt_i32 s90, 0\ns_cbranch_scc0 {go}")
            for x in lds: A.e(x)
            for x in chk(b, n, nb): A.e(x)
            A.e(f"s_branch {br}")
        tail.append(d)
    def epi_qk(t):
        a = ACC + t * 4; off = (T_Q if t < 4 else T_K) + (t & 3) * 2 * RS
        return [f"v_add_f32 v{a}, v{a}, v{a+1}", f"v_add_f32 v{a+2}, v{a+2}, v{a+3}",
                f"ds_write_addtid_b32 v{a} offset:{off}", f"ds_write_addtid_b32 v{a+2} offset:{off+RS}"]
    def weave(W, fin_idx, E, pre, per=4):
        seq = []; tm = 0; fin_t = {}
        va = []; oth = list(pre); nxt = 0
        def emit(x):
            nonlocal tm
            seq.append(x); tm += MFMA_WS[0] if "smfmac" in x else 1
        wr_ready = []
        for k, m in enumerate(W):
            emit(m)
            if k in fin_idx: fin_t[fin_idx.index(k)] = tm
            no_ = O.WN
            while no_ > 0 and wr_ready: emit(wr_ready.pop(0)); no_ -= 1
            while no_ > 0 and oth: emit(oth.pop(0)); no_ -= 1
            while nxt < len(E) and nxt in fin_t and tm - fin_t[nxt] >= O.WD:
                va += [(E[nxt][0], E[nxt][2]), (E[nxt][1], E[nxt][3])]; nxt += 1
            for _ in range(O.WV):
                if va: a_, w_ = va.pop(0); emit(a_); wr_ready.append(w_)
        for x in oth: emit(x)
        while nxt < len(E): va += [(E[nxt][0], E[nxt][2]), (E[nxt][1], E[nxt][3])]; nxt += 1
        for x in wr_ready: emit(x)
        for a_, w_ in va: emit(a_)
        for a_, w_ in va: emit(w_)
        for x in seq: A.e(x)
    def chkr(r):
        return [f"v_max3_u32 v{TA}, v{r}, v{r+1}, v{r+2}", f"v_max_u32 v{TA}, v{TA}, v{r+3}", f"v_cmp_eq_u32 vcc, -1, v{TA}"]
    def deferred(blocks, ld, work, back, k, temps, delta, first=True):
        cnt(k)
        for bb in blocks:
            sk = A.newlabel("dsk")
            if len(blocks) > 1: A.e(f"s_bitcmp1_b32 s55, {bb}\ns_cbranch_scc0 {sk}")
            A.e(ld(bb, AF + 4 * bb))
            A.label(sk)
        for bb in blocks:
            sk = A.newlabel("dsk"); go = A.newlabel("dgo"); lp = A.newlabel("dlp")
            T = [AF + 4 * bb] + temps(bb); n = len(T)
            A.e(f"s_bitcmp1_b32 s55, {bb}\ns_cbranch_scc0 {sk}")
            A.e(f"s_waitcnt vmcnt({n-1})")
            for x in chkr(T[0]): A.e(x)
            A.e(f"s_cbranch_vccz {go}")
            for j in range(1, n):
                A.e(f"s_nop {4*delta(bb)-1}" if delta(bb) <= 4 else f"s_nop 15\ns_nop {4*(delta(bb)-4)-1}")
                A.e(ld(bb, T[j]))
            A.label(lp)
            if O.PROF and O.PROF != 6: A.e("s_add_u32 s51, s51, 0x10000")
            cp = [A.newlabel("dcp") for _ in T]
            for j in range(n):
                A.e(f"s_waitcnt vmcnt({n-1})")
                for x in chkr(T[j]): A.e(x)
                A.e(f"s_cbranch_vccz {go if j == 0 else cp[j]}")
                A.e(ld(bb, T[j]))
            A.e(f"s_sub_u32 s90, s90, 1\ns_cmp_gt_i32 s90, 0\ns_cbranch_scc1 {lp}\ns_branch {go}")
            for j in range(1, n):
                A.label(cp[j])
                for i in range(4): A.e(f"v_mov_b32 v{T[0]+i}, v{T[j]+i}")
                A.e("s_nop 1")
                if j < n - 1: A.e(f"s_branch {go}")
            A.label(go)
            for x in work(bb): A.e(x)
            A.label(sk)
        A.e(f"s_mov_b32 s55, 0\ns_branch {back}")
    dummy = f"buffer_load_dword v{TB}, off, s[20:23], s92 sc1"
    def phaseA(tiles, win1, nv, prof):
        rsh = O.RSH
        after = {c: [] for c in range(8)}
        TJ = O.TMJ
        pre_r = []
        for j in range(4):
            if O.RP[j] < 0: pre_r.append(4 + j)
            else: after[O.RP[j]].append(4 + j)
        for x in pre_r: A.e(ldA(x))
        rq = O.RQ and len(tiles) == 8
        order = [0, 1, 2, 3] + pre_r; cntn = {}; pref = {}
        for b in range(TJ + 1):
            cntn[b] = len(order) - 1 - order.index(b if b < TJ else 7)
            if b < TJ: order.append(("d", b))
            order += after[b]
            if b == O.KB and not O.NOKVM: order += [("k", 0), ("k", 1)]
            pref[b] = list(order)
        TL = lambda b: tiles[:4] if (rq and b >= 4) else tiles
        W = {b: [smq(t, b) for t in TL(b)] for b in range(8)}
        late = {b: len(W[b]) >= 8 for b in range(8)}
        seg = {b: A.newlabel("seg") for b in range(8)}; seg2 = {b: A.newlabel("segb") for b in range(8)}
        fl = {b: A.newlabel("fl") for b in range(8)}; fl2 = {b: A.newlabel("flb") for b in range(8)}
        slow = A.newlabel("slowA"); done = A.newlabel("doneA")
        xst = lambda b: [kvm_store, flg_store] if (b == O.KB and not O.NOKVM) else []
        assert 3 <= O.KB < TJ
        def body(b, nchk, tgt, lt):
            w = W[b]; n = len(w)
            pend = [dummy] + [ldA(x) for x in after[b]] + xst(b) if b < 7 else []
            if nchk is None: pend = []
            c = nchk
            if n >= 8:
                nvv = len(c) - 1
                p = n - O.CKB[b] - (nvv - 3)
                cq = list(c)
                for k in range(n - (1 if lt else 0)):
                    A.e(w[k])
                    for _ in range(2 if len(pend) > p - k else 1):
                        if pend: A.e(pend.pop(0))
                    if k == p - 1:
                        while pend: A.e(pend.pop(0))
                        A.e(cq.pop(0))
                    if k >= p - 1 and cq: A.e(cq.pop(0))
                for x in cq: A.e(x)
            else:
                p = 1
                A.e(w[0])
                while pend: A.e(pend.pop(0))
                for x in c[:2] + [w[p]] + c[2:]: A.e(x)
                for x in w[p + 1:n]: A.e(x)
            A.e(f"s_cbranch_vccnz {tgt}")
        for x in chk(0, cntn[0]): A.e(x)
        A.e(f"s_cbranch_vccnz {fl2[0]}")
        nchk = lambda b: chk(b, cntn[b], 1 if b < TJ else 8 - TJ)
        for b in range(TJ + 1):
            A.label(seg[b])
            if b > 0 and late[b - 1]: A.e(W[b - 1][-1])
            A.label(seg2[b])
            if prof and b in (0, 4, TJ): stamp({0: 2, 4: 3, TJ: 4}[b])
            if b < TJ: body(b, nchk(b + 1), fl[b + 1], late[b])
            else:
                V = [smv(i) for i in range(nv)]
                w = []; fin_idx = []
                for t0 in range(0, len(tiles), O.TG):
                    for bb in range(TJ, 8):
                        for t in tiles[t0:t0 + O.TG]: w.append(smq(t, bb))
                    fin_idx += list(range(len(w) - O.TG, len(w)))
                weave(w + V, fin_idx, [epi_qk(t) for t in tiles], win1, O.PER)
        A.label(done)
        back = seg2[TJ]
        def d():
            TM = [XN, XN + 4]
            dfl = {h: A.newlabel("dfl") for h in range(1, 4)}; dseg = {h: A.newlabel("dseg") for h in range(1, 4)}
            lap2 = A.newlabel("lap2"); lfb = A.newlabel("lfb"); Ldone = A.newlabel("Ldone")
            o3 = pref[3]; yd = lambda h: len(o3) - 1 - o3.index(("d", h))
            for b in range(TJ + 1):
                A.label(fl[b])
                if b > 0 and late[b - 1]: A.e(W[b - 1][-1])
                A.label(fl2[b])
                cnt(b >> 2)
                if b < 4:
                    A.e(ldA(b)); A.e(f"s_mov_b32 s55, {1 << b}")
                    for x in after[b]: A.e(ldA(x))
                    for x in xst(b): A.e(x)
                    rp = chk(b, yd(b))
                    if b < 3:
                        for x in chk(b + 1, cntn[b + 1]): A.e(x)
                        A.e(f"s_cbranch_vccnz {dfl[b+1]}")
                        for h in range(b + 1, 4):
                            if h < 3: body(h, chk(h + 1, cntn[h + 1]), dfl[h + 1], False)
                            else: body(h, rp, lfb, False)
                    else:
                        for x in rp: A.e(x)
                        A.e(f"s_cbranch_vccnz {lfb}")
                    A.e("s_mov_b32 s55, 0")
                    w = W[b]; c = nchk(4); p = max(1, len(w) - O.CK)
                    for x in w[:p] + c + w[p:]: A.e(x)
                    A.e(f"s_cbranch_vccnz {fl2[4]}\ns_branch {seg2[4]}")
                elif b < 7:
                    k = 8 - b
                    if b < TJ: A.e(ldA(b))
                    A.e(f"s_mov_b32 s55, {(0xff << b) & 0xff}")
                    o = list(pref[b])
                    if b <= O.KB:
                        for x in xst(O.KB): A.e(x)
                        if b < O.KB and not O.NOKVM: o += [("k", 0), ("k", 1)]
                    lp = A.newlabel("rot")
                    def visit(h, n):
                        dn = A.newlabel("rdn"); fa = A.newlabel("rfa"); nx = A.newlabel("rnx")
                        A.e(f"s_bitcmp1_b32 s55, {h}\ns_cbranch_scc0 {dn}")
                        for x in chk(h, n): A.e(x)
                        A.e(f"s_cbranch_vccnz {fa}")
                        A.e(dummy)
                        A.e(f"s_bitset0_b32 s55, {h}")
                        if h < TJ:
                            for x in W[h]: A.e(x)
                        A.e(f"s_cmp_eq_u32 s55, 0\ns_cbranch_scc1 {back}\ns_branch {nx}")
                        A.label(dn)
                        A.e(dummy); A.e(f"s_branch {nx}")
                        A.label(fa)
                        A.e(ldA(h))
                        A.label(nx)
                    for h in range(b + 1 if b < TJ else b, 8):
                        visit(h, len(o) - 1 - o.index(h)); o.append(("v", h))
                    A.label(lp)
                    if O.PROF and O.PROF != 6: A.e("s_add_u32 s51, s51, 0x10000")
                    for h in range(b, 8): visit(h, k - 1)
                    A.e(f"s_sub_u32 s90, s90, 1\ns_cmp_gt_i32 s90, 0\ns_cbranch_scc1 {lp}\ns_mov_b32 s55, 0\ns_branch {back}")
                else:
                    A.e(f"s_mov_b32 s55, 0x80\ns_branch {slow}")
            for h in range(1, 4):
                A.label(dfl[h])
                A.e(ldA(h)); A.e(f"s_bitset1_b32 s55, {h}")
                for x in after[h]: A.e(ldA(x))
                for x in xst(h): A.e(x)
                if h < 3:
                    for x in chk(h + 1, cntn[h + 1]): A.e(x)
                    A.e(f"s_cbranch_vccnz {dfl[h+1]}\ns_branch {dseg[h+1]}")
                else: A.e(f"s_branch {lap2}")
            for h in range(2, 4):
                A.label(dseg[h])
                if h < 3: body(h, chk(h + 1, cntn[h + 1]), dfl[h + 1], False)
                else:
                    pend = [dummy] + [ldA(x) for x in after[h]] + xst(h)
                    for x in W[h]:
                        A.e(x)
                        if pend: A.e(pend.pop(0))
                    for x in pend: A.e(x)
            A.label(lap2)
            cnt(4)
            for h in range(4):
                sk = A.newlabel("l2s"); fa = A.newlabel("l2f")
                A.e(f"s_bitcmp1_b32 s55, {h}\ns_cbranch_scc0 {sk}")
                for x in chk(h, yd(h)): A.e(x)
                A.e(f"s_cbranch_vccnz {sk}")
                A.e(f"s_bitset0_b32 s55, {h}")
                for x in W[h]: A.e(x)
                A.label(sk)
            A.e(f"s_cmp_eq_u32 s55, 0\ns_cbranch_scc0 {lfb}")
            A.label(Ldone)
            for x in nchk(4): A.e(x)
            A.e(f"s_cbranch_vccnz {fl2[4]}\ns_branch {seg2[4]}")
            A.label(lfb)
            deferred(range(4), ldA, lambda bb: W[bb], Ldone, 4, lambda bb: TM[:O.NPL - 1], lambda bb: O.DPL, False)
            A.label(slow)
            deferred([7], ldA, lambda bb: [], back, 4, lambda bb: TM[:O.NPR - 1], lambda bb: O.DPR, False)
        tail.append(d)
    def zero(lo=0):
        for i in range(8): A.e(f"v_mov_b32 v{XC+i}, v{XN+i}")
        for i in range(lo, 48): A.e(f"v_mov_b32 v{ACC+i}, 0")
    def mzero():
        A.e(f"v_mov_b32 v{TB}, 0")
        for i in range(3): A.e(f"v_mfma_f32_16x16x1_4b_f32 {vr(ACC+16*i,16)}, v{TB}, v{TB}, 0")
    def s_frag():
        for c in range(2):
            for w in range(4): A.e(f"ds_read_b128 {vr(ACC+(c*4+w)*4,4)}, v{V_A1} offset:{w*256 + c*16}")
    def s_frag2():
        for c in range(2):
            b = ACC + c * 16
            A.e(f"s_waitcnt lgkmcnt({6-4*c})\nv_pk_add_f32 {vr(b,2)}, {vr(b,2)}, {vr(b+4,2)}\nv_pk_add_f32 {vr(b+2,2)}, {vr(b+2,2)}, {vr(b+6,2)}")
            A.e(f"s_waitcnt lgkmcnt({4-4*c})\nv_pk_add_f32 {vr(b+8,2)}, {vr(b+8,2)}, {vr(b+12,2)}\nv_pk_add_f32 {vr(b+10,2)}, {vr(b+10,2)}, {vr(b+14,2)}")
            A.e(f"v_pk_add_f32 {vr(b,2)}, {vr(b,2)}, {vr(b+8,2)}\nv_pk_add_f32 {vr(b+2,2)}, {vr(b+2,2)}, {vr(b+10,2)}")
            A.e(f"v_cvt_pk_bf16_f32 v{KEEP+2*c}, v{b}, v{b+1}\nv_cvt_pk_bf16_f32 v{KEEP+2*c+1}, v{b+2}, v{b+3}")
    def vm_read():
        for tt in range(2):
            for h in range(2): A.e(f"ds_read2st64_b32 {vr(KEEP+tt*4+2*h,2)}, v{V_L4} offset0:{(T_V + tt*1024)//256 + 2*h} offset1:{(T_V + tt*1024)//256 + 2*h + 1}")
    def vm_sum():
        for i in range(4): A.e(f"v_mov_b32 v{PK+i}, v{V_SEL}")
        for tt in range(2): A.e(f"v_mfma_f32_16x16x32_bf16 {vr(KEEP+4*tt,4)}, {vr(PK,4)}, {vr(KEEP+4*tt,4)}, 0")
        for i in range(4): A.e(f"v_cvt_pk_bf16_f32 v{KEEP+i}, v{KEEP+2*i}, v{KEEP+2*i+1}")
    kvm_store = f"buffer_store_dwordx4 {vr(KEEP,4)}, v{PK}, s[20:23], s101 offen sc1"
    flg_store = f"buffer_store_dword v{VF}, v{PK+1}, s[20:23], s69 offen sc1"
    kvm_addr = f"v_cndmask_b32 v{PK}, 2.0, v{V_L16}, s[82:83]\nv_cndmask_b32 v{PK+1}, 2.0, v{V_L4}, s[86:87]"
    loop = A.newlabel("loop"); last = A.newlabel("last"); np0 = A.newlabel("np0"); z1 = A.newlabel("z1"); loop0 = A.newlabel("loop0")
    A.e(f"""
    s_mov_b32 s55, 0
    s_cmp_lg_u32 s50, 0
    s_cbranch_scc1 {np0}
    v_mov_b32 v{PK}, 0
    v_mov_b32 v{PK+1}, 0
    s_cmp_lg_u32 s58, 0
    s_cbranch_scc1 {z1}
    v_lshrrev_b32 v{TA}, 6, v{V_L4}
    v_lshlrev_b32 v{TA}, 12, v{TA}
    v_bfe_u32 v{TB}, v{V_L4}, 1, 5
    v_add_u32 v{TA}, v{TA}, v{TB}
    s_lshl_b32 s64, s59, 6
    buffer_load_ushort v{PK}, v{TA}, s[44:47], s64 offen
    buffer_load_ushort v{PK+2}, v{TA}, s[44:47], s64 offen offset:32
    buffer_load_ushort v{PK+1}, v{TA}, s[44:47], s64 offen offset:2048
    buffer_load_ushort v{PK+3}, v{TA}, s[44:47], s64 offen offset:2080
    s_waitcnt vmcnt(0)
    v_lshl_or_b32 v{PK}, v{PK+2}, 16, v{PK}
    v_lshl_or_b32 v{PK+1}, v{PK+3}, 16, v{PK+1}
    v_min_u32 v{PK}, s81, v{PK}
    v_min_u32 v{PK+1}, s81, v{PK+1}""")
    A.label(z1)
    def pstore(sr_, sl_):
        A.e(f"buffer_store_dword v{PK}, v{V_PRD}, s[20:23], s{sl_} offen {lst}\nbuffer_store_dword v{PK+1}, v{V_PRD}, s[20:23], s{sl_} offen offset:32 {lst}")
        A.e(f"buffer_store_dword v{PK}, v{V_PRD}, s[20:23], s{sr_} offen sc1\nbuffer_store_dword v{PK+1}, v{V_PRD}, s[20:23], s{sr_} offen offset:32 sc1")
    pstore(73, 71)
    A.label(np0)
    A.e(f"""
    v_lshrrev_b32 v{TA}, 2, v{V_L16}
    v_bfe_u32 v{TB}, v{TA}, 5, 1
    v_mul_u32_u24 v{TB}, {PODD - 32}, v{TB}
    s_and_b32 s64, s50, 1
    s_lshl_b32 s64, s64, 5
    v_add3_u32 v{V_PRD}, v{TA}, v{TB}, s64""")
    flagwait(0)
    segoff(A, 99, 79, 0, 77)
    A.e(f"""
    buffer_load_dwordx4 {vr(XN,4)}, v{V_L16}, s[20:23], s99 offen
    buffer_load_dwordx4 {vr(XN+4,4)}, v{V_L16}, s[20:23], s99 offen offset:1024
    s_waitcnt vmcnt(0)
    s_mov_b32 s92, s70
    s_mov_b32 s93, s72
    s_mov_b32 s94, s76
    s_add_u32 s95, s94, 4096
    s_mov_b32 s96, s74
    s_add_u32 s97, s96, 4096
    s_mov_b32 s98, s75
    s_barrier""")
    zero()
    A.e(f"s_cmp_gt_u32 s50, 1\ns_cbranch_scc0 {loop0}x")
    ja = A.newlabel("ja")
    A.label(loop)
    mzero()
    delay(A, O.DL - 6 - trace())
    stamp(0)
    def lloads():
        for b in range(4):
            A.e(ldA(b))
            if b < 3 and O.LI: A.e(f"s_nop {O.LI-1}")
    lloads()
    for i in range(8): A.e(f"v_mov_b32 v{XC+i}, v{XN+i}")
    A.e(f"s_branch {ja}")
    A.label(loop0 + "x")
    mzero()
    delay(A, O.DL0 - 6 - trace())
    stamp(0)
    lloads()
    A.label(ja)
    A.e(f"s_max_u32 s66, s79, 1\ns_sub_u32 s66, s66, 1\nv_mov_b32 v{VF}, s66")
    A.e(kvm_addr)
    if O.MEAS: A.e("s_cmp_eq_u32 s79, 9\ns_cselect_b32 s61, s62, s61\ns_memtime s[62:63]")
    segoff(A, 101, 66, 0, 78)
    A.e(f"s_cmp_eq_u32 s79, {nsteps-1}\ns_cbranch_scc1 {last}")
    if O.PROF in (1, 2, 5): A.e("s_waitcnt lgkmcnt(0)\ns_mov_b32 s26, s24")
    flagwait(1)
    segoff(A, 99, 79, 1, 77)
    win1 = [f"buffer_load_dwordx4 {vr(XN,4)}, v{V_L16}, s[20:23], s99 offen", f"buffer_load_dwordx4 {vr(XN+4,4)}, v{V_L16}, s[20:23], s99 offen offset:1024",
            f"buffer_load_dword v{VF}, off, s[20:23], s68 sc1",
            f"s_add_u32 s64, s79, 2", f"s_and_b32 s64, s64, {XR-1}", f"s_lshl_b32 s100, s64, 19"]
    if O.NOX: win1 = win1[3:]
    delay(A, O.WL)
    phaseA(list(range(8)), win1, O.NV1, True)
    A.e("s_waitcnt lgkmcnt(0)\ns_barrier")
    stamp(5)
    w23 = A.newlabel("w23"); ogo = A.newlabel("ogo")
    A.e(f"s_cmp_gt_u32 s50, 1\ns_cbranch_scc1 {w23}")
    nf = A.newlabel("nf")
    A.e(smv(O.NV1))
    TSET = [([AF, AF + 16, AF + 4, AF + 20], PK), ([AF + 8, AF + 24, AF + 12, AF + 28], ACC + 28)]
    def ldSet(k):
        TS, M = TSET[k]
        o = [f"buffer_load_dwordx4 {vr(TS[p],4)}, v{V_A1}, s[20:23], s{94+(p>>1)} offen offset:{(p&1)*1536} sc1" for p in range(4)]
        return o + [f"buffer_load_dword v{M+p}, v{V_A2}, s[20:23], s{94+(p>>1)} offen offset:{(p&1)*1536} sc1" for p in range(4)]
    ldS = ldSet(0)
    assert O.DS >= 16
    ex = {}; restS = []
    for k, x in enumerate(ldS):
        if O.DS + k < 32: ex[O.DS + k] = [x]
        else: restS.append(x)
    if O.DS <= 32:
        for x in vstream(O.NV1 + 1, O.VPF, ex, restS): A.e(x)
    else:
        for x in vstream(O.NV1 + 1, O.VPF, ex): A.e(x)
        delay(A, O.DS - 32)
        for x in restS: A.e(x)
    stamp(6)
    if O.S2:
        delay(A, O.DS2)
        for x in ldSet(1): A.e(x)
    stamp("S1iss")
    if O.B2POS == 0: A.e("s_waitcnt lgkmcnt(0)\ns_barrier"); vm_read()
    sp = A.newlabel("sp"); sok = A.newlabel("sok"); srt = A.newlabel("srt")
    mx, t_ = TA, TB
    T = AF; T4 = PK
    DPP8 = "row_ror:8 row_mask:0xf bank_mask:0xf"
    def schk(k, extra):
        TS, M = TSET[k]; U = TS[2]; X = TS[0]
        A.e(f"""
        s_waitcnt vmcnt({6+extra})""")
        if k == 0: stamp("Sarr")
        A.e(f"""
        v_pk_add_f32 {vr(X,2)}, {vr(X,2)}, {vr(TS[1],2)}
        v_pk_add_f32 {vr(X+2,2)}, {vr(X+2,2)}, {vr(TS[1]+2,2)}
        s_waitcnt vmcnt({4+extra})""")
        if k == 0: stamp("Sarr2")
        A.e(f"""
        v_pk_add_f32 {vr(U,2)}, {vr(U,2)}, {vr(TS[3],2)}
        v_pk_add_f32 {vr(U+2,2)}, {vr(U+2,2)}, {vr(TS[3]+2,2)}
        v_pk_add_f32 {vr(X,2)}, {vr(X,2)}, {vr(U,2)}
        v_pk_add_f32 {vr(X+2,2)}, {vr(X+2,2)}, {vr(U+2,2)}
        v_max3_f32 v{mx}, v{X}, v{X+1}, v{X+2}
        v_pk_add_f32 {vr(U,2)}, {vr(X,2)}, {vr(X+2,2)}
        s_waitcnt vmcnt({extra})""")
        if k == 0: stamp("Sarr3")
        A.e(f"""
        v_pk_add_f32 {vr(M,2)}, {vr(M,2)}, {vr(M+2,2)}
        v_add_f32 v{M}, v{M}, v{M+1}
        v_max3_f32 v{mx}, v{mx}, v{X+3}, v{M}
        v_add_f32 v{U}, v{U}, v{M}
        v_cmp_u_f32 vcc, v{U}, v{U+1}
        v_max_f32_dpp v{mx}, v{mx}, v{mx} {DPP8}
        v_mov_b32 v{t_}, v{mx}""")
    A.label(sp)
    schk(0, 8 if O.S2 else 0)
    A.e(f"s_cbranch_vccnz {srt}")
    A.label(sok)
    def d():
        A.label(srt)
        cnt(2)
        A.e(f"s_sub_u32 s90, s90, 1\ns_cmp_gt_i32 s90, 0\ns_cbranch_scc0 {sok}")
        if O.S2:
            y2 = A.newlabel("y2")
            schk(1, 0)
            A.e(f"s_cbranch_vccnz {y2}")
            for i in range(4): A.e(f"v_mov_b32 v{T+i}, v{TSET[1][0][0]+i}")
            A.e(f"v_mov_b32 v{T4}, v{TSET[1][1]}\ns_branch {sok}")
            A.label(y2)
            for x in ldSet(0): A.e(x)
            delay(A, 4)
            for x in ldSet(1): A.e(x)
        else:
            for x in ldS: A.e(x)
        A.e(f"s_branch {sp}")
    tail.append(d)
    stamp(7)
    PF = ACC; PM = ACC + 4; OD = ACC + 8; SD = ACC + 16
    A.e(f"""
    v_permlane16_swap_b32 v{t_}, v{mx}
    v_max_f32 v{mx}, v{mx}, v{t_}
    v_mov_b32 v{t_}, v{mx}
    v_permlane32_swap_b32 v{t_}, v{mx}
    v_max_f32 v{mx}, v{mx}, v{t_}
    v_mul_f32 v{mx}, s80, v{mx}""")
    vals = [T, T + 1, T + 2, T + 3, T4]
    for v in vals: A.e(f"v_fma_f32 v{v}, v{v}, s80, -v{mx}")
    def b2(pos):
        if O.B2POS == pos: A.e("s_waitcnt lgkmcnt(0)\ns_barrier"); vm_read()
    b2(1)
    stamp("pB2")
    SU = SD + 2
    for v in vals[:4]: A.e(f"v_exp_f32 v{v}, v{v}")
    A.e(f"""
    v_cvt_pk_bf16_f32 v{PF}, v{T}, v{T+1}
    v_cvt_pk_bf16_f32 v{PF+1}, v{T+2}, v{T+3}
    v_exp_f32 v{T4}, v{T4}
    v_mov_b32_dpp v{PF+2}, v{PF} {DPP8}
    v_mov_b32_dpp v{PF+3}, v{PF+1} {DPP8}""")
    b2(2)
    A.e(f"""
    v_mov_b32_dpp v{T4+1}, v{T4} {DPP8}
    v_cvt_pk_bf16_f32 v{PM}, v{T4}, v{T4+1}
    v_mfma_f32_16x16x32_bf16 {vr(SD,4)}, {vr(V_C,4)}, {vr(PF,4)}, 0
    v_mov_b32 v{PM+1}, v{PM}
    v_mfma_f32_16x16x32_bf16 {vr(OD,4)}, {vr(XC,4)}, {vr(PF,4)}, 0
    v_mov_b32 v{PM+2}, v{PM}
    v_mov_b32 v{PM+3}, v{PM}
    v_mfma_f32_16x16x32_bf16 {vr(OD+4,4)}, {vr(XC+4,4)}, {vr(PF,4)}, 0
    v_mfma_f32_16x16x32_bf16 {vr(SD,4)}, {vr(V_C+4,4)}, {vr(PM,4)}, {vr(SD,4)}""")
    stamp("pv1")
    b2(3)
    A.e(f"""
    s_waitcnt lgkmcnt(0)
    v_mfma_f32_16x16x32_bf16 {vr(OD,4)}, {vr(KEEP,4)}, {vr(PM,4)}, {vr(OD,4)}
    v_mfma_f32_16x16x32_bf16 {vr(OD+4,4)}, {vr(KEEP+4,4)}, {vr(PM,4)}, {vr(OD+4,4)}
    v_rcp_f32 v{SU}, v{SD}""")
    stamp("pv2")
    rdW = [f"ds_read_b128 {vr(ACC+q*4,4)}, v{V_WO} offset:{LO(0)+q*1024}" for q in range(12)]
    for i in range(4): A.e(f"v_pk_mul_f32 {vr(OD+2*i,2)}, {vr(OD+2*i,2)}, {vr(SU,2)} op_sel_hi:[1,0]")
    for i in range(4): A.e(f"v_cvt_pk_bf16_f32 v{PK+i}, v{OD+2*i}, v{OD+2*i+1}")
    A.e(f"buffer_store_dwordx4 {vr(PK,4)}, v{V_OST}, s[20:23], s98 offen {lst}")
    stamp(8)
    ldO = lambda b, r=None: f"buffer_load_dwordx4 {vr(AF+b*4 if r is None else r,4)}, v{V_L16}, s[20:23], s{96 + (b>>2)} offen offset:{(b&3)*1024} sc1"
    book = f"""s_add_u32 s79, s79, 1
    s_and_b32 s64, s79, {XR-1}
    s_lshl_b32 s64, s64, 19
    s_lshl_b32 s65, s79, 8
    s_and_b32 s65, s65, 0x2000
    s_lshl_b32 s66, s79, 16
    s_xor_b32 s88, s73, s65
    s_add_u32 s88, s88, s66
    s_sub_u32 s88, s88, s54
    s_add_u32 s89, s71, s64
    s_add_u32 s92, s70, s64
    s_xor_b32 s93, s72, s65
    s_add_u32 s93, s93, s66
    s_add_u32 s94, s76, s64
    s_add_u32 s95, s94, 4096
    s_add_u32 s98, s75, s64
    s_add_u32 s60, s74, s64""".split("\n")
    def oloads(fill):
        fill = list(fill)
        for b in range(8):
            A.e(ldO(b))
            if b < 7 and O.OI:
                n = O.OI
                while n > 0 and fill:
                    x = fill.pop(0); A.e(x); n -= 4 if "mfma" in x else (int(x.split()[1]) + 1 if "s_nop" in x else 1)
                if n > 0: A.e(f"s_nop {n-1}")
        for x in fill: A.e(x)
    A.e("s_barrier")
    for x in rdW + [f"v_mov_b32 v{XC+i}, 0" for i in range(8)]: A.e(x)
    delay(A, O.DO01)
    stamp(9)
    i0 = len(A.lines); vm_sum(); VS = [x.strip() for x in A.lines[i0:]]; del A.lines[i0:]
    oloads(VS[:6] + book + VS[6:])
    A.e(f"s_branch {ogo}")
    A.label(w23)
    s_frag()
    for i in range(O.NV1, O.NV1 + O.NV2): A.e(smv(i))
    stamp("sf1")
    s_frag2()
    stamp("sf2")
    SD2 = [KEEP + 4, PK, V_C + 4]
    A.e(f"""
    v_mfma_f32_16x16x32_bf16 {vr(SD2[0],4)}, {vr(XC,4)}, {vr(KEEP,4)}, 0
    v_mfma_f32_16x16x32_bf16 {vr(SD2[1],4)}, {vr(XC+4,4)}, {vr(KEEP,4)}, 0
    v_mfma_f32_16x16x32_bf16 {vr(SD2[2],4)}, {vr(KEEP,4)}, {vr(KEEP,4)}, 0""")
    for x in vfill[:5]: A.e(x)
    A.e(f"""
    buffer_store_dwordx4 {vr(SD2[0],4)}, v{V_A2}, s[20:23], s94 offen {lst}
    buffer_store_dwordx4 {vr(SD2[1],4)}, v{V_A2}, s[20:23], s94 offen offset:512 {lst}
    buffer_store_dwordx4 {vr(SD2[2],4)}, v{V_A2}, s[20:23], s94 offen offset:1024 {lst}""")
    stamp(6)
    for x in vfill[5:]: A.e(x)
    for x in vstream(O.NV1 + O.NV2, None): A.e(x)
    stamp("vend")
    for i in range(O.KW2): A.e(f"v_mfma_f32_16x16x32_bf16 {vr(AF+16,4)}, {vr(AF,4)}, {vr(AF,4)}, {vr(AF+16,4)}")
    A.e("s_waitcnt lgkmcnt(0)\ns_barrier")
    stamp(7)
    for x in rdW: A.e(x)
    A.e(f"""
    s_add_u32 s65, s76, s100
    s_add_u32 s66, s75, s100
    s_add_u32 s64, s71, s100
    s_cmp_eq_u32 s50, 2
    s_cselect_b32 s66, s66, s64
    buffer_store_dwordx4 {vr(V_C,4)}, v{V_L16}, s[20:23], s65 offen {lst}
    s_cmp_eq_u32 s50, 2
    s_cselect_b32 exec_hi, -1, 0
    buffer_store_dwordx4 {vr(V_C,4)}, v{V_L16}, s[20:23], s66 offen {lst}
    s_mov_b32 exec_hi, 0
    buffer_store_dwordx4 {vr(V_C,4)}, v{V_L16}, s[20:23], s65 offen offset:1024 {lst}
    s_mov_b64 exec, -1""")
    for i in range(8): A.e(f"v_mov_b32 v{XC+i}, 0")
    A.e("s_barrier")
    stamp(8)
    delay(A, O.DO)
    stamp(9)
    oloads(book)
    A.label(ogo)
    A.e("s_waitcnt lgkmcnt(0)")
    delay(A, O.WO)
    smo = lambda t, b: f"v_smfmac_f32_16x16x64_bf16 {vr(XC+t*4,4)}, {vr(AF+b*4,4)}, {vr((ACC+b*16 if b < 3 else wo_reg(b))+t*8,8)}, v{V_IDX}"
    groups = [(0, 2), (2, 2), (4, 2), (6, 1), (7, 1)] if O.OPAIR else [(b, 1) for b in range(8)]
    def ophase():
        F = [A.newlabel("of") for _ in groups]; N = [A.newlabel("on") for _ in groups]
        slow = A.newlabel("oslow"); back = A.newlabel("oback")
        work = lambda gi: [smo(t, bb) for bb in range(groups[gi][0], groups[gi][0] + groups[gi][1]) for t in range(2)]
        gchk = lambda gi, ex: chk(groups[gi][0], 8 - groups[gi][0] - groups[gi][1] + ex, groups[gi][1])
        mask = lambda gi: ((1 << groups[gi][1]) - 1) << groups[gi][0]
        rfl = [] if O.NOX else [f"v_readfirstlane_b32 s91, v{VF}"]
        for x in gchk(0, 0): A.e(x)
        A.e(f"s_cbranch_vccnz {F[0]}")
        ng = len(groups)
        for gi in range(ng):
            if gi in (0, ng - 1): stamp(10 if gi == 0 else 11)
            for x in work(gi): A.e(x)
            if gi == 0:
                for x in rfl: A.e(x)
            if gi + 1 < ng:
                for x in gchk(gi + 1, 0): A.e(x)
                A.e(f"s_cbranch_vccnz {F[gi+1]}")
        A.label(back)
        def d():
            lap2 = A.newlabel("olap2")
            yd = lambda h: sum(groups[j][1] for j in range(h + 1, ng))
            dumO = f"buffer_load_dword v{PK}, off, s[20:23], s96 sc1"
            for gi, (b, nb) in enumerate(groups):
                A.label(F[gi])
                cnt(3)
                A.e(f"s_mov_b32 s55, {mask(gi)}")
                if gi == ng - 1: A.e(f"s_branch {slow}"); continue
                for bb in range(b, b + nb): A.e(ldO(bb))
                if gi == 0:
                    for x in rfl: A.e(x)
                ex = nb; stubs = []
                for h in range(gi + 1, ng):
                    st = A.newlabel("ost"); rt = A.newlabel("ort")
                    for x in gchk(h, ex): A.e(x)
                    A.e(f"s_cbranch_vccnz {st}")
                    w = work(h)
                    for k, x in enumerate(w):
                        A.e(x)
                        if k < groups[h][1]: A.e(dumO)
                    A.label(rt)
                    stubs.append((h, st, rt)); ex += groups[h][1]
                nf = A.newlabel("onf")
                for x in chk(b, yd(gi), nb): A.e(x)
                A.e(f"s_cbranch_vccnz {lap2}\ns_andn2_b32 s55, s55, {mask(gi)}")
                for x in work(gi): A.e(x)
                A.e(f"s_cbranch_scc0 {back}\ns_branch {lap2}")
                for h, st, rt in stubs:
                    A.label(st)
                    for bb in range(groups[h][0], groups[h][0] + groups[h][1]): A.e(ldO(bb))
                    A.e(f"s_or_b32 s55, s55, {mask(h)}\ns_branch {rt}")
            A.label(lap2)
            cnt(4)
            for h in range(ng):
                sk = A.newlabel("l2s")
                A.e(f"s_bitcmp1_b32 s55, {groups[h][0]}\ns_cbranch_scc0 {sk}")
                for x in chk(groups[h][0], yd(h), groups[h][1]): A.e(x)
                A.e(f"s_cbranch_vccnz {sk}")
                A.e(f"s_andn2_b32 s55, s55, {mask(h)}")
                for x in work(h): A.e(x)
                A.label(sk)
            A.e(f"s_cmp_eq_u32 s55, 0\ns_cbranch_scc1 {back}")
            A.label(slow)
            deferred(range(8), ldO, lambda bb: [smo(0, bb), smo(1, bb)], back, 4, lambda bb: [KEEP + 4, PK][:O.NPL - 1], lambda bb: O.DPL)
        tail.append(d)
    ophase()
    for t in range(2):
        a = XC + t * 4
        A.e(f"v_add_f32 v{a}, v{a}, v{a+1}\nv_add_f32 v{a+2}, v{a+2}, v{a+3}")
    for t in range(2):
        for u in range(2): A.e(f"ds_write_addtid_b32 v{XC+t*4+2*u} offset:{T_P + u*PODD + t*1024}")
    A.e(f"s_mov_b32 s96, s60\ns_add_u32 s97, s60, 4096\ns_cmp_gt_u32 s50, 1\ns_waitcnt lgkmcnt(0)\ns_barrier")
    stamp("B3")
    A.e(f"s_cbranch_scc1 {loop}")
    for w in range(4): A.e(f"ds_read2st64_b32 {vr(ACC+2*w,2)}, v{V_PRD} offset0:{T_P//256 + w} offset1:{T_P//256 + 4 + w}")
    for i in range(8): A.e(f"v_mov_b32 v{XC+i}, v{XN+i}")
    A.e(f"""
    s_waitcnt lgkmcnt(2)
    v_pk_add_f32 {vr(ACC,2)}, {vr(ACC,2)}, {vr(ACC+2,2)}
    s_waitcnt lgkmcnt(0)
    v_pk_add_f32 {vr(ACC+4,2)}, {vr(ACC+4,2)}, {vr(ACC+6,2)}
    v_pk_add_f32 {vr(ACC,2)}, {vr(ACC,2)}, {vr(ACC+4,2)}
    v_cvt_pk_bf16_f32 v{TA}, v{ACC}, v{ACC+1}
    buffer_store_dword v{TA}, v{V_L4}, s[20:23], s89 offen {lst}""")
    if O.PN: A.e(f"s_nop {O.PN-1}")
    A.e(f"buffer_store_dword v{TA}, v{V_L4}, s[20:23], s88 offen sc1")
    stamp(12)
    A.e(f"s_branch {loop0}x")
    A.label(last)
    phaseA(list(range(4, 8)), [], 8, False)
    A.e("s_waitcnt vmcnt(0) lgkmcnt(0)")
    segoff(A, 101, 79, 0, 78)
    for x in vstream(8, 8): A.e(x)
    A.e("s_waitcnt lgkmcnt(0)\ns_barrier")
    l23 = A.newlabel("l23"); lj = A.newlabel("lj")
    A.e(f"s_cmp_gt_u32 s50, 1\ns_cbranch_scc1 {l23}")
    vm_read(); A.e("s_waitcnt lgkmcnt(0)"); vm_sum()
    A.e(f"s_branch {lj}")
    A.label(l23)
    s_frag(); s_frag2()
    A.label(lj)
    A.e(kvm_addr)
    A.e(kvm_store)
    A.e(f"s_waitcnt vmcnt(0)\ns_barrier\nv_mov_b32 v{VF}, {nsteps}")
    A.e(flg_store)
    A.e(f"s_branch {fin}")
    for f in tail: f()

def rec_standalone(A, name, par):
    A.begin_kernel(name)
    done = A.newlabel("done"); fin = A.newlabel("fin")
    A.e(f"""
    s_getreg_b32 s51, hwreg(HW_REG_XCC_ID)
    s_and_b32 s51, s51, 7
    s_cmp_ge_u32 s2, 256
    s_cbranch_scc1 {done}
    s_cmp_ge_u32 s51, 2
    s_cbranch_scc1 {done}
    s_load_dwordx8 s[4:11], s[0:1], {ARG['mem0']*8}
    s_load_dwordx2 s[12:13], s[0:1], {ARG['Wo']*8}
    s_load_dwordx2 s[18:19], s[0:1], {ARG['ws']*8}
    v_lshrrev_b32 v2, 6, v0
    s_lshr_b32 s57, s2, 3
    s_lshl_b32 s64, s51, 5
    s_add_u32 s57, s57, s64
    v_readfirstlane_b32 s50, v2
    s_mov_b32 s90, {O.BUDGET}
    s_load_dwordx2 s[16:17], s[0:1], {ARG['dbg']*8}
    s_mov_b32 s56, 0
    s_mov_b32 s51, 0
    s_waitcnt lgkmcnt(0)""")
    A.srd(20, 18, WS_BYTES)
    A.e("s_load_dword s67, s[16:17], 0\ns_waitcnt lgkmcnt(0)")
    rec_setup(A); rec_bases(A)
    A.e("s_barrier\ns_memrealtime s[52:53]\ns_memtime s[14:15]")
    for i in range(24, 44): A.e(f"s_mov_b32 s{i}, 0")
    A.e(f"s_lshl_b32 s16, s57, 2\ns_add_u32 s16, s16, s50\ns_lshl_b32 s16, s16, 12\ns_add_u32 s16, s16, {STAMP + MB}")
    rec_loop(A, "", fin)
    A.label(fin)
    A.e("s_memrealtime s[54:55]\ns_memtime s[16:17]\ns_waitcnt lgkmcnt(0)\nv_mov_b32 v20, 0\ns_sub_u32 s24, s16, s14")
    for i in range(13): A.e(f"v_writelane_b32 v20, s{24+2*i}, {i}")
    for i in range(8): A.e(f"v_writelane_b32 v20, s{26+i}, {17+i}")
    A.e("v_writelane_b32 v20, s14, 25\nv_writelane_b32 v20, s16, 26\ns_sub_u32 s62, s62, s61\nv_writelane_b32 v20, s62, 27")
    A.e(f"v_writelane_b32 v20, s52, 13\nv_writelane_b32 v20, s54, 14\nv_writelane_b32 v20, s{56 if O.PROF else 90}, 15\nv_writelane_b32 v20, s51, 16")
    A.e(f"s_lshl_b32 s64, s57, 2\ns_add_u32 s64, s64, s50\ns_lshl_b32 s64, s64, 7\ns_add_u32 s64, s64, {STAMP}\nv_lshrrev_b32 v21, 2, v{V_L16}\ns_mov_b32 exec_hi, 0\nbuffer_store_dword v20, v21, s[20:23], s64 offen")
    A.label(done)
    A.e("s_endpgm")
    A.end_kernel(512, 102, 256)
    A.launch(name, (256,), (256,), LDS_BYTES)

if __name__ == "__main__":
    out = sys.argv[1]
    A = Asm()
    variants = eval(sys.argv[2]) if len(sys.argv) > 2 else [dict()]
    base = {k: v for k, v in vars(Opt).items() if not k.startswith("_")}
    for i, v in enumerate(variants):
        for k, x in base.items(): setattr(O, k, x)
        par = v.pop("par", 0)
        for k, x in v.items(): setattr(O, k, x)
        if 'DL0' not in v: O.DL0 = max(0, O.DL - 9)
        if 'DO01' not in v: O.DO01 = max(0, O.DO - 7)
        MFMA_WS[0] = O.MWS
        rec_standalone(A, f"r{i}_p{par}_" + "_".join(f"{k}{int(x) if not isinstance(x, tuple) else ''.join('m' if y < 0 else str(y) for y in x)}" for k, x in v.items() if k != "XS") + "_kernel", par)
    A.lines = fix_hazards(A.lines)
    t = A.text()
    open(out, "w").write(t)
    check_hazards(t)
```

```python
import sys
sys.path.insert(0, "..")
from asmgen import *
from lay import *
import rec6
from rec6 import f2u, LOG2E, SCL
NAME = "adaLN_cond__memory_aug_recurrent_mem_tr__mixer_s_mlp__prompt"
GELU_C0 = -2.0 * 0.7978845608028654 * LOG2E
GELU_C1 = GELU_C0 * 0.044715
NEG = 0xff800000
class F:
    PROF = 0; PSL = 4; QD = 5; QM = 46; GD = 6; GM = 22; ABAR = 1; BUD = 40000; FORCE_SLOW = 0; LATE = 0; OFF = ()
WSRD = "s[20:23]"
D_ = D
XO = (1, 2, 3, 0)

def ldptr(A, s, name): A.e(f"s_load_dwordx2 s[{s}:{s+1}], s[0:1], {ARG[name]*8}")

def init_kernel(A, name):
    A.begin_kernel(name)
    done = A.newlabel("done"); nz = A.newlabel("nz"); n2 = A.newlabel("n2")
    A.e(f"s_cmp_ge_u32 s2, 256\ns_cbranch_scc1 {done}")
    A.e(f"s_load_dwordx4 s[4:7], s[0:1], {ARG['c']*8}")
    ldptr(A, 8, "ws")
    A.e(f"""
    v_and_b32 v1, 3, v0
    v_lshrrev_b32 v2, 2, v0
    v_mul_u32_u24 v3, {6144*2}, v2
    v_lshl_add_u32 v3, v1, 4, v3
    s_lshl_b32 s24, s2, 6
    v_lshlrev_b32 v4, 1, v2
    v_mov_b32 v40, -1
    v_mov_b32 v41, -1
    v_mov_b32 v42, -1
    v_mov_b32 v43, -1
    v_lshlrev_b32 v44, 4, v0
    s_lshl_b32 s28, s2, 14
    s_add_u32 s28, s28, {R_PR}
    s_waitcnt lgkmcnt(0)""")
    A.srd(12, 4, 2048); A.srd(16, 6, 1024 * 6144 * 2); A.srd(20, 8, WS_BYTES)
    A.e(f"buffer_store_dwordx4 v[40:43], v44, s[20:23], s28 offen\ns_cmp_ge_u32 s2, 192\ns_cbranch_scc1 {nz}")
    for i in range(4):
        A.e(f"s_add_u32 s25, s24, {i*256*6144*2}\nbuffer_load_dwordx4 v[{16+4*i}:{19+4*i}], v3, s[16:19], s25 offen\nbuffer_load_ushort v{8+i}, v4, s[12:15], 0 offen offset:{i*512}")
    for i in range(8): A.e(f"v_mov_b32 v{32+i}, 0")
    A.e(f"s_mov_b32 s26, {f2u(-LOG2E):#x}\ns_mov_b32 s27, 0xffff0000\ns_waitcnt vmcnt(0)")
    for i in range(4):
        c = 8 + i
        A.e(f"v_lshlrev_b32 v{c}, 16, v{c}\nv_mul_f32 v5, s26, v{c}\nv_exp_f32 v5, v5\nv_add_f32 v5, 1.0, v5\nv_rcp_f32 v5, v5\nv_mul_f32 v5, v5, v{c}\nv_cvt_pk_bf16_f32 v5, v5, v5\nv_and_b32 v{c}, s27, v5")
        for j in range(4):
            w = 16 + 4 * i + j
            A.e(f"v_lshlrev_b32 v6, 16, v{w}\nv_and_b32 v7, s27, v{w}\nv_fmac_f32 v{32+2*j}, v6, v{c}\nv_fmac_f32 v{33+2*j}, v7, v{c}")
    A.e("""
    v_lshlrev_b32 v5, 5, v0
    ds_write_b128 v5, v[32:35]
    ds_write_b128 v5, v[36:39] offset:16
    v_and_b32 v1, 31, v0
    v_lshrrev_b32 v2, 5, v0
    v_lshlrev_b32 v3, 10, v2
    v_lshl_add_u32 v3, v1, 2, v3
    s_waitcnt lgkmcnt(0)
    s_barrier""")
    def sum8():
        for i in range(8): A.e(f"ds_read_b32 v{8+i}, v3 offset:{i*128}")
        A.e("s_waitcnt lgkmcnt(0)\nv_add_f32 v8, v8, v9\nv_add_f32 v10, v10, v11\nv_add_f32 v12, v12, v13\nv_add_f32 v14, v14, v15\nv_add_f32 v8, v8, v10\nv_add_f32 v12, v12, v14\nv_add_f32 v8, v8, v12")
    sum8()
    A.e("s_barrier\nv_lshlrev_b32 v5, 2, v0\nds_write_b32 v5, v8\nv_and_b32 v2, 3, v2\nv_lshlrev_b32 v3, 10, v2\nv_lshl_add_u32 v3, v1, 2, v3\ns_waitcnt lgkmcnt(0)\ns_barrier")
    sum8()
    A.e("s_barrier\nds_write_b32 v5, v8\nv_lshlrev_b32 v3, 2, v1\ns_waitcnt lgkmcnt(0)\ns_barrier")
    for i in range(4): A.e(f"ds_read_b32 v{8+i}, v3 offset:{i*128}")
    A.e(f"""
    s_waitcnt lgkmcnt(0)
    v_add_f32 v8, v8, v9
    v_add_f32 v10, v10, v11
    v_add_f32 v8, v8, v10
    v_cvt_pk_bf16_f32 v8, v8, v8
    v_and_b32 v8, s27, v8
    s_lshl_b32 s24, s2, 7
    s_add_u32 s24, s24, {MOD}
    v_cmp_gt_u32 vcc, 32, v0
    s_and_saveexec_b64 s[36:37], vcc
    s_cbranch_execz {done}
    buffer_store_dword v8, v3, s[20:23], s24 offen
    s_branch {done}""")
    A.label(nz)
    A.e(f"""
    s_sub_u32 s3, s2, 192
    s_lshl_b32 s28, s3, 15
    s_add_u32 s28, s28, {RING}
    buffer_store_dwordx4 v[40:43], v44, s[20:23], s28 offen
    s_add_u32 s28, s28, 16384
    buffer_store_dwordx4 v[40:43], v44, s[20:23], s28 offen
    s_add_u32 s28, s28, {XP - RING}
    buffer_store_dwordx4 v[40:43], v44, s[20:23], s28 offen
    s_sub_u32 s28, s28, 16384
    buffer_store_dwordx4 v[40:43], v44, s[20:23], s28 offen
    v_mov_b32 v12, 0
    v_mov_b32 v13, 0
    v_mov_b32 v14, 0
    v_mov_b32 v15, 0
    s_cmp_ge_u32 s3, 20
    s_cbranch_scc1 {done}
    s_lshl_b32 s28, s3, 14
    s_add_u32 s28, s28, {FLG}
    s_cmp_lt_u32 s3, 16
    s_cbranch_scc1 {n2}
    s_and_b32 s28, s3, 1
    s_lshl_b32 s28, s28, 14
    s_add_u32 s28, s28, {G1 - 32768}
    s_cmp_lt_u32 s3, 18
    s_cselect_b32 s29, 0, {(NU+1)*32768}
    s_add_u32 s28, s28, s29""")
    A.label(n2)
    A.e("buffer_store_dwordx4 v[12:15], v44, s[20:23], s28 offen")
    A.label(done)
    A.e("s_endpgm")
    A.end_kernel(48, 48)
    A.launch(name, (256,), (1024,), 32768)

def row_lanes(A, sj, R):
    A.e(f"""
    v_and_b32 v2, 3, v1                ; row3
    v_lshrrev_b32 v3, 2, v1            ; c
    s_lshl_b32 s64, s{sj}, 2
    v_add_u32 v4, s64, v2
    s_lshl_b32 s65, s50, 9
    v_lshlrev_b32 v5, 4, v3
    v_add_u32 v5, s65, v5
    v_lshl_add_u32 v{R['RM']}, v4, 11, v5
    v_lshlrev_b32 v{R['CO']}, 1, v5
    v_lshrrev_b32 v5, 2, v3            ; f3
    v_and_b32 v3, 3, v3                ; g
    s_lshl_b32 s65, s50, 13
    v_lshlrev_b32 v5, 10, v5
    v_lshl_add_u32 v5, v3, 8, v5
    v_lshl_add_u32 v5, v4, 4, v5
    v_add_u32 v{R['FR']}, s65, v5
    s_lshl_b32 s65, s50, 9
    v_lshlrev_b32 v5, 3, v1
    v_add_u32 v{R['SW']}, s65, v5
    v_lshlrev_b32 v{R['SR']}, 3, v2""")
def load_consts(A, R, idx, dst, s=64):
    A.e(f"s_mov_b32 s{s}, {MOD + idx*4096}")
    for a in range(2):
        for t in range(2): A.e(f"buffer_load_dwordx4 {vr(dst + a*8 + t*4, 4)}, v{R['CO']}, {WSRD}, s{s} offen offset:{a*512 + t*16}")
def ln_core(A, V, C1, SB, T, R, lds, PK):
    s1, s2, u1, u2, t = T, T + 1, T + 2, T + 3, T + 4
    A.e(f"v_add_f32 v{s1}, v{V}, v{V+1}\nv_mul_f32 v{s2}, v{V}, v{V}\nv_add_f32 v{u1}, v{V+2}, v{V+3}\nv_mul_f32 v{u2}, v{V+1}, v{V+1}")
    A.e(f"v_fmac_f32 v{s2}, v{V+2}, v{V+2}\nv_fmac_f32 v{u2}, v{V+3}, v{V+3}")
    for i in range(4, 16, 2):
        A.e(f"v_add_f32 v{s1}, v{s1}, v{V+i}\nv_fmac_f32 v{s2}, v{V+i}, v{V+i}\nv_add_f32 v{u1}, v{u1}, v{V+i+1}\nv_fmac_f32 v{u2}, v{V+i+1}, v{V+i+1}")
    A.e(f"v_add_f32 v{s1}, v{s1}, v{u1}\nv_add_f32 v{s2}, v{s2}, v{u2}")
    for ror in (4, 8):
        for s in (s1, s2): A.e(f"v_add_f32_dpp v{s}, v{s}, v{s} row_ror:{ror} row_mask:0xf bank_mask:0xf")
    for sw in ("v_permlane16_swap_b32", "v_permlane32_swap_b32"):
        A.e(f"v_mov_b32 v{u1}, v{s1}\nv_mov_b32 v{u2}, v{s2}\n{sw} v{u1}, v{s1}\n{sw} v{u2}, v{s2}\nv_add_f32 v{s1}, v{s1}, v{u1}\nv_add_f32 v{s2}, v{s2}, v{u2}")
    A.e(f"ds_write_b64 v{R['SW']}, {vr(s1,2)} offset:{lds}\ns_waitcnt lgkmcnt(0)\ns_barrier")
    for w in range(4): A.e(f"ds_read_b64 {vr(t+2*w,2)}, v{R['SR']} offset:{lds + w*512}")
    A.e("s_waitcnt lgkmcnt(0)")
    stats_fin(A, t, s1, s2)
    for i in range(16): A.e(f"v_fma_f32 v{V+i}, v{V+i}, v{s2}, v{s1}")
    for i in range(16): A.e(f"v_fma_f32 v{V+i}, v{V+i}, v{C1+i}, v{SB+i}")
    for i in range(8): A.e(f"v_cvt_pk_bf16_f32 v{PK+i}, v{V+2*i}, v{V+2*i+1}")
def stats_fin(A, t, nm, rs, mode=0):
    A.e(f"""
    v_add_f32 v{t}, v{t}, v{t+2}
    v_add_f32 v{t+1}, v{t+1}, v{t+3}
    v_add_f32 v{t+4}, v{t+4}, v{t+6}
    v_add_f32 v{t+5}, v{t+5}, v{t+7}
    v_add_f32 v{t}, v{t}, v{t+4}
    v_add_f32 v{t+1}, v{t+1}, v{t+5}
    v_mul_f32 v{nm}, {f2u(-1/1024):#x}, v{t}
    v_mul_f32 v{t+2}, v{nm}, v{nm}
    v_mul_f32 v{t+1}, {f2u(1/1024):#x}, v{t+1}
    v_sub_f32 v{t+1}, v{t+1}, v{t+2}
    v_max_f32 v{t+1}, 0, v{t+1}
    v_add_f32 v{t+1}, {f2u(1e-5):#x}, v{t+1}
    v_rsq_f32 v{rs}, v{t+1}""")
    if mode == 0: A.e(f"v_mul_f32 v{nm}, v{nm}, v{rs}")
def unpack(A, src, dst, n):
    for i in range(n): A.e(f"v_lshlrev_b32 v{dst+2*i}, 16, v{src+i}\nv_and_b32 v{dst+2*i+1}, s73, v{src+i}")

def ln1_kernel(A, name):
    A.begin_kernel(name)
    done = A.newlabel("done")
    R = dict(RM=8, CO=9, FR=10, SW=11, SR=12)
    A.e(f"s_cmp_ge_u32 s2, 512\ns_cbranch_scc1 {done}")
    ldptr(A, 4, "x"); ldptr(A, 8, "ws")
    A.e("v_and_b32 v1, 63, v0\nv_lshrrev_b32 v2, 6, v0\ns_and_b32 s40, s2, 3\ns_lshr_b32 s41, s2, 2\ns_lshl_b32 s41, s41, 15\nv_readfirstlane_b32 s50, v2\ns_mov_b32 s73, 0xffff0000")
    row_lanes(A, 40, R)
    A.e("s_waitcnt lgkmcnt(0)")
    A.srd(28, 4, S * D * 2); A.srd(20, 8, WS_BYTES)
    for a in range(2): A.e(f"buffer_load_dwordx4 {vr(16+4*a,4)}, v{R['RM']}, s[28:31], s41 offen offset:{a*256}")
    load_consts(A, R, 1, 48, 64); load_consts(A, R, 0, 64, 65)
    A.e("s_waitcnt vmcnt(8)")
    unpack(A, 16, 32, 8)
    A.e("s_waitcnt vmcnt(0)")
    for i in range(16): A.e(f"v_add_f32 v{48+i}, 1.0, v{48+i}")
    ln_core(A, 32, 48, 64, 80, R, 0, 16)
    A.e(f"s_add_u32 s41, s41, {HB}\ns_add_u32 s42, s41, 4096")
    for a in range(2): A.e(f"buffer_store_dwordx4 {vr(16+4*a,4)}, v{R['FR']}, {WSRD}, s{41+a} offen")
    A.label(done)
    A.e("s_endpgm")
    A.end_kernel(96, 80)
    A.launch(name, (512,), (256,), 2048)

def verify(A, L, need_par):
    ok = A.newlabel("vok"); vp = A.newlabel("vpoll"); vg = A.newlabel("vgot"); pp = A.newlabel("pp"); pg = A.newlabel("pg")
    A.e(f"""
    s_mov_b32 s67, 0
    s_cmp_eq_u32 s56, 1
    s_cbranch_scc1 {ok}
    v_mbcnt_lo_u32_b32 v16, -1, 0
    v_and_b32 v16, 7, v16
    v_lshlrev_b32 v16, 7, v16
    s_mov_b32 s64, {XCNT}""")
    A.label(vp)
    A.e(f"buffer_load_dword v17, v16, {WSRD}, s64 offen sc1\ns_waitcnt vmcnt(0)")
    for x in range(8): A.e(f"v_readlane_b32 s{92+x}, v17, {x}")
    A.e("s_add_u32 s65, s92, s93")
    for x in range(2, 8): A.e(f"s_add_u32 s65, s65, s{92+x}")
    A.e(f"s_cmp_ge_u32 s65, 256\ns_cbranch_scc1 {vg}\ns_sleep 4\ns_sub_u32 s90, s90, 1\ns_cmp_gt_i32 s90, 0\ns_cbranch_scc1 {vp}")
    A.label(vg)
    A.e("s_min_u32 s65, s92, s93")
    for x in range(2, 8): A.e(f"s_min_u32 s65, s65, s{92+x}")
    A.e(f"s_cmp_lt_u32 s65, {33 if F.FORCE_SLOW else 32}\ns_cbranch_scc1 {L['slow']}\ns_mov_b32 s56, 0")
    if need_par:
        A.label(pp)
        A.e(f"""
        buffer_load_dword v17, off, {WSRD}, s64 offset:1024 sc1
        s_waitcnt vmcnt(0)
        v_readfirstlane_b32 s65, v17
        s_cmp_lg_u32 s65, 0
        s_cbranch_scc1 {pg}
        s_sleep 4
        s_sub_u32 s90, s90, 1
        s_cmp_gt_i32 s90, 0
        s_cbranch_scc1 {pp}""")
        A.label(pg)
        A.e("s_and_b32 s65, s65, 2\ns_lshl_b32 s67, s65, 12")
    A.label(ok)

def stamp(A, v, par=None):
    if not F.PROF: return
    A.e(f"s_memrealtime s[84:85]\ns_lshr_b32 m0, s60, 1\ns_waitcnt lgkmcnt(0)\nv_writelane_b32 v{v}, s84, m0")
def tst(A, i):
    if F.PROF >= 2: A.e(f"s_memtime s[{32+2*i}:{33+2*i}]")
def tacc(A, n):
    if F.PROF < 2: return
    A.e("s_waitcnt lgkmcnt(0)")
    for i in range(n - 1): A.e(f"s_sub_u32 s64, s{34+2*i}, s{32+2*i}\ns_add_u32 s{92+i}, s{92+i}, s64")
    A.e(f"s_sub_u32 s64, s32, s48\ns_cmp_eq_u32 s48, 0\ns_cselect_b32 s64, 0, s64\ns_add_u32 s{92+n-1}, s{92+n-1}, s64\ns_mov_b32 s48, s{32+2*(n-1)}")
def tinit(A):
    if F.PROF < 2: return
    for i in range(92, 100): A.e(f"s_mov_b32 s{i}, 0")
    A.e("s_mov_b32 s48, 0\ns_memtime s[46:47]\ns_memrealtime s[100:101]")
def tout(A, v):
    if F.PROF < 2: return
    for i in range(8): A.e(f"v_writelane_b32 v{v}, s{92+i}, {2+i}")
    A.e(f"s_memtime s[32:33]\ns_memrealtime s[34:35]\ns_waitcnt lgkmcnt(0)\ns_sub_u32 s32, s32, s46\ns_sub_u32 s34, s34, s100\nv_writelane_b32 v{v}, s32, 10\nv_writelane_b32 v{v}, s34, 11")
def stamp_out(A, regs):
    if not F.PROF: return
    A.e(f"s_lshl_b32 s64, s58, 2\ns_add_u32 s64, s64, s50\ns_mul_i32 s64, s64, 768\ns_add_u32 s64, s64, {STAMP2}\nv_mbcnt_lo_u32_b32 v16, -1, 0\nv_mbcnt_hi_u32_b32 v16, -1, v16\nv_lshlrev_b32 v16, 2, v16")
    for i, r in enumerate(regs[:3]): A.e(f"buffer_store_dword v{r}, v16, {WSRD}, s64 offen offset:{i*256}")
def flag_store(A, vt, sval, saddr):
    A.e(f"v_mov_b32 v{vt}, {sval}\ns_mov_b64 exec, 1\nbuffer_store_dword v{vt}, off, {WSRD}, s{saddr} sc1\ns_mov_b64 exec, -1")
def poll_loop(A, ld, vF, sneed):
    lp = A.newlabel("plp"); ok = A.newlabel("pok")
    A.label(lp)
    A.e(f"""
    {ld}
    s_waitcnt vmcnt(0)
    v_cmp_gt_u32 vcc, s{sneed}, v{vF}
    s_cbranch_vccz {ok}
    s_sleep {F.PSL}
    s_sub_u32 s90, s90, 1
    s_cmp_gt_i32 s90, 0
    s_cbranch_scc1 {lp}""")
    A.label(ok)

def weave(A, M, fill, first=0, per=1):
    fill = list(fill)
    for i, m in enumerate(M):
        A.e(m)
        if i >= first:
            for _ in range(per):
                if fill: A.e(fill.pop(0))
    for x in fill: A.e(x)

class Sched:
    def __init__(self, A): self.A = A; self.q = []; self.done = -1
    def lds(self, ins, tag=None): self.A.e(ins); self.q.append(tag)
    def need(self, tag):
        i = len(self.q) - 1 - self.q[::-1].index(tag)
        if i > self.done:
            n = len(self.q) - 1 - i
            assert n <= 15
            self.A.e(f"s_waitcnt lgkmcnt({n})"); self.done = i
    def copy(self):
        c = Sched(self.A); c.q = list(self.q); c.done = self.done; return c

def stage_weights(A, stages, ld):
    A.e(f"""
    v_lshrrev_b32 v26, 2, v1
    v_and_b32 v27, 3, v1
    v_mul_u32_u24 v16, {ld}, v26
    v_lshl_add_u32 v16, v27, 4, v16
    v_lshlrev_b32 v17, 6, v25
    v_lshl_add_u32 v17, v24, 4, v17
    v_add_u32 v17, s61, v17""")
    def issue(st):
        srd, pre, rows, _ = stages[st]
        A.e(pre)
        A.e(f"s_add_u32 m0, s61, {(st&1)*16384}")
        for J in range(rows // 16):
            A.e(f"buffer_load_dwordx4 v16, s[{srd}:{srd+3}], s62 offen lds")
            if J + 1 < rows // 16: A.e(f"s_add_u32 s62, s62, {16*ld}\ns_add_u32 m0, m0, 1024")
        return rows // 16
    n = [issue(0), issue(1)]
    for st in range(len(stages)):
        A.e(f"s_waitcnt vmcnt({n[st+1] if st + 1 < len(stages) else 0})")
        stages[st][3]((st & 1) * 16384)
        A.e("s_waitcnt lgkmcnt(0)")
        if st + 2 < len(stages): n.append(issue(st + 2))
def lanes(A):
    A.e("""
    v_and_b32 v21, 15, v1              ; lam
    v_lshrrev_b32 v22, 4, v1           ; g
    v_lshrrev_b32 v23, 2, v21          ; r
    v_and_b32 v24, 3, v21              ; c
    s_lshl_b32 s61, s50, 15
    v_lshl_add_u32 v25, v22, 3, v23    ; 8g + r""")
def late(A):
    if F.LATE:
        lp = A.newlabel("late"); A.e(f"s_mov_b32 s64, {F.LATE}"); A.label(lp); A.e(f"s_sleep 16\ns_sub_u32 s64, s64, 1\ns_cmp_gt_i32 s64, 0\ns_cbranch_scc1 {lp}")
MF = "v_mfma_f32_16x16x32_bf16"

def qkv_role(A, L):
    L16, VR0, VR1, VT = 0, 4, 5, 6; ACC = (32, 44); VH = 56; PK = 60; XW = 64; NW = 16; ST = (8, 10, 11); D = F.QD
    def wr_(ks, t, n=4, o=0):
        i = (ks * 3 + t) * 4 + o
        return ar(i, n) if i < 256 else vr(128 + i - 256, n)
    done = A.newlabel("done")
    lanes(A)
    A.e(f"s_load_dwordx4 s[4:7], s[0:1], {ARG['Wq']*8}"); ldptr(A, 8, "Wv")
    A.e(f"""
    s_lshl_b32 s52, s59, 7
    s_and_b32 s64, s50, 1
    s_lshl_b32 s65, s64, 6
    s_add_u32 s53, s52, s65
    s_lshr_b32 s65, s50, 1
    s_lshl_b32 s65, s65, 6
    s_add_u32 s52, s52, s65
    s_lshl_b32 s54, s64, 3
    s_waitcnt lgkmcnt(0)
    s_cmp_gt_u32 s50, 1
    s_cselect_b64 s[10:11], s[4:5], s[6:7]""")
    A.srd(28, 10, 8 * MB); A.srd(32, 8, 8 * MB)
    def rdp(q):
        def f(buf):
            for kk in range(8):
                for t in range(2):
                    for h in range(2): A.e(f"ds_read_b64_tr_b16 {wr_(8*q+kk,t,2,2*h)}, v17 offset:{buf + (32*kk + 4*h)*64 + 8*t}")
                if kk % 3 == 2: A.e("s_waitcnt lgkmcnt(0)")
        return f
    def rdv(q):
        def f(buf):
            if q == 0: A.e("v_add_u32 v18, s54, v17")
            for kk in range(8):
                for h in range(2): A.e(f"ds_read_b64_tr_b16 {wr_(8*q+kk,2,2,2*h)}, v18 offset:{buf + (32*kk + 4*h)*64}")
                if kk == 5: A.e("s_waitcnt lgkmcnt(0)")
        return f
    stg = []
    for q in range(4):
        stg.append((28, f"s_add_u32 s62, s53, {q*256*8192}", 256, rdp(q)))
        stg.append((32, f"s_add_u32 s62, s52, {q*256*8192}", 256, rdv(q)))
    stage_weights(A, stg, 8192)
    verify(A, L, True)
    A.e(f"""
    s_barrier
    v_lshlrev_b32 v{L16}, 4, v1
    s_mov_b32 s60, 0
    s_lshl_b32 s63, s50, 13
    s_add_u32 s61, s63, {HB}
    s_mov_b32 s70, 0
    s_lshl_b32 s52, s59, 14
    s_and_b32 s64, s50, 1
    s_lshl_b32 s64, s64, 11
    s_add_u32 s53, s52, s64
    s_lshl_b32 s64, s50, 10
    s_add_u32 s52, s52, s64
    s_add_u32 s52, s52, 4096           ; V base
    s_cmp_gt_u32 s50, 1
    s_cselect_b32 s54, 0x2000, 0
    s_lshl_b32 s69, s59, 6
    s_add_u32 s69, s69, s67
    s_add_u32 s69, s69, {F_QKV}
    v_mov_b32 v{VR0}, v{L16}
    v_add_u32 v{VR1}, 32768, v{L16}""")
    def loads():
        o = ["s_add_u32 m0, s70, s63", "s_add_u32 s62, s61, 4096"]
        for i in range(8):
            o.append(f"buffer_load_dwordx4 v{L16}, {WSRD}, s{61+(i>>2)} offen offset:{(i&3)*1024} lds")
            if i == 3: o.append("s_add_u32 m0, m0, 4096")
        return o + ["s_add_u32 s61, s61, 32768", "s_add_u32 s70, s70, 32768", "s_and_b32 s70, s70, 0x1ffff"]
    def epi(par):
        a = ACC[par]
        o = ["s_sub_u32 s66, s60, 1", "s_lshr_b32 s64, s66, 1", "s_lshl_b32 s65, s64, 12", "s_and_b32 s65, s65, 0x2000", "s_xor_b32 s65, s65, s67", "s_lshl_b32 s64, s64, 20",
             "s_add_u32 s64, s64, s65", "s_add_u32 s65, s64, s52", "s_xor_b32 s64, s64, s54", "s_add_u32 s66, s64, s53"]
        if par: o += ["s_cmp_eq_u32 s60, 0", f"s_cselect_b32 s65, {SCRATCH}, s65", f"s_cselect_b32 s66, {SCRATCH}, s66"]
        o += [f"v_cvt_pk_bf16_f32 v{PK+i}, v{a+2*i}, v{a+2*i+1}" for i in range(4)]
        o += [f"v_cvt_pk_bf16_f32 v{VH+2*par+i}, v{a+8+2*i}, v{a+9+2*i}" for i in range(2)]
        o += [f"buffer_store_dwordx4 {vr(PK,4)}, v{L16}, {WSRD}, s66 offen offset:{par*1024} sc1"]
        if par: o += [f"buffer_store_dwordx4 {vr(VH,4)}, v{L16}, {WSRD}, s65 offen sc1"]
        return o
    rd = lambda ks, nxt: f"ds_read_b128 {vr(XW+4*(ks%NW),4)}, v{VR1 if nxt else VR0} offset:{ks*1024}"
    if F.PROF:
        for r in ST: A.e(f"v_mov_b32 v{r}, 0")
        A.e(f"s_memrealtime s[84:85]\ns_waitcnt lgkmcnt(0)\nv_writelane_b32 v{ST[2]}, s84, 0\nv_writelane_b32 v{ST[2]}, s86, 1")
    tinit(A)
    for x in loads() + loads(): A.e(x)
    A.e("s_waitcnt vmcnt(8)\ns_barrier")
    for ks in range(D): A.e(rd(ks, 0))
    top = A.newlabel("top")
    A.label(top)
    for par in range(2):
        tst(A, 0)
        fill = {}
        for k, x in enumerate(epi(par ^ 1)): fill.setdefault(3 + k // 2 if k < 13 else k - 3, []).append(x)
        for k, x in enumerate(loads()): fill.setdefault(F.QM + 2 + 2 * k, []).append(x)
        for n in range(96):
            ks, t = divmod(n, 3)
            a = vr(ACC[par] + 4 * t, 4); x = vr(XW + 4 * (ks % NW), 4)
            if t == 0: A.e(f"s_waitcnt lgkmcnt({D-1})")
            A.e(f"{MF} {a}, {x}, {wr_(ks,t)}, {a if ks else 0}" if t == 2 else f"{MF} {a}, {wr_(ks,t)}, {x}, {a if ks else 0}")
            if t == 0: A.e(rd((ks + D) % 32, ks + D >= 32))
            for y in fill.get(n, []): A.e(y)
            if n == F.QM:
                nf = A.newlabel("nf")
                tst(A, 1)
                A.e(f"s_waitcnt vmcnt({2-par})")
                if par == 0:
                    sk = A.newlabel("sk")
                    A.e(f"s_cmp_lg_u32 s60, 2\ns_cbranch_scc1 {sk}\ns_waitcnt vmcnt(0)"); A.label(sk)
                    A.e(f"s_cselect_b32 s64, 1, s50")
                else: A.e("s_mov_b32 s64, s50")
                tst(A, 2)
                A.e(f"s_barrier\ns_cmp_ge_u32 s60, {NU-2}\ns_cselect_b32 s61, {HB}, s61\ns_cmp_lg_u32 s64, 0\ns_cbranch_scc1 {nf}\ns_lshr_b32 s64, s60, 1")
                flag_store(A, VT, "s64", 69); A.label(nf)
                tst(A, 3)
        A.e(f"v_mov_b32 v{VR0}, v{VR1}\nv_add_u32 v{VR1}, 32768, v{VR1}\nv_and_b32 v{VR1}, 0x1ffff, v{VR1}")
        if F.PROF: tst(A, 4); tacc(A, 5); stamp(A, ST[par])
        A.e("s_add_u32 s60, s60, 1")
    A.e(f"s_cmp_lt_u32 s60, {NU}\ns_cbranch_scc1 {top}")
    for x in epi(1): A.e(x)
    A.e(f"s_waitcnt vmcnt(0) lgkmcnt(0)\ns_barrier\ns_cmp_lg_u32 s50, 0\ns_cbranch_scc1 {done}")
    flag_store(A, VT, NSEG, 69)
    A.label(done)
    tout(A, ST[2]); stamp_out(A, ST)
    A.e("s_endpgm")

def gemm_role(A, L, kind):
    KS = 7 if kind == "w4" else 8
    stats = kind in ("w1", "w3"); xch = kind in ("wo", "w4"); res = kind == "w2"
    L16, VFA, VA, VRD, VRB, ONE, VF, VT, VO, VSW, VSR = 0, 2, 3, 4, 8, 12, 16, 17, 18, 19, 20
    ACC, FIN, S1, S2, SP, XW, NW, PKT, CS, RES, TM, M1 = 32, 40, 48, 52, 56, 64, 16, 128, 152, 160, 168, 204; ST = (200, 201, 202)
    LST = 128 * 1024; D = F.GD; NF = 4 * KS
    wreg = lambda n, t, k=4, o=0: ar((n * 2 + t) * 4 + o, k)
    done = A.newlabel("done")
    lanes(A)
    arg, ld, nbytes = dict(wo=("Wo", 2048, 8 * MB), w1=("w1", 2048, 2 * MB), w2=("w2", 2048, 2 * MB), w3=("w3", 7168, 7 * MB), w4=("w4", 2048, 7 * MB))[kind]
    ldptr(A, 4, arg)
    if xch: ldptr(A, 6, "x" if kind == "wo" else "out"); A.e("s_lshr_b32 s52, s59, 3\ns_and_b32 s53, s59, 7")
    else: A.e("s_mov_b32 s52, 0\ns_mov_b32 s53, s59")
    A.e(f"s_mul_i32 s54, s52, {NF*32*ld}\ns_lshl_b32 s64, s53, 8\ns_add_u32 s54, s54, s64\ns_lshl_b32 s64, s50, 6\ns_add_u32 s54, s54, s64\ns_waitcnt lgkmcnt(0)")
    A.srd(28, 4, nbytes)
    if xch: A.srd(24, 6, S * D_ * 2)
    def rdw(x):
        def f(buf):
            for kk in range(KS):
                for t in range(2):
                    for h in range(2): A.e(f"ds_read_b64_tr_b16 {wreg(x*KS+kk,t,2,2*h)}, v17 offset:{buf + (32*kk + 4*h)*64 + 8*t}")
                if kk % 3 == 2: A.e("s_waitcnt lgkmcnt(0)")
        return f
    late(A)
    stage_weights(A, [(28, f"s_xor_b32 s62, s50, {x}\ns_mul_i32 s62, s62, {KS*32*ld}\ns_add_u32 s62, s62, s54", KS * 32, rdw(x)) for x in range(4)], ld)
    verify(A, L, False)
    inb, ust = dict(wo=(OB, 131072), w1=(H2, 32768), w2=(G1, 32768), w3=(Y1, 32768), w4=(G3, 112 * 1024))[kind]
    A.e(f"""
    s_barrier
    v_lshlrev_b32 v{L16}, 4, v1
    s_mov_b32 s60, 0
    s_mov_b32 s70, 0
    s_mov_b32 s55, 0
    s_lshl_b32 s63, s50, 13
    v_mov_b32 v{VA}, v{L16}
    s_mov_b32 s73, 0xffff0000
    s_lshl_b32 s64, s52, 2
    s_add_u32 s64, s64, s50
    s_mul_i32 s61, s64, {KS*1024}
    s_add_u32 s61, s61, {inb}
    s_lshl_b32 s82, s64, 8
    s_add_u32 s82, s82, {dict(wo=F_ATT, w1=F_LN, w2=F_W1, w3=F_W2, w4=F_W3)[kind]}
    s_mov_b32 s68, s82
    s_lshl_b32 s83, s53, 2
    s_add_u32 s83, s83, s50""")
    for x in range(4): A.e(f"s_xor_b32 s64, s50, {x}\ns_lshl_b32 s64, s64, 13\nv_add_u32 v{VRB+x}, s64, v{L16}")
    nfl = dict(wo=2, w1=4, w2=8, w3=8, w4=7)[kind]
    A.e(f"v_min_u32 v{VFA}, {nfl-1}, v1\nv_lshlrev_b32 v{VFA}, 2, v{VFA}")
    if res:
        A.e(f"""
        s_lshr_b32 s64, s50, 1
        s_add_u32 s64, s64, 1
        s_sub_u32 s65, 0, s64
        s_bitcmp1_b32 s50, 0
        s_cselect_b32 s64, s64, s65
        s_add_u32 s64, s64, 16
        v_add_u32 v26, s64, v21
        v_lshrrev_b32 v27, 4, v26
        v_and_b32 v26, 15, v26
        v_lshl_add_u32 v26, v22, 4, v26
        v_lshlrev_b32 v26, 4, v26
        v_lshl_add_u32 v{VA}, v27, 15, v26
        s_sub_u32 s61, s61, 32768""")
    A.e("s_lshl_b32 s66, s83, 10")
    if kind == "w3":
        A.e(f"s_mul_i32 s65, s83, 147\ns_lshr_b32 s65, s65, 10\ns_mul_i32 s69, s65, {256 - 28}\ns_lshl_b32 s64, s83, 2\ns_add_u32 s69, s69, s64\ns_add_u32 s69, s69, {F_W3}")
    else:
        A.e(f"s_lshr_b32 s65, s83, 3\ns_lshl_b32 s65, s65, 8\ns_and_b32 s64, s83, 7\ns_lshl_b32 s64, s64, 2\ns_add_u32 s69, s64, s65\ns_add_u32 s69, s69, {dict(wo=F_WO, w1=F_W1, w2=F_W2, w4=F_W4)[kind]}")
    outb, ost = dict(wo=(X1, 32768), w1=(G1, 32768), w2=(Y1, 32768), w3=(G3, 112 * 1024), w4=(0, 32768))[kind]
    if xch:
        A.e(f"""
        s_lshl_b32 s64, s53, 2
        s_add_u32 s64, s64, s50
        s_mul_i32 s74, s64, {4*6144}
        s_xor_b32 s64, s50, s52
        s_sub_u32 s64, s64, 1
        s_max_i32 s64, s64, 0
        s_lshl_b32 s64, s64, 11
        s_add_u32 s74, s74, s64
        s_add_u32 s74, s74, {XP + (0 if kind == 'wo' else MB)}
        s_mov_b32 s75, 0
        s_mov_b32 s76, 0
        s_mov_b32 s77, 0                   ; pending
        v_lshlrev_b32 v26, 11, v21
        v_lshl_add_u32 v26, v22, 4, v26
        s_lshl_b32 s64, s83, 6
        v_add_u32 v{VO}, s64, v26
        v_lshlrev_b32 v26, 5, v22
        s_lshl_b32 s64, s83, 7
        s_add_u32 s64, s64, {MOD + (2 if kind == 'wo' else 5)*4096}
        buffer_load_dwordx4 {vr(CS,4)}, v26, {WSRD}, s64 offen
        buffer_load_dwordx4 {vr(CS+4,4)}, v26, {WSRD}, s64 offen offset:16""")
        for i in range(4): A.e(f"v_mov_b32 v{M1+i}, -1")
    if stats:
        A.e(f"""
        s_lshl_b32 s64, s50, 9
        s_add_u32 s64, s64, {LST}
        v_lshlrev_b32 v26, 3, v1
        v_add_u32 v{VSW}, s64, v26
        v_lshl_add_u32 v26, v23, 4, v21
        v_lshlrev_b32 v26, 3, v26
        v_add_u32 v{VSR}, {LST}, v26
        s_mov_b32 s74, 0x22222222
        s_mov_b32 s75, 0x22222222
        s_mov_b32 s76, 0x44444444
        s_mov_b32 s77, 0x44444444
        s_mov_b32 s78, 0x88888888
        s_mov_b32 s79, 0x88888888
        s_mov_b32 s80, {f2u(GELU_C0):#x}
        s_mov_b32 s81, {f2u(GELU_C1):#x}
        v_mov_b32 v{TM+23}, s80""")
        for i in range(4): A.e(f"v_mov_b32 v{ONE+i}, 0x3f803f80")
        for n in range(NF):
            for t in range(2): A.e(f"{MF} {vr(CS+4*t,4)}, {wreg(n,t)}, {vr(ONE,4)}, {vr(CS+4*t,4) if n else 0}")
    def loads():
        o = ["s_add_u32 m0, s70, s63", "s_add_u32 s62, s61, 4096"]
        for i in range(KS):
            o.append(f"buffer_load_dwordx4 v{VA}, {WSRD}, s{61+(i>>2)} offen offset:{(i&3)*1024} lds")
            if i == 3: o.append("s_add_u32 m0, m0, 4096")
        return o + [f"s_add_u32 s61, s61, {ust}", "s_add_u32 s70, s70, 32768", "s_and_b32 s70, s70, 0x1ffff"]
    pollld = f"buffer_load_dword v{VF}, v{VFA}, {WSRD}, s68 offen sc1"
    def need(add):
        if kind == "wo": A.e(f"s_add_u32 s71, s60, {add}\ns_and_b32 s68, s71, 1\ns_lshl_b32 s68, s68, 3\ns_add_u32 s68, s68, s82\ns_lshr_b32 s71, s71, 1\ns_add_u32 s71, s71, 1")
        else: A.e(f"s_add_u32 s71, s60, {add+1}")
        if res: A.e(f"s_and_b32 s64, s50, 1\ns_add_u32 s71, s71, s64\ns_min_u32 s71, s71, {NU}\ns_cmp_ge_u32 s60, {NU-add}\ns_cselect_b32 s71, -1, s71")
    xr = lambda n: vr(XW + 4 * (n % NW), 4)
    rd = lambda n: f"ds_read_b128 {xr(n)}, v{VRD + n//KS} offset:{(n%KS)*1024}"
    def mm(n):
        o = [f"{MF} {vr(ACC+4*t,4)}, {wreg(n,t)}, {xr(n)}, {vr(ACC+4*t,4) if n else 0}" for t in range(2)]
        if stats and n < KS: o += [f"{MF} {vr(S1,4)}, {vr(ONE,4)}, {xr(n)}, {vr(S1,4) if n else 0}", f"{MF} {vr(S2,4)}, {xr(n)}, {xr(n)}, {vr(S2,4) if n else 0}"]
        return o
    def both(f):
        l1 = A.newlabel("b1"); l2 = A.newlabel("b2")
        A.e(f"s_cmp_eq_u32 s56, 1\ns_cbranch_scc1 {l1}"); f("")
        A.label(l2)
        def d(): A.label(l1); A.e("s_nop 7"); f("sc1"); A.e(f"s_branch {l2}")
        tail.append(d)
    def f1():
        A.e("s_add_u32 s64, s74, s75\ns_add_u32 s65, s64, 4096")
        for i in range(6): A.e(f"buffer_load_dwordx4 {vr(PKT+4*i,4)}, v{L16}, {WSRD}, s{64+(i>>2)} offen offset:{(i&3)*1024} sc1")
    def fres():
        if kind == "wo": A.e(f"s_and_b32 s64, s66, 0xffff8000\nbuffer_load_dwordx4 {vr(RES,4)}, v{VO}, s[24:27], s64 offen")
        else: A.e(f"s_add_u32 s64, s66, {X1}\nbuffer_load_dwordx4 {vr(RES,4)}, v{L16}, {WSRD}, s64 offen\ns_add_u32 s64, s66, {Y1}\nbuffer_load_dwordx4 {vr(RES+4,4)}, v{L16}, {WSRD}, s64 offen")
    def f2():
        ck = A.newlabel("ck"); rt = A.newlabel("rt"); go = A.newlabel("go")
        A.label(ck)
        for i in range(0, 8, 2): A.e(f"v_pk_add_f32 {vr(PKT+i,2)}, {vr(PKT+i,2)}, {vr(PKT+8+i,2)}\nv_pk_add_f32 {vr(PKT+16+i,2)}, {vr(PKT+16+i,2)}, {vr(FIN+i,2)}")
        for i in range(0, 8, 2): A.e(f"v_pk_add_f32 {vr(PKT+i,2)}, {vr(PKT+i,2)}, {vr(PKT+16+i,2)}")
        A.e(f"v_pk_add_f32 {vr(TM,2)}, {vr(PKT,2)}, {vr(PKT+2,2)}\nv_pk_add_f32 {vr(TM+2,2)}, {vr(PKT+4,2)}, {vr(PKT+6,2)}\nv_pk_add_f32 {vr(TM,2)}, {vr(TM,2)}, {vr(TM+2,2)}")
        A.e(f"v_cmp_u_f32 vcc, v{TM}, v{TM+1}\ns_cbranch_vccnz {rt}")
        A.label(go)
        def d():
            A.label(rt)
            A.e(f"s_sub_u32 s90, s90, 1\ns_cmp_gt_i32 s90, 0\ns_cbranch_scc0 {go}"); f1(); A.e(f"s_waitcnt vmcnt(0)\ns_branch {ck}")
        tail.append(d)
        unpack(A, RES, TM, 4)
        if kind == "w4":
            unpack(A, RES + 4, TM + 8, 4)
            for i in range(0, 8, 2): A.e(f"v_pk_add_f32 {vr(PKT+i,2)}, {vr(PKT+i,2)}, {vr(TM+8+i,2)}")
        for i in range(8): A.e(f"v_fma_f32 v{TM+i}, v{PKT+i}, v{CS+i}, v{TM+i}")
        for i in range(4): A.e(f"v_cvt_pk_bf16_f32 v{TM+8+i}, v{TM+2*i}, v{TM+2*i+1}")
        if kind == "wo": A.e(f"s_add_u32 s64, s66, {X1}\nbuffer_store_dwordx4 {vr(TM+8,4)}, v{L16}, {WSRD}, s64 offen sc1")
        else: A.e(f"s_and_b32 s64, s66, 0xffff8000\nbuffer_store_dwordx4 {vr(TM+8,4)}, v{VO}, s[24:27], s64 offen")
        A.e("s_add_u32 s64, s74, s75\ns_add_u32 s65, s64, 4096")
        def rs(fl):
            for i in range(6): A.e(f"buffer_store_dwordx4 {vr(M1,4)}, v{L16}, {WSRD}, s{64+(i>>2)} offen offset:{(i&3)*1024} {fl}")
        both(rs)
        A.e(f"s_add_u32 s66, s66, {ost}\ns_add_u32 s75, s75, 6144\ns_cmp_eq_u32 s75, {4*6144}\ns_cselect_b32 s75, 0, s75\ns_add_u32 s76, s76, 1\ns_mov_b32 s77, 0")
    tail = []
    def loop(fin):
        send = xch and not fin
        NS = 0 if fin else (2 if send else 1)
        flg = (not send) and kind != "w4"
        fl = lambda: flag_store(A, VT, "s76" if fin else "s60", 69) if flg else None
        def dummies():
            for _ in range(NS): A.e(f"buffer_load_dword v{VT}, off, {WSRD}, s69")
        top = A.newlabel("top"); vN = A.newlabel("vN"); join = A.newlabel("join"); slowp = A.newlabel("slowp"); lag = A.newlabel("lag")
        need(0); poll_loop(A, pollld, VF, 71)
        A.label(lag)
        for x in loads(): A.e(x)
        dummies()
        A.label(top)
        need(1)
        A.e(pollld)
        ex = 1
        if fin: f1(); fres(); ex += 6 + (1 if kind == "wo" else 2)
        elif res: A.e(f"s_add_u32 s64, s66, {H2}\nbuffer_load_dwordx4 {vr(RES,4)}, v{L16}, {WSRD}, s64 offen"); ex += 1
        for x in range(4): A.e(f"v_add_u32 v{VRD+x}, s55, v{VRB+x}")
        A.e("s_add_u32 s55, s55, 32768\ns_and_b32 s55, s55, 0x1ffff")
        tst(A, 0)
        Z = Sched(A)
        for i in range(KS):
            A.e(f"s_waitcnt vmcnt({KS-1-i+NS+ex})")
            Z.lds(rd(i), i)
            if i == KS - 1: A.e("s_barrier")
            if i >= 2:
                Z.need(i - 2)
                for x in mm(i - 2): A.e(x)
        tst(A, 1)
        nr = [KS]
        def run(Z, lo, hi, fill={}):
            for n in range(lo, hi):
                while nr[0] < min(NF, n + D + 1) and nr[0] < n + 3: Z.lds(rd(nr[0]), nr[0]); nr[0] += 1
                Z.need(n)
                for k, x in enumerate(mm(n)):
                    A.e(x)
                    if k == 0:
                        for _ in range(2):
                            if nr[0] < min(NF, n + D + 1): Z.lds(rd(nr[0]), nr[0]); nr[0] += 1
                    for y in fill.get((n, k), []):
                        if y.startswith("ds_"): Z.lds(y, y)
                        elif y.startswith("need "): Z.need(y[5:])
                        else: A.e(y)
        fill = {}
        MID = F.GM * NF // 32
        if stats:
            sw = f"ds_write_b64 v{VSW}, {vr(S1,2)}"
            fill[(KS + 3, 0)] = [f"v_cndmask_b32 v{S1+1}, v{S2}, v{S2+1}, s[74:75]"]; fill[(KS + 3, 1)] = [f"v_cndmask_b32 v{S1+1}, v{S1+1}, v{S2+2}, s[76:77]"]
            fill[(KS + 4, 0)] = [f"v_cndmask_b32 v{S1+1}, v{S1+1}, v{S2+3}, s[78:79]"]; fill[(KS + 4, 1)] = [sw]
            srd_ = [f"ds_read_b64 {vr(SP+2*w,2)}, v{VSR} offset:{w*512}" for w in range(4)]
            fill[(KS + 8, 1)] = ["need " + sw, "s_barrier"] + srd_[:2]; fill[(KS + 9, 0)] = srd_[2:]
            i0 = len(A.lines); stats_fin(A, SP, TM + 21, TM + 22, 1); sf = [x.strip() for x in A.lines[i0:]]; del A.lines[i0:]
            sf = ["need " + srd_[3]] + sf
            for k, x in enumerate(sf): fill.setdefault((KS + 13 + k // 2, k & 1), []).append(x)
            assert KS + 13 + len(sf) // 2 < NF
        run(Z, KS - 2, MID, fill)
        tst(A, 2)
        A.e("s_waitcnt vmcnt(0)")
        tst(A, 3)
        if fin:
            np_ = A.newlabel("np"); A.e(f"s_cmp_eq_u32 s77, 0\ns_cbranch_scc1 {np_}"); f2(); A.label(np_)
        else: fl()
        A.e(f"v_cmp_gt_u32 vcc, s71, v{VF}\ns_cbranch_vccnz {vN}")
        n0 = nr[0]; Z2 = Z.copy()
        fR = {k: list(v) for k, v in fill.items()}
        for k, x in enumerate(loads()): fR.setdefault((MID + k // 2, k & 1), []).append(x)
        run(Z, MID, NF, fR)
        A.e("s_mov_b32 s72, 1")
        A.label(join)
        def dN():
            A.label(vN); A.e(pollld); nr[0] = n0
            run(Z2, MID, NF, fill)
            A.e(f"s_mov_b32 s72, 0\ns_branch {join}")
        tail.append(dN)
        tst(A, 4)
        a = ACC
        if fin:
            for i in range(8): A.e(f"v_mov_b32 v{FIN+i}, v{a+i}")
            A.e("s_mov_b32 s77, 1")
        elif send:
            A.e("s_add_u32 s64, s74, s75")
            both(lambda f_: [A.e(f"buffer_store_dwordx4 {vr(a+4*t,4)}, v{L16}, {WSRD}, s64 offen offset:{t*1024} {f_}") for t in range(2)])
            A.e(f"s_add_u32 s75, s75, 6144\ns_cmp_eq_u32 s75, {4*6144}\ns_cselect_b32 s75, 0, s75")
        else:
            if stats:
                for i in range(8): A.e(f"v_fma_f32 v{a+i}, v{CS+i}, v{TM+21}, v{a+i}")
                for i in range(8): A.e(f"v_mul_f32 v{a+i}, v{a+i}, v{TM+22}")
                for op in ("v_mul_f32 v{t}, v{v}, v{v}", "v_fma_f32 v{t}, v{t}, s81, v%d" % (TM + 23), "v_mul_f32 v{t}, v{t}, v{v}", "v_exp_f32 v{t}, v{t}", "v_add_f32 v{t}, 1.0, v{t}", "v_rcp_f32 v{t}, v{t}", "v_mul_f32 v{v}, v{t}, v{v}"):
                    for i in range(8): A.e(op.format(t=TM + i, v=a + i))
            else:
                unpack(A, RES, TM, 4)
                for i in range(8): A.e(f"v_add_f32 v{a+i}, v{a+i}, v{TM+i}")
            for i in range(4): A.e(f"v_cvt_pk_bf16_f32 v{TM+8+i}, v{a+2*i}, v{a+2*i+1}")
            A.e(f"s_add_u32 s64, s66, {outb}\nbuffer_store_dwordx4 {vr(TM+8,4)}, v{L16}, {WSRD}, s64 offen sc1\ns_add_u32 s66, s66, {ost}")
        if F.PROF:
            tst(A, 5); tacc(A, 6)
            if not fin: stamp2(A, ST)
        A.e(f"s_add_u32 s60, s60, 1\ns_cmp_eq_u32 s72, 0\ns_cbranch_scc1 {slowp}")
        if fin and flg: A.e(f"s_waitcnt vmcnt({6+KS})"); fl()
        A.e(f"s_branch {top}")
        A.label(slowp)
        A.e(f"s_waitcnt vmcnt({NS})")
        if fin: fl()
        A.e(f"v_cmp_gt_u32 vcc, s71, v{VF}\ns_cbranch_vccz {lag}")
        if fin:
            fres(); f1(); A.e("s_waitcnt vmcnt(0)"); f2()
            if flg: A.e("s_waitcnt vmcnt(6)")
        elif flg: A.e("s_waitcnt vmcnt(0)")
        fl()
        A.e(f"s_cmp_ge_u32 s60, {NU}\ns_cbranch_scc1 {done}")
        poll_loop(A, pollld, VF, 71)
        A.e(f"s_branch {lag}")
    if F.PROF:
        for r in ST: A.e(f"v_mov_b32 v{r}, 0")
        A.e(f"s_memrealtime s[84:85]\ns_waitcnt lgkmcnt(0)\nv_writelane_b32 v{ST[2]}, s84, 0\nv_writelane_b32 v{ST[2]}, s86, 1")
        if xch:
            _f2 = f2
            def f2():
                _f2(); stamp2(A, ST, "s76", 1)
    tinit(A)
    if xch:
        lf = A.newlabel("lfin")
        A.e(f"s_cmp_eq_u32 s50, s52\ns_cbranch_scc1 {lf}")
        loop(False); A.label(lf); loop(True)
    else: loop(False)
    while tail: tail.pop(0)()
    A.label(done)
    tout(A, ST[2]); stamp_out(A, ST)
    A.e("s_endpgm")

def stamp2(A, ST, s="s60", sub=0):
    if not F.PROF: return
    l1 = A.newlabel("st1"); l2 = A.newlabel("st2")
    A.e(f"s_memrealtime s[84:85]\ns_sub_u32 s88, {s}, {sub}\ns_lshr_b32 s89, s88, 1\ns_mov_b32 s87, m0\ns_mov_b32 m0, s89\ns_waitcnt lgkmcnt(0)\ns_bitcmp1_b32 s88, 0\ns_cbranch_scc1 {l1}\nv_writelane_b32 v{ST[0]}, s84, m0\ns_branch {l2}")
    A.label(l1); A.e(f"v_writelane_b32 v{ST[1]}, s84, m0"); A.label(l2); A.e("s_mov_b32 m0, s87")

def ln_role(A, L):
    R = dict(RM=8, CO=9, FR=10, SW=11, SR=12); VFA, VF, VT = 13, 14, 15
    C1, SB = 32, 48; BUF = (64, 72); V = 80; T = 96; PK = 112; ST = (120, 121, 122)
    done = A.newlabel("done")
    A.e("s_mov_b32 s52, s59\ns_mov_b32 s60, 0\ns_mov_b32 s73, 0xffff0000")
    row_lanes(A, 52, R)
    A.e(f"v_and_b32 v{VFA}, 7, v1\nv_lshlrev_b32 v{VFA}, 2, v{VFA}")
    load_consts(A, R, 4, C1, 65); load_consts(A, R, 3, SB, 66)
    A.e("s_waitcnt vmcnt(0)")
    for i in range(16): A.e(f"v_add_f32 v{C1+i}, 1.0, v{C1+i}")
    nm = A.newlabel("nomeas")
    A.e(f"""
    s_add_u32 s65, s59, s50
    s_cmp_lg_u32 s65, 0
    s_cbranch_scc1 {nm}
    s_mov_b64 exec, 1
    s_mov_b32 s92, {XMEAS}
    s_mov_b32 s93, {XMEAS+8192}
    s_mov_b32 s70, 0x7fffffff
    s_mov_b32 s71, 0x7fffffff""")
    for rep in range(5):
        for (so, acc) in ((92, 70), (93, 71)):
            A.e(f"""
            s_memtime s[94:95]
            s_waitcnt lgkmcnt(0)
            buffer_store_dword v{VT}, off, {WSRD}, s{so} sc1
            s_waitcnt vmcnt(0)
            s_memtime s[96:97]
            s_waitcnt lgkmcnt(0)
            s_sub_u32 s96, s96, s94
            s_min_u32 s{acc}, s{acc}, s96""")
    A.e(f"""
    s_cmp_gt_u32 s71, s70
    s_cselect_b32 s65, 2, 1
    v_mov_b32 v{VT}, s65
    s_mov_b32 s64, {XCNT}
    buffer_store_dword v{VT}, off, {WSRD}, s64 offset:1024 sc1
    s_mov_b64 exec, -1""")
    A.label(nm)
    verify(A, L, False)
    if "ln2" in F.OFF: A.e("s_endpgm")
    A.e(f"""
    s_mov_b32 s63, {X1}
    s_mov_b32 s66, {H2}
    s_lshl_b32 s64, s50, 8
    s_add_u32 s68, s64, {F_WO}
    s_lshl_b32 s65, s59, 2
    s_add_u32 s69, s64, s65
    s_add_u32 s69, s69, {F_LN}""")
    NS = 2
    def loads(par):
        A.e(f"s_add_u32 s64, s63, 4096\nbuffer_load_dwordx4 {vr(BUF[par],4)}, v{R['FR']}, {WSRD}, s63 offen\nbuffer_load_dwordx4 {vr(BUF[par]+4,4)}, v{R['FR']}, {WSRD}, s64 offen\ns_add_u32 s63, s63, 32768")
    pollld = f"buffer_load_dword v{VF}, v{VFA}, {WSRD}, s68 offen sc1"
    def dummies():
        for _ in range(NS): A.e(f"buffer_load_dword v{VT}, off, {WSRD}, s68")
    top = [A.newlabel("top0"), A.newlabel("top1")]
    if F.PROF:
        for r in ST: A.e(f"v_mov_b32 v{r}, 0")
    A.e("s_mov_b32 s71, 1")
    poll_loop(A, pollld, VF, 71)
    loads(0); dummies()
    tail = []
    for par in range(2):
        slowp = A.newlabel("slowp"); p2 = A.newlabel("p2")
        A.label(top[par])
        A.e(pollld)
        A.e(f"s_add_u32 s71, s60, 2\ns_waitcnt vmcnt({NS+1})")
        unpack(A, BUF[par], V, 8)
        i0 = len(A.lines); ln_core(A, V, C1, SB, T, R, par * 2048, PK); body = A.lines[i0:]; del A.lines[i0:]
        k = [i for i, x in enumerate(body) if "s_barrier" in x][0]
        A.lines += body[:k + 1]
        A.e("s_waitcnt vmcnt(0)"); flag_store(A, VT, "s60", 69)
        A.e(f"v_cmp_gt_u32 vcc, s71, v{VF}\ns_mov_b32 s72, 0\ns_cbranch_vccnz {p2}\ns_mov_b32 s72, 1")
        loads(par ^ 1)
        A.label(p2)
        A.lines += body[k + 1:]
        A.e(f"s_add_u32 s64, s66, 4096\nbuffer_store_dwordx4 {vr(PK,4)}, v{R['FR']}, {WSRD}, s66 offen sc1\nbuffer_store_dwordx4 {vr(PK+4,4)}, v{R['FR']}, {WSRD}, s64 offen sc1")
        stamp(A, ST[par])
        A.e(f"s_add_u32 s66, s66, 32768\ns_add_u32 s60, s60, 1\ns_cmp_eq_u32 s72, 0\ns_cbranch_scc1 {slowp}")
        if par: A.e(f"s_branch {top[0]}")
        def d(par=par, slowp=slowp):
            A.label(slowp)
            A.e(pollld)
            A.e("s_waitcnt vmcnt(1)"); flag_store(A, VT, "s60", 69)
            go = A.newlabel("go")
            A.e(f"s_cmp_ge_u32 s60, {NU}\ns_cbranch_scc1 {done}\ns_waitcnt vmcnt(1)\nv_cmp_gt_u32 vcc, s71, v{VF}\ns_cbranch_vccz {go}")
            poll_loop(A, pollld, VF, 71)
            A.label(go)
            loads(par ^ 1); dummies()
            A.e(f"s_branch {top[par^1]}")
        tail.append(d)
    for d in tail: d()
    A.label(done)
    stamp_out(A, ST)
    A.e("s_endpgm")

def att_role(A, L):
    L16, VFA, VKM, VVM, VF, VT, VNEG = 0, 2, 3, 4, 5, 6, 7
    KM, VM, SA, SM, P, TT, OA, PK = 16, 32, 48, 56, 64, 72, 80, 112; ST = (120, 121, 122)
    Q = lambda b, ke: ar(b * 80 + ke * 4, 4)
    K = lambda b, kt, ke: ar(b * 80 + 16 + (kt * 4 + ke) * 4, 4)
    V = lambda b, et: ar(b * 80 + 48 + et * 4, 4)
    verify(A, L, True)
    A.e(f"""
    v_lshlrev_b32 v{L16}, 4, v1
    v_and_b32 v21, 15, v1
    v_lshrrev_b32 v22, 4, v1
    v_and_b32 v23, 7, v21
    v_lshlrev_b32 v23, 4, v23
    v_lshl_add_u32 v{VKM}, v22, 8, v23
    v_and_b32 v23, 31, v1
    v_lshlrev_b32 v{VVM}, 4, v23
    v_and_b32 v23, 3, v1
    v_bfe_u32 v24, v1, 2, 1
    v_lshlrev_b32 v23, 14, v23
    v_lshl_add_u32 v{VFA}, v24, 7, v23
    v_mov_b32 v{VNEG}, {NEG:#x}
    s_and_b32 s54, s50, 1
    s_lshl_b32 s64, s54, 4
    v_lshlrev_b32 v23, 2, v22
    v_sub_u32 v23, v21, v23
    v_add_u32 v23, s64, v23            ; query - 4g""")
    for kt in range(2):
        for r in range(4): A.e(f"v_cmp_le_i32 s[{28+2*(kt*4+r)}:{29+2*(kt*4+r)}], {16*kt+r}, v23")
    A.e(f"""
    s_mov_b32 s44, -1
    s_mov_b32 s45, 0
    s_mov_b32 s80, {f2u(SCL):#x}
    s_lshl_b32 s52, s59, 1
    s_lshr_b32 s64, s50, 1
    s_add_u32 s52, s52, s64            ; head
    s_lshl_b32 s53, s52, 15            ; 2h * 16KB
    s_lshl_b32 s68, s52, 8
    s_add_u32 s68, s68, s67
    s_add_u32 s68, s68, {F_KVM}
    s_lshl_b32 s69, s59, 8
    s_lshl_b32 s64, s64, 2
    s_add_u32 s69, s69, s64
    s_lshl_b32 s64, s54, 3
    s_add_u32 s69, s69, s64
    s_add_u32 s69, s69, {F_ATT}
    s_lshl_b32 s66, s52, 12
    s_lshl_b32 s64, s54, 17
    s_add_u32 s66, s66, s64
    s_add_u32 s66, s66, {OB}
    s_lshl_b32 s55, s54, 10
    s_xor_b32 s55, s55, 0x2000
    s_mov_b32 s60, 0                   ; 2 * segment""")
    def near(dst, add):
        A.e(f"""
        s_add_u32 s64, s60, {2*add}
        s_lshl_b32 s65, s64, 11
        s_and_b32 s65, s65, 0x2000
        s_xor_b32 s65, s65, s67
        s_lshl_b32 s64, s64, 19
        s_add_u32 s64, s64, s65
        s_add_u32 s{dst}, s64, s53""")
    def kq_loads(b, add):
        near(92, add)
        A.e("s_add_u32 s93, s92, 16384\ns_add_u32 s94, s92, 4096\ns_add_u32 s95, s93, 4096\ns_xor_b32 s96, s92, s55\ns_xor_b32 s97, s93, s55")
        for ke in range(4):
            A.e(f"buffer_load_dwordx4 {Q(b,ke)}, v{L16}, {WSRD}, s{96+(ke>>1)} offen offset:{(ke&1)*2048}")
            for kt in range(2): A.e(f"buffer_load_dwordx4 {K(b,kt,ke)}, v{L16}, {WSRD}, s{92+(ke>>1)} offen offset:{(ke&1)*2048 + kt*1024}")
    def v_loads(b):
        for et in range(8): A.e(f"buffer_load_dwordx4 {V(b,et)}, v{L16}, {WSRD}, s{94+(et>>2)} offen offset:{(et&3)*1024}")
    def softmax(vals):
        mx, t, sm, r = TT, TT + 1, TT + 2, TT + 3
        A.e(f"v_max3_f32 v{mx}, v{mx}, v{vals[8]}, v{vals[9]}\nv_max3_f32 v{mx}, v{mx}, v{vals[10]}, v{vals[11]}")
        for sw in ("v_permlane16_swap_b32", "v_permlane32_swap_b32"): A.e(f"v_mov_b32 v{t}, v{mx}\n{sw} v{t}, v{mx}\nv_max_f32 v{mx}, v{mx}, v{t}")
        A.e(f"v_mul_f32 v{mx}, s80, v{mx}")
        for v in vals: A.e(f"v_fma_f32 v{v}, v{v}, s80, -v{mx}")
        for v in vals: A.e(f"v_exp_f32 v{v}, v{v}")
        A.e(f"v_add_f32 v{sm}, v{vals[0]}, v{vals[1]}\nv_add_f32 v{r}, v{vals[2]}, v{vals[3]}")
        for i in range(4, 12, 2): A.e(f"v_add_f32 v{sm}, v{sm}, v{vals[i]}\nv_add_f32 v{r}, v{r}, v{vals[i+1]}")
        A.e(f"v_add_f32 v{sm}, v{sm}, v{r}")
        for sw in ("v_permlane16_swap_b32", "v_permlane32_swap_b32"): A.e(f"v_mov_b32 v{t}, v{sm}\n{sw} v{t}, v{sm}\nv_add_f32 v{sm}, v{sm}, v{t}")
        A.e(f"v_rcp_f32 v{r}, v{sm}")
        for v in vals: A.e(f"v_mul_f32 v{v}, v{v}, v{r}")
        for i in range(6): A.e(f"v_cvt_pk_bf16_f32 v{P+i}, v{vals[2*i]}, v{vals[2*i+1]}")
    pollld = f"buffer_load_dword v{VF}, v{VFA}, {WSRD}, s68 offen sc1"
    if F.PROF:
        for r in ST: A.e(f"v_mov_b32 v{r}, 0")
    A.e("s_mov_b32 s71, 1")
    poll_loop(A, pollld, VF, 71)
    kq_loads(0, 0); v_loads(0)
    A.e("s_waitcnt vmcnt(8)")
    top = [A.newlabel("top0"), A.newlabel("top1")]
    for b in range(2):
        A.label(top[b])
        for ke in range(4):
            for kt in range(2):
                d = vr(SA + 4 * kt, 4); A.e(f"{MF} {d}, {K(b,kt,ke)}, {Q(b,ke)}, {d if ke else 0}")
        for i in range(8): A.e(f"v_cndmask_b32 v{SA+i}, v{VNEG}, v{SA+i}, s[{28+2*i}:{29+2*i}]")
        A.e(f"v_max3_f32 v{TT}, v{SA}, v{SA+1}, v{SA+2}\nv_max3_f32 v{TT}, v{TT}, v{SA+3}, v{SA+4}\nv_max3_f32 v{TT}, v{TT}, v{SA+5}, v{SA+6}\nv_max_f32 v{TT}, v{TT}, v{SA+7}")
        near(98, 0)
        A.e(f"s_add_u32 s98, s98, {KVM}\ns_add_u32 s99, s98, 16384\ns_lshr_b32 s71, s60, 1\ns_add_u32 s71, s71, 1")
        poll_loop(A, pollld, VF, 71)
        for ke in range(4): A.e(f"buffer_load_dwordx4 {vr(KM+4*ke,4)}, v{VKM}, {WSRD}, s{98+(ke>>1)} offen offset:{(ke&1)*128}")
        for ke in range(4): A.e(f"buffer_load_dwordx4 {vr(VM+4*ke,4)}, v{VVM}, {WSRD}, s{98+(ke>>1)} offen offset:{1024 + (ke&1)*512}")
        stamp(A, ST[2])
        if F.PROF: A.e(f"s_memtime s[84:85]\ns_waitcnt lgkmcnt(0)\nv_writelane_b32 v{ST[1]}, s84, m0")
        if F.ABAR: A.e("s_barrier")
        def guarded(f, n):
            if b == 0: return f()
            pf = A.newlabel("pf"); j1 = A.newlabel("j1")
            A.e(f"s_cmp_lt_u32 s60, {NU-2}\ns_cbranch_scc1 {pf}\ns_waitcnt vmcnt({n})\ns_branch {j1}")
            A.label(pf); f(); A.label(j1)
        guarded(lambda: kq_loads(b ^ 1, 1), 0)
        A.e("s_waitcnt vmcnt(16)")
        for ke in range(4): A.e(f"{MF} {vr(SM,4)}, {vr(KM+4*ke,4)}, {Q(b,ke)}, {vr(SM,4) if ke else 0}")
        for r in range(4): A.e(f"v_cndmask_b32 v{SM+r}, v{VNEG}, v{SM+r}, s[44:45]")
        softmax(list(range(SA, SA + 12)))
        for et in range(8): A.e(f"{MF} {vr(OA+4*et,4)}, {V(b,et)}, {vr(P,4)}, 0")
        A.e("s_waitcnt vmcnt(12)")
        for et in range(8): A.e(f"v_mfma_f32_16x16x16_bf16 {vr(OA+4*et,4)}, {vr(VM+2*et,2)}, {vr(P+4,2)}, {vr(OA+4*et,4)}")
        for ke in range(4):
            o = PK + 4 * (ke & 1)
            for i in range(4): A.e(f"v_cvt_pk_bf16_f32 v{o+i}, v{OA+8*ke+2*i}, v{OA+8*ke+2*i+1}")
            A.e(f"buffer_store_dwordx4 {vr(o,4)}, v{L16}, {WSRD}, s66 offen offset:{ke*1024} sc1")
        stamp(A, ST[0])
        if F.ABAR: A.e("s_barrier")
        guarded(lambda: v_loads(b ^ 1), 0)
        A.e("s_add_u32 s66, s66, 262144\ns_add_u32 s60, s60, 2\ns_waitcnt vmcnt(8)"); flag_store(A, VT, "s71", 69)
        if b: A.e(f"s_cmp_lt_u32 s60, {NU}\ns_cbranch_scc1 {top[0]}")
    stamp_out(A, ST)
    A.e("s_endpgm")

def flow_kernel(A, name):
    A.begin_kernel(name)
    L = {k: f"fl_{k}" for k in ("slow", "disp", "rec", "qkv", "wo", "w4", "w3", "att", "ln2", "w1", "w2", "bad")}
    done = A.newlabel("done"); nr = A.newlabel("norole")
    A.e(f"s_cmp_ge_u32 s2, 256\ns_cbranch_scc1 {done}")
    ldptr(A, 18, "ws")
    A.e(f"""
    s_getreg_b32 s51, hwreg(HW_REG_XCC_ID)
    v_lshrrev_b32 v2, 6, v0
    v_and_b32 v1, 63, v0
    s_and_b32 s51, s51, 7
    v_readfirstlane_b32 s50, v2
    s_mov_b32 s90, {F.BUD}
    v_mov_b32 v4, {160*1024 - 16}""")
    if F.PROF: A.e("s_memrealtime s[86:87]")
    A.e("s_waitcnt lgkmcnt(0)")
    A.srd(20, 18, WS_BYTES)
    A.e(f"""
    s_cmp_lg_u32 s50, 0
    s_cbranch_scc1 {nr}
    s_mov_b64 exec, 1
    v_mov_b32 v3, 1
    s_lshl_b32 s52, s51, 7
    s_add_u32 s52, s52, {XCNT}
    buffer_atomic_add v3, off, {WSRD}, s52 sc0 sc1
    s_waitcnt vmcnt(0)
    ds_write_b32 v4, v3
    s_waitcnt lgkmcnt(0)
    s_mov_b64 exec, -1""")
    A.label(nr)
    A.e(f"""
    s_barrier
    ds_read_b32 v3, v4
    s_waitcnt lgkmcnt(0)
    v_readfirstlane_b32 s49, v3
    s_mov_b32 s56, 2
    s_lshl_b32 s58, s51, 5
    s_add_u32 s58, s58, s49
    s_cmp_ge_u32 s49, 32
    s_cbranch_scc1 {L['bad']}""")
    A.label(L["disp"])
    A.e("v_mbcnt_lo_u32_b32 v1, -1, 0\nv_mbcnt_hi_u32_b32 v1, -1, v1")
    for lo, role in ((248, "w2"), (240, "w1"), (224, "att"), (220, "ln2"), (192, "w3"), (160, "w4"), (128, "wo"), (64, "qkv")):
        far = A.newlabel("nx")
        A.e(f"s_sub_u32 s59, s58, {lo}\ns_cbranch_scc1 {far}\ns_branch {L[role]}"); A.label(far)
    A.e(f"s_branch {L['rec']}")
    A.label(L["bad"])
    verify(A, L, False)
    A.label(L["slow"])
    A.e("s_mov_b32 s58, s49")
    for x in range(7): A.e(f"s_cmp_gt_u32 s51, {x}\ns_cselect_b32 s65, s{92+x}, 0\ns_add_u32 s58, s58, s65")
    if F.FORCE_SLOW: A.e("s_mul_i32 s58, s58, 37\ns_add_u32 s58, s58, 11\ns_and_b32 s58, s58, 255")
    A.e(f"s_mov_b32 s56, 1\ns_waitcnt vmcnt(0) lgkmcnt(0)\ns_barrier\ns_cmp_lt_u32 s58, 256\ns_cbranch_scc1 {L['disp']}")
    A.label(done)
    A.e("s_endpgm")
    A.label(L["qkv"]); qkv_role(A, L)
    for role in ("wo", "w4", "w3", "w1", "w2"):
        A.label(L[role])
        if role in F.OFF: A.e("s_endpgm")
        gemm_role(A, L, role)
    A.label(L["ln2"]); ln_role(A, L)
    A.label(L["att"])
    if "att" in F.OFF: A.e("s_endpgm")
    att_role(A, L)
    MFMA_WS[0] = 1
    A.lines = fix_hazards(A.lines)
    B = Asm(); B.uid = A.uid + 100000
    O = rec6.O; O.MEAS = 0; O.DL0 = max(0, O.DL - 9); O.DO01 = max(0, O.DO - 7)
    MFMA_WS[0] = O.MWS
    B.label(L["rec"])
    B.e(f"s_load_dwordx8 s[4:11], s[0:1], {ARG['mem0']*8}\ns_load_dwordx2 s[12:13], s[0:1], {ARG['Wo']*8}\ns_mov_b32 s57, s58\nv_mov_b32 v0, v1\ns_waitcnt lgkmcnt(0)")
    rec6.rec_setup(B)
    sl = B.newlabel("recslow"); fin = B.newlabel("recfin")
    verify(B, L, True)
    rec6.rec_bases(B)
    B.e(f"s_mov_b32 s90, {O.BUDGET}\ns_barrier")
    if F.PROF: B.e("s_memrealtime s[14:15]\ns_memtime s[28:29]")
    if O.PROF: B.e(f"s_lshl_b32 s16, s57, 2\ns_add_u32 s16, s16, s50\ns_lshl_b32 s16, s16, 12\ns_add_u32 s16, s16, {P4}")
    B.e(f"s_cmp_eq_u32 s56, 1\ns_cbranch_scc1 {sl}")
    rec6.rec_loop(B, "", fin)
    B.label(sl)
    rec6.rec_loop(B, "sc1", fin)
    B.label(fin)
    if F.PROF:
        B.e(f"s_memrealtime s[16:17]\ns_memtime s[26:27]\ns_waitcnt lgkmcnt(0)\ns_sub_u32 s26, s26, s28\nv_mov_b32 v20, 0\nv_writelane_b32 v20, s26, 4\nv_writelane_b32 v20, s14, 0\nv_writelane_b32 v20, s16, 1\nv_writelane_b32 v20, s90, 2\nv_writelane_b32 v20, s67, 3\ns_mov_b32 s58, s57")
        stamp_out(B, [20])
    B.e("s_endpgm")
    B.lines = fix_hazards(B.lines)
    A.lines += B.lines
    A.end_kernel(512, 102, 256)
    A.launch(name, (256,), (256,), 160 * 1024)

def build(opt=None, ropt=None):
    for k, v in (opt or {}).items(): setattr(F, k, v)
    for k, v in (ropt or {}).items(): setattr(rec6.O, k, v)
    A = Asm()
    hdr = open(f"/code/{NAME}.s.ref").read().split("\n")
    A.header = [l for l in hdr if l.startswith(";") and "@launch" not in l and "Override" not in l and "grid=ceil" not in l]
    init_kernel(A, "init_kernel"); ln1_kernel(A, "ln1_kernel"); flow_kernel(A, "flow_kernel")
    return A.text()

if __name__ == "__main__":
    out = sys.argv[1]
    t = build(eval(sys.argv[2]) if len(sys.argv) > 2 else None, eval(sys.argv[3]) if len(sys.argv) > 3 else None)
    open(out, "w").write(t)
    check_hazards(t)
    print(len(t), "bytes")
```

```python
import sys
sys.path.insert(0, "..")
from asmgen import *
from lay import *
import struct
def f2u(x): return struct.unpack("<I", struct.pack("<f", x))[0]
LOG2E = 1.4426950408889634
SCL = (128 ** -0.5) * LOG2E
HALF = "0x00ff00ff"; HALFH = "0xff00ff00"
RS = 1040
T_Q = 0; T_K = 8448; T_V = 16896; T_P = T_V + 4096; PODD = 2048 + 32
L_WO = 32768
LDS_BYTES = 160 * 1024
V_L16, V_IDX, V_A1, V_A2, V_PRD, V_SEL, V_OST, V_WO, V_L4 = 0, 1, 2, 3, 4, 5, 6, 7, 127
V_C = 8
AF = 16; ACC = 48; XC = 96; XN = 104; KEEP = 112; PK = 120; TA, TB, VF = 124, 125, 126; KEEP2 = PK
WV = 128
NVR = 6
WVR = 208
def wo_reg(b): return WV + (b - 3) * 16
LV = lambda f: (f - NVR) * 2048
LO = lambda b: (16 - NVR) * 2048 + b * 4096
class Opt:
    LFW = 1; PF = 0; WOPF = 0; NFL = 0; SST = 0; PROF = False; DL = 22; DL0 = 10; DS = 32; DO = 10; DO01 = 4; NV1 = 2; BUDGET = 100000; B2POS = 1; NV2 = 0; CK = 5; PER = 4; PER2 = 2; FIXX = 0; FIXM = 0; RSH = 0; RQ = 0; VPF = 6; OPAIR = 1; S2 = 0; DS2 = 2; DO0 = 8; FPOS = 3; NOKVM = 0; NOX = 0; OI = 8; LI = 8; XS = {}; PN = 8; NVL = 0; WARM = 0; WL = 0; WO = 0; ZPER = 3; MEAS = 1; CKB = (5, 5, 5, 5, 5, 5, 5); RP = (0, 1, 2, 2); TG = 2; WD = 6; WV = 1; WN = 2; MWS = 3; TMJ = 6; RLAST = 0; KB = 4; KPOS = 0; KD = 12; EW = 1; KW2 = 0; KPAR = 0; NOFL = 0; NORS = 0; LATEL = 1; NPL = 4; NPR = 5; DPL = 4; DPR = 5
O = Opt

def delay(A, n):
    if O.WARM:
        for i in range(4 * n): A.e(f"v_mov_b32 v{TA}, v{TA}")
        return
    while n >= 4:
        A.e("s_nop 15"); n -= 4
    if n > 0: A.e(f"s_nop {4*n-1}")

def sstamp(A, v, i): A.e(f"s_memrealtime s[84:85]\ns_waitcnt lgkmcnt(0)\nv_writelane_b32 v{v}, s84, {i}")
def sstamp_out(A, v, sg):
    A.e(f"s_lshl_b32 s64, s{sg}, 2\ns_add_u32 s64, s64, s50\ns_lshl_b32 s64, s64, 6\ns_add_u32 s64, s64, {STAMP3}\nv_mbcnt_lo_u32_b32 v31, -1, 0\nv_lshlrev_b32 v31, 2, v31\ns_mov_b64 exec, 0xffff\nbuffer_store_dword v{v}, v31, s[20:23], s64 offen\ns_mov_b64 exec, -1")
def rec_setup(A):
    A.srd(28, 6, 8 * MB); A.srd(32, 8, 8 * MB); A.srd(36, 10, 8 * MB); A.srd(40, 12, 8 * MB); A.srd(44, 4, 16384)
    A.e(f"""
    s_lshr_b32 s58, s57, 5
    s_and_b32 s59, s57, 31
    v_and_b32 v20, 63, v0              ; lane
    v_and_b32 v21, 15, v20             ; lam
    v_lshrrev_b32 v22, 4, v20          ; g
    v_lshrrev_b32 v23, 3, v20
    v_and_b32 v24, 7, v20
    v_lshlrev_b32 v16, 13, v23
    v_lshl_add_u32 v16, v24, 4, v16
    v_lshrrev_b32 v23, 2, v20
    v_and_b32 v24, 3, v20
    v_lshlrev_b32 v17, 11, v23
    v_lshl_add_u32 v17, v24, 4, v17
    s_lshl_b32 s61, s50, 15
    s_add_u32 s61, s61, {L_WO}
    s_lshl_b32 s62, s50, 21
    s_lshl_b32 s64, s57, 7
    s_add_u32 s62, s62, s64
    s_lshl_b32 s63, s58, 22
    s_lshl_b32 s64, s50, 20
    s_add_u32 s63, s63, s64
    s_lshl_b32 s64, s59, 6
    s_add_u32 s63, s63, s64
    v_lshrrev_b32 v23, 1, v22          ; g>>1
    v_lshlrev_b32 v25, 4, v23
    v_and_b32 v23, 1, v22
    v_lshl_add_u32 v25, v23, 2, v25
    v_lshrrev_b32 v23, 3, v21          ; r'>>1
    v_lshl_add_u32 v25, v23, 3, v25
    v_bfe_u32 v23, v21, 2, 1           ; r'&1
    v_add_u32 v25, v25, v23
    v_lshlrev_b32 v28, 4, v23
    v_lshrrev_b32 v23, 1, v22
    v_lshl_add_u32 v28, v23, 3, v28
    v_lshrrev_b32 v23, 3, v21
    v_lshl_add_u32 v28, v23, 2, v28
    v_and_b32 v23, 1, v22
    v_lshl_add_u32 v28, v23, 1, v28
    v_and_b32 v24, 3, v21              ; c'
    v_lshlrev_b32 v26, 7, v28
    v_add_u32 v26, s61, v26
    v_lshl_add_u32 v18, v24, 3, v26
    v_lshl_add_u32 v19, v24, 4, v26    ; permuted
    v_lshlrev_b32 v26, 6, v25
    v_add_u32 v26, s61, v26
    v_lshl_add_u32 v27, v24, 3, v26
    v_lshlrev_b32 v{V_L16}, 4, v20
    v_add_u32 v{V_WO}, s61, v{V_L16}""")
    ST = [(0, 0), (0, 1), (1, 0), (1, 1), (3, 0), (3, 1), (2, 0), (2, 1)]
    if O.PF:
        A.e(f"""
        s_and_b32 s64, s57, 7
        s_cmp_eq_u32 s64, 3
        s_cselect_b32 s65, 0, 0x0f
        s_sub_u32 s66, s57, 56
        s_cmp_lt_u32 s66, 7
        s_cselect_b32 s66, 0xf0, 0
        s_or_b32 vcc_lo, s65, s66
        s_mov_b32 vcc_hi, 0
        v_and_b32 v29, 3, v20
        v_lshlrev_b32 v29, 13, v29
        v_and_b32 v30, 4, v20
        v_lshl_add_u32 v29, v30, 7, v29
        v_cndmask_b32 v29, -1, v29, vcc
        s_lshl_b32 s64, s64, 15
        s_lshl_b32 s65, s50, 21
        s_add_u32 s64, s64, s65
        s_andn2_b32 s65, s57, 7
        s_lshl_b32 s65, s65, 7
        s_add_u32 s64, s64, s65
        s_add_u32 s68, s64, 384
        s_lshl_b32 s64, s58, 22
        s_lshl_b32 s65, s50, 20
        s_add_u32 s64, s64, s65
        s_and_b32 s66, s59, 15
        s_lshl_b32 s65, s66, 13
        s_add_u32 s64, s64, s65
        s_lshr_b32 s65, s59, 4
        s_lshl_b32 s65, s65, 10
        s_add_u32 s69, s64, s65""")
        if O.WOPF: A.e(f"""
        v_lshrrev_b32 v30, 3, v20
        v_lshlrev_b32 v30, 11, v30
        v_and_b32 v31, 7, v20
        v_lshl_add_u32 v30, v31, 7, v30
        v_cmp_gt_u32 vcc, 32, v20
        v_cndmask_b32 v30, -1, v30, vcc""")
        else: A.e(f"""
        s_add_u32 s69, s69, 384
        s_lshr_b32 s66, s66, 1
        s_cmp_eq_u32 s66, 3
        s_cselect_b32 s65, 0, 4
        v_lshlrev_b32 v30, 11, v20
        v_cmp_gt_u32 vcc, s65, v20
        v_cndmask_b32 v30, -1, v30, vcc""")
    def pf1(t, i):
        mat, hh = ST[t]
        if mat < 3: A.e(f"s_add_u32 s64, s68, {(hh*128 + i*32)*8192}\nbuffer_load_dword v31, v29, s[{28+mat*4}:{31+mat*4}], s64 offen")
        else: A.e(f"s_add_u32 s64, s69, {(hh*256 + i*64)*2048}\nbuffer_load_dword v31, v30, s[40:43], s64 offen")
    def issue(st):
        mat, hh = ST[st]
        npf[st] = 0
        if O.PF and st == 0: pf1(0, 2); pf1(0, 3); npf[st] += 2
        for J in range(16):
            if O.PF and J % 4 == 2 and st < 7: pf1(st + 1, J // 4); npf[st] += 1
            if O.NFL and J: A.e(f"s_waitcnt vmcnt({O.NFL})")
            if mat < 3: A.e(f"s_add_u32 s64, s62, {(hh*128 + J*8)*8192}\ns_add_u32 m0, s61, {hh*16384+J*1024}\nbuffer_load_dwordx4 v16, s[{28+mat*4}:{31+mat*4}], s64 offen lds")
            else: A.e(f"s_add_u32 s64, s63, {(hh*256 + J*16)*2048}\ns_add_u32 m0, s61, {hh*16384+J*1024}\nbuffer_load_dwordx4 v17, s[40:43], s64 offen lds")
    def vdst(f):
        if f < NVR: return WVR + f * 8
        if f < 8: return 96 + (f - NVR) * 8
        return None
    def read(st):
        mat, hh = ST[st]
        if mat < 2:
            for jj in range(2):
                j = hh * 2 + jj
                for t in range(4):
                    for R in range(2):
                        for h in range(2):
                            off = hh * 16384 + (64 * jj + 32 * R + h) * 128
                            A.e(f"ds_read_b64_tr_b16 {ar((j*8+mat*4+t)*8+4*R+2*h,2)}, v18 offset:{off + t*32}")
                A.e("s_waitcnt lgkmcnt(0)")
        elif mat == 3:
            for jj in range(4):
                b = hh * 4 + jj
                for t in range(2):
                    for R in range(2):
                        for h in range(2):
                            off = hh * 16384 + (64 * jj + 32 * R + 2 * h) * 64 + t * 32
                            A.e(f"ds_read_b64_tr_b16 {vr((48 + b*16 if b < 3 else wo_reg(b)) + t*8+4*R+2*h,2)}, v27 offset:{off}")
                if jj & 1: A.e("s_waitcnt lgkmcnt(0)")
        else:
            def rd(f, dst):
                jj, t = (f >> 2) & 1, f & 3
                for R in range(2):
                    for h in range(2):
                        off = hh * 16384 + (64 * jj + 32 * R + h) * 128
                        A.e(f"ds_read_b64_tr_b16 {vr(dst+4*R+2*h,2)}, v19 offset:{off + (t>>1)*64 + (t&1)*8}")
            if hh == 0:
                for f in range(8):
                    rd(f, vdst(f))
                    if f & 3 == 3: A.e("s_waitcnt lgkmcnt(0)")
            else:
                for f in range(NVR, 8):
                    for q in range(2): A.e(f"ds_write_b128 v{V_WO}, {vr(vdst(f)+q*4,4)} offset:{LV(f) + q*1024}")
                A.e("s_waitcnt lgkmcnt(0)")
                for f0 in (8, 10, 12, 14):
                    for f in (f0, f0 + 1): rd(f, 96 + (f - f0) * 8 + (16 if f0 == 14 else 0))
                    A.e("s_waitcnt lgkmcnt(0)")
                    if f0 < 14:
                        for f in (f0, f0 + 1):
                            for q in range(2): A.e(f"ds_write_b128 v{V_WO}, {vr(96+(f-f0)*8+q*4,4)} offset:{LV(f) + q*1024}")
                        A.e("s_waitcnt lgkmcnt(0)")
                for f in (14, 15):
                    for q in range(2): A.e(f"ds_write_b128 v{V_WO}, {vr(112+(f-14)*8+q*4,4)} offset:{LV(f) + q*1024}")
                for q in range(12): A.e(f"ds_write_b128 v{V_WO}, {vr(48+q*4,4)} offset:{LO(0) + q*1024}")
                A.e("s_waitcnt lgkmcnt(0)")
    npf = {}
    if O.SST: sstamp(A, 15, 1)
    issue(0); issue(1)
    for st in range(8):
        A.e(f"s_waitcnt vmcnt({16 + npf[st+1] if st < 7 else 0})")
        if O.SST: sstamp(A, 15, 2 * st)
        read(st)
        if O.SST and st: sstamp(A, 15, 2 * st + 1)
        if st + 2 < 8: issue(st + 2)
    if O.SST: sstamp_out(A, 15, 57)
    w23 = A.newlabel("w23"); jn = A.newlabel("jn")
    A.e(f"""
    v_and_b32 v23, 1, v21
    v_mov_b32 v{V_IDX}, 0x4444
    v_mov_b32 v24, 0xeeee
    v_cmp_eq_u32 vcc, 1, v23
    v_cndmask_b32 v{V_IDX}, v{V_IDX}, v24, vcc
    v_lshlrev_b32 v23, 1, v22
    v_sub_u32 v23, v21, v23            ; lam - 2g
    v_mov_b32 v{V_SEL}, 0
    v_mov_b32 v24, 0x3f80
    v_cmp_eq_u32 vcc, 0, v23
    v_cndmask_b32 v{V_SEL}, v{V_SEL}, v24, vcc
    v_mov_b32 v24, 0x3f800000
    v_cmp_eq_u32 vcc, 1, v23
    v_cndmask_b32 v{V_SEL}, v{V_SEL}, v24, vcc
    s_and_b32 s64, s50, 1
    s_lshl_b32 s64, s64, 11
    v_lshl_add_u32 v{V_L4}, v20, 2, s64
    v_and_b32 v23, 7, v21              ; i
    v_lshrrev_b32 v24, 3, v21
    v_lshlrev_b32 v25, 8, v24
    v_lshl_add_u32 v25, v22, 6, v25
    v_lshl_add_u32 v{V_PRD}, v23, 2, v25   ; p store: (e>>3)*256 + 2g*32 + (e&7)*4
    v_lshrrev_b32 v25, 1, v22
    v_lshl_add_u32 v25, v25, 3, v23
    v_lshlrev_b32 v25, 5, v25
    v_and_b32 v26, 1, v22
    v_lshl_add_u32 v{V_OST}, v26, 4, v25   ; o store: ((g>>1)*8+i)*32 + (g&1)*16
    v_lshl_add_u32 v27, v22, 3, v23
    v_lshlrev_b32 v27, 4, v27          ; (g*8+i)*16
    s_mov_b32 s80, {f2u(SCL):#x}
    s_mov_b32 s81, 0xfffffffe
    s_mov_b32 s84, {HALF}
    s_mov_b32 s85, {HALF}
    s_mov_b32 s86, -1
    s_mov_b32 s87, 0
    s_cmp_gt_u32 s50, 1
    s_cselect_b32 s82, {HALFH}, -1
    s_cselect_b32 s83, {HALFH}, 0
    s_lshl_b32 m0, s50, 8
    s_cmp_gt_u32 s50, 1
    s_cbranch_scc1 {w23}
    v_lshl_add_u32 v{V_A1}, v24, 9, v27    ; S poll x4
    v_lshrrev_b32 v25, 1, v22
    v_lshl_add_u32 v25, v25, 3, v23
    v_lshlrev_b32 v25, 4, v25
    v_lshl_add_u32 v26, v26, 1, v24
    v_lshl_add_u32 v{V_A2}, v26, 2, v25
    v_add_u32 v{V_A2}, 1024 + 256, v{V_A2}
    v_cndmask_b32 v{V_OST}, 2.0, v{V_OST}, s[84:85]""")
    for i in range(8): A.e(f"v_mov_b32 v{V_C+i}, {'0x3f803f80' if i < 5 else 0}")
    A.e(f"s_branch {jn}")
    A.label(w23)
    A.e(f"""
    s_sub_u32 s64, s50, 2
    s_mul_i32 s64, s64, {4*RS}
    v_lshrrev_b32 v25, 1, v22
    v_mul_u32_u24 v25, {2*RS}, v25
    v_and_b32 v28, 1, v23
    v_mul_u32_u24 v28, {RS}, v28
    v_add_u32 v25, v25, v28
    v_lshrrev_b32 v28, 1, v23
    v_lshl_add_u32 v25, v28, 6, v25
    v_lshl_add_u32 v25, v26, 5, v25
    v_mul_u32_u24 v28, {T_K}, v24
    v_add3_u32 v{V_A1}, v25, v28, s64
    v_cndmask_b32 v{V_A2}, 2.0, v27, s[84:85]""")
    for i in range(4): A.e(f"v_mov_b32 v{V_C+i}, -1")
    A.label(jn)

def rec_bases(A):
    A.e(f"""
    s_lshl_b32 s64, s58, 14
    s_lshl_b32 s65, s50, 12
    s_add_u32 s70, s64, s65
    s_add_u32 s70, s70, {R_PL}
    s_lshl_b32 s65, s59, 9
    s_add_u32 s71, s64, s65
    s_add_u32 s71, s71, {R_PL}
    s_xor_b32 s64, s58, 1
    s_lshl_b32 s64, s64, 15
    s_lshr_b32 s65, s50, 1
    s_lshl_b32 s65, s65, 14
    s_add_u32 s64, s64, s65
    s_and_b32 s65, s50, 1
    s_lshl_b32 s65, s65, 12
    s_add_u32 s64, s64, s65
    s_add_u32 s72, s64, s67
    s_add_u32 s72, s72, {R_PR}
    s_lshl_b32 s64, s58, 15
    s_lshr_b32 s65, s59, 4
    s_lshl_b32 s65, s65, 14
    s_add_u32 s64, s64, s65
    s_and_b32 s65, s59, 15
    s_lshl_b32 s65, s65, 9
    s_add_u32 s64, s64, s65
    s_add_u32 s73, s64, s67
    s_add_u32 s73, s73, {R_PR}
    s_cmp_eq_u32 s50, 1
    s_cselect_b32 s54, 2048 - 256, 0
    s_sub_u32 s71, s71, s54
    s_lshl_b32 s64, s58, 15
    s_lshl_b32 s65, s50, 13
    s_add_u32 s74, s64, s65
    s_add_u32 s74, s74, {R_O}           ; O gather
    s_lshl_b32 s64, s57, 10
    s_and_b32 s65, s50, 1
    s_lshl_b32 s65, s65, 9
    s_cmp_gt_u32 s50, 1
    s_cselect_b32 s65, 0, s65
    s_add_u32 s75, s64, s65
    s_add_u32 s75, s75, {R_O}
    s_lshl_b32 s64, s57, 12
    s_and_b32 s65, s64, 0xffffe000
    s_cmp_eq_u32 s50, 3
    s_cselect_b32 s66, 1536, 0
    s_add_u32 s64, s64, s66
    s_cmp_gt_u32 s50, 1
    s_cselect_b32 s76, s64, s65
    s_add_u32 s76, s76, {R_SX}
    s_lshl_b32 s64, s57, 14
    s_and_b32 s65, s50, 1
    s_lshl_b32 s66, s65, 11
    s_add_u32 s77, s64, s66
    s_cmp_gt_u32 s50, 1
    s_cselect_b32 s66, 0, 4096
    s_add_u32 s77, s77, s66
    s_add_u32 s77, s77, {QKV}
    s_lshl_b32 s66, s65, 9
    s_add_u32 s66, s66, 1024 + 128
    s_lshl_b32 s65, s65, 7
    s_cmp_gt_u32 s50, 1
    s_cselect_b32 s65, s65, s66
    s_add_u32 s78, s64, s65
    s_add_u32 s78, s78, {KVM - 128}
    s_lshl_b32 s64, s57, 6
    s_add_u32 s68, s64, s67
    s_add_u32 s69, s68, s64
    s_add_u32 s69, s69, {F_KVM}
    s_lshl_b32 s64, s50, 14
    s_add_u32 s69, s69, s64
    s_and_b32 s64, s50, 1
    s_lshl_b32 s64, s64, 11
    s_sub_u32 s69, s69, s64
    s_add_u32 s68, s68, {F_QKV}
    s_mov_b32 s79, 0
    s_mov_b32 s91, 0""")

def segoff(A, dst, sstep, add, base):
    A.e(f"""
    s_add_u32 s64, s{sstep}, {add}
    {'s_mov_b32 s64, 0' if (O.FIXX and base == 77) or (O.FIXM and base == 78) else ''}
    s_lshl_b32 s65, s64, 12
    s_and_b32 s65, s65, 0x2000
    s_xor_b32 s65, s65, s67
    {'s_xor_b32 s65, s65, 0x2000' if (O.KPAR and base == 78) else ''}
    s_lshl_b32 s64, s64, 20
    s_add_u32 s65, s65, s64
    s_add_u32 s{dst}, s65, s{base}""")

def rec_loop(A, lst, fin, nsteps=64):
    tail = []
    def stamp(i):
        if isinstance(i, str):
            if i not in O.XS: return
            i = O.XS[i]
        elif i in O.XS.values(): return
        if O.PROF in (1, 2, 5): A.e(f"{'s_memtime' if O.PROF != 1 else 's_memrealtime'} s[{2*i+24}:{2*i+25}]")
    def trace():
        if O.PROF == 6:
            A.e(f"s_memtime s[24:25]\ns_memrealtime s[26:27]\ns_waitcnt lgkmcnt(0)\nv_writelane_b32 v{TA}, s24, 0\nv_writelane_b32 v{TA}, s26, 1\nv_writelane_b32 v{TA}, s90, 2")
            A.e(f"s_lshl_b32 s64, s79, 6\ns_add_u32 s64, s64, s16\nv_lshrrev_b32 v{TB}, 2, v{V_L16}\ns_mov_b64 exec, 0xf\nbuffer_store_dword v{TA}, v{TB}, s[20:23], s64 offen\ns_mov_b64 exec, -1")
            return 6
        if O.PROF != 5: return 0
        A.e("s_waitcnt lgkmcnt(0)")
        for i in range(1, 13): A.e(f"v_writelane_b32 v{TA}, s{24+2*i}, {i}")
        A.e(f"v_writelane_b32 v{TA}, s56, 13\nv_writelane_b32 v{TA}, s51, 14")
        A.e(f"s_lshl_b32 s64, s79, 6\ns_add_u32 s64, s64, s16\nv_lshrrev_b32 v{TB}, 2, v{V_L16}\ns_mov_b64 exec, 0xffff\nbuffer_store_dword v{TA}, v{TB}, s[20:23], s64 offen\ns_mov_b64 exec, -1")
        return 8
    def cnt(k):
        if O.PROF and O.PROF != 6: A.e(f"s_add_u32 s56, s56, {1 << (8*k)}" if k < 4 else "s_add_u32 s51, s51, 1")
    def chk(b, n, nb=1):
        r = AF + b * 4
        o = [f"s_waitcnt vmcnt({n})", f"v_max3_u32 v{TA}, v{r}, v{r+1}, v{r+2}"]
        for q in range(2 * (nb - 1)): o += [f"v_max3_u32 v{TA}, v{TA}, v{r+3+2*q}, v{r+4+2*q}"]
        o += [f"v_max_u32 v{TA}, v{TA}, v{r+4*nb-1}", f"v_cmp_eq_u32 vcc, -1, v{TA}"]
        return o
    def flagwait(add, ret=False):
        ok = A.newlabel("fok"); lp = A.newlabel("flp")
        out = [f"s_add_u32 s64, s79, {add}", f"s_cmp_gt_u32 s91, s64\ns_cbranch_scc0 {lp}\n{ok}:"]
        if not ret:
            for x in out: A.e(x)
        def d():
            A.label(lp)
            A.e(f"""
            buffer_load_dword v{TA}, off, s[20:23], s68 sc1
            s_waitcnt vmcnt(0)
            v_readfirstlane_b32 s91, v{TA}
            s_cmp_gt_u32 s91, s64
            s_cbranch_scc1 {ok}
            s_sleep 2
            s_sub_u32 s90, s90, 1
            s_cmp_gt_i32 s90, 0
            s_cbranch_scc1 {lp}
            s_branch {ok}""")
        tail.append(d)
        return out
    smq = lambda t, b: f"v_smfmac_f32_16x16x64_bf16 {vr(ACC+t*4,4)}, {vr(AF+b*4,4)}, {ar(((b&3)*8+t)*8,8)}, v{V_IDX}"
    def vreg(f): return WVR + f * 8 if f < NVR else ACC + ((f - NVR) & 3) * 8
    smv = lambda i: f"v_smfmac_f32_16x16x64_bf16 {vr(ACC+32+((i>>1)&3)*4,4)}, {vr(AF+((i>>3)+4*(i&1))*4,4)}, {vr(vreg(i>>1),8)}, v{V_IDX}"
    rdV = lambda f: [f"ds_read_b128 {vr(vreg(f)+q*4,4)}, v{V_WO} offset:{LV(f)+q*1024}" for q in range(2)]
    vfill = [x for f in range(NVR, NVR + 4) for x in rdV(f)]
    def epi_v(t):
        a = ACC + 32 + t * 4
        return [f"v_add_f32 v{a}, v{a}, v{a+1}", f"v_add_f32 v{a+2}, v{a+2}, v{a+3}", f"v_cvt_pk_bf16_f32 v{a}, v{a}, v{a+2}",
                f"ds_write_addtid_b32 v{a} offset:{T_V + t*1024}"]
    def vstream(start, fillpos, extra=None, post=[]):
        out = []; extra = extra or {}
        for i in range(start, 32):
            f, r = i >> 1, i & 1
            if f >= NVR and r == 0: out.append(f"s_waitcnt lgkmcnt({2*min(3, 15-f)})")
            out.append(smv(i))
            if fillpos is not None and fillpos <= i < fillpos + 4: out += vfill[2 * (i - fillpos):2 * (i - fillpos) + 2]
            if f >= NVR and r == 1 and f + 4 < 16: out += rdV(f + 4)
            out += extra.get(i, [])
            if f"v{i}" in O.XS and O.PROF in (1, 2, 5): out.append(f"s_memtime s[{2*O.XS[f'v{i}']+24}:{2*O.XS[f'v{i}']+25}]")
            if O.EW == 0:
                if i == 30: out += epi_v(0)[:2]
                if i == 31: out += epi_v(0)[2:]
            else:
                e0 = epi_v(0); e1 = epi_v(1)
                out += {28: e0[:1], 29: e0[1:2], 30: e0[2:3], 31: e0[3:] + e1[:1]}.get(i, [])
        out += post
        if O.EW:
            out += epi_v(1)[1:3] + epi_v(2)[:3] + epi_v(3)[:3] + [epi_v(t)[3] for t in (1, 2, 3)]
        else:
            for t in range(1, 4): out += epi_v(t)
        return out
    ldA = lambda b, r=None: f"buffer_load_dwordx4 {vr(AF+b*4 if r is None else r,4)}, v{V_L16}, s[20:23], s{92 + (b>>2)} offen offset:{(b&3)*1024} sc1"
    def retry(b, br, go, rt, lds, n, k, nb=1):
        def d():
            A.label(rt)
            cnt(k)
            A.e(f"s_sub_u32 s90, s90, 1\ns_cmp_gt_i32 s90, 0\ns_cbranch_scc0 {go}")
            for x in lds: A.e(x)
            for x in chk(b, n, nb): A.e(x)
            A.e(f"s_branch {br}")
        tail.append(d)
    def epi_qk(t):
        a = ACC + t * 4; off = (T_Q if t < 4 else T_K) + (t & 3) * 2 * RS
        return [f"v_add_f32 v{a}, v{a}, v{a+1}", f"v_add_f32 v{a+2}, v{a+2}, v{a+3}",
                f"ds_write_addtid_b32 v{a} offset:{off}", f"ds_write_addtid_b32 v{a+2} offset:{off+RS}"]
    def weave(W, fin_idx, E, pre, per=4):
        seq = []; tm = 0; fin_t = {}
        va = []; oth = list(pre); nxt = 0
        def emit(x):
            nonlocal tm
            seq.append(x); tm += MFMA_WS[0] if "smfmac" in x else 1
        wr_ready = []
        for k, m in enumerate(W):
            emit(m)
            if k in fin_idx: fin_t[fin_idx.index(k)] = tm
            no_ = O.WN
            while no_ > 0 and wr_ready: emit(wr_ready.pop(0)); no_ -= 1
            while no_ > 0 and oth: emit(oth.pop(0)); no_ -= 1
            while nxt < len(E) and nxt in fin_t and tm - fin_t[nxt] >= O.WD:
                va += [(E[nxt][0], E[nxt][2]), (E[nxt][1], E[nxt][3])]; nxt += 1
            for _ in range(O.WV):
                if va: a_, w_ = va.pop(0); emit(a_); wr_ready.append(w_)
        for x in oth: emit(x)
        while nxt < len(E): va += [(E[nxt][0], E[nxt][2]), (E[nxt][1], E[nxt][3])]; nxt += 1
        for x in wr_ready: emit(x)
        for a_, w_ in va: emit(a_)
        for a_, w_ in va: emit(w_)
        for x in seq: A.e(x)
    def chkr(r):
        return [f"v_max3_u32 v{TA}, v{r}, v{r+1}, v{r+2}", f"v_max_u32 v{TA}, v{TA}, v{r+3}", f"v_cmp_eq_u32 vcc, -1, v{TA}"]
    def deferred(blocks, ld, work, back, k, temps, delta, first=True):
        cnt(k)
        for bb in blocks:
            sk = A.newlabel("dsk")
            if len(blocks) > 1: A.e(f"s_bitcmp1_b32 s55, {bb}\ns_cbranch_scc0 {sk}")
            A.e(ld(bb, AF + 4 * bb))
            A.label(sk)
        for bb in blocks:
            sk = A.newlabel("dsk"); go = A.newlabel("dgo"); lp = A.newlabel("dlp")
            T = [AF + 4 * bb] + temps(bb); n = len(T)
            A.e(f"s_bitcmp1_b32 s55, {bb}\ns_cbranch_scc0 {sk}")
            A.e(f"s_waitcnt vmcnt({n-1})")
            for x in chkr(T[0]): A.e(x)
            A.e(f"s_cbranch_vccz {go}")
            for j in range(1, n):
                A.e(f"s_nop {4*delta(bb)-1}" if delta(bb) <= 4 else f"s_nop 15\ns_nop {4*(delta(bb)-4)-1}")
                A.e(ld(bb, T[j]))
            A.label(lp)
            if O.PROF and O.PROF != 6: A.e("s_add_u32 s51, s51, 0x10000")
            cp = [A.newlabel("dcp") for _ in T]
            for j in range(n):
                A.e(f"s_waitcnt vmcnt({n-1})")
                for x in chkr(T[j]): A.e(x)
                A.e(f"s_cbranch_vccz {go if j == 0 else cp[j]}")
                A.e(ld(bb, T[j]))
            A.e(f"s_sub_u32 s90, s90, 1\ns_cmp_gt_i32 s90, 0\ns_cbranch_scc1 {lp}\ns_branch {go}")
            for j in range(1, n):
                A.label(cp[j])
                for i in range(4): A.e(f"v_mov_b32 v{T[0]+i}, v{T[j]+i}")
                A.e("s_nop 1")
                if j < n - 1: A.e(f"s_branch {go}")
            A.label(go)
            for x in work(bb): A.e(x)
            A.label(sk)
        A.e(f"s_mov_b32 s55, 0\ns_branch {back}")
    dummy = f"buffer_load_dword v{TB}, off, s[20:23], s92 sc1"
    def phaseA(tiles, win1, nv, prof):
        rsh = O.RSH
        after = {c: [] for c in range(8)}
        TJ = O.TMJ
        pre_r = []
        for j in range(4):
            if O.RP[j] < 0: pre_r.append(4 + j)
            else: after[O.RP[j]].append(4 + j)
        for x in pre_r: A.e(ldA(x))
        rq = O.RQ and len(tiles) == 8
        order = [0, 1, 2, 3] + pre_r; cntn = {}; pref = {}
        for b in range(TJ + 1):
            cntn[b] = len(order) - 1 - order.index(b if b < TJ else 7)
            if b < TJ: order.append(("d", b))
            order += after[b]
            if b == O.KB and not O.NOKVM: order += [("k", 0), ("k", 1)]
            pref[b] = list(order)
        TL = lambda b: tiles[:4] if (rq and b >= 4) else tiles
        W = {b: [smq(t, b) for t in TL(b)] for b in range(8)}
        late = {b: len(W[b]) >= 8 for b in range(8)}
        seg = {b: A.newlabel("seg") for b in range(8)}; seg2 = {b: A.newlabel("segb") for b in range(8)}
        fl = {b: A.newlabel("fl") for b in range(8)}; fl2 = {b: A.newlabel("flb") for b in range(8)}
        slow = A.newlabel("slowA"); done = A.newlabel("doneA")
        xst = lambda b: [kvm_store, flg_store] if (b == O.KB and not O.NOKVM) else []
        assert 3 <= O.KB < TJ
        def body(b, nchk, tgt, lt):
            w = W[b]; n = len(w)
            pend = [dummy] + [ldA(x) for x in after[b]] + xst(b) if b < 7 else []
            if nchk is None: pend = []
            c = nchk
            if n >= 8:
                nvv = len(c) - 1
                p = n - O.CKB[b] - (nvv - 3)
                cq = list(c)
                for k in range(n - (1 if lt else 0)):
                    A.e(w[k])
                    for _ in range(2 if len(pend) > p - k else 1):
                        if pend: A.e(pend.pop(0))
                    if k == p - 1:
                        while pend: A.e(pend.pop(0))
                        A.e(cq.pop(0))
                    if k >= p - 1 and cq: A.e(cq.pop(0))
                for x in cq: A.e(x)
            else:
                p = 1
                A.e(w[0])
                while pend: A.e(pend.pop(0))
                for x in c[:2] + [w[p]] + c[2:]: A.e(x)
                for x in w[p + 1:n]: A.e(x)
            A.e(f"s_cbranch_vccnz {tgt}")
        for x in chk(0, cntn[0]): A.e(x)
        A.e(kvm_addr)
        A.e(f"s_cbranch_vccnz {fl2[0]}")
        nchk = lambda b: chk(b, cntn[b], 1 if b < TJ else 8 - TJ)
        for b in range(TJ + 1):
            A.label(seg[b])
            if b > 0 and late[b - 1]: A.e(W[b - 1][-1])
            A.label(seg2[b])
            if prof and b in (0, 4, TJ): stamp({0: 2, 4: 3, TJ: 4}[b])
            if b < TJ: body(b, nchk(b + 1), fl[b + 1], late[b])
            else:
                V = [smv(i) for i in range(nv)]
                w = []; fin_idx = []
                for t0 in range(0, len(tiles), O.TG):
                    for bb in range(TJ, 8):
                        for t in tiles[t0:t0 + O.TG]: w.append(smq(t, bb))
                    fin_idx += list(range(len(w) - O.TG, len(w)))
                weave(w + V, fin_idx, [epi_qk(t) for t in tiles], win1, O.PER)
        A.label(done)
        back = seg2[TJ]
        def d():
            TM = [XN, XN + 4]
            dfl = {h: A.newlabel("dfl") for h in range(1, 4)}; dseg = {h: A.newlabel("dseg") for h in range(1, 4)}
            lap2 = A.newlabel("lap2"); lfb = A.newlabel("lfb"); Ldone = A.newlabel("Ldone")
            o3 = pref[3]; yd = lambda h: len(o3) - 1 - o3.index(("d", h))
            for b in range(TJ + 1):
                A.label(fl[b])
                if b > 0 and late[b - 1]: A.e(W[b - 1][-1])
                A.label(fl2[b])
                cnt(b >> 2)
                if b < 4:
                    A.e(ldA(b)); A.e(f"s_mov_b32 s55, {1 << b}")
                    for x in after[b]: A.e(ldA(x))
                    for x in xst(b): A.e(x)
                    rp = chk(b, yd(b))
                    if b < 3:
                        for x in chk(b + 1, cntn[b + 1]): A.e(x)
                        A.e(f"s_cbranch_vccnz {dfl[b+1]}")
                        for h in range(b + 1, 4):
                            if h < 3: body(h, chk(h + 1, cntn[h + 1]), dfl[h + 1], False)
                            else: body(h, rp, lfb, False)
                    else:
                        for x in rp: A.e(x)
                        A.e(f"s_cbranch_vccnz {lfb}")
                    A.e("s_mov_b32 s55, 0")
                    w = W[b]; c = nchk(4); p = max(1, len(w) - O.CK)
                    for x in w[:p] + c + w[p:]: A.e(x)
                    A.e(f"s_cbranch_vccnz {fl2[4]}\ns_branch {seg2[4]}")
                elif b < 7:
                    k = 8 - b
                    if b < TJ: A.e(ldA(b))
                    A.e(f"s_mov_b32 s55, {(0xff << b) & 0xff}")
                    o = list(pref[b])
                    if b <= O.KB:
                        for x in xst(O.KB): A.e(x)
                        if b < O.KB and not O.NOKVM: o += [("k", 0), ("k", 1)]
                    lp = A.newlabel("rot")
                    def visit(h, n):
                        dn = A.newlabel("rdn"); fa = A.newlabel("rfa"); nx = A.newlabel("rnx")
                        A.e(f"s_bitcmp1_b32 s55, {h}\ns_cbranch_scc0 {dn}")
                        for x in chk(h, n): A.e(x)
                        A.e(f"s_cbranch_vccnz {fa}")
                        A.e(dummy)
                        A.e(f"s_bitset0_b32 s55, {h}")
                        if h < TJ:
                            for x in W[h]: A.e(x)
                        A.e(f"s_cmp_eq_u32 s55, 0\ns_cbranch_scc1 {back}\ns_branch {nx}")
                        A.label(dn)
                        A.e(dummy); A.e(f"s_branch {nx}")
                        A.label(fa)
                        A.e(ldA(h))
                        A.label(nx)
                    for h in range(b + 1 if b < TJ else b, 8):
                        visit(h, len(o) - 1 - o.index(h)); o.append(("v", h))
                    A.label(lp)
                    if O.PROF and O.PROF != 6: A.e("s_add_u32 s51, s51, 0x10000")
                    for h in range(b, 8): visit(h, k - 1)
                    A.e(f"s_sub_u32 s90, s90, 1\ns_cmp_gt_i32 s90, 0\ns_cbranch_scc1 {lp}\ns_mov_b32 s55, 0\ns_branch {back}")
                else:
                    A.e(f"s_mov_b32 s55, 0x80\ns_branch {slow}")
            for h in range(1, 4):
                A.label(dfl[h])
                A.e(ldA(h)); A.e(f"s_bitset1_b32 s55, {h}")
                for x in after[h]: A.e(ldA(x))
                for x in xst(h): A.e(x)
                if h < 3:
                    for x in chk(h + 1, cntn[h + 1]): A.e(x)
                    A.e(f"s_cbranch_vccnz {dfl[h+1]}\ns_branch {dseg[h+1]}")
                else: A.e(f"s_branch {lap2}")
            for h in range(2, 4):
                A.label(dseg[h])
                if h < 3: body(h, chk(h + 1, cntn[h + 1]), dfl[h + 1], False)
                else:
                    pend = [dummy] + [ldA(x) for x in after[h]] + xst(h)
                    for x in W[h]:
                        A.e(x)
                        if pend: A.e(pend.pop(0))
                    for x in pend: A.e(x)
            A.label(lap2)
            cnt(4)
            for h in range(4):
                sk = A.newlabel("l2s"); fa = A.newlabel("l2f")
                A.e(f"s_bitcmp1_b32 s55, {h}\ns_cbranch_scc0 {sk}")
                for x in chk(h, yd(h)): A.e(x)
                A.e(f"s_cbranch_vccnz {sk}")
                A.e(f"s_bitset0_b32 s55, {h}")
                for x in W[h]: A.e(x)
                A.label(sk)
            A.e(f"s_cmp_eq_u32 s55, 0\ns_cbranch_scc0 {lfb}")
            A.label(Ldone)
            for x in nchk(4): A.e(x)
            A.e(f"s_cbranch_vccnz {fl2[4]}\ns_branch {seg2[4]}")
            A.label(lfb)
            deferred(range(4), ldA, lambda bb: W[bb], Ldone, 4, lambda bb: TM[:O.NPL - 1], lambda bb: O.DPL, False)
            A.label(slow)
            deferred([7], ldA, lambda bb: [], back, 4, lambda bb: TM[:O.NPR - 1], lambda bb: O.DPR, False)
        tail.append(d)
    def zero(lo=0):
        for i in range(8): A.e(f"v_mov_b32 v{XC+i}, v{XN+i}")
        for i in range(lo, 48): A.e(f"v_mov_b32 v{ACC+i}, 0")
    def mzero():
        A.e(f"v_mov_b32 v{TB}, 0")
        for i in range(3): A.e(f"v_mfma_f32_16x16x1_4b_f32 {vr(ACC+16*i,16)}, v{TB}, v{TB}, 0")
    def s_frag():
        for c in range(2):
            for w in range(4): A.e(f"ds_read_b128 {vr(ACC+(c*4+w)*4,4)}, v{V_A1} offset:{w*256 + c*16}")
    def s_frag2():
        for c in range(2):
            b = ACC + c * 16
            A.e(f"s_waitcnt lgkmcnt({6-4*c})\nv_pk_add_f32 {vr(b,2)}, {vr(b,2)}, {vr(b+4,2)}\nv_pk_add_f32 {vr(b+2,2)}, {vr(b+2,2)}, {vr(b+6,2)}")
            A.e(f"s_waitcnt lgkmcnt({4-4*c})\nv_pk_add_f32 {vr(b+8,2)}, {vr(b+8,2)}, {vr(b+12,2)}\nv_pk_add_f32 {vr(b+10,2)}, {vr(b+10,2)}, {vr(b+14,2)}")
            A.e(f"v_pk_add_f32 {vr(b,2)}, {vr(b,2)}, {vr(b+8,2)}\nv_pk_add_f32 {vr(b+2,2)}, {vr(b+2,2)}, {vr(b+10,2)}")
            A.e(f"v_cvt_pk_bf16_f32 v{KEEP+2*c}, v{b}, v{b+1}\nv_cvt_pk_bf16_f32 v{KEEP+2*c+1}, v{b+2}, v{b+3}")
    def vm_read():
        for tt in range(2):
            for h in range(2): A.e(f"ds_read2st64_b32 {vr(KEEP+tt*4+2*h,2)}, v{V_L4} offset0:{(T_V + tt*1024)//256 + 2*h} offset1:{(T_V + tt*1024)//256 + 2*h + 1}")
    def vm_sum():
        for i in range(4): A.e(f"v_mov_b32 v{PK+i}, v{V_SEL}")
        for tt in range(2): A.e(f"v_mfma_f32_16x16x32_bf16 {vr(KEEP+4*tt,4)}, {vr(PK,4)}, {vr(KEEP+4*tt,4)}, 0")
        for i in range(4): A.e(f"v_cvt_pk_bf16_f32 v{KEEP+i}, v{KEEP+2*i}, v{KEEP+2*i+1}")
    kvm_store = f"buffer_store_dwordx4 {vr(KEEP,4)}, v{PK}, s[20:23], s101 offen sc1"
    flg_store = f"buffer_store_dword v{VF}, v{PK+1}, s[20:23], s69 offen sc1"
    kvm_addr = f"v_cndmask_b32 v{PK}, 2.0, v{V_L16}, s[82:83]\nv_cndmask_b32 v{PK+1}, 2.0, v{V_L4}, s[86:87]"
    loop = A.newlabel("loop"); last = A.newlabel("last"); np0 = A.newlabel("np0"); z1 = A.newlabel("z1"); loop0 = A.newlabel("loop0")
    A.e(f"""
    s_mov_b32 s55, 0
    s_cmp_lg_u32 s50, 0
    s_cbranch_scc1 {np0}
    v_mov_b32 v{PK}, 0
    v_mov_b32 v{PK+1}, 0
    s_cmp_lg_u32 s58, 0
    s_cbranch_scc1 {z1}
    v_lshrrev_b32 v{TA}, 6, v{V_L4}
    v_lshlrev_b32 v{TA}, 12, v{TA}
    v_bfe_u32 v{TB}, v{V_L4}, 1, 5
    v_add_u32 v{TA}, v{TA}, v{TB}
    s_lshl_b32 s64, s59, 6
    buffer_load_ushort v{PK}, v{TA}, s[44:47], s64 offen
    buffer_load_ushort v{PK+2}, v{TA}, s[44:47], s64 offen offset:32
    buffer_load_ushort v{PK+1}, v{TA}, s[44:47], s64 offen offset:2048
    buffer_load_ushort v{PK+3}, v{TA}, s[44:47], s64 offen offset:2080
    s_waitcnt vmcnt(0)
    v_lshl_or_b32 v{PK}, v{PK+2}, 16, v{PK}
    v_lshl_or_b32 v{PK+1}, v{PK+3}, 16, v{PK+1}
    v_min_u32 v{PK}, s81, v{PK}
    v_min_u32 v{PK+1}, s81, v{PK+1}""")
    A.label(z1)
    def pstore(sr_, sl_):
        A.e(f"buffer_store_dword v{PK}, v{V_PRD}, s[20:23], s{sl_} offen {lst}\nbuffer_store_dword v{PK+1}, v{V_PRD}, s[20:23], s{sl_} offen offset:32 {lst}")
        A.e(f"buffer_store_dword v{PK}, v{V_PRD}, s[20:23], s{sr_} offen sc1\nbuffer_store_dword v{PK+1}, v{V_PRD}, s[20:23], s{sr_} offen offset:32 sc1")
    pstore(73, 71)
    A.label(np0)
    A.e(f"""
    v_lshrrev_b32 v{TA}, 2, v{V_L16}
    v_bfe_u32 v{TB}, v{TA}, 5, 1
    v_mul_u32_u24 v{TB}, {PODD - 32}, v{TB}
    s_and_b32 s64, s50, 1
    s_lshl_b32 s64, s64, 5
    v_add3_u32 v{V_PRD}, v{TA}, v{TB}, s64""")
    flagwait(0)
    segoff(A, 99, 79, 0, 77)
    A.e(f"""
    buffer_load_dwordx4 {vr(XN,4)}, v{V_L16}, s[20:23], s99 offen
    buffer_load_dwordx4 {vr(XN+4,4)}, v{V_L16}, s[20:23], s99 offen offset:1024
    s_waitcnt vmcnt(0)
    s_mov_b32 s92, s70
    s_mov_b32 s93, s72
    s_mov_b32 s94, s76
    s_add_u32 s95, s94, 4096
    s_mov_b32 s96, s74
    s_add_u32 s97, s96, 4096
    s_mov_b32 s98, s75
    s_barrier""")
    zero()
    A.e(f"s_cmp_gt_u32 s50, 1\ns_cbranch_scc0 {loop0}x")
    ja = A.newlabel("ja")
    A.label(loop)
    mzero()
    delay(A, O.DL - 6 - trace())
    stamp(0)
    def lloads():
        for b in range(4):
            A.e(ldA(b))
            if b < 3 and O.LI: A.e(f"s_nop {O.LI-1}")
    lloads()
    for i in range(8): A.e(f"v_mov_b32 v{XC+i}, v{XN+i}")
    A.e(f"s_branch {ja}")
    A.label(loop0 + "x")
    mzero()
    delay(A, O.DL0 - 6 - trace())
    stamp(0)
    lloads()
    A.label(ja)
    A.e(f"s_max_u32 s66, s79, 1\ns_sub_u32 s66, s66, 1\nv_mov_b32 v{VF}, s66")
    if O.MEAS: A.e("s_cmp_eq_u32 s79, 9\ns_cselect_b32 s61, s62, s61\ns_memtime s[62:63]")
    segoff(A, 101, 66, 0, 78)
    A.e(f"s_cmp_eq_u32 s79, {nsteps-1}\ns_cbranch_scc1 {last}")
    if O.PROF in (1, 2, 5): A.e("s_waitcnt lgkmcnt(0)\ns_mov_b32 s26, s24")
    fw = flagwait(1, O.LFW)
    segoff(A, 99, 79, 1, 77)
    win1 = (fw if O.LFW else []) + [f"buffer_load_dwordx4 {vr(XN,4)}, v{V_L16}, s[20:23], s99 offen", f"buffer_load_dwordx4 {vr(XN+4,4)}, v{V_L16}, s[20:23], s99 offen offset:1024",
            f"buffer_load_dword v{VF}, off, s[20:23], s68 sc1",
            f"s_add_u32 s64, s79, 2", f"s_and_b32 s64, s64, {XR-1}", f"s_lshl_b32 s100, s64, 19"]
    if O.NOX: win1 = win1[3:]
    delay(A, O.WL)
    phaseA(list(range(8)), win1, O.NV1, True)
    A.e("s_waitcnt lgkmcnt(0)\ns_barrier")
    stamp(5)
    w23 = A.newlabel("w23"); ogo = A.newlabel("ogo")
    A.e(f"s_cmp_gt_u32 s50, 1\ns_cbranch_scc1 {w23}")
    nf = A.newlabel("nf")
    A.e(smv(O.NV1))
    TSET = [([AF, AF + 16, AF + 4, AF + 20], PK), ([AF + 8, AF + 24, AF + 12, AF + 28], ACC + 28)]
    def ldSet(k):
        TS, M = TSET[k]
        o = [f"buffer_load_dwordx4 {vr(TS[p],4)}, v{V_A1}, s[20:23], s{94+(p>>1)} offen offset:{(p&1)*1536} sc1" for p in range(4)]
        return o + [f"buffer_load_dword v{M+p}, v{V_A2}, s[20:23], s{94+(p>>1)} offen offset:{(p&1)*1536} sc1" for p in range(4)]
    ldS = ldSet(0)
    assert O.DS >= 16
    ex = {}; restS = []
    for k, x in enumerate(ldS):
        if O.DS + k < 32: ex[O.DS + k] = [x]
        else: restS.append(x)
    if O.DS <= 32:
        for x in vstream(O.NV1 + 1, O.VPF, ex, restS): A.e(x)
    else:
        for x in vstream(O.NV1 + 1, O.VPF, ex): A.e(x)
        delay(A, O.DS - 32)
        for x in restS: A.e(x)
    stamp(6)
    if O.S2:
        delay(A, O.DS2)
        for x in ldSet(1): A.e(x)
    stamp("S1iss")
    if O.B2POS == 0: A.e("s_waitcnt lgkmcnt(0)\ns_barrier"); vm_read()
    sp = A.newlabel("sp"); sok = A.newlabel("sok"); srt = A.newlabel("srt")
    mx, t_ = TA, TB
    T = AF; T4 = PK
    DPP8 = "row_ror:8 row_mask:0xf bank_mask:0xf"
    def schk(k, extra):
        TS, M = TSET[k]; U = TS[2]; X = TS[0]
        A.e(f"""
        s_waitcnt vmcnt({6+extra})""")
        if k == 0: stamp("Sarr")
        A.e(f"""
        v_pk_add_f32 {vr(X,2)}, {vr(X,2)}, {vr(TS[1],2)}
        v_pk_add_f32 {vr(X+2,2)}, {vr(X+2,2)}, {vr(TS[1]+2,2)}
        s_waitcnt vmcnt({4+extra})""")
        if k == 0: stamp("Sarr2")
        A.e(f"""
        v_pk_add_f32 {vr(U,2)}, {vr(U,2)}, {vr(TS[3],2)}
        v_pk_add_f32 {vr(U+2,2)}, {vr(U+2,2)}, {vr(TS[3]+2,2)}
        v_pk_add_f32 {vr(X,2)}, {vr(X,2)}, {vr(U,2)}
        v_pk_add_f32 {vr(X+2,2)}, {vr(X+2,2)}, {vr(U+2,2)}
        v_max3_f32 v{mx}, v{X}, v{X+1}, v{X+2}
        v_pk_add_f32 {vr(U,2)}, {vr(X,2)}, {vr(X+2,2)}
        s_waitcnt vmcnt({extra})""")
        if k == 0: stamp("Sarr3")
        A.e(f"""
        v_pk_add_f32 {vr(M,2)}, {vr(M,2)}, {vr(M+2,2)}
        v_add_f32 v{M}, v{M}, v{M+1}
        v_max3_f32 v{mx}, v{mx}, v{X+3}, v{M}
        v_add_f32 v{U}, v{U}, v{M}
        v_cmp_u_f32 vcc, v{U}, v{U+1}
        v_max_f32_dpp v{mx}, v{mx}, v{mx} {DPP8}
        v_mov_b32 v{t_}, v{mx}""")
    A.label(sp)
    schk(0, 8 if O.S2 else 0)
    A.e(f"s_cbranch_vccnz {srt}")
    A.label(sok)
    def d():
        A.label(srt)
        cnt(2)
        A.e(f"s_sub_u32 s90, s90, 1\ns_cmp_gt_i32 s90, 0\ns_cbranch_scc0 {sok}")
        if O.S2:
            y2 = A.newlabel("y2")
            schk(1, 0)
            A.e(f"s_cbranch_vccnz {y2}")
            for i in range(4): A.e(f"v_mov_b32 v{T+i}, v{TSET[1][0][0]+i}")
            A.e(f"v_mov_b32 v{T4}, v{TSET[1][1]}\ns_branch {sok}")
            A.label(y2)
            for x in ldSet(0): A.e(x)
            delay(A, 4)
            for x in ldSet(1): A.e(x)
        else:
            for x in ldS: A.e(x)
        A.e(f"s_branch {sp}")
    tail.append(d)
    stamp(7)
    PF = ACC; PM = ACC + 4; OD = ACC + 8; SD = ACC + 16
    A.e(f"""
    v_permlane16_swap_b32 v{t_}, v{mx}
    v_max_f32 v{mx}, v{mx}, v{t_}
    v_mov_b32 v{t_}, v{mx}
    v_permlane32_swap_b32 v{t_}, v{mx}
    v_max_f32 v{mx}, v{mx}, v{t_}
    v_mul_f32 v{mx}, s80, v{mx}""")
    vals = [T, T + 1, T + 2, T + 3, T4]
    for v in vals: A.e(f"v_fma_f32 v{v}, v{v}, s80, -v{mx}")
    def b2(pos):
        if O.B2POS == pos: A.e("s_waitcnt lgkmcnt(0)\ns_barrier"); vm_read()
    b2(1)
    stamp("pB2")
    SU = SD + 2
    for v in vals[:4]: A.e(f"v_exp_f32 v{v}, v{v}")
    A.e(f"""
    v_cvt_pk_bf16_f32 v{PF}, v{T}, v{T+1}
    v_cvt_pk_bf16_f32 v{PF+1}, v{T+2}, v{T+3}
    v_exp_f32 v{T4}, v{T4}
    v_mov_b32_dpp v{PF+2}, v{PF} {DPP8}
    v_mov_b32_dpp v{PF+3}, v{PF+1} {DPP8}""")
    b2(2)
    A.e(f"""
    v_mov_b32_dpp v{T4+1}, v{T4} {DPP8}
    v_cvt_pk_bf16_f32 v{PM}, v{T4}, v{T4+1}
    v_mfma_f32_16x16x32_bf16 {vr(SD,4)}, {vr(V_C,4)}, {vr(PF,4)}, 0
    v_mov_b32 v{PM+1}, v{PM}
    v_mfma_f32_16x16x32_bf16 {vr(OD,4)}, {vr(XC,4)}, {vr(PF,4)}, 0
    v_mov_b32 v{PM+2}, v{PM}
    v_mov_b32 v{PM+3}, v{PM}
    v_mfma_f32_16x16x32_bf16 {vr(OD+4,4)}, {vr(XC+4,4)}, {vr(PF,4)}, 0
    v_mfma_f32_16x16x32_bf16 {vr(SD,4)}, {vr(V_C+4,4)}, {vr(PM,4)}, {vr(SD,4)}""")
    stamp("pv1")
    b2(3)
    A.e(f"""
    s_waitcnt lgkmcnt(0)
    v_mfma_f32_16x16x32_bf16 {vr(OD,4)}, {vr(KEEP,4)}, {vr(PM,4)}, {vr(OD,4)}
    v_mfma_f32_16x16x32_bf16 {vr(OD+4,4)}, {vr(KEEP+4,4)}, {vr(PM,4)}, {vr(OD+4,4)}
    v_rcp_f32 v{SU}, v{SD}""")
    stamp("pv2")
    rdW = [f"ds_read_b128 {vr(ACC+q*4,4)}, v{V_WO} offset:{LO(0)+q*1024}" for q in range(12)]
    for i in range(4): A.e(f"v_pk_mul_f32 {vr(OD+2*i,2)}, {vr(OD+2*i,2)}, {vr(SU,2)} op_sel_hi:[1,0]")
    for i in range(4): A.e(f"v_cvt_pk_bf16_f32 v{PK+i}, v{OD+2*i}, v{OD+2*i+1}")
    A.e(f"buffer_store_dwordx4 {vr(PK,4)}, v{V_OST}, s[20:23], s98 offen {lst}")
    stamp(8)
    ldO = lambda b, r=None: f"buffer_load_dwordx4 {vr(AF+b*4 if r is None else r,4)}, v{V_L16}, s[20:23], s{96 + (b>>2)} offen offset:{(b&3)*1024} sc1"
    book = f"""s_add_u32 s79, s79, 1
    s_and_b32 s64, s79, {XR-1}
    s_lshl_b32 s64, s64, 19
    s_lshl_b32 s65, s79, 8
    s_and_b32 s65, s65, 0x2000
    s_lshl_b32 s66, s79, 16
    s_xor_b32 s88, s73, s65
    s_add_u32 s88, s88, s66
    s_sub_u32 s88, s88, s54
    s_add_u32 s89, s71, s64
    s_add_u32 s92, s70, s64
    s_xor_b32 s93, s72, s65
    s_add_u32 s93, s93, s66
    s_add_u32 s94, s76, s64
    s_add_u32 s95, s94, 4096
    s_add_u32 s98, s75, s64
    s_add_u32 s60, s74, s64""".split("\n")
    def oloads(fill):
        fill = list(fill)
        for b in range(8):
            A.e(ldO(b))
            if b < 7 and O.OI:
                n = O.OI
                while n > 0 and fill:
                    x = fill.pop(0); A.e(x); n -= 4 if "mfma" in x else (int(x.split()[1]) + 1 if "s_nop" in x else 1)
                if n > 0: A.e(f"s_nop {n-1}")
        for x in fill: A.e(x)
    A.e("s_barrier")
    for x in rdW + [f"v_mov_b32 v{XC+i}, 0" for i in range(8)]: A.e(x)
    delay(A, O.DO01)
    stamp(9)
    i0 = len(A.lines); vm_sum(); VS = [x.strip() for x in A.lines[i0:]]; del A.lines[i0:]
    oloads(VS[:6] + book + VS[6:])
    A.e(f"s_branch {ogo}")
    A.label(w23)
    s_frag()
    for i in range(O.NV1, O.NV1 + O.NV2): A.e(smv(i))
    stamp("sf1")
    s_frag2()
    stamp("sf2")
    SD2 = [KEEP + 4, PK, V_C + 4]
    A.e(f"""
    v_mfma_f32_16x16x32_bf16 {vr(SD2[0],4)}, {vr(XC,4)}, {vr(KEEP,4)}, 0
    v_mfma_f32_16x16x32_bf16 {vr(SD2[1],4)}, {vr(XC+4,4)}, {vr(KEEP,4)}, 0
    v_mfma_f32_16x16x32_bf16 {vr(SD2[2],4)}, {vr(KEEP,4)}, {vr(KEEP,4)}, 0""")
    for x in vfill[:5]: A.e(x)
    A.e(f"""
    buffer_store_dwordx4 {vr(SD2[0],4)}, v{V_A2}, s[20:23], s94 offen {lst}
    buffer_store_dwordx4 {vr(SD2[1],4)}, v{V_A2}, s[20:23], s94 offen offset:512 {lst}
    buffer_store_dwordx4 {vr(SD2[2],4)}, v{V_A2}, s[20:23], s94 offen offset:1024 {lst}""")
    stamp(6)
    for x in vfill[5:]: A.e(x)
    for x in vstream(O.NV1 + O.NV2, None): A.e(x)
    stamp("vend")
    for i in range(O.KW2): A.e(f"v_mfma_f32_16x16x32_bf16 {vr(AF+16,4)}, {vr(AF,4)}, {vr(AF,4)}, {vr(AF+16,4)}")
    A.e("s_waitcnt lgkmcnt(0)\ns_barrier")
    stamp(7)
    for x in rdW: A.e(x)
    A.e(f"""
    s_add_u32 s65, s76, s100
    s_add_u32 s66, s75, s100
    s_add_u32 s64, s71, s100
    s_cmp_eq_u32 s50, 2
    s_cselect_b32 s66, s66, s64
    buffer_store_dwordx4 {vr(V_C,4)}, v{V_L16}, s[20:23], s65 offen {lst}
    s_cmp_eq_u32 s50, 2
    s_cselect_b32 exec_hi, -1, 0
    buffer_store_dwordx4 {vr(V_C,4)}, v{V_L16}, s[20:23], s66 offen {lst}
    s_mov_b32 exec_hi, 0
    buffer_store_dwordx4 {vr(V_C,4)}, v{V_L16}, s[20:23], s65 offen offset:1024 {lst}
    s_mov_b64 exec, -1""")
    for i in range(8): A.e(f"v_mov_b32 v{XC+i}, 0")
    A.e("s_barrier")
    stamp(8)
    delay(A, O.DO)
    stamp(9)
    oloads(book)
    A.label(ogo)
    A.e("s_waitcnt lgkmcnt(0)")
    delay(A, O.WO)
    smo = lambda t, b: f"v_smfmac_f32_16x16x64_bf16 {vr(XC+t*4,4)}, {vr(AF+b*4,4)}, {vr((ACC+b*16 if b < 3 else wo_reg(b))+t*8,8)}, v{V_IDX}"
    groups = [(0, 2), (2, 2), (4, 2), (6, 1), (7, 1)] if O.OPAIR else [(b, 1) for b in range(8)]
    def ophase():
        F = [A.newlabel("of") for _ in groups]; N = [A.newlabel("on") for _ in groups]
        slow = A.newlabel("oslow"); back = A.newlabel("oback")
        work = lambda gi: [smo(t, bb) for bb in range(groups[gi][0], groups[gi][0] + groups[gi][1]) for t in range(2)]
        gchk = lambda gi, ex: chk(groups[gi][0], 8 - groups[gi][0] - groups[gi][1] + ex, groups[gi][1])
        mask = lambda gi: ((1 << groups[gi][1]) - 1) << groups[gi][0]
        rfl = [] if O.NOX else [f"v_readfirstlane_b32 s91, v{VF}"]
        for x in gchk(0, 0): A.e(x)
        A.e(f"s_cbranch_vccnz {F[0]}")
        ng = len(groups)
        for gi in range(ng):
            if gi in (0, ng - 1): stamp(10 if gi == 0 else 11)
            for x in work(gi): A.e(x)
            if gi == 0:
                for x in rfl: A.e(x)
            if gi + 1 < ng:
                for x in gchk(gi + 1, 0): A.e(x)
                A.e(f"s_cbranch_vccnz {F[gi+1]}")
        A.label(back)
        def d():
            lap2 = A.newlabel("olap2")
            yd = lambda h: sum(groups[j][1] for j in range(h + 1, ng))
            dumO = f"buffer_load_dword v{PK}, off, s[20:23], s96 sc1"
            for gi, (b, nb) in enumerate(groups):
                A.label(F[gi])
                cnt(3)
                A.e(f"s_mov_b32 s55, {mask(gi)}")
                if gi == ng - 1: A.e(f"s_branch {slow}"); continue
                for bb in range(b, b + nb): A.e(ldO(bb))
                if gi == 0:
                    for x in rfl: A.e(x)
                ex = nb; stubs = []
                for h in range(gi + 1, ng):
                    st = A.newlabel("ost"); rt = A.newlabel("ort")
                    for x in gchk(h, ex): A.e(x)
                    A.e(f"s_cbranch_vccnz {st}")
                    w = work(h)
                    for k, x in enumerate(w):
                        A.e(x)
                        if k < groups[h][1]: A.e(dumO)
                    A.label(rt)
                    stubs.append((h, st, rt)); ex += groups[h][1]
                nf = A.newlabel("onf")
                for x in chk(b, yd(gi), nb): A.e(x)
                A.e(f"s_cbranch_vccnz {lap2}\ns_andn2_b32 s55, s55, {mask(gi)}")
                for x in work(gi): A.e(x)
                A.e(f"s_cbranch_scc0 {back}\ns_branch {lap2}")
                for h, st, rt in stubs:
                    A.label(st)
                    for bb in range(groups[h][0], groups[h][0] + groups[h][1]): A.e(ldO(bb))
                    A.e(f"s_or_b32 s55, s55, {mask(h)}\ns_branch {rt}")
            A.label(lap2)
            cnt(4)
            for h in range(ng):
                sk = A.newlabel("l2s")
                A.e(f"s_bitcmp1_b32 s55, {groups[h][0]}\ns_cbranch_scc0 {sk}")
                for x in chk(groups[h][0], yd(h), groups[h][1]): A.e(x)
                A.e(f"s_cbranch_vccnz {sk}")
                A.e(f"s_andn2_b32 s55, s55, {mask(h)}")
                for x in work(h): A.e(x)
                A.label(sk)
            A.e(f"s_cmp_eq_u32 s55, 0\ns_cbranch_scc1 {back}")
            A.label(slow)
            deferred(range(8), ldO, lambda bb: [smo(0, bb), smo(1, bb)], back, 4, lambda bb: [KEEP + 4, PK][:O.NPL - 1], lambda bb: O.DPL)
        tail.append(d)
    ophase()
    for t in range(2):
        a = XC + t * 4
        A.e(f"v_add_f32 v{a}, v{a}, v{a+1}\nv_add_f32 v{a+2}, v{a+2}, v{a+3}")
    for t in range(2):
        for u in range(2): A.e(f"ds_write_addtid_b32 v{XC+t*4+2*u} offset:{T_P + u*PODD + t*1024}")
    A.e(f"s_mov_b32 s96, s60\ns_add_u32 s97, s60, 4096\ns_cmp_gt_u32 s50, 1\ns_waitcnt lgkmcnt(0)\ns_barrier")
    stamp("B3")
    A.e(f"s_cbranch_scc1 {loop}")
    for w in range(4): A.e(f"ds_read2st64_b32 {vr(ACC+2*w,2)}, v{V_PRD} offset0:{T_P//256 + w} offset1:{T_P//256 + 4 + w}")
    for i in range(8): A.e(f"v_mov_b32 v{XC+i}, v{XN+i}")
    A.e(f"""
    s_waitcnt lgkmcnt(2)
    v_pk_add_f32 {vr(ACC,2)}, {vr(ACC,2)}, {vr(ACC+2,2)}
    s_waitcnt lgkmcnt(0)
    v_pk_add_f32 {vr(ACC+4,2)}, {vr(ACC+4,2)}, {vr(ACC+6,2)}
    v_pk_add_f32 {vr(ACC,2)}, {vr(ACC,2)}, {vr(ACC+4,2)}
    v_cvt_pk_bf16_f32 v{TA}, v{ACC}, v{ACC+1}
    buffer_store_dword v{TA}, v{V_L4}, s[20:23], s89 offen {lst}""")
    if O.PN: A.e(f"s_nop {O.PN-1}")
    A.e(f"buffer_store_dword v{TA}, v{V_L4}, s[20:23], s88 offen sc1")
    stamp(12)
    A.e(f"s_branch {loop0}x")
    A.label(last)
    phaseA(list(range(4, 8)), [], 8, False)
    A.e("s_waitcnt vmcnt(0) lgkmcnt(0)")
    segoff(A, 101, 79, 0, 78)
    for x in vstream(8, 8): A.e(x)
    A.e("s_waitcnt lgkmcnt(0)\ns_barrier")
    l23 = A.newlabel("l23"); lj = A.newlabel("lj")
    A.e(f"s_cmp_gt_u32 s50, 1\ns_cbranch_scc1 {l23}")
    vm_read(); A.e("s_waitcnt lgkmcnt(0)"); vm_sum()
    A.e(f"s_branch {lj}")
    A.label(l23)
    s_frag(); s_frag2()
    A.label(lj)
    A.e(kvm_addr)
    A.e(kvm_store)
    A.e(f"s_waitcnt vmcnt(0)\ns_barrier\nv_mov_b32 v{VF}, {nsteps}")
    A.e(flg_store)
    A.e(f"s_branch {fin}")
    for f in tail: f()

def rec_standalone(A, name, par):
    A.begin_kernel(name)
    done = A.newlabel("done"); fin = A.newlabel("fin")
    A.e(f"""
    s_getreg_b32 s51, hwreg(HW_REG_XCC_ID)
    s_and_b32 s51, s51, 7
    s_cmp_ge_u32 s2, 256
    s_cbranch_scc1 {done}
    s_cmp_ge_u32 s51, 2
    s_cbranch_scc1 {done}
    s_load_dwordx8 s[4:11], s[0:1], {ARG['mem0']*8}
    s_load_dwordx2 s[12:13], s[0:1], {ARG['Wo']*8}
    s_load_dwordx2 s[18:19], s[0:1], {ARG['ws']*8}
    v_lshrrev_b32 v2, 6, v0
    s_lshr_b32 s57, s2, 3
    s_lshl_b32 s64, s51, 5
    s_add_u32 s57, s57, s64
    v_readfirstlane_b32 s50, v2
    s_mov_b32 s90, {O.BUDGET}
    s_load_dwordx2 s[16:17], s[0:1], {ARG['dbg']*8}
    s_mov_b32 s56, 0
    s_mov_b32 s51, 0
    s_waitcnt lgkmcnt(0)""")
    A.srd(20, 18, WS_BYTES)
    A.e("s_load_dword s67, s[16:17], 0\ns_waitcnt lgkmcnt(0)")
    rec_setup(A); rec_bases(A)
    A.e("s_barrier\ns_memrealtime s[52:53]\ns_memtime s[14:15]")
    for i in range(24, 44): A.e(f"s_mov_b32 s{i}, 0")
    A.e(f"s_lshl_b32 s16, s57, 2\ns_add_u32 s16, s16, s50\ns_lshl_b32 s16, s16, 12\ns_add_u32 s16, s16, {STAMP + MB}")
    rec_loop(A, "", fin)
    A.label(fin)
    A.e("s_memrealtime s[54:55]\ns_memtime s[16:17]\ns_waitcnt lgkmcnt(0)\nv_mov_b32 v20, 0\ns_sub_u32 s24, s16, s14")
    for i in range(13): A.e(f"v_writelane_b32 v20, s{24+2*i}, {i}")
    for i in range(8): A.e(f"v_writelane_b32 v20, s{26+i}, {17+i}")
    A.e("v_writelane_b32 v20, s14, 25\nv_writelane_b32 v20, s16, 26\ns_sub_u32 s62, s62, s61\nv_writelane_b32 v20, s62, 27")
    A.e(f"v_writelane_b32 v20, s52, 13\nv_writelane_b32 v20, s54, 14\nv_writelane_b32 v20, s{56 if O.PROF else 90}, 15\nv_writelane_b32 v20, s51, 16")
    A.e(f"s_lshl_b32 s64, s57, 2\ns_add_u32 s64, s64, s50\ns_lshl_b32 s64, s64, 7\ns_add_u32 s64, s64, {STAMP}\nv_lshrrev_b32 v21, 2, v{V_L16}\ns_mov_b32 exec_hi, 0\nbuffer_store_dword v20, v21, s[20:23], s64 offen")
    A.label(done)
    A.e("s_endpgm")
    A.end_kernel(512, 102, 256)
    A.launch(name, (256,), (256,), LDS_BYTES)

if __name__ == "__main__":
    out = sys.argv[1]
    A = Asm()
    variants = eval(sys.argv[2]) if len(sys.argv) > 2 else [dict()]
    base = {k: v for k, v in vars(Opt).items() if not k.startswith("_")}
    for i, v in enumerate(variants):
        for k, x in base.items(): setattr(O, k, x)
        par = v.pop("par", 0)
        for k, x in v.items(): setattr(O, k, x)
        if 'DL0' not in v: O.DL0 = max(0, O.DL - 9)
        if 'DO01' not in v: O.DO01 = max(0, O.DO - 7)
        MFMA_WS[0] = O.MWS
        rec_standalone(A, f"r{i}_p{par}_" + "_".join(f"{k}{int(x) if not isinstance(x, tuple) else ''.join('m' if y < 0 else str(y) for y in x)}" for k, x in v.items() if k != "XS") + "_kernel", par)
    A.lines = fix_hazards(A.lines)
    t = A.text()
    open(out, "w").write(t)
    check_hazards(t)
```

```python
import sys
sys.path.insert(0, "..")
from asmgen import *
from lay import *
import rec6
from rec6 import f2u, LOG2E, SCL
NAME = "adaLN_cond__memory_aug_recurrent_mem_tr__mixer_s_mlp__prompt"
GELU_C0 = -2.0 * 0.7978845608028654 * LOG2E
GELU_C1 = GELU_C0 * 0.044715
NEG = 0xff800000
class F:
    PROF = 0; PSL = 4; QD = 5; QM = 46; GD = 6; GM = 22; ABAR = 1; BUD = 40000; FORCE_SLOW = 0; FORCE_FB = 0; VSL = 8; NFL2 = 6; Q4 = 1; BPF = 0; BORD = [(2,3),(3,3),(3,1),(2,2),(3,2),(3,0),(1,3),(0,3),(2,1),(1,2),(0,2),(1,1),(0,1),(2,0),(1,0),(0,0)]; WOPF = 0; EXP = ''; KW = 1; GATE = 9; GPRE = 10; VSL2 = 48; NFL = 10; W4G = 1; NMEAS = 8; PF = 1; XMAP = 0x76325410; LATE = 0; OFF = ()
WSRD = "s[20:23]"
D_ = D
XO = (1, 2, 3, 0)

def ldptr(A, s, name): A.e(f"s_load_dwordx2 s[{s}:{s+1}], s[0:1], {ARG[name]*8}")

def row_lanes(A, sj, R):
    A.e(f"""
    v_and_b32 v2, 3, v1                ; row3
    v_lshrrev_b32 v3, 2, v1            ; c
    s_lshl_b32 s64, s{sj}, 2
    v_add_u32 v4, s64, v2
    s_lshl_b32 s65, s50, 9
    v_lshlrev_b32 v5, 4, v3
    v_add_u32 v5, s65, v5
    v_lshl_add_u32 v{R['RM']}, v4, 11, v5
    v_lshlrev_b32 v{R['CO']}, 1, v5
    v_lshrrev_b32 v5, 2, v3            ; f3
    v_and_b32 v3, 3, v3                ; g
    s_lshl_b32 s65, s50, 13
    v_lshlrev_b32 v5, 10, v5
    v_lshl_add_u32 v5, v3, 8, v5
    v_lshl_add_u32 v5, v4, 4, v5
    v_add_u32 v{R['FR']}, s65, v5
    s_lshl_b32 s65, s50, 9
    v_lshlrev_b32 v5, 3, v1
    v_add_u32 v{R['SW']}, s65, v5
    v_lshlrev_b32 v{R['SR']}, 3, v2""")
def load_consts(A, R, idx, dst, tmp, one=False):
    for g in range(4):
        A.e(f"s_mov_b32 s64, {MOD + g*6144*4 + idx*4096}")
        for a in range(2):
            for t in range(2): A.e(f"buffer_load_dwordx4 {vr((dst if g == 0 else tmp + 16*(g-1)) + a*8 + t*4, 4)}, v{R['CO']}, {WSRD}, s64 offen offset:{a*512 + t*16} sc1")
    A.e("s_waitcnt vmcnt(0)")
    sum4(A, dst, tmp, 16, one)
def ln_core(A, V, C1, SB, T, R, lds, PK):
    s1, s2, u1, u2, t = T, T + 1, T + 2, T + 3, T + 4
    A.e(f"v_add_f32 v{s1}, v{V}, v{V+1}\nv_mul_f32 v{s2}, v{V}, v{V}\nv_add_f32 v{u1}, v{V+2}, v{V+3}\nv_mul_f32 v{u2}, v{V+1}, v{V+1}")
    A.e(f"v_fmac_f32 v{s2}, v{V+2}, v{V+2}\nv_fmac_f32 v{u2}, v{V+3}, v{V+3}")
    for i in range(4, 16, 2):
        A.e(f"v_add_f32 v{s1}, v{s1}, v{V+i}\nv_fmac_f32 v{s2}, v{V+i}, v{V+i}\nv_add_f32 v{u1}, v{u1}, v{V+i+1}\nv_fmac_f32 v{u2}, v{V+i+1}, v{V+i+1}")
    A.e(f"v_add_f32 v{s1}, v{s1}, v{u1}\nv_add_f32 v{s2}, v{s2}, v{u2}")
    for ror in (4, 8):
        for s in (s1, s2): A.e(f"v_add_f32_dpp v{s}, v{s}, v{s} row_ror:{ror} row_mask:0xf bank_mask:0xf")
    for sw in ("v_permlane16_swap_b32", "v_permlane32_swap_b32"):
        A.e(f"v_mov_b32 v{u1}, v{s1}\nv_mov_b32 v{u2}, v{s2}\n{sw} v{u1}, v{s1}\n{sw} v{u2}, v{s2}\nv_add_f32 v{s1}, v{s1}, v{u1}\nv_add_f32 v{s2}, v{s2}, v{u2}")
    A.e(f"ds_write_b64 v{R['SW']}, {vr(s1,2)} offset:{lds}\ns_waitcnt lgkmcnt(0)\ns_barrier")
    for w in range(4): A.e(f"ds_read_b64 {vr(t+2*w,2)}, v{R['SR']} offset:{lds + w*512}")
    A.e("s_waitcnt lgkmcnt(0)")
    stats_fin(A, t, s1, s2)
    for i in range(16): A.e(f"v_fma_f32 v{V+i}, v{V+i}, v{s2}, v{s1}")
    for i in range(16): A.e(f"v_fma_f32 v{V+i}, v{V+i}, v{C1+i}, v{SB+i}")
    for i in range(8): A.e(f"v_cvt_pk_bf16_f32 v{PK+i}, v{V+2*i}, v{V+2*i+1}")
def stats_fin(A, t, nm, rs, mode=0):
    A.e(f"""
    v_add_f32 v{t}, v{t}, v{t+2}
    v_add_f32 v{t+1}, v{t+1}, v{t+3}
    v_add_f32 v{t+4}, v{t+4}, v{t+6}
    v_add_f32 v{t+5}, v{t+5}, v{t+7}
    v_add_f32 v{t}, v{t}, v{t+4}
    v_add_f32 v{t+1}, v{t+1}, v{t+5}
    v_mul_f32 v{nm}, {f2u(-1/1024):#x}, v{t}
    v_mul_f32 v{t+2}, v{nm}, v{nm}
    v_mul_f32 v{t+1}, {f2u(1/1024):#x}, v{t+1}
    v_sub_f32 v{t+1}, v{t+1}, v{t+2}
    v_max_f32 v{t+1}, 0, v{t+1}
    v_add_f32 v{t+1}, {f2u(1e-5):#x}, v{t+1}
    v_rsq_f32 v{rs}, v{t+1}""")
    if mode == 0: A.e(f"v_mul_f32 v{nm}, v{nm}, v{rs}")
def unpack(A, src, dst, n):
    for i in range(n): A.e(f"v_lshlrev_b32 v{dst+2*i}, 16, v{src+i}\nv_and_b32 v{dst+2*i+1}, s73, v{src+i}")

C_M, C_M2, C_M3, C_HA, C_HB, C_PAR, C_I, C_QW = range(8)
CB0, CB1 = 64, 192
TICK = 128
def dbg_srd(A, d): A.srd(d, 2, 256)
NCP = [0]
def cpoll(A, L, req, srd=92, place=True, va=16, lds=160 * 1024 - 4096, pre=0, sl=None):
    vp = A.newlabel("vpoll"); ck = A.newlabel("vck"); rt = A.newlabel("vrt"); ok = A.newlabel("vok"); ot = A.newlabel("vot"); fin = A.newlabel("vfin")
    a, d, r, t = va, va + 1, va + 2, va + 3
    NCP[0] += 1; lds += 256 * (NCP[0] % 8)
    dbg_srd(A, srd)
    A.e(f"""
    v_mbcnt_lo_u32_b32 v{a}, -1, 0
    v_mbcnt_hi_u32_b32 v{a}, -1, v{a}
    v_mov_b32 v{r}, 0""")
    for k, val in req.items(): A.e(f"v_cmp_eq_u32 vcc, {16 + k}, v{a}\nv_cndmask_b32 v{r}, v{r}, {val}, vcc")
    A.e(f"""
    v_and_b32 v{t}, 1, v{a}
    v_cmp_eq_u32 vcc, 1, v{t}
    v_mov_b32 v{t}, {32 << 8}
    v_cndmask_b32 v{t}, -1, v{t}, vcc
    v_min_u32 v{a}, 31, v{a}
    v_lshlrev_b32 v{a}, 2, v{a}
    s_sub_u32 s66, s88, 64""")
    def placement(known, bad):
        A.e(f"""
        s_cmp_lg_u32 s56, 2
        s_cbranch_scc1 {known}
        v_cmp_eq_u32 vcc, v{d}, v{t}
        s_and_b32 s64, vcc_lo, 0xffff
        s_cmp_eq_u32 s64, {0x10000 if (F.FORCE_SLOW or F.FORCE_FB) else 0xffff}
        s_cbranch_scc1 {known}
        s_mov_b32 s65, 0""")
        for x in range(8): A.e(f"v_readlane_b32 s64, v{d}, {2*x+1}\ns_lshr_b32 s64, s64, 8\ns_add_u32 s65, s65, s64")
        A.e(f"s_cmp_ge_u32 s65, 256\ns_cbranch_scc1 {bad}")
    if place: A.e(f"s_cmp_lg_u32 s50, 0\ns_cbranch_scc1 {ot}")
    if pre:
        lp = A.newlabel("pre"); A.e(f"s_mov_b32 s64, {pre}"); A.label(lp); A.e(f"s_sleep 32\ns_sub_u32 s64, s64, 1\ns_cmp_gt_i32 s64, 0\ns_cbranch_scc1 {lp}")
    A.label(vp)
    A.e(f"buffer_load_dword v{d}, v{a}, s[{srd}:{srd+3}], s66 offen sc1\ns_waitcnt vmcnt(0)")
    if place: placement(ck, ok); A.e(f"s_branch {rt}")
    A.label(ck)
    A.e(f"v_cmp_gt_u32 vcc, v{r}, v{d}\ns_cbranch_vccz {ok}")
    A.label(rt)
    A.e(f"s_sleep {sl or F.VSL}\ns_sub_u32 s90, s90, 1\ns_cmp_gt_i32 s90, 0\ns_cbranch_scc1 {vp}")
    A.label(ok)
    if place:
        A.e(f"ds_write_b32 v{a}, v{d} offset:{lds & 0xffff}" if lds < 65536 else f"v_add_u32 v{r}, {lds}, v{a}\nds_write_b32 v{r}, v{d}")
        A.e("s_waitcnt lgkmcnt(0)")
        A.label(ot)
        A.e(f"s_barrier\nv_add_u32 v{r}, {lds}, v{a}\nds_read_b32 v{d}, v{r}\ns_waitcnt lgkmcnt(0)")
        placement(fin, L["fb"])
        A.label(fin)
        A.e("s_and_b32 s56, s56, 1")
def verify(A, L, need_par, kind="role"):
    req = {C_I: 63}
    if kind == "qkv": req[C_HA] = 64
    if kind == "mod": req.update({C_M2: 63, C_M3: 1})
    if need_par: req[C_PAR] = 1
    cpoll(A, L, req, lds=0 if kind == "rec" else 160 * 1024 - 4096, sl=F.VSL2 if kind == "mod" else None)
    A.e("s_mov_b32 s67, 0")
    if need_par: A.e(f"v_readlane_b32 s65, v17, {16 + C_PAR}\ns_and_b32 s65, s65, 2\ns_lshl_b32 s67, s65, 12")
def signal(A, k, srd=92, vt=16, sel220=None):
    sk = A.newlabel("sig")
    A.e(f"s_waitcnt vmcnt(0)\ns_barrier\ns_cmp_lg_u32 s50, 0\ns_cbranch_scc1 {sk}")
    dbg_srd(A, srd)
    A.e(f"s_add_u32 s64, s88, {4*k}")
    if sel220 is not None: A.e(f"s_add_u32 s65, s88, {4*sel220}\ns_cmp_eq_u32 s58, {GPAR}\ns_cselect_b32 s64, s65, s64")
    A.e(f"v_mov_b32 v{vt}, 1\ns_mov_b64 exec, 1\nbuffer_atomic_add v{vt}, off, s[{srd}:{srd+3}], s64 sc1\ns_mov_b64 exec, -1")
    A.label(sk)
GPAR = 220
PR1 = 8
C_X = 8
def sum4(A, dst, tmp, n, one=False):
    for i in range(0, n, 2): A.e(f"v_pk_add_f32 {vr(dst+i,2)}, {vr(dst+i,2)}, {vr(tmp+i,2)}\nv_pk_add_f32 {vr(tmp+n+i,2)}, {vr(tmp+n+i,2)}, {vr(tmp+2*n+i,2)}")
    for i in range(0, n, 2): A.e(f"v_pk_add_f32 {vr(dst+i,2)}, {vr(dst+i,2)}, {vr(tmp+n+i,2)}")
    for i in range(0, n, 2): A.e(f"v_cvt_pk_bf16_f32 v{tmp+i//2}, v{dst+i}, v{dst+i+1}")
    unpack(A, tmp, dst, n // 2)
    if one:
        for i in range(n): A.e(f"v_add_f32 v{dst+i}, 1.0, v{dst+i}")

def measure_parity(A):
    nm = A.newlabel("nomeas"); pub = A.newlabel("pub"); lp = A.newlabel("mlp")
    A.e(f"""
    s_cmp_lg_u32 s58, {GPAR}
    s_cbranch_scc1 {nm}
    s_cmp_lg_u32 s50, 0
    s_cbranch_scc1 {nm}
    s_mov_b64 exec, 1
    s_mov_b32 s65, 1
    s_cmp_eq_u32 s56, 1
    s_cbranch_scc1 {pub}
    s_mov_b32 s66, {XMEAS}
    s_mov_b32 s67, {XMEAS+8192}
    s_mov_b32 s70, 0x7fffffff
    s_mov_b32 s71, 0x7fffffff
    s_mov_b32 s72, {F.NMEAS}""")
    A.label(lp)
    for (so, acc) in ((66, 70), (67, 71)):
        A.e(f"""
        s_memtime s[94:95]
        s_waitcnt lgkmcnt(0)
        buffer_store_dword v16, off, {WSRD}, s{so} sc1
        s_waitcnt vmcnt(0)
        s_memtime s[96:97]
        s_waitcnt lgkmcnt(0)
        s_sub_u32 s96, s96, s94
        s_min_u32 s{acc}, s{acc}, s96""")
    A.e(f"s_sub_u32 s72, s72, 1\ns_cmp_gt_u32 s72, 0\ns_cbranch_scc1 {lp}\ns_cmp_gt_u32 s71, s70\ns_cselect_b32 s65, 2, 1")
    A.label(pub)
    dbg_srd(A, 92)
    A.e(f"v_mov_b32 v16, s65\ns_add_u32 s64, s88, {4*C_PAR}\nbuffer_store_dword v16, off, s[92:95], s64 sc1")
    if F.PROF: A.e(f"v_mov_b32 v16, s70\nv_mov_b32 v17, s71\ns_mov_b32 s64, {STAMP2 - 64}\nbuffer_store_dwordx2 v[16:17], off, {WSRD}, s64")
    A.e("s_mov_b64 exec, -1")
    A.label(nm)
    A.e("s_barrier")

def duty(A, L, grp):
    nh = 1 + grp
    R = dict(RM=8, CO=9, FR=10, SW=11, SR=12)
    VW, VC, VI, VL = 13, 14, 15, 24; SV = 32; XR_ = 48; AC = 80; W = 96; V = 128; C1 = 96; SB = 112; T = 208; M1 = 28
    A.e(f"s_load_dwordx4 s[4:7], s[0:1], {ARG['c']*8}"); ldptr(A, 8, "x")
    if grp: measure_parity(A)
    A.e(f"""
    s_sub_u32 s59, s58, {128 + 64*grp}
    s_and_b32 s52, s59, 15
    s_lshr_b32 s53, s59, 4
    s_lshl_b32 s64, s50, 6
    v_add_u32 v{VC}, s64, v1            ; thread
    v_lshrrev_b32 v2, 4, v{VC}
    v_and_b32 v3, 15, v{VC}
    v_mul_u32_u24 v{VW}, {16*12288}, v2
    v_lshl_add_u32 v{VW}, v3, 4, v{VW}
    s_mul_i32 s54, s53, {256*12288}
    s_lshl_b32 s64, s52, {8 + grp}
    s_add_u32 s54, s54, s64
    s_add_u32 s54, s54, {4096*grp}
    v_lshlrev_b32 v{VI}, 1, v{VC}
    s_lshl_b32 s55, s53, 9
    s_mov_b32 s60, 0
    s_mov_b32 s73, 0xffff0000
    s_sub_u32 s61, s58, 128
    s_lshl_b32 s61, s61, 15
    v_lshlrev_b32 v25, 6, v2
    v_lshlrev_b32 v{VL}, 4, v1""")
    row_lanes(A, 60, R)
    A.e("s_waitcnt lgkmcnt(0)")
    A.srd(24, 4, 2048); A.srd(28, 6, 1024 * 12288); A.srd(32, 8, S * D_ * 2)
    for i in range(4): A.e(f"v_mov_b32 v{M1+i}, -1\nv_mov_b32 v{20+i}, 0")
    def stf(base, nb, reg=M1, sh=None):
        A.e(f"s_lshl_b32 s64, s62, 2\ns_add_u32 s64, s64, s50")
        if sh: A.e(f"s_lshr_b32 s65, s64, 6\ns_lshl_b32 s65, s65, 19\ns_and_b32 s64, s64, 63")
        A.e(f"s_mul_i32 s64, s64, {nb*1024}\ns_add_u32 s64, s64, {base}")
        if sh: A.e("s_add_u32 s64, s64, s65")
        for i in range(nb):
            if i and i % 4 == 0: A.e("s_add_u32 s64, s64, 4096")
            A.e(f"buffer_store_dwordx4 {vr(reg,4)}, v{VL}, {WSRD}, s64 offen offset:{(i&3)*1024} sc1")
    def fill1():
        stf(R_PR, PR1 // 4); stf(RING, 2, sh=1); stf(R_SX, 4, sh=1); stf(FLG, 1, 20)
    def fill2():
        stf(R_PR + PR1 * 64 * KB, 16 - PR1 // 4); stf(XP, 6)
        A.e(f"""
        s_and_b32 s64, s62, 31
        s_lshl_b32 s64, s64, 10
        s_add_u32 s64, s64, {G1 - 32768}
        s_bitcmp1_b32 s62, 5
        s_cselect_b32 s65, {(NU+1)*32768}, 0
        s_add_u32 s64, s64, s65
        buffer_store_dwordx4 v[20:23], v{VL}, {WSRD}, s64 offen sc1""")
    def fills(f):
        f1 = A.newlabel("fl1"); f2 = A.newlabel("fl2")
        A.e(f"s_cmp_eq_u32 s58, {GPAR}\ns_cbranch_scc1 {f2}\ns_mov_b32 s62, s59")
        A.label(f1); f()
        A.e(f"s_cmp_eq_u32 s62, {GPAR + 1 - 192}\ns_mov_b32 s62, {GPAR - 192}\ns_cbranch_scc1 {f1}")
        A.label(f2)
    if grp and F.BPF:
        np_ = A.newlabel("npf")
        A.e(f"s_load_dwordx8 s[36:43], s[0:1], {ARG['Wq']*8}\ns_cmp_eq_u32 s58, {GPAR}\ns_cbranch_scc1 {np_}\ns_lshl_b32 s64, s59, 2\ns_add_u32 s64, s64, s50\nv_lshlrev_b32 v16, 10, v1\nv_lshlrev_b32 v17, 7, v1\ns_waitcnt lgkmcnt(0)")
        for m in range(4): A.srd(92 if m == 3 else 68 + 4 * m, 36 + 2 * m, 8 * MB)
        sr_ = lambda m: "s[92:95]" if m == 3 else f"s[{68+4*m}:{71+4*m}]"
        A.e("s_and_b32 s65, s64, 127\ns_lshl_b32 s65, s65, 16\ns_add_u32 s65, s65, 384\ns_cmp_ge_u32 s64, 128")
        A.e("s_cselect_b64 s[44:45], s[72:73], s[68:69]\ns_cselect_b64 s[46:47], s[74:75], s[70:71]\nbuffer_load_dword v18, v16, s[44:47], s65 offen")
        A.e("s_cselect_b64 s[44:45], s[92:93], s[76:77]\nbuffer_load_dword v18, v16, s[44:47], s65 offen")
        A.e("s_lshl_b32 s65, s64, 13")
        for m, q in F.BORD[:F.BPF - 1]:
            A.e(f"s_add_u32 s66, s65, {q*2*MB}\nbuffer_load_dword v18, v17, {sr_(m)}, s66 offen")
        A.label(np_)
    if grp:
        fills(fill1)
        signal(A, C_I, sel220=C_X)
        if "b" in F.EXP: A.e("s_endpgm")
        if F.GATE: cpoll(A, L, {C_QW: F.GATE} if F.GATE > 1 else {}, pre=F.GPRE, sl=F.VSL2)
        if F.EXP: A.e("s_endpgm")
    A.e(f"buffer_load_ushort v16, v{VI}, s[24:27], s55 offen")
    for p in range(16):
        for h in range(nh): A.e(f"buffer_load_dwordx4 {vr(W + (h*16+p)*4, 4)}, v{VW}, s[28:31], s54 offen offset:{h*256}")
        if p < 15: A.e("s_add_u32 s54, s54, 12288")
    for q in range(4):
        A.e(f"s_add_u32 s64, s61, {q*8192}")
        for a in range(2): A.e(f"buffer_load_dwordx4 {vr(XR_ + q*8 + a*4, 4)}, v{R['RM']}, s[32:35], s64 offen offset:{a*256}")
    NI = 0
    nw = 16 * nh
    A.e(f"""
    s_waitcnt vmcnt({nw + 8 + NI})
    v_lshlrev_b32 v16, 16, v16
    v_mul_f32 v17, {f2u(-LOG2E):#x}, v16
    v_exp_f32 v17, v17
    v_add_f32 v17, 1.0, v17
    v_rcp_f32 v17, v17
    v_mul_f32 v17, v17, v16
    v_cvt_pk_bf16_f32 v17, v17, v17
    v_and_b32 v17, s73, v17
    v_lshlrev_b32 v18, 2, v{VC}
    ds_write_b32 v18, v17 offset:8192
    s_waitcnt lgkmcnt(0)
    s_barrier""")
    for i in range(4): A.e(f"ds_read_b128 {vr(SV+4*i,4)}, v25 offset:{8192 + 16*i}")
    for i in range(8 * nh): A.e(f"v_mov_b32 v{AC+i}, 0")
    A.e("s_waitcnt lgkmcnt(0)")
    for p in range(16):
        for h in range(nh):
            A.e(f"s_waitcnt vmcnt({nw - 1 - (p*nh + h) + 8 + NI})")
            w = W + (h * 16 + p) * 4
            for j in range(4):
                t = 16 + 2 * (j & 1)
                A.e(f"v_lshlrev_b32 v{t}, 16, v{w+j}\nv_and_b32 v{t+1}, s73, v{w+j}")
                sel = p & 1
                A.e(f"v_pk_fma_f32 {vr(AC+8*h+2*j,2)}, {vr(t,2)}, {vr(SV+p-sel,2)}, {vr(AC+8*h+2*j,2)} op_sel:[0,{sel},0] op_sel_hi:[1,{sel},1]")
    A.e(f"v_lshlrev_b32 v18, 5, v{VC}")
    for h in range(nh):
        for i in range(2): A.e(f"ds_write_b128 v18, {vr(AC+8*h+4*i,4)} offset:{16384 + h*8192 + 16*i}")
    A.e(f"""
    v_and_b32 v18, 127, v{VC}
    v_lshlrev_b32 v18, 2, v18
    v_lshrrev_b32 v19, 7, v{VC}
    v_lshl_add_u32 v19, v19, {13 if grp else 31}, v18     ; group 0: both thread halves compute the same sums
    s_waitcnt lgkmcnt(0)
    s_barrier""".replace(f"v_lshl_add_u32 v19, v19, 31, v18", "v_mov_b32 v19, v18"))
    for g in range(16):
        A.e(f"ds_read_b32 v{SV+g}, v19 offset:{16384 + g*512}")
        if g == 11: A.e("s_waitcnt lgkmcnt(4)")
    A.e("s_waitcnt lgkmcnt(0)")
    for st in (8, 4, 2):
        for i in range(0, st, 2): A.e(f"v_pk_add_f32 {vr(SV+i,2)}, {vr(SV+i,2)}, {vr(SV+st+i,2)}")
    A.e(f"""
    v_add_f32 v{SV}, v{SV}, v{SV+1}
    s_mul_i32 s64, s53, {6144*4}
    s_lshl_b32 s65, s52, {9 + grp}
    s_add_u32 s64, s64, s65
    s_add_u32 s64, s64, {MOD + 8192*grp}""")
    A.e(f"v_lshlrev_b32 v18, 2, v{VC}" if grp else "")
    A.e(f"buffer_store_dword v{SV}, v18, {WSRD}, s64 offen sc1")
    if grp: fills(fill2)
    signal(A, C_M2 if grp else C_M, sel220=C_M3 if grp else None)
    if F.PROF: A.e("s_memrealtime s[98:99]")
    for q in range(4): unpack(A, XR_ + 8 * q, V + 16 * q, 8)
    for q in range(4):
        v = V + 16 * q; s1, s2, u1, u2 = T + 4 * q, T + 4 * q + 1, T + 4 * q + 2, T + 4 * q + 3
        A.e(f"v_add_f32 v{s1}, v{v}, v{v+1}\nv_mul_f32 v{s2}, v{v}, v{v}\nv_add_f32 v{u1}, v{v+2}, v{v+3}\nv_mul_f32 v{u2}, v{v+1}, v{v+1}")
        A.e(f"v_fmac_f32 v{s2}, v{v+2}, v{v+2}\nv_fmac_f32 v{u2}, v{v+3}, v{v+3}")
        for i in range(4, 16, 2):
            A.e(f"v_add_f32 v{s1}, v{s1}, v{v+i}\nv_fmac_f32 v{s2}, v{v+i}, v{v+i}\nv_add_f32 v{u1}, v{u1}, v{v+i+1}\nv_fmac_f32 v{u2}, v{v+i+1}, v{v+i+1}")
        A.e(f"v_add_f32 v{s1}, v{s1}, v{u1}\nv_add_f32 v{s2}, v{s2}, v{u2}")
    for ror in (4, 8):
        for q in range(4):
            for s_ in (T + 4 * q, T + 4 * q + 1): A.e(f"v_add_f32_dpp v{s_}, v{s_}, v{s_} row_ror:{ror} row_mask:0xf bank_mask:0xf")
    for sw in ("v_permlane16_swap_b32", "v_permlane32_swap_b32"):
        for q in range(4):
            s1, s2, u1, u2 = T + 4 * q, T + 4 * q + 1, T + 4 * q + 2, T + 4 * q + 3
            A.e(f"v_mov_b32 v{u1}, v{s1}\nv_mov_b32 v{u2}, v{s2}\n{sw} v{u1}, v{s1}\n{sw} v{u2}, v{s2}\nv_add_f32 v{s1}, v{s1}, v{u1}\nv_add_f32 v{s2}, v{s2}, v{u2}")
    for q in range(4): A.e(f"ds_write_b64 v{R['SW']}, {vr(T+4*q,2)} offset:{32768 + q*2048}")
    A.e("s_waitcnt lgkmcnt(0)\ns_barrier")
    for q in range(4):
        for w in range(4): A.e(f"ds_read_b64 {vr(SV+2*w,2)}, v{R['SR']} offset:{32768 + q*2048 + w*512}")
        A.e("s_waitcnt lgkmcnt(0)")
        stats_fin(A, SV, T, T + 1)
        for i in range(16): A.e(f"v_fma_f32 v{V+16*q+i}, v{V+16*q+i}, v{T+1}, v{T}")
    cpoll(A, L, {C_M: 64})
    if F.PROF: A.e("s_memrealtime s[100:101]")
    A.e(f"v_lshlrev_b32 v18, 5, v{VC}")
    for g in range(4):
        A.e(f"s_mov_b32 s64, {MOD + g*6144*4}")
        for i in range(2): A.e(f"buffer_load_dwordx4 {vr(SV + g*8 + 4*i, 4)}, v18, {WSRD}, s64 offen offset:{16*i} sc1")
    A.e("s_cmp_gt_u32 s50, 1\ns_cselect_b32 s64, 1.0, 0\ns_waitcnt vmcnt(0)")
    sum4(A, SV, SV + 8, 8)
    for i in range(8): A.e(f"v_add_f32 v{SV+i}, s64, v{SV+i}")
    for i in range(2): A.e(f"ds_write_b128 v18, {vr(SV+4*i,4)} offset:{16*i}")
    A.e("s_waitcnt lgkmcnt(0)\ns_barrier")
    for k, dst in ((0, SB), (1, C1)):
        for a in range(2):
            for t in range(2): A.e(f"ds_read_b128 {vr(dst + a*8 + t*4, 4)}, v{R['CO']} offset:{k*4096 + a*512 + t*16}")
    A.e(f"s_add_u32 s61, s61, {HB}\ns_add_u32 s62, s61, 4096\ns_waitcnt lgkmcnt(0)")
    for q in range(4):
        v = V + 16 * q
        for i in range(16): A.e(f"v_fma_f32 v{v+i}, v{v+i}, v{C1+i}, v{SB+i}")
        for i in range(8): A.e(f"v_cvt_pk_bf16_f32 v{XR_+8*q+i}, v{v+2*i}, v{v+2*i+1}")
        for a in range(2): A.e(f"buffer_store_dwordx4 {vr(XR_+8*q+4*a,4)}, v{R['FR']}, {WSRD}, s{61+a} offen offset:{64*q} sc1")
    signal(A, C_HB if grp else C_HA)
    if F.PROF:
        A.e(f"""
        s_memrealtime s[96:97]
        s_waitcnt lgkmcnt(0)
        v_mov_b32 v16, s98
        v_mov_b32 v17, s100
        v_mov_b32 v18, s96
        v_mov_b32 v19, s86
        s_lshl_b32 s64, s58, 4
        s_add_u32 s64, s64, {STAMP2 - 8192}
        buffer_store_dwordx4 v[16:19], off, {WSRD}, s64""")

def stamp(A, v, par=None):
    if not F.PROF: return
    A.e(f"s_memrealtime s[84:85]\ns_lshr_b32 m0, s60, 1\ns_waitcnt lgkmcnt(0)\nv_writelane_b32 v{v}, s84, m0")
def tst(A, i):
    if F.PROF >= 2: A.e(f"s_memtime s[{32+2*i}:{33+2*i}]")
def tacc(A, n):
    if F.PROF < 2: return
    A.e("s_waitcnt lgkmcnt(0)")
    for i in range(n - 1): A.e(f"s_sub_u32 s64, s{34+2*i}, s{32+2*i}\ns_add_u32 s{92+i}, s{92+i}, s64")
    A.e(f"s_sub_u32 s64, s32, s48\ns_cmp_eq_u32 s48, 0\ns_cselect_b32 s64, 0, s64\ns_add_u32 s{92+n-1}, s{92+n-1}, s64\ns_mov_b32 s48, s{32+2*(n-1)}")
def tinit(A):
    if F.PROF < 2: return
    for i in range(92, 100): A.e(f"s_mov_b32 s{i}, 0")
    A.e("s_mov_b32 s48, 0\ns_memtime s[46:47]\ns_memrealtime s[100:101]")
def tout(A, v):
    if F.PROF < 2: return
    for i in range(8): A.e(f"v_writelane_b32 v{v}, s{92+i}, {2+i}")
    A.e(f"s_memtime s[32:33]\ns_memrealtime s[34:35]\ns_waitcnt lgkmcnt(0)\ns_sub_u32 s32, s32, s46\ns_sub_u32 s34, s34, s100\nv_writelane_b32 v{v}, s32, 10\nv_writelane_b32 v{v}, s34, 11")
def stamp_out(A, regs):
    if not F.PROF: return
    A.e(f"s_lshl_b32 s64, s58, 2\ns_add_u32 s64, s64, s50\ns_mul_i32 s64, s64, 768\ns_add_u32 s64, s64, {STAMP2}\nv_mbcnt_lo_u32_b32 v16, -1, 0\nv_mbcnt_hi_u32_b32 v16, -1, v16\nv_lshlrev_b32 v16, 2, v16")
    for i, r in enumerate(regs[:3]): A.e(f"buffer_store_dword v{r}, v16, {WSRD}, s64 offen offset:{i*256}")
def flag_store(A, vt, sval, saddr):
    A.e(f"v_mov_b32 v{vt}, {sval}\ns_mov_b64 exec, 1\nbuffer_store_dword v{vt}, off, {WSRD}, s{saddr} sc1\ns_mov_b64 exec, -1")
def poll_loop(A, ld, vF, sneed):
    lp = A.newlabel("plp"); ok = A.newlabel("pok")
    A.label(lp)
    A.e(f"""
    {ld}
    s_waitcnt vmcnt(0)
    v_cmp_gt_u32 vcc, s{sneed}, v{vF}
    s_cbranch_vccz {ok}
    s_sleep {F.PSL}
    s_sub_u32 s90, s90, 1
    s_cmp_gt_i32 s90, 0
    s_cbranch_scc1 {lp}""")
    A.label(ok)

def weave(A, M, fill, first=0, per=1):
    fill = list(fill)
    for i, m in enumerate(M):
        A.e(m)
        if i >= first:
            for _ in range(per):
                if fill: A.e(fill.pop(0))
    for x in fill: A.e(x)

class Sched:
    def __init__(self, A): self.A = A; self.q = []; self.done = -1
    def lds(self, ins, tag=None): self.A.e(ins); self.q.append(tag)
    def need(self, tag):
        i = len(self.q) - 1 - self.q[::-1].index(tag)
        if i > self.done:
            n = len(self.q) - 1 - i
            assert n <= 15
            self.A.e(f"s_waitcnt lgkmcnt({n})"); self.done = i
    def copy(self):
        c = Sched(self.A); c.q = list(self.q); c.done = self.done; return c

def stage_weights(A, stages, ld, pf=None, nfl=0):
    A.e(f"""
    v_lshrrev_b32 v26, 2, v1
    v_and_b32 v27, 3, v1
    v_mul_u32_u24 v16, {ld}, v26
    v_lshl_add_u32 v16, v27, 4, v16
    v_lshlrev_b32 v17, 6, v25
    v_lshl_add_u32 v17, v24, 4, v17
    v_add_u32 v17, s61, v17""")
    def issue(st):
        srd, pre, rows, _ = stages[st]
        npf = pf(st, -1) if pf else 0
        A.e(pre)
        A.e(f"s_add_u32 m0, s61, {(st&1)*16384}")
        for J in range(rows // 16):
            A.e(f"buffer_load_dwordx4 v16, s[{srd}:{srd+3}], s62 offen lds")
            if J + 1 < rows // 16: A.e(f"s_add_u32 s62, s62, {16*ld}\ns_add_u32 m0, m0, 1024")
            if pf: npf += pf(st, J)
            if nfl: A.e(f"s_waitcnt vmcnt({nfl})")
        return rows // 16 + npf
    if F.PROF: rec6.sstamp(A, 30, 1)
    n = [issue(0), issue(1)]
    for st in range(len(stages)):
        A.e(f"s_waitcnt vmcnt({n[st+1] if st + 1 < len(stages) else 0})")
        if F.PROF: rec6.sstamp(A, 30, 2 * st)
        stages[st][3]((st & 1) * 16384)
        A.e("s_waitcnt lgkmcnt(0)")
        if F.PROF and st: rec6.sstamp(A, 30, 2 * st + 1)
        if st + 2 < len(stages): n.append(issue(st + 2))
    if F.PROF: rec6.sstamp_out(A, 30, 58)
def lanes(A):
    A.e("""
    v_and_b32 v21, 15, v1              ; lam
    v_lshrrev_b32 v22, 4, v1           ; g
    v_lshrrev_b32 v23, 2, v21          ; r
    v_and_b32 v24, 3, v21              ; c
    s_lshl_b32 s61, s50, 15
    v_lshl_add_u32 v25, v22, 3, v23    ; 8g + r""")
def late(A):
    if F.LATE:
        lp = A.newlabel("late"); A.e(f"s_mov_b32 s64, {F.LATE}"); A.label(lp); A.e(f"s_sleep 16\ns_sub_u32 s64, s64, 1\ns_cmp_gt_i32 s64, 0\ns_cbranch_scc1 {lp}")
MF = "v_mfma_f32_16x16x32_bf16"

def qkv_role(A, L):
    L16, VR0, VR1, VT = 0, 4, 5, 6; ACC = (32, 44); VH = 56; PK = 60; XW = 64; NW = 16; ST = (8, 10, 11); D = F.QD
    def wr_(ks, t, n=4, o=0):
        i = (ks * 3 + t) * 4 + o
        return ar(i, n) if i < 256 else vr(128 + i - 256, n)
    done = A.newlabel("done")
    lanes(A)
    A.e(f"s_load_dwordx4 s[4:7], s[0:1], {ARG['Wq']*8}"); ldptr(A, 8, "Wv")
    A.e(f"""
    s_lshl_b32 s52, s59, 7
    s_and_b32 s64, s50, 1
    s_lshl_b32 s65, s64, 6
    s_add_u32 s53, s52, s65
    s_lshr_b32 s65, s50, 1
    s_lshl_b32 s65, s65, 6
    s_add_u32 s52, s52, s65
    s_lshl_b32 s54, s64, 3
    s_waitcnt lgkmcnt(0)
    s_cmp_gt_u32 s50, 1
    s_cselect_b64 s[10:11], s[4:5], s[6:7]""")
    A.srd(28, 10, 8 * MB); A.srd(32, 8, 8 * MB)
    def rdp(q):
        def f(buf):
            for kk in range(8):
                for t in range(2):
                    for h in range(2): A.e(f"ds_read_b64_tr_b16 {wr_(8*q+kk,t,2,2*h)}, v17 offset:{buf + (32*kk + 4*h)*64 + 8*t}")
                if kk % 3 == 2: A.e("s_waitcnt lgkmcnt(0)")
        return f
    def rdv(q):
        def f(buf):
            if q == 0: A.e("v_add_u32 v18, s54, v17")
            for kk in range(8):
                for h in range(2): A.e(f"ds_read_b64_tr_b16 {wr_(8*q+kk,2,2,2*h)}, v18 offset:{buf + (32*kk + 4*h)*64}")
                if kk == 5: A.e("s_waitcnt lgkmcnt(0)")
        return f
    stg = []
    for q in range(4):
        stg.append((28, f"s_add_u32 s62, s53, {q*256*8192}", 256, rdp(q)))
        stg.append((32, f"s_add_u32 s62, s52, {q*256*8192}", 256, rdv(q)))
    A.e(f"""
    s_and_b32 s64, s59, 7
    s_cmp_eq_u32 s64, 3
    s_cselect_b32 s65, 0, 0x0f
    s_sub_u32 s66, s59, 56
    s_cmp_lt_u32 s66, 7
    s_cselect_b32 s66, 0xf0, 0
    s_or_b32 vcc_lo, s65, s66
    s_mov_b32 vcc_hi, 0
    v_and_b32 v28, 3, v1
    v_lshlrev_b32 v28, 13, v28
    v_and_b32 v29, 4, v1
    v_lshl_add_u32 v28, v29, 7, v28
    v_cndmask_b32 v28, -1, v28, vcc
    s_andn2_b32 s65, s59, 7
    s_lshl_b32 s65, s65, 7
    s_add_u32 s65, s65, 384
    s_lshl_b32 s55, s64, 16
    s_add_u32 s55, s55, s65
    s_and_b32 s66, s50, 1
    s_lshl_b32 s66, s66, 15
    s_add_u32 s55, s55, s66
    s_lshl_b32 s66, s64, 17
    s_add_u32 s66, s66, s65
    s_lshl_b32 s65, s50, 15
    s_add_u32 s66, s66, s65            ; V: rows 16c + 4w""")
    def pf(st, J):
        if not F.PF: return 0
        t = st + 1; i = J // 4
        if J == -1:
            if st: return 0
            for i in (2, 3): A.e(f"s_add_u32 s64, s55, {i*64*8192}\nbuffer_load_dword v29, v28, s[28:31], s64 offen")
            return 2
        if J % 4 != 1 or t > 7 or (t & 1 and i & 1): return 0
        if t & 1: A.e(f"s_add_u32 s64, s66, {((t>>1)*256 + (i>>1)*128)*8192}\nbuffer_load_dword v29, v28, s[32:35], s64 offen")
        else: A.e(f"s_add_u32 s64, s55, {((t>>1)*256 + i*64)*8192}\nbuffer_load_dword v29, v28, s[28:31], s64 offen")
        return 1
    stage_weights(A, stg, 8192, pf, F.NFL)
    if F.GATE == 9:
        sq = A.newlabel("sq"); sq2 = A.newlabel("sq2")
        A.e(f"s_and_b32 s64, s59, 7\ns_cmp_eq_u32 s64, 3\ns_cbranch_scc1 {sq}\ns_cmp_lg_u32 s59, 63\ns_cbranch_scc1 {sq2}"); A.label(sq); signal(A, C_QW); A.label(sq2)
    elif F.GATE > 1: signal(A, C_QW)
    if F.EXP: A.e("s_endpgm")
    verify(A, L, True, "qkv")
    A.e(f"""
    s_barrier
    v_lshlrev_b32 v{L16}, 4, v1
    s_mov_b32 s60, 0
    s_lshl_b32 s63, s50, 13
    s_add_u32 s61, s63, {HB}
    s_mov_b32 s70, 0
    s_lshl_b32 s52, s59, 14
    s_and_b32 s64, s50, 1
    s_lshl_b32 s64, s64, 11
    s_add_u32 s53, s52, s64
    s_lshl_b32 s64, s50, 10
    s_add_u32 s52, s52, s64
    s_add_u32 s52, s52, 4096           ; V base
    s_cmp_gt_u32 s50, 1
    s_cselect_b32 s54, 0x2000, 0
    s_lshl_b32 s69, s59, 6
    s_add_u32 s69, s69, s67
    s_add_u32 s69, s69, {F_QKV}
    v_mov_b32 v{VR0}, v{L16}
    v_add_u32 v{VR1}, 32768, v{L16}""")
    def loads():
        o = ["s_add_u32 m0, s70, s63", "s_add_u32 s62, s61, 4096"]
        for i in range(8):
            o.append(f"buffer_load_dwordx4 v{L16}, {WSRD}, s{61+(i>>2)} offen offset:{(i&3)*1024} lds")
            if i == 3: o.append("s_add_u32 m0, m0, 4096")
        return o + ["s_add_u32 s61, s61, 32768", "s_add_u32 s70, s70, 32768", "s_and_b32 s70, s70, 0x1ffff"]
    def epi(par):
        a = ACC[par]
        o = ["s_sub_u32 s66, s60, 1", "s_lshr_b32 s64, s66, 1", "s_lshl_b32 s65, s64, 12", "s_and_b32 s65, s65, 0x2000", "s_xor_b32 s65, s65, s67", "s_lshl_b32 s64, s64, 20",
             "s_add_u32 s64, s64, s65", "s_add_u32 s65, s64, s52", "s_xor_b32 s64, s64, s54", "s_add_u32 s66, s64, s53"]
        if par: o += ["s_cmp_eq_u32 s60, 0", f"s_cselect_b32 s65, {SCRATCH}, s65", f"s_cselect_b32 s66, {SCRATCH}, s66"]
        o += [f"v_cvt_pk_bf16_f32 v{PK+i}, v{a+2*i}, v{a+2*i+1}" for i in range(4)]
        o += [f"v_cvt_pk_bf16_f32 v{VH+2*par+i}, v{a+8+2*i}, v{a+9+2*i}" for i in range(2)]
        o += [f"buffer_store_dwordx4 {vr(PK,4)}, v{L16}, {WSRD}, s66 offen offset:{par*1024} sc1"]
        if par: o += [f"buffer_store_dwordx4 {vr(VH,4)}, v{L16}, {WSRD}, s65 offen sc1"]
        return o
    rd = lambda ks, nxt: f"ds_read_b128 {vr(XW+4*(ks%NW),4)}, v{VR1 if nxt else VR0} offset:{ks*1024}"
    if F.PROF:
        for r in ST: A.e(f"v_mov_b32 v{r}, 0")
        A.e(f"s_memrealtime s[84:85]\ns_waitcnt lgkmcnt(0)\nv_writelane_b32 v{ST[2]}, s84, 0\nv_writelane_b32 v{ST[2]}, s86, 1")
    tinit(A)
    for x in loads() + loads(): A.e(x)
    A.e("s_waitcnt vmcnt(8)\ns_barrier")
    for ks in range(D): A.e(rd(ks, 0))
    top = A.newlabel("top"); tail = []
    A.label(top)
    for par in range(2):
        tst(A, 0)
        fill = {}
        for k, x in enumerate(epi(par ^ 1)): fill.setdefault(3 + k // 2 if k < 13 else k - 3, []).append(x)
        for k, x in enumerate(loads()): fill.setdefault(F.QM + 2 + 2 * k, []).append(x)
        for n in range(96):
            ks, t = divmod(n, 3)
            a = vr(ACC[par] + 4 * t, 4); x = vr(XW + 4 * (ks % NW), 4)
            if t == 0: A.e(f"s_waitcnt lgkmcnt({D-1})")
            A.e(f"{MF} {a}, {x}, {wr_(ks,t)}, {a if ks else 0}" if t == 2 else f"{MF} {a}, {wr_(ks,t)}, {x}, {a if ks else 0}")
            if t == 0: A.e(rd((ks + D) % 32, ks + D >= 32))
            for y in fill.get(n, []): A.e(y)
            if n == F.QM:
                nf = A.newlabel("nf")
                tst(A, 1)
                A.e(f"s_waitcnt vmcnt({2-par})")
                if par == 0:
                    sk = A.newlabel("sk")
                    hb = A.newlabel("hb"); hb2 = A.newlabel("hb2")
                    hc = A.newlabel("hc")
                    A.e(f"s_cmp_eq_u32 s60, 60\ns_cbranch_scc1 {hb}\ns_cmp_eq_u32 s60, {2*PR1}\ns_cbranch_scc1 {hc}"); A.label(hb2)
                    def dh(hb=hb, hb2=hb2, hc=hc):
                        A.label(hb); cpoll(A, L, {C_HB: 64}, 28, False, 12); A.e(f"s_branch {hb2}")
                        A.label(hc); cpoll(A, L, {C_M2: 63}, 28, False, 12); A.e(f"s_branch {hb2}")
                    tail.append(dh)
                    A.e(f"s_sub_u32 s64, s60, 2\ns_cmp_gt_u32 s64, {2*F.Q4}\ns_cbranch_scc1 {sk}\ns_waitcnt vmcnt(0)"); A.label(sk)
                    A.e(f"s_cselect_b32 s64, 1, s50")
                else: A.e("s_mov_b32 s64, s50")
                tst(A, 2)
                A.e(f"s_barrier\ns_cmp_ge_u32 s60, {NU-2}\ns_cselect_b32 s61, {HB}, s61\ns_cmp_lg_u32 s64, 0\ns_cbranch_scc1 {nf}\ns_lshr_b32 s64, s60, 1")
                flag_store(A, VT, "s64", 69); A.label(nf)
                tst(A, 3)
        A.e(f"v_mov_b32 v{VR0}, v{VR1}\nv_add_u32 v{VR1}, 32768, v{VR1}\nv_and_b32 v{VR1}, 0x1ffff, v{VR1}")
        if F.PROF: tst(A, 4); tacc(A, 5); stamp(A, ST[par])
        A.e("s_add_u32 s60, s60, 1")
    A.e(f"s_cmp_lt_u32 s60, {NU}\ns_cbranch_scc1 {top}")
    for x in epi(1): A.e(x)
    A.e(f"s_waitcnt vmcnt(0) lgkmcnt(0)\ns_barrier\ns_cmp_lg_u32 s50, 0\ns_cbranch_scc1 {done}")
    flag_store(A, VT, NSEG, 69)
    A.label(done)
    tout(A, ST[2]); stamp_out(A, ST)
    A.e("s_endpgm")
    for d in tail: d()

def gemm_role(A, L, kind):
    KS = 7 if kind == "w4" else 8
    stats = kind in ("w1", "w3"); xch = kind in ("wo", "w4"); res = kind == "w2"
    L16, VFA, VA, VRD, VRB, ONE, VF, VT, VO, VSW, VSR = 0, 2, 3, 4, 8, 12, 16, 17, 18, 19, 20
    ACC, FIN, S1, S2, SP, XW, NW, PKT, CS, RES, TM, M1 = 32, 40, 48, 52, 56, 64, 16, 128, 152, 160, 168, 204; ST = (200, 201, 202)
    LST = 128 * 1024; D = F.GD; NF = 4 * KS
    wreg = lambda n, t, k=4, o=0: ar((n * 2 + t) * 4 + o, k)
    done = A.newlabel("done")
    lanes(A)
    arg, ld, nbytes = dict(wo=("Wo", 2048, 8 * MB), w1=("w1", 2048, 2 * MB), w2=("w2", 2048, 2 * MB), w3=("w3", 7168, 7 * MB), w4=("w4", 2048, 7 * MB))[kind]
    ldptr(A, 4, arg)
    if xch: ldptr(A, 6, "x" if kind == "wo" else "out"); A.e("s_lshr_b32 s52, s59, 3\ns_and_b32 s53, s59, 7")
    else: A.e("s_mov_b32 s52, 0\ns_mov_b32 s53, s59")
    A.e(f"s_mul_i32 s54, s52, {NF*32*ld}\ns_lshl_b32 s64, s53, 8\ns_add_u32 s54, s54, s64\ns_lshl_b32 s64, s50, 6\ns_add_u32 s54, s54, s64\ns_waitcnt lgkmcnt(0)")
    A.srd(28, 4, nbytes)
    if xch: A.srd(24, 6, S * D_ * 2)
    def rdw(x):
        def f(buf):
            for kk in range(KS):
                for t in range(2):
                    for h in range(2): A.e(f"ds_read_b64_tr_b16 {wreg(x*KS+kk,t,2,2*h)}, v17 offset:{buf + (32*kk + 4*h)*64 + 8*t}")
                if kk % 3 == 2: A.e("s_waitcnt lgkmcnt(0)")
        return f
    if kind == "w4" and F.W4G: cpoll(A, L, {C_M2: 63}, sl=F.VSL2)
    stage_weights(A, [(28, f"s_xor_b32 s62, s50, {x}\ns_mul_i32 s62, s62, {KS*32*ld}\ns_add_u32 s62, s62, s54", KS * 32, rdw(x)) for x in range(4)], ld, None, F.NFL2)
    verify(A, L, False, "mod")
    inb, ust = dict(wo=(OB, 131072), w1=(H2, 32768), w2=(G1, 32768), w3=(Y1, 32768), w4=(G3, 112 * 1024))[kind]
    A.e(f"""
    s_barrier
    v_lshlrev_b32 v{L16}, 4, v1
    s_mov_b32 s60, 0
    s_mov_b32 s70, 0
    s_mov_b32 s55, 0
    s_lshl_b32 s63, s50, 13
    v_mov_b32 v{VA}, v{L16}
    s_mov_b32 s73, 0xffff0000
    s_lshl_b32 s64, s52, 2
    s_add_u32 s64, s64, s50
    s_mul_i32 s61, s64, {KS*1024}
    s_add_u32 s61, s61, {inb}
    s_lshl_b32 s82, s64, 8
    s_add_u32 s82, s82, {dict(wo=F_ATT, w1=F_LN, w2=F_W1, w3=F_W2, w4=F_W3)[kind]}
    s_mov_b32 s68, s82
    s_lshl_b32 s83, s53, 2
    s_add_u32 s83, s83, s50""")
    for x in range(4): A.e(f"s_xor_b32 s64, s50, {x}\ns_lshl_b32 s64, s64, 13\nv_add_u32 v{VRB+x}, s64, v{L16}")
    nfl = dict(wo=2, w1=4, w2=8, w3=8, w4=7)[kind]
    A.e(f"v_min_u32 v{VFA}, {nfl-1}, v1\nv_lshlrev_b32 v{VFA}, 2, v{VFA}")
    if res:
        A.e(f"""
        s_lshr_b32 s64, s50, 1
        s_add_u32 s64, s64, 1
        s_sub_u32 s65, 0, s64
        s_bitcmp1_b32 s50, 0
        s_cselect_b32 s64, s64, s65
        s_add_u32 s64, s64, 16
        v_add_u32 v26, s64, v21
        v_lshrrev_b32 v27, 4, v26
        v_and_b32 v26, 15, v26
        v_lshl_add_u32 v26, v22, 4, v26
        v_lshlrev_b32 v26, 4, v26
        v_lshl_add_u32 v{VA}, v27, 15, v26
        s_sub_u32 s61, s61, 32768""")
    A.e("s_lshl_b32 s66, s83, 10")
    if kind == "w3":
        A.e(f"s_mul_i32 s65, s83, 147\ns_lshr_b32 s65, s65, 10\ns_mul_i32 s69, s65, {256 - 28}\ns_lshl_b32 s64, s83, 2\ns_add_u32 s69, s69, s64\ns_add_u32 s69, s69, {F_W3}")
    else:
        A.e(f"s_lshr_b32 s65, s83, 3\ns_lshl_b32 s65, s65, 8\ns_and_b32 s64, s83, 7\ns_lshl_b32 s64, s64, 2\ns_add_u32 s69, s64, s65\ns_add_u32 s69, s69, {dict(wo=F_WO, w1=F_W1, w2=F_W2, w4=F_W4)[kind]}")
    outb, ost = dict(wo=(X1, 32768), w1=(G1, 32768), w2=(Y1, 32768), w3=(G3, 112 * 1024), w4=(0, 32768))[kind]
    if xch:
        A.e(f"""
        s_lshl_b32 s64, s53, 2
        s_add_u32 s64, s64, s50
        s_mul_i32 s74, s64, {4*6144}
        s_xor_b32 s64, s50, s52
        s_sub_u32 s64, s64, 1
        s_max_i32 s64, s64, 0
        s_lshl_b32 s64, s64, 11
        s_add_u32 s74, s74, s64
        s_add_u32 s74, s74, {XP + (0 if kind == 'wo' else 768*KB)}
        s_mov_b32 s75, 0
        s_mov_b32 s76, 0
        s_mov_b32 s77, 0                   ; pending
        v_lshlrev_b32 v26, 11, v21
        v_lshl_add_u32 v26, v22, 4, v26
        s_lshl_b32 s64, s83, 6
        v_add_u32 v{VO}, s64, v26
        v_lshlrev_b32 v26, 5, v22
        s_lshl_b32 s64, s83, 7
        s_add_u32 s64, s64, {MOD + (2 if kind == 'wo' else 5)*4096}""")
        for g in range(4):
            for i in range(2): A.e(f"buffer_load_dwordx4 {vr((CS if g == 0 else PKT + 8*(g-1)) + 4*i, 4)}, v26, {WSRD}, s64 offen offset:{16*i} sc1")
            A.e(f"s_add_u32 s64, s64, {6144*4}")
        A.e("s_waitcnt vmcnt(0)")
        sum4(A, CS, PKT, 8)
        for i in range(4): A.e(f"v_mov_b32 v{M1+i}, -1")
    if stats:
        A.e(f"""
        s_lshl_b32 s64, s50, 9
        s_add_u32 s64, s64, {LST}
        v_lshlrev_b32 v26, 3, v1
        v_add_u32 v{VSW}, s64, v26
        v_lshl_add_u32 v26, v23, 4, v21
        v_lshlrev_b32 v26, 3, v26
        v_add_u32 v{VSR}, {LST}, v26
        s_mov_b32 s74, 0x22222222
        s_mov_b32 s75, 0x22222222
        s_mov_b32 s76, 0x44444444
        s_mov_b32 s77, 0x44444444
        s_mov_b32 s78, 0x88888888
        s_mov_b32 s79, 0x88888888
        s_mov_b32 s80, {f2u(GELU_C0):#x}
        s_mov_b32 s81, {f2u(GELU_C1):#x}
        v_mov_b32 v{TM+23}, s80""")
        for i in range(4): A.e(f"v_mov_b32 v{ONE+i}, 0x3f803f80")
        for n in range(NF):
            for t in range(2): A.e(f"{MF} {vr(CS+4*t,4)}, {wreg(n,t)}, {vr(ONE,4)}, {vr(CS+4*t,4) if n else 0}")
    def loads():
        o = ["s_add_u32 m0, s70, s63", "s_add_u32 s62, s61, 4096"]
        for i in range(KS):
            o.append(f"buffer_load_dwordx4 v{VA}, {WSRD}, s{61+(i>>2)} offen offset:{(i&3)*1024} lds")
            if i == 3: o.append("s_add_u32 m0, m0, 4096")
        return o + [f"s_add_u32 s61, s61, {ust}", "s_add_u32 s70, s70, 32768", "s_and_b32 s70, s70, 0x1ffff"]
    pollld = f"buffer_load_dword v{VF}, v{VFA}, {WSRD}, s68 offen sc1"
    def need(add):
        if kind == "wo": A.e(f"s_add_u32 s71, s60, {add}\ns_and_b32 s68, s71, 1\ns_lshl_b32 s68, s68, 3\ns_add_u32 s68, s68, s82\ns_lshr_b32 s71, s71, 1\ns_add_u32 s71, s71, 1")
        else: A.e(f"s_add_u32 s71, s60, {add+1}")
        if res: A.e(f"s_and_b32 s64, s50, 1\ns_add_u32 s71, s71, s64\ns_min_u32 s71, s71, {NU}\ns_cmp_ge_u32 s60, {NU-add}\ns_cselect_b32 s71, -1, s71")
    xr = lambda n: vr(XW + 4 * (n % NW), 4)
    rd = lambda n: f"ds_read_b128 {xr(n)}, v{VRD + n//KS} offset:{(n%KS)*1024}"
    def mm(n):
        o = [f"{MF} {vr(ACC+4*t,4)}, {wreg(n,t)}, {xr(n)}, {vr(ACC+4*t,4) if n else 0}" for t in range(2)]
        if stats and n < KS: o += [f"{MF} {vr(S1,4)}, {vr(ONE,4)}, {xr(n)}, {vr(S1,4) if n else 0}", f"{MF} {vr(S2,4)}, {xr(n)}, {xr(n)}, {vr(S2,4) if n else 0}"]
        return o
    def both(f):
        l1 = A.newlabel("b1"); l2 = A.newlabel("b2")
        A.e(f"s_cmp_eq_u32 s56, 1\ns_cbranch_scc1 {l1}"); f("")
        A.label(l2)
        def d(): A.label(l1); A.e("s_nop 7"); f("sc1"); A.e(f"s_branch {l2}")
        tail.append(d)
    def f1():
        A.e("s_add_u32 s64, s74, s75\ns_add_u32 s65, s64, 4096")
        for i in range(6): A.e(f"buffer_load_dwordx4 {vr(PKT+4*i,4)}, v{L16}, {WSRD}, s{64+(i>>2)} offen offset:{(i&3)*1024} sc1")
    def fres():
        if kind == "wo": A.e(f"s_and_b32 s64, s66, 0xffff8000\nbuffer_load_dwordx4 {vr(RES,4)}, v{VO}, s[24:27], s64 offen")
        else: A.e(f"s_add_u32 s64, s66, {X1}\nbuffer_load_dwordx4 {vr(RES,4)}, v{L16}, {WSRD}, s64 offen\ns_add_u32 s64, s66, {Y1}\nbuffer_load_dwordx4 {vr(RES+4,4)}, v{L16}, {WSRD}, s64 offen")
    def f2():
        ck = A.newlabel("ck"); rt = A.newlabel("rt"); go = A.newlabel("go")
        A.label(ck)
        for i in range(0, 8, 2): A.e(f"v_pk_add_f32 {vr(PKT+i,2)}, {vr(PKT+i,2)}, {vr(PKT+8+i,2)}\nv_pk_add_f32 {vr(PKT+16+i,2)}, {vr(PKT+16+i,2)}, {vr(FIN+i,2)}")
        for i in range(0, 8, 2): A.e(f"v_pk_add_f32 {vr(PKT+i,2)}, {vr(PKT+i,2)}, {vr(PKT+16+i,2)}")
        A.e(f"v_pk_add_f32 {vr(TM,2)}, {vr(PKT,2)}, {vr(PKT+2,2)}\nv_pk_add_f32 {vr(TM+2,2)}, {vr(PKT+4,2)}, {vr(PKT+6,2)}\nv_pk_add_f32 {vr(TM,2)}, {vr(TM,2)}, {vr(TM+2,2)}")
        A.e(f"v_cmp_u_f32 vcc, v{TM}, v{TM+1}\ns_cbranch_vccnz {rt}")
        A.label(go)
        def d():
            A.label(rt)
            A.e(f"s_sub_u32 s90, s90, 1\ns_cmp_gt_i32 s90, 0\ns_cbranch_scc0 {go}"); f1(); A.e(f"s_waitcnt vmcnt(0)\ns_branch {ck}")
        tail.append(d)
        unpack(A, RES, TM, 4)
        if kind == "w4":
            unpack(A, RES + 4, TM + 8, 4)
            for i in range(0, 8, 2): A.e(f"v_pk_add_f32 {vr(PKT+i,2)}, {vr(PKT+i,2)}, {vr(TM+8+i,2)}")
        for i in range(8): A.e(f"v_fma_f32 v{TM+i}, v{PKT+i}, v{CS+i}, v{TM+i}")
        for i in range(4): A.e(f"v_cvt_pk_bf16_f32 v{TM+8+i}, v{TM+2*i}, v{TM+2*i+1}")
        if kind == "wo": A.e(f"s_add_u32 s64, s66, {X1}\nbuffer_store_dwordx4 {vr(TM+8,4)}, v{L16}, {WSRD}, s64 offen sc1")
        else: A.e(f"s_and_b32 s64, s66, 0xffff8000\nbuffer_store_dwordx4 {vr(TM+8,4)}, v{VO}, s[24:27], s64 offen")
        A.e("s_add_u32 s64, s74, s75\ns_add_u32 s65, s64, 4096")
        def rs(fl):
            for i in range(6): A.e(f"buffer_store_dwordx4 {vr(M1,4)}, v{L16}, {WSRD}, s{64+(i>>2)} offen offset:{(i&3)*1024} {fl}")
        both(rs)
        A.e(f"s_add_u32 s66, s66, {ost}\ns_add_u32 s75, s75, 6144\ns_cmp_eq_u32 s75, {4*6144}\ns_cselect_b32 s75, 0, s75\ns_add_u32 s76, s76, 1\ns_mov_b32 s77, 0")
    tail = []
    def loop(fin):
        send = xch and not fin
        NS = 0 if fin else (2 if send else 1)
        flg = (not send) and kind != "w4"
        fl = lambda: flag_store(A, VT, "s76" if fin else "s60", 69) if flg else None
        def dummies():
            for _ in range(NS): A.e(f"buffer_load_dword v{VT}, off, {WSRD}, s69")
        top = A.newlabel("top"); vN = A.newlabel("vN"); join = A.newlabel("join"); slowp = A.newlabel("slowp"); lag = A.newlabel("lag")
        need(0); poll_loop(A, pollld, VF, 71)
        A.label(lag)
        for x in loads(): A.e(x)
        dummies()
        A.label(top)
        need(1)
        A.e(pollld)
        ex = 1
        if fin: f1(); fres(); ex += 6 + (1 if kind == "wo" else 2)
        elif res: A.e(f"s_add_u32 s64, s66, {H2}\nbuffer_load_dwordx4 {vr(RES,4)}, v{L16}, {WSRD}, s64 offen"); ex += 1
        for x in range(4): A.e(f"v_add_u32 v{VRD+x}, s55, v{VRB+x}")
        A.e("s_add_u32 s55, s55, 32768\ns_and_b32 s55, s55, 0x1ffff")
        tst(A, 0)
        Z = Sched(A)
        for i in range(KS):
            A.e(f"s_waitcnt vmcnt({KS-1-i+NS+ex})")
            Z.lds(rd(i), i)
            if i == KS - 1: A.e("s_barrier")
            if i >= 2:
                Z.need(i - 2)
                for x in mm(i - 2): A.e(x)
        tst(A, 1)
        nr = [KS]
        def run(Z, lo, hi, fill={}):
            for n in range(lo, hi):
                while nr[0] < min(NF, n + D + 1) and nr[0] < n + 3: Z.lds(rd(nr[0]), nr[0]); nr[0] += 1
                Z.need(n)
                for k, x in enumerate(mm(n)):
                    A.e(x)
                    if k == 0:
                        for _ in range(2):
                            if nr[0] < min(NF, n + D + 1): Z.lds(rd(nr[0]), nr[0]); nr[0] += 1
                    for y in fill.get((n, k), []):
                        if y.startswith("ds_"): Z.lds(y, y)
                        elif y.startswith("need "): Z.need(y[5:])
                        else: A.e(y)
        fill = {}
        MID = F.GM * NF // 32
        if stats:
            sw = f"ds_write_b64 v{VSW}, {vr(S1,2)}"
            fill[(KS + 3, 0)] = [f"v_cndmask_b32 v{S1+1}, v{S2}, v{S2+1}, s[74:75]"]; fill[(KS + 3, 1)] = [f"v_cndmask_b32 v{S1+1}, v{S1+1}, v{S2+2}, s[76:77]"]
            fill[(KS + 4, 0)] = [f"v_cndmask_b32 v{S1+1}, v{S1+1}, v{S2+3}, s[78:79]"]; fill[(KS + 4, 1)] = [sw]
            srd_ = [f"ds_read_b64 {vr(SP+2*w,2)}, v{VSR} offset:{w*512}" for w in range(4)]
            fill[(KS + 8, 1)] = ["need " + sw, "s_barrier"] + srd_[:2]; fill[(KS + 9, 0)] = srd_[2:]
            i0 = len(A.lines); stats_fin(A, SP, TM + 21, TM + 22, 1); sf = [x.strip() for x in A.lines[i0:]]; del A.lines[i0:]
            sf = ["need " + srd_[3]] + sf
            for k, x in enumerate(sf): fill.setdefault((KS + 13 + k // 2, k & 1), []).append(x)
            assert KS + 13 + len(sf) // 2 < NF
        run(Z, KS - 2, MID, fill)
        tst(A, 2)
        A.e("s_waitcnt vmcnt(0)")
        tst(A, 3)
        if fin:
            np_ = A.newlabel("np"); A.e(f"s_cmp_eq_u32 s77, 0\ns_cbranch_scc1 {np_}"); f2(); A.label(np_)
        else: fl()
        A.e(f"v_cmp_gt_u32 vcc, s71, v{VF}\ns_cbranch_vccnz {vN}")
        n0 = nr[0]; Z2 = Z.copy()
        fR = {k: list(v) for k, v in fill.items()}
        for k, x in enumerate(loads()): fR.setdefault((MID + k // 2, k & 1), []).append(x)
        run(Z, MID, NF, fR)
        A.e("s_mov_b32 s72, 1")
        A.label(join)
        def dN():
            A.label(vN); A.e(pollld); nr[0] = n0
            run(Z2, MID, NF, fill)
            A.e(f"s_mov_b32 s72, 0\ns_branch {join}")
        tail.append(dN)
        tst(A, 4)
        a = ACC
        if fin:
            for i in range(8): A.e(f"v_mov_b32 v{FIN+i}, v{a+i}")
            A.e("s_mov_b32 s77, 1")
        elif send:
            A.e("s_add_u32 s64, s74, s75")
            both(lambda f_: [A.e(f"buffer_store_dwordx4 {vr(a+4*t,4)}, v{L16}, {WSRD}, s64 offen offset:{t*1024} {f_}") for t in range(2)])
            A.e(f"s_add_u32 s75, s75, 6144\ns_cmp_eq_u32 s75, {4*6144}\ns_cselect_b32 s75, 0, s75")
        else:
            if stats:
                for i in range(8): A.e(f"v_fma_f32 v{a+i}, v{CS+i}, v{TM+21}, v{a+i}")
                for i in range(8): A.e(f"v_mul_f32 v{a+i}, v{a+i}, v{TM+22}")
                for op in ("v_mul_f32 v{t}, v{v}, v{v}", "v_fma_f32 v{t}, v{t}, s81, v%d" % (TM + 23), "v_mul_f32 v{t}, v{t}, v{v}", "v_exp_f32 v{t}, v{t}", "v_add_f32 v{t}, 1.0, v{t}", "v_rcp_f32 v{t}, v{t}", "v_mul_f32 v{v}, v{t}, v{v}"):
                    for i in range(8): A.e(op.format(t=TM + i, v=a + i))
            else:
                unpack(A, RES, TM, 4)
                for i in range(8): A.e(f"v_add_f32 v{a+i}, v{a+i}, v{TM+i}")
            for i in range(4): A.e(f"v_cvt_pk_bf16_f32 v{TM+8+i}, v{a+2*i}, v{a+2*i+1}")
            A.e(f"s_add_u32 s64, s66, {outb}\nbuffer_store_dwordx4 {vr(TM+8,4)}, v{L16}, {WSRD}, s64 offen sc1\ns_add_u32 s66, s66, {ost}")
        if F.PROF:
            tst(A, 5); tacc(A, 6)
            if not fin: stamp2(A, ST)
        A.e(f"s_add_u32 s60, s60, 1\ns_cmp_eq_u32 s72, 0\ns_cbranch_scc1 {slowp}")
        if fin and flg: A.e(f"s_waitcnt vmcnt({6+KS})"); fl()
        A.e(f"s_branch {top}")
        A.label(slowp)
        A.e(f"s_waitcnt vmcnt({NS})")
        if fin: fl()
        A.e(f"v_cmp_gt_u32 vcc, s71, v{VF}\ns_cbranch_vccz {lag}")
        if fin:
            fres(); f1(); A.e("s_waitcnt vmcnt(0)"); f2()
            if flg: A.e("s_waitcnt vmcnt(6)")
        elif flg: A.e("s_waitcnt vmcnt(0)")
        fl()
        A.e(f"s_cmp_ge_u32 s60, {NU}\ns_cbranch_scc1 {done}")
        poll_loop(A, pollld, VF, 71)
        A.e(f"s_branch {lag}")
    if F.PROF:
        for r in ST: A.e(f"v_mov_b32 v{r}, 0")
        A.e(f"s_memrealtime s[84:85]\ns_waitcnt lgkmcnt(0)\nv_writelane_b32 v{ST[2]}, s84, 0\nv_writelane_b32 v{ST[2]}, s86, 1")
        if xch:
            _f2 = f2
            def f2():
                _f2(); stamp2(A, ST, "s76", 1)
    tinit(A)
    if xch:
        lf = A.newlabel("lfin")
        A.e(f"s_cmp_eq_u32 s50, s52\ns_cbranch_scc1 {lf}")
        loop(False); A.label(lf); loop(True)
    else: loop(False)
    while tail: tail.pop(0)()
    A.label(done)
    tout(A, ST[2]); stamp_out(A, ST)
    A.e("s_endpgm")

def stamp2(A, ST, s="s60", sub=0):
    if not F.PROF: return
    l1 = A.newlabel("st1"); l2 = A.newlabel("st2")
    A.e(f"s_memrealtime s[84:85]\ns_sub_u32 s88, {s}, {sub}\ns_lshr_b32 s89, s88, 1\ns_mov_b32 s87, m0\ns_mov_b32 m0, s89\ns_waitcnt lgkmcnt(0)\ns_bitcmp1_b32 s88, 0\ns_cbranch_scc1 {l1}\nv_writelane_b32 v{ST[0]}, s84, m0\ns_branch {l2}")
    A.label(l1); A.e(f"v_writelane_b32 v{ST[1]}, s84, m0"); A.label(l2); A.e("s_mov_b32 m0, s87")

def ln_role(A, L):
    R = dict(RM=8, CO=9, FR=10, SW=11, SR=12); VFA, VF, VT = 13, 14, 15
    C1, SB = 32, 48; BUF = (64, 72); V = 80; T = 96; PK = 112; ST = (120, 121, 122)
    done = A.newlabel("done")
    A.e("s_mov_b32 s52, s59\ns_mov_b32 s60, 0\ns_mov_b32 s73, 0xffff0000")
    row_lanes(A, 52, R)
    A.e(f"v_and_b32 v{VFA}, 7, v1\nv_lshlrev_b32 v{VFA}, 2, v{VFA}")
    verify(A, L, False, "mod")
    load_consts(A, R, 4, C1, 64, True); load_consts(A, R, 3, SB, 64)
    if "ln2" in F.OFF: A.e("s_endpgm")
    A.e(f"""
    s_mov_b32 s63, {X1}
    s_mov_b32 s66, {H2}
    s_lshl_b32 s64, s50, 8
    s_add_u32 s68, s64, {F_WO}
    s_lshl_b32 s65, s59, 2
    s_add_u32 s69, s64, s65
    s_add_u32 s69, s69, {F_LN}""")
    NS = 2
    def loads(par):
        A.e(f"s_add_u32 s64, s63, 4096\nbuffer_load_dwordx4 {vr(BUF[par],4)}, v{R['FR']}, {WSRD}, s63 offen\nbuffer_load_dwordx4 {vr(BUF[par]+4,4)}, v{R['FR']}, {WSRD}, s64 offen\ns_add_u32 s63, s63, 32768")
    pollld = f"buffer_load_dword v{VF}, v{VFA}, {WSRD}, s68 offen sc1"
    def dummies():
        for _ in range(NS): A.e(f"buffer_load_dword v{VT}, off, {WSRD}, s68")
    top = [A.newlabel("top0"), A.newlabel("top1")]
    if F.PROF:
        for r in ST: A.e(f"v_mov_b32 v{r}, 0")
    A.e("s_mov_b32 s71, 1")
    poll_loop(A, pollld, VF, 71)
    loads(0); dummies()
    tail = []
    for par in range(2):
        slowp = A.newlabel("slowp"); p2 = A.newlabel("p2")
        A.label(top[par])
        A.e(pollld)
        A.e(f"s_add_u32 s71, s60, 2\ns_waitcnt vmcnt({NS+1})")
        unpack(A, BUF[par], V, 8)
        i0 = len(A.lines); ln_core(A, V, C1, SB, T, R, par * 2048, PK); body = A.lines[i0:]; del A.lines[i0:]
        k = [i for i, x in enumerate(body) if "s_barrier" in x][0]
        A.lines += body[:k + 1]
        A.e("s_waitcnt vmcnt(0)"); flag_store(A, VT, "s60", 69)
        A.e(f"v_cmp_gt_u32 vcc, s71, v{VF}\ns_mov_b32 s72, 0\ns_cbranch_vccnz {p2}\ns_mov_b32 s72, 1")
        loads(par ^ 1)
        A.label(p2)
        A.lines += body[k + 1:]
        A.e(f"s_add_u32 s64, s66, 4096\nbuffer_store_dwordx4 {vr(PK,4)}, v{R['FR']}, {WSRD}, s66 offen sc1\nbuffer_store_dwordx4 {vr(PK+4,4)}, v{R['FR']}, {WSRD}, s64 offen sc1")
        stamp(A, ST[par])
        A.e(f"s_add_u32 s66, s66, 32768\ns_add_u32 s60, s60, 1\ns_cmp_eq_u32 s72, 0\ns_cbranch_scc1 {slowp}")
        if par: A.e(f"s_branch {top[0]}")
        def d(par=par, slowp=slowp):
            A.label(slowp)
            A.e(pollld)
            A.e("s_waitcnt vmcnt(1)"); flag_store(A, VT, "s60", 69)
            go = A.newlabel("go")
            A.e(f"s_cmp_ge_u32 s60, {NU}\ns_cbranch_scc1 {done}\ns_waitcnt vmcnt(1)\nv_cmp_gt_u32 vcc, s71, v{VF}\ns_cbranch_vccz {go}")
            poll_loop(A, pollld, VF, 71)
            A.label(go)
            loads(par ^ 1); dummies()
            A.e(f"s_branch {top[par^1]}")
        tail.append(d)
    for d in tail: d()
    A.label(done)
    stamp_out(A, ST)
    A.e("s_endpgm")

def att_role(A, L):
    L16, VFA, VKM, VVM, VF, VT, VNEG = 0, 2, 3, 4, 5, 6, 7
    KM, VM, SA, SM, P, TT, OA, PK = 16, 32, 48, 56, 64, 72, 80, 112; ST = (120, 121, 122)
    Q = lambda b, ke: ar(b * 80 + ke * 4, 4)
    K = lambda b, kt, ke: ar(b * 80 + 16 + (kt * 4 + ke) * 4, 4)
    V = lambda b, et: ar(b * 80 + 48 + et * 4, 4)
    verify(A, L, True)
    A.e(f"""
    v_lshlrev_b32 v{L16}, 4, v1
    v_and_b32 v21, 15, v1
    v_lshrrev_b32 v22, 4, v1
    v_and_b32 v23, 7, v21
    v_lshlrev_b32 v23, 4, v23
    v_lshl_add_u32 v{VKM}, v22, 8, v23
    v_and_b32 v23, 31, v1
    v_lshlrev_b32 v{VVM}, 4, v23
    v_and_b32 v23, 3, v1
    v_bfe_u32 v24, v1, 2, 1
    v_lshlrev_b32 v23, 14, v23
    v_lshl_add_u32 v{VFA}, v24, 7, v23
    v_mov_b32 v{VNEG}, {NEG:#x}
    s_and_b32 s54, s50, 1
    s_lshl_b32 s64, s54, 4
    v_lshlrev_b32 v23, 2, v22
    v_sub_u32 v23, v21, v23
    v_add_u32 v23, s64, v23            ; query - 4g""")
    for kt in range(2):
        for r in range(4): A.e(f"v_cmp_le_i32 s[{28+2*(kt*4+r)}:{29+2*(kt*4+r)}], {16*kt+r}, v23")
    A.e(f"""
    s_mov_b32 s44, -1
    s_mov_b32 s45, 0
    s_mov_b32 s80, {f2u(SCL):#x}
    s_lshl_b32 s52, s59, 1
    s_lshr_b32 s64, s50, 1
    s_add_u32 s52, s52, s64            ; head
    s_lshl_b32 s53, s52, 15            ; 2h * 16KB
    s_lshl_b32 s68, s52, 8
    s_add_u32 s68, s68, s67
    s_add_u32 s68, s68, {F_KVM}
    s_lshl_b32 s69, s59, 8
    s_lshl_b32 s64, s64, 2
    s_add_u32 s69, s69, s64
    s_lshl_b32 s64, s54, 3
    s_add_u32 s69, s69, s64
    s_add_u32 s69, s69, {F_ATT}
    s_lshl_b32 s66, s52, 12
    s_lshl_b32 s64, s54, 17
    s_add_u32 s66, s66, s64
    s_add_u32 s66, s66, {OB}
    s_lshl_b32 s55, s54, 10
    s_xor_b32 s55, s55, 0x2000
    s_mov_b32 s60, 0                   ; 2 * segment""")
    def near(dst, add):
        A.e(f"""
        s_add_u32 s64, s60, {2*add}
        s_lshl_b32 s65, s64, 11
        s_and_b32 s65, s65, 0x2000
        s_xor_b32 s65, s65, s67
        s_lshl_b32 s64, s64, 19
        s_add_u32 s64, s64, s65
        s_add_u32 s{dst}, s64, s53""")
    def kq_loads(b, add):
        near(92, add)
        A.e("s_add_u32 s93, s92, 16384\ns_add_u32 s94, s92, 4096\ns_add_u32 s95, s93, 4096\ns_xor_b32 s96, s92, s55\ns_xor_b32 s97, s93, s55")
        for ke in range(4):
            A.e(f"buffer_load_dwordx4 {Q(b,ke)}, v{L16}, {WSRD}, s{96+(ke>>1)} offen offset:{(ke&1)*2048}")
            for kt in range(2): A.e(f"buffer_load_dwordx4 {K(b,kt,ke)}, v{L16}, {WSRD}, s{92+(ke>>1)} offen offset:{(ke&1)*2048 + kt*1024}")
    def v_loads(b):
        for et in range(8): A.e(f"buffer_load_dwordx4 {V(b,et)}, v{L16}, {WSRD}, s{94+(et>>2)} offen offset:{(et&3)*1024}")
    def softmax(vals):
        mx, t, sm, r = TT, TT + 1, TT + 2, TT + 3
        A.e(f"v_max3_f32 v{mx}, v{mx}, v{vals[8]}, v{vals[9]}\nv_max3_f32 v{mx}, v{mx}, v{vals[10]}, v{vals[11]}")
        for sw in ("v_permlane16_swap_b32", "v_permlane32_swap_b32"): A.e(f"v_mov_b32 v{t}, v{mx}\n{sw} v{t}, v{mx}\nv_max_f32 v{mx}, v{mx}, v{t}")
        A.e(f"v_mul_f32 v{mx}, s80, v{mx}")
        for v in vals: A.e(f"v_fma_f32 v{v}, v{v}, s80, -v{mx}")
        for v in vals: A.e(f"v_exp_f32 v{v}, v{v}")
        A.e(f"v_add_f32 v{sm}, v{vals[0]}, v{vals[1]}\nv_add_f32 v{r}, v{vals[2]}, v{vals[3]}")
        for i in range(4, 12, 2): A.e(f"v_add_f32 v{sm}, v{sm}, v{vals[i]}\nv_add_f32 v{r}, v{r}, v{vals[i+1]}")
        A.e(f"v_add_f32 v{sm}, v{sm}, v{r}")
        for sw in ("v_permlane16_swap_b32", "v_permlane32_swap_b32"): A.e(f"v_mov_b32 v{t}, v{sm}\n{sw} v{t}, v{sm}\nv_add_f32 v{sm}, v{sm}, v{t}")
        A.e(f"v_rcp_f32 v{r}, v{sm}")
        for v in vals: A.e(f"v_mul_f32 v{v}, v{v}, v{r}")
        for i in range(6): A.e(f"v_cvt_pk_bf16_f32 v{P+i}, v{vals[2*i]}, v{vals[2*i+1]}")
    pollld = f"buffer_load_dword v{VF}, v{VFA}, {WSRD}, s68 offen sc1"
    if F.PROF:
        for r in ST: A.e(f"v_mov_b32 v{r}, 0")
    A.e("s_mov_b32 s71, 1")
    poll_loop(A, pollld, VF, 71)
    kq_loads(0, 0); v_loads(0)
    A.e("s_waitcnt vmcnt(8)")
    top = [A.newlabel("top0"), A.newlabel("top1")]
    for b in range(2):
        A.label(top[b])
        for ke in range(4):
            for kt in range(2):
                d = vr(SA + 4 * kt, 4); A.e(f"{MF} {d}, {K(b,kt,ke)}, {Q(b,ke)}, {d if ke else 0}")
        for i in range(8): A.e(f"v_cndmask_b32 v{SA+i}, v{VNEG}, v{SA+i}, s[{28+2*i}:{29+2*i}]")
        A.e(f"v_max3_f32 v{TT}, v{SA}, v{SA+1}, v{SA+2}\nv_max3_f32 v{TT}, v{TT}, v{SA+3}, v{SA+4}\nv_max3_f32 v{TT}, v{TT}, v{SA+5}, v{SA+6}\nv_max_f32 v{TT}, v{TT}, v{SA+7}")
        near(98, 0)
        A.e(f"s_add_u32 s98, s98, {KVM}\ns_add_u32 s99, s98, 16384\ns_lshr_b32 s71, s60, 1\ns_add_u32 s71, s71, 1")
        poll_loop(A, pollld, VF, 71)
        for ke in range(4): A.e(f"buffer_load_dwordx4 {vr(KM+4*ke,4)}, v{VKM}, {WSRD}, s{98+(ke>>1)} offen offset:{(ke&1)*128}")
        for ke in range(4): A.e(f"buffer_load_dwordx4 {vr(VM+4*ke,4)}, v{VVM}, {WSRD}, s{98+(ke>>1)} offen offset:{1024 + (ke&1)*512}")
        stamp(A, ST[2])
        if F.PROF: A.e(f"s_memtime s[84:85]\ns_waitcnt lgkmcnt(0)\nv_writelane_b32 v{ST[1]}, s84, m0")
        if F.ABAR: A.e("s_barrier")
        def guarded(f, n):
            if b == 0: return f()
            pf = A.newlabel("pf"); j1 = A.newlabel("j1")
            A.e(f"s_cmp_lt_u32 s60, {NU-2}\ns_cbranch_scc1 {pf}\ns_waitcnt vmcnt({n})\ns_branch {j1}")
            A.label(pf); f(); A.label(j1)
        guarded(lambda: kq_loads(b ^ 1, 1), 0)
        A.e("s_waitcnt vmcnt(16)")
        for ke in range(4): A.e(f"{MF} {vr(SM,4)}, {vr(KM+4*ke,4)}, {Q(b,ke)}, {vr(SM,4) if ke else 0}")
        for r in range(4): A.e(f"v_cndmask_b32 v{SM+r}, v{VNEG}, v{SM+r}, s[44:45]")
        softmax(list(range(SA, SA + 12)))
        for et in range(8): A.e(f"{MF} {vr(OA+4*et,4)}, {V(b,et)}, {vr(P,4)}, 0")
        A.e("s_waitcnt vmcnt(12)")
        for et in range(8): A.e(f"v_mfma_f32_16x16x16_bf16 {vr(OA+4*et,4)}, {vr(VM+2*et,2)}, {vr(P+4,2)}, {vr(OA+4*et,4)}")
        for ke in range(4):
            o = PK + 4 * (ke & 1)
            for i in range(4): A.e(f"v_cvt_pk_bf16_f32 v{o+i}, v{OA+8*ke+2*i}, v{OA+8*ke+2*i+1}")
            A.e(f"buffer_store_dwordx4 {vr(o,4)}, v{L16}, {WSRD}, s66 offen offset:{ke*1024} sc1")
        stamp(A, ST[0])
        if F.ABAR: A.e("s_barrier")
        guarded(lambda: v_loads(b ^ 1), 0)
        A.e("s_add_u32 s66, s66, 262144\ns_add_u32 s60, s60, 2\ns_waitcnt vmcnt(8)"); flag_store(A, VT, "s71", 69)
        if b: A.e(f"s_cmp_lt_u32 s60, {NU}\ns_cbranch_scc1 {top[0]}")
    stamp_out(A, ST)
    A.e("s_endpgm")

def flow_kernel(A, name):
    A.begin_kernel(name)
    L = {k: f"fl_{k}" for k in ("fb", "disp0", "disp", "rec", "qkv", "wo", "w4", "w3", "att", "ln2", "w1", "w2", "dutb")}
    done = A.newlabel("done"); nr = A.newlabel("norole")
    A.e(f"s_cmp_ge_u32 s2, 256\ns_cbranch_scc1 {done}\ns_lshr_b32 s49, s2, 3")
    ldptr(A, 18, "ws"); ldptr(A, 2, "dbg")
    if F.KW: ldptr(A, 4, "x")
    A.e(f"""
    s_getreg_b32 s51, hwreg(HW_REG_XCC_ID)
    v_lshrrev_b32 v2, 6, v0
    v_and_b32 v1, 63, v0
    s_and_b32 s51, s51, 7
    v_readfirstlane_b32 s50, v2
    s_mov_b32 s90, {F.BUD}
    s_mov_b32 s56, 2
    s_mov_b32 s88, {CB0}
    s_lshl_b32 s64, s51, 2
    s_lshr_b32 s64, {F.XMAP:#x}, s64
    s_and_b32 s64, s64, 7
    s_lshl_b32 s58, s64, 5
    s_add_u32 s58, s58, s49""")
    if F.PROF: A.e("s_memrealtime s[86:87]")
    A.e("s_waitcnt lgkmcnt(0)")
    A.srd(20, 18, WS_BYTES)
    A.e(f"s_cmp_lg_u32 s50, 0\ns_cbranch_scc1 {L['disp0']}")
    dbg_srd(A, 92)
    A.e(f"""
    s_lshl_b32 s64, 1, s49
    v_mov_b32 v2, s64
    v_mov_b32 v3, 0x100
    s_lshl_b32 s64, s51, 3
    s_mov_b64 exec, 1
    buffer_atomic_add_x2 v[2:3], off, s[92:95], s64 sc1
    s_mov_b64 exec, -1""")
    A.label(L["disp0"])
    A.e("v_mbcnt_lo_u32_b32 v1, -1, 0\nv_mbcnt_hi_u32_b32 v1, -1, v1")
    f1 = A.newlabel("nx"); f2 = A.newlabel("nx")
    A.e(f"s_sub_u32 s59, s58, 64\ns_cbranch_scc0 {f1}\ns_branch {L['rec']}"); A.label(f1)
    A.e(f"s_cmp_lt_u32 s58, 128\ns_cbranch_scc0 {f2}\ns_branch {L['qkv']}"); A.label(f2)
    A.e(f"s_cmp_ge_u32 s58, 192\ns_cbranch_scc1 {L['dutb']}")
    if "A" in F.EXP: A.e("s_endpgm")
    duty(A, L, 0)
    if "a" in F.EXP: A.e("s_endpgm")
    A.e(f"s_branch {L['disp']}")
    A.label(L["dutb"])
    if "B" in F.EXP: A.e("s_endpgm")
    duty(A, L, 1)
    A.label(L["disp"])
    for lo, role in ((248, "w2"), (240, "w1"), (224, "att"), (220, "ln2"), (192, "w3"), (160, "w4")):
        far = A.newlabel("nx")
        A.e(f"s_sub_u32 s59, s58, {lo}\ns_cbranch_scc1 {far}\ns_branch {L[role]}"); A.label(far)
    A.e(f"s_sub_u32 s59, s58, 128\ns_branch {L['wo']}")
    A.label(L["fb"])
    tp = A.newlabel("tp"); tg = A.newlabel("tg"); sl = A.newlabel("tsl")
    dbg_srd(A, 92)
    A.e(f"""
    s_waitcnt vmcnt(0) lgkmcnt(0)
    s_barrier
    v_mov_b32 v4, 0
    s_cmp_lg_u32 s50, 0
    s_cbranch_scc1 {nr}
    s_mov_b64 exec, 1
    v_mov_b32 v3, 1
    s_lshl_b32 s52, s51, 2
    s_add_u32 s52, s52, {TICK}
    buffer_atomic_add v3, off, s[92:95], s52 sc0 sc1
    s_waitcnt vmcnt(0)
    ds_write_b32 v4, v3
    s_waitcnt lgkmcnt(0)
    s_mov_b64 exec, -1""")
    A.label(nr)
    A.e(f"""
    s_barrier
    ds_read_b32 v3, v4
    v_mbcnt_lo_u32_b32 v16, -1, 0
    v_and_b32 v16, 7, v16
    v_lshlrev_b32 v16, 2, v16
    s_waitcnt lgkmcnt(0)
    v_readfirstlane_b32 s49, v3
    s_barrier""")
    A.label(tp)
    A.e(f"buffer_load_dword v17, v16, s[92:95], 0 offen offset:{TICK} sc1\ns_waitcnt vmcnt(0)")
    for x in range(8): A.e(f"v_readlane_b32 s{72+x}, v17, {x}")
    A.e("s_add_u32 s65, s72, s73")
    for x in range(2, 8): A.e(f"s_add_u32 s65, s65, s{72+x}")
    A.e(f"s_cmp_ge_u32 s65, 256\ns_cbranch_scc1 {tg}\ns_sleep 4\ns_sub_u32 s90, s90, 1\ns_cmp_gt_i32 s90, 0\ns_cbranch_scc1 {tp}")
    A.label(tg)
    A.e("s_min_u32 s65, s72, s73")
    for x in range(2, 8): A.e(f"s_min_u32 s65, s65, s{72+x}")
    A.e(f"""
    s_mov_b32 s88, {CB1}
    s_cmp_lt_u32 s65, {33 if F.FORCE_SLOW else 32}
    s_cbranch_scc1 {sl}
    s_lshl_b32 s64, s51, 2
    s_lshr_b32 s64, {F.XMAP:#x}, s64
    s_and_b32 s64, s64, 7
    s_lshl_b32 s58, s64, 5
    s_add_u32 s58, s58, s49
    s_mov_b32 s56, 0
    s_branch {L['disp0']}""")
    A.label(sl)
    A.e("s_mov_b32 s58, s49")
    for x in range(7): A.e(f"s_cmp_gt_u32 s51, {x}\ns_cselect_b32 s65, s{72+x}, 0\ns_add_u32 s58, s58, s65")
    if F.FORCE_SLOW: A.e("s_mul_i32 s58, s58, 37\ns_add_u32 s58, s58, 11\ns_and_b32 s58, s58, 255")
    A.e(f"s_mov_b32 s56, 1\ns_cmp_lt_u32 s58, 256\ns_cbranch_scc1 {L['disp0']}")
    A.label(done)
    A.e("s_endpgm")
    A.label(L["qkv"]); qkv_role(A, L)
    for role in ("wo", "w4", "w3", "w1", "w2"):
        A.label(L[role])
        if role in F.OFF: A.e("s_endpgm")
        gemm_role(A, L, role)
    A.label(L["ln2"]); ln_role(A, L)
    A.label(L["att"])
    if "att" in F.OFF: A.e("s_endpgm")
    att_role(A, L)
    MFMA_WS[0] = 1
    A.lines = fix_hazards(A.lines)
    B = Asm(); B.uid = A.uid + 100000
    O = rec6.O; O.MEAS = 0; O.DL0 = max(0, O.DL - 9); O.DO01 = max(0, O.DO - 7)
    MFMA_WS[0] = O.MWS
    B.label(L["rec"])
    B.e(f"s_load_dwordx8 s[4:11], s[0:1], {ARG['mem0']*8}\ns_load_dwordx2 s[12:13], s[0:1], {ARG['Wo']*8}\ns_mov_b32 s57, s58\nv_mov_b32 v0, v1\ns_waitcnt lgkmcnt(0)")
    O.SST = F.PROF; O.PF = F.PF; O.WOPF = F.WOPF; O.NFL = F.NFL
    rec6.rec_setup(B)
    if F.EXP: B.e("s_endpgm")
    sl = B.newlabel("recslow"); fin = B.newlabel("recfin")
    verify(B, L, True, 'rec')
    rec6.rec_bases(B)
    B.e(f"s_mov_b32 s90, {O.BUDGET}\ns_barrier")
    if F.PROF: B.e("s_memrealtime s[14:15]\ns_memtime s[28:29]")
    if O.PROF: B.e(f"s_lshl_b32 s16, s57, 2\ns_add_u32 s16, s16, s50\ns_lshl_b32 s16, s16, 12\ns_add_u32 s16, s16, {P4}")
    B.e(f"s_cmp_eq_u32 s56, 1\ns_cbranch_scc1 {sl}")
    rec6.rec_loop(B, "", fin)
    B.label(sl)
    rec6.rec_loop(B, "sc1", fin)
    B.label(fin)
    if F.PROF:
        B.e(f"s_memrealtime s[16:17]\ns_memtime s[26:27]\ns_waitcnt lgkmcnt(0)\ns_sub_u32 s26, s26, s28\nv_mov_b32 v20, 0\nv_writelane_b32 v20, s26, 4\nv_writelane_b32 v20, s14, 0\nv_writelane_b32 v20, s16, 1\nv_writelane_b32 v20, s90, 2\nv_writelane_b32 v20, s67, 3\ns_mov_b32 s58, s57")
        stamp_out(B, [20])
    B.e("s_endpgm")
    B.lines = fix_hazards(B.lines)
    A.lines += B.lines
    A.end_kernel(512, 102, 256)
    A.launch(name, (256,), (256,), 160 * 1024)

def build(opt=None, ropt=None):
    for k, v in (opt or {}).items(): setattr(F, k, v)
    for k, v in (ropt or {}).items(): setattr(rec6.O, k, v)
    A = Asm()
    hdr = open(f"/code/{NAME}.s.ref").read().split("\n")
    A.header = [l for l in hdr if l.startswith(";") and "@launch" not in l and "Override" not in l and "grid=ceil" not in l]
    flow_kernel(A, "flow_kernel")
    return A.text()

if __name__ == "__main__":
    out = sys.argv[1]
    t = build(eval(sys.argv[2]) if len(sys.argv) > 2 else None, eval(sys.argv[3]) if len(sys.argv) > 3 else None)
    open(out, "w").write(t)
    check_hazards(t)
    print(len(t), "bytes")
```

```python
import sys
sys.path.insert(0, "..")
from asmgen import *
from lay import *
import struct
def f2u(x): return struct.unpack("<I", struct.pack("<f", x))[0]
LOG2E = 1.4426950408889634
SCL = (128 ** -0.5) * LOG2E
HALF = "0x00ff00ff"; HALFH = "0xff00ff00"
RS = 1040
T_Q = 0; T_K = 8448; T_V = 16896; T_P = T_V + 4096; PODD = 2048 + 32
L_WO = 32768
LDS_BYTES = 160 * 1024
V_L16, V_IDX, V_A1, V_A2, V_PRD, V_SEL, V_OST, V_WO, V_L4 = 0, 1, 2, 3, 4, 5, 6, 7, 127
V_C = 8
AF = 16; ACC = 48; XC = 96; XN = 104; KEEP = 112; PK = 120; TA, TB, VF = 124, 125, 126; KEEP2 = PK
WV = 128
NVR = 6
WVR = 208
def wo_reg(b): return WV + (b - 3) * 16
LV = lambda f: (f - NVR) * 2048
LO = lambda b: (16 - NVR) * 2048 + b * 4096
class Opt:
    FL63 = 1; KE = 0; KF = 1; KEP = 0; LFW = 1; ORD = 'voq'; H2 = 0; PF0 = (1, 2, 3); PFJ = 2; H63 = 1; VO1 = 0; WSW = 1; PF = 0; WOPF = 0; NFL = 0; SST = 0; PROF = False; DL = 22; DL0 = 10; DS = 32; DO = 10; DO01 = 4; NV1 = 2; BUDGET = 100000; B2POS = 1; NV2 = 0; CK = 5; PER = 4; PER2 = 2; FIXX = 0; FIXM = 0; RSH = 0; RQ = 0; VPF = 6; OPAIR = 1; S2 = 0; DS2 = 2; DO0 = 8; FPOS = 3; NOKVM = 0; NOX = 0; OI = 8; LI = 8; XS = {}; PN = 8; NVL = 0; WARM = 0; WL = 0; WO = 0; ZPER = 3; MEAS = 1; CKB = (5, 5, 5, 5, 5, 5, 5); RP = (0, 1, 2, 2); TG = 2; WD = 6; WV = 1; WN = 2; MWS = 3; TMJ = 6; RLAST = 0; KB = 4; KPOS = 0; KD = 12; EW = 1; KW2 = 0; KPAR = 0; NOFL = 0; NORS = 0; LATEL = 1; NPL = 4; NPR = 5; DPL = 4; DPR = 5
O = Opt

def delay(A, n):
    if O.WARM:
        for i in range(4 * n): A.e(f"v_mov_b32 v{TA}, v{TA}")
        return
    while n >= 4:
        A.e("s_nop 15"); n -= 4
    if n > 0: A.e(f"s_nop {4*n-1}")

def sstamp(A, v, i): A.e(f"s_memrealtime s[84:85]\ns_waitcnt lgkmcnt(0)\nv_writelane_b32 v{v}, s84, {i}")
def sstamp_out(A, v, sg):
    A.e(f"s_lshl_b32 s64, s{sg}, 2\ns_add_u32 s64, s64, s50\ns_lshl_b32 s64, s64, 6\ns_add_u32 s64, s64, {STAMP3}\nv_mbcnt_lo_u32_b32 v31, -1, 0\nv_lshlrev_b32 v31, 2, v31\ns_mov_b64 exec, 0xffff\nbuffer_store_dword v{v}, v31, s[20:23], s64 offen\ns_mov_b64 exec, -1")
def help_addr(A, v, vl, sid, rows):
    A.e(f"s_and_b32 s64, s{sid}, 7")
    A.e(rows)
    A.e(f"""
    s_lshl_b32 s65, s65, 13
    s_andn2_b32 s55, s{sid}, 7
    s_lshl_b32 s55, s55, 7
    s_add_u32 s65, s65, s55
    s_add_u32 s65, s65, 384
    v_and_b32 v{v}, 3, v{vl}
    v_lshlrev_b32 v{v}, 13, v{v}
    v_add_u32 v{v}, s65, v{v}
    v_and_b32 v15, 4, v{vl}
    v_lshl_add_u32 v{v}, v15, 4, v{v}
    s_and_b32 s55, s{sid}, 31
    s_add_u32 s66, s66, s55
    s_lshl_b32 s66, s66, 13
    s_add_u32 s66, s66, 8064
    v_writelane_b32 v{v}, s66, 8
    s_add_u32 s66, s66, 64
    v_writelane_b32 v{v}, s66, 9
    s_cmp_eq_u32 s64, 3
    s_cselect_b32 s65, 0, {0xff if O.H2 else 0x0f}
    s_sub_u32 s66, s{sid}, 32
    s_cmp_lt_u32 s66, 31
    s_cselect_b32 s66, {(0x300 if O.H2 else 0x100) if O.H63 else 0}, 0
    s_or_b32 vcc_lo, s65, s66
    s_mov_b32 vcc_hi, 0
    v_cndmask_b32 v{v}, -1, v{v}, vcc""")
def rec_setup(A):
    A.srd(28, 6, 8 * MB); A.srd(32, 8, 8 * MB); A.srd(36, 10, 8 * MB); A.srd(40, 12, 8 * MB); A.srd(44, 4, 16384)
    A.e(f"""
    s_lshr_b32 s58, s57, 5
    s_and_b32 s59, s57, 31
    v_and_b32 v20, 63, v0              ; lane
    v_and_b32 v21, 15, v20             ; lam
    v_lshrrev_b32 v22, 4, v20          ; g
    v_lshrrev_b32 v23, 3, v20
    v_and_b32 v24, 7, v20
    v_lshlrev_b32 v16, 13, v23
    v_lshl_add_u32 v16, v24, 4, v16
    v_lshrrev_b32 v23, 2, v20
    v_and_b32 v24, 3, v20
    v_lshlrev_b32 v17, 11, v23
    v_lshl_add_u32 v17, v24, 4, v17
    s_lshl_b32 s61, s50, 15
    s_add_u32 s61, s61, {L_WO}
    s_lshl_b32 s62, s50, 21
    s_lshl_b32 s64, s57, 7
    s_add_u32 s62, s62, s64
    s_lshl_b32 s63, s58, 22
    s_lshl_b32 s64, s50, 20
    s_add_u32 s63, s63, s64
    s_lshl_b32 s64, s59, 6
    s_add_u32 s63, s63, s64
    v_lshrrev_b32 v23, 1, v22          ; g>>1
    v_lshlrev_b32 v25, 4, v23
    v_and_b32 v23, 1, v22
    v_lshl_add_u32 v25, v23, 2, v25
    v_lshrrev_b32 v23, 3, v21          ; r'>>1
    v_lshl_add_u32 v25, v23, 3, v25
    v_bfe_u32 v23, v21, 2, 1           ; r'&1
    v_add_u32 v25, v25, v23
    v_lshlrev_b32 v28, 4, v23
    v_lshrrev_b32 v23, 1, v22
    v_lshl_add_u32 v28, v23, 3, v28
    v_lshrrev_b32 v23, 3, v21
    v_lshl_add_u32 v28, v23, 2, v28
    v_and_b32 v23, 1, v22
    v_lshl_add_u32 v28, v23, 1, v28
    v_and_b32 v24, 3, v21              ; c'
    v_lshlrev_b32 v26, 7, v28
    v_add_u32 v26, s61, v26
    v_lshl_add_u32 v18, v24, 3, v26
    v_lshl_add_u32 v19, v24, 4, v26    ; permuted
    v_lshlrev_b32 v26, 6, v25
    v_add_u32 v26, s61, v26
    v_lshl_add_u32 v27, v24, 3, v26
    v_lshlrev_b32 v{V_L16}, 4, v20
    v_add_u32 v{V_WO}, s61, v{V_L16}""")
    ST = [(0, 0), (0, 1), (1, 0), (1, 1), (3, 0), (3, 1), (2, 0), (2, 1)]
    if O.VO1: ST = [('qkvo'.index(c), h) for c in O.ORD + 'k' for h in range(2)]
    A.e(f"s_and_b32 s64, s59, {O.WSW}\ns_lshl_b32 s65, s64, 18\ns_add_u32 s70, s63, s65\ns_sub_u32 s71, s63, s65\ns_lshl_b32 s65, s64, 13\ns_add_u32 s72, s61, s65\ns_sub_u32 s73, s61, s65")
    if O.PF:
        help_addr(A, 29, 20, 57, "s_lshl_b32 s65, s64, 2\ns_mov_b32 s66, 0")
        A.e(f"""
        s_lshl_b32 s68, s50, 21
        s_lshl_b32 s64, s58, 22
        s_lshl_b32 s65, s50, 20
        s_add_u32 s64, s64, s65
        s_and_b32 s66, s59, 15
        s_lshl_b32 s65, s66, 13
        s_add_u32 s64, s64, s65
        s_lshr_b32 s65, s59, 4
        s_lshl_b32 s65, s65, 10
        s_add_u32 s69, s64, s65""")
        if O.WOPF: A.e(f"""
        v_lshrrev_b32 v30, 3, v20
        v_lshlrev_b32 v30, 11, v30
        v_and_b32 v31, 7, v20
        v_lshl_add_u32 v30, v31, 7, v30
        v_cmp_gt_u32 vcc, 32, v20
        v_cndmask_b32 v30, -1, v30, vcc""")
        else: A.e(f"""
        s_add_u32 s69, s69, 384
        s_lshr_b32 s66, s66, 1
        s_cmp_eq_u32 s66, 3
        s_cselect_b32 s65, 0, {8 if O.H2 else 4}
        v_and_b32 v30, 3, v20
        v_lshlrev_b32 v30, 11, v30
        v_and_b32 v31, 4, v20
        v_lshl_add_u32 v30, v31, 4, v30
        v_cmp_gt_u32 vcc, s65, v20
        v_cndmask_b32 v30, -1, v30, vcc""")
    def pf1(t, i):
        mat, hh = ST[t]
        if mat < 3: A.e(f"s_add_u32 s64, s68, {(hh*128 + i*32)*8192}\nbuffer_load_dword v31, v29, s[{28+mat*4}:{31+mat*4}], s64 offen")
        else: A.e(f"s_add_u32 s64, s69, {(hh*256 + i*64)*2048}\nbuffer_load_dword v31, v30, s[40:43], s64 offen")
    def issue(st):
        mat, hh = ST[st]
        npf[st] = 0
        if O.PF and st == 0:
            for i in O.PF0: pf1(0, i); npf[st] += 1
        for J in range(16):
            if O.PF and st < 7 and (J % 4 == 2 if O.PFJ == 2 else J in (1, 3, 5, 7)): pf1(st + 1, J // 4 if O.PFJ == 2 else J // 2); npf[st] += 1
            if O.NFL and J: A.e(f"s_waitcnt vmcnt({O.NFL})")
            if mat < 3: A.e(f"s_add_u32 s64, s62, {(hh*128 + J*8)*8192}\ns_add_u32 m0, s61, {hh*16384+J*1024}\nbuffer_load_dwordx4 v16, s[{28+mat*4}:{31+mat*4}], s64 offen lds")
            else: A.e(f"s_add_u32 s64, s{70+(J>>3)}, {(hh*256 + J*16)*2048}\ns_add_u32 m0, s{72+(J>>3)}, {hh*16384+J*1024}\nbuffer_load_dwordx4 v17, s[40:43], s64 offen lds")
    def vdst(f):
        if f < NVR: return WVR + f * 8
        if f < 8: return 96 + (f - NVR) * 8
        return None
    def read(st):
        mat, hh = ST[st]
        if mat < 2:
            for jj in range(2):
                j = hh * 2 + jj
                for t in range(4):
                    for R in range(2):
                        for h in range(2):
                            off = hh * 16384 + (64 * jj + 32 * R + h) * 128
                            A.e(f"ds_read_b64_tr_b16 {ar((j*8+mat*4+t)*8+4*R+2*h,2)}, v18 offset:{off + t*32}")
                A.e("s_waitcnt lgkmcnt(0)")
        elif mat == 3:
            for jj in range(4):
                b = hh * 4 + jj
                for t in range(2):
                    for R in range(2):
                        for h in range(2):
                            off = hh * 16384 + (64 * jj + 32 * R + 2 * h) * 64 + t * 32
                            A.e(f"ds_read_b64_tr_b16 {vr((48 + b*16 if b < 3 else wo_reg(b)) + t*8+4*R+2*h,2)}, v27 offset:{off}")
                if jj & 1: A.e("s_waitcnt lgkmcnt(0)")
        else:
            def rd(f, dst, rf=vr):
                jj, t = (f >> 2) & 1, f & 3
                for R in range(2):
                    for h in range(2):
                        off = hh * 16384 + (64 * jj + 32 * R + h) * 128
                        A.e(f"ds_read_b64_tr_b16 {rf(dst+4*R+2*h,2)}, v19 offset:{off + (t>>1)*64 + (t&1)*8}")
            if O.VO1:
                for f in range(8 * hh, 8 * hh + 8):
                    if f < NVR: rd(f, WVR + f * 8)
                    elif f < 14: rd(f, park(f), ar)
                    else: rd(f, 96 + (f - 14) * 8)
                    if f & 3 == 3 or f % 3 == 2: A.e("s_waitcnt lgkmcnt(0)")
            elif hh == 0:
                for f in range(8):
                    rd(f, vdst(f))
                    if f & 3 == 3: A.e("s_waitcnt lgkmcnt(0)")
            else:
                for f in range(NVR, 8):
                    for q in range(2): A.e(f"ds_write_b128 v{V_WO}, {vr(vdst(f)+q*4,4)} offset:{LV(f) + q*1024}")
                A.e("s_waitcnt lgkmcnt(0)")
                for f0 in (8, 10, 12, 14):
                    for f in (f0, f0 + 1): rd(f, 96 + (f - f0) * 8 + (16 if f0 == 14 else 0))
                    A.e("s_waitcnt lgkmcnt(0)")
                    if f0 < 14:
                        for f in (f0, f0 + 1):
                            for q in range(2): A.e(f"ds_write_b128 v{V_WO}, {vr(96+(f-f0)*8+q*4,4)} offset:{LV(f) + q*1024}")
                        A.e("s_waitcnt lgkmcnt(0)")
                for f in (14, 15):
                    for q in range(2): A.e(f"ds_write_b128 v{V_WO}, {vr(112+(f-14)*8+q*4,4)} offset:{LV(f) + q*1024}")
                for q in range(12): A.e(f"ds_write_b128 v{V_WO}, {vr(48+q*4,4)} offset:{LO(0) + q*1024}")
                A.e("s_waitcnt lgkmcnt(0)")
    npf = {}
    park = lambda f: (160 if f < 10 else 224 - 32) + (f - 6) * 8
    if O.SST: sstamp(A, 15, 1)
    issue(0); issue(1)
    for st in range(8):
        A.e(f"s_waitcnt vmcnt({16 + npf[st+1] if st < 7 else 0})")
        if O.SST: sstamp(A, 15, 2 * st)
        read(st)
        if O.SST and st: sstamp(A, 15, 2 * st + 1)
        if st + 2 < 8: issue(st + 2)
        if O.VO1 and st == 6:
            for f in range(6, 14):
                for q in range(2): A.e(f"ds_write_b128 v{V_WO}, {ar(park(f)+q*4,4)} offset:{LV(f) + q*1024}")
                if f == 11: A.e("s_waitcnt lgkmcnt(0)")
            A.e("s_waitcnt lgkmcnt(0)")
        if O.VO1 and st == 7:
            for f in (14, 15):
                for q in range(2): A.e(f"ds_write_b128 v{V_WO}, {vr(96+(f-14)*8+q*4,4)} offset:{LV(f) + q*1024}")
            for q in range(12):
                A.e(f"ds_write_b128 v{V_WO}, {vr(48+q*4,4)} offset:{LO(0) + q*1024}")
                if q == 7: A.e("s_waitcnt lgkmcnt(2)")
    if O.SST: sstamp_out(A, 15, 57)
    w23 = A.newlabel("w23"); jn = A.newlabel("jn")
    A.e(f"""
    v_and_b32 v23, 1, v21
    v_mov_b32 v{V_IDX}, 0x4444
    v_mov_b32 v24, 0xeeee
    v_cmp_eq_u32 vcc, 1, v23
    v_cndmask_b32 v{V_IDX}, v{V_IDX}, v24, vcc
    v_lshlrev_b32 v23, 1, v22
    v_sub_u32 v23, v21, v23            ; lam - 2g
    v_mov_b32 v{V_SEL}, 0
    v_mov_b32 v24, 0x3f80
    v_cmp_eq_u32 vcc, 0, v23
    v_cndmask_b32 v{V_SEL}, v{V_SEL}, v24, vcc
    v_mov_b32 v24, 0x3f800000
    v_cmp_eq_u32 vcc, 1, v23
    v_cndmask_b32 v{V_SEL}, v{V_SEL}, v24, vcc
    s_and_b32 s64, s50, 1
    s_lshl_b32 s64, s64, 11
    v_lshl_add_u32 v{V_L4}, v20, 2, s64
    v_and_b32 v23, 7, v21              ; i
    v_lshrrev_b32 v24, 3, v21
    v_lshlrev_b32 v25, 8, v24
    v_lshl_add_u32 v25, v22, 6, v25
    v_lshl_add_u32 v{V_PRD}, v23, 2, v25   ; p store: (e>>3)*256 + 2g*32 + (e&7)*4
    v_lshrrev_b32 v25, 1, v22
    v_lshl_add_u32 v25, v25, 3, v23
    v_lshlrev_b32 v25, 5, v25
    v_and_b32 v26, 1, v22
    v_lshl_add_u32 v{V_OST}, v26, 4, v25   ; o store: ((g>>1)*8+i)*32 + (g&1)*16
    v_lshl_add_u32 v27, v22, 3, v23
    v_lshlrev_b32 v27, 4, v27          ; (g*8+i)*16
    s_mov_b32 s80, {f2u(SCL):#x}
    s_mov_b32 s81, 0xfffffffe
    s_mov_b32 s84, {HALF}
    s_mov_b32 s85, {HALF}
    s_mov_b32 s86, -1
    s_mov_b32 s87, 0
    s_cmp_gt_u32 s50, 1
    s_cselect_b32 s82, {HALFH}, -1
    s_cselect_b32 s83, {HALFH}, 0
    s_lshl_b32 m0, s50, 8
    s_cmp_gt_u32 s50, 1
    s_cbranch_scc1 {w23}
    v_lshl_add_u32 v{V_A1}, v24, 9, v27    ; S poll x4
    v_lshrrev_b32 v25, 1, v22
    v_lshl_add_u32 v25, v25, 3, v23
    v_lshlrev_b32 v25, 4, v25
    v_lshl_add_u32 v26, v26, 1, v24
    v_lshl_add_u32 v{V_A2}, v26, 2, v25
    v_add_u32 v{V_A2}, 1024 + 256, v{V_A2}
    v_cndmask_b32 v{V_OST}, 2.0, v{V_OST}, s[84:85]""")
    for i in range(8): A.e(f"v_mov_b32 v{V_C+i}, {'0x3f803f80' if i < 5 else 0}")
    A.e(f"s_branch {jn}")
    A.label(w23)
    A.e(f"""
    s_sub_u32 s64, s50, 2
    s_mul_i32 s64, s64, {4*RS}
    v_lshrrev_b32 v25, 1, v22
    v_mul_u32_u24 v25, {2*RS}, v25
    v_and_b32 v28, 1, v23
    v_mul_u32_u24 v28, {RS}, v28
    v_add_u32 v25, v25, v28
    v_lshrrev_b32 v28, 1, v23
    v_lshl_add_u32 v25, v28, 6, v25
    v_lshl_add_u32 v25, v26, 5, v25
    v_mul_u32_u24 v28, {T_K}, v24
    v_add3_u32 v{V_A1}, v25, v28, s64
    v_cndmask_b32 v{V_A2}, 2.0, v27, s[84:85]""")
    for i in range(4): A.e(f"v_mov_b32 v{V_C+i}, -1")
    A.label(jn)

def rec_bases(A):
    A.e(f"""
    s_lshl_b32 s64, s58, 14
    s_lshl_b32 s65, s50, 12
    s_add_u32 s70, s64, s65
    s_add_u32 s70, s70, {R_PL}
    s_lshl_b32 s65, s59, 9
    s_add_u32 s71, s64, s65
    s_add_u32 s71, s71, {R_PL}
    s_xor_b32 s64, s58, 1
    s_lshl_b32 s64, s64, 15
    s_lshr_b32 s65, s50, 1
    s_lshl_b32 s65, s65, 14
    s_add_u32 s64, s64, s65
    s_and_b32 s65, s50, 1
    s_lshl_b32 s65, s65, 12
    s_add_u32 s64, s64, s65
    s_add_u32 s72, s64, s67
    s_add_u32 s72, s72, {R_PR}
    s_lshl_b32 s64, s58, 15
    s_lshr_b32 s65, s59, 4
    s_lshl_b32 s65, s65, 14
    s_add_u32 s64, s64, s65
    s_and_b32 s65, s59, 15
    s_lshl_b32 s65, s65, 9
    s_add_u32 s64, s64, s65
    s_add_u32 s73, s64, s67
    s_add_u32 s73, s73, {R_PR}
    s_cmp_eq_u32 s50, 1
    s_cselect_b32 s54, 2048 - 256, 0
    s_sub_u32 s71, s71, s54
    s_lshl_b32 s64, s58, 15
    s_lshl_b32 s65, s50, 13
    s_add_u32 s74, s64, s65
    s_add_u32 s74, s74, {R_O}           ; O gather
    s_lshl_b32 s64, s57, 10
    s_and_b32 s65, s50, 1
    s_lshl_b32 s65, s65, 9
    s_cmp_gt_u32 s50, 1
    s_cselect_b32 s65, 0, s65
    s_add_u32 s75, s64, s65
    s_add_u32 s75, s75, {R_O}
    s_lshl_b32 s64, s57, 12
    s_and_b32 s65, s64, 0xffffe000
    s_cmp_eq_u32 s50, 3
    s_cselect_b32 s66, 1536, 0
    s_add_u32 s64, s64, s66
    s_cmp_gt_u32 s50, 1
    s_cselect_b32 s76, s64, s65
    s_add_u32 s76, s76, {R_SX}
    s_lshl_b32 s64, s57, 14
    s_and_b32 s65, s50, 1
    s_lshl_b32 s66, s65, 11
    s_add_u32 s77, s64, s66
    s_cmp_gt_u32 s50, 1
    s_cselect_b32 s66, 0, 4096
    s_add_u32 s77, s77, s66
    s_add_u32 s77, s77, {QKV}
    s_lshl_b32 s66, s65, 9
    s_add_u32 s66, s66, 1024 + 128
    s_lshl_b32 s65, s65, 7
    s_cmp_gt_u32 s50, 1
    s_cselect_b32 s65, s65, s66
    s_add_u32 s78, s64, s65
    s_add_u32 s78, s78, {KVM - 128}
    s_lshl_b32 s64, s57, 6
    s_add_u32 s68, s64, s67
    s_add_u32 s69, s68, s64
    s_add_u32 s69, s69, {F_KVM}
    s_lshl_b32 s64, s50, 14
    s_add_u32 s69, s69, s64
    s_and_b32 s64, s50, 1
    s_lshl_b32 s64, s64, 11
    s_sub_u32 s69, s69, s64
    s_add_u32 s68, s68, {F_QKV}
    s_mov_b32 s79, 0
    s_mov_b32 s91, 0""")

def segoff(A, dst, sstep, add, base):
    A.e(f"""
    s_add_u32 s64, s{sstep}, {add}
    {'s_mov_b32 s64, 0' if (O.FIXX and base == 77) or (O.FIXM and base == 78) else ''}
    s_lshl_b32 s65, s64, 12
    s_and_b32 s65, s65, 0x2000
    s_xor_b32 s65, s65, s67
    {'s_xor_b32 s65, s65, 0x2000' if (O.KPAR and base == 78) else ''}
    s_lshl_b32 s64, s64, 20
    s_add_u32 s65, s65, s64
    s_add_u32 s{dst}, s65, s{base}""")

def rec_loop(A, lst, fin, nsteps=64):
    tail = []
    def stamp(i):
        if isinstance(i, str):
            if i not in O.XS: return
            i = O.XS[i]
        elif i in O.XS.values(): return
        if O.PROF in (1, 2, 5): A.e(f"{'s_memtime' if O.PROF != 1 else 's_memrealtime'} s[{2*i+24}:{2*i+25}]")
    def trace():
        if O.PROF == 6:
            A.e(f"s_memtime s[24:25]\ns_memrealtime s[26:27]\ns_waitcnt lgkmcnt(0)\nv_writelane_b32 v{TA}, s24, 0\nv_writelane_b32 v{TA}, s26, 1\nv_writelane_b32 v{TA}, s90, 2")
            A.e(f"s_lshl_b32 s64, s79, 6\ns_add_u32 s64, s64, s16\nv_lshrrev_b32 v{TB}, 2, v{V_L16}\ns_mov_b64 exec, 0xf\nbuffer_store_dword v{TA}, v{TB}, s[20:23], s64 offen\ns_mov_b64 exec, -1")
            return 6
        if O.PROF != 5: return 0
        A.e("s_waitcnt lgkmcnt(0)")
        for i in range(1, 13): A.e(f"v_writelane_b32 v{TA}, s{24+2*i}, {i}")
        A.e(f"v_writelane_b32 v{TA}, s56, 13\nv_writelane_b32 v{TA}, s51, 14")
        A.e(f"s_lshl_b32 s64, s79, 6\ns_add_u32 s64, s64, s16\nv_lshrrev_b32 v{TB}, 2, v{V_L16}\ns_mov_b64 exec, 0xffff\nbuffer_store_dword v{TA}, v{TB}, s[20:23], s64 offen\ns_mov_b64 exec, -1")
        return 8
    def cnt(k):
        if O.PROF and O.PROF != 6: A.e(f"s_add_u32 s56, s56, {1 << (8*k)}" if k < 4 else "s_add_u32 s51, s51, 1")
    def chk(b, n, nb=1):
        r = AF + b * 4
        o = [f"s_waitcnt vmcnt({n})", f"v_max3_u32 v{TA}, v{r}, v{r+1}, v{r+2}"]
        for q in range(2 * (nb - 1)): o += [f"v_max3_u32 v{TA}, v{TA}, v{r+3+2*q}, v{r+4+2*q}"]
        o += [f"v_max_u32 v{TA}, v{TA}, v{r+4*nb-1}", f"v_cmp_eq_u32 vcc, -1, v{TA}"]
        return o
    def flagwait(add, ret=False):
        ok = A.newlabel("fok"); lp = A.newlabel("flp")
        out = [f"s_add_u32 s64, s79, {add}", f"s_cmp_gt_u32 s91, s64\ns_cbranch_scc0 {lp}\n{ok}:"]
        if not ret:
            for x in out: A.e(x)
        def d():
            A.label(lp)
            A.e(f"""
            buffer_load_dword v{TA}, off, s[20:23], s68 sc1
            s_waitcnt vmcnt(0)
            v_readfirstlane_b32 s91, v{TA}
            s_cmp_gt_u32 s91, s64
            s_cbranch_scc1 {ok}
            s_sleep 2
            s_sub_u32 s90, s90, 1
            s_cmp_gt_i32 s90, 0
            s_cbranch_scc1 {lp}
            s_branch {ok}""")
        tail.append(d)
        return out
    smq = lambda t, b: f"v_smfmac_f32_16x16x64_bf16 {vr(ACC+t*4,4)}, {vr(AF+b*4,4)}, {ar(((b&3)*8+t)*8,8)}, v{V_IDX}"
    def vreg(f): return WVR + f * 8 if f < NVR else ACC + ((f - NVR) & 3) * 8
    smv = lambda i: f"v_smfmac_f32_16x16x64_bf16 {vr(ACC+32+((i>>1)&3)*4,4)}, {vr(AF+((i>>3)+4*(i&1))*4,4)}, {vr(vreg(i>>1),8)}, v{V_IDX}"
    rdV = lambda f: [f"ds_read_b128 {vr(vreg(f)+q*4,4)}, v{V_WO} offset:{LV(f)+q*1024}" for q in range(2)]
    vfill = [x for f in range(NVR, NVR + 4) for x in rdV(f)]
    def epi_v(t):
        a = ACC + 32 + t * 4
        return [f"v_add_f32 v{a}, v{a}, v{a+1}", f"v_add_f32 v{a+2}, v{a+2}, v{a+3}", f"v_cvt_pk_bf16_f32 v{a}, v{a}, v{a+2}",
                f"ds_write_addtid_b32 v{a} offset:{T_V + t*1024}"]
    def vstream(start, fillpos, extra=None, post=[]):
        out = []; extra = extra or {}
        for i in range(start, 32):
            f, r = i >> 1, i & 1
            if f >= NVR and r == 0: out.append(f"s_waitcnt lgkmcnt({2*min(3, 15-f)})")
            out.append(smv(i))
            if fillpos is not None and fillpos <= i < fillpos + 4: out += vfill[2 * (i - fillpos):2 * (i - fillpos) + 2]
            if f >= NVR and r == 1 and f + 4 < 16: out += rdV(f + 4)
            out += extra.get(i, [])
            if f"v{i}" in O.XS and O.PROF in (1, 2, 5): out.append(f"s_memtime s[{2*O.XS[f'v{i}']+24}:{2*O.XS[f'v{i}']+25}]")
            if O.EW == 0:
                if i == 30: out += epi_v(0)[:2]
                if i == 31: out += epi_v(0)[2:]
            else:
                e0 = epi_v(0); e1 = epi_v(1)
                out += {28: e0[:1], 29: e0[1:2], 30: e0[2:3], 31: e0[3:] + e1[:1]}.get(i, [])
        out += post
        if O.EW:
            out += epi_v(1)[1:3] + epi_v(2)[:3] + epi_v(3)[:3] + [epi_v(t)[3] for t in (1, 2, 3)]
        else:
            for t in range(1, 4): out += epi_v(t)
        return out
    ldA = lambda b, r=None: f"buffer_load_dwordx4 {vr(AF+b*4 if r is None else r,4)}, v{V_L16}, s[20:23], s{92 + (b>>2)} offen offset:{(b&3)*1024} sc1"
    def retry(b, br, go, rt, lds, n, k, nb=1):
        def d():
            A.label(rt)
            cnt(k)
            A.e(f"s_sub_u32 s90, s90, 1\ns_cmp_gt_i32 s90, 0\ns_cbranch_scc0 {go}")
            for x in lds: A.e(x)
            for x in chk(b, n, nb): A.e(x)
            A.e(f"s_branch {br}")
        tail.append(d)
    def epi_qk(t):
        a = ACC + t * 4; off = (T_Q if t < 4 else T_K) + (t & 3) * 2 * RS
        return [f"v_add_f32 v{a}, v{a}, v{a+1}", f"v_add_f32 v{a+2}, v{a+2}, v{a+3}",
                f"ds_write_addtid_b32 v{a} offset:{off}", f"ds_write_addtid_b32 v{a+2} offset:{off+RS}"]
    def weave(W, fin_idx, E, pre, per=4):
        seq = []; tm = 0; fin_t = {}
        va = []; oth = list(pre); nxt = 0
        def emit(x):
            nonlocal tm
            seq.append(x); tm += MFMA_WS[0] if "smfmac" in x else 1
        wr_ready = []
        for k, m in enumerate(W):
            emit(m)
            if k in fin_idx: fin_t[fin_idx.index(k)] = tm
            no_ = O.WN
            while no_ > 0 and wr_ready: emit(wr_ready.pop(0)); no_ -= 1
            while no_ > 0 and oth: emit(oth.pop(0)); no_ -= 1
            while nxt < len(E) and nxt in fin_t and tm - fin_t[nxt] >= O.WD:
                va += [(E[nxt][0], E[nxt][2]), (E[nxt][1], E[nxt][3])]; nxt += 1
            for _ in range(O.WV):
                if va: a_, w_ = va.pop(0); emit(a_); wr_ready.append(w_)
        for x in oth: emit(x)
        while nxt < len(E): va += [(E[nxt][0], E[nxt][2]), (E[nxt][1], E[nxt][3])]; nxt += 1
        for x in wr_ready: emit(x)
        for a_, w_ in va: emit(a_)
        for a_, w_ in va: emit(w_)
        for x in seq: A.e(x)
    def chkr(r):
        return [f"v_max3_u32 v{TA}, v{r}, v{r+1}, v{r+2}", f"v_max_u32 v{TA}, v{TA}, v{r+3}", f"v_cmp_eq_u32 vcc, -1, v{TA}"]
    def deferred(blocks, ld, work, back, k, temps, delta, first=True):
        cnt(k)
        for bb in blocks:
            sk = A.newlabel("dsk")
            if len(blocks) > 1: A.e(f"s_bitcmp1_b32 s55, {bb}\ns_cbranch_scc0 {sk}")
            A.e(ld(bb, AF + 4 * bb))
            A.label(sk)
        for bb in blocks:
            sk = A.newlabel("dsk"); go = A.newlabel("dgo"); lp = A.newlabel("dlp")
            T = [AF + 4 * bb] + temps(bb); n = len(T)
            A.e(f"s_bitcmp1_b32 s55, {bb}\ns_cbranch_scc0 {sk}")
            A.e(f"s_waitcnt vmcnt({n-1})")
            for x in chkr(T[0]): A.e(x)
            A.e(f"s_cbranch_vccz {go}")
            for j in range(1, n):
                A.e(f"s_nop {4*delta(bb)-1}" if delta(bb) <= 4 else f"s_nop 15\ns_nop {4*(delta(bb)-4)-1}")
                A.e(ld(bb, T[j]))
            A.label(lp)
            if O.PROF and O.PROF != 6: A.e("s_add_u32 s51, s51, 0x10000")
            cp = [A.newlabel("dcp") for _ in T]
            for j in range(n):
                A.e(f"s_waitcnt vmcnt({n-1})")
                for x in chkr(T[j]): A.e(x)
                A.e(f"s_cbranch_vccz {go if j == 0 else cp[j]}")
                A.e(ld(bb, T[j]))
            A.e(f"s_sub_u32 s90, s90, 1\ns_cmp_gt_i32 s90, 0\ns_cbranch_scc1 {lp}\ns_branch {go}")
            for j in range(1, n):
                A.label(cp[j])
                for i in range(4): A.e(f"v_mov_b32 v{T[0]+i}, v{T[j]+i}")
                A.e("s_nop 1")
                if j < n - 1: A.e(f"s_branch {go}")
            A.label(go)
            for x in work(bb): A.e(x)
            A.label(sk)
        A.e(f"s_mov_b32 s55, 0\ns_branch {back}")
    dummy = f"buffer_load_dword v{TB}, off, s[20:23], s92 sc1"
    def phaseA(tiles, win1, nv, prof):
        rsh = O.RSH
        after = {c: [] for c in range(8)}
        TJ = O.TMJ
        pre_r = []
        for j in range(4):
            if O.RP[j] < 0: pre_r.append(4 + j)
            else: after[O.RP[j]].append(4 + j)
        for x in pre_r: A.e(ldA(x))
        rq = O.RQ and len(tiles) == 8
        order = [0, 1, 2, 3] + pre_r; cntn = {}; pref = {}
        for b in range(TJ + 1):
            cntn[b] = len(order) - 1 - order.index(b if b < TJ else 7)
            if b < TJ: order.append(("d", b))
            order += after[b]
            if b == O.KB and not O.NOKVM: order += [("k", 0), ("k", 1)][:1 if O.KE else 2]
            pref[b] = list(order)
        TL = lambda b: tiles[:4] if (rq and b >= 4) else tiles
        W = {b: [smq(t, b) for t in TL(b)] for b in range(8)}
        late = {b: len(W[b]) >= 8 for b in range(8)}
        seg = {b: A.newlabel("seg") for b in range(8)}; seg2 = {b: A.newlabel("segb") for b in range(8)}
        fl = {b: A.newlabel("fl") for b in range(8)}; fl2 = {b: A.newlabel("flb") for b in range(8)}
        slow = A.newlabel("slowA"); done = A.newlabel("doneA")
        xst = lambda b: ([kvm_store, flg_store] if not O.KE else [flg_store] if O.KE == 1 else [kvm_store]) if (b == O.KB and not O.NOKVM) else []
        assert 3 <= O.KB < TJ
        def body(b, nchk, tgt, lt):
            w = W[b]; n = len(w)
            pend = [dummy] + [ldA(x) for x in after[b]] + xst(b) if b < 7 else []
            if nchk is None: pend = []
            c = nchk
            if n >= 8:
                nvv = len(c) - 1
                p = n - O.CKB[b] - (nvv - 3)
                cq = list(c)
                for k in range(n - (1 if lt else 0)):
                    A.e(w[k])
                    for _ in range(2 if len(pend) > p - k else 1):
                        if pend: A.e(pend.pop(0))
                    if k == p - 1:
                        while pend: A.e(pend.pop(0))
                        A.e(cq.pop(0))
                    if k >= p - 1 and cq: A.e(cq.pop(0))
                for x in cq: A.e(x)
            else:
                p = 1
                A.e(w[0])
                while pend: A.e(pend.pop(0))
                for x in c[:2] + [w[p]] + c[2:]: A.e(x)
                for x in w[p + 1:n]: A.e(x)
            A.e(f"s_cbranch_vccnz {tgt}")
        for x in chk(0, cntn[0]): A.e(x)
        A.e(kvm_addr.split("\n")[1] if O.KE == 1 else kvm_addr)
        A.e(f"s_cbranch_vccnz {fl2[0]}")
        nchk = lambda b: chk(b, cntn[b], 1 if b < TJ else 8 - TJ)
        for b in range(TJ + 1):
            A.label(seg[b])
            if b > 0 and late[b - 1]: A.e(W[b - 1][-1])
            A.label(seg2[b])
            if prof and b in (0, 4, TJ): stamp({0: 2, 4: 3, TJ: 4}[b])
            if b < TJ: body(b, nchk(b + 1), fl[b + 1], late[b])
            else:
                V = [smv(i) for i in range(nv)]
                w = []; fin_idx = []
                for t0 in range(0, len(tiles), O.TG):
                    for bb in range(TJ, 8):
                        for t in tiles[t0:t0 + O.TG]: w.append(smq(t, bb))
                    fin_idx += list(range(len(w) - O.TG, len(w)))
                weave(w + V, fin_idx, [epi_qk(t) for t in tiles], win1, O.PER)
        A.label(done)
        back = seg2[TJ]
        def d():
            TM = [XN, XN + 4]
            dfl = {h: A.newlabel("dfl") for h in range(1, 4)}; dseg = {h: A.newlabel("dseg") for h in range(1, 4)}
            lap2 = A.newlabel("lap2"); lfb = A.newlabel("lfb"); Ldone = A.newlabel("Ldone")
            o3 = pref[3]; yd = lambda h: len(o3) - 1 - o3.index(("d", h))
            for b in range(TJ + 1):
                A.label(fl[b])
                if b > 0 and late[b - 1]: A.e(W[b - 1][-1])
                A.label(fl2[b])
                cnt(b >> 2)
                if b < 4:
                    A.e(ldA(b)); A.e(f"s_mov_b32 s55, {1 << b}")
                    for x in after[b]: A.e(ldA(x))
                    for x in xst(b): A.e(x)
                    rp = chk(b, yd(b))
                    if b < 3:
                        for x in chk(b + 1, cntn[b + 1]): A.e(x)
                        A.e(f"s_cbranch_vccnz {dfl[b+1]}")
                        for h in range(b + 1, 4):
                            if h < 3: body(h, chk(h + 1, cntn[h + 1]), dfl[h + 1], False)
                            else: body(h, rp, lfb, False)
                    else:
                        for x in rp: A.e(x)
                        A.e(f"s_cbranch_vccnz {lfb}")
                    A.e("s_mov_b32 s55, 0")
                    w = W[b]; c = nchk(4); p = max(1, len(w) - O.CK)
                    for x in w[:p] + c + w[p:]: A.e(x)
                    A.e(f"s_cbranch_vccnz {fl2[4]}\ns_branch {seg2[4]}")
                elif b < 7:
                    k = 8 - b
                    if b < TJ: A.e(ldA(b))
                    A.e(f"s_mov_b32 s55, {(0xff << b) & 0xff}")
                    o = list(pref[b])
                    if b <= O.KB:
                        for x in xst(O.KB): A.e(x)
                        if b < O.KB and not O.NOKVM: o += [("k", 0), ("k", 1)][:1 if O.KE else 2]
                    lp = A.newlabel("rot")
                    def visit(h, n):
                        dn = A.newlabel("rdn"); fa = A.newlabel("rfa"); nx = A.newlabel("rnx")
                        A.e(f"s_bitcmp1_b32 s55, {h}\ns_cbranch_scc0 {dn}")
                        for x in chk(h, n): A.e(x)
                        A.e(f"s_cbranch_vccnz {fa}")
                        A.e(dummy)
                        A.e(f"s_bitset0_b32 s55, {h}")
                        if h < TJ:
                            for x in W[h]: A.e(x)
                        A.e(f"s_cmp_eq_u32 s55, 0\ns_cbranch_scc1 {back}\ns_branch {nx}")
                        A.label(dn)
                        A.e(dummy); A.e(f"s_branch {nx}")
                        A.label(fa)
                        A.e(ldA(h))
                        A.label(nx)
                    for h in range(b + 1 if b < TJ else b, 8):
                        visit(h, len(o) - 1 - o.index(h)); o.append(("v", h))
                    A.label(lp)
                    if O.PROF and O.PROF != 6: A.e("s_add_u32 s51, s51, 0x10000")
                    for h in range(b, 8): visit(h, k - 1)
                    A.e(f"s_sub_u32 s90, s90, 1\ns_cmp_gt_i32 s90, 0\ns_cbranch_scc1 {lp}\ns_mov_b32 s55, 0\ns_branch {back}")
                else:
                    A.e(f"s_mov_b32 s55, 0x80\ns_branch {slow}")
            for h in range(1, 4):
                A.label(dfl[h])
                A.e(ldA(h)); A.e(f"s_bitset1_b32 s55, {h}")
                for x in after[h]: A.e(ldA(x))
                for x in xst(h): A.e(x)
                if h < 3:
                    for x in chk(h + 1, cntn[h + 1]): A.e(x)
                    A.e(f"s_cbranch_vccnz {dfl[h+1]}\ns_branch {dseg[h+1]}")
                else: A.e(f"s_branch {lap2}")
            for h in range(2, 4):
                A.label(dseg[h])
                if h < 3: body(h, chk(h + 1, cntn[h + 1]), dfl[h + 1], False)
                else:
                    pend = [dummy] + [ldA(x) for x in after[h]] + xst(h)
                    for x in W[h]:
                        A.e(x)
                        if pend: A.e(pend.pop(0))
                    for x in pend: A.e(x)
            A.label(lap2)
            cnt(4)
            for h in range(4):
                sk = A.newlabel("l2s"); fa = A.newlabel("l2f")
                A.e(f"s_bitcmp1_b32 s55, {h}\ns_cbranch_scc0 {sk}")
                for x in chk(h, yd(h)): A.e(x)
                A.e(f"s_cbranch_vccnz {sk}")
                A.e(f"s_bitset0_b32 s55, {h}")
                for x in W[h]: A.e(x)
                A.label(sk)
            A.e(f"s_cmp_eq_u32 s55, 0\ns_cbranch_scc0 {lfb}")
            A.label(Ldone)
            for x in nchk(4): A.e(x)
            A.e(f"s_cbranch_vccnz {fl2[4]}\ns_branch {seg2[4]}")
            A.label(lfb)
            deferred(range(4), ldA, lambda bb: W[bb], Ldone, 4, lambda bb: TM[:O.NPL - 1], lambda bb: O.DPL, False)
            A.label(slow)
            deferred([7], ldA, lambda bb: [], back, 4, lambda bb: TM[:O.NPR - 1], lambda bb: O.DPR, False)
        tail.append(d)
    def zero(lo=0):
        for i in range(8): A.e(f"v_mov_b32 v{XC+i}, v{XN+i}")
        for i in range(lo, 48): A.e(f"v_mov_b32 v{ACC+i}, 0")
    def mzero():
        A.e(f"v_mov_b32 v{TB}, 0")
        for i in range(3): A.e(f"v_mfma_f32_16x16x1_4b_f32 {vr(ACC+16*i,16)}, v{TB}, v{TB}, 0")
    def s_frag():
        for c in range(2):
            for w in range(4): A.e(f"ds_read_b128 {vr(ACC+(c*4+w)*4,4)}, v{V_A1} offset:{w*256 + c*16}")
    def s_frag2():
        for c in range(2):
            b = ACC + c * 16
            A.e(f"s_waitcnt lgkmcnt({6-4*c})\nv_pk_add_f32 {vr(b,2)}, {vr(b,2)}, {vr(b+4,2)}\nv_pk_add_f32 {vr(b+2,2)}, {vr(b+2,2)}, {vr(b+6,2)}")
            A.e(f"s_waitcnt lgkmcnt({4-4*c})\nv_pk_add_f32 {vr(b+8,2)}, {vr(b+8,2)}, {vr(b+12,2)}\nv_pk_add_f32 {vr(b+10,2)}, {vr(b+10,2)}, {vr(b+14,2)}")
            A.e(f"v_pk_add_f32 {vr(b,2)}, {vr(b,2)}, {vr(b+8,2)}\nv_pk_add_f32 {vr(b+2,2)}, {vr(b+2,2)}, {vr(b+10,2)}")
            A.e(f"v_cvt_pk_bf16_f32 v{KEEP+2*c}, v{b}, v{b+1}\nv_cvt_pk_bf16_f32 v{KEEP+2*c+1}, v{b+2}, v{b+3}")
    def vm_read():
        for tt in range(2):
            for h in range(2): A.e(f"ds_read2st64_b32 {vr(KEEP+tt*4+2*h,2)}, v{V_L4} offset0:{(T_V + tt*1024)//256 + 2*h} offset1:{(T_V + tt*1024)//256 + 2*h + 1}")
    def vm_sum():
        for i in range(4): A.e(f"v_mov_b32 v{PK+i}, v{V_SEL}")
        for tt in range(2): A.e(f"v_mfma_f32_16x16x32_bf16 {vr(KEEP+4*tt,4)}, {vr(PK,4)}, {vr(KEEP+4*tt,4)}, 0")
        for i in range(4): A.e(f"v_cvt_pk_bf16_f32 v{KEEP+i}, v{KEEP+2*i}, v{KEEP+2*i+1}")
    kvm_store = f"buffer_store_dwordx4 {vr(KEEP,4)}, v{PK}, s[20:23], s101 offen sc1"
    flg_store = f"buffer_store_dword v{VF}, v{PK+1}, s[20:23], s69 offen sc1"
    kvm_addr = f"v_cndmask_b32 v{PK}, 2.0, v{V_L16}, s[82:83]\nv_cndmask_b32 v{PK+1}, 2.0, v{V_L4}, s[86:87]"
    loop = A.newlabel("loop"); last = A.newlabel("last"); np0 = A.newlabel("np0"); z1 = A.newlabel("z1"); loop0 = A.newlabel("loop0")
    A.e(f"""
    s_mov_b32 s55, 0
    s_cmp_lg_u32 s50, 0
    s_cbranch_scc1 {np0}
    v_mov_b32 v{PK}, 0
    v_mov_b32 v{PK+1}, 0
    s_cmp_lg_u32 s58, 0
    s_cbranch_scc1 {z1}
    v_lshrrev_b32 v{TA}, 6, v{V_L4}
    v_lshlrev_b32 v{TA}, 12, v{TA}
    v_bfe_u32 v{TB}, v{V_L4}, 1, 5
    v_add_u32 v{TA}, v{TA}, v{TB}
    s_lshl_b32 s64, s59, 6
    buffer_load_ushort v{PK}, v{TA}, s[44:47], s64 offen
    buffer_load_ushort v{PK+2}, v{TA}, s[44:47], s64 offen offset:32
    buffer_load_ushort v{PK+1}, v{TA}, s[44:47], s64 offen offset:2048
    buffer_load_ushort v{PK+3}, v{TA}, s[44:47], s64 offen offset:2080
    s_waitcnt vmcnt(0)
    v_lshl_or_b32 v{PK}, v{PK+2}, 16, v{PK}
    v_lshl_or_b32 v{PK+1}, v{PK+3}, 16, v{PK+1}
    v_min_u32 v{PK}, s81, v{PK}
    v_min_u32 v{PK+1}, s81, v{PK+1}""")
    A.label(z1)
    def pstore(sr_, sl_):
        A.e(f"buffer_store_dword v{PK}, v{V_PRD}, s[20:23], s{sl_} offen {lst}\nbuffer_store_dword v{PK+1}, v{V_PRD}, s[20:23], s{sl_} offen offset:32 {lst}")
        A.e(f"buffer_store_dword v{PK}, v{V_PRD}, s[20:23], s{sr_} offen sc1\nbuffer_store_dword v{PK+1}, v{V_PRD}, s[20:23], s{sr_} offen offset:32 sc1")
    pstore(73, 71)
    A.label(np0)
    A.e(f"""
    v_lshrrev_b32 v{TA}, 2, v{V_L16}
    v_bfe_u32 v{TB}, v{TA}, 5, 1
    v_mul_u32_u24 v{TB}, {PODD - 32}, v{TB}
    s_and_b32 s64, s50, 1
    s_lshl_b32 s64, s64, 5
    v_add3_u32 v{V_PRD}, v{TA}, v{TB}, s64""")
    flagwait(0)
    segoff(A, 99, 79, 0, 77)
    A.e(f"""
    buffer_load_dwordx4 {vr(XN,4)}, v{V_L16}, s[20:23], s99 offen
    buffer_load_dwordx4 {vr(XN+4,4)}, v{V_L16}, s[20:23], s99 offen offset:1024
    s_waitcnt vmcnt(0)
    s_mov_b32 s92, s70
    s_mov_b32 s93, s72
    s_mov_b32 s94, s76
    s_add_u32 s95, s94, 4096
    s_mov_b32 s96, s74
    s_add_u32 s97, s96, 4096
    s_mov_b32 s98, s75
    s_barrier""")
    zero()
    A.e(f"s_cmp_gt_u32 s50, 1\ns_cbranch_scc0 {loop0}x")
    ja = A.newlabel("ja")
    A.label(loop)
    mzero()
    delay(A, O.DL - 6 - trace())
    stamp(0)
    def lloads():
        for b in range(4):
            A.e(ldA(b))
            if b < 3 and O.LI: A.e(f"s_nop {O.LI-1}")
    lloads()
    for i in range(8): A.e(f"v_mov_b32 v{XC+i}, v{XN+i}")
    A.e(f"s_branch {ja}")
    A.label(loop0 + "x")
    mzero()
    delay(A, O.DL0 - 6 - trace())
    stamp(0)
    lloads()
    A.label(ja)
    A.e(f"v_mov_b32 v{VF}, s79" if O.KE == 1 else f"s_max_u32 s66, s79, 1\ns_sub_u32 s66, s66, 1" + (f"\nv_mov_b32 v{VF}, s66" if O.KE == 0 else ""))
    fl2 = [f"v_mov_b32 v{TA}, s79", "s_waitcnt vmcnt(3)", f"buffer_store_dword v{TA}, v{PK+1}, s[20:23], s69 offen sc1"] if O.KE == 2 else []
    if O.MEAS: A.e("s_cmp_eq_u32 s79, 9\ns_cselect_b32 s61, s62, s61\ns_memtime s[62:63]")
    segoff(A, 101, 79 if O.KE == 1 else 66, 0, 78)
    A.e(f"s_cmp_eq_u32 s79, {nsteps-1}\ns_cbranch_scc1 {last}")
    if O.PROF in (1, 2, 5): A.e("s_waitcnt lgkmcnt(0)\ns_mov_b32 s26, s24")
    fw = flagwait(1, O.LFW)
    segoff(A, 99, 79, 1, 77)
    win1 = (fw if O.LFW else []) + [f"buffer_load_dwordx4 {vr(XN,4)}, v{V_L16}, s[20:23], s99 offen", f"buffer_load_dwordx4 {vr(XN+4,4)}, v{V_L16}, s[20:23], s99 offen offset:1024",
            f"buffer_load_dword v{VF}, off, s[20:23], s68 sc1",
            f"s_add_u32 s64, s79, 2", f"s_and_b32 s64, s64, {XR-1}", f"s_lshl_b32 s100, s64, 19"]
    if O.NOX: win1 = win1[3:]
    delay(A, O.WL)
    phaseA(list(range(8)), win1, O.NV1, True)
    A.e("s_waitcnt lgkmcnt(0)\ns_barrier")
    stamp(5)
    w23 = A.newlabel("w23"); ogo = A.newlabel("ogo")
    A.e(f"s_cmp_gt_u32 s50, 1\ns_cbranch_scc1 {w23}")
    nf = A.newlabel("nf")
    A.e(smv(O.NV1))
    TSET = [([AF, AF + 16, AF + 4, AF + 20], PK), ([AF + 8, AF + 24, AF + 12, AF + 28], ACC + 28)]
    def ldSet(k):
        TS, M = TSET[k]
        o = [f"buffer_load_dwordx4 {vr(TS[p],4)}, v{V_A1}, s[20:23], s{94+(p>>1)} offen offset:{(p&1)*1536} sc1" for p in range(4)]
        return o + [f"buffer_load_dword v{M+p}, v{V_A2}, s[20:23], s{94+(p>>1)} offen offset:{(p&1)*1536} sc1" for p in range(4)]
    ldS = ldSet(0)
    assert O.DS >= 16
    ex = {}; restS = []
    if fl2: ex[O.NV1 + O.KF] = fl2[:1]; ex[O.NV1 + O.KF + 1] = fl2[1:]
    for k, x in enumerate(ldS):
        if O.DS + k < 32: ex[O.DS + k] = [x]
        else: restS.append(x)
    if O.DS <= 32:
        for x in vstream(O.NV1 + 1, O.VPF, ex, restS): A.e(x)
    else:
        for x in vstream(O.NV1 + 1, O.VPF, ex): A.e(x)
        delay(A, O.DS - 32)
        for x in restS: A.e(x)
    stamp(6)
    if O.S2:
        delay(A, O.DS2)
        for x in ldSet(1): A.e(x)
    stamp("S1iss")
    if O.B2POS == 0: A.e("s_waitcnt lgkmcnt(0)\ns_barrier"); vm_read()
    sp = A.newlabel("sp"); sok = A.newlabel("sok"); srt = A.newlabel("srt")
    mx, t_ = TA, TB
    T = AF; T4 = PK
    DPP8 = "row_ror:8 row_mask:0xf bank_mask:0xf"
    def schk(k, extra):
        TS, M = TSET[k]; U = TS[2]; X = TS[0]
        A.e(f"""
        s_waitcnt vmcnt({6+extra})""")
        if k == 0: stamp("Sarr")
        A.e(f"""
        v_pk_add_f32 {vr(X,2)}, {vr(X,2)}, {vr(TS[1],2)}
        v_pk_add_f32 {vr(X+2,2)}, {vr(X+2,2)}, {vr(TS[1]+2,2)}
        s_waitcnt vmcnt({4+extra})""")
        if k == 0: stamp("Sarr2")
        A.e(f"""
        v_pk_add_f32 {vr(U,2)}, {vr(U,2)}, {vr(TS[3],2)}
        v_pk_add_f32 {vr(U+2,2)}, {vr(U+2,2)}, {vr(TS[3]+2,2)}
        v_pk_add_f32 {vr(X,2)}, {vr(X,2)}, {vr(U,2)}
        v_pk_add_f32 {vr(X+2,2)}, {vr(X+2,2)}, {vr(U+2,2)}
        v_max3_f32 v{mx}, v{X}, v{X+1}, v{X+2}
        v_pk_add_f32 {vr(U,2)}, {vr(X,2)}, {vr(X+2,2)}
        s_waitcnt vmcnt({extra})""")
        if k == 0: stamp("Sarr3")
        A.e(f"""
        v_pk_add_f32 {vr(M,2)}, {vr(M,2)}, {vr(M+2,2)}
        v_add_f32 v{M}, v{M}, v{M+1}
        v_max3_f32 v{mx}, v{mx}, v{X+3}, v{M}
        v_add_f32 v{U}, v{U}, v{M}
        v_cmp_u_f32 vcc, v{U}, v{U+1}
        v_max_f32_dpp v{mx}, v{mx}, v{mx} {DPP8}
        v_mov_b32 v{t_}, v{mx}""")
    A.label(sp)
    schk(0, 8 if O.S2 else 0)
    A.e(f"s_cbranch_vccnz {srt}")
    A.label(sok)
    def d():
        A.label(srt)
        cnt(2)
        A.e(f"s_sub_u32 s90, s90, 1\ns_cmp_gt_i32 s90, 0\ns_cbranch_scc0 {sok}")
        if O.S2:
            y2 = A.newlabel("y2")
            schk(1, 0)
            A.e(f"s_cbranch_vccnz {y2}")
            for i in range(4): A.e(f"v_mov_b32 v{T+i}, v{TSET[1][0][0]+i}")
            A.e(f"v_mov_b32 v{T4}, v{TSET[1][1]}\ns_branch {sok}")
            A.label(y2)
            for x in ldSet(0): A.e(x)
            delay(A, 4)
            for x in ldSet(1): A.e(x)
        else:
            for x in ldS: A.e(x)
        A.e(f"s_branch {sp}")
    tail.append(d)
    stamp(7)
    PF = ACC; PM = ACC + 4; OD = ACC + 8; SD = ACC + 16
    A.e(f"""
    v_permlane16_swap_b32 v{t_}, v{mx}
    v_max_f32 v{mx}, v{mx}, v{t_}
    v_mov_b32 v{t_}, v{mx}
    v_permlane32_swap_b32 v{t_}, v{mx}
    v_max_f32 v{mx}, v{mx}, v{t_}
    v_mul_f32 v{mx}, s80, v{mx}""")
    vals = [T, T + 1, T + 2, T + 3, T4]
    for v in vals: A.e(f"v_fma_f32 v{v}, v{v}, s80, -v{mx}")
    def b2(pos):
        if O.B2POS == pos: A.e("s_waitcnt lgkmcnt(0)\ns_barrier"); vm_read()
    b2(1)
    stamp("pB2")
    SU = SD + 2
    for v in vals[:4]: A.e(f"v_exp_f32 v{v}, v{v}")
    A.e(f"""
    v_cvt_pk_bf16_f32 v{PF}, v{T}, v{T+1}
    v_cvt_pk_bf16_f32 v{PF+1}, v{T+2}, v{T+3}
    v_exp_f32 v{T4}, v{T4}
    v_mov_b32_dpp v{PF+2}, v{PF} {DPP8}
    v_mov_b32_dpp v{PF+3}, v{PF+1} {DPP8}""")
    b2(2)
    A.e(f"""
    v_mov_b32_dpp v{T4+1}, v{T4} {DPP8}
    v_cvt_pk_bf16_f32 v{PM}, v{T4}, v{T4+1}
    v_mfma_f32_16x16x32_bf16 {vr(SD,4)}, {vr(V_C,4)}, {vr(PF,4)}, 0
    v_mov_b32 v{PM+1}, v{PM}
    v_mfma_f32_16x16x32_bf16 {vr(OD,4)}, {vr(XC,4)}, {vr(PF,4)}, 0
    v_mov_b32 v{PM+2}, v{PM}
    v_mov_b32 v{PM+3}, v{PM}
    v_mfma_f32_16x16x32_bf16 {vr(OD+4,4)}, {vr(XC+4,4)}, {vr(PF,4)}, 0
    v_mfma_f32_16x16x32_bf16 {vr(SD,4)}, {vr(V_C+4,4)}, {vr(PM,4)}, {vr(SD,4)}""")
    stamp("pv1")
    b2(3)
    A.e(f"""
    s_waitcnt lgkmcnt(0)
    v_mfma_f32_16x16x32_bf16 {vr(OD,4)}, {vr(KEEP,4)}, {vr(PM,4)}, {vr(OD,4)}
    v_mfma_f32_16x16x32_bf16 {vr(OD+4,4)}, {vr(KEEP+4,4)}, {vr(PM,4)}, {vr(OD+4,4)}
    v_rcp_f32 v{SU}, v{SD}""")
    stamp("pv2")
    rdW = [f"ds_read_b128 {vr(ACC+q*4,4)}, v{V_WO} offset:{LO(0)+q*1024}" for q in range(12)]
    for i in range(4): A.e(f"v_pk_mul_f32 {vr(OD+2*i,2)}, {vr(OD+2*i,2)}, {vr(SU,2)} op_sel_hi:[1,0]")
    for i in range(4): A.e(f"v_cvt_pk_bf16_f32 v{PK+i}, v{OD+2*i}, v{OD+2*i+1}")
    A.e(f"buffer_store_dwordx4 {vr(PK,4)}, v{V_OST}, s[20:23], s98 offen {lst}")
    stamp(8)
    ldO = lambda b, r=None: f"buffer_load_dwordx4 {vr(AF+b*4 if r is None else r,4)}, v{V_L16}, s[20:23], s{96 + (b>>2)} offen offset:{(b&3)*1024} sc1"
    book = f"""s_add_u32 s79, s79, 1
    s_and_b32 s64, s79, {XR-1}
    s_lshl_b32 s64, s64, 19
    s_lshl_b32 s65, s79, 8
    s_and_b32 s65, s65, 0x2000
    s_lshl_b32 s66, s79, 16
    s_xor_b32 s88, s73, s65
    s_add_u32 s88, s88, s66
    s_sub_u32 s88, s88, s54
    s_add_u32 s89, s71, s64
    s_add_u32 s92, s70, s64
    s_xor_b32 s93, s72, s65
    s_add_u32 s93, s93, s66
    s_add_u32 s94, s76, s64
    s_add_u32 s95, s94, 4096
    s_add_u32 s98, s75, s64
    s_add_u32 s60, s74, s64""".split("\n")
    def oloads(fill):
        fill = list(fill)
        for b in range(8):
            A.e(ldO(b))
            if b < 7 and O.OI:
                n = O.OI
                while n > 0 and fill:
                    x = fill.pop(0); A.e(x); n -= 4 if "mfma" in x else (int(x.split()[1]) + 1 if "s_nop" in x else 1)
                if n > 0: A.e(f"s_nop {n-1}")
        for x in fill: A.e(x)
    A.e("s_barrier")
    for x in rdW + [f"v_mov_b32 v{XC+i}, 0" for i in range(8)]: A.e(x)
    delay(A, O.DO01)
    stamp(9)
    i0 = len(A.lines); vm_sum(); VS = [x.strip() for x in A.lines[i0:]]; del A.lines[i0:]
    oloads(VS[:6] + book + VS[6:])
    A.e(f"s_branch {ogo}")
    A.label(w23)
    s_frag()
    for x in fl2: A.e(x)
    for i in range(O.NV1, O.NV1 + O.NV2): A.e(smv(i))
    stamp("sf1")
    s_frag2()
    stamp("sf2")
    SD2 = [KEEP + 4, PK, V_C + 4]
    A.e(f"""
    v_mfma_f32_16x16x32_bf16 {vr(SD2[0],4)}, {vr(XC,4)}, {vr(KEEP,4)}, 0
    v_mfma_f32_16x16x32_bf16 {vr(SD2[1],4)}, {vr(XC+4,4)}, {vr(KEEP,4)}, 0
    v_mfma_f32_16x16x32_bf16 {vr(SD2[2],4)}, {vr(KEEP,4)}, {vr(KEEP,4)}, 0""")
    for x in vfill[:5]: A.e(x)
    A.e(f"""
    buffer_store_dwordx4 {vr(SD2[0],4)}, v{V_A2}, s[20:23], s94 offen {lst}
    buffer_store_dwordx4 {vr(SD2[1],4)}, v{V_A2}, s[20:23], s94 offen offset:512 {lst}
    buffer_store_dwordx4 {vr(SD2[2],4)}, v{V_A2}, s[20:23], s94 offen offset:1024 {lst}""")
    stamp(6)
    for x in vfill[5:]: A.e(x)
    for x in vstream(O.NV1 + O.NV2, None): A.e(x)
    stamp("vend")
    for i in range(O.KW2): A.e(f"v_mfma_f32_16x16x32_bf16 {vr(AF+16,4)}, {vr(AF,4)}, {vr(AF,4)}, {vr(AF+16,4)}")
    A.e("s_waitcnt lgkmcnt(0)\ns_barrier")
    stamp(7)
    for x in rdW: A.e(x)
    A.e(f"""
    s_add_u32 s65, s76, s100
    s_add_u32 s66, s75, s100
    s_add_u32 s64, s71, s100
    s_cmp_eq_u32 s50, 2
    s_cselect_b32 s66, s66, s64
    buffer_store_dwordx4 {vr(V_C,4)}, v{V_L16}, s[20:23], s65 offen {lst}
    s_cmp_eq_u32 s50, 2
    s_cselect_b32 exec_hi, -1, 0
    buffer_store_dwordx4 {vr(V_C,4)}, v{V_L16}, s[20:23], s66 offen {lst}
    s_mov_b32 exec_hi, 0
    buffer_store_dwordx4 {vr(V_C,4)}, v{V_L16}, s[20:23], s65 offen offset:1024 {lst}
    s_mov_b64 exec, -1""")
    for i in range(8): A.e(f"v_mov_b32 v{XC+i}, 0")
    A.e("s_barrier")
    stamp(8)
    delay(A, O.DO)
    stamp(9)
    oloads(book)
    A.label(ogo)
    A.e("s_waitcnt lgkmcnt(0)")
    delay(A, O.WO)
    smo = lambda t, b: f"v_smfmac_f32_16x16x64_bf16 {vr(XC+t*4,4)}, {vr(AF+b*4,4)}, {vr((ACC+b*16 if b < 3 else wo_reg(b))+t*8,8)}, v{V_IDX}"
    groups = [(0, 2), (2, 2), (4, 2), (6, 1), (7, 1)] if O.OPAIR else [(b, 1) for b in range(8)]
    def ophase():
        F = [A.newlabel("of") for _ in groups]; N = [A.newlabel("on") for _ in groups]
        slow = A.newlabel("oslow"); back = A.newlabel("oback")
        work = lambda gi: [smo(t, bb) for bb in range(groups[gi][0], groups[gi][0] + groups[gi][1]) for t in range(2)]
        gchk = lambda gi, ex: chk(groups[gi][0], 8 - groups[gi][0] - groups[gi][1] + ex, groups[gi][1])
        mask = lambda gi: ((1 << groups[gi][1]) - 1) << groups[gi][0]
        rfl = [] if O.NOX else [f"v_readfirstlane_b32 s91, v{VF}"]
        for x in gchk(0, 0): A.e(x)
        A.e(f"s_cbranch_vccnz {F[0]}")
        ng = len(groups)
        for gi in range(ng):
            if gi in (0, ng - 1): stamp(10 if gi == 0 else 11)
            for x in work(gi): A.e(x)
            if gi == 0:
                for x in rfl: A.e(x)
            if gi + 1 < ng:
                for x in gchk(gi + 1, 0): A.e(x)
                A.e(f"s_cbranch_vccnz {F[gi+1]}")
        A.label(back)
        def d():
            lap2 = A.newlabel("olap2")
            yd = lambda h: sum(groups[j][1] for j in range(h + 1, ng))
            dumO = f"buffer_load_dword v{PK}, off, s[20:23], s96 sc1"
            for gi, (b, nb) in enumerate(groups):
                A.label(F[gi])
                cnt(3)
                A.e(f"s_mov_b32 s55, {mask(gi)}")
                if gi == ng - 1: A.e(f"s_branch {slow}"); continue
                for bb in range(b, b + nb): A.e(ldO(bb))
                if gi == 0:
                    for x in rfl: A.e(x)
                ex = nb; stubs = []
                for h in range(gi + 1, ng):
                    st = A.newlabel("ost"); rt = A.newlabel("ort")
                    for x in gchk(h, ex): A.e(x)
                    A.e(f"s_cbranch_vccnz {st}")
                    w = work(h)
                    for k, x in enumerate(w):
                        A.e(x)
                        if k < groups[h][1]: A.e(dumO)
                    A.label(rt)
                    stubs.append((h, st, rt)); ex += groups[h][1]
                nf = A.newlabel("onf")
                for x in chk(b, yd(gi), nb): A.e(x)
                A.e(f"s_cbranch_vccnz {lap2}\ns_andn2_b32 s55, s55, {mask(gi)}")
                for x in work(gi): A.e(x)
                A.e(f"s_cbranch_scc0 {back}\ns_branch {lap2}")
                for h, st, rt in stubs:
                    A.label(st)
                    for bb in range(groups[h][0], groups[h][0] + groups[h][1]): A.e(ldO(bb))
                    A.e(f"s_or_b32 s55, s55, {mask(h)}\ns_branch {rt}")
            A.label(lap2)
            cnt(4)
            for h in range(ng):
                sk = A.newlabel("l2s")
                A.e(f"s_bitcmp1_b32 s55, {groups[h][0]}\ns_cbranch_scc0 {sk}")
                for x in chk(groups[h][0], yd(h), groups[h][1]): A.e(x)
                A.e(f"s_cbranch_vccnz {sk}")
                A.e(f"s_andn2_b32 s55, s55, {mask(h)}")
                for x in work(h): A.e(x)
                A.label(sk)
            A.e(f"s_cmp_eq_u32 s55, 0\ns_cbranch_scc1 {back}")
            A.label(slow)
            deferred(range(8), ldO, lambda bb: [smo(0, bb), smo(1, bb)], back, 4, lambda bb: [KEEP + 4, PK][:O.NPL - 1], lambda bb: O.DPL)
        tail.append(d)
    ophase()
    kst = f"v_cndmask_b32 v{TA}, 2.0, v{V_L16}, s[82:83]\nbuffer_store_dwordx4 {vr(KEEP,4)}, v{TA}, s[20:23], s101 offen sc1"
    if O.KE == 1 and O.KEP == 0: A.e(kst)
    for t in range(2):
        a = XC + t * 4
        A.e(f"v_add_f32 v{a}, v{a}, v{a+1}\nv_add_f32 v{a+2}, v{a+2}, v{a+3}")
    for t in range(2):
        for u in range(2): A.e(f"ds_write_addtid_b32 v{XC+t*4+2*u} offset:{T_P + u*PODD + t*1024}")
    if O.KE == 1 and O.KEP == 1: A.e(kst)
    A.e(f"s_mov_b32 s96, s60\ns_add_u32 s97, s60, 4096\ns_cmp_gt_u32 s50, 1\ns_waitcnt lgkmcnt(0)\ns_barrier")
    stamp("B3")
    A.e(f"s_cbranch_scc1 {loop}")
    for w in range(4): A.e(f"ds_read2st64_b32 {vr(ACC+2*w,2)}, v{V_PRD} offset0:{T_P//256 + w} offset1:{T_P//256 + 4 + w}")
    for i in range(8): A.e(f"v_mov_b32 v{XC+i}, v{XN+i}")
    A.e(f"""
    s_waitcnt lgkmcnt(2)
    v_pk_add_f32 {vr(ACC,2)}, {vr(ACC,2)}, {vr(ACC+2,2)}
    s_waitcnt lgkmcnt(0)
    v_pk_add_f32 {vr(ACC+4,2)}, {vr(ACC+4,2)}, {vr(ACC+6,2)}
    v_pk_add_f32 {vr(ACC,2)}, {vr(ACC,2)}, {vr(ACC+4,2)}
    v_cvt_pk_bf16_f32 v{TA}, v{ACC}, v{ACC+1}
    buffer_store_dword v{TA}, v{V_L4}, s[20:23], s89 offen {lst}""")
    if O.PN: A.e(f"s_nop {O.PN-1}")
    A.e(f"buffer_store_dword v{TA}, v{V_L4}, s[20:23], s88 offen sc1")
    stamp(12)
    A.e(f"s_branch {loop0}x")
    A.label(last)
    phaseA(list(range(4, 8)), [], 8, False)
    A.e("s_waitcnt vmcnt(0) lgkmcnt(0)")
    for x in fl2: A.e(x)
    if O.FL63 and not fl2: A.e(f"v_mov_b32 v{VF}, {nsteps-1}"); A.e(flg_store)
    segoff(A, 101, 79, 0, 78)
    for x in vstream(8, 8): A.e(x)
    A.e("s_waitcnt lgkmcnt(0)\ns_barrier")
    l23 = A.newlabel("l23"); lj = A.newlabel("lj")
    A.e(f"s_cmp_gt_u32 s50, 1\ns_cbranch_scc1 {l23}")
    vm_read(); A.e("s_waitcnt lgkmcnt(0)"); vm_sum()
    A.e(f"s_branch {lj}")
    A.label(l23)
    s_frag(); s_frag2()
    A.label(lj)
    A.e(kvm_addr)
    A.e(kvm_store)
    A.e(f"s_waitcnt vmcnt(0)\ns_barrier\nv_mov_b32 v{VF}, {nsteps}")
    A.e(flg_store)
    A.e(f"s_branch {fin}")
    for f in tail: f()

def rec_standalone(A, name, par):
    A.begin_kernel(name)
    done = A.newlabel("done"); fin = A.newlabel("fin")
    A.e(f"""
    s_getreg_b32 s51, hwreg(HW_REG_XCC_ID)
    s_and_b32 s51, s51, 7
    s_cmp_ge_u32 s2, 256
    s_cbranch_scc1 {done}
    s_cmp_ge_u32 s51, 2
    s_cbranch_scc1 {done}
    s_load_dwordx8 s[4:11], s[0:1], {ARG['mem0']*8}
    s_load_dwordx2 s[12:13], s[0:1], {ARG['Wo']*8}
    s_load_dwordx2 s[18:19], s[0:1], {ARG['ws']*8}
    v_lshrrev_b32 v2, 6, v0
    s_lshr_b32 s57, s2, 3
    s_lshl_b32 s64, s51, 5
    s_add_u32 s57, s57, s64
    v_readfirstlane_b32 s50, v2
    s_mov_b32 s90, {O.BUDGET}
    s_load_dwordx2 s[16:17], s[0:1], {ARG['dbg']*8}
    s_mov_b32 s56, 0
    s_mov_b32 s51, 0
    s_waitcnt lgkmcnt(0)""")
    A.srd(20, 18, WS_BYTES)
    A.e("s_load_dword s67, s[16:17], 0\ns_waitcnt lgkmcnt(0)")
    rec_setup(A); rec_bases(A)
    A.e("s_barrier\ns_memrealtime s[52:53]\ns_memtime s[14:15]")
    for i in range(24, 44): A.e(f"s_mov_b32 s{i}, 0")
    A.e(f"s_lshl_b32 s16, s57, 2\ns_add_u32 s16, s16, s50\ns_lshl_b32 s16, s16, 12\ns_add_u32 s16, s16, {STAMP + MB}")
    rec_loop(A, "", fin)
    A.label(fin)
    A.e("s_memrealtime s[54:55]\ns_memtime s[16:17]\ns_waitcnt lgkmcnt(0)\nv_mov_b32 v20, 0\ns_sub_u32 s24, s16, s14")
    for i in range(13): A.e(f"v_writelane_b32 v20, s{24+2*i}, {i}")
    for i in range(8): A.e(f"v_writelane_b32 v20, s{26+i}, {17+i}")
    A.e("v_writelane_b32 v20, s14, 25\nv_writelane_b32 v20, s16, 26\ns_sub_u32 s62, s62, s61\nv_writelane_b32 v20, s62, 27")
    A.e(f"v_writelane_b32 v20, s52, 13\nv_writelane_b32 v20, s54, 14\nv_writelane_b32 v20, s{56 if O.PROF else 90}, 15\nv_writelane_b32 v20, s51, 16")
    A.e(f"s_lshl_b32 s64, s57, 2\ns_add_u32 s64, s64, s50\ns_lshl_b32 s64, s64, 7\ns_add_u32 s64, s64, {STAMP}\nv_lshrrev_b32 v21, 2, v{V_L16}\ns_mov_b32 exec_hi, 0\nbuffer_store_dword v20, v21, s[20:23], s64 offen")
    A.label(done)
    A.e("s_endpgm")
    A.end_kernel(512, 102, 256)
    A.launch(name, (256,), (256,), LDS_BYTES)

if __name__ == "__main__":
    out = sys.argv[1]
    A = Asm()
    variants = eval(sys.argv[2]) if len(sys.argv) > 2 else [dict()]
    base = {k: v for k, v in vars(Opt).items() if not k.startswith("_")}
    for i, v in enumerate(variants):
        for k, x in base.items(): setattr(O, k, x)
        par = v.pop("par", 0)
        for k, x in v.items(): setattr(O, k, x)
        if 'DL0' not in v: O.DL0 = max(0, O.DL - 9)
        if 'DO01' not in v: O.DO01 = max(0, O.DO - 7)
        MFMA_WS[0] = O.MWS
        rec_standalone(A, f"r{i}_p{par}_" + "_".join(f"{k}{int(x) if not isinstance(x, tuple) else ''.join('m' if y < 0 else str(y) for y in x)}" for k, x in v.items() if k != "XS") + "_kernel", par)
    A.lines = fix_hazards(A.lines)
    t = A.text()
    open(out, "w").write(t)
    check_hazards(t)
```

```python
import sys
sys.path.insert(0, "..")
from asmgen import *
from lay import *
import rec6
from rec6 import f2u, LOG2E, SCL
NAME = "adaLN_cond__memory_aug_recurrent_mem_tr__mixer_s_mlp__prompt"
GELU_C0 = -2.0 * 0.7978845608028654 * LOG2E
GELU_C1 = GELU_C0 * 0.044715
NEG = 0xff800000
class F:
    PROF = 0; PSL = 4; QD = 5; QM = 46; GD = 6; GM = 22; ABAR = 1; BUD = 40000; FORCE_SLOW = 0; FORCE_FB = 0; VSL = 8; ROT = 0; P2 = 1; GS = 1; NL = 1; G1 = 1; G2 = 9; WB = 12; TC = 8; WV = 1; FB = 8; WE = 8; FH = 1; K3 = 2; XS = 0; SB = 5; LLO = 3; LHI = 30; FP4 = 20; PO = 2; PHI = 62; FDL = 0; RSP = 50; BD = 3; QM4 = 40; PA = 4; TRU = 0; Q0 = 14; H3 = 3; OD = 2; WD = 3; PPR = 12; PPN = 20; FP = 16; A0 = 4; WB3 = 8; FD = 44; Q1 = 28; Q2R = 6; Q2N = 22; FREE = 0; XW = 0; SPS = 1; ASL = 4; QROT = 0; BTH = 3; X2 = 0; NFL2 = 6; Q4 = 1; BPF = 0; BORD = [(2,3),(3,3),(3,1),(2,2),(3,2),(3,0),(1,3),(0,3),(2,1),(1,2),(0,2),(1,1),(0,1),(2,0),(1,0),(0,0)]; WOPF = 0; EXP = ''; KW = 1; GATE = 1; GPRE = 10; VSL2 = 48; NFL = 10; W4G = 1; NMEAS = 8; PF = 1; XMAP = 0x76325410; LATE = 0; OFF = ()
WSRD = "s[20:23]"
D_ = D
XO = (1, 2, 3, 0)

def ldptr(A, s, name): A.e(f"s_load_dwordx2 s[{s}:{s+1}], s[0:1], {ARG[name]*8}")

def row_lanes(A, sj, R):
    A.e(f"""
    v_and_b32 v2, 3, v1                ; row3
    v_lshrrev_b32 v3, 2, v1            ; c
    s_lshl_b32 s64, s{sj}, 2
    v_add_u32 v4, s64, v2
    s_lshl_b32 s65, s50, 9
    v_lshlrev_b32 v5, 4, v3
    v_add_u32 v5, s65, v5
    v_lshl_add_u32 v{R['RM']}, v4, 11, v5
    v_lshlrev_b32 v{R['CO']}, 1, v5
    v_lshrrev_b32 v5, 2, v3            ; f3
    v_and_b32 v3, 3, v3                ; g
    s_lshl_b32 s65, s50, 13
    v_lshlrev_b32 v5, 10, v5
    v_lshl_add_u32 v5, v3, 8, v5
    v_lshl_add_u32 v5, v4, 4, v5
    v_add_u32 v{R['FR']}, s65, v5
    s_lshl_b32 s65, s50, 9
    v_lshlrev_b32 v5, 3, v1
    v_add_u32 v{R['SW']}, s65, v5
    v_lshlrev_b32 v{R['SR']}, 3, v2""")
def load_consts(A, R, idx, dst, tmp, one=False):
    for g in range(4):
        A.e(f"s_mov_b32 s64, {MOD + g*6144*4 + idx*4096}")
        for a in range(2):
            for t in range(2): A.e(f"buffer_load_dwordx4 {vr((dst if g == 0 else tmp + 16*(g-1)) + a*8 + t*4, 4)}, v{R['CO']}, {WSRD}, s64 offen offset:{a*512 + t*16} sc1")
    A.e("s_waitcnt vmcnt(0)")
    sum4(A, dst, tmp, 16, one)
def ln_core(A, V, C1, SB, T, R, lds, PK):
    s1, s2, u1, u2, t = T, T + 1, T + 2, T + 3, T + 4
    A.e(f"v_add_f32 v{s1}, v{V}, v{V+1}\nv_mul_f32 v{s2}, v{V}, v{V}\nv_add_f32 v{u1}, v{V+2}, v{V+3}\nv_mul_f32 v{u2}, v{V+1}, v{V+1}")
    A.e(f"v_fmac_f32 v{s2}, v{V+2}, v{V+2}\nv_fmac_f32 v{u2}, v{V+3}, v{V+3}")
    for i in range(4, 16, 2):
        A.e(f"v_add_f32 v{s1}, v{s1}, v{V+i}\nv_fmac_f32 v{s2}, v{V+i}, v{V+i}\nv_add_f32 v{u1}, v{u1}, v{V+i+1}\nv_fmac_f32 v{u2}, v{V+i+1}, v{V+i+1}")
    A.e(f"v_add_f32 v{s1}, v{s1}, v{u1}\nv_add_f32 v{s2}, v{s2}, v{u2}")
    for ror in (4, 8):
        for s in (s1, s2): A.e(f"v_add_f32_dpp v{s}, v{s}, v{s} row_ror:{ror} row_mask:0xf bank_mask:0xf")
    for sw in ("v_permlane16_swap_b32", "v_permlane32_swap_b32"):
        A.e(f"v_mov_b32 v{u1}, v{s1}\nv_mov_b32 v{u2}, v{s2}\n{sw} v{u1}, v{s1}\n{sw} v{u2}, v{s2}\nv_add_f32 v{s1}, v{s1}, v{u1}\nv_add_f32 v{s2}, v{s2}, v{u2}")
    A.e(f"ds_write_b64 v{R['SW']}, {vr(s1,2)} offset:{lds}\ns_waitcnt lgkmcnt(0)\ns_barrier")
    for w in range(4): A.e(f"ds_read_b64 {vr(t+2*w,2)}, v{R['SR']} offset:{lds + w*512}")
    A.e("s_waitcnt lgkmcnt(0)")
    stats_fin(A, t, s1, s2)
    for i in range(16): A.e(f"v_fma_f32 v{V+i}, v{V+i}, v{s2}, v{s1}")
    for i in range(16): A.e(f"v_fma_f32 v{V+i}, v{V+i}, v{C1+i}, v{SB+i}")
    for i in range(8): A.e(f"v_cvt_pk_bf16_f32 v{PK+i}, v{V+2*i}, v{V+2*i+1}")
def stats_fin(A, t, nm, rs, mode=0):
    A.e(f"""
    v_add_f32 v{t}, v{t}, v{t+2}
    v_add_f32 v{t+1}, v{t+1}, v{t+3}
    v_add_f32 v{t+4}, v{t+4}, v{t+6}
    v_add_f32 v{t+5}, v{t+5}, v{t+7}
    v_add_f32 v{t}, v{t}, v{t+4}
    v_add_f32 v{t+1}, v{t+1}, v{t+5}
    v_mul_f32 v{nm}, {f2u(-1/1024):#x}, v{t}
    v_mul_f32 v{t+2}, v{nm}, v{nm}
    v_mul_f32 v{t+1}, {f2u(1/1024):#x}, v{t+1}
    v_sub_f32 v{t+1}, v{t+1}, v{t+2}
    v_max_f32 v{t+1}, 0, v{t+1}
    v_add_f32 v{t+1}, {f2u(1e-5):#x}, v{t+1}
    v_rsq_f32 v{rs}, v{t+1}""")
    if mode == 0: A.e(f"v_mul_f32 v{nm}, v{nm}, v{rs}")
def unpack(A, src, dst, n):
    for i in range(n): A.e(f"v_lshlrev_b32 v{dst+2*i}, 16, v{src+i}\nv_and_b32 v{dst+2*i+1}, s73, v{src+i}")

C_M, C_M2, C_M3, C_HA, C_HB, C_PAR, C_I, C_QW = range(8)
CB0, CB1 = 64, 192
TICK = 128
def dbg_srd(A, d): A.srd(d, 2, 256)
NCP = [0]
def cpoll(A, L, req, srd=92, place=True, va=16, lds=160 * 1024 - 4096, pre=0, sl=None):
    vp = A.newlabel("vpoll"); ck = A.newlabel("vck"); rt = A.newlabel("vrt"); ok = A.newlabel("vok"); ot = A.newlabel("vot"); fin = A.newlabel("vfin")
    a, d, r, t = va, va + 1, va + 2, va + 3
    NCP[0] += 1; lds += 256 * (NCP[0] % 8)
    dbg_srd(A, srd)
    A.e(f"""
    v_mbcnt_lo_u32_b32 v{a}, -1, 0
    v_mbcnt_hi_u32_b32 v{a}, -1, v{a}
    v_mov_b32 v{r}, 0""")
    for k, val in req.items(): A.e(f"v_cmp_eq_u32 vcc, {16 + k}, v{a}\nv_cndmask_b32 v{r}, v{r}, {val}, vcc")
    A.e(f"""
    v_and_b32 v{t}, 1, v{a}
    v_cmp_eq_u32 vcc, 1, v{t}
    v_mov_b32 v{t}, {32 << 8}
    v_cndmask_b32 v{t}, -1, v{t}, vcc
    v_min_u32 v{a}, 31, v{a}
    v_lshlrev_b32 v{a}, 2, v{a}
    s_sub_u32 s66, s88, 64""")
    def placement(known, bad):
        A.e(f"""
        s_cmp_lg_u32 s56, 2
        s_cbranch_scc1 {known}
        v_cmp_eq_u32 vcc, v{d}, v{t}
        s_and_b32 s64, vcc_lo, 0xffff
        s_cmp_eq_u32 s64, {0x10000 if (F.FORCE_SLOW or F.FORCE_FB) else 0xffff}
        s_cbranch_scc1 {known}
        s_mov_b32 s65, 0""")
        for x in range(8): A.e(f"v_readlane_b32 s64, v{d}, {2*x+1}\ns_lshr_b32 s64, s64, 8\ns_add_u32 s65, s65, s64")
        A.e(f"s_cmp_ge_u32 s65, 256\ns_cbranch_scc1 {bad}")
    if place: A.e(f"s_cmp_lg_u32 s50, 0\ns_cbranch_scc1 {ot}")
    if pre:
        lp = A.newlabel("pre"); A.e(f"s_mov_b32 s64, {pre}"); A.label(lp); A.e(f"s_sleep 32\ns_sub_u32 s64, s64, 1\ns_cmp_gt_i32 s64, 0\ns_cbranch_scc1 {lp}")
    A.label(vp)
    A.e(f"buffer_load_dword v{d}, v{a}, s[{srd}:{srd+3}], s66 offen sc1\ns_waitcnt vmcnt(0)")
    if place: placement(ck, ok); A.e(f"s_branch {rt}")
    A.label(ck)
    A.e(f"v_cmp_gt_u32 vcc, v{r}, v{d}\ns_cbranch_vccz {ok}")
    A.label(rt)
    A.e(f"s_sleep {sl or F.VSL}\ns_sub_u32 s90, s90, 1\ns_cmp_gt_i32 s90, 0\ns_cbranch_scc1 {vp}")
    A.label(ok)
    if place:
        A.e(f"ds_write_b32 v{a}, v{d} offset:{lds & 0xffff}" if lds < 65536 else f"v_add_u32 v{r}, {lds}, v{a}\nds_write_b32 v{r}, v{d}")
        A.e("s_waitcnt lgkmcnt(0)")
        A.label(ot)
        A.e(f"s_barrier\nv_add_u32 v{r}, {lds}, v{a}\nds_read_b32 v{d}, v{r}\ns_waitcnt lgkmcnt(0)")
        placement(fin, L["fb"])
        A.label(fin)
        A.e("s_and_b32 s56, s56, 1")
def verify(A, L, need_par, kind="role"):
    req = {C_I: 63}
    if kind == "qkv": req[C_HA] = 64
    if kind == "mod": req.update({C_M2: 63, C_M3: 1})
    if need_par: req[C_PAR] = 1
    cpoll(A, L, req, lds=0 if kind == "rec" else 160 * 1024 - 4096, sl=F.VSL2 if kind == "mod" else None)
    A.e("s_mov_b32 s67, 0")
    if need_par: A.e(f"v_readlane_b32 s65, v17, {16 + C_PAR}\ns_and_b32 s65, s65, 2\ns_lshl_b32 s67, s65, 12")
def signal(A, k, srd=92, vt=16, sel220=None):
    sk = A.newlabel("sig")
    A.e(f"s_waitcnt vmcnt(0)\ns_barrier\ns_cmp_lg_u32 s50, 0\ns_cbranch_scc1 {sk}")
    dbg_srd(A, srd)
    A.e(f"s_add_u32 s64, s88, {4*k}")
    if sel220 is not None: A.e(f"s_add_u32 s65, s88, {4*sel220}\ns_cmp_eq_u32 s58, {GPAR}\ns_cselect_b32 s64, s65, s64")
    A.e(f"v_mov_b32 v{vt}, 1\ns_mov_b64 exec, 1\nbuffer_atomic_add v{vt}, off, s[{srd}:{srd+3}], s64 sc1\ns_mov_b64 exec, -1")
    A.label(sk)
GPAR = 220
PR1 = 8
C_X = 8
def sum4(A, dst, tmp, n, one=False):
    for i in range(0, n, 2): A.e(f"v_pk_add_f32 {vr(dst+i,2)}, {vr(dst+i,2)}, {vr(tmp+i,2)}\nv_pk_add_f32 {vr(tmp+n+i,2)}, {vr(tmp+n+i,2)}, {vr(tmp+2*n+i,2)}")
    for i in range(0, n, 2): A.e(f"v_pk_add_f32 {vr(dst+i,2)}, {vr(dst+i,2)}, {vr(tmp+n+i,2)}")
    for i in range(0, n, 2): A.e(f"v_cvt_pk_bf16_f32 v{tmp+i//2}, v{dst+i}, v{dst+i+1}")
    unpack(A, tmp, dst, n // 2)
    if one:
        for i in range(n): A.e(f"v_add_f32 v{dst+i}, 1.0, v{dst+i}")

def measure_parity(A):
    nm = A.newlabel("nomeas"); pub = A.newlabel("pub"); lp = A.newlabel("mlp")
    A.e(f"""
    s_cmp_lg_u32 s58, {GPAR}
    s_cbranch_scc1 {nm}
    s_cmp_lg_u32 s50, 0
    s_cbranch_scc1 {nm}
    s_mov_b64 exec, 1
    s_mov_b32 s65, 1
    s_cmp_eq_u32 s56, 1
    s_cbranch_scc1 {pub}
    s_mov_b32 s66, {XMEAS}
    s_mov_b32 s67, {XMEAS+8192}
    s_mov_b32 s70, 0x7fffffff
    s_mov_b32 s71, 0x7fffffff
    s_mov_b32 s72, {F.NMEAS}""")
    A.label(lp)
    for (so, acc) in ((66, 70), (67, 71)):
        A.e(f"""
        s_memtime s[94:95]
        s_waitcnt lgkmcnt(0)
        buffer_store_dword v16, off, {WSRD}, s{so} sc1
        s_waitcnt vmcnt(0)
        s_memtime s[96:97]
        s_waitcnt lgkmcnt(0)
        s_sub_u32 s96, s96, s94
        s_min_u32 s{acc}, s{acc}, s96""")
    A.e(f"s_sub_u32 s72, s72, 1\ns_cmp_gt_u32 s72, 0\ns_cbranch_scc1 {lp}\ns_cmp_gt_u32 s71, s70\ns_cselect_b32 s65, 2, 1")
    A.label(pub)
    dbg_srd(A, 92)
    A.e(f"v_mov_b32 v16, s65\ns_add_u32 s64, s88, {4*C_PAR}\nbuffer_store_dword v16, off, s[92:95], s64 sc1")
    if F.PROF: A.e(f"v_mov_b32 v16, s70\nv_mov_b32 v17, s71\ns_mov_b32 s64, {STAMP2 - 64}\nbuffer_store_dwordx2 v[16:17], off, {WSRD}, s64")
    A.e("s_mov_b64 exec, -1")
    A.label(nm)
    A.e("s_barrier")

def duty(A, L, grp):
    nh = 1 + grp
    R = dict(RM=8, CO=9, FR=10, SW=11, SR=12)
    VW, VC, VI, VL = 13, 14, 15, 24; SV = 32; XR_ = 48; AC = 80; W = 96; V = 128; C1 = 96; SB = 112; T = 208; M1 = 28
    A.e(f"s_load_dwordx4 s[4:7], s[0:1], {ARG['c']*8}"); ldptr(A, 8, "x")
    if grp: measure_parity(A)
    A.e(f"""
    s_sub_u32 s59, s58, {128 + 64*grp}
    s_and_b32 s52, s59, 15
    s_lshr_b32 s53, s59, 4
    s_lshl_b32 s64, s50, 6
    v_add_u32 v{VC}, s64, v1            ; thread
    v_lshrrev_b32 v2, 4, v{VC}
    v_and_b32 v3, 15, v{VC}
    v_mul_u32_u24 v{VW}, {16*12288}, v2
    v_lshl_add_u32 v{VW}, v3, 4, v{VW}
    s_mul_i32 s54, s53, {256*12288}
    s_lshl_b32 s64, s52, {8 + grp}
    s_add_u32 s54, s54, s64
    s_add_u32 s54, s54, {4096*grp}
    v_lshlrev_b32 v{VI}, 1, v{VC}
    s_lshl_b32 s55, s53, 9
    s_mov_b32 s60, 0
    s_mov_b32 s73, 0xffff0000
    s_sub_u32 s61, s58, 128
    s_lshl_b32 s61, s61, 15
    v_lshlrev_b32 v25, 6, v2
    v_lshlrev_b32 v{VL}, 4, v1""")
    row_lanes(A, 60, R)
    A.e("s_waitcnt lgkmcnt(0)")
    A.srd(24, 4, 2048); A.srd(28, 6, 1024 * 12288); A.srd(32, 8, S * D_ * 2)
    for i in range(4): A.e(f"v_mov_b32 v{M1+i}, -1\nv_mov_b32 v{20+i}, 0")
    def stf(base, nb, reg=M1, sh=None):
        A.e(f"s_lshl_b32 s64, s62, 2\ns_add_u32 s64, s64, s50")
        if sh: A.e(f"s_lshr_b32 s65, s64, 6\ns_lshl_b32 s65, s65, 19\ns_and_b32 s64, s64, 63")
        A.e(f"s_mul_i32 s64, s64, {nb*1024}\ns_add_u32 s64, s64, {base}")
        if sh: A.e("s_add_u32 s64, s64, s65")
        for i in range(nb):
            if i and i % 4 == 0: A.e("s_add_u32 s64, s64, 4096")
            A.e(f"buffer_store_dwordx4 {vr(reg,4)}, v{VL}, {WSRD}, s64 offen offset:{(i&3)*1024} sc1")
            if F.BTH and nb > 4: A.e(f"s_waitcnt vmcnt({F.BTH})")
    def fill1():
        stf(R_PR, PR1 // 4); stf(RING, 2, sh=1); stf(R_SX, 4, sh=1); stf(FLG, 1, 20)
    def fill2():
        stf(R_PR + PR1 * 64 * KB, 16 - PR1 // 4); stf(XP, 6)
        A.e(f"""
        s_and_b32 s64, s62, 31
        s_lshl_b32 s64, s64, 10
        s_add_u32 s64, s64, {G1 - 32768}
        s_bitcmp1_b32 s62, 5
        s_cselect_b32 s65, {(NU+1)*32768}, 0
        s_add_u32 s64, s64, s65
        buffer_store_dwordx4 v[20:23], v{VL}, {WSRD}, s64 offen sc1""")
    def fills(f):
        f1 = A.newlabel("fl1"); f2 = A.newlabel("fl2")
        A.e(f"s_cmp_eq_u32 s58, {GPAR}\ns_cbranch_scc1 {f2}\ns_mov_b32 s62, s59")
        A.label(f1); f()
        A.e(f"s_cmp_eq_u32 s62, {GPAR + 1 - 192}\ns_mov_b32 s62, {GPAR - 192}\ns_cbranch_scc1 {f1}")
        A.label(f2)
    if grp and F.BPF:
        np_ = A.newlabel("npf")
        A.e(f"s_load_dwordx8 s[36:43], s[0:1], {ARG['Wq']*8}\ns_cmp_eq_u32 s58, {GPAR}\ns_cbranch_scc1 {np_}\ns_lshl_b32 s64, s59, 2\ns_add_u32 s64, s64, s50\nv_lshlrev_b32 v16, 10, v1\nv_lshlrev_b32 v17, 7, v1\ns_waitcnt lgkmcnt(0)")
        for m in range(4): A.srd(92 if m == 3 else 68 + 4 * m, 36 + 2 * m, 8 * MB)
        sr_ = lambda m: "s[92:95]" if m == 3 else f"s[{68+4*m}:{71+4*m}]"
        A.e("s_and_b32 s65, s64, 127\ns_lshl_b32 s65, s65, 16\ns_add_u32 s65, s65, 384\ns_cmp_ge_u32 s64, 128")
        A.e("s_cselect_b64 s[44:45], s[72:73], s[68:69]\ns_cselect_b64 s[46:47], s[74:75], s[70:71]\nbuffer_load_dword v18, v16, s[44:47], s65 offen")
        A.e("s_cselect_b64 s[44:45], s[92:93], s[76:77]\nbuffer_load_dword v18, v16, s[44:47], s65 offen")
        A.e("s_lshl_b32 s65, s64, 13")
        for m, q in F.BORD[:F.BPF - 1]:
            A.e(f"s_add_u32 s66, s65, {q*2*MB}\nbuffer_load_dword v18, v17, {sr_(m)}, s66 offen")
        A.label(np_)
    if grp:
        fills(fill1)
        signal(A, C_I, sel220=C_X)
        if "b" in F.EXP: A.e("s_endpgm")
        if F.X2: fills(fill2); signal(A, C_M2, sel220=C_M3); A.e("s_endpgm")
        if F.GATE: cpoll(A, L, {C_QW: F.GATE} if F.GATE > 1 else {}, pre=F.GPRE, sl=F.VSL2)
        if F.EXP: A.e("s_endpgm")
    A.e(f"buffer_load_ushort v16, v{VI}, s[24:27], s55 offen")
    for p in range(16):
        for h in range(nh): A.e(f"buffer_load_dwordx4 {vr(W + (h*16+p)*4, 4)}, v{VW}, s[28:31], s54 offen offset:{h*256}")
        if p < 15: A.e("s_add_u32 s54, s54, 12288")
        if grp and F.BTH: A.e(f"s_waitcnt vmcnt({F.BTH})")
    for q in range(4):
        A.e(f"s_add_u32 s64, s61, {q*8192}")
        for a in range(2): A.e(f"buffer_load_dwordx4 {vr(XR_ + q*8 + a*4, 4)}, v{R['RM']}, s[32:35], s64 offen offset:{a*256}")
    NI = 0
    nw = 16 * nh
    A.e(f"""
    s_waitcnt vmcnt({nw + 8 + NI})
    v_lshlrev_b32 v16, 16, v16
    v_mul_f32 v17, {f2u(-LOG2E):#x}, v16
    v_exp_f32 v17, v17
    v_add_f32 v17, 1.0, v17
    v_rcp_f32 v17, v17
    v_mul_f32 v17, v17, v16
    v_cvt_pk_bf16_f32 v17, v17, v17
    v_and_b32 v17, s73, v17
    v_lshlrev_b32 v18, 2, v{VC}
    ds_write_b32 v18, v17 offset:8192
    s_waitcnt lgkmcnt(0)
    s_barrier""")
    for i in range(4): A.e(f"ds_read_b128 {vr(SV+4*i,4)}, v25 offset:{8192 + 16*i}")
    for i in range(8 * nh): A.e(f"v_mov_b32 v{AC+i}, 0")
    A.e("s_waitcnt lgkmcnt(0)")
    for p in range(16):
        for h in range(nh):
            A.e(f"s_waitcnt vmcnt({nw - 1 - (p*nh + h) + 8 + NI})")
            w = W + (h * 16 + p) * 4
            for j in range(4):
                t = 16 + 2 * (j & 1)
                A.e(f"v_lshlrev_b32 v{t}, 16, v{w+j}\nv_and_b32 v{t+1}, s73, v{w+j}")
                sel = p & 1
                A.e(f"v_pk_fma_f32 {vr(AC+8*h+2*j,2)}, {vr(t,2)}, {vr(SV+p-sel,2)}, {vr(AC+8*h+2*j,2)} op_sel:[0,{sel},0] op_sel_hi:[1,{sel},1]")
    A.e(f"v_lshlrev_b32 v18, 5, v{VC}")
    for h in range(nh):
        for i in range(2): A.e(f"ds_write_b128 v18, {vr(AC+8*h+4*i,4)} offset:{16384 + h*8192 + 16*i}")
    A.e(f"""
    v_and_b32 v18, 127, v{VC}
    v_lshlrev_b32 v18, 2, v18
    v_lshrrev_b32 v19, 7, v{VC}
    v_lshl_add_u32 v19, v19, {13 if grp else 31}, v18     ; group 0: both thread halves compute the same sums
    s_waitcnt lgkmcnt(0)
    s_barrier""".replace(f"v_lshl_add_u32 v19, v19, 31, v18", "v_mov_b32 v19, v18"))
    for g in range(16):
        A.e(f"ds_read_b32 v{SV+g}, v19 offset:{16384 + g*512}")
        if g == 11: A.e("s_waitcnt lgkmcnt(4)")
    A.e("s_waitcnt lgkmcnt(0)")
    for st in (8, 4, 2):
        for i in range(0, st, 2): A.e(f"v_pk_add_f32 {vr(SV+i,2)}, {vr(SV+i,2)}, {vr(SV+st+i,2)}")
    A.e(f"""
    v_add_f32 v{SV}, v{SV}, v{SV+1}
    s_mul_i32 s64, s53, {6144*4}
    s_lshl_b32 s65, s52, {9 + grp}
    s_add_u32 s64, s64, s65
    s_add_u32 s64, s64, {MOD + 8192*grp}""")
    A.e(f"v_lshlrev_b32 v18, 2, v{VC}" if grp else "")
    A.e(f"buffer_store_dword v{SV}, v18, {WSRD}, s64 offen sc1")
    if grp: fills(fill2)
    signal(A, C_M2 if grp else C_M, sel220=C_M3 if grp else None)
    if F.PROF: A.e("s_memrealtime s[98:99]")
    for q in range(4): unpack(A, XR_ + 8 * q, V + 16 * q, 8)
    for q in range(4):
        v = V + 16 * q; s1, s2, u1, u2 = T + 4 * q, T + 4 * q + 1, T + 4 * q + 2, T + 4 * q + 3
        A.e(f"v_add_f32 v{s1}, v{v}, v{v+1}\nv_mul_f32 v{s2}, v{v}, v{v}\nv_add_f32 v{u1}, v{v+2}, v{v+3}\nv_mul_f32 v{u2}, v{v+1}, v{v+1}")
        A.e(f"v_fmac_f32 v{s2}, v{v+2}, v{v+2}\nv_fmac_f32 v{u2}, v{v+3}, v{v+3}")
        for i in range(4, 16, 2):
            A.e(f"v_add_f32 v{s1}, v{s1}, v{v+i}\nv_fmac_f32 v{s2}, v{v+i}, v{v+i}\nv_add_f32 v{u1}, v{u1}, v{v+i+1}\nv_fmac_f32 v{u2}, v{v+i+1}, v{v+i+1}")
        A.e(f"v_add_f32 v{s1}, v{s1}, v{u1}\nv_add_f32 v{s2}, v{s2}, v{u2}")
    for ror in (4, 8):
        for q in range(4):
            for s_ in (T + 4 * q, T + 4 * q + 1): A.e(f"v_add_f32_dpp v{s_}, v{s_}, v{s_} row_ror:{ror} row_mask:0xf bank_mask:0xf")
    for sw in ("v_permlane16_swap_b32", "v_permlane32_swap_b32"):
        for q in range(4):
            s1, s2, u1, u2 = T + 4 * q, T + 4 * q + 1, T + 4 * q + 2, T + 4 * q + 3
            A.e(f"v_mov_b32 v{u1}, v{s1}\nv_mov_b32 v{u2}, v{s2}\n{sw} v{u1}, v{s1}\n{sw} v{u2}, v{s2}\nv_add_f32 v{s1}, v{s1}, v{u1}\nv_add_f32 v{s2}, v{s2}, v{u2}")
    for q in range(4): A.e(f"ds_write_b64 v{R['SW']}, {vr(T+4*q,2)} offset:{32768 + q*2048}")
    A.e("s_waitcnt lgkmcnt(0)\ns_barrier")
    for q in range(4):
        for w in range(4): A.e(f"ds_read_b64 {vr(SV+2*w,2)}, v{R['SR']} offset:{32768 + q*2048 + w*512}")
        A.e("s_waitcnt lgkmcnt(0)")
        stats_fin(A, SV, T, T + 1)
        for i in range(16): A.e(f"v_fma_f32 v{V+16*q+i}, v{V+16*q+i}, v{T+1}, v{T}")
    cpoll(A, L, {C_M: 64})
    if F.PROF: A.e("s_memrealtime s[100:101]")
    A.e(f"v_lshlrev_b32 v18, 5, v{VC}")
    for g in range(4):
        A.e(f"s_mov_b32 s64, {MOD + g*6144*4}")
        for i in range(2): A.e(f"buffer_load_dwordx4 {vr(SV + g*8 + 4*i, 4)}, v18, {WSRD}, s64 offen offset:{16*i} sc1")
    A.e("s_cmp_gt_u32 s50, 1\ns_cselect_b32 s64, 1.0, 0\ns_waitcnt vmcnt(0)")
    sum4(A, SV, SV + 8, 8)
    for i in range(8): A.e(f"v_add_f32 v{SV+i}, s64, v{SV+i}")
    for i in range(2): A.e(f"ds_write_b128 v18, {vr(SV+4*i,4)} offset:{16*i}")
    A.e("s_waitcnt lgkmcnt(0)\ns_barrier")
    for k, dst in ((0, SB), (1, C1)):
        for a in range(2):
            for t in range(2): A.e(f"ds_read_b128 {vr(dst + a*8 + t*4, 4)}, v{R['CO']} offset:{k*4096 + a*512 + t*16}")
    A.e(f"s_add_u32 s61, s61, {HB}\ns_add_u32 s62, s61, 4096\ns_waitcnt lgkmcnt(0)")
    for q in range(4):
        v = V + 16 * q
        for i in range(16): A.e(f"v_fma_f32 v{v+i}, v{v+i}, v{C1+i}, v{SB+i}")
        for i in range(8): A.e(f"v_cvt_pk_bf16_f32 v{XR_+8*q+i}, v{v+2*i}, v{v+2*i+1}")
        for a in range(2): A.e(f"buffer_store_dwordx4 {vr(XR_+8*q+4*a,4)}, v{R['FR']}, {WSRD}, s{61+a} offen offset:{64*q} sc1")
    signal(A, C_HB if grp else C_HA)
    if F.PROF:
        A.e(f"""
        s_memrealtime s[96:97]
        s_waitcnt lgkmcnt(0)
        v_mov_b32 v16, s98
        v_mov_b32 v17, s100
        v_mov_b32 v18, s96
        v_mov_b32 v19, s86
        s_lshl_b32 s64, s58, 4
        s_add_u32 s64, s64, {STAMP2 - 8192}
        buffer_store_dwordx4 v[16:19], off, {WSRD}, s64""")

def stamp(A, v, par=None):
    if not F.PROF: return
    A.e(f"s_memrealtime s[84:85]\ns_lshr_b32 m0, s60, 1\ns_waitcnt lgkmcnt(0)\nv_writelane_b32 v{v}, s84, m0")
def tst(A, i):
    if F.PROF >= 2: A.e(f"s_memtime s[{32+2*i}:{33+2*i}]")
def tacc(A, n):
    if F.PROF < 2: return
    A.e("s_waitcnt lgkmcnt(0)")
    for i in range(n - 1): A.e(f"s_sub_u32 s64, s{34+2*i}, s{32+2*i}\ns_add_u32 s{92+i}, s{92+i}, s64")
    A.e(f"s_sub_u32 s64, s32, s48\ns_cmp_eq_u32 s48, 0\ns_cselect_b32 s64, 0, s64\ns_add_u32 s{92+n-1}, s{92+n-1}, s64\ns_mov_b32 s48, s{32+2*(n-1)}")
def tinit(A):
    if F.PROF < 2: return
    for i in range(92, 100): A.e(f"s_mov_b32 s{i}, 0")
    A.e("s_mov_b32 s48, 0\ns_memtime s[46:47]\ns_memrealtime s[100:101]")
def tout(A, v):
    if F.PROF < 2: return
    for i in range(8): A.e(f"v_writelane_b32 v{v}, s{92+i}, {2+i}")
    A.e(f"s_memtime s[32:33]\ns_memrealtime s[34:35]\ns_waitcnt lgkmcnt(0)\ns_sub_u32 s32, s32, s46\ns_sub_u32 s34, s34, s100\nv_writelane_b32 v{v}, s32, 10\nv_writelane_b32 v{v}, s34, 11")
def stamp_out(A, regs):
    if not F.PROF: return
    A.e(f"s_lshl_b32 s64, s58, 2\ns_add_u32 s64, s64, s50\ns_mul_i32 s64, s64, 768\ns_add_u32 s64, s64, {STAMP2}\nv_mbcnt_lo_u32_b32 v16, -1, 0\nv_mbcnt_hi_u32_b32 v16, -1, v16\nv_lshlrev_b32 v16, 2, v16")
    for i, r in enumerate(regs[:3]): A.e(f"buffer_store_dword v{r}, v16, {WSRD}, s64 offen offset:{i*256}")
def flag_store(A, vt, sval, saddr):
    A.e(f"v_mov_b32 v{vt}, {sval}\ns_mov_b64 exec, 1\nbuffer_store_dword v{vt}, off, {WSRD}, s{saddr} sc1\ns_mov_b64 exec, -1")
def poll_loop(A, ld, vF, sneed, sl=None):
    lp = A.newlabel("plp"); ok = A.newlabel("pok")
    A.label(lp)
    A.e(f"""
    {ld}
    s_waitcnt vmcnt(0)
    v_cmp_gt_u32 vcc, s{sneed}, v{vF}
    s_cbranch_vccz {ok}
    s_sleep {sl or F.PSL}
    s_sub_u32 s90, s90, 1
    s_cmp_gt_i32 s90, 0
    s_cbranch_scc1 {lp}""")
    A.label(ok)

def weave(A, M, fill, first=0, per=1):
    fill = list(fill)
    for i, m in enumerate(M):
        A.e(m)
        if i >= first:
            for _ in range(per):
                if fill: A.e(fill.pop(0))
    for x in fill: A.e(x)

class Sched:
    def __init__(self, A): self.A = A; self.q = []; self.done = -1
    def lds(self, ins, tag=None): self.A.e(ins); self.q.append(tag)
    def need(self, tag):
        i = len(self.q) - 1 - self.q[::-1].index(tag)
        if i > self.done:
            n = len(self.q) - 1 - i
            assert n <= 15
            self.A.e(f"s_waitcnt lgkmcnt({n})"); self.done = i
    def copy(self):
        c = Sched(self.A); c.q = list(self.q); c.done = self.done; return c

def stage_weights(A, stages, ld, pf=None, nfl=0, rot=None, rotk=None):
    A.e(f"""
    v_lshrrev_b32 v26, 2, v1
    v_and_b32 v27, 3, v1
    v_mul_u32_u24 v16, {ld}, v26
    v_lshl_add_u32 v16, v27, 4, v16
    v_lshlrev_b32 v17, 6, v25
    v_lshl_add_u32 v17, v24, 4, v17
    v_add_u32 v17, s61, v17""")
    def issue(st):
        srd, pre, rows, _ = stages[st]
        npf = pf(st, -1) if pf else 0
        A.e(pre)
        A.e(f"s_add_u32 m0, s61, {(st&1)*16384}")
        for J in range(rows // 16):
            if rot and J % 4 == 0:
                A.e(f"s_add_u32 s64, s{rot(st)}, {J//4}\ns_and_b32 s64, s64, 3\ns_mul_i32 s65, s64, {64*ld}\ns_add_u32 s63, s62, s65\ns_lshl_b32 s64, s64, 12\ns_add_u32 s64, s64, s61\ns_add_u32 m0, s64, {(st&1)*16384}")
            if rotk and J % 2 == 0:
                A.e(f"s_add_u32 s64, s{rotk}, {J//2}\ns_sub_u32 s65, s64, {rows//32}\ns_cselect_b32 s64, s64, s65\ns_mul_i32 s64, s64, {32*ld}\ns_add_u32 s63, s62, s64")
            sa = 63 if rot or rotk else 62
            A.e(f"buffer_load_dwordx4 v16, s[{srd}:{srd+3}], s{sa} offen lds")
            if J + 1 < rows // 16: A.e(f"s_add_u32 s{sa}, s{sa}, {16*ld}\ns_add_u32 m0, m0, 1024")
            if pf: npf += pf(st, J)
            if nfl: A.e(f"s_waitcnt vmcnt({nfl})")
        return rows // 16 + npf
    if F.PROF: rec6.sstamp(A, 30, 1)
    n = [issue(0), issue(1)]
    for st in range(len(stages)):
        A.e(f"s_waitcnt vmcnt({n[st+1] if st + 1 < len(stages) else 0})")
        if F.PROF: rec6.sstamp(A, 30, 2 * st)
        stages[st][3]((st & 1) * 16384)
        A.e("s_waitcnt lgkmcnt(0)")
        if F.PROF and st: rec6.sstamp(A, 30, 2 * st + 1)
        if st + 2 < len(stages): n.append(issue(st + 2))
    if F.PROF: rec6.sstamp_out(A, 30, 58)
def lanes(A):
    A.e("""
    v_and_b32 v21, 15, v1              ; lam
    v_lshrrev_b32 v22, 4, v1           ; g
    v_lshrrev_b32 v23, 2, v21          ; r
    v_and_b32 v24, 3, v21              ; c
    s_lshl_b32 s61, s50, 15
    v_lshl_add_u32 v25, v22, 3, v23    ; 8g + r""")
def late(A):
    if F.LATE:
        lp = A.newlabel("late"); A.e(f"s_mov_b32 s64, {F.LATE}"); A.label(lp); A.e(f"s_sleep 16\ns_sub_u32 s64, s64, 1\ns_cmp_gt_i32 s64, 0\ns_cbranch_scc1 {lp}")
MF = "v_mfma_f32_16x16x32_bf16"

def qkv_role(A, L):
    L16, VR0, VR1, VT = 0, 4, 5, 6; ACC = (32, 44); VH = 56; PK = 60; XW = 64; NW = 16; ST = (8, 10, 11); D = F.QD
    def wr_(ks, t, n=4, o=0):
        i = (ks * 3 + t) * 4 + o
        return ar(i, n) if i < 256 else vr(128 + i - 256, n)
    done = A.newlabel("done")
    lanes(A)
    A.e(f"s_load_dwordx4 s[4:7], s[0:1], {ARG['Wq']*8}"); ldptr(A, 8, "Wv")
    A.e(f"""
    s_lshl_b32 s52, s59, 7
    s_and_b32 s64, s50, 1
    s_lshl_b32 s65, s64, 6
    s_add_u32 s53, s52, s65
    s_lshr_b32 s65, s50, 1
    s_lshl_b32 s65, s65, 6
    s_add_u32 s52, s52, s65
    s_lshl_b32 s54, s64, 3
    s_waitcnt lgkmcnt(0)
    s_cmp_gt_u32 s50, 1
    s_cselect_b64 s[10:11], s[4:5], s[6:7]""")
    A.srd(28, 10, 8 * MB); A.srd(32, 8, 8 * MB)
    def rdp(q):
        def f(buf):
            for kk in range(8):
                for t in range(2):
                    for h in range(2): A.e(f"ds_read_b64_tr_b16 {wr_(8*q+kk,t,2,2*h)}, v17 offset:{buf + (32*kk + 4*h)*64 + 8*t}")
                if kk % 3 == 2: A.e("s_waitcnt lgkmcnt(0)")
        return f
    def rdv(q):
        def f(buf):
            if q == 0: A.e("v_add_u32 v18, s54, v17")
            for kk in range(8):
                for h in range(2): A.e(f"ds_read_b64_tr_b16 {wr_(8*q+kk,2,2,2*h)}, v18 offset:{buf + (32*kk + 4*h)*64}")
                if kk == 5: A.e("s_waitcnt lgkmcnt(0)")
        return f
    stg = []
    for q in range(4):
        stg.append((28, f"s_add_u32 s62, s53, {q*256*8192}", 256, rdp(q)))
        stg.append((32, f"s_add_u32 s62, s52, {q*256*8192}", 256, rdv(q)))
    rec6.help_addr(A, 28, 1, 59, "s_lshl_b32 s65, s64, 3\ns_and_b32 s66, s50, 1\ns_lshl_b32 s55, s66, 2\ns_add_u32 s65, s65, s55\ns_lshl_b32 s66, s66, 5")
    rec6.help_addr(A, 31, 1, 59, "s_lshl_b32 s65, s64, 4\ns_lshl_b32 s55, s50, 2\ns_add_u32 s65, s65, s55\ns_lshl_b32 s66, s50, 5")
    def pf(st, J):
        if not F.PF: return 0
        t = st + 1; i = J // 4
        if J == -1:
            if st: return 0
            for i in (2, 3): A.e(f"s_mov_b32 s64, {i*64*8192}\nbuffer_load_dword v29, v28, s[28:31], s64 offen")
            return 2
        if J % 4 != 1 or t > 7 or (t & 1 and i & 1): return 0
        if t & 1: A.e(f"s_mov_b32 s64, {((t>>1)*256 + (i>>1)*128)*8192}\nbuffer_load_dword v29, v31, s[32:35], s64 offen")
        else: A.e(f"s_mov_b32 s64, {((t>>1)*256 + i*64)*8192}\nbuffer_load_dword v29, v28, s[28:31], s64 offen")
        return 1
    A.e("s_and_b32 s60, s50, 1\ns_lshl_b32 s60, s60, 1")
    stage_weights(A, stg, 8192, pf, F.NFL, (lambda st: 50 if st & 1 else 60) if F.QROT else None)
    if F.GATE == 9:
        sq = A.newlabel("sq"); sq2 = A.newlabel("sq2")
        A.e(f"s_and_b32 s64, s59, 7\ns_cmp_eq_u32 s64, 3\ns_cbranch_scc1 {sq}\ns_cmp_lg_u32 s59, 63\ns_cbranch_scc1 {sq2}"); A.label(sq); signal(A, C_QW); A.label(sq2)
    elif F.GATE > 1: signal(A, C_QW)
    if F.EXP: A.e("s_endpgm")
    verify(A, L, True, "qkv")
    A.e(f"""
    s_barrier
    v_lshlrev_b32 v{L16}, 4, v1
    s_mov_b32 s60, 0
    s_lshl_b32 s63, s50, 13
    s_add_u32 s61, s63, {HB}
    s_mov_b32 s70, 0
    s_lshl_b32 s52, s59, 14
    s_and_b32 s64, s50, 1
    s_lshl_b32 s64, s64, 11
    s_add_u32 s53, s52, s64
    s_lshl_b32 s64, s50, 10
    s_add_u32 s52, s52, s64
    s_add_u32 s52, s52, 4096           ; V base
    s_cmp_gt_u32 s50, 1
    s_cselect_b32 s54, 0x2000, 0
    s_lshl_b32 s69, s59, 6
    s_add_u32 s69, s69, s67
    s_add_u32 s69, s69, {F_QKV}
    v_mov_b32 v{VR0}, v{L16}
    v_add_u32 v{VR1}, 32768, v{L16}""")
    def loads():
        o = ["s_add_u32 m0, s70, s63", "s_add_u32 s62, s61, 4096"]
        for i in range(8):
            o.append(f"buffer_load_dwordx4 v{L16}, {WSRD}, s{61+(i>>2)} offen offset:{(i&3)*1024} lds")
            if i == 3: o.append("s_add_u32 m0, m0, 4096")
        return o + ["s_add_u32 s61, s61, 32768", "s_add_u32 s70, s70, 32768", "s_and_b32 s70, s70, 0x1ffff"]
    def epi(par):
        a = ACC[par]
        o = ["s_sub_u32 s66, s60, 1", "s_lshr_b32 s64, s66, 1", "s_lshl_b32 s65, s64, 12", "s_and_b32 s65, s65, 0x2000", "s_xor_b32 s65, s65, s67", "s_lshl_b32 s64, s64, 20",
             "s_add_u32 s64, s64, s65", "s_add_u32 s65, s64, s52", "s_xor_b32 s64, s64, s54", "s_add_u32 s66, s64, s53"]
        if par: o += ["s_cmp_eq_u32 s60, 0", f"s_cselect_b32 s65, {SCRATCH}, s65", f"s_cselect_b32 s66, {SCRATCH}, s66"]
        o += [f"v_cvt_pk_bf16_f32 v{PK+i}, v{a+2*i}, v{a+2*i+1}" for i in range(4)]
        o += [f"v_cvt_pk_bf16_f32 v{VH+2*par+i}, v{a+8+2*i}, v{a+9+2*i}" for i in range(2)]
        o += [f"buffer_store_dwordx4 {vr(PK,4)}, v{L16}, {WSRD}, s66 offen offset:{par*1024} sc1"]
        if par: o += [f"buffer_store_dwordx4 {vr(VH,4)}, v{L16}, {WSRD}, s65 offen sc1"]
        return o
    rd = lambda ks, nxt: f"ds_read_b128 {vr(XW+4*(ks%NW),4)}, v{VR1 if nxt else VR0} offset:{ks*1024}"
    if F.PROF:
        for r in ST: A.e(f"v_mov_b32 v{r}, 0")
        A.e(f"s_memrealtime s[84:85]\ns_waitcnt lgkmcnt(0)\nv_writelane_b32 v{ST[2]}, s84, 0\nv_writelane_b32 v{ST[2]}, s86, 1")
    tinit(A)
    for x in loads() + loads(): A.e(x)
    A.e("s_waitcnt vmcnt(8)\ns_barrier")
    for ks in range(D): A.e(rd(ks, 0))
    top = A.newlabel("top"); tail = []
    A.label(top)
    for par in range(2):
        tst(A, 0)
        fill = {}
        for k, x in enumerate(epi(par ^ 1)): fill.setdefault(3 + k // 2 if k < 13 else k - 3, []).append(x)
        for k, x in enumerate(loads()): fill.setdefault(F.QM + 2 + 2 * k, []).append(x)
        for n in range(96):
            ks, t = divmod(n, 3)
            a = vr(ACC[par] + 4 * t, 4); x = vr(XW + 4 * (ks % NW), 4)
            if t == 0: A.e(f"s_waitcnt lgkmcnt({D-1})")
            A.e(f"{MF} {a}, {x}, {wr_(ks,t)}, {a if ks else 0}" if t == 2 else f"{MF} {a}, {wr_(ks,t)}, {x}, {a if ks else 0}")
            if t == 0: A.e(rd((ks + D) % 32, ks + D >= 32))
            for y in fill.get(n, []): A.e(y)
            if n == F.QM:
                nf = A.newlabel("nf")
                tst(A, 1)
                A.e(f"s_waitcnt vmcnt({2-par})")
                if par == 0:
                    sk = A.newlabel("sk")
                    hb = A.newlabel("hb"); hb2 = A.newlabel("hb2")
                    hc = A.newlabel("hc")
                    A.e(f"s_cmp_eq_u32 s60, 60\ns_cbranch_scc1 {hb}\ns_cmp_eq_u32 s60, {2*PR1}\ns_cbranch_scc1 {hc}"); A.label(hb2)
                    def dh(hb=hb, hb2=hb2, hc=hc):
                        A.label(hb); cpoll(A, L, {C_HB: 64}, 28, False, 12); A.e(f"s_branch {hb2}")
                        A.label(hc); cpoll(A, L, {C_M2: 63}, 28, False, 12); A.e(f"s_branch {hb2}")
                    tail.append(dh)
                    A.e(f"s_sub_u32 s64, s60, 2\ns_cmp_gt_u32 s64, {2*F.Q4}\ns_cbranch_scc1 {sk}\ns_waitcnt vmcnt(0)"); A.label(sk)
                    A.e(f"s_cselect_b32 s64, 1, s50")
                else: A.e("s_mov_b32 s64, s50")
                tst(A, 2)
                A.e(f"s_barrier\ns_cmp_ge_u32 s60, {NU-2}\ns_cselect_b32 s61, {HB}, s61\ns_cmp_lg_u32 s64, 0\ns_cbranch_scc1 {nf}\ns_lshr_b32 s64, s60, 1")
                flag_store(A, VT, "s64", 69); A.label(nf)
                tst(A, 3)
        A.e(f"v_mov_b32 v{VR0}, v{VR1}\nv_add_u32 v{VR1}, 32768, v{VR1}\nv_and_b32 v{VR1}, 0x1ffff, v{VR1}")
        if F.PROF: tst(A, 4); tacc(A, 5); stamp(A, ST[par])
        A.e("s_add_u32 s60, s60, 1")
    A.e(f"s_cmp_lt_u32 s60, {NU}\ns_cbranch_scc1 {top}")
    for x in epi(1): A.e(x)
    A.e(f"s_waitcnt vmcnt(0) lgkmcnt(0)\ns_barrier\ns_cmp_lg_u32 s50, 0\ns_cbranch_scc1 {done}")
    flag_store(A, VT, NSEG, 69)
    A.label(done)
    tout(A, ST[2]); stamp_out(A, ST)
    A.e("s_endpgm")
    for d in tail: d()

def gemm_role(A, L, kind):
    KS = 7 if kind == "w4" else 8
    stats = kind in ("w1", "w3"); xch = kind in ("wo", "w4"); res = kind == "w2"
    L16, VFA, VA, VRD, VRB, ONE, VF, VT, VO, VSW, VSR = 0, 2, 3, 4, 8, 12, 16, 17, 18, 19, 20
    ACC, FIN, S1, S2, SP, XW, NW, PKT, CS, RES, TM, M1 = 32, 40, 48, 52, 56, 64, 16, 128, 152, 160, 168, 204; ST = (200, 201, 202)
    LST = 128 * 1024; D = F.GD; NF = 4 * KS
    wreg = lambda n, t, k=4, o=0: ar((n * 2 + t) * 4 + o, k)
    done = A.newlabel("done")
    lanes(A)
    arg, ld, nbytes = dict(wo=("Wo", 2048, 8 * MB), w1=("w1", 2048, 2 * MB), w2=("w2", 2048, 2 * MB), w3=("w3", 7168, 7 * MB), w4=("w4", 2048, 7 * MB))[kind]
    ldptr(A, 4, arg)
    if xch: ldptr(A, 6, "x" if kind == "wo" else "out"); A.e("s_lshr_b32 s52, s59, 3\ns_and_b32 s53, s59, 7")
    else: A.e("s_mov_b32 s52, 0\ns_mov_b32 s53, s59")
    A.e(f"s_mul_i32 s54, s52, {NF*32*ld}\ns_lshl_b32 s64, s53, 8\ns_add_u32 s54, s54, s64\ns_lshl_b32 s64, s50, 6\ns_add_u32 s54, s54, s64\ns_waitcnt lgkmcnt(0)")
    A.srd(28, 4, nbytes)
    if xch: A.srd(24, 6, S * D_ * 2)
    def rdw(x):
        def f(buf):
            for kk in range(KS):
                for t in range(2):
                    for h in range(2): A.e(f"ds_read_b64_tr_b16 {wreg(x*KS+kk,t,2,2*h)}, v17 offset:{buf + (32*kk + 4*h)*64 + 8*t}")
                if kk % 3 == 2: A.e("s_waitcnt lgkmcnt(0)")
        return f
    A.e("s_and_b32 s55, s53, 7" + ("\ns_cmp_eq_u32 s55, 7\ns_cselect_b32 s55, 0, s55" if KS == 7 else ""))
    if kind == "w4" and F.W4G: cpoll(A, L, {C_M2: 63}, sl=F.VSL2)
    stage_weights(A, [(28, f"s_xor_b32 s62, s50, {x}\ns_mul_i32 s62, s62, {KS*32*ld}\ns_add_u32 s62, s62, s54", KS * 32, rdw(x)) for x in range(4)], ld, None, F.NFL2, None, 55 if F.ROT else None)
    verify(A, L, False, "mod")
    inb, ust = dict(wo=(OB, 131072), w1=(H2, 32768), w2=(G1, 32768), w3=(Y1, 32768), w4=(G3, 112 * 1024))[kind]
    A.e(f"""
    s_barrier
    v_lshlrev_b32 v{L16}, 4, v1
    s_mov_b32 s60, 0
    s_mov_b32 s70, 0
    s_mov_b32 s72, s55
    s_mov_b32 s55, 0
    s_lshl_b32 s63, s50, 13
    v_mov_b32 v{VA}, v{L16}
    s_mov_b32 s73, 0xffff0000
    s_lshl_b32 s64, s52, 2
    s_add_u32 s64, s64, s50
    s_mul_i32 s61, s64, {KS*1024}
    s_add_u32 s61, s61, {inb}
    s_lshl_b32 s82, s64, 8
    s_add_u32 s82, s82, {dict(wo=F_ATT, w1=F_LN, w2=F_W1, w3=F_W2, w4=F_W3)[kind]}
    s_mov_b32 s68, s82
    s_lshl_b32 s83, s53, 2
    s_add_u32 s83, s83, s50            ; output fragment index""")
    for x in range(4): A.e(f"s_xor_b32 s64, s50, {x}\ns_lshl_b32 s64, s64, 13\nv_add_u32 v{VRB+x}, s64, v{L16}")
    nfl = dict(wo=4, w1=4, w2=8, w3=8, w4=7)[kind]
    A.e(f"v_min_u32 v{VFA}, {nfl-1}, v1\nv_lshlrev_b32 v{VFA}, 2, v{VFA}")
    if res:
        A.e(f"""
        s_lshr_b32 s64, s50, 1
        s_add_u32 s64, s64, 1
        s_sub_u32 s65, 0, s64
        s_bitcmp1_b32 s50, 0
        s_cselect_b32 s64, s64, s65
        s_add_u32 s64, s64, 16
        v_add_u32 v26, s64, v21
        v_lshrrev_b32 v27, 4, v26
        v_and_b32 v26, 15, v26
        v_lshl_add_u32 v26, v22, 4, v26
        v_lshlrev_b32 v26, 4, v26
        v_lshl_add_u32 v{VA}, v27, 15, v26
        s_sub_u32 s61, s61, 32768""")
    VAR = 208
    if F.ROT:
        for i in range(KS): A.e(f"s_add_u32 s64, s72, {i}\ns_sub_u32 s65, s64, {KS}\ns_cselect_b32 s64, s64, s65\ns_lshl_b32 s64, s64, 10\ns_add_u32 s64, s64, {4096 - (i&3)*1024}\nv_add_u32 v{VAR+i}, s64, v{VA}")
        A.e("s_sub_u32 s61, s61, 4096")
    A.e("s_lshl_b32 s66, s83, 10")
    if kind == "w3":
        A.e(f"s_mul_i32 s65, s83, 147\ns_lshr_b32 s65, s65, 10\ns_mul_i32 s69, s65, {256 - 28}\ns_lshl_b32 s64, s83, 2\ns_add_u32 s69, s69, s64\ns_add_u32 s69, s69, {F_W3}")
    else:
        A.e(f"s_lshr_b32 s65, s83, 3\ns_lshl_b32 s65, s65, 8\ns_and_b32 s64, s83, 7\ns_lshl_b32 s64, s64, 2\ns_add_u32 s69, s64, s65\ns_add_u32 s69, s69, {dict(wo=F_WO, w1=F_W1, w2=F_W2, w4=F_W4)[kind]}")
    outb, ost = dict(wo=(X1, 32768), w1=(G1, 32768), w2=(Y1, 32768), w3=(G3, 112 * 1024), w4=(0, 32768))[kind]
    if xch:
        A.e(f"""
        s_lshl_b32 s64, s53, 2
        s_add_u32 s64, s64, s50
        s_mul_i32 s74, s64, {4*6144}
        s_xor_b32 s64, s50, s52
        s_sub_u32 s64, s64, 1
        s_max_i32 s64, s64, 0
        s_lshl_b32 s64, s64, 11
        s_add_u32 s74, s74, s64
        s_add_u32 s74, s74, {XP + (0 if kind == 'wo' else 768*KB)}
        s_mov_b32 s75, 0
        s_mov_b32 s76, 0
        s_mov_b32 s77, 0                   ; pending
        v_lshlrev_b32 v26, 11, v21
        v_lshl_add_u32 v26, v22, 4, v26
        s_lshl_b32 s64, s83, 6
        v_add_u32 v{VO}, s64, v26
        v_lshlrev_b32 v26, 5, v22
        s_lshl_b32 s64, s83, 7
        s_add_u32 s64, s64, {MOD + (2 if kind == 'wo' else 5)*4096}""")
        for g in range(4):
            for i in range(2): A.e(f"buffer_load_dwordx4 {vr((CS if g == 0 else PKT + 8*(g-1)) + 4*i, 4)}, v26, {WSRD}, s64 offen offset:{16*i} sc1")
            A.e(f"s_add_u32 s64, s64, {6144*4}")
        A.e("s_waitcnt vmcnt(0)")
        sum4(A, CS, PKT, 8)
        for i in range(4): A.e(f"v_mov_b32 v{M1+i}, -1")
    if stats:
        A.e(f"""
        s_lshl_b32 s64, s50, 9
        s_add_u32 s64, s64, {LST}
        v_lshlrev_b32 v26, 3, v1
        v_add_u32 v{VSW}, s64, v26
        v_lshl_add_u32 v26, v23, 4, v21
        v_lshlrev_b32 v26, 3, v26
        v_add_u32 v{VSR}, {LST}, v26
        s_mov_b32 s74, 0x22222222
        s_mov_b32 s75, 0x22222222
        s_mov_b32 s76, 0x44444444
        s_mov_b32 s77, 0x44444444
        s_mov_b32 s78, 0x88888888
        s_mov_b32 s79, 0x88888888
        s_mov_b32 s80, {f2u(GELU_C0):#x}
        s_mov_b32 s81, {f2u(GELU_C1):#x}
        v_mov_b32 v{TM+23}, s80""")
        for i in range(4): A.e(f"v_mov_b32 v{ONE+i}, 0x3f803f80")
        for n in range(NF):
            for t in range(2): A.e(f"{MF} {vr(CS+4*t,4)}, {wreg(n,t)}, {vr(ONE,4)}, {vr(CS+4*t,4) if n else 0}")
    def loads():
        o = ["s_add_u32 m0, s70, s63"] + ([] if F.ROT else ["s_add_u32 s62, s61, 4096"])
        for i in range(KS):
            o.append(f"buffer_load_dwordx4 v{VAR+i}, {WSRD}, s61 offen offset:{(i&3)*1024} lds" if F.ROT else f"buffer_load_dwordx4 v{VA}, {WSRD}, s{61+(i>>2)} offen offset:{(i&3)*1024} lds")
            if i == 3: o.append("s_add_u32 m0, m0, 4096")
        return o + [f"s_add_u32 s61, s61, {ust}", "s_add_u32 s70, s70, 32768", "s_and_b32 s70, s70, 0x1ffff"]
    pollld = f"buffer_load_dword v{VF}, v{VFA}, {WSRD}, s68 offen sc1"
    def need(add, d=71):
        if F.FREE: A.e(f"s_cmp_ge_u32 s60, {NU-add}\ns_cselect_b32 s{d}, -1, 0"); return
        A.e(f"s_add_u32 s{d}, s60, {add+1}")
        if res: A.e(f"s_and_b32 s64, s50, 1\ns_add_u32 s{d}, s{d}, s64\ns_min_u32 s{d}, s{d}, {NU}\ns_cmp_ge_u32 s60, {NU-add}\ns_cselect_b32 s{d}, -1, s{d}")
    xr = lambda n: vr(XW + 4 * (n % NW), 4)
    rd = lambda n: f"ds_read_b128 {xr(n)}, v{VRD + n//KS} offset:{(n%KS)*1024}"
    def mm(n):
        o = [f"{MF} {vr(ACC+4*t,4)}, {wreg(n,t)}, {xr(n)}, {vr(ACC+4*t,4) if n else 0}" for t in range(2)]
        if stats and n < KS: o += [f"{MF} {vr(S1,4)}, {vr(ONE,4)}, {xr(n)}, {vr(S1,4) if n else 0}", f"{MF} {vr(S2,4)}, {xr(n)}, {xr(n)}, {vr(S2,4) if n else 0}"]
        return o
    def both(f):
        l1 = A.newlabel("b1"); l2 = A.newlabel("b2")
        A.e(f"s_cmp_eq_u32 s56, 1\ns_cbranch_scc1 {l1}"); f("")
        A.label(l2)
        def d(): A.label(l1); A.e("s_nop 7"); f("sc1"); A.e(f"s_branch {l2}")
        tail.append(d)
    def f1():
        A.e("s_add_u32 s64, s74, s75\ns_add_u32 s65, s64, 4096")
        for i in range(6): A.e(f"buffer_load_dwordx4 {vr(PKT+4*i,4)}, v{L16}, {WSRD}, s{64+(i>>2)} offen offset:{(i&3)*1024} sc1")
    def fres():
        if kind == "wo": A.e(f"s_and_b32 s64, s66, 0xffff8000\nbuffer_load_dwordx4 {vr(RES,4)}, v{VO}, s[24:27], s64 offen")
        else: A.e(f"s_add_u32 s64, s66, {X1}\nbuffer_load_dwordx4 {vr(RES,4)}, v{L16}, {WSRD}, s64 offen\ns_add_u32 s64, s66, {Y1}\nbuffer_load_dwordx4 {vr(RES+4,4)}, v{L16}, {WSRD}, s64 offen")
    def f2():
        ck = A.newlabel("ck"); rt = A.newlabel("rt"); go = A.newlabel("go")
        A.label(ck)
        for i in range(0, 8, 2): A.e(f"v_pk_add_f32 {vr(PKT+i,2)}, {vr(PKT+i,2)}, {vr(PKT+8+i,2)}\nv_pk_add_f32 {vr(PKT+16+i,2)}, {vr(PKT+16+i,2)}, {vr(FIN+i,2)}")
        for i in range(0, 8, 2): A.e(f"v_pk_add_f32 {vr(PKT+i,2)}, {vr(PKT+i,2)}, {vr(PKT+16+i,2)}")
        A.e(f"v_pk_add_f32 {vr(TM,2)}, {vr(PKT,2)}, {vr(PKT+2,2)}\nv_pk_add_f32 {vr(TM+2,2)}, {vr(PKT+4,2)}, {vr(PKT+6,2)}\nv_pk_add_f32 {vr(TM,2)}, {vr(TM,2)}, {vr(TM+2,2)}")
        A.e(f"v_cmp_u_f32 vcc, v{TM}, v{TM+1}\ns_cbranch_vccnz {rt}")
        A.label(go)
        def d():
            A.label(rt)
            A.e(f"s_sub_u32 s90, s90, 1\ns_cmp_gt_i32 s90, 0\ns_cbranch_scc0 {go}"); f1(); A.e(f"s_waitcnt vmcnt(0)\ns_branch {ck}")
        tail.append(d)
        unpack(A, RES, TM, 4)
        if kind == "w4":
            unpack(A, RES + 4, TM + 8, 4)
            for i in range(0, 8, 2): A.e(f"v_pk_add_f32 {vr(PKT+i,2)}, {vr(PKT+i,2)}, {vr(TM+8+i,2)}")
        for i in range(8): A.e(f"v_fma_f32 v{TM+i}, v{PKT+i}, v{CS+i}, v{TM+i}")
        for i in range(4): A.e(f"v_cvt_pk_bf16_f32 v{TM+8+i}, v{TM+2*i}, v{TM+2*i+1}")
        if kind == "wo": A.e(f"s_add_u32 s64, s66, {X1}\nbuffer_store_dwordx4 {vr(TM+8,4)}, v{L16}, {WSRD}, s64 offen sc1")
        else: A.e(f"s_and_b32 s64, s66, 0xffff8000\nbuffer_store_dwordx4 {vr(TM+8,4)}, v{VO}, s[24:27], s64 offen")
        A.e("s_add_u32 s64, s74, s75\ns_add_u32 s65, s64, 4096")
        def rs(fl):
            for i in range(6): A.e(f"buffer_store_dwordx4 {vr(M1,4)}, v{L16}, {WSRD}, s{64+(i>>2)} offen offset:{(i&3)*1024} {fl}")
        both(rs)
        A.e(f"s_add_u32 s66, s66, {ost}\ns_add_u32 s75, s75, 6144\ns_cmp_eq_u32 s75, {4*6144}\ns_cselect_b32 s75, 0, s75\ns_add_u32 s76, s76, 1\ns_mov_b32 s77, 0")
    tail = []
    def loop(fin):
        send = xch and not fin
        NS = 0 if fin else (2 if send else 1)
        flg = (not send) and kind != "w4"
        fl = lambda: flag_store(A, VT, "s76" if fin else "s60", 69) if flg else None
        def dummies():
            for _ in range(NS): A.e(f"buffer_load_dword v{VT}, off, {WSRD}, s69")
        top = A.newlabel("top"); vN = A.newlabel("vN"); join = A.newlabel("join"); slowp = A.newlabel("slowp"); lag = A.newlabel("lag")
        need(0); poll_loop(A, pollld, VF, 71)
        A.label(lag)
        for x in loads(): A.e(x)
        dummies()
        A.e("s_mov_b32 s72, 1\ns_mov_b32 s54, 0")
        A.label(top)
        need(1)
        if F.P2: need(2, 53)
        A.e(pollld)
        ex = 1
        if fin: f1(); fres(); ex += 6 + (1 if kind == "wo" else 2)
        elif res: A.e(f"s_add_u32 s64, s66, {H2}\nbuffer_load_dwordx4 {vr(RES,4)}, v{L16}, {WSRD}, s64 offen"); ex += 1
        for x in range(4): A.e(f"v_add_u32 v{VRD+x}, s55, v{VRB+x}")
        A.e("s_add_u32 s55, s55, 32768\ns_and_b32 s55, s55, 0x1ffff")
        tst(A, 0)
        def head(w):
            Z = Sched(A)
            for i in range(KS):
                if w: A.e(f"s_waitcnt vmcnt({KS-1-i+NS+ex})")
                Z.lds(rd(i), i)
                if i == KS - 1: A.e("s_barrier")
                if i >= 2:
                    Z.need(i - 2)
                    for x in mm(i - 2): A.e(x)
            return Z
        if F.P2:
            tA = A.newlabel("tA"); tC = A.newlabel("tC"); cont = A.newlabel("cont")
            A.e(f"s_cmp_lg_u32 s72, 2\ns_cbranch_scc1 {tC}"); A.label(tA)
            Z = head(False); A.label(cont)
            def dH():
                tB = A.newlabel("tB")
                A.label(tC); A.e(f"s_cmp_eq_u32 s72, 1\ns_cbranch_scc1 {tB}\ns_waitcnt vmcnt({KS+NS+ex})\ns_branch {tA}")
                A.label(tB); head(True); A.e(f"s_branch {cont}")
            tail.append(dH)
        else: Z = head(True)
        tst(A, 1)
        nr = [KS]
        def run(Z, lo, hi, fill={}):
            for n in range(lo, hi):
                while nr[0] < min(NF, n + D + 1) and nr[0] < n + 3: Z.lds(rd(nr[0]), nr[0]); nr[0] += 1
                Z.need(n)
                for k, x in enumerate(mm(n)):
                    A.e(x)
                    if k == 0:
                        for _ in range(2):
                            if nr[0] < min(NF, n + D + 1): Z.lds(rd(nr[0]), nr[0]); nr[0] += 1
                    for y in fill.get((n, k), []):
                        if y.startswith("ds_"): Z.lds(y, y)
                        elif y.startswith("need "): Z.need(y[5:])
                        else: A.e(y)
        fill = {}
        MID = F.GM * NF // 32
        if stats:
            sw = f"ds_write_b64 v{VSW}, {vr(S1,2)}"
            fill[(KS + 3, 0)] = [f"v_cndmask_b32 v{S1+1}, v{S2}, v{S2+1}, s[74:75]"]; fill[(KS + 3, 1)] = [f"v_cndmask_b32 v{S1+1}, v{S1+1}, v{S2+2}, s[76:77]"]
            fill[(KS + 4, 0)] = [f"v_cndmask_b32 v{S1+1}, v{S1+1}, v{S2+3}, s[78:79]"]; fill[(KS + 4, 1)] = [sw]
            srd_ = [f"ds_read_b64 {vr(SP+2*w,2)}, v{VSR} offset:{w*512}" for w in range(4)]
            fill[(KS + 8, 1)] = ["need " + sw, "s_barrier"] + srd_[:2]; fill[(KS + 9, 0)] = srd_[2:]
            i0 = len(A.lines); stats_fin(A, SP, TM + 21, TM + 22, 1); sf = [x.strip() for x in A.lines[i0:]]; del A.lines[i0:]
            sf = ["need " + srd_[3]] + sf
            for k, x in enumerate(sf): fill.setdefault((KS + 13 + k // 2, k & 1), []).append(x)
            assert KS + 13 + len(sf) // 2 < NF
        run(Z, KS - 2, MID, fill)
        tst(A, 2)
        A.e("s_waitcnt vmcnt(0)")
        tst(A, 3)
        if fin:
            np_ = A.newlabel("np"); A.e(f"s_cmp_eq_u32 s77, 0\ns_cbranch_scc1 {np_}"); f2(); A.label(np_)
        else: fl()
        if F.P2:
            vD = A.newlabel("vD"); bk = A.newlabel("bk")
            A.e(f"s_cmp_eq_u32 s54, 0\ns_cselect_b32 s64, s71, s53\nv_cmp_gt_u32 vcc, s64, v{VF}\ns_cbranch_vccnz {vN}\ns_mov_b32 s72, 2\ns_cbranch_scc1 {vD}"); A.label(bk)
            def dD():
                A.label(vD); A.e(f"s_mov_b32 s72, 1\nv_cmp_gt_u32 vcc, s53, v{VF}\ns_cbranch_vccnz {bk}")
                for x in loads(): A.e(x)
                A.e(f"s_mov_b32 s72, 3\ns_mov_b32 s54, 1\ns_branch {bk}")
            tail.append(dD)
        else: A.e(f"v_cmp_gt_u32 vcc, s71, v{VF}\ns_cbranch_vccnz {vN}\ns_mov_b32 s72, 1")
        n0 = nr[0]; Z2 = Z.copy()
        fR = {k: list(v) for k, v in fill.items()}
        sl_ = 0
        for k, x in enumerate(loads()):
            fR.setdefault((MID + sl_ // 2, sl_ & 1), []).append(x); sl_ += F.GS if x.startswith("buffer") else 1
        assert MID + sl_ // 2 <= NF
        run(Z, MID, NF, fR)
        A.label(join)
        def dN():
            A.label(vN); A.e(pollld); nr[0] = n0
            run(Z2, MID, NF, fill)
            if F.P2:
                A.e("s_lshl_b32 s72, s54, 1\ns_mov_b32 s54, 0")
                if fin and flg: A.e("s_waitcnt vmcnt(7)")
            else: A.e("s_mov_b32 s72, 0")
            A.e(f"s_branch {join}")
        tail.append(dN)
        tst(A, 4)
        a = ACC
        if fin:
            for i in range(8): A.e(f"v_mov_b32 v{FIN+i}, v{a+i}")
            A.e("s_mov_b32 s77, 1")
        elif send:
            A.e("s_add_u32 s64, s74, s75")
            both(lambda f_: [A.e(f"buffer_store_dwordx4 {vr(a+4*t,4)}, v{L16}, {WSRD}, s64 offen offset:{t*1024} {f_}") for t in range(2)])
            A.e(f"s_add_u32 s75, s75, 6144\ns_cmp_eq_u32 s75, {4*6144}\ns_cselect_b32 s75, 0, s75")
        else:
            if stats:
                for i in range(8): A.e(f"v_fma_f32 v{a+i}, v{CS+i}, v{TM+21}, v{a+i}")
                for i in range(8): A.e(f"v_mul_f32 v{a+i}, v{a+i}, v{TM+22}")
                for op in ("v_mul_f32 v{t}, v{v}, v{v}", "v_fma_f32 v{t}, v{t}, s81, v%d" % (TM + 23), "v_mul_f32 v{t}, v{t}, v{v}", "v_exp_f32 v{t}, v{t}", "v_add_f32 v{t}, 1.0, v{t}", "v_rcp_f32 v{t}, v{t}", "v_mul_f32 v{v}, v{t}, v{v}"):
                    for i in range(8): A.e(op.format(t=TM + i, v=a + i))
            else:
                unpack(A, RES, TM, 4)
                for i in range(8): A.e(f"v_add_f32 v{a+i}, v{a+i}, v{TM+i}")
            for i in range(4): A.e(f"v_cvt_pk_bf16_f32 v{TM+8+i}, v{a+2*i}, v{a+2*i+1}")
            A.e(f"s_add_u32 s64, s66, {outb}\nbuffer_store_dwordx4 {vr(TM+8,4)}, v{L16}, {WSRD}, s64 offen sc1\ns_add_u32 s66, s66, {ost}")
        if F.PROF:
            tst(A, 5); tacc(A, 6)
            if not fin: stamp2(A, ST)
        A.e(f"s_add_u32 s60, s60, 1\ns_cmp_eq_u32 s72, 0\ns_cbranch_scc1 {slowp}")
        if fin and flg: A.e(f"s_waitcnt vmcnt({6+KS})"); fl()
        A.e(f"s_branch {top}")
        A.label(slowp)
        A.e(f"s_waitcnt vmcnt({NS})")
        if fin: fl()
        A.e(f"v_cmp_gt_u32 vcc, s71, v{VF}\ns_cbranch_vccz {lag}")
        if fin:
            fres(); f1(); A.e("s_waitcnt vmcnt(0)"); f2()
            if flg: A.e("s_waitcnt vmcnt(6)")
        elif flg: A.e("s_waitcnt vmcnt(0)")
        fl()
        A.e(f"s_cmp_ge_u32 s60, {NU}\ns_cbranch_scc1 {done}")
        poll_loop(A, pollld, VF, 71)
        A.e(f"s_branch {lag}")
    def pc(k):
        if F.PROF >= 2: A.e(f"s_add_u32 s{98 + k//4}, s{98 + k//4}, {1 << (8 * (k & 3))}")
    def grab(f):
        i0 = len(A.lines); f(); o = [x.strip() for x in A.lines[i0:]]; del A.lines[i0:]; return o
    def f2chk():
        ck = A.newlabel("ck"); rt = A.newlabel("rt"); go = A.newlabel("go")
        A.label(ck)
        for i in range(0, 8, 2): A.e(f"v_pk_add_f32 {vr(PKT+i,2)}, {vr(PKT+i,2)}, {vr(PKT+8+i,2)}\nv_pk_add_f32 {vr(PKT+16+i,2)}, {vr(PKT+16+i,2)}, {vr(FIN+i,2)}")
        for i in range(0, 8, 2): A.e(f"v_pk_add_f32 {vr(PKT+i,2)}, {vr(PKT+i,2)}, {vr(PKT+16+i,2)}")
        A.e(f"v_pk_add_f32 {vr(TM,2)}, {vr(PKT,2)}, {vr(PKT+2,2)}\nv_pk_add_f32 {vr(TM+2,2)}, {vr(PKT+4,2)}, {vr(PKT+6,2)}\nv_pk_add_f32 {vr(TM,2)}, {vr(TM,2)}, {vr(TM+2,2)}")
        A.e(f"v_cmp_u_f32 vcc, v{TM}, v{TM+1}\ns_cbranch_vccnz {rt}")
        A.label(go)
        def d():
            A.label(rt); pc(6)
            A.e(f"s_sub_u32 s90, s90, 1\ns_cmp_gt_i32 s90, 0\ns_cbranch_scc0 {go}"); f1(); A.e(f"s_waitcnt vmcnt(0)\ns_branch {ck}")
        tail.append(d)
    VX, VOX = 21, 22
    def f2rest():
        o = ["s_cmp_eq_u32 s77, 0\ns_cselect_b32 s57, 2.0, 0", f"v_or_b32 v{VX}, s57, v{L16}"] + ([f"v_or_b32 v{VOX}, s57, v{VO}"] if kind == "w4" else [])
        o += grab(lambda: unpack(A, RES, TM, 4))
        if kind == "w4":
            o += grab(lambda: unpack(A, RES + 4, TM + 8, 4))
            o += [f"v_pk_add_f32 {vr(PKT+i,2)}, {vr(PKT+i,2)}, {vr(TM+8+i,2)}" for i in range(0, 8, 2)]
        o += [f"v_fma_f32 v{TM+i}, v{PKT+i}, v{CS+i}, v{TM+i}" for i in range(8)]
        o += [f"v_cvt_pk_bf16_f32 v{TM+8+i}, v{TM+2*i}, v{TM+2*i+1}" for i in range(4)]
        if kind == "wo": o += [f"s_add_u32 s64, s66, {X1}\nbuffer_store_dwordx4 {vr(TM+8,4)}, v{VX}, {WSRD}, s64 offen sc1"]
        else: o += [f"s_and_b32 s64, s66, 0xffff8000\nbuffer_store_dwordx4 {vr(TM+8,4)}, v{VOX}, s[24:27], s64 offen"]
        for h in range(3):
            def rs(fl, h=h):
                for i in (2 * h, 2 * h + 1): A.e(f"buffer_store_dwordx4 {vr(M1,4)}, v{VX}, {WSRD}, s{64+(i>>2)} offen offset:{(i&3)*1024} {fl}")
            o.append("\n".join(["s_add_u32 s64, s74, s75", "s_add_u32 s65, s64, 4096"] + grab(lambda: both(rs))))
        o += [f"s_mul_i32 s64, s77, {ost}\ns_add_u32 s66, s66, s64\ns_mul_i32 s64, s77, 6144\ns_add_u32 s75, s75, s64", f"s_cmp_eq_u32 s75, {4*6144}\ns_cselect_b32 s75, 0, s75\ns_add_u32 s76, s76, s77"]
        r = grab(fres)
        return o + ["\n".join(r[i:i + 2]) for i in range(0, len(r), 2)]
    def cost(x):
        if x.startswith(("v_exp", "v_rcp")): return F.TC
        if "buffer_" in x: return 8
        return 4 if x.startswith("v_") else 2
    def spread(fill, items, lo, budget, hi):
        while True:
            f = {k: list(v) for k, v in fill.items()}; n, k, c = lo, 0, 0
            for x in items:
                if c and c + cost(x) > budget:
                    k += 1; c = 0
                    if k == len(mm(n)): n += 1; k = 0
                f.setdefault((n, k), []).append(x); c += cost(x)
            if n < hi: return f
            budget += 2
    def loop2(fin):
        send = xch and not fin
        NR = 1 if kind == 'wo' else 2
        NS = 7 + NR if fin else (2 if send else 1)
        flg = (not send) and kind != "w4"
        wv = stats and F.WV
        fl = lambda: flag_store(A, VT, "s76" if fin else "s60", 69) if flg else None
        Q1 = KS + F.G1; Q2 = NF - (F.G2 if KS == 8 else F.G2 - F.G2 // 8)
        top = A.newlabel("top"); vN = A.newlabel("vN"); join = A.newlabel("join"); slowp = A.newlabel("slowp"); lag = A.newlabel("lag")
        topW = A.newlabel("topW"); cont = A.newlabel("cont"); epiI = A.newlabel("epiI")
        ex = 2 if res else 1
        nr = [0]
        def emit(Z, y):
            if y.startswith("ds_"): Z.lds(y, y)
            elif y.startswith("need "): Z.need(y[5:])
            else: A.e(y)
        def run(Z, lo, hi, fill={}):
            for n in range(lo, hi):
                while nr[0] < min(NF, n + D + 1) and nr[0] < n + 3: Z.lds(rd(nr[0]), nr[0]); nr[0] += 1
                Z.need(n)
                for k, x in enumerate(mm(n)):
                    A.e(x)
                    if k == 0:
                        for _ in range(2):
                            if nr[0] < min(NF, n + D + 1): Z.lds(rd(nr[0]), nr[0]); nr[0] += 1
                    for y in fill.get((n, k), []): emit(Z, y)
        def pre():
            need(1); need(2, 53)
            A.e(pollld)
            if res: A.e(f"s_add_u32 s64, s66, {H2}\nbuffer_load_dwordx4 {vr(RES,4)}, v{L16}, {WSRD}, s64 offen")
            for x in range(4): A.e(f"v_add_u32 v{VRD+x}, s55, v{VRB+x}")
            A.e("s_add_u32 s55, s55, 32768\ns_and_b32 s55, s55, 0x1ffff")
            tst(A, 0)
        def head(w, fill={}, early=[]):
            Z = Sched(A)
            for i in range(KS):
                if w: A.e(f"s_waitcnt vmcnt({KS-1-i+NS+ex})")
                Z.lds(rd(i), i)
                if i == KS - 1: A.e("s_barrier")
                if i == 2:
                    for x in early: A.e(x)
                if i >= 2:
                    Z.need(i - 2)
                    for k, x in enumerate(mm(i - 2)):
                        A.e(x)
                        for y in fill.get((i - 2, k), []): emit(Z, y)
            nr[0] = KS
            return Z
        fill = {}
        if stats:
            sw = f"ds_write_b64 v{VSW}, {vr(S1,2)}"
            fill[(KS + 3, 0)] = [f"v_cndmask_b32 v{S1+1}, v{S2}, v{S2+1}, s[74:75]"]; fill[(KS + 3, 1)] = [f"v_cndmask_b32 v{S1+1}, v{S1+1}, v{S2+2}, s[76:77]"]
            fill[(KS + 4, 0)] = [f"v_cndmask_b32 v{S1+1}, v{S1+1}, v{S2+3}, s[78:79]"]; fill[(KS + 4, 1)] = [sw]
            srd_ = [f"ds_read_b64 {vr(SP+2*w,2)}, v{VSR} offset:{w*512}" for w in range(4)]
            fill[(KS + 8, 1)] = ["need " + sw, "s_barrier"] + srd_[:2]; fill[(KS + 9, 0)] = srd_[2:]
            sf = ["need " + srd_[3]] + grab(lambda: stats_fin(A, SP, TM + 21, TM + 22, 1))
            for k, x in enumerate(sf): fill.setdefault((KS + 13 + k // 2, k & 1), []).append(x)
            assert KS + 13 + len(sf) // 2 < NF
        cpy = [f"v_fma_f32 v{FIN+i}, v{CS+i}, v{TM+21}, v{ACC+i}" for i in range(8)]
        def gelu(a):
            o = [f"v_mul_f32 v{a+i}, v{a+i}, v{TM+22}" for i in range(8)]
            for op in ("v_mul_f32 v{t}, v{v}, v{v}", "v_fma_f32 v{t}, v{t}, s81, v%d" % (TM + 23), "v_mul_f32 v{t}, v{t}, v{v}"): o += [op.format(t=TM + i, v=a + i) for i in range(8)]
            e = [f"v_exp_f32 v{TM+i}, v{TM+i}" for i in range(8)]; p = [f"v_add_f32 v{TM+i}, 1.0, v{TM+i}" for i in range(8)]
            r = [f"v_rcp_f32 v{TM+i}, v{TM+i}" for i in range(8)]; m = [f"v_mul_f32 v{a+i}, v{TM+i}, v{a+i}" for i in range(8)]
            o += e[:2] + [x for i in range(2, 8) for x in (e[i], p[i - 2])] + p[6:] + r[:2] + [x for i in range(2, 8) for x in (r[i], m[i - 2])] + m[6:]
            return o
        def outst(a): return [f"v_cvt_pk_bf16_f32 v{TM+8+i}, v{a+2*i}, v{a+2*i+1}" for i in range(4)] + [f"s_add_u32 s64, s66, {outb}\nbuffer_store_dwordx4 {vr(TM+8,4)}, v{L16}, {WSRD}, s64 offen sc1\ns_add_u32 s66, s66, {ost}"]
        if fin: fres()
        need(0); poll_loop(A, pollld, VF, 71)
        A.label(lag); pc(0)
        for x in loads(): A.e(x)
        for _ in range(NS): A.e(f"buffer_load_dword v{VT}, off, {WSRD}, s69")
        A.e("s_mov_b32 s72, 1\ns_mov_b32 s54, 0")
        def first_i(main):
            tA = A.newlabel("tA"); tC = A.newlabel("tC"); c2 = A.newlabel("c2"); tB = A.newlabel("tB")
            A.label(top); pre()
            A.e(f"s_cmp_lg_u32 s72, 2\ns_cbranch_scc1 {tC}"); A.label(tA)
            Z = head(False); A.label(c2)
            def dH():
                n0 = nr[0]
                A.label(tC); A.e(f"s_cmp_eq_u32 s72, 1\ns_cbranch_scc1 {tB}\ns_waitcnt vmcnt({KS+NS+ex})\ns_branch {tA}")
                A.label(tB); pc(4); head(True)
                if flg and F.FH: A.e(f"s_waitcnt vmcnt({ex + (NS - 1 if fin else 0)})"); fl()
                A.e(f"s_branch {c2}"); nr[0] = n0
            tail.append(dH)
            tst(A, 1)
            run(Z, KS - 2, Q1, fill)
            A.e(f"s_waitcnt vmcnt({ex-1})"); fl()
            if wv: A.e("s_mov_b32 s57, 0")
            return Z
        Z = first_i(True)
        if wv:
            A.e(f"s_branch {cont}")
            A.label(topW); pc(3); pre()
            G = gelu(FIN) + outst(FIN)
            fW = spread(fill, G[F.WE:], 0, F.WB, Q1)
            Z = head(False, fW, cpy + G[:F.WE]); tst(A, 1); run(Z, KS - 2, Q1, fW)
            A.e("s_waitcnt vmcnt(1)\ns_mov_b32 s57, 1" if not F.XW & 1 else "s_mov_b32 s57, 1")
        A.label(cont)
        tst(A, 2)
        if fin: f1()
        vD = A.newlabel("vD"); bk = A.newlabel("bk")
        A.e(f"s_cmp_eq_u32 s54, 0\ns_cselect_b32 s64, s71, s53\nv_cmp_gt_u32 vcc, s64, v{VF}\ns_cbranch_vccnz {vN}\ns_mov_b32 s72, 2\ns_cbranch_scc1 {vD}"); A.label(bk)
        def dD():
            A.label(vD); A.e(f"s_mov_b32 s72, 1\nv_cmp_gt_u32 vcc, s53, v{VF}\ns_cbranch_vccnz {bk}")
            pc(1)
            for x in loads(): A.e(x)
            A.e(f"s_mov_b32 s72, 3\ns_mov_b32 s54, 1\ns_branch {bk}")
        tail.append(dD)
        n0 = nr[0]; Z2 = Z.copy()
        def burst(lab, back, post=""):
            def d():
                A.label(lab); pc(7)
                for x in loads(): A.e(x)
                A.e(post); A.e(f"s_branch {back}")
            tail.append(d)
        def second(Z, R):
            f = {k: list(v) for k, v in fill.items()}
            if R:
                L_ = loads(); ns = 2 * (Q2 - Q1); i = 0
                for x in L_:
                    sl_ = min(ns - 1, i * ns // KS); f.setdefault((Q1 + sl_ // 2, sl_ & 1), []).append(x)
                    if x.startswith("buffer"): i += 1
            else: A.e(pollld)
            run(Z, Q1, Q2, f)
            tst(A, 3)
            if R and (fin or wv) and not (wv and F.XW & 2):
                w2_ = A.newlabel("w2"); w3_ = A.newlabel("w3")
                A.e(f"s_cmp_eq_u32 s72, 3\ns_cbranch_scc1 {w2_}\ns_waitcnt vmcnt({KS})"); A.label(w3_)
                def d(): A.label(w2_); A.e(f"s_waitcnt vmcnt({2*KS})\ns_branch {w3_}")
                tail.append(d)
            if not R: A.e("s_waitcnt vmcnt(0)")
            if wv:
                sk = A.newlabel("sk"); A.e(f"s_cmp_eq_u32 s57, 0\ns_cbranch_scc1 {sk}"); fl(); A.label(sk)
            if not R:
                b1 = A.newlabel("bu"); b2 = A.newlabel("bb")
                A.e(f"s_cmp_eq_u32 s54, 0\ns_cselect_b32 s64, s71, s53\nv_cmp_gt_u32 vcc, s64, v{VF}\ns_cbranch_vccz {b1}\ns_lshl_b32 s72, s54, 1\ns_mov_b32 s54, 0")
                A.e(pollld); A.label(b2)
                burst(b1, b2, "s_add_u32 s72, s54, 1")
            f = fill
            if fin:
                sk = A.newlabel("sk"); A.e(f"s_cmp_eq_u32 s77, 0\ns_cbranch_scc1 {sk}"); f2chk(); A.label(sk)
                f = spread(fill, f2rest(), Q2, F.FB, NF)
            run(Z, Q2, NF, f)
            if res and R: A.e(f"s_waitcnt vmcnt({KS})")
            if wv and R and F.XW: A.e(f"s_waitcnt vmcnt({KS+3})")
        second(Z, True)
        A.label(join)
        def dN():
            A.label(vN); pc(2); nr[0] = n0
            second(Z2, False)
            if not fin:
                b1 = A.newlabel("bu")
                A.e(f"s_cmp_lg_u32 s72, 0\ns_cbranch_scc1 {join}\ns_waitcnt vmcnt(0)\nv_cmp_gt_u32 vcc, s71, v{VF}\ns_cbranch_vccz {b1}")
                A.e(pollld)
                burst(b1, join, "s_mov_b32 s72, 1")
            A.e(f"s_branch {join}")
        tail.append(dN)
        tst(A, 4)
        a = ACC
        def prof():
            if F.PROF:
                tst(A, 5); tacc(A, 6)
                if not fin: stamp2(A, ST)
        if fin:
            if F.PROF:
                sk = A.newlabel("sk"); A.e(f"s_cmp_eq_u32 s77, 0\ns_cbranch_scc1 {sk}"); stamp2(A, ST, "s76", 1); A.label(sk); A.e("s_nop 4")
            for i in range(8): A.e(f"v_mov_b32 v{FIN+i}, v{a+i}")
            A.e("s_mov_b32 s77, 1")
        elif send:
            A.e("s_add_u32 s64, s74, s75")
            both(lambda f_: [A.e(f"buffer_store_dwordx4 {vr(a+4*t,4)}, v{L16}, {WSRD}, s64 offen offset:{t*1024} {f_}") for t in range(2)])
            A.e(f"s_add_u32 s75, s75, 6144\ns_cmp_eq_u32 s75, {4*6144}\ns_cselect_b32 s75, 0, s75")
        elif stats:
            if wv:
                A.e(f"s_cmp_lg_u32 s72, 2\ns_cbranch_scc1 {epiI}"); prof(); A.e(f"s_add_u32 s60, s60, 1\ns_branch {topW}"); A.label(epiI); A.e("s_nop 3")
            for x in cpy + gelu(FIN) + outst(FIN): A.e(x)
        else:
            unpack(A, RES, TM, 4)
            for i in range(8): A.e(f"v_add_f32 v{a+i}, v{a+i}, v{TM+i}")
            for x in outst(a): A.e(x)
        prof()
        A.e(f"s_add_u32 s60, s60, 1\ns_cmp_lg_u32 s72, 0\ns_cbranch_scc1 {top}")
        if fin:
            l2 = A.newlabel("l2")
            f1(); A.e("s_waitcnt vmcnt(6)"); fl()
            A.e(f"v_cmp_gt_u32 vcc, s71, v{VF}\ns_cbranch_vccnz {l2}")
            pc(0)
            for x in loads(): A.e(x)
            A.e(f"s_waitcnt vmcnt({KS + flg})")
            def fin_now():
                f2chk()
                for x in f2rest(): A.e(x)
                if F.PROF: stamp2(A, ST, "s76", 1)
                A.e("s_mov_b32 s77, 0")
            fin_now()
            A.e(f"s_mov_b32 s72, 1\ns_branch {top}")
            A.label(l2)
            A.e(f"s_waitcnt vmcnt({0 + flg})"); fin_now()
            if flg: A.e(f"s_waitcnt vmcnt({NS-1})")
        else:
            A.e(f"s_waitcnt vmcnt({NS})\nv_cmp_gt_u32 vcc, s71, v{VF}\ns_cbranch_vccz {lag}")
            if flg: A.e("s_waitcnt vmcnt(0)")
        fl()
        A.e(f"s_cmp_ge_u32 s60, {NU}\ns_cbranch_scc1 {done}")
        pc(5); poll_loop(A, pollld, VF, 71)
        A.e(f"s_branch {lag}")
    if F.PROF:
        for r in ST: A.e(f"v_mov_b32 v{r}, 0")
        A.e(f"s_memrealtime s[84:85]\ns_waitcnt lgkmcnt(0)\nv_writelane_b32 v{ST[2]}, s84, 0\nv_writelane_b32 v{ST[2]}, s86, 1")
        if xch:
            _f2 = f2
            def f2():
                _f2(); stamp2(A, ST, "s76", 1)
    tinit(A)
    lp_ = loop2 if F.NL else loop
    if xch:
        lf = A.newlabel("lfin")
        A.e(f"s_cmp_eq_u32 s50, s52\ns_cbranch_scc1 {lf}")
        lp_(False); A.label(lf); lp_(True)
    else: lp_(False)
    while tail: tail.pop(0)()
    A.label(done)
    tout(A, ST[2]); stamp_out(A, ST)
    A.e("s_endpgm")

class VMQ:
    def __init__(self, A, hist): self.A = A; self.q = list(hist); self.done = -1
    def op(self, ins, tag): self.A.e(ins); self.q.append(tag)
    def need(self, tag):
        i = len(self.q) - 1 - self.q[::-1].index(tag)
        if i > self.done:
            n = len(self.q) - 1 - i; assert n < 64
            self.A.e(f"s_waitcnt vmcnt({n})"); self.done = i
def gemm3_role(A, L, kind):
    KS = 7 if kind == "w4" else 8
    stats = kind in ("w1", "w3"); xch = kind in ("wo", "w4"); res = kind == "w2"
    L16, VFA, VA, VW, VR_, ONE, VF, VT, VO, VSW, VSR, VX, VOX = 0, 2, 3, 4, 7, 12, 16, 17, 18, 19, 20, 21, 22
    ACC, AF, RD, FIN, PKT, CS, RES, TM, M1, S1, S2, SP = 32, 64, 96, 120, 128, 152, 160, 168, 204, 208, 212, 216; ST = (200, 201, 202)
    NF = 4 * KS; H = KS - F.H3; OWN = ACC + 24
    wreg = lambda n, t, k=4, o=0: ar((n * 2 + t) * 4 + o, k)
    done = A.newlabel("done"); tail = []
    lanes(A)
    arg, ld, nbytes = dict(wo=("Wo", 2048, 8 * MB), w1=("w1", 2048, 2 * MB), w2=("w2", 2048, 2 * MB), w3=("w3", 7168, 7 * MB), w4=("w4", 2048, 7 * MB))[kind]
    ldptr(A, 4, arg)
    if xch: ldptr(A, 6, "x" if kind == "wo" else "out"); A.e("s_lshr_b32 s52, s59, 3\ns_and_b32 s53, s59, 7")
    else: A.e("s_mov_b32 s52, 0\ns_mov_b32 s53, s59")
    A.e(f"s_lshl_b32 s64, s52, 2\ns_add_u32 s64, s64, s50\ns_mul_i32 s54, s64, {KS*32*ld}\ns_lshl_b32 s64, s53, 8\ns_add_u32 s54, s54, s64\ns_waitcnt lgkmcnt(0)")
    A.srd(28, 4, nbytes)
    if xch: A.srd(24, 6, S * D_ * 2)
    def rdw(x):
        def f(buf):
            for kk in range(KS):
                for t in range(2):
                    for h in range(2): A.e(f"ds_read_b64_tr_b16 {wreg(x*KS+kk,t,2,2*h)}, v17 offset:{buf + (32*kk + 4*h)*64 + 8*t}")
                if kk % 3 == 2: A.e("s_waitcnt lgkmcnt(0)")
        return f
    if kind == "w4" and F.W4G: cpoll(A, L, {C_M2: 63}, sl=F.VSL2)
    stage_weights(A, [(28, f"s_xor_b32 s62, s50, {XO[x]}\ns_lshl_b32 s62, s62, 6\ns_add_u32 s62, s62, s54", KS * 32, rdw(x)) for x in range(4)], ld, None, F.NFL2)
    verify(A, L, False, "mod")
    inb, ust = dict(wo=(OB, 131072), w1=(H2, 32768), w2=(G1, 32768), w3=(Y1, 32768), w4=(G3, 112 * 1024))[kind]
    A.e(f"""
    s_barrier
    v_lshlrev_b32 v{L16}, 4, v1
    s_mov_b32 s60, 0
    v_mov_b32 v{VA}, v{L16}
    s_mov_b32 s73, 0xffff0000
    s_lshl_b32 s64, s52, 2
    s_add_u32 s64, s64, s50
    s_mul_i32 s61, s64, {KS*1024}
    s_add_u32 s61, s61, {inb}
    s_lshl_b32 s68, s64, 8
    s_add_u32 s68, s68, {dict(wo=F_ATT, w1=F_LN, w2=F_W1, w3=F_W2, w4=F_W3)[kind]}
    s_lshl_b32 s83, s53, 2
    s_add_u32 s83, s83, s50            ; output fragment index
    s_mul_i32 s64, s50, 6144
    v_add_u32 v{VR_}, s64, v{L16}
    s_mov_b32 s63, 0""")
    for p in range(3): A.e(f"s_xor_b32 s64, s50, {XO[p]}\ns_mul_i32 s64, s64, 6144\ns_add_u32 s64, s64, {p*2048}\nv_add_u32 v{VW+p}, s64, v{L16}")
    nfl = dict(wo=4, w1=4, w2=8, w3=8, w4=7)[kind]
    A.e(f"v_min_u32 v{VFA}, {nfl-1}, v1\nv_lshlrev_b32 v{VFA}, 2, v{VFA}")
    if res:
        A.e(f"""
        s_lshr_b32 s64, s50, 1
        s_add_u32 s64, s64, 1
        s_sub_u32 s65, 0, s64
        s_bitcmp1_b32 s50, 0
        s_cselect_b32 s64, s64, s65
        s_add_u32 s64, s64, 16
        v_add_u32 v26, s64, v21
        v_lshrrev_b32 v27, 4, v26
        v_and_b32 v26, 15, v26
        v_lshl_add_u32 v26, v22, 4, v26
        v_lshlrev_b32 v26, 4, v26
        v_lshl_add_u32 v{VA}, v27, 15, v26
        s_sub_u32 s61, s61, 32768""")
    A.e("s_add_u32 s62, s61, 4096\ns_lshl_b32 s66, s83, 10")
    if kind == "w3":
        A.e(f"s_mul_i32 s65, s83, 147\ns_lshr_b32 s65, s65, 10\ns_mul_i32 s69, s65, {256 - 28}\ns_lshl_b32 s64, s83, 2\ns_add_u32 s69, s69, s64\ns_add_u32 s69, s69, {F_W3}")
    else:
        A.e(f"s_lshr_b32 s65, s83, 3\ns_lshl_b32 s65, s65, 8\ns_and_b32 s64, s83, 7\ns_lshl_b32 s64, s64, 2\ns_add_u32 s69, s64, s65\ns_add_u32 s69, s69, {dict(wo=F_WO, w1=F_W1, w2=F_W2, w4=F_W4)[kind]}")
    if res: A.e(f"s_add_u32 s82, s66, {H2}")
    outb, ost = dict(wo=(X1, 32768), w1=(G1, 32768), w2=(Y1, 32768), w3=(G3, 112 * 1024), w4=(0, 32768))[kind]
    if xch:
        A.e(f"""
        s_lshl_b32 s64, s53, 2
        s_add_u32 s64, s64, s50
        s_mul_i32 s74, s64, {4*6144}
        s_xor_b32 s64, s50, s52
        s_sub_u32 s64, s64, 1
        s_max_i32 s64, s64, 0
        s_lshl_b32 s64, s64, 11
        s_add_u32 s74, s74, s64
        s_add_u32 s74, s74, {XP + (0 if kind == 'wo' else 768*KB)}
        s_mov_b32 s75, 0
        s_mov_b32 s77, 0                   ; pending
        v_lshlrev_b32 v26, 11, v21
        v_lshl_add_u32 v26, v22, 4, v26
        s_lshl_b32 s64, s83, 6
        v_add_u32 v{VO}, s64, v26
        v_lshlrev_b32 v26, 5, v22
        s_lshl_b32 s64, s83, 7
        s_add_u32 s64, s64, {MOD + (2 if kind == 'wo' else 5)*4096}""")
        for g in range(4):
            for i in range(2): A.e(f"buffer_load_dwordx4 {vr((CS if g == 0 else PKT + 8*(g-1)) + 4*i, 4)}, v26, {WSRD}, s64 offen offset:{16*i} sc1")
            A.e(f"s_add_u32 s64, s64, {6144*4}")
        A.e("s_waitcnt vmcnt(0)")
        sum4(A, CS, PKT, 8)
        for i in range(4): A.e(f"v_mov_b32 v{M1+i}, -1")
    def grab(f):
        i0 = len(A.lines); f(); o = [x.strip() for x in A.lines[i0:]]; del A.lines[i0:]; return o
    wr = lambda p, t: f"ds_write_b128 v{VW+p}, {vr(ACC+(2*p+t)*4,4)} offset:{t*1024}"
    rds = [f"ds_read_b128 {vr(RD+4*i,4)}, v{VR_} offset:{i*1024}" for i in range(6)]
    def adds(dst):
        o = []
        for p in range(3):
            for t in range(2):
                o.append("need " + rds[2 * p + t])
                o += [f"v_pk_add_f32 {vr(dst+4*t+i,2)}, {vr((OWN if p == 0 else dst)+4*t+i,2)}, {vr(RD+8*p+4*t+i,2)}" for i in (0, 2)]
        return o
    togw = [f"v_xor_b32 v{r}, 0x8000, v{r}" for r in [VW, VW + 1, VW + 2] + ([VSW] if stats else [])]
    togr = [f"v_xor_b32 v{r}, 0x8000, v{r}" for r in [VR_] + ([VSR] if stats else [])]
    if stats:
        A.e(f"""
        s_lshl_b32 s64, s50, 9
        s_add_u32 s64, s64, 24576
        v_lshlrev_b32 v26, 3, v1
        v_add_u32 v{VSW}, s64, v26
        v_lshl_add_u32 v26, v23, 4, v21
        v_lshlrev_b32 v26, 3, v26
        v_add_u32 v{VSR}, 24576, v26
        s_mov_b32 s74, 0x22222222
        s_mov_b32 s75, 0x22222222
        s_mov_b32 s76, 0x44444444
        s_mov_b32 s77, 0x44444444
        s_mov_b32 s78, 0x88888888
        s_mov_b32 s79, 0x88888888
        s_mov_b32 s80, {f2u(GELU_C0):#x}
        s_mov_b32 s81, {f2u(GELU_C1):#x}
        v_mov_b32 v{TM+23}, s80""")
        for i in range(4): A.e(f"v_mov_b32 v{ONE+i}, 0x3f803f80")
        for ks in range(KS):
            for p in range(4):
                for t in range(2): a = vr(ACC + (2 * p + t) * 4, 4); A.e(f"{MF} {a}, {wreg(p*KS+ks,t)}, {vr(ONE,4)}, {a if ks else 0}")
        for p in range(3):
            for t in range(2): A.e(wr(p, t))
        A.e("s_waitcnt lgkmcnt(0)\ns_barrier")
        for x in rds: A.e(x)
        A.e("s_waitcnt lgkmcnt(0)")
        for x in adds(CS) + togw + togr:
            if not x.startswith("need"): A.e(x)
    ldA = lambda i: f"buffer_load_dwordx4 {vr(AF+4*i,4)}, v{VA}, {WSRD}, s{61+(i>>2)} offen offset:{(i&3)*1024}"
    if F.FREE == 2: ust = 0
    adv = f"s_add_u32 s61, s61, {ust}\ns_add_u32 s62, s62, {ust}"
    pollld = f"buffer_load_dword v{VF}, v{VFA}, {WSRD}, s68 offen sc1"
    dummy = f"buffer_load_dword v{VT+6}, off, {WSRD}, s69"
    if F.FREE == 3: ldA = lambda i: dummy
    if F.FREE == 4: ldA = lambda i: dummy; pollld = dummy; ost = 0
    def need(add, d):
        if F.FREE: return f"s_cmp_ge_u32 s60, {NU-add}\ns_cselect_b32 s{d}, -1, 0"
        o = f"s_add_u32 s{d}, s60, {add+1}"
        if res: o += f"\ns_and_b32 s64, s50, 1\ns_add_u32 s{d}, s{d}, s64\ns_min_u32 s{d}, s{d}, {NU}\ns_cmp_ge_u32 s60, {NU-add}\ns_cselect_b32 s{d}, -1, s{d}"
        return o
    def both(f):
        l1 = A.newlabel("b1"); l2 = A.newlabel("b2")
        A.e(f"s_cmp_eq_u32 s56, 1\ns_cbranch_scc1 {l1}"); f("")
        A.label(l2)
        def d(): A.label(l1); A.e("s_nop 7"); f("sc1"); A.e(f"s_branch {l2}")
        tail.append(d)
    def pc(k):
        if F.PROF >= 2: A.e(f"s_add_u32 s{98 + k//4}, s{98 + k//4}, {1 << (8 * (k & 3))}")
    f1s = ["s_add_u32 s84, s74, s75\ns_add_u32 s85, s84, 4096"] + [f"vm:pk:buffer_load_dwordx4 {vr(PKT+4*i,4)}, v{L16}, {WSRD}, s{84+(i>>2)} offen offset:{(i&3)*1024} sc1" for i in range(6)]
    if kind == "wo": fres = [f"vm:rs:s_and_b32 s64, s66, 0xffff8000\nbuffer_load_dwordx4 {vr(RES,4)}, v{VO}, s[24:27], s64 offen"]
    else: fres = [f"vm:rs:s_add_u32 s64, s66, {b}\nbuffer_load_dwordx4 {vr(RES+4*i,4)}, v{L16}, {WSRD}, s64 offen" for i, b in enumerate((X1, Y1))]
    plain = lambda x: x.split(":", 2)[2] if x.startswith("vm") else x
    def f2chk():
        ck = A.newlabel("ck"); rt = A.newlabel("rt"); go = A.newlabel("go")
        A.e(f"s_cmp_eq_u32 s77, 0\ns_cbranch_scc1 {go}")
        A.label(ck)
        for i in range(0, 8, 2): A.e(f"v_pk_add_f32 {vr(PKT+i,2)}, {vr(PKT+i,2)}, {vr(PKT+8+i,2)}\nv_pk_add_f32 {vr(PKT+16+i,2)}, {vr(PKT+16+i,2)}, {vr(FIN+i,2)}")
        for i in range(0, 8, 2): A.e(f"v_pk_add_f32 {vr(PKT+i,2)}, {vr(PKT+i,2)}, {vr(PKT+16+i,2)}")
        A.e(f"v_pk_add_f32 {vr(TM,2)}, {vr(PKT,2)}, {vr(PKT+2,2)}\nv_pk_add_f32 {vr(TM+2,2)}, {vr(PKT+4,2)}, {vr(PKT+6,2)}\nv_pk_add_f32 {vr(TM,2)}, {vr(TM,2)}, {vr(TM+2,2)}")
        A.e(f"v_cmp_u_f32 vcc, v{TM}, v{TM+1}\ns_cbranch_vccnz {rt}")
        A.label(go)
        def d():
            A.label(rt); pc(6)
            A.e(f"s_sub_u32 s90, s90, 1\ns_cmp_gt_i32 s90, 0\ns_cbranch_scc0 {go}")
            for x in f1s: A.e(plain(x))
            A.e(f"s_waitcnt vmcnt(0)\ns_branch {ck}")
        tail.append(d)
    def f2rest():
        o = ["s_cmp_eq_u32 s77, 0\ns_cselect_b32 s57, 2.0, 0", f"v_or_b32 v{VX}, s57, v{L16}"] + ([f"v_or_b32 v{VOX}, s57, v{VO}"] if kind == "w4" else [])
        o += grab(lambda: unpack(A, RES, TM, 4))
        if kind == "w4":
            o += grab(lambda: unpack(A, RES + 4, TM + 8, 4))
            o += [f"v_pk_add_f32 {vr(PKT+i,2)}, {vr(PKT+i,2)}, {vr(TM+8+i,2)}" for i in range(0, 8, 2)]
        o += [f"v_fma_f32 v{TM+i}, v{PKT+i}, v{CS+i}, v{TM+i}" for i in range(8)]
        o += [f"v_cvt_pk_bf16_f32 v{TM+8+i}, v{TM+2*i}, v{TM+2*i+1}" for i in range(4)]
        if kind == "wo": o += [f"vm:out:s_add_u32 s64, s66, {X1}\nbuffer_store_dwordx4 {vr(TM+8,4)}, v{VX}, {WSRD}, s64 offen sc1"]
        else: o += [f"vm:out:s_and_b32 s64, s66, 0xffff8000\nbuffer_store_dwordx4 {vr(TM+8,4)}, v{VOX}, s[24:27], s64 offen"]
        for h in range(3):
            def rs(fl, h=h):
                for i in (2 * h, 2 * h + 1): A.e(f"buffer_store_dwordx4 {vr(M1,4)}, v{VX}, {WSRD}, s{84+(i>>2)} offen offset:{(i&3)*1024} {fl}")
            o.append("vm2:rz:" + "\n".join(grab(lambda: both(rs))))
        o += [f"s_mul_i32 s64, s77, {ost}\ns_add_u32 s66, s66, s64\ns_mul_i32 s64, s77, 6144\ns_add_u32 s75, s75, s64", f"s_cmp_eq_u32 s75, {4*6144}\ns_cselect_b32 s75, 0, s75\ns_add_u32 s63, s63, s77"]
        if F.PROF:
            sk = A.newlabel("sk"); o.append("\n".join([f"s_cmp_eq_u32 s77, 0\ns_cbranch_scc1 {sk}"] + grab(lambda: stamp2(A, ST, "s63", 1, 92 if F.PROF == 1 else 84)) + [f"{sk}:"]))
        return o + ["s_mov_b32 s77, 0"] + fres
    def cost(x):
        x = plain(x)
        if x.startswith(("v_exp", "v_rcp", "v_rsq")): return F.TC
        if "buffer_" in x: return 8 * x.count("buffer_")
        if x.startswith("ds_write"): return 8
        if x.startswith(("need", "vneed")): return 2
        return 4 if x.startswith(("v_", "ds_")) else 2 * (x.count("\n") + 1)
    M = []; first = {}; last = {}; fin_ = {}
    def mf(p, t, ks):
        a = vr(ACC + (2 * p + t) * 4, 4); first.setdefault(ks, len(M)); last[ks] = len(M); fin_[(p, t)] = len(M)
        M.append(f"{MF} {a}, {wreg(p*KS+ks,t)}, {vr(AF+4*ks,4)}, {a if ks else 0}")
    def ms(ks):
        if not stats: return
        x = vr(AF + 4 * ks, 4); first.setdefault(ks, len(M)); last[ks] = len(M) + 1; fin_["s"] = len(M) + 1
        M.append(f"{MF} {vr(S1,4)}, {vr(ONE,4)}, {x}, {vr(S1,4) if ks else 0}"); M.append(f"{MF} {vr(S2,4)}, {x}, {x}, {vr(S2,4) if ks else 0}")
    for ks in range(F.OD):
        for p in range(3): mf(p, 0, ks); mf(p, 1, ks)
        ms(ks)
    own0 = len(M)
    for ks in range(F.OD): mf(3, 0, ks); mf(3, 1, ks)
    for ks in range(F.OD, H):
        for p in range(4): mf(p, 0, ks); mf(p, 1, ks)
        ms(ks)
    for ks in range(H, KS): ms(ks)
    for p in range(4):
        for ks in range(H, KS): mf(p, 0, ks); mf(p, 1, ks)
    NM = len(M)
    def loop(fin):
        send = xch and not fin
        NS = 0 if fin else (2 if send else 1)
        flg = (not send) and kind != "w4"
        flag = lambda sv: "vm:fl:" + "\n".join(grab(lambda: flag_store(A, VT, sv, 69)))
        sw = f"ds_write_b64 v{VSW}, {vr(S1,2)}"
        srd_ = [f"ds_read_b64 {vr(SP+2*w,2)}, v{VSR} offset:{w*512}" for w in range(4)]
        def post():
            r = rds + (srd_ if stats else []) + togr
            ad = adds(FIN); o = ad[6:]
            if fin: o += ["s_mov_b32 s77, 1"]
            elif send:
                t_ = grab(lambda: both(lambda f_: [A.e(f"buffer_store_dwordx4 {vr(FIN+4*t,4)}, v{L16}, {WSRD}, s64 offen offset:{t*1024} {f_}") for t in range(2)]))
                o += ["vm2:out:" + "\n".join(["s_add_u32 s64, s74, s75"] + t_), f"s_add_u32 s75, s75, 6144\ns_cmp_eq_u32 s75, {4*6144}\ns_cselect_b32 s75, 0, s75"]
            else:
                a = FIN
                if stats:
                    o = ["need " + srd_[3]] + grab(lambda: stats_fin(A, SP, TM + 21, TM + 22, 1)) + o
                    o += [f"v_fma_f32 v{a+i}, v{CS+i}, v{TM+21}, v{a+i}" for i in range(8)] + [f"v_mul_f32 v{a+i}, v{a+i}, v{TM+22}" for i in range(8)]
                    for op in ("v_mul_f32 v{t}, v{v}, v{v}", "v_fma_f32 v{t}, v{t}, s81, v%d" % (TM + 23), "v_mul_f32 v{t}, v{t}, v{v}"): o += [op.format(t=TM + i, v=a + i) for i in range(8)]
                    e = [f"v_exp_f32 v{TM+i}, v{TM+i}" for i in range(8)]; p = [f"v_add_f32 v{TM+i}, 1.0, v{TM+i}" for i in range(8)]
                    rc = [f"v_rcp_f32 v{TM+i}, v{TM+i}" for i in range(8)]; m = [f"v_mul_f32 v{a+i}, v{TM+i}, v{a+i}" for i in range(8)]
                    o += e[:2] + [x for i in range(2, 8) for x in (e[i], p[i - 2])] + p[6:] + rc[:2] + [x for i in range(2, 8) for x in (rc[i], m[i - 2])] + m[6:]
                else:
                    o = ["vneed res"] + grab(lambda: unpack(A, RES, TM, 4)) + o + [f"v_pk_add_f32 {vr(a+i,2)}, {vr(a+i,2)}, {vr(TM+i,2)}" for i in range(0, 8, 2)]
                o += [f"v_cvt_pk_bf16_f32 v{TM+8+i}, v{a+2*i}, v{a+2*i+1}" for i in range(4)]
                o += [f"vm:out:s_add_u32 s64, s66, {outb}\nbuffer_store_dwordx4 {vr(TM+8,4)}, v{L16}, {WSRD}, s64 offen sc1", f"s_add_u32 s66, s66, {ost}\ns_add_u32 s63, s63, 1"]
                if F.PROF: o.append("\n".join(grab(lambda: stamp2(A, ST, "s63", 1, 92 if F.PROF == 1 else 84))))
            if send and F.PROF: o.append("\n".join(grab(lambda: stamp2(A, ST, "s60", 1, 92 if F.PROF == 1 else 84))))
            return r, ad[:6], o
        def emit(Z, V, y):
            if y.startswith("ds_"): Z.lds(y, y)
            elif y.startswith("need "): Z.need(y[5:])
            elif y.startswith("vneed "): V.need(y[6:])
            elif y.startswith("vm:"): _, tg, x = y.split(":", 2); V.op(x, tg)
            elif y.startswith("vm2:"): _, tg, x = y.split(":", 2); V.op(x, tg); V.q.append(tg)
            elif y == "f2chk": f2chk()
            else: A.e(y)
        def plan(W, R):
            fill = {i: [] for i in range(NM)}; used = [0] * NM
            def put(i, *xs):
                for x in xs: fill[i].append(x); used[i] += cost(x)
            def spread(items, lo, hi, budget):
                while True:
                    i = lo; u = list(used); pos = []
                    for x in items:
                        while i < hi and u[i] and u[i] + cost(x) > budget: i += 1
                        if i >= hi: break
                        pos.append(i); u[i] += cost(x)
                    if len(pos) == len(items): break
                    budget += 2
                for i, x in zip(pos, items): put(i, x)
                return pos
            put(0, need(1, 71)); put(1, need(2, 53))
            if flg and not fin: put(2, "s_mov_b32 s57, s63")
            for p in range(3):
                for t in range(2): put(min(NM - 1, fin_[(p, 1)] + F.WD + t), wr(p, t))
            if stats:
                k = fin_["s"] + F.WD
                put(k, f"v_cndmask_b32 v{S1+1}, v{S2}, v{S2+1}, s[74:75]", f"v_cndmask_b32 v{S1+1}, v{S1+1}, v{S2+2}, s[76:77]"); put(k + 1, f"v_cndmask_b32 v{S1+1}, v{S1+1}, v{S2+3}, s[78:79]"); put(k + 2, sw)
            if R:
                for ks in range(KS): put(last[ks], f"vm:L{ks}:" + ldA(ks))
                put(NM - 1, adv)
            put(NM * (F.PPR if R else F.PPN) // 32, "vm:poll:" + pollld)
            if flg and not fin: put(F.FP, "vneed out", flag("s57"))
            so = None
            if W or R:
                n_t = len(tail); r, a0, o = post()
                if not W: del tail[n_t:]
                keep = ({k: list(v) for k, v in fill.items()}, list(used))
                pos = spread(o, spread(a0, F.A0, own0, 8)[-1], NM, F.WB3)
                so = [i for i, x in zip(pos, o) if x.startswith(("vm:out", "vm2:out"))]
                if not W:
                    fill, used = keep
                    for i in so:
                        for _ in range(NS): put(i, "vm:out:" + dummy)
                elif flg and not fin and so[0] + F.FD < NM: put(NM - 1 if R else so[0] + F.FD, "vneed out", flag("s63"))
                if not W and flg and not fin and so[0] + F.FD < NM: put(NM - 1, "vm:fl:" + dummy)
            if res: put(max(F.FP + 1, (so[0] + 1) if so else 0, 26), f"vm:res:buffer_load_dwordx4 {vr(RES,4)}, v{L16}, {WSRD}, s82 offen\ns_add_u32 s82, s82, 32768")
            if fin:
                q1 = NM * F.Q1 // 64; q2 = NM - F.Q2R if R else q1 + F.Q2N
                spread(f1s, q1, q1 + 6, 8)
                put(q2, "vneed pk")
                if flg: put(q2, flag("s63"))
                put(q2, "f2chk")
                spread(f2rest(), q2 + 1, NM, 8)
            spread(togw, NM - 1, NM, 64)
            return fill
        def vseq(fill):
            q = []
            for i in range(NM):
                for x in fill[i]:
                    if x.startswith("vm"): q += [x.split(":")[1]] * (2 if x.startswith("vm2:") else 1)
            return q
        n_t = len(tail); histR = vseq(plan(True, True)); del tail[n_t:]
        histB = [f"L{i}" for i in range(KS)] + ["out"] * NS
        def body(W, R):
            fill = plan(W, R)
            if R: assert vseq(fill) == histR, (vseq(fill), histR)
            Z = Sched(A); V = VMQ(A, histR if W else histB)
            if W:
                for x in rds + (srd_ if stats else []) + togr: emit(Z, V, x)
            tst(A, 0)
            fi = {v: k for k, v in first.items()}
            for i, m in enumerate(M):
                if i in fi: V.need(f"L{fi[i]}")
                if i == 16: tst(A, 1)
                if i == NM // 2: tst(A, 2)
                A.e(m)
                for y in fill[i]: emit(Z, V, y)
            tst(A, 3)
            V.need("poll")
            A.e(f"v_cmp_gt_u32 vcc, s{53 if R else 71}, v{VF}\ns_add_u32 s60, s60, 1\ns_waitcnt lgkmcnt(0)\ns_barrier")
            if F.PROF >= 2: tst(A, 4); tst(A, 5); tacc(A, 6)
            return V
        WR, WN, BR, BN, lag, dec, nb = [A.newlabel(x) for x in ("WR", "WN", "BR", "BN", "lag", "dec", "nb")]
        if fin:
            for x in fres: A.e(plain(x))
        A.e(need(0, 71)); A.e(need(1, 53))
        poll_loop(A, pollld, VF, 71)
        A.label(lag); pc(0)
        for i in range(KS): A.e(ldA(i))
        A.e(adv)
        for _ in range(NS): A.e(dummy)
        A.label(dec)
        A.e(f"v_cmp_gt_u32 vcc, s53, v{VF}\ns_cbranch_vccnz {BN}")
        A.label(BR); pc(4); body(False, True); A.e(f"s_cbranch_vccnz {WN}")
        A.label(WR); pc(3); body(True, True); A.e(f"s_cbranch_vccz {WR}")
        def ipost(V):
            Z = Sched(A); r, a0, o = post()
            k = len(o)
            if flg and not fin: k = [i for i, x in enumerate(o) if x.startswith("v_pk_add_f32")][7] + 1
            for x in r + a0 + o[:k]: emit(Z, V, x)
            if k < len(o) and "out" in V.q: V.need("out"); emit(Z, V, flag("s63"))
            for x in o[k:]: emit(Z, V, x)
        endN = A.newlabel("endN")
        A.label(WN); pc(2); VW_ = body(True, False); A.e(f"s_branch {endN}")
        A.label(BN); pc(1); VB_ = body(False, False)
        A.label(endN)
        qa, qb = VW_.q[VW_.done + 1:], VB_.q[VB_.done + 1:]
        def rem(tag): return min(len(q) - 1 - max(i for i, x in enumerate(q) if x == tag) for q in (qa, qb) if tag in q) if tag in qa + qb else None
        hist = []
        tg = sorted([(rem(t), t) for t in ("out", "res") if rem(t) is not None], reverse=True)
        for j, (n, t) in enumerate(tg): hist += [t] + ["x"] * (n - (tg[j + 1][0] + 1 if j + 1 < len(tg) else 0))
        def mk():
            V = VMQ(A, ["out", "res"] + hist); V.done = 1; return V
        A.e(f"s_cbranch_vccnz {nb}")
        pc(7); V = mk()
        for i in range(KS): V.op(ldA(i), f"L{i}")
        A.e(adv)
        ipost(V)
        A.e(f"s_branch {dec}")
        A.label(nb)
        V = mk()
        if not fin: V.op(pollld, "poll")
        ipost(V)
        Z = Sched(A)
        if fin:
            for x in f1s + ["vneed pk"] + ([flag("s63")] if flg else []) + ["f2chk", "vm:poll:" + pollld] + f2rest(): emit(Z, V, x)
            V.need("out" if flg else "poll")
        else:
            V.need("poll"); A.e(f"v_cmp_gt_u32 vcc, s71, v{VF}\ns_cbranch_vccz {lag}")
            if flg: V.need("out")
        if flg: emit(Z, V, flag("s63"))
        if fin: A.e(f"v_cmp_gt_u32 vcc, s71, v{VF}\ns_cbranch_vccz {lag}")
        A.e(f"s_cmp_ge_u32 s60, {NU}\ns_cbranch_scc1 {done}")
        pc(5); poll_loop(A, pollld, VF, 71)
        A.e(f"s_branch {lag}")
    if F.PROF:
        for r in ST: A.e(f"v_mov_b32 v{r}, 0")
        A.e(f"s_memrealtime s[84:85]\ns_waitcnt lgkmcnt(0)\nv_writelane_b32 v{ST[2]}, s84, 0\nv_writelane_b32 v{ST[2]}, s86, 1")
    tinit(A)
    i_loop = len(A.lines)
    if xch:
        lf = A.newlabel("lfin")
        A.e(f"s_cmp_eq_u32 s50, s52\ns_cbranch_scc1 {lf}")
        loop(False); A.label(lf); loop(True)
    else: loop(False)
    while tail: tail.pop(0)()
    if F.XS:
        for i in range(i_loop, len(A.lines)):
            x = A.lines[i]
            if (F.XS & 1 and "store_dwordx4" in x) or (F.XS & 2 and "store_dword " in x) or (F.XS & 4 and "load_dword " in x): A.lines[i] = x.replace(" sc1", "")
            if F.XS & 8 and "s_waitcnt vmcnt" in x: A.lines[i] = "s_nop 0"
    A.label(done)
    tout(A, ST[2]); stamp_out(A, ST)
    A.e("s_endpgm")

def cls(x):
    if x in ("f2chk", "mid"): return (0, 2, 3)
    if x.startswith(("need ", "vneed ")): return (1, 0, 0)
    if x.startswith("vm"): x = x.split(":", 2)[2]
    ls = x.split("\n"); sc = sum(1 for l in ls if l.startswith(("s_", "need", "vneed")))
    if "buffer_" in x or "ds_write" in x:
        lead = 0
        while ls[lead].startswith("s_"): lead += 1
        return (min(lead, 1), 1 if ("load" in x and len(ls) <= 2) else 2, 1)
    if x.startswith("ds_"): return (0, 1, 1)
    if sc == len(ls): return (sc, 0, 0)
    if len(ls) > 1: return (1, 2, 1)
    return (0, 2 if x.startswith(("v_exp", "v_rcp", "v_rsq")) else 1, 2)
class Gaps:
    def __init__(self, n): self.n = n; self.g = [[] for _ in range(n)]; self.over = []
    def load(self, i):
        s = sum(cls(x)[0] for x in self.g[i]); v = sum(cls(x)[1] for x in self.g[i]); return max(0, s - 1) + v
    def put(self, i, *xs): self.g[i] += xs
    def near(self, i, x):
        while i < self.n - 1 and (self.load(i) + cls(x)[1] > 2 or (cls(x)[2] == 1 and any(cls(y)[2] == 1 for y in self.g[i]))): i += 1
        self.g[i].append(x); return i
    def spread(self, items, lo, hi, mx=8):
        for extra in range(0, mx * (hi - lo) + 1):
            t = [list(x) for x in self.g]; i = lo; pos = []; rank = 0
            cap = lambda i: 2 + extra // (hi - lo) + (1 if (i - lo) < extra % (hi - lo) else 0)
            keep = self.g; self.g = t; ok = True
            for x in items:
                c = cls(x)
                while True:
                    if i >= hi: ok = False; break
                    t[i].append(x)
                    if c[2] >= rank and self.load(i) <= cap(i) and not (c[2] == 1 and cap(i) < 4 and sum(cls(y)[2] == 1 for y in t[i]) > 1): break
                    t[i].pop(); i += 1; rank = 0
                if not ok: break
                pos.append(i); rank = c[2]
            if ok: return pos
            if mx < 8 and extra == mx * (hi - lo): self.over += items[len(pos):]; return pos
            self.g = keep
        raise ValueError
    def sched(self, items, lo, hi):
        I = [Ins(x, 0) for x in items]
        dep = [[j for j in range(i) if (I[j].w & (I[i].r | I[i].w)) or (I[j].r & I[i].w)] for i in range(len(I))]
        for extra in range(0, 4 * (hi - lo)):
            keep = self.g; self.g = [list(x) for x in keep]; at = {}
            for g in range(lo, hi):
                cap = 2 + extra // (hi - lo) + (1 if (g - lo) < extra % (hi - lo) else 0)
                while True:
                    free = cap - self.load(g)
                    rdy = [i for i in range(len(I)) if i not in at and all(j in at and (at[j] < g or not I[j].is_trans) for j in dep[i])]
                    c = [i for i in rdy if I[i].is_trans and free >= 2] + [i for i in rdy if not I[i].is_trans and free >= 1]
                    if not c: break
                    at[c[0]] = g; self.g[g].append(items[c[0]])
                if len(at) == len(I): return g
            self.g = keep
        raise ValueError
    def gap(self, i): return sorted(self.g[i], key=lambda x: cls(x)[2])
class VMQ2:
    def __init__(self, A, hist): self.A = A; self.q = [list(x) for x in hist]; self.done = -1
    def op(self, ins, tag): self.A.e(ins); self.q.append([tag])
    def need(self, tag):
        ix = [i for i, x in enumerate(self.q) if tag in x]
        if ix and ix[-1] > self.done:
            n = len(self.q) - 1 - ix[-1]; assert n < 64
            self.A.e(f"s_waitcnt vmcnt({n})"); self.done = ix[-1]
def gemm4_role(A, L, kind):
    KS = 7 if kind == "w4" else 8
    stats = kind in ("w1", "w3"); xch = kind in ("wo", "w4"); res = kind == "w2"
    L16, VFA, VA, VRD, VRB, ONE, VF, VT, VO, VSW, VSR, VX, VOX, VD = 0, 2, 3, 4, 8, 12, 16, 17, 18, 19, 20, 21, 22, 23
    ACC, FIN, S1, S2, SP, XW, NW, PKT, CS, RES, TM, M1, KC = 32, 40, 48, 52, 56, 64, 16, 128, 152, 160, 168, 204, 208; ST = (200, 201, 202)
    NM_, RS_ = TM + 20, TM + 21
    LST = 128 * 1024; D = F.GD; NF = 4 * KS
    wreg = lambda n, t, k=4, o=0: ar((n * 2 + t) * 4 + o, k)
    done = A.newlabel("done"); tail = []
    lanes(A)
    arg, ld, nbytes = dict(wo=("Wo", 2048, 8 * MB), w1=("w1", 2048, 2 * MB), w2=("w2", 2048, 2 * MB), w3=("w3", 7168, 7 * MB), w4=("w4", 2048, 7 * MB))[kind]
    ldptr(A, 4, arg)
    if xch: ldptr(A, 6, "x" if kind == "wo" else "out"); A.e("s_lshr_b32 s52, s59, 3\ns_and_b32 s53, s59, 7")
    else: A.e("s_mov_b32 s52, 0\ns_mov_b32 s53, s59")
    A.e(f"s_mul_i32 s54, s52, {NF*32*ld}\ns_lshl_b32 s64, s53, 8\ns_add_u32 s54, s54, s64\ns_lshl_b32 s64, s50, 6\ns_add_u32 s54, s54, s64\ns_waitcnt lgkmcnt(0)")
    A.srd(28, 4, nbytes)
    if xch: A.srd(24, 6, S * D_ * 2)
    def rdw(x):
        def f(buf):
            for kk in range(KS):
                for t in range(2):
                    for h in range(2): A.e(f"ds_read_b64_tr_b16 {wreg(x*KS+kk,t,2,2*h)}, v17 offset:{buf + (32*kk + 4*h)*64 + 8*t}")
                if kk % 3 == 2: A.e("s_waitcnt lgkmcnt(0)")
        return f
    if kind == "w4" and F.W4G: cpoll(A, L, {C_M2: 63}, sl=F.VSL2)
    stage_weights(A, [(28, f"s_xor_b32 s62, s50, {x}\ns_mul_i32 s62, s62, {KS*32*ld}\ns_add_u32 s62, s62, s54", KS * 32, rdw(x)) for x in range(4)], ld, None, F.NFL2)
    verify(A, L, False, "mod")
    inb, ust = dict(wo=(OB, 131072), w1=(H2, 32768), w2=(G1, 32768), w3=(Y1, 32768), w4=(G3, 112 * 1024))[kind]
    if F.FREE == 2: ust = 0
    A.e(f"""
    s_barrier
    v_lshlrev_b32 v{L16}, 4, v1
    s_mov_b32 s60, 0
    s_lshl_b32 s70, s50, 13
    s_mov_b32 s55, 0
    v_mov_b32 v{VA}, v{L16}
    s_mov_b32 s73, 0xffff0000
    s_lshl_b32 s64, s52, 2
    s_add_u32 s64, s64, s50
    s_mul_i32 s61, s64, {KS*1024}
    s_add_u32 s61, s61, {inb}
    s_lshl_b32 s68, s64, 8
    s_add_u32 s68, s68, {dict(wo=F_ATT, w1=F_LN, w2=F_W1, w3=F_W2, w4=F_W3)[kind]}
    s_lshl_b32 s83, s53, 2
    s_add_u32 s83, s83, s50            ; output fragment index
    s_mov_b32 s63, 0""")
    for x in range(4): A.e(f"s_xor_b32 s64, s50, {x}\ns_lshl_b32 s64, s64, 13\nv_add_u32 v{VRB+x}, s64, v{L16}\nv_mov_b32 v{VRD+x}, v{VRB+x}")
    nfl = dict(wo=4, w1=4, w2=8, w3=8, w4=7)[kind]
    A.e(f"v_min_u32 v{VFA}, {nfl-1}, v1\nv_lshlrev_b32 v{VFA}, 2, v{VFA}")
    if res:
        A.e(f"""
        s_lshr_b32 s64, s50, 1
        s_add_u32 s64, s64, 1
        s_sub_u32 s65, 0, s64
        s_bitcmp1_b32 s50, 0
        s_cselect_b32 s64, s64, s65
        s_add_u32 s64, s64, 16
        v_add_u32 v26, s64, v21
        v_lshrrev_b32 v27, 4, v26
        v_and_b32 v26, 15, v26
        v_lshl_add_u32 v26, v22, 4, v26
        v_lshlrev_b32 v26, 4, v26
        v_lshl_add_u32 v{VA}, v27, 15, v26
        s_sub_u32 s61, s61, 32768""")
    A.e("s_add_u32 s62, s61, 4096\ns_lshl_b32 s66, s83, 10")
    if kind == "w3":
        A.e(f"s_mul_i32 s65, s83, 147\ns_lshr_b32 s65, s65, 10\ns_mul_i32 s69, s65, {256 - 28}\ns_lshl_b32 s64, s83, 2\ns_add_u32 s69, s69, s64\ns_add_u32 s69, s69, {F_W3}")
    else:
        A.e(f"s_lshr_b32 s65, s83, 3\ns_lshl_b32 s65, s65, 8\ns_and_b32 s64, s83, 7\ns_lshl_b32 s64, s64, 2\ns_add_u32 s69, s64, s65\ns_add_u32 s69, s69, {dict(wo=F_WO, w1=F_W1, w2=F_W2, w4=F_W4)[kind]}")
    A.e(f"s_add_u32 s82, s66, {H2 if res else X1}" if kind != "wo" else "s_mov_b32 s82, 0")
    outb, ost = dict(wo=(X1, 32768), w1=(G1, 32768), w2=(Y1, 32768), w3=(G3, 112 * 1024), w4=(0, 32768))[kind]
    if not xch: A.e(f"s_add_u32 s66, s66, {outb}")
    if xch:
        A.e(f"""
        s_lshl_b32 s64, s53, 2
        s_add_u32 s64, s64, s50
        s_mul_i32 s74, s64, {4*6144}
        s_xor_b32 s64, s50, s52
        s_sub_u32 s64, s64, 1
        s_max_i32 s64, s64, 0
        s_lshl_b32 s64, s64, 11
        s_add_u32 s74, s74, s64
        s_add_u32 s74, s74, {XP + (0 if kind == 'wo' else 768*KB)}
        s_mov_b32 s75, 0
        s_mov_b32 s77, 0                   ; pending
        v_lshlrev_b32 v26, 11, v21
        v_lshl_add_u32 v26, v22, 4, v26
        s_lshl_b32 s64, s83, 6
        v_add_u32 v{VO}, s64, v26
        v_lshlrev_b32 v26, 5, v22
        s_lshl_b32 s64, s83, 7
        s_add_u32 s64, s64, {MOD + (2 if kind == 'wo' else 5)*4096}""")
        for g in range(4):
            for i in range(2): A.e(f"buffer_load_dwordx4 {vr((CS if g == 0 else PKT + 8*(g-1)) + 4*i, 4)}, v26, {WSRD}, s64 offen offset:{16*i} sc1")
            A.e(f"s_add_u32 s64, s64, {6144*4}")
        A.e("s_waitcnt vmcnt(0)")
        sum4(A, CS, PKT, 8)
        for i in range(4): A.e(f"v_mov_b32 v{M1+i}, -1")
    if stats:
        A.e(f"""
        s_lshl_b32 s64, s50, 9
        s_add_u32 s64, s64, {LST}
        v_lshlrev_b32 v26, 3, v1
        v_add_u32 v{VSW}, s64, v26
        v_lshl_add_u32 v26, v23, 4, v21
        v_lshlrev_b32 v26, 3, v26
        v_add_u32 v{VSR}, {LST}, v26
        s_mov_b32 s74, 0x22222222
        s_mov_b32 s75, 0x22222222
        s_mov_b32 s76, 0x44444444
        s_mov_b32 s77, 0x44444444
        s_mov_b32 s78, 0x88888888
        s_mov_b32 s79, 0x88888888
        v_mov_b32 v{KC}, {f2u(GELU_C1):#x}
        v_mov_b32 v{KC+1}, {f2u(GELU_C0):#x}
        v_mov_b32 v{KC+2}, 1.0
        v_mov_b32 v{KC+3}, 1.0""")
        for i in range(4): A.e(f"v_mov_b32 v{ONE+i}, 0x3f803f80")
        for n in range(NF):
            for t in range(2): A.e(f"{MF} {vr(CS+4*t,4)}, {wreg(n,t)}, {vr(ONE,4)}, {vr(CS+4*t,4) if n else 0}")
    def grab(f):
        i0 = len(A.lines); f(); o = [x.strip() for x in A.lines[i0:]]; del A.lines[i0:]; return o
    ldA = lambda i: ("s_mov_b32 m0, s70\n" if i == 0 else "s_add_u32 m0, s70, 4096\n" if i == 4 else "") + f"buffer_load_dwordx4 v{VA}, {WSRD}, s{61+(i>>2)} offen offset:{(i&3)*1024} lds"
    adv = [f"s_add_u32 s61, s61, {ust}", f"s_add_u32 s62, s62, {ust}", "s_add_u32 s70, s70, 32768", "s_and_b32 s70, s70, 0x1ffff"]
    pollld = f"buffer_load_dword v{VF}, v{VFA}, {WSRD}, s68 offen sc1"
    dummy = f"buffer_load_dword v{VD}, off, {WSRD}, s66"
    def need(add, d):
        if F.FREE: return f"s_cmp_ge_u32 s60, {NU-add}\ns_cselect_b32 s{d}, -1, 0"
        o = f"s_add_u32 s{d}, s60, {add+1}"
        if res: o += f"\ns_and_b32 s64, s50, 1\ns_add_u32 s{d}, s{d}, s64\ns_min_u32 s{d}, s{d}, {NU}\ns_cmp_ge_u32 s60, {NU-add}\ns_cselect_b32 s{d}, -1, s{d}"
        return o
    def both(f):
        l1 = A.newlabel("b1"); l2 = A.newlabel("b2")
        A.e(f"s_cmp_eq_u32 s56, 1\ns_cbranch_scc1 {l1}"); f("")
        A.label(l2)
        def d(): A.label(l1); A.e("s_nop 7"); f("sc1"); A.e(f"s_branch {l2}")
        tail.append(d)
    def pc(k):
        if F.PROF >= 2: A.e(f"s_add_u32 s{98 + k//4}, s{98 + k//4}, {1 << (8 * (k & 3))}")
    def trs(code):
        sk = A.newlabel("tr")
        return f"""s_sub_u32 s95, s60, {F.TRU}\ns_cmp_ge_u32 s95, 8\ns_cbranch_scc1 {sk}\ns_memrealtime s[92:93]\ns_mov_b32 s95, m0\ns_mov_b32 m0, s94\ns_waitcnt lgkmcnt(0)\ns_lshl_b32 s92, s92, 12\ns_lshl_b32 s93, s60, 4\ns_add_u32 s92, s92, s93\ns_add_u32 s92, s92, {code}\nv_writelane_b32 v{ST[0]}, s92, m0\ns_mov_b32 m0, s95\ns_add_u32 s94, s94, 1\ns_min_u32 s94, s94, 63\n{sk}:"""
    def tr(code):
        if F.TRU: A.e(trs(code))
    f1s = ["s_add_u32 s84, s74, s75", "s_add_u32 s85, s84, 4096"] + [f"vm:pk:buffer_load_dwordx4 {vr(PKT+4*i,4)}, v{L16}, {WSRD}, s{84+(i>>2)} offen offset:{(i&3)*1024} sc1" for i in range(6)]
    if kind == "wo": fres = [f"vm:rs:buffer_load_dwordx4 {vr(RES,4)}, v{VO}, s[24:27], s82 offen", "s_add_u32 s82, s82, 32768"]
    else: fres = [f"vm:rs:buffer_load_dwordx4 {vr(RES,4)}, v{L16}, {WSRD}, s82 offen", f"vm:rs:s_add_u32 s64, s82, {Y1 - X1}\nbuffer_load_dwordx4 {vr(RES+4,4)}, v{L16}, {WSRD}, s64 offen", "s_add_u32 s82, s82, 32768"]
    plain = lambda x: x.split(":", 2)[2] if x.startswith("vm") else x
    def add8(d, a, b, pk):
        if pk: return [f"v_pk_add_f32 {vr(d+i,2)}, {vr(a+i,2)}, {vr(b+i,2)}" for i in range(0, 8, 2)]
        return [f"v_add_f32 v{d+i}, v{a+i}, v{b+i}" for i in range(8)]
    def f2chk():
        ck = A.newlabel("ck"); rt = A.newlabel("rt"); go = A.newlabel("go")
        A.e(f"s_cmp_eq_u32 s77, 0\ns_cbranch_scc1 {go}")
        A.label(ck)
        TM = 184
        for j in range(2): A.e(f"v_max3_u32 v{TM+j}, v{PKT+12*j}, v{PKT+12*j+1}, v{PKT+12*j+2}")
        for q in range(4):
            for j in range(2): A.e(f"v_max3_u32 v{TM+j}, v{TM+j}, v{PKT+12*j+3+2*q}, v{PKT+12*j+4+2*q}")
        A.e(f"v_max3_u32 v{TM}, v{TM}, v{PKT+11}, v{PKT+23}\nv_max_u32 v{TM}, v{TM}, v{TM+1}\nv_cmp_eq_u32 vcc, -1, v{TM}\ns_cbranch_vccnz {rt}")
        A.label(go)
        def d():
            A.label(rt); pc(6)
            A.e(f"s_sub_u32 s90, s90, 1\ns_cmp_gt_i32 s90, 0\ns_cbranch_scc0 {go}")
            for x in f1s: A.e(plain(x))
            A.e(f"s_waitcnt vmcnt(0)\ns_branch {ck}")
        tail.append(d)
    FINP = 212
    def fma8(pk, a):
        if pk: return [f"v_pk_fma_f32 {vr(TM+i,2)}, {vr(a+i,2)}, {vr(CS+i,2)}, {vr(TM+i,2)}" for i in range(0, 8, 2)]
        return [f"v_fma_f32 v{TM+i}, v{a+i}, v{CS+i}, v{TM+i}" for i in range(8)]
    def f2pre(pk, src=FINP):
        o = [f"v_or_b32 v{VX}, s57, v{L16}"] + ([f"v_or_b32 v{VOX}, s57, v{VO}"] if kind == "w4" else []) + grab(lambda: unpack(A, RES, TM, 4))
        if kind == "w4": o += grab(lambda: unpack(A, RES + 4, TM + 8, 4)) + add8(src, src, TM + 8, pk)
        return ["vneed rs", "s_cmp_eq_u32 s77, 0\ns_cselect_b32 s57, 2.0, 0"], o + fma8(pk, src)
    def f2rest(pk):
        o = add8(PKT, PKT, PKT + 8, pk) + add8(PKT, PKT, PKT + 16, pk) + fma8(pk, PKT)
        o += [f"v_cvt_pk_bf16_f32 v{TM+8+i}, v{TM+2*i}, v{TM+2*i+1}" for i in range(4)]
        if kind == "wo": o += [f"vm:out:s_add_u32 s64, s66, {X1}\nbuffer_store_dwordx4 {vr(TM+8,4)}, v{VX}, {WSRD}, s64 offen sc1"]
        else: o += [f"vm:out:s_and_b32 s64, s66, 0xffff8000\nbuffer_store_dwordx4 {vr(TM+8,4)}, v{VOX}, s[24:27], s64 offen"]
        for h in range(3):
            def rs(fl, h=h):
                for i in (2 * h, 2 * h + 1): A.e(f"buffer_store_dwordx4 {vr(M1,4)}, v{VX}, {WSRD}, s{84+(i>>2)} offen offset:{(i&3)*1024} {fl}")
            o.append("vm2:rz:" + "\n".join(grab(lambda: both(rs))))
        o += [f"s_mul_i32 s64, s77, {ost}\ns_add_u32 s66, s66, s64", "s_mul_i32 s64, s77, 6144\ns_add_u32 s75, s75, s64", f"s_cmp_eq_u32 s75, {4*6144}\ns_cselect_b32 s75, 0, s75", "s_add_u32 s63, s63, s77"]
        if F.PROF:
            sk = A.newlabel("sk"); o.append("\n".join([f"s_cmp_eq_u32 s77, 0\ns_cbranch_scc1 {sk}"] + grab(lambda: stamp2(A, ST, "s63", 1, 92 if F.PROF == 1 else 84)) + [f"{sk}:"]))
        return o + ["s_mov_b32 s77, 0"]
    xr = lambda n: vr(XW + 4 * (n % NW), 4)
    rd = lambda n: f"ds_read_b128 {xr(n)}, v{VRD + n//KS} offset:{(n%KS)*1024}"
    M = []; first = {}
    for n in range(NF):
        first[n] = len(M)
        M += [f"{MF} {vr((FIN if n == NF - 1 else ACC)+4*t,4)}, {wreg(n,t)}, {xr(n)}, {vr(ACC+4*t,4) if n else 0}" for t in range(2)]
        if stats and n < KS: M += [f"{MF} {vr(S1,4)}, {vr(ONE,4)}, {xr(n)}, {vr(S1,4) if n else 0}", f"{MF} {vr(S2,4)}, {xr(n)}, {xr(n)}, {vr(S2,4) if n else 0}"]
    NM = len(M); PRE = 3
    def loop(fin):
        send = xch and not fin
        NS = 0 if fin else (2 if send else 1)
        flg = (not send) and kind != "w4"
        flag = lambda sv: "vm:fl:" + "\n".join(grab(lambda: flag_store(A, VT, sv, 69))) + ("\ns_mov_b64 s[96:97], vcc\n" + trs(6) + "\ns_mov_b64 vcc, s[96:97]" if F.TRU else "")
        def post(pk):
            a = FIN
            if fin: return ([f"v_mov_b32 v{FINP+i}, v{FIN+i}" for i in range(8)] if pk != 2 else []) + ["s_mov_b32 s77, 1"]
            if send:
                t_ = grab(lambda: both(lambda f_: [A.e(f"buffer_store_dwordx4 {vr(FIN+4*t,4)}, v{L16}, {WSRD}, s64 offen offset:{t*1024} {f_}") for t in range(2)]))
                o = ["vm2:out:" + "\n".join(["s_add_u32 s64, s74, s75"] + t_), "s_add_u32 s75, s75, 6144", f"s_cmp_eq_u32 s75, {4*6144}\ns_cselect_b32 s75, 0, s75"]
                if F.PROF: o.append("\n".join(grab(lambda: stamp2(A, ST, "s60", 1, 92 if F.PROF == 1 else 84))))
                return o
            if stats:
                e = [f"v_exp_f32 v{TM+i}, v{TM+i}" for i in range(8)]; rc = [f"v_rcp_f32 v{TM+i}, v{TM+i}" for i in range(8)]
                if pk:
                    P = lambda op, d, *s_, m="": [f"v_pk_{op}_f32 {vr(d+i,2)}, " + ", ".join(vr(x[0] + (i if x[1] else 0), 2) for x in s_) + m for i in range(0, 8, 2)]
                    o = P("fma", a, (CS, 1), (NM_, 0), (a, 1), m=" op_sel_hi:[1,0,1]") + P("mul", a, (a, 1), (NM_, 0), m=" op_sel:[0,1] op_sel_hi:[1,1]") + P("mul", TM, (a, 1), (a, 1))
                    o += P("fma", TM, (TM, 1), (KC, 0), (KC, 0), m=" op_sel:[0,0,1] op_sel_hi:[1,0,1]") + P("mul", TM, (TM, 1), (a, 1)) + e + P("add", TM, (TM, 1), (KC + 2, 0)) + rc + P("mul", a, (TM, 1), (a, 1))
                else:
                    o = []
                    for i0 in range(0, 8, 2):
                        for op in ("v_fma_f32 v{v}, v{c}, v%d, v{v}" % NM_, "v_mul_f32 v{v}, v{v}, v%d" % RS_, "v_mul_f32 v{t}, v{v}, v{v}", "v_fma_f32 v{t}, v{t}, v%d, v%d" % (KC, KC + 1), "v_mul_f32 v{t}, v{t}, v{v}",
                                   "v_exp_f32 v{t}, v{t}", "v_add_f32 v{t}, 1.0, v{t}", "v_rcp_f32 v{t}, v{t}", "v_mul_f32 v{v}, v{t}, v{v}"): o += [op.format(t=TM + i, v=a + i, c=CS + i) for i in (i0, i0 + 1)]
            else: o = add8(a, a, TM, pk)
            o += [f"v_cvt_pk_bf16_f32 v{TM+8+i}, v{a+2*i}, v{a+2*i+1}" for i in range(4)]
            o += [f"vm:out:buffer_store_dwordx4 {vr(TM+8,4)}, v{L16}, {WSRD}, s66 offen sc1", f"s_add_u32 s66, s66, {ost}", "s_add_u32 s63, s63, 1"]
            if F.PROF: o.append("\n".join(grab(lambda: stamp2(A, ST, "s63", 1, 92 if F.PROF == 1 else 84))))
            return o
        def emit(Z, V, y):
            if y.startswith("ds_"): Z.lds(y, y)
            elif y.startswith("need "): Z.need(y[5:])
            elif y.startswith("vneed "): V.need(y[6:])
            elif y.startswith("vm:"): _, tg, x = y.split(":", 2); V.op(x, tg); tr(5) if tg == "out" else None
            elif y.startswith("vm2:"): _, tg, x = y.split(":", 2); V.op(x, tg); V.q.append([tg]); tr(5) if tg == "out" else None
            elif y == "f2chk": f2chk()
            elif y == "mid":
                b1 = A.newlabel("mb"); b2 = A.newlabel("mk")
                A.e(f"v_cmp_gt_u32 vcc, s71, v{VF}\ns_mov_b32 s72, 0\ns_cbranch_vccz {b1}"); A.label(b2)
                def d():
                    A.label(b1); tr(3)
                    for i in range(KS): A.e(ldA(i))
                    for x in adv: A.e(x)
                    A.e(f"s_mov_b32 s72, 1\ns_branch {b2}")
                tail.append(d)
            else: A.e(y)
        def plan(W, R):
            G = Gaps(NM)
            for n in range(1, NF): G.put(first[n] - 1, "need " + rd(n))
            for n in range(PRE if W else F.BD + 1, NF):
                g = first[max(0, n - D)] if n >= D else n - PRE
                if n <= KS and not W: g = first[n - F.BD] - 1
                if n < KS and not W: G.put(g, f"vneed L{n}")
                if n == KS: G.put(g, "s_barrier")
                g = max([g] + [j + 1 for j in range(NM) if any(y.startswith("ds_read_b128") for y in G.g[j])]) if n > KS or W else g
                if n == KS and W: G.g[first[max(0, n - D)]].remove("s_barrier"); G.put(g, "s_barrier")
                G.put(g, rd(n))
            lastrd = max(j for j in range(NM) if any(y.startswith("ds_read_b128") for y in G.g[j]))
            if stats:
                sw = f"ds_write_b64 v{VSW}, {vr(S1,2)}"; srd_ = [f"ds_read_b64 {vr(SP+2*w,2)}, v{VSR} offset:{w*512}" for w in range(4)]
                k = first[KS] + 4
                p_ = G.spread([f"v_cndmask_b32 v{S1+1}, v{S2}, v{S2+1}, s[74:75]", f"v_cndmask_b32 v{S1+1}, v{S1+1}, v{S2+2}, s[76:77]", f"v_cndmask_b32 v{S1+1}, v{S1+1}, v{S2+3}, s[78:79]", sw], k, k + 8)
                k = p_[-1] + F.SB
                G.put(k, "need " + sw, "s_barrier"); p_ = G.spread(srd_, k, k + 10)
                sfin = ["need " + srd_[3]] + grab(lambda: stats_fin(A, SP, NM_, RS_, 1)); ksf = p_[-1] + 6
            if R:
                ns = F.LHI * NM // 64 - F.LLO
                for i in range(KS):
                    x = ldA(i).split("\n"); g = G.near(F.LLO + i * ns // KS, f"vm:L{i}:" + x[-1])
                    if len(x) > 1: G.put(g - 1, x[0])
            if R or not F.QM4: G.near(NM * (F.PPR if R else F.PPN) // 32, "vm:poll:" + pollld)
            else:
                qm = NM * F.QM4 // 64
                G.near(F.PA, "vm:poll:" + pollld); G.put(qm, "vneed poll", "mid"); G.near(qm + 1, "vm:poll:" + pollld)
            G.spread([need(1, 71), need(2, 53)] + (["s_mov_b32 s57, s63"] if flg and not fin else []), 0, 8)
            if flg and not fin and (stats or not W): G.put(G.near(F.FP4, flag("s57")), "vneed out")
            so = None
            if W:
                o = post(False)
                k = [i for i, x in enumerate(o) if not x.startswith("v_")][0]
                g = G.sched(o[:k], F.PO, F.PHI if stats else F.PO + 12) + 1 if k else F.PO
                o = o[k:]; pos = G.spread(o, g, g + 5)
                so = [i for i, x in zip(pos, o) if x.startswith(("vm:out", "vm2:out"))]
                if stats: assert so[0] > F.FP4 + 4
                if res: G.put(G.near(so[0] + F.FD, flag("s63")), "vneed out")
            if stats:
                assert not any(f"v{RS_}" in y for g in range(ksf, NM) for y in G.g[g])
                G.put(ksf, sfin[0]); G.sched(sfin[1:], ksf, NM)
            if res:
                G.put(G.near(F.LLO - 2, f"vm:res:buffer_load_dwordx4 {vr(RES,4)}, v{L16}, {WSRD}, s82 offen") + 1, "s_add_u32 s82, s82, 32768")
                G.put(F.RSP, "vneed res"); G.sched(grab(lambda: unpack(A, RES, TM, 4)), F.RSP, NM)
            if fin:
                q1 = NM * F.Q1 // 64; q2 = NM - F.Q2R if R else q1 + F.Q2N
                G.spread(f1s, q1, q1 + 12)
                p0, p1 = f2pre(False); G.put(F.Q0, *p0); g = G.sched(p1, F.Q0 + 1, q2) + 1; G.spread(fres, g, g + 8)
                G.put(q2, "vneed pk")
                if flg: G.put(q2, flag("s63"))
                G.put(q2, "f2chk")
            nx = ["s_add_u32 s55, s55, 32768", "s_and_b32 s55, s55, 0x1ffff"] + [f"v_add_u32 v{VRD+x}, s55, v{VRB+x}" for x in range(4)]
            if R:
                nx = adv + nx + [f"vneed L{KS-1}"] + [rd(n) for n in range(PRE)]
            G.spread(nx, lastrd + 1, NM)
            if fin: G.spread(f2rest(False), q2 + 1, NM, 1)
            return G
        def vseq(G):
            return [t for x in sum([G.gap(i) for i in range(NM)], []) + G.over if x.startswith("vm") for t in [x.split(":")[1]] * (2 if x.startswith("vm2:") else 1)]
        n_t = len(tail); hs = [vseq(plan(w, True)) for w in (True, False)]; del tail[n_t:]
        def merge(hs):
            aft = {t: min(len(q) - 1 - max(i for i, x in enumerate(q) if x == t) for q in hs if t in q) for t in set(sum(hs, []))}
            h = [[] for _ in range(max(aft.values(), default=-1) + 1)]
            for t, n in aft.items(): h[len(h) - 1 - n].append(t)
            return h
        histR = merge(hs)
        histB = [["rs"]] + [[f"L{i}"] for i in range(KS)] + [["out"]] * NS
        def body(W, R):
            G = plan(W, R)
            Z = Sched(A); V = VMQ2(A, histR if W else histB)
            tst(A, 0)
            if W: Z.q = [rd(n) for n in range(PRE)]
            else:
                for n in range(F.BD + 1): V.need(f"L{n}"); Z.lds(rd(n), rd(n))
            Z.need(rd(0))
            tr(8 + 2 * W + R)
            for i, m in enumerate(M):
                if i == 16: tst(A, 1)
                if i == NM // 2: tst(A, 2)
                A.e(m)
                if i == NM - 1: V.need("poll"); A.e(f"v_cmp_gt_u32 vcc, s{53 if R else 71}, v{VF}") if not fin else None
                for y in G.gap(i): emit(Z, V, y)
            for y in G.over: emit(Z, V, y)
            if fin: A.e(f"v_cmp_gt_u32 vcc, s{53 if R else 71}, v{VF}")
            tst(A, 3); tr(4)
            A.e("s_add_u32 s60, s60, 1")
            if F.PROF >= 2: tst(A, 4); tst(A, 5); tacc(A, 6)
            return V
        WR, WN, BR, BN, lag, dec, nb = [A.newlabel(x) for x in ("WR", "WN", "BR", "BN", "lag", "dec", "nb")]
        A.e(need(0, 71)); A.e(need(1, 53))
        poll_loop(A, pollld, VF, 71)
        A.label(lag); pc(0); tr(1)
        for i in range(KS): A.e(ldA(i))
        for x in adv: A.e(x)
        for _ in range(NS): A.e(dummy)
        A.label(dec)
        A.e(f"v_cmp_gt_u32 vcc, s53, v{VF}\ns_cbranch_vccnz {BN}")
        A.label(BR); pc(4); body(False, True); A.e(f"s_cbranch_vccnz {WN}")
        A.label(WR); pc(3); body(True, True); A.e(f"s_cbranch_vccz {WR}")
        endN = A.newlabel("endN")
        A.label(WN); pc(2); VW_ = body(True, False); A.e(f"s_branch {endN}")
        A.label(BN); pc(1); VB_ = body(False, False)
        A.label(endN)
        hist = merge([[t[0] if t else "x" for t in V_.q[V_.done + 1:]] for V_ in (VW_, VB_)])
        mk = lambda: VMQ2(A, hist)
        def ipost(V, pk=True):
            Z = Sched(A); o = post(pk)
            k = 12 if stats and "out" in sum(hist, []) else len(o)
            for x in o[:k]: emit(Z, V, x)
            if k < len(o): V.need("out"); emit(Z, V, flag("s63"))
            for x in o[k:]: emit(Z, V, x)
        if F.QM4:
            nm_ = A.newlabel("nm")
            A.e(f"s_cmp_eq_u32 s72, 0\ns_cbranch_scc1 {nm_}\ns_nop 3"); ipost(mk()); A.e(f"s_branch {dec}"); A.label(nm_)
        A.e(f"s_cbranch_vccnz {nb}")
        pc(7); tr(2); V = mk()
        for i in range(KS): V.op(ldA(i), f"L{i}")
        for x in adv: A.e(x)
        ipost(V)
        A.e(f"s_branch {dec}")
        A.label(nb)
        V = mk()
        if not fin: V.op(pollld, "poll")
        A.e("s_nop 3")
        ipost(V, 2)
        Z = Sched(A)
        if fin:
            if F.FDL: A.e(f"s_sleep {F.FDL}")
            for x in f1s + sum(f2pre(True, FIN), []) + ["vneed pk"] + ([flag("s63")] if flg else []) + ["f2chk", "vm:poll:" + pollld] + f2rest(True): emit(Z, V, x)
            V.need("out" if flg else "poll")
        else:
            V.need("poll"); A.e(f"v_cmp_gt_u32 vcc, s71, v{VF}\ns_cbranch_vccz {lag}")
            if flg: V.need("out")
        if flg: emit(Z, V, flag("s63"))
        if fin: A.e(f"v_cmp_gt_u32 vcc, s71, v{VF}\ns_cbranch_vccz {lag}")
        A.e(f"s_cmp_ge_u32 s60, {NU}\ns_cbranch_scc1 {done}")
        pc(5); poll_loop(A, pollld, VF, 71)
        A.e(f"s_branch {lag}")
    if F.PROF:
        for r in ST: A.e(f"v_mov_b32 v{r}, 0")
        A.e(f"s_memrealtime s[84:85]\ns_waitcnt lgkmcnt(0)\nv_writelane_b32 v{ST[2]}, s84, 0\nv_writelane_b32 v{ST[2]}, s86, 1")
    tinit(A)
    if F.TRU: A.e("s_mov_b32 s94, 0")
    if xch:
        lf = A.newlabel("lfin")
        A.e(f"s_cmp_eq_u32 s50, s52\ns_cbranch_scc1 {lf}")
        loop(False); A.label(lf); loop(True)
    else: loop(False)
    while tail: tail.pop(0)()
    A.label(done)
    tout(A, ST[2]); stamp_out(A, ST)
    A.e("s_endpgm")

def stamp2(A, ST, s="s60", sub=0, sr_=84):
    if not F.PROF or F.TRU: return
    l1 = A.newlabel("st1"); l2 = A.newlabel("st2"); l3 = A.newlabel("st3"); l4 = A.newlabel("st4")
    if F.SPS and F.PROF == 1: A.e(f"s_sub_u32 s88, {s}, {sub + 4}\ns_cmp_ge_u32 s88, 116\ns_cbranch_scc1 {l4}\ns_and_b32 s88, s88, 7\ns_cmp_lg_u32 s88, 4\ns_cbranch_scc1 {l3}"); A.label(l4)
    A.e(f"s_memrealtime s[{sr_}:{sr_+1}]\ns_sub_u32 s88, {s}, {sub}\ns_lshr_b32 s89, s88, 1\ns_mov_b32 s87, m0\ns_mov_b32 m0, s89\ns_waitcnt lgkmcnt(0)\ns_bitcmp1_b32 s88, 0\ns_cbranch_scc1 {l1}\nv_writelane_b32 v{ST[0]}, s{sr_}, m0\ns_branch {l2}")
    A.label(l1); A.e(f"v_writelane_b32 v{ST[1]}, s{sr_}, m0"); A.label(l2); A.e("s_mov_b32 m0, s87"); A.label(l3); A.e("s_nop 3")

def ln_role(A, L):
    R = dict(RM=8, CO=9, FR=10, SW=11, SR=12); VFA, VF, VT = 13, 14, 15
    C1, SB = 32, 48; BUF = (64, 72); V = 80; T = 96; PK = 112; ST = (120, 121, 122)
    done = A.newlabel("done")
    A.e("s_mov_b32 s52, s59\ns_mov_b32 s60, 0\ns_mov_b32 s73, 0xffff0000")
    row_lanes(A, 52, R)
    A.e(f"v_and_b32 v{VFA}, 7, v1\nv_lshlrev_b32 v{VFA}, 2, v{VFA}")
    verify(A, L, False, "mod")
    load_consts(A, R, 4, C1, 64, True); load_consts(A, R, 3, SB, 64)
    if "ln2" in F.OFF: A.e("s_endpgm")
    A.e(f"""
    s_mov_b32 s63, {X1}
    s_mov_b32 s66, {H2}
    s_lshl_b32 s64, s50, 8
    s_add_u32 s68, s64, {F_WO}
    s_lshl_b32 s65, s59, 2
    s_add_u32 s69, s64, s65
    s_add_u32 s69, s69, {F_LN}""")
    NS = 2
    def loads(par):
        A.e(f"s_add_u32 s64, s63, 4096\nbuffer_load_dwordx4 {vr(BUF[par],4)}, v{R['FR']}, {WSRD}, s63 offen\nbuffer_load_dwordx4 {vr(BUF[par]+4,4)}, v{R['FR']}, {WSRD}, s64 offen\ns_add_u32 s63, s63, 32768")
    pollld = f"buffer_load_dword v{VF}, v{VFA}, {WSRD}, s68 offen sc1"
    def dummies():
        for _ in range(NS): A.e(f"buffer_load_dword v{VT}, off, {WSRD}, s68")
    top = [A.newlabel("top0"), A.newlabel("top1")]
    if F.PROF:
        for r in ST: A.e(f"v_mov_b32 v{r}, 0")
    A.e("s_mov_b32 s71, 1")
    poll_loop(A, pollld, VF, 71)
    loads(0); dummies()
    tail = []
    for par in range(2):
        slowp = A.newlabel("slowp"); p2 = A.newlabel("p2")
        A.label(top[par])
        A.e(pollld)
        A.e(f"s_add_u32 s71, s60, 2\ns_waitcnt vmcnt({NS+1})")
        unpack(A, BUF[par], V, 8)
        i0 = len(A.lines); ln_core(A, V, C1, SB, T, R, par * 2048, PK); body = A.lines[i0:]; del A.lines[i0:]
        k = [i for i, x in enumerate(body) if "s_barrier" in x][0]
        A.lines += body[:k + 1]
        A.e("s_waitcnt vmcnt(0)"); flag_store(A, VT, "s60", 69)
        A.e(f"v_cmp_gt_u32 vcc, s71, v{VF}\ns_mov_b32 s72, 0\ns_cbranch_vccnz {p2}\ns_mov_b32 s72, 1")
        loads(par ^ 1)
        A.label(p2)
        A.lines += body[k + 1:]
        A.e(f"s_add_u32 s64, s66, 4096\nbuffer_store_dwordx4 {vr(PK,4)}, v{R['FR']}, {WSRD}, s66 offen sc1\nbuffer_store_dwordx4 {vr(PK+4,4)}, v{R['FR']}, {WSRD}, s64 offen sc1")
        stamp(A, ST[par])
        A.e(f"s_add_u32 s66, s66, 32768\ns_add_u32 s60, s60, 1\ns_cmp_eq_u32 s72, 0\ns_cbranch_scc1 {slowp}")
        if par: A.e(f"s_branch {top[0]}")
        def d(par=par, slowp=slowp):
            A.label(slowp)
            A.e(pollld)
            A.e("s_waitcnt vmcnt(1)"); flag_store(A, VT, "s60", 69)
            go = A.newlabel("go")
            A.e(f"s_cmp_ge_u32 s60, {NU}\ns_cbranch_scc1 {done}\ns_waitcnt vmcnt(1)\nv_cmp_gt_u32 vcc, s71, v{VF}\ns_cbranch_vccz {go}")
            poll_loop(A, pollld, VF, 71)
            A.label(go)
            loads(par ^ 1); dummies()
            A.e(f"s_branch {top[par^1]}")
        tail.append(d)
    for d in tail: d()
    A.label(done)
    stamp_out(A, ST)
    A.e("s_endpgm")

def att_role(A, L):
    L16, VFA, VKM, VVM, VF, VT, VNEG = 0, 2, 3, 4, 5, 6, 7
    KM, VM, SA, SM, P, TT, OA, PK = 16, 32, 48, 56, 64, 72, 80, 112; ST = (120, 121, 122)
    Q = lambda b, ke: ar(b * 80 + ke * 4, 4)
    K = lambda b, kt, ke: ar(b * 80 + 16 + (kt * 4 + ke) * 4, 4)
    V = lambda b, et: ar(b * 80 + 48 + et * 4, 4)
    verify(A, L, True)
    A.e(f"""
    v_lshlrev_b32 v{L16}, 4, v1
    v_and_b32 v21, 15, v1
    v_lshrrev_b32 v22, 4, v1
    v_and_b32 v23, 7, v21
    v_lshlrev_b32 v23, 4, v23
    v_lshl_add_u32 v{VKM}, v22, 8, v23
    v_and_b32 v23, 31, v1
    v_lshlrev_b32 v{VVM}, 4, v23
    v_and_b32 v23, 3, v1
    v_bfe_u32 v24, v1, 2, 1
    v_lshlrev_b32 v23, 14, v23
    v_lshl_add_u32 v{VFA}, v24, 7, v23
    v_mov_b32 v{VNEG}, {NEG:#x}
    s_and_b32 s54, s50, 1
    s_lshl_b32 s64, s54, 4
    v_lshlrev_b32 v23, 2, v22
    v_sub_u32 v23, v21, v23
    v_add_u32 v23, s64, v23            ; query - 4g""")
    for kt in range(2):
        for r in range(4): A.e(f"v_cmp_le_i32 s[{28+2*(kt*4+r)}:{29+2*(kt*4+r)}], {16*kt+r}, v23")
    A.e(f"""
    s_mov_b32 s44, -1
    s_mov_b32 s45, 0
    s_mov_b32 s80, {f2u(SCL):#x}
    s_lshl_b32 s52, s59, 1
    s_lshr_b32 s64, s50, 1
    s_add_u32 s52, s52, s64            ; head
    s_lshl_b32 s53, s52, 15            ; 2h * 16KB
    s_lshl_b32 s68, s52, 8
    s_add_u32 s68, s68, s67
    s_add_u32 s68, s68, {F_KVM}
    s_lshl_b32 s69, s59, 8
    s_lshl_b32 s64, s64, 2
    s_add_u32 s69, s69, s64
    s_lshl_b32 s64, s54, 3
    s_add_u32 s69, s69, s64
    s_add_u32 s69, s69, {F_ATT}
    s_lshl_b32 s66, s52, 12
    s_lshl_b32 s64, s54, 17
    s_add_u32 s66, s66, s64
    s_add_u32 s66, s66, {OB}
    s_lshl_b32 s55, s54, 10
    s_xor_b32 s55, s55, 0x2000
    s_mov_b32 s60, 0                   ; 2 * segment""")
    def near(dst, add):
        A.e(f"""
        s_add_u32 s64, s60, {2*add}
        s_lshl_b32 s65, s64, 11
        s_and_b32 s65, s65, 0x2000
        s_xor_b32 s65, s65, s67
        s_lshl_b32 s64, s64, 19
        s_add_u32 s64, s64, s65
        s_add_u32 s{dst}, s64, s53""")
    def kq_loads(b, add):
        near(92, add)
        A.e("s_add_u32 s93, s92, 16384\ns_add_u32 s94, s92, 4096\ns_add_u32 s95, s93, 4096\ns_xor_b32 s96, s92, s55\ns_xor_b32 s97, s93, s55")
        for ke in range(4):
            A.e(f"buffer_load_dwordx4 {Q(b,ke)}, v{L16}, {WSRD}, s{96+(ke>>1)} offen offset:{(ke&1)*2048}")
            for kt in range(2): A.e(f"buffer_load_dwordx4 {K(b,kt,ke)}, v{L16}, {WSRD}, s{92+(ke>>1)} offen offset:{(ke&1)*2048 + kt*1024}")
    def v_loads(b):
        for et in range(8): A.e(f"buffer_load_dwordx4 {V(b,et)}, v{L16}, {WSRD}, s{94+(et>>2)} offen offset:{(et&3)*1024}")
    def softmax(vals):
        mx, t, sm, r = TT, TT + 1, TT + 2, TT + 3
        A.e(f"v_max3_f32 v{mx}, v{mx}, v{vals[8]}, v{vals[9]}\nv_max3_f32 v{mx}, v{mx}, v{vals[10]}, v{vals[11]}")
        for sw in ("v_permlane16_swap_b32", "v_permlane32_swap_b32"): A.e(f"v_mov_b32 v{t}, v{mx}\n{sw} v{t}, v{mx}\nv_max_f32 v{mx}, v{mx}, v{t}")
        A.e(f"v_mul_f32 v{mx}, s80, v{mx}")
        for v in vals: A.e(f"v_fma_f32 v{v}, v{v}, s80, -v{mx}")
        for v in vals: A.e(f"v_exp_f32 v{v}, v{v}")
        A.e(f"v_add_f32 v{sm}, v{vals[0]}, v{vals[1]}\nv_add_f32 v{r}, v{vals[2]}, v{vals[3]}")
        for i in range(4, 12, 2): A.e(f"v_add_f32 v{sm}, v{sm}, v{vals[i]}\nv_add_f32 v{r}, v{r}, v{vals[i+1]}")
        A.e(f"v_add_f32 v{sm}, v{sm}, v{r}")
        for sw in ("v_permlane16_swap_b32", "v_permlane32_swap_b32"): A.e(f"v_mov_b32 v{t}, v{sm}\n{sw} v{t}, v{sm}\nv_add_f32 v{sm}, v{sm}, v{t}")
        A.e(f"v_rcp_f32 v{r}, v{sm}")
        for v in vals: A.e(f"v_mul_f32 v{v}, v{v}, v{r}")
        for i in range(6): A.e(f"v_cvt_pk_bf16_f32 v{P+i}, v{vals[2*i]}, v{vals[2*i+1]}")
    pollld = f"buffer_load_dword v{VF}, v{VFA}, {WSRD}, s68 offen sc1"
    if F.PROF:
        for r in ST: A.e(f"v_mov_b32 v{r}, 0")
    A.e("s_mov_b32 s71, 1")
    poll_loop(A, pollld, VF, 71, F.ASL)
    kq_loads(0, 0); v_loads(0)
    A.e("s_waitcnt vmcnt(8)")
    top = [A.newlabel("top0"), A.newlabel("top1")]
    for b in range(2):
        A.label(top[b])
        for ke in range(4):
            for kt in range(2):
                d = vr(SA + 4 * kt, 4); A.e(f"{MF} {d}, {K(b,kt,ke)}, {Q(b,ke)}, {d if ke else 0}")
        for i in range(8): A.e(f"v_cndmask_b32 v{SA+i}, v{VNEG}, v{SA+i}, s[{28+2*i}:{29+2*i}]")
        A.e(f"v_max3_f32 v{TT}, v{SA}, v{SA+1}, v{SA+2}\nv_max3_f32 v{TT}, v{TT}, v{SA+3}, v{SA+4}\nv_max3_f32 v{TT}, v{TT}, v{SA+5}, v{SA+6}\nv_max_f32 v{TT}, v{TT}, v{SA+7}")
        near(98, 0)
        A.e(f"s_add_u32 s98, s98, {KVM}\ns_add_u32 s99, s98, 16384\ns_lshr_b32 s71, s60, 1\ns_add_u32 s71, s71, 1")
        poll_loop(A, pollld, VF, 71, F.ASL)
        for ke in range(4): A.e(f"buffer_load_dwordx4 {vr(KM+4*ke,4)}, v{VKM}, {WSRD}, s{98+(ke>>1)} offen offset:{(ke&1)*128}")
        for ke in range(4): A.e(f"buffer_load_dwordx4 {vr(VM+4*ke,4)}, v{VVM}, {WSRD}, s{98+(ke>>1)} offen offset:{1024 + (ke&1)*512}")
        stamp(A, ST[2])
        if F.PROF: A.e(f"s_memtime s[84:85]\ns_waitcnt lgkmcnt(0)\nv_writelane_b32 v{ST[1]}, s84, m0")
        if F.ABAR: A.e("s_barrier")
        def guarded(f, n):
            if b == 0: return f()
            pf = A.newlabel("pf"); j1 = A.newlabel("j1")
            A.e(f"s_cmp_lt_u32 s60, {NU-2}\ns_cbranch_scc1 {pf}\ns_waitcnt vmcnt({n})\ns_branch {j1}")
            A.label(pf); f(); A.label(j1)
        guarded(lambda: kq_loads(b ^ 1, 1), 0)
        A.e("s_waitcnt vmcnt(16)")
        for ke in range(4): A.e(f"{MF} {vr(SM,4)}, {vr(KM+4*ke,4)}, {Q(b,ke)}, {vr(SM,4) if ke else 0}")
        for r in range(4): A.e(f"v_cndmask_b32 v{SM+r}, v{VNEG}, v{SM+r}, s[44:45]")
        softmax(list(range(SA, SA + 12)))
        for et in range(8): A.e(f"{MF} {vr(OA+4*et,4)}, {V(b,et)}, {vr(P,4)}, 0")
        A.e("s_waitcnt vmcnt(12)")
        for et in range(8): A.e(f"v_mfma_f32_16x16x16_bf16 {vr(OA+4*et,4)}, {vr(VM+2*et,2)}, {vr(P+4,2)}, {vr(OA+4*et,4)}")
        for ke in range(4):
            o = PK + 4 * (ke & 1)
            for i in range(4): A.e(f"v_cvt_pk_bf16_f32 v{o+i}, v{OA+8*ke+2*i}, v{OA+8*ke+2*i+1}")
            A.e(f"buffer_store_dwordx4 {vr(o,4)}, v{L16}, {WSRD}, s66 offen offset:{ke*1024} sc1")
        stamp(A, ST[0])
        if F.ABAR: A.e("s_barrier")
        guarded(lambda: v_loads(b ^ 1), 0)
        A.e("s_add_u32 s66, s66, 262144\ns_add_u32 s60, s60, 2\ns_add_u32 s72, s60, s54\ns_waitcnt vmcnt(8)"); flag_store(A, VT, "s72", 69)
        if b: A.e(f"s_cmp_lt_u32 s60, {NU}\ns_cbranch_scc1 {top[0]}")
    stamp_out(A, ST)
    A.e("s_endpgm")

def flow_kernel(A, name):
    A.begin_kernel(name)
    L = {k: f"fl_{k}" for k in ("fb", "disp0", "disp", "rec", "qkv", "wo", "w4", "w3", "att", "ln2", "w1", "w2", "dutb")}
    done = A.newlabel("done"); nr = A.newlabel("norole")
    A.e(f"s_cmp_ge_u32 s2, 256\ns_cbranch_scc1 {done}\ns_lshr_b32 s49, s2, 3")
    ldptr(A, 18, "ws"); ldptr(A, 2, "dbg")
    if F.KW: ldptr(A, 4, "x")
    A.e(f"""
    s_getreg_b32 s51, hwreg(HW_REG_XCC_ID)
    v_lshrrev_b32 v2, 6, v0
    v_and_b32 v1, 63, v0
    s_and_b32 s51, s51, 7
    v_readfirstlane_b32 s50, v2
    s_mov_b32 s90, {F.BUD}
    s_mov_b32 s56, 2
    s_mov_b32 s88, {CB0}
    s_lshl_b32 s64, s51, 2
    s_lshr_b32 s64, {F.XMAP:#x}, s64
    s_and_b32 s64, s64, 7
    s_lshl_b32 s58, s64, 5
    s_add_u32 s58, s58, s49""")
    if F.PROF: A.e("s_memrealtime s[86:87]")
    A.e("s_waitcnt lgkmcnt(0)")
    A.srd(20, 18, WS_BYTES)
    A.e(f"s_cmp_lg_u32 s50, 0\ns_cbranch_scc1 {L['disp0']}")
    dbg_srd(A, 92)
    A.e(f"""
    s_lshl_b32 s64, 1, s49
    v_mov_b32 v2, s64
    v_mov_b32 v3, 0x100
    s_lshl_b32 s64, s51, 3
    s_mov_b64 exec, 1
    buffer_atomic_add_x2 v[2:3], off, s[92:95], s64 sc1
    s_mov_b64 exec, -1""")
    A.label(L["disp0"])
    A.e("v_mbcnt_lo_u32_b32 v1, -1, 0\nv_mbcnt_hi_u32_b32 v1, -1, v1")
    f1 = A.newlabel("nx"); f2 = A.newlabel("nx")
    A.e(f"s_sub_u32 s59, s58, 64\ns_cbranch_scc0 {f1}\ns_branch {L['rec']}"); A.label(f1)
    A.e(f"s_cmp_lt_u32 s58, 128\ns_cbranch_scc0 {f2}\ns_branch {L['qkv']}"); A.label(f2)
    A.e(f"s_cmp_ge_u32 s58, 192\ns_cbranch_scc1 {L['dutb']}")
    if "A" in F.EXP: A.e("s_endpgm")
    duty(A, L, 0)
    if "a" in F.EXP or F.X2: A.e("s_endpgm")
    A.e(f"s_branch {L['disp']}")
    A.label(L["dutb"])
    if "B" in F.EXP: A.e("s_endpgm")
    duty(A, L, 1)
    A.label(L["disp"])
    for lo, role in ((248, "w2"), (240, "w1"), (224, "att"), (220, "ln2"), (192, "w3"), (160, "w4")):
        far = A.newlabel("nx")
        A.e(f"s_sub_u32 s59, s58, {lo}\ns_cbranch_scc1 {far}\ns_branch {L[role]}"); A.label(far)
    A.e(f"s_sub_u32 s59, s58, 128\ns_branch {L['wo']}")
    A.label(L["fb"])
    tp = A.newlabel("tp"); tg = A.newlabel("tg"); sl = A.newlabel("tsl")
    dbg_srd(A, 92)
    A.e(f"""
    s_waitcnt vmcnt(0) lgkmcnt(0)
    s_barrier
    v_mov_b32 v4, 0
    s_cmp_lg_u32 s50, 0
    s_cbranch_scc1 {nr}
    s_mov_b64 exec, 1
    v_mov_b32 v3, 1
    s_lshl_b32 s52, s51, 2
    s_add_u32 s52, s52, {TICK}
    buffer_atomic_add v3, off, s[92:95], s52 sc0 sc1
    s_waitcnt vmcnt(0)
    ds_write_b32 v4, v3
    s_waitcnt lgkmcnt(0)
    s_mov_b64 exec, -1""")
    A.label(nr)
    A.e(f"""
    s_barrier
    ds_read_b32 v3, v4
    v_mbcnt_lo_u32_b32 v16, -1, 0
    v_and_b32 v16, 7, v16
    v_lshlrev_b32 v16, 2, v16
    s_waitcnt lgkmcnt(0)
    v_readfirstlane_b32 s49, v3
    s_barrier""")
    A.label(tp)
    A.e(f"buffer_load_dword v17, v16, s[92:95], 0 offen offset:{TICK} sc1\ns_waitcnt vmcnt(0)")
    for x in range(8): A.e(f"v_readlane_b32 s{72+x}, v17, {x}")
    A.e("s_add_u32 s65, s72, s73")
    for x in range(2, 8): A.e(f"s_add_u32 s65, s65, s{72+x}")
    A.e(f"s_cmp_ge_u32 s65, 256\ns_cbranch_scc1 {tg}\ns_sleep 4\ns_sub_u32 s90, s90, 1\ns_cmp_gt_i32 s90, 0\ns_cbranch_scc1 {tp}")
    A.label(tg)
    A.e("s_min_u32 s65, s72, s73")
    for x in range(2, 8): A.e(f"s_min_u32 s65, s65, s{72+x}")
    A.e(f"""
    s_mov_b32 s88, {CB1}
    s_cmp_lt_u32 s65, {33 if F.FORCE_SLOW else 32}
    s_cbranch_scc1 {sl}
    s_lshl_b32 s64, s51, 2
    s_lshr_b32 s64, {F.XMAP:#x}, s64
    s_and_b32 s64, s64, 7
    s_lshl_b32 s58, s64, 5
    s_add_u32 s58, s58, s49
    s_mov_b32 s56, 0
    s_branch {L['disp0']}""")
    A.label(sl)
    A.e("s_mov_b32 s58, s49")
    for x in range(7): A.e(f"s_cmp_gt_u32 s51, {x}\ns_cselect_b32 s65, s{72+x}, 0\ns_add_u32 s58, s58, s65")
    if F.FORCE_SLOW: A.e("s_mul_i32 s58, s58, 37\ns_add_u32 s58, s58, 11\ns_and_b32 s58, s58, 255")
    A.e(f"s_mov_b32 s56, 1\ns_cmp_lt_u32 s58, 256\ns_cbranch_scc1 {L['disp0']}")
    A.label(done)
    A.e("s_endpgm")
    A.label(L["qkv"]); qkv_role(A, L)
    for role in ("wo", "w4", "w3", "w1", "w2"):
        A.label(L[role])
        if role in F.OFF: A.e("s_endpgm")
        (gemm4_role if F.K3 == 2 else gemm3_role if F.K3 else gemm_role)(A, L, role)
    A.label(L["ln2"]); ln_role(A, L)
    A.label(L["att"])
    if "att" in F.OFF: A.e("s_endpgm")
    att_role(A, L)
    MFMA_WS[0] = 1
    A.lines = fix_hazards(A.lines)
    B = Asm(); B.uid = A.uid + 100000
    O = rec6.O; O.MEAS = 0; O.DL0 = max(0, O.DL - 9); O.DO01 = max(0, O.DO - 7)
    MFMA_WS[0] = O.MWS
    B.label(L["rec"])
    B.e(f"s_load_dwordx8 s[4:11], s[0:1], {ARG['mem0']*8}\ns_load_dwordx2 s[12:13], s[0:1], {ARG['Wo']*8}\ns_mov_b32 s57, s58\nv_mov_b32 v0, v1\ns_waitcnt lgkmcnt(0)")
    O.SST = F.PROF; O.PF = F.PF; O.WOPF = F.WOPF; O.NFL = F.NFL
    rec6.rec_setup(B)
    if F.EXP: B.e("s_endpgm")
    sl = B.newlabel("recslow"); fin = B.newlabel("recfin")
    verify(B, L, True, 'rec')
    rec6.rec_bases(B)
    B.e(f"s_mov_b32 s90, {O.BUDGET}\ns_barrier")
    if F.PROF: B.e("s_memrealtime s[14:15]\ns_memtime s[28:29]")
    if O.PROF: B.e(f"s_lshl_b32 s16, s57, 2\ns_add_u32 s16, s16, s50\ns_lshl_b32 s16, s16, 12\ns_add_u32 s16, s16, {P4}")
    B.e(f"s_cmp_eq_u32 s56, 1\ns_cbranch_scc1 {sl}")
    rec6.rec_loop(B, "", fin)
    B.label(sl)
    rec6.rec_loop(B, "sc1", fin)
    B.label(fin)
    if F.PROF:
        B.e(f"s_memrealtime s[16:17]\ns_memtime s[26:27]\ns_waitcnt lgkmcnt(0)\ns_sub_u32 s26, s26, s28\nv_mov_b32 v20, 0\nv_writelane_b32 v20, s26, 4\nv_writelane_b32 v20, s14, 0\nv_writelane_b32 v20, s16, 1\nv_writelane_b32 v20, s90, 2\nv_writelane_b32 v20, s67, 3\ns_mov_b32 s58, s57")
        stamp_out(B, [20])
    B.e("s_endpgm")
    B.lines = fix_hazards(B.lines)
    A.lines += B.lines
    A.end_kernel(512, 102, 256)
    A.launch(name, (256,), (256,), 160 * 1024)

def build(opt=None, ropt=None):
    for k, v in (opt or {}).items(): setattr(F, k, v)
    for k, v in (ropt or {}).items(): setattr(rec6.O, k, v)
    A = Asm()
    hdr = open(f"/code/{NAME}.s.ref").read().split("\n")
    A.header = [l for l in hdr if l.startswith(";") and "@launch" not in l and "Override" not in l and "grid=ceil" not in l]
    flow_kernel(A, "flow_kernel")
    return A.text()

if __name__ == "__main__":
    out = sys.argv[1]
    t = build(eval(sys.argv[2]) if len(sys.argv) > 2 else None, eval(sys.argv[3]) if len(sys.argv) > 3 else None)
    open(out, "w").write(t)
    check_hazards(t)
    print(len(t), "bytes")
```

```python
import sys
sys.path.insert(0, "..")
from asmgen import *
from lay import *
import rec6
from rec6 import f2u, LOG2E, SCL
NAME = "adaLN_cond__memory_aug_recurrent_mem_tr__mixer_s_mlp__prompt"
GELU_C0 = -2.0 * 0.7978845608028654 * LOG2E
GELU_C1 = GELU_C0 * 0.044715
NEG = 0xff800000
class F:
    PROF = 0; PSL = 4; QD = 5; QM = 46; GD = 6; GM = 22; ABAR = 1; BUD = 40000; FORCE_SLOW = 0; FORCE_FB = 0; VSL = 8; ROT = 0; P2 = 1; GS = 1; NL = 1; G1 = 1; G2 = 9; WB = 12; TC = 8; WV = 1; FB = 8; WE = 8; FH = 1; K3 = 2; XS = 0; SB = 5; LLO = 3; LHI = 30; FP4 = 20; PO = 2; PHI = 62; FDL = 0; RSP = 50; BD = 3; QM4 = 0; PA = 4; TRU = 0; SB1 = 2; EP = 1; SS = 4; HOLD = (); D3 = 1; DW2 = 24; D1N = 50; LWB = (20, 22, 24, 26, 28, 30, 32, 34); POD = 1; RE = 1; PU0 = 0; AT = 2; ATP = 118; ENDS = 0; PM = (True, True); TP = (8, 16, 32, 48); D0 = 3; D1 = 34; DL = 1; DB1 = 0; DB2 = 18; LWD = (4, 6, 8, 10, 12, 14, 16, 18); PPD = 20; R1 = 1; PP2 = 17; PD = 3; FPB = 36; IPF = 1; SYM = 2; PRG = 1; GT = 1; FX = 1; Q1B = 2; Q2B = 26; Q1W = 20; Q2W = 28; Q0S = 8; LWX = (0, 2, 4, 6, 26, 28, 30, 32); LW2 = (1, 3, 5, 7, 9, 11, 13, 15); OW2 = 20; FW2 = 18; DROP = (); Q0 = 14; H3 = 3; OD = 2; WD = 3; PPR = 12; PPN = 20; FP = 16; A0 = 4; WB3 = 8; FD = 44; Q1 = 28; Q2R = 6; Q2N = 22; FREE = 0; XW = 0; SPS = 1; ASL = 4; QROT = 0; BTH = 3; X2 = 0; NFL2 = 6; Q4 = 1; BPF = 0; BORD = [(2,3),(3,3),(3,1),(2,2),(3,2),(3,0),(1,3),(0,3),(2,1),(1,2),(0,2),(1,1),(0,1),(2,0),(1,0),(0,0)]; WOPF = 0; EXP = ''; KW = 1; GATE = 1; GPRE = 10; VSL2 = 48; NFL = 10; W4G = 1; NMEAS = 8; PF = 1; XMAP = 0x76325410; LATE = 0; OFF = ()
WSRD = "s[20:23]"
D_ = D
XO = (1, 2, 3, 0)

def ldptr(A, s, name): A.e(f"s_load_dwordx2 s[{s}:{s+1}], s[0:1], {ARG[name]*8}")

def row_lanes(A, sj, R):
    A.e(f"""
    v_and_b32 v2, 3, v1                ; row3
    v_lshrrev_b32 v3, 2, v1            ; c
    s_lshl_b32 s64, s{sj}, 2
    v_add_u32 v4, s64, v2
    s_lshl_b32 s65, s50, 9
    v_lshlrev_b32 v5, 4, v3
    v_add_u32 v5, s65, v5
    v_lshl_add_u32 v{R['RM']}, v4, 11, v5
    v_lshlrev_b32 v{R['CO']}, 1, v5
    v_lshrrev_b32 v5, 2, v3            ; f3
    v_and_b32 v3, 3, v3                ; g
    s_lshl_b32 s65, s50, 13
    v_lshlrev_b32 v5, 10, v5
    v_lshl_add_u32 v5, v3, 8, v5
    v_lshl_add_u32 v5, v4, 4, v5
    v_add_u32 v{R['FR']}, s65, v5
    s_lshl_b32 s65, s50, 9
    v_lshlrev_b32 v5, 3, v1
    v_add_u32 v{R['SW']}, s65, v5
    v_lshlrev_b32 v{R['SR']}, 3, v2""")
def load_consts(A, R, idx, dst, tmp, one=False):
    for g in range(4):
        A.e(f"s_mov_b32 s64, {MOD + g*6144*4 + idx*4096}")
        for a in range(2):
            for t in range(2): A.e(f"buffer_load_dwordx4 {vr((dst if g == 0 else tmp + 16*(g-1)) + a*8 + t*4, 4)}, v{R['CO']}, {WSRD}, s64 offen offset:{a*512 + t*16} sc1")
    A.e("s_waitcnt vmcnt(0)")
    sum4(A, dst, tmp, 16, one)
def ln_core(A, V, C1, SB, T, R, lds, PK):
    s1, s2, u1, u2, t = T, T + 1, T + 2, T + 3, T + 4
    A.e(f"v_add_f32 v{s1}, v{V}, v{V+1}\nv_mul_f32 v{s2}, v{V}, v{V}\nv_add_f32 v{u1}, v{V+2}, v{V+3}\nv_mul_f32 v{u2}, v{V+1}, v{V+1}")
    A.e(f"v_fmac_f32 v{s2}, v{V+2}, v{V+2}\nv_fmac_f32 v{u2}, v{V+3}, v{V+3}")
    for i in range(4, 16, 2):
        A.e(f"v_add_f32 v{s1}, v{s1}, v{V+i}\nv_fmac_f32 v{s2}, v{V+i}, v{V+i}\nv_add_f32 v{u1}, v{u1}, v{V+i+1}\nv_fmac_f32 v{u2}, v{V+i+1}, v{V+i+1}")
    A.e(f"v_add_f32 v{s1}, v{s1}, v{u1}\nv_add_f32 v{s2}, v{s2}, v{u2}")
    for ror in (4, 8):
        for s in (s1, s2): A.e(f"v_add_f32_dpp v{s}, v{s}, v{s} row_ror:{ror} row_mask:0xf bank_mask:0xf")
    for sw in ("v_permlane16_swap_b32", "v_permlane32_swap_b32"):
        A.e(f"v_mov_b32 v{u1}, v{s1}\nv_mov_b32 v{u2}, v{s2}\n{sw} v{u1}, v{s1}\n{sw} v{u2}, v{s2}\nv_add_f32 v{s1}, v{s1}, v{u1}\nv_add_f32 v{s2}, v{s2}, v{u2}")
    A.e(f"ds_write_b64 v{R['SW']}, {vr(s1,2)} offset:{lds}\ns_waitcnt lgkmcnt(0)\ns_barrier")
    for w in range(4): A.e(f"ds_read_b64 {vr(t+2*w,2)}, v{R['SR']} offset:{lds + w*512}")
    A.e("s_waitcnt lgkmcnt(0)")
    stats_fin(A, t, s1, s2)
    for i in range(16): A.e(f"v_fma_f32 v{V+i}, v{V+i}, v{s2}, v{s1}")
    for i in range(16): A.e(f"v_fma_f32 v{V+i}, v{V+i}, v{C1+i}, v{SB+i}")
    for i in range(8): A.e(f"v_cvt_pk_bf16_f32 v{PK+i}, v{V+2*i}, v{V+2*i+1}")
def stats_fin(A, t, nm, rs, mode=0):
    A.e(f"""
    v_add_f32 v{t}, v{t}, v{t+2}
    v_add_f32 v{t+1}, v{t+1}, v{t+3}
    v_add_f32 v{t+4}, v{t+4}, v{t+6}
    v_add_f32 v{t+5}, v{t+5}, v{t+7}
    v_add_f32 v{t}, v{t}, v{t+4}
    v_add_f32 v{t+1}, v{t+1}, v{t+5}
    v_mul_f32 v{nm}, {f2u(-1/1024):#x}, v{t}
    v_mul_f32 v{t+2}, v{nm}, v{nm}
    v_mul_f32 v{t+1}, {f2u(1/1024):#x}, v{t+1}
    v_sub_f32 v{t+1}, v{t+1}, v{t+2}
    v_max_f32 v{t+1}, 0, v{t+1}
    v_add_f32 v{t+1}, {f2u(1e-5):#x}, v{t+1}
    v_rsq_f32 v{rs}, v{t+1}""")
    if mode == 0: A.e(f"v_mul_f32 v{nm}, v{nm}, v{rs}")
def unpack(A, src, dst, n):
    for i in range(n): A.e(f"v_lshlrev_b32 v{dst+2*i}, 16, v{src+i}\nv_and_b32 v{dst+2*i+1}, s73, v{src+i}")

C_M, C_M2, C_M3, C_HA, C_HB, C_PAR, C_I, C_QW = range(8)
CB0, CB1 = 64, 192
TICK = 128
def dbg_srd(A, d): A.srd(d, 2, 256)
NCP = [0]
def cpoll(A, L, req, srd=92, place=True, va=16, lds=160 * 1024 - 4096, pre=0, sl=None):
    vp = A.newlabel("vpoll"); ck = A.newlabel("vck"); rt = A.newlabel("vrt"); ok = A.newlabel("vok"); ot = A.newlabel("vot"); fin = A.newlabel("vfin")
    a, d, r, t = va, va + 1, va + 2, va + 3
    NCP[0] += 1; lds += 256 * (NCP[0] % 8)
    dbg_srd(A, srd)
    A.e(f"""
    v_mbcnt_lo_u32_b32 v{a}, -1, 0
    v_mbcnt_hi_u32_b32 v{a}, -1, v{a}
    v_mov_b32 v{r}, 0""")
    for k, val in req.items(): A.e(f"v_cmp_eq_u32 vcc, {16 + k}, v{a}\nv_cndmask_b32 v{r}, v{r}, {val}, vcc")
    A.e(f"""
    v_and_b32 v{t}, 1, v{a}
    v_cmp_eq_u32 vcc, 1, v{t}
    v_mov_b32 v{t}, {32 << 8}
    v_cndmask_b32 v{t}, -1, v{t}, vcc
    v_min_u32 v{a}, 31, v{a}
    v_lshlrev_b32 v{a}, 2, v{a}
    s_sub_u32 s66, s88, 64""")
    def placement(known, bad):
        A.e(f"""
        s_cmp_lg_u32 s56, 2
        s_cbranch_scc1 {known}
        v_cmp_eq_u32 vcc, v{d}, v{t}
        s_and_b32 s64, vcc_lo, 0xffff
        s_cmp_eq_u32 s64, {0x10000 if (F.FORCE_SLOW or F.FORCE_FB) else 0xffff}
        s_cbranch_scc1 {known}
        s_mov_b32 s65, 0""")
        for x in range(8): A.e(f"v_readlane_b32 s64, v{d}, {2*x+1}\ns_lshr_b32 s64, s64, 8\ns_add_u32 s65, s65, s64")
        A.e(f"s_cmp_ge_u32 s65, 256\ns_cbranch_scc1 {bad}")
    if place: A.e(f"s_cmp_lg_u32 s50, 0\ns_cbranch_scc1 {ot}")
    if pre:
        lp = A.newlabel("pre"); A.e(f"s_mov_b32 s64, {pre}"); A.label(lp); A.e(f"s_sleep 32\ns_sub_u32 s64, s64, 1\ns_cmp_gt_i32 s64, 0\ns_cbranch_scc1 {lp}")
    A.label(vp)
    A.e(f"buffer_load_dword v{d}, v{a}, s[{srd}:{srd+3}], s66 offen sc1\ns_waitcnt vmcnt(0)")
    if place: placement(ck, ok); A.e(f"s_branch {rt}")
    A.label(ck)
    A.e(f"v_cmp_gt_u32 vcc, v{r}, v{d}\ns_cbranch_vccz {ok}")
    A.label(rt)
    A.e(f"s_sleep {sl or F.VSL}\ns_sub_u32 s90, s90, 1\ns_cmp_gt_i32 s90, 0\ns_cbranch_scc1 {vp}")
    A.label(ok)
    if place:
        A.e(f"ds_write_b32 v{a}, v{d} offset:{lds & 0xffff}" if lds < 65536 else f"v_add_u32 v{r}, {lds}, v{a}\nds_write_b32 v{r}, v{d}")
        A.e("s_waitcnt lgkmcnt(0)")
        A.label(ot)
        A.e(f"s_barrier\nv_add_u32 v{r}, {lds}, v{a}\nds_read_b32 v{d}, v{r}\ns_waitcnt lgkmcnt(0)")
        placement(fin, L["fb"])
        A.label(fin)
        A.e("s_and_b32 s56, s56, 1")
def verify(A, L, need_par, kind="role"):
    req = {C_I: 63}
    if kind == "qkv": req[C_HA] = 64
    if kind == "mod": req.update({C_M2: 63, C_M3: 1})
    if need_par: req[C_PAR] = 1
    cpoll(A, L, req, lds=0 if kind == "rec" else 160 * 1024 - 4096, sl=F.VSL2 if kind == "mod" else None)
    A.e("s_mov_b32 s67, 0")
    if need_par: A.e(f"v_readlane_b32 s65, v17, {16 + C_PAR}\ns_and_b32 s65, s65, 2\ns_lshl_b32 s67, s65, 12")
def signal(A, k, srd=92, vt=16, sel220=None):
    sk = A.newlabel("sig")
    A.e(f"s_waitcnt vmcnt(0)\ns_barrier\ns_cmp_lg_u32 s50, 0\ns_cbranch_scc1 {sk}")
    dbg_srd(A, srd)
    A.e(f"s_add_u32 s64, s88, {4*k}")
    if sel220 is not None: A.e(f"s_add_u32 s65, s88, {4*sel220}\ns_cmp_eq_u32 s58, {GPAR}\ns_cselect_b32 s64, s65, s64")
    A.e(f"v_mov_b32 v{vt}, 1\ns_mov_b64 exec, 1\nbuffer_atomic_add v{vt}, off, s[{srd}:{srd+3}], s64 sc1\ns_mov_b64 exec, -1")
    A.label(sk)
GPAR = 220
PR1 = 8
C_X = 8
def sum4(A, dst, tmp, n, one=False):
    for i in range(0, n, 2): A.e(f"v_pk_add_f32 {vr(dst+i,2)}, {vr(dst+i,2)}, {vr(tmp+i,2)}\nv_pk_add_f32 {vr(tmp+n+i,2)}, {vr(tmp+n+i,2)}, {vr(tmp+2*n+i,2)}")
    for i in range(0, n, 2): A.e(f"v_pk_add_f32 {vr(dst+i,2)}, {vr(dst+i,2)}, {vr(tmp+n+i,2)}")
    for i in range(0, n, 2): A.e(f"v_cvt_pk_bf16_f32 v{tmp+i//2}, v{dst+i}, v{dst+i+1}")
    unpack(A, tmp, dst, n // 2)
    if one:
        for i in range(n): A.e(f"v_add_f32 v{dst+i}, 1.0, v{dst+i}")

def measure_parity(A):
    nm = A.newlabel("nomeas"); pub = A.newlabel("pub"); lp = A.newlabel("mlp")
    A.e(f"""
    s_cmp_lg_u32 s58, {GPAR}
    s_cbranch_scc1 {nm}
    s_cmp_lg_u32 s50, 0
    s_cbranch_scc1 {nm}
    s_mov_b64 exec, 1
    s_mov_b32 s65, 1
    s_cmp_eq_u32 s56, 1
    s_cbranch_scc1 {pub}
    s_mov_b32 s66, {XMEAS}
    s_mov_b32 s67, {XMEAS+8192}
    s_mov_b32 s70, 0x7fffffff
    s_mov_b32 s71, 0x7fffffff
    s_mov_b32 s72, {F.NMEAS}""")
    A.label(lp)
    for (so, acc) in ((66, 70), (67, 71)):
        A.e(f"""
        s_memtime s[94:95]
        s_waitcnt lgkmcnt(0)
        buffer_store_dword v16, off, {WSRD}, s{so} sc1
        s_waitcnt vmcnt(0)
        s_memtime s[96:97]
        s_waitcnt lgkmcnt(0)
        s_sub_u32 s96, s96, s94
        s_min_u32 s{acc}, s{acc}, s96""")
    A.e(f"s_sub_u32 s72, s72, 1\ns_cmp_gt_u32 s72, 0\ns_cbranch_scc1 {lp}\ns_cmp_gt_u32 s71, s70\ns_cselect_b32 s65, 2, 1")
    A.label(pub)
    dbg_srd(A, 92)
    A.e(f"v_mov_b32 v16, s65\ns_add_u32 s64, s88, {4*C_PAR}\nbuffer_store_dword v16, off, s[92:95], s64 sc1")
    if F.PROF: A.e(f"v_mov_b32 v16, s70\nv_mov_b32 v17, s71\ns_mov_b32 s64, {STAMP2 - 64}\nbuffer_store_dwordx2 v[16:17], off, {WSRD}, s64")
    A.e("s_mov_b64 exec, -1")
    A.label(nm)
    A.e("s_barrier")

def duty(A, L, grp):
    nh = 1 + grp
    R = dict(RM=8, CO=9, FR=10, SW=11, SR=12)
    VW, VC, VI, VL = 13, 14, 15, 24; SV = 32; XR_ = 48; AC = 80; W = 96; V = 128; C1 = 96; SB = 112; T = 208; M1 = 28
    A.e(f"s_load_dwordx4 s[4:7], s[0:1], {ARG['c']*8}"); ldptr(A, 8, "x")
    if grp: measure_parity(A)
    A.e(f"""
    s_sub_u32 s59, s58, {128 + 64*grp}
    s_and_b32 s52, s59, 15
    s_lshr_b32 s53, s59, 4
    s_lshl_b32 s64, s50, 6
    v_add_u32 v{VC}, s64, v1            ; thread
    v_lshrrev_b32 v2, 4, v{VC}
    v_and_b32 v3, 15, v{VC}
    v_mul_u32_u24 v{VW}, {16*12288}, v2
    v_lshl_add_u32 v{VW}, v3, 4, v{VW}
    s_mul_i32 s54, s53, {256*12288}
    s_lshl_b32 s64, s52, {8 + grp}
    s_add_u32 s54, s54, s64
    s_add_u32 s54, s54, {4096*grp}
    v_lshlrev_b32 v{VI}, 1, v{VC}
    s_lshl_b32 s55, s53, 9
    s_mov_b32 s60, 0
    s_mov_b32 s73, 0xffff0000
    s_sub_u32 s61, s58, 128
    s_lshl_b32 s61, s61, 15
    v_lshlrev_b32 v25, 6, v2
    v_lshlrev_b32 v{VL}, 4, v1""")
    row_lanes(A, 60, R)
    A.e("s_waitcnt lgkmcnt(0)")
    A.srd(24, 4, 2048); A.srd(28, 6, 1024 * 12288); A.srd(32, 8, S * D_ * 2)
    for i in range(4): A.e(f"v_mov_b32 v{M1+i}, -1\nv_mov_b32 v{20+i}, 0")
    def stf(base, nb, reg=M1, sh=None):
        A.e(f"s_lshl_b32 s64, s62, 2\ns_add_u32 s64, s64, s50")
        if sh: A.e(f"s_lshr_b32 s65, s64, 6\ns_lshl_b32 s65, s65, 19\ns_and_b32 s64, s64, 63")
        A.e(f"s_mul_i32 s64, s64, {nb*1024}\ns_add_u32 s64, s64, {base}")
        if sh: A.e("s_add_u32 s64, s64, s65")
        for i in range(nb):
            if i and i % 4 == 0: A.e("s_add_u32 s64, s64, 4096")
            A.e(f"buffer_store_dwordx4 {vr(reg,4)}, v{VL}, {WSRD}, s64 offen offset:{(i&3)*1024} sc1")
            if F.BTH and nb > 4: A.e(f"s_waitcnt vmcnt({F.BTH})")
    def fill1():
        stf(R_PR, PR1 // 4); stf(RING, 2, sh=1); stf(R_SX, 4, sh=1); stf(FLG, 1, 20)
    def fill2():
        stf(R_PR + PR1 * 64 * KB, 16 - PR1 // 4); stf(XP, 8 if F.SYM == 2 else 6)
        A.e(f"""
        s_and_b32 s64, s62, 31
        s_lshl_b32 s64, s64, 10
        s_add_u32 s64, s64, {G1 - 32768}
        s_bitcmp1_b32 s62, 5
        s_cselect_b32 s65, {(NU+1)*32768}, 0
        s_add_u32 s64, s64, s65
        buffer_store_dwordx4 v[20:23], v{VL}, {WSRD}, s64 offen sc1""")
    def fills(f):
        f1 = A.newlabel("fl1"); f2 = A.newlabel("fl2")
        A.e(f"s_cmp_eq_u32 s58, {GPAR}\ns_cbranch_scc1 {f2}\ns_mov_b32 s62, s59")
        A.label(f1); f()
        A.e(f"s_cmp_eq_u32 s62, {GPAR + 1 - 192}\ns_mov_b32 s62, {GPAR - 192}\ns_cbranch_scc1 {f1}")
        A.label(f2)
    if grp and F.BPF:
        np_ = A.newlabel("npf")
        A.e(f"s_load_dwordx8 s[36:43], s[0:1], {ARG['Wq']*8}\ns_cmp_eq_u32 s58, {GPAR}\ns_cbranch_scc1 {np_}\ns_lshl_b32 s64, s59, 2\ns_add_u32 s64, s64, s50\nv_lshlrev_b32 v16, 10, v1\nv_lshlrev_b32 v17, 7, v1\ns_waitcnt lgkmcnt(0)")
        for m in range(4): A.srd(92 if m == 3 else 68 + 4 * m, 36 + 2 * m, 8 * MB)
        sr_ = lambda m: "s[92:95]" if m == 3 else f"s[{68+4*m}:{71+4*m}]"
        A.e("s_and_b32 s65, s64, 127\ns_lshl_b32 s65, s65, 16\ns_add_u32 s65, s65, 384\ns_cmp_ge_u32 s64, 128")
        A.e("s_cselect_b64 s[44:45], s[72:73], s[68:69]\ns_cselect_b64 s[46:47], s[74:75], s[70:71]\nbuffer_load_dword v18, v16, s[44:47], s65 offen")
        A.e("s_cselect_b64 s[44:45], s[92:93], s[76:77]\nbuffer_load_dword v18, v16, s[44:47], s65 offen")
        A.e("s_lshl_b32 s65, s64, 13")
        for m, q in F.BORD[:F.BPF - 1]:
            A.e(f"s_add_u32 s66, s65, {q*2*MB}\nbuffer_load_dword v18, v17, {sr_(m)}, s66 offen")
        A.label(np_)
    if grp:
        fills(fill1)
        signal(A, C_I, sel220=C_X)
        if "b" in F.EXP: A.e("s_endpgm")
        if F.X2: fills(fill2); signal(A, C_M2, sel220=C_M3); A.e("s_endpgm")
        if F.GATE: cpoll(A, L, {C_QW: F.GATE} if F.GATE > 1 else {}, pre=F.GPRE, sl=F.VSL2)
        if F.EXP: A.e("s_endpgm")
    A.e(f"buffer_load_ushort v16, v{VI}, s[24:27], s55 offen")
    for p in range(16):
        for h in range(nh): A.e(f"buffer_load_dwordx4 {vr(W + (h*16+p)*4, 4)}, v{VW}, s[28:31], s54 offen offset:{h*256}")
        if p < 15: A.e("s_add_u32 s54, s54, 12288")
        if grp and F.BTH: A.e(f"s_waitcnt vmcnt({F.BTH})")
    for q in range(4):
        A.e(f"s_add_u32 s64, s61, {q*8192}")
        for a in range(2): A.e(f"buffer_load_dwordx4 {vr(XR_ + q*8 + a*4, 4)}, v{R['RM']}, s[32:35], s64 offen offset:{a*256}")
    NI = 0
    nw = 16 * nh
    A.e(f"""
    s_waitcnt vmcnt({nw + 8 + NI})
    v_lshlrev_b32 v16, 16, v16
    v_mul_f32 v17, {f2u(-LOG2E):#x}, v16
    v_exp_f32 v17, v17
    v_add_f32 v17, 1.0, v17
    v_rcp_f32 v17, v17
    v_mul_f32 v17, v17, v16
    v_cvt_pk_bf16_f32 v17, v17, v17
    v_and_b32 v17, s73, v17
    v_lshlrev_b32 v18, 2, v{VC}
    ds_write_b32 v18, v17 offset:8192
    s_waitcnt lgkmcnt(0)
    s_barrier""")
    for i in range(4): A.e(f"ds_read_b128 {vr(SV+4*i,4)}, v25 offset:{8192 + 16*i}")
    for i in range(8 * nh): A.e(f"v_mov_b32 v{AC+i}, 0")
    A.e("s_waitcnt lgkmcnt(0)")
    for p in range(16):
        for h in range(nh):
            A.e(f"s_waitcnt vmcnt({nw - 1 - (p*nh + h) + 8 + NI})")
            w = W + (h * 16 + p) * 4
            for j in range(4):
                t = 16 + 2 * (j & 1)
                A.e(f"v_lshlrev_b32 v{t}, 16, v{w+j}\nv_and_b32 v{t+1}, s73, v{w+j}")
                sel = p & 1
                A.e(f"v_pk_fma_f32 {vr(AC+8*h+2*j,2)}, {vr(t,2)}, {vr(SV+p-sel,2)}, {vr(AC+8*h+2*j,2)} op_sel:[0,{sel},0] op_sel_hi:[1,{sel},1]")
    A.e(f"v_lshlrev_b32 v18, 5, v{VC}")
    for h in range(nh):
        for i in range(2): A.e(f"ds_write_b128 v18, {vr(AC+8*h+4*i,4)} offset:{16384 + h*8192 + 16*i}")
    A.e(f"""
    v_and_b32 v18, 127, v{VC}
    v_lshlrev_b32 v18, 2, v18
    v_lshrrev_b32 v19, 7, v{VC}
    v_lshl_add_u32 v19, v19, {13 if grp else 31}, v18     ; group 0: both thread halves compute the same sums
    s_waitcnt lgkmcnt(0)
    s_barrier""".replace(f"v_lshl_add_u32 v19, v19, 31, v18", "v_mov_b32 v19, v18"))
    for g in range(16):
        A.e(f"ds_read_b32 v{SV+g}, v19 offset:{16384 + g*512}")
        if g == 11: A.e("s_waitcnt lgkmcnt(4)")
    A.e("s_waitcnt lgkmcnt(0)")
    for st in (8, 4, 2):
        for i in range(0, st, 2): A.e(f"v_pk_add_f32 {vr(SV+i,2)}, {vr(SV+i,2)}, {vr(SV+st+i,2)}")
    A.e(f"""
    v_add_f32 v{SV}, v{SV}, v{SV+1}
    s_mul_i32 s64, s53, {6144*4}
    s_lshl_b32 s65, s52, {9 + grp}
    s_add_u32 s64, s64, s65
    s_add_u32 s64, s64, {MOD + 8192*grp}""")
    A.e(f"v_lshlrev_b32 v18, 2, v{VC}" if grp else "")
    A.e(f"buffer_store_dword v{SV}, v18, {WSRD}, s64 offen sc1")
    if grp: fills(fill2)
    signal(A, C_M2 if grp else C_M, sel220=C_M3 if grp else None)
    if F.PROF: A.e("s_memrealtime s[98:99]")
    for q in range(4): unpack(A, XR_ + 8 * q, V + 16 * q, 8)
    for q in range(4):
        v = V + 16 * q; s1, s2, u1, u2 = T + 4 * q, T + 4 * q + 1, T + 4 * q + 2, T + 4 * q + 3
        A.e(f"v_add_f32 v{s1}, v{v}, v{v+1}\nv_mul_f32 v{s2}, v{v}, v{v}\nv_add_f32 v{u1}, v{v+2}, v{v+3}\nv_mul_f32 v{u2}, v{v+1}, v{v+1}")
        A.e(f"v_fmac_f32 v{s2}, v{v+2}, v{v+2}\nv_fmac_f32 v{u2}, v{v+3}, v{v+3}")
        for i in range(4, 16, 2):
            A.e(f"v_add_f32 v{s1}, v{s1}, v{v+i}\nv_fmac_f32 v{s2}, v{v+i}, v{v+i}\nv_add_f32 v{u1}, v{u1}, v{v+i+1}\nv_fmac_f32 v{u2}, v{v+i+1}, v{v+i+1}")
        A.e(f"v_add_f32 v{s1}, v{s1}, v{u1}\nv_add_f32 v{s2}, v{s2}, v{u2}")
    for ror in (4, 8):
        for q in range(4):
            for s_ in (T + 4 * q, T + 4 * q + 1): A.e(f"v_add_f32_dpp v{s_}, v{s_}, v{s_} row_ror:{ror} row_mask:0xf bank_mask:0xf")
    for sw in ("v_permlane16_swap_b32", "v_permlane32_swap_b32"):
        for q in range(4):
            s1, s2, u1, u2 = T + 4 * q, T + 4 * q + 1, T + 4 * q + 2, T + 4 * q + 3
            A.e(f"v_mov_b32 v{u1}, v{s1}\nv_mov_b32 v{u2}, v{s2}\n{sw} v{u1}, v{s1}\n{sw} v{u2}, v{s2}\nv_add_f32 v{s1}, v{s1}, v{u1}\nv_add_f32 v{s2}, v{s2}, v{u2}")
    for q in range(4): A.e(f"ds_write_b64 v{R['SW']}, {vr(T+4*q,2)} offset:{32768 + q*2048}")
    A.e("s_waitcnt lgkmcnt(0)\ns_barrier")
    for q in range(4):
        for w in range(4): A.e(f"ds_read_b64 {vr(SV+2*w,2)}, v{R['SR']} offset:{32768 + q*2048 + w*512}")
        A.e("s_waitcnt lgkmcnt(0)")
        stats_fin(A, SV, T, T + 1)
        for i in range(16): A.e(f"v_fma_f32 v{V+16*q+i}, v{V+16*q+i}, v{T+1}, v{T}")
    cpoll(A, L, {C_M: 64})
    if F.PROF: A.e("s_memrealtime s[100:101]")
    A.e(f"v_lshlrev_b32 v18, 5, v{VC}")
    for g in range(4):
        A.e(f"s_mov_b32 s64, {MOD + g*6144*4}")
        for i in range(2): A.e(f"buffer_load_dwordx4 {vr(SV + g*8 + 4*i, 4)}, v18, {WSRD}, s64 offen offset:{16*i} sc1")
    A.e("s_cmp_gt_u32 s50, 1\ns_cselect_b32 s64, 1.0, 0\ns_waitcnt vmcnt(0)")
    sum4(A, SV, SV + 8, 8)
    for i in range(8): A.e(f"v_add_f32 v{SV+i}, s64, v{SV+i}")
    for i in range(2): A.e(f"ds_write_b128 v18, {vr(SV+4*i,4)} offset:{16*i}")
    A.e("s_waitcnt lgkmcnt(0)\ns_barrier")
    for k, dst in ((0, SB), (1, C1)):
        for a in range(2):
            for t in range(2): A.e(f"ds_read_b128 {vr(dst + a*8 + t*4, 4)}, v{R['CO']} offset:{k*4096 + a*512 + t*16}")
    A.e(f"s_add_u32 s61, s61, {HB}\ns_add_u32 s62, s61, 4096\ns_waitcnt lgkmcnt(0)")
    for q in range(4):
        v = V + 16 * q
        for i in range(16): A.e(f"v_fma_f32 v{v+i}, v{v+i}, v{C1+i}, v{SB+i}")
        for i in range(8): A.e(f"v_cvt_pk_bf16_f32 v{XR_+8*q+i}, v{v+2*i}, v{v+2*i+1}")
        for a in range(2): A.e(f"buffer_store_dwordx4 {vr(XR_+8*q+4*a,4)}, v{R['FR']}, {WSRD}, s{61+a} offen offset:{64*q} sc1")
    signal(A, C_HB if grp else C_HA)
    if F.PROF:
        A.e(f"""
        s_memrealtime s[96:97]
        s_waitcnt lgkmcnt(0)
        v_mov_b32 v16, s98
        v_mov_b32 v17, s100
        v_mov_b32 v18, s96
        v_mov_b32 v19, s86
        s_lshl_b32 s64, s58, 4
        s_add_u32 s64, s64, {STAMP2 - 8192}
        buffer_store_dwordx4 v[16:19], off, {WSRD}, s64""")

def stamp(A, v, par=None):
    if not F.PROF: return
    A.e(f"s_memrealtime s[84:85]\ns_lshr_b32 m0, s60, 1\ns_waitcnt lgkmcnt(0)\nv_writelane_b32 v{v}, s84, m0")
def tst(A, i):
    if F.PROF >= 2: A.e(f"s_memtime s[{32+2*i}:{33+2*i}]")
def tacc(A, n):
    if F.PROF < 2: return
    A.e("s_waitcnt lgkmcnt(0)")
    for i in range(n - 1): A.e(f"s_sub_u32 s64, s{34+2*i}, s{32+2*i}\ns_add_u32 s{92+i}, s{92+i}, s64")
    A.e(f"s_sub_u32 s64, s32, s48\ns_cmp_eq_u32 s48, 0\ns_cselect_b32 s64, 0, s64\ns_add_u32 s{92+n-1}, s{92+n-1}, s64\ns_mov_b32 s48, s{32+2*(n-1)}")
def tinit(A):
    if F.PROF < 2: return
    for i in range(92, 100): A.e(f"s_mov_b32 s{i}, 0")
    A.e("s_mov_b32 s48, 0\ns_memtime s[46:47]\ns_memrealtime s[100:101]")
def tout(A, v):
    if F.PROF < 2: return
    for i in range(8): A.e(f"v_writelane_b32 v{v}, s{92+i}, {2+i}")
    A.e(f"s_memtime s[32:33]\ns_memrealtime s[34:35]\ns_waitcnt lgkmcnt(0)\ns_sub_u32 s32, s32, s46\ns_sub_u32 s34, s34, s100\nv_writelane_b32 v{v}, s32, 10\nv_writelane_b32 v{v}, s34, 11")
def stamp_out(A, regs):
    if not F.PROF: return
    A.e(f"s_lshl_b32 s64, s58, 2\ns_add_u32 s64, s64, s50\ns_mul_i32 s64, s64, 768\ns_add_u32 s64, s64, {STAMP2}\nv_mbcnt_lo_u32_b32 v16, -1, 0\nv_mbcnt_hi_u32_b32 v16, -1, v16\nv_lshlrev_b32 v16, 2, v16")
    for i, r in enumerate(regs[:3]): A.e(f"buffer_store_dword v{r}, v16, {WSRD}, s64 offen offset:{i*256}")
def flag_store(A, vt, sval, saddr):
    A.e(f"v_mov_b32 v{vt}, {sval}\ns_mov_b64 exec, 1\nbuffer_store_dword v{vt}, off, {WSRD}, s{saddr} sc1\ns_mov_b64 exec, -1")
def poll_loop(A, ld, vF, sneed, sl=None):
    lp = A.newlabel("plp"); ok = A.newlabel("pok")
    A.label(lp)
    A.e(f"""
    {ld}
    s_waitcnt vmcnt(0)
    v_cmp_gt_u32 vcc, s{sneed}, v{vF}
    s_cbranch_vccz {ok}
    s_sleep {sl or F.PSL}
    s_sub_u32 s90, s90, 1
    s_cmp_gt_i32 s90, 0
    s_cbranch_scc1 {lp}""")
    A.label(ok)

def weave(A, M, fill, first=0, per=1):
    fill = list(fill)
    for i, m in enumerate(M):
        A.e(m)
        if i >= first:
            for _ in range(per):
                if fill: A.e(fill.pop(0))
    for x in fill: A.e(x)

class Sched:
    def __init__(self, A): self.A = A; self.q = []; self.done = -1
    def lds(self, ins, tag=None): self.A.e(ins); self.q.append(tag)
    def need(self, tag):
        i = len(self.q) - 1 - self.q[::-1].index(tag)
        if i > self.done:
            n = len(self.q) - 1 - i
            assert n <= 15
            self.A.e(f"s_waitcnt lgkmcnt({n})"); self.done = i
    def copy(self):
        c = Sched(self.A); c.q = list(self.q); c.done = self.done; return c

def stage_weights(A, stages, ld, pf=None, nfl=0, rot=None, rotk=None):
    A.e(f"""
    v_lshrrev_b32 v26, 2, v1
    v_and_b32 v27, 3, v1
    v_mul_u32_u24 v16, {ld}, v26
    v_lshl_add_u32 v16, v27, 4, v16
    v_lshlrev_b32 v17, 6, v25
    v_lshl_add_u32 v17, v24, 4, v17
    v_add_u32 v17, s61, v17""")
    def issue(st):
        srd, pre, rows, _ = stages[st]
        npf = pf(st, -1) if pf else 0
        A.e(pre)
        A.e(f"s_add_u32 m0, s61, {(st&1)*16384}")
        for J in range(rows // 16):
            if rot and J % 4 == 0:
                A.e(f"s_add_u32 s64, s{rot(st)}, {J//4}\ns_and_b32 s64, s64, 3\ns_mul_i32 s65, s64, {64*ld}\ns_add_u32 s63, s62, s65\ns_lshl_b32 s64, s64, 12\ns_add_u32 s64, s64, s61\ns_add_u32 m0, s64, {(st&1)*16384}")
            if rotk and J % 2 == 0:
                A.e(f"s_add_u32 s64, s{rotk}, {J//2}\ns_sub_u32 s65, s64, {rows//32}\ns_cselect_b32 s64, s64, s65\ns_mul_i32 s64, s64, {32*ld}\ns_add_u32 s63, s62, s64")
            sa = 63 if rot or rotk else 62
            A.e(f"buffer_load_dwordx4 v16, s[{srd}:{srd+3}], s{sa} offen lds")
            if J + 1 < rows // 16: A.e(f"s_add_u32 s{sa}, s{sa}, {16*ld}\ns_add_u32 m0, m0, 1024")
            if pf: npf += pf(st, J)
            if nfl: A.e(f"s_waitcnt vmcnt({nfl})")
        return rows // 16 + npf
    if F.PROF: rec6.sstamp(A, 30, 1)
    n = [issue(0), issue(1)]
    for st in range(len(stages)):
        A.e(f"s_waitcnt vmcnt({n[st+1] if st + 1 < len(stages) else 0})")
        if F.PROF: rec6.sstamp(A, 30, 2 * st)
        stages[st][3]((st & 1) * 16384)
        A.e("s_waitcnt lgkmcnt(0)")
        if F.PROF and st: rec6.sstamp(A, 30, 2 * st + 1)
        if st + 2 < len(stages): n.append(issue(st + 2))
    if F.PROF: rec6.sstamp_out(A, 30, 58)
def lanes(A):
    A.e("""
    v_and_b32 v21, 15, v1              ; lam
    v_lshrrev_b32 v22, 4, v1           ; g
    v_lshrrev_b32 v23, 2, v21          ; r
    v_and_b32 v24, 3, v21              ; c
    s_lshl_b32 s61, s50, 15
    v_lshl_add_u32 v25, v22, 3, v23    ; 8g + r""")
def late(A):
    if F.LATE:
        lp = A.newlabel("late"); A.e(f"s_mov_b32 s64, {F.LATE}"); A.label(lp); A.e(f"s_sleep 16\ns_sub_u32 s64, s64, 1\ns_cmp_gt_i32 s64, 0\ns_cbranch_scc1 {lp}")
MF = "v_mfma_f32_16x16x32_bf16"

def qkv_role(A, L):
    L16, VR0, VR1, VT = 0, 4, 5, 6; ACC = (32, 44); VH = 56; PK = 60; XW = 64; NW = 16; ST = (8, 10, 11); D = F.QD
    def wr_(ks, t, n=4, o=0):
        i = (ks * 3 + t) * 4 + o
        return ar(i, n) if i < 256 else vr(128 + i - 256, n)
    done = A.newlabel("done")
    lanes(A)
    A.e(f"s_load_dwordx4 s[4:7], s[0:1], {ARG['Wq']*8}"); ldptr(A, 8, "Wv")
    A.e(f"""
    s_lshl_b32 s52, s59, 7
    s_and_b32 s64, s50, 1
    s_lshl_b32 s65, s64, 6
    s_add_u32 s53, s52, s65
    s_lshr_b32 s65, s50, 1
    s_lshl_b32 s65, s65, 6
    s_add_u32 s52, s52, s65
    s_lshl_b32 s54, s64, 3
    s_waitcnt lgkmcnt(0)
    s_cmp_gt_u32 s50, 1
    s_cselect_b64 s[10:11], s[4:5], s[6:7]""")
    A.srd(28, 10, 8 * MB); A.srd(32, 8, 8 * MB)
    def rdp(q):
        def f(buf):
            for kk in range(8):
                for t in range(2):
                    for h in range(2): A.e(f"ds_read_b64_tr_b16 {wr_(8*q+kk,t,2,2*h)}, v17 offset:{buf + (32*kk + 4*h)*64 + 8*t}")
                if kk % 3 == 2: A.e("s_waitcnt lgkmcnt(0)")
        return f
    def rdv(q):
        def f(buf):
            if q == 0: A.e("v_add_u32 v18, s54, v17")
            for kk in range(8):
                for h in range(2): A.e(f"ds_read_b64_tr_b16 {wr_(8*q+kk,2,2,2*h)}, v18 offset:{buf + (32*kk + 4*h)*64}")
                if kk == 5: A.e("s_waitcnt lgkmcnt(0)")
        return f
    stg = []
    for q in range(4):
        stg.append((28, f"s_add_u32 s62, s53, {q*256*8192}", 256, rdp(q)))
        stg.append((32, f"s_add_u32 s62, s52, {q*256*8192}", 256, rdv(q)))
    rec6.help_addr(A, 28, 1, 59, "s_lshl_b32 s65, s64, 3\ns_and_b32 s66, s50, 1\ns_lshl_b32 s55, s66, 2\ns_add_u32 s65, s65, s55\ns_lshl_b32 s66, s66, 5")
    rec6.help_addr(A, 31, 1, 59, "s_lshl_b32 s65, s64, 4\ns_lshl_b32 s55, s50, 2\ns_add_u32 s65, s65, s55\ns_lshl_b32 s66, s50, 5")
    def pf(st, J):
        if not F.PF: return 0
        t = st + 1; i = J // 4
        if J == -1:
            if st: return 0
            for i in (2, 3): A.e(f"s_mov_b32 s64, {i*64*8192}\nbuffer_load_dword v29, v28, s[28:31], s64 offen")
            return 2
        if J % 4 != 1 or t > 7 or (t & 1 and i & 1): return 0
        if t & 1: A.e(f"s_mov_b32 s64, {((t>>1)*256 + (i>>1)*128)*8192}\nbuffer_load_dword v29, v31, s[32:35], s64 offen")
        else: A.e(f"s_mov_b32 s64, {((t>>1)*256 + i*64)*8192}\nbuffer_load_dword v29, v28, s[28:31], s64 offen")
        return 1
    A.e("s_and_b32 s60, s50, 1\ns_lshl_b32 s60, s60, 1")
    stage_weights(A, stg, 8192, pf, F.NFL, (lambda st: 50 if st & 1 else 60) if F.QROT else None)
    if F.GATE == 9:
        sq = A.newlabel("sq"); sq2 = A.newlabel("sq2")
        A.e(f"s_and_b32 s64, s59, 7\ns_cmp_eq_u32 s64, 3\ns_cbranch_scc1 {sq}\ns_cmp_lg_u32 s59, 63\ns_cbranch_scc1 {sq2}"); A.label(sq); signal(A, C_QW); A.label(sq2)
    elif F.GATE > 1: signal(A, C_QW)
    if F.EXP: A.e("s_endpgm")
    verify(A, L, True, "qkv")
    A.e(f"""
    s_barrier
    v_lshlrev_b32 v{L16}, 4, v1
    s_mov_b32 s60, 0
    s_lshl_b32 s63, s50, 13
    s_add_u32 s61, s63, {HB}
    s_mov_b32 s70, 0
    s_lshl_b32 s52, s59, 14
    s_and_b32 s64, s50, 1
    s_lshl_b32 s64, s64, 11
    s_add_u32 s53, s52, s64
    s_lshl_b32 s64, s50, 10
    s_add_u32 s52, s52, s64
    s_add_u32 s52, s52, 4096           ; V base
    s_cmp_gt_u32 s50, 1
    s_cselect_b32 s54, 0x2000, 0
    s_lshl_b32 s69, s59, 6
    s_add_u32 s69, s69, s67
    s_add_u32 s69, s69, {F_QKV}
    v_mov_b32 v{VR0}, v{L16}
    v_add_u32 v{VR1}, 32768, v{L16}""")
    def loads():
        o = ["s_add_u32 m0, s70, s63", "s_add_u32 s62, s61, 4096"]
        for i in range(8):
            o.append(f"buffer_load_dwordx4 v{L16}, {WSRD}, s{61+(i>>2)} offen offset:{(i&3)*1024} lds")
            if i == 3: o.append("s_add_u32 m0, m0, 4096")
        return o + ["s_add_u32 s61, s61, 32768", "s_add_u32 s70, s70, 32768", "s_and_b32 s70, s70, 0x1ffff"]
    def epi(par):
        a = ACC[par]
        o = ["s_sub_u32 s66, s60, 1", "s_lshr_b32 s64, s66, 1", "s_lshl_b32 s65, s64, 12", "s_and_b32 s65, s65, 0x2000", "s_xor_b32 s65, s65, s67", "s_lshl_b32 s64, s64, 20",
             "s_add_u32 s64, s64, s65", "s_add_u32 s65, s64, s52", "s_xor_b32 s64, s64, s54", "s_add_u32 s66, s64, s53"]
        if par: o += ["s_cmp_eq_u32 s60, 0", f"s_cselect_b32 s65, {SCRATCH}, s65", f"s_cselect_b32 s66, {SCRATCH}, s66"]
        o += [f"v_cvt_pk_bf16_f32 v{PK+i}, v{a+2*i}, v{a+2*i+1}" for i in range(4)]
        o += [f"v_cvt_pk_bf16_f32 v{VH+2*par+i}, v{a+8+2*i}, v{a+9+2*i}" for i in range(2)]
        o += [f"buffer_store_dwordx4 {vr(PK,4)}, v{L16}, {WSRD}, s66 offen offset:{par*1024} sc1"]
        if par: o += [f"buffer_store_dwordx4 {vr(VH,4)}, v{L16}, {WSRD}, s65 offen sc1"]
        return o
    rd = lambda ks, nxt: f"ds_read_b128 {vr(XW+4*(ks%NW),4)}, v{VR1 if nxt else VR0} offset:{ks*1024}"
    if F.PROF:
        for r in ST: A.e(f"v_mov_b32 v{r}, 0")
        A.e(f"s_memrealtime s[84:85]\ns_waitcnt lgkmcnt(0)\nv_writelane_b32 v{ST[2]}, s84, 0\nv_writelane_b32 v{ST[2]}, s86, 1")
    tinit(A)
    for x in loads() + loads(): A.e(x)
    A.e("s_waitcnt vmcnt(8)\ns_barrier")
    for ks in range(D): A.e(rd(ks, 0))
    top = A.newlabel("top"); tail = []
    A.label(top)
    for par in range(2):
        tst(A, 0)
        fill = {}
        for k, x in enumerate(epi(par ^ 1)): fill.setdefault(3 + k // 2 if k < 13 else k - 3, []).append(x)
        for k, x in enumerate(loads()): fill.setdefault(F.QM + 2 + 2 * k, []).append(x)
        for n in range(96):
            ks, t = divmod(n, 3)
            a = vr(ACC[par] + 4 * t, 4); x = vr(XW + 4 * (ks % NW), 4)
            if t == 0: A.e(f"s_waitcnt lgkmcnt({D-1})")
            A.e(f"{MF} {a}, {x}, {wr_(ks,t)}, {a if ks else 0}" if t == 2 else f"{MF} {a}, {wr_(ks,t)}, {x}, {a if ks else 0}")
            if t == 0: A.e(rd((ks + D) % 32, ks + D >= 32))
            for y in fill.get(n, []): A.e(y)
            if n == F.QM:
                nf = A.newlabel("nf")
                tst(A, 1)
                A.e(f"s_waitcnt vmcnt({2-par})")
                if par == 0:
                    sk = A.newlabel("sk")
                    hb = A.newlabel("hb"); hb2 = A.newlabel("hb2")
                    hc = A.newlabel("hc")
                    A.e(f"s_cmp_eq_u32 s60, 60\ns_cbranch_scc1 {hb}\ns_cmp_eq_u32 s60, {2*PR1}\ns_cbranch_scc1 {hc}"); A.label(hb2)
                    def dh(hb=hb, hb2=hb2, hc=hc):
                        A.label(hb); cpoll(A, L, {C_HB: 64}, 28, False, 12); A.e(f"s_branch {hb2}")
                        A.label(hc); cpoll(A, L, {C_M2: 63}, 28, False, 12); A.e(f"s_branch {hb2}")
                    tail.append(dh)
                    A.e(f"s_sub_u32 s64, s60, 2\ns_cmp_gt_u32 s64, {2*F.Q4}\ns_cbranch_scc1 {sk}\ns_waitcnt vmcnt(0)"); A.label(sk)
                    A.e(f"s_cselect_b32 s64, 1, s50")
                else: A.e("s_mov_b32 s64, s50")
                tst(A, 2)
                A.e(f"s_barrier\ns_cmp_ge_u32 s60, {NU-2}\ns_cselect_b32 s61, {HB}, s61\ns_cmp_lg_u32 s64, 0\ns_cbranch_scc1 {nf}\ns_lshr_b32 s64, s60, 1")
                flag_store(A, VT, "s64", 69); A.label(nf)
                tst(A, 3)
        A.e(f"v_mov_b32 v{VR0}, v{VR1}\nv_add_u32 v{VR1}, 32768, v{VR1}\nv_and_b32 v{VR1}, 0x1ffff, v{VR1}")
        if F.PROF: tst(A, 4); tacc(A, 5); stamp(A, ST[par])
        A.e("s_add_u32 s60, s60, 1")
    A.e(f"s_cmp_lt_u32 s60, {NU}\ns_cbranch_scc1 {top}")
    for x in epi(1): A.e(x)
    A.e(f"s_waitcnt vmcnt(0) lgkmcnt(0)\ns_barrier\ns_cmp_lg_u32 s50, 0\ns_cbranch_scc1 {done}")
    flag_store(A, VT, NSEG, 69)
    A.label(done)
    tout(A, ST[2]); stamp_out(A, ST)
    if F.AT: A.e(f"s_cmp_lt_u32 s59, {16*F.AT}\ns_cbranch_scc1 {L['att2']}")
    A.e("s_endpgm")
    for d in tail: d()

def gemm_role(A, L, kind):
    KS = 7 if kind == "w4" else 8
    stats = kind in ("w1", "w3"); xch = kind in ("wo", "w4"); res = kind == "w2"
    L16, VFA, VA, VRD, VRB, ONE, VF, VT, VO, VSW, VSR = 0, 2, 3, 4, 8, 12, 16, 17, 18, 19, 20
    ACC, FIN, S1, S2, SP, XW, NW, PKT, CS, RES, TM, M1 = 32, 40, 48, 52, 56, 64, 16, 128, 152, 160, 168, 204; ST = (200, 201, 202)
    LST = 128 * 1024; D = F.GD; NF = 4 * KS
    wreg = lambda n, t, k=4, o=0: ar((n * 2 + t) * 4 + o, k)
    done = A.newlabel("done")
    lanes(A)
    arg, ld, nbytes = dict(wo=("Wo", 2048, 8 * MB), w1=("w1", 2048, 2 * MB), w2=("w2", 2048, 2 * MB), w3=("w3", 7168, 7 * MB), w4=("w4", 2048, 7 * MB))[kind]
    ldptr(A, 4, arg)
    if xch: ldptr(A, 6, "x" if kind == "wo" else "out"); A.e("s_lshr_b32 s52, s59, 3\ns_and_b32 s53, s59, 7")
    else: A.e("s_mov_b32 s52, 0\ns_mov_b32 s53, s59")
    A.e(f"s_mul_i32 s54, s52, {NF*32*ld}\ns_lshl_b32 s64, s53, 8\ns_add_u32 s54, s54, s64\ns_lshl_b32 s64, s50, 6\ns_add_u32 s54, s54, s64\ns_waitcnt lgkmcnt(0)")
    A.srd(28, 4, nbytes)
    if xch: A.srd(24, 6, S * D_ * 2)
    def rdw(x):
        def f(buf):
            for kk in range(KS):
                for t in range(2):
                    for h in range(2): A.e(f"ds_read_b64_tr_b16 {wreg(x*KS+kk,t,2,2*h)}, v17 offset:{buf + (32*kk + 4*h)*64 + 8*t}")
                if kk % 3 == 2: A.e("s_waitcnt lgkmcnt(0)")
        return f
    A.e("s_and_b32 s55, s53, 7" + ("\ns_cmp_eq_u32 s55, 7\ns_cselect_b32 s55, 0, s55" if KS == 7 else ""))
    if kind == "w4" and F.W4G: cpoll(A, L, {C_M2: 63}, sl=F.VSL2)
    stage_weights(A, [(28, f"s_xor_b32 s62, s50, {x}\ns_mul_i32 s62, s62, {KS*32*ld}\ns_add_u32 s62, s62, s54", KS * 32, rdw(x)) for x in range(4)], ld, None, F.NFL2, None, 55 if F.ROT else None)
    verify(A, L, False, "mod")
    inb, ust = dict(wo=(OB, 131072), w1=(H2, 32768), w2=(G1, 32768), w3=(Y1, 32768), w4=(G3, 112 * 1024))[kind]
    A.e(f"""
    s_barrier
    v_lshlrev_b32 v{L16}, 4, v1
    s_mov_b32 s60, 0
    s_mov_b32 s70, 0
    s_mov_b32 s72, s55
    s_mov_b32 s55, 0
    s_lshl_b32 s63, s50, 13
    v_mov_b32 v{VA}, v{L16}
    s_mov_b32 s73, 0xffff0000
    s_lshl_b32 s64, s52, 2
    s_add_u32 s64, s64, s50
    s_mul_i32 s61, s64, {KS*1024}
    s_add_u32 s61, s61, {inb}
    s_lshl_b32 s82, s64, 8
    s_add_u32 s82, s82, {dict(wo=F_ATT, w1=F_LN, w2=F_W1, w3=F_W2, w4=F_W3)[kind]}
    s_mov_b32 s68, s82
    s_lshl_b32 s83, s53, 2
    s_add_u32 s83, s83, s50            ; output fragment index""")
    for x in range(4): A.e(f"s_xor_b32 s64, s50, {x}\ns_lshl_b32 s64, s64, 13\nv_add_u32 v{VRB+x}, s64, v{L16}")
    nfl = dict(wo=4, w1=4, w2=8, w3=8, w4=7)[kind]
    A.e(f"v_min_u32 v{VFA}, {nfl-1}, v1\nv_lshlrev_b32 v{VFA}, 2, v{VFA}")
    if res:
        A.e(f"""
        s_lshr_b32 s64, s50, 1
        s_add_u32 s64, s64, 1
        s_sub_u32 s65, 0, s64
        s_bitcmp1_b32 s50, 0
        s_cselect_b32 s64, s64, s65
        s_add_u32 s64, s64, 16
        v_add_u32 v26, s64, v21
        v_lshrrev_b32 v27, 4, v26
        v_and_b32 v26, 15, v26
        v_lshl_add_u32 v26, v22, 4, v26
        v_lshlrev_b32 v26, 4, v26
        v_lshl_add_u32 v{VA}, v27, 15, v26
        s_sub_u32 s61, s61, 32768""")
    VAR = 208
    if F.ROT:
        for i in range(KS): A.e(f"s_add_u32 s64, s72, {i}\ns_sub_u32 s65, s64, {KS}\ns_cselect_b32 s64, s64, s65\ns_lshl_b32 s64, s64, 10\ns_add_u32 s64, s64, {4096 - (i&3)*1024}\nv_add_u32 v{VAR+i}, s64, v{VA}")
        A.e("s_sub_u32 s61, s61, 4096")
    A.e("s_lshl_b32 s66, s83, 10")
    if kind == "w3":
        A.e(f"s_mul_i32 s65, s83, 147\ns_lshr_b32 s65, s65, 10\ns_mul_i32 s69, s65, {256 - 28}\ns_lshl_b32 s64, s83, 2\ns_add_u32 s69, s69, s64\ns_add_u32 s69, s69, {F_W3}")
    else:
        A.e(f"s_lshr_b32 s65, s83, 3\ns_lshl_b32 s65, s65, 8\ns_and_b32 s64, s83, 7\ns_lshl_b32 s64, s64, 2\ns_add_u32 s69, s64, s65\ns_add_u32 s69, s69, {dict(wo=F_WO, w1=F_W1, w2=F_W2, w4=F_W4)[kind]}")
    outb, ost = dict(wo=(X1, 32768), w1=(G1, 32768), w2=(Y1, 32768), w3=(G3, 112 * 1024), w4=(0, 32768))[kind]
    if xch:
        A.e(f"""
        s_lshl_b32 s64, s53, 2
        s_add_u32 s64, s64, s50
        s_mul_i32 s74, s64, {4*6144}
        s_xor_b32 s64, s50, s52
        s_sub_u32 s64, s64, 1
        s_max_i32 s64, s64, 0
        s_lshl_b32 s64, s64, 11
        s_add_u32 s74, s74, s64
        s_add_u32 s74, s74, {XP + (0 if kind == 'wo' else 768*KB)}
        s_mov_b32 s75, 0
        s_mov_b32 s76, 0
        s_mov_b32 s77, 0                   ; pending
        v_lshlrev_b32 v26, 11, v21
        v_lshl_add_u32 v26, v22, 4, v26
        s_lshl_b32 s64, s83, 6
        v_add_u32 v{VO}, s64, v26
        v_lshlrev_b32 v26, 5, v22
        s_lshl_b32 s64, s83, 7
        s_add_u32 s64, s64, {MOD + (2 if kind == 'wo' else 5)*4096}""")
        for g in range(4):
            for i in range(2): A.e(f"buffer_load_dwordx4 {vr((CS if g == 0 else PKT + 8*(g-1)) + 4*i, 4)}, v26, {WSRD}, s64 offen offset:{16*i} sc1")
            A.e(f"s_add_u32 s64, s64, {6144*4}")
        A.e("s_waitcnt vmcnt(0)")
        sum4(A, CS, PKT, 8)
        for i in range(4): A.e(f"v_mov_b32 v{M1+i}, -1")
    if stats:
        A.e(f"""
        s_lshl_b32 s64, s50, 9
        s_add_u32 s64, s64, {LST}
        v_lshlrev_b32 v26, 3, v1
        v_add_u32 v{VSW}, s64, v26
        v_lshl_add_u32 v26, v23, 4, v21
        v_lshlrev_b32 v26, 3, v26
        v_add_u32 v{VSR}, {LST}, v26
        s_mov_b32 s74, 0x22222222
        s_mov_b32 s75, 0x22222222
        s_mov_b32 s76, 0x44444444
        s_mov_b32 s77, 0x44444444
        s_mov_b32 s78, 0x88888888
        s_mov_b32 s79, 0x88888888
        s_mov_b32 s80, {f2u(GELU_C0):#x}
        s_mov_b32 s81, {f2u(GELU_C1):#x}
        v_mov_b32 v{TM+23}, s80""")
        for i in range(4): A.e(f"v_mov_b32 v{ONE+i}, 0x3f803f80")
        for n in range(NF):
            for t in range(2): A.e(f"{MF} {vr(CS+4*t,4)}, {wreg(n,t)}, {vr(ONE,4)}, {vr(CS+4*t,4) if n else 0}")
    def loads():
        o = ["s_add_u32 m0, s70, s63"] + ([] if F.ROT else ["s_add_u32 s62, s61, 4096"])
        for i in range(KS):
            o.append(f"buffer_load_dwordx4 v{VAR+i}, {WSRD}, s61 offen offset:{(i&3)*1024} lds" if F.ROT else f"buffer_load_dwordx4 v{VA}, {WSRD}, s{61+(i>>2)} offen offset:{(i&3)*1024} lds")
            if i == 3: o.append("s_add_u32 m0, m0, 4096")
        return o + [f"s_add_u32 s61, s61, {ust}", "s_add_u32 s70, s70, 32768", "s_and_b32 s70, s70, 0x1ffff"]
    pollld = f"buffer_load_dword v{VF}, v{VFA}, {WSRD}, s68 offen sc1"
    def need(add, d=71):
        if F.FREE: A.e(f"s_cmp_ge_u32 s60, {NU-add}\ns_cselect_b32 s{d}, -1, 0"); return
        A.e(f"s_add_u32 s{d}, s60, {add+1}")
        if res: A.e(f"s_and_b32 s64, s50, 1\ns_add_u32 s{d}, s{d}, s64\ns_min_u32 s{d}, s{d}, {NU}\ns_cmp_ge_u32 s60, {NU-add}\ns_cselect_b32 s{d}, -1, s{d}")
    xr = lambda n: vr(XW + 4 * (n % NW), 4)
    rd = lambda n: f"ds_read_b128 {xr(n)}, v{VRD + n//KS} offset:{(n%KS)*1024}"
    def mm(n):
        o = [f"{MF} {vr(ACC+4*t,4)}, {wreg(n,t)}, {xr(n)}, {vr(ACC+4*t,4) if n else 0}" for t in range(2)]
        if stats and n < KS: o += [f"{MF} {vr(S1,4)}, {vr(ONE,4)}, {xr(n)}, {vr(S1,4) if n else 0}", f"{MF} {vr(S2,4)}, {xr(n)}, {xr(n)}, {vr(S2,4) if n else 0}"]
        return o
    def both(f):
        l1 = A.newlabel("b1"); l2 = A.newlabel("b2")
        A.e(f"s_cmp_eq_u32 s56, 1\ns_cbranch_scc1 {l1}"); f("")
        A.label(l2)
        def d(): A.label(l1); A.e("s_nop 7"); f("sc1"); A.e(f"s_branch {l2}")
        tail.append(d)
    def f1():
        A.e("s_add_u32 s64, s74, s75\ns_add_u32 s65, s64, 4096")
        for i in range(6): A.e(f"buffer_load_dwordx4 {vr(PKT+4*i,4)}, v{L16}, {WSRD}, s{64+(i>>2)} offen offset:{(i&3)*1024} sc1")
    def fres():
        if kind == "wo": A.e(f"s_and_b32 s64, s66, 0xffff8000\nbuffer_load_dwordx4 {vr(RES,4)}, v{VO}, s[24:27], s64 offen")
        else: A.e(f"s_add_u32 s64, s66, {X1}\nbuffer_load_dwordx4 {vr(RES,4)}, v{L16}, {WSRD}, s64 offen\ns_add_u32 s64, s66, {Y1}\nbuffer_load_dwordx4 {vr(RES+4,4)}, v{L16}, {WSRD}, s64 offen")
    def f2():
        ck = A.newlabel("ck"); rt = A.newlabel("rt"); go = A.newlabel("go")
        A.label(ck)
        for i in range(0, 8, 2): A.e(f"v_pk_add_f32 {vr(PKT+i,2)}, {vr(PKT+i,2)}, {vr(PKT+8+i,2)}\nv_pk_add_f32 {vr(PKT+16+i,2)}, {vr(PKT+16+i,2)}, {vr(FIN+i,2)}")
        for i in range(0, 8, 2): A.e(f"v_pk_add_f32 {vr(PKT+i,2)}, {vr(PKT+i,2)}, {vr(PKT+16+i,2)}")
        A.e(f"v_pk_add_f32 {vr(TM,2)}, {vr(PKT,2)}, {vr(PKT+2,2)}\nv_pk_add_f32 {vr(TM+2,2)}, {vr(PKT+4,2)}, {vr(PKT+6,2)}\nv_pk_add_f32 {vr(TM,2)}, {vr(TM,2)}, {vr(TM+2,2)}")
        A.e(f"v_cmp_u_f32 vcc, v{TM}, v{TM+1}\ns_cbranch_vccnz {rt}")
        A.label(go)
        def d():
            A.label(rt)
            A.e(f"s_sub_u32 s90, s90, 1\ns_cmp_gt_i32 s90, 0\ns_cbranch_scc0 {go}"); f1(); A.e(f"s_waitcnt vmcnt(0)\ns_branch {ck}")
        tail.append(d)
        unpack(A, RES, TM, 4)
        if kind == "w4":
            unpack(A, RES + 4, TM + 8, 4)
            for i in range(0, 8, 2): A.e(f"v_pk_add_f32 {vr(PKT+i,2)}, {vr(PKT+i,2)}, {vr(TM+8+i,2)}")
        for i in range(8): A.e(f"v_fma_f32 v{TM+i}, v{PKT+i}, v{CS+i}, v{TM+i}")
        for i in range(4): A.e(f"v_cvt_pk_bf16_f32 v{TM+8+i}, v{TM+2*i}, v{TM+2*i+1}")
        if kind == "wo": A.e(f"s_add_u32 s64, s66, {X1}\nbuffer_store_dwordx4 {vr(TM+8,4)}, v{L16}, {WSRD}, s64 offen sc1")
        else: A.e(f"s_and_b32 s64, s66, 0xffff8000\nbuffer_store_dwordx4 {vr(TM+8,4)}, v{VO}, s[24:27], s64 offen")
        A.e("s_add_u32 s64, s74, s75\ns_add_u32 s65, s64, 4096")
        def rs(fl):
            for i in range(6): A.e(f"buffer_store_dwordx4 {vr(M1,4)}, v{L16}, {WSRD}, s{64+(i>>2)} offen offset:{(i&3)*1024} {fl}")
        both(rs)
        A.e(f"s_add_u32 s66, s66, {ost}\ns_add_u32 s75, s75, 6144\ns_cmp_eq_u32 s75, {4*6144}\ns_cselect_b32 s75, 0, s75\ns_add_u32 s76, s76, 1\ns_mov_b32 s77, 0")
    tail = []
    def loop(fin):
        send = xch and not fin
        NS = 0 if fin else (2 if send else 1)
        flg = (not send) and kind != "w4"
        fl = lambda: flag_store(A, VT, "s76" if fin else "s60", 69) if flg else None
        def dummies():
            for _ in range(NS): A.e(f"buffer_load_dword v{VT}, off, {WSRD}, s69")
        top = A.newlabel("top"); vN = A.newlabel("vN"); join = A.newlabel("join"); slowp = A.newlabel("slowp"); lag = A.newlabel("lag")
        need(0); poll_loop(A, pollld, VF, 71)
        A.label(lag)
        for x in loads(): A.e(x)
        dummies()
        A.e("s_mov_b32 s72, 1\ns_mov_b32 s54, 0")
        A.label(top)
        need(1)
        if F.P2: need(2, 53)
        A.e(pollld)
        ex = 1
        if fin: f1(); fres(); ex += 6 + (1 if kind == "wo" else 2)
        elif res: A.e(f"s_add_u32 s64, s66, {H2}\nbuffer_load_dwordx4 {vr(RES,4)}, v{L16}, {WSRD}, s64 offen"); ex += 1
        for x in range(4): A.e(f"v_add_u32 v{VRD+x}, s55, v{VRB+x}")
        A.e("s_add_u32 s55, s55, 32768\ns_and_b32 s55, s55, 0x1ffff")
        tst(A, 0)
        def head(w):
            Z = Sched(A)
            for i in range(KS):
                if w: A.e(f"s_waitcnt vmcnt({KS-1-i+NS+ex})")
                Z.lds(rd(i), i)
                if i == KS - 1: A.e("s_barrier")
                if i >= 2:
                    Z.need(i - 2)
                    for x in mm(i - 2): A.e(x)
            return Z
        if F.P2:
            tA = A.newlabel("tA"); tC = A.newlabel("tC"); cont = A.newlabel("cont")
            A.e(f"s_cmp_lg_u32 s72, 2\ns_cbranch_scc1 {tC}"); A.label(tA)
            Z = head(False); A.label(cont)
            def dH():
                tB = A.newlabel("tB")
                A.label(tC); A.e(f"s_cmp_eq_u32 s72, 1\ns_cbranch_scc1 {tB}\ns_waitcnt vmcnt({KS+NS+ex})\ns_branch {tA}")
                A.label(tB); head(True); A.e(f"s_branch {cont}")
            tail.append(dH)
        else: Z = head(True)
        tst(A, 1)
        nr = [KS]
        def run(Z, lo, hi, fill={}):
            for n in range(lo, hi):
                while nr[0] < min(NF, n + D + 1) and nr[0] < n + 3: Z.lds(rd(nr[0]), nr[0]); nr[0] += 1
                Z.need(n)
                for k, x in enumerate(mm(n)):
                    A.e(x)
                    if k == 0:
                        for _ in range(2):
                            if nr[0] < min(NF, n + D + 1): Z.lds(rd(nr[0]), nr[0]); nr[0] += 1
                    for y in fill.get((n, k), []):
                        if y.startswith("ds_"): Z.lds(y, y)
                        elif y.startswith("need "): Z.need(y[5:])
                        else: A.e(y)
        fill = {}
        MID = F.GM * NF // 32
        if stats:
            sw = f"ds_write_b64 v{VSW}, {vr(S1,2)}"
            fill[(KS + 3, 0)] = [f"v_cndmask_b32 v{S1+1}, v{S2}, v{S2+1}, s[74:75]"]; fill[(KS + 3, 1)] = [f"v_cndmask_b32 v{S1+1}, v{S1+1}, v{S2+2}, s[76:77]"]
            fill[(KS + 4, 0)] = [f"v_cndmask_b32 v{S1+1}, v{S1+1}, v{S2+3}, s[78:79]"]; fill[(KS + 4, 1)] = [sw]
            srd_ = [f"ds_read_b64 {vr(SP+2*w,2)}, v{VSR} offset:{w*512}" for w in range(4)]
            fill[(KS + 8, 1)] = ["need " + sw, "s_barrier"] + srd_[:2]; fill[(KS + 9, 0)] = srd_[2:]
            i0 = len(A.lines); stats_fin(A, SP, TM + 21, TM + 22, 1); sf = [x.strip() for x in A.lines[i0:]]; del A.lines[i0:]
            sf = ["need " + srd_[3]] + sf
            for k, x in enumerate(sf): fill.setdefault((KS + 13 + k // 2, k & 1), []).append(x)
            assert KS + 13 + len(sf) // 2 < NF
        run(Z, KS - 2, MID, fill)
        tst(A, 2)
        A.e("s_waitcnt vmcnt(0)")
        tst(A, 3)
        if fin:
            np_ = A.newlabel("np"); A.e(f"s_cmp_eq_u32 s77, 0\ns_cbranch_scc1 {np_}"); f2(); A.label(np_)
        else: fl()
        if F.P2:
            vD = A.newlabel("vD"); bk = A.newlabel("bk")
            A.e(f"s_cmp_eq_u32 s54, 0\ns_cselect_b32 s64, s71, s53\nv_cmp_gt_u32 vcc, s64, v{VF}\ns_cbranch_vccnz {vN}\ns_mov_b32 s72, 2\ns_cbranch_scc1 {vD}"); A.label(bk)
            def dD():
                A.label(vD); A.e(f"s_mov_b32 s72, 1\nv_cmp_gt_u32 vcc, s53, v{VF}\ns_cbranch_vccnz {bk}")
                for x in loads(): A.e(x)
                A.e(f"s_mov_b32 s72, 3\ns_mov_b32 s54, 1\ns_branch {bk}")
            tail.append(dD)
        else: A.e(f"v_cmp_gt_u32 vcc, s71, v{VF}\ns_cbranch_vccnz {vN}\ns_mov_b32 s72, 1")
        n0 = nr[0]; Z2 = Z.copy()
        fR = {k: list(v) for k, v in fill.items()}
        sl_ = 0
        for k, x in enumerate(loads()):
            fR.setdefault((MID + sl_ // 2, sl_ & 1), []).append(x); sl_ += F.GS if x.startswith("buffer") else 1
        assert MID + sl_ // 2 <= NF
        run(Z, MID, NF, fR)
        A.label(join)
        def dN():
            A.label(vN); A.e(pollld); nr[0] = n0
            run(Z2, MID, NF, fill)
            if F.P2:
                A.e("s_lshl_b32 s72, s54, 1\ns_mov_b32 s54, 0")
                if fin and flg: A.e("s_waitcnt vmcnt(7)")
            else: A.e("s_mov_b32 s72, 0")
            A.e(f"s_branch {join}")
        tail.append(dN)
        tst(A, 4)
        a = ACC
        if fin:
            for i in range(8): A.e(f"v_mov_b32 v{FIN+i}, v{a+i}")
            A.e("s_mov_b32 s77, 1")
        elif send:
            A.e("s_add_u32 s64, s74, s75")
            both(lambda f_: [A.e(f"buffer_store_dwordx4 {vr(a+4*t,4)}, v{L16}, {WSRD}, s64 offen offset:{t*1024} {f_}") for t in range(2)])
            A.e(f"s_add_u32 s75, s75, 6144\ns_cmp_eq_u32 s75, {4*6144}\ns_cselect_b32 s75, 0, s75")
        else:
            if stats:
                for i in range(8): A.e(f"v_fma_f32 v{a+i}, v{CS+i}, v{TM+21}, v{a+i}")
                for i in range(8): A.e(f"v_mul_f32 v{a+i}, v{a+i}, v{TM+22}")
                for op in ("v_mul_f32 v{t}, v{v}, v{v}", "v_fma_f32 v{t}, v{t}, s81, v%d" % (TM + 23), "v_mul_f32 v{t}, v{t}, v{v}", "v_exp_f32 v{t}, v{t}", "v_add_f32 v{t}, 1.0, v{t}", "v_rcp_f32 v{t}, v{t}", "v_mul_f32 v{v}, v{t}, v{v}"):
                    for i in range(8): A.e(op.format(t=TM + i, v=a + i))
            else:
                unpack(A, RES, TM, 4)
                for i in range(8): A.e(f"v_add_f32 v{a+i}, v{a+i}, v{TM+i}")
            for i in range(4): A.e(f"v_cvt_pk_bf16_f32 v{TM+8+i}, v{a+2*i}, v{a+2*i+1}")
            A.e(f"s_add_u32 s64, s66, {outb}\nbuffer_store_dwordx4 {vr(TM+8,4)}, v{L16}, {WSRD}, s64 offen sc1\ns_add_u32 s66, s66, {ost}")
        if F.PROF:
            tst(A, 5); tacc(A, 6)
            if not fin: stamp2(A, ST)
        A.e(f"s_add_u32 s60, s60, 1\ns_cmp_eq_u32 s72, 0\ns_cbranch_scc1 {slowp}")
        if fin and flg: A.e(f"s_waitcnt vmcnt({6+KS})"); fl()
        A.e(f"s_branch {top}")
        A.label(slowp)
        A.e(f"s_waitcnt vmcnt({NS})")
        if fin: fl()
        A.e(f"v_cmp_gt_u32 vcc, s71, v{VF}\ns_cbranch_vccz {lag}")
        if fin:
            fres(); f1(); A.e("s_waitcnt vmcnt(0)"); f2()
            if flg: A.e("s_waitcnt vmcnt(6)")
        elif flg: A.e("s_waitcnt vmcnt(0)")
        fl()
        A.e(f"s_cmp_ge_u32 s60, {NU}\ns_cbranch_scc1 {done}")
        poll_loop(A, pollld, VF, 71)
        A.e(f"s_branch {lag}")
    def pc(k):
        if F.PROF >= 2: A.e(f"s_add_u32 s{98 + k//4}, s{98 + k//4}, {1 << (8 * (k & 3))}")
    def grab(f):
        i0 = len(A.lines); f(); o = [x.strip() for x in A.lines[i0:]]; del A.lines[i0:]; return o
    def f2chk():
        ck = A.newlabel("ck"); rt = A.newlabel("rt"); go = A.newlabel("go")
        A.label(ck)
        for i in range(0, 8, 2): A.e(f"v_pk_add_f32 {vr(PKT+i,2)}, {vr(PKT+i,2)}, {vr(PKT+8+i,2)}\nv_pk_add_f32 {vr(PKT+16+i,2)}, {vr(PKT+16+i,2)}, {vr(FIN+i,2)}")
        for i in range(0, 8, 2): A.e(f"v_pk_add_f32 {vr(PKT+i,2)}, {vr(PKT+i,2)}, {vr(PKT+16+i,2)}")
        A.e(f"v_pk_add_f32 {vr(TM,2)}, {vr(PKT,2)}, {vr(PKT+2,2)}\nv_pk_add_f32 {vr(TM+2,2)}, {vr(PKT+4,2)}, {vr(PKT+6,2)}\nv_pk_add_f32 {vr(TM,2)}, {vr(TM,2)}, {vr(TM+2,2)}")
        A.e(f"v_cmp_u_f32 vcc, v{TM}, v{TM+1}\ns_cbranch_vccnz {rt}")
        A.label(go)
        def d():
            A.label(rt); pc(6)
            A.e(f"s_sub_u32 s90, s90, 1\ns_cmp_gt_i32 s90, 0\ns_cbranch_scc0 {go}"); f1(); A.e(f"s_waitcnt vmcnt(0)\ns_branch {ck}")
        tail.append(d)
    VX, VOX = 21, 22
    def f2rest():
        o = ["s_cmp_eq_u32 s77, 0\ns_cselect_b32 s57, 2.0, 0", f"v_or_b32 v{VX}, s57, v{L16}"] + ([f"v_or_b32 v{VOX}, s57, v{VO}"] if kind == "w4" else [])
        o += grab(lambda: unpack(A, RES, TM, 4))
        if kind == "w4":
            o += grab(lambda: unpack(A, RES + 4, TM + 8, 4))
            o += [f"v_pk_add_f32 {vr(PKT+i,2)}, {vr(PKT+i,2)}, {vr(TM+8+i,2)}" for i in range(0, 8, 2)]
        o += [f"v_fma_f32 v{TM+i}, v{PKT+i}, v{CS+i}, v{TM+i}" for i in range(8)]
        o += [f"v_cvt_pk_bf16_f32 v{TM+8+i}, v{TM+2*i}, v{TM+2*i+1}" for i in range(4)]
        if kind == "wo": o += [f"s_add_u32 s64, s66, {X1}\nbuffer_store_dwordx4 {vr(TM+8,4)}, v{VX}, {WSRD}, s64 offen sc1"]
        else: o += [f"s_and_b32 s64, s66, 0xffff8000\nbuffer_store_dwordx4 {vr(TM+8,4)}, v{VOX}, s[24:27], s64 offen"]
        for h in range(3):
            def rs(fl, h=h):
                for i in (2 * h, 2 * h + 1): A.e(f"buffer_store_dwordx4 {vr(M1,4)}, v{VX}, {WSRD}, s{64+(i>>2)} offen offset:{(i&3)*1024} {fl}")
            o.append("\n".join(["s_add_u32 s64, s74, s75", "s_add_u32 s65, s64, 4096"] + grab(lambda: both(rs))))
        o += [f"s_mul_i32 s64, s77, {ost}\ns_add_u32 s66, s66, s64\ns_mul_i32 s64, s77, 6144\ns_add_u32 s75, s75, s64", f"s_cmp_eq_u32 s75, {4*6144}\ns_cselect_b32 s75, 0, s75\ns_add_u32 s76, s76, s77"]
        r = grab(fres)
        return o + ["\n".join(r[i:i + 2]) for i in range(0, len(r), 2)]
    def cost(x):
        if x.startswith(("v_exp", "v_rcp")): return F.TC
        if "buffer_" in x: return 8
        return 4 if x.startswith("v_") else 2
    def spread(fill, items, lo, budget, hi):
        while True:
            f = {k: list(v) for k, v in fill.items()}; n, k, c = lo, 0, 0
            for x in items:
                if c and c + cost(x) > budget:
                    k += 1; c = 0
                    if k == len(mm(n)): n += 1; k = 0
                f.setdefault((n, k), []).append(x); c += cost(x)
            if n < hi: return f
            budget += 2
    def loop2(fin):
        send = xch and not fin
        NR = 1 if kind == 'wo' else 2
        NS = 7 + NR if fin else (2 if send else 1)
        flg = (not send) and kind != "w4"
        wv = stats and F.WV
        fl = lambda: flag_store(A, VT, "s76" if fin else "s60", 69) if flg else None
        Q1 = KS + F.G1; Q2 = NF - (F.G2 if KS == 8 else F.G2 - F.G2 // 8)
        top = A.newlabel("top"); vN = A.newlabel("vN"); join = A.newlabel("join"); slowp = A.newlabel("slowp"); lag = A.newlabel("lag")
        topW = A.newlabel("topW"); cont = A.newlabel("cont"); epiI = A.newlabel("epiI")
        ex = 2 if res else 1
        nr = [0]
        def emit(Z, y):
            if y.startswith("ds_"): Z.lds(y, y)
            elif y.startswith("need "): Z.need(y[5:])
            else: A.e(y)
        def run(Z, lo, hi, fill={}):
            for n in range(lo, hi):
                while nr[0] < min(NF, n + D + 1) and nr[0] < n + 3: Z.lds(rd(nr[0]), nr[0]); nr[0] += 1
                Z.need(n)
                for k, x in enumerate(mm(n)):
                    A.e(x)
                    if k == 0:
                        for _ in range(2):
                            if nr[0] < min(NF, n + D + 1): Z.lds(rd(nr[0]), nr[0]); nr[0] += 1
                    for y in fill.get((n, k), []): emit(Z, y)
        def pre():
            need(1); need(2, 53)
            A.e(pollld)
            if res: A.e(f"s_add_u32 s64, s66, {H2}\nbuffer_load_dwordx4 {vr(RES,4)}, v{L16}, {WSRD}, s64 offen")
            for x in range(4): A.e(f"v_add_u32 v{VRD+x}, s55, v{VRB+x}")
            A.e("s_add_u32 s55, s55, 32768\ns_and_b32 s55, s55, 0x1ffff")
            tst(A, 0)
        def head(w, fill={}, early=[]):
            Z = Sched(A)
            for i in range(KS):
                if w: A.e(f"s_waitcnt vmcnt({KS-1-i+NS+ex})")
                Z.lds(rd(i), i)
                if i == KS - 1: A.e("s_barrier")
                if i == 2:
                    for x in early: A.e(x)
                if i >= 2:
                    Z.need(i - 2)
                    for k, x in enumerate(mm(i - 2)):
                        A.e(x)
                        for y in fill.get((i - 2, k), []): emit(Z, y)
            nr[0] = KS
            return Z
        fill = {}
        if stats:
            sw = f"ds_write_b64 v{VSW}, {vr(S1,2)}"
            fill[(KS + 3, 0)] = [f"v_cndmask_b32 v{S1+1}, v{S2}, v{S2+1}, s[74:75]"]; fill[(KS + 3, 1)] = [f"v_cndmask_b32 v{S1+1}, v{S1+1}, v{S2+2}, s[76:77]"]
            fill[(KS + 4, 0)] = [f"v_cndmask_b32 v{S1+1}, v{S1+1}, v{S2+3}, s[78:79]"]; fill[(KS + 4, 1)] = [sw]
            srd_ = [f"ds_read_b64 {vr(SP+2*w,2)}, v{VSR} offset:{w*512}" for w in range(4)]
            fill[(KS + 8, 1)] = ["need " + sw, "s_barrier"] + srd_[:2]; fill[(KS + 9, 0)] = srd_[2:]
            sf = ["need " + srd_[3]] + grab(lambda: stats_fin(A, SP, TM + 21, TM + 22, 1))
            for k, x in enumerate(sf): fill.setdefault((KS + 13 + k // 2, k & 1), []).append(x)
            assert KS + 13 + len(sf) // 2 < NF
        cpy = [f"v_fma_f32 v{FIN+i}, v{CS+i}, v{TM+21}, v{ACC+i}" for i in range(8)]
        def gelu(a):
            o = [f"v_mul_f32 v{a+i}, v{a+i}, v{TM+22}" for i in range(8)]
            for op in ("v_mul_f32 v{t}, v{v}, v{v}", "v_fma_f32 v{t}, v{t}, s81, v%d" % (TM + 23), "v_mul_f32 v{t}, v{t}, v{v}"): o += [op.format(t=TM + i, v=a + i) for i in range(8)]
            e = [f"v_exp_f32 v{TM+i}, v{TM+i}" for i in range(8)]; p = [f"v_add_f32 v{TM+i}, 1.0, v{TM+i}" for i in range(8)]
            r = [f"v_rcp_f32 v{TM+i}, v{TM+i}" for i in range(8)]; m = [f"v_mul_f32 v{a+i}, v{TM+i}, v{a+i}" for i in range(8)]
            o += e[:2] + [x for i in range(2, 8) for x in (e[i], p[i - 2])] + p[6:] + r[:2] + [x for i in range(2, 8) for x in (r[i], m[i - 2])] + m[6:]
            return o
        def outst(a): return [f"v_cvt_pk_bf16_f32 v{TM+8+i}, v{a+2*i}, v{a+2*i+1}" for i in range(4)] + [f"s_add_u32 s64, s66, {outb}\nbuffer_store_dwordx4 {vr(TM+8,4)}, v{L16}, {WSRD}, s64 offen sc1\ns_add_u32 s66, s66, {ost}"]
        if fin: fres()
        need(0); poll_loop(A, pollld, VF, 71)
        A.label(lag); pc(0)
        for x in loads(): A.e(x)
        for _ in range(NS): A.e(f"buffer_load_dword v{VT}, off, {WSRD}, s69")
        A.e("s_mov_b32 s72, 1\ns_mov_b32 s54, 0")
        def first_i(main):
            tA = A.newlabel("tA"); tC = A.newlabel("tC"); c2 = A.newlabel("c2"); tB = A.newlabel("tB")
            A.label(top); pre()
            A.e(f"s_cmp_lg_u32 s72, 2\ns_cbranch_scc1 {tC}"); A.label(tA)
            Z = head(False); A.label(c2)
            def dH():
                n0 = nr[0]
                A.label(tC); A.e(f"s_cmp_eq_u32 s72, 1\ns_cbranch_scc1 {tB}\ns_waitcnt vmcnt({KS+NS+ex})\ns_branch {tA}")
                A.label(tB); pc(4); head(True)
                if flg and F.FH: A.e(f"s_waitcnt vmcnt({ex + (NS - 1 if fin else 0)})"); fl()
                A.e(f"s_branch {c2}"); nr[0] = n0
            tail.append(dH)
            tst(A, 1)
            run(Z, KS - 2, Q1, fill)
            A.e(f"s_waitcnt vmcnt({ex-1})"); fl()
            if wv: A.e("s_mov_b32 s57, 0")
            return Z
        Z = first_i(True)
        if wv:
            A.e(f"s_branch {cont}")
            A.label(topW); pc(3); pre()
            G = gelu(FIN) + outst(FIN)
            fW = spread(fill, G[F.WE:], 0, F.WB, Q1)
            Z = head(False, fW, cpy + G[:F.WE]); tst(A, 1); run(Z, KS - 2, Q1, fW)
            A.e("s_waitcnt vmcnt(1)\ns_mov_b32 s57, 1" if not F.XW & 1 else "s_mov_b32 s57, 1")
        A.label(cont)
        tst(A, 2)
        if fin: f1()
        vD = A.newlabel("vD"); bk = A.newlabel("bk")
        A.e(f"s_cmp_eq_u32 s54, 0\ns_cselect_b32 s64, s71, s53\nv_cmp_gt_u32 vcc, s64, v{VF}\ns_cbranch_vccnz {vN}\ns_mov_b32 s72, 2\ns_cbranch_scc1 {vD}"); A.label(bk)
        def dD():
            A.label(vD); A.e(f"s_mov_b32 s72, 1\nv_cmp_gt_u32 vcc, s53, v{VF}\ns_cbranch_vccnz {bk}")
            pc(1)
            for x in loads(): A.e(x)
            A.e(f"s_mov_b32 s72, 3\ns_mov_b32 s54, 1\ns_branch {bk}")
        tail.append(dD)
        n0 = nr[0]; Z2 = Z.copy()
        def burst(lab, back, post=""):
            def d():
                A.label(lab); pc(7)
                for x in loads(): A.e(x)
                A.e(post); A.e(f"s_branch {back}")
            tail.append(d)
        def second(Z, R):
            f = {k: list(v) for k, v in fill.items()}
            if R:
                L_ = loads(); ns = 2 * (Q2 - Q1); i = 0
                for x in L_:
                    sl_ = min(ns - 1, i * ns // KS); f.setdefault((Q1 + sl_ // 2, sl_ & 1), []).append(x)
                    if x.startswith("buffer"): i += 1
            else: A.e(pollld)
            run(Z, Q1, Q2, f)
            tst(A, 3)
            if R and (fin or wv) and not (wv and F.XW & 2):
                w2_ = A.newlabel("w2"); w3_ = A.newlabel("w3")
                A.e(f"s_cmp_eq_u32 s72, 3\ns_cbranch_scc1 {w2_}\ns_waitcnt vmcnt({KS})"); A.label(w3_)
                def d(): A.label(w2_); A.e(f"s_waitcnt vmcnt({2*KS})\ns_branch {w3_}")
                tail.append(d)
            if not R: A.e("s_waitcnt vmcnt(0)")
            if wv:
                sk = A.newlabel("sk"); A.e(f"s_cmp_eq_u32 s57, 0\ns_cbranch_scc1 {sk}"); fl(); A.label(sk)
            if not R:
                b1 = A.newlabel("bu"); b2 = A.newlabel("bb")
                A.e(f"s_cmp_eq_u32 s54, 0\ns_cselect_b32 s64, s71, s53\nv_cmp_gt_u32 vcc, s64, v{VF}\ns_cbranch_vccz {b1}\ns_lshl_b32 s72, s54, 1\ns_mov_b32 s54, 0")
                A.e(pollld); A.label(b2)
                burst(b1, b2, "s_add_u32 s72, s54, 1")
            f = fill
            if fin:
                sk = A.newlabel("sk"); A.e(f"s_cmp_eq_u32 s77, 0\ns_cbranch_scc1 {sk}"); f2chk(); A.label(sk)
                f = spread(fill, f2rest(), Q2, F.FB, NF)
            run(Z, Q2, NF, f)
            if res and R: A.e(f"s_waitcnt vmcnt({KS})")
            if wv and R and F.XW: A.e(f"s_waitcnt vmcnt({KS+3})")
        second(Z, True)
        A.label(join)
        def dN():
            A.label(vN); pc(2); nr[0] = n0
            second(Z2, False)
            if not fin:
                b1 = A.newlabel("bu")
                A.e(f"s_cmp_lg_u32 s72, 0\ns_cbranch_scc1 {join}\ns_waitcnt vmcnt(0)\nv_cmp_gt_u32 vcc, s71, v{VF}\ns_cbranch_vccz {b1}")
                A.e(pollld)
                burst(b1, join, "s_mov_b32 s72, 1")
            A.e(f"s_branch {join}")
        tail.append(dN)
        tst(A, 4)
        a = ACC
        def prof():
            if F.PROF:
                tst(A, 5); tacc(A, 6)
                if not fin: stamp2(A, ST)
        if fin:
            if F.PROF:
                sk = A.newlabel("sk"); A.e(f"s_cmp_eq_u32 s77, 0\ns_cbranch_scc1 {sk}"); stamp2(A, ST, "s76", 1); A.label(sk); A.e("s_nop 4")
            for i in range(8): A.e(f"v_mov_b32 v{FIN+i}, v{a+i}")
            A.e("s_mov_b32 s77, 1")
        elif send:
            A.e("s_add_u32 s64, s74, s75")
            both(lambda f_: [A.e(f"buffer_store_dwordx4 {vr(a+4*t,4)}, v{L16}, {WSRD}, s64 offen offset:{t*1024} {f_}") for t in range(2)])
            A.e(f"s_add_u32 s75, s75, 6144\ns_cmp_eq_u32 s75, {4*6144}\ns_cselect_b32 s75, 0, s75")
        elif stats:
            if wv:
                A.e(f"s_cmp_lg_u32 s72, 2\ns_cbranch_scc1 {epiI}"); prof(); A.e(f"s_add_u32 s60, s60, 1\ns_branch {topW}"); A.label(epiI); A.e("s_nop 3")
            for x in cpy + gelu(FIN) + outst(FIN): A.e(x)
        else:
            unpack(A, RES, TM, 4)
            for i in range(8): A.e(f"v_add_f32 v{a+i}, v{a+i}, v{TM+i}")
            for x in outst(a): A.e(x)
        prof()
        A.e(f"s_add_u32 s60, s60, 1\ns_cmp_lg_u32 s72, 0\ns_cbranch_scc1 {top}")
        if fin:
            l2 = A.newlabel("l2")
            f1(); A.e("s_waitcnt vmcnt(6)"); fl()
            A.e(f"v_cmp_gt_u32 vcc, s71, v{VF}\ns_cbranch_vccnz {l2}")
            pc(0)
            for x in loads(): A.e(x)
            A.e(f"s_waitcnt vmcnt({KS + flg})")
            def fin_now():
                f2chk()
                for x in f2rest(): A.e(x)
                if F.PROF: stamp2(A, ST, "s76", 1)
                A.e("s_mov_b32 s77, 0")
            fin_now()
            A.e(f"s_mov_b32 s72, 1\ns_branch {top}")
            A.label(l2)
            A.e(f"s_waitcnt vmcnt({0 + flg})"); fin_now()
            if flg: A.e(f"s_waitcnt vmcnt({NS-1})")
        else:
            A.e(f"s_waitcnt vmcnt({NS})\nv_cmp_gt_u32 vcc, s71, v{VF}\ns_cbranch_vccz {lag}")
            if flg: A.e("s_waitcnt vmcnt(0)")
        fl()
        A.e(f"s_cmp_ge_u32 s60, {NU}\ns_cbranch_scc1 {done}")
        pc(5); poll_loop(A, pollld, VF, 71)
        A.e(f"s_branch {lag}")
    if F.PROF:
        for r in ST: A.e(f"v_mov_b32 v{r}, 0")
        A.e(f"s_memrealtime s[84:85]\ns_waitcnt lgkmcnt(0)\nv_writelane_b32 v{ST[2]}, s84, 0\nv_writelane_b32 v{ST[2]}, s86, 1")
        if xch:
            _f2 = f2
            def f2():
                _f2(); stamp2(A, ST, "s76", 1)
    tinit(A)
    lp_ = loop2 if F.NL else loop
    if xch:
        lf = A.newlabel("lfin")
        A.e(f"s_cmp_eq_u32 s50, s52\ns_cbranch_scc1 {lf}")
        lp_(False); A.label(lf); lp_(True)
    else: lp_(False)
    while tail: tail.pop(0)()
    A.label(done)
    tout(A, ST[2]); stamp_out(A, ST)
    A.e("s_endpgm")

class VMQ:
    def __init__(self, A, hist): self.A = A; self.q = list(hist); self.done = -1
    def op(self, ins, tag): self.A.e(ins); self.q.append(tag)
    def need(self, tag):
        i = len(self.q) - 1 - self.q[::-1].index(tag)
        if i > self.done:
            n = len(self.q) - 1 - i; assert n < 64
            self.A.e(f"s_waitcnt vmcnt({n})"); self.done = i
def gemm3_role(A, L, kind):
    KS = 7 if kind == "w4" else 8
    stats = kind in ("w1", "w3"); xch = kind in ("wo", "w4"); res = kind == "w2"
    L16, VFA, VA, VW, VR_, ONE, VF, VT, VO, VSW, VSR, VX, VOX = 0, 2, 3, 4, 7, 12, 16, 17, 18, 19, 20, 21, 22
    ACC, AF, RD, FIN, PKT, CS, RES, TM, M1, S1, S2, SP = 32, 64, 96, 120, 128, 152, 160, 168, 204, 208, 212, 216; ST = (200, 201, 202)
    NF = 4 * KS; H = KS - F.H3; OWN = ACC + 24
    wreg = lambda n, t, k=4, o=0: ar((n * 2 + t) * 4 + o, k)
    done = A.newlabel("done"); tail = []
    lanes(A)
    arg, ld, nbytes = dict(wo=("Wo", 2048, 8 * MB), w1=("w1", 2048, 2 * MB), w2=("w2", 2048, 2 * MB), w3=("w3", 7168, 7 * MB), w4=("w4", 2048, 7 * MB))[kind]
    ldptr(A, 4, arg)
    if xch: ldptr(A, 6, "x" if kind == "wo" else "out"); A.e("s_lshr_b32 s52, s59, 3\ns_and_b32 s53, s59, 7")
    else: A.e("s_mov_b32 s52, 0\ns_mov_b32 s53, s59")
    A.e(f"s_lshl_b32 s64, s52, 2\ns_add_u32 s64, s64, s50\ns_mul_i32 s54, s64, {KS*32*ld}\ns_lshl_b32 s64, s53, 8\ns_add_u32 s54, s54, s64\ns_waitcnt lgkmcnt(0)")
    A.srd(28, 4, nbytes)
    if xch: A.srd(24, 6, S * D_ * 2)
    def rdw(x):
        def f(buf):
            for kk in range(KS):
                for t in range(2):
                    for h in range(2): A.e(f"ds_read_b64_tr_b16 {wreg(x*KS+kk,t,2,2*h)}, v17 offset:{buf + (32*kk + 4*h)*64 + 8*t}")
                if kk % 3 == 2: A.e("s_waitcnt lgkmcnt(0)")
        return f
    if kind == "w4" and F.W4G: cpoll(A, L, {C_M2: 63}, sl=F.VSL2)
    stage_weights(A, [(28, f"s_xor_b32 s62, s50, {XO[x]}\ns_lshl_b32 s62, s62, 6\ns_add_u32 s62, s62, s54", KS * 32, rdw(x)) for x in range(4)], ld, None, F.NFL2)
    verify(A, L, False, "mod")
    inb, ust = dict(wo=(OB, 131072), w1=(H2, 32768), w2=(G1, 32768), w3=(Y1, 32768), w4=(G3, 112 * 1024))[kind]
    A.e(f"""
    s_barrier
    v_lshlrev_b32 v{L16}, 4, v1
    s_mov_b32 s60, 0
    v_mov_b32 v{VA}, v{L16}
    s_mov_b32 s73, 0xffff0000
    s_lshl_b32 s64, s52, 2
    s_add_u32 s64, s64, s50
    s_mul_i32 s61, s64, {KS*1024}
    s_add_u32 s61, s61, {inb}
    s_lshl_b32 s68, s64, 8
    s_add_u32 s68, s68, {dict(wo=F_ATT, w1=F_LN, w2=F_W1, w3=F_W2, w4=F_W3)[kind]}
    s_lshl_b32 s83, s53, 2
    s_add_u32 s83, s83, s50            ; output fragment index
    s_mul_i32 s64, s50, 6144
    v_add_u32 v{VR_}, s64, v{L16}
    s_mov_b32 s63, 0""")
    for p in range(3): A.e(f"s_xor_b32 s64, s50, {XO[p]}\ns_mul_i32 s64, s64, 6144\ns_add_u32 s64, s64, {p*2048}\nv_add_u32 v{VW+p}, s64, v{L16}")
    nfl = dict(wo=4, w1=4, w2=8, w3=8, w4=7)[kind]
    A.e(f"v_min_u32 v{VFA}, {nfl-1}, v1\nv_lshlrev_b32 v{VFA}, 2, v{VFA}")
    if res:
        A.e(f"""
        s_lshr_b32 s64, s50, 1
        s_add_u32 s64, s64, 1
        s_sub_u32 s65, 0, s64
        s_bitcmp1_b32 s50, 0
        s_cselect_b32 s64, s64, s65
        s_add_u32 s64, s64, 16
        v_add_u32 v26, s64, v21
        v_lshrrev_b32 v27, 4, v26
        v_and_b32 v26, 15, v26
        v_lshl_add_u32 v26, v22, 4, v26
        v_lshlrev_b32 v26, 4, v26
        v_lshl_add_u32 v{VA}, v27, 15, v26
        s_sub_u32 s61, s61, 32768""")
    A.e("s_add_u32 s62, s61, 4096\ns_lshl_b32 s66, s83, 10")
    if kind == "w3":
        A.e(f"s_mul_i32 s65, s83, 147\ns_lshr_b32 s65, s65, 10\ns_mul_i32 s69, s65, {256 - 28}\ns_lshl_b32 s64, s83, 2\ns_add_u32 s69, s69, s64\ns_add_u32 s69, s69, {F_W3}")
    else:
        A.e(f"s_lshr_b32 s65, s83, 3\ns_lshl_b32 s65, s65, 8\ns_and_b32 s64, s83, 7\ns_lshl_b32 s64, s64, 2\ns_add_u32 s69, s64, s65\ns_add_u32 s69, s69, {dict(wo=F_WO, w1=F_W1, w2=F_W2, w4=F_W4)[kind]}")
    if res: A.e(f"s_add_u32 s82, s66, {H2}")
    outb, ost = dict(wo=(X1, 32768), w1=(G1, 32768), w2=(Y1, 32768), w3=(G3, 112 * 1024), w4=(0, 32768))[kind]
    if xch:
        A.e(f"""
        s_lshl_b32 s64, s53, 2
        s_add_u32 s64, s64, s50
        s_mul_i32 s74, s64, {4*6144}
        s_xor_b32 s64, s50, s52
        s_sub_u32 s64, s64, 1
        s_max_i32 s64, s64, 0
        s_lshl_b32 s64, s64, 11
        s_add_u32 s74, s74, s64
        s_add_u32 s74, s74, {XP + (0 if kind == 'wo' else 768*KB)}
        s_mov_b32 s75, 0
        s_mov_b32 s77, 0                   ; pending
        v_lshlrev_b32 v26, 11, v21
        v_lshl_add_u32 v26, v22, 4, v26
        s_lshl_b32 s64, s83, 6
        v_add_u32 v{VO}, s64, v26
        v_lshlrev_b32 v26, 5, v22
        s_lshl_b32 s64, s83, 7
        s_add_u32 s64, s64, {MOD + (2 if kind == 'wo' else 5)*4096}""")
        for g in range(4):
            for i in range(2): A.e(f"buffer_load_dwordx4 {vr((CS if g == 0 else PKT + 8*(g-1)) + 4*i, 4)}, v26, {WSRD}, s64 offen offset:{16*i} sc1")
            A.e(f"s_add_u32 s64, s64, {6144*4}")
        A.e("s_waitcnt vmcnt(0)")
        sum4(A, CS, PKT, 8)
        for i in range(4): A.e(f"v_mov_b32 v{M1+i}, -1")
    def grab(f):
        i0 = len(A.lines); f(); o = [x.strip() for x in A.lines[i0:]]; del A.lines[i0:]; return o
    wr = lambda p, t: f"ds_write_b128 v{VW+p}, {vr(ACC+(2*p+t)*4,4)} offset:{t*1024}"
    rds = [f"ds_read_b128 {vr(RD+4*i,4)}, v{VR_} offset:{i*1024}" for i in range(6)]
    def adds(dst):
        o = []
        for p in range(3):
            for t in range(2):
                o.append("need " + rds[2 * p + t])
                o += [f"v_pk_add_f32 {vr(dst+4*t+i,2)}, {vr((OWN if p == 0 else dst)+4*t+i,2)}, {vr(RD+8*p+4*t+i,2)}" for i in (0, 2)]
        return o
    togw = [f"v_xor_b32 v{r}, 0x8000, v{r}" for r in [VW, VW + 1, VW + 2] + ([VSW] if stats else [])]
    togr = [f"v_xor_b32 v{r}, 0x8000, v{r}" for r in [VR_] + ([VSR] if stats else [])]
    if stats:
        A.e(f"""
        s_lshl_b32 s64, s50, 9
        s_add_u32 s64, s64, 24576
        v_lshlrev_b32 v26, 3, v1
        v_add_u32 v{VSW}, s64, v26
        v_lshl_add_u32 v26, v23, 4, v21
        v_lshlrev_b32 v26, 3, v26
        v_add_u32 v{VSR}, 24576, v26
        s_mov_b32 s74, 0x22222222
        s_mov_b32 s75, 0x22222222
        s_mov_b32 s76, 0x44444444
        s_mov_b32 s77, 0x44444444
        s_mov_b32 s78, 0x88888888
        s_mov_b32 s79, 0x88888888
        s_mov_b32 s80, {f2u(GELU_C0):#x}
        s_mov_b32 s81, {f2u(GELU_C1):#x}
        v_mov_b32 v{TM+23}, s80""")
        for i in range(4): A.e(f"v_mov_b32 v{ONE+i}, 0x3f803f80")
        for ks in range(KS):
            for p in range(4):
                for t in range(2): a = vr(ACC + (2 * p + t) * 4, 4); A.e(f"{MF} {a}, {wreg(p*KS+ks,t)}, {vr(ONE,4)}, {a if ks else 0}")
        for p in range(3):
            for t in range(2): A.e(wr(p, t))
        A.e("s_waitcnt lgkmcnt(0)\ns_barrier")
        for x in rds: A.e(x)
        A.e("s_waitcnt lgkmcnt(0)")
        for x in adds(CS) + togw + togr:
            if not x.startswith("need"): A.e(x)
    ldA = lambda i: f"buffer_load_dwordx4 {vr(AF+4*i,4)}, v{VA}, {WSRD}, s{61+(i>>2)} offen offset:{(i&3)*1024}"
    if F.FREE == 2: ust = 0
    adv = f"s_add_u32 s61, s61, {ust}\ns_add_u32 s62, s62, {ust}"
    pollld = f"buffer_load_dword v{VF}, v{VFA}, {WSRD}, s68 offen sc1"
    dummy = f"buffer_load_dword v{VT+6}, off, {WSRD}, s69"
    if F.FREE == 3: ldA = lambda i: dummy
    if F.FREE == 4: ldA = lambda i: dummy; pollld = dummy; ost = 0
    def need(add, d):
        if F.FREE: return f"s_cmp_ge_u32 s60, {NU-add}\ns_cselect_b32 s{d}, -1, 0"
        o = f"s_add_u32 s{d}, s60, {add+1}"
        if res: o += f"\ns_and_b32 s64, s50, 1\ns_add_u32 s{d}, s{d}, s64\ns_min_u32 s{d}, s{d}, {NU}\ns_cmp_ge_u32 s60, {NU-add}\ns_cselect_b32 s{d}, -1, s{d}"
        return o
    def both(f):
        l1 = A.newlabel("b1"); l2 = A.newlabel("b2")
        A.e(f"s_cmp_eq_u32 s56, 1\ns_cbranch_scc1 {l1}"); f("")
        A.label(l2)
        def d(): A.label(l1); A.e("s_nop 7"); f("sc1"); A.e(f"s_branch {l2}")
        tail.append(d)
    def pc(k):
        if F.PROF >= 2: A.e(f"s_add_u32 s{98 + k//4}, s{98 + k//4}, {1 << (8 * (k & 3))}")
    f1s = ["s_add_u32 s84, s74, s75\ns_add_u32 s85, s84, 4096"] + [f"vm:pk:buffer_load_dwordx4 {vr(PKT+4*i,4)}, v{L16}, {WSRD}, s{84+(i>>2)} offen offset:{(i&3)*1024} sc1" for i in range(6)]
    if kind == "wo": fres = [f"vm:rs:s_and_b32 s64, s66, 0xffff8000\nbuffer_load_dwordx4 {vr(RES,4)}, v{VO}, s[24:27], s64 offen"]
    else: fres = [f"vm:rs:s_add_u32 s64, s66, {b}\nbuffer_load_dwordx4 {vr(RES+4*i,4)}, v{L16}, {WSRD}, s64 offen" for i, b in enumerate((X1, Y1))]
    plain = lambda x: x.split(":", 2)[2] if x.startswith("vm") else x
    def f2chk():
        ck = A.newlabel("ck"); rt = A.newlabel("rt"); go = A.newlabel("go")
        A.e(f"s_cmp_eq_u32 s77, 0\ns_cbranch_scc1 {go}")
        A.label(ck)
        for i in range(0, 8, 2): A.e(f"v_pk_add_f32 {vr(PKT+i,2)}, {vr(PKT+i,2)}, {vr(PKT+8+i,2)}\nv_pk_add_f32 {vr(PKT+16+i,2)}, {vr(PKT+16+i,2)}, {vr(FIN+i,2)}")
        for i in range(0, 8, 2): A.e(f"v_pk_add_f32 {vr(PKT+i,2)}, {vr(PKT+i,2)}, {vr(PKT+16+i,2)}")
        A.e(f"v_pk_add_f32 {vr(TM,2)}, {vr(PKT,2)}, {vr(PKT+2,2)}\nv_pk_add_f32 {vr(TM+2,2)}, {vr(PKT+4,2)}, {vr(PKT+6,2)}\nv_pk_add_f32 {vr(TM,2)}, {vr(TM,2)}, {vr(TM+2,2)}")
        A.e(f"v_cmp_u_f32 vcc, v{TM}, v{TM+1}\ns_cbranch_vccnz {rt}")
        A.label(go)
        def d():
            A.label(rt); pc(6)
            A.e(f"s_sub_u32 s90, s90, 1\ns_cmp_gt_i32 s90, 0\ns_cbranch_scc0 {go}")
            for x in f1s: A.e(plain(x))
            A.e(f"s_waitcnt vmcnt(0)\ns_branch {ck}")
        tail.append(d)
    def f2rest():
        o = ["s_cmp_eq_u32 s77, 0\ns_cselect_b32 s57, 2.0, 0", f"v_or_b32 v{VX}, s57, v{L16}"] + ([f"v_or_b32 v{VOX}, s57, v{VO}"] if kind == "w4" else [])
        o += grab(lambda: unpack(A, RES, TM, 4))
        if kind == "w4":
            o += grab(lambda: unpack(A, RES + 4, TM + 8, 4))
            o += [f"v_pk_add_f32 {vr(PKT+i,2)}, {vr(PKT+i,2)}, {vr(TM+8+i,2)}" for i in range(0, 8, 2)]
        o += [f"v_fma_f32 v{TM+i}, v{PKT+i}, v{CS+i}, v{TM+i}" for i in range(8)]
        o += [f"v_cvt_pk_bf16_f32 v{TM+8+i}, v{TM+2*i}, v{TM+2*i+1}" for i in range(4)]
        if kind == "wo": o += [f"vm:out:s_add_u32 s64, s66, {X1}\nbuffer_store_dwordx4 {vr(TM+8,4)}, v{VX}, {WSRD}, s64 offen sc1"]
        else: o += [f"vm:out:s_and_b32 s64, s66, 0xffff8000\nbuffer_store_dwordx4 {vr(TM+8,4)}, v{VOX}, s[24:27], s64 offen"]
        for h in range(3):
            def rs(fl, h=h):
                for i in (2 * h, 2 * h + 1): A.e(f"buffer_store_dwordx4 {vr(M1,4)}, v{VX}, {WSRD}, s{84+(i>>2)} offen offset:{(i&3)*1024} {fl}")
            o.append("vm2:rz:" + "\n".join(grab(lambda: both(rs))))
        o += [f"s_mul_i32 s64, s77, {ost}\ns_add_u32 s66, s66, s64\ns_mul_i32 s64, s77, 6144\ns_add_u32 s75, s75, s64", f"s_cmp_eq_u32 s75, {4*6144}\ns_cselect_b32 s75, 0, s75\ns_add_u32 s63, s63, s77"]
        if F.PROF:
            sk = A.newlabel("sk"); o.append("\n".join([f"s_cmp_eq_u32 s77, 0\ns_cbranch_scc1 {sk}"] + grab(lambda: stamp2(A, ST, "s63", 1, 92 if F.PROF == 1 else 84)) + [f"{sk}:"]))
        return o + ["s_mov_b32 s77, 0"] + fres
    def cost(x):
        x = plain(x)
        if x.startswith(("v_exp", "v_rcp", "v_rsq")): return F.TC
        if "buffer_" in x: return 8 * x.count("buffer_")
        if x.startswith("ds_write"): return 8
        if x.startswith(("need", "vneed")): return 2
        return 4 if x.startswith(("v_", "ds_")) else 2 * (x.count("\n") + 1)
    M = []; first = {}; last = {}; fin_ = {}
    def mf(p, t, ks):
        a = vr(ACC + (2 * p + t) * 4, 4); first.setdefault(ks, len(M)); last[ks] = len(M); fin_[(p, t)] = len(M)
        M.append(f"{MF} {a}, {wreg(p*KS+ks,t)}, {vr(AF+4*ks,4)}, {a if ks else 0}")
    def ms(ks):
        if not stats: return
        x = vr(AF + 4 * ks, 4); first.setdefault(ks, len(M)); last[ks] = len(M) + 1; fin_["s"] = len(M) + 1
        M.append(f"{MF} {vr(S1,4)}, {vr(ONE,4)}, {x}, {vr(S1,4) if ks else 0}"); M.append(f"{MF} {vr(S2,4)}, {x}, {x}, {vr(S2,4) if ks else 0}")
    for ks in range(F.OD):
        for p in range(3): mf(p, 0, ks); mf(p, 1, ks)
        ms(ks)
    own0 = len(M)
    for ks in range(F.OD): mf(3, 0, ks); mf(3, 1, ks)
    for ks in range(F.OD, H):
        for p in range(4): mf(p, 0, ks); mf(p, 1, ks)
        ms(ks)
    for ks in range(H, KS): ms(ks)
    for p in range(4):
        for ks in range(H, KS): mf(p, 0, ks); mf(p, 1, ks)
    NM = len(M)
    def loop(fin):
        send = xch and not fin
        NS = 0 if fin else (2 if send else 1)
        flg = (not send) and kind != "w4"
        flag = lambda sv: "vm:fl:" + "\n".join(grab(lambda: flag_store(A, VT, sv, 69)))
        sw = f"ds_write_b64 v{VSW}, {vr(S1,2)}"
        srd_ = [f"ds_read_b64 {vr(SP+2*w,2)}, v{VSR} offset:{w*512}" for w in range(4)]
        def post():
            r = rds + (srd_ if stats else []) + togr
            ad = adds(FIN); o = ad[6:]
            if fin: o += ["s_mov_b32 s77, 1"]
            elif send:
                t_ = grab(lambda: both(lambda f_: [A.e(f"buffer_store_dwordx4 {vr(FIN+4*t,4)}, v{L16}, {WSRD}, s64 offen offset:{t*1024} {f_}") for t in range(2)]))
                o += ["vm2:out:" + "\n".join(["s_add_u32 s64, s74, s75"] + t_), f"s_add_u32 s75, s75, 6144\ns_cmp_eq_u32 s75, {4*6144}\ns_cselect_b32 s75, 0, s75"]
            else:
                a = FIN
                if stats:
                    o = ["need " + srd_[3]] + grab(lambda: stats_fin(A, SP, TM + 21, TM + 22, 1)) + o
                    o += [f"v_fma_f32 v{a+i}, v{CS+i}, v{TM+21}, v{a+i}" for i in range(8)] + [f"v_mul_f32 v{a+i}, v{a+i}, v{TM+22}" for i in range(8)]
                    for op in ("v_mul_f32 v{t}, v{v}, v{v}", "v_fma_f32 v{t}, v{t}, s81, v%d" % (TM + 23), "v_mul_f32 v{t}, v{t}, v{v}"): o += [op.format(t=TM + i, v=a + i) for i in range(8)]
                    e = [f"v_exp_f32 v{TM+i}, v{TM+i}" for i in range(8)]; p = [f"v_add_f32 v{TM+i}, 1.0, v{TM+i}" for i in range(8)]
                    rc = [f"v_rcp_f32 v{TM+i}, v{TM+i}" for i in range(8)]; m = [f"v_mul_f32 v{a+i}, v{TM+i}, v{a+i}" for i in range(8)]
                    o += e[:2] + [x for i in range(2, 8) for x in (e[i], p[i - 2])] + p[6:] + rc[:2] + [x for i in range(2, 8) for x in (rc[i], m[i - 2])] + m[6:]
                else:
                    o = ["vneed res"] + grab(lambda: unpack(A, RES, TM, 4)) + o + [f"v_pk_add_f32 {vr(a+i,2)}, {vr(a+i,2)}, {vr(TM+i,2)}" for i in range(0, 8, 2)]
                o += [f"v_cvt_pk_bf16_f32 v{TM+8+i}, v{a+2*i}, v{a+2*i+1}" for i in range(4)]
                o += [f"vm:out:s_add_u32 s64, s66, {outb}\nbuffer_store_dwordx4 {vr(TM+8,4)}, v{L16}, {WSRD}, s64 offen sc1", f"s_add_u32 s66, s66, {ost}\ns_add_u32 s63, s63, 1"]
                if F.PROF: o.append("\n".join(grab(lambda: stamp2(A, ST, "s63", 1, 92 if F.PROF == 1 else 84))))
            if send and F.PROF: o.append("\n".join(grab(lambda: stamp2(A, ST, "s60", 1, 92 if F.PROF == 1 else 84))))
            return r, ad[:6], o
        def emit(Z, V, y):
            if y.startswith("ds_"): Z.lds(y, y)
            elif y.startswith("need "): Z.need(y[5:])
            elif y.startswith("vneed "): V.need(y[6:])
            elif y.startswith("vm:"): _, tg, x = y.split(":", 2); V.op(x, tg)
            elif y.startswith("vm2:"): _, tg, x = y.split(":", 2); V.op(x, tg); V.q.append(tg)
            elif y == "f2chk": f2chk()
            else: A.e(y)
        def plan(W, R):
            fill = {i: [] for i in range(NM)}; used = [0] * NM
            def put(i, *xs):
                for x in xs: fill[i].append(x); used[i] += cost(x)
            def spread(items, lo, hi, budget):
                while True:
                    i = lo; u = list(used); pos = []
                    for x in items:
                        while i < hi and u[i] and u[i] + cost(x) > budget: i += 1
                        if i >= hi: break
                        pos.append(i); u[i] += cost(x)
                    if len(pos) == len(items): break
                    budget += 2
                for i, x in zip(pos, items): put(i, x)
                return pos
            put(0, need(1, 71)); put(1, need(2, 53))
            if flg and not fin: put(2, "s_mov_b32 s57, s63")
            for p in range(3):
                for t in range(2): put(min(NM - 1, fin_[(p, 1)] + F.WD + t), wr(p, t))
            if stats:
                k = fin_["s"] + F.WD
                put(k, f"v_cndmask_b32 v{S1+1}, v{S2}, v{S2+1}, s[74:75]", f"v_cndmask_b32 v{S1+1}, v{S1+1}, v{S2+2}, s[76:77]"); put(k + 1, f"v_cndmask_b32 v{S1+1}, v{S1+1}, v{S2+3}, s[78:79]"); put(k + 2, sw)
            if R:
                for ks in range(KS): put(last[ks], f"vm:L{ks}:" + ldA(ks))
                put(NM - 1, adv)
            put(NM * (F.PPR if R else F.PPN) // 32, "vm:poll:" + pollld)
            if flg and not fin: put(F.FP, "vneed out", flag("s57"))
            so = None
            if W or R:
                n_t = len(tail); r, a0, o = post()
                if not W: del tail[n_t:]
                keep = ({k: list(v) for k, v in fill.items()}, list(used))
                pos = spread(o, spread(a0, F.A0, own0, 8)[-1], NM, F.WB3)
                so = [i for i, x in zip(pos, o) if x.startswith(("vm:out", "vm2:out"))]
                if not W:
                    fill, used = keep
                    for i in so:
                        for _ in range(NS): put(i, "vm:out:" + dummy)
                elif flg and not fin and so[0] + F.FD < NM: put(NM - 1 if R else so[0] + F.FD, "vneed out", flag("s63"))
                if not W and flg and not fin and so[0] + F.FD < NM: put(NM - 1, "vm:fl:" + dummy)
            if res: put(max(F.FP + 1, (so[0] + 1) if so else 0, 26), f"vm:res:buffer_load_dwordx4 {vr(RES,4)}, v{L16}, {WSRD}, s82 offen\ns_add_u32 s82, s82, 32768")
            if fin:
                q1 = NM * F.Q1 // 64; q2 = NM - F.Q2R if R else q1 + F.Q2N
                spread(f1s, q1, q1 + 6, 8)
                put(q2, "vneed pk")
                if flg: put(q2, flag("s63"))
                put(q2, "f2chk")
                spread(f2rest(), q2 + 1, NM, 8)
            spread(togw, NM - 1, NM, 64)
            return fill
        def vseq(fill):
            q = []
            for i in range(NM):
                for x in fill[i]:
                    if x.startswith("vm"): q += [x.split(":")[1]] * (2 if x.startswith("vm2:") else 1)
            return q
        n_t = len(tail); histR = vseq(plan(True, True)); del tail[n_t:]
        histB = [f"L{i}" for i in range(KS)] + ["out"] * NS
        def body(W, R):
            fill = plan(W, R)
            if R: assert vseq(fill) == histR, (vseq(fill), histR)
            Z = Sched(A); V = VMQ(A, histR if W else histB)
            if W:
                for x in rds + (srd_ if stats else []) + togr: emit(Z, V, x)
            tst(A, 0)
            fi = {v: k for k, v in first.items()}
            for i, m in enumerate(M):
                if i in fi: V.need(f"L{fi[i]}")
                if i == 16: tst(A, 1)
                if i == NM // 2: tst(A, 2)
                A.e(m)
                for y in fill[i]: emit(Z, V, y)
            tst(A, 3)
            V.need("poll")
            A.e(f"v_cmp_gt_u32 vcc, s{53 if R else 71}, v{VF}\ns_add_u32 s60, s60, 1\ns_waitcnt lgkmcnt(0)\ns_barrier")
            if F.PROF >= 2: tst(A, 4); tst(A, 5); tacc(A, 6)
            if W and R and F.DROP:
                import re
                A.lines[i00:] = [x for x in A.lines[i00:] if not any(re.search(p, x) for p in F.DROP)]
            return V
        WR, WN, BR, BN, lag, dec, nb = [A.newlabel(x) for x in ("WR", "WN", "BR", "BN", "lag", "dec", "nb")]
        if fin:
            for x in fres: A.e(plain(x))
        A.e(need(0, 71)); A.e(need(1, 53))
        poll_loop(A, pollld, VF, 71)
        A.label(lag); pc(0)
        for i in range(KS): A.e(ldA(i))
        A.e(adv)
        for _ in range(NS): A.e(dummy)
        A.label(dec)
        A.e(f"v_cmp_gt_u32 vcc, s53, v{VF}\ns_cbranch_vccnz {BN}")
        A.label(BR); pc(4); body(False, True); A.e(f"s_cbranch_vccnz {WN}")
        A.label(WR); pc(3); body(True, True); A.e(f"s_cbranch_vccz {WR}")
        def ipost(V):
            Z = Sched(A); r, a0, o = post()
            k = len(o)
            if flg and not fin: k = [i for i, x in enumerate(o) if x.startswith("v_pk_add_f32")][7] + 1
            for x in r + a0 + o[:k]: emit(Z, V, x)
            if k < len(o) and "out" in V.q: V.need("out"); emit(Z, V, flag("s63"))
            for x in o[k:]: emit(Z, V, x)
        endN = A.newlabel("endN")
        A.label(WN); pc(2); VW_ = body(True, False); A.e(f"s_branch {endN}")
        A.label(BN); pc(1); VB_ = body(False, False)
        A.label(endN)
        qa, qb = VW_.q[VW_.done + 1:], VB_.q[VB_.done + 1:]
        def rem(tag): return min(len(q) - 1 - max(i for i, x in enumerate(q) if x == tag) for q in (qa, qb) if tag in q) if tag in qa + qb else None
        hist = []
        tg = sorted([(rem(t), t) for t in ("out", "res") if rem(t) is not None], reverse=True)
        for j, (n, t) in enumerate(tg): hist += [t] + ["x"] * (n - (tg[j + 1][0] + 1 if j + 1 < len(tg) else 0))
        def mk():
            V = VMQ(A, ["out", "res"] + hist); V.done = 1; return V
        A.e(f"s_cbranch_vccnz {nb}")
        pc(7); V = mk()
        for i in range(KS): V.op(ldA(i), f"L{i}")
        A.e(adv)
        ipost(V)
        A.e(f"s_branch {dec}")
        A.label(nb)
        V = mk()
        if not fin: V.op(pollld, "poll")
        ipost(V)
        Z = Sched(A)
        if fin:
            for x in f1s + ["vneed pk"] + ([flag("s63")] if flg else []) + ["f2chk", "vm:poll:" + pollld] + f2rest(): emit(Z, V, x)
            V.need("out" if flg else "poll")
        else:
            V.need("poll"); A.e(f"v_cmp_gt_u32 vcc, s71, v{VF}\ns_cbranch_vccz {lag}")
            if flg: V.need("out")
        if flg: emit(Z, V, flag("s63"))
        if fin: A.e(f"v_cmp_gt_u32 vcc, s71, v{VF}\ns_cbranch_vccz {lag}")
        A.e(f"s_cmp_ge_u32 s60, {NU}\ns_cbranch_scc1 {done}")
        pc(5); poll_loop(A, pollld, VF, 71)
        A.e(f"s_branch {lag}")
    if F.PROF:
        for r in ST: A.e(f"v_mov_b32 v{r}, 0")
        A.e(f"s_memrealtime s[84:85]\ns_waitcnt lgkmcnt(0)\nv_writelane_b32 v{ST[2]}, s84, 0\nv_writelane_b32 v{ST[2]}, s86, 1")
    tinit(A)
    i_loop = len(A.lines)
    if xch:
        lf = A.newlabel("lfin")
        A.e(f"s_cmp_eq_u32 s50, s52\ns_cbranch_scc1 {lf}")
        loop(False); A.label(lf); loop(True)
    else: loop(False)
    while tail: tail.pop(0)()
    if F.XS:
        for i in range(i_loop, len(A.lines)):
            x = A.lines[i]
            if (F.XS & 1 and "store_dwordx4" in x) or (F.XS & 2 and "store_dword " in x) or (F.XS & 4 and "load_dword " in x): A.lines[i] = x.replace(" sc1", "")
            if F.XS & 8 and "s_waitcnt vmcnt" in x: A.lines[i] = "s_nop 0"
    A.label(done)
    tout(A, ST[2]); stamp_out(A, ST)
    A.e("s_endpgm")

def cls(x):
    if x in ("f2chk", "mid"): return (0, 2, 3)
    if x == "f2br": return (1, 0, 0)
    if x.startswith(("need ", "vneed ")): return (1, 0, 0)
    if x.startswith("vm"): x = x.split(":", 2)[2]
    ls = x.split("\n"); sc = sum(1 for l in ls if l.startswith(("s_", "need", "vneed")))
    if "buffer_" in x or "ds_write" in x:
        lead = 0
        while ls[lead].startswith("s_"): lead += 1
        return (min(lead, 1), 1 if ("load" in x and len(ls) <= 2) else 2, 1)
    if x.startswith("ds_"): return (0, 1, 1)
    if sc == len(ls): return (sc, 0, 0)
    if len(ls) > 1: return (1, 2, 1)
    return (0, 2 if x.startswith(("v_exp", "v_rcp", "v_rsq")) else 1, 2)
class Gaps:
    def __init__(self, n): self.n = n; self.g = [[] for _ in range(n)]; self.over = []
    def load(self, i):
        s = sum(cls(x)[0] for x in self.g[i]); v = sum(cls(x)[1] for x in self.g[i]); return max(0, s - 1) + v
    def put(self, i, *xs): self.g[i] += xs
    def near(self, i, x, r1=0):
        while i < self.n - 1 and (self.load(i) + cls(x)[1] > 2 or (cls(x)[2] == 1 and any(cls(y)[2] == 1 and not (r1 and y.startswith("ds_read")) for y in self.g[i]))): i += 1
        self.g[i].append(x); return i
    def spread(self, items, lo, hi, mx=8):
        for extra in range(0, mx * (hi - lo) + 1):
            t = [list(x) for x in self.g]; i = lo; pos = []; rank = 0
            cap = lambda i: 2 + extra // (hi - lo) + (1 if (i - lo) < extra % (hi - lo) else 0)
            keep = self.g; self.g = t; ok = True
            for x in items:
                c = cls(x)
                while True:
                    if i >= hi: ok = False; break
                    t[i].append(x)
                    if c[2] == 1 and c[1] == 2 and c[2] >= rank and sum(cls(y)[1] for y in t[i]) == 2: break
                    if c[2] >= rank and self.load(i) <= cap(i) and not (c[2] == 1 and cap(i) < 4 and sum(cls(y)[2] == 1 for y in t[i]) > 1): break
                    t[i].pop(); i += 1; rank = 0
                if not ok: break
                pos.append(i); rank = c[2]
            if ok: return pos
            if mx < 8 and extra == mx * (hi - lo): self.over += items[len(pos):]; return pos
            self.g = keep
        raise ValueError
    def sched(self, items, lo, hi):
        I = [Ins(x, 0) for x in items]
        dep = [[j for j in range(i) if (I[j].w & (I[i].r | I[i].w)) or (I[j].r & I[i].w)] for i in range(len(I))]
        for extra in range(0, 4 * (hi - lo)):
            keep = self.g; self.g = [list(x) for x in keep]; at = {}
            for g in range(lo, hi):
                cap = 2 + extra // (hi - lo) + (1 if (g - lo) < extra % (hi - lo) else 0)
                while True:
                    free = cap - self.load(g)
                    rdy = [i for i in range(len(I)) if i not in at and all(j in at and (at[j] < g or not I[j].is_trans) for j in dep[i])]
                    c = [i for i in rdy if I[i].is_trans and free >= 2] + [i for i in rdy if not I[i].is_trans and free >= 1]
                    if not c: break
                    at[c[0]] = g; self.g[g].append(items[c[0]])
                if len(at) == len(I): return g
            self.g = keep
        raise ValueError
    def gap(self, i): return sorted(self.g[i], key=lambda x: cls(x)[2])
class VMQ2:
    def __init__(self, A, hist): self.A = A; self.q = [list(x) for x in hist]; self.done = -1
    def op(self, ins, tag): self.A.e(ins); self.q.append([tag])
    def need(self, tag):
        ix = [i for i, x in enumerate(self.q) if tag in x]
        if ix and ix[-1] > self.done:
            n = len(self.q) - 1 - ix[-1]; assert n < 64
            self.A.e(f"s_waitcnt vmcnt({n})"); self.done = ix[-1]
def gemm4_role(A, L, kind):
    KS = 7 if kind == "w4" else 8
    stats = kind in ("w1", "w3"); xch = kind in ("wo", "w4"); res = kind == "w2"
    L16, VFA, VA, VRD, VRB, ONE, VF, VT, VO, VSW, VSR, VX, VOX, VD = 0, 2, 3, 4, 8, 12, 16, 17, 18, 19, 20, 21, 22, 23
    ACC, FIN, S1, S2, SP, XW, NW, PKT, CS, RES, TM, M1, KC = 32, 40, 48, 52, 56, 64, 16, 128, 152, 160, 168, 204, 208; ST = (200, 201, 202)
    NM_, RS_, K0_, K1_ = TM + 20, TM + 21, TM + 22, TM + 23
    sym = xch and F.SYM; dfr = sym == 2; ep = dfr and F.EP; RSZ = 8192 if dfr else 6144; VSN, VFR, VFL = 24, 25, 26
    LST = 128 * 1024; D = F.GD; NF = 4 * KS
    wreg = lambda n, t, k=4, o=0: ar((n * 2 + t) * 4 + o, k)
    done = A.newlabel("done"); tail = []
    lanes(A)
    arg, ld, nbytes = dict(wo=("Wo", 2048, 8 * MB), w1=("w1", 2048, 2 * MB), w2=("w2", 2048, 2 * MB), w3=("w3", 7168, 7 * MB), w4=("w4", 2048, 7 * MB))[kind]
    ldptr(A, 4, arg)
    if xch: ldptr(A, 6, "x" if kind == "wo" else "out"); A.e("s_lshr_b32 s52, s59, 3\ns_and_b32 s53, s59, 7")
    else: A.e("s_mov_b32 s52, 0\ns_mov_b32 s53, s59")
    A.e(f"s_mul_i32 s54, s52, {NF*32*ld}\ns_lshl_b32 s64, s53, 8\ns_add_u32 s54, s54, s64\ns_lshl_b32 s64, s50, 6\ns_add_u32 s54, s54, s64\ns_waitcnt lgkmcnt(0)")
    A.srd(28, 4, nbytes)
    if xch: A.srd(24, 6, S * D_ * 2)
    def rdw(x):
        def f(buf):
            for kk in range(KS):
                for t in range(2):
                    for h in range(2): A.e(f"ds_read_b64_tr_b16 {wreg(x*KS+kk,t,2,2*h)}, v17 offset:{buf + (32*kk + 4*h)*64 + 8*t}")
                if kk % 3 == 2: A.e("s_waitcnt lgkmcnt(0)")
        return f
    if kind == "w4" and F.W4G: cpoll(A, L, {C_M2: 63}, sl=F.VSL2)
    stage_weights(A, [(28, f"s_xor_b32 s62, s50, {x}\ns_mul_i32 s62, s62, {KS*32*ld}\ns_add_u32 s62, s62, s54", KS * 32, rdw(x)) for x in range(4)], ld, None, F.NFL2)
    verify(A, L, False, "mod")
    inb, ust = dict(wo=(OB, 131072), w1=(H2, 32768), w2=(G1, 32768), w3=(Y1, 32768), w4=(G3, 112 * 1024))[kind]
    if F.FREE == 2: ust = 0
    A.e(f"""
    s_barrier
    v_lshlrev_b32 v{L16}, 4, v1
    s_mov_b32 s60, 0
    s_lshl_b32 s70, s50, 13
    s_mov_b32 s55, 0
    v_mov_b32 v{VA}, v{L16}
    s_mov_b32 s73, 0xffff0000
    s_lshl_b32 s64, s52, 2
    s_add_u32 s64, s64, s50
    s_mul_i32 s61, s64, {KS*1024}
    s_add_u32 s61, s61, {inb}
    s_lshl_b32 s68, s64, 8
    s_add_u32 s68, s68, {dict(wo=F_ATT, w1=F_LN, w2=F_W1, w3=F_W2, w4=F_W3)[kind]}
    s_lshl_b32 s83, s53, 2
    s_add_u32 s83, s83, s50            ; output fragment index
    s_mov_b32 s63, 0""")
    for x in range(4): A.e(f"s_xor_b32 s64, s50, {x}\ns_lshl_b32 s64, s64, 13\nv_add_u32 v{VRB+x}, s64, v{L16}\nv_mov_b32 v{VRD+x}, v{VRB+x}")
    nfl = dict(wo=4 + 4 * F.AT, w1=4, w2=8, w3=8, w4=7)[kind]
    A.e(f"v_min_u32 v{VFA}, {nfl-1}, v1\nv_lshlrev_b32 v{VFA}, 2, v{VFA}")
    if res:
        A.e(f"""
        s_lshr_b32 s64, s50, 1
        s_add_u32 s64, s64, 1
        s_sub_u32 s65, 0, s64
        s_bitcmp1_b32 s50, 0
        s_cselect_b32 s64, s64, s65
        s_add_u32 s64, s64, 16
        v_add_u32 v26, s64, v21
        v_lshrrev_b32 v27, 4, v26
        v_and_b32 v26, 15, v26
        v_lshl_add_u32 v26, v22, 4, v26
        v_lshlrev_b32 v26, 4, v26
        v_lshl_add_u32 v{VA}, v27, 15, v26
        s_sub_u32 s61, s61, 32768
        s_and_b32 s64, s50, 1
        s_add_u32 s74, s64, 1
        s_add_u32 s75, s64, 2
        s_add_u32 s76, s64, 3""")
    A.e("s_add_u32 s62, s61, 4096\ns_lshl_b32 s66, s83, 10")
    if kind == "w3":
        A.e(f"s_mul_i32 s65, s83, 147\ns_lshr_b32 s65, s65, 10\ns_mul_i32 s69, s65, {256 - 28}\ns_lshl_b32 s64, s83, 2\ns_add_u32 s69, s69, s64\ns_add_u32 s69, s69, {F_W3}")
    else:
        A.e(f"s_lshr_b32 s65, s83, 3\ns_lshl_b32 s65, s65, 8\ns_and_b32 s64, s83, 7\ns_lshl_b32 s64, s64, 2\ns_add_u32 s69, s64, s65\ns_add_u32 s69, s69, {dict(wo=F_WO, w1=F_W1, w2=F_W2, w4=F_W4)[kind]}")
    if sym: A.e(f"s_lshr_b32 s65, s83, 3\ns_lshl_b32 s65, s65, 8\ns_and_b32 s64, s83, 7\ns_lshl_b32 s64, s64, 2\ns_add_u32 s64, s64, s52\ns_lshl_b32 s64, s64, 2\ns_add_u32 s69, s64, s65\ns_add_u32 s69, s69, {F_WO}")
    A.e(f"s_add_u32 s82, s66, {H2 if res else X1}" if kind != "wo" else "s_mov_b32 s82, 0")
    outb, ost = dict(wo=(X1, 32768), w1=(G1, 32768), w2=(Y1, 32768), w3=(G3, 112 * 1024), w4=(0, 32768))[kind]
    if not xch: A.e(f"s_add_u32 s66, s66, {outb}")
    if sym:
        A.e(f"""
        s_mul_i32 s74, s83, {4*RSZ}
        s_add_u32 s74, s74, {XP + (0 if kind == 'wo' else 128*RSZ)}
        s_mul_i32 s76, s52, {RSZ}
        s_add_u32 s76, s76, s74
        s_mov_b32 s75, 0
        s_mov_b32 s78, 0
        s_mov_b32 s84, s76
        s_mov_b32 s82, 0
        s_mov_b32 s80, s76
        s_mov_b32 s81, s74
        s_mov_b32 s77, 0                   ; pending
        s_lshl_b32 s64, s52, 8
        v_lshlrev_b32 v26, 4, v21
        v_add_u32 v26, s64, v26
        v_mul_u32_u24 v27, {RSZ}, v22
        v_add_u32 v{VSN}, v26, v27
        v_lshl_add_u32 v{VFR}, v22, 2, v26
        v_lshlrev_b32 v26, 11, v21
        v_lshl_add_u32 v26, v22, 2, v26
        s_lshl_b32 s64, s83, 2
        s_add_u32 s64, s64, s52
        s_lshl_b32 s65, s64, 4
        v_add_u32 v{VO}, s65, v26
        v_lshlrev_b32 v26, 3, v22
        s_lshl_b32 s64, s64, 5
        s_add_u32 s64, s64, {MOD + (2 if kind == 'wo' else 5)*4096}""")
        for g_ in range(4): A.e(f"buffer_load_dwordx2 {vr(CS if g_ == 0 else PKT + 2*(g_-1), 2)}, v26, {WSRD}, s64 offen sc1\ns_add_u32 s64, s64, {6144*4}")
        A.e("s_waitcnt vmcnt(0)")
        sum4(A, CS, PKT, 2)
        for i in range(4): A.e(f"v_mov_b32 v{M1+i}, -1")
        A.e("s_mov_b32 s83, 0")
    elif xch:
        A.e(f"""
        s_lshl_b32 s64, s53, 2
        s_add_u32 s64, s64, s50
        s_mul_i32 s74, s64, {4*6144}
        s_xor_b32 s64, s50, s52
        s_sub_u32 s64, s64, 1
        s_max_i32 s64, s64, 0
        s_lshl_b32 s64, s64, 11
        s_add_u32 s74, s74, s64
        s_add_u32 s74, s74, {XP + (0 if kind == 'wo' else 768*KB)}
        s_mov_b32 s75, 0
        s_mov_b32 s77, 0                   ; pending
        v_lshlrev_b32 v26, 11, v21
        v_lshl_add_u32 v26, v22, 4, v26
        s_lshl_b32 s64, s83, 6
        v_add_u32 v{VO}, s64, v26
        v_lshlrev_b32 v26, 5, v22
        s_lshl_b32 s64, s83, 7
        s_add_u32 s64, s64, {MOD + (2 if kind == 'wo' else 5)*4096}""")
        for g in range(4):
            for i in range(2): A.e(f"buffer_load_dwordx4 {vr((CS if g == 0 else PKT + 8*(g-1)) + 4*i, 4)}, v26, {WSRD}, s64 offen offset:{16*i} sc1")
            A.e(f"s_add_u32 s64, s64, {6144*4}")
        A.e("s_waitcnt vmcnt(0)")
        sum4(A, CS, PKT, 8)
        for i in range(4): A.e(f"v_mov_b32 v{M1+i}, -1")
    if stats:
        A.e(f"""
        s_lshl_b32 s64, s50, 9
        s_add_u32 s64, s64, {LST}
        v_lshlrev_b32 v26, 3, v1
        v_add_u32 v{VSW}, s64, v26
        v_lshl_add_u32 v26, v23, 4, v21
        v_lshlrev_b32 v26, 3, v26
        v_add_u32 v{VSR}, {LST}, v26
        s_mov_b32 s74, 0x22222222
        s_mov_b32 s75, 0x22222222
        s_mov_b32 s76, 0x44444444
        s_mov_b32 s77, 0x44444444
        s_mov_b32 s78, 0x88888888
        s_mov_b32 s79, 0x88888888
        v_mov_b32 v{KC}, {f2u(GELU_C1):#x}
        v_mov_b32 v{KC+1}, {f2u(GELU_C0):#x}
        v_mov_b32 v{KC+2}, {f2u(1e-5) if F.GT else f2u(1.0):#x}
        v_mov_b32 v{KC+3}, {f2u(1/1024) if F.GT else f2u(1.0):#x}""")
        for i in range(4): A.e(f"v_mov_b32 v{ONE+i}, 0x3f803f80")
        for n in range(NF):
            for t in range(2): A.e(f"{MF} {vr(CS+4*t,4)}, {wreg(n,t)}, {vr(ONE,4)}, {vr(CS+4*t,4) if n else 0}")
    A.e(f"v_cmp_eq_u32 vcc, 0, v1\nv_cndmask_b32 v{VFL}, 2.0, 0, vcc")
    def flag_st(sv):
        if F.FX: A.e(f"v_mov_b32 v{VT}, {sv}\nbuffer_store_dword v{VT}, v{VFL}, {WSRD}, s69 offen sc1")
        else: flag_store(A, VT, sv, 69)
    def sfin_gt():
        t = SP
        for a, b in ((0, 2), (1, 3), (4, 6), (5, 7), (0, 4), (1, 5)): A.e(f"v_add_f32 v{t+a}, v{t+a}, v{t+b}")
        A.e(f"""
        v_mul_f32 v{NM_}, {f2u(-1/1024):#x}, v{t}
        v_fma_f32 v{t+2}, v{NM_}, v{NM_}, -v{KC+2}
        v_fma_f32 v{t+1}, v{t+1}, v{KC+3}, -v{t+2}
        v_max_f32 v{t+1}, v{KC+2}, v{t+1}
        v_rsq_f32 v{t+2}, v{t+1}
        v_mul_f32 v{RS_}, v{t+1}, v{t+2}
        v_mul_f32 v{K0_}, v{KC+1}, v{t+2}
        v_mul_f32 v{t+3}, v{t+2}, v{t+2}
        v_mul_f32 v{K1_}, v{KC}, v{t+2}
        v_mul_f32 v{K1_}, v{K1_}, v{t+3}""")
    def grab(f):
        i0 = len(A.lines); f(); o = [x.strip() for x in A.lines[i0:]]; del A.lines[i0:]; return o
    ldA = lambda i: ("s_mov_b32 m0, s70\n" if i == 0 else "s_add_u32 m0, s70, 4096\n" if i == 4 else "") + f"buffer_load_dwordx4 v{VA}, {WSRD}, s{61+(i>>2)} offen offset:{(i&3)*1024} lds"
    adv = [f"s_add_u32 s61, s61, {ust}", f"s_add_u32 s62, s62, {ust}", "s_add_u32 s70, s70, 32768", "s_and_b32 s70, s70, 0x1ffff"]
    pollld = f"buffer_load_dword v{VF}, v{VFA}, {WSRD}, s68 offen sc1"
    dummy = f"buffer_load_dword v{VD}, off, {WSRD}, s66"
    def need(add, d):
        if F.FREE: return f"s_cmp_ge_u32 s60, {NU-add}\ns_cselect_b32 s{d}, -1, 0"
        if res: return f"s_add_u32 s{d}, s60, s{74+add}\ns_cmp_eq_u32 s60, {NU-1-add}\ns_cselect_b32 s{d}, {NU}, s{d}"
        return f"s_add_u32 s{d}, s60, {add+1}"
    def both(f):
        l1 = A.newlabel("b1"); l2 = A.newlabel("b2")
        A.e(f"s_cmp_eq_u32 s56, 1\ns_cbranch_scc1 {l1}"); f("")
        A.label(l2)
        def d(): A.label(l1); A.e("s_nop 7"); f("sc1"); A.e(f"s_branch {l2}")
        tail.append(d)
    def pc(k):
        if F.PROF >= 2: A.e(f"s_add_u32 s{98 + k//4}, s{98 + k//4}, {1 << (8 * (k & 3))}")
    def trs(code):
        sk = A.newlabel("tr")
        return f"""s_sub_u32 s95, s60, {F.TRU}\ns_cmp_ge_u32 s95, 8\ns_cbranch_scc1 {sk}\ns_memrealtime s[92:93]\ns_mov_b32 s95, m0\ns_mov_b32 m0, s94\ns_waitcnt lgkmcnt(0)\ns_lshl_b32 s92, s92, 12\ns_lshl_b32 s93, s60, 4\ns_add_u32 s92, s92, s93\ns_add_u32 s92, s92, {code}\nv_writelane_b32 v{ST[0]}, s92, m0\ns_mov_b32 m0, s95\ns_add_u32 s94, s94, 1\ns_min_u32 s94, s94, 63\n{sk}:"""
    def tr(code):
        if F.TRU: A.e(trs(code))
    f1s = ["s_add_u32 s84, s74, s75", "s_add_u32 s85, s84, 4096"] + [f"vm:pk:buffer_load_dwordx4 {vr(PKT+4*i,4)}, v{L16}, {WSRD}, s{84+(i>>2)} offen offset:{(i&3)*1024} sc1" for i in range(6)]
    if kind == "wo": fres = [f"vm:rs:buffer_load_dwordx4 {vr(RES,4)}, v{VO}, s[24:27], s82 offen", "s_add_u32 s82, s82, 32768"]
    else: fres = [f"vm:rs:buffer_load_dwordx4 {vr(RES,4)}, v{L16}, {WSRD}, s82 offen", f"vm:rs:s_add_u32 s64, s82, {Y1 - X1}\nbuffer_load_dwordx4 {vr(RES+4,4)}, v{L16}, {WSRD}, s64 offen", "s_add_u32 s82, s82, 32768"]
    if sym:
        f1s = ["s_add_u32 s84, s76, s75"] + [f"vm:pk:buffer_load_dwordx4 {vr(PKT+4*i,4)}, v{L16}, {WSRD}, s84 offen offset:{i*1024} sc1" for i in range(2)]
        if kind == "wo": fres = [f"vm:rs:buffer_load_dword v{RES}, v{VO}, s[24:27], s82 offen", "s_add_u32 s82, s82, 32768"]
        else: fres = [f"vm:rs:buffer_load_dword v{RES}, v{VFR}, {WSRD}, s82 offen", f"vm:rs:s_add_u32 s64, s82, {Y1 - X1}\nbuffer_load_dword v{RES+1}, v{VFR}, {WSRD}, s64 offen", "s_add_u32 s82, s82, 32768"]
    if dfr:
        f1s[0] = "s_add_u32 s84, s76, s78"
        if ep: f1s = [x.replace("s84", "s80") for x in f1s[1:]]
        if kind == "wo": fres = [f"vm:rs:s_and_b32 s64, s66, 0xffff8000\nbuffer_load_dword v{RES}, v{VO}, s[24:27], s64 offen"]
        else: fres = [f"vm:rs:s_add_u32 s64, s66, {b}\nbuffer_load_dword v{RES+i}, v{VFR}, {WSRD}, s64 offen" for i, b in enumerate((X1, Y1))]
    plain = lambda x: x.split(":", 2)[2] if x.startswith("vm") else x
    def add8(d, a, b, pk):
        if pk: return [f"v_pk_add_f32 {vr(d+i,2)}, {vr(a+i,2)}, {vr(b+i,2)}" for i in range(0, 8, 2)]
        return [f"v_add_f32 v{d+i}, v{a+i}, v{b+i}" for i in range(8)]
    CK = 184
    chkv = [f"v_bitop3_b32 v{CK+i}, v{PKT+2*i}, v{PKT+2*i+1}, s83 bitop3:0x7e" for i in range(4)] + [f"v_or3_b32 v{CK}, v{CK}, v{CK+1}, v{CK+2}", f"v_bitop3_b32 v{CK}, v{CK}, v{CK+3}, 1 bitop3:0xa8", f"v_cmp_ne_u32 vcc, 0, v{CK}"]
    def f2br():
        rt = A.newlabel("rt"); go = A.newlabel("go"); lp = A.newlabel("rl")
        A.e(f"s_cbranch_vccnz {rt}"); A.label(go)
        def d():
            A.label(rt); A.e(f"s_cmp_eq_u32 s77, 0\ns_cbranch_scc1 {go}"); A.label(lp); pc(6)
            A.e(f"s_sub_u32 s90, s90, 1\ns_cmp_gt_i32 s90, 0\ns_cbranch_scc0 {go}")
            for x in f1s: A.e(plain(x))
            A.e("s_waitcnt vmcnt(0)")
            for x in chkv: A.e(x)
            A.e(f"s_cbranch_vccnz {lp}\ns_branch {go}")
        tail.append(d)
    def f2chk():
        if ep:
            for x in chkv: A.e(x)
            return f2br()
        ck = A.newlabel("ck"); rt = A.newlabel("rt"); go = A.newlabel("go")
        A.e(f"s_cmp_eq_u32 s77, 0\ns_cbranch_scc1 {go}")
        A.label(ck)
        TM = 184
        if sym: A.e(f"v_max3_u32 v{TM}, v{PKT}, v{PKT+1}, v{PKT+2}\nv_max3_u32 v{TM+1}, v{PKT+3}, v{PKT+4}, v{PKT+5}\nv_max3_u32 v{TM}, v{TM}, v{PKT+6}, v{PKT+7}\nv_max_u32 v{TM}, v{TM}, v{TM+1}\nv_cmp_eq_u32 vcc, -1, v{TM}\ns_cbranch_vccnz {rt}")
        else:
            for j in range(2): A.e(f"v_max3_u32 v{TM+j}, v{PKT+12*j}, v{PKT+12*j+1}, v{PKT+12*j+2}")
            for q in range(4):
                for j in range(2): A.e(f"v_max3_u32 v{TM+j}, v{TM+j}, v{PKT+12*j+3+2*q}, v{PKT+12*j+4+2*q}")
            A.e(f"v_max3_u32 v{TM}, v{TM}, v{PKT+11}, v{PKT+23}\nv_max_u32 v{TM}, v{TM}, v{TM+1}\nv_cmp_eq_u32 vcc, -1, v{TM}\ns_cbranch_vccnz {rt}")
        A.label(go)
        def d():
            A.label(rt); pc(6)
            A.e(f"s_sub_u32 s90, s90, 1\ns_cmp_gt_i32 s90, 0\ns_cbranch_scc0 {go}")
            for x in f1s: A.e(plain(x))
            A.e(f"s_waitcnt vmcnt(0)\ns_branch {ck}")
        tail.append(d)
    FINP = 212
    def fma8(pk, a):
        if pk: return [f"v_pk_fma_f32 {vr(TM+i,2)}, {vr(a+i,2)}, {vr(CS+i,2)}, {vr(TM+i,2)}" for i in range(0, 8, 2)]
        return [f"v_fma_f32 v{TM+i}, v{a+i}, v{CS+i}, v{TM+i}" for i in range(8)]
    def f2pre(pk, src=FINP):
        if sym:
            o = [f"v_or_b32 v{VX}, s57, v{L16}", f"v_or_b32 v{VOX}, s57, v{VFR if kind == 'wo' else VO}"] + grab(lambda: unpack(A, RES, TM, 1 if kind == "wo" else 2))
            if kind == "w4": o += [f"v_fma_f32 v{TM+i}, v{TM+2+i}, v{CS+i}, v{TM+i}" for i in range(2)]
            return ["vneed rs", "s_cmp_eq_u32 s77, 0\ns_cselect_b32 s57, 2.0, 0"], o
        o = [f"v_or_b32 v{VX}, s57, v{L16}"] + ([f"v_or_b32 v{VOX}, s57, v{VO}"] if kind == "w4" else []) + grab(lambda: unpack(A, RES, TM, 4))
        if kind == "w4": o += grab(lambda: unpack(A, RES + 4, TM + 8, 4)) + add8(src, src, TM + 8, pk)
        return ["vneed rs", "s_cmp_eq_u32 s77, 0\ns_cselect_b32 s57, 2.0, 0"], o + fma8(pk, src)
    def f2rest(pk):
        if sym:
            ad = lambda a, b: f"v_add_f32 v{PKT+a}, v{PKT+a}, v{PKT+b}"
            o = [f"v_permlane32_swap_b32 v{PKT+i}, v{PKT+4+i}" for i in (0, 2, 1, 3)] + [ad(i, i + 4) for i in (0, 2, 1, 3)]
            o += [f"v_permlane16_swap_b32 v{PKT+i}, v{PKT+2+i}" for i in range(2)] + [ad(i, i + 2) for i in range(2)]
            o += [f"v_fma_f32 v{TM+i}, v{PKT+i}, v{CS+i}, v{TM+i}" for i in range(2)] + [f"v_cvt_pk_bf16_f32 v{TM+8}, v{TM}, v{TM+1}"]
            if kind == "wo": o += [f"vm:out:s_add_u32 s64, s66, {X1}\nbuffer_store_dword v{TM+8}, v{VOX}, {WSRD}, s64 offen sc1"]
            else: o += [f"vm:out:s_and_b32 s64, s66, 0xffff8000\nbuffer_store_dword v{TM+8}, v{VOX}, s[24:27], s64 offen"]
            o.append("" if ep else "vm2:rz:" + "\n".join(grab(lambda: both(lambda fl: [A.e(f"buffer_store_dwordx4 {vr(M1,4)}, v{VX}, {WSRD}, s84 offen offset:{i*1024} {fl}") for i in range(2)]))))
            o += [f"s_mul_i32 s64, s77, {ost}\ns_add_u32 s66, s66, s64", "s_lshl_b32 s64, s77, 11\ns_add_u32 s75, s75, s64", f"s_cmp_eq_u32 s75, 6144\ns_cselect_b32 s75, 0, s75", "s_add_u32 s63, s63, s77"]
            if F.PROF:
                sk = A.newlabel("sk"); o.append("\n".join([f"s_cmp_eq_u32 s77, 0\ns_cbranch_scc1 {sk}"] + grab(lambda: stamp2(A, ST, "s63", 1, 92 if F.PROF == 1 else 84)) + [f"{sk}:"]))
            return o + ["s_mov_b32 s77, 0"]
        o = add8(PKT, PKT, PKT + 8, pk) + add8(PKT, PKT, PKT + 16, pk) + fma8(pk, PKT)
        o += [f"v_cvt_pk_bf16_f32 v{TM+8+i}, v{TM+2*i}, v{TM+2*i+1}" for i in range(4)]
        if kind == "wo": o += [f"vm:out:s_add_u32 s64, s66, {X1}\nbuffer_store_dwordx4 {vr(TM+8,4)}, v{VX}, {WSRD}, s64 offen sc1"]
        else: o += [f"vm:out:s_and_b32 s64, s66, 0xffff8000\nbuffer_store_dwordx4 {vr(TM+8,4)}, v{VOX}, s[24:27], s64 offen"]
        for h in range(3):
            def rs(fl, h=h):
                for i in (2 * h, 2 * h + 1): A.e(f"buffer_store_dwordx4 {vr(M1,4)}, v{VX}, {WSRD}, s{84+(i>>2)} offen offset:{(i&3)*1024} {fl}")
            o.append("vm2:rz:" + "\n".join(grab(lambda: both(rs))))
        o += [f"s_mul_i32 s64, s77, {ost}\ns_add_u32 s66, s66, s64", "s_mul_i32 s64, s77, 6144\ns_add_u32 s75, s75, s64", f"s_cmp_eq_u32 s75, {4*6144}\ns_cselect_b32 s75, 0, s75", "s_add_u32 s63, s63, s77"]
        if F.PROF:
            sk = A.newlabel("sk"); o.append("\n".join([f"s_cmp_eq_u32 s77, 0\ns_cbranch_scc1 {sk}"] + grab(lambda: stamp2(A, ST, "s63", 1, 92 if F.PROF == 1 else 84)) + [f"{sk}:"]))
        return o + ["s_mov_b32 s77, 0"]
    def fz():
        p0, p1 = f2pre(False); o = f2rest(False); k = [i for i, x in enumerate(o) if x.startswith("vm:out")][0]
        P = dict(head=["vneed pk"] + p0, calc=p1 + o[:k], rz=[o[k + 1]])
        P["oad"] = [f"s_add_u32 s79, s66, {X1}" if kind == "wo" else "s_and_b32 s79, s66, 0xffff8000"]
        P["out"] = [f"vm:out:buffer_store_dword v{TM+8}, v{VOX}, " + (f"{WSRD}, s79 offen sc1" if kind == "wo" else "s[24:27], s79 offen")]
        P["book"] = [f"s_mul_i32 s64, s77, {ost}\ns_add_u32 s66, s66, s64", "s_lshl_b32 s64, s77, 11\ns_add_u32 s78, s78, s64", "s_and_b32 s78, s78, 0x1fff"]
        if ep:
            P["rz"] = []; P["calc"] = P["calc"][1:]
            P["book"] = P["book"][:2] + ["s_and_b32 s78, s78, 0x3fff", "s_lshr_b32 s83, s78, 13", "s_and_b32 s80, s78, 0x1fff", "s_add_u32 s80, s80, s76"]
        P["cnt"] = ["s_add_u32 s63, s63, s77"] + ([o[-2]] if F.PROF else [])
        return P
    xr = lambda n: vr(XW + 4 * (n % NW), 4)
    rd = lambda n: f"ds_read_b128 {xr(n)}, v{VRD + n//KS} offset:{(n%KS)*1024}"
    M = []; first = {}
    for n in range(NF):
        first[n] = len(M)
        M += [f"{MF} {vr((FIN if n == NF - 1 else ACC)+4*t,4)}, {wreg(n,t)}, {xr(n)}, {vr(ACC+4*t,4) if n else 0}" for t in range(2)]
        if stats and n < KS: M += [f"{MF} {vr(S1,4)}, {vr(ONE,4)}, {xr(n)}, {vr(S1,4) if n else 0}", f"{MF} {vr(S2,4)}, {xr(n)}, {xr(n)}, {vr(S2,4) if n else 0}"]
    NM = len(M); PRE = 3
    def loop(fin):
        send = xch and not fin
        NS = (5 if ep else 7) if dfr else 2 if sym else 0 if fin else (2 if send or F.IPF else 1)
        flg = (not send) and kind != "w4"
        flag = lambda sv: "vm:fl:" + "\n".join(grab(lambda: flag_st(sv))) + ("\ns_mov_b64 s[96:97], vcc\n" + trs(6) + "\ns_mov_b64 vcc, s[96:97]" if F.TRU else "")
        def post(pk):
            a = FIN
            if ep:
                o = [f"v_bfi_b32 v{FIN+i}, 1, s82, v{FIN+i}" for i in range(8)]
                for t in range(2): o.append("vm:sn:" + "\n".join(grab(lambda: both(lambda f_: A.e(f"buffer_store_dwordx4 {vr(FIN+4*t,4)}, v{VSN}, {WSRD}, s81 offen offset:{t*1024} {f_}")))))
                return o + ["s_add_u32 s75, s75, 2048", "s_and_b32 s75, s75, 0x3fff", "s_lshr_b32 s82, s75, 13", "s_and_b32 s81, s75, 0x1fff", "s_add_u32 s81, s81, s74"]
            if sym:
                t_ = grab(lambda: both(lambda f_: [A.e(f"buffer_store_dwordx4 {vr(FIN+4*t,4)}, v{VSN}, {WSRD}, s64 offen offset:{t*1024} {f_}") for t in range(2)]))
                if dfr: return ["vm2:sn:" + "\n".join(["s_add_u32 s64, s74, s75"] + t_), "s_add_u32 s75, s75, 2048", "s_and_b32 s75, s75, 0x1fff"]
                return ["vm2:sn:" + "\n".join(["s_add_u32 s64, s74, s75"] + t_), "s_mov_b32 s77, 1"]
            if fin: return ([f"v_mov_b32 v{FINP+i}, v{FIN+i}" for i in range(8)] if pk != 2 else []) + ["s_mov_b32 s77, 1"]
            if send:
                t_ = grab(lambda: both(lambda f_: [A.e(f"buffer_store_dwordx4 {vr(FIN+4*t,4)}, v{L16}, {WSRD}, s64 offen offset:{t*1024} {f_}") for t in range(2)]))
                o = ["vm2:out:" + "\n".join(["s_add_u32 s64, s74, s75"] + t_), "s_add_u32 s75, s75, 6144", f"s_cmp_eq_u32 s75, {4*6144}\ns_cselect_b32 s75, 0, s75"]
                if F.PROF: o.append("\n".join(grab(lambda: stamp2(A, ST, "s60", 1, 92 if F.PROF == 1 else 84))))
                return o
            if stats:
                e = [f"v_exp_f32 v{TM+i}, v{TM+i}" for i in range(8)]; rc = [f"v_rcp_f32 v{TM+i}, v{TM+i}" for i in range(8)]
                if F.GT and pk:
                    P = lambda op, d, *s_, m="": [f"v_pk_{op}_f32 {vr(d+i,2)}, " + ", ".join(vr(x[0] + (i if x[1] else 0), 2) for x in s_) + m for i in range(0, 8, 2)]
                    o = P("fma", a, (CS, 1), (NM_, 0), (a, 1), m=" op_sel_hi:[1,0,1]") + P("mul", TM, (a, 1), (a, 1))
                    o += P("fma", TM, (TM, 1), (K0_, 0), (K0_, 0), m=" op_sel:[0,1,0] op_sel_hi:[1,1,0]") + P("mul", TM, (TM, 1), (a, 1)) + e
                    o += P("fma", TM, (TM, 1), (NM_, 0), (NM_, 0), m=" op_sel:[0,1,1] op_sel_hi:[1,1,1]") + rc + P("mul", a, (TM, 1), (a, 1))
                elif F.GT:
                    o = []
                    for i0 in range(0, 8, 2):
                        for op in ("v_fma_f32 v{v}, v{c}, v%d, v{v}" % NM_, "v_mul_f32 v{t}, v{v}, v{v}", "v_fma_f32 v{t}, v{t}, v%d, v%d" % (K1_, K0_), "v_mul_f32 v{t}, v{t}, v{v}",
                                   "v_exp_f32 v{t}, v{t}", "v_fma_f32 v{t}, v{t}, v%d, v%d" % (RS_, RS_), "v_rcp_f32 v{t}, v{t}", "v_mul_f32 v{v}, v{t}, v{v}"): o += [op.format(t=TM + i, v=a + i, c=CS + i) for i in (i0, i0 + 1)]
                elif pk:
                    P = lambda op, d, *s_, m="": [f"v_pk_{op}_f32 {vr(d+i,2)}, " + ", ".join(vr(x[0] + (i if x[1] else 0), 2) for x in s_) + m for i in range(0, 8, 2)]
                    o = P("fma", a, (CS, 1), (NM_, 0), (a, 1), m=" op_sel_hi:[1,0,1]") + P("mul", a, (a, 1), (NM_, 0), m=" op_sel:[0,1] op_sel_hi:[1,1]") + P("mul", TM, (a, 1), (a, 1))
                    o += P("fma", TM, (TM, 1), (KC, 0), (KC, 0), m=" op_sel:[0,0,1] op_sel_hi:[1,0,1]") + P("mul", TM, (TM, 1), (a, 1)) + e + P("add", TM, (TM, 1), (KC + 2, 0)) + rc + P("mul", a, (TM, 1), (a, 1))
                else:
                    o = []
                    for i0 in range(0, 8, 2):
                        for op in ("v_fma_f32 v{v}, v{c}, v%d, v{v}" % NM_, "v_mul_f32 v{v}, v{v}, v%d" % RS_, "v_mul_f32 v{t}, v{v}, v{v}", "v_fma_f32 v{t}, v{t}, v%d, v%d" % (KC, KC + 1), "v_mul_f32 v{t}, v{t}, v{v}",
                                   "v_exp_f32 v{t}, v{t}", "v_add_f32 v{t}, 1.0, v{t}", "v_rcp_f32 v{t}, v{t}", "v_mul_f32 v{v}, v{t}, v{v}"): o += [op.format(t=TM + i, v=a + i, c=CS + i) for i in (i0, i0 + 1)]
            else: o = add8(a, a, TM, pk)
            o += [f"v_cvt_pk_bf16_f32 v{TM+8+i}, v{a+2*i}, v{a+2*i+1}" for i in range(4)]
            o += [f"vm:out:buffer_store_dwordx4 {vr(TM+8,4)}, v{L16}, {WSRD}, s66 offen sc1", f"s_add_u32 s66, s66, {ost}", "s_add_u32 s63, s63, 1"]
            if F.PROF: o.append("\n".join(grab(lambda: stamp2(A, ST, "s63", 1, 92 if F.PROF == 1 else 84))))
            return o
        def emit(Z, V, y):
            if y.startswith("ds_"): Z.lds(y, y)
            elif y.startswith("need "): Z.need(y[5:])
            elif y.startswith("vneed "): V.need(y[6:])
            elif y.startswith("vm:"): _, tg, x = y.split(":", 2); V.op(x, tg); tr(5) if tg == "out" else None
            elif y.startswith("vm2:"): _, tg, x = y.split(":", 2); V.op(x, tg); V.q.append([tg]); tr(5) if tg == "out" else None
            elif y == "f2chk": f2chk()
            elif y == "f2br": f2br()
            elif y == "mid":
                b1 = A.newlabel("mb"); b2 = A.newlabel("mk")
                A.e(f"v_cmp_gt_u32 vcc, s71, v{VF}\ns_mov_b32 s72, 0\ns_cbranch_vccz {b1}"); A.label(b2)
                def d():
                    A.label(b1); tr(3)
                    for i in range(KS): A.e(ldA(i))
                    for x in adv: A.e(x)
                    A.e(f"s_mov_b32 s72, 1\ns_branch {b2}")
                tail.append(d)
            else: A.e(y)
        def plan(W, R):
            G = Gaps(NM)
            for n in range(1, NF): G.put(first[n] - 1, "need " + rd(n))
            for n in range(PRE if W else F.BD + 1, NF):
                g = first[max(0, n - D)] if n >= D else n - PRE
                if n <= KS and not W: g = first[n - F.BD] - 1
                if n < KS and W and F.PRG and F.PD: g = max(g, first[max(0, n - F.PD)])
                if n < KS and (F.PRG or not W): G.put(g if not W else max([g] + [j + 1 for j in range(NM) if any(y.startswith("ds_read_b128") for y in G.g[j])]), f"vneed P{n}")
                if n == KS: G.put(g, "s_barrier")
                g = max([g] + [j + 1 for j in range(NM) if any(y.startswith("ds_read_b128") for y in G.g[j])]) if n > KS or W else g
                if n == KS and W: G.g[first[max(0, n - D)]].remove("s_barrier"); G.put(g, "s_barrier")
                G.put(g, rd(n))
            lastrd = max(j for j in range(NM) if any(y.startswith("ds_read_b128") for y in G.g[j]))
            if stats:
                sw = f"ds_write_b64 v{VSW}, {vr(S1,2)}"; srd_ = [f"ds_read_b64 {vr(SP+2*w,2)}, v{VSR} offset:{w*512}" for w in range(4)]
                k = first[KS] + 4
                p_ = G.spread([f"v_cndmask_b32 v{S1+1}, v{S2}, v{S2+1}, s[74:75]", f"v_cndmask_b32 v{S1+1}, v{S1+1}, v{S2+2}, s[76:77]", f"v_cndmask_b32 v{S1+1}, v{S1+1}, v{S2+3}, s[78:79]", sw], k, k + 8)
                k = p_[-1] + F.SB
                G.put(k, "need " + sw, "s_barrier"); p_ = G.spread(srd_, k, k + 10)
                sfin = ["need " + srd_[3]] + grab(sfin_gt if F.GT else lambda: stats_fin(A, SP, NM_, RS_, 1)); ksf = p_[-1] + 6
            if dfr and W:
                o = post(False)
                if ep:
                    for t in range(2): G.put(F.POD + 2 + t * F.SS, o[8 + t])
                    G.spread(o[:4], F.POD, F.POD + 2); G.spread(o[4:8], F.POD + 3, F.POD + 2 + F.SS); G.spread(o[10:], F.POD + 3 + F.SS, F.POD + 12 + F.SS)
                else: G.put(F.POD, o[0]); G.put(F.POD + 1, *o[1:])
                if not F.D3 and not ep: G.put(F.D0, "vneed pk", *f2pre(False)[0], "f2chk")
            if dfr and (F.D3 or not W):
                g1 = F.POD + 1 if W else F.DB1
                for y in f1s: g1 = G.near(g1, y, F.R1) + (y[0] == "v") * F.SB1
            elif sym and not dfr: q1 = F.Q1W if W else F.Q1B; g1 = G.spread(f1s, q1, q1 + 12)[-1]
            if R:
                ns = F.LHI * NM // 64 - F.LLO
                lw = (F.LWD if W else F.LWB) if dfr else F.LWX if sym else F.LW2 if res and F.LW2 else [F.LLO + i * ns // KS for i in range(KS)]
                g = -1
                for i in range(KS):
                    x = ldA(i).split("\n"); g = G.near(max(lw[i], g + len(x)), f"vm:L{i}:" + x[-1], F.R1 and not stats)
                    if len(x) > 1: G.put(g - 1, x[0])
            w2n = res and F.LW2
            if w2n: G.put(G.near(0, f"vm:res:buffer_load_dwordx4 {vr(RES,4)}, v{L16}, {WSRD}, s82 offen", F.R1) + 1, "s_add_u32 s82, s82, 32768")
            if R or not F.QM4: G.near(F.PP2 if w2n and W else (F.PPD if W else F.LWB[-1] + 2) if dfr and R else NM * (F.PPR if R else F.PPN) // 32, "vm:poll:" + pollld, F.R1 and not stats)
            else:
                qm = NM * F.QM4 // 64
                G.near(F.PA, "vm:poll:" + pollld); G.put(qm, "vneed poll", "mid"); G.near(qm + 1, "vm:poll:" + pollld)
            G.spread([need(1, 71), need(2, 53)] + (["s_mov_b32 s57, s63"] if flg and not fin else []), 0, 8)
            if flg and not fin and (stats or not W or w2n): gf = G.near(F.FPB * NM // 64 if not W else F.FW2 if w2n else F.FP4, flag("s57")); G.put(gf, "vneed out")
            so = None
            if W and not dfr:
                o = post(False)
                k = [i for i, x in enumerate(o) if not x.startswith("v_")][0]
                g = G.sched(o[:k], F.PO, F.PHI if stats else F.PO + 12) + 1 if k else F.PO
                if w2n: g = max(g, F.OW2, gf + 1)
                o = o[k:]; pos = G.spread(o, g, g + 5)
                so = [i for i, x in zip(pos, o) if x.startswith(("vm:out", "vm2:out"))]
                if stats: assert so[0] > F.FP4 + 4
                if res and not w2n: G.put(G.near(so[0] + F.FD, flag("s63")), "vneed out")
            if stats:
                if F.GT:
                    lu = lambda r: max([g + 1 for g in range(NM) for y in G.g[g] if f"v{r}" in y], default=0)
                    assert lu(NM_) <= ksf + 2
                    l2 = max(lu(RS_), lu(K0_), lu(K1_))
                    G.put(ksf, sfin[0]); g = G.sched(sfin[1:12], ksf, NM); G.sched(sfin[12:], max(g + 1, l2), NM)
                else:
                    assert not any(f"v{RS_}" in y for g in range(ksf, NM) for y in G.g[g])
                    G.put(ksf, sfin[0]); G.sched(sfin[1:], ksf, NM)
            if res:
                if not w2n: G.put(G.near(F.LLO - 2, f"vm:res:buffer_load_dwordx4 {vr(RES,4)}, v{L16}, {WSRD}, s82 offen") + 1, "s_add_u32 s82, s82, 32768")
                G.put(F.RSP, "vneed res"); G.sched(grab(lambda: unpack(A, RES, TM, 4)), F.RSP, NM)
            if dfr:
                P = fz(); q = (F.DW2 if F.D3 else F.D0) if W else F.DB2
                def seq(items, g):
                    i = 0
                    while i < len(items):
                        if items[i].startswith("vneed"): g = G.near(g, items[i + 1], F.R1); G.put(g, items[i]); i += 2
                        else: g = G.near(g, items[i], F.R1); i += 1
                        g += 1
                    return g
                if ep:
                    G.put(q, P["head"][0]); q = G.spread(chkv, q, NM, 1)[-1] + 1; G.put(q, "f2br"); G.put(q - 2, *P["head"][1:])
                elif F.D3 or not W: G.put(q, *P["head"], "f2chk")
                np_ = len(f2pre(False)[1]) - (1 if ep else 0); early = W and F.RE
                fl_ = ["vneed out", flag("s63")] if flg else []
                if F.D3:
                    p2_ = G.spread(P["calc"][:2], q + 1, NM, 1); P["calc"] = P["calc"][2:]; np_ -= 2
                    grz = seq(P["rz"], p2_[0] + 1); gf_ = seq(fl_, grz); P["rz"] = []; fl_ = []
                ps_ = G.spread(P["calc"][:np_], q + 1, NM, 1); g2 = seq(P["oad"] + P["book"], q + 1)
                if F.D3: g2 = max(g2, grz, gf_)
                if early: g2 = seq(fres, max(g2, ps_[-1] + 1))
                g = G.spread(P["calc"][np_:], ps_[-1], NM, 1)[-1] + 1
                g2 = max(g2, seq(P["rz"], ps_[0] + 1))
                fo = fl_ + P["out"] + P["cnt"]
                ld_ = f1s + ([] if early else fres); k1 = 1 if ep else 2
                if not W: seq(fo + ["s_mov_b32 s77, 0"], max(g, g2))
                elif F.D3:
                    g3 = seq(fo + ["s_mov_b32 s77, 1"], max(g, gf_))
                    if not R: seq(f1s, max(g2, F.D1N * NM // 64))
                elif F.DL and flg: g2 = seq(ld_[:k1], max(g, g2, F.D1 * NM // 64)); g2 = seq(ld_[k1:], g2 + F.SS - 1); seq(fo + ["s_mov_b32 s77, 1"], g2)
                else: seq(fo + ["s_mov_b32 s77, 1"], max(g, g2)); g2 = seq(ld_[:k1], max(g, g2, F.D1 * NM // 64)); seq(ld_[k1:], g2 + F.SS - 1)
                if not ep: G.put(NM - 2, "vneed rz")
            elif fin:
                q1 = NM * F.Q1 // 64; q2 = NM - F.Q2R if R else q1 + F.Q2N; q0 = F.Q0
                if sym: q1 = F.Q1W if W else F.Q1B; q2 = min(q1 + (F.Q2W if W else F.Q2B), NM - 6); q0 = F.Q0S
                if not sym: G.spread(f1s, q1, q1 + 12)
                p0, p1 = f2pre(False); G.put(q0, *p0); g = G.sched(p1, q0 + 1, q2) + 1
                if sym: g = max(g, g1 + 1)
                if sym:
                    for y in fres: g = G.near(g, y, F.R1) + 1
                else: G.spread(fres, g, g + 8)
                G.put(q2, "vneed pk")
                if flg: G.put(q2, flag("s63"))
                G.put(q2, "f2chk")
            nx = ["s_add_u32 s55, s55, 32768", "s_and_b32 s55, s55, 0x1ffff"] + [f"v_add_u32 v{VRD+x}, s55, v{VRB+x}" for x in range(4)]
            if R:
                nx = adv + nx + ([y for n in range(PRE) for y in (f"vneed L{n}", rd(n))] if F.PRG else [f"vneed L{KS-1}"] + [rd(n) for n in range(PRE)])
            G.spread(nx, lastrd + 1, NM)
            if fin and not dfr: G.spread(f2rest(False), q2 + 1, NM, 1)
            return G
        def vseq(G):
            return [t for x in sum([G.gap(i) for i in range(NM)], []) + G.over if x.startswith("vm") for t in [x.split(":")[1]] * (2 if x.startswith("vm2:") else 1)]
        n_t = len(tail); hs = [vseq(plan(w, True)) for w in (True, False)]; del tail[n_t:]
        def merge(hs):
            aft = {t: min(len(q) - 1 - max(i for i, x in enumerate(q) if x == t) for q in hs if t in q) for t in set(sum(hs, []))}
            h = [[] for _ in range(max(aft.values(), default=-1) + 1)]
            for t, n in aft.items(): h[len(h) - 1 - n].append(t)
            return h
        histR = [[("P" + t[1:] if t[0] == "L" else t) for t in x] for x in merge(hs)]
        histB = [["rs"]] + [[f"P{i}"] for i in range(KS)] + ([[t] for t in (("sn", "sn", "out", "fl", "rs") if ep else ("sn", "sn", "out", "rz", "rz", "fl", "rs"))] if dfr else [["out"], ["fl"]] if F.IPF and not xch else [["sn" if sym else "out"]] * NS)
        def body(W, R):
            G = plan(W, R); i00 = len(A.lines)
            Z = Sched(A); V = VMQ2(A, histR if W else histB)
            on = F.PROF == 2 or (F.PROF == 3 and (W, R) == F.PM); tp = [16, NM // 2] if F.PROF == 2 else [x * NM // 64 for x in F.TP]
            if on: tst(A, 0)
            if W: Z.q = [rd(n) for n in range(PRE)]
            else:
                for n in range(F.BD + 1): V.need(f"P{n}"); Z.lds(rd(n), rd(n))
            Z.need(rd(0))
            tr(8 + 2 * W + R)
            for i, m in enumerate(M):
                if on and i in tp: tst(A, 1 + tp.index(i))
                A.e(m)
                if i == NM - 1: V.need("poll"); A.e(f"v_cmp_gt_u32 vcc, s{53 if R else 71}, v{VF}") if not fin else None
                for y in G.gap(i): emit(Z, V, y)
            for y in G.over: emit(Z, V, y)
            if fin: A.e(f"v_cmp_gt_u32 vcc, s{53 if R else 71}, v{VF}")
            if F.PROF == 2: tst(A, 3); tst(A, 4)
            tr(4)
            A.e("s_add_u32 s60, s60, 1")
            if on and F.PROF == 3:
                sk = A.newlabel("pu"); tst(A, 5); A.e(f"s_cmp_le_u32 s60, {F.PU0}\ns_cbranch_scc1 {sk}\ns_mov_b32 s49, s97"); tacc(A, 6); A.e("s_add_u32 s97, s49, 1"); A.label(sk)
            elif on: tst(A, 5); tacc(A, 6)
            if W and R and F.DROP:
                import re
                A.lines[i00:] = [x for x in A.lines[i00:] if not any(re.search(p, x) for p in F.DROP)]
            return V
        WR, WN, BR, BN, lag, dec, nb = [A.newlabel(x) for x in ("WR", "WN", "BR", "BN", "lag", "dec", "nb")]
        if kind in F.HOLD: A.e("s_mov_b32 s71, 128"); poll_loop(A, pollld, VF, 71, 32)
        A.e(need(0, 71)); A.e(need(1, 53))
        poll_loop(A, pollld, VF, 71)
        A.label(lag); pc(0); tr(1)
        for i in range(KS): A.e(ldA(i))
        for x in adv: A.e(x)
        for _ in range(NS): A.e(dummy)
        A.label(dec)
        A.e(f"v_cmp_gt_u32 vcc, s53, v{VF}\ns_cbranch_vccnz {BN}")
        A.label(BR); pc(4); body(False, True); A.e(f"s_cbranch_vccnz {WN}")
        A.label(WR); pc(3); body(True, True); A.e(f"s_cbranch_vccz {WR}")
        endN = A.newlabel("endN")
        A.label(WN); pc(2); VW_ = body(True, False); A.e(f"s_branch {endN}")
        A.label(BN); pc(1); VB_ = body(False, False)
        A.label(endN)
        hist = merge([[t[0] if t else "x" for t in V_.q[V_.done + 1:]] for V_ in (VW_, VB_)])
        mk = lambda: VMQ2(A, hist)
        def fza(V, pre, mid=[]):
            Z = Sched(A); P = fz()
            for x in V.q:
                if "out" in x: x[x.index("out")] = "po"
            for x in pre + P["head"] + ["f2chk"] + mid + P["calc"] + P["oad"] + P["out"] + P["rz"] + P["book"] + (["vneed po", flag("s63")] if flg else []) + P["cnt"]: emit(Z, V, x)
        def ipost(V, pk=True):
            Z = Sched(A); o = post(pk)
            if dfr:
                fza(V, o); A.e("s_mov_b32 s77, 1")
                for x in fres: emit(Z, V, x)
                return
            if F.IPF and not xch:
                for x in V.q:
                    if "out" in x: x[x.index("out")] = "po"
                A.e("s_mov_b32 s57, s63")
                for x in o: emit(Z, V, x)
                V.need("po"); emit(Z, V, flag("s57"))
                return
            k = 12 if stats and "out" in sum(hist, []) else len(o)
            for x in o[:k]: emit(Z, V, x)
            if k < len(o): V.need("out"); emit(Z, V, flag("s63"))
            for x in o[k:]: emit(Z, V, x)
        if F.QM4:
            nm_ = A.newlabel("nm")
            A.e(f"s_cmp_eq_u32 s72, 0\ns_cbranch_scc1 {nm_}\ns_nop 3"); ipost(mk()); A.e(f"s_branch {dec}"); A.label(nm_)
        A.e(f"s_cbranch_vccnz {nb}")
        pc(7); tr(2); V = mk()
        for i in range(KS): V.op(ldA(i), f"L{i}")
        for x in adv: A.e(x)
        ipost(V)
        A.e(f"s_branch {dec}")
        A.label(nb)
        V = mk()
        if not fin: V.op(pollld, "poll")
        A.e("s_nop 3")
        ipost(V, 2)
        Z = Sched(A)
        if dfr:
            if F.FDL: A.e(f"s_sleep {F.FDL}")
            fza(V, f1s, ["vm:poll:" + pollld]); A.e("s_mov_b32 s77, 0")
            V.need("out" if flg else "poll")
        elif fin:
            if F.FDL: A.e(f"s_sleep {F.FDL}")
            for x in f1s + sum(f2pre(True, FIN), []) + ["vneed pk"] + ([flag("s63")] if flg else []) + ["f2chk", "vm:poll:" + pollld] + f2rest(True): emit(Z, V, x)
            V.need("out" if flg else "poll")
        else:
            V.need("poll"); A.e(f"v_cmp_gt_u32 vcc, s71, v{VF}\ns_cbranch_vccz {lag}")
            if flg: V.need("out")
        if flg: emit(Z, V, flag("s63"))
        if fin: A.e(f"v_cmp_gt_u32 vcc, s71, v{VF}\ns_cbranch_vccz {lag}")
        A.e(f"s_cmp_ge_u32 s60, {NU}\ns_cbranch_scc1 {done}")
        pc(5); poll_loop(A, pollld, VF, 71)
        A.e(f"s_branch {lag}")
    if F.PROF:
        for r in ST: A.e(f"v_mov_b32 v{r}, 0")
        A.e(f"s_memrealtime s[84:85]\ns_waitcnt lgkmcnt(0)\nv_writelane_b32 v{ST[2]}, s84, 0\nv_writelane_b32 v{ST[2]}, s86, 1")
    tinit(A)
    if F.TRU: A.e("s_mov_b32 s94, 0")
    if sym: loop(True)
    elif xch:
        lf = A.newlabel("lfin")
        A.e(f"s_cmp_eq_u32 s50, s52\ns_cbranch_scc1 {lf}")
        loop(False); A.label(lf); loop(True)
    else: loop(False)
    while tail: tail.pop(0)()
    A.label(done)
    tout(A, ST[2]); stamp_out(A, ST)
    A.e("s_endpgm")

def stamp2(A, ST, s="s60", sub=0, sr_=84):
    if not F.PROF or F.TRU or F.PROF == 3: return
    l1 = A.newlabel("st1"); l2 = A.newlabel("st2"); l3 = A.newlabel("st3"); l4 = A.newlabel("st4")
    if F.SPS and F.PROF == 1: A.e(f"s_sub_u32 s88, {s}, {sub + 4}\ns_cmp_ge_u32 s88, 116\ns_cbranch_scc1 {l4}\ns_and_b32 s88, s88, 7\ns_cmp_lg_u32 s88, 4\ns_cbranch_scc1 {l3}"); A.label(l4)
    A.e(f"s_memrealtime s[{sr_}:{sr_+1}]\ns_sub_u32 s88, {s}, {sub}\ns_lshr_b32 s89, s88, 1\ns_mov_b32 s87, m0\ns_mov_b32 m0, s89\ns_waitcnt lgkmcnt(0)\ns_bitcmp1_b32 s88, 0\ns_cbranch_scc1 {l1}\nv_writelane_b32 v{ST[0]}, s{sr_}, m0\ns_branch {l2}")
    A.label(l1); A.e(f"v_writelane_b32 v{ST[1]}, s{sr_}, m0"); A.label(l2); A.e("s_mov_b32 m0, s87"); A.label(l3); A.e("s_nop 3")

def ln_role(A, L):
    R = dict(RM=8, CO=9, FR=10, SW=11, SR=12); VFA, VF, VT = 13, 14, 15
    C1, SB = 32, 48; BUF = (64, 72); V = 80; T = 96; PK = 112; ST = (120, 121, 122)
    done = A.newlabel("done")
    A.e("s_mov_b32 s52, s59\ns_mov_b32 s60, 0\ns_mov_b32 s73, 0xffff0000")
    row_lanes(A, 52, R)
    A.e(f"v_and_b32 v{VFA}, {31 if F.SYM and F.K3 == 2 else 7}, v1\nv_lshlrev_b32 v{VFA}, 2, v{VFA}")
    verify(A, L, False, "mod")
    load_consts(A, R, 4, C1, 64, True); load_consts(A, R, 3, SB, 64)
    if "ln2" in F.OFF: A.e("s_endpgm")
    A.e(f"""
    s_mov_b32 s63, {X1}
    s_mov_b32 s66, {H2}
    s_lshl_b32 s64, s50, 8
    s_add_u32 s68, s64, {F_WO}
    s_lshl_b32 s65, s59, 2
    s_add_u32 s69, s64, s65
    s_add_u32 s69, s69, {F_LN}""")
    NS = 2
    def loads(par):
        A.e(f"s_add_u32 s64, s63, 4096\nbuffer_load_dwordx4 {vr(BUF[par],4)}, v{R['FR']}, {WSRD}, s63 offen\nbuffer_load_dwordx4 {vr(BUF[par]+4,4)}, v{R['FR']}, {WSRD}, s64 offen\ns_add_u32 s63, s63, 32768")
    pollld = f"buffer_load_dword v{VF}, v{VFA}, {WSRD}, s68 offen sc1"
    def dummies():
        for _ in range(NS): A.e(f"buffer_load_dword v{VT}, off, {WSRD}, s68")
    top = [A.newlabel("top0"), A.newlabel("top1")]
    if F.PROF:
        for r in ST: A.e(f"v_mov_b32 v{r}, 0")
    A.e("s_mov_b32 s71, 1")
    poll_loop(A, pollld, VF, 71)
    loads(0); dummies()
    tail = []
    for par in range(2):
        slowp = A.newlabel("slowp"); p2 = A.newlabel("p2")
        A.label(top[par])
        A.e(pollld)
        A.e(f"s_add_u32 s71, s60, 2\ns_waitcnt vmcnt({NS+1})")
        unpack(A, BUF[par], V, 8)
        i0 = len(A.lines); ln_core(A, V, C1, SB, T, R, par * 2048, PK); body = A.lines[i0:]; del A.lines[i0:]
        k = [i for i, x in enumerate(body) if "s_barrier" in x][0]
        A.lines += body[:k + 1]
        A.e("s_waitcnt vmcnt(0)"); flag_store(A, VT, "s60", 69)
        A.e(f"v_cmp_gt_u32 vcc, s71, v{VF}\ns_mov_b32 s72, 0\ns_cbranch_vccnz {p2}\ns_mov_b32 s72, 1")
        loads(par ^ 1)
        A.label(p2)
        A.lines += body[k + 1:]
        A.e(f"s_add_u32 s64, s66, 4096\nbuffer_store_dwordx4 {vr(PK,4)}, v{R['FR']}, {WSRD}, s66 offen sc1\nbuffer_store_dwordx4 {vr(PK+4,4)}, v{R['FR']}, {WSRD}, s64 offen sc1")
        stamp(A, ST[par])
        A.e(f"s_add_u32 s66, s66, 32768\ns_add_u32 s60, s60, 1\ns_cmp_eq_u32 s72, 0\ns_cbranch_scc1 {slowp}")
        if par: A.e(f"s_branch {top[0]}")
        def d(par=par, slowp=slowp):
            A.label(slowp)
            A.e(pollld)
            A.e("s_waitcnt vmcnt(1)"); flag_store(A, VT, "s60", 69)
            go = A.newlabel("go")
            A.e(f"s_cmp_ge_u32 s60, {NU}\ns_cbranch_scc1 {done}\ns_waitcnt vmcnt(1)\nv_cmp_gt_u32 vcc, s71, v{VF}\ns_cbranch_vccz {go}")
            poll_loop(A, pollld, VF, 71)
            A.label(go)
            loads(par ^ 1); dummies()
            A.e(f"s_branch {top[par^1]}")
        tail.append(d)
    for d in tail: d()
    A.label(done)
    stamp_out(A, ST)
    A.e("s_endpgm")

def att_role(A, L, team=False):
    NUA = NU - 2 * F.AT
    L16, VFA, VKM, VVM, VF, VT, VNEG = 0, 2, 3, 4, 5, 6, 7
    KM, VM, SA, SM, P, TT, OA, PK = 16, 32, 48, 56, 64, 72, 80, 112; ST = (120, 121, 122)
    Q = lambda b, ke: ar(b * 80 + ke * 4, 4)
    K = lambda b, kt, ke: ar(b * 80 + 16 + (kt * 4 + ke) * 4, 4)
    V = lambda b, et: ar(b * 80 + 48 + et * 4, 4)
    if team: A.e(f"s_lshr_b32 s46, s59, 4\ns_and_b32 s59, s59, 15\nv_mbcnt_lo_u32_b32 v1, -1, 0\nv_mbcnt_hi_u32_b32 v1, -1, v1")
    else: verify(A, L, True)
    A.e(f"""
    v_lshlrev_b32 v{L16}, 4, v1
    v_and_b32 v21, 15, v1
    v_lshrrev_b32 v22, 4, v1
    v_and_b32 v23, 7, v21
    v_lshlrev_b32 v23, 4, v23
    v_lshl_add_u32 v{VKM}, v22, 8, v23
    v_and_b32 v23, 31, v1
    v_lshlrev_b32 v{VVM}, 4, v23
    v_and_b32 v23, 3, v1
    v_bfe_u32 v24, v1, 2, 1
    v_lshlrev_b32 v23, 14, v23
    v_lshl_add_u32 v{VFA}, v24, 7, v23
    v_mov_b32 v{VNEG}, {NEG:#x}
    s_and_b32 s54, s50, 1
    s_lshl_b32 s64, s54, 4
    v_lshlrev_b32 v23, 2, v22
    v_sub_u32 v23, v21, v23
    v_add_u32 v23, s64, v23            ; query - 4g""")
    for kt in range(2):
        for r in range(4): A.e(f"v_cmp_le_i32 s[{28+2*(kt*4+r)}:{29+2*(kt*4+r)}], {16*kt+r}, v23")
    A.e(f"""
    s_mov_b32 s44, -1
    s_mov_b32 s45, 0
    s_mov_b32 s80, {f2u(SCL):#x}
    s_lshl_b32 s52, s59, 1
    s_lshr_b32 s64, s50, 1
    s_add_u32 s52, s52, s64            ; head
    s_lshl_b32 s53, s52, 15            ; 2h * 16KB
    s_lshl_b32 s68, s52, 8
    s_add_u32 s68, s68, s67
    s_add_u32 s68, s68, {F_KVM}
    s_lshl_b32 s69, s59, 8
    s_lshl_b32 s64, s64, 2
    s_add_u32 s69, s69, s64
    s_lshl_b32 s64, s54, 3
    s_add_u32 s69, s69, s64
    s_add_u32 s69, s69, {F_ATT}
    s_lshl_b32 s66, s52, 12
    s_lshl_b32 s64, s54, 17
    s_add_u32 s66, s66, s64
    s_add_u32 s66, s66, {OB}
    s_lshl_b32 s55, s54, 10
    s_xor_b32 s55, s55, 0x2000
    s_mov_b32 s60, 0                   ; 2 * segment""")
    def near(dst, add):
        A.e(f"""
        s_add_u32 s64, s60, {2*add}
        s_lshl_b32 s65, s64, 11
        s_and_b32 s65, s65, 0x2000
        s_xor_b32 s65, s65, s67
        s_lshl_b32 s64, s64, 19
        s_add_u32 s64, s64, s65
        s_add_u32 s{dst}, s64, s53""")
    def kq_loads(b, add):
        near(92, add)
        A.e("s_add_u32 s93, s92, 16384\ns_add_u32 s94, s92, 4096\ns_add_u32 s95, s93, 4096\ns_xor_b32 s96, s92, s55\ns_xor_b32 s97, s93, s55")
        for ke in range(4):
            A.e(f"buffer_load_dwordx4 {Q(b,ke)}, v{L16}, {WSRD}, s{96+(ke>>1)} offen offset:{(ke&1)*2048}")
            for kt in range(2): A.e(f"buffer_load_dwordx4 {K(b,kt,ke)}, v{L16}, {WSRD}, s{92+(ke>>1)} offen offset:{(ke&1)*2048 + kt*1024}")
    def v_loads(b):
        for et in range(8): A.e(f"buffer_load_dwordx4 {V(b,et)}, v{L16}, {WSRD}, s{94+(et>>2)} offen offset:{(et&3)*1024}")
    def softmax(vals):
        mx, t, sm, r = TT, TT + 1, TT + 2, TT + 3
        A.e(f"v_max3_f32 v{mx}, v{mx}, v{vals[8]}, v{vals[9]}\nv_max3_f32 v{mx}, v{mx}, v{vals[10]}, v{vals[11]}")
        for sw in ("v_permlane16_swap_b32", "v_permlane32_swap_b32"): A.e(f"v_mov_b32 v{t}, v{mx}\n{sw} v{t}, v{mx}\nv_max_f32 v{mx}, v{mx}, v{t}")
        A.e(f"v_mul_f32 v{mx}, s80, v{mx}")
        for v in vals: A.e(f"v_fma_f32 v{v}, v{v}, s80, -v{mx}")
        for v in vals: A.e(f"v_exp_f32 v{v}, v{v}")
        A.e(f"v_add_f32 v{sm}, v{vals[0]}, v{vals[1]}\nv_add_f32 v{r}, v{vals[2]}, v{vals[3]}")
        for i in range(4, 12, 2): A.e(f"v_add_f32 v{sm}, v{sm}, v{vals[i]}\nv_add_f32 v{r}, v{r}, v{vals[i+1]}")
        A.e(f"v_add_f32 v{sm}, v{sm}, v{r}")
        for sw in ("v_permlane16_swap_b32", "v_permlane32_swap_b32"): A.e(f"v_mov_b32 v{t}, v{sm}\n{sw} v{t}, v{sm}\nv_add_f32 v{sm}, v{sm}, v{t}")
        A.e(f"v_rcp_f32 v{r}, v{sm}")
        for v in vals: A.e(f"v_mul_f32 v{v}, v{v}, v{r}")
        for i in range(6): A.e(f"v_cvt_pk_bf16_f32 v{P+i}, v{vals[2*i]}, v{vals[2*i+1]}")
    pollld = f"buffer_load_dword v{VF}, v{VFA}, {WSRD}, s68 offen sc1"
    if F.PROF:
        for r in ST: A.e(f"v_mov_b32 v{r}, 0")
    if team:
        A.e(f"""
        s_lshl_b32 s60, s46, 1
        s_add_u32 s60, s60, {NUA}
        s_lshl_b32 s64, s60, 17
        s_add_u32 s66, s66, s64
        s_lshl_b32 s47, s52, 7
        s_add_u32 s47, s47, s67
        s_add_u32 s47, s47, {F_QKV}
        v_and_b32 v23, 1, v1
        v_lshlrev_b32 v23, 6, v23
        s_mov_b32 s71, {NSEG}""")
        poll_loop(A, f"buffer_load_dword v{VF}, v23, {WSRD}, s47 offen sc1", VF, 71, 16)
    else:
        for k in range(F.AT): A.e(f"s_add_u32 s64, s69, {16*(k+1)}"); flag_store(A, VT, NUA + 2 * k, 64)
        A.e("s_mov_b32 s71, 1")
        poll_loop(A, pollld, VF, 71, F.ASL)
    kq_loads(0, 0); v_loads(0)
    A.e("s_waitcnt vmcnt(8)")
    top = [A.newlabel("top0"), A.newlabel("top1")]
    for b in range(1 if team else 2):
        A.label(top[b])
        for ke in range(4):
            for kt in range(2):
                d = vr(SA + 4 * kt, 4); A.e(f"{MF} {d}, {K(b,kt,ke)}, {Q(b,ke)}, {d if ke else 0}")
        for i in range(8): A.e(f"v_cndmask_b32 v{SA+i}, v{VNEG}, v{SA+i}, s[{28+2*i}:{29+2*i}]")
        A.e(f"v_max3_f32 v{TT}, v{SA}, v{SA+1}, v{SA+2}\nv_max3_f32 v{TT}, v{TT}, v{SA+3}, v{SA+4}\nv_max3_f32 v{TT}, v{TT}, v{SA+5}, v{SA+6}\nv_max_f32 v{TT}, v{TT}, v{SA+7}")
        near(98, 0)
        if team:
            A.e(f"s_mov_b32 s71, {F.ATP}"); poll_loop(A, f"buffer_load_dword v{VF}, off, {WSRD}, s69 sc1", VF, 71, 32)
            A.e("s_lshl_b32 s64, s46, 4\ns_add_u32 s69, s69, s64\ns_add_u32 s69, s69, 16")
        A.e(f"s_add_u32 s98, s98, {KVM}\ns_add_u32 s99, s98, 16384\ns_lshr_b32 s71, s60, 1\ns_add_u32 s71, s71, 1")
        poll_loop(A, pollld, VF, 71, F.ASL)
        for ke in range(4): A.e(f"buffer_load_dwordx4 {vr(KM+4*ke,4)}, v{VKM}, {WSRD}, s{98+(ke>>1)} offen offset:{(ke&1)*128}")
        for ke in range(4): A.e(f"buffer_load_dwordx4 {vr(VM+4*ke,4)}, v{VVM}, {WSRD}, s{98+(ke>>1)} offen offset:{1024 + (ke&1)*512}")
        stamp(A, ST[2])
        if F.PROF: A.e(f"s_memtime s[84:85]\ns_waitcnt lgkmcnt(0)\nv_writelane_b32 v{ST[1]}, s84, m0")
        if F.ABAR and not team: A.e("s_barrier")
        def guarded(f, n):
            if team: return
            if b == 0: return f()
            pf = A.newlabel("pf"); j1 = A.newlabel("j1")
            A.e(f"s_cmp_lt_u32 s60, {NUA-2}\ns_cbranch_scc1 {pf}\ns_waitcnt vmcnt({n})\ns_branch {j1}")
            A.label(pf); f(); A.label(j1)
        guarded(lambda: kq_loads(b ^ 1, 1), 0)
        A.e(f"s_waitcnt vmcnt({4 if team else 16})")
        for ke in range(4): A.e(f"{MF} {vr(SM,4)}, {vr(KM+4*ke,4)}, {Q(b,ke)}, {vr(SM,4) if ke else 0}")
        for r in range(4): A.e(f"v_cndmask_b32 v{SM+r}, v{VNEG}, v{SM+r}, s[44:45]")
        softmax(list(range(SA, SA + 12)))
        for et in range(8): A.e(f"{MF} {vr(OA+4*et,4)}, {V(b,et)}, {vr(P,4)}, 0")
        A.e(f"s_waitcnt vmcnt({0 if team else 12})")
        for et in range(8): A.e(f"v_mfma_f32_16x16x16_bf16 {vr(OA+4*et,4)}, {vr(VM+2*et,2)}, {vr(P+4,2)}, {vr(OA+4*et,4)}")
        for ke in range(4):
            o = PK + 4 * (ke & 1)
            for i in range(4): A.e(f"v_cvt_pk_bf16_f32 v{o+i}, v{OA+8*ke+2*i}, v{OA+8*ke+2*i+1}")
            A.e(f"buffer_store_dwordx4 {vr(o,4)}, v{L16}, {WSRD}, s66 offen offset:{ke*1024} sc1")
        stamp(A, ST[0])
        if team:
            A.e("s_waitcnt vmcnt(0)"); flag_store(A, VT, NU, 69); break
        if F.ABAR: A.e("s_barrier")
        guarded(lambda: v_loads(b ^ 1), 0)
        A.e("s_add_u32 s66, s66, 262144\ns_add_u32 s60, s60, 2\ns_add_u32 s72, s60, s54")
        if b and F.AT: A.e(f"s_cmp_eq_u32 s60, {NUA}\ns_cselect_b32 s72, {NU}, s72")
        A.e("s_waitcnt vmcnt(8)"); flag_store(A, VT, "s72", 69)
        if b: A.e(f"s_cmp_lt_u32 s60, {NUA}\ns_cbranch_scc1 {top[0]}")
    if F.PROF and F.AT:
        if team: A.e("s_add_u32 s58, s59, 224\ns_lshr_b32 s64, s60, 1\ns_lshl_b64 s[48:49], 1, s64")
        else: A.e(f"s_mov_b32 s48, -1\ns_mov_b32 s49, {(1 << (NUA // 2 - 32)) - 1:#x}")
        i0 = len(A.lines); stamp_out(A, ST); k = [i for i in range(i0, len(A.lines)) if "buffer_store" in A.lines[i]][0]
        A.lines.insert(k, "    s_mov_b64 exec, s[48:49]")
    else: stamp_out(A, ST)
    A.e("s_endpgm")

def flow_kernel(A, name):
    A.begin_kernel(name)
    L = {k: f"fl_{k}" for k in ("fb", "disp0", "disp", "rec", "qkv", "wo", "w4", "w3", "att", "ln2", "w1", "w2", "dutb", "att2")}
    done = A.newlabel("done"); nr = A.newlabel("norole")
    A.e(f"s_cmp_ge_u32 s2, 256\ns_cbranch_scc1 {done}\ns_lshr_b32 s49, s2, 3")
    ldptr(A, 18, "ws"); ldptr(A, 2, "dbg")
    if F.KW: ldptr(A, 4, "x")
    A.e(f"""
    s_getreg_b32 s51, hwreg(HW_REG_XCC_ID)
    v_lshrrev_b32 v2, 6, v0
    v_and_b32 v1, 63, v0
    s_and_b32 s51, s51, 7
    v_readfirstlane_b32 s50, v2
    s_mov_b32 s90, {F.BUD}
    s_mov_b32 s56, 2
    s_mov_b32 s88, {CB0}
    s_lshl_b32 s64, s51, 2
    s_lshr_b32 s64, {F.XMAP:#x}, s64
    s_and_b32 s64, s64, 7
    s_lshl_b32 s58, s64, 5
    s_add_u32 s58, s58, s49""")
    if F.PROF: A.e("s_memrealtime s[86:87]")
    A.e("s_waitcnt lgkmcnt(0)")
    A.srd(20, 18, WS_BYTES)
    A.e(f"s_cmp_lg_u32 s50, 0\ns_cbranch_scc1 {L['disp0']}")
    dbg_srd(A, 92)
    A.e(f"""
    s_lshl_b32 s64, 1, s49
    v_mov_b32 v2, s64
    v_mov_b32 v3, 0x100
    s_lshl_b32 s64, s51, 3
    s_mov_b64 exec, 1
    buffer_atomic_add_x2 v[2:3], off, s[92:95], s64 sc1
    s_mov_b64 exec, -1""")
    A.label(L["disp0"])
    A.e("v_mbcnt_lo_u32_b32 v1, -1, 0\nv_mbcnt_hi_u32_b32 v1, -1, v1")
    f1 = A.newlabel("nx"); f2 = A.newlabel("nx")
    A.e(f"s_sub_u32 s59, s58, 64\ns_cbranch_scc0 {f1}\ns_branch {L['rec']}"); A.label(f1)
    A.e(f"s_cmp_lt_u32 s58, 128\ns_cbranch_scc0 {f2}\ns_branch {L['qkv']}"); A.label(f2)
    A.e(f"s_cmp_ge_u32 s58, 192\ns_cbranch_scc1 {L['dutb']}")
    if "A" in F.EXP: A.e("s_endpgm")
    duty(A, L, 0)
    if "a" in F.EXP or F.X2: A.e("s_endpgm")
    A.e(f"s_branch {L['disp']}")
    A.label(L["dutb"])
    if "B" in F.EXP: A.e("s_endpgm")
    duty(A, L, 1)
    A.label(L["disp"])
    for lo, role in ((248, "w2"), (240, "w1"), (224, "att"), (220, "ln2"), (192, "w3"), (160, "w4")):
        far = A.newlabel("nx")
        A.e(f"s_sub_u32 s59, s58, {lo}\ns_cbranch_scc1 {far}\ns_branch {L[role]}"); A.label(far)
    A.e(f"s_sub_u32 s59, s58, 128\ns_branch {L['wo']}")
    A.label(L["fb"])
    tp = A.newlabel("tp"); tg = A.newlabel("tg"); sl = A.newlabel("tsl")
    dbg_srd(A, 92)
    A.e(f"""
    s_waitcnt vmcnt(0) lgkmcnt(0)
    s_barrier
    v_mov_b32 v4, 0
    s_cmp_lg_u32 s50, 0
    s_cbranch_scc1 {nr}
    s_mov_b64 exec, 1
    v_mov_b32 v3, 1
    s_lshl_b32 s52, s51, 2
    s_add_u32 s52, s52, {TICK}
    buffer_atomic_add v3, off, s[92:95], s52 sc0 sc1
    s_waitcnt vmcnt(0)
    ds_write_b32 v4, v3
    s_waitcnt lgkmcnt(0)
    s_mov_b64 exec, -1""")
    A.label(nr)
    A.e(f"""
    s_barrier
    ds_read_b32 v3, v4
    v_mbcnt_lo_u32_b32 v16, -1, 0
    v_and_b32 v16, 7, v16
    v_lshlrev_b32 v16, 2, v16
    s_waitcnt lgkmcnt(0)
    v_readfirstlane_b32 s49, v3
    s_barrier""")
    A.label(tp)
    A.e(f"buffer_load_dword v17, v16, s[92:95], 0 offen offset:{TICK} sc1\ns_waitcnt vmcnt(0)")
    for x in range(8): A.e(f"v_readlane_b32 s{72+x}, v17, {x}")
    A.e("s_add_u32 s65, s72, s73")
    for x in range(2, 8): A.e(f"s_add_u32 s65, s65, s{72+x}")
    A.e(f"s_cmp_ge_u32 s65, 256\ns_cbranch_scc1 {tg}\ns_sleep 4\ns_sub_u32 s90, s90, 1\ns_cmp_gt_i32 s90, 0\ns_cbranch_scc1 {tp}")
    A.label(tg)
    A.e("s_min_u32 s65, s72, s73")
    for x in range(2, 8): A.e(f"s_min_u32 s65, s65, s{72+x}")
    A.e(f"""
    s_mov_b32 s88, {CB1}
    s_cmp_lt_u32 s65, {33 if F.FORCE_SLOW else 32}
    s_cbranch_scc1 {sl}
    s_lshl_b32 s64, s51, 2
    s_lshr_b32 s64, {F.XMAP:#x}, s64
    s_and_b32 s64, s64, 7
    s_lshl_b32 s58, s64, 5
    s_add_u32 s58, s58, s49
    s_mov_b32 s56, 0
    s_branch {L['disp0']}""")
    A.label(sl)
    A.e("s_mov_b32 s58, s49")
    for x in range(7): A.e(f"s_cmp_gt_u32 s51, {x}\ns_cselect_b32 s65, s{72+x}, 0\ns_add_u32 s58, s58, s65")
    if F.FORCE_SLOW: A.e("s_mul_i32 s58, s58, 37\ns_add_u32 s58, s58, 11\ns_and_b32 s58, s58, 255")
    A.e(f"s_mov_b32 s56, 1\ns_cmp_lt_u32 s58, 256\ns_cbranch_scc1 {L['disp0']}")
    A.label(done)
    A.e("s_endpgm")
    A.label(L["qkv"]); qkv_role(A, L)
    for role in ("wo", "w4", "w3", "w1", "w2"):
        A.label(L[role])
        if role in F.OFF: A.e("s_endpgm")
        (gemm4_role if F.K3 == 2 else gemm3_role if F.K3 else gemm_role)(A, L, role)
    A.label(L["ln2"]); ln_role(A, L)
    A.label(L["att"])
    if "att" in F.OFF: A.e("s_endpgm")
    att_role(A, L)
    if F.AT: A.label(L["att2"]); att_role(A, L, True)
    MFMA_WS[0] = 1
    A.lines = fix_hazards(A.lines)
    B = Asm(); B.uid = A.uid + 100000
    O = rec6.O; O.MEAS = 0; O.DL0 = max(0, O.DL - 9); O.DO01 = max(0, O.DO - 7)
    MFMA_WS[0] = O.MWS
    B.label(L["rec"])
    B.e(f"s_load_dwordx8 s[4:11], s[0:1], {ARG['mem0']*8}\ns_load_dwordx2 s[12:13], s[0:1], {ARG['Wo']*8}\ns_mov_b32 s57, s58\nv_mov_b32 v0, v1\ns_waitcnt lgkmcnt(0)")
    O.SST = F.PROF; O.PF = F.PF; O.WOPF = F.WOPF; O.NFL = F.NFL
    rec6.rec_setup(B)
    if F.EXP: B.e("s_endpgm")
    sl = B.newlabel("recslow"); fin = B.newlabel("recfin")
    verify(B, L, True, 'rec')
    rec6.rec_bases(B)
    B.e(f"s_mov_b32 s90, {O.BUDGET}\ns_barrier")
    if F.PROF: B.e("s_memrealtime s[14:15]\ns_memtime s[28:29]")
    if O.PROF: B.e(f"s_lshl_b32 s16, s57, 2\ns_add_u32 s16, s16, s50\ns_lshl_b32 s16, s16, 12\ns_add_u32 s16, s16, {P4}")
    B.e(f"s_cmp_eq_u32 s56, 1\ns_cbranch_scc1 {sl}")
    rec6.rec_loop(B, "", fin)
    B.label(sl)
    rec6.rec_loop(B, "sc1", fin)
    B.label(fin)
    if F.PROF:
        B.e(f"s_memrealtime s[16:17]\ns_memtime s[26:27]\ns_waitcnt lgkmcnt(0)\ns_sub_u32 s26, s26, s28\nv_mov_b32 v20, 0\nv_writelane_b32 v20, s26, 4\nv_writelane_b32 v20, s14, 0\nv_writelane_b32 v20, s16, 1\nv_writelane_b32 v20, s90, 2\nv_writelane_b32 v20, s67, 3\ns_mov_b32 s58, s57")
        stamp_out(B, [20])
    B.e("s_endpgm")
    B.lines = fix_hazards(B.lines)
    A.lines += B.lines
    if F.ENDS:
        first = True; o = []
        for x in A.lines:
            if x.strip() == "s_endpgm" and not first: o += ["    " + y for y in f"s_waitcnt vmcnt(0)\ns_memrealtime s[4:5]\ns_mov_b32 s6, {STAMP2 - 128}\ns_waitcnt lgkmcnt(0)\nv_mov_b32 v2, s4\ns_mov_b64 exec, 1\nbuffer_atomic_umax v2, off, s[20:23], s6 sc1".split("\n")]
            if x.strip() == "s_endpgm": first = False
            o.append(x)
        A.lines = o
    A.end_kernel(512, 102, 256)
    A.launch(name, (256,), (256,), 160 * 1024)

def build(opt=None, ropt=None):
    for k, v in (opt or {}).items(): setattr(F, k, v)
    for k, v in (ropt or {}).items(): setattr(rec6.O, k, v)
    A = Asm()
    hdr = open(f"/code/{NAME}.s.ref").read().split("\n")
    A.header = [l for l in hdr if l.startswith(";") and "@launch" not in l and "Override" not in l and "grid=ceil" not in l]
    flow_kernel(A, "flow_kernel")
    return A.text()

if __name__ == "__main__":
    out = sys.argv[1]
    t = build(eval(sys.argv[2]) if len(sys.argv) > 2 else None, eval(sys.argv[3]) if len(sys.argv) > 3 else None)
    open(out, "w").write(t)
    check_hazards(t)
    print(len(t), "bytes")
```

```python
import sys
sys.path.insert(0, "..")
from asmgen import *
from lay import *
import struct
def f2u(x): return struct.unpack("<I", struct.pack("<f", x))[0]
LOG2E = 1.4426950408889634
SCL = (128 ** -0.5) * LOG2E
HALF = "0x00ff00ff"; HALFH = "0xff00ff00"
RS = 1040
T_Q = 0; T_K = 8448; T_V = 16896; T_P = T_V + 4096; PODD = 2048 + 32
L_WO = 32768
LDS_BYTES = 160 * 1024
V_L16, V_IDX, V_A1, V_A2, V_PRD, V_SEL, V_OST, V_WO, V_L4 = 0, 1, 2, 3, 4, 5, 6, 7, 127
V_C = 8
AF = 16; ACC = 48; XC = 96; XN = 104; KEEP = 112; PK = 120; TA, TB, VF = 124, 125, 126; KEEP2 = PK
WV = 128
NVR = 6
WVR = 208
def wo_reg(b): return WV + (b - 3) * 16
LV = lambda f: (f - NVR) * 2048
LO = lambda b: (16 - NVR) * 2048 + b * 4096
class Opt:
    LAL = 7; PORD = 0; WAL = -1; SWP = 0; KJ = 99; KJD = 2; KP23 = 0; FL63 = 1; KE = 3; KF = 1; KEP = 0; LFW = 1; ORD = 'voq'; H2 = 0; PF0 = (1, 2, 3); PFJ = 2; H63 = 1; VO1 = 0; WSW = 1; PF = 0; WOPF = 0; NFL = 0; SST = 0; PROF = False; DL = 22; DL0 = 10; DS = 31; DO = 10; DO01 = 4; NV1 = 2; BUDGET = 100000; B2POS = 1; NV2 = 0; CK = 5; PER = 4; PER2 = 2; FIXX = 0; FIXM = 0; RSH = 0; RQ = 0; VPF = 6; OPAIR = 1; S2 = 0; DS2 = 2; DO0 = 8; FPOS = 3; NOKVM = 0; NOX = 0; OI = 8; LI = 8; XS = {}; PN = 8; NVL = 0; WARM = 0; WL = 0; WO = 0; ZPER = 3; MEAS = 1; CKB = (5, 5, 5, 5, 5, 5, 5); RP = (0, 1, 2, 2); TG = 2; WD = 6; WV = 1; WN = 2; MWS = 3; TMJ = 6; RLAST = 0; KB = 3; KPOS = 0; KD = 12; EW = 1; KW2 = 0; KPAR = 0; NOFL = 0; NORS = 0; LATEL = 1; NPL = 4; NPR = 5; DPL = 4; DPR = 5
O = Opt

def delay(A, n):
    if O.WARM:
        for i in range(4 * n): A.e(f"v_mov_b32 v{TA}, v{TA}")
        return
    while n >= 4:
        A.e("s_nop 15"); n -= 4
    if n > 0: A.e(f"s_nop {4*n-1}")

def sstamp(A, v, i): A.e(f"s_memrealtime s[84:85]\ns_waitcnt lgkmcnt(0)\nv_writelane_b32 v{v}, s84, {i}")
def sstamp_out(A, v, sg):
    A.e(f"s_lshl_b32 s64, s{sg}, 2\ns_add_u32 s64, s64, s50\ns_lshl_b32 s64, s64, 6\ns_add_u32 s64, s64, {STAMP3}\nv_mbcnt_lo_u32_b32 v31, -1, 0\nv_lshlrev_b32 v31, 2, v31\ns_mov_b64 exec, 0xffff\nbuffer_store_dword v{v}, v31, s[20:23], s64 offen\ns_mov_b64 exec, -1")
def help_addr(A, v, vl, sid, rows):
    A.e(f"s_and_b32 s64, s{sid}, 7")
    A.e(rows)
    A.e(f"""
    s_lshl_b32 s65, s65, 13
    s_andn2_b32 s55, s{sid}, 7
    s_lshl_b32 s55, s55, 7
    s_add_u32 s65, s65, s55
    s_add_u32 s65, s65, 384
    v_and_b32 v{v}, 3, v{vl}
    v_lshlrev_b32 v{v}, 13, v{v}
    v_add_u32 v{v}, s65, v{v}
    v_and_b32 v15, 4, v{vl}
    v_lshl_add_u32 v{v}, v15, 4, v{v}
    s_and_b32 s55, s{sid}, 31
    s_add_u32 s66, s66, s55
    s_lshl_b32 s66, s66, 13
    s_add_u32 s66, s66, 8064
    v_writelane_b32 v{v}, s66, 8
    s_add_u32 s66, s66, 64
    v_writelane_b32 v{v}, s66, 9
    s_cmp_eq_u32 s64, 3
    s_cselect_b32 s65, 0, {0xff if O.H2 else 0x0f}
    s_sub_u32 s66, s{sid}, 32
    s_cmp_lt_u32 s66, 31
    s_cselect_b32 s66, {(0x300 if O.H2 else 0x100) if O.H63 else 0}, 0
    s_or_b32 vcc_lo, s65, s66
    s_mov_b32 vcc_hi, 0
    v_cndmask_b32 v{v}, -1, v{v}, vcc""")
def rec_setup(A):
    A.srd(28, 6, 8 * MB); A.srd(32, 8, 8 * MB); A.srd(36, 10, 8 * MB); A.srd(40, 12, 8 * MB); A.srd(44, 4, 16384)
    A.e(f"""
    s_lshr_b32 s58, s57, 5
    s_and_b32 s59, s57, 31
    v_and_b32 v20, 63, v0              ; lane
    v_and_b32 v21, 15, v20             ; lam
    v_lshrrev_b32 v22, 4, v20          ; g
    v_lshrrev_b32 v23, 3, v20
    v_and_b32 v24, 7, v20
    v_lshlrev_b32 v16, 13, v23
    v_lshl_add_u32 v16, v24, 4, v16
    v_lshrrev_b32 v23, 2, v20
    v_and_b32 v24, 3, v20
    v_lshlrev_b32 v17, 11, v23
    v_lshl_add_u32 v17, v24, 4, v17
    s_lshl_b32 s61, s50, 15
    s_add_u32 s61, s61, {L_WO}
    s_lshl_b32 s62, s50, 21
    s_lshl_b32 s64, s57, 7
    s_add_u32 s62, s62, s64
    s_lshl_b32 s63, s58, 22
    s_lshl_b32 s64, s50, 20
    s_add_u32 s63, s63, s64
    s_lshl_b32 s64, s59, 6
    s_add_u32 s63, s63, s64
    v_lshrrev_b32 v23, 1, v22          ; g>>1
    v_lshlrev_b32 v25, 4, v23
    v_and_b32 v23, 1, v22
    v_lshl_add_u32 v25, v23, 2, v25
    v_lshrrev_b32 v23, 3, v21          ; r'>>1
    v_lshl_add_u32 v25, v23, 3, v25
    v_bfe_u32 v23, v21, 2, 1           ; r'&1
    v_add_u32 v25, v25, v23
    v_lshlrev_b32 v28, 4, v23
    v_lshrrev_b32 v23, 1, v22
    v_lshl_add_u32 v28, v23, 3, v28
    v_lshrrev_b32 v23, 3, v21
    v_lshl_add_u32 v28, v23, 2, v28
    v_and_b32 v23, 1, v22
    v_lshl_add_u32 v28, v23, 1, v28
    v_and_b32 v24, 3, v21              ; c'
    v_lshlrev_b32 v26, 7, v28
    v_add_u32 v26, s61, v26
    v_lshl_add_u32 v18, v24, 3, v26
    v_lshl_add_u32 v19, v24, 4, v26    ; permuted
    v_lshlrev_b32 v26, 6, v25
    v_add_u32 v26, s61, v26
    v_lshl_add_u32 v27, v24, 3, v26
    v_lshlrev_b32 v{V_L16}, 4, v20
    v_add_u32 v{V_WO}, s61, v{V_L16}""")
    ST = [(0, 0), (0, 1), (1, 0), (1, 1), (3, 0), (3, 1), (2, 0), (2, 1)]
    if O.VO1: ST = [('qkvo'.index(c), h) for c in O.ORD + 'k' for h in range(2)]
    A.e(f"s_and_b32 s64, s59, {O.WSW}\ns_lshl_b32 s65, s64, 18\ns_add_u32 s70, s63, s65\ns_sub_u32 s71, s63, s65\ns_lshl_b32 s65, s64, 13\ns_add_u32 s72, s61, s65\ns_sub_u32 s73, s61, s65")
    if O.PF:
        help_addr(A, 29, 20, 57, "s_lshl_b32 s65, s64, 2\ns_mov_b32 s66, 0")
        A.e(f"""
        s_lshl_b32 s68, s50, 21
        s_lshl_b32 s64, s58, 22
        s_lshl_b32 s65, s50, 20
        s_add_u32 s64, s64, s65
        s_and_b32 s66, s59, 15
        s_lshl_b32 s65, s66, 13
        s_add_u32 s64, s64, s65
        s_lshr_b32 s65, s59, 4
        s_lshl_b32 s65, s65, 10
        s_add_u32 s69, s64, s65""")
        if O.WOPF: A.e(f"""
        v_lshrrev_b32 v30, 3, v20
        v_lshlrev_b32 v30, 11, v30
        v_and_b32 v31, 7, v20
        v_lshl_add_u32 v30, v31, 7, v30
        v_cmp_gt_u32 vcc, 32, v20
        v_cndmask_b32 v30, -1, v30, vcc""")
        else: A.e(f"""
        s_add_u32 s69, s69, 384
        s_lshr_b32 s66, s66, 1
        s_cmp_eq_u32 s66, 3
        s_cselect_b32 s65, 0, {8 if O.H2 else 4}
        v_and_b32 v30, 3, v20
        v_lshlrev_b32 v30, 11, v30
        v_and_b32 v31, 4, v20
        v_lshl_add_u32 v30, v31, 4, v30
        v_cmp_gt_u32 vcc, s65, v20
        v_cndmask_b32 v30, -1, v30, vcc""")
    def pf1(t, i):
        mat, hh = ST[t]
        if mat < 3: A.e(f"s_add_u32 s64, s68, {(hh*128 + i*32)*8192}\nbuffer_load_dword v31, v29, s[{28+mat*4}:{31+mat*4}], s64 offen")
        else: A.e(f"s_add_u32 s64, s69, {(hh*256 + i*64)*2048}\nbuffer_load_dword v31, v30, s[40:43], s64 offen")
    def issue(st):
        mat, hh = ST[st]
        npf[st] = 0
        if O.PF and st == 0:
            for i in O.PF0: pf1(0, i); npf[st] += 1
        for J in range(16):
            if O.PF and st < 7 and (J % 4 == 2 if O.PFJ == 2 else J in (1, 3, 5, 7)): pf1(st + 1, J // 4 if O.PFJ == 2 else J // 2); npf[st] += 1
            if O.NFL and J: A.e(f"s_waitcnt vmcnt({O.NFL})")
            if mat < 3: A.e(f"s_add_u32 s64, s62, {(hh*128 + J*8)*8192}\ns_add_u32 m0, s61, {hh*16384+J*1024}\nbuffer_load_dwordx4 v16, s[{28+mat*4}:{31+mat*4}], s64 offen lds")
            else: A.e(f"s_add_u32 s64, s{70+(J>>3)}, {(hh*256 + J*16)*2048}\ns_add_u32 m0, s{72+(J>>3)}, {hh*16384+J*1024}\nbuffer_load_dwordx4 v17, s[40:43], s64 offen lds")
    def vdst(f):
        if f < NVR: return WVR + f * 8
        if f < 8: return 96 + (f - NVR) * 8
        return None
    def read(st):
        mat, hh = ST[st]
        if mat < 2:
            for jj in range(2):
                j = hh * 2 + jj
                for t in range(4):
                    for R in range(2):
                        for h in range(2):
                            off = hh * 16384 + (64 * jj + 32 * R + h) * 128
                            A.e(f"ds_read_b64_tr_b16 {ar((j*8+mat*4+t)*8+4*R+2*h,2)}, v18 offset:{off + t*32}")
                A.e("s_waitcnt lgkmcnt(0)")
        elif mat == 3:
            for jj in range(4):
                b = hh * 4 + jj
                for t in range(2):
                    for R in range(2):
                        for h in range(2):
                            off = hh * 16384 + (64 * jj + 32 * R + 2 * h) * 64 + t * 32
                            A.e(f"ds_read_b64_tr_b16 {vr((48 + b*16 if b < 3 else wo_reg(b)) + t*8+4*R+2*h,2)}, v27 offset:{off}")
                if jj & 1: A.e("s_waitcnt lgkmcnt(0)")
        else:
            def rd(f, dst, rf=vr):
                jj, t = (f >> 2) & 1, f & 3
                for R in range(2):
                    for h in range(2):
                        off = hh * 16384 + (64 * jj + 32 * R + h) * 128
                        A.e(f"ds_read_b64_tr_b16 {rf(dst+4*R+2*h,2)}, v19 offset:{off + (t>>1)*64 + (t&1)*8}")
            if O.VO1:
                for f in range(8 * hh, 8 * hh + 8):
                    if f < NVR: rd(f, WVR + f * 8)
                    elif f < 14: rd(f, park(f), ar)
                    else: rd(f, 96 + (f - 14) * 8)
                    if f & 3 == 3 or f % 3 == 2: A.e("s_waitcnt lgkmcnt(0)")
            elif hh == 0:
                for f in range(8):
                    rd(f, vdst(f))
                    if f & 3 == 3: A.e("s_waitcnt lgkmcnt(0)")
            else:
                for f in range(NVR, 8):
                    for q in range(2): A.e(f"ds_write_b128 v{V_WO}, {vr(vdst(f)+q*4,4)} offset:{LV(f) + q*1024}")
                A.e("s_waitcnt lgkmcnt(0)")
                for f0 in (8, 10, 12, 14):
                    for f in (f0, f0 + 1): rd(f, 96 + (f - f0) * 8 + (16 if f0 == 14 else 0))
                    A.e("s_waitcnt lgkmcnt(0)")
                    if f0 < 14:
                        for f in (f0, f0 + 1):
                            for q in range(2): A.e(f"ds_write_b128 v{V_WO}, {vr(96+(f-f0)*8+q*4,4)} offset:{LV(f) + q*1024}")
                        A.e("s_waitcnt lgkmcnt(0)")
                for f in (14, 15):
                    for q in range(2): A.e(f"ds_write_b128 v{V_WO}, {vr(112+(f-14)*8+q*4,4)} offset:{LV(f) + q*1024}")
                for q in range(12): A.e(f"ds_write_b128 v{V_WO}, {vr(48+q*4,4)} offset:{LO(0) + q*1024}")
                A.e("s_waitcnt lgkmcnt(0)")
    npf = {}
    park = lambda f: (160 if f < 10 else 224 - 32) + (f - 6) * 8
    if O.SST: sstamp(A, 15, 1)
    issue(0); issue(1)
    for st in range(8):
        A.e(f"s_waitcnt vmcnt({16 + npf[st+1] if st < 7 else 0})")
        if O.SST: sstamp(A, 15, 2 * st)
        read(st)
        if O.SST and st: sstamp(A, 15, 2 * st + 1)
        if st + 2 < 8: issue(st + 2)
        if O.VO1 and st == 6:
            for f in range(6, 14):
                for q in range(2): A.e(f"ds_write_b128 v{V_WO}, {ar(park(f)+q*4,4)} offset:{LV(f) + q*1024}")
                if f == 11: A.e("s_waitcnt lgkmcnt(0)")
            A.e("s_waitcnt lgkmcnt(0)")
        if O.VO1 and st == 7:
            for f in (14, 15):
                for q in range(2): A.e(f"ds_write_b128 v{V_WO}, {vr(96+(f-14)*8+q*4,4)} offset:{LV(f) + q*1024}")
            for q in range(12):
                A.e(f"ds_write_b128 v{V_WO}, {vr(48+q*4,4)} offset:{LO(0) + q*1024}")
                if q == 7: A.e("s_waitcnt lgkmcnt(2)")
    if O.SST: sstamp_out(A, 15, 57)
    w23 = A.newlabel("w23"); jn = A.newlabel("jn")
    A.e(f"""
    v_and_b32 v23, 1, v21
    v_mov_b32 v{V_IDX}, 0x4444
    v_mov_b32 v24, 0xeeee
    v_cmp_eq_u32 vcc, 1, v23
    v_cndmask_b32 v{V_IDX}, v{V_IDX}, v24, vcc
    v_lshlrev_b32 v23, 1, v22
    v_sub_u32 v23, v21, v23            ; lam - 2g
    v_mov_b32 v{V_SEL}, 0
    v_mov_b32 v24, 0x3f80
    v_cmp_eq_u32 vcc, 0, v23
    v_cndmask_b32 v{V_SEL}, v{V_SEL}, v24, vcc
    v_mov_b32 v24, 0x3f800000
    v_cmp_eq_u32 vcc, 1, v23
    v_cndmask_b32 v{V_SEL}, v{V_SEL}, v24, vcc
    s_and_b32 s64, s50, 1
    s_lshl_b32 s64, s64, 11
    v_lshl_add_u32 v{V_L4}, v20, 2, s64
    v_and_b32 v23, 7, v21              ; i
    v_lshrrev_b32 v24, 3, v21
    v_lshlrev_b32 v25, 8, v24
    v_lshl_add_u32 v25, v22, 6, v25
    v_lshl_add_u32 v{V_PRD}, v23, 2, v25   ; p store: (e>>3)*256 + 2g*32 + (e&7)*4
    v_lshrrev_b32 v25, 1, v22
    v_lshl_add_u32 v25, v25, 3, v23
    v_lshlrev_b32 v25, 5, v25
    v_and_b32 v26, 1, v22
    v_lshl_add_u32 v{V_OST}, v26, 4, v25   ; o store: ((g>>1)*8+i)*32 + (g&1)*16
    v_lshl_add_u32 v27, v22, 3, v23
    v_lshlrev_b32 v27, 4, v27          ; (g*8+i)*16
    s_mov_b32 s80, {f2u(SCL):#x}
    s_mov_b32 s81, 0xfffffffe
    s_mov_b32 s84, {HALF}
    s_mov_b32 s85, {HALF}
    s_mov_b32 s86, -1
    s_mov_b32 s87, 0
    s_cmp_gt_u32 s50, 1
    s_cselect_b32 s82, {HALFH}, -1
    s_cselect_b32 s83, {HALFH}, 0
    s_lshl_b32 m0, s50, 8
    s_cmp_gt_u32 s50, 1
    s_cbranch_scc1 {w23}
    v_lshl_add_u32 v{V_A1}, v24, 9, v27    ; S poll x4
    v_lshrrev_b32 v25, 1, v22
    v_lshl_add_u32 v25, v25, 3, v23
    v_lshlrev_b32 v25, 4, v25
    v_lshl_add_u32 v26, v26, 1, v24
    v_lshl_add_u32 v{V_A2}, v26, 2, v25
    v_add_u32 v{V_A2}, 1024 + 256, v{V_A2}
    v_cndmask_b32 v{V_OST}, 2.0, v{V_OST}, s[84:85]""")
    for i in range(8): A.e(f"v_mov_b32 v{V_C+i}, {'0x3f803f80' if i < 5 else 0}")
    A.e(f"s_branch {jn}")
    A.label(w23)
    A.e(f"""
    s_sub_u32 s64, s50, 2
    s_mul_i32 s64, s64, {4*RS}
    v_lshrrev_b32 v25, 1, v22
    v_mul_u32_u24 v25, {2*RS}, v25
    v_and_b32 v28, 1, v23
    v_mul_u32_u24 v28, {RS}, v28
    v_add_u32 v25, v25, v28
    v_lshrrev_b32 v28, 1, v23
    v_lshl_add_u32 v25, v28, 6, v25
    v_lshl_add_u32 v25, v26, 5, v25
    v_mul_u32_u24 v28, {T_K}, v24
    v_add3_u32 v{V_A1}, v25, v28, s64
    v_cndmask_b32 v{V_A2}, 2.0, v27, s[84:85]""")
    for i in range(4): A.e(f"v_mov_b32 v{V_C+i}, -1")
    A.label(jn)

def rec_bases(A):
    A.e(f"""
    s_lshl_b32 s64, s58, 14
    s_lshl_b32 s65, s50, 12
    s_add_u32 s70, s64, s65
    s_add_u32 s70, s70, {R_PL}
    s_lshl_b32 s65, s59, 9
    s_add_u32 s71, s64, s65
    s_add_u32 s71, s71, {R_PL}
    s_xor_b32 s64, s58, 1
    s_lshl_b32 s64, s64, 15
    s_lshr_b32 s65, s50, 1
    s_lshl_b32 s65, s65, 14
    s_add_u32 s64, s64, s65
    s_and_b32 s65, s50, 1
    s_lshl_b32 s65, s65, 12
    s_add_u32 s64, s64, s65
    s_add_u32 s72, s64, s67
    s_add_u32 s72, s72, {R_PR}
    s_lshl_b32 s64, s58, 15
    s_lshr_b32 s65, s59, 4
    s_lshl_b32 s65, s65, 14
    s_add_u32 s64, s64, s65
    s_and_b32 s65, s59, 15
    s_lshl_b32 s65, s65, 9
    s_add_u32 s64, s64, s65
    s_add_u32 s73, s64, s67
    s_add_u32 s73, s73, {R_PR}
    s_cmp_eq_u32 s50, 1
    s_cselect_b32 s54, 2048 - 256, 0
    s_sub_u32 s71, s71, s54
    s_lshl_b32 s64, s58, 15
    s_lshl_b32 s65, s50, 13
    s_add_u32 s74, s64, s65
    s_add_u32 s74, s74, {R_O}           ; O gather
    s_lshl_b32 s64, s57, 10
    s_and_b32 s65, s50, 1
    s_lshl_b32 s65, s65, 9
    s_cmp_gt_u32 s50, 1
    s_cselect_b32 s65, 0, s65
    s_add_u32 s75, s64, s65
    s_add_u32 s75, s75, {R_O}
    s_lshl_b32 s64, s57, 12
    s_and_b32 s65, s64, 0xffffe000
    s_cmp_eq_u32 s50, 3
    s_cselect_b32 s66, 1536, 0
    s_add_u32 s64, s64, s66
    s_cmp_gt_u32 s50, 1
    s_cselect_b32 s76, s64, s65
    s_add_u32 s76, s76, {R_SX}
    s_lshl_b32 s64, s57, 14
    s_and_b32 s65, s50, 1
    s_lshl_b32 s66, s65, 11
    s_add_u32 s77, s64, s66
    s_cmp_gt_u32 s50, 1
    s_cselect_b32 s66, 0, 4096
    s_add_u32 s77, s77, s66
    s_add_u32 s77, s77, {QKV}
    s_lshl_b32 s66, s65, 9
    s_add_u32 s66, s66, 1024 + 128
    s_lshl_b32 s65, s65, 7
    s_cmp_gt_u32 s50, 1
    s_cselect_b32 s65, s65, s66
    s_add_u32 s78, s64, s65
    s_add_u32 s78, s78, {KVM - 128}
    s_lshl_b32 s64, s57, 6
    s_add_u32 s68, s64, s67
    s_add_u32 s69, s68, s64
    s_add_u32 s69, s69, {F_KVM}
    s_lshl_b32 s64, s50, 14
    s_add_u32 s69, s69, s64
    s_and_b32 s64, s50, 1
    s_lshl_b32 s64, s64, 11
    s_sub_u32 s69, s69, s64
    s_add_u32 s68, s68, {F_QKV}
    s_mov_b32 s79, 0
    s_mov_b32 s91, 0""")

def segoff(A, dst, sstep, add, base):
    A.e(f"""
    s_add_u32 s64, s{sstep}, {add}
    {'s_mov_b32 s64, 0' if (O.FIXX and base == 77) or (O.FIXM and base == 78) else ''}
    s_lshl_b32 s65, s64, 12
    s_and_b32 s65, s65, 0x2000
    s_xor_b32 s65, s65, s67
    {'s_xor_b32 s65, s65, 0x2000' if (O.KPAR and base == 78) else ''}
    s_lshl_b32 s64, s64, 20
    s_add_u32 s65, s65, s64
    s_add_u32 s{dst}, s65, s{base}""")

def rec_loop(A, lst, fin, nsteps=64):
    tail = []
    def stamp(i):
        if isinstance(i, str):
            if i not in O.XS: return
            i = O.XS[i]
        elif i in O.XS.values(): return
        if O.PROF in (1, 2, 5): A.e(f"{'s_memtime' if O.PROF != 1 else 's_memrealtime'} s[{2*i+24}:{2*i+25}]")
    def trace():
        if O.PROF == 6:
            A.e(f"s_memtime s[24:25]\ns_memrealtime s[26:27]\ns_waitcnt lgkmcnt(0)\nv_writelane_b32 v{TA}, s24, 0\nv_writelane_b32 v{TA}, s26, 1\nv_writelane_b32 v{TA}, s90, 2")
            A.e(f"s_lshl_b32 s64, s79, 6\ns_add_u32 s64, s64, s16\nv_lshrrev_b32 v{TB}, 2, v{V_L16}\ns_mov_b64 exec, 0xf\nbuffer_store_dword v{TA}, v{TB}, s[20:23], s64 offen\ns_mov_b64 exec, -1")
            return 6
        if O.PROF != 5: return 0
        A.e("s_waitcnt lgkmcnt(0)")
        for i in range(1, 13): A.e(f"v_writelane_b32 v{TA}, s{24+2*i}, {i}")
        A.e(f"v_writelane_b32 v{TA}, s56, 13\nv_writelane_b32 v{TA}, s51, 14")
        A.e(f"s_lshl_b32 s64, s79, 6\ns_add_u32 s64, s64, s16\nv_lshrrev_b32 v{TB}, 2, v{V_L16}\ns_mov_b64 exec, 0xffff\nbuffer_store_dword v{TA}, v{TB}, s[20:23], s64 offen\ns_mov_b64 exec, -1")
        return 8
    def cnt(k):
        if O.PROF and O.PROF != 6: A.e(f"s_add_u32 s56, s56, {1 << (8*k)}" if k < 4 else "s_add_u32 s51, s51, 1")
    def chk(b, n, nb=1):
        r = AF + b * 4
        o = [f"s_waitcnt vmcnt({n})", f"v_max3_u32 v{TA}, v{r}, v{r+1}, v{r+2}"]
        for q in range(2 * (nb - 1)): o += [f"v_max3_u32 v{TA}, v{TA}, v{r+3+2*q}, v{r+4+2*q}"]
        o += [f"v_max_u32 v{TA}, v{TA}, v{r+4*nb-1}", f"v_cmp_eq_u32 vcc, -1, v{TA}"]
        return o
    def flagwait(add, ret=False):
        ok = A.newlabel("fok"); lp = A.newlabel("flp")
        out = [f"s_add_u32 s64, s79, {add}", f"s_cmp_gt_u32 s91, s64\ns_cbranch_scc0 {lp}\n{ok}:"]
        if not ret:
            for x in out: A.e(x)
        def d():
            A.label(lp)
            A.e(f"""
            buffer_load_dword v{TA}, off, s[20:23], s68 sc1
            s_waitcnt vmcnt(0)
            v_readfirstlane_b32 s91, v{TA}
            s_cmp_gt_u32 s91, s64
            s_cbranch_scc1 {ok}
            s_sleep 2
            s_sub_u32 s90, s90, 1
            s_cmp_gt_i32 s90, 0
            s_cbranch_scc1 {lp}
            s_branch {ok}""")
        tail.append(d)
        return out
    smq = lambda t, b: f"v_smfmac_f32_16x16x64_bf16 {vr(ACC+t*4,4)}, {vr(AF+b*4,4)}, {ar(((b&3)*8+t)*8,8)}, v{V_IDX}"
    def vreg(f): return WVR + f * 8 if f < NVR else ACC + ((f - NVR) & 3) * 8
    smv = lambda i: f"v_smfmac_f32_16x16x64_bf16 {vr(ACC+32+((i>>1)&3)*4,4)}, {vr(AF+((i>>3)+4*(i&1))*4,4)}, {vr(vreg(i>>1),8)}, v{V_IDX}"
    rdV = lambda f: [f"ds_read_b128 {vr(vreg(f)+q*4,4)}, v{V_WO} offset:{LV(f)+q*1024}" for q in range(2)]
    vfill = [x for f in range(NVR, NVR + 4) for x in rdV(f)]
    def epi_v(t):
        a = ACC + 32 + t * 4
        return [f"v_add_f32 v{a}, v{a}, v{a+1}", f"v_add_f32 v{a+2}, v{a+2}, v{a+3}", f"v_cvt_pk_bf16_f32 v{a}, v{a}, v{a+2}",
                f"ds_write_addtid_b32 v{a} offset:{T_V + t*1024}"]
    def vstream(start, fillpos, extra=None, post=[]):
        out = []; extra = extra or {}
        for i in range(start, 32):
            f, r = i >> 1, i & 1
            if f >= NVR and r == 0: out.append(f"s_waitcnt lgkmcnt({2*min(3, 15-f)})")
            out.append(smv(i))
            if fillpos is not None and fillpos <= i < fillpos + 4: out += vfill[2 * (i - fillpos):2 * (i - fillpos) + 2]
            if f >= NVR and r == 1 and f + 4 < 16: out += rdV(f + 4)
            out += extra.get(i, [])
            if f"v{i}" in O.XS and O.PROF in (1, 2, 5): out.append(f"s_memtime s[{2*O.XS[f'v{i}']+24}:{2*O.XS[f'v{i}']+25}]")
            if O.EW == 0:
                if i == 30: out += epi_v(0)[:2]
                if i == 31: out += epi_v(0)[2:]
            else:
                e0 = epi_v(0); e1 = epi_v(1)
                out += {28: e0[:1], 29: e0[1:2], 30: e0[2:3], 31: e0[3:] + e1[:1]}.get(i, [])
        out += post
        if O.EW:
            out += epi_v(1)[1:3] + epi_v(2)[:3] + epi_v(3)[:3] + [epi_v(t)[3] for t in (1, 2, 3)]
        else:
            for t in range(1, 4): out += epi_v(t)
        return out
    ldA = lambda b, r=None: f"buffer_load_dwordx4 {vr(AF+b*4 if r is None else r,4)}, v{V_L16}, s[20:23], s{92 + (b>>2)} offen offset:{(b&3)*1024} sc1"
    def retry(b, br, go, rt, lds, n, k, nb=1):
        def d():
            A.label(rt)
            cnt(k)
            A.e(f"s_sub_u32 s90, s90, 1\ns_cmp_gt_i32 s90, 0\ns_cbranch_scc0 {go}")
            for x in lds: A.e(x)
            for x in chk(b, n, nb): A.e(x)
            A.e(f"s_branch {br}")
        tail.append(d)
    def epi_qk(t):
        a = ACC + t * 4; off = (T_Q if t < 4 else T_K) + (t & 3) * 2 * RS
        return [f"v_add_f32 v{a}, v{a}, v{a+1}", f"v_add_f32 v{a+2}, v{a+2}, v{a+3}",
                f"ds_write_addtid_b32 v{a} offset:{off}", f"ds_write_addtid_b32 v{a+2} offset:{off+RS}"]
    def weave(W, fin_idx, E, pre, per=4):
        seq = []; tm = 0; fin_t = {}
        va = []; oth = list(pre); nxt = 0
        def emit(x):
            nonlocal tm
            seq.append(x); tm += MFMA_WS[0] if "smfmac" in x else 1
        wr_ready = []
        for k, m in enumerate(W):
            emit(m)
            if k in fin_idx: fin_t[fin_idx.index(k)] = tm
            no_ = O.WN
            while no_ > 0 and wr_ready: emit(wr_ready.pop(0)); no_ -= 1
            while no_ > 0 and oth: emit(oth.pop(0)); no_ -= 1
            while nxt < len(E) and nxt in fin_t and tm - fin_t[nxt] >= O.WD:
                va += [(E[nxt][0], E[nxt][2]), (E[nxt][1], E[nxt][3])]; nxt += 1
            for _ in range(O.WV):
                if va: a_, w_ = va.pop(0); emit(a_); wr_ready.append(w_)
        for x in oth: emit(x)
        while nxt < len(E): va += [(E[nxt][0], E[nxt][2]), (E[nxt][1], E[nxt][3])]; nxt += 1
        for x in wr_ready: emit(x)
        for a_, w_ in va: emit(a_)
        for a_, w_ in va: emit(w_)
        for x in seq: A.e(x)
    def chkr(r):
        return [f"v_max3_u32 v{TA}, v{r}, v{r+1}, v{r+2}", f"v_max_u32 v{TA}, v{TA}, v{r+3}", f"v_cmp_eq_u32 vcc, -1, v{TA}"]
    def deferred(blocks, ld, work, back, k, temps, delta, first=True):
        cnt(k)
        for bb in blocks:
            sk = A.newlabel("dsk")
            if len(blocks) > 1: A.e(f"s_bitcmp1_b32 s55, {bb}\ns_cbranch_scc0 {sk}")
            A.e(ld(bb, AF + 4 * bb))
            A.label(sk)
        for bb in blocks:
            sk = A.newlabel("dsk"); go = A.newlabel("dgo"); lp = A.newlabel("dlp")
            T = [AF + 4 * bb] + temps(bb); n = len(T)
            A.e(f"s_bitcmp1_b32 s55, {bb}\ns_cbranch_scc0 {sk}")
            A.e(f"s_waitcnt vmcnt({n-1})")
            for x in chkr(T[0]): A.e(x)
            A.e(f"s_cbranch_vccz {go}")
            for j in range(1, n):
                A.e(f"s_nop {4*delta(bb)-1}" if delta(bb) <= 4 else f"s_nop 15\ns_nop {4*(delta(bb)-4)-1}")
                A.e(ld(bb, T[j]))
            A.label(lp)
            if O.PROF and O.PROF != 6: A.e("s_add_u32 s51, s51, 0x10000")
            cp = [A.newlabel("dcp") for _ in T]
            for j in range(n):
                A.e(f"s_waitcnt vmcnt({n-1})")
                for x in chkr(T[j]): A.e(x)
                A.e(f"s_cbranch_vccz {go if j == 0 else cp[j]}")
                A.e(ld(bb, T[j]))
            A.e(f"s_sub_u32 s90, s90, 1\ns_cmp_gt_i32 s90, 0\ns_cbranch_scc1 {lp}\ns_branch {go}")
            for j in range(1, n):
                A.label(cp[j])
                for i in range(4): A.e(f"v_mov_b32 v{T[0]+i}, v{T[j]+i}")
                A.e("s_nop 1")
                if j < n - 1: A.e(f"s_branch {go}")
            A.label(go)
            for x in work(bb): A.e(x)
            A.label(sk)
        A.e(f"s_mov_b32 s55, 0\ns_branch {back}")
    dummy = f"buffer_load_dword v{TB}, off, s[20:23], s92 sc1"
    def phaseA(tiles, win1, nv, prof):
        rsh = O.RSH
        after = {c: [] for c in range(8)}
        TJ = O.TMJ
        pre_r = []
        for j in range(4):
            if O.RP[j] < 0: pre_r.append(4 + j)
            else: after[O.RP[j]].append(4 + j)
        for x in pre_r: A.e(ldA(x))
        rq = O.RQ and len(tiles) == 8
        order = [0, 1, 2, 3] + pre_r; cntn = {}; pref = {}
        for b in range(TJ + 1):
            cntn[b] = len(order) - 1 - order.index(b if b < TJ else 7)
            if b < TJ: order.append(("d", b))
            order += after[b]
            if b == O.KB and not O.NOKVM: order += [("k", 0), ("k", 1)][:1 if O.KE else 2]
            pref[b] = list(order)
        TL = lambda b: tiles[:4] if (rq and b >= 4) else tiles
        W = {b: [smq(t, b) for t in TL(b)] for b in range(8)}
        late = {b: len(W[b]) >= 8 for b in range(8)}
        seg = {b: A.newlabel("seg") for b in range(8)}; seg2 = {b: A.newlabel("segb") for b in range(8)}
        fl = {b: A.newlabel("fl") for b in range(8)}; fl2 = {b: A.newlabel("flb") for b in range(8)}
        slow = A.newlabel("slowA"); done = A.newlabel("doneA")
        xst = lambda b: ([kvm_store, flg_store] if not O.KE else [flg_store] if O.KE in (1, 3) else [kvm_store]) if (b == O.KB and not O.NOKVM) else []
        assert 3 <= O.KB < TJ
        def body(b, nchk, tgt, lt):
            w = W[b]; n = len(w)
            pend = [dummy] + [ldA(x) for x in after[b]] + xst(b) if b < 7 else []
            if nchk is None: pend = []
            c = nchk
            if n >= 8:
                nvv = len(c) - 1
                p = n - O.CKB[b] - (nvv - 3)
                cq = list(c)
                for k in range(n - (1 if lt else 0)):
                    A.e(w[k])
                    for _ in range(2 if len(pend) > p - k else 1):
                        if pend: A.e(pend.pop(0))
                    if k == p - 1:
                        while pend: A.e(pend.pop(0))
                        A.e(cq.pop(0))
                    if k >= p - 1 and cq: A.e(cq.pop(0))
                for x in cq: A.e(x)
            else:
                p = 1
                A.e(w[0])
                while pend: A.e(pend.pop(0))
                for x in c[:2] + [w[p]] + c[2:]: A.e(x)
                for x in w[p + 1:n]: A.e(x)
            A.e(f"s_cbranch_vccnz {tgt}")
        for x in chk(0, cntn[0]): A.e(x)
        A.e(kvm_addr.split("\n")[1] if O.KE in (1, 3) else kvm_addr)
        A.e(f"s_cbranch_vccnz {fl2[0]}")
        nchk = lambda b: chk(b, cntn[b], 1 if b < TJ else 8 - TJ)
        for b in range(TJ + 1):
            A.label(seg[b])
            if b > 0 and late[b - 1]: A.e(W[b - 1][-1])
            A.label(seg2[b])
            if prof and b in (0, 4, TJ): stamp({0: 2, 4: 3, TJ: 4}[b])
            if b < TJ: body(b, nchk(b + 1), fl[b + 1], late[b])
            else:
                V = [smv(i) for i in range(nv)]
                w = []; fin_idx = []
                for t0 in range(0, len(tiles), O.TG):
                    for bb in range(TJ, 8):
                        for t in tiles[t0:t0 + O.TG]: w.append(smq(t, bb))
                    fin_idx += list(range(len(w) - O.TG, len(w)))
                weave(w + V, fin_idx, [epi_qk(t) for t in tiles], win1, O.PER)
        A.label(done)
        back = seg2[TJ]
        def d():
            TM = [XN, XN + 4]
            dfl = {h: A.newlabel("dfl") for h in range(1, 4)}; dseg = {h: A.newlabel("dseg") for h in range(1, 4)}
            lap2 = A.newlabel("lap2"); lfb = A.newlabel("lfb"); Ldone = A.newlabel("Ldone")
            o3 = pref[3]; yd = lambda h: len(o3) - 1 - o3.index(("d", h))
            for b in range(TJ + 1):
                A.label(fl[b])
                if b > 0 and late[b - 1]: A.e(W[b - 1][-1])
                A.label(fl2[b])
                cnt(b >> 2)
                if b < 4:
                    A.e(ldA(b)); A.e(f"s_mov_b32 s55, {1 << b}")
                    for x in after[b]: A.e(ldA(x))
                    for x in xst(b): A.e(x)
                    rp = chk(b, yd(b))
                    if b < 3:
                        for x in chk(b + 1, cntn[b + 1]): A.e(x)
                        A.e(f"s_cbranch_vccnz {dfl[b+1]}")
                        for h in range(b + 1, 4):
                            if h < 3: body(h, chk(h + 1, cntn[h + 1]), dfl[h + 1], False)
                            else: body(h, rp, lfb, False)
                    else:
                        for x in rp: A.e(x)
                        A.e(f"s_cbranch_vccnz {lfb}")
                    A.e("s_mov_b32 s55, 0")
                    w = W[b]; c = nchk(4); p = max(1, len(w) - O.CK)
                    for x in w[:p] + c + w[p:]: A.e(x)
                    A.e(f"s_cbranch_vccnz {fl2[4]}\ns_branch {seg2[4]}")
                elif b < 7:
                    k = 8 - b
                    if b < TJ: A.e(ldA(b))
                    A.e(f"s_mov_b32 s55, {(0xff << b) & 0xff}")
                    o = list(pref[b])
                    if b <= O.KB:
                        for x in xst(O.KB): A.e(x)
                        if b < O.KB and not O.NOKVM: o += [("k", 0), ("k", 1)][:1 if O.KE else 2]
                    lp = A.newlabel("rot")
                    def visit(h, n):
                        dn = A.newlabel("rdn"); fa = A.newlabel("rfa"); nx = A.newlabel("rnx")
                        A.e(f"s_bitcmp1_b32 s55, {h}\ns_cbranch_scc0 {dn}")
                        for x in chk(h, n): A.e(x)
                        A.e(f"s_cbranch_vccnz {fa}")
                        A.e(dummy)
                        A.e(f"s_bitset0_b32 s55, {h}")
                        if h < TJ:
                            for x in W[h]: A.e(x)
                        A.e(f"s_cmp_eq_u32 s55, 0\ns_cbranch_scc1 {back}\ns_branch {nx}")
                        A.label(dn)
                        A.e(dummy); A.e(f"s_branch {nx}")
                        A.label(fa)
                        A.e(ldA(h))
                        A.label(nx)
                    for h in range(b + 1 if b < TJ else b, 8):
                        visit(h, len(o) - 1 - o.index(h)); o.append(("v", h))
                    A.label(lp)
                    if O.PROF and O.PROF != 6: A.e("s_add_u32 s51, s51, 0x10000")
                    for h in range(b, 8): visit(h, k - 1)
                    A.e(f"s_sub_u32 s90, s90, 1\ns_cmp_gt_i32 s90, 0\ns_cbranch_scc1 {lp}\ns_mov_b32 s55, 0\ns_branch {back}")
                else:
                    A.e(f"s_mov_b32 s55, 0x80\ns_branch {slow}")
            for h in range(1, 4):
                A.label(dfl[h])
                A.e(ldA(h)); A.e(f"s_bitset1_b32 s55, {h}")
                for x in after[h]: A.e(ldA(x))
                for x in xst(h): A.e(x)
                if h < 3:
                    for x in chk(h + 1, cntn[h + 1]): A.e(x)
                    A.e(f"s_cbranch_vccnz {dfl[h+1]}\ns_branch {dseg[h+1]}")
                else: A.e(f"s_branch {lap2}")
            for h in range(2, 4):
                A.label(dseg[h])
                if h < 3: body(h, chk(h + 1, cntn[h + 1]), dfl[h + 1], False)
                else:
                    pend = [dummy] + [ldA(x) for x in after[h]] + xst(h)
                    for x in W[h]:
                        A.e(x)
                        if pend: A.e(pend.pop(0))
                    for x in pend: A.e(x)
            A.label(lap2)
            cnt(4)
            for h in range(4):
                sk = A.newlabel("l2s"); fa = A.newlabel("l2f")
                A.e(f"s_bitcmp1_b32 s55, {h}\ns_cbranch_scc0 {sk}")
                for x in chk(h, yd(h)): A.e(x)
                A.e(f"s_cbranch_vccnz {sk}")
                A.e(f"s_bitset0_b32 s55, {h}")
                for x in W[h]: A.e(x)
                A.label(sk)
            A.e(f"s_cmp_eq_u32 s55, 0\ns_cbranch_scc0 {lfb}")
            A.label(Ldone)
            for x in nchk(4): A.e(x)
            A.e(f"s_cbranch_vccnz {fl2[4]}\ns_branch {seg2[4]}")
            A.label(lfb)
            deferred(range(4), ldA, lambda bb: W[bb], Ldone, 4, lambda bb: TM[:O.NPL - 1], lambda bb: O.DPL, False)
            A.label(slow)
            deferred([7], ldA, lambda bb: [], back, 4, lambda bb: TM[:O.NPR - 1], lambda bb: O.DPR, False)
        tail.append(d)
    def zero(lo=0):
        for i in range(8): A.e(f"v_mov_b32 v{XC+i}, v{XN+i}")
        for i in range(lo, 48): A.e(f"v_mov_b32 v{ACC+i}, 0")
    def mzero():
        A.e(f"v_mov_b32 v{TB}, 0")
        for i in range(3): A.e(f"v_mfma_f32_16x16x1_4b_f32 {vr(ACC+16*i,16)}, v{TB}, v{TB}, 0")
    def s_frag():
        for c in range(2):
            for w in range(4): A.e(f"ds_read_b128 {vr(ACC+(c*4+w)*4,4)}, v{V_A1} offset:{w*256 + c*16}")
    def s_frag2():
        for c in range(2):
            b = ACC + c * 16
            A.e(f"s_waitcnt lgkmcnt({6-4*c})\nv_pk_add_f32 {vr(b,2)}, {vr(b,2)}, {vr(b+4,2)}\nv_pk_add_f32 {vr(b+2,2)}, {vr(b+2,2)}, {vr(b+6,2)}")
            A.e(f"s_waitcnt lgkmcnt({4-4*c})\nv_pk_add_f32 {vr(b+8,2)}, {vr(b+8,2)}, {vr(b+12,2)}\nv_pk_add_f32 {vr(b+10,2)}, {vr(b+10,2)}, {vr(b+14,2)}")
            A.e(f"v_pk_add_f32 {vr(b,2)}, {vr(b,2)}, {vr(b+8,2)}\nv_pk_add_f32 {vr(b+2,2)}, {vr(b+2,2)}, {vr(b+10,2)}")
            A.e(f"v_cvt_pk_bf16_f32 v{KEEP+2*c}, v{b}, v{b+1}\nv_cvt_pk_bf16_f32 v{KEEP+2*c+1}, v{b+2}, v{b+3}")
    def vm_read():
        for tt in range(2):
            for h in range(2): A.e(f"ds_read2st64_b32 {vr(KEEP+tt*4+2*h,2)}, v{V_L4} offset0:{(T_V + tt*1024)//256 + 2*h} offset1:{(T_V + tt*1024)//256 + 2*h + 1}")
    def vm_sum():
        for i in range(4): A.e(f"v_mov_b32 v{PK+i}, v{V_SEL}")
        for tt in range(2): A.e(f"v_mfma_f32_16x16x32_bf16 {vr(KEEP+4*tt,4)}, {vr(PK,4)}, {vr(KEEP+4*tt,4)}, 0")
        for i in range(4): A.e(f"v_cvt_pk_bf16_f32 v{KEEP+i}, v{KEEP+2*i}, v{KEEP+2*i+1}")
    kvm_store = f"buffer_store_dwordx4 {vr(KEEP,4)}, v{PK}, s[20:23], s101 offen sc1"
    flg_store = f"buffer_store_dword v{VF}, v{PK+1}, s[20:23], s69 offen sc1"
    kvm_addr = f"v_cndmask_b32 v{PK}, 2.0, v{V_L16}, s[82:83]\nv_cndmask_b32 v{PK+1}, 2.0, v{V_L4}, s[86:87]"
    loop = A.newlabel("loop"); last = A.newlabel("last"); np0 = A.newlabel("np0"); z1 = A.newlabel("z1"); loop0 = A.newlabel("loop0")
    A.e(f"""
    s_mov_b32 s55, 0
    s_cmp_lg_u32 s50, 0
    s_cbranch_scc1 {np0}
    v_mov_b32 v{PK}, 0
    v_mov_b32 v{PK+1}, 0
    s_cmp_lg_u32 s58, 0
    s_cbranch_scc1 {z1}
    v_lshrrev_b32 v{TA}, 6, v{V_L4}
    v_lshlrev_b32 v{TA}, 12, v{TA}
    v_bfe_u32 v{TB}, v{V_L4}, 1, 5
    v_add_u32 v{TA}, v{TA}, v{TB}
    s_lshl_b32 s64, s59, 6
    buffer_load_ushort v{PK}, v{TA}, s[44:47], s64 offen
    buffer_load_ushort v{PK+2}, v{TA}, s[44:47], s64 offen offset:32
    buffer_load_ushort v{PK+1}, v{TA}, s[44:47], s64 offen offset:2048
    buffer_load_ushort v{PK+3}, v{TA}, s[44:47], s64 offen offset:2080
    s_waitcnt vmcnt(0)
    v_lshl_or_b32 v{PK}, v{PK+2}, 16, v{PK}
    v_lshl_or_b32 v{PK+1}, v{PK+3}, 16, v{PK+1}
    v_min_u32 v{PK}, s81, v{PK}
    v_min_u32 v{PK+1}, s81, v{PK+1}""")
    A.label(z1)
    def pstore(sr_, sl_):
        A.e(f"buffer_store_dword v{PK}, v{V_PRD}, s[20:23], s{sl_} offen {lst}\nbuffer_store_dword v{PK+1}, v{V_PRD}, s[20:23], s{sl_} offen offset:32 {lst}")
        A.e(f"buffer_store_dword v{PK}, v{V_PRD}, s[20:23], s{sr_} offen sc1\nbuffer_store_dword v{PK+1}, v{V_PRD}, s[20:23], s{sr_} offen offset:32 sc1")
    pstore(73, 71)
    A.label(np0)
    A.e(f"""
    v_lshrrev_b32 v{TA}, 2, v{V_L16}
    v_bfe_u32 v{TB}, v{TA}, 5, 1
    v_mul_u32_u24 v{TB}, {PODD - 32}, v{TB}
    s_and_b32 s64, s50, 1
    s_lshl_b32 s64, s64, 5
    v_add3_u32 v{V_PRD}, v{TA}, v{TB}, s64""")
    flagwait(0)
    segoff(A, 99, 79, 0, 77)
    A.e(f"""
    buffer_load_dwordx4 {vr(XN,4)}, v{V_L16}, s[20:23], s99 offen
    buffer_load_dwordx4 {vr(XN+4,4)}, v{V_L16}, s[20:23], s99 offen offset:1024
    s_waitcnt vmcnt(0)
    s_mov_b32 s92, s70
    s_mov_b32 s93, s72
    s_mov_b32 s94, s76
    s_add_u32 s95, s94, 4096
    s_mov_b32 s96, s74
    s_add_u32 s97, s96, 4096
    s_mov_b32 s98, s75
    s_barrier""")
    zero()
    A.e(f"s_cmp_gt_u32 s50, 1\ns_cbranch_scc0 {loop0}x")
    ja = A.newlabel("ja")
    if O.LAL >= 0: A.lines += [".p2align 6"] + ["    s_nop 0"] * O.LAL
    A.label(loop)
    def early(n, pre=0):
        if O.KE == 3:
            A.e(f"s_max_u32 s66, s79, 1\ns_sub_u32 s66, s66, 1\nv_cndmask_b32 v{VF}, 2.0, v{V_L16}, s[82:83]")
            segoff(A, 101, 66, 0, 78)
            delay(A, pre)
            A.e(f"buffer_store_dwordx4 {vr(KEEP,4)}, v{VF}, s[20:23], s101 offen sc1")
            delay(A, max(0, n - O.KJD - pre)); return
        if O.KJ > 63: delay(A, n); return
        e = A.newlabel("kje"); b = A.newlabel("kjb")
        A.e(f"s_cmp_gt_u32 s79, {O.KJ}\ns_cbranch_scc1 {e}")
        delay(A, n); A.label(b)
        def d():
            A.label(e)
            A.e(f"s_sub_u32 s66, s79, 1\nv_cndmask_b32 v{VF}, 2.0, v{V_L16}, s[82:83]")
            segoff(A, 101, 66, 0, 78)
            A.e(f"buffer_store_dwordx4 {vr(KEEP,4)}, v{VF}, s[20:23], s101 offen sc1")
            delay(A, max(0, n - O.KJD))
            A.e(f"s_branch {b}")
        tail.append(d)
    mzero()
    early(O.DL - 6 - trace(), O.KP23)
    stamp(0)
    def lloads():
        for b in range(4):
            A.e(ldA(b))
            if b < 3 and O.LI: A.e(f"s_nop {O.LI-1}")
    lloads()
    for i in range(8): A.e(f"v_mov_b32 v{XC+i}, v{XN+i}")
    A.e(f"s_branch {ja}")
    A.label(loop0 + "x")
    mzero()
    early(O.DL0 - 6 - trace())
    stamp(0)
    lloads()
    A.label(ja)
    A.e(f"v_mov_b32 v{VF}, s79" if O.KE in (1, 3) else f"s_max_u32 s66, s79, 1\ns_sub_u32 s66, s66, 1" + (f"\ns_cmp_gt_u32 s79, {O.KJ}\ns_cselect_b32 s64, s79, s66\nv_mov_b32 v{VF}, s64" if O.KJ < 64 else f"\nv_mov_b32 v{VF}, s66" if O.KE == 0 else ""))
    fl2 = [f"v_mov_b32 v{TA}, s79", "s_waitcnt vmcnt(3)", f"buffer_store_dword v{TA}, v{PK+1}, s[20:23], s69 offen sc1"] if O.KE == 2 else []
    if O.MEAS: A.e("s_cmp_eq_u32 s79, 9\ns_cselect_b32 s61, s62, s61\ns_memtime s[62:63]")
    if O.KE != 3: segoff(A, 101, 79 if O.KE == 1 else 66, 0, 78)
    A.e(f"s_cmp_eq_u32 s79, {nsteps-1}\ns_cbranch_scc1 {last}")
    if O.PROF in (1, 2, 5): A.e("s_waitcnt lgkmcnt(0)\ns_mov_b32 s26, s24")
    fw = flagwait(1, O.LFW)
    segoff(A, 99, 79, 1, 77)
    win1 = (fw if O.LFW else []) + [f"buffer_load_dwordx4 {vr(XN,4)}, v{V_L16}, s[20:23], s99 offen", f"buffer_load_dwordx4 {vr(XN+4,4)}, v{V_L16}, s[20:23], s99 offen offset:1024",
            f"buffer_load_dword v{VF}, off, s[20:23], s68 sc1",
            f"s_add_u32 s64, s79, 2", f"s_and_b32 s64, s64, {XR-1}", f"s_lshl_b32 s100, s64, 19"]
    if O.NOX: win1 = win1[3:]
    delay(A, O.WL)
    phaseA(list(range(8)), win1, O.NV1, True)
    A.e("s_waitcnt lgkmcnt(0)\ns_barrier")
    stamp(5)
    w23 = A.newlabel("w23"); ogo = A.newlabel("ogo")
    w01 = A.newlabel("w01")
    A.e(f"s_cmp_gt_u32 s50, 1\ns_cbranch_scc0 {w01}" if O.SWP else f"s_cmp_gt_u32 s50, 1\ns_cbranch_scc1 {w23}")
    isw0 = len(A.lines)
    if O.SWP: A.label(w01)
    nf = A.newlabel("nf")
    A.e(smv(O.NV1))
    TSET = [([AF, AF + 16, AF + 4, AF + 20], PK), ([AF + 8, AF + 24, AF + 12, AF + 28], ACC + 28)]
    def ldSet(k):
        TS, M = TSET[k]
        o = [f"buffer_load_dwordx4 {vr(TS[p],4)}, v{V_A1}, s[20:23], s{94+(p>>1)} offen offset:{(p&1)*1536} sc1" for p in range(4)]
        return o + [f"buffer_load_dword v{M+p}, v{V_A2}, s[20:23], s{94+(p>>1)} offen offset:{(p&1)*1536} sc1" for p in range(4)]
    ldS = ldSet(0)
    assert O.DS >= 16
    ex = {}; restS = []
    if fl2: ex[O.NV1 + O.KF] = fl2[:1]; ex[O.NV1 + O.KF + 1] = fl2[1:]
    for k, x in enumerate(ldS):
        if O.DS + k < 32: ex[O.DS + k] = [x]
        else: restS.append(x)
    if O.DS <= 32:
        for x in vstream(O.NV1 + 1, O.VPF, ex, restS): A.e(x)
    else:
        for x in vstream(O.NV1 + 1, O.VPF, ex): A.e(x)
        delay(A, O.DS - 32)
        for x in restS: A.e(x)
    stamp(6)
    if O.S2:
        delay(A, O.DS2)
        for x in ldSet(1): A.e(x)
    stamp("S1iss")
    if O.B2POS == 0: A.e("s_waitcnt lgkmcnt(0)\ns_barrier"); vm_read()
    sp = A.newlabel("sp"); sok = A.newlabel("sok"); srt = A.newlabel("srt")
    mx, t_ = TA, TB
    T = AF; T4 = PK
    DPP8 = "row_ror:8 row_mask:0xf bank_mask:0xf"
    def schk(k, extra):
        TS, M = TSET[k]; U = TS[2]; X = TS[0]
        A.e(f"""
        s_waitcnt vmcnt({6+extra})""")
        if k == 0: stamp("Sarr")
        A.e(f"""
        v_pk_add_f32 {vr(X,2)}, {vr(X,2)}, {vr(TS[1],2)}
        v_pk_add_f32 {vr(X+2,2)}, {vr(X+2,2)}, {vr(TS[1]+2,2)}
        s_waitcnt vmcnt({4+extra})""")
        if k == 0: stamp("Sarr2")
        A.e(f"""
        v_pk_add_f32 {vr(U,2)}, {vr(U,2)}, {vr(TS[3],2)}
        v_pk_add_f32 {vr(U+2,2)}, {vr(U+2,2)}, {vr(TS[3]+2,2)}
        v_pk_add_f32 {vr(X,2)}, {vr(X,2)}, {vr(U,2)}
        v_pk_add_f32 {vr(X+2,2)}, {vr(X+2,2)}, {vr(U+2,2)}
        v_max3_f32 v{mx}, v{X}, v{X+1}, v{X+2}
        v_pk_add_f32 {vr(U,2)}, {vr(X,2)}, {vr(X+2,2)}
        s_waitcnt vmcnt({extra})""")
        if k == 0: stamp("Sarr3")
        A.e(f"""
        v_pk_add_f32 {vr(M,2)}, {vr(M,2)}, {vr(M+2,2)}
        v_add_f32 v{M}, v{M}, v{M+1}
        v_max3_f32 v{mx}, v{mx}, v{X+3}, v{M}
        v_add_f32 v{U}, v{U}, v{M}
        v_cmp_u_f32 vcc, v{U}, v{U+1}
        v_max_f32_dpp v{mx}, v{mx}, v{mx} {DPP8}
        v_mov_b32 v{t_}, v{mx}""")
    A.label(sp)
    schk(0, 8 if O.S2 else 0)
    A.e(f"s_cbranch_vccnz {srt}")
    A.label(sok)
    def d():
        A.label(srt)
        cnt(2)
        A.e(f"s_sub_u32 s90, s90, 1\ns_cmp_gt_i32 s90, 0\ns_cbranch_scc0 {sok}")
        if O.S2:
            y2 = A.newlabel("y2")
            schk(1, 0)
            A.e(f"s_cbranch_vccnz {y2}")
            for i in range(4): A.e(f"v_mov_b32 v{T+i}, v{TSET[1][0][0]+i}")
            A.e(f"v_mov_b32 v{T4}, v{TSET[1][1]}\ns_branch {sok}")
            A.label(y2)
            for x in ldSet(0): A.e(x)
            delay(A, 4)
            for x in ldSet(1): A.e(x)
        else:
            for x in ldS: A.e(x)
        A.e(f"s_branch {sp}")
    tail.append(d)
    stamp(7)
    PF = ACC; PM = ACC + 4; OD = ACC + 8; SD = ACC + 16
    A.e(f"""
    v_permlane16_swap_b32 v{t_}, v{mx}
    v_max_f32 v{mx}, v{mx}, v{t_}
    v_mov_b32 v{t_}, v{mx}
    v_permlane32_swap_b32 v{t_}, v{mx}
    v_max_f32 v{mx}, v{mx}, v{t_}
    v_mul_f32 v{mx}, s80, v{mx}""")
    vals = [T, T + 1, T + 2, T + 3, T4]
    for v in vals: A.e(f"v_fma_f32 v{v}, v{v}, s80, -v{mx}")
    def b2(pos):
        if O.B2POS == pos: A.e("s_waitcnt lgkmcnt(0)\ns_barrier"); vm_read()
    b2(1)
    stamp("pB2")
    SU = SD + 2
    for v in vals[:4]: A.e(f"v_exp_f32 v{v}, v{v}")
    A.e(f"""
    v_cvt_pk_bf16_f32 v{PF}, v{T}, v{T+1}
    v_cvt_pk_bf16_f32 v{PF+1}, v{T+2}, v{T+3}
    v_exp_f32 v{T4}, v{T4}
    v_mov_b32_dpp v{PF+2}, v{PF} {DPP8}
    v_mov_b32_dpp v{PF+3}, v{PF+1} {DPP8}""")
    b2(2)
    A.e(f"""
    v_mov_b32_dpp v{T4+1}, v{T4} {DPP8}
    v_cvt_pk_bf16_f32 v{PM}, v{T4}, v{T4+1}
    v_mfma_f32_16x16x32_bf16 {vr(SD,4)}, {vr(V_C,4)}, {vr(PF,4)}, 0
    v_mov_b32 v{PM+1}, v{PM}
    v_mfma_f32_16x16x32_bf16 {vr(OD,4)}, {vr(XC,4)}, {vr(PF,4)}, 0
    v_mov_b32 v{PM+2}, v{PM}
    v_mov_b32 v{PM+3}, v{PM}
    v_mfma_f32_16x16x32_bf16 {vr(OD+4,4)}, {vr(XC+4,4)}, {vr(PF,4)}, 0
    v_mfma_f32_16x16x32_bf16 {vr(SD,4)}, {vr(V_C+4,4)}, {vr(PM,4)}, {vr(SD,4)}""")
    stamp("pv1")
    b2(3)
    A.e(f"""
    s_waitcnt lgkmcnt(0)
    v_mfma_f32_16x16x32_bf16 {vr(OD,4)}, {vr(KEEP,4)}, {vr(PM,4)}, {vr(OD,4)}
    v_mfma_f32_16x16x32_bf16 {vr(OD+4,4)}, {vr(KEEP+4,4)}, {vr(PM,4)}, {vr(OD+4,4)}
    v_rcp_f32 v{SU}, v{SD}""")
    stamp("pv2")
    rdW = [f"ds_read_b128 {vr(ACC+q*4,4)}, v{V_WO} offset:{LO(0)+q*1024}" for q in range(12)]
    for i in range(4): A.e(f"v_pk_mul_f32 {vr(OD+2*i,2)}, {vr(OD+2*i,2)}, {vr(SU,2)} op_sel_hi:[1,0]")
    for i in range(4): A.e(f"v_cvt_pk_bf16_f32 v{PK+i}, v{OD+2*i}, v{OD+2*i+1}")
    A.e(f"buffer_store_dwordx4 {vr(PK,4)}, v{V_OST}, s[20:23], s98 offen {lst}")
    stamp(8)
    ldO = lambda b, r=None: f"buffer_load_dwordx4 {vr(AF+b*4 if r is None else r,4)}, v{V_L16}, s[20:23], s{96 + (b>>2)} offen offset:{(b&3)*1024} sc1"
    book = f"""s_add_u32 s79, s79, 1
    s_and_b32 s64, s79, {XR-1}
    s_lshl_b32 s64, s64, 19
    s_lshl_b32 s65, s79, 8
    s_and_b32 s65, s65, 0x2000
    s_lshl_b32 s66, s79, 16
    s_xor_b32 s88, s73, s65
    s_add_u32 s88, s88, s66
    s_sub_u32 s88, s88, s54
    s_add_u32 s89, s71, s64
    s_add_u32 s92, s70, s64
    s_xor_b32 s93, s72, s65
    s_add_u32 s93, s93, s66
    s_add_u32 s94, s76, s64
    s_add_u32 s95, s94, 4096
    s_add_u32 s98, s75, s64
    s_add_u32 s60, s74, s64""".split("\n")
    def oloads(fill):
        fill = list(fill)
        for b in range(8):
            A.e(ldO(b))
            if b < 7 and O.OI:
                n = O.OI
                while n > 0 and fill:
                    x = fill.pop(0); A.e(x); n -= 4 if "mfma" in x else (int(x.split()[1]) + 1 if "s_nop" in x else 1)
                if n > 0: A.e(f"s_nop {n-1}")
        for x in fill: A.e(x)
    A.e("s_barrier")
    for x in rdW + [f"v_mov_b32 v{XC+i}, 0" for i in range(8)]: A.e(x)
    delay(A, O.DO01)
    stamp(9)
    i0 = len(A.lines); vm_sum(); VS = [x.strip() for x in A.lines[i0:]]; del A.lines[i0:]
    oloads(VS[:6] + book + VS[6:])
    if not O.SWP: A.e(f"s_branch {ogo}")
    isw1 = len(A.lines)
    if O.WAL >= 0 and not O.SWP: A.lines += [".p2align 5"] + ["    s_nop 0"] * O.WAL
    A.label(w23)
    s_frag()
    for x in fl2: A.e(x)
    for i in range(O.NV1, O.NV1 + O.NV2): A.e(smv(i))
    stamp("sf1")
    s_frag2()
    stamp("sf2")
    SD2 = [KEEP + 4, PK, V_C + 4]
    A.e(f"""
    v_mfma_f32_16x16x32_bf16 {vr(SD2[0],4)}, {vr(XC,4)}, {vr(KEEP,4)}, 0
    v_mfma_f32_16x16x32_bf16 {vr(SD2[1],4)}, {vr(XC+4,4)}, {vr(KEEP,4)}, 0
    v_mfma_f32_16x16x32_bf16 {vr(SD2[2],4)}, {vr(KEEP,4)}, {vr(KEEP,4)}, 0""")
    for x in vfill[:5]: A.e(x)
    A.e(f"""
    buffer_store_dwordx4 {vr(SD2[0],4)}, v{V_A2}, s[20:23], s94 offen {lst}
    buffer_store_dwordx4 {vr(SD2[1],4)}, v{V_A2}, s[20:23], s94 offen offset:512 {lst}
    buffer_store_dwordx4 {vr(SD2[2],4)}, v{V_A2}, s[20:23], s94 offen offset:1024 {lst}""")
    stamp(6)
    for x in vfill[5:]: A.e(x)
    for x in vstream(O.NV1 + O.NV2, None): A.e(x)
    stamp("vend")
    for i in range(O.KW2): A.e(f"v_mfma_f32_16x16x32_bf16 {vr(AF+16,4)}, {vr(AF,4)}, {vr(AF,4)}, {vr(AF+16,4)}")
    A.e("s_waitcnt lgkmcnt(0)\ns_barrier")
    stamp(7)
    for x in rdW: A.e(x)
    A.e(f"""
    s_add_u32 s65, s76, s100
    s_add_u32 s66, s75, s100
    s_add_u32 s64, s71, s100
    s_cmp_eq_u32 s50, 2
    s_cselect_b32 s66, s66, s64
    buffer_store_dwordx4 {vr(V_C,4)}, v{V_L16}, s[20:23], s65 offen {lst}
    s_cmp_eq_u32 s50, 2
    s_cselect_b32 exec_hi, -1, 0
    buffer_store_dwordx4 {vr(V_C,4)}, v{V_L16}, s[20:23], s66 offen {lst}
    s_mov_b32 exec_hi, 0
    buffer_store_dwordx4 {vr(V_C,4)}, v{V_L16}, s[20:23], s65 offen offset:1024 {lst}
    s_mov_b64 exec, -1""")
    for i in range(8): A.e(f"v_mov_b32 v{XC+i}, 0")
    A.e("s_barrier")
    stamp(8)
    delay(A, O.DO)
    stamp(9)
    oloads(book)
    if O.SWP:
        A.e(f"s_branch {ogo}")
        if O.WAL >= 0: A.lines += [".p2align 5"] + ["    s_nop 0"] * O.WAL
        A.lines[isw0:] = A.lines[isw1:] + A.lines[isw0:isw1]
    A.label(ogo)
    A.e("s_waitcnt lgkmcnt(0)")
    delay(A, O.WO)
    smo = lambda t, b: f"v_smfmac_f32_16x16x64_bf16 {vr(XC+t*4,4)}, {vr(AF+b*4,4)}, {vr((ACC+b*16 if b < 3 else wo_reg(b))+t*8,8)}, v{V_IDX}"
    groups = [(0, 2), (2, 2), (4, 2), (6, 1), (7, 1)] if O.OPAIR else [(b, 1) for b in range(8)]
    def ophase():
        F = [A.newlabel("of") for _ in groups]; N = [A.newlabel("on") for _ in groups]
        slow = A.newlabel("oslow"); back = A.newlabel("oback")
        work = lambda gi: [smo(t, bb) for bb in range(groups[gi][0], groups[gi][0] + groups[gi][1]) for t in range(2)]
        gchk = lambda gi, ex: chk(groups[gi][0], 8 - groups[gi][0] - groups[gi][1] + ex, groups[gi][1])
        mask = lambda gi: ((1 << groups[gi][1]) - 1) << groups[gi][0]
        rfl = [] if O.NOX else [f"v_readfirstlane_b32 s91, v{VF}"]
        for x in gchk(0, 0): A.e(x)
        A.e(f"s_cbranch_vccnz {F[0]}")
        ng = len(groups)
        for gi in range(ng):
            if gi in (0, ng - 1): stamp(10 if gi == 0 else 11)
            for x in work(gi): A.e(x)
            if gi == 0:
                for x in rfl: A.e(x)
            if gi + 1 < ng:
                for x in gchk(gi + 1, 0): A.e(x)
                A.e(f"s_cbranch_vccnz {F[gi+1]}")
        A.label(back)
        def d():
            lap2 = A.newlabel("olap2")
            yd = lambda h: sum(groups[j][1] for j in range(h + 1, ng))
            dumO = f"buffer_load_dword v{PK}, off, s[20:23], s96 sc1"
            for gi, (b, nb) in enumerate(groups):
                A.label(F[gi])
                cnt(3)
                A.e(f"s_mov_b32 s55, {mask(gi)}")
                if gi == ng - 1: A.e(f"s_branch {slow}"); continue
                for bb in range(b, b + nb): A.e(ldO(bb))
                if gi == 0:
                    for x in rfl: A.e(x)
                ex = nb; stubs = []
                for h in range(gi + 1, ng):
                    st = A.newlabel("ost"); rt = A.newlabel("ort")
                    for x in gchk(h, ex): A.e(x)
                    A.e(f"s_cbranch_vccnz {st}")
                    w = work(h)
                    for k, x in enumerate(w):
                        A.e(x)
                        if k < groups[h][1]: A.e(dumO)
                    A.label(rt)
                    stubs.append((h, st, rt)); ex += groups[h][1]
                nf = A.newlabel("onf")
                for x in chk(b, yd(gi), nb): A.e(x)
                A.e(f"s_cbranch_vccnz {lap2}\ns_andn2_b32 s55, s55, {mask(gi)}")
                for x in work(gi): A.e(x)
                A.e(f"s_cbranch_scc0 {back}\ns_branch {lap2}")
                for h, st, rt in stubs:
                    A.label(st)
                    for bb in range(groups[h][0], groups[h][0] + groups[h][1]): A.e(ldO(bb))
                    A.e(f"s_or_b32 s55, s55, {mask(h)}\ns_branch {rt}")
            A.label(lap2)
            cnt(4)
            for h in range(ng):
                sk = A.newlabel("l2s")
                A.e(f"s_bitcmp1_b32 s55, {groups[h][0]}\ns_cbranch_scc0 {sk}")
                for x in chk(groups[h][0], yd(h), groups[h][1]): A.e(x)
                A.e(f"s_cbranch_vccnz {sk}")
                A.e(f"s_andn2_b32 s55, s55, {mask(h)}")
                for x in work(h): A.e(x)
                A.label(sk)
            A.e(f"s_cmp_eq_u32 s55, 0\ns_cbranch_scc1 {back}")
            A.label(slow)
            deferred(range(8), ldO, lambda bb: [smo(0, bb), smo(1, bb)], back, 4, lambda bb: [KEEP + 4, PK][:O.NPL - 1], lambda bb: O.DPL)
        tail.append(d)
    ophase()
    kst = f"v_cndmask_b32 v{TA}, 2.0, v{V_L16}, s[82:83]\nbuffer_store_dwordx4 {vr(KEEP,4)}, v{TA}, s[20:23], s101 offen sc1"
    if O.KE == 1 and O.KEP == 0: A.e(kst)
    for t in range(2):
        a = XC + t * 4
        A.e(f"v_add_f32 v{a}, v{a}, v{a+1}\nv_add_f32 v{a+2}, v{a+2}, v{a+3}")
    for t in range(2):
        for u in range(2): A.e(f"ds_write_addtid_b32 v{XC+t*4+2*u} offset:{T_P + u*PODD + t*1024}")
    if O.KE == 1 and O.KEP == 1: A.e(kst)
    A.e(f"s_mov_b32 s96, s60\ns_add_u32 s97, s60, 4096\ns_cmp_gt_u32 s50, 1\ns_waitcnt lgkmcnt(0)\ns_barrier")
    stamp("B3")
    A.e(f"s_cbranch_scc1 {loop}")
    for w in range(4): A.e(f"ds_read2st64_b32 {vr(ACC+2*w,2)}, v{V_PRD} offset0:{T_P//256 + w} offset1:{T_P//256 + 4 + w}")
    for i in range(8): A.e(f"v_mov_b32 v{XC+i}, v{XN+i}")
    A.e(f"""
    s_waitcnt lgkmcnt(2)
    v_pk_add_f32 {vr(ACC,2)}, {vr(ACC,2)}, {vr(ACC+2,2)}
    s_waitcnt lgkmcnt(0)
    v_pk_add_f32 {vr(ACC+4,2)}, {vr(ACC+4,2)}, {vr(ACC+6,2)}
    v_pk_add_f32 {vr(ACC,2)}, {vr(ACC,2)}, {vr(ACC+4,2)}
    v_cvt_pk_bf16_f32 v{TA}, v{ACC}, v{ACC+1}""")
    pst = [f"buffer_store_dword v{TA}, v{V_L4}, s[20:23], s89 offen {lst}", f"buffer_store_dword v{TA}, v{V_L4}, s[20:23], s88 offen sc1"]
    A.e(pst[O.PORD])
    if O.PN: A.e(f"s_nop {O.PN-1}")
    A.e(pst[1 - O.PORD])
    stamp(12)
    A.e(f"s_branch {loop0}x")
    A.label(last)
    phaseA(list(range(4, 8)), [], 8, False)
    A.e("s_waitcnt vmcnt(0) lgkmcnt(0)")
    for x in fl2: A.e(x)
    if O.FL63 and not fl2 and O.KE != 3: A.e(f"v_mov_b32 v{VF}, {nsteps-1}"); A.e(flg_store)
    segoff(A, 101, 79, 0, 78)
    for x in vstream(8, 8): A.e(x)
    A.e("s_waitcnt lgkmcnt(0)\ns_barrier")
    l23 = A.newlabel("l23"); lj = A.newlabel("lj")
    A.e(f"s_cmp_gt_u32 s50, 1\ns_cbranch_scc1 {l23}")
    vm_read(); A.e("s_waitcnt lgkmcnt(0)"); vm_sum()
    A.e(f"s_branch {lj}")
    A.label(l23)
    s_frag(); s_frag2()
    A.label(lj)
    A.e(kvm_addr)
    A.e(kvm_store)
    A.e(f"s_waitcnt vmcnt(0)\ns_barrier\nv_mov_b32 v{VF}, {nsteps}")
    A.e(flg_store)
    A.e(f"s_branch {fin}")
    for f in tail: f()

def rec_standalone(A, name, par):
    A.begin_kernel(name)
    done = A.newlabel("done"); fin = A.newlabel("fin")
    A.e(f"""
    s_getreg_b32 s51, hwreg(HW_REG_XCC_ID)
    s_and_b32 s51, s51, 7
    s_cmp_ge_u32 s2, 256
    s_cbranch_scc1 {done}
    s_cmp_ge_u32 s51, 2
    s_cbranch_scc1 {done}
    s_load_dwordx8 s[4:11], s[0:1], {ARG['mem0']*8}
    s_load_dwordx2 s[12:13], s[0:1], {ARG['Wo']*8}
    s_load_dwordx2 s[18:19], s[0:1], {ARG['ws']*8}
    v_lshrrev_b32 v2, 6, v0
    s_lshr_b32 s57, s2, 3
    s_lshl_b32 s64, s51, 5
    s_add_u32 s57, s57, s64
    v_readfirstlane_b32 s50, v2
    s_mov_b32 s90, {O.BUDGET}
    s_load_dwordx2 s[16:17], s[0:1], {ARG['dbg']*8}
    s_mov_b32 s56, 0
    s_mov_b32 s51, 0
    s_waitcnt lgkmcnt(0)""")
    A.srd(20, 18, WS_BYTES)
    A.e("s_load_dword s67, s[16:17], 0\ns_waitcnt lgkmcnt(0)")
    rec_setup(A); rec_bases(A)
    A.e("s_barrier\ns_memrealtime s[52:53]\ns_memtime s[14:15]")
    for i in range(24, 44): A.e(f"s_mov_b32 s{i}, 0")
    A.e(f"s_lshl_b32 s16, s57, 2\ns_add_u32 s16, s16, s50\ns_lshl_b32 s16, s16, 12\ns_add_u32 s16, s16, {STAMP + MB}")
    rec_loop(A, "", fin)
    A.label(fin)
    A.e("s_memrealtime s[54:55]\ns_memtime s[16:17]\ns_waitcnt lgkmcnt(0)\nv_mov_b32 v20, 0\ns_sub_u32 s24, s16, s14")
    for i in range(13): A.e(f"v_writelane_b32 v20, s{24+2*i}, {i}")
    for i in range(8): A.e(f"v_writelane_b32 v20, s{26+i}, {17+i}")
    A.e("v_writelane_b32 v20, s14, 25\nv_writelane_b32 v20, s16, 26\ns_sub_u32 s62, s62, s61\nv_writelane_b32 v20, s62, 27")
    A.e(f"v_writelane_b32 v20, s52, 13\nv_writelane_b32 v20, s54, 14\nv_writelane_b32 v20, s{56 if O.PROF else 90}, 15\nv_writelane_b32 v20, s51, 16")
    A.e(f"s_lshl_b32 s64, s57, 2\ns_add_u32 s64, s64, s50\ns_lshl_b32 s64, s64, 7\ns_add_u32 s64, s64, {STAMP}\nv_lshrrev_b32 v21, 2, v{V_L16}\ns_mov_b32 exec_hi, 0\nbuffer_store_dword v20, v21, s[20:23], s64 offen")
    A.label(done)
    A.e("s_endpgm")
    A.end_kernel(512, 102, 256)
    A.launch(name, (256,), (256,), LDS_BYTES)

if __name__ == "__main__":
    out = sys.argv[1]
    A = Asm()
    variants = eval(sys.argv[2]) if len(sys.argv) > 2 else [dict()]
    base = {k: v for k, v in vars(Opt).items() if not k.startswith("_")}
    for i, v in enumerate(variants):
        for k, x in base.items(): setattr(O, k, x)
        par = v.pop("par", 0)
        for k, x in v.items(): setattr(O, k, x)
        if 'DL0' not in v: O.DL0 = max(0, O.DL - 9)
        if 'DO01' not in v: O.DO01 = max(0, O.DO - 7)
        MFMA_WS[0] = O.MWS
        rec_standalone(A, f"r{i}_p{par}_" + "_".join(f"{k}{int(x) if not isinstance(x, tuple) else ''.join('m' if y < 0 else str(y) for y in x)}" for k, x in v.items() if k != "XS") + "_kernel", par)
    A.lines = fix_hazards(A.lines)
    t = A.text()
    open(out, "w").write(t)
    check_hazards(t)
```

```python
import sys
sys.path.insert(0, "..")
from asmgen import *
from lay import *
import rec6
from rec6 import f2u, LOG2E, SCL
NAME = "adaLN_cond__memory_aug_recurrent_mem_tr__mixer_s_mlp__prompt"
GELU_C0 = -2.0 * 0.7978845608028654 * LOG2E
GELU_C1 = GELU_C0 * 0.044715
NEG = 0xff800000
class F:
    PROF = 0; APE = 1; REP = 1; GAL = 0; DLO = 9; DOO = 7; RAL = -1; AVL = 0; LOC = 3; LOCX = 2; PSL = 4; QD = 5; QM = 46; GD = 6; GM = 22; ABAR = 1; BUD = 40000; FORCE_SLOW = 0; FORCE_FB = 0; VSL = 8; ROT = 0; P2 = 1; GS = 1; NL = 1; G1 = 1; G2 = 9; WB = 12; TC = 8; WV = 1; FB = 8; WE = 8; FH = 1; K3 = 2; XS = 0; SB = 5; LLO = 3; LHI = 30; FP4 = 20; PO = 2; PHI = 62; FDL = 0; RSP = 50; BD = 3; QM4 = 0; PA = 4; TRU = 0; SB1 = 2; EP = 1; SS = 4; HOLD = (); D3 = 1; DW2 = 24; D1N = 50; LWB = (20, 22, 24, 26, 28, 30, 32, 34); POD = 1; RE = 1; PU0 = 0; AT = 2; ATP = 118; ENDS = 0; PM = (True, True); TP = (8, 16, 32, 48); D0 = 3; D1 = 34; DL = 1; DB1 = 0; DB2 = 18; LWD = (4, 6, 8, 10, 12, 14, 16, 18); PPD = 20; R1 = 1; PP2 = 17; PD = 3; FPB = 36; IPF = 1; SYM = 0; PRG = 1; GT = 1; FX = 1; Q1B = 2; Q2B = 26; Q1W = 20; Q2W = 28; Q0S = 8; LWX = (0, 2, 4, 6, 26, 28, 30, 32); LW2 = (1, 3, 5, 7, 9, 11, 13, 15); OW2 = 20; FW2 = 18; DROP = (); Q0 = 14; H3 = 3; OD = 2; WD = 3; PPR = 12; PPN = 20; FP = 16; A0 = 4; WB3 = 8; FD = 44; Q1 = 28; Q2R = 6; Q2N = 22; FREE = 0; XW = 0; SPS = 1; ASL = 4; QROT = 0; BTH = 3; X2 = 0; NFL2 = 6; Q4 = 1; BPF = 0; BORD = [(2,3),(3,3),(3,1),(2,2),(3,2),(3,0),(1,3),(0,3),(2,1),(1,2),(0,2),(1,1),(0,1),(2,0),(1,0),(0,0)]; WOPF = 0; EXP = ''; KW = 1; GATE = 1; GPRE = 10; VSL2 = 48; NFL = 10; W4G = 1; NMEAS = 8; PF = 1; XMAP = 0x76325410; LATE = 0; OFF = ()
WSRD = "s[20:23]"
D_ = D
XO = (1, 2, 3, 0)

def ldptr(A, s, name): A.e(f"s_load_dwordx2 s[{s}:{s+1}], s[0:1], {ARG[name]*8}")

def row_lanes(A, sj, R):
    A.e(f"""
    v_and_b32 v2, 3, v1                ; row3
    v_lshrrev_b32 v3, 2, v1            ; c
    s_lshl_b32 s64, s{sj}, 2
    v_add_u32 v4, s64, v2
    s_lshl_b32 s65, s50, 9
    v_lshlrev_b32 v5, 4, v3
    v_add_u32 v5, s65, v5
    v_lshl_add_u32 v{R['RM']}, v4, 11, v5
    v_lshlrev_b32 v{R['CO']}, 1, v5
    v_lshrrev_b32 v5, 2, v3            ; f3
    v_and_b32 v3, 3, v3                ; g
    s_lshl_b32 s65, s50, 13
    v_lshlrev_b32 v5, 10, v5
    v_lshl_add_u32 v5, v3, 8, v5
    v_lshl_add_u32 v5, v4, 4, v5
    v_add_u32 v{R['FR']}, s65, v5
    s_lshl_b32 s65, s50, 9
    v_lshlrev_b32 v5, 3, v1
    v_add_u32 v{R['SW']}, s65, v5
    v_lshlrev_b32 v{R['SR']}, 3, v2""")
def load_consts(A, R, idx, dst, tmp, one=False):
    for g in range(4):
        A.e(f"s_mov_b32 s64, {MOD + g*6144*4 + idx*4096}")
        for a in range(2):
            for t in range(2): A.e(f"buffer_load_dwordx4 {vr((dst if g == 0 else tmp + 16*(g-1)) + a*8 + t*4, 4)}, v{R['CO']}, {WSRD}, s64 offen offset:{a*512 + t*16} sc1")
    A.e("s_waitcnt vmcnt(0)")
    sum4(A, dst, tmp, 16, one)
def ln_core(A, V, C1, SB, T, R, lds, PK):
    s1, s2, u1, u2, t = T, T + 1, T + 2, T + 3, T + 4
    A.e(f"v_add_f32 v{s1}, v{V}, v{V+1}\nv_mul_f32 v{s2}, v{V}, v{V}\nv_add_f32 v{u1}, v{V+2}, v{V+3}\nv_mul_f32 v{u2}, v{V+1}, v{V+1}")
    A.e(f"v_fmac_f32 v{s2}, v{V+2}, v{V+2}\nv_fmac_f32 v{u2}, v{V+3}, v{V+3}")
    for i in range(4, 16, 2):
        A.e(f"v_add_f32 v{s1}, v{s1}, v{V+i}\nv_fmac_f32 v{s2}, v{V+i}, v{V+i}\nv_add_f32 v{u1}, v{u1}, v{V+i+1}\nv_fmac_f32 v{u2}, v{V+i+1}, v{V+i+1}")
    A.e(f"v_add_f32 v{s1}, v{s1}, v{u1}\nv_add_f32 v{s2}, v{s2}, v{u2}")
    for ror in (4, 8):
        for s in (s1, s2): A.e(f"v_add_f32_dpp v{s}, v{s}, v{s} row_ror:{ror} row_mask:0xf bank_mask:0xf")
    for sw in ("v_permlane16_swap_b32", "v_permlane32_swap_b32"):
        A.e(f"v_mov_b32 v{u1}, v{s1}\nv_mov_b32 v{u2}, v{s2}\n{sw} v{u1}, v{s1}\n{sw} v{u2}, v{s2}\nv_add_f32 v{s1}, v{s1}, v{u1}\nv_add_f32 v{s2}, v{s2}, v{u2}")
    A.e(f"ds_write_b64 v{R['SW']}, {vr(s1,2)} offset:{lds}\ns_waitcnt lgkmcnt(0)\ns_barrier")
    for w in range(4): A.e(f"ds_read_b64 {vr(t+2*w,2)}, v{R['SR']} offset:{lds + w*512}")
    A.e("s_waitcnt lgkmcnt(0)")
    stats_fin(A, t, s1, s2)
    for i in range(16): A.e(f"v_fma_f32 v{V+i}, v{V+i}, v{s2}, v{s1}")
    for i in range(16): A.e(f"v_fma_f32 v{V+i}, v{V+i}, v{C1+i}, v{SB+i}")
    for i in range(8): A.e(f"v_cvt_pk_bf16_f32 v{PK+i}, v{V+2*i}, v{V+2*i+1}")
def stats_fin(A, t, nm, rs, mode=0):
    A.e(f"""
    v_add_f32 v{t}, v{t}, v{t+2}
    v_add_f32 v{t+1}, v{t+1}, v{t+3}
    v_add_f32 v{t+4}, v{t+4}, v{t+6}
    v_add_f32 v{t+5}, v{t+5}, v{t+7}
    v_add_f32 v{t}, v{t}, v{t+4}
    v_add_f32 v{t+1}, v{t+1}, v{t+5}
    v_mul_f32 v{nm}, {f2u(-1/1024):#x}, v{t}
    v_mul_f32 v{t+2}, v{nm}, v{nm}
    v_mul_f32 v{t+1}, {f2u(1/1024):#x}, v{t+1}
    v_sub_f32 v{t+1}, v{t+1}, v{t+2}
    v_max_f32 v{t+1}, 0, v{t+1}
    v_add_f32 v{t+1}, {f2u(1e-5):#x}, v{t+1}
    v_rsq_f32 v{rs}, v{t+1}""")
    if mode == 0: A.e(f"v_mul_f32 v{nm}, v{nm}, v{rs}")
def unpack(A, src, dst, n):
    for i in range(n): A.e(f"v_lshlrev_b32 v{dst+2*i}, 16, v{src+i}\nv_and_b32 v{dst+2*i+1}, s73, v{src+i}")

C_M, C_M2, C_M3, C_HA, C_HB, C_PAR, C_I, C_QW = range(8)
CB0, CB1 = 64, 192
TICK = 128
def dbg_srd(A, d): A.srd(d, 2, 256)
NCP = [0]
def cpoll(A, L, req, srd=92, place=True, va=16, lds=160 * 1024 - 4096, pre=0, sl=None):
    vp = A.newlabel("vpoll"); ck = A.newlabel("vck"); rt = A.newlabel("vrt"); ok = A.newlabel("vok"); ot = A.newlabel("vot"); fin = A.newlabel("vfin")
    a, d, r, t = va, va + 1, va + 2, va + 3
    NCP[0] += 1; lds += 256 * (NCP[0] % 8)
    dbg_srd(A, srd)
    A.e(f"""
    v_mbcnt_lo_u32_b32 v{a}, -1, 0
    v_mbcnt_hi_u32_b32 v{a}, -1, v{a}
    v_mov_b32 v{r}, 0""")
    for k, val in req.items(): A.e(f"v_cmp_eq_u32 vcc, {16 + k}, v{a}\nv_cndmask_b32 v{r}, v{r}, {val}, vcc")
    A.e(f"""
    v_and_b32 v{t}, 1, v{a}
    v_cmp_eq_u32 vcc, 1, v{t}
    v_mov_b32 v{t}, {32 << 8}
    v_cndmask_b32 v{t}, -1, v{t}, vcc
    v_min_u32 v{a}, 31, v{a}
    v_lshlrev_b32 v{a}, 2, v{a}
    s_sub_u32 s66, s88, 64""")
    def placement(known, bad):
        A.e(f"""
        s_cmp_lg_u32 s56, 2
        s_cbranch_scc1 {known}
        v_cmp_eq_u32 vcc, v{d}, v{t}
        s_and_b32 s64, vcc_lo, 0xffff
        s_cmp_eq_u32 s64, {0x10000 if (F.FORCE_SLOW or F.FORCE_FB) else 0xffff}
        s_cbranch_scc1 {known}
        s_mov_b32 s65, 0""")
        for x in range(8): A.e(f"v_readlane_b32 s64, v{d}, {2*x+1}\ns_lshr_b32 s64, s64, 8\ns_add_u32 s65, s65, s64")
        A.e(f"s_cmp_ge_u32 s65, 256\ns_cbranch_scc1 {bad}")
    if place: A.e(f"s_cmp_lg_u32 s50, 0\ns_cbranch_scc1 {ot}")
    if pre:
        lp = A.newlabel("pre"); A.e(f"s_mov_b32 s64, {pre}"); A.label(lp); A.e(f"s_sleep 32\ns_sub_u32 s64, s64, 1\ns_cmp_gt_i32 s64, 0\ns_cbranch_scc1 {lp}")
    A.label(vp)
    A.e(f"buffer_load_dword v{d}, v{a}, s[{srd}:{srd+3}], s66 offen sc1\ns_waitcnt vmcnt(0)")
    if place: placement(ck, ok); A.e(f"s_branch {rt}")
    A.label(ck)
    A.e(f"v_cmp_gt_u32 vcc, v{r}, v{d}\ns_cbranch_vccz {ok}")
    A.label(rt)
    A.e(f"s_sleep {sl or F.VSL}\ns_sub_u32 s90, s90, 1\ns_cmp_gt_i32 s90, 0\ns_cbranch_scc1 {vp}")
    A.label(ok)
    if place:
        A.e(f"ds_write_b32 v{a}, v{d} offset:{lds & 0xffff}" if lds < 65536 else f"v_add_u32 v{r}, {lds}, v{a}\nds_write_b32 v{r}, v{d}")
        A.e("s_waitcnt lgkmcnt(0)")
        A.label(ot)
        A.e(f"s_barrier\nv_add_u32 v{r}, {lds}, v{a}\nds_read_b32 v{d}, v{r}\ns_waitcnt lgkmcnt(0)")
        placement(fin, L["fb"])
        A.label(fin)
        A.e("s_and_b32 s56, s56, 1")
def verify(A, L, need_par, kind="role"):
    req = {C_I: 63}
    if kind == "qkv": req[C_HA] = 64
    if kind == "mod": req.update({C_M2: 63, C_M3: 1})
    if need_par: req[C_PAR] = 1
    cpoll(A, L, req, lds=0 if kind == "rec" else 160 * 1024 - 4096, sl=F.VSL2 if kind == "mod" else None)
    A.e("s_mov_b32 s67, 0")
    if need_par: A.e(f"v_readlane_b32 s65, v17, {16 + C_PAR}\ns_and_b32 s65, s65, 2\ns_lshl_b32 s67, s65, 12")
def signal(A, k, srd=92, vt=16, sel220=None):
    sk = A.newlabel("sig")
    A.e(f"s_waitcnt vmcnt(0)\ns_barrier\ns_cmp_lg_u32 s50, 0\ns_cbranch_scc1 {sk}")
    dbg_srd(A, srd)
    A.e(f"s_add_u32 s64, s88, {4*k}")
    if sel220 is not None: A.e(f"s_add_u32 s65, s88, {4*sel220}\ns_cmp_eq_u32 s58, {GPAR}\ns_cselect_b32 s64, s65, s64")
    A.e(f"v_mov_b32 v{vt}, 1\ns_mov_b64 exec, 1\nbuffer_atomic_add v{vt}, off, s[{srd}:{srd+3}], s64 sc1\ns_mov_b64 exec, -1")
    A.label(sk)
GPAR = 220
PR1 = 8
C_X = 8
def sum4(A, dst, tmp, n, one=False):
    for i in range(0, n, 2): A.e(f"v_pk_add_f32 {vr(dst+i,2)}, {vr(dst+i,2)}, {vr(tmp+i,2)}\nv_pk_add_f32 {vr(tmp+n+i,2)}, {vr(tmp+n+i,2)}, {vr(tmp+2*n+i,2)}")
    for i in range(0, n, 2): A.e(f"v_pk_add_f32 {vr(dst+i,2)}, {vr(dst+i,2)}, {vr(tmp+n+i,2)}")
    for i in range(0, n, 2): A.e(f"v_cvt_pk_bf16_f32 v{tmp+i//2}, v{dst+i}, v{dst+i+1}")
    unpack(A, tmp, dst, n // 2)
    if one:
        for i in range(n): A.e(f"v_add_f32 v{dst+i}, 1.0, v{dst+i}")

def measure_parity(A):
    nm = A.newlabel("nomeas"); pub = A.newlabel("pub"); lp = A.newlabel("mlp")
    A.e(f"""
    s_cmp_lg_u32 s58, {GPAR}
    s_cbranch_scc1 {nm}
    s_cmp_lg_u32 s50, 0
    s_cbranch_scc1 {nm}
    s_mov_b64 exec, 1
    s_mov_b32 s65, 1
    s_cmp_eq_u32 s56, 1
    s_cbranch_scc1 {pub}
    s_mov_b32 s66, {XMEAS}
    s_mov_b32 s67, {XMEAS+8192}
    s_mov_b32 s70, 0x7fffffff
    s_mov_b32 s71, 0x7fffffff
    s_mov_b32 s72, {F.NMEAS}""")
    A.label(lp)
    for (so, acc) in ((66, 70), (67, 71)):
        A.e(f"""
        s_memtime s[94:95]
        s_waitcnt lgkmcnt(0)
        buffer_store_dword v16, off, {WSRD}, s{so} sc1
        s_waitcnt vmcnt(0)
        s_memtime s[96:97]
        s_waitcnt lgkmcnt(0)
        s_sub_u32 s96, s96, s94
        s_min_u32 s{acc}, s{acc}, s96""")
    A.e(f"s_sub_u32 s72, s72, 1\ns_cmp_gt_u32 s72, 0\ns_cbranch_scc1 {lp}\ns_cmp_gt_u32 s71, s70\ns_cselect_b32 s65, 2, 1")
    A.label(pub)
    dbg_srd(A, 92)
    A.e(f"v_mov_b32 v16, s65\ns_add_u32 s64, s88, {4*C_PAR}\nbuffer_store_dword v16, off, s[92:95], s64 sc1")
    if F.PROF: A.e(f"v_mov_b32 v16, s70\nv_mov_b32 v17, s71\ns_mov_b32 s64, {STAMP2 - 64}\nbuffer_store_dwordx2 v[16:17], off, {WSRD}, s64")
    A.e("s_mov_b64 exec, -1")
    A.label(nm)
    A.e("s_barrier")

def duty(A, L, grp):
    nh = 1 + grp
    R = dict(RM=8, CO=9, FR=10, SW=11, SR=12)
    VW, VC, VI, VL = 13, 14, 15, 24; SV = 32; XR_ = 48; AC = 80; W = 96; V = 128; C1 = 96; SB = 112; T = 208; M1 = 28
    A.e(f"s_load_dwordx4 s[4:7], s[0:1], {ARG['c']*8}"); ldptr(A, 8, "x")
    if grp: measure_parity(A)
    A.e(f"""
    s_sub_u32 s59, s58, {128 + 64*grp}
    s_and_b32 s52, s59, 15
    s_lshr_b32 s53, s59, 4
    s_lshl_b32 s64, s50, 6
    v_add_u32 v{VC}, s64, v1            ; thread
    v_lshrrev_b32 v2, 4, v{VC}
    v_and_b32 v3, 15, v{VC}
    v_mul_u32_u24 v{VW}, {16*12288}, v2
    v_lshl_add_u32 v{VW}, v3, 4, v{VW}
    s_mul_i32 s54, s53, {256*12288}
    s_lshl_b32 s64, s52, {8 + grp}
    s_add_u32 s54, s54, s64
    s_add_u32 s54, s54, {4096*grp}
    v_lshlrev_b32 v{VI}, 1, v{VC}
    s_lshl_b32 s55, s53, 9
    s_mov_b32 s60, 0
    s_mov_b32 s73, 0xffff0000
    s_sub_u32 s61, s58, 128
    s_lshl_b32 s61, s61, 15
    v_lshlrev_b32 v25, 6, v2
    v_lshlrev_b32 v{VL}, 4, v1""")
    row_lanes(A, 60, R)
    A.e("s_waitcnt lgkmcnt(0)")
    A.srd(24, 4, 2048); A.srd(28, 6, 1024 * 12288); A.srd(32, 8, S * D_ * 2)
    for i in range(4): A.e(f"v_mov_b32 v{M1+i}, -1\nv_mov_b32 v{20+i}, 0")
    def stf(base, nb, reg=M1, sh=None):
        A.e(f"s_lshl_b32 s64, s62, 2\ns_add_u32 s64, s64, s50")
        if sh: A.e(f"s_lshr_b32 s65, s64, 6\ns_lshl_b32 s65, s65, 19\ns_and_b32 s64, s64, 63")
        A.e(f"s_mul_i32 s64, s64, {nb*1024}\ns_add_u32 s64, s64, {base}")
        if sh: A.e("s_add_u32 s64, s64, s65")
        for i in range(nb):
            if i and i % 4 == 0: A.e("s_add_u32 s64, s64, 4096")
            A.e(f"buffer_store_dwordx4 {vr(reg,4)}, v{VL}, {WSRD}, s64 offen offset:{(i&3)*1024} sc1")
            if F.BTH and nb > 4: A.e(f"s_waitcnt vmcnt({F.BTH})")
    def fill1():
        stf(R_PR, PR1 // 4); stf(RING, 2, sh=1); stf(R_SX, 4, sh=1); stf(FLG, 1, 20)
    def fill2():
        stf(R_PR + PR1 * 64 * KB, 16 - PR1 // 4); stf(XP, 8 if F.SYM == 2 else 6)
        A.e(f"""
        s_and_b32 s64, s62, 31
        s_lshl_b32 s64, s64, 10
        s_add_u32 s64, s64, {G1 - 32768}
        s_bitcmp1_b32 s62, 5
        s_cselect_b32 s65, {(NU+1)*32768}, 0
        s_add_u32 s64, s64, s65
        buffer_store_dwordx4 v[20:23], v{VL}, {WSRD}, s64 offen sc1""")
    def fills(f):
        f1 = A.newlabel("fl1"); f2 = A.newlabel("fl2")
        A.e(f"s_cmp_eq_u32 s58, {GPAR}\ns_cbranch_scc1 {f2}\ns_mov_b32 s62, s59")
        A.label(f1); f()
        A.e(f"s_cmp_eq_u32 s62, {GPAR + 1 - 192}\ns_mov_b32 s62, {GPAR - 192}\ns_cbranch_scc1 {f1}")
        A.label(f2)
    if grp and F.BPF:
        np_ = A.newlabel("npf")
        A.e(f"s_load_dwordx8 s[36:43], s[0:1], {ARG['Wq']*8}\ns_cmp_eq_u32 s58, {GPAR}\ns_cbranch_scc1 {np_}\ns_lshl_b32 s64, s59, 2\ns_add_u32 s64, s64, s50\nv_lshlrev_b32 v16, 10, v1\nv_lshlrev_b32 v17, 7, v1\ns_waitcnt lgkmcnt(0)")
        for m in range(4): A.srd(92 if m == 3 else 68 + 4 * m, 36 + 2 * m, 8 * MB)
        sr_ = lambda m: "s[92:95]" if m == 3 else f"s[{68+4*m}:{71+4*m}]"
        A.e("s_and_b32 s65, s64, 127\ns_lshl_b32 s65, s65, 16\ns_add_u32 s65, s65, 384\ns_cmp_ge_u32 s64, 128")
        A.e("s_cselect_b64 s[44:45], s[72:73], s[68:69]\ns_cselect_b64 s[46:47], s[74:75], s[70:71]\nbuffer_load_dword v18, v16, s[44:47], s65 offen")
        A.e("s_cselect_b64 s[44:45], s[92:93], s[76:77]\nbuffer_load_dword v18, v16, s[44:47], s65 offen")
        A.e("s_lshl_b32 s65, s64, 13")
        for m, q in F.BORD[:F.BPF - 1]:
            A.e(f"s_add_u32 s66, s65, {q*2*MB}\nbuffer_load_dword v18, v17, {sr_(m)}, s66 offen")
        A.label(np_)
    if grp:
        fills(fill1)
        signal(A, C_I, sel220=C_X)
        if "b" in F.EXP: A.e("s_endpgm")
        if F.X2: fills(fill2); signal(A, C_M2, sel220=C_M3); A.e("s_endpgm")
        if F.GATE: cpoll(A, L, {C_QW: F.GATE} if F.GATE > 1 else {}, pre=F.GPRE, sl=F.VSL2)
        if F.EXP: A.e("s_endpgm")
    A.e(f"buffer_load_ushort v16, v{VI}, s[24:27], s55 offen")
    for p in range(16):
        for h in range(nh): A.e(f"buffer_load_dwordx4 {vr(W + (h*16+p)*4, 4)}, v{VW}, s[28:31], s54 offen offset:{h*256}")
        if p < 15: A.e("s_add_u32 s54, s54, 12288")
        if grp and F.BTH: A.e(f"s_waitcnt vmcnt({F.BTH})")
    for q in range(4):
        A.e(f"s_add_u32 s64, s61, {q*8192}")
        for a in range(2): A.e(f"buffer_load_dwordx4 {vr(XR_ + q*8 + a*4, 4)}, v{R['RM']}, s[32:35], s64 offen offset:{a*256}")
    NI = 0
    nw = 16 * nh
    A.e(f"""
    s_waitcnt vmcnt({nw + 8 + NI})
    v_lshlrev_b32 v16, 16, v16
    v_mul_f32 v17, {f2u(-LOG2E):#x}, v16
    v_exp_f32 v17, v17
    v_add_f32 v17, 1.0, v17
    v_rcp_f32 v17, v17
    v_mul_f32 v17, v17, v16
    v_cvt_pk_bf16_f32 v17, v17, v17
    v_and_b32 v17, s73, v17
    v_lshlrev_b32 v18, 2, v{VC}
    ds_write_b32 v18, v17 offset:8192
    s_waitcnt lgkmcnt(0)
    s_barrier""")
    for i in range(4): A.e(f"ds_read_b128 {vr(SV+4*i,4)}, v25 offset:{8192 + 16*i}")
    for i in range(8 * nh): A.e(f"v_mov_b32 v{AC+i}, 0")
    A.e("s_waitcnt lgkmcnt(0)")
    for p in range(16):
        for h in range(nh):
            A.e(f"s_waitcnt vmcnt({nw - 1 - (p*nh + h) + 8 + NI})")
            w = W + (h * 16 + p) * 4
            for j in range(4):
                t = 16 + 2 * (j & 1)
                A.e(f"v_lshlrev_b32 v{t}, 16, v{w+j}\nv_and_b32 v{t+1}, s73, v{w+j}")
                sel = p & 1
                A.e(f"v_pk_fma_f32 {vr(AC+8*h+2*j,2)}, {vr(t,2)}, {vr(SV+p-sel,2)}, {vr(AC+8*h+2*j,2)} op_sel:[0,{sel},0] op_sel_hi:[1,{sel},1]")
    A.e(f"v_lshlrev_b32 v18, 5, v{VC}")
    for h in range(nh):
        for i in range(2): A.e(f"ds_write_b128 v18, {vr(AC+8*h+4*i,4)} offset:{16384 + h*8192 + 16*i}")
    A.e(f"""
    v_and_b32 v18, 127, v{VC}
    v_lshlrev_b32 v18, 2, v18
    v_lshrrev_b32 v19, 7, v{VC}
    v_lshl_add_u32 v19, v19, {13 if grp else 31}, v18     ; group 0: both thread halves compute the same sums
    s_waitcnt lgkmcnt(0)
    s_barrier""".replace(f"v_lshl_add_u32 v19, v19, 31, v18", "v_mov_b32 v19, v18"))
    for g in range(16):
        A.e(f"ds_read_b32 v{SV+g}, v19 offset:{16384 + g*512}")
        if g == 11: A.e("s_waitcnt lgkmcnt(4)")
    A.e("s_waitcnt lgkmcnt(0)")
    for st in (8, 4, 2):
        for i in range(0, st, 2): A.e(f"v_pk_add_f32 {vr(SV+i,2)}, {vr(SV+i,2)}, {vr(SV+st+i,2)}")
    A.e(f"""
    v_add_f32 v{SV}, v{SV}, v{SV+1}
    s_mul_i32 s64, s53, {6144*4}
    s_lshl_b32 s65, s52, {9 + grp}
    s_add_u32 s64, s64, s65
    s_add_u32 s64, s64, {MOD + 8192*grp}""")
    A.e(f"v_lshlrev_b32 v18, 2, v{VC}" if grp else "")
    A.e(f"buffer_store_dword v{SV}, v18, {WSRD}, s64 offen sc1")
    if grp: fills(fill2)
    signal(A, C_M2 if grp else C_M, sel220=C_M3 if grp else None)
    if F.PROF: A.e("s_memrealtime s[98:99]")
    for q in range(4): unpack(A, XR_ + 8 * q, V + 16 * q, 8)
    for q in range(4):
        v = V + 16 * q; s1, s2, u1, u2 = T + 4 * q, T + 4 * q + 1, T + 4 * q + 2, T + 4 * q + 3
        A.e(f"v_add_f32 v{s1}, v{v}, v{v+1}\nv_mul_f32 v{s2}, v{v}, v{v}\nv_add_f32 v{u1}, v{v+2}, v{v+3}\nv_mul_f32 v{u2}, v{v+1}, v{v+1}")
        A.e(f"v_fmac_f32 v{s2}, v{v+2}, v{v+2}\nv_fmac_f32 v{u2}, v{v+3}, v{v+3}")
        for i in range(4, 16, 2):
            A.e(f"v_add_f32 v{s1}, v{s1}, v{v+i}\nv_fmac_f32 v{s2}, v{v+i}, v{v+i}\nv_add_f32 v{u1}, v{u1}, v{v+i+1}\nv_fmac_f32 v{u2}, v{v+i+1}, v{v+i+1}")
        A.e(f"v_add_f32 v{s1}, v{s1}, v{u1}\nv_add_f32 v{s2}, v{s2}, v{u2}")
    for ror in (4, 8):
        for q in range(4):
            for s_ in (T + 4 * q, T + 4 * q + 1): A.e(f"v_add_f32_dpp v{s_}, v{s_}, v{s_} row_ror:{ror} row_mask:0xf bank_mask:0xf")
    for sw in ("v_permlane16_swap_b32", "v_permlane32_swap_b32"):
        for q in range(4):
            s1, s2, u1, u2 = T + 4 * q, T + 4 * q + 1, T + 4 * q + 2, T + 4 * q + 3
            A.e(f"v_mov_b32 v{u1}, v{s1}\nv_mov_b32 v{u2}, v{s2}\n{sw} v{u1}, v{s1}\n{sw} v{u2}, v{s2}\nv_add_f32 v{s1}, v{s1}, v{u1}\nv_add_f32 v{s2}, v{s2}, v{u2}")
    for q in range(4): A.e(f"ds_write_b64 v{R['SW']}, {vr(T+4*q,2)} offset:{32768 + q*2048}")
    A.e("s_waitcnt lgkmcnt(0)\ns_barrier")
    for q in range(4):
        for w in range(4): A.e(f"ds_read_b64 {vr(SV+2*w,2)}, v{R['SR']} offset:{32768 + q*2048 + w*512}")
        A.e("s_waitcnt lgkmcnt(0)")
        stats_fin(A, SV, T, T + 1)
        for i in range(16): A.e(f"v_fma_f32 v{V+16*q+i}, v{V+16*q+i}, v{T+1}, v{T}")
    cpoll(A, L, {C_M: 64})
    if F.PROF: A.e("s_memrealtime s[100:101]")
    A.e(f"v_lshlrev_b32 v18, 5, v{VC}")
    for g in range(4):
        A.e(f"s_mov_b32 s64, {MOD + g*6144*4}")
        for i in range(2): A.e(f"buffer_load_dwordx4 {vr(SV + g*8 + 4*i, 4)}, v18, {WSRD}, s64 offen offset:{16*i} sc1")
    A.e("s_cmp_gt_u32 s50, 1\ns_cselect_b32 s64, 1.0, 0\ns_waitcnt vmcnt(0)")
    sum4(A, SV, SV + 8, 8)
    for i in range(8): A.e(f"v_add_f32 v{SV+i}, s64, v{SV+i}")
    for i in range(2): A.e(f"ds_write_b128 v18, {vr(SV+4*i,4)} offset:{16*i}")
    A.e("s_waitcnt lgkmcnt(0)\ns_barrier")
    for k, dst in ((0, SB), (1, C1)):
        for a in range(2):
            for t in range(2): A.e(f"ds_read_b128 {vr(dst + a*8 + t*4, 4)}, v{R['CO']} offset:{k*4096 + a*512 + t*16}")
    A.e(f"s_add_u32 s61, s61, {HB}\ns_add_u32 s62, s61, 4096\ns_waitcnt lgkmcnt(0)")
    for q in range(4):
        v = V + 16 * q
        for i in range(16): A.e(f"v_fma_f32 v{v+i}, v{v+i}, v{C1+i}, v{SB+i}")
        for i in range(8): A.e(f"v_cvt_pk_bf16_f32 v{XR_+8*q+i}, v{v+2*i}, v{v+2*i+1}")
        for a in range(2): A.e(f"buffer_store_dwordx4 {vr(XR_+8*q+4*a,4)}, v{R['FR']}, {WSRD}, s{61+a} offen offset:{64*q} sc1")
    signal(A, C_HB if grp else C_HA)
    if F.PROF:
        A.e(f"""
        s_memrealtime s[96:97]
        s_waitcnt lgkmcnt(0)
        v_mov_b32 v16, s98
        v_mov_b32 v17, s100
        v_mov_b32 v18, s96
        v_mov_b32 v19, s86
        s_lshl_b32 s64, s58, 4
        s_add_u32 s64, s64, {STAMP2 - 8192}
        buffer_store_dwordx4 v[16:19], off, {WSRD}, s64""")

def stamp(A, v, par=None):
    if not F.PROF: return
    A.e(f"s_memrealtime s[84:85]\ns_lshr_b32 m0, s60, 1\ns_waitcnt lgkmcnt(0)\nv_writelane_b32 v{v}, s84, m0")
def tst(A, i):
    if F.PROF >= 2: A.e(f"s_memtime s[{32+2*i}:{33+2*i}]")
def tacc(A, n):
    if F.PROF < 2: return
    A.e("s_waitcnt lgkmcnt(0)")
    for i in range(n - 1): A.e(f"s_sub_u32 s64, s{34+2*i}, s{32+2*i}\ns_add_u32 s{92+i}, s{92+i}, s64")
    A.e(f"s_sub_u32 s64, s32, s48\ns_cmp_eq_u32 s48, 0\ns_cselect_b32 s64, 0, s64\ns_add_u32 s{92+n-1}, s{92+n-1}, s64\ns_mov_b32 s48, s{32+2*(n-1)}")
def tinit(A):
    if F.PROF < 2: return
    for i in range(92, 100): A.e(f"s_mov_b32 s{i}, 0")
    A.e("s_mov_b32 s48, 0\ns_memtime s[46:47]\ns_memrealtime s[100:101]")
def tout(A, v):
    if F.PROF < 2: return
    for i in range(8): A.e(f"v_writelane_b32 v{v}, s{92+i}, {2+i}")
    A.e(f"s_memtime s[32:33]\ns_memrealtime s[34:35]\ns_waitcnt lgkmcnt(0)\ns_sub_u32 s32, s32, s46\ns_sub_u32 s34, s34, s100\nv_writelane_b32 v{v}, s32, 10\nv_writelane_b32 v{v}, s34, 11")
def stamp_out(A, regs):
    if not F.PROF: return
    A.e(f"s_lshl_b32 s64, s58, 2\ns_add_u32 s64, s64, s50\ns_mul_i32 s64, s64, 768\ns_add_u32 s64, s64, {STAMP2}\nv_mbcnt_lo_u32_b32 v16, -1, 0\nv_mbcnt_hi_u32_b32 v16, -1, v16\nv_lshlrev_b32 v16, 2, v16")
    for i, r in enumerate(regs[:3]): A.e(f"buffer_store_dword v{r}, v16, {WSRD}, s64 offen offset:{i*256}")
def flag_store(A, vt, sval, saddr):
    A.e(f"v_mov_b32 v{vt}, {sval}\ns_mov_b64 exec, 1\nbuffer_store_dword v{vt}, off, {WSRD}, s{saddr} sc1\ns_mov_b64 exec, -1")
def poll_loop(A, ld, vF, sneed, sl=None):
    lp = A.newlabel("plp"); ok = A.newlabel("pok")
    A.label(lp)
    A.e(f"""
    {ld}
    s_waitcnt vmcnt(0)
    v_cmp_gt_u32 vcc, s{sneed}, v{vF}
    s_cbranch_vccz {ok}
    s_sleep {sl or F.PSL}
    s_sub_u32 s90, s90, 1
    s_cmp_gt_i32 s90, 0
    s_cbranch_scc1 {lp}""")
    A.label(ok)

def weave(A, M, fill, first=0, per=1):
    fill = list(fill)
    for i, m in enumerate(M):
        A.e(m)
        if i >= first:
            for _ in range(per):
                if fill: A.e(fill.pop(0))
    for x in fill: A.e(x)

class Sched:
    def __init__(self, A): self.A = A; self.q = []; self.done = -1
    def lds(self, ins, tag=None): self.A.e(ins); self.q.append(tag)
    def need(self, tag):
        i = len(self.q) - 1 - self.q[::-1].index(tag)
        if i > self.done:
            n = len(self.q) - 1 - i
            assert n <= 15
            self.A.e(f"s_waitcnt lgkmcnt({n})"); self.done = i
    def copy(self):
        c = Sched(self.A); c.q = list(self.q); c.done = self.done; return c

def stage_weights(A, stages, ld, pf=None, nfl=0, rot=None, rotk=None):
    A.e(f"""
    v_lshrrev_b32 v26, 2, v1
    v_and_b32 v27, 3, v1
    v_mul_u32_u24 v16, {ld}, v26
    v_lshl_add_u32 v16, v27, 4, v16
    v_lshlrev_b32 v17, 6, v25
    v_lshl_add_u32 v17, v24, 4, v17
    v_add_u32 v17, s61, v17""")
    def issue(st):
        srd, pre, rows, _ = stages[st]
        npf = pf(st, -1) if pf else 0
        A.e(pre)
        A.e(f"s_add_u32 m0, s61, {(st&1)*16384}")
        for J in range(rows // 16):
            if rot and J % 4 == 0:
                A.e(f"s_add_u32 s64, s{rot(st)}, {J//4}\ns_and_b32 s64, s64, 3\ns_mul_i32 s65, s64, {64*ld}\ns_add_u32 s63, s62, s65\ns_lshl_b32 s64, s64, 12\ns_add_u32 s64, s64, s61\ns_add_u32 m0, s64, {(st&1)*16384}")
            if rotk and J % 2 == 0:
                A.e(f"s_add_u32 s64, s{rotk}, {J//2}\ns_sub_u32 s65, s64, {rows//32}\ns_cselect_b32 s64, s64, s65\ns_mul_i32 s64, s64, {32*ld}\ns_add_u32 s63, s62, s64")
            sa = 63 if rot or rotk else 62
            A.e(f"buffer_load_dwordx4 v16, s[{srd}:{srd+3}], s{sa} offen lds")
            if J + 1 < rows // 16: A.e(f"s_add_u32 s{sa}, s{sa}, {16*ld}\ns_add_u32 m0, m0, 1024")
            if pf: npf += pf(st, J)
            if nfl: A.e(f"s_waitcnt vmcnt({nfl})")
        return rows // 16 + npf
    if F.PROF: rec6.sstamp(A, 30, 1)
    n = [issue(0), issue(1)]
    for st in range(len(stages)):
        A.e(f"s_waitcnt vmcnt({n[st+1] if st + 1 < len(stages) else 0})")
        if F.PROF: rec6.sstamp(A, 30, 2 * st)
        stages[st][3]((st & 1) * 16384)
        A.e("s_waitcnt lgkmcnt(0)")
        if F.PROF and st: rec6.sstamp(A, 30, 2 * st + 1)
        if st + 2 < len(stages): n.append(issue(st + 2))
    if F.PROF: rec6.sstamp_out(A, 30, 58)
def lanes(A):
    A.e("""
    v_and_b32 v21, 15, v1              ; lam
    v_lshrrev_b32 v22, 4, v1           ; g
    v_lshrrev_b32 v23, 2, v21          ; r
    v_and_b32 v24, 3, v21              ; c
    s_lshl_b32 s61, s50, 15
    v_lshl_add_u32 v25, v22, 3, v23    ; 8g + r""")
def late(A):
    if F.LATE:
        lp = A.newlabel("late"); A.e(f"s_mov_b32 s64, {F.LATE}"); A.label(lp); A.e(f"s_sleep 16\ns_sub_u32 s64, s64, 1\ns_cmp_gt_i32 s64, 0\ns_cbranch_scc1 {lp}")
MF = "v_mfma_f32_16x16x32_bf16"

def qkv_role(A, L):
    L16, VR0, VR1, VT = 0, 4, 5, 6; ACC = (32, 44); VH = 56; PK = 60; XW = 64; NW = 16; ST = (8, 10, 11); D = F.QD
    def wr_(ks, t, n=4, o=0):
        i = (ks * 3 + t) * 4 + o
        return ar(i, n) if i < 256 else vr(128 + i - 256, n)
    done = A.newlabel("done")
    lanes(A)
    A.e(f"s_load_dwordx4 s[4:7], s[0:1], {ARG['Wq']*8}"); ldptr(A, 8, "Wv")
    A.e(f"""
    s_lshl_b32 s52, s59, 7
    s_and_b32 s64, s50, 1
    s_lshl_b32 s65, s64, 6
    s_add_u32 s53, s52, s65
    s_lshr_b32 s65, s50, 1
    s_lshl_b32 s65, s65, 6
    s_add_u32 s52, s52, s65
    s_lshl_b32 s54, s64, 3
    s_waitcnt lgkmcnt(0)
    s_cmp_gt_u32 s50, 1
    s_cselect_b64 s[10:11], s[4:5], s[6:7]""")
    A.srd(28, 10, 8 * MB); A.srd(32, 8, 8 * MB)
    def rdp(q):
        def f(buf):
            for kk in range(8):
                for t in range(2):
                    for h in range(2): A.e(f"ds_read_b64_tr_b16 {wr_(8*q+kk,t,2,2*h)}, v17 offset:{buf + (32*kk + 4*h)*64 + 8*t}")
                if kk % 3 == 2: A.e("s_waitcnt lgkmcnt(0)")
        return f
    def rdv(q):
        def f(buf):
            if q == 0: A.e("v_add_u32 v18, s54, v17")
            for kk in range(8):
                for h in range(2): A.e(f"ds_read_b64_tr_b16 {wr_(8*q+kk,2,2,2*h)}, v18 offset:{buf + (32*kk + 4*h)*64}")
                if kk == 5: A.e("s_waitcnt lgkmcnt(0)")
        return f
    stg = []
    for q in range(4):
        stg.append((28, f"s_add_u32 s62, s53, {q*256*8192}", 256, rdp(q)))
        stg.append((32, f"s_add_u32 s62, s52, {q*256*8192}", 256, rdv(q)))
    rec6.help_addr(A, 28, 1, 59, "s_lshl_b32 s65, s64, 3\ns_and_b32 s66, s50, 1\ns_lshl_b32 s55, s66, 2\ns_add_u32 s65, s65, s55\ns_lshl_b32 s66, s66, 5")
    rec6.help_addr(A, 31, 1, 59, "s_lshl_b32 s65, s64, 4\ns_lshl_b32 s55, s50, 2\ns_add_u32 s65, s65, s55\ns_lshl_b32 s66, s50, 5")
    def pf(st, J):
        if not F.PF: return 0
        t = st + 1; i = J // 4
        if J == -1:
            if st: return 0
            for i in (2, 3): A.e(f"s_mov_b32 s64, {i*64*8192}\nbuffer_load_dword v29, v28, s[28:31], s64 offen")
            return 2
        if J % 4 != 1 or t > 7 or (t & 1 and i & 1): return 0
        if t & 1: A.e(f"s_mov_b32 s64, {((t>>1)*256 + (i>>1)*128)*8192}\nbuffer_load_dword v29, v31, s[32:35], s64 offen")
        else: A.e(f"s_mov_b32 s64, {((t>>1)*256 + i*64)*8192}\nbuffer_load_dword v29, v28, s[28:31], s64 offen")
        return 1
    A.e("s_and_b32 s60, s50, 1\ns_lshl_b32 s60, s60, 1")
    stage_weights(A, stg, 8192, pf, F.NFL, (lambda st: 50 if st & 1 else 60) if F.QROT else None)
    if F.GATE == 9:
        sq = A.newlabel("sq"); sq2 = A.newlabel("sq2")
        A.e(f"s_and_b32 s64, s59, 7\ns_cmp_eq_u32 s64, 3\ns_cbranch_scc1 {sq}\ns_cmp_lg_u32 s59, 63\ns_cbranch_scc1 {sq2}"); A.label(sq); signal(A, C_QW); A.label(sq2)
    elif F.GATE > 1: signal(A, C_QW)
    if F.EXP: A.e("s_endpgm")
    verify(A, L, True, "qkv")
    A.e(f"""
    s_barrier
    v_lshlrev_b32 v{L16}, 4, v1
    s_mov_b32 s60, 0
    s_lshl_b32 s63, s50, 13
    s_add_u32 s61, s63, {HB}
    s_mov_b32 s70, 0
    s_lshl_b32 s52, s59, 14
    s_and_b32 s64, s50, 1
    s_lshl_b32 s64, s64, 11
    s_add_u32 s53, s52, s64
    s_lshl_b32 s64, s50, 10
    s_add_u32 s52, s52, s64
    s_add_u32 s52, s52, 4096           ; V base
    s_cmp_gt_u32 s50, 1
    s_cselect_b32 s54, 0x2000, 0
    s_lshl_b32 s69, s59, 6
    s_add_u32 s69, s69, s67
    s_add_u32 s69, s69, {F_QKV}
    v_mov_b32 v{VR0}, v{L16}
    v_add_u32 v{VR1}, 32768, v{L16}""")
    def loads():
        o = ["s_add_u32 m0, s70, s63", "s_add_u32 s62, s61, 4096"]
        for i in range(8):
            o.append(f"buffer_load_dwordx4 v{L16}, {WSRD}, s{61+(i>>2)} offen offset:{(i&3)*1024} lds")
            if i == 3: o.append("s_add_u32 m0, m0, 4096")
        return o + ["s_add_u32 s61, s61, 32768", "s_add_u32 s70, s70, 32768", "s_and_b32 s70, s70, 0x1ffff"]
    def epi(par):
        a = ACC[par]
        o = ["s_sub_u32 s66, s60, 1", "s_lshr_b32 s64, s66, 1", "s_lshl_b32 s65, s64, 12", "s_and_b32 s65, s65, 0x2000", "s_xor_b32 s65, s65, s67", "s_lshl_b32 s64, s64, 20",
             "s_add_u32 s64, s64, s65", "s_add_u32 s65, s64, s52", "s_xor_b32 s64, s64, s54", "s_add_u32 s66, s64, s53"]
        if par: o += ["s_cmp_eq_u32 s60, 0", f"s_cselect_b32 s65, {SCRATCH}, s65", f"s_cselect_b32 s66, {SCRATCH}, s66"]
        o += [f"v_cvt_pk_bf16_f32 v{PK+i}, v{a+2*i}, v{a+2*i+1}" for i in range(4)]
        o += [f"v_cvt_pk_bf16_f32 v{VH+2*par+i}, v{a+8+2*i}, v{a+9+2*i}" for i in range(2)]
        o += [f"buffer_store_dwordx4 {vr(PK,4)}, v{L16}, {WSRD}, s66 offen offset:{par*1024} sc1"]
        if par: o += [f"buffer_store_dwordx4 {vr(VH,4)}, v{L16}, {WSRD}, s65 offen sc1"]
        return o
    rd = lambda ks, nxt: f"ds_read_b128 {vr(XW+4*(ks%NW),4)}, v{VR1 if nxt else VR0} offset:{ks*1024}"
    if F.PROF:
        for r in ST: A.e(f"v_mov_b32 v{r}, 0")
        A.e(f"s_memrealtime s[84:85]\ns_waitcnt lgkmcnt(0)\nv_writelane_b32 v{ST[2]}, s84, 0\nv_writelane_b32 v{ST[2]}, s86, 1")
    tinit(A)
    for x in loads() + loads(): A.e(x)
    A.e("s_waitcnt vmcnt(8)\ns_barrier")
    for ks in range(D): A.e(rd(ks, 0))
    top = A.newlabel("top"); tail = []
    A.label(top)
    for par in range(2):
        tst(A, 0)
        fill = {}
        for k, x in enumerate(epi(par ^ 1)): fill.setdefault(3 + k // 2 if k < 13 else k - 3, []).append(x)
        for k, x in enumerate(loads()): fill.setdefault(F.QM + 2 + 2 * k, []).append(x)
        for n in range(96):
            ks, t = divmod(n, 3)
            a = vr(ACC[par] + 4 * t, 4); x = vr(XW + 4 * (ks % NW), 4)
            if t == 0: A.e(f"s_waitcnt lgkmcnt({D-1})")
            A.e(f"{MF} {a}, {x}, {wr_(ks,t)}, {a if ks else 0}" if t == 2 else f"{MF} {a}, {wr_(ks,t)}, {x}, {a if ks else 0}")
            if t == 0: A.e(rd((ks + D) % 32, ks + D >= 32))
            for y in fill.get(n, []): A.e(y)
            if n == F.QM:
                nf = A.newlabel("nf")
                tst(A, 1)
                A.e(f"s_waitcnt vmcnt({2-par})")
                if par == 0:
                    sk = A.newlabel("sk")
                    hb = A.newlabel("hb"); hb2 = A.newlabel("hb2")
                    hc = A.newlabel("hc")
                    A.e(f"s_cmp_eq_u32 s60, 60\ns_cbranch_scc1 {hb}\ns_cmp_eq_u32 s60, {2*PR1}\ns_cbranch_scc1 {hc}"); A.label(hb2)
                    def dh(hb=hb, hb2=hb2, hc=hc):
                        A.label(hb); cpoll(A, L, {C_HB: 64}, 28, False, 12); A.e(f"s_branch {hb2}")
                        A.label(hc); cpoll(A, L, {C_M2: 63}, 28, False, 12); A.e(f"s_branch {hb2}")
                    tail.append(dh)
                    A.e(f"s_sub_u32 s64, s60, 2\ns_cmp_gt_u32 s64, {2*F.Q4}\ns_cbranch_scc1 {sk}\ns_waitcnt vmcnt(0)"); A.label(sk)
                    A.e(f"s_cselect_b32 s64, 1, s50")
                else: A.e("s_mov_b32 s64, s50")
                tst(A, 2)
                A.e(f"s_barrier\ns_cmp_ge_u32 s60, {NU-2}\ns_cselect_b32 s61, {HB}, s61\ns_cmp_lg_u32 s64, 0\ns_cbranch_scc1 {nf}\ns_lshr_b32 s64, s60, 1")
                flag_store(A, VT, "s64", 69); A.label(nf)
                tst(A, 3)
        A.e(f"v_mov_b32 v{VR0}, v{VR1}\nv_add_u32 v{VR1}, 32768, v{VR1}\nv_and_b32 v{VR1}, 0x1ffff, v{VR1}")
        if F.PROF: tst(A, 4); tacc(A, 5); stamp(A, ST[par])
        A.e("s_add_u32 s60, s60, 1")
    A.e(f"s_cmp_lt_u32 s60, {NU}\ns_cbranch_scc1 {top}")
    for x in epi(1): A.e(x)
    A.e(f"s_waitcnt vmcnt(0) lgkmcnt(0)\ns_barrier\ns_cmp_lg_u32 s50, 0\ns_cbranch_scc1 {done}")
    flag_store(A, VT, NSEG, 69)
    A.label(done)
    tout(A, ST[2]); stamp_out(A, ST)
    if F.AT: A.e(f"s_cmp_lt_u32 s59, {16*F.AT}\ns_cbranch_scc1 {L['att2']}")
    A.e("s_endpgm")
    for d in tail: d()

def gemm_role(A, L, kind):
    KS = 7 if kind == "w4" else 8
    stats = kind in ("w1", "w3"); xch = kind in ("wo", "w4"); res = kind == "w2"
    L16, VFA, VA, VRD, VRB, ONE, VF, VT, VO, VSW, VSR = 0, 2, 3, 4, 8, 12, 16, 17, 18, 19, 20
    ACC, FIN, S1, S2, SP, XW, NW, PKT, CS, RES, TM, M1 = 32, 40, 48, 52, 56, 64, 16, 128, 152, 160, 168, 204; ST = (200, 201, 202)
    LST = 128 * 1024; D = F.GD; NF = 4 * KS
    wreg = lambda n, t, k=4, o=0: ar((n * 2 + t) * 4 + o, k)
    done = A.newlabel("done")
    lanes(A)
    arg, ld, nbytes = dict(wo=("Wo", 2048, 8 * MB), w1=("w1", 2048, 2 * MB), w2=("w2", 2048, 2 * MB), w3=("w3", 7168, 7 * MB), w4=("w4", 2048, 7 * MB))[kind]
    ldptr(A, 4, arg)
    if xch: ldptr(A, 6, "x" if kind == "wo" else "out"); A.e("s_lshr_b32 s52, s59, 3\ns_and_b32 s53, s59, 7")
    else: A.e("s_mov_b32 s52, 0\ns_mov_b32 s53, s59")
    A.e(f"s_mul_i32 s54, s52, {NF*32*ld}\ns_lshl_b32 s64, s53, 8\ns_add_u32 s54, s54, s64\ns_lshl_b32 s64, s50, 6\ns_add_u32 s54, s54, s64\ns_waitcnt lgkmcnt(0)")
    A.srd(28, 4, nbytes)
    if xch: A.srd(24, 6, S * D_ * 2)
    def rdw(x):
        def f(buf):
            for kk in range(KS):
                for t in range(2):
                    for h in range(2): A.e(f"ds_read_b64_tr_b16 {wreg(x*KS+kk,t,2,2*h)}, v17 offset:{buf + (32*kk + 4*h)*64 + 8*t}")
                if kk % 3 == 2: A.e("s_waitcnt lgkmcnt(0)")
        return f
    A.e("s_and_b32 s55, s53, 7" + ("\ns_cmp_eq_u32 s55, 7\ns_cselect_b32 s55, 0, s55" if KS == 7 else ""))
    if kind == "w4" and F.W4G: cpoll(A, L, {C_M2: 63}, sl=F.VSL2)
    stage_weights(A, [(28, f"s_xor_b32 s62, s50, {x}\ns_mul_i32 s62, s62, {KS*32*ld}\ns_add_u32 s62, s62, s54", KS * 32, rdw(x)) for x in range(4)], ld, None, F.NFL2, None, 55 if F.ROT else None)
    verify(A, L, False, "mod")
    inb, ust = dict(wo=(OB, 131072), w1=(H2, 32768), w2=(G1, 32768), w3=(Y1, 32768), w4=(G3, 112 * 1024))[kind]
    A.e(f"""
    s_barrier
    v_lshlrev_b32 v{L16}, 4, v1
    s_mov_b32 s60, 0
    s_mov_b32 s70, 0
    s_mov_b32 s72, s55
    s_mov_b32 s55, 0
    s_lshl_b32 s63, s50, 13
    v_mov_b32 v{VA}, v{L16}
    s_mov_b32 s73, 0xffff0000
    s_lshl_b32 s64, s52, 2
    s_add_u32 s64, s64, s50
    s_mul_i32 s61, s64, {KS*1024}
    s_add_u32 s61, s61, {inb}
    s_lshl_b32 s82, s64, 8
    s_add_u32 s82, s82, {dict(wo=F_ATT, w1=F_LN, w2=F_W1, w3=F_W2, w4=F_W3)[kind]}
    s_mov_b32 s68, s82
    s_lshl_b32 s83, s53, 2
    s_add_u32 s83, s83, s50            ; output fragment index""")
    for x in range(4): A.e(f"s_xor_b32 s64, s50, {x}\ns_lshl_b32 s64, s64, 13\nv_add_u32 v{VRB+x}, s64, v{L16}")
    nfl = dict(wo=4, w1=4, w2=8, w3=8, w4=7)[kind]
    A.e(f"v_min_u32 v{VFA}, {nfl-1}, v1\nv_lshlrev_b32 v{VFA}, 2, v{VFA}")
    if res:
        A.e(f"""
        s_lshr_b32 s64, s50, 1
        s_add_u32 s64, s64, 1
        s_sub_u32 s65, 0, s64
        s_bitcmp1_b32 s50, 0
        s_cselect_b32 s64, s64, s65
        s_add_u32 s64, s64, 16
        v_add_u32 v26, s64, v21
        v_lshrrev_b32 v27, 4, v26
        v_and_b32 v26, 15, v26
        v_lshl_add_u32 v26, v22, 4, v26
        v_lshlrev_b32 v26, 4, v26
        v_lshl_add_u32 v{VA}, v27, 15, v26
        s_sub_u32 s61, s61, 32768""")
    VAR = 208
    if F.ROT:
        for i in range(KS): A.e(f"s_add_u32 s64, s72, {i}\ns_sub_u32 s65, s64, {KS}\ns_cselect_b32 s64, s64, s65\ns_lshl_b32 s64, s64, 10\ns_add_u32 s64, s64, {4096 - (i&3)*1024}\nv_add_u32 v{VAR+i}, s64, v{VA}")
        A.e("s_sub_u32 s61, s61, 4096")
    A.e("s_lshl_b32 s66, s83, 10")
    if kind == "w3":
        A.e(f"s_mul_i32 s65, s83, 147\ns_lshr_b32 s65, s65, 10\ns_mul_i32 s69, s65, {256 - 28}\ns_lshl_b32 s64, s83, 2\ns_add_u32 s69, s69, s64\ns_add_u32 s69, s69, {F_W3}")
    else:
        A.e(f"s_lshr_b32 s65, s83, 3\ns_lshl_b32 s65, s65, 8\ns_and_b32 s64, s83, 7\ns_lshl_b32 s64, s64, 2\ns_add_u32 s69, s64, s65\ns_add_u32 s69, s69, {dict(wo=F_WO, w1=F_W1, w2=F_W2, w4=F_W4)[kind]}")
    outb, ost = dict(wo=(X1, 32768), w1=(G1, 32768), w2=(Y1, 32768), w3=(G3, 112 * 1024), w4=(0, 32768))[kind]
    if xch:
        A.e(f"""
        s_lshl_b32 s64, s53, 2
        s_add_u32 s64, s64, s50
        s_mul_i32 s74, s64, {4*6144}
        s_xor_b32 s64, s50, s52
        s_sub_u32 s64, s64, 1
        s_max_i32 s64, s64, 0
        s_lshl_b32 s64, s64, 11
        s_add_u32 s74, s74, s64
        s_add_u32 s74, s74, {XP + (0 if kind == 'wo' else 768*KB)}
        s_mov_b32 s75, 0
        s_mov_b32 s76, 0
        s_mov_b32 s77, 0                   ; pending
        v_lshlrev_b32 v26, 11, v21
        v_lshl_add_u32 v26, v22, 4, v26
        s_lshl_b32 s64, s83, 6
        v_add_u32 v{VO}, s64, v26
        v_lshlrev_b32 v26, 5, v22
        s_lshl_b32 s64, s83, 7
        s_add_u32 s64, s64, {MOD + (2 if kind == 'wo' else 5)*4096}""")
        for g in range(4):
            for i in range(2): A.e(f"buffer_load_dwordx4 {vr((CS if g == 0 else PKT + 8*(g-1)) + 4*i, 4)}, v26, {WSRD}, s64 offen offset:{16*i} sc1")
            A.e(f"s_add_u32 s64, s64, {6144*4}")
        A.e("s_waitcnt vmcnt(0)")
        sum4(A, CS, PKT, 8)
        for i in range(4): A.e(f"v_mov_b32 v{M1+i}, -1")
    if stats:
        A.e(f"""
        s_lshl_b32 s64, s50, 9
        s_add_u32 s64, s64, {LST}
        v_lshlrev_b32 v26, 3, v1
        v_add_u32 v{VSW}, s64, v26
        v_lshl_add_u32 v26, v23, 4, v21
        v_lshlrev_b32 v26, 3, v26
        v_add_u32 v{VSR}, {LST}, v26
        s_mov_b32 s74, 0x22222222
        s_mov_b32 s75, 0x22222222
        s_mov_b32 s76, 0x44444444
        s_mov_b32 s77, 0x44444444
        s_mov_b32 s78, 0x88888888
        s_mov_b32 s79, 0x88888888
        s_mov_b32 s80, {f2u(GELU_C0):#x}
        s_mov_b32 s81, {f2u(GELU_C1):#x}
        v_mov_b32 v{TM+23}, s80""")
        for i in range(4): A.e(f"v_mov_b32 v{ONE+i}, 0x3f803f80")
        for n in range(NF):
            for t in range(2): A.e(f"{MF} {vr(CS+4*t,4)}, {wreg(n,t)}, {vr(ONE,4)}, {vr(CS+4*t,4) if n else 0}")
    def loads():
        o = ["s_add_u32 m0, s70, s63"] + ([] if F.ROT else ["s_add_u32 s62, s61, 4096"])
        for i in range(KS):
            o.append(f"buffer_load_dwordx4 v{VAR+i}, {WSRD}, s61 offen offset:{(i&3)*1024} lds" if F.ROT else f"buffer_load_dwordx4 v{VA}, {WSRD}, s{61+(i>>2)} offen offset:{(i&3)*1024} lds")
            if i == 3: o.append("s_add_u32 m0, m0, 4096")
        return o + [f"s_add_u32 s61, s61, {ust}", "s_add_u32 s70, s70, 32768", "s_and_b32 s70, s70, 0x1ffff"]
    pollld = f"buffer_load_dword v{VF}, v{VFA}, {WSRD}, s68 offen sc1"
    def need(add, d=71):
        if F.FREE: A.e(f"s_cmp_ge_u32 s60, {NU-add}\ns_cselect_b32 s{d}, -1, 0"); return
        A.e(f"s_add_u32 s{d}, s60, {add+1}")
        if res: A.e(f"s_and_b32 s64, s50, 1\ns_add_u32 s{d}, s{d}, s64\ns_min_u32 s{d}, s{d}, {NU}\ns_cmp_ge_u32 s60, {NU-add}\ns_cselect_b32 s{d}, -1, s{d}")
    xr = lambda n: vr(XW + 4 * (n % NW), 4)
    rd = lambda n: f"ds_read_b128 {xr(n)}, v{VRD + n//KS} offset:{(n%KS)*1024}"
    def mm(n):
        o = [f"{MF} {vr(ACC+4*t,4)}, {wreg(n,t)}, {xr(n)}, {vr(ACC+4*t,4) if n else 0}" for t in range(2)]
        if stats and n < KS: o += [f"{MF} {vr(S1,4)}, {vr(ONE,4)}, {xr(n)}, {vr(S1,4) if n else 0}", f"{MF} {vr(S2,4)}, {xr(n)}, {xr(n)}, {vr(S2,4) if n else 0}"]
        return o
    def both(f):
        l1 = A.newlabel("b1"); l2 = A.newlabel("b2")
        A.e(f"s_cmp_eq_u32 s56, 1\ns_cbranch_scc1 {l1}"); f("")
        A.label(l2)
        def d(): A.label(l1); A.e("s_nop 7"); f("sc1"); A.e(f"s_branch {l2}")
        tail.append(d)
    def f1():
        A.e("s_add_u32 s64, s74, s75\ns_add_u32 s65, s64, 4096")
        for i in range(6): A.e(f"buffer_load_dwordx4 {vr(PKT+4*i,4)}, v{L16}, {WSRD}, s{64+(i>>2)} offen offset:{(i&3)*1024} sc1")
    def fres():
        if kind == "wo": A.e(f"s_and_b32 s64, s66, 0xffff8000\nbuffer_load_dwordx4 {vr(RES,4)}, v{VO}, s[24:27], s64 offen")
        else: A.e(f"s_add_u32 s64, s66, {X1}\nbuffer_load_dwordx4 {vr(RES,4)}, v{L16}, {WSRD}, s64 offen\ns_add_u32 s64, s66, {Y1}\nbuffer_load_dwordx4 {vr(RES+4,4)}, v{L16}, {WSRD}, s64 offen")
    def f2():
        ck = A.newlabel("ck"); rt = A.newlabel("rt"); go = A.newlabel("go")
        A.label(ck)
        for i in range(0, 8, 2): A.e(f"v_pk_add_f32 {vr(PKT+i,2)}, {vr(PKT+i,2)}, {vr(PKT+8+i,2)}\nv_pk_add_f32 {vr(PKT+16+i,2)}, {vr(PKT+16+i,2)}, {vr(FIN+i,2)}")
        for i in range(0, 8, 2): A.e(f"v_pk_add_f32 {vr(PKT+i,2)}, {vr(PKT+i,2)}, {vr(PKT+16+i,2)}")
        A.e(f"v_pk_add_f32 {vr(TM,2)}, {vr(PKT,2)}, {vr(PKT+2,2)}\nv_pk_add_f32 {vr(TM+2,2)}, {vr(PKT+4,2)}, {vr(PKT+6,2)}\nv_pk_add_f32 {vr(TM,2)}, {vr(TM,2)}, {vr(TM+2,2)}")
        A.e(f"v_cmp_u_f32 vcc, v{TM}, v{TM+1}\ns_cbranch_vccnz {rt}")
        A.label(go)
        def d():
            A.label(rt)
            A.e(f"s_sub_u32 s90, s90, 1\ns_cmp_gt_i32 s90, 0\ns_cbranch_scc0 {go}"); f1(); A.e(f"s_waitcnt vmcnt(0)\ns_branch {ck}")
        tail.append(d)
        unpack(A, RES, TM, 4)
        if kind == "w4":
            unpack(A, RES + 4, TM + 8, 4)
            for i in range(0, 8, 2): A.e(f"v_pk_add_f32 {vr(PKT+i,2)}, {vr(PKT+i,2)}, {vr(TM+8+i,2)}")
        for i in range(8): A.e(f"v_fma_f32 v{TM+i}, v{PKT+i}, v{CS+i}, v{TM+i}")
        for i in range(4): A.e(f"v_cvt_pk_bf16_f32 v{TM+8+i}, v{TM+2*i}, v{TM+2*i+1}")
        if kind == "wo": A.e(f"s_add_u32 s64, s66, {X1}\nbuffer_store_dwordx4 {vr(TM+8,4)}, v{L16}, {WSRD}, s64 offen sc1")
        else: A.e(f"s_and_b32 s64, s66, 0xffff8000\nbuffer_store_dwordx4 {vr(TM+8,4)}, v{VO}, s[24:27], s64 offen")
        A.e("s_add_u32 s64, s74, s75\ns_add_u32 s65, s64, 4096")
        def rs(fl):
            for i in range(6): A.e(f"buffer_store_dwordx4 {vr(M1,4)}, v{L16}, {WSRD}, s{64+(i>>2)} offen offset:{(i&3)*1024} {fl}")
        both(rs)
        A.e(f"s_add_u32 s66, s66, {ost}\ns_add_u32 s75, s75, 6144\ns_cmp_eq_u32 s75, {4*6144}\ns_cselect_b32 s75, 0, s75\ns_add_u32 s76, s76, 1\ns_mov_b32 s77, 0")
    tail = []
    def loop(fin):
        send = xch and not fin
        NS = 0 if fin else (2 if send else 1)
        flg = (not send) and kind != "w4"
        fl = lambda: flag_store(A, VT, "s76" if fin else "s60", 69) if flg else None
        def dummies():
            for _ in range(NS): A.e(f"buffer_load_dword v{VT}, off, {WSRD}, s69")
        top = A.newlabel("top"); vN = A.newlabel("vN"); join = A.newlabel("join"); slowp = A.newlabel("slowp"); lag = A.newlabel("lag")
        need(0); poll_loop(A, pollld, VF, 71)
        A.label(lag)
        for x in loads(): A.e(x)
        dummies()
        A.e("s_mov_b32 s72, 1\ns_mov_b32 s54, 0")
        A.label(top)
        need(1)
        if F.P2: need(2, 53)
        A.e(pollld)
        ex = 1
        if fin: f1(); fres(); ex += 6 + (1 if kind == "wo" else 2)
        elif res: A.e(f"s_add_u32 s64, s66, {H2}\nbuffer_load_dwordx4 {vr(RES,4)}, v{L16}, {WSRD}, s64 offen"); ex += 1
        for x in range(4): A.e(f"v_add_u32 v{VRD+x}, s55, v{VRB+x}")
        A.e("s_add_u32 s55, s55, 32768\ns_and_b32 s55, s55, 0x1ffff")
        tst(A, 0)
        def head(w):
            Z = Sched(A)
            for i in range(KS):
                if w: A.e(f"s_waitcnt vmcnt({KS-1-i+NS+ex})")
                Z.lds(rd(i), i)
                if i == KS - 1: A.e("s_barrier")
                if i >= 2:
                    Z.need(i - 2)
                    for x in mm(i - 2): A.e(x)
            return Z
        if F.P2:
            tA = A.newlabel("tA"); tC = A.newlabel("tC"); cont = A.newlabel("cont")
            A.e(f"s_cmp_lg_u32 s72, 2\ns_cbranch_scc1 {tC}"); A.label(tA)
            Z = head(False); A.label(cont)
            def dH():
                tB = A.newlabel("tB")
                A.label(tC); A.e(f"s_cmp_eq_u32 s72, 1\ns_cbranch_scc1 {tB}\ns_waitcnt vmcnt({KS+NS+ex})\ns_branch {tA}")
                A.label(tB); head(True); A.e(f"s_branch {cont}")
            tail.append(dH)
        else: Z = head(True)
        tst(A, 1)
        nr = [KS]
        def run(Z, lo, hi, fill={}):
            for n in range(lo, hi):
                while nr[0] < min(NF, n + D + 1) and nr[0] < n + 3: Z.lds(rd(nr[0]), nr[0]); nr[0] += 1
                Z.need(n)
                for k, x in enumerate(mm(n)):
                    A.e(x)
                    if k == 0:
                        for _ in range(2):
                            if nr[0] < min(NF, n + D + 1): Z.lds(rd(nr[0]), nr[0]); nr[0] += 1
                    for y in fill.get((n, k), []):
                        if y.startswith("ds_"): Z.lds(y, y)
                        elif y.startswith("need "): Z.need(y[5:])
                        else: A.e(y)
        fill = {}
        MID = F.GM * NF // 32
        if stats:
            sw = f"ds_write_b64 v{VSW}, {vr(S1,2)}"
            fill[(KS + 3, 0)] = [f"v_cndmask_b32 v{S1+1}, v{S2}, v{S2+1}, s[74:75]"]; fill[(KS + 3, 1)] = [f"v_cndmask_b32 v{S1+1}, v{S1+1}, v{S2+2}, s[76:77]"]
            fill[(KS + 4, 0)] = [f"v_cndmask_b32 v{S1+1}, v{S1+1}, v{S2+3}, s[78:79]"]; fill[(KS + 4, 1)] = [sw]
            srd_ = [f"ds_read_b64 {vr(SP+2*w,2)}, v{VSR} offset:{w*512}" for w in range(4)]
            fill[(KS + 8, 1)] = ["need " + sw, "s_barrier"] + srd_[:2]; fill[(KS + 9, 0)] = srd_[2:]
            i0 = len(A.lines); stats_fin(A, SP, TM + 21, TM + 22, 1); sf = [x.strip() for x in A.lines[i0:]]; del A.lines[i0:]
            sf = ["need " + srd_[3]] + sf
            for k, x in enumerate(sf): fill.setdefault((KS + 13 + k // 2, k & 1), []).append(x)
            assert KS + 13 + len(sf) // 2 < NF
        run(Z, KS - 2, MID, fill)
        tst(A, 2)
        A.e("s_waitcnt vmcnt(0)")
        tst(A, 3)
        if fin:
            np_ = A.newlabel("np"); A.e(f"s_cmp_eq_u32 s77, 0\ns_cbranch_scc1 {np_}"); f2(); A.label(np_)
        else: fl()
        if F.P2:
            vD = A.newlabel("vD"); bk = A.newlabel("bk")
            A.e(f"s_cmp_eq_u32 s54, 0\ns_cselect_b32 s64, s71, s53\nv_cmp_gt_u32 vcc, s64, v{VF}\ns_cbranch_vccnz {vN}\ns_mov_b32 s72, 2\ns_cbranch_scc1 {vD}"); A.label(bk)
            def dD():
                A.label(vD); A.e(f"s_mov_b32 s72, 1\nv_cmp_gt_u32 vcc, s53, v{VF}\ns_cbranch_vccnz {bk}")
                for x in loads(): A.e(x)
                A.e(f"s_mov_b32 s72, 3\ns_mov_b32 s54, 1\ns_branch {bk}")
            tail.append(dD)
        else: A.e(f"v_cmp_gt_u32 vcc, s71, v{VF}\ns_cbranch_vccnz {vN}\ns_mov_b32 s72, 1")
        n0 = nr[0]; Z2 = Z.copy()
        fR = {k: list(v) for k, v in fill.items()}
        sl_ = 0
        for k, x in enumerate(loads()):
            fR.setdefault((MID + sl_ // 2, sl_ & 1), []).append(x); sl_ += F.GS if x.startswith("buffer") else 1
        assert MID + sl_ // 2 <= NF
        run(Z, MID, NF, fR)
        A.label(join)
        def dN():
            A.label(vN); A.e(pollld); nr[0] = n0
            run(Z2, MID, NF, fill)
            if F.P2:
                A.e("s_lshl_b32 s72, s54, 1\ns_mov_b32 s54, 0")
                if fin and flg: A.e("s_waitcnt vmcnt(7)")
            else: A.e("s_mov_b32 s72, 0")
            A.e(f"s_branch {join}")
        tail.append(dN)
        tst(A, 4)
        a = ACC
        if fin:
            for i in range(8): A.e(f"v_mov_b32 v{FIN+i}, v{a+i}")
            A.e("s_mov_b32 s77, 1")
        elif send:
            A.e("s_add_u32 s64, s74, s75")
            both(lambda f_: [A.e(f"buffer_store_dwordx4 {vr(a+4*t,4)}, v{L16}, {WSRD}, s64 offen offset:{t*1024} {f_}") for t in range(2)])
            A.e(f"s_add_u32 s75, s75, 6144\ns_cmp_eq_u32 s75, {4*6144}\ns_cselect_b32 s75, 0, s75")
        else:
            if stats:
                for i in range(8): A.e(f"v_fma_f32 v{a+i}, v{CS+i}, v{TM+21}, v{a+i}")
                for i in range(8): A.e(f"v_mul_f32 v{a+i}, v{a+i}, v{TM+22}")
                for op in ("v_mul_f32 v{t}, v{v}, v{v}", "v_fma_f32 v{t}, v{t}, s81, v%d" % (TM + 23), "v_mul_f32 v{t}, v{t}, v{v}", "v_exp_f32 v{t}, v{t}", "v_add_f32 v{t}, 1.0, v{t}", "v_rcp_f32 v{t}, v{t}", "v_mul_f32 v{v}, v{t}, v{v}"):
                    for i in range(8): A.e(op.format(t=TM + i, v=a + i))
            else:
                unpack(A, RES, TM, 4)
                for i in range(8): A.e(f"v_add_f32 v{a+i}, v{a+i}, v{TM+i}")
            for i in range(4): A.e(f"v_cvt_pk_bf16_f32 v{TM+8+i}, v{a+2*i}, v{a+2*i+1}")
            A.e(f"s_add_u32 s64, s66, {outb}\nbuffer_store_dwordx4 {vr(TM+8,4)}, v{L16}, {WSRD}, s64 offen sc1\ns_add_u32 s66, s66, {ost}")
        if F.PROF:
            tst(A, 5); tacc(A, 6)
            if not fin: stamp2(A, ST)
        A.e(f"s_add_u32 s60, s60, 1\ns_cmp_eq_u32 s72, 0\ns_cbranch_scc1 {slowp}")
        if fin and flg: A.e(f"s_waitcnt vmcnt({6+KS})"); fl()
        A.e(f"s_branch {top}")
        A.label(slowp)
        A.e(f"s_waitcnt vmcnt({NS})")
        if fin: fl()
        A.e(f"v_cmp_gt_u32 vcc, s71, v{VF}\ns_cbranch_vccz {lag}")
        if fin:
            fres(); f1(); A.e("s_waitcnt vmcnt(0)"); f2()
            if flg: A.e("s_waitcnt vmcnt(6)")
        elif flg: A.e("s_waitcnt vmcnt(0)")
        fl()
        A.e(f"s_cmp_ge_u32 s60, {NU}\ns_cbranch_scc1 {done}")
        poll_loop(A, pollld, VF, 71)
        A.e(f"s_branch {lag}")
    def pc(k):
        if F.PROF >= 2: A.e(f"s_add_u32 s{98 + k//4}, s{98 + k//4}, {1 << (8 * (k & 3))}")
    def grab(f):
        i0 = len(A.lines); f(); o = [x.strip() for x in A.lines[i0:]]; del A.lines[i0:]; return o
    def f2chk():
        ck = A.newlabel("ck"); rt = A.newlabel("rt"); go = A.newlabel("go")
        A.label(ck)
        for i in range(0, 8, 2): A.e(f"v_pk_add_f32 {vr(PKT+i,2)}, {vr(PKT+i,2)}, {vr(PKT+8+i,2)}\nv_pk_add_f32 {vr(PKT+16+i,2)}, {vr(PKT+16+i,2)}, {vr(FIN+i,2)}")
        for i in range(0, 8, 2): A.e(f"v_pk_add_f32 {vr(PKT+i,2)}, {vr(PKT+i,2)}, {vr(PKT+16+i,2)}")
        A.e(f"v_pk_add_f32 {vr(TM,2)}, {vr(PKT,2)}, {vr(PKT+2,2)}\nv_pk_add_f32 {vr(TM+2,2)}, {vr(PKT+4,2)}, {vr(PKT+6,2)}\nv_pk_add_f32 {vr(TM,2)}, {vr(TM,2)}, {vr(TM+2,2)}")
        A.e(f"v_cmp_u_f32 vcc, v{TM}, v{TM+1}\ns_cbranch_vccnz {rt}")
        A.label(go)
        def d():
            A.label(rt); pc(6)
            A.e(f"s_sub_u32 s90, s90, 1\ns_cmp_gt_i32 s90, 0\ns_cbranch_scc0 {go}"); f1(); A.e(f"s_waitcnt vmcnt(0)\ns_branch {ck}")
        tail.append(d)
    VX, VOX = 21, 22
    def f2rest():
        o = ["s_cmp_eq_u32 s77, 0\ns_cselect_b32 s57, 2.0, 0", f"v_or_b32 v{VX}, s57, v{L16}"] + ([f"v_or_b32 v{VOX}, s57, v{VO}"] if kind == "w4" else [])
        o += grab(lambda: unpack(A, RES, TM, 4))
        if kind == "w4":
            o += grab(lambda: unpack(A, RES + 4, TM + 8, 4))
            o += [f"v_pk_add_f32 {vr(PKT+i,2)}, {vr(PKT+i,2)}, {vr(TM+8+i,2)}" for i in range(0, 8, 2)]
        o += [f"v_fma_f32 v{TM+i}, v{PKT+i}, v{CS+i}, v{TM+i}" for i in range(8)]
        o += [f"v_cvt_pk_bf16_f32 v{TM+8+i}, v{TM+2*i}, v{TM+2*i+1}" for i in range(4)]
        if kind == "wo": o += [f"s_add_u32 s64, s66, {X1}\nbuffer_store_dwordx4 {vr(TM+8,4)}, v{VX}, {WSRD}, s64 offen sc1"]
        else: o += [f"s_and_b32 s64, s66, 0xffff8000\nbuffer_store_dwordx4 {vr(TM+8,4)}, v{VOX}, s[24:27], s64 offen"]
        for h in range(3):
            def rs(fl, h=h):
                for i in (2 * h, 2 * h + 1): A.e(f"buffer_store_dwordx4 {vr(M1,4)}, v{VX}, {WSRD}, s{64+(i>>2)} offen offset:{(i&3)*1024} {fl}")
            o.append("\n".join(["s_add_u32 s64, s74, s75", "s_add_u32 s65, s64, 4096"] + grab(lambda: both(rs))))
        o += [f"s_mul_i32 s64, s77, {ost}\ns_add_u32 s66, s66, s64\ns_mul_i32 s64, s77, 6144\ns_add_u32 s75, s75, s64", f"s_cmp_eq_u32 s75, {4*6144}\ns_cselect_b32 s75, 0, s75\ns_add_u32 s76, s76, s77"]
        r = grab(fres)
        return o + ["\n".join(r[i:i + 2]) for i in range(0, len(r), 2)]
    def cost(x):
        if x.startswith(("v_exp", "v_rcp")): return F.TC
        if "buffer_" in x: return 8
        return 4 if x.startswith("v_") else 2
    def spread(fill, items, lo, budget, hi):
        while True:
            f = {k: list(v) for k, v in fill.items()}; n, k, c = lo, 0, 0
            for x in items:
                if c and c + cost(x) > budget:
                    k += 1; c = 0
                    if k == len(mm(n)): n += 1; k = 0
                f.setdefault((n, k), []).append(x); c += cost(x)
            if n < hi: return f
            budget += 2
    def loop2(fin):
        send = xch and not fin
        NR = 1 if kind == 'wo' else 2
        NS = 7 + NR if fin else (2 if send else 1)
        flg = (not send) and kind != "w4"
        wv = stats and F.WV
        fl = lambda: flag_store(A, VT, "s76" if fin else "s60", 69) if flg else None
        Q1 = KS + F.G1; Q2 = NF - (F.G2 if KS == 8 else F.G2 - F.G2 // 8)
        top = A.newlabel("top"); vN = A.newlabel("vN"); join = A.newlabel("join"); slowp = A.newlabel("slowp"); lag = A.newlabel("lag")
        topW = A.newlabel("topW"); cont = A.newlabel("cont"); epiI = A.newlabel("epiI")
        ex = 2 if res else 1
        nr = [0]
        def emit(Z, y):
            if y.startswith("ds_"): Z.lds(y, y)
            elif y.startswith("need "): Z.need(y[5:])
            else: A.e(y)
        def run(Z, lo, hi, fill={}):
            for n in range(lo, hi):
                while nr[0] < min(NF, n + D + 1) and nr[0] < n + 3: Z.lds(rd(nr[0]), nr[0]); nr[0] += 1
                Z.need(n)
                for k, x in enumerate(mm(n)):
                    A.e(x)
                    if k == 0:
                        for _ in range(2):
                            if nr[0] < min(NF, n + D + 1): Z.lds(rd(nr[0]), nr[0]); nr[0] += 1
                    for y in fill.get((n, k), []): emit(Z, y)
        def pre():
            need(1); need(2, 53)
            A.e(pollld)
            if res: A.e(f"s_add_u32 s64, s66, {H2}\nbuffer_load_dwordx4 {vr(RES,4)}, v{L16}, {WSRD}, s64 offen")
            for x in range(4): A.e(f"v_add_u32 v{VRD+x}, s55, v{VRB+x}")
            A.e("s_add_u32 s55, s55, 32768\ns_and_b32 s55, s55, 0x1ffff")
            tst(A, 0)
        def head(w, fill={}, early=[]):
            Z = Sched(A)
            for i in range(KS):
                if w: A.e(f"s_waitcnt vmcnt({KS-1-i+NS+ex})")
                Z.lds(rd(i), i)
                if i == KS - 1: A.e("s_barrier")
                if i == 2:
                    for x in early: A.e(x)
                if i >= 2:
                    Z.need(i - 2)
                    for k, x in enumerate(mm(i - 2)):
                        A.e(x)
                        for y in fill.get((i - 2, k), []): emit(Z, y)
            nr[0] = KS
            return Z
        fill = {}
        if stats:
            sw = f"ds_write_b64 v{VSW}, {vr(S1,2)}"
            fill[(KS + 3, 0)] = [f"v_cndmask_b32 v{S1+1}, v{S2}, v{S2+1}, s[74:75]"]; fill[(KS + 3, 1)] = [f"v_cndmask_b32 v{S1+1}, v{S1+1}, v{S2+2}, s[76:77]"]
            fill[(KS + 4, 0)] = [f"v_cndmask_b32 v{S1+1}, v{S1+1}, v{S2+3}, s[78:79]"]; fill[(KS + 4, 1)] = [sw]
            srd_ = [f"ds_read_b64 {vr(SP+2*w,2)}, v{VSR} offset:{w*512}" for w in range(4)]
            fill[(KS + 8, 1)] = ["need " + sw, "s_barrier"] + srd_[:2]; fill[(KS + 9, 0)] = srd_[2:]
            sf = ["need " + srd_[3]] + grab(lambda: stats_fin(A, SP, TM + 21, TM + 22, 1))
            for k, x in enumerate(sf): fill.setdefault((KS + 13 + k // 2, k & 1), []).append(x)
            assert KS + 13 + len(sf) // 2 < NF
        cpy = [f"v_fma_f32 v{FIN+i}, v{CS+i}, v{TM+21}, v{ACC+i}" for i in range(8)]
        def gelu(a):
            o = [f"v_mul_f32 v{a+i}, v{a+i}, v{TM+22}" for i in range(8)]
            for op in ("v_mul_f32 v{t}, v{v}, v{v}", "v_fma_f32 v{t}, v{t}, s81, v%d" % (TM + 23), "v_mul_f32 v{t}, v{t}, v{v}"): o += [op.format(t=TM + i, v=a + i) for i in range(8)]
            e = [f"v_exp_f32 v{TM+i}, v{TM+i}" for i in range(8)]; p = [f"v_add_f32 v{TM+i}, 1.0, v{TM+i}" for i in range(8)]
            r = [f"v_rcp_f32 v{TM+i}, v{TM+i}" for i in range(8)]; m = [f"v_mul_f32 v{a+i}, v{TM+i}, v{a+i}" for i in range(8)]
            o += e[:2] + [x for i in range(2, 8) for x in (e[i], p[i - 2])] + p[6:] + r[:2] + [x for i in range(2, 8) for x in (r[i], m[i - 2])] + m[6:]
            return o
        def outst(a): return [f"v_cvt_pk_bf16_f32 v{TM+8+i}, v{a+2*i}, v{a+2*i+1}" for i in range(4)] + [f"s_add_u32 s64, s66, {outb}\nbuffer_store_dwordx4 {vr(TM+8,4)}, v{L16}, {WSRD}, s64 offen sc1\ns_add_u32 s66, s66, {ost}"]
        if fin: fres()
        need(0); poll_loop(A, pollld, VF, 71)
        A.label(lag); pc(0)
        for x in loads(): A.e(x)
        for _ in range(NS): A.e(f"buffer_load_dword v{VT}, off, {WSRD}, s69")
        A.e("s_mov_b32 s72, 1\ns_mov_b32 s54, 0")
        def first_i(main):
            tA = A.newlabel("tA"); tC = A.newlabel("tC"); c2 = A.newlabel("c2"); tB = A.newlabel("tB")
            A.label(top); pre()
            A.e(f"s_cmp_lg_u32 s72, 2\ns_cbranch_scc1 {tC}"); A.label(tA)
            Z = head(False); A.label(c2)
            def dH():
                n0 = nr[0]
                A.label(tC); A.e(f"s_cmp_eq_u32 s72, 1\ns_cbranch_scc1 {tB}\ns_waitcnt vmcnt({KS+NS+ex})\ns_branch {tA}")
                A.label(tB); pc(4); head(True)
                if flg and F.FH: A.e(f"s_waitcnt vmcnt({ex + (NS - 1 if fin else 0)})"); fl()
                A.e(f"s_branch {c2}"); nr[0] = n0
            tail.append(dH)
            tst(A, 1)
            run(Z, KS - 2, Q1, fill)
            A.e(f"s_waitcnt vmcnt({ex-1})"); fl()
            if wv: A.e("s_mov_b32 s57, 0")
            return Z
        Z = first_i(True)
        if wv:
            A.e(f"s_branch {cont}")
            A.label(topW); pc(3); pre()
            G = gelu(FIN) + outst(FIN)
            fW = spread(fill, G[F.WE:], 0, F.WB, Q1)
            Z = head(False, fW, cpy + G[:F.WE]); tst(A, 1); run(Z, KS - 2, Q1, fW)
            A.e("s_waitcnt vmcnt(1)\ns_mov_b32 s57, 1" if not F.XW & 1 else "s_mov_b32 s57, 1")
        A.label(cont)
        tst(A, 2)
        if fin: f1()
        vD = A.newlabel("vD"); bk = A.newlabel("bk")
        A.e(f"s_cmp_eq_u32 s54, 0\ns_cselect_b32 s64, s71, s53\nv_cmp_gt_u32 vcc, s64, v{VF}\ns_cbranch_vccnz {vN}\ns_mov_b32 s72, 2\ns_cbranch_scc1 {vD}"); A.label(bk)
        def dD():
            A.label(vD); A.e(f"s_mov_b32 s72, 1\nv_cmp_gt_u32 vcc, s53, v{VF}\ns_cbranch_vccnz {bk}")
            pc(1)
            for x in loads(): A.e(x)
            A.e(f"s_mov_b32 s72, 3\ns_mov_b32 s54, 1\ns_branch {bk}")
        tail.append(dD)
        n0 = nr[0]; Z2 = Z.copy()
        def burst(lab, back, post=""):
            def d():
                A.label(lab); pc(7)
                for x in loads(): A.e(x)
                A.e(post); A.e(f"s_branch {back}")
            tail.append(d)
        def second(Z, R):
            f = {k: list(v) for k, v in fill.items()}
            if R:
                L_ = loads(); ns = 2 * (Q2 - Q1); i = 0
                for x in L_:
                    sl_ = min(ns - 1, i * ns // KS); f.setdefault((Q1 + sl_ // 2, sl_ & 1), []).append(x)
                    if x.startswith("buffer"): i += 1
            else: A.e(pollld)
            run(Z, Q1, Q2, f)
            tst(A, 3)
            if R and (fin or wv) and not (wv and F.XW & 2):
                w2_ = A.newlabel("w2"); w3_ = A.newlabel("w3")
                A.e(f"s_cmp_eq_u32 s72, 3\ns_cbranch_scc1 {w2_}\ns_waitcnt vmcnt({KS})"); A.label(w3_)
                def d(): A.label(w2_); A.e(f"s_waitcnt vmcnt({2*KS})\ns_branch {w3_}")
                tail.append(d)
            if not R: A.e("s_waitcnt vmcnt(0)")
            if wv:
                sk = A.newlabel("sk"); A.e(f"s_cmp_eq_u32 s57, 0\ns_cbranch_scc1 {sk}"); fl(); A.label(sk)
            if not R:
                b1 = A.newlabel("bu"); b2 = A.newlabel("bb")
                A.e(f"s_cmp_eq_u32 s54, 0\ns_cselect_b32 s64, s71, s53\nv_cmp_gt_u32 vcc, s64, v{VF}\ns_cbranch_vccz {b1}\ns_lshl_b32 s72, s54, 1\ns_mov_b32 s54, 0")
                A.e(pollld); A.label(b2)
                burst(b1, b2, "s_add_u32 s72, s54, 1")
            f = fill
            if fin:
                sk = A.newlabel("sk"); A.e(f"s_cmp_eq_u32 s77, 0\ns_cbranch_scc1 {sk}"); f2chk(); A.label(sk)
                f = spread(fill, f2rest(), Q2, F.FB, NF)
            run(Z, Q2, NF, f)
            if res and R: A.e(f"s_waitcnt vmcnt({KS})")
            if wv and R and F.XW: A.e(f"s_waitcnt vmcnt({KS+3})")
        second(Z, True)
        A.label(join)
        def dN():
            A.label(vN); pc(2); nr[0] = n0
            second(Z2, False)
            if not fin:
                b1 = A.newlabel("bu")
                A.e(f"s_cmp_lg_u32 s72, 0\ns_cbranch_scc1 {join}\ns_waitcnt vmcnt(0)\nv_cmp_gt_u32 vcc, s71, v{VF}\ns_cbranch_vccz {b1}")
                A.e(pollld)
                burst(b1, join, "s_mov_b32 s72, 1")
            A.e(f"s_branch {join}")
        tail.append(dN)
        tst(A, 4)
        a = ACC
        def prof():
            if F.PROF:
                tst(A, 5); tacc(A, 6)
                if not fin: stamp2(A, ST)
        if fin:
            if F.PROF:
                sk = A.newlabel("sk"); A.e(f"s_cmp_eq_u32 s77, 0\ns_cbranch_scc1 {sk}"); stamp2(A, ST, "s76", 1); A.label(sk); A.e("s_nop 4")
            for i in range(8): A.e(f"v_mov_b32 v{FIN+i}, v{a+i}")
            A.e("s_mov_b32 s77, 1")
        elif send:
            A.e("s_add_u32 s64, s74, s75")
            both(lambda f_: [A.e(f"buffer_store_dwordx4 {vr(a+4*t,4)}, v{L16}, {WSRD}, s64 offen offset:{t*1024} {f_}") for t in range(2)])
            A.e(f"s_add_u32 s75, s75, 6144\ns_cmp_eq_u32 s75, {4*6144}\ns_cselect_b32 s75, 0, s75")
        elif stats:
            if wv:
                A.e(f"s_cmp_lg_u32 s72, 2\ns_cbranch_scc1 {epiI}"); prof(); A.e(f"s_add_u32 s60, s60, 1\ns_branch {topW}"); A.label(epiI); A.e("s_nop 3")
            for x in cpy + gelu(FIN) + outst(FIN): A.e(x)
        else:
            unpack(A, RES, TM, 4)
            for i in range(8): A.e(f"v_add_f32 v{a+i}, v{a+i}, v{TM+i}")
            for x in outst(a): A.e(x)
        prof()
        A.e(f"s_add_u32 s60, s60, 1\ns_cmp_lg_u32 s72, 0\ns_cbranch_scc1 {top}")
        if fin:
            l2 = A.newlabel("l2")
            f1(); A.e("s_waitcnt vmcnt(6)"); fl()
            A.e(f"v_cmp_gt_u32 vcc, s71, v{VF}\ns_cbranch_vccnz {l2}")
            pc(0)
            for x in loads(): A.e(x)
            A.e(f"s_waitcnt vmcnt({KS + flg})")
            def fin_now():
                f2chk()
                for x in f2rest(): A.e(x)
                if F.PROF: stamp2(A, ST, "s76", 1)
                A.e("s_mov_b32 s77, 0")
            fin_now()
            A.e(f"s_mov_b32 s72, 1\ns_branch {top}")
            A.label(l2)
            A.e(f"s_waitcnt vmcnt({0 + flg})"); fin_now()
            if flg: A.e(f"s_waitcnt vmcnt({NS-1})")
        else:
            A.e(f"s_waitcnt vmcnt({NS})\nv_cmp_gt_u32 vcc, s71, v{VF}\ns_cbranch_vccz {lag}")
            if flg: A.e("s_waitcnt vmcnt(0)")
        fl()
        A.e(f"s_cmp_ge_u32 s60, {NU}\ns_cbranch_scc1 {done}")
        pc(5); poll_loop(A, pollld, VF, 71)
        A.e(f"s_branch {lag}")
    if F.PROF:
        for r in ST: A.e(f"v_mov_b32 v{r}, 0")
        A.e(f"s_memrealtime s[84:85]\ns_waitcnt lgkmcnt(0)\nv_writelane_b32 v{ST[2]}, s84, 0\nv_writelane_b32 v{ST[2]}, s86, 1")
        if xch:
            _f2 = f2
            def f2():
                _f2(); stamp2(A, ST, "s76", 1)
    tinit(A)
    lp_ = loop2 if F.NL else loop
    if xch:
        lf = A.newlabel("lfin")
        A.e(f"s_cmp_eq_u32 s50, s52\ns_cbranch_scc1 {lf}")
        lp_(False); A.label(lf); lp_(True)
    else: lp_(False)
    while tail: tail.pop(0)()
    A.label(done)
    tout(A, ST[2]); stamp_out(A, ST)
    A.e("s_endpgm")

class VMQ:
    def __init__(self, A, hist): self.A = A; self.q = list(hist); self.done = -1
    def op(self, ins, tag): self.A.e(ins); self.q.append(tag)
    def need(self, tag):
        i = len(self.q) - 1 - self.q[::-1].index(tag)
        if i > self.done:
            n = len(self.q) - 1 - i; assert n < 64
            self.A.e(f"s_waitcnt vmcnt({n})"); self.done = i
def gemm3_role(A, L, kind):
    KS = 7 if kind == "w4" else 8
    stats = kind in ("w1", "w3"); xch = kind in ("wo", "w4"); res = kind == "w2"
    L16, VFA, VA, VW, VR_, ONE, VF, VT, VO, VSW, VSR, VX, VOX = 0, 2, 3, 4, 7, 12, 16, 17, 18, 19, 20, 21, 22
    ACC, AF, RD, FIN, PKT, CS, RES, TM, M1, S1, S2, SP = 32, 64, 96, 120, 128, 152, 160, 168, 204, 208, 212, 216; ST = (200, 201, 202)
    NF = 4 * KS; H = KS - F.H3; OWN = ACC + 24
    wreg = lambda n, t, k=4, o=0: ar((n * 2 + t) * 4 + o, k)
    done = A.newlabel("done"); tail = []
    lanes(A)
    arg, ld, nbytes = dict(wo=("Wo", 2048, 8 * MB), w1=("w1", 2048, 2 * MB), w2=("w2", 2048, 2 * MB), w3=("w3", 7168, 7 * MB), w4=("w4", 2048, 7 * MB))[kind]
    ldptr(A, 4, arg)
    if xch: ldptr(A, 6, "x" if kind == "wo" else "out"); A.e("s_lshr_b32 s52, s59, 3\ns_and_b32 s53, s59, 7")
    else: A.e("s_mov_b32 s52, 0\ns_mov_b32 s53, s59")
    A.e(f"s_lshl_b32 s64, s52, 2\ns_add_u32 s64, s64, s50\ns_mul_i32 s54, s64, {KS*32*ld}\ns_lshl_b32 s64, s53, 8\ns_add_u32 s54, s54, s64\ns_waitcnt lgkmcnt(0)")
    A.srd(28, 4, nbytes)
    if xch: A.srd(24, 6, S * D_ * 2)
    def rdw(x):
        def f(buf):
            for kk in range(KS):
                for t in range(2):
                    for h in range(2): A.e(f"ds_read_b64_tr_b16 {wreg(x*KS+kk,t,2,2*h)}, v17 offset:{buf + (32*kk + 4*h)*64 + 8*t}")
                if kk % 3 == 2: A.e("s_waitcnt lgkmcnt(0)")
        return f
    if kind == "w4" and F.W4G: cpoll(A, L, {C_M2: 63}, sl=F.VSL2)
    stage_weights(A, [(28, f"s_xor_b32 s62, s50, {XO[x]}\ns_lshl_b32 s62, s62, 6\ns_add_u32 s62, s62, s54", KS * 32, rdw(x)) for x in range(4)], ld, None, F.NFL2)
    verify(A, L, False, "mod")
    inb, ust = dict(wo=(OB, 131072), w1=(H2, 32768), w2=(G1, 32768), w3=(Y1, 32768), w4=(G3, 112 * 1024))[kind]
    A.e(f"""
    s_barrier
    v_lshlrev_b32 v{L16}, 4, v1
    s_mov_b32 s60, 0
    v_mov_b32 v{VA}, v{L16}
    s_mov_b32 s73, 0xffff0000
    s_lshl_b32 s64, s52, 2
    s_add_u32 s64, s64, s50
    s_mul_i32 s61, s64, {KS*1024}
    s_add_u32 s61, s61, {inb}
    s_lshl_b32 s68, s64, 8
    s_add_u32 s68, s68, {dict(wo=F_ATT, w1=F_LN, w2=F_W1, w3=F_W2, w4=F_W3)[kind]}
    s_lshl_b32 s83, s53, 2
    s_add_u32 s83, s83, s50            ; output fragment index
    s_mul_i32 s64, s50, 6144
    v_add_u32 v{VR_}, s64, v{L16}
    s_mov_b32 s63, 0""")
    for p in range(3): A.e(f"s_xor_b32 s64, s50, {XO[p]}\ns_mul_i32 s64, s64, 6144\ns_add_u32 s64, s64, {p*2048}\nv_add_u32 v{VW+p}, s64, v{L16}")
    nfl = dict(wo=4, w1=4, w2=8, w3=8, w4=7)[kind]
    A.e(f"v_min_u32 v{VFA}, {nfl-1}, v1\nv_lshlrev_b32 v{VFA}, 2, v{VFA}")
    if res:
        A.e(f"""
        s_lshr_b32 s64, s50, 1
        s_add_u32 s64, s64, 1
        s_sub_u32 s65, 0, s64
        s_bitcmp1_b32 s50, 0
        s_cselect_b32 s64, s64, s65
        s_add_u32 s64, s64, 16
        v_add_u32 v26, s64, v21
        v_lshrrev_b32 v27, 4, v26
        v_and_b32 v26, 15, v26
        v_lshl_add_u32 v26, v22, 4, v26
        v_lshlrev_b32 v26, 4, v26
        v_lshl_add_u32 v{VA}, v27, 15, v26
        s_sub_u32 s61, s61, 32768""")
    A.e("s_add_u32 s62, s61, 4096\ns_lshl_b32 s66, s83, 10")
    if kind == "w3":
        A.e(f"s_mul_i32 s65, s83, 147\ns_lshr_b32 s65, s65, 10\ns_mul_i32 s69, s65, {256 - 28}\ns_lshl_b32 s64, s83, 2\ns_add_u32 s69, s69, s64\ns_add_u32 s69, s69, {F_W3}")
    else:
        A.e(f"s_lshr_b32 s65, s83, 3\ns_lshl_b32 s65, s65, 8\ns_and_b32 s64, s83, 7\ns_lshl_b32 s64, s64, 2\ns_add_u32 s69, s64, s65\ns_add_u32 s69, s69, {dict(wo=F_WO, w1=F_W1, w2=F_W2, w4=F_W4)[kind]}")
    if res: A.e(f"s_add_u32 s82, s66, {H2}")
    outb, ost = dict(wo=(X1, 32768), w1=(G1, 32768), w2=(Y1, 32768), w3=(G3, 112 * 1024), w4=(0, 32768))[kind]
    if xch:
        A.e(f"""
        s_lshl_b32 s64, s53, 2
        s_add_u32 s64, s64, s50
        s_mul_i32 s74, s64, {4*6144}
        s_xor_b32 s64, s50, s52
        s_sub_u32 s64, s64, 1
        s_max_i32 s64, s64, 0
        s_lshl_b32 s64, s64, 11
        s_add_u32 s74, s74, s64
        s_add_u32 s74, s74, {XP + (0 if kind == 'wo' else 768*KB)}
        s_mov_b32 s75, 0
        s_mov_b32 s77, 0                   ; pending
        v_lshlrev_b32 v26, 11, v21
        v_lshl_add_u32 v26, v22, 4, v26
        s_lshl_b32 s64, s83, 6
        v_add_u32 v{VO}, s64, v26
        v_lshlrev_b32 v26, 5, v22
        s_lshl_b32 s64, s83, 7
        s_add_u32 s64, s64, {MOD + (2 if kind == 'wo' else 5)*4096}""")
        for g in range(4):
            for i in range(2): A.e(f"buffer_load_dwordx4 {vr((CS if g == 0 else PKT + 8*(g-1)) + 4*i, 4)}, v26, {WSRD}, s64 offen offset:{16*i} sc1")
            A.e(f"s_add_u32 s64, s64, {6144*4}")
        A.e("s_waitcnt vmcnt(0)")
        sum4(A, CS, PKT, 8)
        for i in range(4): A.e(f"v_mov_b32 v{M1+i}, -1")
    def grab(f):
        i0 = len(A.lines); f(); o = [x.strip() for x in A.lines[i0:]]; del A.lines[i0:]; return o
    wr = lambda p, t: f"ds_write_b128 v{VW+p}, {vr(ACC+(2*p+t)*4,4)} offset:{t*1024}"
    rds = [f"ds_read_b128 {vr(RD+4*i,4)}, v{VR_} offset:{i*1024}" for i in range(6)]
    def adds(dst):
        o = []
        for p in range(3):
            for t in range(2):
                o.append("need " + rds[2 * p + t])
                o += [f"v_pk_add_f32 {vr(dst+4*t+i,2)}, {vr((OWN if p == 0 else dst)+4*t+i,2)}, {vr(RD+8*p+4*t+i,2)}" for i in (0, 2)]
        return o
    togw = [f"v_xor_b32 v{r}, 0x8000, v{r}" for r in [VW, VW + 1, VW + 2] + ([VSW] if stats else [])]
    togr = [f"v_xor_b32 v{r}, 0x8000, v{r}" for r in [VR_] + ([VSR] if stats else [])]
    if stats:
        A.e(f"""
        s_lshl_b32 s64, s50, 9
        s_add_u32 s64, s64, 24576
        v_lshlrev_b32 v26, 3, v1
        v_add_u32 v{VSW}, s64, v26
        v_lshl_add_u32 v26, v23, 4, v21
        v_lshlrev_b32 v26, 3, v26
        v_add_u32 v{VSR}, 24576, v26
        s_mov_b32 s74, 0x22222222
        s_mov_b32 s75, 0x22222222
        s_mov_b32 s76, 0x44444444
        s_mov_b32 s77, 0x44444444
        s_mov_b32 s78, 0x88888888
        s_mov_b32 s79, 0x88888888
        s_mov_b32 s80, {f2u(GELU_C0):#x}
        s_mov_b32 s81, {f2u(GELU_C1):#x}
        v_mov_b32 v{TM+23}, s80""")
        for i in range(4): A.e(f"v_mov_b32 v{ONE+i}, 0x3f803f80")
        for ks in range(KS):
            for p in range(4):
                for t in range(2): a = vr(ACC + (2 * p + t) * 4, 4); A.e(f"{MF} {a}, {wreg(p*KS+ks,t)}, {vr(ONE,4)}, {a if ks else 0}")
        for p in range(3):
            for t in range(2): A.e(wr(p, t))
        A.e("s_waitcnt lgkmcnt(0)\ns_barrier")
        for x in rds: A.e(x)
        A.e("s_waitcnt lgkmcnt(0)")
        for x in adds(CS) + togw + togr:
            if not x.startswith("need"): A.e(x)
    ldA = lambda i: f"buffer_load_dwordx4 {vr(AF+4*i,4)}, v{VA}, {WSRD}, s{61+(i>>2)} offen offset:{(i&3)*1024}"
    if F.FREE == 2: ust = 0
    adv = f"s_add_u32 s61, s61, {ust}\ns_add_u32 s62, s62, {ust}"
    pollld = f"buffer_load_dword v{VF}, v{VFA}, {WSRD}, s68 offen sc1"
    dummy = f"buffer_load_dword v{VT+6}, off, {WSRD}, s69"
    if F.FREE == 3: ldA = lambda i: dummy
    if F.FREE == 4: ldA = lambda i: dummy; pollld = dummy; ost = 0
    def need(add, d):
        if F.FREE: return f"s_cmp_ge_u32 s60, {NU-add}\ns_cselect_b32 s{d}, -1, 0"
        o = f"s_add_u32 s{d}, s60, {add+1}"
        if res: o += f"\ns_and_b32 s64, s50, 1\ns_add_u32 s{d}, s{d}, s64\ns_min_u32 s{d}, s{d}, {NU}\ns_cmp_ge_u32 s60, {NU-add}\ns_cselect_b32 s{d}, -1, s{d}"
        return o
    def both(f):
        l1 = A.newlabel("b1"); l2 = A.newlabel("b2")
        A.e(f"s_cmp_eq_u32 s56, 1\ns_cbranch_scc1 {l1}"); f("")
        A.label(l2)
        def d(): A.label(l1); A.e("s_nop 7"); f("sc1"); A.e(f"s_branch {l2}")
        tail.append(d)
    def pc(k):
        if F.PROF >= 2: A.e(f"s_add_u32 s{98 + k//4}, s{98 + k//4}, {1 << (8 * (k & 3))}")
    f1s = ["s_add_u32 s84, s74, s75\ns_add_u32 s85, s84, 4096"] + [f"vm:pk:buffer_load_dwordx4 {vr(PKT+4*i,4)}, v{L16}, {WSRD}, s{84+(i>>2)} offen offset:{(i&3)*1024} sc1" for i in range(6)]
    if kind == "wo": fres = [f"vm:rs:s_and_b32 s64, s66, 0xffff8000\nbuffer_load_dwordx4 {vr(RES,4)}, v{VO}, s[24:27], s64 offen"]
    else: fres = [f"vm:rs:s_add_u32 s64, s66, {b}\nbuffer_load_dwordx4 {vr(RES+4*i,4)}, v{L16}, {WSRD}, s64 offen" for i, b in enumerate((X1, Y1))]
    plain = lambda x: x.split(":", 2)[2] if x.startswith("vm") else x
    def f2chk():
        ck = A.newlabel("ck"); rt = A.newlabel("rt"); go = A.newlabel("go")
        A.e(f"s_cmp_eq_u32 s77, 0\ns_cbranch_scc1 {go}")
        A.label(ck)
        for i in range(0, 8, 2): A.e(f"v_pk_add_f32 {vr(PKT+i,2)}, {vr(PKT+i,2)}, {vr(PKT+8+i,2)}\nv_pk_add_f32 {vr(PKT+16+i,2)}, {vr(PKT+16+i,2)}, {vr(FIN+i,2)}")
        for i in range(0, 8, 2): A.e(f"v_pk_add_f32 {vr(PKT+i,2)}, {vr(PKT+i,2)}, {vr(PKT+16+i,2)}")
        A.e(f"v_pk_add_f32 {vr(TM,2)}, {vr(PKT,2)}, {vr(PKT+2,2)}\nv_pk_add_f32 {vr(TM+2,2)}, {vr(PKT+4,2)}, {vr(PKT+6,2)}\nv_pk_add_f32 {vr(TM,2)}, {vr(TM,2)}, {vr(TM+2,2)}")
        A.e(f"v_cmp_u_f32 vcc, v{TM}, v{TM+1}\ns_cbranch_vccnz {rt}")
        A.label(go)
        def d():
            A.label(rt); pc(6)
            A.e(f"s_sub_u32 s90, s90, 1\ns_cmp_gt_i32 s90, 0\ns_cbranch_scc0 {go}")
            for x in f1s: A.e(plain(x))
            A.e(f"s_waitcnt vmcnt(0)\ns_branch {ck}")
        tail.append(d)
    def f2rest():
        o = ["s_cmp_eq_u32 s77, 0\ns_cselect_b32 s57, 2.0, 0", f"v_or_b32 v{VX}, s57, v{L16}"] + ([f"v_or_b32 v{VOX}, s57, v{VO}"] if kind == "w4" else [])
        o += grab(lambda: unpack(A, RES, TM, 4))
        if kind == "w4":
            o += grab(lambda: unpack(A, RES + 4, TM + 8, 4))
            o += [f"v_pk_add_f32 {vr(PKT+i,2)}, {vr(PKT+i,2)}, {vr(TM+8+i,2)}" for i in range(0, 8, 2)]
        o += [f"v_fma_f32 v{TM+i}, v{PKT+i}, v{CS+i}, v{TM+i}" for i in range(8)]
        o += [f"v_cvt_pk_bf16_f32 v{TM+8+i}, v{TM+2*i}, v{TM+2*i+1}" for i in range(4)]
        if kind == "wo": o += [f"vm:out:s_add_u32 s64, s66, {X1}\nbuffer_store_dwordx4 {vr(TM+8,4)}, v{VX}, {WSRD}, s64 offen sc1"]
        else: o += [f"vm:out:s_and_b32 s64, s66, 0xffff8000\nbuffer_store_dwordx4 {vr(TM+8,4)}, v{VOX}, s[24:27], s64 offen"]
        for h in range(3):
            def rs(fl, h=h):
                for i in (2 * h, 2 * h + 1): A.e(f"buffer_store_dwordx4 {vr(M1,4)}, v{VX}, {WSRD}, s{84+(i>>2)} offen offset:{(i&3)*1024} {fl}")
            o.append("vm2:rz:" + "\n".join(grab(lambda: both(rs))))
        o += [f"s_mul_i32 s64, s77, {ost}\ns_add_u32 s66, s66, s64\ns_mul_i32 s64, s77, 6144\ns_add_u32 s75, s75, s64", f"s_cmp_eq_u32 s75, {4*6144}\ns_cselect_b32 s75, 0, s75\ns_add_u32 s63, s63, s77"]
        if F.PROF:
            sk = A.newlabel("sk"); o.append("\n".join([f"s_cmp_eq_u32 s77, 0\ns_cbranch_scc1 {sk}"] + grab(lambda: stamp2(A, ST, "s63", 1, 92 if F.PROF == 1 else 84)) + [f"{sk}:"]))
        return o + ["s_mov_b32 s77, 0"] + fres
    def cost(x):
        x = plain(x)
        if x.startswith(("v_exp", "v_rcp", "v_rsq")): return F.TC
        if "buffer_" in x: return 8 * x.count("buffer_")
        if x.startswith("ds_write"): return 8
        if x.startswith(("need", "vneed")): return 2
        return 4 if x.startswith(("v_", "ds_")) else 2 * (x.count("\n") + 1)
    M = []; first = {}; last = {}; fin_ = {}
    def mf(p, t, ks):
        a = vr(ACC + (2 * p + t) * 4, 4); first.setdefault(ks, len(M)); last[ks] = len(M); fin_[(p, t)] = len(M)
        M.append(f"{MF} {a}, {wreg(p*KS+ks,t)}, {vr(AF+4*ks,4)}, {a if ks else 0}")
    def ms(ks):
        if not stats: return
        x = vr(AF + 4 * ks, 4); first.setdefault(ks, len(M)); last[ks] = len(M) + 1; fin_["s"] = len(M) + 1
        M.append(f"{MF} {vr(S1,4)}, {vr(ONE,4)}, {x}, {vr(S1,4) if ks else 0}"); M.append(f"{MF} {vr(S2,4)}, {x}, {x}, {vr(S2,4) if ks else 0}")
    for ks in range(F.OD):
        for p in range(3): mf(p, 0, ks); mf(p, 1, ks)
        ms(ks)
    own0 = len(M)
    for ks in range(F.OD): mf(3, 0, ks); mf(3, 1, ks)
    for ks in range(F.OD, H):
        for p in range(4): mf(p, 0, ks); mf(p, 1, ks)
        ms(ks)
    for ks in range(H, KS): ms(ks)
    for p in range(4):
        for ks in range(H, KS): mf(p, 0, ks); mf(p, 1, ks)
    NM = len(M)
    def loop(fin):
        send = xch and not fin
        NS = 0 if fin else (2 if send else 1)
        flg = (not send) and kind != "w4"
        flag = lambda sv: "vm:fl:" + "\n".join(grab(lambda: flag_store(A, VT, sv, 69)))
        sw = f"ds_write_b64 v{VSW}, {vr(S1,2)}"
        srd_ = [f"ds_read_b64 {vr(SP+2*w,2)}, v{VSR} offset:{w*512}" for w in range(4)]
        def post():
            r = rds + (srd_ if stats else []) + togr
            ad = adds(FIN); o = ad[6:]
            if fin: o += ["s_mov_b32 s77, 1"]
            elif send:
                t_ = grab(lambda: both(lambda f_: [A.e(f"buffer_store_dwordx4 {vr(FIN+4*t,4)}, v{L16}, {WSRD}, s64 offen offset:{t*1024} {f_}") for t in range(2)]))
                o += ["vm2:out:" + "\n".join(["s_add_u32 s64, s74, s75"] + t_), f"s_add_u32 s75, s75, 6144\ns_cmp_eq_u32 s75, {4*6144}\ns_cselect_b32 s75, 0, s75"]
            else:
                a = FIN
                if stats:
                    o = ["need " + srd_[3]] + grab(lambda: stats_fin(A, SP, TM + 21, TM + 22, 1)) + o
                    o += [f"v_fma_f32 v{a+i}, v{CS+i}, v{TM+21}, v{a+i}" for i in range(8)] + [f"v_mul_f32 v{a+i}, v{a+i}, v{TM+22}" for i in range(8)]
                    for op in ("v_mul_f32 v{t}, v{v}, v{v}", "v_fma_f32 v{t}, v{t}, s81, v%d" % (TM + 23), "v_mul_f32 v{t}, v{t}, v{v}"): o += [op.format(t=TM + i, v=a + i) for i in range(8)]
                    e = [f"v_exp_f32 v{TM+i}, v{TM+i}" for i in range(8)]; p = [f"v_add_f32 v{TM+i}, 1.0, v{TM+i}" for i in range(8)]
                    rc = [f"v_rcp_f32 v{TM+i}, v{TM+i}" for i in range(8)]; m = [f"v_mul_f32 v{a+i}, v{TM+i}, v{a+i}" for i in range(8)]
                    o += e[:2] + [x for i in range(2, 8) for x in (e[i], p[i - 2])] + p[6:] + rc[:2] + [x for i in range(2, 8) for x in (rc[i], m[i - 2])] + m[6:]
                else:
                    o = ["vneed res"] + grab(lambda: unpack(A, RES, TM, 4)) + o + [f"v_pk_add_f32 {vr(a+i,2)}, {vr(a+i,2)}, {vr(TM+i,2)}" for i in range(0, 8, 2)]
                o += [f"v_cvt_pk_bf16_f32 v{TM+8+i}, v{a+2*i}, v{a+2*i+1}" for i in range(4)]
                o += [f"vm:out:s_add_u32 s64, s66, {outb}\nbuffer_store_dwordx4 {vr(TM+8,4)}, v{L16}, {WSRD}, s64 offen sc1", f"s_add_u32 s66, s66, {ost}\ns_add_u32 s63, s63, 1"]
                if F.PROF: o.append("\n".join(grab(lambda: stamp2(A, ST, "s63", 1, 92 if F.PROF == 1 else 84))))
            if send and F.PROF: o.append("\n".join(grab(lambda: stamp2(A, ST, "s60", 1, 92 if F.PROF == 1 else 84))))
            return r, ad[:6], o
        def emit(Z, V, y):
            if y.startswith("ds_"): Z.lds(y, y)
            elif y.startswith("need "): Z.need(y[5:])
            elif y.startswith("vneed "): V.need(y[6:])
            elif y.startswith("vm:"): _, tg, x = y.split(":", 2); V.op(x, tg)
            elif y.startswith("vm2:"): _, tg, x = y.split(":", 2); V.op(x, tg); V.q.append(tg)
            elif y == "f2chk": f2chk()
            else: A.e(y)
        def plan(W, R):
            fill = {i: [] for i in range(NM)}; used = [0] * NM
            def put(i, *xs):
                for x in xs: fill[i].append(x); used[i] += cost(x)
            def spread(items, lo, hi, budget):
                while True:
                    i = lo; u = list(used); pos = []
                    for x in items:
                        while i < hi and u[i] and u[i] + cost(x) > budget: i += 1
                        if i >= hi: break
                        pos.append(i); u[i] += cost(x)
                    if len(pos) == len(items): break
                    budget += 2
                for i, x in zip(pos, items): put(i, x)
                return pos
            put(0, need(1, 71)); put(1, need(2, 53))
            if flg and not fin: put(2, "s_mov_b32 s57, s63")
            for p in range(3):
                for t in range(2): put(min(NM - 1, fin_[(p, 1)] + F.WD + t), wr(p, t))
            if stats:
                k = fin_["s"] + F.WD
                put(k, f"v_cndmask_b32 v{S1+1}, v{S2}, v{S2+1}, s[74:75]", f"v_cndmask_b32 v{S1+1}, v{S1+1}, v{S2+2}, s[76:77]"); put(k + 1, f"v_cndmask_b32 v{S1+1}, v{S1+1}, v{S2+3}, s[78:79]"); put(k + 2, sw)
            if R:
                for ks in range(KS): put(last[ks], f"vm:L{ks}:" + ldA(ks))
                put(NM - 1, adv)
            put(NM * (F.PPR if R else F.PPN) // 32, "vm:poll:" + pollld)
            if flg and not fin: put(F.FP, "vneed out", flag("s57"))
            so = None
            if W or R:
                n_t = len(tail); r, a0, o = post()
                if not W: del tail[n_t:]
                keep = ({k: list(v) for k, v in fill.items()}, list(used))
                pos = spread(o, spread(a0, F.A0, own0, 8)[-1], NM, F.WB3)
                so = [i for i, x in zip(pos, o) if x.startswith(("vm:out", "vm2:out"))]
                if not W:
                    fill, used = keep
                    for i in so:
                        for _ in range(NS): put(i, "vm:out:" + dummy)
                elif flg and not fin and so[0] + F.FD < NM: put(NM - 1 if R else so[0] + F.FD, "vneed out", flag("s63"))
                if not W and flg and not fin and so[0] + F.FD < NM: put(NM - 1, "vm:fl:" + dummy)
            if res: put(max(F.FP + 1, (so[0] + 1) if so else 0, 26), f"vm:res:buffer_load_dwordx4 {vr(RES,4)}, v{L16}, {WSRD}, s82 offen\ns_add_u32 s82, s82, 32768")
            if fin:
                q1 = NM * F.Q1 // 64; q2 = NM - F.Q2R if R else q1 + F.Q2N
                spread(f1s, q1, q1 + 6, 8)
                put(q2, "vneed pk")
                if flg: put(q2, flag("s63"))
                put(q2, "f2chk")
                spread(f2rest(), q2 + 1, NM, 8)
            spread(togw, NM - 1, NM, 64)
            return fill
        def vseq(fill):
            q = []
            for i in range(NM):
                for x in fill[i]:
                    if x.startswith("vm"): q += [x.split(":")[1]] * (2 if x.startswith("vm2:") else 1)
            return q
        n_t = len(tail); histR = vseq(plan(True, True)); del tail[n_t:]
        histB = [f"L{i}" for i in range(KS)] + ["out"] * NS
        def body(W, R):
            fill = plan(W, R)
            if R: assert vseq(fill) == histR, (vseq(fill), histR)
            Z = Sched(A); V = VMQ(A, histR if W else histB)
            if W:
                for x in rds + (srd_ if stats else []) + togr: emit(Z, V, x)
            tst(A, 0)
            fi = {v: k for k, v in first.items()}
            for i, m in enumerate(M):
                if i in fi: V.need(f"L{fi[i]}")
                if i == 16: tst(A, 1)
                if i == NM // 2: tst(A, 2)
                A.e(m)
                for y in fill[i]: emit(Z, V, y)
            tst(A, 3)
            V.need("poll")
            A.e(f"v_cmp_gt_u32 vcc, s{53 if R else 71}, v{VF}\ns_add_u32 s60, s60, 1\ns_waitcnt lgkmcnt(0)\ns_barrier")
            if F.PROF >= 2: tst(A, 4); tst(A, 5); tacc(A, 6)
            if W and R and F.DROP:
                import re
                A.lines[i00:] = [x for x in A.lines[i00:] if not any(re.search(p, x) for p in F.DROP)]
            return V
        WR, WN, BR, BN, lag, dec, nb = [A.newlabel(x) for x in ("WR", "WN", "BR", "BN", "lag", "dec", "nb")]
        if fin:
            for x in fres: A.e(plain(x))
        A.e(need(0, 71)); A.e(need(1, 53))
        poll_loop(A, pollld, VF, 71)
        A.label(lag); pc(0)
        for i in range(KS): A.e(ldA(i))
        A.e(adv)
        for _ in range(NS): A.e(dummy)
        A.label(dec)
        A.e(f"v_cmp_gt_u32 vcc, s53, v{VF}\ns_cbranch_vccnz {BN}")
        A.label(BR); pc(4); body(False, True); A.e(f"s_cbranch_vccnz {WN}")
        A.label(WR); pc(3); body(True, True); A.e(f"s_cbranch_vccz {WR}")
        def ipost(V):
            Z = Sched(A); r, a0, o = post()
            k = len(o)
            if flg and not fin: k = [i for i, x in enumerate(o) if x.startswith("v_pk_add_f32")][7] + 1
            for x in r + a0 + o[:k]: emit(Z, V, x)
            if k < len(o) and "out" in V.q: V.need("out"); emit(Z, V, flag("s63"))
            for x in o[k:]: emit(Z, V, x)
        endN = A.newlabel("endN")
        A.label(WN); pc(2); VW_ = body(True, False); A.e(f"s_branch {endN}")
        A.label(BN); pc(1); VB_ = body(False, False)
        A.label(endN)
        qa, qb = VW_.q[VW_.done + 1:], VB_.q[VB_.done + 1:]
        def rem(tag): return min(len(q) - 1 - max(i for i, x in enumerate(q) if x == tag) for q in (qa, qb) if tag in q) if tag in qa + qb else None
        hist = []
        tg = sorted([(rem(t), t) for t in ("out", "res") if rem(t) is not None], reverse=True)
        for j, (n, t) in enumerate(tg): hist += [t] + ["x"] * (n - (tg[j + 1][0] + 1 if j + 1 < len(tg) else 0))
        def mk():
            V = VMQ(A, ["out", "res"] + hist); V.done = 1; return V
        A.e(f"s_cbranch_vccnz {nb}")
        pc(7); V = mk()
        for i in range(KS): V.op(ldA(i), f"L{i}")
        A.e(adv)
        ipost(V)
        A.e(f"s_branch {dec}")
        A.label(nb)
        V = mk()
        if not fin: V.op(pollld, "poll")
        ipost(V)
        Z = Sched(A)
        if fin:
            for x in f1s + ["vneed pk"] + ([flag("s63")] if flg else []) + ["f2chk", "vm:poll:" + pollld] + f2rest(): emit(Z, V, x)
            V.need("out" if flg else "poll")
        else:
            V.need("poll"); A.e(f"v_cmp_gt_u32 vcc, s71, v{VF}\ns_cbranch_vccz {lag}")
            if flg: V.need("out")
        if flg: emit(Z, V, flag("s63"))
        if fin: A.e(f"v_cmp_gt_u32 vcc, s71, v{VF}\ns_cbranch_vccz {lag}")
        A.e(f"s_cmp_ge_u32 s60, {NU}\ns_cbranch_scc1 {done}")
        pc(5); poll_loop(A, pollld, VF, 71)
        A.e(f"s_branch {lag}")
    if F.PROF:
        for r in ST: A.e(f"v_mov_b32 v{r}, 0")
        A.e(f"s_memrealtime s[84:85]\ns_waitcnt lgkmcnt(0)\nv_writelane_b32 v{ST[2]}, s84, 0\nv_writelane_b32 v{ST[2]}, s86, 1")
    tinit(A)
    i_loop = len(A.lines)
    if xch:
        lf = A.newlabel("lfin")
        A.e(f"s_cmp_eq_u32 s50, s52\ns_cbranch_scc1 {lf}")
        loop(False); A.label(lf); loop(True)
    else: loop(False)
    while tail: tail.pop(0)()
    if F.XS:
        for i in range(i_loop, len(A.lines)):
            x = A.lines[i]
            if (F.XS & 1 and "store_dwordx4" in x) or (F.XS & 2 and "store_dword " in x) or (F.XS & 4 and "load_dword " in x): A.lines[i] = x.replace(" sc1", "")
            if F.XS & 8 and "s_waitcnt vmcnt" in x: A.lines[i] = "s_nop 0"
    A.label(done)
    tout(A, ST[2]); stamp_out(A, ST)
    A.e("s_endpgm")

def cls(x):
    if x in ("f2chk", "mid"): return (0, 2, 3)
    if x == "f2br": return (1, 0, 0)
    if x.startswith(("need ", "vneed ")): return (1, 0, 0)
    if x.startswith("vm"): x = x.split(":", 2)[2]
    ls = x.split("\n"); sc = sum(1 for l in ls if l.startswith(("s_", "need", "vneed")))
    if "buffer_" in x or "ds_write" in x:
        lead = 0
        while ls[lead].startswith("s_"): lead += 1
        return (min(lead, 1), 1 if ("load" in x and len(ls) <= 2) else 2, 1)
    if x.startswith("ds_"): return (0, 1, 1)
    if sc == len(ls): return (sc, 0, 0)
    if len(ls) > 1: return (1, 2, 1)
    return (0, 2 if x.startswith(("v_exp", "v_rcp", "v_rsq")) else 1, 2)
class Gaps:
    def __init__(self, n): self.n = n; self.g = [[] for _ in range(n)]; self.over = []
    def load(self, i):
        s = sum(cls(x)[0] for x in self.g[i]); v = sum(cls(x)[1] for x in self.g[i]); return max(0, s - 1) + v
    def put(self, i, *xs): self.g[i] += xs
    def near(self, i, x, r1=0):
        while i < self.n - 1 and (self.load(i) + cls(x)[1] > 2 or (cls(x)[2] == 1 and any(cls(y)[2] == 1 and not (r1 and y.startswith("ds_read")) for y in self.g[i]))): i += 1
        self.g[i].append(x); return i
    def spread(self, items, lo, hi, mx=8):
        for extra in range(0, mx * (hi - lo) + 1):
            t = [list(x) for x in self.g]; i = lo; pos = []; rank = 0
            cap = lambda i: 2 + extra // (hi - lo) + (1 if (i - lo) < extra % (hi - lo) else 0)
            keep = self.g; self.g = t; ok = True
            for x in items:
                c = cls(x)
                while True:
                    if i >= hi: ok = False; break
                    t[i].append(x)
                    if c[2] == 1 and c[1] == 2 and c[2] >= rank and sum(cls(y)[1] for y in t[i]) == 2: break
                    if c[2] >= rank and self.load(i) <= cap(i) and not (c[2] == 1 and cap(i) < 4 and sum(cls(y)[2] == 1 for y in t[i]) > 1): break
                    t[i].pop(); i += 1; rank = 0
                if not ok: break
                pos.append(i); rank = c[2]
            if ok: return pos
            if mx < 8 and extra == mx * (hi - lo): self.over += items[len(pos):]; return pos
            self.g = keep
        raise ValueError
    def sched(self, items, lo, hi):
        I = [Ins(x, 0) for x in items]
        dep = [[j for j in range(i) if (I[j].w & (I[i].r | I[i].w)) or (I[j].r & I[i].w)] for i in range(len(I))]
        for extra in range(0, 4 * (hi - lo)):
            keep = self.g; self.g = [list(x) for x in keep]; at = {}
            for g in range(lo, hi):
                cap = 2 + extra // (hi - lo) + (1 if (g - lo) < extra % (hi - lo) else 0)
                while True:
                    free = cap - self.load(g)
                    rdy = [i for i in range(len(I)) if i not in at and all(j in at and (at[j] < g or not I[j].is_trans) for j in dep[i])]
                    c = [i for i in rdy if I[i].is_trans and free >= 2] + [i for i in rdy if not I[i].is_trans and free >= 1]
                    if not c: break
                    at[c[0]] = g; self.g[g].append(items[c[0]])
                if len(at) == len(I): return g
            self.g = keep
        raise ValueError
    def gap(self, i): return sorted(self.g[i], key=lambda x: cls(x)[2])
class VMQ2:
    def __init__(self, A, hist): self.A = A; self.q = [list(x) for x in hist]; self.done = -1
    def op(self, ins, tag): self.A.e(ins); self.q.append([tag])
    def need(self, tag):
        ix = [i for i, x in enumerate(self.q) if tag in x]
        if ix and ix[-1] > self.done:
            n = len(self.q) - 1 - ix[-1]; assert n < 64
            self.A.e(f"s_waitcnt vmcnt({n})"); self.done = ix[-1]
def gemm4_role(A, L, kind):
    KS = 7 if kind == "w4" else 8
    stats = kind in ("w1", "w3"); xch = kind in ("wo", "w4"); res = kind == "w2"
    L16, VFA, VA, VRD, VRB, ONE, VF, VT, VO, VSW, VSR, VX, VOX, VD = 0, 2, 3, 4, 8, 12, 16, 17, 18, 19, 20, 21, 22, 23
    ACC, FIN, S1, S2, SP, XW, NW, PKT, CS, RES, TM, M1, KC = 32, 40, 48, 52, 56, 64, 16, 128, 152, 160, 168, 204, 208; ST = (200, 201, 202)
    NM_, RS_, K0_, K1_ = TM + 20, TM + 21, TM + 22, TM + 23
    sym = xch and F.SYM; dfr = sym == 2; ep = dfr and F.EP; RSZ = 8192 if dfr else 6144; VSN, VFR, VFL = 24, 25, 26
    LST = 128 * 1024; D = F.GD; NF = 4 * KS
    wreg = lambda n, t, k=4, o=0: ar((n * 2 + t) * 4 + o, k)
    done = A.newlabel("done"); tail = []
    lanes(A)
    arg, ld, nbytes = dict(wo=("Wo", 2048, 8 * MB), w1=("w1", 2048, 2 * MB), w2=("w2", 2048, 2 * MB), w3=("w3", 7168, 7 * MB), w4=("w4", 2048, 7 * MB))[kind]
    ldptr(A, 4, arg)
    if xch: ldptr(A, 6, "x" if kind == "wo" else "out"); A.e("s_lshr_b32 s52, s59, 3\ns_and_b32 s53, s59, 7")
    else: A.e("s_mov_b32 s52, 0\ns_mov_b32 s53, s59")
    A.e(f"s_mul_i32 s54, s52, {NF*32*ld}\ns_lshl_b32 s64, s53, 8\ns_add_u32 s54, s54, s64\ns_lshl_b32 s64, s50, 6\ns_add_u32 s54, s54, s64\ns_waitcnt lgkmcnt(0)")
    A.srd(28, 4, nbytes)
    if xch: A.srd(24, 6, S * D_ * 2)
    def rdw(x):
        def f(buf):
            for kk in range(KS):
                for t in range(2):
                    for h in range(2): A.e(f"ds_read_b64_tr_b16 {wreg(x*KS+kk,t,2,2*h)}, v17 offset:{buf + (32*kk + 4*h)*64 + 8*t}")
                if kk % 3 == 2: A.e("s_waitcnt lgkmcnt(0)")
        return f
    if kind == "w4" and F.W4G: cpoll(A, L, {C_M2: 63}, sl=F.VSL2)
    stage_weights(A, [(28, f"s_xor_b32 s62, s50, {x}\ns_mul_i32 s62, s62, {KS*32*ld}\ns_add_u32 s62, s62, s54", KS * 32, rdw(x)) for x in range(4)], ld, None, F.NFL2)
    verify(A, L, False, "mod")
    inb, ust = dict(wo=(OB, 131072), w1=(H2, 32768), w2=(G1, 32768), w3=(Y1, 32768), w4=(G3, 112 * 1024))[kind]
    if F.FREE == 2: ust = 0
    A.e(f"""
    s_barrier
    v_lshlrev_b32 v{L16}, 4, v1
    s_mov_b32 s60, 0
    s_lshl_b32 s70, s50, 13
    s_mov_b32 s55, 0
    v_mov_b32 v{VA}, v{L16}
    s_mov_b32 s73, 0xffff0000
    s_lshl_b32 s64, s52, 2
    s_add_u32 s64, s64, s50
    s_mul_i32 s61, s64, {KS*1024}
    s_add_u32 s61, s61, {inb}
    s_lshl_b32 s68, s64, 8
    s_add_u32 s68, s68, {dict(wo=F_ATT, w1=F_LN, w2=F_W1, w3=F_W2, w4=F_W3)[kind]}
    s_lshl_b32 s83, s53, 2
    s_add_u32 s83, s83, s50            ; output fragment index
    s_mov_b32 s63, 0""")
    for x in range(4): A.e(f"s_xor_b32 s64, s50, {x}\ns_lshl_b32 s64, s64, 13\nv_add_u32 v{VRB+x}, s64, v{L16}\nv_mov_b32 v{VRD+x}, v{VRB+x}")
    nfl = dict(wo=4 + 4 * F.AT, w1=4, w2=8, w3=8, w4=7)[kind]
    lin = (kind == "w2" and F.LOC & 1) or (kind == "w1" and F.LOC & 2)
    A.e(f"v_min_u32 v{VFA}, {nfl-1}, v1\nv_lshlrev_b32 v{VFA}, {7 if lin else 2}, v{VFA}")
    if kind == "w3" and F.REP > 1: A.e(f"s_and_b32 s64, s59, {F.REP-1}\ns_lshl_b32 s64, s64, 10\ns_lshl_b32 s68, s50, 8\ns_add_u32 s68, s68, s64\ns_add_u32 s68, s68, {F_W2R}")
    if lin: A.e(f"s_mul_i32 s68, s50, {nfl*128}\ns_add_u32 s68, s68, {F_W1L if kind == 'w2' else F_LNL}")
    if res:
        A.e(f"""
        s_lshr_b32 s64, s50, 1
        s_add_u32 s64, s64, 1
        s_sub_u32 s65, 0, s64
        s_bitcmp1_b32 s50, 0
        s_cselect_b32 s64, s64, s65
        s_add_u32 s64, s64, 16
        v_add_u32 v26, s64, v21
        v_lshrrev_b32 v27, 4, v26
        v_and_b32 v26, 15, v26
        v_lshl_add_u32 v26, v22, 4, v26
        v_lshlrev_b32 v26, 4, v26
        v_lshl_add_u32 v{VA}, v27, 15, v26
        s_sub_u32 s61, s61, 32768
        s_and_b32 s64, s50, 1
        s_add_u32 s74, s64, 1
        s_add_u32 s75, s64, 2
        s_add_u32 s76, s64, 3""")
    A.e("s_add_u32 s62, s61, 4096\ns_lshl_b32 s66, s83, 10")
    if kind == "w3":
        A.e(f"s_mul_i32 s65, s83, 147\ns_lshr_b32 s65, s65, 10\ns_mul_i32 s69, s65, {256 - 28}\ns_lshl_b32 s64, s83, 2\ns_add_u32 s69, s69, s64\ns_add_u32 s69, s69, {F_W3}")
    else:
        A.e(f"s_lshr_b32 s65, s83, 3\ns_lshl_b32 s65, s65, 8\ns_and_b32 s64, s83, 7\ns_lshl_b32 s64, s64, 2\ns_add_u32 s69, s64, s65\ns_add_u32 s69, s69, {dict(wo=F_WO, w1=F_W1, w2=F_W2, w4=F_W4)[kind]}")
    if kind == "w2" and F.REP > 1: A.e(f"s_add_u32 s69, s69, {F_W2R - F_W2}")
    if kind == "w1" and F.LOC & 1: A.e(f"s_lshl_b32 s69, s83, 7\ns_add_u32 s69, s69, {F_W1L}")
    if sym: A.e(f"s_lshr_b32 s65, s83, 3\ns_lshl_b32 s65, s65, 8\ns_and_b32 s64, s83, 7\ns_lshl_b32 s64, s64, 2\ns_add_u32 s64, s64, s52\ns_lshl_b32 s64, s64, 2\ns_add_u32 s69, s64, s65\ns_add_u32 s69, s69, {F_WO}")
    A.e(f"s_add_u32 s82, s66, {H2 if res else X1}" if kind != "wo" else "s_mov_b32 s82, 0")
    outb, ost = dict(wo=(X1, 32768), w1=(G1, 32768), w2=(Y1, 32768), w3=(G3, 112 * 1024), w4=(0, 32768))[kind]
    if not xch: A.e(f"s_add_u32 s66, s66, {outb}")
    if sym:
        A.e(f"""
        s_mul_i32 s74, s83, {4*RSZ}
        s_add_u32 s74, s74, {XP + (0 if kind == 'wo' else 128*RSZ)}
        s_mul_i32 s76, s52, {RSZ}
        s_add_u32 s76, s76, s74
        s_mov_b32 s75, 0
        s_mov_b32 s78, 0
        s_mov_b32 s84, s76
        s_mov_b32 s82, 0
        s_mov_b32 s80, s76
        s_mov_b32 s81, s74
        s_mov_b32 s77, 0                   ; pending
        s_lshl_b32 s64, s52, 8
        v_lshlrev_b32 v26, 4, v21
        v_add_u32 v26, s64, v26
        v_mul_u32_u24 v27, {RSZ}, v22
        v_add_u32 v{VSN}, v26, v27
        v_lshl_add_u32 v{VFR}, v22, 2, v26
        v_lshlrev_b32 v26, 11, v21
        v_lshl_add_u32 v26, v22, 2, v26
        s_lshl_b32 s64, s83, 2
        s_add_u32 s64, s64, s52
        s_lshl_b32 s65, s64, 4
        v_add_u32 v{VO}, s65, v26
        v_lshlrev_b32 v26, 3, v22
        s_lshl_b32 s64, s64, 5
        s_add_u32 s64, s64, {MOD + (2 if kind == 'wo' else 5)*4096}""")
        for g_ in range(4): A.e(f"buffer_load_dwordx2 {vr(CS if g_ == 0 else PKT + 2*(g_-1), 2)}, v26, {WSRD}, s64 offen sc1\ns_add_u32 s64, s64, {6144*4}")
        A.e("s_waitcnt vmcnt(0)")
        sum4(A, CS, PKT, 2)
        for i in range(4): A.e(f"v_mov_b32 v{M1+i}, -1")
        A.e("s_mov_b32 s83, 0")
    elif xch:
        A.e(f"""
        s_lshl_b32 s64, s53, 2
        s_add_u32 s64, s64, s50
        s_mul_i32 s74, s64, {4*6144}
        s_xor_b32 s64, s50, s52
        s_sub_u32 s64, s64, 1
        s_max_i32 s64, s64, 0
        s_lshl_b32 s64, s64, 11
        s_add_u32 s74, s74, s64
        s_add_u32 s74, s74, {XP + (0 if kind == 'wo' else 768*KB)}
        s_mov_b32 s75, 0
        s_mov_b32 s77, 0                   ; pending
        v_lshlrev_b32 v26, 11, v21
        v_lshl_add_u32 v26, v22, 4, v26
        s_lshl_b32 s64, s83, 6
        v_add_u32 v{VO}, s64, v26
        v_lshlrev_b32 v26, 5, v22
        s_lshl_b32 s64, s83, 7
        s_add_u32 s64, s64, {MOD + (2 if kind == 'wo' else 5)*4096}""")
        for g in range(4):
            for i in range(2): A.e(f"buffer_load_dwordx4 {vr((CS if g == 0 else PKT + 8*(g-1)) + 4*i, 4)}, v26, {WSRD}, s64 offen offset:{16*i} sc1")
            A.e(f"s_add_u32 s64, s64, {6144*4}")
        A.e("s_waitcnt vmcnt(0)")
        sum4(A, CS, PKT, 8)
        for i in range(4): A.e(f"v_mov_b32 v{M1+i}, -1")
    if stats:
        A.e(f"""
        s_lshl_b32 s64, s50, 9
        s_add_u32 s64, s64, {LST}
        v_lshlrev_b32 v26, 3, v1
        v_add_u32 v{VSW}, s64, v26
        v_lshl_add_u32 v26, v23, 4, v21
        v_lshlrev_b32 v26, 3, v26
        v_add_u32 v{VSR}, {LST}, v26
        s_mov_b32 s74, 0x22222222
        s_mov_b32 s75, 0x22222222
        s_mov_b32 s76, 0x44444444
        s_mov_b32 s77, 0x44444444
        s_mov_b32 s78, 0x88888888
        s_mov_b32 s79, 0x88888888
        v_mov_b32 v{KC}, {f2u(GELU_C1):#x}
        v_mov_b32 v{KC+1}, {f2u(GELU_C0):#x}
        v_mov_b32 v{KC+2}, {f2u(1e-5) if F.GT else f2u(1.0):#x}
        v_mov_b32 v{KC+3}, {f2u(1/1024) if F.GT else f2u(1.0):#x}""")
        for i in range(4): A.e(f"v_mov_b32 v{ONE+i}, 0x3f803f80")
        for n in range(NF):
            for t in range(2): A.e(f"{MF} {vr(CS+4*t,4)}, {wreg(n,t)}, {vr(ONE,4)}, {vr(CS+4*t,4) if n else 0}")
    if kind == "w1" and F.LOC & 1: A.e(f"v_lshlrev_b32 v{VFL}, 2, v1\nv_cmp_gt_u32 vcc, 32, v1\nv_cndmask_b32 v{VFL}, 2.0, v{VFL}, vcc")
    elif kind == "w2" and F.REP > 1: A.e(f"v_lshlrev_b32 v{VFL}, 10, v1\nv_cmp_gt_u32 vcc, {F.REP}, v1\nv_cndmask_b32 v{VFL}, 2.0, v{VFL}, vcc")
    else: A.e(f"v_cmp_eq_u32 vcc, 0, v1\nv_cndmask_b32 v{VFL}, 2.0, 0, vcc")
    LS = ["sc1"]
    def flag_st(sv):
        if F.FX: A.e(f"v_mov_b32 v{VT}, {sv}\nbuffer_store_dword v{VT}, v{VFL}, {WSRD}, s69 offen {LS[0] if F.LOCX & 2 else 'sc1'}")
        else: flag_store(A, VT, sv, 69)
    def sfin_gt():
        t = SP
        for a, b in ((0, 2), (1, 3), (4, 6), (5, 7), (0, 4), (1, 5)): A.e(f"v_add_f32 v{t+a}, v{t+a}, v{t+b}")
        A.e(f"""
        v_mul_f32 v{NM_}, {f2u(-1/1024):#x}, v{t}
        v_fma_f32 v{t+2}, v{NM_}, v{NM_}, -v{KC+2}
        v_fma_f32 v{t+1}, v{t+1}, v{KC+3}, -v{t+2}
        v_max_f32 v{t+1}, v{KC+2}, v{t+1}
        v_rsq_f32 v{t+2}, v{t+1}
        v_mul_f32 v{RS_}, v{t+1}, v{t+2}
        v_mul_f32 v{K0_}, v{KC+1}, v{t+2}
        v_mul_f32 v{t+3}, v{t+2}, v{t+2}
        v_mul_f32 v{K1_}, v{KC}, v{t+2}
        v_mul_f32 v{K1_}, v{K1_}, v{t+3}""")
    def grab(f):
        i0 = len(A.lines); f(); o = [x.strip() for x in A.lines[i0:]]; del A.lines[i0:]; return o
    ldA = lambda i: ("s_mov_b32 m0, s70\n" if i == 0 else "s_add_u32 m0, s70, 4096\n" if i == 4 else "") + f"buffer_load_dwordx4 v{VA}, {WSRD}, s{61+(i>>2)} offen offset:{(i&3)*1024} lds"
    adv = [f"s_add_u32 s61, s61, {ust}", f"s_add_u32 s62, s62, {ust}", "s_add_u32 s70, s70, 32768", "s_and_b32 s70, s70, 0x1ffff"]
    pollld = f"buffer_load_dword v{VF}, v{VFA}, {WSRD}, s68 offen sc1"
    dummy = f"buffer_load_dword v{VD}, off, {WSRD}, s66"
    def need(add, d):
        if F.FREE: return f"s_cmp_ge_u32 s60, {NU-add}\ns_cselect_b32 s{d}, -1, 0"
        if res: return f"s_add_u32 s{d}, s60, s{74+add}\ns_cmp_eq_u32 s60, {NU-1-add}\ns_cselect_b32 s{d}, {NU}, s{d}"
        return f"s_add_u32 s{d}, s60, {add+1}"
    def both(f):
        l1 = A.newlabel("b1"); l2 = A.newlabel("b2")
        A.e(f"s_cmp_eq_u32 s56, 1\ns_cbranch_scc1 {l1}"); f("")
        A.label(l2)
        def d(): A.label(l1); A.e("s_nop 7"); f("sc1"); A.e(f"s_branch {l2}")
        tail.append(d)
    def pc(k):
        if F.PROF >= 2: A.e(f"s_add_u32 s{98 + k//4}, s{98 + k//4}, {1 << (8 * (k & 3))}")
    def trs(code):
        sk = A.newlabel("tr")
        return f"""s_sub_u32 s95, s60, {F.TRU}\ns_cmp_ge_u32 s95, 8\ns_cbranch_scc1 {sk}\ns_memrealtime s[92:93]\ns_mov_b32 s95, m0\ns_mov_b32 m0, s94\ns_waitcnt lgkmcnt(0)\ns_lshl_b32 s92, s92, 12\ns_lshl_b32 s93, s60, 4\ns_add_u32 s92, s92, s93\ns_add_u32 s92, s92, {code}\nv_writelane_b32 v{ST[0]}, s92, m0\ns_mov_b32 m0, s95\ns_add_u32 s94, s94, 1\ns_min_u32 s94, s94, 63\n{sk}:"""
    def tr(code):
        if F.TRU: A.e(trs(code))
    f1s = ["s_add_u32 s84, s74, s75", "s_add_u32 s85, s84, 4096"] + [f"vm:pk:buffer_load_dwordx4 {vr(PKT+4*i,4)}, v{L16}, {WSRD}, s{84+(i>>2)} offen offset:{(i&3)*1024} sc1" for i in range(6)]
    if kind == "wo": fres = [f"vm:rs:buffer_load_dwordx4 {vr(RES,4)}, v{VO}, s[24:27], s82 offen", "s_add_u32 s82, s82, 32768"]
    else: fres = [f"vm:rs:buffer_load_dwordx4 {vr(RES,4)}, v{L16}, {WSRD}, s82 offen", f"vm:rs:s_add_u32 s64, s82, {Y1 - X1}\nbuffer_load_dwordx4 {vr(RES+4,4)}, v{L16}, {WSRD}, s64 offen", "s_add_u32 s82, s82, 32768"]
    if sym:
        f1s = ["s_add_u32 s84, s76, s75"] + [f"vm:pk:buffer_load_dwordx4 {vr(PKT+4*i,4)}, v{L16}, {WSRD}, s84 offen offset:{i*1024} sc1" for i in range(2)]
        if kind == "wo": fres = [f"vm:rs:buffer_load_dword v{RES}, v{VO}, s[24:27], s82 offen", "s_add_u32 s82, s82, 32768"]
        else: fres = [f"vm:rs:buffer_load_dword v{RES}, v{VFR}, {WSRD}, s82 offen", f"vm:rs:s_add_u32 s64, s82, {Y1 - X1}\nbuffer_load_dword v{RES+1}, v{VFR}, {WSRD}, s64 offen", "s_add_u32 s82, s82, 32768"]
    if dfr:
        f1s[0] = "s_add_u32 s84, s76, s78"
        if ep: f1s = [x.replace("s84", "s80") for x in f1s[1:]]
        if kind == "wo": fres = [f"vm:rs:s_and_b32 s64, s66, 0xffff8000\nbuffer_load_dword v{RES}, v{VO}, s[24:27], s64 offen"]
        else: fres = [f"vm:rs:s_add_u32 s64, s66, {b}\nbuffer_load_dword v{RES+i}, v{VFR}, {WSRD}, s64 offen" for i, b in enumerate((X1, Y1))]
    plain = lambda x: x.split(":", 2)[2] if x.startswith("vm") else x
    def add8(d, a, b, pk):
        if pk: return [f"v_pk_add_f32 {vr(d+i,2)}, {vr(a+i,2)}, {vr(b+i,2)}" for i in range(0, 8, 2)]
        return [f"v_add_f32 v{d+i}, v{a+i}, v{b+i}" for i in range(8)]
    CK = 184
    chkv = [f"v_bitop3_b32 v{CK+i}, v{PKT+2*i}, v{PKT+2*i+1}, s83 bitop3:0x7e" for i in range(4)] + [f"v_or3_b32 v{CK}, v{CK}, v{CK+1}, v{CK+2}", f"v_bitop3_b32 v{CK}, v{CK}, v{CK+3}, 1 bitop3:0xa8", f"v_cmp_ne_u32 vcc, 0, v{CK}"]
    def f2br():
        rt = A.newlabel("rt"); go = A.newlabel("go"); lp = A.newlabel("rl")
        A.e(f"s_cbranch_vccnz {rt}"); A.label(go)
        def d():
            A.label(rt); A.e(f"s_cmp_eq_u32 s77, 0\ns_cbranch_scc1 {go}"); A.label(lp); pc(6)
            A.e(f"s_sub_u32 s90, s90, 1\ns_cmp_gt_i32 s90, 0\ns_cbranch_scc0 {go}")
            for x in f1s: A.e(plain(x))
            A.e("s_waitcnt vmcnt(0)")
            for x in chkv: A.e(x)
            A.e(f"s_cbranch_vccnz {lp}\ns_branch {go}")
        tail.append(d)
    def f2chk():
        if ep:
            for x in chkv: A.e(x)
            return f2br()
        ck = A.newlabel("ck"); rt = A.newlabel("rt"); go = A.newlabel("go")
        A.e(f"s_cmp_eq_u32 s77, 0\ns_cbranch_scc1 {go}")
        A.label(ck)
        TM = 184
        if sym: A.e(f"v_max3_u32 v{TM}, v{PKT}, v{PKT+1}, v{PKT+2}\nv_max3_u32 v{TM+1}, v{PKT+3}, v{PKT+4}, v{PKT+5}\nv_max3_u32 v{TM}, v{TM}, v{PKT+6}, v{PKT+7}\nv_max_u32 v{TM}, v{TM}, v{TM+1}\nv_cmp_eq_u32 vcc, -1, v{TM}\ns_cbranch_vccnz {rt}")
        else:
            for j in range(2): A.e(f"v_max3_u32 v{TM+j}, v{PKT+12*j}, v{PKT+12*j+1}, v{PKT+12*j+2}")
            for q in range(4):
                for j in range(2): A.e(f"v_max3_u32 v{TM+j}, v{TM+j}, v{PKT+12*j+3+2*q}, v{PKT+12*j+4+2*q}")
            A.e(f"v_max3_u32 v{TM}, v{TM}, v{PKT+11}, v{PKT+23}\nv_max_u32 v{TM}, v{TM}, v{TM+1}\nv_cmp_eq_u32 vcc, -1, v{TM}\ns_cbranch_vccnz {rt}")
        A.label(go)
        def d():
            A.label(rt); pc(6)
            A.e(f"s_sub_u32 s90, s90, 1\ns_cmp_gt_i32 s90, 0\ns_cbranch_scc0 {go}")
            for x in f1s: A.e(plain(x))
            A.e(f"s_waitcnt vmcnt(0)\ns_branch {ck}")
        tail.append(d)
    FINP = 212
    def fma8(pk, a):
        if pk: return [f"v_pk_fma_f32 {vr(TM+i,2)}, {vr(a+i,2)}, {vr(CS+i,2)}, {vr(TM+i,2)}" for i in range(0, 8, 2)]
        return [f"v_fma_f32 v{TM+i}, v{a+i}, v{CS+i}, v{TM+i}" for i in range(8)]
    def f2pre(pk, src=FINP):
        if sym:
            o = [f"v_or_b32 v{VX}, s57, v{L16}", f"v_or_b32 v{VOX}, s57, v{VFR if kind == 'wo' else VO}"] + grab(lambda: unpack(A, RES, TM, 1 if kind == "wo" else 2))
            if kind == "w4": o += [f"v_fma_f32 v{TM+i}, v{TM+2+i}, v{CS+i}, v{TM+i}" for i in range(2)]
            return ["vneed rs", "s_cmp_eq_u32 s77, 0\ns_cselect_b32 s57, 2.0, 0"], o
        o = [f"v_or_b32 v{VX}, s57, v{L16}"] + ([f"v_or_b32 v{VOX}, s57, v{VO}"] if kind == "w4" else []) + grab(lambda: unpack(A, RES, TM, 4))
        if kind == "w4": o += grab(lambda: unpack(A, RES + 4, TM + 8, 4)) + add8(src, src, TM + 8, pk)
        return ["vneed rs", "s_cmp_eq_u32 s77, 0\ns_cselect_b32 s57, 2.0, 0"], o + fma8(pk, src)
    def f2rest(pk):
        if sym:
            ad = lambda a, b: f"v_add_f32 v{PKT+a}, v{PKT+a}, v{PKT+b}"
            o = [f"v_permlane32_swap_b32 v{PKT+i}, v{PKT+4+i}" for i in (0, 2, 1, 3)] + [ad(i, i + 4) for i in (0, 2, 1, 3)]
            o += [f"v_permlane16_swap_b32 v{PKT+i}, v{PKT+2+i}" for i in range(2)] + [ad(i, i + 2) for i in range(2)]
            o += [f"v_fma_f32 v{TM+i}, v{PKT+i}, v{CS+i}, v{TM+i}" for i in range(2)] + [f"v_cvt_pk_bf16_f32 v{TM+8}, v{TM}, v{TM+1}"]
            if kind == "wo": o += [f"vm:out:s_add_u32 s64, s66, {X1}\nbuffer_store_dword v{TM+8}, v{VOX}, {WSRD}, s64 offen sc1"]
            else: o += [f"vm:out:s_and_b32 s64, s66, 0xffff8000\nbuffer_store_dword v{TM+8}, v{VOX}, s[24:27], s64 offen"]
            o.append("" if ep else "vm2:rz:" + "\n".join(grab(lambda: both(lambda fl: [A.e(f"buffer_store_dwordx4 {vr(M1,4)}, v{VX}, {WSRD}, s84 offen offset:{i*1024} {fl}") for i in range(2)]))))
            o += [f"s_mul_i32 s64, s77, {ost}\ns_add_u32 s66, s66, s64", "s_lshl_b32 s64, s77, 11\ns_add_u32 s75, s75, s64", f"s_cmp_eq_u32 s75, 6144\ns_cselect_b32 s75, 0, s75", "s_add_u32 s63, s63, s77"]
            if F.PROF:
                sk = A.newlabel("sk"); o.append("\n".join([f"s_cmp_eq_u32 s77, 0\ns_cbranch_scc1 {sk}"] + grab(lambda: stamp2(A, ST, "s63", 1, 92 if F.PROF == 1 else 84)) + [f"{sk}:"]))
            return o + ["s_mov_b32 s77, 0"]
        o = add8(PKT, PKT, PKT + 8, pk) + add8(PKT, PKT, PKT + 16, pk) + fma8(pk, PKT)
        o += [f"v_cvt_pk_bf16_f32 v{TM+8+i}, v{TM+2*i}, v{TM+2*i+1}" for i in range(4)]
        if kind == "wo": o += [f"vm:out:s_add_u32 s64, s66, {X1}\nbuffer_store_dwordx4 {vr(TM+8,4)}, v{VX}, {WSRD}, s64 offen sc1"]
        else: o += [f"vm:out:s_and_b32 s64, s66, 0xffff8000\nbuffer_store_dwordx4 {vr(TM+8,4)}, v{VOX}, s[24:27], s64 offen"]
        for h in range(3):
            def rs(fl, h=h):
                for i in (2 * h, 2 * h + 1): A.e(f"buffer_store_dwordx4 {vr(M1,4)}, v{VX}, {WSRD}, s{84+(i>>2)} offen offset:{(i&3)*1024} {fl}")
            o.append("vm2:rz:" + "\n".join(grab(lambda: both(rs))))
        o += [f"s_mul_i32 s64, s77, {ost}\ns_add_u32 s66, s66, s64", "s_mul_i32 s64, s77, 6144\ns_add_u32 s75, s75, s64", f"s_cmp_eq_u32 s75, {4*6144}\ns_cselect_b32 s75, 0, s75", "s_add_u32 s63, s63, s77"]
        if F.PROF:
            sk = A.newlabel("sk"); o.append("\n".join([f"s_cmp_eq_u32 s77, 0\ns_cbranch_scc1 {sk}"] + grab(lambda: stamp2(A, ST, "s63", 1, 92 if F.PROF == 1 else 84)) + [f"{sk}:"]))
        return o + ["s_mov_b32 s77, 0"]
    def fz():
        p0, p1 = f2pre(False); o = f2rest(False); k = [i for i, x in enumerate(o) if x.startswith("vm:out")][0]
        P = dict(head=["vneed pk"] + p0, calc=p1 + o[:k], rz=[o[k + 1]])
        P["oad"] = [f"s_add_u32 s79, s66, {X1}" if kind == "wo" else "s_and_b32 s79, s66, 0xffff8000"]
        P["out"] = [f"vm:out:buffer_store_dword v{TM+8}, v{VOX}, " + (f"{WSRD}, s79 offen sc1" if kind == "wo" else "s[24:27], s79 offen")]
        P["book"] = [f"s_mul_i32 s64, s77, {ost}\ns_add_u32 s66, s66, s64", "s_lshl_b32 s64, s77, 11\ns_add_u32 s78, s78, s64", "s_and_b32 s78, s78, 0x1fff"]
        if ep:
            P["rz"] = []; P["calc"] = P["calc"][1:]
            P["book"] = P["book"][:2] + ["s_and_b32 s78, s78, 0x3fff", "s_lshr_b32 s83, s78, 13", "s_and_b32 s80, s78, 0x1fff", "s_add_u32 s80, s80, s76"]
        P["cnt"] = ["s_add_u32 s63, s63, s77"] + ([o[-2]] if F.PROF else [])
        return P
    xr = lambda n: vr(XW + 4 * (n % NW), 4)
    rd = lambda n: f"ds_read_b128 {xr(n)}, v{VRD + n//KS} offset:{(n%KS)*1024}"
    M = []; first = {}
    for n in range(NF):
        first[n] = len(M)
        M += [f"{MF} {vr((FIN if n == NF - 1 else ACC)+4*t,4)}, {wreg(n,t)}, {xr(n)}, {vr(ACC+4*t,4) if n else 0}" for t in range(2)]
        if stats and n < KS: M += [f"{MF} {vr(S1,4)}, {vr(ONE,4)}, {xr(n)}, {vr(S1,4) if n else 0}", f"{MF} {vr(S2,4)}, {xr(n)}, {xr(n)}, {vr(S2,4) if n else 0}"]
    NM = len(M); PRE = 3
    def loop(fin):
        send = xch and not fin
        NS = (5 if ep else 7) if dfr else 2 if sym else 0 if fin else (2 if send or F.IPF else 1)
        flg = (not send) and kind != "w4"
        flag = lambda sv: "vm:fl:" + "\n".join(grab(lambda: flag_st(sv))) + ("\ns_mov_b64 s[96:97], vcc\n" + trs(6) + "\ns_mov_b64 vcc, s[96:97]" if F.TRU else "")
        def post(pk):
            a = FIN
            if ep:
                o = [f"v_bfi_b32 v{FIN+i}, 1, s82, v{FIN+i}" for i in range(8)]
                for t in range(2): o.append("vm:sn:" + "\n".join(grab(lambda: both(lambda f_: A.e(f"buffer_store_dwordx4 {vr(FIN+4*t,4)}, v{VSN}, {WSRD}, s81 offen offset:{t*1024} {f_}")))))
                return o + ["s_add_u32 s75, s75, 2048", "s_and_b32 s75, s75, 0x3fff", "s_lshr_b32 s82, s75, 13", "s_and_b32 s81, s75, 0x1fff", "s_add_u32 s81, s81, s74"]
            if sym:
                t_ = grab(lambda: both(lambda f_: [A.e(f"buffer_store_dwordx4 {vr(FIN+4*t,4)}, v{VSN}, {WSRD}, s64 offen offset:{t*1024} {f_}") for t in range(2)]))
                if dfr: return ["vm2:sn:" + "\n".join(["s_add_u32 s64, s74, s75"] + t_), "s_add_u32 s75, s75, 2048", "s_and_b32 s75, s75, 0x1fff"]
                return ["vm2:sn:" + "\n".join(["s_add_u32 s64, s74, s75"] + t_), "s_mov_b32 s77, 1"]
            if fin: return ([f"v_mov_b32 v{FINP+i}, v{FIN+i}" for i in range(8)] if pk != 2 else []) + ["s_mov_b32 s77, 1"]
            if send:
                t_ = grab(lambda: both(lambda f_: [A.e(f"buffer_store_dwordx4 {vr(FIN+4*t,4)}, v{L16}, {WSRD}, s64 offen offset:{t*1024} {f_}") for t in range(2)]))
                o = ["vm2:out:" + "\n".join(["s_add_u32 s64, s74, s75"] + t_), "s_add_u32 s75, s75, 6144", f"s_cmp_eq_u32 s75, {4*6144}\ns_cselect_b32 s75, 0, s75"]
                if F.PROF: o.append("\n".join(grab(lambda: stamp2(A, ST, "s60", 1, 92 if F.PROF == 1 else 84))))
                return o
            if stats:
                e = [f"v_exp_f32 v{TM+i}, v{TM+i}" for i in range(8)]; rc = [f"v_rcp_f32 v{TM+i}, v{TM+i}" for i in range(8)]
                if F.GT and pk:
                    P = lambda op, d, *s_, m="": [f"v_pk_{op}_f32 {vr(d+i,2)}, " + ", ".join(vr(x[0] + (i if x[1] else 0), 2) for x in s_) + m for i in range(0, 8, 2)]
                    o = P("fma", a, (CS, 1), (NM_, 0), (a, 1), m=" op_sel_hi:[1,0,1]") + P("mul", TM, (a, 1), (a, 1))
                    o += P("fma", TM, (TM, 1), (K0_, 0), (K0_, 0), m=" op_sel:[0,1,0] op_sel_hi:[1,1,0]") + P("mul", TM, (TM, 1), (a, 1)) + e
                    o += P("fma", TM, (TM, 1), (NM_, 0), (NM_, 0), m=" op_sel:[0,1,1] op_sel_hi:[1,1,1]") + rc + P("mul", a, (TM, 1), (a, 1))
                elif F.GT:
                    o = []
                    for i0 in range(0, 8, 2):
                        for op in ("v_fma_f32 v{v}, v{c}, v%d, v{v}" % NM_, "v_mul_f32 v{t}, v{v}, v{v}", "v_fma_f32 v{t}, v{t}, v%d, v%d" % (K1_, K0_), "v_mul_f32 v{t}, v{t}, v{v}",
                                   "v_exp_f32 v{t}, v{t}", "v_fma_f32 v{t}, v{t}, v%d, v%d" % (RS_, RS_), "v_rcp_f32 v{t}, v{t}", "v_mul_f32 v{v}, v{t}, v{v}"): o += [op.format(t=TM + i, v=a + i, c=CS + i) for i in (i0, i0 + 1)]
                elif pk:
                    P = lambda op, d, *s_, m="": [f"v_pk_{op}_f32 {vr(d+i,2)}, " + ", ".join(vr(x[0] + (i if x[1] else 0), 2) for x in s_) + m for i in range(0, 8, 2)]
                    o = P("fma", a, (CS, 1), (NM_, 0), (a, 1), m=" op_sel_hi:[1,0,1]") + P("mul", a, (a, 1), (NM_, 0), m=" op_sel:[0,1] op_sel_hi:[1,1]") + P("mul", TM, (a, 1), (a, 1))
                    o += P("fma", TM, (TM, 1), (KC, 0), (KC, 0), m=" op_sel:[0,0,1] op_sel_hi:[1,0,1]") + P("mul", TM, (TM, 1), (a, 1)) + e + P("add", TM, (TM, 1), (KC + 2, 0)) + rc + P("mul", a, (TM, 1), (a, 1))
                else:
                    o = []
                    for i0 in range(0, 8, 2):
                        for op in ("v_fma_f32 v{v}, v{c}, v%d, v{v}" % NM_, "v_mul_f32 v{v}, v{v}, v%d" % RS_, "v_mul_f32 v{t}, v{v}, v{v}", "v_fma_f32 v{t}, v{t}, v%d, v%d" % (KC, KC + 1), "v_mul_f32 v{t}, v{t}, v{v}",
                                   "v_exp_f32 v{t}, v{t}", "v_add_f32 v{t}, 1.0, v{t}", "v_rcp_f32 v{t}, v{t}", "v_mul_f32 v{v}, v{t}, v{v}"): o += [op.format(t=TM + i, v=a + i, c=CS + i) for i in (i0, i0 + 1)]
            else: o = add8(a, a, TM, pk)
            o += [f"v_cvt_pk_bf16_f32 v{TM+8+i}, v{a+2*i}, v{a+2*i+1}" for i in range(4)]
            o += [f"vm:out:buffer_store_dwordx4 {vr(TM+8,4)}, v{L16}, {WSRD}, s66 offen {LS[0] if F.LOCX & 1 else 'sc1'}", f"s_add_u32 s66, s66, {ost}", "s_add_u32 s63, s63, 1"]
            if F.PROF: o.append("\n".join(grab(lambda: stamp2(A, ST, "s63", 1, 92 if F.PROF == 1 else 84))))
            return o
        def emit(Z, V, y):
            if y.startswith("ds_"): Z.lds(y, y)
            elif y.startswith("need "): Z.need(y[5:])
            elif y.startswith("vneed "): V.need(y[6:])
            elif y.startswith("vm:"): _, tg, x = y.split(":", 2); V.op(x, tg); tr(5) if tg == "out" else None
            elif y.startswith("vm2:"): _, tg, x = y.split(":", 2); V.op(x, tg); V.q.append([tg]); tr(5) if tg == "out" else None
            elif y == "f2chk": f2chk()
            elif y == "f2br": f2br()
            elif y == "mid":
                b1 = A.newlabel("mb"); b2 = A.newlabel("mk")
                A.e(f"v_cmp_gt_u32 vcc, s71, v{VF}\ns_mov_b32 s72, 0\ns_cbranch_vccz {b1}"); A.label(b2)
                def d():
                    A.label(b1); tr(3)
                    for i in range(KS): A.e(ldA(i))
                    for x in adv: A.e(x)
                    A.e(f"s_mov_b32 s72, 1\ns_branch {b2}")
                tail.append(d)
            else: A.e(y)
        def plan(W, R):
            G = Gaps(NM)
            for n in range(1, NF): G.put(first[n] - 1, "need " + rd(n))
            for n in range(PRE if W else F.BD + 1, NF):
                g = first[max(0, n - D)] if n >= D else n - PRE
                if n <= KS and not W: g = first[n - F.BD] - 1
                if n < KS and W and F.PRG and F.PD: g = max(g, first[max(0, n - F.PD)])
                if n < KS and (F.PRG or not W): G.put(g if not W else max([g] + [j + 1 for j in range(NM) if any(y.startswith("ds_read_b128") for y in G.g[j])]), f"vneed P{n}")
                if n == KS: G.put(g, "s_barrier")
                g = max([g] + [j + 1 for j in range(NM) if any(y.startswith("ds_read_b128") for y in G.g[j])]) if n > KS or W else g
                if n == KS and W: G.g[first[max(0, n - D)]].remove("s_barrier"); G.put(g, "s_barrier")
                G.put(g, rd(n))
            lastrd = max(j for j in range(NM) if any(y.startswith("ds_read_b128") for y in G.g[j]))
            if stats:
                sw = f"ds_write_b64 v{VSW}, {vr(S1,2)}"; srd_ = [f"ds_read_b64 {vr(SP+2*w,2)}, v{VSR} offset:{w*512}" for w in range(4)]
                k = first[KS] + 4
                p_ = G.spread([f"v_cndmask_b32 v{S1+1}, v{S2}, v{S2+1}, s[74:75]", f"v_cndmask_b32 v{S1+1}, v{S1+1}, v{S2+2}, s[76:77]", f"v_cndmask_b32 v{S1+1}, v{S1+1}, v{S2+3}, s[78:79]", sw], k, k + 8)
                k = p_[-1] + F.SB
                G.put(k, "need " + sw, "s_barrier"); p_ = G.spread(srd_, k, k + 10)
                sfin = ["need " + srd_[3]] + grab(sfin_gt if F.GT else lambda: stats_fin(A, SP, NM_, RS_, 1)); ksf = p_[-1] + 6
            if dfr and W:
                o = post(False)
                if ep:
                    for t in range(2): G.put(F.POD + 2 + t * F.SS, o[8 + t])
                    G.spread(o[:4], F.POD, F.POD + 2); G.spread(o[4:8], F.POD + 3, F.POD + 2 + F.SS); G.spread(o[10:], F.POD + 3 + F.SS, F.POD + 12 + F.SS)
                else: G.put(F.POD, o[0]); G.put(F.POD + 1, *o[1:])
                if not F.D3 and not ep: G.put(F.D0, "vneed pk", *f2pre(False)[0], "f2chk")
            if dfr and (F.D3 or not W):
                g1 = F.POD + 1 if W else F.DB1
                for y in f1s: g1 = G.near(g1, y, F.R1) + (y[0] == "v") * F.SB1
            elif sym and not dfr: q1 = F.Q1W if W else F.Q1B; g1 = G.spread(f1s, q1, q1 + 12)[-1]
            if R:
                ns = F.LHI * NM // 64 - F.LLO
                lw = (F.LWD if W else F.LWB) if dfr else F.LWX if sym else F.LW2 if res and F.LW2 else [F.LLO + i * ns // KS for i in range(KS)]
                g = -1
                for i in range(KS):
                    x = ldA(i).split("\n"); g = G.near(max(lw[i], g + len(x)), f"vm:L{i}:" + x[-1], F.R1 and not stats)
                    if len(x) > 1: G.put(g - 1, x[0])
            w2n = res and F.LW2
            if w2n: G.put(G.near(0, f"vm:res:buffer_load_dwordx4 {vr(RES,4)}, v{L16}, {WSRD}, s82 offen", F.R1) + 1, "s_add_u32 s82, s82, 32768")
            if R or not F.QM4: G.near(F.PP2 if w2n and W else (F.PPD if W else F.LWB[-1] + 2) if dfr and R else NM * (F.PPR if R else F.PPN) // 32, "vm:poll:" + pollld, F.R1 and not stats)
            else:
                qm = NM * F.QM4 // 64
                G.near(F.PA, "vm:poll:" + pollld); G.put(qm, "vneed poll", "mid"); G.near(qm + 1, "vm:poll:" + pollld)
            G.spread([need(1, 71), need(2, 53)] + (["s_mov_b32 s57, s63"] if flg and not fin else []), 0, 8)
            if flg and not fin and (stats or not W or w2n): gf = G.near(F.FPB * NM // 64 if not W else F.FW2 if w2n else F.FP4, flag("s57")); G.put(gf, "vneed out")
            so = None
            if W and not dfr:
                o = post(False)
                k = [i for i, x in enumerate(o) if not x.startswith("v_")][0]
                g = G.sched(o[:k], F.PO, F.PHI if stats else F.PO + 12) + 1 if k else F.PO
                if w2n: g = max(g, F.OW2, gf + 1)
                o = o[k:]; pos = G.spread(o, g, g + 5)
                so = [i for i, x in zip(pos, o) if x.startswith(("vm:out", "vm2:out"))]
                if stats: assert so[0] > F.FP4 + 4
                if res and not w2n: G.put(G.near(so[0] + F.FD, flag("s63")), "vneed out")
            if stats:
                if F.GT:
                    lu = lambda r: max([g + 1 for g in range(NM) for y in G.g[g] if f"v{r}" in y], default=0)
                    assert lu(NM_) <= ksf + 2
                    l2 = max(lu(RS_), lu(K0_), lu(K1_))
                    G.put(ksf, sfin[0]); g = G.sched(sfin[1:12], ksf, NM); G.sched(sfin[12:], max(g + 1, l2), NM)
                else:
                    assert not any(f"v{RS_}" in y for g in range(ksf, NM) for y in G.g[g])
                    G.put(ksf, sfin[0]); G.sched(sfin[1:], ksf, NM)
            if res:
                if not w2n: G.put(G.near(F.LLO - 2, f"vm:res:buffer_load_dwordx4 {vr(RES,4)}, v{L16}, {WSRD}, s82 offen") + 1, "s_add_u32 s82, s82, 32768")
                G.put(F.RSP, "vneed res"); G.sched(grab(lambda: unpack(A, RES, TM, 4)), F.RSP, NM)
            if dfr:
                P = fz(); q = (F.DW2 if F.D3 else F.D0) if W else F.DB2
                def seq(items, g):
                    i = 0
                    while i < len(items):
                        if items[i].startswith("vneed"): g = G.near(g, items[i + 1], F.R1); G.put(g, items[i]); i += 2
                        else: g = G.near(g, items[i], F.R1); i += 1
                        g += 1
                    return g
                if ep:
                    G.put(q, P["head"][0]); q = G.spread(chkv, q, NM, 1)[-1] + 1; G.put(q, "f2br"); G.put(q - 2, *P["head"][1:])
                elif F.D3 or not W: G.put(q, *P["head"], "f2chk")
                np_ = len(f2pre(False)[1]) - (1 if ep else 0); early = W and F.RE
                fl_ = ["vneed out", flag("s63")] if flg else []
                if F.D3:
                    p2_ = G.spread(P["calc"][:2], q + 1, NM, 1); P["calc"] = P["calc"][2:]; np_ -= 2
                    grz = seq(P["rz"], p2_[0] + 1); gf_ = seq(fl_, grz); P["rz"] = []; fl_ = []
                ps_ = G.spread(P["calc"][:np_], q + 1, NM, 1); g2 = seq(P["oad"] + P["book"], q + 1)
                if F.D3: g2 = max(g2, grz, gf_)
                if early: g2 = seq(fres, max(g2, ps_[-1] + 1))
                g = G.spread(P["calc"][np_:], ps_[-1], NM, 1)[-1] + 1
                g2 = max(g2, seq(P["rz"], ps_[0] + 1))
                fo = fl_ + P["out"] + P["cnt"]
                ld_ = f1s + ([] if early else fres); k1 = 1 if ep else 2
                if not W: seq(fo + ["s_mov_b32 s77, 0"], max(g, g2))
                elif F.D3:
                    g3 = seq(fo + ["s_mov_b32 s77, 1"], max(g, gf_))
                    if not R: seq(f1s, max(g2, F.D1N * NM // 64))
                elif F.DL and flg: g2 = seq(ld_[:k1], max(g, g2, F.D1 * NM // 64)); g2 = seq(ld_[k1:], g2 + F.SS - 1); seq(fo + ["s_mov_b32 s77, 1"], g2)
                else: seq(fo + ["s_mov_b32 s77, 1"], max(g, g2)); g2 = seq(ld_[:k1], max(g, g2, F.D1 * NM // 64)); seq(ld_[k1:], g2 + F.SS - 1)
                if not ep: G.put(NM - 2, "vneed rz")
            elif fin:
                q1 = NM * F.Q1 // 64; q2 = NM - F.Q2R if R else q1 + F.Q2N; q0 = F.Q0
                if sym: q1 = F.Q1W if W else F.Q1B; q2 = min(q1 + (F.Q2W if W else F.Q2B), NM - 6); q0 = F.Q0S
                if not sym: G.spread(f1s, q1, q1 + 12)
                p0, p1 = f2pre(False); G.put(q0, *p0); g = G.sched(p1, q0 + 1, q2) + 1
                if sym: g = max(g, g1 + 1)
                if sym:
                    for y in fres: g = G.near(g, y, F.R1) + 1
                else: G.spread(fres, g, g + 8)
                G.put(q2, "vneed pk")
                if flg: G.put(q2, flag("s63"))
                G.put(q2, "f2chk")
            nx = ["s_add_u32 s55, s55, 32768", "s_and_b32 s55, s55, 0x1ffff"] + [f"v_add_u32 v{VRD+x}, s55, v{VRB+x}" for x in range(4)]
            if R:
                nx = adv + nx + ([y for n in range(PRE) for y in (f"vneed L{n}", rd(n))] if F.PRG else [f"vneed L{KS-1}"] + [rd(n) for n in range(PRE)])
            G.spread(nx, lastrd + 1, NM)
            if fin and not dfr: G.spread(f2rest(False), q2 + 1, NM, 1)
            return G
        def vseq(G):
            return [t for x in sum([G.gap(i) for i in range(NM)], []) + G.over if x.startswith("vm") for t in [x.split(":")[1]] * (2 if x.startswith("vm2:") else 1)]
        n_t = len(tail); hs = [vseq(plan(w, True)) for w in (True, False)]; del tail[n_t:]
        def merge(hs):
            aft = {t: min(len(q) - 1 - max(i for i, x in enumerate(q) if x == t) for q in hs if t in q) for t in set(sum(hs, []))}
            h = [[] for _ in range(max(aft.values(), default=-1) + 1)]
            for t, n in aft.items(): h[len(h) - 1 - n].append(t)
            return h
        histR = [[("P" + t[1:] if t[0] == "L" else t) for t in x] for x in merge(hs)]
        histB = [["rs"]] + [[f"P{i}"] for i in range(KS)] + ([[t] for t in (("sn", "sn", "out", "fl", "rs") if ep else ("sn", "sn", "out", "rz", "rz", "fl", "rs"))] if dfr else [["out"], ["fl"]] if F.IPF and not xch else [["sn" if sym else "out"]] * NS)
        def body(W, R):
            G = plan(W, R); i00 = len(A.lines)
            Z = Sched(A); V = VMQ2(A, histR if W else histB)
            on = F.PROF == 2 or (F.PROF == 3 and (W, R) == F.PM); tp = [16, NM // 2] if F.PROF == 2 else [x * NM // 64 for x in F.TP]
            if on: tst(A, 0)
            if W: Z.q = [rd(n) for n in range(PRE)]
            else:
                for n in range(F.BD + 1): V.need(f"P{n}"); Z.lds(rd(n), rd(n))
            Z.need(rd(0))
            tr(8 + 2 * W + R)
            for i, m in enumerate(M):
                if on and i in tp: tst(A, 1 + tp.index(i))
                A.e(m)
                if i == NM - 1: V.need("poll"); A.e(f"v_cmp_gt_u32 vcc, s{53 if R else 71}, v{VF}") if not fin else None
                for y in G.gap(i): emit(Z, V, y)
            for y in G.over: emit(Z, V, y)
            if fin: A.e(f"v_cmp_gt_u32 vcc, s{53 if R else 71}, v{VF}")
            if F.PROF == 2: tst(A, 3); tst(A, 4)
            tr(4)
            A.e("s_add_u32 s60, s60, 1")
            if on and F.PROF == 3:
                sk = A.newlabel("pu"); tst(A, 5); A.e(f"s_cmp_le_u32 s60, {F.PU0}\ns_cbranch_scc1 {sk}\ns_mov_b32 s49, s97"); tacc(A, 6); A.e("s_add_u32 s97, s49, 1"); A.label(sk)
            elif on: tst(A, 5); tacc(A, 6)
            if W and R and F.DROP:
                import re
                A.lines[i00:] = [x for x in A.lines[i00:] if not any(re.search(p, x) for p in F.DROP)]
            return V
        WR, WN, BR, BN, lag, dec, nb = [A.newlabel(x) for x in ("WR", "WN", "BR", "BN", "lag", "dec", "nb")]
        if kind in F.HOLD: A.e("s_mov_b32 s71, 128"); poll_loop(A, pollld, VF, 71, 32)
        A.e(need(0, 71)); A.e(need(1, 53))
        poll_loop(A, pollld, VF, 71)
        A.label(lag); pc(0); tr(1)
        for i in range(KS): A.e(ldA(i))
        for x in adv: A.e(x)
        for _ in range(NS): A.e(dummy)
        A.label(dec)
        A.e(f"v_cmp_gt_u32 vcc, s53, v{VF}\ns_cbranch_vccnz {BN}")
        A.label(BR); pc(4); body(False, True); A.e(f"s_cbranch_vccnz {WN}")
        if F.GAL >= 0: A.lines += [".p2align 6"] + ["    s_nop 0"] * F.GAL
        A.label(WR); pc(3); body(True, True); A.e(f"s_cbranch_vccz {WR}")
        endN = A.newlabel("endN")
        A.label(WN); pc(2); VW_ = body(True, False); A.e(f"s_branch {endN}")
        A.label(BN); pc(1); VB_ = body(False, False)
        A.label(endN)
        hist = merge([[t[0] if t else "x" for t in V_.q[V_.done + 1:]] for V_ in (VW_, VB_)])
        mk = lambda: VMQ2(A, hist)
        def fza(V, pre, mid=[]):
            Z = Sched(A); P = fz()
            for x in V.q:
                if "out" in x: x[x.index("out")] = "po"
            for x in pre + P["head"] + ["f2chk"] + mid + P["calc"] + P["oad"] + P["out"] + P["rz"] + P["book"] + (["vneed po", flag("s63")] if flg else []) + P["cnt"]: emit(Z, V, x)
        def ipost(V, pk=True):
            Z = Sched(A); o = post(pk)
            if dfr:
                fza(V, o); A.e("s_mov_b32 s77, 1")
                for x in fres: emit(Z, V, x)
                return
            if F.IPF and not xch:
                for x in V.q:
                    if "out" in x: x[x.index("out")] = "po"
                A.e("s_mov_b32 s57, s63")
                for x in o: emit(Z, V, x)
                V.need("po"); emit(Z, V, flag("s57"))
                return
            k = 12 if stats and "out" in sum(hist, []) else len(o)
            for x in o[:k]: emit(Z, V, x)
            if k < len(o): V.need("out"); emit(Z, V, flag("s63"))
            for x in o[k:]: emit(Z, V, x)
        if F.QM4:
            nm_ = A.newlabel("nm")
            A.e(f"s_cmp_eq_u32 s72, 0\ns_cbranch_scc1 {nm_}\ns_nop 3"); ipost(mk()); A.e(f"s_branch {dec}"); A.label(nm_)
        A.e(f"s_cbranch_vccnz {nb}")
        pc(7); tr(2); V = mk()
        for i in range(KS): V.op(ldA(i), f"L{i}")
        for x in adv: A.e(x)
        ipost(V)
        A.e(f"s_branch {dec}")
        A.label(nb)
        V = mk()
        if not fin: V.op(pollld, "poll")
        A.e("s_nop 3")
        ipost(V, 2)
        Z = Sched(A)
        if dfr:
            if F.FDL: A.e(f"s_sleep {F.FDL}")
            fza(V, f1s, ["vm:poll:" + pollld]); A.e("s_mov_b32 s77, 0")
            V.need("out" if flg else "poll")
        elif fin:
            if F.FDL: A.e(f"s_sleep {F.FDL}")
            for x in f1s + sum(f2pre(True, FIN), []) + ["vneed pk"] + ([flag("s63")] if flg else []) + ["f2chk", "vm:poll:" + pollld] + f2rest(True): emit(Z, V, x)
            V.need("out" if flg else "poll")
        else:
            V.need("poll"); A.e(f"v_cmp_gt_u32 vcc, s71, v{VF}\ns_cbranch_vccz {lag}")
            if flg: V.need("out")
        if flg: emit(Z, V, flag("s63"))
        if fin: A.e(f"v_cmp_gt_u32 vcc, s71, v{VF}\ns_cbranch_vccz {lag}")
        A.e(f"s_cmp_ge_u32 s60, {NU}\ns_cbranch_scc1 {done}")
        pc(5); poll_loop(A, pollld, VF, 71)
        A.e(f"s_branch {lag}")
    if F.PROF:
        for r in ST: A.e(f"v_mov_b32 v{r}, 0")
        A.e(f"s_memrealtime s[84:85]\ns_waitcnt lgkmcnt(0)\nv_writelane_b32 v{ST[2]}, s84, 0\nv_writelane_b32 v{ST[2]}, s86, 1")
    tinit(A)
    if F.TRU: A.e("s_mov_b32 s94, 0")
    if sym: loop(True)
    elif xch:
        lf = A.newlabel("lfin")
        A.e(f"s_cmp_eq_u32 s50, s52\ns_cbranch_scc1 {lf}")
        loop(False); A.label(lf); loop(True)
    elif kind == "w1" and F.LOC & 1:
        lf = A.newlabel("lfar")
        A.e(f"s_cmp_eq_u32 s56, 1\ns_cbranch_scc1 {lf}")
        LS[0] = ""; loop(False)
        while tail: tail.pop(0)()
        A.label(lf); LS[0] = "sc1"; loop(False)
    else: loop(False)
    while tail: tail.pop(0)()
    A.label(done)
    tout(A, ST[2]); stamp_out(A, ST)
    A.e("s_endpgm")

def stamp2(A, ST, s="s60", sub=0, sr_=84):
    if not F.PROF or F.TRU or F.PROF == 3: return
    l1 = A.newlabel("st1"); l2 = A.newlabel("st2"); l3 = A.newlabel("st3"); l4 = A.newlabel("st4")
    if F.SPS and F.PROF == 1: A.e(f"s_sub_u32 s88, {s}, {sub + 4}\ns_cmp_ge_u32 s88, 116\ns_cbranch_scc1 {l4}\ns_and_b32 s88, s88, 7\ns_cmp_lg_u32 s88, 4\ns_cbranch_scc1 {l3}"); A.label(l4)
    A.e(f"s_memrealtime s[{sr_}:{sr_+1}]\ns_sub_u32 s88, {s}, {sub}\ns_lshr_b32 s89, s88, 1\ns_mov_b32 s87, m0\ns_mov_b32 m0, s89\ns_waitcnt lgkmcnt(0)\ns_bitcmp1_b32 s88, 0\ns_cbranch_scc1 {l1}\nv_writelane_b32 v{ST[0]}, s{sr_}, m0\ns_branch {l2}")
    A.label(l1); A.e(f"v_writelane_b32 v{ST[1]}, s{sr_}, m0"); A.label(l2); A.e("s_mov_b32 m0, s87"); A.label(l3); A.e("s_nop 3")

def ln_role(A, L):
    R = dict(RM=8, CO=9, FR=10, SW=11, SR=12); VFA, VF, VT = 13, 14, 15
    C1, SB = 32, 48; BUF = (64, 72); V = 80; T = 96; PK = 112; ST = (120, 121, 122)
    done = A.newlabel("done")
    A.e("s_mov_b32 s52, s59\ns_mov_b32 s60, 0\ns_mov_b32 s73, 0xffff0000")
    row_lanes(A, 52, R)
    A.e(f"v_and_b32 v{VFA}, {31 if F.SYM and F.K3 == 2 else 7}, v1\nv_lshlrev_b32 v{VFA}, 2, v{VFA}")
    verify(A, L, False, "mod")
    load_consts(A, R, 4, C1, 64, True); load_consts(A, R, 3, SB, 64)
    if "ln2" in F.OFF: A.e("s_endpgm")
    A.e(f"""
    s_mov_b32 s63, {X1}
    s_mov_b32 s66, {H2}
    s_lshl_b32 s64, s50, 8
    s_add_u32 s68, s64, {F_WO}
    s_lshl_b32 s65, s59, 2
    s_add_u32 s69, s64, s65
    s_add_u32 s69, s69, {F_LN}""")
    VFL = 16
    if F.LOC & 2: A.e(f"s_lshl_b32 s64, s50, 9\ns_lshl_b32 s65, s59, 7\ns_add_u32 s69, s64, s65\ns_add_u32 s69, s69, {F_LNL}\nv_lshlrev_b32 v{VFL}, 2, v1\nv_cmp_gt_u32 vcc, 32, v1\nv_cndmask_b32 v{VFL}, 2.0, v{VFL}, vcc")
    NS = 2
    def loads(par):
        A.e(f"s_add_u32 s64, s63, 4096\nbuffer_load_dwordx4 {vr(BUF[par],4)}, v{R['FR']}, {WSRD}, s63 offen\nbuffer_load_dwordx4 {vr(BUF[par]+4,4)}, v{R['FR']}, {WSRD}, s64 offen\ns_add_u32 s63, s63, 32768")
    pollld = f"buffer_load_dword v{VF}, v{VFA}, {WSRD}, s68 offen sc1"
    def dummies():
        for _ in range(NS): A.e(f"buffer_load_dword v{VT}, off, {WSRD}, s68")
    if F.PROF:
        for r in ST: A.e(f"v_mov_b32 v{r}, 0")
    def lnloop(ls):
        ld_ = ls if F.LOCX & 1 else "sc1"
        top = [A.newlabel("top0"), A.newlabel("top1")]
        def flag_store(A, vt, sval, saddr):
            if F.LOC & 2: A.e(f"v_mov_b32 v{vt}, {sval}\nbuffer_store_dword v{vt}, v{VFL}, {WSRD}, s{saddr} offen {ls}")
            else: A.e(f"v_mov_b32 v{vt}, {sval}\ns_mov_b64 exec, 1\nbuffer_store_dword v{vt}, off, {WSRD}, s{saddr} {ls}\ns_mov_b64 exec, -1")
        A.e("s_mov_b32 s71, 1")
        poll_loop(A, pollld, VF, 71)
        loads(0); dummies()
        tail = []
        for par in range(2):
            slowp = A.newlabel("slowp"); p2 = A.newlabel("p2")
            A.label(top[par])
            A.e(pollld)
            A.e(f"s_add_u32 s71, s60, 2\ns_waitcnt vmcnt({NS+1})")
            unpack(A, BUF[par], V, 8)
            i0 = len(A.lines); ln_core(A, V, C1, SB, T, R, par * 2048, PK); body = A.lines[i0:]; del A.lines[i0:]
            k = [i for i, x in enumerate(body) if "s_barrier" in x][0]
            A.lines += body[:k + 1]
            A.e("s_waitcnt vmcnt(0)"); flag_store(A, VT, "s60", 69)
            A.e(f"v_cmp_gt_u32 vcc, s71, v{VF}\ns_mov_b32 s72, 0\ns_cbranch_vccnz {p2}\ns_mov_b32 s72, 1")
            loads(par ^ 1)
            A.label(p2)
            A.lines += body[k + 1:]
            A.e(f"s_add_u32 s64, s66, 4096\nbuffer_store_dwordx4 {vr(PK,4)}, v{R['FR']}, {WSRD}, s66 offen {ld_}\nbuffer_store_dwordx4 {vr(PK+4,4)}, v{R['FR']}, {WSRD}, s64 offen {ld_}")
            stamp(A, ST[par])
            A.e(f"s_add_u32 s66, s66, 32768\ns_add_u32 s60, s60, 1\ns_cmp_eq_u32 s72, 0\ns_cbranch_scc1 {slowp}")
            if par: A.e(f"s_branch {top[0]}")
            def d(par=par, slowp=slowp):
                A.label(slowp)
                A.e(pollld)
                A.e("s_waitcnt vmcnt(1)"); flag_store(A, VT, "s60", 69)
                go = A.newlabel("go")
                A.e(f"s_cmp_ge_u32 s60, {NU}\ns_cbranch_scc1 {done}\ns_waitcnt vmcnt(1)\nv_cmp_gt_u32 vcc, s71, v{VF}\ns_cbranch_vccz {go}")
                poll_loop(A, pollld, VF, 71)
                A.label(go)
                loads(par ^ 1); dummies()
                A.e(f"s_branch {top[par^1]}")
            tail.append(d)
        for d in tail: d()
    if F.LOC & 2:
        lf = A.newlabel("lfar")
        A.e(f"s_cmp_eq_u32 s56, 1\ns_cbranch_scc1 {lf}")
        lnloop(""); A.label(lf)
    lnloop("sc1")
    A.label(done)
    stamp_out(A, ST)
    A.e("s_endpgm")

def att_role(A, L, team=False):
    NUA = NU - 2 * F.AT
    L16, VFA, VKM, VVM, VF, VT, VNEG = 0, 2, 3, 4, 5, 6, 7
    KM, VM, SA, SM, P, TT, OA, PK = 16, 32, 48, 56, 64, 72, 80, 112; ST = (120, 121, 122)
    Q = lambda b, ke: ar(b * 80 + ke * 4, 4)
    K = lambda b, kt, ke: ar(b * 80 + 16 + (kt * 4 + ke) * 4, 4)
    V = lambda b, et: ar(b * 80 + 48 + et * 4, 4)
    if team: A.e(f"s_lshr_b32 s46, s59, 4\ns_and_b32 s59, s59, 15\nv_mbcnt_lo_u32_b32 v1, -1, 0\nv_mbcnt_hi_u32_b32 v1, -1, v1")
    else: verify(A, L, True)
    A.e(f"""
    v_lshlrev_b32 v{L16}, 4, v1
    v_and_b32 v21, 15, v1
    v_lshrrev_b32 v22, 4, v1
    v_and_b32 v23, 7, v21
    v_lshlrev_b32 v23, 4, v23
    v_lshl_add_u32 v{VKM}, v22, 8, v23
    v_and_b32 v23, 31, v1
    v_lshlrev_b32 v{VVM}, 4, v23
    v_and_b32 v23, 3, v1
    v_bfe_u32 v24, v1, 2, 1
    v_lshlrev_b32 v23, 14, v23
    v_lshl_add_u32 v{VFA}, v24, 7, v23
    v_mov_b32 v{VNEG}, {NEG:#x}
    s_and_b32 s54, s50, 1
    s_lshl_b32 s64, s54, 4
    v_lshlrev_b32 v23, 2, v22
    v_sub_u32 v23, v21, v23
    v_add_u32 v23, s64, v23            ; query - 4g""")
    for kt in range(2):
        for r in range(4): A.e(f"v_cmp_le_i32 s[{28+2*(kt*4+r)}:{29+2*(kt*4+r)}], {16*kt+r}, v23")
    A.e(f"""
    s_mov_b32 s44, -1
    s_mov_b32 s45, 0
    s_mov_b32 s80, {f2u(SCL):#x}
    s_lshl_b32 s52, s59, 1
    s_lshr_b32 s64, s50, 1
    s_add_u32 s52, s52, s64            ; head
    s_lshl_b32 s53, s52, 15            ; 2h * 16KB
    s_lshl_b32 s68, s52, 8
    s_add_u32 s68, s68, s67
    s_add_u32 s68, s68, {F_KVM}
    s_lshl_b32 s69, s59, 8
    s_lshl_b32 s64, s64, 2
    s_add_u32 s69, s69, s64
    s_lshl_b32 s64, s54, 3
    s_add_u32 s69, s69, s64
    s_add_u32 s69, s69, {F_ATT}
    s_lshl_b32 s66, s52, 12
    s_lshl_b32 s64, s54, 17
    s_add_u32 s66, s66, s64
    s_add_u32 s66, s66, {OB}
    s_lshl_b32 s55, s54, 10
    s_xor_b32 s55, s55, 0x2000
    s_mov_b32 s60, 0                   ; 2 * segment""")
    def near(dst, add):
        A.e(f"""
        s_add_u32 s64, s60, {2*add}
        s_lshl_b32 s65, s64, 11
        s_and_b32 s65, s65, 0x2000
        s_xor_b32 s65, s65, s67
        s_lshl_b32 s64, s64, 19
        s_add_u32 s64, s64, s65
        s_add_u32 s{dst}, s64, s53""")
    def kq_loads(b, add):
        near(92, add)
        A.e("s_add_u32 s93, s92, 16384\ns_add_u32 s94, s92, 4096\ns_add_u32 s95, s93, 4096\ns_xor_b32 s96, s92, s55\ns_xor_b32 s97, s93, s55")
        for ke in range(4):
            A.e(f"buffer_load_dwordx4 {Q(b,ke)}, v{L16}, {WSRD}, s{96+(ke>>1)} offen offset:{(ke&1)*2048}")
            for kt in range(2): A.e(f"buffer_load_dwordx4 {K(b,kt,ke)}, v{L16}, {WSRD}, s{92+(ke>>1)} offen offset:{(ke&1)*2048 + kt*1024}")
    def v_loads(b):
        for et in range(8): A.e(f"buffer_load_dwordx4 {V(b,et)}, v{L16}, {WSRD}, s{94+(et>>2)} offen offset:{(et&3)*1024}")
    def softmax(vals):
        mx, t, sm, r = TT, TT + 1, TT + 2, TT + 3
        A.e(f"v_max3_f32 v{mx}, v{mx}, v{vals[8]}, v{vals[9]}\nv_max3_f32 v{mx}, v{mx}, v{vals[10]}, v{vals[11]}")
        for sw in ("v_permlane16_swap_b32", "v_permlane32_swap_b32"): A.e(f"v_mov_b32 v{t}, v{mx}\n{sw} v{t}, v{mx}\nv_max_f32 v{mx}, v{mx}, v{t}")
        A.e(f"v_mul_f32 v{mx}, s80, v{mx}")
        for v in vals: A.e(f"v_fma_f32 v{v}, v{v}, s80, -v{mx}")
        for v in vals: A.e(f"v_exp_f32 v{v}, v{v}")
        A.e(f"v_add_f32 v{sm}, v{vals[0]}, v{vals[1]}\nv_add_f32 v{r}, v{vals[2]}, v{vals[3]}")
        for i in range(4, 12, 2): A.e(f"v_add_f32 v{sm}, v{sm}, v{vals[i]}\nv_add_f32 v{r}, v{r}, v{vals[i+1]}")
        A.e(f"v_add_f32 v{sm}, v{sm}, v{r}")
        for sw in ("v_permlane16_swap_b32", "v_permlane32_swap_b32"): A.e(f"v_mov_b32 v{t}, v{sm}\n{sw} v{t}, v{sm}\nv_add_f32 v{sm}, v{sm}, v{t}")
        A.e(f"v_rcp_f32 v{r}, v{sm}")
        for v in vals: A.e(f"v_mul_f32 v{v}, v{v}, v{r}")
        for i in range(6): A.e(f"v_cvt_pk_bf16_f32 v{P+i}, v{vals[2*i]}, v{vals[2*i+1]}")
    pollld = f"buffer_load_dword v{VF}, v{VFA}, {WSRD}, s68 offen sc1"
    if F.PROF:
        for r in ST: A.e(f"v_mov_b32 v{r}, 0")
    if team:
        A.e(f"""
        s_lshl_b32 s60, s46, 1
        s_add_u32 s60, s60, {NUA}
        s_lshl_b32 s64, s60, 17
        s_add_u32 s66, s66, s64
        s_lshl_b32 s47, s52, 7
        s_add_u32 s47, s47, s67
        s_add_u32 s47, s47, {F_QKV}
        v_and_b32 v23, 1, v1
        v_lshlrev_b32 v23, 6, v23
        s_mov_b32 s71, {NSEG}""")
        poll_loop(A, f"buffer_load_dword v{VF}, v23, {WSRD}, s47 offen sc1", VF, 71, 16)
    else:
        for k in range(F.AT): A.e(f"s_add_u32 s64, s69, {16*(k+1)}"); flag_store(A, VT, NUA + 2 * k, 64)
        A.e("s_mov_b32 s71, 1")
        poll_loop(A, pollld, VF, 71, F.ASL)
    avl = F.AVL and not team
    kq_loads(0, 0)
    if not avl: v_loads(0)
    A.e(f"s_waitcnt vmcnt({0 if avl else 8})")
    top = [A.newlabel("top0"), A.newlabel("top1")]
    for b in range(1 if team else 2):
        A.label(top[b])
        for ke in range(4):
            for kt in range(2):
                d = vr(SA + 4 * kt, 4); A.e(f"{MF} {d}, {K(b,kt,ke)}, {Q(b,ke)}, {d if ke else 0}")
        for i in range(8): A.e(f"v_cndmask_b32 v{SA+i}, v{VNEG}, v{SA+i}, s[{28+2*i}:{29+2*i}]")
        A.e(f"v_max3_f32 v{TT}, v{SA}, v{SA+1}, v{SA+2}\nv_max3_f32 v{TT}, v{TT}, v{SA+3}, v{SA+4}\nv_max3_f32 v{TT}, v{TT}, v{SA+5}, v{SA+6}\nv_max_f32 v{TT}, v{TT}, v{SA+7}")
        near(98, 0)
        if team:
            A.e(f"s_mov_b32 s71, {F.ATP}"); poll_loop(A, f"buffer_load_dword v{VF}, off, {WSRD}, s69 sc1", VF, 71, 32)
            A.e("s_lshl_b32 s64, s46, 4\ns_add_u32 s69, s69, s64\ns_add_u32 s69, s69, 16")
        A.e(f"s_add_u32 s98, s98, {KVM}\ns_add_u32 s99, s98, 16384\ns_lshr_b32 s71, s60, 1\ns_add_u32 s71, s71, 1")
        ek = A.newlabel("ek")
        if F.APE and not team: A.e(f"s_waitcnt vmcnt(1)\nv_cmp_gt_u32 vcc, s71, v{VF}\ns_cbranch_vccz {ek}")
        poll_loop(A, pollld, VF, 71, F.ASL)
        A.label(ek)
        for ke in range(4): A.e(f"buffer_load_dwordx4 {vr(KM+4*ke,4)}, v{VKM}, {WSRD}, s{98+(ke>>1)} offen offset:{(ke&1)*128}")
        if avl: v_loads(b)
        for ke in range(4): A.e(f"buffer_load_dwordx4 {vr(VM+4*ke,4)}, v{VVM}, {WSRD}, s{98+(ke>>1)} offen offset:{1024 + (ke&1)*512}")
        stamp(A, ST[2])
        if F.PROF: A.e(f"s_memtime s[84:85]\ns_waitcnt lgkmcnt(0)\nv_writelane_b32 v{ST[1]}, s84, m0")
        if F.ABAR and not team: A.e("s_barrier")
        def guarded(f, n):
            if team: return
            if b == 0: return f()
            pf = A.newlabel("pf"); j1 = A.newlabel("j1")
            A.e(f"s_cmp_lt_u32 s60, {NUA-2}\ns_cbranch_scc1 {pf}\ns_waitcnt vmcnt({n})\ns_branch {j1}")
            A.label(pf); f(); A.label(j1)
        guarded(lambda: kq_loads(b ^ 1, 1), 0)
        A.e(f"s_waitcnt vmcnt({4 if team else 24 if avl else 16})")
        for ke in range(4): A.e(f"{MF} {vr(SM,4)}, {vr(KM+4*ke,4)}, {Q(b,ke)}, {vr(SM,4) if ke else 0}")
        for r in range(4): A.e(f"v_cndmask_b32 v{SM+r}, v{VNEG}, v{SM+r}, s[44:45]")
        softmax(list(range(SA, SA + 12)))
        for et in range(8):
            if avl and et % 2 == 0: A.e(f"s_waitcnt vmcnt({22 - et})")
            A.e(f"{MF} {vr(OA+4*et,4)}, {V(b,et)}, {vr(P,4)}, 0")
        A.e(f"s_waitcnt vmcnt({0 if team else 12})")
        for et in range(8): A.e(f"v_mfma_f32_16x16x16_bf16 {vr(OA+4*et,4)}, {vr(VM+2*et,2)}, {vr(P+4,2)}, {vr(OA+4*et,4)}")
        for ke in range(4):
            o = PK + 4 * (ke & 1)
            for i in range(4): A.e(f"v_cvt_pk_bf16_f32 v{o+i}, v{OA+8*ke+2*i}, v{OA+8*ke+2*i+1}")
            A.e(f"buffer_store_dwordx4 {vr(o,4)}, v{L16}, {WSRD}, s66 offen offset:{ke*1024} sc1")
        stamp(A, ST[0])
        if team:
            A.e("s_waitcnt vmcnt(0)"); flag_store(A, VT, NU, 69); break
        if F.ABAR and not avl: A.e("s_barrier")
        if not avl: guarded(lambda: v_loads(b ^ 1), 0)
        if F.APE: A.e(pollld)
        A.e("s_add_u32 s66, s66, 262144\ns_add_u32 s60, s60, 2\ns_add_u32 s72, s60, s54")
        if b and F.AT: A.e(f"s_cmp_eq_u32 s60, {NUA}\ns_cselect_b32 s72, {NU}, s72")
        A.e(f"s_waitcnt vmcnt({(0 if avl else 8) + F.APE})"); flag_store(A, VT, "s72", 69)
        if b: A.e(f"s_cmp_lt_u32 s60, {NUA}\ns_cbranch_scc1 {top[0]}")
    if F.PROF and F.AT:
        if team: A.e("s_add_u32 s58, s59, 224\ns_lshr_b32 s64, s60, 1\ns_lshl_b64 s[48:49], 1, s64")
        else: A.e(f"s_mov_b32 s48, -1\ns_mov_b32 s49, {(1 << (NUA // 2 - 32)) - 1:#x}")
        i0 = len(A.lines); stamp_out(A, ST); k = [i for i in range(i0, len(A.lines)) if "buffer_store" in A.lines[i]][0]
        A.lines.insert(k, "    s_mov_b64 exec, s[48:49]")
    else: stamp_out(A, ST)
    A.e("s_endpgm")

def flow_kernel(A, name):
    A.begin_kernel(name)
    L = {k: f"fl_{k}" for k in ("fb", "disp0", "disp", "rec", "qkv", "wo", "w4", "w3", "att", "ln2", "w1", "w2", "dutb", "att2")}
    done = A.newlabel("done"); nr = A.newlabel("norole")
    A.e(f"s_cmp_ge_u32 s2, 256\ns_cbranch_scc1 {done}\ns_lshr_b32 s49, s2, 3")
    ldptr(A, 18, "ws"); ldptr(A, 2, "dbg")
    if F.KW: ldptr(A, 4, "x")
    A.e(f"""
    s_getreg_b32 s51, hwreg(HW_REG_XCC_ID)
    v_lshrrev_b32 v2, 6, v0
    v_and_b32 v1, 63, v0
    s_and_b32 s51, s51, 7
    v_readfirstlane_b32 s50, v2
    s_mov_b32 s90, {F.BUD}
    s_mov_b32 s56, 2
    s_mov_b32 s88, {CB0}
    s_lshl_b32 s64, s51, 2
    s_lshr_b32 s64, {F.XMAP:#x}, s64
    s_and_b32 s64, s64, 7
    s_lshl_b32 s58, s64, 5
    s_add_u32 s58, s58, s49""")
    if F.PROF: A.e("s_memrealtime s[86:87]")
    A.e("s_waitcnt lgkmcnt(0)")
    A.srd(20, 18, WS_BYTES)
    A.e(f"s_cmp_lg_u32 s50, 0\ns_cbranch_scc1 {L['disp0']}")
    dbg_srd(A, 92)
    A.e(f"""
    s_lshl_b32 s64, 1, s49
    v_mov_b32 v2, s64
    v_mov_b32 v3, 0x100
    s_lshl_b32 s64, s51, 3
    s_mov_b64 exec, 1
    buffer_atomic_add_x2 v[2:3], off, s[92:95], s64 sc1
    s_mov_b64 exec, -1""")
    A.label(L["disp0"])
    A.e("v_mbcnt_lo_u32_b32 v1, -1, 0\nv_mbcnt_hi_u32_b32 v1, -1, v1")
    f1 = A.newlabel("nx"); f2 = A.newlabel("nx")
    A.e(f"s_sub_u32 s59, s58, 64\ns_cbranch_scc0 {f1}\ns_branch {L['rec']}"); A.label(f1)
    A.e(f"s_cmp_lt_u32 s58, 128\ns_cbranch_scc0 {f2}\ns_branch {L['qkv']}"); A.label(f2)
    A.e(f"s_cmp_ge_u32 s58, 192\ns_cbranch_scc1 {L['dutb']}")
    if "A" in F.EXP: A.e("s_endpgm")
    duty(A, L, 0)
    if "a" in F.EXP or F.X2: A.e("s_endpgm")
    A.e(f"s_branch {L['disp']}")
    A.label(L["dutb"])
    if "B" in F.EXP: A.e("s_endpgm")
    duty(A, L, 1)
    A.label(L["disp"])
    if F.LOC & 2: A.e("s_lshr_b32 s64, s58, 2\ns_sub_u32 s64, s64, 55\ns_andn2_b32 s64, s64, 4\ns_cmp_eq_u32 s64, 0\ns_cselect_b32 s64, 48, 0\ns_xor_b32 s58, s58, s64")
    for lo, role in ((248, "w2"), (240, "w1"), (224, "att"), (220, "ln2"), (192, "w3"), (160, "w4")):
        far = A.newlabel("nx")
        A.e(f"s_sub_u32 s59, s58, {lo}\ns_cbranch_scc1 {far}\ns_branch {L[role]}"); A.label(far)
    A.e(f"s_sub_u32 s59, s58, 128\ns_branch {L['wo']}")
    A.label(L["fb"])
    tp = A.newlabel("tp"); tg = A.newlabel("tg"); sl = A.newlabel("tsl")
    dbg_srd(A, 92)
    A.e(f"""
    s_waitcnt vmcnt(0) lgkmcnt(0)
    s_barrier
    v_mov_b32 v4, 0
    s_cmp_lg_u32 s50, 0
    s_cbranch_scc1 {nr}
    s_mov_b64 exec, 1
    v_mov_b32 v3, 1
    s_lshl_b32 s52, s51, 2
    s_add_u32 s52, s52, {TICK}
    buffer_atomic_add v3, off, s[92:95], s52 sc0 sc1
    s_waitcnt vmcnt(0)
    ds_write_b32 v4, v3
    s_waitcnt lgkmcnt(0)
    s_mov_b64 exec, -1""")
    A.label(nr)
    A.e(f"""
    s_barrier
    ds_read_b32 v3, v4
    v_mbcnt_lo_u32_b32 v16, -1, 0
    v_and_b32 v16, 7, v16
    v_lshlrev_b32 v16, 2, v16
    s_waitcnt lgkmcnt(0)
    v_readfirstlane_b32 s49, v3
    s_barrier""")
    A.label(tp)
    A.e(f"buffer_load_dword v17, v16, s[92:95], 0 offen offset:{TICK} sc1\ns_waitcnt vmcnt(0)")
    for x in range(8): A.e(f"v_readlane_b32 s{72+x}, v17, {x}")
    A.e("s_add_u32 s65, s72, s73")
    for x in range(2, 8): A.e(f"s_add_u32 s65, s65, s{72+x}")
    A.e(f"s_cmp_ge_u32 s65, 256\ns_cbranch_scc1 {tg}\ns_sleep 4\ns_sub_u32 s90, s90, 1\ns_cmp_gt_i32 s90, 0\ns_cbranch_scc1 {tp}")
    A.label(tg)
    A.e("s_min_u32 s65, s72, s73")
    for x in range(2, 8): A.e(f"s_min_u32 s65, s65, s{72+x}")
    A.e(f"""
    s_mov_b32 s88, {CB1}
    s_cmp_lt_u32 s65, {33 if F.FORCE_SLOW else 32}
    s_cbranch_scc1 {sl}
    s_lshl_b32 s64, s51, 2
    s_lshr_b32 s64, {F.XMAP:#x}, s64
    s_and_b32 s64, s64, 7
    s_lshl_b32 s58, s64, 5
    s_add_u32 s58, s58, s49
    s_mov_b32 s56, 0
    s_branch {L['disp0']}""")
    A.label(sl)
    A.e("s_mov_b32 s58, s49")
    for x in range(7): A.e(f"s_cmp_gt_u32 s51, {x}\ns_cselect_b32 s65, s{72+x}, 0\ns_add_u32 s58, s58, s65")
    if F.FORCE_SLOW: A.e("s_mul_i32 s58, s58, 37\ns_add_u32 s58, s58, 11\ns_and_b32 s58, s58, 255")
    A.e(f"s_mov_b32 s56, 1\ns_cmp_lt_u32 s58, 256\ns_cbranch_scc1 {L['disp0']}")
    A.label(done)
    A.e("s_endpgm")
    A.label(L["qkv"]); qkv_role(A, L)
    for role in ("wo", "w4", "w3", "w1", "w2"):
        A.label(L[role])
        if role in F.OFF: A.e("s_endpgm")
        (gemm4_role if F.K3 == 2 else gemm3_role if F.K3 else gemm_role)(A, L, role)
    A.label(L["ln2"]); ln_role(A, L)
    A.label(L["att"])
    if "att" in F.OFF: A.e("s_endpgm")
    att_role(A, L)
    if F.AT: A.label(L["att2"]); att_role(A, L, True)
    MFMA_WS[0] = 1
    A.lines = fix_hazards(A.lines)
    B = Asm(); B.uid = A.uid + 100000
    O = rec6.O; O.MEAS = 0; O.DL0 = max(0, O.DL - F.DLO); O.DO01 = max(0, O.DO - F.DOO)
    MFMA_WS[0] = O.MWS
    if F.RAL >= 0: B.lines += [".p2align 8"] + ["    s_nop 0"] * F.RAL
    B.label(L["rec"])
    B.e(f"s_load_dwordx8 s[4:11], s[0:1], {ARG['mem0']*8}\ns_load_dwordx2 s[12:13], s[0:1], {ARG['Wo']*8}\ns_mov_b32 s57, s58\nv_mov_b32 v0, v1\ns_waitcnt lgkmcnt(0)")
    O.SST = F.PROF; O.PF = F.PF; O.WOPF = F.WOPF; O.NFL = F.NFL
    rec6.rec_setup(B)
    if F.EXP: B.e("s_endpgm")
    sl = B.newlabel("recslow"); fin = B.newlabel("recfin")
    verify(B, L, True, 'rec')
    rec6.rec_bases(B)
    B.e(f"s_mov_b32 s90, {O.BUDGET}\ns_barrier")
    if F.PROF: B.e("s_memrealtime s[14:15]\ns_memtime s[28:29]")
    if O.PROF: B.e(f"s_lshl_b32 s16, s57, 2\ns_add_u32 s16, s16, s50\ns_lshl_b32 s16, s16, 12\ns_add_u32 s16, s16, {P4}")
    B.e(f"s_cmp_eq_u32 s56, 1\ns_cbranch_scc1 {sl}")
    rec6.rec_loop(B, "", fin)
    B.label(sl)
    rec6.rec_loop(B, "sc1", fin)
    B.label(fin)
    if F.PROF:
        B.e(f"s_memrealtime s[16:17]\ns_memtime s[26:27]\ns_waitcnt lgkmcnt(0)\ns_sub_u32 s26, s26, s28\nv_mov_b32 v20, 0\nv_writelane_b32 v20, s26, 4\nv_writelane_b32 v20, s14, 0\nv_writelane_b32 v20, s16, 1\nv_writelane_b32 v20, s90, 2\nv_writelane_b32 v20, s67, 3\ns_mov_b32 s58, s57")
        stamp_out(B, [20])
    B.e("s_endpgm")
    B.lines = fix_hazards(B.lines)
    A.lines += B.lines
    if F.ENDS:
        first = True; o = []
        for x in A.lines:
            if x.strip() == "s_endpgm" and not first: o += ["    " + y for y in f"s_waitcnt vmcnt(0)\ns_memrealtime s[4:5]\ns_mov_b32 s6, {STAMP2 - 128}\ns_waitcnt lgkmcnt(0)\nv_mov_b32 v2, s4\ns_mov_b64 exec, 1\nbuffer_atomic_umax v2, off, s[20:23], s6 sc1".split("\n")]
            if x.strip() == "s_endpgm": first = False
            o.append(x)
        A.lines = o
    A.end_kernel(512, 102, 256)
    A.launch(name, (256,), (256,), 160 * 1024)

def build(opt=None, ropt=None):
    for k, v in (opt or {}).items(): setattr(F, k, v)
    for k, v in (ropt or {}).items(): setattr(rec6.O, k, v)
    A = Asm()
    hdr = open(f"../../{NAME}.s.ref").read().split("\n")
    A.header = [l for l in hdr if l.startswith(";") and "@launch" not in l and "Override" not in l and "grid=ceil" not in l]
    flow_kernel(A, "flow_kernel")
    return A.text()

if __name__ == "__main__":
    out = sys.argv[1]
    t = build(eval(sys.argv[2]) if len(sys.argv) > 2 else None, eval(sys.argv[3]) if len(sys.argv) > 3 else None)
    open(out, "w").write(t)
    check_hazards(t)
    print(len(t), "bytes")
```

```python
import sys
sys.path.insert(0, "..")
from asmgen import *
from lay import *
import struct
def f2u(x): return struct.unpack("<I", struct.pack("<f", x))[0]
LOG2E = 1.4426950408889634
SCL = (128 ** -0.5) * LOG2E
HALF = "0x00ff00ff"; HALFH = "0xff00ff00"
RS = 1040
T_Q = 0; T_K = 8448; T_V = 16896; T_P = T_V + 4096; PODD = 2048 + 32
L_WO = 32768
LDS_BYTES = 160 * 1024
V_L16, V_IDX, V_A1, V_A2, V_PRD, V_SEL, V_OST, V_WO, V_L4 = 0, 1, 2, 3, 4, 5, 6, 7, 127
V_C = 8
AF = 16; ACC = 48; XC = 96; XN = 104; KEEP = 112; PK = 120; TA, TB, VF = 124, 125, 126; KEEP2 = PK
WV = 128
NVR = 6
WVR = 208
def wo_reg(b): return WV + (b - 3) * 16
LV = lambda f: (f - NVR) * 2048
LO = lambda b: (16 - NVR) * 2048 + b * 4096
class Opt:
    JX = 1; PJ = 2; PS = 5; PO_ = 4; PL0 = -1; FF = 1; PT = 0; PT2 = 1; PTC = (16, 0xffff); LAL = 7; PORD = 0; WAL = 4; SWP = 0; KJ = 99; KJD = 2; KP23 = 0; FL63 = 1; KE = 3; KF = 1; KEP = 0; LFW = 1; ORD = 'voq'; H2 = 0; PF0 = (1, 2, 3); PFJ = 2; H63 = 1; VO1 = 0; WSW = 1; PF = 0; WOPF = 0; NFL = 0; SST = 0; PROF = False; DL = 22; DL0 = 10; DS = 31; DO = 10; DO01 = 4; NV1 = 2; BUDGET = 100000; B2POS = 1; NV2 = 0; CK = 5; PER = 4; PER2 = 2; FIXX = 0; FIXM = 0; RSH = 0; RQ = 0; VPF = 6; OPAIR = 1; S2 = 0; DS2 = 2; DO0 = 8; FPOS = 3; NOKVM = 0; NOX = 0; OI = 8; LI = 8; XS = {}; PN = 8; NVL = 0; WARM = 0; WL = 0; WO = 0; ZPER = 3; MEAS = 1; CKB = (5, 5, 5, 5, 5, 5, 5); RP = (0, 1, 2, 2); TG = 2; WD = 6; WV = 1; WN = 2; MWS = 3; TMJ = 6; RLAST = 0; KB = 3; KPOS = 0; KD = 12; EW = 1; KW2 = 0; KPAR = 0; NOFL = 0; NORS = 0; LATEL = 1; NPL = 4; NPR = 5; DPL = 4; DPR = 5
O = Opt

def delay(A, n):
    if O.WARM:
        for i in range(4 * n): A.e(f"v_mov_b32 v{TA}, v{TA}")
        return
    while n >= 4:
        A.e("s_nop 15"); n -= 4
    if n > 0: A.e(f"s_nop {4*n-1}")

def sstamp(A, v, i): A.e(f"s_memrealtime s[84:85]\ns_waitcnt lgkmcnt(0)\nv_writelane_b32 v{v}, s84, {i}")
def sstamp_out(A, v, sg):
    A.e(f"s_lshl_b32 s64, s{sg}, 2\ns_add_u32 s64, s64, s50\ns_lshl_b32 s64, s64, 6\ns_add_u32 s64, s64, {STAMP3}\nv_mbcnt_lo_u32_b32 v31, -1, 0\nv_lshlrev_b32 v31, 2, v31\ns_mov_b64 exec, 0xffff\nbuffer_store_dword v{v}, v31, s[20:23], s64 offen\ns_mov_b64 exec, -1")
def help_addr(A, v, vl, sid, rows):
    A.e(f"s_and_b32 s64, s{sid}, 7")
    A.e(rows)
    A.e(f"""
    s_lshl_b32 s65, s65, 13
    s_andn2_b32 s55, s{sid}, 7
    s_lshl_b32 s55, s55, 7
    s_add_u32 s65, s65, s55
    s_add_u32 s65, s65, 384
    v_and_b32 v{v}, 3, v{vl}
    v_lshlrev_b32 v{v}, 13, v{v}
    v_add_u32 v{v}, s65, v{v}
    v_and_b32 v15, 4, v{vl}
    v_lshl_add_u32 v{v}, v15, 4, v{v}
    s_and_b32 s55, s{sid}, 31
    s_add_u32 s66, s66, s55
    s_lshl_b32 s66, s66, 13
    s_add_u32 s66, s66, 8064
    v_writelane_b32 v{v}, s66, 8
    s_add_u32 s66, s66, 64
    v_writelane_b32 v{v}, s66, 9
    s_cmp_eq_u32 s64, 3
    s_cselect_b32 s65, 0, {0xff if O.H2 else 0x0f}
    s_sub_u32 s66, s{sid}, 32
    s_cmp_lt_u32 s66, 31
    s_cselect_b32 s66, {(0x300 if O.H2 else 0x100) if O.H63 else 0}, 0
    s_or_b32 vcc_lo, s65, s66
    s_mov_b32 vcc_hi, 0
    v_cndmask_b32 v{v}, -1, v{v}, vcc""")
def rec_setup(A):
    A.srd(28, 6, 8 * MB); A.srd(32, 8, 8 * MB); A.srd(36, 10, 8 * MB); A.srd(40, 12, 8 * MB); A.srd(44, 4, 16384)
    A.e(f"""
    s_lshr_b32 s58, s57, 5
    s_and_b32 s59, s57, 31
    v_and_b32 v20, 63, v0              ; lane
    v_and_b32 v21, 15, v20             ; lam
    v_lshrrev_b32 v22, 4, v20          ; g
    v_lshrrev_b32 v23, 3, v20
    v_and_b32 v24, 7, v20
    v_lshlrev_b32 v16, 13, v23
    v_lshl_add_u32 v16, v24, 4, v16
    v_lshrrev_b32 v23, 2, v20
    v_and_b32 v24, 3, v20
    v_lshlrev_b32 v17, 11, v23
    v_lshl_add_u32 v17, v24, 4, v17
    s_lshl_b32 s61, s50, 15
    s_add_u32 s61, s61, {L_WO}
    s_lshl_b32 s62, s50, 21
    s_lshl_b32 s64, s57, 7
    s_add_u32 s62, s62, s64
    s_lshl_b32 s63, s58, 22
    s_lshl_b32 s64, s50, 20
    s_add_u32 s63, s63, s64
    s_lshl_b32 s64, s59, 6
    s_add_u32 s63, s63, s64
    v_lshrrev_b32 v23, 1, v22          ; g>>1
    v_lshlrev_b32 v25, 4, v23
    v_and_b32 v23, 1, v22
    v_lshl_add_u32 v25, v23, 2, v25
    v_lshrrev_b32 v23, 3, v21          ; r'>>1
    v_lshl_add_u32 v25, v23, 3, v25
    v_bfe_u32 v23, v21, 2, 1           ; r'&1
    v_add_u32 v25, v25, v23
    v_lshlrev_b32 v28, 4, v23
    v_lshrrev_b32 v23, 1, v22
    v_lshl_add_u32 v28, v23, 3, v28
    v_lshrrev_b32 v23, 3, v21
    v_lshl_add_u32 v28, v23, 2, v28
    v_and_b32 v23, 1, v22
    v_lshl_add_u32 v28, v23, 1, v28
    v_and_b32 v24, 3, v21              ; c'
    v_lshlrev_b32 v26, 7, v28
    v_add_u32 v26, s61, v26
    v_lshl_add_u32 v18, v24, 3, v26
    v_lshl_add_u32 v19, v24, 4, v26    ; permuted
    v_lshlrev_b32 v26, 6, v25
    v_add_u32 v26, s61, v26
    v_lshl_add_u32 v27, v24, 3, v26
    v_lshlrev_b32 v{V_L16}, 4, v20
    v_add_u32 v{V_WO}, s61, v{V_L16}""")
    ST = [(0, 0), (0, 1), (1, 0), (1, 1), (3, 0), (3, 1), (2, 0), (2, 1)]
    if O.VO1: ST = [('qkvo'.index(c), h) for c in O.ORD + 'k' for h in range(2)]
    A.e(f"s_and_b32 s64, s59, {O.WSW}\ns_lshl_b32 s65, s64, 18\ns_add_u32 s70, s63, s65\ns_sub_u32 s71, s63, s65\ns_lshl_b32 s65, s64, 13\ns_add_u32 s72, s61, s65\ns_sub_u32 s73, s61, s65")
    if O.PF:
        help_addr(A, 29, 20, 57, "s_lshl_b32 s65, s64, 2\ns_mov_b32 s66, 0")
        A.e(f"""
        s_lshl_b32 s68, s50, 21
        s_lshl_b32 s64, s58, 22
        s_lshl_b32 s65, s50, 20
        s_add_u32 s64, s64, s65
        s_and_b32 s66, s59, 15
        s_lshl_b32 s65, s66, 13
        s_add_u32 s64, s64, s65
        s_lshr_b32 s65, s59, 4
        s_lshl_b32 s65, s65, 10
        s_add_u32 s69, s64, s65""")
        if O.WOPF: A.e(f"""
        v_lshrrev_b32 v30, 3, v20
        v_lshlrev_b32 v30, 11, v30
        v_and_b32 v31, 7, v20
        v_lshl_add_u32 v30, v31, 7, v30
        v_cmp_gt_u32 vcc, 32, v20
        v_cndmask_b32 v30, -1, v30, vcc""")
        else: A.e(f"""
        s_add_u32 s69, s69, 384
        s_lshr_b32 s66, s66, 1
        s_cmp_eq_u32 s66, 3
        s_cselect_b32 s65, 0, {8 if O.H2 else 4}
        v_and_b32 v30, 3, v20
        v_lshlrev_b32 v30, 11, v30
        v_and_b32 v31, 4, v20
        v_lshl_add_u32 v30, v31, 4, v30
        v_cmp_gt_u32 vcc, s65, v20
        v_cndmask_b32 v30, -1, v30, vcc""")
    def pf1(t, i):
        mat, hh = ST[t]
        if mat < 3: A.e(f"s_add_u32 s64, s68, {(hh*128 + i*32)*8192}\nbuffer_load_dword v31, v29, s[{28+mat*4}:{31+mat*4}], s64 offen")
        else: A.e(f"s_add_u32 s64, s69, {(hh*256 + i*64)*2048}\nbuffer_load_dword v31, v30, s[40:43], s64 offen")
    def issue(st):
        mat, hh = ST[st]
        npf[st] = 0
        if O.PF and st == 0:
            for i in O.PF0: pf1(0, i); npf[st] += 1
        for J in range(16):
            if O.PF and st < 7 and (J % 4 == 2 if O.PFJ == 2 else J in (1, 3, 5, 7)): pf1(st + 1, J // 4 if O.PFJ == 2 else J // 2); npf[st] += 1
            if O.NFL and J: A.e(f"s_waitcnt vmcnt({O.NFL})")
            if mat < 3: A.e(f"s_add_u32 s64, s62, {(hh*128 + J*8)*8192}\ns_add_u32 m0, s61, {hh*16384+J*1024}\nbuffer_load_dwordx4 v16, s[{28+mat*4}:{31+mat*4}], s64 offen lds")
            else: A.e(f"s_add_u32 s64, s{70+(J>>3)}, {(hh*256 + J*16)*2048}\ns_add_u32 m0, s{72+(J>>3)}, {hh*16384+J*1024}\nbuffer_load_dwordx4 v17, s[40:43], s64 offen lds")
    def vdst(f):
        if f < NVR: return WVR + f * 8
        if f < 8: return 96 + (f - NVR) * 8
        return None
    def read(st):
        mat, hh = ST[st]
        if mat < 2:
            for jj in range(2):
                j = hh * 2 + jj
                for t in range(4):
                    for R in range(2):
                        for h in range(2):
                            off = hh * 16384 + (64 * jj + 32 * R + h) * 128
                            A.e(f"ds_read_b64_tr_b16 {ar((j*8+mat*4+t)*8+4*R+2*h,2)}, v18 offset:{off + t*32}")
                A.e("s_waitcnt lgkmcnt(0)")
        elif mat == 3:
            for jj in range(4):
                b = hh * 4 + jj
                for t in range(2):
                    for R in range(2):
                        for h in range(2):
                            off = hh * 16384 + (64 * jj + 32 * R + 2 * h) * 64 + t * 32
                            A.e(f"ds_read_b64_tr_b16 {vr((48 + b*16 if b < 3 else wo_reg(b)) + t*8+4*R+2*h,2)}, v27 offset:{off}")
                if jj & 1: A.e("s_waitcnt lgkmcnt(0)")
        else:
            def rd(f, dst, rf=vr):
                jj, t = (f >> 2) & 1, f & 3
                for R in range(2):
                    for h in range(2):
                        off = hh * 16384 + (64 * jj + 32 * R + h) * 128
                        A.e(f"ds_read_b64_tr_b16 {rf(dst+4*R+2*h,2)}, v19 offset:{off + (t>>1)*64 + (t&1)*8}")
            if O.VO1:
                for f in range(8 * hh, 8 * hh + 8):
                    if f < NVR: rd(f, WVR + f * 8)
                    elif f < 14: rd(f, park(f), ar)
                    else: rd(f, 96 + (f - 14) * 8)
                    if f & 3 == 3 or f % 3 == 2: A.e("s_waitcnt lgkmcnt(0)")
            elif hh == 0:
                for f in range(8):
                    rd(f, vdst(f))
                    if f & 3 == 3: A.e("s_waitcnt lgkmcnt(0)")
            else:
                for f in range(NVR, 8):
                    for q in range(2): A.e(f"ds_write_b128 v{V_WO}, {vr(vdst(f)+q*4,4)} offset:{LV(f) + q*1024}")
                A.e("s_waitcnt lgkmcnt(0)")
                for f0 in (8, 10, 12, 14):
                    for f in (f0, f0 + 1): rd(f, 96 + (f - f0) * 8 + (16 if f0 == 14 else 0))
                    A.e("s_waitcnt lgkmcnt(0)")
                    if f0 < 14:
                        for f in (f0, f0 + 1):
                            for q in range(2): A.e(f"ds_write_b128 v{V_WO}, {vr(96+(f-f0)*8+q*4,4)} offset:{LV(f) + q*1024}")
                        A.e("s_waitcnt lgkmcnt(0)")
                for f in (14, 15):
                    for q in range(2): A.e(f"ds_write_b128 v{V_WO}, {vr(112+(f-14)*8+q*4,4)} offset:{LV(f) + q*1024}")
                for q in range(12): A.e(f"ds_write_b128 v{V_WO}, {vr(48+q*4,4)} offset:{LO(0) + q*1024}")
                A.e("s_waitcnt lgkmcnt(0)")
    npf = {}
    park = lambda f: (160 if f < 10 else 224 - 32) + (f - 6) * 8
    if O.SST: sstamp(A, 15, 1)
    issue(0); issue(1)
    for st in range(8):
        A.e(f"s_waitcnt vmcnt({16 + npf[st+1] if st < 7 else 0})")
        if O.SST: sstamp(A, 15, 2 * st)
        read(st)
        if O.SST and st: sstamp(A, 15, 2 * st + 1)
        if st + 2 < 8: issue(st + 2)
        if O.PT and st == O.PT - 1:
            A.srd(92, 2, 256)
            A.e(f"v_min_u32 v9, 31, v20\nv_lshlrev_b32 v9, 2, v9\ns_sub_u32 s64, s88, 64\nbuffer_load_dword v9, v9, s[92:95], s64 offen sc1"); npf[st + 2] += 1
        if O.PT and st == O.PT + 1:
            A.e(f"""
            v_and_b32 v10, 1, v20
            v_cmp_eq_u32 vcc, 1, v10
            v_mov_b32 v10, {32 << 8}
            v_cndmask_b32 v10, -1, v10, vcc
            v_cmp_eq_u32 vcc, v9, v10
            s_and_b32 s64, vcc_lo, 0xffff
            v_readlane_b32 s65, v9, {O.PTC[0]}
            s_cmp_eq_u32 s64, {O.PTC[1]}
            s_cselect_b32 s65, s65, 0
            s_cmp_eq_u32 s56, 2
            s_cselect_b32 s65, s65, 0
            s_cmp_ge_u32 s65, 63
            s_cselect_b32 s55, 36, 0
            s_lshl_b32 s64, s58, 14
            s_lshl_b32 s65, s59, 9
            s_add_u32 s64, s64, s65
            s_add_u32 s64, s64, {R_PL}
            s_lshl_b32 s65, s57, 10
            s_add_u32 s65, s65, {R_O - 4*128}
            s_lshl_b32 s66, s57, 12
            s_add_u32 s66, s66, {R_SX - 12*128}
            v_mov_b32 v10, s66
            v_mov_b32 v11, s65
            v_cmp_gt_u32 vcc, 12, v20
            v_cndmask_b32 v10, v10, v11, vcc
            v_mov_b32 v11, s64
            v_cmp_gt_u32 vcc, 4, v20
            v_cndmask_b32 v10, v10, v11, vcc
            v_lshl_add_u32 v10, v20, 7, v10
            v_cmp_gt_u32 vcc, s55, v20
            v_cndmask_b32 v10, 2.0, v10, vcc
            s_lshl_b32 s64, s50, 19
            buffer_load_dword v11, v10, s[20:23], s64 offen"""); npf[st + 2] += 1
        if O.VO1 and st == 6:
            for f in range(6, 14):
                for q in range(2): A.e(f"ds_write_b128 v{V_WO}, {ar(park(f)+q*4,4)} offset:{LV(f) + q*1024}")
                if f == 11: A.e("s_waitcnt lgkmcnt(0)")
            A.e("s_waitcnt lgkmcnt(0)")
        if O.VO1 and st == 7:
            for f in (14, 15):
                for q in range(2): A.e(f"ds_write_b128 v{V_WO}, {vr(96+(f-14)*8+q*4,4)} offset:{LV(f) + q*1024}")
            for q in range(12):
                A.e(f"ds_write_b128 v{V_WO}, {vr(48+q*4,4)} offset:{LO(0) + q*1024}")
                if q == 7: A.e("s_waitcnt lgkmcnt(2)")
    if O.SST: sstamp_out(A, 15, 57)
    w23 = A.newlabel("w23"); jn = A.newlabel("jn")
    A.e(f"""
    v_and_b32 v23, 1, v21
    v_mov_b32 v{V_IDX}, 0x4444
    v_mov_b32 v24, 0xeeee
    v_cmp_eq_u32 vcc, 1, v23
    v_cndmask_b32 v{V_IDX}, v{V_IDX}, v24, vcc
    v_lshlrev_b32 v23, 1, v22
    v_sub_u32 v23, v21, v23            ; lam - 2g
    v_mov_b32 v{V_SEL}, 0
    v_mov_b32 v24, 0x3f80
    v_cmp_eq_u32 vcc, 0, v23
    v_cndmask_b32 v{V_SEL}, v{V_SEL}, v24, vcc
    v_mov_b32 v24, 0x3f800000
    v_cmp_eq_u32 vcc, 1, v23
    v_cndmask_b32 v{V_SEL}, v{V_SEL}, v24, vcc
    s_and_b32 s64, s50, 1
    s_lshl_b32 s64, s64, 11
    v_lshl_add_u32 v{V_L4}, v20, 2, s64
    v_and_b32 v23, 7, v21              ; i
    v_lshrrev_b32 v24, 3, v21
    v_lshlrev_b32 v25, 8, v24
    v_lshl_add_u32 v25, v22, 6, v25
    v_lshl_add_u32 v{V_PRD}, v23, 2, v25   ; p store: (e>>3)*256 + 2g*32 + (e&7)*4
    v_lshrrev_b32 v25, 1, v22
    v_lshl_add_u32 v25, v25, 3, v23
    v_lshlrev_b32 v25, 5, v25
    v_and_b32 v26, 1, v22
    v_lshl_add_u32 v{V_OST}, v26, 4, v25   ; o store: ((g>>1)*8+i)*32 + (g&1)*16
    v_lshl_add_u32 v27, v22, 3, v23
    v_lshlrev_b32 v27, 4, v27          ; (g*8+i)*16
    s_mov_b32 s80, {f2u(SCL):#x}
    s_mov_b32 s81, 0xfffffffe
    s_mov_b32 s84, {HALF}
    s_mov_b32 s85, {HALF}
    s_mov_b32 s86, -1
    s_mov_b32 s87, 0
    s_cmp_gt_u32 s50, 1
    s_cselect_b32 s82, {HALFH}, -1
    s_cselect_b32 s83, {HALFH}, 0
    s_lshl_b32 m0, s50, 8
    s_cmp_gt_u32 s50, 1
    s_cbranch_scc1 {w23}
    v_lshl_add_u32 v{V_A1}, v24, 9, v27    ; S poll x4
    v_lshrrev_b32 v25, 1, v22
    v_lshl_add_u32 v25, v25, 3, v23
    v_lshlrev_b32 v25, 4, v25
    v_lshl_add_u32 v26, v26, 1, v24
    v_lshl_add_u32 v{V_A2}, v26, 2, v25
    v_add_u32 v{V_A2}, 1024 + 256, v{V_A2}
    v_cndmask_b32 v{V_OST}, 2.0, v{V_OST}, s[84:85]""")
    for i in range(8): A.e(f"v_mov_b32 v{V_C+i}, {'0x3f803f80' if i < 5 else 0}")
    A.e(f"s_branch {jn}")
    A.label(w23)
    A.e(f"""
    s_sub_u32 s64, s50, 2
    s_mul_i32 s64, s64, {4*RS}
    v_lshrrev_b32 v25, 1, v22
    v_mul_u32_u24 v25, {2*RS}, v25
    v_and_b32 v28, 1, v23
    v_mul_u32_u24 v28, {RS}, v28
    v_add_u32 v25, v25, v28
    v_lshrrev_b32 v28, 1, v23
    v_lshl_add_u32 v25, v28, 6, v25
    v_lshl_add_u32 v25, v26, 5, v25
    v_mul_u32_u24 v28, {T_K}, v24
    v_add3_u32 v{V_A1}, v25, v28, s64
    v_cndmask_b32 v{V_A2}, 2.0, v27, s[84:85]""")
    for i in range(4): A.e(f"v_mov_b32 v{V_C+i}, -1")
    A.label(jn)

def rec_bases(A):
    A.e(f"""
    s_lshl_b32 s64, s58, 14
    s_lshl_b32 s65, s50, 12
    s_add_u32 s70, s64, s65
    s_add_u32 s70, s70, {R_PL}
    s_lshl_b32 s65, s59, 9
    s_add_u32 s71, s64, s65
    s_add_u32 s71, s71, {R_PL}
    s_xor_b32 s64, s58, 1
    s_lshl_b32 s64, s64, 15
    s_lshr_b32 s65, s50, 1
    s_lshl_b32 s65, s65, 14
    s_add_u32 s64, s64, s65
    s_and_b32 s65, s50, 1
    s_lshl_b32 s65, s65, 12
    s_add_u32 s64, s64, s65
    s_add_u32 s72, s64, s67
    s_add_u32 s72, s72, {R_PR}
    s_lshl_b32 s64, s58, 15
    s_lshr_b32 s65, s59, 4
    s_lshl_b32 s65, s65, 14
    s_add_u32 s64, s64, s65
    s_and_b32 s65, s59, 15
    s_lshl_b32 s65, s65, 9
    s_add_u32 s64, s64, s65
    s_add_u32 s73, s64, s67
    s_add_u32 s73, s73, {R_PR}
    s_cmp_eq_u32 s50, 1
    s_cselect_b32 s54, 2048 - 256, 0
    s_sub_u32 s71, s71, s54
    s_lshl_b32 s64, s58, 15
    s_lshl_b32 s65, s50, 13
    s_add_u32 s74, s64, s65
    s_add_u32 s74, s74, {R_O}           ; O gather
    s_lshl_b32 s64, s57, 10
    s_and_b32 s65, s50, 1
    s_lshl_b32 s65, s65, 9
    s_cmp_gt_u32 s50, 1
    s_cselect_b32 s65, 0, s65
    s_add_u32 s75, s64, s65
    s_add_u32 s75, s75, {R_O}
    s_lshl_b32 s64, s57, 12
    s_and_b32 s65, s64, 0xffffe000
    s_cmp_eq_u32 s50, 3
    s_cselect_b32 s66, 1536, 0
    s_add_u32 s64, s64, s66
    s_cmp_gt_u32 s50, 1
    s_cselect_b32 s76, s64, s65
    s_add_u32 s76, s76, {R_SX}
    s_lshl_b32 s64, s57, 14
    s_and_b32 s65, s50, 1
    s_lshl_b32 s66, s65, 11
    s_add_u32 s77, s64, s66
    s_cmp_gt_u32 s50, 1
    s_cselect_b32 s66, 0, 4096
    s_add_u32 s77, s77, s66
    s_add_u32 s77, s77, {QKV}
    s_lshl_b32 s66, s65, 9
    s_add_u32 s66, s66, 1024 + 128
    s_lshl_b32 s65, s65, 7
    s_cmp_gt_u32 s50, 1
    s_cselect_b32 s65, s65, s66
    s_add_u32 s78, s64, s65
    s_add_u32 s78, s78, {KVM - 128}
    s_lshl_b32 s64, s57, 6
    s_add_u32 s68, s64, s67
    s_add_u32 s69, s68, s64
    s_add_u32 s69, s69, {F_KVM}
    s_lshl_b32 s64, s50, 14
    s_add_u32 s69, s69, s64
    s_and_b32 s64, s50, 1
    s_lshl_b32 s64, s64, 11
    s_sub_u32 s69, s69, s64
    s_add_u32 s68, s68, {F_QKV}
    s_mov_b32 s79, 0
    s_mov_b32 s91, 0""")

def segoff(A, dst, sstep, add, base):
    A.e(f"""
    s_add_u32 s64, s{sstep}, {add}
    {'s_mov_b32 s64, 0' if (O.FIXX and base == 77) or (O.FIXM and base == 78) else ''}
    s_lshl_b32 s65, s64, 12
    s_and_b32 s65, s65, 0x2000
    s_xor_b32 s65, s65, s67
    {'s_xor_b32 s65, s65, 0x2000' if (O.KPAR and base == 78) else ''}
    s_lshl_b32 s64, s64, 20
    s_add_u32 s65, s65, s64
    s_add_u32 s{dst}, s65, s{base}""")

def rec_loop(A, lst, fin, nsteps=64):
    tail = []
    def stamp(i):
        if isinstance(i, str):
            if i not in O.XS: return
            i = O.XS[i]
        elif i in O.XS.values(): return
        if O.PROF in (1, 2, 5): A.e(f"{'s_memtime' if O.PROF != 1 else 's_memrealtime'} s[{2*i+24}:{2*i+25}]")
    def trace():
        if O.PROF == 6:
            A.e(f"s_memtime s[24:25]\ns_memrealtime s[26:27]\ns_waitcnt lgkmcnt(0)\nv_writelane_b32 v{TA}, s24, 0\nv_writelane_b32 v{TA}, s26, 1\nv_writelane_b32 v{TA}, s90, 2")
            A.e(f"s_lshl_b32 s64, s79, 6\ns_add_u32 s64, s64, s16\nv_lshrrev_b32 v{TB}, 2, v{V_L16}\ns_mov_b64 exec, 0xf\nbuffer_store_dword v{TA}, v{TB}, s[20:23], s64 offen\ns_mov_b64 exec, -1")
            return 6
        if O.PROF != 5: return 0
        A.e("s_waitcnt lgkmcnt(0)")
        for i in range(1, 13): A.e(f"v_writelane_b32 v{TA}, s{24+2*i}, {i}")
        A.e(f"v_writelane_b32 v{TA}, s56, 13\nv_writelane_b32 v{TA}, s51, 14")
        A.e(f"s_lshl_b32 s64, s79, 6\ns_add_u32 s64, s64, s16\nv_lshrrev_b32 v{TB}, 2, v{V_L16}\ns_mov_b64 exec, 0xffff\nbuffer_store_dword v{TA}, v{TB}, s[20:23], s64 offen\ns_mov_b64 exec, -1")
        return 8
    def cnt(k):
        if O.PROF and O.PROF != 6: A.e(f"s_add_u32 s56, s56, {1 << (8*k)}" if k < 4 else "s_add_u32 s51, s51, 1")
    def chk(b, n, nb=1):
        r = AF + b * 4
        o = [f"s_waitcnt vmcnt({n})", f"v_max3_u32 v{TA}, v{r}, v{r+1}, v{r+2}"]
        for q in range(2 * (nb - 1)): o += [f"v_max3_u32 v{TA}, v{TA}, v{r+3+2*q}, v{r+4+2*q}"]
        o += [f"v_max_u32 v{TA}, v{TA}, v{r+4*nb-1}", f"v_cmp_eq_u32 vcc, -1, v{TA}"]
        return o
    def flagwait(add, ret=False):
        ok = A.newlabel("fok"); lp = A.newlabel("flp")
        out = [f"s_add_u32 s64, s79, {add}", f"s_cmp_gt_u32 s91, s64\ns_cbranch_scc0 {lp}\n{ok}:"]
        if not ret:
            for x in out: A.e(x)
        def d():
            A.label(lp)
            A.e(f"""
            buffer_load_dword v{TA}, off, s[20:23], s68 sc1
            s_waitcnt vmcnt(0)
            v_readfirstlane_b32 s91, v{TA}
            s_cmp_gt_u32 s91, s64
            s_cbranch_scc1 {ok}
            s_sleep 2
            s_sub_u32 s90, s90, 1
            s_cmp_gt_i32 s90, 0
            s_cbranch_scc1 {lp}
            s_branch {ok}""")
        tail.append(d)
        return out
    smq = lambda t, b: f"v_smfmac_f32_16x16x64_bf16 {vr(ACC+t*4,4)}, {vr(AF+b*4,4)}, {ar(((b&3)*8+t)*8,8)}, v{V_IDX}"
    def vreg(f): return WVR + f * 8 if f < NVR else ACC + ((f - NVR) & 3) * 8
    smv = lambda i: f"v_smfmac_f32_16x16x64_bf16 {vr(ACC+32+((i>>1)&3)*4,4)}, {vr(AF+((i>>3)+4*(i&1))*4,4)}, {vr(vreg(i>>1),8)}, v{V_IDX}"
    rdV = lambda f: [f"ds_read_b128 {vr(vreg(f)+q*4,4)}, v{V_WO} offset:{LV(f)+q*1024}" for q in range(2)]
    vfill = [x for f in range(NVR, NVR + 4) for x in rdV(f)]
    def epi_v(t):
        a = ACC + 32 + t * 4
        return [f"v_add_f32 v{a}, v{a}, v{a+1}", f"v_add_f32 v{a+2}, v{a+2}, v{a+3}", f"v_cvt_pk_bf16_f32 v{a}, v{a}, v{a+2}",
                f"ds_write_addtid_b32 v{a} offset:{T_V + t*1024}"]
    def vstream(start, fillpos, extra=None, post=[]):
        out = []; extra = extra or {}
        for i in range(start, 32):
            f, r = i >> 1, i & 1
            if f >= NVR and r == 0: out.append(f"s_waitcnt lgkmcnt({2*min(3, 15-f)})")
            out.append(smv(i))
            if fillpos is not None and fillpos <= i < fillpos + 4: out += vfill[2 * (i - fillpos):2 * (i - fillpos) + 2]
            if f >= NVR and r == 1 and f + 4 < 16: out += rdV(f + 4)
            out += extra.get(i, [])
            if f"v{i}" in O.XS and O.PROF in (1, 2, 5): out.append(f"s_memtime s[{2*O.XS[f'v{i}']+24}:{2*O.XS[f'v{i}']+25}]")
            if O.EW == 0:
                if i == 30: out += epi_v(0)[:2]
                if i == 31: out += epi_v(0)[2:]
            else:
                e0 = epi_v(0); e1 = epi_v(1)
                out += {28: e0[:1], 29: e0[1:2], 30: e0[2:3], 31: e0[3:] + e1[:1]}.get(i, [])
        out += post
        if O.EW:
            out += epi_v(1)[1:3] + epi_v(2)[:3] + epi_v(3)[:3] + [epi_v(t)[3] for t in (1, 2, 3)]
        else:
            for t in range(1, 4): out += epi_v(t)
        return out
    ldA = lambda b, r=None: f"buffer_load_dwordx4 {vr(AF+b*4 if r is None else r,4)}, v{V_L16}, s[20:23], s{92 + (b>>2)} offen offset:{(b&3)*1024} sc1"
    def retry(b, br, go, rt, lds, n, k, nb=1):
        def d():
            A.label(rt)
            cnt(k)
            A.e(f"s_sub_u32 s90, s90, 1\ns_cmp_gt_i32 s90, 0\ns_cbranch_scc0 {go}")
            for x in lds: A.e(x)
            for x in chk(b, n, nb): A.e(x)
            A.e(f"s_branch {br}")
        tail.append(d)
    def epi_qk(t):
        a = ACC + t * 4; off = (T_Q if t < 4 else T_K) + (t & 3) * 2 * RS
        return [f"v_add_f32 v{a}, v{a}, v{a+1}", f"v_add_f32 v{a+2}, v{a+2}, v{a+3}",
                f"ds_write_addtid_b32 v{a} offset:{off}", f"ds_write_addtid_b32 v{a+2} offset:{off+RS}"]
    def weave(W, fin_idx, E, pre, per=4):
        seq = []; tm = 0; fin_t = {}
        va = []; oth = list(pre); nxt = 0
        def emit(x):
            nonlocal tm
            seq.append(x); tm += MFMA_WS[0] if "smfmac" in x else 1
        wr_ready = []
        for k, m in enumerate(W):
            emit(m)
            if k in fin_idx: fin_t[fin_idx.index(k)] = tm
            no_ = O.WN
            while no_ > 0 and wr_ready: emit(wr_ready.pop(0)); no_ -= 1
            while no_ > 0 and oth: emit(oth.pop(0)); no_ -= 1
            while nxt < len(E) and nxt in fin_t and tm - fin_t[nxt] >= O.WD:
                va += [(E[nxt][0], E[nxt][2]), (E[nxt][1], E[nxt][3])]; nxt += 1
            for _ in range(O.WV):
                if va: a_, w_ = va.pop(0); emit(a_); wr_ready.append(w_)
        for x in oth: emit(x)
        while nxt < len(E): va += [(E[nxt][0], E[nxt][2]), (E[nxt][1], E[nxt][3])]; nxt += 1
        for x in wr_ready: emit(x)
        for a_, w_ in va: emit(a_)
        for a_, w_ in va: emit(w_)
        for x in seq: A.e(x)
    def chkr(r):
        return [f"v_max3_u32 v{TA}, v{r}, v{r+1}, v{r+2}", f"v_max_u32 v{TA}, v{TA}, v{r+3}", f"v_cmp_eq_u32 vcc, -1, v{TA}"]
    def deferred(blocks, ld, work, back, k, temps, delta, first=True):
        cnt(k)
        for bb in blocks:
            sk = A.newlabel("dsk")
            if len(blocks) > 1: A.e(f"s_bitcmp1_b32 s55, {bb}\ns_cbranch_scc0 {sk}")
            A.e(ld(bb, AF + 4 * bb))
            A.label(sk)
        for bb in blocks:
            sk = A.newlabel("dsk"); go = A.newlabel("dgo"); lp = A.newlabel("dlp")
            T = [AF + 4 * bb] + temps(bb); n = len(T)
            A.e(f"s_bitcmp1_b32 s55, {bb}\ns_cbranch_scc0 {sk}")
            A.e(f"s_waitcnt vmcnt({n-1})")
            for x in chkr(T[0]): A.e(x)
            A.e(f"s_cbranch_vccz {go}")
            for j in range(1, n):
                A.e(f"s_nop {4*delta(bb)-1}" if delta(bb) <= 4 else f"s_nop 15\ns_nop {4*(delta(bb)-4)-1}")
                A.e(ld(bb, T[j]))
            A.label(lp)
            if O.PROF and O.PROF != 6: A.e("s_add_u32 s51, s51, 0x10000")
            cp = [A.newlabel("dcp") for _ in T]
            for j in range(n):
                A.e(f"s_waitcnt vmcnt({n-1})")
                for x in chkr(T[j]): A.e(x)
                A.e(f"s_cbranch_vccz {go if j == 0 else cp[j]}")
                A.e(ld(bb, T[j]))
            A.e(f"s_sub_u32 s90, s90, 1\ns_cmp_gt_i32 s90, 0\ns_cbranch_scc1 {lp}\ns_branch {go}")
            for j in range(1, n):
                A.label(cp[j])
                for i in range(4): A.e(f"v_mov_b32 v{T[0]+i}, v{T[j]+i}")
                A.e("s_nop 1")
                if j < n - 1: A.e(f"s_branch {go}")
            A.label(go)
            for x in work(bb): A.e(x)
            A.label(sk)
        A.e(f"s_mov_b32 s55, 0\ns_branch {back}")
    dummy = f"buffer_load_dword v{TB}, off, s[20:23], s92 sc1"
    def pin(k):
        if k >= 0: A.lines += [".p2align 5"] + ["    s_nop 0"] * k
    jx0 = []
    def phaseA(tiles, win1, nv, prof):
        rsh = O.RSH
        after = {c: [] for c in range(8)}
        TJ = O.TMJ
        pre_r = []
        for j in range(4):
            if O.RP[j] < 0: pre_r.append(4 + j)
            else: after[O.RP[j]].append(4 + j)
        for x in pre_r: A.e(ldA(x))
        rq = O.RQ and len(tiles) == 8
        order = [0, 1, 2, 3] + pre_r; cntn = {}; pref = {}
        for b in range(TJ + 1):
            cntn[b] = len(order) - 1 - order.index(b if b < TJ else 7)
            if b < TJ: order.append(("d", b))
            order += after[b]
            if b == O.KB and not O.NOKVM: order += [("k", 0), ("k", 1)][:1 if O.KE else 2]
            pref[b] = list(order)
        TL = lambda b: tiles[:4] if (rq and b >= 4) else tiles
        W = {b: [smq(t, b) for t in TL(b)] for b in range(8)}
        late = {b: len(W[b]) >= 8 for b in range(8)}
        seg = {b: A.newlabel("seg") for b in range(8)}; seg2 = {b: A.newlabel("segb") for b in range(8)}
        fl = {b: A.newlabel("fl") for b in range(8)}; fl2 = {b: A.newlabel("flb") for b in range(8)}
        slow = A.newlabel("slowA"); done = A.newlabel("doneA")
        xst = lambda b: ([kvm_store, flg_store] if not O.KE else [flg_store] if O.KE in (1, 3) else [kvm_store]) if (b == O.KB and not O.NOKVM) else []
        assert 3 <= O.KB < TJ
        def body(b, nchk, tgt, lt):
            w = W[b]; n = len(w)
            pend = [dummy] + [ldA(x) for x in after[b]] + xst(b) if b < 7 else []
            if nchk is None: pend = []
            c = nchk
            if n >= 8:
                nvv = len(c) - 1
                p = n - O.CKB[b] - (nvv - 3)
                cq = list(c)
                for k in range(n - (1 if lt else 0)):
                    A.e(w[k])
                    for _ in range(2 if len(pend) > p - k else 1):
                        if pend: A.e(pend.pop(0))
                    if k == p - 1:
                        while pend: A.e(pend.pop(0))
                        A.e(cq.pop(0))
                    if k >= p - 1 and cq: A.e(cq.pop(0))
                for x in cq: A.e(x)
            else:
                p = 1
                A.e(w[0])
                while pend: A.e(pend.pop(0))
                for x in c[:2] + [w[p]] + c[2:]: A.e(x)
                for x in w[p + 1:n]: A.e(x)
            A.e(f"s_cbranch_vccnz {tgt}")
        for x in chk(0, cntn[0]): A.e(x)
        A.e(kvm_addr.split("\n")[1] if O.KE in (1, 3) else kvm_addr)
        if prof:
            for x in jx0: A.e(x)
        A.e(f"s_cbranch_vccnz {fl2[0]}")
        nchk = lambda b: chk(b, cntn[b], 1 if b < TJ else 8 - TJ)
        for b in range(TJ + 1):
            A.label(seg[b])
            if b > 0 and late[b - 1]: A.e(W[b - 1][-1])
            A.label(seg2[b])
            if prof and b in (0, 4, TJ): stamp({0: 2, 4: 3, TJ: 4}[b])
            if b < TJ: body(b, nchk(b + 1), fl[b + 1], late[b])
            else:
                V = [smv(i) for i in range(nv)]
                w = []; fin_idx = []
                for t0 in range(0, len(tiles), O.TG):
                    for bb in range(TJ, 8):
                        for t in tiles[t0:t0 + O.TG]: w.append(smq(t, bb))
                    fin_idx += list(range(len(w) - O.TG, len(w)))
                weave(w + V, fin_idx, [epi_qk(t) for t in tiles], win1, O.PER)
        A.label(done)
        back = seg2[TJ]
        def d():
            TM = [XN, XN + 4]
            dfl = {h: A.newlabel("dfl") for h in range(1, 4)}; dseg = {h: A.newlabel("dseg") for h in range(1, 4)}
            lap2 = A.newlabel("lap2"); lfb = A.newlabel("lfb"); Ldone = A.newlabel("Ldone")
            o3 = pref[3]; yd = lambda h: len(o3) - 1 - o3.index(("d", h))
            for b in range(TJ + 1):
                A.label(fl[b])
                if b > 0 and late[b - 1]: A.e(W[b - 1][-1])
                A.label(fl2[b])
                cnt(b >> 2)
                if b < 4:
                    A.e(ldA(b)); A.e(f"s_mov_b32 s55, {1 << b}")
                    for x in after[b]: A.e(ldA(x))
                    for x in xst(b): A.e(x)
                    rp = chk(b, yd(b))
                    if b < 3:
                        for x in chk(b + 1, cntn[b + 1]): A.e(x)
                        A.e(f"s_cbranch_vccnz {dfl[b+1]}")
                        for h in range(b + 1, 4):
                            if h < 3: body(h, chk(h + 1, cntn[h + 1]), dfl[h + 1], False)
                            else: body(h, rp, lfb, False)
                    else:
                        for x in rp: A.e(x)
                        A.e(f"s_cbranch_vccnz {lfb}")
                    A.e("s_mov_b32 s55, 0")
                    w = W[b]; c = nchk(4); p = max(1, len(w) - O.CK)
                    for x in w[:p] + c + w[p:]: A.e(x)
                    A.e(f"s_cbranch_vccnz {fl2[4]}\ns_branch {seg2[4]}")
                elif b < 7:
                    k = 8 - b
                    if b < TJ: A.e(ldA(b))
                    A.e(f"s_mov_b32 s55, {(0xff << b) & 0xff}")
                    o = list(pref[b])
                    if b <= O.KB:
                        for x in xst(O.KB): A.e(x)
                        if b < O.KB and not O.NOKVM: o += [("k", 0), ("k", 1)][:1 if O.KE else 2]
                    lp = A.newlabel("rot")
                    def visit(h, n):
                        dn = A.newlabel("rdn"); fa = A.newlabel("rfa"); nx = A.newlabel("rnx")
                        A.e(f"s_bitcmp1_b32 s55, {h}\ns_cbranch_scc0 {dn}")
                        for x in chk(h, n): A.e(x)
                        A.e(f"s_cbranch_vccnz {fa}")
                        A.e(dummy)
                        A.e(f"s_bitset0_b32 s55, {h}")
                        if h < TJ:
                            for x in W[h]: A.e(x)
                        A.e(f"s_cmp_eq_u32 s55, 0\ns_cbranch_scc1 {back}\ns_branch {nx}")
                        A.label(dn)
                        A.e(dummy); A.e(f"s_branch {nx}")
                        A.label(fa)
                        A.e(ldA(h))
                        A.label(nx)
                    for h in range(b + 1 if b < TJ else b, 8):
                        visit(h, len(o) - 1 - o.index(h)); o.append(("v", h))
                    A.label(lp)
                    if O.PROF and O.PROF != 6: A.e("s_add_u32 s51, s51, 0x10000")
                    for h in range(b, 8): visit(h, k - 1)
                    A.e(f"s_sub_u32 s90, s90, 1\ns_cmp_gt_i32 s90, 0\ns_cbranch_scc1 {lp}\ns_mov_b32 s55, 0\ns_branch {back}")
                else:
                    A.e(f"s_mov_b32 s55, 0x80\ns_branch {slow}")
            for h in range(1, 4):
                A.label(dfl[h])
                A.e(ldA(h)); A.e(f"s_bitset1_b32 s55, {h}")
                for x in after[h]: A.e(ldA(x))
                for x in xst(h): A.e(x)
                if h < 3:
                    for x in chk(h + 1, cntn[h + 1]): A.e(x)
                    A.e(f"s_cbranch_vccnz {dfl[h+1]}\ns_branch {dseg[h+1]}")
                else: A.e(f"s_branch {lap2}")
            for h in range(2, 4):
                A.label(dseg[h])
                if h < 3: body(h, chk(h + 1, cntn[h + 1]), dfl[h + 1], False)
                else:
                    pend = [dummy] + [ldA(x) for x in after[h]] + xst(h)
                    for x in W[h]:
                        A.e(x)
                        if pend: A.e(pend.pop(0))
                    for x in pend: A.e(x)
            A.label(lap2)
            cnt(4)
            for h in range(4):
                sk = A.newlabel("l2s"); fa = A.newlabel("l2f")
                A.e(f"s_bitcmp1_b32 s55, {h}\ns_cbranch_scc0 {sk}")
                for x in chk(h, yd(h)): A.e(x)
                A.e(f"s_cbranch_vccnz {sk}")
                A.e(f"s_bitset0_b32 s55, {h}")
                for x in W[h]: A.e(x)
                A.label(sk)
            A.e(f"s_cmp_eq_u32 s55, 0\ns_cbranch_scc0 {lfb}")
            A.label(Ldone)
            for x in nchk(4): A.e(x)
            A.e(f"s_cbranch_vccnz {fl2[4]}\ns_branch {seg2[4]}")
            A.label(lfb)
            deferred(range(4), ldA, lambda bb: W[bb], Ldone, 4, lambda bb: TM[:O.NPL - 1], lambda bb: O.DPL, False)
            A.label(slow)
            deferred([7], ldA, lambda bb: [], back, 4, lambda bb: TM[:O.NPR - 1], lambda bb: O.DPR, False)
        tail.append(d)
    def zero(lo=0):
        for i in range(8): A.e(f"v_mov_b32 v{XC+i}, v{XN+i}")
        for i in range(lo, 48): A.e(f"v_mov_b32 v{ACC+i}, 0")
    def mzero():
        A.e(f"v_mov_b32 v{TB}, 0")
        for i in range(3): A.e(f"v_mfma_f32_16x16x1_4b_f32 {vr(ACC+16*i,16)}, v{TB}, v{TB}, 0")
    def s_frag():
        for c in range(2):
            for w in range(4): A.e(f"ds_read_b128 {vr(ACC+(c*4+w)*4,4)}, v{V_A1} offset:{w*256 + c*16}")
    def s_frag2():
        for c in range(2):
            b = ACC + c * 16
            A.e(f"s_waitcnt lgkmcnt({6-4*c})\nv_pk_add_f32 {vr(b,2)}, {vr(b,2)}, {vr(b+4,2)}\nv_pk_add_f32 {vr(b+2,2)}, {vr(b+2,2)}, {vr(b+6,2)}")
            A.e(f"s_waitcnt lgkmcnt({4-4*c})\nv_pk_add_f32 {vr(b+8,2)}, {vr(b+8,2)}, {vr(b+12,2)}\nv_pk_add_f32 {vr(b+10,2)}, {vr(b+10,2)}, {vr(b+14,2)}")
            A.e(f"v_pk_add_f32 {vr(b,2)}, {vr(b,2)}, {vr(b+8,2)}\nv_pk_add_f32 {vr(b+2,2)}, {vr(b+2,2)}, {vr(b+10,2)}")
            A.e(f"v_cvt_pk_bf16_f32 v{KEEP+2*c}, v{b}, v{b+1}\nv_cvt_pk_bf16_f32 v{KEEP+2*c+1}, v{b+2}, v{b+3}")
    def vm_read():
        for tt in range(2):
            for h in range(2): A.e(f"ds_read2st64_b32 {vr(KEEP+tt*4+2*h,2)}, v{V_L4} offset0:{(T_V + tt*1024)//256 + 2*h} offset1:{(T_V + tt*1024)//256 + 2*h + 1}")
    def vm_sum():
        for i in range(4): A.e(f"v_mov_b32 v{PK+i}, v{V_SEL}")
        for tt in range(2): A.e(f"v_mfma_f32_16x16x32_bf16 {vr(KEEP+4*tt,4)}, {vr(PK,4)}, {vr(KEEP+4*tt,4)}, 0")
        for i in range(4): A.e(f"v_cvt_pk_bf16_f32 v{KEEP+i}, v{KEEP+2*i}, v{KEEP+2*i+1}")
    kvm_store = f"buffer_store_dwordx4 {vr(KEEP,4)}, v{PK}, s[20:23], s101 offen sc1"
    flg_store = f"buffer_store_dword v{VF}, v{PK+1}, s[20:23], s69 offen sc1"
    kvm_addr = f"v_cndmask_b32 v{PK}, 2.0, v{V_L16}, s[82:83]\nv_cndmask_b32 v{PK+1}, 2.0, v{V_L4}, s[86:87]"
    loop = A.newlabel("loop"); last = A.newlabel("last"); np0 = A.newlabel("np0"); z1 = A.newlabel("z1"); loop0 = A.newlabel("loop0")
    if O.PT2 and lst == "":
        A.e(f"""
        v_lshrrev_b32 v{TA}, 4, v{V_L16}
        s_lshl_b32 s64, s58, 14
        s_lshl_b32 s65, s59, 9
        s_add_u32 s64, s64, s65
        s_add_u32 s64, s64, {R_PL}
        s_lshl_b32 s65, s57, 10
        s_add_u32 s65, s65, {R_O - 4*128}
        s_lshl_b32 s66, s57, 12
        s_add_u32 s66, s66, {R_SX - 12*128}
        v_mov_b32 v{AF}, s66
        v_mov_b32 v{AF+1}, s65
        v_cmp_gt_u32 vcc, 12, v{TA}
        v_cndmask_b32 v{AF}, v{AF}, v{AF+1}, vcc
        v_mov_b32 v{AF+1}, s64
        v_cmp_gt_u32 vcc, 4, v{TA}
        v_cndmask_b32 v{AF}, v{AF}, v{AF+1}, vcc
        v_lshl_add_u32 v{AF}, v{TA}, 7, v{AF}
        v_cmp_gt_u32 vcc, 36, v{TA}
        v_cndmask_b32 v{AF}, 2.0, v{AF}, vcc
        s_lshl_b32 s64, s50, 19
        buffer_load_dword v{AF+1}, v{AF}, s[20:23], s64 offen""")
    A.e(f"""
    s_mov_b32 s55, 0
    s_cmp_lg_u32 s50, 0
    s_cbranch_scc1 {np0}
    v_mov_b32 v{PK}, 0
    v_mov_b32 v{PK+1}, 0
    s_cmp_lg_u32 s58, 0
    s_cbranch_scc1 {z1}
    v_lshrrev_b32 v{TA}, 6, v{V_L4}
    v_lshlrev_b32 v{TA}, 12, v{TA}
    v_bfe_u32 v{TB}, v{V_L4}, 1, 5
    v_add_u32 v{TA}, v{TA}, v{TB}
    s_lshl_b32 s64, s59, 6
    buffer_load_ushort v{PK}, v{TA}, s[44:47], s64 offen
    buffer_load_ushort v{PK+2}, v{TA}, s[44:47], s64 offen offset:32
    buffer_load_ushort v{PK+1}, v{TA}, s[44:47], s64 offen offset:2048
    buffer_load_ushort v{PK+3}, v{TA}, s[44:47], s64 offen offset:2080
    s_waitcnt vmcnt(0)
    v_lshl_or_b32 v{PK}, v{PK+2}, 16, v{PK}
    v_lshl_or_b32 v{PK+1}, v{PK+3}, 16, v{PK+1}
    v_min_u32 v{PK}, s81, v{PK}
    v_min_u32 v{PK+1}, s81, v{PK+1}""")
    A.label(z1)
    if O.PT2: A.e("s_waitcnt vmcnt(0)")
    def pstore(sr_, sl_):
        A.e(f"buffer_store_dword v{PK}, v{V_PRD}, s[20:23], s{sl_} offen {lst}\nbuffer_store_dword v{PK+1}, v{V_PRD}, s[20:23], s{sl_} offen offset:32 {lst}")
        A.e(f"buffer_store_dword v{PK}, v{V_PRD}, s[20:23], s{sr_} offen sc1\nbuffer_store_dword v{PK+1}, v{V_PRD}, s[20:23], s{sr_} offen offset:32 sc1")
    pstore(73, 71)
    A.label(np0)
    A.e(f"""
    v_lshrrev_b32 v{TA}, 2, v{V_L16}
    v_bfe_u32 v{TB}, v{TA}, 5, 1
    v_mul_u32_u24 v{TB}, {PODD - 32}, v{TB}
    s_and_b32 s64, s50, 1
    s_lshl_b32 s64, s64, 5
    v_add3_u32 v{V_PRD}, v{TA}, v{TB}, s64""")
    xld = lambda r, sg: f"buffer_load_dwordx4 {vr(r,4)}, v{V_L16}, s[20:23], s{sg} offen\nbuffer_load_dwordx4 {vr(r+4,4)}, v{V_L16}, s[20:23], s{sg} offen offset:1024"
    if O.JX: A.e("s_mov_b32 s61, 1")
    else:
        flagwait(0)
        segoff(A, 99, 79, 0, 77)
        A.e(xld(XN, 99))
    def xentry(n):
        if not O.JX: return
        pe = A.newlabel("pe"); pb = A.newlabel("pb")
        A.e(f"s_cmp_lg_u32 s61, 0\ns_cbranch_scc1 {pe}"); A.label(pb)
        def d():
            A.label(pe)
            A.e(f"s_waitcnt vmcnt({n})\nv_readfirstlane_b32 s91, v{KEEP+7}\ns_cmp_gt_u32 s91, s79\ns_cbranch_scc0 {pb}")
            segoff(A, 62, 79, 0, 77)
            A.e(xld(XC, 62)); A.e(f"s_mov_b32 s61, 0\ns_branch {pb}")
        tail.append(d)
    A.e(f"""
    {f'buffer_load_dword v{KEEP+7}, off, s[20:23], s68 sc1' if O.FF else ''}
    s_waitcnt vmcnt(0)
    s_mov_b32 s92, s70
    s_mov_b32 s93, s72
    s_mov_b32 s94, s76
    s_add_u32 s95, s94, 4096
    s_mov_b32 s96, s74
    s_add_u32 s97, s96, 4096
    s_mov_b32 s98, s75
    s_barrier""")
    zero()
    A.e(f"s_cmp_gt_u32 s50, 1\ns_cbranch_scc0 {loop0}x")
    ja = A.newlabel("ja")
    if O.LAL >= 0: A.lines += [".p2align 6"] + ["    s_nop 0"] * O.LAL
    A.label(loop)
    def early(n, pre=0):
        if O.KE == 3:
            A.e(f"s_max_u32 s66, s79, 1\ns_sub_u32 s66, s66, 1\nv_cndmask_b32 v{VF}, 2.0, v{V_L16}, s[82:83]")
            segoff(A, 101, 66, 0, 78)
            delay(A, pre)
            A.e(f"buffer_store_dwordx4 {vr(KEEP,4)}, v{VF}, s[20:23], s101 offen sc1")
            delay(A, max(0, n - O.KJD - pre)); return
        if O.KJ > 63: delay(A, n); return
        e = A.newlabel("kje"); b = A.newlabel("kjb")
        A.e(f"s_cmp_gt_u32 s79, {O.KJ}\ns_cbranch_scc1 {e}")
        delay(A, n); A.label(b)
        def d():
            A.label(e)
            A.e(f"s_sub_u32 s66, s79, 1\nv_cndmask_b32 v{VF}, 2.0, v{V_L16}, s[82:83]")
            segoff(A, 101, 66, 0, 78)
            A.e(f"buffer_store_dwordx4 {vr(KEEP,4)}, v{VF}, s[20:23], s101 offen sc1")
            delay(A, max(0, n - O.KJD))
            A.e(f"s_branch {b}")
        tail.append(d)
    mzero()
    early(O.DL - 6 - trace(), O.KP23)
    stamp(0)
    def lloads():
        for b in range(4):
            A.e(ldA(b))
            if b < 3 and O.LI: A.e(f"s_nop {O.LI-1}")
    lloads()
    for i in range(8): A.e(f"v_mov_b32 v{XC+i}, v{XN+i}")
    A.e(f"s_branch {ja}")
    pin(O.PL0)
    A.label(loop0 + "x")
    mzero()
    early(O.DL0 - 6 - trace())
    stamp(0)
    lloads()
    A.label(ja)
    pin(O.PJ)
    xentry(5)
    A.e(f"v_mov_b32 v{VF}, s79" if O.KE in (1, 3) else f"s_max_u32 s66, s79, 1\ns_sub_u32 s66, s66, 1" + (f"\ns_cmp_gt_u32 s79, {O.KJ}\ns_cselect_b32 s64, s79, s66\nv_mov_b32 v{VF}, s64" if O.KJ < 64 else f"\nv_mov_b32 v{VF}, s66" if O.KE == 0 else ""))
    fl2 = [f"v_mov_b32 v{TA}, s79", "s_waitcnt vmcnt(3)", f"buffer_store_dword v{TA}, v{PK+1}, s[20:23], s69 offen sc1"] if O.KE == 2 else []
    if O.MEAS: A.e("s_cmp_eq_u32 s79, 9\ns_cselect_b32 s61, s62, s61\ns_memtime s[62:63]")
    if O.KE != 3: segoff(A, 101, 79 if O.KE == 1 else 66, 0, 78)
    A.e(f"s_cmp_eq_u32 s79, {nsteps-1}\ns_cbranch_scc1 {last}")
    if O.PROF in (1, 2, 5): A.e("s_waitcnt lgkmcnt(0)\ns_mov_b32 s26, s24")
    if O.JX:
        assert O.FF and O.LFW
        pq = A.newlabel("pq"); pk_ = A.newlabel("pk"); pl = A.newlabel("pl"); pg = A.newlabel("pg")
        fw = [f"s_cmp_lg_u32 s61, 0\ns_cbranch_scc1 {pq}\n{pk_}:"]
        jx0[:] = [f"v_readfirstlane_b32 s91, v{KEEP+7}", "s_add_u32 s64, s79, 1", "s_cmp_gt_u32 s91, s64\ns_cselect_b32 s99, s99, 2.0\ns_cselect_b32 s63, 0, 1"]
        def d():
            A.label(pq)
            A.e(f"s_cmp_gt_u32 s91, s79\ns_cbranch_scc1 {pg}")
            A.label(pl)
            A.e(f"""
            buffer_load_dword v{TA}, off, s[20:23], s68 sc1
            s_waitcnt vmcnt(0)
            v_readfirstlane_b32 s91, v{TA}
            s_cmp_gt_u32 s91, s79
            s_cbranch_scc1 {pg}
            s_sleep 2
            s_sub_u32 s90, s90, 1
            s_cmp_gt_i32 s90, 0
            s_cbranch_scc1 {pl}""")
            A.label(pg)
            segoff(A, 62, 79, 0, 77)
            A.e(xld(XC, 62)); A.e(f"s_waitcnt vmcnt(0)\ns_branch {pk_}")
        tail.append(d)
    else: fw = flagwait(1, O.LFW)
    segoff(A, 99, 79, 1, 77)
    win1 = (fw if O.LFW else []) + [f"buffer_load_dwordx4 {vr(XN,4)}, v{V_L16}, s[20:23], s99 offen", f"buffer_load_dwordx4 {vr(XN+4,4)}, v{V_L16}, s[20:23], s99 offen offset:1024",
            f"buffer_load_dword v{VF}, off, s[20:23], s68 sc1",
            f"s_add_u32 s64, s79, 2", f"s_and_b32 s64, s64, {XR-1}", f"s_lshl_b32 s100, s64, 19"]
    if O.FF:
        assert O.LFW
        win1 = ([] if O.JX else [f"v_readfirstlane_b32 s91, v{KEEP+7}"]) + [x for x in win1 if "s68" not in x] + (["s_mov_b32 s61, s63"] if O.JX else [])
    if O.NOX: win1 = win1[3:]
    delay(A, O.WL)
    phaseA(list(range(8)), win1, O.NV1, True)
    A.e("s_waitcnt lgkmcnt(0)\ns_barrier")
    stamp(5)
    w23 = A.newlabel("w23"); ogo = A.newlabel("ogo")
    w01 = A.newlabel("w01")
    A.e(f"s_cmp_gt_u32 s50, 1\ns_cbranch_scc0 {w01}" if O.SWP else f"s_cmp_gt_u32 s50, 1\ns_cbranch_scc1 {w23}")
    isw0 = len(A.lines)
    if O.SWP: A.label(w01)
    nf = A.newlabel("nf")
    A.e(smv(O.NV1))
    TSET = [([AF, AF + 16, AF + 4, AF + 20], PK), ([AF + 8, AF + 24, AF + 12, AF + 28], ACC + 28)]
    def ldSet(k):
        TS, M = TSET[k]
        o = [f"buffer_load_dwordx4 {vr(TS[p],4)}, v{V_A1}, s[20:23], s{94+(p>>1)} offen offset:{(p&1)*1536} sc1" for p in range(4)]
        return o + [f"buffer_load_dword v{M+p}, v{V_A2}, s[20:23], s{94+(p>>1)} offen offset:{(p&1)*1536} sc1" for p in range(4)]
    ldS = ldSet(0)
    assert O.DS >= 16
    ex = {}; restS = []
    if fl2: ex[O.NV1 + O.KF] = fl2[:1]; ex[O.NV1 + O.KF + 1] = fl2[1:]
    for k, x in enumerate(ldS):
        if O.DS + k < 32: ex[O.DS + k] = [x]
        else: restS.append(x)
    if O.DS <= 32:
        for x in vstream(O.NV1 + 1, O.VPF, ex, restS): A.e(x)
    else:
        for x in vstream(O.NV1 + 1, O.VPF, ex): A.e(x)
        delay(A, O.DS - 32)
        for x in restS: A.e(x)
    stamp(6)
    if O.S2:
        delay(A, O.DS2)
        for x in ldSet(1): A.e(x)
    stamp("S1iss")
    if O.B2POS == 0: A.e("s_waitcnt lgkmcnt(0)\ns_barrier"); vm_read()
    sp = A.newlabel("sp"); sok = A.newlabel("sok"); srt = A.newlabel("srt")
    mx, t_ = TA, TB
    T = AF; T4 = PK
    DPP8 = "row_ror:8 row_mask:0xf bank_mask:0xf"
    def schk(k, extra):
        TS, M = TSET[k]; U = TS[2]; X = TS[0]
        A.e(f"""
        s_waitcnt vmcnt({6+extra})""")
        if k == 0: stamp("Sarr")
        A.e(f"""
        v_pk_add_f32 {vr(X,2)}, {vr(X,2)}, {vr(TS[1],2)}
        v_pk_add_f32 {vr(X+2,2)}, {vr(X+2,2)}, {vr(TS[1]+2,2)}
        s_waitcnt vmcnt({4+extra})""")
        if k == 0: stamp("Sarr2")
        A.e(f"""
        v_pk_add_f32 {vr(U,2)}, {vr(U,2)}, {vr(TS[3],2)}
        v_pk_add_f32 {vr(U+2,2)}, {vr(U+2,2)}, {vr(TS[3]+2,2)}
        v_pk_add_f32 {vr(X,2)}, {vr(X,2)}, {vr(U,2)}
        v_pk_add_f32 {vr(X+2,2)}, {vr(X+2,2)}, {vr(U+2,2)}
        v_max3_f32 v{mx}, v{X}, v{X+1}, v{X+2}
        v_pk_add_f32 {vr(U,2)}, {vr(X,2)}, {vr(X+2,2)}
        s_waitcnt vmcnt({extra})""")
        if k == 0: stamp("Sarr3")
        A.e(f"""
        v_pk_add_f32 {vr(M,2)}, {vr(M,2)}, {vr(M+2,2)}
        v_add_f32 v{M}, v{M}, v{M+1}
        v_max3_f32 v{mx}, v{mx}, v{X+3}, v{M}
        v_add_f32 v{U}, v{U}, v{M}
        v_cmp_u_f32 vcc, v{U}, v{U+1}
        v_max_f32_dpp v{mx}, v{mx}, v{mx} {DPP8}
        v_mov_b32 v{t_}, v{mx}""")
    pin(O.PS)
    A.label(sp)
    schk(0, 8 if O.S2 else 0)
    A.e(f"s_cbranch_vccnz {srt}")
    A.label(sok)
    def d():
        A.label(srt)
        cnt(2)
        A.e(f"s_sub_u32 s90, s90, 1\ns_cmp_gt_i32 s90, 0\ns_cbranch_scc0 {sok}")
        if O.S2:
            y2 = A.newlabel("y2")
            schk(1, 0)
            A.e(f"s_cbranch_vccnz {y2}")
            for i in range(4): A.e(f"v_mov_b32 v{T+i}, v{TSET[1][0][0]+i}")
            A.e(f"v_mov_b32 v{T4}, v{TSET[1][1]}\ns_branch {sok}")
            A.label(y2)
            for x in ldSet(0): A.e(x)
            delay(A, 4)
            for x in ldSet(1): A.e(x)
        else:
            for x in ldS: A.e(x)
        A.e(f"s_branch {sp}")
    tail.append(d)
    stamp(7)
    PF = ACC; PM = ACC + 4; OD = ACC + 8; SD = ACC + 16
    A.e(f"""
    v_permlane16_swap_b32 v{t_}, v{mx}
    v_max_f32 v{mx}, v{mx}, v{t_}
    v_mov_b32 v{t_}, v{mx}
    v_permlane32_swap_b32 v{t_}, v{mx}
    v_max_f32 v{mx}, v{mx}, v{t_}
    v_mul_f32 v{mx}, s80, v{mx}""")
    vals = [T, T + 1, T + 2, T + 3, T4]
    for v in vals: A.e(f"v_fma_f32 v{v}, v{v}, s80, -v{mx}")
    def b2(pos):
        if O.B2POS == pos: A.e("s_waitcnt lgkmcnt(0)\ns_barrier"); vm_read()
    b2(1)
    stamp("pB2")
    SU = SD + 2
    for v in vals[:4]: A.e(f"v_exp_f32 v{v}, v{v}")
    A.e(f"""
    v_cvt_pk_bf16_f32 v{PF}, v{T}, v{T+1}
    v_cvt_pk_bf16_f32 v{PF+1}, v{T+2}, v{T+3}
    v_exp_f32 v{T4}, v{T4}
    v_mov_b32_dpp v{PF+2}, v{PF} {DPP8}
    v_mov_b32_dpp v{PF+3}, v{PF+1} {DPP8}""")
    b2(2)
    A.e(f"""
    v_mov_b32_dpp v{T4+1}, v{T4} {DPP8}
    v_cvt_pk_bf16_f32 v{PM}, v{T4}, v{T4+1}
    v_mfma_f32_16x16x32_bf16 {vr(SD,4)}, {vr(V_C,4)}, {vr(PF,4)}, 0
    v_mov_b32 v{PM+1}, v{PM}
    v_mfma_f32_16x16x32_bf16 {vr(OD,4)}, {vr(XC,4)}, {vr(PF,4)}, 0
    v_mov_b32 v{PM+2}, v{PM}
    v_mov_b32 v{PM+3}, v{PM}
    v_mfma_f32_16x16x32_bf16 {vr(OD+4,4)}, {vr(XC+4,4)}, {vr(PF,4)}, 0
    v_mfma_f32_16x16x32_bf16 {vr(SD,4)}, {vr(V_C+4,4)}, {vr(PM,4)}, {vr(SD,4)}""")
    stamp("pv1")
    b2(3)
    A.e(f"""
    s_waitcnt lgkmcnt(0)
    v_mfma_f32_16x16x32_bf16 {vr(OD,4)}, {vr(KEEP,4)}, {vr(PM,4)}, {vr(OD,4)}
    v_mfma_f32_16x16x32_bf16 {vr(OD+4,4)}, {vr(KEEP+4,4)}, {vr(PM,4)}, {vr(OD+4,4)}
    v_rcp_f32 v{SU}, v{SD}""")
    stamp("pv2")
    rdW = [f"ds_read_b128 {vr(ACC+q*4,4)}, v{V_WO} offset:{LO(0)+q*1024}" for q in range(12)]
    for i in range(4): A.e(f"v_pk_mul_f32 {vr(OD+2*i,2)}, {vr(OD+2*i,2)}, {vr(SU,2)} op_sel_hi:[1,0]")
    for i in range(4): A.e(f"v_cvt_pk_bf16_f32 v{PK+i}, v{OD+2*i}, v{OD+2*i+1}")
    A.e(f"buffer_store_dwordx4 {vr(PK,4)}, v{V_OST}, s[20:23], s98 offen {lst}")
    stamp(8)
    ldO = lambda b, r=None: f"buffer_load_dwordx4 {vr(AF+b*4 if r is None else r,4)}, v{V_L16}, s[20:23], s{96 + (b>>2)} offen offset:{(b&3)*1024} sc1"
    book = f"""s_add_u32 s79, s79, 1
    s_and_b32 s64, s79, {XR-1}
    s_lshl_b32 s64, s64, 19
    s_lshl_b32 s65, s79, 8
    s_and_b32 s65, s65, 0x2000
    s_lshl_b32 s66, s79, 16
    s_xor_b32 s88, s73, s65
    s_add_u32 s88, s88, s66
    s_sub_u32 s88, s88, s54
    s_add_u32 s89, s71, s64
    s_add_u32 s92, s70, s64
    s_xor_b32 s93, s72, s65
    s_add_u32 s93, s93, s66
    s_add_u32 s94, s76, s64
    s_add_u32 s95, s94, 4096
    s_add_u32 s98, s75, s64
    s_add_u32 s60, s74, s64""".split("\n")
    def oloads(fill):
        fill = list(fill)
        for b in range(8):
            A.e(ldO(b))
            if b < 7 and O.OI:
                n = O.OI
                while n > 0 and fill:
                    x = fill.pop(0); A.e(x); n -= 4 if "mfma" in x else (int(x.split()[1]) + 1 if "s_nop" in x else 1)
                if n > 0: A.e(f"s_nop {n-1}")
        for x in fill: A.e(x)
    A.e("s_barrier")
    for x in rdW + [f"v_mov_b32 v{XC+i}, 0" for i in range(8)]: A.e(x)
    delay(A, O.DO01)
    stamp(9)
    i0 = len(A.lines); vm_sum(); VS = [x.strip() for x in A.lines[i0:]]; del A.lines[i0:]
    oloads(VS[:6] + book + VS[6:])
    if not O.SWP: A.e(f"s_branch {ogo}")
    isw1 = len(A.lines)
    if O.WAL >= 0 and not O.SWP: A.lines += [".p2align 5"] + ["    s_nop 0"] * O.WAL
    A.label(w23)
    s_frag()
    for x in fl2: A.e(x)
    for i in range(O.NV1, O.NV1 + O.NV2): A.e(smv(i))
    stamp("sf1")
    s_frag2()
    stamp("sf2")
    SD2 = [KEEP + 4, PK, V_C + 4]
    A.e(f"""
    v_mfma_f32_16x16x32_bf16 {vr(SD2[0],4)}, {vr(XC,4)}, {vr(KEEP,4)}, 0
    v_mfma_f32_16x16x32_bf16 {vr(SD2[1],4)}, {vr(XC+4,4)}, {vr(KEEP,4)}, 0
    v_mfma_f32_16x16x32_bf16 {vr(SD2[2],4)}, {vr(KEEP,4)}, {vr(KEEP,4)}, 0""")
    for x in vfill[:5]: A.e(x)
    A.e(f"""
    buffer_store_dwordx4 {vr(SD2[0],4)}, v{V_A2}, s[20:23], s94 offen {lst}
    buffer_store_dwordx4 {vr(SD2[1],4)}, v{V_A2}, s[20:23], s94 offen offset:512 {lst}
    buffer_store_dwordx4 {vr(SD2[2],4)}, v{V_A2}, s[20:23], s94 offen offset:1024 {lst}""")
    stamp(6)
    for x in vfill[5:]: A.e(x)
    for x in vstream(O.NV1 + O.NV2, None): A.e(x)
    stamp("vend")
    for i in range(O.KW2): A.e(f"v_mfma_f32_16x16x32_bf16 {vr(AF+16,4)}, {vr(AF,4)}, {vr(AF,4)}, {vr(AF+16,4)}")
    A.e("s_waitcnt lgkmcnt(0)\ns_barrier")
    stamp(7)
    for x in rdW: A.e(x)
    A.e(f"""
    s_add_u32 s65, s76, s100
    s_add_u32 s66, s75, s100
    s_add_u32 s64, s71, s100
    s_cmp_eq_u32 s50, 2
    s_cselect_b32 s66, s66, s64
    buffer_store_dwordx4 {vr(V_C,4)}, v{V_L16}, s[20:23], s65 offen {lst}
    s_cmp_eq_u32 s50, 2
    s_cselect_b32 exec_hi, -1, 0
    buffer_store_dwordx4 {vr(V_C,4)}, v{V_L16}, s[20:23], s66 offen {lst}
    s_mov_b32 exec_hi, 0
    buffer_store_dwordx4 {vr(V_C,4)}, v{V_L16}, s[20:23], s65 offen offset:1024 {lst}
    s_mov_b64 exec, -1""")
    for i in range(8): A.e(f"v_mov_b32 v{XC+i}, 0")
    A.e("s_barrier")
    stamp(8)
    delay(A, O.DO)
    stamp(9)
    oloads(book)
    if O.SWP:
        A.e(f"s_branch {ogo}")
        if O.WAL >= 0: A.lines += [".p2align 5"] + ["    s_nop 0"] * O.WAL
        A.lines[isw0:] = A.lines[isw1:] + A.lines[isw0:isw1]
    pin(O.PO_)
    A.label(ogo)
    A.e("s_waitcnt lgkmcnt(0)")
    delay(A, O.WO)
    smo = lambda t, b: f"v_smfmac_f32_16x16x64_bf16 {vr(XC+t*4,4)}, {vr(AF+b*4,4)}, {vr((ACC+b*16 if b < 3 else wo_reg(b))+t*8,8)}, v{V_IDX}"
    groups = [(0, 2), (2, 2), (4, 2), (6, 1), (7, 1)] if O.OPAIR else [(b, 1) for b in range(8)]
    def ophase():
        F = [A.newlabel("of") for _ in groups]; N = [A.newlabel("on") for _ in groups]
        slow = A.newlabel("oslow"); back = A.newlabel("oback")
        work = lambda gi: [smo(t, bb) for bb in range(groups[gi][0], groups[gi][0] + groups[gi][1]) for t in range(2)]
        gchk = lambda gi, ex: chk(groups[gi][0], 8 - groups[gi][0] - groups[gi][1] + ex, groups[gi][1])
        mask = lambda gi: ((1 << groups[gi][1]) - 1) << groups[gi][0]
        rfl = [] if O.NOX or O.FF else [f"v_readfirstlane_b32 s91, v{VF}"]
        for x in gchk(0, 0): A.e(x)
        A.e(f"s_cbranch_vccnz {F[0]}")
        ng = len(groups)
        for gi in range(ng):
            if gi in (0, ng - 1): stamp(10 if gi == 0 else 11)
            for x in work(gi): A.e(x)
            if gi == 0:
                for x in rfl: A.e(x)
            if gi + 1 < ng:
                for x in gchk(gi + 1, 0): A.e(x)
                A.e(f"s_cbranch_vccnz {F[gi+1]}")
        A.label(back)
        def d():
            lap2 = A.newlabel("olap2")
            yd = lambda h: sum(groups[j][1] for j in range(h + 1, ng))
            dumO = f"buffer_load_dword v{PK}, off, s[20:23], s96 sc1"
            for gi, (b, nb) in enumerate(groups):
                A.label(F[gi])
                cnt(3)
                A.e(f"s_mov_b32 s55, {mask(gi)}")
                if gi == ng - 1: A.e(f"s_branch {slow}"); continue
                for bb in range(b, b + nb): A.e(ldO(bb))
                if gi == 0:
                    for x in rfl: A.e(x)
                ex = nb; stubs = []
                for h in range(gi + 1, ng):
                    st = A.newlabel("ost"); rt = A.newlabel("ort")
                    for x in gchk(h, ex): A.e(x)
                    A.e(f"s_cbranch_vccnz {st}")
                    w = work(h)
                    for k, x in enumerate(w):
                        A.e(x)
                        if k < groups[h][1]: A.e(dumO)
                    A.label(rt)
                    stubs.append((h, st, rt)); ex += groups[h][1]
                nf = A.newlabel("onf")
                for x in chk(b, yd(gi), nb): A.e(x)
                A.e(f"s_cbranch_vccnz {lap2}\ns_andn2_b32 s55, s55, {mask(gi)}")
                for x in work(gi): A.e(x)
                A.e(f"s_cbranch_scc0 {back}\ns_branch {lap2}")
                for h, st, rt in stubs:
                    A.label(st)
                    for bb in range(groups[h][0], groups[h][0] + groups[h][1]): A.e(ldO(bb))
                    A.e(f"s_or_b32 s55, s55, {mask(h)}\ns_branch {rt}")
            A.label(lap2)
            cnt(4)
            for h in range(ng):
                sk = A.newlabel("l2s")
                A.e(f"s_bitcmp1_b32 s55, {groups[h][0]}\ns_cbranch_scc0 {sk}")
                for x in chk(groups[h][0], yd(h), groups[h][1]): A.e(x)
                A.e(f"s_cbranch_vccnz {sk}")
                A.e(f"s_andn2_b32 s55, s55, {mask(h)}")
                for x in work(h): A.e(x)
                A.label(sk)
            A.e(f"s_cmp_eq_u32 s55, 0\ns_cbranch_scc1 {back}")
            A.label(slow)
            deferred(range(8), ldO, lambda bb: [smo(0, bb), smo(1, bb)], back, 4, lambda bb: [KEEP + 4, PK][:O.NPL - 1], lambda bb: O.DPL)
        tail.append(d)
    ophase()
    if O.FF: A.e(f"buffer_load_dword v{KEEP+7}, off, s[20:23], s68 sc1")
    kst = f"v_cndmask_b32 v{TA}, 2.0, v{V_L16}, s[82:83]\nbuffer_store_dwordx4 {vr(KEEP,4)}, v{TA}, s[20:23], s101 offen sc1"
    if O.KE == 1 and O.KEP == 0: A.e(kst)
    for t in range(2):
        a = XC + t * 4
        A.e(f"v_add_f32 v{a}, v{a}, v{a+1}\nv_add_f32 v{a+2}, v{a+2}, v{a+3}")
    for t in range(2):
        for u in range(2): A.e(f"ds_write_addtid_b32 v{XC+t*4+2*u} offset:{T_P + u*PODD + t*1024}")
    if O.KE == 1 and O.KEP == 1: A.e(kst)
    A.e(f"s_mov_b32 s96, s60\ns_add_u32 s97, s60, 4096\ns_cmp_gt_u32 s50, 1\ns_waitcnt lgkmcnt(0)\ns_barrier")
    stamp("B3")
    A.e(f"s_cbranch_scc1 {loop}")
    for w in range(4): A.e(f"ds_read2st64_b32 {vr(ACC+2*w,2)}, v{V_PRD} offset0:{T_P//256 + w} offset1:{T_P//256 + 4 + w}")
    for i in range(8): A.e(f"v_mov_b32 v{XC+i}, v{XN+i}")
    A.e(f"""
    s_waitcnt lgkmcnt(2)
    v_pk_add_f32 {vr(ACC,2)}, {vr(ACC,2)}, {vr(ACC+2,2)}
    s_waitcnt lgkmcnt(0)
    v_pk_add_f32 {vr(ACC+4,2)}, {vr(ACC+4,2)}, {vr(ACC+6,2)}
    v_pk_add_f32 {vr(ACC,2)}, {vr(ACC,2)}, {vr(ACC+4,2)}
    v_cvt_pk_bf16_f32 v{TA}, v{ACC}, v{ACC+1}""")
    pst = [f"buffer_store_dword v{TA}, v{V_L4}, s[20:23], s89 offen {lst}", f"buffer_store_dword v{TA}, v{V_L4}, s[20:23], s88 offen sc1"]
    A.e(pst[O.PORD])
    if O.PN: A.e(f"s_nop {O.PN-1}")
    A.e(pst[1 - O.PORD])
    stamp(12)
    A.e(f"s_branch {loop0}x")
    A.label(last)
    phaseA(list(range(4, 8)), [], 8, False)
    A.e("s_waitcnt vmcnt(0) lgkmcnt(0)")
    for x in fl2: A.e(x)
    if O.FL63 and not fl2 and O.KE != 3: A.e(f"v_mov_b32 v{VF}, {nsteps-1}"); A.e(flg_store)
    segoff(A, 101, 79, 0, 78)
    for x in vstream(8, 8): A.e(x)
    A.e("s_waitcnt lgkmcnt(0)\ns_barrier")
    l23 = A.newlabel("l23"); lj = A.newlabel("lj")
    A.e(f"s_cmp_gt_u32 s50, 1\ns_cbranch_scc1 {l23}")
    vm_read(); A.e("s_waitcnt lgkmcnt(0)"); vm_sum()
    A.e(f"s_branch {lj}")
    A.label(l23)
    s_frag(); s_frag2()
    A.label(lj)
    A.e(kvm_addr)
    A.e(kvm_store)
    A.e(f"s_waitcnt vmcnt(0)\ns_barrier\nv_mov_b32 v{VF}, {nsteps}")
    A.e(flg_store)
    A.e(f"s_branch {fin}")
    for f in tail: f()

def rec_standalone(A, name, par):
    A.begin_kernel(name)
    done = A.newlabel("done"); fin = A.newlabel("fin")
    A.e(f"""
    s_getreg_b32 s51, hwreg(HW_REG_XCC_ID)
    s_and_b32 s51, s51, 7
    s_cmp_ge_u32 s2, 256
    s_cbranch_scc1 {done}
    s_cmp_ge_u32 s51, 2
    s_cbranch_scc1 {done}
    s_load_dwordx8 s[4:11], s[0:1], {ARG['mem0']*8}
    s_load_dwordx2 s[12:13], s[0:1], {ARG['Wo']*8}
    s_load_dwordx2 s[18:19], s[0:1], {ARG['ws']*8}
    v_lshrrev_b32 v2, 6, v0
    s_lshr_b32 s57, s2, 3
    s_lshl_b32 s64, s51, 5
    s_add_u32 s57, s57, s64
    v_readfirstlane_b32 s50, v2
    s_mov_b32 s90, {O.BUDGET}
    s_load_dwordx2 s[16:17], s[0:1], {ARG['dbg']*8}
    s_mov_b32 s56, 0
    s_mov_b32 s51, 0
    s_waitcnt lgkmcnt(0)""")
    A.srd(20, 18, WS_BYTES)
    A.e("s_load_dword s67, s[16:17], 0\ns_waitcnt lgkmcnt(0)")
    rec_setup(A); rec_bases(A)
    A.e("s_barrier\ns_memrealtime s[52:53]\ns_memtime s[14:15]")
    for i in range(24, 44): A.e(f"s_mov_b32 s{i}, 0")
    A.e(f"s_lshl_b32 s16, s57, 2\ns_add_u32 s16, s16, s50\ns_lshl_b32 s16, s16, 12\ns_add_u32 s16, s16, {STAMP + MB}")
    rec_loop(A, "", fin)
    A.label(fin)
    A.e("s_memrealtime s[54:55]\ns_memtime s[16:17]\ns_waitcnt lgkmcnt(0)\nv_mov_b32 v20, 0\ns_sub_u32 s24, s16, s14")
    for i in range(13): A.e(f"v_writelane_b32 v20, s{24+2*i}, {i}")
    for i in range(8): A.e(f"v_writelane_b32 v20, s{26+i}, {17+i}")
    A.e("v_writelane_b32 v20, s14, 25\nv_writelane_b32 v20, s16, 26\ns_sub_u32 s62, s62, s61\nv_writelane_b32 v20, s62, 27")
    A.e(f"v_writelane_b32 v20, s52, 13\nv_writelane_b32 v20, s54, 14\nv_writelane_b32 v20, s{56 if O.PROF else 90}, 15\nv_writelane_b32 v20, s51, 16")
    A.e(f"s_lshl_b32 s64, s57, 2\ns_add_u32 s64, s64, s50\ns_lshl_b32 s64, s64, 7\ns_add_u32 s64, s64, {STAMP}\nv_lshrrev_b32 v21, 2, v{V_L16}\ns_mov_b32 exec_hi, 0\nbuffer_store_dword v20, v21, s[20:23], s64 offen")
    A.label(done)
    A.e("s_endpgm")
    A.end_kernel(512, 102, 256)
    A.launch(name, (256,), (256,), LDS_BYTES)

if __name__ == "__main__":
    out = sys.argv[1]
    A = Asm()
    variants = eval(sys.argv[2]) if len(sys.argv) > 2 else [dict()]
    base = {k: v for k, v in vars(Opt).items() if not k.startswith("_")}
    for i, v in enumerate(variants):
        for k, x in base.items(): setattr(O, k, x)
        par = v.pop("par", 0)
        for k, x in v.items(): setattr(O, k, x)
        if 'DL0' not in v: O.DL0 = max(0, O.DL - 9)
        if 'DO01' not in v: O.DO01 = max(0, O.DO - 7)
        MFMA_WS[0] = O.MWS
        rec_standalone(A, f"r{i}_p{par}_" + "_".join(f"{k}{int(x) if not isinstance(x, tuple) else ''.join('m' if y < 0 else str(y) for y in x)}" for k, x in v.items() if k != "XS") + "_kernel", par)
    A.lines = fix_hazards(A.lines)
    t = A.text()
    open(out, "w").write(t)
    check_hazards(t)
```

```python
import sys
sys.path.insert(0, "..")
from asmgen import *
from lay import *
import rec6
from rec6 import f2u, LOG2E, SCL
NAME = "adaLN_cond__memory_aug_recurrent_mem_tr__mixer_s_mlp__prompt"
GELU_C0 = -2.0 * 0.7978845608028654 * LOG2E
GELU_C1 = GELU_C0 * 0.044715
NEG = 0xff800000
class F:
    PROF = 0; APE = 1; NFLR = None; NFLO = None; L3 = 0; L4 = 0; BLATE = 0; BSL = 32; B63 = 1; DP = 1; DPS = 1; FW3 = 0; KDP = 1; REP = 1; GAL = 0; DLO = 9; DOO = 7; RAL = -1; AVL = 0; LOC = 3; LOCX = 2; PSL = 4; QD = 5; QM = 46; GD = 6; GM = 22; ABAR = 1; BUD = 40000; FORCE_SLOW = 0; FORCE_FB = 0; VSL = 8; ROT = 0; P2 = 1; GS = 1; NL = 1; G1 = 1; G2 = 9; WB = 12; TC = 8; WV = 1; FB = 8; WE = 8; FH = 1; K3 = 2; XS = 0; SB = 5; LLO = 3; LHI = 30; FP4 = 20; PO = 2; PHI = 62; FDL = 0; RSP = 50; BD = 3; QM4 = 0; PA = 4; TRU = 0; SB1 = 2; EP = 1; SS = 4; HOLD = (); D3 = 1; DW2 = 24; D1N = 50; LWB = (20, 22, 24, 26, 28, 30, 32, 34); POD = 1; RE = 1; PU0 = 0; AT = 2; ATP = 118; ENDS = 0; PM = (True, True); TP = (8, 16, 32, 48); D0 = 3; D1 = 34; DL = 1; DB1 = 0; DB2 = 18; LWD = (4, 6, 8, 10, 12, 14, 16, 18); PPD = 20; R1 = 1; PP2 = 17; PD = 3; FPB = 36; IPF = 1; SYM = 0; PRG = 1; GT = 1; FX = 1; Q1B = 2; Q2B = 26; Q1W = 20; Q2W = 28; Q0S = 8; LWX = (0, 2, 4, 6, 26, 28, 30, 32); LW2 = (1, 3, 5, 7, 9, 11, 13, 15); OW2 = 20; FW2 = 18; DROP = (); Q0 = 14; H3 = 3; OD = 2; WD = 3; PPR = 12; PPN = 20; FP = 16; A0 = 4; WB3 = 8; FD = 44; Q1 = 28; Q2R = 6; Q2N = 22; FREE = 0; XW = 0; SPS = 1; ASL = 4; QROT = 0; BTH = 2; X2 = 0; NFL2 = 2; Q4 = 64; BPF = 1; BORD = [(3,0),(3,2),(3,1),(3,3),(2,3),(2,2)]; WOPF = 0; EXP = ''; KW = 1; GATE = 1; GPRE = 13; VSL2 = 48; NFL = 10; W4G = 1; NMEAS = 8; PF = 1; XMAP = 0x76325410; LATE = 0; OFF = ()
WSRD = "s[20:23]"
D_ = D
XO = (1, 2, 3, 0)

def ldptr(A, s, name): A.e(f"s_load_dwordx2 s[{s}:{s+1}], s[0:1], {ARG[name]*8}")

def row_lanes(A, sj, R):
    A.e(f"""
    v_and_b32 v2, 3, v1                ; row3
    v_lshrrev_b32 v3, 2, v1            ; c
    s_lshl_b32 s64, s{sj}, 2
    v_add_u32 v4, s64, v2
    s_lshl_b32 s65, s50, 9
    v_lshlrev_b32 v5, 4, v3
    v_add_u32 v5, s65, v5
    v_lshl_add_u32 v{R['RM']}, v4, 11, v5
    v_lshlrev_b32 v{R['CO']}, 1, v5
    v_lshrrev_b32 v5, 2, v3            ; f3
    v_and_b32 v3, 3, v3                ; g
    s_lshl_b32 s65, s50, 13
    v_lshlrev_b32 v5, 10, v5
    v_lshl_add_u32 v5, v3, 8, v5
    v_lshl_add_u32 v5, v4, 4, v5
    v_add_u32 v{R['FR']}, s65, v5
    s_lshl_b32 s65, s50, 9
    v_lshlrev_b32 v5, 3, v1
    v_add_u32 v{R['SW']}, s65, v5
    v_lshlrev_b32 v{R['SR']}, 3, v2""")
def load_consts(A, R, idx, dst, tmp, one=False):
    for g in range(4):
        A.e(f"s_mov_b32 s64, {MOD + g*6144*4 + idx*4096}")
        for a in range(2):
            for t in range(2): A.e(f"buffer_load_dwordx4 {vr((dst if g == 0 else tmp + 16*(g-1)) + a*8 + t*4, 4)}, v{R['CO']}, {WSRD}, s64 offen offset:{a*512 + t*16} sc1")
    A.e("s_waitcnt vmcnt(0)")
    sum4(A, dst, tmp, 16, one)
def ln_core(A, V, C1, SB, T, R, lds, PK):
    s1, s2, u1, u2, t = T, T + 1, T + 2, T + 3, T + 4
    A.e(f"v_add_f32 v{s1}, v{V}, v{V+1}\nv_mul_f32 v{s2}, v{V}, v{V}\nv_add_f32 v{u1}, v{V+2}, v{V+3}\nv_mul_f32 v{u2}, v{V+1}, v{V+1}")
    A.e(f"v_fmac_f32 v{s2}, v{V+2}, v{V+2}\nv_fmac_f32 v{u2}, v{V+3}, v{V+3}")
    for i in range(4, 16, 2):
        A.e(f"v_add_f32 v{s1}, v{s1}, v{V+i}\nv_fmac_f32 v{s2}, v{V+i}, v{V+i}\nv_add_f32 v{u1}, v{u1}, v{V+i+1}\nv_fmac_f32 v{u2}, v{V+i+1}, v{V+i+1}")
    A.e(f"v_add_f32 v{s1}, v{s1}, v{u1}\nv_add_f32 v{s2}, v{s2}, v{u2}")
    for ror in (4, 8):
        for s in (s1, s2): A.e(f"v_add_f32_dpp v{s}, v{s}, v{s} row_ror:{ror} row_mask:0xf bank_mask:0xf")
    for sw in ("v_permlane16_swap_b32", "v_permlane32_swap_b32"):
        A.e(f"v_mov_b32 v{u1}, v{s1}\nv_mov_b32 v{u2}, v{s2}\n{sw} v{u1}, v{s1}\n{sw} v{u2}, v{s2}\nv_add_f32 v{s1}, v{s1}, v{u1}\nv_add_f32 v{s2}, v{s2}, v{u2}")
    A.e(f"ds_write_b64 v{R['SW']}, {vr(s1,2)} offset:{lds}\ns_waitcnt lgkmcnt(0)\ns_barrier")
    for w in range(4): A.e(f"ds_read_b64 {vr(t+2*w,2)}, v{R['SR']} offset:{lds + w*512}")
    A.e("s_waitcnt lgkmcnt(0)")
    stats_fin(A, t, s1, s2)
    for i in range(16): A.e(f"v_fma_f32 v{V+i}, v{V+i}, v{s2}, v{s1}")
    for i in range(16): A.e(f"v_fma_f32 v{V+i}, v{V+i}, v{C1+i}, v{SB+i}")
    for i in range(8): A.e(f"v_cvt_pk_bf16_f32 v{PK+i}, v{V+2*i}, v{V+2*i+1}")
def stats_fin(A, t, nm, rs, mode=0):
    A.e(f"""
    v_add_f32 v{t}, v{t}, v{t+2}
    v_add_f32 v{t+1}, v{t+1}, v{t+3}
    v_add_f32 v{t+4}, v{t+4}, v{t+6}
    v_add_f32 v{t+5}, v{t+5}, v{t+7}
    v_add_f32 v{t}, v{t}, v{t+4}
    v_add_f32 v{t+1}, v{t+1}, v{t+5}
    v_mul_f32 v{nm}, {f2u(-1/1024):#x}, v{t}
    v_mul_f32 v{t+2}, v{nm}, v{nm}
    v_mul_f32 v{t+1}, {f2u(1/1024):#x}, v{t+1}
    v_sub_f32 v{t+1}, v{t+1}, v{t+2}
    v_max_f32 v{t+1}, 0, v{t+1}
    v_add_f32 v{t+1}, {f2u(1e-5):#x}, v{t+1}
    v_rsq_f32 v{rs}, v{t+1}""")
    if mode == 0: A.e(f"v_mul_f32 v{nm}, v{nm}, v{rs}")
def unpack(A, src, dst, n):
    for i in range(n): A.e(f"v_lshlrev_b32 v{dst+2*i}, 16, v{src+i}\nv_and_b32 v{dst+2*i+1}, s73, v{src+i}")

C_M, C_M2, C_M3, C_HA, C_HB, C_PAR, C_I, C_QW = range(8)
CB0, CB1 = 64, 192
TICK = 128
def dbg_srd(A, d): A.srd(d, 2, 256)
NCP = [0]
def cpoll(A, L, req, srd=92, place=True, va=16, lds=160 * 1024 - 4096, pre=0, sl=None):
    vp = A.newlabel("vpoll"); ck = A.newlabel("vck"); rt = A.newlabel("vrt"); ok = A.newlabel("vok"); ot = A.newlabel("vot"); fin = A.newlabel("vfin")
    a, d, r, t = va, va + 1, va + 2, va + 3
    NCP[0] += 1; lds += 256 * (NCP[0] % 8)
    dbg_srd(A, srd)
    A.e(f"""
    v_mbcnt_lo_u32_b32 v{a}, -1, 0
    v_mbcnt_hi_u32_b32 v{a}, -1, v{a}
    v_mov_b32 v{r}, 0""")
    for k, val in req.items(): A.e(f"v_cmp_eq_u32 vcc, {16 + k}, v{a}\nv_cndmask_b32 v{r}, v{r}, {val}, vcc")
    A.e(f"""
    v_and_b32 v{t}, 1, v{a}
    v_cmp_eq_u32 vcc, 1, v{t}
    v_mov_b32 v{t}, {32 << 8}
    v_cndmask_b32 v{t}, -1, v{t}, vcc
    v_min_u32 v{a}, 31, v{a}
    v_lshlrev_b32 v{a}, 2, v{a}
    s_sub_u32 s66, s88, 64""")
    def placement(known, bad):
        A.e(f"""
        s_cmp_lg_u32 s56, 2
        s_cbranch_scc1 {known}
        v_cmp_eq_u32 vcc, v{d}, v{t}
        s_and_b32 s64, vcc_lo, 0xffff
        s_cmp_eq_u32 s64, {0x10000 if (F.FORCE_SLOW or F.FORCE_FB) else 0xffff}
        s_cbranch_scc1 {known}
        s_mov_b32 s65, 0""")
        for x in range(8): A.e(f"v_readlane_b32 s64, v{d}, {2*x+1}\ns_lshr_b32 s64, s64, 8\ns_add_u32 s65, s65, s64")
        A.e(f"s_cmp_ge_u32 s65, 256\ns_cbranch_scc1 {bad}")
    if place: A.e(f"s_cmp_lg_u32 s50, 0\ns_cbranch_scc1 {ot}")
    if pre:
        lp = A.newlabel("pre"); A.e(f"s_mov_b32 s64, {pre}"); A.label(lp); A.e(f"s_sleep 32\ns_sub_u32 s64, s64, 1\ns_cmp_gt_i32 s64, 0\ns_cbranch_scc1 {lp}")
    A.label(vp)
    A.e(f"buffer_load_dword v{d}, v{a}, s[{srd}:{srd+3}], s66 offen sc1\ns_waitcnt vmcnt(0)")
    if place: placement(ck, ok); A.e(f"s_branch {rt}")
    A.label(ck)
    A.e(f"v_cmp_gt_u32 vcc, v{r}, v{d}\ns_cbranch_vccz {ok}")
    A.label(rt)
    A.e(f"s_sleep {sl or F.VSL}\ns_sub_u32 s90, s90, 1\ns_cmp_gt_i32 s90, 0\ns_cbranch_scc1 {vp}")
    A.label(ok)
    if place:
        A.e(f"ds_write_b32 v{a}, v{d} offset:{lds & 0xffff}" if lds < 65536 else f"v_add_u32 v{r}, {lds}, v{a}\nds_write_b32 v{r}, v{d}")
        A.e("s_waitcnt lgkmcnt(0)")
        A.label(ot)
        A.e(f"s_barrier\nv_add_u32 v{r}, {lds}, v{a}\nds_read_b32 v{d}, v{r}\ns_waitcnt lgkmcnt(0)")
        placement(fin, L["fb"])
        A.label(fin)
        A.e("s_and_b32 s56, s56, 1")
def verify(A, L, need_par, kind="role"):
    req = {C_I: 63}
    if kind == "qkv": req[C_HA] = 64
    if kind == "mod": req.update({C_M2: 63, C_M3: 1})
    if need_par: req[C_PAR] = 1
    cpoll(A, L, req, lds=0 if kind == "rec" else 160 * 1024 - 4096, sl=F.VSL2 if kind == "mod" else None)
    A.e("s_mov_b32 s67, 0")
    if need_par: A.e(f"v_readlane_b32 s65, v17, {16 + C_PAR}\ns_and_b32 s65, s65, 2\ns_lshl_b32 s67, s65, 12")
def signal(A, k, srd=92, vt=16, sel220=None):
    sk = A.newlabel("sig")
    A.e(f"s_waitcnt vmcnt(0)\ns_barrier\ns_cmp_lg_u32 s50, 0\ns_cbranch_scc1 {sk}")
    dbg_srd(A, srd)
    A.e(f"s_add_u32 s64, s88, {4*k}")
    if sel220 is not None: A.e(f"s_add_u32 s65, s88, {4*sel220}\ns_cmp_eq_u32 s58, {GPAR}\ns_cselect_b32 s64, s65, s64")
    A.e(f"v_mov_b32 v{vt}, 1\ns_mov_b64 exec, 1\nbuffer_atomic_add v{vt}, off, s[{srd}:{srd+3}], s64 sc1\ns_mov_b64 exec, -1")
    A.label(sk)
GPAR = 220
PR1 = 8
C_X = 8
def sum4(A, dst, tmp, n, one=False):
    for i in range(0, n, 2): A.e(f"v_pk_add_f32 {vr(dst+i,2)}, {vr(dst+i,2)}, {vr(tmp+i,2)}\nv_pk_add_f32 {vr(tmp+n+i,2)}, {vr(tmp+n+i,2)}, {vr(tmp+2*n+i,2)}")
    for i in range(0, n, 2): A.e(f"v_pk_add_f32 {vr(dst+i,2)}, {vr(dst+i,2)}, {vr(tmp+n+i,2)}")
    for i in range(0, n, 2): A.e(f"v_cvt_pk_bf16_f32 v{tmp+i//2}, v{dst+i}, v{dst+i+1}")
    unpack(A, tmp, dst, n // 2)
    if one:
        for i in range(n): A.e(f"v_add_f32 v{dst+i}, 1.0, v{dst+i}")

def measure_parity(A):
    nm = A.newlabel("nomeas"); pub = A.newlabel("pub"); lp = A.newlabel("mlp")
    A.e(f"""
    s_cmp_lg_u32 s58, {GPAR}
    s_cbranch_scc1 {nm}
    s_cmp_lg_u32 s50, 0
    s_cbranch_scc1 {nm}
    s_mov_b64 exec, 1
    s_mov_b32 s65, 1
    s_cmp_eq_u32 s56, 1
    s_cbranch_scc1 {pub}
    s_mov_b32 s66, {XMEAS}
    s_mov_b32 s67, {XMEAS+8192}
    s_mov_b32 s70, 0x7fffffff
    s_mov_b32 s71, 0x7fffffff
    s_mov_b32 s72, {F.NMEAS}""")
    A.label(lp)
    for (so, acc) in ((66, 70), (67, 71)):
        A.e(f"""
        s_memtime s[94:95]
        s_waitcnt lgkmcnt(0)
        buffer_store_dword v16, off, {WSRD}, s{so} sc1
        s_waitcnt vmcnt(0)
        s_memtime s[96:97]
        s_waitcnt lgkmcnt(0)
        s_sub_u32 s96, s96, s94
        s_min_u32 s{acc}, s{acc}, s96""")
    A.e(f"s_sub_u32 s72, s72, 1\ns_cmp_gt_u32 s72, 0\ns_cbranch_scc1 {lp}\ns_cmp_gt_u32 s71, s70\ns_cselect_b32 s65, 2, 1")
    A.label(pub)
    dbg_srd(A, 92)
    A.e(f"v_mov_b32 v16, s65\ns_add_u32 s64, s88, {4*C_PAR}\nbuffer_store_dword v16, off, s[92:95], s64 sc1")
    if F.PROF: A.e(f"v_mov_b32 v16, s70\nv_mov_b32 v17, s71\ns_mov_b32 s64, {STAMP2 - 64}\nbuffer_store_dwordx2 v[16:17], off, {WSRD}, s64")
    A.e("s_mov_b64 exec, -1")
    A.label(nm)
    A.e("s_barrier")

def duty(A, L, grp):
    nh = 1 + grp
    R = dict(RM=8, CO=9, FR=10, SW=11, SR=12)
    VW, VC, VI, VL = 13, 14, 15, 24; SV = 32; XR_ = 48; AC = 80; W = 96; V = 128; C1 = 96; SB = 112; T = 208; M1 = 28
    A.e(f"s_load_dwordx4 s[4:7], s[0:1], {ARG['c']*8}"); ldptr(A, 8, "x")
    if grp: measure_parity(A)
    A.e(f"""
    s_sub_u32 s59, s58, {128 + 64*grp}
    s_and_b32 s52, s59, 15
    s_lshr_b32 s53, s59, 4
    s_lshl_b32 s64, s50, 6
    v_add_u32 v{VC}, s64, v1            ; thread
    v_lshrrev_b32 v2, 4, v{VC}
    v_and_b32 v3, 15, v{VC}
    v_mul_u32_u24 v{VW}, {16*12288}, v2
    v_lshl_add_u32 v{VW}, v3, 4, v{VW}
    s_mul_i32 s54, s53, {256*12288}
    s_lshl_b32 s64, s52, {8 + grp}
    s_add_u32 s54, s54, s64
    s_add_u32 s54, s54, {4096*grp}
    v_lshlrev_b32 v{VI}, 1, v{VC}
    s_lshl_b32 s55, s53, 9
    s_mov_b32 s60, 0
    s_mov_b32 s73, 0xffff0000
    s_sub_u32 s61, s58, 128
    s_lshl_b32 s61, s61, 15
    v_lshlrev_b32 v25, 6, v2
    v_lshlrev_b32 v{VL}, 4, v1""")
    row_lanes(A, 60, R)
    A.e("s_waitcnt lgkmcnt(0)")
    A.srd(24, 4, 2048); A.srd(28, 6, 1024 * 12288); A.srd(32, 8, S * D_ * 2)
    for i in range(4): A.e(f"v_mov_b32 v{M1+i}, -1\nv_mov_b32 v{20+i}, 0")
    def stf(base, nb, reg=M1, sh=None):
        A.e(f"s_lshl_b32 s64, s62, 2\ns_add_u32 s64, s64, s50")
        if sh: A.e(f"s_lshr_b32 s65, s64, 6\ns_lshl_b32 s65, s65, 19\ns_and_b32 s64, s64, 63")
        A.e(f"s_mul_i32 s64, s64, {nb*1024}\ns_add_u32 s64, s64, {base}")
        if sh: A.e("s_add_u32 s64, s64, s65")
        for i in range(nb):
            if i and i % 4 == 0: A.e("s_add_u32 s64, s64, 4096")
            A.e(f"buffer_store_dwordx4 {vr(reg,4)}, v{VL}, {WSRD}, s64 offen offset:{(i&3)*1024} sc1")
            if F.BTH and nb > 4: A.e(f"s_waitcnt vmcnt({F.BTH})")
    def fill1():
        stf(R_PR, PR1 // 4); stf(RING, 2, sh=1); stf(R_SX, 4, sh=1); stf(FLG, 1, 20)
    def fill2():
        stf(R_PR + PR1 * 64 * KB, 16 - PR1 // 4); stf(XP, 8 if F.SYM == 2 else 6)
        A.e(f"""
        s_and_b32 s64, s62, 31
        s_lshl_b32 s64, s64, 10
        s_add_u32 s64, s64, {G1 - 32768}
        s_bitcmp1_b32 s62, 5
        s_cselect_b32 s65, {(NU+1)*32768}, 0
        s_add_u32 s64, s64, s65
        buffer_store_dwordx4 v[20:23], v{VL}, {WSRD}, s64 offen sc1""")
        if F.DP: A.e(f"s_lshl_b32 s64, s62, 10\ns_add_u32 s64, s64, {X1}\nbuffer_store_dwordx4 {vr(M1,4)}, v{VL}, {WSRD}, s64 offen sc1")
        if F.KDP: A.e(f"s_lshl_b32 s64, s62, 14\ns_lshl_b32 s65, s50, 12\ns_and_b32 s65, s65, 0x2000\ns_add_u32 s64, s64, s65\ns_and_b32 s65, s50, 1\ns_lshl_b32 s65, s65, 10\ns_add_u32 s64, s64, s65\ns_add_u32 s64, s64, {KVM + 63*MB}\nbuffer_store_dwordx4 {vr(M1,4)}, v{VL}, {WSRD}, s64 offen sc1")
    def fills(f):
        f1 = A.newlabel("fl1"); f2 = A.newlabel("fl2")
        A.e(f"s_cmp_eq_u32 s58, {GPAR}\ns_cbranch_scc1 {f2}\ns_mov_b32 s62, s59")
        A.label(f1); f()
        A.e(f"s_cmp_eq_u32 s62, {GPAR + 1 - 192}\ns_mov_b32 s62, {GPAR - 192}\ns_cbranch_scc1 {f1}")
        A.label(f2)
    def bpf():
        np_ = A.newlabel("npf")
        A.e(f"s_load_dwordx8 s[36:43], s[0:1], {ARG['Wq']*8}\ns_cmp_eq_u32 s58, {GPAR}\ns_cbranch_scc1 {np_}\ns_lshl_b32 s64, s59, 2\ns_add_u32 s64, s64, s50\nv_lshlrev_b32 v16, 10, v1\nv_lshlrev_b32 v17, 7, v1\ns_waitcnt lgkmcnt(0)")
        for m in range(4): A.srd(92 if m == 3 else 68 + 4 * m, 36 + 2 * m, 8 * MB)
        sr_ = lambda m: "s[92:95]" if m == 3 else f"s[{68+4*m}:{71+4*m}]"
        A.e("s_and_b32 s65, s64, 127\ns_lshl_b32 s65, s65, 16\ns_add_u32 s65, s65, 384\ns_cmp_ge_u32 s64, 128")
        A.e("s_cselect_b64 s[44:45], s[72:73], s[68:69]\ns_cselect_b64 s[46:47], s[74:75], s[70:71]\nbuffer_load_dword v26, v16, s[44:47], s65 offen")
        A.e("s_cselect_b64 s[44:45], s[92:93], s[76:77]\nbuffer_load_dword v26, v16, s[44:47], s65 offen")
        if F.B63:
            A.e("v_lshlrev_b32 v19, 13, v1\ns_and_b32 s65, s64, 15\ns_lshl_b32 s65, s65, 19\ns_add_u32 s65, s65, 8064\ns_cmp_ge_u32 s64, 16\ns_cselect_b64 s[44:45], s[72:73], s[68:69]\ns_cmp_ge_u32 s64, 32\ns_cselect_b64 s[44:45], s[76:77], s[44:45]")
            A.e("s_cmp_ge_u32 s64, 48\ns_cselect_b32 s65, 2.0, s65\nbuffer_load_dword v26, v19, s[44:47], s65 offen")
        A.e("s_lshl_b32 s65, s64, 13")
        for m, q in F.BORD[:F.BPF - 1]:
            if F.BSL: A.e(f"s_sleep {F.BSL}")
            A.e(f"s_add_u32 s66, s65, {q*2*MB}\nbuffer_load_dword v26, v17, {sr_(m)}, s66 offen")
        A.label(np_)
        A.e("s_mov_b32 s73, 0xffff0000")
    if grp and F.BPF and not F.BLATE: bpf()
    if grp:
        fills(fill1)
        signal(A, C_I, sel220=C_X)
        if F.BPF and F.BLATE: bpf()
        if "b" in F.EXP: A.e("s_endpgm")
        if F.X2: fills(fill2); signal(A, C_M2, sel220=C_M3); A.e("s_endpgm")
        if F.GATE: cpoll(A, L, {C_QW: F.GATE} if F.GATE > 1 else {}, pre=F.GPRE, sl=F.VSL2)
        if F.EXP: A.e("s_endpgm")
    A.e(f"buffer_load_ushort v16, v{VI}, s[24:27], s55 offen")
    for p in range(16):
        for h in range(nh): A.e(f"buffer_load_dwordx4 {vr(W + (h*16+p)*4, 4)}, v{VW}, s[28:31], s54 offen offset:{h*256}")
        if p < 15: A.e("s_add_u32 s54, s54, 12288")
        if grp and F.BTH: A.e(f"s_waitcnt vmcnt({F.BTH})")
    for q in range(4):
        A.e(f"s_add_u32 s64, s61, {q*8192}")
        for a in range(2): A.e(f"buffer_load_dwordx4 {vr(XR_ + q*8 + a*4, 4)}, v{R['RM']}, s[32:35], s64 offen offset:{a*256}")
    NI = 0
    nw = 16 * nh
    A.e(f"""
    s_waitcnt vmcnt({nw + 8 + NI})
    v_lshlrev_b32 v16, 16, v16
    v_mul_f32 v17, {f2u(-LOG2E):#x}, v16
    v_exp_f32 v17, v17
    v_add_f32 v17, 1.0, v17
    v_rcp_f32 v17, v17
    v_mul_f32 v17, v17, v16
    v_cvt_pk_bf16_f32 v17, v17, v17
    v_and_b32 v17, s73, v17
    v_lshlrev_b32 v18, 2, v{VC}
    ds_write_b32 v18, v17 offset:8192
    s_waitcnt lgkmcnt(0)
    s_barrier""")
    for i in range(4): A.e(f"ds_read_b128 {vr(SV+4*i,4)}, v25 offset:{8192 + 16*i}")
    for i in range(8 * nh): A.e(f"v_mov_b32 v{AC+i}, 0")
    A.e("s_waitcnt lgkmcnt(0)")
    for p in range(16):
        for h in range(nh):
            A.e(f"s_waitcnt vmcnt({nw - 1 - (p*nh + h) + 8 + NI})")
            w = W + (h * 16 + p) * 4
            for j in range(4):
                t = 16 + 2 * (j & 1)
                A.e(f"v_lshlrev_b32 v{t}, 16, v{w+j}\nv_and_b32 v{t+1}, s73, v{w+j}")
                sel = p & 1
                A.e(f"v_pk_fma_f32 {vr(AC+8*h+2*j,2)}, {vr(t,2)}, {vr(SV+p-sel,2)}, {vr(AC+8*h+2*j,2)} op_sel:[0,{sel},0] op_sel_hi:[1,{sel},1]")
    A.e(f"v_lshlrev_b32 v18, 5, v{VC}")
    for h in range(nh):
        for i in range(2): A.e(f"ds_write_b128 v18, {vr(AC+8*h+4*i,4)} offset:{16384 + h*8192 + 16*i}")
    A.e(f"""
    v_and_b32 v18, 127, v{VC}
    v_lshlrev_b32 v18, 2, v18
    v_lshrrev_b32 v19, 7, v{VC}
    v_lshl_add_u32 v19, v19, {13 if grp else 31}, v18     ; group 0: both thread halves compute the same sums
    s_waitcnt lgkmcnt(0)
    s_barrier""".replace(f"v_lshl_add_u32 v19, v19, 31, v18", "v_mov_b32 v19, v18"))
    for g in range(16):
        A.e(f"ds_read_b32 v{SV+g}, v19 offset:{16384 + g*512}")
        if g == 11: A.e("s_waitcnt lgkmcnt(4)")
    A.e("s_waitcnt lgkmcnt(0)")
    for st in (8, 4, 2):
        for i in range(0, st, 2): A.e(f"v_pk_add_f32 {vr(SV+i,2)}, {vr(SV+i,2)}, {vr(SV+st+i,2)}")
    A.e(f"""
    v_add_f32 v{SV}, v{SV}, v{SV+1}
    s_mul_i32 s64, s53, {6144*4}
    s_lshl_b32 s65, s52, {9 + grp}
    s_add_u32 s64, s64, s65
    s_add_u32 s64, s64, {MOD + 8192*grp}""")
    A.e(f"v_lshlrev_b32 v18, 2, v{VC}" if grp else "")
    A.e(f"buffer_store_dword v{SV}, v18, {WSRD}, s64 offen sc1")
    if grp: fills(fill2)
    signal(A, C_M2 if grp else C_M, sel220=C_M3 if grp else None)
    if F.PROF: A.e("s_memrealtime s[98:99]")
    for q in range(4): unpack(A, XR_ + 8 * q, V + 16 * q, 8)
    for q in range(4):
        v = V + 16 * q; s1, s2, u1, u2 = T + 4 * q, T + 4 * q + 1, T + 4 * q + 2, T + 4 * q + 3
        A.e(f"v_add_f32 v{s1}, v{v}, v{v+1}\nv_mul_f32 v{s2}, v{v}, v{v}\nv_add_f32 v{u1}, v{v+2}, v{v+3}\nv_mul_f32 v{u2}, v{v+1}, v{v+1}")
        A.e(f"v_fmac_f32 v{s2}, v{v+2}, v{v+2}\nv_fmac_f32 v{u2}, v{v+3}, v{v+3}")
        for i in range(4, 16, 2):
            A.e(f"v_add_f32 v{s1}, v{s1}, v{v+i}\nv_fmac_f32 v{s2}, v{v+i}, v{v+i}\nv_add_f32 v{u1}, v{u1}, v{v+i+1}\nv_fmac_f32 v{u2}, v{v+i+1}, v{v+i+1}")
        A.e(f"v_add_f32 v{s1}, v{s1}, v{u1}\nv_add_f32 v{s2}, v{s2}, v{u2}")
    for ror in (4, 8):
        for q in range(4):
            for s_ in (T + 4 * q, T + 4 * q + 1): A.e(f"v_add_f32_dpp v{s_}, v{s_}, v{s_} row_ror:{ror} row_mask:0xf bank_mask:0xf")
    for sw in ("v_permlane16_swap_b32", "v_permlane32_swap_b32"):
        for q in range(4):
            s1, s2, u1, u2 = T + 4 * q, T + 4 * q + 1, T + 4 * q + 2, T + 4 * q + 3
            A.e(f"v_mov_b32 v{u1}, v{s1}\nv_mov_b32 v{u2}, v{s2}\n{sw} v{u1}, v{s1}\n{sw} v{u2}, v{s2}\nv_add_f32 v{s1}, v{s1}, v{u1}\nv_add_f32 v{s2}, v{s2}, v{u2}")
    for q in range(4): A.e(f"ds_write_b64 v{R['SW']}, {vr(T+4*q,2)} offset:{32768 + q*2048}")
    A.e("s_waitcnt lgkmcnt(0)\ns_barrier")
    for q in range(4):
        for w in range(4): A.e(f"ds_read_b64 {vr(SV+2*w,2)}, v{R['SR']} offset:{32768 + q*2048 + w*512}")
        A.e("s_waitcnt lgkmcnt(0)")
        stats_fin(A, SV, T, T + 1)
        for i in range(16): A.e(f"v_fma_f32 v{V+16*q+i}, v{V+16*q+i}, v{T+1}, v{T}")
    cpoll(A, L, {C_M: 64})
    if F.PROF: A.e("s_memrealtime s[100:101]")
    A.e(f"v_lshlrev_b32 v18, 5, v{VC}")
    for g in range(4):
        A.e(f"s_mov_b32 s64, {MOD + g*6144*4}")
        for i in range(2): A.e(f"buffer_load_dwordx4 {vr(SV + g*8 + 4*i, 4)}, v18, {WSRD}, s64 offen offset:{16*i} sc1")
    A.e("s_cmp_gt_u32 s50, 1\ns_cselect_b32 s64, 1.0, 0\ns_waitcnt vmcnt(0)")
    sum4(A, SV, SV + 8, 8)
    for i in range(8): A.e(f"v_add_f32 v{SV+i}, s64, v{SV+i}")
    for i in range(2): A.e(f"ds_write_b128 v18, {vr(SV+4*i,4)} offset:{16*i}")
    A.e("s_waitcnt lgkmcnt(0)\ns_barrier")
    for k, dst in ((0, SB), (1, C1)):
        for a in range(2):
            for t in range(2): A.e(f"ds_read_b128 {vr(dst + a*8 + t*4, 4)}, v{R['CO']} offset:{k*4096 + a*512 + t*16}")
    A.e(f"s_add_u32 s61, s61, {HB}\ns_add_u32 s62, s61, 4096\ns_waitcnt lgkmcnt(0)")
    for q in range(4):
        v = V + 16 * q
        for i in range(16): A.e(f"v_fma_f32 v{v+i}, v{v+i}, v{C1+i}, v{SB+i}")
        for i in range(8): A.e(f"v_cvt_pk_bf16_f32 v{XR_+8*q+i}, v{v+2*i}, v{v+2*i+1}")
        for a in range(2): A.e(f"buffer_store_dwordx4 {vr(XR_+8*q+4*a,4)}, v{R['FR']}, {WSRD}, s{61+a} offen offset:{64*q} sc1")
    signal(A, C_HB if grp else C_HA)
    if F.PROF:
        A.e(f"""
        s_memrealtime s[96:97]
        s_waitcnt lgkmcnt(0)
        v_mov_b32 v16, s98
        v_mov_b32 v17, s100
        v_mov_b32 v18, s96
        v_mov_b32 v19, s86
        s_lshl_b32 s64, s58, 4
        s_add_u32 s64, s64, {STAMP2 - 8192}
        buffer_store_dwordx4 v[16:19], off, {WSRD}, s64""")

def stamp(A, v, par=None):
    if not F.PROF: return
    A.e(f"s_memrealtime s[84:85]\ns_lshr_b32 m0, s60, 1\ns_waitcnt lgkmcnt(0)\nv_writelane_b32 v{v}, s84, m0")
def tst(A, i):
    if F.PROF >= 2: A.e(f"s_memtime s[{32+2*i}:{33+2*i}]")
def tacc(A, n):
    if F.PROF < 2: return
    A.e("s_waitcnt lgkmcnt(0)")
    for i in range(n - 1): A.e(f"s_sub_u32 s64, s{34+2*i}, s{32+2*i}\ns_add_u32 s{92+i}, s{92+i}, s64")
    A.e(f"s_sub_u32 s64, s32, s48\ns_cmp_eq_u32 s48, 0\ns_cselect_b32 s64, 0, s64\ns_add_u32 s{92+n-1}, s{92+n-1}, s64\ns_mov_b32 s48, s{32+2*(n-1)}")
def tinit(A):
    if F.PROF < 2: return
    for i in range(92, 100): A.e(f"s_mov_b32 s{i}, 0")
    A.e("s_mov_b32 s48, 0\ns_memtime s[46:47]\ns_memrealtime s[100:101]")
def tout(A, v):
    if F.PROF < 2: return
    for i in range(8): A.e(f"v_writelane_b32 v{v}, s{92+i}, {2+i}")
    A.e(f"s_memtime s[32:33]\ns_memrealtime s[34:35]\ns_waitcnt lgkmcnt(0)\ns_sub_u32 s32, s32, s46\ns_sub_u32 s34, s34, s100\nv_writelane_b32 v{v}, s32, 10\nv_writelane_b32 v{v}, s34, 11")
def stamp_out(A, regs):
    if not F.PROF: return
    A.e(f"s_lshl_b32 s64, s58, 2\ns_add_u32 s64, s64, s50\ns_mul_i32 s64, s64, 768\ns_add_u32 s64, s64, {STAMP2}\nv_mbcnt_lo_u32_b32 v16, -1, 0\nv_mbcnt_hi_u32_b32 v16, -1, v16\nv_lshlrev_b32 v16, 2, v16")
    for i, r in enumerate(regs[:3]): A.e(f"buffer_store_dword v{r}, v16, {WSRD}, s64 offen offset:{i*256}")
def flag_store(A, vt, sval, saddr):
    A.e(f"v_mov_b32 v{vt}, {sval}\ns_mov_b64 exec, 1\nbuffer_store_dword v{vt}, off, {WSRD}, s{saddr} sc1\ns_mov_b64 exec, -1")
def poll_loop(A, ld, vF, sneed, sl=None):
    lp = A.newlabel("plp"); ok = A.newlabel("pok")
    A.label(lp)
    A.e(f"""
    {ld}
    s_waitcnt vmcnt(0)
    v_cmp_gt_u32 vcc, s{sneed}, v{vF}
    s_cbranch_vccz {ok}
    s_sleep {sl or F.PSL}
    s_sub_u32 s90, s90, 1
    s_cmp_gt_i32 s90, 0
    s_cbranch_scc1 {lp}""")
    A.label(ok)

def weave(A, M, fill, first=0, per=1):
    fill = list(fill)
    for i, m in enumerate(M):
        A.e(m)
        if i >= first:
            for _ in range(per):
                if fill: A.e(fill.pop(0))
    for x in fill: A.e(x)

class Sched:
    def __init__(self, A): self.A = A; self.q = []; self.done = -1
    def lds(self, ins, tag=None): self.A.e(ins); self.q.append(tag)
    def need(self, tag):
        i = len(self.q) - 1 - self.q[::-1].index(tag)
        if i > self.done:
            n = len(self.q) - 1 - i
            assert n <= 15
            self.A.e(f"s_waitcnt lgkmcnt({n})"); self.done = i
    def copy(self):
        c = Sched(self.A); c.q = list(self.q); c.done = self.done; return c

def stage_weights(A, stages, ld, pf=None, nfl=0, rot=None, rotk=None):
    A.e(f"""
    v_lshrrev_b32 v26, 2, v1
    v_and_b32 v27, 3, v1
    v_mul_u32_u24 v16, {ld}, v26
    v_lshl_add_u32 v16, v27, 4, v16
    v_lshlrev_b32 v17, 6, v25
    v_lshl_add_u32 v17, v24, 4, v17
    v_add_u32 v17, s61, v17""")
    def issue(st):
        srd, pre, rows, _ = stages[st]
        npf = pf(st, -1) if pf else 0
        A.e(pre)
        A.e(f"s_add_u32 m0, s61, {(st&1)*16384}")
        for J in range(rows // 16):
            if rot and J % 4 == 0:
                A.e(f"s_add_u32 s64, s{rot(st)}, {J//4}\ns_and_b32 s64, s64, 3\ns_mul_i32 s65, s64, {64*ld}\ns_add_u32 s63, s62, s65\ns_lshl_b32 s64, s64, 12\ns_add_u32 s64, s64, s61\ns_add_u32 m0, s64, {(st&1)*16384}")
            if rotk and J % 2 == 0:
                A.e(f"s_add_u32 s64, s{rotk}, {J//2}\ns_sub_u32 s65, s64, {rows//32}\ns_cselect_b32 s64, s64, s65\ns_mul_i32 s64, s64, {32*ld}\ns_add_u32 s63, s62, s64")
            sa = 63 if rot or rotk else 62
            A.e(f"buffer_load_dwordx4 v16, s[{srd}:{srd+3}], s{sa} offen lds")
            if J + 1 < rows // 16: A.e(f"s_add_u32 s{sa}, s{sa}, {16*ld}\ns_add_u32 m0, m0, 1024")
            if pf: npf += pf(st, J)
            if nfl: A.e(f"s_waitcnt vmcnt({nfl})")
        return rows // 16 + npf
    if F.PROF: rec6.sstamp(A, 30, 1)
    n = [issue(0), issue(1)]
    for st in range(len(stages)):
        A.e(f"s_waitcnt vmcnt({n[st+1] if st + 1 < len(stages) else 0})")
        if F.PROF: rec6.sstamp(A, 30, 2 * st)
        stages[st][3]((st & 1) * 16384)
        A.e("s_waitcnt lgkmcnt(0)")
        if F.PROF and st: rec6.sstamp(A, 30, 2 * st + 1)
        if st + 2 < len(stages): n.append(issue(st + 2))
    if F.PROF: rec6.sstamp_out(A, 30, 58)
def lanes(A):
    A.e("""
    v_and_b32 v21, 15, v1              ; lam
    v_lshrrev_b32 v22, 4, v1           ; g
    v_lshrrev_b32 v23, 2, v21          ; r
    v_and_b32 v24, 3, v21              ; c
    s_lshl_b32 s61, s50, 15
    v_lshl_add_u32 v25, v22, 3, v23    ; 8g + r""")
def late(A, n=None):
    n = n or F.LATE
    if n:
        lp = A.newlabel("late"); A.e(f"s_mov_b32 s64, {n}"); A.label(lp); A.e(f"s_sleep 16\ns_sub_u32 s64, s64, 1\ns_cmp_gt_i32 s64, 0\ns_cbranch_scc1 {lp}")
MF = "v_mfma_f32_16x16x32_bf16"

def qkv_role(A, L):
    L16, VR0, VR1, VT = 0, 4, 5, 6; ACC = (32, 44); VH = 56; PK = 60; XW = 64; NW = 16; ST = (8, 10, 11); D = F.QD
    def wr_(ks, t, n=4, o=0):
        i = (ks * 3 + t) * 4 + o
        return ar(i, n) if i < 256 else vr(128 + i - 256, n)
    done = A.newlabel("done")
    lanes(A)
    A.e(f"s_load_dwordx4 s[4:7], s[0:1], {ARG['Wq']*8}"); ldptr(A, 8, "Wv")
    A.e(f"""
    s_lshl_b32 s52, s59, 7
    s_and_b32 s64, s50, 1
    s_lshl_b32 s65, s64, 6
    s_add_u32 s53, s52, s65
    s_lshr_b32 s65, s50, 1
    s_lshl_b32 s65, s65, 6
    s_add_u32 s52, s52, s65
    s_lshl_b32 s54, s64, 3
    s_waitcnt lgkmcnt(0)
    s_cmp_gt_u32 s50, 1
    s_cselect_b64 s[10:11], s[4:5], s[6:7]""")
    A.srd(28, 10, 8 * MB); A.srd(32, 8, 8 * MB)
    def rdp(q):
        def f(buf):
            for kk in range(8):
                for t in range(2):
                    for h in range(2): A.e(f"ds_read_b64_tr_b16 {wr_(8*q+kk,t,2,2*h)}, v17 offset:{buf + (32*kk + 4*h)*64 + 8*t}")
                if kk % 3 == 2: A.e("s_waitcnt lgkmcnt(0)")
        return f
    def rdv(q):
        def f(buf):
            if q == 0: A.e("v_add_u32 v18, s54, v17")
            for kk in range(8):
                for h in range(2): A.e(f"ds_read_b64_tr_b16 {wr_(8*q+kk,2,2,2*h)}, v18 offset:{buf + (32*kk + 4*h)*64}")
                if kk == 5: A.e("s_waitcnt lgkmcnt(0)")
        return f
    stg = []
    for q in range(4):
        stg.append((28, f"s_add_u32 s62, s53, {q*256*8192}", 256, rdp(q)))
        stg.append((32, f"s_add_u32 s62, s52, {q*256*8192}", 256, rdv(q)))
    rec6.help_addr(A, 28, 1, 59, "s_lshl_b32 s65, s64, 3\ns_and_b32 s66, s50, 1\ns_lshl_b32 s55, s66, 2\ns_add_u32 s65, s65, s55\ns_lshl_b32 s66, s66, 5")
    rec6.help_addr(A, 31, 1, 59, "s_lshl_b32 s65, s64, 4\ns_lshl_b32 s55, s50, 2\ns_add_u32 s65, s65, s55\ns_lshl_b32 s66, s50, 5")
    def pf(st, J):
        if not F.PF: return 0
        t = st + 1; i = J // 4
        if J == -1:
            if st: return 0
            for i in (2, 3): A.e(f"s_mov_b32 s64, {i*64*8192}\nbuffer_load_dword v29, v28, s[28:31], s64 offen")
            return 2
        if J % 4 != 1 or t > 7 or (t & 1 and i & 1): return 0
        if t & 1: A.e(f"s_mov_b32 s64, {((t>>1)*256 + (i>>1)*128)*8192}\nbuffer_load_dword v29, v31, s[32:35], s64 offen")
        else: A.e(f"s_mov_b32 s64, {((t>>1)*256 + i*64)*8192}\nbuffer_load_dword v29, v28, s[28:31], s64 offen")
        return 1
    A.e("s_and_b32 s60, s50, 1\ns_lshl_b32 s60, s60, 1")
    stage_weights(A, stg, 8192, pf, F.NFL, (lambda st: 50 if st & 1 else 60) if F.QROT else None)
    if F.GATE == 9:
        sq = A.newlabel("sq"); sq2 = A.newlabel("sq2")
        A.e(f"s_and_b32 s64, s59, 7\ns_cmp_eq_u32 s64, 3\ns_cbranch_scc1 {sq}\ns_cmp_lg_u32 s59, 63\ns_cbranch_scc1 {sq2}"); A.label(sq); signal(A, C_QW); A.label(sq2)
    elif F.GATE > 1: signal(A, C_QW)
    if F.EXP: A.e("s_endpgm")
    verify(A, L, True, "qkv")
    A.e(f"""
    s_barrier
    v_lshlrev_b32 v{L16}, 4, v1
    s_mov_b32 s60, 0
    s_lshl_b32 s63, s50, 13
    s_add_u32 s61, s63, {HB}
    s_mov_b32 s70, 0
    s_lshl_b32 s52, s59, 14
    s_and_b32 s64, s50, 1
    s_lshl_b32 s64, s64, 11
    s_add_u32 s53, s52, s64
    s_lshl_b32 s64, s50, 10
    s_add_u32 s52, s52, s64
    s_add_u32 s52, s52, 4096           ; V base
    s_cmp_gt_u32 s50, 1
    s_cselect_b32 s54, 0x2000, 0
    s_lshl_b32 s69, s59, 6
    s_add_u32 s69, s69, s67
    s_add_u32 s69, s69, {F_QKV}
    v_mov_b32 v{VR0}, v{L16}
    v_add_u32 v{VR1}, 32768, v{L16}""")
    def loads():
        o = ["s_add_u32 m0, s70, s63", "s_add_u32 s62, s61, 4096"]
        for i in range(8):
            o.append(f"buffer_load_dwordx4 v{L16}, {WSRD}, s{61+(i>>2)} offen offset:{(i&3)*1024} lds")
            if i == 3: o.append("s_add_u32 m0, m0, 4096")
        return o + ["s_add_u32 s61, s61, 32768", "s_add_u32 s70, s70, 32768", "s_and_b32 s70, s70, 0x1ffff"]
    def epi(par):
        a = ACC[par]
        o = ["s_sub_u32 s66, s60, 1", "s_lshr_b32 s64, s66, 1", "s_lshl_b32 s65, s64, 12", "s_and_b32 s65, s65, 0x2000", "s_xor_b32 s65, s65, s67", "s_lshl_b32 s64, s64, 20",
             "s_add_u32 s64, s64, s65", "s_add_u32 s65, s64, s52", "s_xor_b32 s64, s64, s54", "s_add_u32 s66, s64, s53"]
        if par: o += ["s_cmp_eq_u32 s60, 0", f"s_cselect_b32 s65, {SCRATCH}, s65", f"s_cselect_b32 s66, {SCRATCH}, s66"]
        o += [f"v_cvt_pk_bf16_f32 v{PK+i}, v{a+2*i}, v{a+2*i+1}" for i in range(4)]
        o += [f"v_cvt_pk_bf16_f32 v{VH+2*par+i}, v{a+8+2*i}, v{a+9+2*i}" for i in range(2)]
        o += [f"buffer_store_dwordx4 {vr(PK,4)}, v{L16}, {WSRD}, s66 offen offset:{par*1024} sc1"]
        if par: o += [f"buffer_store_dwordx4 {vr(VH,4)}, v{L16}, {WSRD}, s65 offen sc1"]
        return o
    rd = lambda ks, nxt: f"ds_read_b128 {vr(XW+4*(ks%NW),4)}, v{VR1 if nxt else VR0} offset:{ks*1024}"
    if F.PROF:
        for r in ST: A.e(f"v_mov_b32 v{r}, 0")
        A.e(f"s_memrealtime s[84:85]\ns_waitcnt lgkmcnt(0)\nv_writelane_b32 v{ST[2]}, s84, 0\nv_writelane_b32 v{ST[2]}, s86, 1")
    tinit(A)
    for x in loads() + loads(): A.e(x)
    A.e("s_waitcnt vmcnt(8)\ns_barrier")
    for ks in range(D): A.e(rd(ks, 0))
    top = A.newlabel("top"); tail = []
    A.label(top)
    for par in range(2):
        tst(A, 0)
        fill = {}
        for k, x in enumerate(epi(par ^ 1)): fill.setdefault(3 + k // 2 if k < 13 else k - 3, []).append(x)
        for k, x in enumerate(loads()): fill.setdefault(F.QM + 2 + 2 * k, []).append(x)
        for n in range(96):
            ks, t = divmod(n, 3)
            a = vr(ACC[par] + 4 * t, 4); x = vr(XW + 4 * (ks % NW), 4)
            if t == 0: A.e(f"s_waitcnt lgkmcnt({D-1})")
            A.e(f"{MF} {a}, {x}, {wr_(ks,t)}, {a if ks else 0}" if t == 2 else f"{MF} {a}, {wr_(ks,t)}, {x}, {a if ks else 0}")
            if t == 0: A.e(rd((ks + D) % 32, ks + D >= 32))
            for y in fill.get(n, []): A.e(y)
            if n == F.QM:
                nf = A.newlabel("nf")
                tst(A, 1)
                A.e(f"s_waitcnt vmcnt({2-par})")
                if par == 0:
                    sk = A.newlabel("sk")
                    hb = A.newlabel("hb"); hb2 = A.newlabel("hb2")
                    hc = A.newlabel("hc")
                    A.e(f"s_cmp_eq_u32 s60, 60\ns_cbranch_scc1 {hb}\ns_cmp_eq_u32 s60, {2*PR1}\ns_cbranch_scc1 {hc}"); A.label(hb2)
                    def dh(hb=hb, hb2=hb2, hc=hc):
                        A.label(hb); cpoll(A, L, {C_HB: 64}, 28, False, 12); A.e(f"s_branch {hb2}")
                        A.label(hc); cpoll(A, L, {C_M2: 63}, 28, False, 12); A.e(f"s_branch {hb2}")
                    tail.append(dh)
                    A.e(f"s_sub_u32 s64, s60, 2\ns_cmp_gt_u32 s64, {2*F.Q4}\ns_cbranch_scc1 {sk}\ns_waitcnt vmcnt(0)"); A.label(sk)
                    A.e(f"s_cselect_b32 s64, 1, s50")
                else: A.e("s_mov_b32 s64, s50")
                tst(A, 2)
                A.e(f"s_barrier\ns_cmp_ge_u32 s60, {NU-2}\ns_cselect_b32 s61, {HB}, s61\ns_cmp_lg_u32 s64, 0\ns_cbranch_scc1 {nf}\ns_lshr_b32 s64, s60, 1")
                flag_store(A, VT, "s64", 69); A.label(nf)
                tst(A, 3)
        A.e(f"v_mov_b32 v{VR0}, v{VR1}\nv_add_u32 v{VR1}, 32768, v{VR1}\nv_and_b32 v{VR1}, 0x1ffff, v{VR1}")
        if F.PROF: tst(A, 4); tacc(A, 5); stamp(A, ST[par])
        A.e("s_add_u32 s60, s60, 1")
    A.e(f"s_cmp_lt_u32 s60, {NU}\ns_cbranch_scc1 {top}")
    for x in epi(1): A.e(x)
    A.e(f"s_waitcnt vmcnt(0) lgkmcnt(0)\ns_barrier\ns_cmp_lg_u32 s50, 0\ns_cbranch_scc1 {done}")
    flag_store(A, VT, NSEG, 69)
    A.label(done)
    tout(A, ST[2]); stamp_out(A, ST)
    if F.AT: A.e(f"s_cmp_lt_u32 s59, {16*F.AT}\ns_cbranch_scc1 {L['att2']}")
    A.e("s_endpgm")
    for d in tail: d()

def gemm_role(A, L, kind):
    KS = 7 if kind == "w4" else 8
    stats = kind in ("w1", "w3"); xch = kind in ("wo", "w4"); res = kind == "w2"
    L16, VFA, VA, VRD, VRB, ONE, VF, VT, VO, VSW, VSR = 0, 2, 3, 4, 8, 12, 16, 17, 18, 19, 20
    ACC, FIN, S1, S2, SP, XW, NW, PKT, CS, RES, TM, M1 = 32, 40, 48, 52, 56, 64, 16, 128, 152, 160, 168, 204; ST = (200, 201, 202)
    LST = 128 * 1024; D = F.GD; NF = 4 * KS
    wreg = lambda n, t, k=4, o=0: ar((n * 2 + t) * 4 + o, k)
    done = A.newlabel("done")
    lanes(A)
    arg, ld, nbytes = dict(wo=("Wo", 2048, 8 * MB), w1=("w1", 2048, 2 * MB), w2=("w2", 2048, 2 * MB), w3=("w3", 7168, 7 * MB), w4=("w4", 2048, 7 * MB))[kind]
    ldptr(A, 4, arg)
    if xch: ldptr(A, 6, "x" if kind == "wo" else "out"); A.e("s_lshr_b32 s52, s59, 3\ns_and_b32 s53, s59, 7")
    else: A.e("s_mov_b32 s52, 0\ns_mov_b32 s53, s59")
    A.e(f"s_mul_i32 s54, s52, {NF*32*ld}\ns_lshl_b32 s64, s53, 8\ns_add_u32 s54, s54, s64\ns_lshl_b32 s64, s50, 6\ns_add_u32 s54, s54, s64\ns_waitcnt lgkmcnt(0)")
    A.srd(28, 4, nbytes)
    if xch: A.srd(24, 6, S * D_ * 2)
    def rdw(x):
        def f(buf):
            for kk in range(KS):
                for t in range(2):
                    for h in range(2): A.e(f"ds_read_b64_tr_b16 {wreg(x*KS+kk,t,2,2*h)}, v17 offset:{buf + (32*kk + 4*h)*64 + 8*t}")
                if kk % 3 == 2: A.e("s_waitcnt lgkmcnt(0)")
        return f
    A.e("s_and_b32 s55, s53, 7" + ("\ns_cmp_eq_u32 s55, 7\ns_cselect_b32 s55, 0, s55" if KS == 7 else ""))
    if kind == "w4" and F.W4G: cpoll(A, L, {C_M2: 63}, sl=F.VSL2)
    stage_weights(A, [(28, f"s_xor_b32 s62, s50, {x}\ns_mul_i32 s62, s62, {KS*32*ld}\ns_add_u32 s62, s62, s54", KS * 32, rdw(x)) for x in range(4)], ld, None, F.NFL2, None, 55 if F.ROT else None)
    verify(A, L, False, "mod")
    inb, ust = dict(wo=(OB, 131072), w1=(H2, 32768), w2=(G1, 32768), w3=(Y1, 32768), w4=(G3, 112 * 1024))[kind]
    A.e(f"""
    s_barrier
    v_lshlrev_b32 v{L16}, 4, v1
    s_mov_b32 s60, 0
    s_mov_b32 s70, 0
    s_mov_b32 s72, s55
    s_mov_b32 s55, 0
    s_lshl_b32 s63, s50, 13
    v_mov_b32 v{VA}, v{L16}
    s_mov_b32 s73, 0xffff0000
    s_lshl_b32 s64, s52, 2
    s_add_u32 s64, s64, s50
    s_mul_i32 s61, s64, {KS*1024}
    s_add_u32 s61, s61, {inb}
    s_lshl_b32 s82, s64, 8
    s_add_u32 s82, s82, {dict(wo=F_ATT, w1=F_LN, w2=F_W1, w3=F_W2, w4=F_W3)[kind]}
    s_mov_b32 s68, s82
    s_lshl_b32 s83, s53, 2
    s_add_u32 s83, s83, s50            ; output fragment index""")
    for x in range(4): A.e(f"s_xor_b32 s64, s50, {x}\ns_lshl_b32 s64, s64, 13\nv_add_u32 v{VRB+x}, s64, v{L16}")
    nfl = dict(wo=4, w1=4, w2=8, w3=8, w4=7)[kind]
    A.e(f"v_min_u32 v{VFA}, {nfl-1}, v1\nv_lshlrev_b32 v{VFA}, 2, v{VFA}")
    if res:
        A.e(f"""
        s_lshr_b32 s64, s50, 1
        s_add_u32 s64, s64, 1
        s_sub_u32 s65, 0, s64
        s_bitcmp1_b32 s50, 0
        s_cselect_b32 s64, s64, s65
        s_add_u32 s64, s64, 16
        v_add_u32 v26, s64, v21
        v_lshrrev_b32 v27, 4, v26
        v_and_b32 v26, 15, v26
        v_lshl_add_u32 v26, v22, 4, v26
        v_lshlrev_b32 v26, 4, v26
        v_lshl_add_u32 v{VA}, v27, 15, v26
        s_sub_u32 s61, s61, 32768""")
    VAR = 208
    if F.ROT:
        for i in range(KS): A.e(f"s_add_u32 s64, s72, {i}\ns_sub_u32 s65, s64, {KS}\ns_cselect_b32 s64, s64, s65\ns_lshl_b32 s64, s64, 10\ns_add_u32 s64, s64, {4096 - (i&3)*1024}\nv_add_u32 v{VAR+i}, s64, v{VA}")
        A.e("s_sub_u32 s61, s61, 4096")
    A.e("s_lshl_b32 s66, s83, 10")
    if kind == "w3":
        A.e(f"s_mul_i32 s65, s83, 147\ns_lshr_b32 s65, s65, 10\ns_mul_i32 s69, s65, {256 - 28}\ns_lshl_b32 s64, s83, 2\ns_add_u32 s69, s69, s64\ns_add_u32 s69, s69, {F_W3}")
    else:
        A.e(f"s_lshr_b32 s65, s83, 3\ns_lshl_b32 s65, s65, 8\ns_and_b32 s64, s83, 7\ns_lshl_b32 s64, s64, 2\ns_add_u32 s69, s64, s65\ns_add_u32 s69, s69, {dict(wo=F_WO, w1=F_W1, w2=F_W2, w4=F_W4)[kind]}")
    outb, ost = dict(wo=(X1, 32768), w1=(G1, 32768), w2=(Y1, 32768), w3=(G3, 112 * 1024), w4=(0, 32768))[kind]
    if xch:
        A.e(f"""
        s_lshl_b32 s64, s53, 2
        s_add_u32 s64, s64, s50
        s_mul_i32 s74, s64, {4*6144}
        s_xor_b32 s64, s50, s52
        s_sub_u32 s64, s64, 1
        s_max_i32 s64, s64, 0
        s_lshl_b32 s64, s64, 11
        s_add_u32 s74, s74, s64
        s_add_u32 s74, s74, {XP + (0 if kind == 'wo' else 768*KB)}
        s_mov_b32 s75, 0
        s_mov_b32 s76, 0
        s_mov_b32 s77, 0                   ; pending
        v_lshlrev_b32 v26, 11, v21
        v_lshl_add_u32 v26, v22, 4, v26
        s_lshl_b32 s64, s83, 6
        v_add_u32 v{VO}, s64, v26
        v_lshlrev_b32 v26, 5, v22
        s_lshl_b32 s64, s83, 7
        s_add_u32 s64, s64, {MOD + (2 if kind == 'wo' else 5)*4096}""")
        for g in range(4):
            for i in range(2): A.e(f"buffer_load_dwordx4 {vr((CS if g == 0 else PKT + 8*(g-1)) + 4*i, 4)}, v26, {WSRD}, s64 offen offset:{16*i} sc1")
            A.e(f"s_add_u32 s64, s64, {6144*4}")
        A.e("s_waitcnt vmcnt(0)")
        sum4(A, CS, PKT, 8)
        for i in range(4): A.e(f"v_mov_b32 v{M1+i}, -1")
    if stats:
        A.e(f"""
        s_lshl_b32 s64, s50, 9
        s_add_u32 s64, s64, {LST}
        v_lshlrev_b32 v26, 3, v1
        v_add_u32 v{VSW}, s64, v26
        v_lshl_add_u32 v26, v23, 4, v21
        v_lshlrev_b32 v26, 3, v26
        v_add_u32 v{VSR}, {LST}, v26
        s_mov_b32 s74, 0x22222222
        s_mov_b32 s75, 0x22222222
        s_mov_b32 s76, 0x44444444
        s_mov_b32 s77, 0x44444444
        s_mov_b32 s78, 0x88888888
        s_mov_b32 s79, 0x88888888
        s_mov_b32 s80, {f2u(GELU_C0):#x}
        s_mov_b32 s81, {f2u(GELU_C1):#x}
        v_mov_b32 v{TM+23}, s80""")
        for i in range(4): A.e(f"v_mov_b32 v{ONE+i}, 0x3f803f80")
        for n in range(NF):
            for t in range(2): A.e(f"{MF} {vr(CS+4*t,4)}, {wreg(n,t)}, {vr(ONE,4)}, {vr(CS+4*t,4) if n else 0}")
    def loads():
        o = ["s_add_u32 m0, s70, s63"] + ([] if F.ROT else ["s_add_u32 s62, s61, 4096"])
        for i in range(KS):
            o.append(f"buffer_load_dwordx4 v{VAR+i}, {WSRD}, s61 offen offset:{(i&3)*1024} lds" if F.ROT else f"buffer_load_dwordx4 v{VA}, {WSRD}, s{61+(i>>2)} offen offset:{(i&3)*1024} lds")
            if i == 3: o.append("s_add_u32 m0, m0, 4096")
        return o + [f"s_add_u32 s61, s61, {ust}", "s_add_u32 s70, s70, 32768", "s_and_b32 s70, s70, 0x1ffff"]
    pollld = f"buffer_load_dword v{VF}, v{VFA}, {WSRD}, s68 offen sc1"
    def need(add, d=71):
        if F.FREE: A.e(f"s_cmp_ge_u32 s60, {NU-add}\ns_cselect_b32 s{d}, -1, 0"); return
        A.e(f"s_add_u32 s{d}, s60, {add+1}")
        if res: A.e(f"s_and_b32 s64, s50, 1\ns_add_u32 s{d}, s{d}, s64\ns_min_u32 s{d}, s{d}, {NU}\ns_cmp_ge_u32 s60, {NU-add}\ns_cselect_b32 s{d}, -1, s{d}")
    xr = lambda n: vr(XW + 4 * (n % NW), 4)
    rd = lambda n: f"ds_read_b128 {xr(n)}, v{VRD + n//KS} offset:{(n%KS)*1024}"
    def mm(n):
        o = [f"{MF} {vr(ACC+4*t,4)}, {wreg(n,t)}, {xr(n)}, {vr(ACC+4*t,4) if n else 0}" for t in range(2)]
        if stats and n < KS: o += [f"{MF} {vr(S1,4)}, {vr(ONE,4)}, {xr(n)}, {vr(S1,4) if n else 0}", f"{MF} {vr(S2,4)}, {xr(n)}, {xr(n)}, {vr(S2,4) if n else 0}"]
        return o
    def both(f):
        l1 = A.newlabel("b1"); l2 = A.newlabel("b2")
        A.e(f"s_cmp_eq_u32 s56, 1\ns_cbranch_scc1 {l1}"); f("")
        A.label(l2)
        def d(): A.label(l1); A.e("s_nop 7"); f("sc1"); A.e(f"s_branch {l2}")
        tail.append(d)
    def f1():
        A.e("s_add_u32 s64, s74, s75\ns_add_u32 s65, s64, 4096")
        for i in range(6): A.e(f"buffer_load_dwordx4 {vr(PKT+4*i,4)}, v{L16}, {WSRD}, s{64+(i>>2)} offen offset:{(i&3)*1024} sc1")
    def fres():
        if kind == "wo": A.e(f"s_and_b32 s64, s66, 0xffff8000\nbuffer_load_dwordx4 {vr(RES,4)}, v{VO}, s[24:27], s64 offen")
        else: A.e(f"s_add_u32 s64, s66, {X1}\nbuffer_load_dwordx4 {vr(RES,4)}, v{L16}, {WSRD}, s64 offen\ns_add_u32 s64, s66, {Y1}\nbuffer_load_dwordx4 {vr(RES+4,4)}, v{L16}, {WSRD}, s64 offen")
    def f2():
        ck = A.newlabel("ck"); rt = A.newlabel("rt"); go = A.newlabel("go")
        A.label(ck)
        for i in range(0, 8, 2): A.e(f"v_pk_add_f32 {vr(PKT+i,2)}, {vr(PKT+i,2)}, {vr(PKT+8+i,2)}\nv_pk_add_f32 {vr(PKT+16+i,2)}, {vr(PKT+16+i,2)}, {vr(FIN+i,2)}")
        for i in range(0, 8, 2): A.e(f"v_pk_add_f32 {vr(PKT+i,2)}, {vr(PKT+i,2)}, {vr(PKT+16+i,2)}")
        A.e(f"v_pk_add_f32 {vr(TM,2)}, {vr(PKT,2)}, {vr(PKT+2,2)}\nv_pk_add_f32 {vr(TM+2,2)}, {vr(PKT+4,2)}, {vr(PKT+6,2)}\nv_pk_add_f32 {vr(TM,2)}, {vr(TM,2)}, {vr(TM+2,2)}")
        A.e(f"v_cmp_u_f32 vcc, v{TM}, v{TM+1}\ns_cbranch_vccnz {rt}")
        A.label(go)
        def d():
            A.label(rt)
            A.e(f"s_sub_u32 s90, s90, 1\ns_cmp_gt_i32 s90, 0\ns_cbranch_scc0 {go}"); f1(); A.e(f"s_waitcnt vmcnt(0)\ns_branch {ck}")
        tail.append(d)
        unpack(A, RES, TM, 4)
        if kind == "w4":
            unpack(A, RES + 4, TM + 8, 4)
            for i in range(0, 8, 2): A.e(f"v_pk_add_f32 {vr(PKT+i,2)}, {vr(PKT+i,2)}, {vr(TM+8+i,2)}")
        for i in range(8): A.e(f"v_fma_f32 v{TM+i}, v{PKT+i}, v{CS+i}, v{TM+i}")
        for i in range(4): A.e(f"v_cvt_pk_bf16_f32 v{TM+8+i}, v{TM+2*i}, v{TM+2*i+1}")
        if kind == "wo": A.e(f"s_add_u32 s64, s66, {X1}\nbuffer_store_dwordx4 {vr(TM+8,4)}, v{L16}, {WSRD}, s64 offen sc1")
        else: A.e(f"s_and_b32 s64, s66, 0xffff8000\nbuffer_store_dwordx4 {vr(TM+8,4)}, v{VO}, s[24:27], s64 offen")
        A.e("s_add_u32 s64, s74, s75\ns_add_u32 s65, s64, 4096")
        def rs(fl):
            for i in range(6): A.e(f"buffer_store_dwordx4 {vr(M1,4)}, v{L16}, {WSRD}, s{64+(i>>2)} offen offset:{(i&3)*1024} {fl}")
        both(rs)
        A.e(f"s_add_u32 s66, s66, {ost}\ns_add_u32 s75, s75, 6144\ns_cmp_eq_u32 s75, {4*6144}\ns_cselect_b32 s75, 0, s75\ns_add_u32 s76, s76, 1\ns_mov_b32 s77, 0")
    tail = []
    def loop(fin):
        send = xch and not fin
        NS = 0 if fin else (2 if send else 1)
        flg = (not send) and kind != "w4"
        fl = lambda: flag_store(A, VT, "s76" if fin else "s60", 69) if flg else None
        def dummies():
            for _ in range(NS): A.e(f"buffer_load_dword v{VT}, off, {WSRD}, s69")
        top = A.newlabel("top"); vN = A.newlabel("vN"); join = A.newlabel("join"); slowp = A.newlabel("slowp"); lag = A.newlabel("lag")
        need(0); poll_loop(A, pollld, VF, 71)
        A.label(lag)
        for x in loads(): A.e(x)
        dummies()
        A.e("s_mov_b32 s72, 1\ns_mov_b32 s54, 0")
        A.label(top)
        need(1)
        if F.P2: need(2, 53)
        A.e(pollld)
        ex = 1
        if fin: f1(); fres(); ex += 6 + (1 if kind == "wo" else 2)
        elif res: A.e(f"s_add_u32 s64, s66, {H2}\nbuffer_load_dwordx4 {vr(RES,4)}, v{L16}, {WSRD}, s64 offen"); ex += 1
        for x in range(4): A.e(f"v_add_u32 v{VRD+x}, s55, v{VRB+x}")
        A.e("s_add_u32 s55, s55, 32768\ns_and_b32 s55, s55, 0x1ffff")
        tst(A, 0)
        def head(w):
            Z = Sched(A)
            for i in range(KS):
                if w: A.e(f"s_waitcnt vmcnt({KS-1-i+NS+ex})")
                Z.lds(rd(i), i)
                if i == KS - 1: A.e("s_barrier")
                if i >= 2:
                    Z.need(i - 2)
                    for x in mm(i - 2): A.e(x)
            return Z
        if F.P2:
            tA = A.newlabel("tA"); tC = A.newlabel("tC"); cont = A.newlabel("cont")
            A.e(f"s_cmp_lg_u32 s72, 2\ns_cbranch_scc1 {tC}"); A.label(tA)
            Z = head(False); A.label(cont)
            def dH():
                tB = A.newlabel("tB")
                A.label(tC); A.e(f"s_cmp_eq_u32 s72, 1\ns_cbranch_scc1 {tB}\ns_waitcnt vmcnt({KS+NS+ex})\ns_branch {tA}")
                A.label(tB); head(True); A.e(f"s_branch {cont}")
            tail.append(dH)
        else: Z = head(True)
        tst(A, 1)
        nr = [KS]
        def run(Z, lo, hi, fill={}):
            for n in range(lo, hi):
                while nr[0] < min(NF, n + D + 1) and nr[0] < n + 3: Z.lds(rd(nr[0]), nr[0]); nr[0] += 1
                Z.need(n)
                for k, x in enumerate(mm(n)):
                    A.e(x)
                    if k == 0:
                        for _ in range(2):
                            if nr[0] < min(NF, n + D + 1): Z.lds(rd(nr[0]), nr[0]); nr[0] += 1
                    for y in fill.get((n, k), []):
                        if y.startswith("ds_"): Z.lds(y, y)
                        elif y.startswith("need "): Z.need(y[5:])
                        else: A.e(y)
        fill = {}
        MID = F.GM * NF // 32
        if stats:
            sw = f"ds_write_b64 v{VSW}, {vr(S1,2)}"
            fill[(KS + 3, 0)] = [f"v_cndmask_b32 v{S1+1}, v{S2}, v{S2+1}, s[74:75]"]; fill[(KS + 3, 1)] = [f"v_cndmask_b32 v{S1+1}, v{S1+1}, v{S2+2}, s[76:77]"]
            fill[(KS + 4, 0)] = [f"v_cndmask_b32 v{S1+1}, v{S1+1}, v{S2+3}, s[78:79]"]; fill[(KS + 4, 1)] = [sw]
            srd_ = [f"ds_read_b64 {vr(SP+2*w,2)}, v{VSR} offset:{w*512}" for w in range(4)]
            fill[(KS + 8, 1)] = ["need " + sw, "s_barrier"] + srd_[:2]; fill[(KS + 9, 0)] = srd_[2:]
            i0 = len(A.lines); stats_fin(A, SP, TM + 21, TM + 22, 1); sf = [x.strip() for x in A.lines[i0:]]; del A.lines[i0:]
            sf = ["need " + srd_[3]] + sf
            for k, x in enumerate(sf): fill.setdefault((KS + 13 + k // 2, k & 1), []).append(x)
            assert KS + 13 + len(sf) // 2 < NF
        run(Z, KS - 2, MID, fill)
        tst(A, 2)
        A.e("s_waitcnt vmcnt(0)")
        tst(A, 3)
        if fin:
            np_ = A.newlabel("np"); A.e(f"s_cmp_eq_u32 s77, 0\ns_cbranch_scc1 {np_}"); f2(); A.label(np_)
        else: fl()
        if F.P2:
            vD = A.newlabel("vD"); bk = A.newlabel("bk")
            A.e(f"s_cmp_eq_u32 s54, 0\ns_cselect_b32 s64, s71, s53\nv_cmp_gt_u32 vcc, s64, v{VF}\ns_cbranch_vccnz {vN}\ns_mov_b32 s72, 2\ns_cbranch_scc1 {vD}"); A.label(bk)
            def dD():
                A.label(vD); A.e(f"s_mov_b32 s72, 1\nv_cmp_gt_u32 vcc, s53, v{VF}\ns_cbranch_vccnz {bk}")
                for x in loads(): A.e(x)
                A.e(f"s_mov_b32 s72, 3\ns_mov_b32 s54, 1\ns_branch {bk}")
            tail.append(dD)
        else: A.e(f"v_cmp_gt_u32 vcc, s71, v{VF}\ns_cbranch_vccnz {vN}\ns_mov_b32 s72, 1")
        n0 = nr[0]; Z2 = Z.copy()
        fR = {k: list(v) for k, v in fill.items()}
        sl_ = 0
        for k, x in enumerate(loads()):
            fR.setdefault((MID + sl_ // 2, sl_ & 1), []).append(x); sl_ += F.GS if x.startswith("buffer") else 1
        assert MID + sl_ // 2 <= NF
        run(Z, MID, NF, fR)
        A.label(join)
        def dN():
            A.label(vN); A.e(pollld); nr[0] = n0
            run(Z2, MID, NF, fill)
            if F.P2:
                A.e("s_lshl_b32 s72, s54, 1\ns_mov_b32 s54, 0")
                if fin and flg: A.e("s_waitcnt vmcnt(7)")
            else: A.e("s_mov_b32 s72, 0")
            A.e(f"s_branch {join}")
        tail.append(dN)
        tst(A, 4)
        a = ACC
        if fin:
            for i in range(8): A.e(f"v_mov_b32 v{FIN+i}, v{a+i}")
            A.e("s_mov_b32 s77, 1")
        elif send:
            A.e("s_add_u32 s64, s74, s75")
            both(lambda f_: [A.e(f"buffer_store_dwordx4 {vr(a+4*t,4)}, v{L16}, {WSRD}, s64 offen offset:{t*1024} {f_}") for t in range(2)])
            A.e(f"s_add_u32 s75, s75, 6144\ns_cmp_eq_u32 s75, {4*6144}\ns_cselect_b32 s75, 0, s75")
        else:
            if stats:
                for i in range(8): A.e(f"v_fma_f32 v{a+i}, v{CS+i}, v{TM+21}, v{a+i}")
                for i in range(8): A.e(f"v_mul_f32 v{a+i}, v{a+i}, v{TM+22}")
                for op in ("v_mul_f32 v{t}, v{v}, v{v}", "v_fma_f32 v{t}, v{t}, s81, v%d" % (TM + 23), "v_mul_f32 v{t}, v{t}, v{v}", "v_exp_f32 v{t}, v{t}", "v_add_f32 v{t}, 1.0, v{t}", "v_rcp_f32 v{t}, v{t}", "v_mul_f32 v{v}, v{t}, v{v}"):
                    for i in range(8): A.e(op.format(t=TM + i, v=a + i))
            else:
                unpack(A, RES, TM, 4)
                for i in range(8): A.e(f"v_add_f32 v{a+i}, v{a+i}, v{TM+i}")
            for i in range(4): A.e(f"v_cvt_pk_bf16_f32 v{TM+8+i}, v{a+2*i}, v{a+2*i+1}")
            A.e(f"s_add_u32 s64, s66, {outb}\nbuffer_store_dwordx4 {vr(TM+8,4)}, v{L16}, {WSRD}, s64 offen sc1\ns_add_u32 s66, s66, {ost}")
        if F.PROF:
            tst(A, 5); tacc(A, 6)
            if not fin: stamp2(A, ST)
        A.e(f"s_add_u32 s60, s60, 1\ns_cmp_eq_u32 s72, 0\ns_cbranch_scc1 {slowp}")
        if fin and flg: A.e(f"s_waitcnt vmcnt({6+KS})"); fl()
        A.e(f"s_branch {top}")
        A.label(slowp)
        A.e(f"s_waitcnt vmcnt({NS})")
        if fin: fl()
        A.e(f"v_cmp_gt_u32 vcc, s71, v{VF}\ns_cbranch_vccz {lag}")
        if fin:
            fres(); f1(); A.e("s_waitcnt vmcnt(0)"); f2()
            if flg: A.e("s_waitcnt vmcnt(6)")
        elif flg: A.e("s_waitcnt vmcnt(0)")
        fl()
        A.e(f"s_cmp_ge_u32 s60, {NU}\ns_cbranch_scc1 {done}")
        poll_loop(A, pollld, VF, 71)
        A.e(f"s_branch {lag}")
    def pc(k):
        if F.PROF >= 2: A.e(f"s_add_u32 s{98 + k//4}, s{98 + k//4}, {1 << (8 * (k & 3))}")
    def grab(f):
        i0 = len(A.lines); f(); o = [x.strip() for x in A.lines[i0:]]; del A.lines[i0:]; return o
    def f2chk():
        ck = A.newlabel("ck"); rt = A.newlabel("rt"); go = A.newlabel("go")
        A.label(ck)
        for i in range(0, 8, 2): A.e(f"v_pk_add_f32 {vr(PKT+i,2)}, {vr(PKT+i,2)}, {vr(PKT+8+i,2)}\nv_pk_add_f32 {vr(PKT+16+i,2)}, {vr(PKT+16+i,2)}, {vr(FIN+i,2)}")
        for i in range(0, 8, 2): A.e(f"v_pk_add_f32 {vr(PKT+i,2)}, {vr(PKT+i,2)}, {vr(PKT+16+i,2)}")
        A.e(f"v_pk_add_f32 {vr(TM,2)}, {vr(PKT,2)}, {vr(PKT+2,2)}\nv_pk_add_f32 {vr(TM+2,2)}, {vr(PKT+4,2)}, {vr(PKT+6,2)}\nv_pk_add_f32 {vr(TM,2)}, {vr(TM,2)}, {vr(TM+2,2)}")
        A.e(f"v_cmp_u_f32 vcc, v{TM}, v{TM+1}\ns_cbranch_vccnz {rt}")
        A.label(go)
        def d():
            A.label(rt); pc(6)
            A.e(f"s_sub_u32 s90, s90, 1\ns_cmp_gt_i32 s90, 0\ns_cbranch_scc0 {go}"); f1(); A.e(f"s_waitcnt vmcnt(0)\ns_branch {ck}")
        tail.append(d)
    VX, VOX = 21, 22
    def f2rest():
        o = ["s_cmp_eq_u32 s77, 0\ns_cselect_b32 s57, 2.0, 0", f"v_or_b32 v{VX}, s57, v{L16}"] + ([f"v_or_b32 v{VOX}, s57, v{VO}"] if kind == "w4" else [])
        o += grab(lambda: unpack(A, RES, TM, 4))
        if kind == "w4":
            o += grab(lambda: unpack(A, RES + 4, TM + 8, 4))
            o += [f"v_pk_add_f32 {vr(PKT+i,2)}, {vr(PKT+i,2)}, {vr(TM+8+i,2)}" for i in range(0, 8, 2)]
        o += [f"v_fma_f32 v{TM+i}, v{PKT+i}, v{CS+i}, v{TM+i}" for i in range(8)]
        o += [f"v_cvt_pk_bf16_f32 v{TM+8+i}, v{TM+2*i}, v{TM+2*i+1}" for i in range(4)]
        if kind == "wo": o += [f"s_add_u32 s64, s66, {X1}\nbuffer_store_dwordx4 {vr(TM+8,4)}, v{VX}, {WSRD}, s64 offen sc1"]
        else: o += [f"s_and_b32 s64, s66, 0xffff8000\nbuffer_store_dwordx4 {vr(TM+8,4)}, v{VOX}, s[24:27], s64 offen"]
        for h in range(3):
            def rs(fl, h=h):
                for i in (2 * h, 2 * h + 1): A.e(f"buffer_store_dwordx4 {vr(M1,4)}, v{VX}, {WSRD}, s{64+(i>>2)} offen offset:{(i&3)*1024} {fl}")
            o.append("\n".join(["s_add_u32 s64, s74, s75", "s_add_u32 s65, s64, 4096"] + grab(lambda: both(rs))))
        o += [f"s_mul_i32 s64, s77, {ost}\ns_add_u32 s66, s66, s64\ns_mul_i32 s64, s77, 6144\ns_add_u32 s75, s75, s64", f"s_cmp_eq_u32 s75, {4*6144}\ns_cselect_b32 s75, 0, s75\ns_add_u32 s76, s76, s77"]
        r = grab(fres)
        return o + ["\n".join(r[i:i + 2]) for i in range(0, len(r), 2)]
    def cost(x):
        if x.startswith(("v_exp", "v_rcp")): return F.TC
        if "buffer_" in x: return 8
        return 4 if x.startswith("v_") else 2
    def spread(fill, items, lo, budget, hi):
        while True:
            f = {k: list(v) for k, v in fill.items()}; n, k, c = lo, 0, 0
            for x in items:
                if c and c + cost(x) > budget:
                    k += 1; c = 0
                    if k == len(mm(n)): n += 1; k = 0
                f.setdefault((n, k), []).append(x); c += cost(x)
            if n < hi: return f
            budget += 2
    def loop2(fin):
        send = xch and not fin
        NR = 1 if kind == 'wo' else 2
        NS = 7 + NR if fin else (2 if send else 1)
        flg = (not send) and kind != "w4"
        wv = stats and F.WV
        fl = lambda: flag_store(A, VT, "s76" if fin else "s60", 69) if flg else None
        Q1 = KS + F.G1; Q2 = NF - (F.G2 if KS == 8 else F.G2 - F.G2 // 8)
        top = A.newlabel("top"); vN = A.newlabel("vN"); join = A.newlabel("join"); slowp = A.newlabel("slowp"); lag = A.newlabel("lag")
        topW = A.newlabel("topW"); cont = A.newlabel("cont"); epiI = A.newlabel("epiI")
        ex = 2 if res else 1
        nr = [0]
        def emit(Z, y):
            if y.startswith("ds_"): Z.lds(y, y)
            elif y.startswith("need "): Z.need(y[5:])
            else: A.e(y)
        def run(Z, lo, hi, fill={}):
            for n in range(lo, hi):
                while nr[0] < min(NF, n + D + 1) and nr[0] < n + 3: Z.lds(rd(nr[0]), nr[0]); nr[0] += 1
                Z.need(n)
                for k, x in enumerate(mm(n)):
                    A.e(x)
                    if k == 0:
                        for _ in range(2):
                            if nr[0] < min(NF, n + D + 1): Z.lds(rd(nr[0]), nr[0]); nr[0] += 1
                    for y in fill.get((n, k), []): emit(Z, y)
        def pre():
            need(1); need(2, 53)
            A.e(pollld)
            if res: A.e(f"s_add_u32 s64, s66, {H2}\nbuffer_load_dwordx4 {vr(RES,4)}, v{L16}, {WSRD}, s64 offen")
            for x in range(4): A.e(f"v_add_u32 v{VRD+x}, s55, v{VRB+x}")
            A.e("s_add_u32 s55, s55, 32768\ns_and_b32 s55, s55, 0x1ffff")
            tst(A, 0)
        def head(w, fill={}, early=[]):
            Z = Sched(A)
            for i in range(KS):
                if w: A.e(f"s_waitcnt vmcnt({KS-1-i+NS+ex})")
                Z.lds(rd(i), i)
                if i == KS - 1: A.e("s_barrier")
                if i == 2:
                    for x in early: A.e(x)
                if i >= 2:
                    Z.need(i - 2)
                    for k, x in enumerate(mm(i - 2)):
                        A.e(x)
                        for y in fill.get((i - 2, k), []): emit(Z, y)
            nr[0] = KS
            return Z
        fill = {}
        if stats:
            sw = f"ds_write_b64 v{VSW}, {vr(S1,2)}"
            fill[(KS + 3, 0)] = [f"v_cndmask_b32 v{S1+1}, v{S2}, v{S2+1}, s[74:75]"]; fill[(KS + 3, 1)] = [f"v_cndmask_b32 v{S1+1}, v{S1+1}, v{S2+2}, s[76:77]"]
            fill[(KS + 4, 0)] = [f"v_cndmask_b32 v{S1+1}, v{S1+1}, v{S2+3}, s[78:79]"]; fill[(KS + 4, 1)] = [sw]
            srd_ = [f"ds_read_b64 {vr(SP+2*w,2)}, v{VSR} offset:{w*512}" for w in range(4)]
            fill[(KS + 8, 1)] = ["need " + sw, "s_barrier"] + srd_[:2]; fill[(KS + 9, 0)] = srd_[2:]
            sf = ["need " + srd_[3]] + grab(lambda: stats_fin(A, SP, TM + 21, TM + 22, 1))
            for k, x in enumerate(sf): fill.setdefault((KS + 13 + k // 2, k & 1), []).append(x)
            assert KS + 13 + len(sf) // 2 < NF
        cpy = [f"v_fma_f32 v{FIN+i}, v{CS+i}, v{TM+21}, v{ACC+i}" for i in range(8)]
        def gelu(a):
            o = [f"v_mul_f32 v{a+i}, v{a+i}, v{TM+22}" for i in range(8)]
            for op in ("v_mul_f32 v{t}, v{v}, v{v}", "v_fma_f32 v{t}, v{t}, s81, v%d" % (TM + 23), "v_mul_f32 v{t}, v{t}, v{v}"): o += [op.format(t=TM + i, v=a + i) for i in range(8)]
            e = [f"v_exp_f32 v{TM+i}, v{TM+i}" for i in range(8)]; p = [f"v_add_f32 v{TM+i}, 1.0, v{TM+i}" for i in range(8)]
            r = [f"v_rcp_f32 v{TM+i}, v{TM+i}" for i in range(8)]; m = [f"v_mul_f32 v{a+i}, v{TM+i}, v{a+i}" for i in range(8)]
            o += e[:2] + [x for i in range(2, 8) for x in (e[i], p[i - 2])] + p[6:] + r[:2] + [x for i in range(2, 8) for x in (r[i], m[i - 2])] + m[6:]
            return o
        def outst(a): return [f"v_cvt_pk_bf16_f32 v{TM+8+i}, v{a+2*i}, v{a+2*i+1}" for i in range(4)] + [f"s_add_u32 s64, s66, {outb}\nbuffer_store_dwordx4 {vr(TM+8,4)}, v{L16}, {WSRD}, s64 offen sc1\ns_add_u32 s66, s66, {ost}"]
        if fin: fres()
        need(0); poll_loop(A, pollld, VF, 71)
        A.label(lag); pc(0)
        for x in loads(): A.e(x)
        for _ in range(NS): A.e(f"buffer_load_dword v{VT}, off, {WSRD}, s69")
        A.e("s_mov_b32 s72, 1\ns_mov_b32 s54, 0")
        def first_i(main):
            tA = A.newlabel("tA"); tC = A.newlabel("tC"); c2 = A.newlabel("c2"); tB = A.newlabel("tB")
            A.label(top); pre()
            A.e(f"s_cmp_lg_u32 s72, 2\ns_cbranch_scc1 {tC}"); A.label(tA)
            Z = head(False); A.label(c2)
            def dH():
                n0 = nr[0]
                A.label(tC); A.e(f"s_cmp_eq_u32 s72, 1\ns_cbranch_scc1 {tB}\ns_waitcnt vmcnt({KS+NS+ex})\ns_branch {tA}")
                A.label(tB); pc(4); head(True)
                if flg and F.FH: A.e(f"s_waitcnt vmcnt({ex + (NS - 1 if fin else 0)})"); fl()
                A.e(f"s_branch {c2}"); nr[0] = n0
            tail.append(dH)
            tst(A, 1)
            run(Z, KS - 2, Q1, fill)
            A.e(f"s_waitcnt vmcnt({ex-1})"); fl()
            if wv: A.e("s_mov_b32 s57, 0")
            return Z
        Z = first_i(True)
        if wv:
            A.e(f"s_branch {cont}")
            A.label(topW); pc(3); pre()
            G = gelu(FIN) + outst(FIN)
            fW = spread(fill, G[F.WE:], 0, F.WB, Q1)
            Z = head(False, fW, cpy + G[:F.WE]); tst(A, 1); run(Z, KS - 2, Q1, fW)
            A.e("s_waitcnt vmcnt(1)\ns_mov_b32 s57, 1" if not F.XW & 1 else "s_mov_b32 s57, 1")
        A.label(cont)
        tst(A, 2)
        if fin: f1()
        vD = A.newlabel("vD"); bk = A.newlabel("bk")
        A.e(f"s_cmp_eq_u32 s54, 0\ns_cselect_b32 s64, s71, s53\nv_cmp_gt_u32 vcc, s64, v{VF}\ns_cbranch_vccnz {vN}\ns_mov_b32 s72, 2\ns_cbranch_scc1 {vD}"); A.label(bk)
        def dD():
            A.label(vD); A.e(f"s_mov_b32 s72, 1\nv_cmp_gt_u32 vcc, s53, v{VF}\ns_cbranch_vccnz {bk}")
            pc(1)
            for x in loads(): A.e(x)
            A.e(f"s_mov_b32 s72, 3\ns_mov_b32 s54, 1\ns_branch {bk}")
        tail.append(dD)
        n0 = nr[0]; Z2 = Z.copy()
        def burst(lab, back, post=""):
            def d():
                A.label(lab); pc(7)
                for x in loads(): A.e(x)
                A.e(post); A.e(f"s_branch {back}")
            tail.append(d)
        def second(Z, R):
            f = {k: list(v) for k, v in fill.items()}
            if R:
                L_ = loads(); ns = 2 * (Q2 - Q1); i = 0
                for x in L_:
                    sl_ = min(ns - 1, i * ns // KS); f.setdefault((Q1 + sl_ // 2, sl_ & 1), []).append(x)
                    if x.startswith("buffer"): i += 1
            else: A.e(pollld)
            run(Z, Q1, Q2, f)
            tst(A, 3)
            if R and (fin or wv) and not (wv and F.XW & 2):
                w2_ = A.newlabel("w2"); w3_ = A.newlabel("w3")
                A.e(f"s_cmp_eq_u32 s72, 3\ns_cbranch_scc1 {w2_}\ns_waitcnt vmcnt({KS})"); A.label(w3_)
                def d(): A.label(w2_); A.e(f"s_waitcnt vmcnt({2*KS})\ns_branch {w3_}")
                tail.append(d)
            if not R: A.e("s_waitcnt vmcnt(0)")
            if wv:
                sk = A.newlabel("sk"); A.e(f"s_cmp_eq_u32 s57, 0\ns_cbranch_scc1 {sk}"); fl(); A.label(sk)
            if not R:
                b1 = A.newlabel("bu"); b2 = A.newlabel("bb")
                A.e(f"s_cmp_eq_u32 s54, 0\ns_cselect_b32 s64, s71, s53\nv_cmp_gt_u32 vcc, s64, v{VF}\ns_cbranch_vccz {b1}\ns_lshl_b32 s72, s54, 1\ns_mov_b32 s54, 0")
                A.e(pollld); A.label(b2)
                burst(b1, b2, "s_add_u32 s72, s54, 1")
            f = fill
            if fin:
                sk = A.newlabel("sk"); A.e(f"s_cmp_eq_u32 s77, 0\ns_cbranch_scc1 {sk}"); f2chk(); A.label(sk)
                f = spread(fill, f2rest(), Q2, F.FB, NF)
            run(Z, Q2, NF, f)
            if res and R: A.e(f"s_waitcnt vmcnt({KS})")
            if wv and R and F.XW: A.e(f"s_waitcnt vmcnt({KS+3})")
        second(Z, True)
        A.label(join)
        def dN():
            A.label(vN); pc(2); nr[0] = n0
            second(Z2, False)
            if not fin:
                b1 = A.newlabel("bu")
                A.e(f"s_cmp_lg_u32 s72, 0\ns_cbranch_scc1 {join}\ns_waitcnt vmcnt(0)\nv_cmp_gt_u32 vcc, s71, v{VF}\ns_cbranch_vccz {b1}")
                A.e(pollld)
                burst(b1, join, "s_mov_b32 s72, 1")
            A.e(f"s_branch {join}")
        tail.append(dN)
        tst(A, 4)
        a = ACC
        def prof():
            if F.PROF:
                tst(A, 5); tacc(A, 6)
                if not fin: stamp2(A, ST)
        if fin:
            if F.PROF:
                sk = A.newlabel("sk"); A.e(f"s_cmp_eq_u32 s77, 0\ns_cbranch_scc1 {sk}"); stamp2(A, ST, "s76", 1); A.label(sk); A.e("s_nop 4")
            for i in range(8): A.e(f"v_mov_b32 v{FIN+i}, v{a+i}")
            A.e("s_mov_b32 s77, 1")
        elif send:
            A.e("s_add_u32 s64, s74, s75")
            both(lambda f_: [A.e(f"buffer_store_dwordx4 {vr(a+4*t,4)}, v{L16}, {WSRD}, s64 offen offset:{t*1024} {f_}") for t in range(2)])
            A.e(f"s_add_u32 s75, s75, 6144\ns_cmp_eq_u32 s75, {4*6144}\ns_cselect_b32 s75, 0, s75")
        elif stats:
            if wv:
                A.e(f"s_cmp_lg_u32 s72, 2\ns_cbranch_scc1 {epiI}"); prof(); A.e(f"s_add_u32 s60, s60, 1\ns_branch {topW}"); A.label(epiI); A.e("s_nop 3")
            for x in cpy + gelu(FIN) + outst(FIN): A.e(x)
        else:
            unpack(A, RES, TM, 4)
            for i in range(8): A.e(f"v_add_f32 v{a+i}, v{a+i}, v{TM+i}")
            for x in outst(a): A.e(x)
        prof()
        A.e(f"s_add_u32 s60, s60, 1\ns_cmp_lg_u32 s72, 0\ns_cbranch_scc1 {top}")
        if fin:
            l2 = A.newlabel("l2")
            f1(); A.e("s_waitcnt vmcnt(6)"); fl()
            A.e(f"v_cmp_gt_u32 vcc, s71, v{VF}\ns_cbranch_vccnz {l2}")
            pc(0)
            for x in loads(): A.e(x)
            A.e(f"s_waitcnt vmcnt({KS + flg})")
            def fin_now():
                f2chk()
                for x in f2rest(): A.e(x)
                if F.PROF: stamp2(A, ST, "s76", 1)
                A.e("s_mov_b32 s77, 0")
            fin_now()
            A.e(f"s_mov_b32 s72, 1\ns_branch {top}")
            A.label(l2)
            A.e(f"s_waitcnt vmcnt({0 + flg})"); fin_now()
            if flg: A.e(f"s_waitcnt vmcnt({NS-1})")
        else:
            A.e(f"s_waitcnt vmcnt({NS})\nv_cmp_gt_u32 vcc, s71, v{VF}\ns_cbranch_vccz {lag}")
            if flg: A.e("s_waitcnt vmcnt(0)")
        fl()
        A.e(f"s_cmp_ge_u32 s60, {NU}\ns_cbranch_scc1 {done}")
        pc(5); poll_loop(A, pollld, VF, 71)
        A.e(f"s_branch {lag}")
    if F.PROF:
        for r in ST: A.e(f"v_mov_b32 v{r}, 0")
        A.e(f"s_memrealtime s[84:85]\ns_waitcnt lgkmcnt(0)\nv_writelane_b32 v{ST[2]}, s84, 0\nv_writelane_b32 v{ST[2]}, s86, 1")
        if xch:
            _f2 = f2
            def f2():
                _f2(); stamp2(A, ST, "s76", 1)
    tinit(A)
    lp_ = loop2 if F.NL else loop
    if xch:
        lf = A.newlabel("lfin")
        A.e(f"s_cmp_eq_u32 s50, s52\ns_cbranch_scc1 {lf}")
        lp_(False); A.label(lf); lp_(True)
    else: lp_(False)
    while tail: tail.pop(0)()
    A.label(done)
    tout(A, ST[2]); stamp_out(A, ST)
    A.e("s_endpgm")

class VMQ:
    def __init__(self, A, hist): self.A = A; self.q = list(hist); self.done = -1
    def op(self, ins, tag): self.A.e(ins); self.q.append(tag)
    def need(self, tag):
        i = len(self.q) - 1 - self.q[::-1].index(tag)
        if i > self.done:
            n = len(self.q) - 1 - i; assert n < 64
            self.A.e(f"s_waitcnt vmcnt({n})"); self.done = i
def gemm3_role(A, L, kind):
    KS = 7 if kind == "w4" else 8
    stats = kind in ("w1", "w3"); xch = kind in ("wo", "w4"); res = kind == "w2"
    L16, VFA, VA, VW, VR_, ONE, VF, VT, VO, VSW, VSR, VX, VOX = 0, 2, 3, 4, 7, 12, 16, 17, 18, 19, 20, 21, 22
    ACC, AF, RD, FIN, PKT, CS, RES, TM, M1, S1, S2, SP = 32, 64, 96, 120, 128, 152, 160, 168, 204, 208, 212, 216; ST = (200, 201, 202)
    NF = 4 * KS; H = KS - F.H3; OWN = ACC + 24
    wreg = lambda n, t, k=4, o=0: ar((n * 2 + t) * 4 + o, k)
    done = A.newlabel("done"); tail = []
    lanes(A)
    arg, ld, nbytes = dict(wo=("Wo", 2048, 8 * MB), w1=("w1", 2048, 2 * MB), w2=("w2", 2048, 2 * MB), w3=("w3", 7168, 7 * MB), w4=("w4", 2048, 7 * MB))[kind]
    ldptr(A, 4, arg)
    if xch: ldptr(A, 6, "x" if kind == "wo" else "out"); A.e("s_lshr_b32 s52, s59, 3\ns_and_b32 s53, s59, 7")
    else: A.e("s_mov_b32 s52, 0\ns_mov_b32 s53, s59")
    A.e(f"s_lshl_b32 s64, s52, 2\ns_add_u32 s64, s64, s50\ns_mul_i32 s54, s64, {KS*32*ld}\ns_lshl_b32 s64, s53, 8\ns_add_u32 s54, s54, s64\ns_waitcnt lgkmcnt(0)")
    A.srd(28, 4, nbytes)
    if xch: A.srd(24, 6, S * D_ * 2)
    def rdw(x):
        def f(buf):
            for kk in range(KS):
                for t in range(2):
                    for h in range(2): A.e(f"ds_read_b64_tr_b16 {wreg(x*KS+kk,t,2,2*h)}, v17 offset:{buf + (32*kk + 4*h)*64 + 8*t}")
                if kk % 3 == 2: A.e("s_waitcnt lgkmcnt(0)")
        return f
    if kind == "w4" and F.W4G: cpoll(A, L, {C_M2: 63}, sl=F.VSL2)
    stage_weights(A, [(28, f"s_xor_b32 s62, s50, {XO[x]}\ns_lshl_b32 s62, s62, 6\ns_add_u32 s62, s62, s54", KS * 32, rdw(x)) for x in range(4)], ld, None, F.NFL2)
    verify(A, L, False, "mod")
    inb, ust = dict(wo=(OB, 131072), w1=(H2, 32768), w2=(G1, 32768), w3=(Y1, 32768), w4=(G3, 112 * 1024))[kind]
    A.e(f"""
    s_barrier
    v_lshlrev_b32 v{L16}, 4, v1
    s_mov_b32 s60, 0
    v_mov_b32 v{VA}, v{L16}
    s_mov_b32 s73, 0xffff0000
    s_lshl_b32 s64, s52, 2
    s_add_u32 s64, s64, s50
    s_mul_i32 s61, s64, {KS*1024}
    s_add_u32 s61, s61, {inb}
    s_lshl_b32 s68, s64, 8
    s_add_u32 s68, s68, {dict(wo=F_ATT, w1=F_LN, w2=F_W1, w3=F_W2, w4=F_W3)[kind]}
    s_lshl_b32 s83, s53, 2
    s_add_u32 s83, s83, s50            ; output fragment index
    s_mul_i32 s64, s50, 6144
    v_add_u32 v{VR_}, s64, v{L16}
    s_mov_b32 s63, 0""")
    for p in range(3): A.e(f"s_xor_b32 s64, s50, {XO[p]}\ns_mul_i32 s64, s64, 6144\ns_add_u32 s64, s64, {p*2048}\nv_add_u32 v{VW+p}, s64, v{L16}")
    nfl = dict(wo=4, w1=4, w2=8, w3=8, w4=7)[kind]
    A.e(f"v_min_u32 v{VFA}, {nfl-1}, v1\nv_lshlrev_b32 v{VFA}, 2, v{VFA}")
    if res:
        A.e(f"""
        s_lshr_b32 s64, s50, 1
        s_add_u32 s64, s64, 1
        s_sub_u32 s65, 0, s64
        s_bitcmp1_b32 s50, 0
        s_cselect_b32 s64, s64, s65
        s_add_u32 s64, s64, 16
        v_add_u32 v26, s64, v21
        v_lshrrev_b32 v27, 4, v26
        v_and_b32 v26, 15, v26
        v_lshl_add_u32 v26, v22, 4, v26
        v_lshlrev_b32 v26, 4, v26
        v_lshl_add_u32 v{VA}, v27, 15, v26
        s_sub_u32 s61, s61, 32768""")
    A.e("s_add_u32 s62, s61, 4096\ns_lshl_b32 s66, s83, 10")
    if kind == "w3":
        A.e(f"s_mul_i32 s65, s83, 147\ns_lshr_b32 s65, s65, 10\ns_mul_i32 s69, s65, {256 - 28}\ns_lshl_b32 s64, s83, 2\ns_add_u32 s69, s69, s64\ns_add_u32 s69, s69, {F_W3}")
    else:
        A.e(f"s_lshr_b32 s65, s83, 3\ns_lshl_b32 s65, s65, 8\ns_and_b32 s64, s83, 7\ns_lshl_b32 s64, s64, 2\ns_add_u32 s69, s64, s65\ns_add_u32 s69, s69, {dict(wo=F_WO, w1=F_W1, w2=F_W2, w4=F_W4)[kind]}")
    if res: A.e(f"s_add_u32 s82, s66, {H2}")
    outb, ost = dict(wo=(X1, 32768), w1=(G1, 32768), w2=(Y1, 32768), w3=(G3, 112 * 1024), w4=(0, 32768))[kind]
    if xch:
        A.e(f"""
        s_lshl_b32 s64, s53, 2
        s_add_u32 s64, s64, s50
        s_mul_i32 s74, s64, {4*6144}
        s_xor_b32 s64, s50, s52
        s_sub_u32 s64, s64, 1
        s_max_i32 s64, s64, 0
        s_lshl_b32 s64, s64, 11
        s_add_u32 s74, s74, s64
        s_add_u32 s74, s74, {XP + (0 if kind == 'wo' else 768*KB)}
        s_mov_b32 s75, 0
        s_mov_b32 s77, 0                   ; pending
        v_lshlrev_b32 v26, 11, v21
        v_lshl_add_u32 v26, v22, 4, v26
        s_lshl_b32 s64, s83, 6
        v_add_u32 v{VO}, s64, v26
        v_lshlrev_b32 v26, 5, v22
        s_lshl_b32 s64, s83, 7
        s_add_u32 s64, s64, {MOD + (2 if kind == 'wo' else 5)*4096}""")
        for g in range(4):
            for i in range(2): A.e(f"buffer_load_dwordx4 {vr((CS if g == 0 else PKT + 8*(g-1)) + 4*i, 4)}, v26, {WSRD}, s64 offen offset:{16*i} sc1")
            A.e(f"s_add_u32 s64, s64, {6144*4}")
        A.e("s_waitcnt vmcnt(0)")
        sum4(A, CS, PKT, 8)
        for i in range(4): A.e(f"v_mov_b32 v{M1+i}, -1")
    def grab(f):
        i0 = len(A.lines); f(); o = [x.strip() for x in A.lines[i0:]]; del A.lines[i0:]; return o
    wr = lambda p, t: f"ds_write_b128 v{VW+p}, {vr(ACC+(2*p+t)*4,4)} offset:{t*1024}"
    rds = [f"ds_read_b128 {vr(RD+4*i,4)}, v{VR_} offset:{i*1024}" for i in range(6)]
    def adds(dst):
        o = []
        for p in range(3):
            for t in range(2):
                o.append("need " + rds[2 * p + t])
                o += [f"v_pk_add_f32 {vr(dst+4*t+i,2)}, {vr((OWN if p == 0 else dst)+4*t+i,2)}, {vr(RD+8*p+4*t+i,2)}" for i in (0, 2)]
        return o
    togw = [f"v_xor_b32 v{r}, 0x8000, v{r}" for r in [VW, VW + 1, VW + 2] + ([VSW] if stats else [])]
    togr = [f"v_xor_b32 v{r}, 0x8000, v{r}" for r in [VR_] + ([VSR] if stats else [])]
    if stats:
        A.e(f"""
        s_lshl_b32 s64, s50, 9
        s_add_u32 s64, s64, 24576
        v_lshlrev_b32 v26, 3, v1
        v_add_u32 v{VSW}, s64, v26
        v_lshl_add_u32 v26, v23, 4, v21
        v_lshlrev_b32 v26, 3, v26
        v_add_u32 v{VSR}, 24576, v26
        s_mov_b32 s74, 0x22222222
        s_mov_b32 s75, 0x22222222
        s_mov_b32 s76, 0x44444444
        s_mov_b32 s77, 0x44444444
        s_mov_b32 s78, 0x88888888
        s_mov_b32 s79, 0x88888888
        s_mov_b32 s80, {f2u(GELU_C0):#x}
        s_mov_b32 s81, {f2u(GELU_C1):#x}
        v_mov_b32 v{TM+23}, s80""")
        for i in range(4): A.e(f"v_mov_b32 v{ONE+i}, 0x3f803f80")
        for ks in range(KS):
            for p in range(4):
                for t in range(2): a = vr(ACC + (2 * p + t) * 4, 4); A.e(f"{MF} {a}, {wreg(p*KS+ks,t)}, {vr(ONE,4)}, {a if ks else 0}")
        for p in range(3):
            for t in range(2): A.e(wr(p, t))
        A.e("s_waitcnt lgkmcnt(0)\ns_barrier")
        for x in rds: A.e(x)
        A.e("s_waitcnt lgkmcnt(0)")
        for x in adds(CS) + togw + togr:
            if not x.startswith("need"): A.e(x)
    ldA = lambda i: f"buffer_load_dwordx4 {vr(AF+4*i,4)}, v{VA}, {WSRD}, s{61+(i>>2)} offen offset:{(i&3)*1024}"
    if F.FREE == 2: ust = 0
    adv = f"s_add_u32 s61, s61, {ust}\ns_add_u32 s62, s62, {ust}"
    pollld = f"buffer_load_dword v{VF}, v{VFA}, {WSRD}, s68 offen sc1"
    dummy = f"buffer_load_dword v{VT+6}, off, {WSRD}, s69"
    if F.FREE == 3: ldA = lambda i: dummy
    if F.FREE == 4: ldA = lambda i: dummy; pollld = dummy; ost = 0
    def need(add, d):
        if F.FREE: return f"s_cmp_ge_u32 s60, {NU-add}\ns_cselect_b32 s{d}, -1, 0"
        o = f"s_add_u32 s{d}, s60, {add+1}"
        if res: o += f"\ns_and_b32 s64, s50, 1\ns_add_u32 s{d}, s{d}, s64\ns_min_u32 s{d}, s{d}, {NU}\ns_cmp_ge_u32 s60, {NU-add}\ns_cselect_b32 s{d}, -1, s{d}"
        return o
    def both(f):
        l1 = A.newlabel("b1"); l2 = A.newlabel("b2")
        A.e(f"s_cmp_eq_u32 s56, 1\ns_cbranch_scc1 {l1}"); f("")
        A.label(l2)
        def d(): A.label(l1); A.e("s_nop 7"); f("sc1"); A.e(f"s_branch {l2}")
        tail.append(d)
    def pc(k):
        if F.PROF >= 2: A.e(f"s_add_u32 s{98 + k//4}, s{98 + k//4}, {1 << (8 * (k & 3))}")
    f1s = ["s_add_u32 s84, s74, s75\ns_add_u32 s85, s84, 4096"] + [f"vm:pk:buffer_load_dwordx4 {vr(PKT+4*i,4)}, v{L16}, {WSRD}, s{84+(i>>2)} offen offset:{(i&3)*1024} sc1" for i in range(6)]
    if kind == "wo": fres = [f"vm:rs:s_and_b32 s64, s66, 0xffff8000\nbuffer_load_dwordx4 {vr(RES,4)}, v{VO}, s[24:27], s64 offen"]
    else: fres = [f"vm:rs:s_add_u32 s64, s66, {b}\nbuffer_load_dwordx4 {vr(RES+4*i,4)}, v{L16}, {WSRD}, s64 offen" for i, b in enumerate((X1, Y1))]
    plain = lambda x: x.split(":", 2)[2] if x.startswith("vm") else x
    def f2chk():
        ck = A.newlabel("ck"); rt = A.newlabel("rt"); go = A.newlabel("go")
        A.e(f"s_cmp_eq_u32 s77, 0\ns_cbranch_scc1 {go}")
        A.label(ck)
        for i in range(0, 8, 2): A.e(f"v_pk_add_f32 {vr(PKT+i,2)}, {vr(PKT+i,2)}, {vr(PKT+8+i,2)}\nv_pk_add_f32 {vr(PKT+16+i,2)}, {vr(PKT+16+i,2)}, {vr(FIN+i,2)}")
        for i in range(0, 8, 2): A.e(f"v_pk_add_f32 {vr(PKT+i,2)}, {vr(PKT+i,2)}, {vr(PKT+16+i,2)}")
        A.e(f"v_pk_add_f32 {vr(TM,2)}, {vr(PKT,2)}, {vr(PKT+2,2)}\nv_pk_add_f32 {vr(TM+2,2)}, {vr(PKT+4,2)}, {vr(PKT+6,2)}\nv_pk_add_f32 {vr(TM,2)}, {vr(TM,2)}, {vr(TM+2,2)}")
        A.e(f"v_cmp_u_f32 vcc, v{TM}, v{TM+1}\ns_cbranch_vccnz {rt}")
        A.label(go)
        def d():
            A.label(rt); pc(6)
            A.e(f"s_sub_u32 s90, s90, 1\ns_cmp_gt_i32 s90, 0\ns_cbranch_scc0 {go}")
            for x in f1s: A.e(plain(x))
            A.e(f"s_waitcnt vmcnt(0)\ns_branch {ck}")
        tail.append(d)
    def f2rest():
        o = ["s_cmp_eq_u32 s77, 0\ns_cselect_b32 s57, 2.0, 0", f"v_or_b32 v{VX}, s57, v{L16}"] + ([f"v_or_b32 v{VOX}, s57, v{VO}"] if kind == "w4" else [])
        o += grab(lambda: unpack(A, RES, TM, 4))
        if kind == "w4":
            o += grab(lambda: unpack(A, RES + 4, TM + 8, 4))
            o += [f"v_pk_add_f32 {vr(PKT+i,2)}, {vr(PKT+i,2)}, {vr(TM+8+i,2)}" for i in range(0, 8, 2)]
        o += [f"v_fma_f32 v{TM+i}, v{PKT+i}, v{CS+i}, v{TM+i}" for i in range(8)]
        o += [f"v_cvt_pk_bf16_f32 v{TM+8+i}, v{TM+2*i}, v{TM+2*i+1}" for i in range(4)]
        if kind == "wo": o += [f"vm:out:s_add_u32 s64, s66, {X1}\nbuffer_store_dwordx4 {vr(TM+8,4)}, v{VX}, {WSRD}, s64 offen sc1"]
        else: o += [f"vm:out:s_and_b32 s64, s66, 0xffff8000\nbuffer_store_dwordx4 {vr(TM+8,4)}, v{VOX}, s[24:27], s64 offen"]
        for h in range(3):
            def rs(fl, h=h):
                for i in (2 * h, 2 * h + 1): A.e(f"buffer_store_dwordx4 {vr(M1,4)}, v{VX}, {WSRD}, s{84+(i>>2)} offen offset:{(i&3)*1024} {fl}")
            o.append("vm2:rz:" + "\n".join(grab(lambda: both(rs))))
        o += [f"s_mul_i32 s64, s77, {ost}\ns_add_u32 s66, s66, s64\ns_mul_i32 s64, s77, 6144\ns_add_u32 s75, s75, s64", f"s_cmp_eq_u32 s75, {4*6144}\ns_cselect_b32 s75, 0, s75\ns_add_u32 s63, s63, s77"]
        if F.PROF:
            sk = A.newlabel("sk"); o.append("\n".join([f"s_cmp_eq_u32 s77, 0\ns_cbranch_scc1 {sk}"] + grab(lambda: stamp2(A, ST, "s63", 1, 92 if F.PROF == 1 else 84)) + [f"{sk}:"]))
        return o + ["s_mov_b32 s77, 0"] + fres
    def cost(x):
        x = plain(x)
        if x.startswith(("v_exp", "v_rcp", "v_rsq")): return F.TC
        if "buffer_" in x: return 8 * x.count("buffer_")
        if x.startswith("ds_write"): return 8
        if x.startswith(("need", "vneed")): return 2
        return 4 if x.startswith(("v_", "ds_")) else 2 * (x.count("\n") + 1)
    M = []; first = {}; last = {}; fin_ = {}
    def mf(p, t, ks):
        a = vr(ACC + (2 * p + t) * 4, 4); first.setdefault(ks, len(M)); last[ks] = len(M); fin_[(p, t)] = len(M)
        M.append(f"{MF} {a}, {wreg(p*KS+ks,t)}, {vr(AF+4*ks,4)}, {a if ks else 0}")
    def ms(ks):
        if not stats: return
        x = vr(AF + 4 * ks, 4); first.setdefault(ks, len(M)); last[ks] = len(M) + 1; fin_["s"] = len(M) + 1
        M.append(f"{MF} {vr(S1,4)}, {vr(ONE,4)}, {x}, {vr(S1,4) if ks else 0}"); M.append(f"{MF} {vr(S2,4)}, {x}, {x}, {vr(S2,4) if ks else 0}")
    for ks in range(F.OD):
        for p in range(3): mf(p, 0, ks); mf(p, 1, ks)
        ms(ks)
    own0 = len(M)
    for ks in range(F.OD): mf(3, 0, ks); mf(3, 1, ks)
    for ks in range(F.OD, H):
        for p in range(4): mf(p, 0, ks); mf(p, 1, ks)
        ms(ks)
    for ks in range(H, KS): ms(ks)
    for p in range(4):
        for ks in range(H, KS): mf(p, 0, ks); mf(p, 1, ks)
    NM = len(M)
    def loop(fin):
        send = xch and not fin
        NS = 0 if fin else (2 if send else 1)
        flg = (not send) and kind != "w4"
        flag = lambda sv: "vm:fl:" + "\n".join(grab(lambda: flag_store(A, VT, sv, 69)))
        sw = f"ds_write_b64 v{VSW}, {vr(S1,2)}"
        srd_ = [f"ds_read_b64 {vr(SP+2*w,2)}, v{VSR} offset:{w*512}" for w in range(4)]
        def post():
            r = rds + (srd_ if stats else []) + togr
            ad = adds(FIN); o = ad[6:]
            if fin: o += ["s_mov_b32 s77, 1"]
            elif send:
                t_ = grab(lambda: both(lambda f_: [A.e(f"buffer_store_dwordx4 {vr(FIN+4*t,4)}, v{L16}, {WSRD}, s64 offen offset:{t*1024} {f_}") for t in range(2)]))
                o += ["vm2:out:" + "\n".join(["s_add_u32 s64, s74, s75"] + t_), f"s_add_u32 s75, s75, 6144\ns_cmp_eq_u32 s75, {4*6144}\ns_cselect_b32 s75, 0, s75"]
            else:
                a = FIN
                if stats:
                    o = ["need " + srd_[3]] + grab(lambda: stats_fin(A, SP, TM + 21, TM + 22, 1)) + o
                    o += [f"v_fma_f32 v{a+i}, v{CS+i}, v{TM+21}, v{a+i}" for i in range(8)] + [f"v_mul_f32 v{a+i}, v{a+i}, v{TM+22}" for i in range(8)]
                    for op in ("v_mul_f32 v{t}, v{v}, v{v}", "v_fma_f32 v{t}, v{t}, s81, v%d" % (TM + 23), "v_mul_f32 v{t}, v{t}, v{v}"): o += [op.format(t=TM + i, v=a + i) for i in range(8)]
                    e = [f"v_exp_f32 v{TM+i}, v{TM+i}" for i in range(8)]; p = [f"v_add_f32 v{TM+i}, 1.0, v{TM+i}" for i in range(8)]
                    rc = [f"v_rcp_f32 v{TM+i}, v{TM+i}" for i in range(8)]; m = [f"v_mul_f32 v{a+i}, v{TM+i}, v{a+i}" for i in range(8)]
                    o += e[:2] + [x for i in range(2, 8) for x in (e[i], p[i - 2])] + p[6:] + rc[:2] + [x for i in range(2, 8) for x in (rc[i], m[i - 2])] + m[6:]
                else:
                    o = ["vneed res"] + grab(lambda: unpack(A, RES, TM, 4)) + o + [f"v_pk_add_f32 {vr(a+i,2)}, {vr(a+i,2)}, {vr(TM+i,2)}" for i in range(0, 8, 2)]
                o += [f"v_cvt_pk_bf16_f32 v{TM+8+i}, v{a+2*i}, v{a+2*i+1}" for i in range(4)]
                o += [f"vm:out:s_add_u32 s64, s66, {outb}\nbuffer_store_dwordx4 {vr(TM+8,4)}, v{L16}, {WSRD}, s64 offen sc1", f"s_add_u32 s66, s66, {ost}\ns_add_u32 s63, s63, 1"]
                if F.PROF: o.append("\n".join(grab(lambda: stamp2(A, ST, "s63", 1, 92 if F.PROF == 1 else 84))))
            if send and F.PROF: o.append("\n".join(grab(lambda: stamp2(A, ST, "s60", 1, 92 if F.PROF == 1 else 84))))
            return r, ad[:6], o
        def emit(Z, V, y):
            if y.startswith("ds_"): Z.lds(y, y)
            elif y.startswith("need "): Z.need(y[5:])
            elif y.startswith("vneed "): V.need(y[6:])
            elif y.startswith("vm:"): _, tg, x = y.split(":", 2); V.op(x, tg)
            elif y.startswith("vm2:"): _, tg, x = y.split(":", 2); V.op(x, tg); V.q.append(tg)
            elif y == "f2chk": f2chk()
            else: A.e(y)
        def plan(W, R):
            fill = {i: [] for i in range(NM)}; used = [0] * NM
            def put(i, *xs):
                for x in xs: fill[i].append(x); used[i] += cost(x)
            def spread(items, lo, hi, budget):
                while True:
                    i = lo; u = list(used); pos = []
                    for x in items:
                        while i < hi and u[i] and u[i] + cost(x) > budget: i += 1
                        if i >= hi: break
                        pos.append(i); u[i] += cost(x)
                    if len(pos) == len(items): break
                    budget += 2
                for i, x in zip(pos, items): put(i, x)
                return pos
            put(0, need(1, 71)); put(1, need(2, 53))
            if flg and not fin: put(2, "s_mov_b32 s57, s63")
            for p in range(3):
                for t in range(2): put(min(NM - 1, fin_[(p, 1)] + F.WD + t), wr(p, t))
            if stats:
                k = fin_["s"] + F.WD
                put(k, f"v_cndmask_b32 v{S1+1}, v{S2}, v{S2+1}, s[74:75]", f"v_cndmask_b32 v{S1+1}, v{S1+1}, v{S2+2}, s[76:77]"); put(k + 1, f"v_cndmask_b32 v{S1+1}, v{S1+1}, v{S2+3}, s[78:79]"); put(k + 2, sw)
            if R:
                for ks in range(KS): put(last[ks], f"vm:L{ks}:" + ldA(ks))
                put(NM - 1, adv)
            put(NM * (F.PPR if R else F.PPN) // 32, "vm:poll:" + pollld)
            if flg and not fin: put(F.FP, "vneed out", flag("s57"))
            so = None
            if W or R:
                n_t = len(tail); r, a0, o = post()
                if not W: del tail[n_t:]
                keep = ({k: list(v) for k, v in fill.items()}, list(used))
                pos = spread(o, spread(a0, F.A0, own0, 8)[-1], NM, F.WB3)
                so = [i for i, x in zip(pos, o) if x.startswith(("vm:out", "vm2:out"))]
                if not W:
                    fill, used = keep
                    for i in so:
                        for _ in range(NS): put(i, "vm:out:" + dummy)
                elif flg and not fin and so[0] + F.FD < NM: put(NM - 1 if R else so[0] + F.FD, "vneed out", flag("s63"))
                if not W and flg and not fin and so[0] + F.FD < NM: put(NM - 1, "vm:fl:" + dummy)
            if res: put(max(F.FP + 1, (so[0] + 1) if so else 0, 26), f"vm:res:buffer_load_dwordx4 {vr(RES,4)}, v{L16}, {WSRD}, s82 offen\ns_add_u32 s82, s82, 32768")
            if fin:
                q1 = NM * F.Q1 // 64; q2 = NM - F.Q2R if R else q1 + F.Q2N
                spread(f1s, q1, q1 + 6, 8)
                put(q2, "vneed pk")
                if flg: put(q2, flag("s63"))
                put(q2, "f2chk")
                spread(f2rest(), q2 + 1, NM, 8)
            spread(togw, NM - 1, NM, 64)
            return fill
        def vseq(fill):
            q = []
            for i in range(NM):
                for x in fill[i]:
                    if x.startswith("vm"): q += [x.split(":")[1]] * (2 if x.startswith("vm2:") else 1)
            return q
        n_t = len(tail); histR = vseq(plan(True, True)); del tail[n_t:]
        histB = [f"L{i}" for i in range(KS)] + ["out"] * NS
        def body(W, R):
            fill = plan(W, R)
            if R: assert vseq(fill) == histR, (vseq(fill), histR)
            Z = Sched(A); V = VMQ(A, histR if W else histB)
            if W:
                for x in rds + (srd_ if stats else []) + togr: emit(Z, V, x)
            tst(A, 0)
            fi = {v: k for k, v in first.items()}
            for i, m in enumerate(M):
                if i in fi: V.need(f"L{fi[i]}")
                if i == 16: tst(A, 1)
                if i == NM // 2: tst(A, 2)
                A.e(m)
                for y in fill[i]: emit(Z, V, y)
            tst(A, 3)
            V.need("poll")
            A.e(f"v_cmp_gt_u32 vcc, s{53 if R else 71}, v{VF}\ns_add_u32 s60, s60, 1\ns_waitcnt lgkmcnt(0)\ns_barrier")
            if F.PROF >= 2: tst(A, 4); tst(A, 5); tacc(A, 6)
            if W and R and F.DROP:
                import re
                A.lines[i00:] = [x for x in A.lines[i00:] if not any(re.search(p, x) for p in F.DROP)]
            return V
        WR, WN, BR, BN, lag, dec, nb = [A.newlabel(x) for x in ("WR", "WN", "BR", "BN", "lag", "dec", "nb")]
        if fin:
            for x in fres: A.e(plain(x))
        A.e(need(0, 71)); A.e(need(1, 53))
        poll_loop(A, pollld, VF, 71)
        A.label(lag); pc(0)
        for i in range(KS): A.e(ldA(i))
        A.e(adv)
        for _ in range(NS): A.e(dummy)
        A.label(dec)
        A.e(f"v_cmp_gt_u32 vcc, s53, v{VF}\ns_cbranch_vccnz {BN}")
        A.label(BR); pc(4); body(False, True); A.e(f"s_cbranch_vccnz {WN}")
        A.label(WR); pc(3); body(True, True); A.e(f"s_cbranch_vccz {WR}")
        def ipost(V):
            Z = Sched(A); r, a0, o = post()
            k = len(o)
            if flg and not fin: k = [i for i, x in enumerate(o) if x.startswith("v_pk_add_f32")][7] + 1
            for x in r + a0 + o[:k]: emit(Z, V, x)
            if k < len(o) and "out" in V.q: V.need("out"); emit(Z, V, flag("s63"))
            for x in o[k:]: emit(Z, V, x)
        endN = A.newlabel("endN")
        A.label(WN); pc(2); VW_ = body(True, False); A.e(f"s_branch {endN}")
        A.label(BN); pc(1); VB_ = body(False, False)
        A.label(endN)
        qa, qb = VW_.q[VW_.done + 1:], VB_.q[VB_.done + 1:]
        def rem(tag): return min(len(q) - 1 - max(i for i, x in enumerate(q) if x == tag) for q in (qa, qb) if tag in q) if tag in qa + qb else None
        hist = []
        tg = sorted([(rem(t), t) for t in ("out", "res") if rem(t) is not None], reverse=True)
        for j, (n, t) in enumerate(tg): hist += [t] + ["x"] * (n - (tg[j + 1][0] + 1 if j + 1 < len(tg) else 0))
        def mk():
            V = VMQ(A, ["out", "res"] + hist); V.done = 1; return V
        A.e(f"s_cbranch_vccnz {nb}")
        pc(7); V = mk()
        for i in range(KS): V.op(ldA(i), f"L{i}")
        A.e(adv)
        ipost(V)
        A.e(f"s_branch {dec}")
        A.label(nb)
        V = mk()
        if not fin: V.op(pollld, "poll")
        ipost(V)
        Z = Sched(A)
        if fin:
            for x in f1s + ["vneed pk"] + ([flag("s63")] if flg else []) + ["f2chk", "vm:poll:" + pollld] + f2rest(): emit(Z, V, x)
            V.need("out" if flg else "poll")
        else:
            V.need("poll"); A.e(f"v_cmp_gt_u32 vcc, s71, v{VF}\ns_cbranch_vccz {lag}")
            if flg: V.need("out")
        if flg: emit(Z, V, flag("s63"))
        if fin: A.e(f"v_cmp_gt_u32 vcc, s71, v{VF}\ns_cbranch_vccz {lag}")
        A.e(f"s_cmp_ge_u32 s60, {NU}\ns_cbranch_scc1 {done}")
        pc(5); poll_loop(A, pollld, VF, 71)
        A.e(f"s_branch {lag}")
    if F.PROF:
        for r in ST: A.e(f"v_mov_b32 v{r}, 0")
        A.e(f"s_memrealtime s[84:85]\ns_waitcnt lgkmcnt(0)\nv_writelane_b32 v{ST[2]}, s84, 0\nv_writelane_b32 v{ST[2]}, s86, 1")
    tinit(A)
    i_loop = len(A.lines)
    if xch:
        lf = A.newlabel("lfin")
        A.e(f"s_cmp_eq_u32 s50, s52\ns_cbranch_scc1 {lf}")
        loop(False); A.label(lf); loop(True)
    else: loop(False)
    while tail: tail.pop(0)()
    if F.XS:
        for i in range(i_loop, len(A.lines)):
            x = A.lines[i]
            if (F.XS & 1 and "store_dwordx4" in x) or (F.XS & 2 and "store_dword " in x) or (F.XS & 4 and "load_dword " in x): A.lines[i] = x.replace(" sc1", "")
            if F.XS & 8 and "s_waitcnt vmcnt" in x: A.lines[i] = "s_nop 0"
    A.label(done)
    tout(A, ST[2]); stamp_out(A, ST)
    A.e("s_endpgm")

def cls(x):
    if x in ("f2chk", "mid"): return (0, 2, 3)
    if x == "f2br": return (1, 0, 0)
    if x.startswith(("need ", "vneed ")): return (1, 0, 0)
    if x.startswith("vm"): x = x.split(":", 2)[2]
    ls = x.split("\n"); sc = sum(1 for l in ls if l.startswith(("s_", "need", "vneed")))
    if "buffer_" in x or "ds_write" in x:
        lead = 0
        while ls[lead].startswith("s_"): lead += 1
        return (min(lead, 1), 1 if ("load" in x and len(ls) <= 2) else 2, 1)
    if x.startswith("ds_"): return (0, 1, 1)
    if sc == len(ls): return (sc, 0, 0)
    if len(ls) > 1: return (1, 2, 1)
    return (0, 2 if x.startswith(("v_exp", "v_rcp", "v_rsq")) else 1, 2)
class Gaps:
    def __init__(self, n): self.n = n; self.g = [[] for _ in range(n)]; self.over = []
    def load(self, i):
        s = sum(cls(x)[0] for x in self.g[i]); v = sum(cls(x)[1] for x in self.g[i]); return max(0, s - 1) + v
    def put(self, i, *xs): self.g[i] += xs
    def near(self, i, x, r1=0):
        while i < self.n - 1 and (self.load(i) + cls(x)[1] > 2 or (cls(x)[2] == 1 and any(cls(y)[2] == 1 and not (r1 and y.startswith("ds_read")) for y in self.g[i]))): i += 1
        self.g[i].append(x); return i
    def spread(self, items, lo, hi, mx=8):
        for extra in range(0, mx * (hi - lo) + 1):
            t = [list(x) for x in self.g]; i = lo; pos = []; rank = 0
            cap = lambda i: 2 + extra // (hi - lo) + (1 if (i - lo) < extra % (hi - lo) else 0)
            keep = self.g; self.g = t; ok = True
            for x in items:
                c = cls(x)
                while True:
                    if i >= hi: ok = False; break
                    t[i].append(x)
                    if c[2] == 1 and c[1] == 2 and c[2] >= rank and sum(cls(y)[1] for y in t[i]) == 2: break
                    if c[2] >= rank and self.load(i) <= cap(i) and not (c[2] == 1 and cap(i) < 4 and sum(cls(y)[2] == 1 for y in t[i]) > 1): break
                    t[i].pop(); i += 1; rank = 0
                if not ok: break
                pos.append(i); rank = c[2]
            if ok: return pos
            if mx < 8 and extra == mx * (hi - lo): self.over += items[len(pos):]; return pos
            self.g = keep
        raise ValueError
    def sched(self, items, lo, hi):
        I = [Ins(x, 0) for x in items]
        dep = [[j for j in range(i) if (I[j].w & (I[i].r | I[i].w)) or (I[j].r & I[i].w)] for i in range(len(I))]
        for extra in range(0, 4 * (hi - lo)):
            keep = self.g; self.g = [list(x) for x in keep]; at = {}
            for g in range(lo, hi):
                cap = 2 + extra // (hi - lo) + (1 if (g - lo) < extra % (hi - lo) else 0)
                while True:
                    free = cap - self.load(g)
                    rdy = [i for i in range(len(I)) if i not in at and all(j in at and (at[j] < g or not I[j].is_trans) for j in dep[i])]
                    c = [i for i in rdy if I[i].is_trans and free >= 2] + [i for i in rdy if not I[i].is_trans and free >= 1]
                    if not c: break
                    at[c[0]] = g; self.g[g].append(items[c[0]])
                if len(at) == len(I): return g
            self.g = keep
        raise ValueError
    def gap(self, i): return sorted(self.g[i], key=lambda x: cls(x)[2])
class VMQ2:
    def __init__(self, A, hist): self.A = A; self.q = [list(x) for x in hist]; self.done = -1
    def op(self, ins, tag): self.A.e(ins); self.q.append([tag])
    def need(self, tag):
        ix = [i for i, x in enumerate(self.q) if tag in x]
        if ix and ix[-1] > self.done:
            n = len(self.q) - 1 - ix[-1]; assert n < 64
            self.A.e(f"s_waitcnt vmcnt({n})"); self.done = ix[-1]
def gemm4_role(A, L, kind):
    KS = 7 if kind == "w4" else 8
    stats = kind in ("w1", "w3"); xch = kind in ("wo", "w4"); res = kind == "w2"
    L16, VFA, VA, VRD, VRB, ONE, VF, VT, VO, VSW, VSR, VX, VOX, VD = 0, 2, 3, 4, 8, 12, 16, 17, 18, 19, 20, 21, 22, 23
    ACC, FIN, S1, S2, SP, XW, NW, PKT, CS, RES, TM, M1, KC = 32, 40, 48, 52, 56, 64, 16, 128, 152, 160, 168, 204, 208; ST = (200, 201, 202)
    NM_, RS_, K0_, K1_ = TM + 20, TM + 21, TM + 22, TM + 23
    sym = xch and F.SYM; dfr = sym == 2; ep = dfr and F.EP; RSZ = 8192 if dfr else 6144; VSN, VFR, VFL = 24, 25, 26
    LST = 128 * 1024; D = F.GD; NF = 4 * KS
    wreg = lambda n, t, k=4, o=0: ar((n * 2 + t) * 4 + o, k)
    done = A.newlabel("done"); tail = []
    lanes(A)
    arg, ld, nbytes = dict(wo=("Wo", 2048, 8 * MB), w1=("w1", 2048, 2 * MB), w2=("w2", 2048, 2 * MB), w3=("w3", 7168, 7 * MB), w4=("w4", 2048, 7 * MB))[kind]
    ldptr(A, 4, arg)
    if xch: ldptr(A, 6, "x" if kind == "wo" else "out"); A.e("s_lshr_b32 s52, s59, 3\ns_and_b32 s53, s59, 7")
    else: A.e("s_mov_b32 s52, 0\ns_mov_b32 s53, s59")
    A.e(f"s_mul_i32 s54, s52, {NF*32*ld}\ns_lshl_b32 s64, s53, 8\ns_add_u32 s54, s54, s64\ns_lshl_b32 s64, s50, 6\ns_add_u32 s54, s54, s64\ns_waitcnt lgkmcnt(0)")
    A.srd(28, 4, nbytes)
    if xch: A.srd(24, 6, S * D_ * 2)
    def rdw(x):
        def f(buf):
            for kk in range(KS):
                for t in range(2):
                    for h in range(2): A.e(f"ds_read_b64_tr_b16 {wreg(x*KS+kk,t,2,2*h)}, v17 offset:{buf + (32*kk + 4*h)*64 + 8*t}")
                if kk % 3 == 2: A.e("s_waitcnt lgkmcnt(0)")
        return f
    if kind == "w4" and F.W4G: cpoll(A, L, {C_M2: 63}, sl=F.VSL2)
    if kind == "wo": late(A)
    if kind == "w3" and F.L3: late(A, F.L3)
    if kind == "w4" and F.L4: late(A, F.L4)
    stage_weights(A, [(28, f"s_xor_b32 s62, s50, {x}\ns_mul_i32 s62, s62, {KS*32*ld}\ns_add_u32 s62, s62, s54", KS * 32, rdw(x)) for x in range(4)], ld, None, F.NFLO if kind == 'wo' and F.NFLO is not None else F.NFL2)
    verify(A, L, False, "mod")
    inb, ust = dict(wo=(OB, 131072), w1=(H2, 32768), w2=(G1, 32768), w3=(Y1, 32768), w4=(G3, 112 * 1024))[kind]
    if F.FREE == 2: ust = 0
    A.e(f"""
    s_barrier
    v_lshlrev_b32 v{L16}, 4, v1
    s_mov_b32 s60, 0
    s_lshl_b32 s70, s50, 13
    s_mov_b32 s55, 0
    v_mov_b32 v{VA}, v{L16}
    s_mov_b32 s73, 0xffff0000
    s_lshl_b32 s64, s52, 2
    s_add_u32 s64, s64, s50
    s_mul_i32 s61, s64, {KS*1024}
    s_add_u32 s61, s61, {inb}
    s_lshl_b32 s68, s64, 8
    s_add_u32 s68, s68, {dict(wo=F_ATT, w1=F_LN, w2=F_W1, w3=F_W2, w4=F_W3)[kind]}
    s_lshl_b32 s83, s53, 2
    s_add_u32 s83, s83, s50            ; output fragment index
    s_mov_b32 s63, 0""")
    for x in range(4): A.e(f"s_xor_b32 s64, s50, {x}\ns_lshl_b32 s64, s64, 13\nv_add_u32 v{VRB+x}, s64, v{L16}\nv_mov_b32 v{VRD+x}, v{VRB+x}")
    nfl = dict(wo=4 + 4 * F.AT, w1=4, w2=8, w3=8, w4=7)[kind]
    lin = (kind == "w2" and F.LOC & 1) or (kind == "w1" and F.LOC & 2)
    A.e(f"v_min_u32 v{VFA}, {nfl-1}, v1\nv_lshlrev_b32 v{VFA}, {7 if lin else 2}, v{VFA}")
    if kind == "w3" and F.REP > 1: A.e(f"s_and_b32 s64, s59, {F.REP-1}\ns_lshl_b32 s64, s64, 10\ns_lshl_b32 s68, s50, 8\ns_add_u32 s68, s68, s64\ns_add_u32 s68, s68, {F_W2R}")
    if lin: A.e(f"s_mul_i32 s68, s50, {nfl*128}\ns_add_u32 s68, s68, {F_W1L if kind == 'w2' else F_LNL}")
    if res:
        A.e(f"""
        s_lshr_b32 s64, s50, 1
        s_add_u32 s64, s64, 1
        s_sub_u32 s65, 0, s64
        s_bitcmp1_b32 s50, 0
        s_cselect_b32 s64, s64, s65
        s_add_u32 s64, s64, 16
        v_add_u32 v26, s64, v21
        v_lshrrev_b32 v27, 4, v26
        v_and_b32 v26, 15, v26
        v_lshl_add_u32 v26, v22, 4, v26
        v_lshlrev_b32 v26, 4, v26
        v_lshl_add_u32 v{VA}, v27, 15, v26
        s_sub_u32 s61, s61, 32768
        s_and_b32 s64, s50, 1
        s_add_u32 s74, s64, 1
        s_add_u32 s75, s64, 2
        s_add_u32 s76, s64, 3""")
    A.e("s_add_u32 s62, s61, 4096\ns_lshl_b32 s66, s83, 10")
    if kind == "w3":
        A.e(f"s_mul_i32 s65, s83, 147\ns_lshr_b32 s65, s65, 10\ns_mul_i32 s69, s65, {256 - 28}\ns_lshl_b32 s64, s83, 2\ns_add_u32 s69, s69, s64\ns_add_u32 s69, s69, {F_W3}")
    else:
        A.e(f"s_lshr_b32 s65, s83, 3\ns_lshl_b32 s65, s65, 8\ns_and_b32 s64, s83, 7\ns_lshl_b32 s64, s64, 2\ns_add_u32 s69, s64, s65\ns_add_u32 s69, s69, {dict(wo=F_WO, w1=F_W1, w2=F_W2, w4=F_W4)[kind]}")
    if kind == "w2" and F.REP > 1: A.e(f"s_add_u32 s69, s69, {F_W2R - F_W2}")
    if kind == "w1" and F.LOC & 1: A.e(f"s_lshl_b32 s69, s83, 7\ns_add_u32 s69, s69, {F_W1L}")
    if sym: A.e(f"s_lshr_b32 s65, s83, 3\ns_lshl_b32 s65, s65, 8\ns_and_b32 s64, s83, 7\ns_lshl_b32 s64, s64, 2\ns_add_u32 s64, s64, s52\ns_lshl_b32 s64, s64, 2\ns_add_u32 s69, s64, s65\ns_add_u32 s69, s69, {F_WO}")
    A.e(f"s_add_u32 s82, s66, {H2 if res else X1}" if kind != "wo" else "s_mov_b32 s82, 0")
    outb, ost = dict(wo=(X1, 32768), w1=(G1, 32768), w2=(Y1, 32768), w3=(G3, 112 * 1024), w4=(0, 32768))[kind]
    if not xch: A.e(f"s_add_u32 s66, s66, {outb}")
    if sym:
        A.e(f"""
        s_mul_i32 s74, s83, {4*RSZ}
        s_add_u32 s74, s74, {XP + (0 if kind == 'wo' else 128*RSZ)}
        s_mul_i32 s76, s52, {RSZ}
        s_add_u32 s76, s76, s74
        s_mov_b32 s75, 0
        s_mov_b32 s78, 0
        s_mov_b32 s84, s76
        s_mov_b32 s82, 0
        s_mov_b32 s80, s76
        s_mov_b32 s81, s74
        s_mov_b32 s77, 0                   ; pending
        s_lshl_b32 s64, s52, 8
        v_lshlrev_b32 v26, 4, v21
        v_add_u32 v26, s64, v26
        v_mul_u32_u24 v27, {RSZ}, v22
        v_add_u32 v{VSN}, v26, v27
        v_lshl_add_u32 v{VFR}, v22, 2, v26
        v_lshlrev_b32 v26, 11, v21
        v_lshl_add_u32 v26, v22, 2, v26
        s_lshl_b32 s64, s83, 2
        s_add_u32 s64, s64, s52
        s_lshl_b32 s65, s64, 4
        v_add_u32 v{VO}, s65, v26
        v_lshlrev_b32 v26, 3, v22
        s_lshl_b32 s64, s64, 5
        s_add_u32 s64, s64, {MOD + (2 if kind == 'wo' else 5)*4096}""")
        for g_ in range(4): A.e(f"buffer_load_dwordx2 {vr(CS if g_ == 0 else PKT + 2*(g_-1), 2)}, v26, {WSRD}, s64 offen sc1\ns_add_u32 s64, s64, {6144*4}")
        A.e("s_waitcnt vmcnt(0)")
        sum4(A, CS, PKT, 2)
        for i in range(4): A.e(f"v_mov_b32 v{M1+i}, -1")
        A.e("s_mov_b32 s83, 0")
    elif xch:
        A.e(f"""
        s_lshl_b32 s64, s53, 2
        s_add_u32 s64, s64, s50
        s_mul_i32 s74, s64, {4*6144}
        s_xor_b32 s64, s50, s52
        s_sub_u32 s64, s64, 1
        s_max_i32 s64, s64, 0
        s_lshl_b32 s64, s64, 11
        s_add_u32 s74, s74, s64
        s_add_u32 s74, s74, {XP + (0 if kind == 'wo' else 768*KB)}
        s_mov_b32 s75, 0
        s_mov_b32 s77, 0                   ; pending
        v_lshlrev_b32 v26, 11, v21
        v_lshl_add_u32 v26, v22, 4, v26
        s_lshl_b32 s64, s83, 6
        v_add_u32 v{VO}, s64, v26
        v_lshlrev_b32 v26, 5, v22
        s_lshl_b32 s64, s83, 7
        s_add_u32 s64, s64, {MOD + (2 if kind == 'wo' else 5)*4096}""")
        for g in range(4):
            for i in range(2): A.e(f"buffer_load_dwordx4 {vr((CS if g == 0 else PKT + 8*(g-1)) + 4*i, 4)}, v26, {WSRD}, s64 offen offset:{16*i} sc1")
            A.e(f"s_add_u32 s64, s64, {6144*4}")
        A.e("s_waitcnt vmcnt(0)")
        sum4(A, CS, PKT, 8)
        for i in range(4): A.e(f"v_mov_b32 v{M1+i}, -1")
    if stats:
        A.e(f"""
        s_lshl_b32 s64, s50, 9
        s_add_u32 s64, s64, {LST}
        v_lshlrev_b32 v26, 3, v1
        v_add_u32 v{VSW}, s64, v26
        v_lshl_add_u32 v26, v23, 4, v21
        v_lshlrev_b32 v26, 3, v26
        v_add_u32 v{VSR}, {LST}, v26
        s_mov_b32 s74, 0x22222222
        s_mov_b32 s75, 0x22222222
        s_mov_b32 s76, 0x44444444
        s_mov_b32 s77, 0x44444444
        s_mov_b32 s78, 0x88888888
        s_mov_b32 s79, 0x88888888
        v_mov_b32 v{KC}, {f2u(GELU_C1):#x}
        v_mov_b32 v{KC+1}, {f2u(GELU_C0):#x}
        v_mov_b32 v{KC+2}, {f2u(1e-5) if F.GT else f2u(1.0):#x}
        v_mov_b32 v{KC+3}, {f2u(1/1024) if F.GT else f2u(1.0):#x}""")
        for i in range(4): A.e(f"v_mov_b32 v{ONE+i}, 0x3f803f80")
        for n in range(NF):
            for t in range(2): A.e(f"{MF} {vr(CS+4*t,4)}, {wreg(n,t)}, {vr(ONE,4)}, {vr(CS+4*t,4) if n else 0}")
    if kind == "w1" and F.LOC & 1: A.e(f"v_lshlrev_b32 v{VFL}, 2, v1\nv_cmp_gt_u32 vcc, 32, v1\nv_cndmask_b32 v{VFL}, 2.0, v{VFL}, vcc")
    elif kind == "w2" and F.REP > 1: A.e(f"v_lshlrev_b32 v{VFL}, 10, v1\nv_cmp_gt_u32 vcc, {F.REP}, v1\nv_cndmask_b32 v{VFL}, 2.0, v{VFL}, vcc")
    else: A.e(f"v_cmp_eq_u32 vcc, 0, v1\nv_cndmask_b32 v{VFL}, 2.0, 0, vcc")
    LS = ["sc1"]
    def flag_st(sv):
        if F.FX: A.e(f"v_mov_b32 v{VT}, {sv}\nbuffer_store_dword v{VT}, v{VFL}, {WSRD}, s69 offen {LS[0] if F.LOCX & 2 else 'sc1'}")
        else: flag_store(A, VT, sv, 69)
    def sfin_gt():
        t = SP
        for a, b in ((0, 2), (1, 3), (4, 6), (5, 7), (0, 4), (1, 5)): A.e(f"v_add_f32 v{t+a}, v{t+a}, v{t+b}")
        A.e(f"""
        v_mul_f32 v{NM_}, {f2u(-1/1024):#x}, v{t}
        v_fma_f32 v{t+2}, v{NM_}, v{NM_}, -v{KC+2}
        v_fma_f32 v{t+1}, v{t+1}, v{KC+3}, -v{t+2}
        v_max_f32 v{t+1}, v{KC+2}, v{t+1}
        v_rsq_f32 v{t+2}, v{t+1}
        v_mul_f32 v{RS_}, v{t+1}, v{t+2}
        v_mul_f32 v{K0_}, v{KC+1}, v{t+2}
        v_mul_f32 v{t+3}, v{t+2}, v{t+2}
        v_mul_f32 v{K1_}, v{KC}, v{t+2}
        v_mul_f32 v{K1_}, v{K1_}, v{t+3}""")
    def grab(f):
        i0 = len(A.lines); f(); o = [x.strip() for x in A.lines[i0:]]; del A.lines[i0:]; return o
    ldA = lambda i: ("s_mov_b32 m0, s70\n" if i == 0 else "s_add_u32 m0, s70, 4096\n" if i == 4 else "") + f"buffer_load_dwordx4 v{VA}, {WSRD}, s{61+(i>>2)} offen offset:{(i&3)*1024} lds"
    adv = [f"s_add_u32 s61, s61, {ust}", f"s_add_u32 s62, s62, {ust}", "s_add_u32 s70, s70, 32768", "s_and_b32 s70, s70, 0x1ffff"]
    pollld = f"buffer_load_dword v{VF}, v{VFA}, {WSRD}, s68 offen sc1"
    dummy = f"buffer_load_dword v{VD}, off, {WSRD}, s66"
    def need(add, d):
        if F.FREE: return f"s_cmp_ge_u32 s60, {NU-add}\ns_cselect_b32 s{d}, -1, 0"
        if res: return f"s_add_u32 s{d}, s60, s{74+add}\ns_cmp_eq_u32 s60, {NU-1-add}\ns_cselect_b32 s{d}, {NU}, s{d}"
        return f"s_add_u32 s{d}, s60, {add+1}"
    def both(f):
        l1 = A.newlabel("b1"); l2 = A.newlabel("b2")
        A.e(f"s_cmp_eq_u32 s56, 1\ns_cbranch_scc1 {l1}"); f("")
        A.label(l2)
        def d(): A.label(l1); A.e("s_nop 7"); f("sc1"); A.e(f"s_branch {l2}")
        tail.append(d)
    def pc(k):
        if F.PROF >= 2: A.e(f"s_add_u32 s{98 + k//4}, s{98 + k//4}, {1 << (8 * (k & 3))}")
    def trs(code):
        sk = A.newlabel("tr")
        return f"""s_sub_u32 s95, s60, {F.TRU}\ns_cmp_ge_u32 s95, 8\ns_cbranch_scc1 {sk}\ns_memrealtime s[92:93]\ns_mov_b32 s95, m0\ns_mov_b32 m0, s94\ns_waitcnt lgkmcnt(0)\ns_lshl_b32 s92, s92, 12\ns_lshl_b32 s93, s60, 4\ns_add_u32 s92, s92, s93\ns_add_u32 s92, s92, {code}\nv_writelane_b32 v{ST[0]}, s92, m0\ns_mov_b32 m0, s95\ns_add_u32 s94, s94, 1\ns_min_u32 s94, s94, 63\n{sk}:"""
    def tr(code):
        if F.TRU: A.e(trs(code))
    f1s = ["s_add_u32 s84, s74, s75", "s_add_u32 s85, s84, 4096"] + [f"vm:pk:buffer_load_dwordx4 {vr(PKT+4*i,4)}, v{L16}, {WSRD}, s{84+(i>>2)} offen offset:{(i&3)*1024} sc1" for i in range(6)]
    if kind == "wo": fres = [f"vm:rs:buffer_load_dwordx4 {vr(RES,4)}, v{VO}, s[24:27], s82 offen", "s_add_u32 s82, s82, 32768"]
    else: fres = [f"vm:rs:buffer_load_dwordx4 {vr(RES,4)}, v{L16}, {WSRD}, s82 offen", f"vm:rs:s_add_u32 s64, s82, {Y1 - X1}\nbuffer_load_dwordx4 {vr(RES+4,4)}, v{L16}, {WSRD}, s64 offen", "s_add_u32 s82, s82, 32768"]
    if sym:
        f1s = ["s_add_u32 s84, s76, s75"] + [f"vm:pk:buffer_load_dwordx4 {vr(PKT+4*i,4)}, v{L16}, {WSRD}, s84 offen offset:{i*1024} sc1" for i in range(2)]
        if kind == "wo": fres = [f"vm:rs:buffer_load_dword v{RES}, v{VO}, s[24:27], s82 offen", "s_add_u32 s82, s82, 32768"]
        else: fres = [f"vm:rs:buffer_load_dword v{RES}, v{VFR}, {WSRD}, s82 offen", f"vm:rs:s_add_u32 s64, s82, {Y1 - X1}\nbuffer_load_dword v{RES+1}, v{VFR}, {WSRD}, s64 offen", "s_add_u32 s82, s82, 32768"]
    if dfr:
        f1s[0] = "s_add_u32 s84, s76, s78"
        if ep: f1s = [x.replace("s84", "s80") for x in f1s[1:]]
        if kind == "wo": fres = [f"vm:rs:s_and_b32 s64, s66, 0xffff8000\nbuffer_load_dword v{RES}, v{VO}, s[24:27], s64 offen"]
        else: fres = [f"vm:rs:s_add_u32 s64, s66, {b}\nbuffer_load_dword v{RES+i}, v{VFR}, {WSRD}, s64 offen" for i, b in enumerate((X1, Y1))]
    plain = lambda x: x.split(":", 2)[2] if x.startswith("vm") else x
    def add8(d, a, b, pk):
        if pk: return [f"v_pk_add_f32 {vr(d+i,2)}, {vr(a+i,2)}, {vr(b+i,2)}" for i in range(0, 8, 2)]
        return [f"v_add_f32 v{d+i}, v{a+i}, v{b+i}" for i in range(8)]
    CK = 184
    chkv = [f"v_bitop3_b32 v{CK+i}, v{PKT+2*i}, v{PKT+2*i+1}, s83 bitop3:0x7e" for i in range(4)] + [f"v_or3_b32 v{CK}, v{CK}, v{CK+1}, v{CK+2}", f"v_bitop3_b32 v{CK}, v{CK}, v{CK+3}, 1 bitop3:0xa8", f"v_cmp_ne_u32 vcc, 0, v{CK}"]
    def f2br():
        rt = A.newlabel("rt"); go = A.newlabel("go"); lp = A.newlabel("rl")
        A.e(f"s_cbranch_vccnz {rt}"); A.label(go)
        def d():
            A.label(rt); A.e(f"s_cmp_eq_u32 s77, 0\ns_cbranch_scc1 {go}"); A.label(lp); pc(6)
            A.e(f"s_sub_u32 s90, s90, 1\ns_cmp_gt_i32 s90, 0\ns_cbranch_scc0 {go}")
            for x in f1s: A.e(plain(x))
            A.e("s_waitcnt vmcnt(0)")
            for x in chkv: A.e(x)
            A.e(f"s_cbranch_vccnz {lp}\ns_branch {go}")
        tail.append(d)
    def f2chk():
        if ep:
            for x in chkv: A.e(x)
            return f2br()
        ck = A.newlabel("ck"); rt = A.newlabel("rt"); go = A.newlabel("go")
        A.e(f"s_cmp_eq_u32 s77, 0\ns_cbranch_scc1 {go}")
        A.label(ck)
        TM = 184
        if sym: A.e(f"v_max3_u32 v{TM}, v{PKT}, v{PKT+1}, v{PKT+2}\nv_max3_u32 v{TM+1}, v{PKT+3}, v{PKT+4}, v{PKT+5}\nv_max3_u32 v{TM}, v{TM}, v{PKT+6}, v{PKT+7}\nv_max_u32 v{TM}, v{TM}, v{TM+1}\nv_cmp_eq_u32 vcc, -1, v{TM}\ns_cbranch_vccnz {rt}")
        else:
            for j in range(2): A.e(f"v_max3_u32 v{TM+j}, v{PKT+12*j}, v{PKT+12*j+1}, v{PKT+12*j+2}")
            for q in range(4):
                for j in range(2): A.e(f"v_max3_u32 v{TM+j}, v{TM+j}, v{PKT+12*j+3+2*q}, v{PKT+12*j+4+2*q}")
            A.e(f"v_max3_u32 v{TM}, v{TM}, v{PKT+11}, v{PKT+23}\nv_max_u32 v{TM}, v{TM}, v{TM+1}\nv_cmp_eq_u32 vcc, -1, v{TM}\ns_cbranch_vccnz {rt}")
        A.label(go)
        def d():
            A.label(rt); pc(6)
            A.e(f"s_sub_u32 s90, s90, 1\ns_cmp_gt_i32 s90, 0\ns_cbranch_scc0 {go}")
            for x in f1s: A.e(plain(x))
            A.e(f"s_waitcnt vmcnt(0)\ns_branch {ck}")
        tail.append(d)
    FINP = 212
    def fma8(pk, a):
        if pk: return [f"v_pk_fma_f32 {vr(TM+i,2)}, {vr(a+i,2)}, {vr(CS+i,2)}, {vr(TM+i,2)}" for i in range(0, 8, 2)]
        return [f"v_fma_f32 v{TM+i}, v{a+i}, v{CS+i}, v{TM+i}" for i in range(8)]
    def f2pre(pk, src=FINP):
        if sym:
            o = [f"v_or_b32 v{VX}, s57, v{L16}", f"v_or_b32 v{VOX}, s57, v{VFR if kind == 'wo' else VO}"] + grab(lambda: unpack(A, RES, TM, 1 if kind == "wo" else 2))
            if kind == "w4": o += [f"v_fma_f32 v{TM+i}, v{TM+2+i}, v{CS+i}, v{TM+i}" for i in range(2)]
            return ["vneed rs", "s_cmp_eq_u32 s77, 0\ns_cselect_b32 s57, 2.0, 0"], o
        o = [f"v_or_b32 v{VX}, s57, v{L16}"] + ([f"v_or_b32 v{VOX}, s57, v{VO}"] if kind == "w4" else []) + grab(lambda: unpack(A, RES, TM, 4))
        if kind == "w4": o += grab(lambda: unpack(A, RES + 4, TM + 8, 4)) + add8(src, src, TM + 8, pk)
        return ["vneed rs", "s_cmp_eq_u32 s77, 0\ns_cselect_b32 s57, 2.0, 0"], o + fma8(pk, src)
    def f2rest(pk):
        if sym:
            ad = lambda a, b: f"v_add_f32 v{PKT+a}, v{PKT+a}, v{PKT+b}"
            o = [f"v_permlane32_swap_b32 v{PKT+i}, v{PKT+4+i}" for i in (0, 2, 1, 3)] + [ad(i, i + 4) for i in (0, 2, 1, 3)]
            o += [f"v_permlane16_swap_b32 v{PKT+i}, v{PKT+2+i}" for i in range(2)] + [ad(i, i + 2) for i in range(2)]
            o += [f"v_fma_f32 v{TM+i}, v{PKT+i}, v{CS+i}, v{TM+i}" for i in range(2)] + [f"v_cvt_pk_bf16_f32 v{TM+8}, v{TM}, v{TM+1}"]
            if kind == "wo": o += [f"vm:out:s_add_u32 s64, s66, {X1}\nbuffer_store_dword v{TM+8}, v{VOX}, {WSRD}, s64 offen sc1"]
            else: o += [f"vm:out:s_and_b32 s64, s66, 0xffff8000\nbuffer_store_dword v{TM+8}, v{VOX}, s[24:27], s64 offen"]
            o.append("" if ep else "vm2:rz:" + "\n".join(grab(lambda: both(lambda fl: [A.e(f"buffer_store_dwordx4 {vr(M1,4)}, v{VX}, {WSRD}, s84 offen offset:{i*1024} {fl}") for i in range(2)]))))
            o += [f"s_mul_i32 s64, s77, {ost}\ns_add_u32 s66, s66, s64", "s_lshl_b32 s64, s77, 11\ns_add_u32 s75, s75, s64", f"s_cmp_eq_u32 s75, 6144\ns_cselect_b32 s75, 0, s75", "s_add_u32 s63, s63, s77"]
            if F.PROF:
                sk = A.newlabel("sk"); o.append("\n".join([f"s_cmp_eq_u32 s77, 0\ns_cbranch_scc1 {sk}"] + grab(lambda: stamp2(A, ST, "s63", 1, 92 if F.PROF == 1 else 84)) + [f"{sk}:"]))
            return o + ["s_mov_b32 s77, 0"]
        o = add8(PKT, PKT, PKT + 8, pk) + add8(PKT, PKT, PKT + 16, pk) + fma8(pk, PKT)
        o += [f"v_cvt_pk_bf16_f32 v{TM+8+i}, v{TM+2*i}, v{TM+2*i+1}" for i in range(4)]
        if kind == "wo": o += [f"vm:out:s_add_u32 s64, s66, {X1}\nbuffer_store_dwordx4 {vr(TM+8,4)}, v{VX}, {WSRD}, s64 offen sc1"]
        else: o += [f"vm:out:s_and_b32 s64, s66, 0xffff8000\nbuffer_store_dwordx4 {vr(TM+8,4)}, v{VOX}, s[24:27], s64 offen"]
        if kind == "wo" and F.DP: o += [f"s_add_u32 s79, s66, {X1 + 65536}", f"vm:st:s_cmp_ge_u32 s63, {NU-2}\ns_cselect_b32 s79, {SCRATCH + 32768}, s79\nbuffer_store_dwordx4 {vr(M1,4)}, v{VX}, {WSRD}, s79 offen sc1"]
        for h in range(3):
            def rs(fl, h=h):
                for i in (2 * h, 2 * h + 1): A.e(f"buffer_store_dwordx4 {vr(M1,4)}, v{VX}, {WSRD}, s{84+(i>>2)} offen offset:{(i&3)*1024} {fl}")
            o.append("vm2:rz:" + "\n".join(grab(lambda: both(rs))))
        o += [f"s_mul_i32 s64, s77, {ost}\ns_add_u32 s66, s66, s64", "s_mul_i32 s64, s77, 6144\ns_add_u32 s75, s75, s64", f"s_cmp_eq_u32 s75, {4*6144}\ns_cselect_b32 s75, 0, s75", "s_add_u32 s63, s63, s77"]
        if F.PROF:
            sk = A.newlabel("sk"); o.append("\n".join([f"s_cmp_eq_u32 s77, 0\ns_cbranch_scc1 {sk}"] + grab(lambda: stamp2(A, ST, "s63", 1, 92 if F.PROF == 1 else 84)) + [f"{sk}:"]))
        return o + ["s_mov_b32 s77, 0"]
    def fz():
        p0, p1 = f2pre(False); o = f2rest(False); k = [i for i, x in enumerate(o) if x.startswith("vm:out")][0]
        P = dict(head=["vneed pk"] + p0, calc=p1 + o[:k], rz=[o[k + 1]])
        P["oad"] = [f"s_add_u32 s79, s66, {X1}" if kind == "wo" else "s_and_b32 s79, s66, 0xffff8000"]
        P["out"] = [f"vm:out:buffer_store_dword v{TM+8}, v{VOX}, " + (f"{WSRD}, s79 offen sc1" if kind == "wo" else "s[24:27], s79 offen")]
        P["book"] = [f"s_mul_i32 s64, s77, {ost}\ns_add_u32 s66, s66, s64", "s_lshl_b32 s64, s77, 11\ns_add_u32 s78, s78, s64", "s_and_b32 s78, s78, 0x1fff"]
        if ep:
            P["rz"] = []; P["calc"] = P["calc"][1:]
            P["book"] = P["book"][:2] + ["s_and_b32 s78, s78, 0x3fff", "s_lshr_b32 s83, s78, 13", "s_and_b32 s80, s78, 0x1fff", "s_add_u32 s80, s80, s76"]
        P["cnt"] = ["s_add_u32 s63, s63, s77"] + ([o[-2]] if F.PROF else [])
        return P
    xr = lambda n: vr(XW + 4 * (n % NW), 4)
    rd = lambda n: f"ds_read_b128 {xr(n)}, v{VRD + n//KS} offset:{(n%KS)*1024}"
    M = []; first = {}
    for n in range(NF):
        first[n] = len(M)
        M += [f"{MF} {vr((FIN if n == NF - 1 else ACC)+4*t,4)}, {wreg(n,t)}, {xr(n)}, {vr(ACC+4*t,4) if n else 0}" for t in range(2)]
        if stats and n < KS: M += [f"{MF} {vr(S1,4)}, {vr(ONE,4)}, {xr(n)}, {vr(S1,4) if n else 0}", f"{MF} {vr(S2,4)}, {xr(n)}, {xr(n)}, {vr(S2,4) if n else 0}"]
    NM = len(M); PRE = 3
    def loop(fin):
        send = xch and not fin
        NS = (5 if ep else 7) if dfr else 2 if sym else 0 if fin else (2 if send or F.IPF else 1)
        flg = (not send) and kind != "w4" and not (kind == "wo" and F.DP)
        flag = lambda sv: "vm:fl:" + "\n".join(grab(lambda: flag_st(sv))) + ("\ns_mov_b64 s[96:97], vcc\n" + trs(6) + "\ns_mov_b64 vcc, s[96:97]" if F.TRU else "")
        def post(pk):
            a = FIN
            if ep:
                o = [f"v_bfi_b32 v{FIN+i}, 1, s82, v{FIN+i}" for i in range(8)]
                for t in range(2): o.append("vm:sn:" + "\n".join(grab(lambda: both(lambda f_: A.e(f"buffer_store_dwordx4 {vr(FIN+4*t,4)}, v{VSN}, {WSRD}, s81 offen offset:{t*1024} {f_}")))))
                return o + ["s_add_u32 s75, s75, 2048", "s_and_b32 s75, s75, 0x3fff", "s_lshr_b32 s82, s75, 13", "s_and_b32 s81, s75, 0x1fff", "s_add_u32 s81, s81, s74"]
            if sym:
                t_ = grab(lambda: both(lambda f_: [A.e(f"buffer_store_dwordx4 {vr(FIN+4*t,4)}, v{VSN}, {WSRD}, s64 offen offset:{t*1024} {f_}") for t in range(2)]))
                if dfr: return ["vm2:sn:" + "\n".join(["s_add_u32 s64, s74, s75"] + t_), "s_add_u32 s75, s75, 2048", "s_and_b32 s75, s75, 0x1fff"]
                return ["vm2:sn:" + "\n".join(["s_add_u32 s64, s74, s75"] + t_), "s_mov_b32 s77, 1"]
            if fin: return ([f"v_mov_b32 v{FINP+i}, v{FIN+i}" for i in range(8)] if pk != 2 else []) + ["s_mov_b32 s77, 1"]
            if send:
                t_ = grab(lambda: both(lambda f_: [A.e(f"buffer_store_dwordx4 {vr(FIN+4*t,4)}, v{L16}, {WSRD}, s64 offen offset:{t*1024} {f_}") for t in range(2)]))
                o = ["vm2:out:" + "\n".join(["s_add_u32 s64, s74, s75"] + t_), "s_add_u32 s75, s75, 6144", f"s_cmp_eq_u32 s75, {4*6144}\ns_cselect_b32 s75, 0, s75"]
                if F.PROF: o.append("\n".join(grab(lambda: stamp2(A, ST, "s60", 1, 92 if F.PROF == 1 else 84))))
                return o
            if stats:
                e = [f"v_exp_f32 v{TM+i}, v{TM+i}" for i in range(8)]; rc = [f"v_rcp_f32 v{TM+i}, v{TM+i}" for i in range(8)]
                if F.GT and pk:
                    P = lambda op, d, *s_, m="": [f"v_pk_{op}_f32 {vr(d+i,2)}, " + ", ".join(vr(x[0] + (i if x[1] else 0), 2) for x in s_) + m for i in range(0, 8, 2)]
                    o = P("fma", a, (CS, 1), (NM_, 0), (a, 1), m=" op_sel_hi:[1,0,1]") + P("mul", TM, (a, 1), (a, 1))
                    o += P("fma", TM, (TM, 1), (K0_, 0), (K0_, 0), m=" op_sel:[0,1,0] op_sel_hi:[1,1,0]") + P("mul", TM, (TM, 1), (a, 1)) + e
                    o += P("fma", TM, (TM, 1), (NM_, 0), (NM_, 0), m=" op_sel:[0,1,1] op_sel_hi:[1,1,1]") + rc + P("mul", a, (TM, 1), (a, 1))
                elif F.GT:
                    o = []
                    for i0 in range(0, 8, 2):
                        for op in ("v_fma_f32 v{v}, v{c}, v%d, v{v}" % NM_, "v_mul_f32 v{t}, v{v}, v{v}", "v_fma_f32 v{t}, v{t}, v%d, v%d" % (K1_, K0_), "v_mul_f32 v{t}, v{t}, v{v}",
                                   "v_exp_f32 v{t}, v{t}", "v_fma_f32 v{t}, v{t}, v%d, v%d" % (RS_, RS_), "v_rcp_f32 v{t}, v{t}", "v_mul_f32 v{v}, v{t}, v{v}"): o += [op.format(t=TM + i, v=a + i, c=CS + i) for i in (i0, i0 + 1)]
                elif pk:
                    P = lambda op, d, *s_, m="": [f"v_pk_{op}_f32 {vr(d+i,2)}, " + ", ".join(vr(x[0] + (i if x[1] else 0), 2) for x in s_) + m for i in range(0, 8, 2)]
                    o = P("fma", a, (CS, 1), (NM_, 0), (a, 1), m=" op_sel_hi:[1,0,1]") + P("mul", a, (a, 1), (NM_, 0), m=" op_sel:[0,1] op_sel_hi:[1,1]") + P("mul", TM, (a, 1), (a, 1))
                    o += P("fma", TM, (TM, 1), (KC, 0), (KC, 0), m=" op_sel:[0,0,1] op_sel_hi:[1,0,1]") + P("mul", TM, (TM, 1), (a, 1)) + e + P("add", TM, (TM, 1), (KC + 2, 0)) + rc + P("mul", a, (TM, 1), (a, 1))
                else:
                    o = []
                    for i0 in range(0, 8, 2):
                        for op in ("v_fma_f32 v{v}, v{c}, v%d, v{v}" % NM_, "v_mul_f32 v{v}, v{v}, v%d" % RS_, "v_mul_f32 v{t}, v{v}, v{v}", "v_fma_f32 v{t}, v{t}, v%d, v%d" % (KC, KC + 1), "v_mul_f32 v{t}, v{t}, v{v}",
                                   "v_exp_f32 v{t}, v{t}", "v_add_f32 v{t}, 1.0, v{t}", "v_rcp_f32 v{t}, v{t}", "v_mul_f32 v{v}, v{t}, v{v}"): o += [op.format(t=TM + i, v=a + i, c=CS + i) for i in (i0, i0 + 1)]
            else: o = add8(a, a, TM, pk)
            o += [f"v_cvt_pk_bf16_f32 v{TM+8+i}, v{a+2*i}, v{a+2*i+1}" for i in range(4)]
            o += [f"vm:out:buffer_store_dwordx4 {vr(TM+8,4)}, v{L16}, {WSRD}, s66 offen {LS[0] if F.LOCX & 1 else 'sc1'}", f"s_add_u32 s66, s66, {ost}", "s_add_u32 s63, s63, 1"]
            if F.PROF: o.append("\n".join(grab(lambda: stamp2(A, ST, "s63", 1, 92 if F.PROF == 1 else 84))))
            return o
        def emit(Z, V, y):
            if y.startswith("ds_"): Z.lds(y, y)
            elif y.startswith("need "): Z.need(y[5:])
            elif y.startswith("vneed "): V.need(y[6:])
            elif y.startswith("vm:"): _, tg, x = y.split(":", 2); V.op(x, tg); tr(5) if tg == "out" else None
            elif y.startswith("vm2:"): _, tg, x = y.split(":", 2); V.op(x, tg); V.q.append([tg]); tr(5) if tg == "out" else None
            elif y == "f2chk": f2chk()
            elif y == "f2br": f2br()
            elif y == "mid":
                b1 = A.newlabel("mb"); b2 = A.newlabel("mk")
                A.e(f"v_cmp_gt_u32 vcc, s71, v{VF}\ns_mov_b32 s72, 0\ns_cbranch_vccz {b1}"); A.label(b2)
                def d():
                    A.label(b1); tr(3)
                    for i in range(KS): A.e(ldA(i))
                    for x in adv: A.e(x)
                    A.e(f"s_mov_b32 s72, 1\ns_branch {b2}")
                tail.append(d)
            else: A.e(y)
        def plan(W, R):
            G = Gaps(NM)
            for n in range(1, NF): G.put(first[n] - 1, "need " + rd(n))
            for n in range(PRE if W else F.BD + 1, NF):
                g = first[max(0, n - D)] if n >= D else n - PRE
                if n <= KS and not W: g = first[n - F.BD] - 1
                if n < KS and W and F.PRG and F.PD: g = max(g, first[max(0, n - F.PD)])
                if n < KS and (F.PRG or not W): G.put(g if not W else max([g] + [j + 1 for j in range(NM) if any(y.startswith("ds_read_b128") for y in G.g[j])]), f"vneed P{n}")
                if n == KS: G.put(g, "s_barrier")
                g = max([g] + [j + 1 for j in range(NM) if any(y.startswith("ds_read_b128") for y in G.g[j])]) if n > KS or W else g
                if n == KS and W: G.g[first[max(0, n - D)]].remove("s_barrier"); G.put(g, "s_barrier")
                G.put(g, rd(n))
            lastrd = max(j for j in range(NM) if any(y.startswith("ds_read_b128") for y in G.g[j]))
            if stats:
                sw = f"ds_write_b64 v{VSW}, {vr(S1,2)}"; srd_ = [f"ds_read_b64 {vr(SP+2*w,2)}, v{VSR} offset:{w*512}" for w in range(4)]
                k = first[KS] + 4
                p_ = G.spread([f"v_cndmask_b32 v{S1+1}, v{S2}, v{S2+1}, s[74:75]", f"v_cndmask_b32 v{S1+1}, v{S1+1}, v{S2+2}, s[76:77]", f"v_cndmask_b32 v{S1+1}, v{S1+1}, v{S2+3}, s[78:79]", sw], k, k + 8)
                k = p_[-1] + F.SB
                G.put(k, "need " + sw, "s_barrier"); p_ = G.spread(srd_, k, k + 10)
                sfin = ["need " + srd_[3]] + grab(sfin_gt if F.GT else lambda: stats_fin(A, SP, NM_, RS_, 1)); ksf = p_[-1] + 6
            if dfr and W:
                o = post(False)
                if ep:
                    for t in range(2): G.put(F.POD + 2 + t * F.SS, o[8 + t])
                    G.spread(o[:4], F.POD, F.POD + 2); G.spread(o[4:8], F.POD + 3, F.POD + 2 + F.SS); G.spread(o[10:], F.POD + 3 + F.SS, F.POD + 12 + F.SS)
                else: G.put(F.POD, o[0]); G.put(F.POD + 1, *o[1:])
                if not F.D3 and not ep: G.put(F.D0, "vneed pk", *f2pre(False)[0], "f2chk")
            if dfr and (F.D3 or not W):
                g1 = F.POD + 1 if W else F.DB1
                for y in f1s: g1 = G.near(g1, y, F.R1) + (y[0] == "v") * F.SB1
            elif sym and not dfr: q1 = F.Q1W if W else F.Q1B; g1 = G.spread(f1s, q1, q1 + 12)[-1]
            if R:
                ns = F.LHI * NM // 64 - F.LLO
                lw = (F.LWD if W else F.LWB) if dfr else F.LWX if sym else F.LW2 if res and F.LW2 else [F.LLO + i * ns // KS for i in range(KS)]
                g = -1
                for i in range(KS):
                    x = ldA(i).split("\n"); g = G.near(max(lw[i], g + len(x)), f"vm:L{i}:" + x[-1], F.R1 and not stats)
                    if len(x) > 1: G.put(g - 1, x[0])
            w2n = res and F.LW2
            if w2n: G.put(G.near(0, f"vm:res:buffer_load_dwordx4 {vr(RES,4)}, v{L16}, {WSRD}, s82 offen", F.R1) + 1, "s_add_u32 s82, s82, 32768")
            if R or not F.QM4: G.near(F.PP2 if w2n and W else (F.PPD if W else F.LWB[-1] + 2) if dfr and R else NM * (F.PPR if R else F.PPN) // 32, "vm:poll:" + pollld, F.R1 and not stats)
            else:
                qm = NM * F.QM4 // 64
                G.near(F.PA, "vm:poll:" + pollld); G.put(qm, "vneed poll", "mid"); G.near(qm + 1, "vm:poll:" + pollld)
            G.spread([need(1, 71), need(2, 53)] + (["s_mov_b32 s57, s63"] if flg and not fin else []), 0, 8)
            if w2n and W and F.FW3: gf = 0
            elif flg and not fin and (stats or not W or w2n): gf = G.near(F.FPB * NM // 64 if not W else F.FW2 if w2n else F.FP4, flag("s57")); G.put(gf, "vneed out")
            so = None
            if W and not dfr:
                o = post(False)
                k = [i for i, x in enumerate(o) if not x.startswith("v_")][0]
                g = G.sched(o[:k], F.PO, F.PHI if stats else F.PO + 12) + 1 if k else F.PO
                if w2n: g = max(g, F.OW2, gf + 1)
                o = o[k:]; pos = G.spread(o, g, g + 5)
                so = [i for i, x in zip(pos, o) if x.startswith(("vm:out", "vm2:out"))]
                if stats: assert so[0] > F.FP4 + 4
                if res and not w2n: G.put(G.near(so[0] + F.FD, flag("s63")), "vneed out")
                if w2n and F.FW3: G.put(G.near(F.FW3, flag("s63")), "vneed out")
            if stats:
                if F.GT:
                    lu = lambda r: max([g + 1 for g in range(NM) for y in G.g[g] if f"v{r}" in y], default=0)
                    assert lu(NM_) <= ksf + 2
                    l2 = max(lu(RS_), lu(K0_), lu(K1_))
                    G.put(ksf, sfin[0]); g = G.sched(sfin[1:12], ksf, NM); G.sched(sfin[12:], max(g + 1, l2), NM)
                else:
                    assert not any(f"v{RS_}" in y for g in range(ksf, NM) for y in G.g[g])
                    G.put(ksf, sfin[0]); G.sched(sfin[1:], ksf, NM)
            if res:
                if not w2n: G.put(G.near(F.LLO - 2, f"vm:res:buffer_load_dwordx4 {vr(RES,4)}, v{L16}, {WSRD}, s82 offen") + 1, "s_add_u32 s82, s82, 32768")
                G.put(F.RSP, "vneed res"); G.sched(grab(lambda: unpack(A, RES, TM, 4)), F.RSP, NM)
            if dfr:
                P = fz(); q = (F.DW2 if F.D3 else F.D0) if W else F.DB2
                def seq(items, g):
                    i = 0
                    while i < len(items):
                        if items[i].startswith("vneed"): g = G.near(g, items[i + 1], F.R1); G.put(g, items[i]); i += 2
                        else: g = G.near(g, items[i], F.R1); i += 1
                        g += 1
                    return g
                if ep:
                    G.put(q, P["head"][0]); q = G.spread(chkv, q, NM, 1)[-1] + 1; G.put(q, "f2br"); G.put(q - 2, *P["head"][1:])
                elif F.D3 or not W: G.put(q, *P["head"], "f2chk")
                np_ = len(f2pre(False)[1]) - (1 if ep else 0); early = W and F.RE
                fl_ = ["vneed out", flag("s63")] if flg else []
                if F.D3:
                    p2_ = G.spread(P["calc"][:2], q + 1, NM, 1); P["calc"] = P["calc"][2:]; np_ -= 2
                    grz = seq(P["rz"], p2_[0] + 1); gf_ = seq(fl_, grz); P["rz"] = []; fl_ = []
                ps_ = G.spread(P["calc"][:np_], q + 1, NM, 1); g2 = seq(P["oad"] + P["book"], q + 1)
                if F.D3: g2 = max(g2, grz, gf_)
                if early: g2 = seq(fres, max(g2, ps_[-1] + 1))
                g = G.spread(P["calc"][np_:], ps_[-1], NM, 1)[-1] + 1
                g2 = max(g2, seq(P["rz"], ps_[0] + 1))
                fo = fl_ + P["out"] + P["cnt"]
                ld_ = f1s + ([] if early else fres); k1 = 1 if ep else 2
                if not W: seq(fo + ["s_mov_b32 s77, 0"], max(g, g2))
                elif F.D3:
                    g3 = seq(fo + ["s_mov_b32 s77, 1"], max(g, gf_))
                    if not R: seq(f1s, max(g2, F.D1N * NM // 64))
                elif F.DL and flg: g2 = seq(ld_[:k1], max(g, g2, F.D1 * NM // 64)); g2 = seq(ld_[k1:], g2 + F.SS - 1); seq(fo + ["s_mov_b32 s77, 1"], g2)
                else: seq(fo + ["s_mov_b32 s77, 1"], max(g, g2)); g2 = seq(ld_[:k1], max(g, g2, F.D1 * NM // 64)); seq(ld_[k1:], g2 + F.SS - 1)
                if not ep: G.put(NM - 2, "vneed rz")
            elif fin:
                q1 = NM * F.Q1 // 64; q2 = NM - F.Q2R if R else q1 + F.Q2N; q0 = F.Q0
                if sym: q1 = F.Q1W if W else F.Q1B; q2 = min(q1 + (F.Q2W if W else F.Q2B), NM - 6); q0 = F.Q0S
                if not sym: G.spread(f1s, q1, q1 + 12)
                p0, p1 = f2pre(False); G.put(q0, *p0); g = G.sched(p1, q0 + 1, q2) + 1
                if sym: g = max(g, g1 + 1)
                if sym:
                    for y in fres: g = G.near(g, y, F.R1) + 1
                else: G.spread(fres, g, g + 8)
                G.put(q2, "vneed pk")
                if flg: G.put(q2, flag("s63"))
                G.put(q2, "f2chk")
            nx = ["s_add_u32 s55, s55, 32768", "s_and_b32 s55, s55, 0x1ffff"] + [f"v_add_u32 v{VRD+x}, s55, v{VRB+x}" for x in range(4)]
            if R:
                nx = adv + nx + ([y for n in range(PRE) for y in (f"vneed L{n}", rd(n))] if F.PRG else [f"vneed L{KS-1}"] + [rd(n) for n in range(PRE)])
            G.spread(nx, lastrd + 1, NM)
            if fin and not dfr: G.spread(f2rest(False), q2 + 1, NM, 1)
            return G
        def vseq(G):
            return [t for x in sum([G.gap(i) for i in range(NM)], []) + G.over if x.startswith("vm") for t in [x.split(":")[1]] * (2 if x.startswith("vm2:") else 1)]
        n_t = len(tail); hs = [vseq(plan(w, True)) for w in (True, False)]; del tail[n_t:]
        def merge(hs):
            aft = {t: min(len(q) - 1 - max(i for i, x in enumerate(q) if x == t) for q in hs if t in q) for t in set(sum(hs, []))}
            h = [[] for _ in range(max(aft.values(), default=-1) + 1)]
            for t, n in aft.items(): h[len(h) - 1 - n].append(t)
            return h
        histR = [[("P" + t[1:] if t[0] == "L" else t) for t in x] for x in merge(hs)]
        histB = [["rs"]] + [[f"P{i}"] for i in range(KS)] + ([[t] for t in (("sn", "sn", "out", "fl", "rs") if ep else ("sn", "sn", "out", "rz", "rz", "fl", "rs"))] if dfr else [["out"], ["fl"]] if F.IPF and not xch else [["sn" if sym else "out"]] * NS)
        def body(W, R):
            G = plan(W, R); i00 = len(A.lines)
            Z = Sched(A); V = VMQ2(A, histR if W else histB)
            on = F.PROF == 2 or (F.PROF == 3 and (W, R) == F.PM); tp = [16, NM // 2] if F.PROF == 2 else [x * NM // 64 for x in F.TP]
            if on: tst(A, 0)
            if W: Z.q = [rd(n) for n in range(PRE)]
            else:
                for n in range(F.BD + 1): V.need(f"P{n}"); Z.lds(rd(n), rd(n))
            Z.need(rd(0))
            tr(8 + 2 * W + R)
            for i, m in enumerate(M):
                if on and i in tp: tst(A, 1 + tp.index(i))
                A.e(m)
                if i == NM - 1: V.need("poll"); A.e(f"v_cmp_gt_u32 vcc, s{53 if R else 71}, v{VF}") if not fin else None
                for y in G.gap(i): emit(Z, V, y)
            for y in G.over: emit(Z, V, y)
            if fin: A.e(f"v_cmp_gt_u32 vcc, s{53 if R else 71}, v{VF}")
            if F.PROF == 2: tst(A, 3); tst(A, 4)
            tr(4)
            A.e("s_add_u32 s60, s60, 1")
            if on and F.PROF == 3:
                sk = A.newlabel("pu"); tst(A, 5); A.e(f"s_cmp_le_u32 s60, {F.PU0}\ns_cbranch_scc1 {sk}\ns_mov_b32 s49, s97"); tacc(A, 6); A.e("s_add_u32 s97, s49, 1"); A.label(sk)
            elif on: tst(A, 5); tacc(A, 6)
            if W and R and F.DROP:
                import re
                A.lines[i00:] = [x for x in A.lines[i00:] if not any(re.search(p, x) for p in F.DROP)]
            return V
        WR, WN, BR, BN, lag, dec, nb = [A.newlabel(x) for x in ("WR", "WN", "BR", "BN", "lag", "dec", "nb")]
        if kind in F.HOLD: A.e("s_mov_b32 s71, 128"); poll_loop(A, pollld, VF, 71, 32)
        A.e(need(0, 71)); A.e(need(1, 53))
        poll_loop(A, pollld, VF, 71)
        A.label(lag); pc(0); tr(1)
        for i in range(KS): A.e(ldA(i))
        for x in adv: A.e(x)
        for _ in range(NS): A.e(dummy)
        A.label(dec)
        A.e(f"v_cmp_gt_u32 vcc, s53, v{VF}\ns_cbranch_vccnz {BN}")
        A.label(BR); pc(4); body(False, True); A.e(f"s_cbranch_vccnz {WN}")
        if F.GAL >= 0: A.lines += [".p2align 6"] + ["    s_nop 0"] * F.GAL
        A.label(WR); pc(3); body(True, True); A.e(f"s_cbranch_vccz {WR}")
        endN = A.newlabel("endN")
        A.label(WN); pc(2); VW_ = body(True, False); A.e(f"s_branch {endN}")
        A.label(BN); pc(1); VB_ = body(False, False)
        A.label(endN)
        hist = merge([[t[0] if t else "x" for t in V_.q[V_.done + 1:]] for V_ in (VW_, VB_)])
        mk = lambda: VMQ2(A, hist)
        def fza(V, pre, mid=[]):
            Z = Sched(A); P = fz()
            for x in V.q:
                if "out" in x: x[x.index("out")] = "po"
            for x in pre + P["head"] + ["f2chk"] + mid + P["calc"] + P["oad"] + P["out"] + P["rz"] + P["book"] + (["vneed po", flag("s63")] if flg else []) + P["cnt"]: emit(Z, V, x)
        def ipost(V, pk=True):
            Z = Sched(A); o = post(pk)
            if dfr:
                fza(V, o); A.e("s_mov_b32 s77, 1")
                for x in fres: emit(Z, V, x)
                return
            if F.IPF and not xch:
                for x in V.q:
                    if "out" in x: x[x.index("out")] = "po"
                A.e("s_mov_b32 s57, s63")
                for x in o: emit(Z, V, x)
                V.need("po"); emit(Z, V, flag("s57"))
                return
            k = 12 if stats and "out" in sum(hist, []) else len(o)
            for x in o[:k]: emit(Z, V, x)
            if k < len(o): V.need("out"); emit(Z, V, flag("s63"))
            for x in o[k:]: emit(Z, V, x)
        if F.QM4:
            nm_ = A.newlabel("nm")
            A.e(f"s_cmp_eq_u32 s72, 0\ns_cbranch_scc1 {nm_}\ns_nop 3"); ipost(mk()); A.e(f"s_branch {dec}"); A.label(nm_)
        A.e(f"s_cbranch_vccnz {nb}")
        pc(7); tr(2); V = mk()
        for i in range(KS): V.op(ldA(i), f"L{i}")
        for x in adv: A.e(x)
        ipost(V)
        A.e(f"s_branch {dec}")
        A.label(nb)
        V = mk()
        if not fin: V.op(pollld, "poll")
        A.e("s_nop 3")
        ipost(V, 2)
        Z = Sched(A)
        if dfr:
            if F.FDL: A.e(f"s_sleep {F.FDL}")
            fza(V, f1s, ["vm:poll:" + pollld]); A.e("s_mov_b32 s77, 0")
            V.need("out" if flg else "poll")
        elif fin:
            if F.FDL: A.e(f"s_sleep {F.FDL}")
            for x in f1s + sum(f2pre(True, FIN), []) + ["vneed pk"] + ([flag("s63")] if flg else []) + ["f2chk", "vm:poll:" + pollld] + f2rest(True): emit(Z, V, x)
            V.need("out" if flg else "poll")
        else:
            V.need("poll"); A.e(f"v_cmp_gt_u32 vcc, s71, v{VF}\ns_cbranch_vccz {lag}")
            if flg: V.need("out")
        if flg: emit(Z, V, flag("s63"))
        if fin: A.e(f"v_cmp_gt_u32 vcc, s71, v{VF}\ns_cbranch_vccz {lag}")
        A.e(f"s_cmp_ge_u32 s60, {NU}\ns_cbranch_scc1 {done}")
        pc(5); poll_loop(A, pollld, VF, 71)
        A.e(f"s_branch {lag}")
    if F.PROF:
        for r in ST: A.e(f"v_mov_b32 v{r}, 0")
        A.e(f"s_memrealtime s[84:85]\ns_waitcnt lgkmcnt(0)\nv_writelane_b32 v{ST[2]}, s84, 0\nv_writelane_b32 v{ST[2]}, s86, 1")
    tinit(A)
    if F.TRU: A.e("s_mov_b32 s94, 0")
    if sym: loop(True)
    elif xch:
        lf = A.newlabel("lfin")
        A.e(f"s_cmp_eq_u32 s50, s52\ns_cbranch_scc1 {lf}")
        loop(False); A.label(lf); loop(True)
    elif kind == "w1" and F.LOC & 1:
        lf = A.newlabel("lfar")
        A.e(f"s_cmp_eq_u32 s56, 1\ns_cbranch_scc1 {lf}")
        LS[0] = ""; loop(False)
        while tail: tail.pop(0)()
        A.label(lf); LS[0] = "sc1"; loop(False)
    else: loop(False)
    while tail: tail.pop(0)()
    A.label(done)
    tout(A, ST[2]); stamp_out(A, ST)
    A.e("s_endpgm")

def stamp2(A, ST, s="s60", sub=0, sr_=84):
    if not F.PROF or F.TRU or F.PROF == 3: return
    l1 = A.newlabel("st1"); l2 = A.newlabel("st2"); l3 = A.newlabel("st3"); l4 = A.newlabel("st4")
    if F.SPS and F.PROF == 1: A.e(f"s_sub_u32 s88, {s}, {sub + 4}\ns_cmp_ge_u32 s88, 116\ns_cbranch_scc1 {l4}\ns_and_b32 s88, s88, 7\ns_cmp_lg_u32 s88, 4\ns_cbranch_scc1 {l3}"); A.label(l4)
    A.e(f"s_memrealtime s[{sr_}:{sr_+1}]\ns_sub_u32 s88, {s}, {sub}\ns_lshr_b32 s89, s88, 1\ns_mov_b32 s87, m0\ns_mov_b32 m0, s89\ns_waitcnt lgkmcnt(0)\ns_bitcmp1_b32 s88, 0\ns_cbranch_scc1 {l1}\nv_writelane_b32 v{ST[0]}, s{sr_}, m0\ns_branch {l2}")
    A.label(l1); A.e(f"v_writelane_b32 v{ST[1]}, s{sr_}, m0"); A.label(l2); A.e("s_mov_b32 m0, s87"); A.label(l3); A.e("s_nop 3")

def ln_role(A, L):
    R = dict(RM=8, CO=9, FR=10, SW=11, SR=12); VFA, VF, VT = 13, 14, 15
    C1, SB = 32, 48; BUF = (64, 72); V = 80; T = 96; PK = 112; ST = (120, 121, 122)
    done = A.newlabel("done")
    A.e("s_mov_b32 s52, s59\ns_mov_b32 s60, 0\ns_mov_b32 s73, 0xffff0000")
    row_lanes(A, 52, R)
    A.e(f"v_and_b32 v{VFA}, {31 if F.SYM and F.K3 == 2 else 7}, v1\nv_lshlrev_b32 v{VFA}, 2, v{VFA}")
    verify(A, L, False, "mod")
    load_consts(A, R, 4, C1, 64, True); load_consts(A, R, 3, SB, 64)
    if "ln2" in F.OFF: A.e("s_endpgm")
    A.e(f"""
    s_mov_b32 s63, {X1}
    s_mov_b32 s66, {H2}
    s_lshl_b32 s64, s50, 8
    s_add_u32 s68, s64, {F_WO}
    s_lshl_b32 s65, s59, 2
    s_add_u32 s69, s64, s65
    s_add_u32 s69, s69, {F_LN}""")
    VFL = 16
    if F.LOC & 2: A.e(f"s_lshl_b32 s64, s50, 9\ns_lshl_b32 s65, s59, 7\ns_add_u32 s69, s64, s65\ns_add_u32 s69, s69, {F_LNL}\nv_lshlrev_b32 v{VFL}, 2, v1\nv_cmp_gt_u32 vcc, 32, v1\nv_cndmask_b32 v{VFL}, 2.0, v{VFL}, vcc")
    NS = 2
    def loads(par):
        A.e(f"s_add_u32 s64, s63, 4096\nbuffer_load_dwordx4 {vr(BUF[par],4)}, v{R['FR']}, {WSRD}, s63 offen\nbuffer_load_dwordx4 {vr(BUF[par]+4,4)}, v{R['FR']}, {WSRD}, s64 offen\ns_add_u32 s63, s63, 32768")
    pollld = f"buffer_load_dword v{VF}, v{VFA}, {WSRD}, s68 offen sc1"
    def dummies():
        for _ in range(NS): A.e(f"buffer_load_dword v{VT}, off, {WSRD}, s68")
    if F.PROF:
        for r in ST: A.e(f"v_mov_b32 v{r}, 0")
    def lnloop(ls):
        ld_ = ls if F.LOCX & 1 else "sc1"
        top = [A.newlabel("top0"), A.newlabel("top1")]
        def flag_store(A, vt, sval, saddr):
            if F.LOC & 2: A.e(f"v_mov_b32 v{vt}, {sval}\nbuffer_store_dword v{vt}, v{VFL}, {WSRD}, s{saddr} offen {ls}")
            else: A.e(f"v_mov_b32 v{vt}, {sval}\ns_mov_b64 exec, 1\nbuffer_store_dword v{vt}, off, {WSRD}, s{saddr} {ls}\ns_mov_b64 exec, -1")
        A.e("s_mov_b32 s71, 1")
        poll_loop(A, pollld, VF, 71)
        loads(0); dummies()
        tail = []
        for par in range(2):
            slowp = A.newlabel("slowp"); p2 = A.newlabel("p2")
            A.label(top[par])
            A.e(pollld)
            A.e(f"s_add_u32 s71, s60, 2\ns_waitcnt vmcnt({NS+1})")
            unpack(A, BUF[par], V, 8)
            i0 = len(A.lines); ln_core(A, V, C1, SB, T, R, par * 2048, PK); body = A.lines[i0:]; del A.lines[i0:]
            k = [i for i, x in enumerate(body) if "s_barrier" in x][0]
            A.lines += body[:k + 1]
            A.e("s_waitcnt vmcnt(0)"); flag_store(A, VT, "s60", 69)
            A.e(f"v_cmp_gt_u32 vcc, s71, v{VF}\ns_mov_b32 s72, 0\ns_cbranch_vccnz {p2}\ns_mov_b32 s72, 1")
            loads(par ^ 1)
            A.label(p2)
            A.lines += body[k + 1:]
            A.e(f"s_add_u32 s64, s66, 4096\nbuffer_store_dwordx4 {vr(PK,4)}, v{R['FR']}, {WSRD}, s66 offen {ld_}\nbuffer_store_dwordx4 {vr(PK+4,4)}, v{R['FR']}, {WSRD}, s64 offen {ld_}")
            stamp(A, ST[par])
            A.e(f"s_add_u32 s66, s66, 32768\ns_add_u32 s60, s60, 1\ns_cmp_eq_u32 s72, 0\ns_cbranch_scc1 {slowp}")
            if par: A.e(f"s_branch {top[0]}")
            def d(par=par, slowp=slowp):
                A.label(slowp)
                A.e(pollld)
                A.e("s_waitcnt vmcnt(1)"); flag_store(A, VT, "s60", 69)
                go = A.newlabel("go")
                A.e(f"s_cmp_ge_u32 s60, {NU}\ns_cbranch_scc1 {done}\ns_waitcnt vmcnt(1)\nv_cmp_gt_u32 vcc, s71, v{VF}\ns_cbranch_vccz {go}")
                poll_loop(A, pollld, VF, 71)
                A.label(go)
                loads(par ^ 1); dummies()
                A.e(f"s_branch {top[par^1]}")
            tail.append(d)
        for d in tail: d()
    def lndp(ls):
        ld_ = ls if F.LOCX & 1 else "sc1"
        top = [A.newlabel("top0"), A.newlabel("top1")]; tail = []
        def flag_(): A.e(f"v_mov_b32 v{VT}, s60\nbuffer_store_dword v{VT}, v{VFL}, {WSRD}, s69 offen {ls}")
        def ld(par): A.e(f"s_add_u32 s64, s63, 4096\nbuffer_load_dwordx4 {vr(BUF[par],4)}, v{R['FR']}, {WSRD}, s63 offen sc1\nbuffer_load_dwordx4 {vr(BUF[par]+4,4)}, v{R['FR']}, {WSRD}, s64 offen sc1")
        def chk(par):
            b = BUF[par]
            A.e(f"v_max3_u32 v{VF}, v{b}, v{b+1}, v{b+2}\nv_max3_u32 v{VFA}, v{b+3}, v{b+4}, v{b+5}\nv_max3_u32 v{VF}, v{VF}, v{b+6}, v{b+7}\nv_max_u32 v{VF}, v{VF}, v{VFA}\nv_cmp_eq_u32 vcc, -1, v{VF}")
        ld(0); dummies()
        for par in range(2):
            rt = A.newlabel("rt"); go = A.newlabel("go"); lp = A.newlabel("lp")
            A.label(top[par])
            A.e("s_waitcnt vmcnt(2)"); chk(par)
            A.e(f"s_cbranch_vccnz {rt}"); A.label(go)
            A.e("s_add_u32 s63, s63, 32768"); ld(par ^ 1)
            unpack(A, BUF[par], V, 8)
            i0 = len(A.lines); ln_core(A, V, C1, SB, T, R, par * 2048, PK); body = A.lines[i0:]; del A.lines[i0:]
            k = [i for i, x in enumerate(body) if "s_barrier" in x][0]
            A.lines += body[:k + 1]
            A.e("s_waitcnt vmcnt(2)"); flag_()
            A.lines += body[k + 1:]
            A.e(f"s_add_u32 s64, s66, 4096\nbuffer_store_dwordx4 {vr(PK,4)}, v{R['FR']}, {WSRD}, s66 offen {ld_}\nbuffer_store_dwordx4 {vr(PK+4,4)}, v{R['FR']}, {WSRD}, s64 offen {ld_}")
            stamp(A, ST[par])
            A.e(f"s_add_u32 s66, s66, 32768\ns_add_u32 s60, s60, 1")
            if par: A.e(f"s_cmp_lt_u32 s60, {NU}\ns_cbranch_scc1 {top[0]}\ns_waitcnt vmcnt(0)"); flag_(); A.e(f"s_branch {done}")
            def d(par=par, rt=rt, go=go, lp=lp):
                A.label(rt)
                ld(par); A.e("s_waitcnt vmcnt(2)"); flag_(); A.e("s_waitcnt vmcnt(1)"); chk(par)
                A.e(f"s_cbranch_vccz {go}")
                A.label(lp)
                if F.DPS: A.e(f"s_sleep {F.DPS}")
                ld(par); A.e("s_waitcnt vmcnt(0)"); chk(par)
                A.e(f"s_cbranch_vccz {go}\ns_sub_u32 s90, s90, 1\ns_cmp_gt_i32 s90, 0\ns_cbranch_scc1 {lp}\ns_branch {go}")
            tail.append(d)
        for d in tail: d()
    fn = lndp if F.DP else lnloop
    if F.DP: assert F.LOC & 2
    if F.LOC & 2:
        lf = A.newlabel("lfar")
        A.e(f"s_cmp_eq_u32 s56, 1\ns_cbranch_scc1 {lf}")
        fn(""); A.label(lf)
    fn("sc1")
    A.label(done)
    stamp_out(A, ST)
    A.e("s_endpgm")

def att_role(A, L, team=False):
    NUA = NU - 2 * F.AT
    L16, VFA, VKM, VVM, VF, VT, VNEG = 0, 2, 3, 4, 5, 6, 7
    KM, VM, SA, SM, P, TT, OA, PK = 16, 32, 48, 56, 64, 72, 80, 112; ST = (120, 121, 122)
    Q = lambda b, ke: ar(b * 80 + ke * 4, 4)
    K = lambda b, kt, ke: ar(b * 80 + 16 + (kt * 4 + ke) * 4, 4)
    V = lambda b, et: ar(b * 80 + 48 + et * 4, 4)
    if team: A.e(f"s_lshr_b32 s46, s59, 4\ns_and_b32 s59, s59, 15\nv_mbcnt_lo_u32_b32 v1, -1, 0\nv_mbcnt_hi_u32_b32 v1, -1, v1")
    else: verify(A, L, True)
    A.e(f"""
    v_lshlrev_b32 v{L16}, 4, v1
    v_and_b32 v21, 15, v1
    v_lshrrev_b32 v22, 4, v1
    v_and_b32 v23, 7, v21
    v_lshlrev_b32 v23, 4, v23
    v_lshl_add_u32 v{VKM}, v22, 8, v23
    v_and_b32 v23, 31, v1
    v_lshlrev_b32 v{VVM}, 4, v23
    v_and_b32 v23, 3, v1
    v_bfe_u32 v24, v1, 2, 1
    v_lshlrev_b32 v23, 14, v23
    v_lshl_add_u32 v{VFA}, v24, 7, v23
    v_mov_b32 v{VNEG}, {NEG:#x}
    s_and_b32 s54, s50, 1
    s_lshl_b32 s64, s54, 4
    v_lshlrev_b32 v23, 2, v22
    v_sub_u32 v23, v21, v23
    v_add_u32 v23, s64, v23            ; query - 4g""")
    for kt in range(2):
        for r in range(4): A.e(f"v_cmp_le_i32 s[{28+2*(kt*4+r)}:{29+2*(kt*4+r)}], {16*kt+r}, v23")
    A.e(f"""
    s_mov_b32 s44, -1
    s_mov_b32 s45, 0
    s_mov_b32 s80, {f2u(SCL):#x}
    s_lshl_b32 s52, s59, 1
    s_lshr_b32 s64, s50, 1
    s_add_u32 s52, s52, s64            ; head
    s_lshl_b32 s53, s52, 15            ; 2h * 16KB
    s_lshl_b32 s68, s52, 8
    s_add_u32 s68, s68, s67
    s_add_u32 s68, s68, {F_KVM}
    s_lshl_b32 s69, s59, 8
    s_lshl_b32 s64, s64, 2
    s_add_u32 s69, s69, s64
    s_lshl_b32 s64, s54, 3
    s_add_u32 s69, s69, s64
    s_add_u32 s69, s69, {F_ATT}
    s_lshl_b32 s66, s52, 12
    s_lshl_b32 s64, s54, 17
    s_add_u32 s66, s66, s64
    s_add_u32 s66, s66, {OB}
    s_lshl_b32 s55, s54, 10
    s_xor_b32 s55, s55, 0x2000
    s_mov_b32 s60, 0                   ; 2 * segment""")
    def near(dst, add):
        A.e(f"""
        s_add_u32 s64, s60, {2*add}
        s_lshl_b32 s65, s64, 11
        s_and_b32 s65, s65, 0x2000
        s_xor_b32 s65, s65, s67
        s_lshl_b32 s64, s64, 19
        s_add_u32 s64, s64, s65
        s_add_u32 s{dst}, s64, s53""")
    def kq_loads(b, add):
        near(92, add)
        A.e("s_add_u32 s93, s92, 16384\ns_add_u32 s94, s92, 4096\ns_add_u32 s95, s93, 4096\ns_xor_b32 s96, s92, s55\ns_xor_b32 s97, s93, s55")
        for ke in range(4):
            A.e(f"buffer_load_dwordx4 {Q(b,ke)}, v{L16}, {WSRD}, s{96+(ke>>1)} offen offset:{(ke&1)*2048}")
            for kt in range(2): A.e(f"buffer_load_dwordx4 {K(b,kt,ke)}, v{L16}, {WSRD}, s{92+(ke>>1)} offen offset:{(ke&1)*2048 + kt*1024}")
    def v_loads(b):
        for et in range(8): A.e(f"buffer_load_dwordx4 {V(b,et)}, v{L16}, {WSRD}, s{94+(et>>2)} offen offset:{(et&3)*1024}")
    def softmax(vals):
        mx, t, sm, r = TT, TT + 1, TT + 2, TT + 3
        A.e(f"v_max3_f32 v{mx}, v{mx}, v{vals[8]}, v{vals[9]}\nv_max3_f32 v{mx}, v{mx}, v{vals[10]}, v{vals[11]}")
        for sw in ("v_permlane16_swap_b32", "v_permlane32_swap_b32"): A.e(f"v_mov_b32 v{t}, v{mx}\n{sw} v{t}, v{mx}\nv_max_f32 v{mx}, v{mx}, v{t}")
        A.e(f"v_mul_f32 v{mx}, s80, v{mx}")
        for v in vals: A.e(f"v_fma_f32 v{v}, v{v}, s80, -v{mx}")
        for v in vals: A.e(f"v_exp_f32 v{v}, v{v}")
        A.e(f"v_add_f32 v{sm}, v{vals[0]}, v{vals[1]}\nv_add_f32 v{r}, v{vals[2]}, v{vals[3]}")
        for i in range(4, 12, 2): A.e(f"v_add_f32 v{sm}, v{sm}, v{vals[i]}\nv_add_f32 v{r}, v{r}, v{vals[i+1]}")
        A.e(f"v_add_f32 v{sm}, v{sm}, v{r}")
        for sw in ("v_permlane16_swap_b32", "v_permlane32_swap_b32"): A.e(f"v_mov_b32 v{t}, v{sm}\n{sw} v{t}, v{sm}\nv_add_f32 v{sm}, v{sm}, v{t}")
        A.e(f"v_rcp_f32 v{r}, v{sm}")
        for v in vals: A.e(f"v_mul_f32 v{v}, v{v}, v{r}")
        for i in range(6): A.e(f"v_cvt_pk_bf16_f32 v{P+i}, v{vals[2*i]}, v{vals[2*i+1]}")
    pollld = f"buffer_load_dword v{VF}, v{VFA}, {WSRD}, s68 offen sc1"
    if F.PROF:
        for r in ST: A.e(f"v_mov_b32 v{r}, 0")
    if team:
        A.e(f"""
        s_lshl_b32 s60, s46, 1
        s_add_u32 s60, s60, {NUA}
        s_lshl_b32 s64, s60, 17
        s_add_u32 s66, s66, s64
        s_lshl_b32 s47, s52, 7
        s_add_u32 s47, s47, s67
        s_add_u32 s47, s47, {F_QKV}
        v_and_b32 v23, 1, v1
        v_lshlrev_b32 v23, 6, v23
        s_mov_b32 s71, {NSEG}""")
        poll_loop(A, f"buffer_load_dword v{VF}, v23, {WSRD}, s47 offen sc1", VF, 71, 16)
    else:
        for k in range(F.AT): A.e(f"s_add_u32 s64, s69, {16*(k+1)}"); flag_store(A, VT, NUA + 2 * k, 64)
        A.e("s_mov_b32 s71, 1")
        poll_loop(A, pollld, VF, 71, F.ASL)
    avl = F.AVL and not team
    kq_loads(0, 0)
    if not avl: v_loads(0)
    A.e(f"s_waitcnt vmcnt({0 if avl else 8})")
    top = [A.newlabel("top0"), A.newlabel("top1")]
    for b in range(1 if team else 2):
        A.label(top[b])
        for ke in range(4):
            for kt in range(2):
                d = vr(SA + 4 * kt, 4); A.e(f"{MF} {d}, {K(b,kt,ke)}, {Q(b,ke)}, {d if ke else 0}")
        for i in range(8): A.e(f"v_cndmask_b32 v{SA+i}, v{VNEG}, v{SA+i}, s[{28+2*i}:{29+2*i}]")
        A.e(f"v_max3_f32 v{TT}, v{SA}, v{SA+1}, v{SA+2}\nv_max3_f32 v{TT}, v{TT}, v{SA+3}, v{SA+4}\nv_max3_f32 v{TT}, v{TT}, v{SA+5}, v{SA+6}\nv_max_f32 v{TT}, v{TT}, v{SA+7}")
        near(98, 0)
        if team:
            A.e(f"s_mov_b32 s71, {F.ATP}"); poll_loop(A, f"buffer_load_dword v{VF}, off, {WSRD}, s69 sc1", VF, 71, 32)
            A.e("s_lshl_b32 s64, s46, 4\ns_add_u32 s69, s69, s64\ns_add_u32 s69, s69, 16")
        A.e(f"s_add_u32 s98, s98, {KVM}\ns_add_u32 s99, s98, 16384\ns_lshr_b32 s71, s60, 1\ns_add_u32 s71, s71, 1")
        ek = A.newlabel("ek")
        if F.APE and not team: A.e(f"s_waitcnt vmcnt(1)\nv_cmp_gt_u32 vcc, s71, v{VF}\ns_cbranch_vccz {ek}")
        kd = A.newlabel("kd"); kj = A.newlabel("kj")
        if team and F.KDP: A.e(f"s_min_u32 s71, s71, {NSEG-1}")
        poll_loop(A, pollld, VF, 71, F.ASL)
        if team and F.KDP: A.e(f"s_cmp_eq_u32 s60, {NU-2}\ns_cbranch_scc1 {kd}")
        A.label(ek)
        for ke in range(4): A.e(f"buffer_load_dwordx4 {vr(KM+4*ke,4)}, v{VKM}, {WSRD}, s{98+(ke>>1)} offen offset:{(ke&1)*128}")
        if avl: v_loads(b)
        for ke in range(4): A.e(f"buffer_load_dwordx4 {vr(VM+4*ke,4)}, v{VVM}, {WSRD}, s{98+(ke>>1)} offen offset:{1024 + (ke&1)*512}")
        if team and F.KDP:
            A.e(f"s_branch {kj}"); A.label(kd)
            for ke in range(4): A.e(f"buffer_load_dwordx4 {vr(KM+4*ke,4)}, v{VKM}, {WSRD}, s{98+(ke>>1)} offen offset:{(ke&1)*128} sc1")
            for ke in range(4): A.e(f"buffer_load_dwordx4 {vr(VM+4*ke,4)}, v{VVM}, {WSRD}, s{98+(ke>>1)} offen offset:{1024 + (ke&1)*512} sc1")
            A.e("s_waitcnt vmcnt(4)")
            for i in range(2): A.e(f"v_max3_u32 v{VF+i}, v{KM+8*i}, v{KM+8*i+1}, v{KM+8*i+2}")
            for q in range(13):
                if q == 4: A.e("s_waitcnt vmcnt(0)")
                r = [KM + 3, KM + 5, KM + 11, KM + 13, VM, VM + 2, VM + 4, VM + 6, VM + 8, VM + 10, VM + 12, VM + 14][q] if q < 12 else None
                if r: A.e(f"v_max3_u32 v{VF+(q&1)}, v{VF+(q&1)}, v{r}, v{r+1}")
            A.e(f"v_max3_u32 v{VF}, v{VF}, v{KM+7}, v{KM+15}\nv_max_u32 v{VF}, v{VF}, v{VF+1}\nv_cmp_eq_u32 vcc, -1, v{VF}\ns_cbranch_vccz {kj}\ns_sleep {F.KDP}\ns_sub_u32 s90, s90, 1\ns_cmp_gt_i32 s90, 0\ns_cbranch_scc1 {kd}")
            A.label(kj)
        stamp(A, ST[2])
        if F.PROF: A.e(f"s_memtime s[84:85]\ns_waitcnt lgkmcnt(0)\nv_writelane_b32 v{ST[1]}, s84, m0")
        if F.ABAR and not team: A.e("s_barrier")
        def guarded(f, n):
            if team: return
            if b == 0: return f()
            pf = A.newlabel("pf"); j1 = A.newlabel("j1")
            A.e(f"s_cmp_lt_u32 s60, {NUA-2}\ns_cbranch_scc1 {pf}\ns_waitcnt vmcnt({n})\ns_branch {j1}")
            A.label(pf); f(); A.label(j1)
        guarded(lambda: kq_loads(b ^ 1, 1), 0)
        A.e(f"s_waitcnt vmcnt({4 if team else 24 if avl else 16})")
        for ke in range(4): A.e(f"{MF} {vr(SM,4)}, {vr(KM+4*ke,4)}, {Q(b,ke)}, {vr(SM,4) if ke else 0}")
        for r in range(4): A.e(f"v_cndmask_b32 v{SM+r}, v{VNEG}, v{SM+r}, s[44:45]")
        softmax(list(range(SA, SA + 12)))
        for et in range(8):
            if avl and et % 2 == 0: A.e(f"s_waitcnt vmcnt({22 - et})")
            A.e(f"{MF} {vr(OA+4*et,4)}, {V(b,et)}, {vr(P,4)}, 0")
        A.e(f"s_waitcnt vmcnt({0 if team else 12})")
        for et in range(8): A.e(f"v_mfma_f32_16x16x16_bf16 {vr(OA+4*et,4)}, {vr(VM+2*et,2)}, {vr(P+4,2)}, {vr(OA+4*et,4)}")
        for ke in range(4):
            o = PK + 4 * (ke & 1)
            for i in range(4): A.e(f"v_cvt_pk_bf16_f32 v{o+i}, v{OA+8*ke+2*i}, v{OA+8*ke+2*i+1}")
            A.e(f"buffer_store_dwordx4 {vr(o,4)}, v{L16}, {WSRD}, s66 offen offset:{ke*1024} sc1")
        stamp(A, ST[0])
        if team:
            A.e("s_waitcnt vmcnt(0)"); flag_store(A, VT, NU, 69); break
        if F.ABAR and not avl: A.e("s_barrier")
        if not avl: guarded(lambda: v_loads(b ^ 1), 0)
        if F.APE: A.e(pollld)
        A.e("s_add_u32 s66, s66, 262144\ns_add_u32 s60, s60, 2\ns_add_u32 s72, s60, s54")
        if b and F.AT: A.e(f"s_cmp_eq_u32 s60, {NUA}\ns_cselect_b32 s72, {NU}, s72")
        A.e(f"s_waitcnt vmcnt({(0 if avl else 8) + F.APE})"); flag_store(A, VT, "s72", 69)
        if b: A.e(f"s_cmp_lt_u32 s60, {NUA}\ns_cbranch_scc1 {top[0]}")
    if F.PROF and F.AT:
        if team: A.e("s_add_u32 s58, s59, 224\ns_lshr_b32 s64, s60, 1\ns_lshl_b64 s[48:49], 1, s64")
        else: A.e(f"s_mov_b32 s48, -1\ns_mov_b32 s49, {(1 << (NUA // 2 - 32)) - 1:#x}")
        i0 = len(A.lines); stamp_out(A, ST); k = [i for i in range(i0, len(A.lines)) if "buffer_store" in A.lines[i]][0]
        A.lines.insert(k, "    s_mov_b64 exec, s[48:49]")
    else: stamp_out(A, ST)
    A.e("s_endpgm")

def flow_kernel(A, name):
    A.begin_kernel(name)
    L = {k: f"fl_{k}" for k in ("fb", "disp0", "disp", "rec", "qkv", "wo", "w4", "w3", "att", "ln2", "w1", "w2", "dutb", "att2")}
    done = A.newlabel("done"); nr = A.newlabel("norole")
    A.e(f"s_cmp_ge_u32 s2, 256\ns_cbranch_scc1 {done}\ns_lshr_b32 s49, s2, 3")
    ldptr(A, 18, "ws"); ldptr(A, 2, "dbg")
    if F.KW: ldptr(A, 4, "x")
    A.e(f"""
    s_getreg_b32 s51, hwreg(HW_REG_XCC_ID)
    v_lshrrev_b32 v2, 6, v0
    v_and_b32 v1, 63, v0
    s_and_b32 s51, s51, 7
    v_readfirstlane_b32 s50, v2
    s_mov_b32 s90, {F.BUD}
    s_mov_b32 s56, 2
    s_mov_b32 s88, {CB0}
    s_lshl_b32 s64, s51, 2
    s_lshr_b32 s64, {F.XMAP:#x}, s64
    s_and_b32 s64, s64, 7
    s_lshl_b32 s58, s64, 5
    s_add_u32 s58, s58, s49""")
    if F.PROF: A.e("s_memrealtime s[86:87]")
    A.e("s_waitcnt lgkmcnt(0)")
    A.srd(20, 18, WS_BYTES)
    A.e(f"s_cmp_lg_u32 s50, 0\ns_cbranch_scc1 {L['disp0']}")
    dbg_srd(A, 92)
    A.e(f"""
    s_lshl_b32 s64, 1, s49
    v_mov_b32 v2, s64
    v_mov_b32 v3, 0x100
    s_lshl_b32 s64, s51, 3
    s_mov_b64 exec, 1
    buffer_atomic_add_x2 v[2:3], off, s[92:95], s64 sc1
    s_mov_b64 exec, -1""")
    A.label(L["disp0"])
    A.e("v_mbcnt_lo_u32_b32 v1, -1, 0\nv_mbcnt_hi_u32_b32 v1, -1, v1")
    f1 = A.newlabel("nx"); f2 = A.newlabel("nx")
    A.e(f"s_sub_u32 s59, s58, 64\ns_cbranch_scc0 {f1}\ns_branch {L['rec']}"); A.label(f1)
    A.e(f"s_cmp_lt_u32 s58, 128\ns_cbranch_scc0 {f2}\ns_branch {L['qkv']}"); A.label(f2)
    A.e(f"s_cmp_ge_u32 s58, 192\ns_cbranch_scc1 {L['dutb']}")
    if "A" in F.EXP: A.e("s_endpgm")
    duty(A, L, 0)
    if "a" in F.EXP or F.X2: A.e("s_endpgm")
    A.e(f"s_branch {L['disp']}")
    A.label(L["dutb"])
    if "B" in F.EXP: A.e("s_endpgm")
    duty(A, L, 1)
    A.label(L["disp"])
    if F.LOC & 2: A.e("s_lshr_b32 s64, s58, 2\ns_sub_u32 s64, s64, 55\ns_andn2_b32 s64, s64, 4\ns_cmp_eq_u32 s64, 0\ns_cselect_b32 s64, 48, 0\ns_xor_b32 s58, s58, s64")
    for lo, role in ((248, "w2"), (240, "w1"), (224, "att"), (220, "ln2"), (192, "w3"), (160, "w4")):
        far = A.newlabel("nx")
        A.e(f"s_sub_u32 s59, s58, {lo}\ns_cbranch_scc1 {far}\ns_branch {L[role]}"); A.label(far)
    A.e(f"s_sub_u32 s59, s58, 128\ns_branch {L['wo']}")
    A.label(L["fb"])
    tp = A.newlabel("tp"); tg = A.newlabel("tg"); sl = A.newlabel("tsl")
    dbg_srd(A, 92)
    A.e(f"""
    s_waitcnt vmcnt(0) lgkmcnt(0)
    s_barrier
    v_mov_b32 v4, 0
    s_cmp_lg_u32 s50, 0
    s_cbranch_scc1 {nr}
    s_mov_b64 exec, 1
    v_mov_b32 v3, 1
    s_lshl_b32 s52, s51, 2
    s_add_u32 s52, s52, {TICK}
    buffer_atomic_add v3, off, s[92:95], s52 sc0 sc1
    s_waitcnt vmcnt(0)
    ds_write_b32 v4, v3
    s_waitcnt lgkmcnt(0)
    s_mov_b64 exec, -1""")
    A.label(nr)
    A.e(f"""
    s_barrier
    ds_read_b32 v3, v4
    v_mbcnt_lo_u32_b32 v16, -1, 0
    v_and_b32 v16, 7, v16
    v_lshlrev_b32 v16, 2, v16
    s_waitcnt lgkmcnt(0)
    v_readfirstlane_b32 s49, v3
    s_barrier""")
    A.label(tp)
    A.e(f"buffer_load_dword v17, v16, s[92:95], 0 offen offset:{TICK} sc1\ns_waitcnt vmcnt(0)")
    for x in range(8): A.e(f"v_readlane_b32 s{72+x}, v17, {x}")
    A.e("s_add_u32 s65, s72, s73")
    for x in range(2, 8): A.e(f"s_add_u32 s65, s65, s{72+x}")
    A.e(f"s_cmp_ge_u32 s65, 256\ns_cbranch_scc1 {tg}\ns_sleep 4\ns_sub_u32 s90, s90, 1\ns_cmp_gt_i32 s90, 0\ns_cbranch_scc1 {tp}")
    A.label(tg)
    A.e("s_min_u32 s65, s72, s73")
    for x in range(2, 8): A.e(f"s_min_u32 s65, s65, s{72+x}")
    A.e(f"""
    s_mov_b32 s88, {CB1}
    s_cmp_lt_u32 s65, {33 if F.FORCE_SLOW else 32}
    s_cbranch_scc1 {sl}
    s_lshl_b32 s64, s51, 2
    s_lshr_b32 s64, {F.XMAP:#x}, s64
    s_and_b32 s64, s64, 7
    s_lshl_b32 s58, s64, 5
    s_add_u32 s58, s58, s49
    s_mov_b32 s56, 0
    s_branch {L['disp0']}""")
    A.label(sl)
    A.e("s_mov_b32 s58, s49")
    for x in range(7): A.e(f"s_cmp_gt_u32 s51, {x}\ns_cselect_b32 s65, s{72+x}, 0\ns_add_u32 s58, s58, s65")
    if F.FORCE_SLOW: A.e("s_mul_i32 s58, s58, 37\ns_add_u32 s58, s58, 11\ns_and_b32 s58, s58, 255")
    A.e(f"s_mov_b32 s56, 1\ns_cmp_lt_u32 s58, 256\ns_cbranch_scc1 {L['disp0']}")
    A.label(done)
    A.e("s_endpgm")
    A.label(L["qkv"]); qkv_role(A, L)
    for role in ("wo", "w4", "w3", "w1", "w2"):
        A.label(L[role])
        if role in F.OFF: A.e("s_endpgm")
        (gemm4_role if F.K3 == 2 else gemm3_role if F.K3 else gemm_role)(A, L, role)
    A.label(L["ln2"]); ln_role(A, L)
    A.label(L["att"])
    if "att" in F.OFF: A.e("s_endpgm")
    att_role(A, L)
    if F.AT: A.label(L["att2"]); att_role(A, L, True)
    MFMA_WS[0] = 1
    A.lines = fix_hazards(A.lines)
    B = Asm(); B.uid = A.uid + 100000
    O = rec6.O; O.MEAS = 0; O.DL0 = max(0, O.DL - F.DLO); O.DO01 = max(0, O.DO - F.DOO)
    MFMA_WS[0] = O.MWS
    if F.RAL >= 0: B.lines += [".p2align 8"] + ["    s_nop 0"] * F.RAL
    B.label(L["rec"])
    B.e(f"s_load_dwordx8 s[4:11], s[0:1], {ARG['mem0']*8}\ns_load_dwordx2 s[12:13], s[0:1], {ARG['Wo']*8}\ns_mov_b32 s57, s58\nv_mov_b32 v0, v1\ns_waitcnt lgkmcnt(0)")
    O.PTC = (16 + C_I, 0x10000 if (F.FORCE_SLOW or F.FORCE_FB) else 0xffff); O.SST = F.PROF; O.PF = F.PF; O.WOPF = F.WOPF; O.NFL = F.NFL if F.NFLR is None else F.NFLR
    rec6.rec_setup(B)
    if F.EXP: B.e("s_endpgm")
    sl = B.newlabel("recslow"); fin = B.newlabel("recfin")
    verify(B, L, True, 'rec')
    rec6.rec_bases(B)
    B.e(f"s_mov_b32 s90, {O.BUDGET}\ns_barrier")
    if F.PROF: B.e("s_memrealtime s[14:15]\ns_memtime s[28:29]")
    if O.PROF: B.e(f"s_lshl_b32 s16, s57, 2\ns_add_u32 s16, s16, s50\ns_lshl_b32 s16, s16, 12\ns_add_u32 s16, s16, {P4}")
    B.e(f"s_cmp_eq_u32 s56, 1\ns_cbranch_scc1 {sl}")
    rec6.rec_loop(B, "", fin)
    B.label(sl)
    rec6.rec_loop(B, "sc1", fin)
    B.label(fin)
    if F.PROF:
        B.e(f"s_memrealtime s[16:17]\ns_memtime s[26:27]\ns_waitcnt lgkmcnt(0)\ns_sub_u32 s26, s26, s28\nv_mov_b32 v20, 0\nv_writelane_b32 v20, s26, 4\nv_writelane_b32 v20, s14, 0\nv_writelane_b32 v20, s16, 1\nv_writelane_b32 v20, s90, 2\nv_writelane_b32 v20, s67, 3\ns_mov_b32 s58, s57")
        stamp_out(B, [20])
    B.e("s_endpgm")
    B.lines = fix_hazards(B.lines)
    A.lines += B.lines
    if F.ENDS:
        first = True; o = []
        for x in A.lines:
            if x.strip() == "s_endpgm" and not first: o += ["    " + y for y in f"s_waitcnt vmcnt(0)\ns_memrealtime s[4:5]\ns_mov_b32 s6, {STAMP2 - 128}\ns_waitcnt lgkmcnt(0)\nv_mov_b32 v2, s4\ns_mov_b64 exec, 1\nbuffer_atomic_umax v2, off, s[20:23], s6 sc1".split("\n")]
            if x.strip() == "s_endpgm": first = False
            o.append(x)
        A.lines = o
    A.end_kernel(512, 102, 256)
    A.launch(name, (256,), (256,), 160 * 1024)

def build(opt=None, ropt=None):
    for k, v in (opt or {}).items(): setattr(F, k, v)
    for k, v in (ropt or {}).items(): setattr(rec6.O, k, v)
    A = Asm()
    hdr = open(f"../../{NAME}.s.ref").read().split("\n")
    A.header = [l for l in hdr if l.startswith(";") and "@launch" not in l and "Override" not in l and "grid=ceil" not in l]
    flow_kernel(A, "flow_kernel")
    return A.text()

if __name__ == "__main__":
    out = sys.argv[1]
    t = build(eval(sys.argv[2]) if len(sys.argv) > 2 else None, eval(sys.argv[3]) if len(sys.argv) > 3 else None)
    open(out, "w").write(t)
    check_hazards(t)
    print(len(t), "bytes")
```

```python
import sys
sys.path.insert(0, "..")
from asmgen import *
from lay import *
import struct
def f2u(x): return struct.unpack("<I", struct.pack("<f", x))[0]
LOG2E = 1.4426950408889634
SCL = (128 ** -0.5) * LOG2E
HALF = "0x00ff00ff"; HALFH = "0xff00ff00"
RS = 1040
T_Q = 0; T_K = 8448; T_V = 16896; T_P = T_V + 4096; PODD = 2048 + 32
L_WO = 32768
LDS_BYTES = 160 * 1024
V_L16, V_IDX, V_A1, V_A2, V_PRD, V_SEL, V_OST, V_WO, V_L4 = 0, 1, 2, 3, 4, 5, 6, 7, 127
V_C = 8
AF = 16; ACC = 48; XC = 96; XN = 104; KEEP = 112; PK = 120; TA, TB, VF = 124, 125, 126; KEEP2 = PK
WV = 128
NVR = 6
WVR = 208
def wo_reg(b): return WV + (b - 3) * 16
LV = lambda f: (f - NVR) * 2048
LO = lambda b: (16 - NVR) * 2048 + b * 4096
class Opt:
    RNS = (4, 5); RNT = 0; IL7 = 4; SPF = 0; SPJ = 12; PFA = (); PFD = 1; SSJ = 0; OL = 1; AV = None; JX = 1; PJ = 2; PS = 5; PO_ = 4; PL0 = -1; FF = 1; PT = 0; PT2 = 1; PTC = (16, 0xffff); LAL = 7; PORD = 0; WAL = 4; SWP = 0; KJ = 99; KJD = 2; KP23 = 0; FL63 = 1; KE = 3; KF = 1; KEP = 0; LFW = 1; ORD = 'voq'; H2 = 0; PF0 = (1, 2, 3); PFJ = 2; H63 = 1; VO1 = 0; WSW = 1; PF = 0; WOPF = 0; NFL = 0; SST = 0; PROF = False; DL = 22; DL0 = 10; DS = 31; DO = 10; DO01 = 4; NV1 = 2; BUDGET = 100000; B2POS = 1; NV2 = 0; CK = 5; PER = 4; PER2 = 2; FIXX = 0; FIXM = 0; RSH = 0; RQ = 0; VPF = 6; OPAIR = 1; S2 = 0; DS2 = 2; DO0 = 8; FPOS = 3; NOKVM = 0; NOX = 0; OI = 8; LI = 8; XS = {}; PN = 8; NVL = 0; WARM = 0; WL = 0; WO = 0; ZPER = 3; MEAS = 1; CKB = (5, 5, 5, 5, 5, 5, 5); RP = (0, 1, 2, 2); TG = 2; WD = 6; WV = 1; WN = 2; MWS = 3; TMJ = 6; RLAST = 0; KB = 3; KPOS = 0; KD = 12; EW = 1; KW2 = 0; KPAR = 0; NOFL = 0; NORS = 0; LATEL = 1; NPL = 4; NPR = 5; DPL = 4; DPR = 5
O = Opt

def delay(A, n):
    if O.WARM:
        for i in range(4 * n): A.e(f"v_mov_b32 v{TA}, v{TA}")
        return
    while n >= 4:
        A.e("s_nop 15"); n -= 4
    if n > 0: A.e(f"s_nop {4*n-1}")

def sstamp(A, v, i): A.e(f"s_memrealtime s[84:85]\ns_waitcnt lgkmcnt(0)\nv_writelane_b32 v{v}, s84, {i}")
def sstamp_out(A, v, sg):
    A.e(f"s_lshl_b32 s64, s{sg}, 2\ns_add_u32 s64, s64, s50\ns_lshl_b32 s64, s64, 6\ns_add_u32 s64, s64, {STAMP3}\nv_mbcnt_lo_u32_b32 v31, -1, 0\nv_lshlrev_b32 v31, 2, v31\ns_mov_b64 exec, 0xffff\nbuffer_store_dword v{v}, v31, s[20:23], s64 offen\ns_mov_b64 exec, -1")
def help_addr(A, v, vl, sid, rows):
    A.e(f"s_and_b32 s64, s{sid}, 7")
    A.e(rows)
    A.e(f"""
    s_lshl_b32 s65, s65, 13
    s_andn2_b32 s55, s{sid}, 7
    s_lshl_b32 s55, s55, 7
    s_add_u32 s65, s65, s55
    s_add_u32 s65, s65, 384
    v_and_b32 v{v}, 3, v{vl}
    v_lshlrev_b32 v{v}, 13, v{v}
    v_add_u32 v{v}, s65, v{v}
    v_and_b32 v15, 4, v{vl}
    v_lshl_add_u32 v{v}, v15, 4, v{v}
    s_and_b32 s55, s{sid}, 31
    s_add_u32 s66, s66, s55
    s_lshl_b32 s66, s66, 13
    s_add_u32 s66, s66, 8064
    v_writelane_b32 v{v}, s66, 8
    s_add_u32 s66, s66, 64
    v_writelane_b32 v{v}, s66, 9
    s_cmp_eq_u32 s64, 3
    s_cselect_b32 s65, 0, {0xff if O.H2 else 0x0f}
    s_sub_u32 s66, s{sid}, 32
    s_cmp_lt_u32 s66, 31
    s_cselect_b32 s66, {(0x300 if O.H2 else 0x100) if O.H63 else 0}, 0
    s_or_b32 vcc_lo, s65, s66
    s_mov_b32 vcc_hi, 0
    v_cndmask_b32 v{v}, -1, v{v}, vcc""")
def ptouch(A, vl, t, n):
    A.e(f"""
    s_lshl_b32 s64, s58, 14
    s_lshl_b32 s65, s59, 9
    s_add_u32 s64, s64, s65
    s_add_u32 s64, s64, {R_PL}
    s_lshl_b32 s65, s57, 10
    s_add_u32 s65, s65, {R_O - 4*128}
    s_lshl_b32 s66, s57, 12
    s_add_u32 s66, s66, {R_SX - 12*128}
    v_mov_b32 v{t}, s66
    v_mov_b32 v{t+1}, s65
    v_cmp_gt_u32 vcc, 12, v{vl}
    v_cndmask_b32 v{t}, v{t}, v{t+1}, vcc
    v_mov_b32 v{t+1}, s64
    v_cmp_gt_u32 vcc, 4, v{vl}
    v_cndmask_b32 v{t}, v{t}, v{t+1}, vcc
    v_lshl_add_u32 v{t}, v{vl}, 7, v{t}
    v_cmp_gt_u32 vcc, {n}, v{vl}
    v_cndmask_b32 v{t}, 2.0, v{t}, vcc
    s_lshl_b32 s64, s50, 19
    buffer_load_dword v{t+1}, v{t}, s[20:23], s64 offen""")
def rec_setup(A):
    A.srd(28, 6, 8 * MB); A.srd(32, 8, 8 * MB); A.srd(36, 10, 8 * MB); A.srd(40, 12, 8 * MB); A.srd(44, 4, 16384)
    A.e(f"""
    s_lshr_b32 s58, s57, 5
    s_and_b32 s59, s57, 31
    v_and_b32 v20, 63, v0              ; lane
    v_and_b32 v21, 15, v20             ; lam
    v_lshrrev_b32 v22, 4, v20          ; g
    v_lshrrev_b32 v23, 3, v20
    v_and_b32 v24, 7, v20
    v_lshlrev_b32 v16, 13, v23
    v_lshl_add_u32 v16, v24, 4, v16
    v_lshrrev_b32 v23, 2, v20
    v_and_b32 v24, 3, v20
    v_lshlrev_b32 v17, 11, v23
    v_lshl_add_u32 v17, v24, 4, v17
    s_lshl_b32 s61, s50, 15
    s_add_u32 s61, s61, {L_WO}
    s_lshl_b32 s62, s50, 21
    s_lshl_b32 s64, s57, 7
    s_add_u32 s62, s62, s64
    s_lshl_b32 s63, s58, 22
    s_lshl_b32 s64, s50, 20
    s_add_u32 s63, s63, s64
    s_lshl_b32 s64, s59, 6
    s_add_u32 s63, s63, s64
    v_lshrrev_b32 v23, 1, v22          ; g>>1
    v_lshlrev_b32 v25, 4, v23
    v_and_b32 v23, 1, v22
    v_lshl_add_u32 v25, v23, 2, v25
    v_lshrrev_b32 v23, 3, v21          ; r'>>1
    v_lshl_add_u32 v25, v23, 3, v25
    v_bfe_u32 v23, v21, 2, 1           ; r'&1
    v_add_u32 v25, v25, v23
    v_lshlrev_b32 v28, 4, v23
    v_lshrrev_b32 v23, 1, v22
    v_lshl_add_u32 v28, v23, 3, v28
    v_lshrrev_b32 v23, 3, v21
    v_lshl_add_u32 v28, v23, 2, v28
    v_and_b32 v23, 1, v22
    v_lshl_add_u32 v28, v23, 1, v28
    v_and_b32 v24, 3, v21              ; c'
    v_lshlrev_b32 v26, 7, v28
    v_add_u32 v26, s61, v26
    v_lshl_add_u32 v18, v24, 3, v26
    v_lshl_add_u32 v19, v24, 4, v26    ; permuted
    v_lshlrev_b32 v26, 6, v25
    v_add_u32 v26, s61, v26
    v_lshl_add_u32 v27, v24, 3, v26
    v_lshlrev_b32 v{V_L16}, 4, v20
    v_add_u32 v{V_WO}, s61, v{V_L16}""")
    ST = [(0, 0), (0, 1), (1, 0), (1, 1), (3, 0), (3, 1), (2, 0), (2, 1)]
    if O.OL: ST = [(m, h) for m in range(4) for h in range(2)]
    if O.VO1: ST = [('qkvo'.index(c), h) for c in O.ORD + 'k' for h in range(2)]
    A.e(f"s_and_b32 s64, s59, {O.WSW}\ns_lshl_b32 s65, s64, 18\ns_add_u32 s70, s63, s65\ns_sub_u32 s71, s63, s65\ns_lshl_b32 s65, s64, 13\ns_add_u32 s72, s61, s65\ns_sub_u32 s73, s61, s65")
    if O.PF:
        help_addr(A, 29, 20, 57, "s_lshl_b32 s65, s64, 2\ns_mov_b32 s66, 0")
        A.e(f"""
        s_lshl_b32 s68, s50, 21
        s_lshl_b32 s64, s58, 22
        s_lshl_b32 s65, s50, 20
        s_add_u32 s64, s64, s65
        s_and_b32 s66, s59, 15
        s_lshl_b32 s65, s66, 13
        s_add_u32 s64, s64, s65
        s_lshr_b32 s65, s59, 4
        s_lshl_b32 s65, s65, 10
        s_add_u32 s69, s64, s65""")
        if O.WOPF: A.e(f"""
        v_lshrrev_b32 v30, 3, v20
        v_lshlrev_b32 v30, 11, v30
        v_and_b32 v31, 7, v20
        v_lshl_add_u32 v30, v31, 7, v30
        v_cmp_gt_u32 vcc, 32, v20
        v_cndmask_b32 v30, -1, v30, vcc""")
        else: A.e(f"""
        s_add_u32 s69, s69, 384
        s_lshr_b32 s66, s66, 1
        s_cmp_eq_u32 s66, 3
        s_cselect_b32 s65, 0, {8 if O.H2 else 4}
        v_and_b32 v30, 3, v20
        v_lshlrev_b32 v30, 11, v30
        v_and_b32 v31, 4, v20
        v_lshl_add_u32 v30, v31, 4, v30
        v_cmp_gt_u32 vcc, s65, v20
        v_cndmask_b32 v30, -1, v30, vcc""")
    if O.PFA: A.e("v_lshlrev_b32 v12, 13, v20\nv_lshlrev_b32 v13, 11, v20")
    def pf1(t, i):
        mat, hh = ST[t]
        if mat < 3: A.e(f"s_add_u32 s64, s68, {(hh*128 + i*32)*8192}\nbuffer_load_dword v31, v29, s[{28+mat*4}:{31+mat*4}], s64 offen")
        else: A.e(f"s_add_u32 s64, s69, {(hh*256 + i*64)*2048}\nbuffer_load_dword v31, v30, s[40:43], s64 offen")
    def issue(st, Js=range(16), thr=True):
        mat, hh = ST[st]
        if Js[0] == 0: npf[st] = 0
        if O.PF and st == 0:
            for i in O.PF0: pf1(0, i); npf[st] += 1
        for J in Js:
            if O.PF and st < 7 and (J % 4 == 2 if O.PFJ == 2 else J in (1, 3, 5, 7)): pf1(st + 1, J // 4 if O.PFJ == 2 else J // 2); npf[st] += 1
            if O.PFA and st + O.PFD < 8 and J in O.PFA:
                m2, h2 = ST[st + O.PFD]; i = O.PFA.index(J)
                if m2 < 3: A.e(f"s_add_u32 s64, s62, {(h2*128 + i*64)*8192}\nbuffer_load_dword v31, v12, s[{28+m2*4}:{31+m2*4}], s64 offen")
                else: A.e(f"s_add_u32 s64, s70, {(h2*256 + i*64)*2048}\nbuffer_load_dword v31, v13, s[40:43], s64 offen")
                npf[st] += 1
            if O.NFL and J and thr: A.e(f"s_waitcnt vmcnt({O.NFL})")
            if O.SSJ and st < 2 and J & 1 == 0 and (st or J): sstamp(A, 15, st * 8 + J // 2)
            if mat < 3: A.e(f"s_add_u32 s64, s62, {(hh*128 + J*8)*8192}\ns_add_u32 m0, s61, {hh*16384+J*1024}\nbuffer_load_dwordx4 v16, s[{28+mat*4}:{31+mat*4}], s64 offen {'nt' if O.RNT & 1 or st in O.RNS else ''} lds")
            else: A.e(f"s_add_u32 s64, s{70+(J>>3)}, {(hh*256 + J*16)*2048}\ns_add_u32 m0, s{72+(J>>3)}, {hh*16384+J*1024}\nbuffer_load_dwordx4 v17, s[40:43], s64 offen {'nt' if O.RNT & 2 else ''} lds")
            if O.SPF and st + O.PFD < 8 and J < O.SPJ:
                m2, h2 = ST[st + O.PFD]
                for i in range(O.SPF):
                    k = J * O.SPF + i; n = O.SPJ * O.SPF
                    if m2 < 3: A.e(f"s_add_u32 s64, s62, {(h2*128 + k*128//n)*8192}\ns_load_dword s91, s[{6+2*m2}:{7+2*m2}], s64")
                    else: A.e(f"s_add_u32 s64, s70, {(h2*256 + k*128//n)*2048}\ns_load_dword s91, s[12:13], s64")
    def vdst(f):
        if f < NVR: return WVR + f * 8
        if f < 8: return 96 + (f - NVR) * 8
        return None
    def read(st):
        mat, hh = ST[st]
        if mat < 2:
            for jj in range(2):
                j = hh * 2 + jj
                for t in range(4):
                    for R in range(2):
                        for h in range(2):
                            off = hh * 16384 + (64 * jj + 32 * R + h) * 128
                            A.e(f"ds_read_b64_tr_b16 {ar((j*8+mat*4+t)*8+4*R+2*h,2)}, v18 offset:{off + t*32}")
                A.e("s_waitcnt lgkmcnt(0)")
        elif mat == 3:
            for jj in range(4):
                b = hh * 4 + jj
                for t in range(2):
                    for R in range(2):
                        for h in range(2):
                            off = hh * 16384 + (64 * jj + 32 * R + 2 * h) * 64 + t * 32
                            A.e(f"ds_read_b64_tr_b16 {vr((48 + b*16 if b < 3 + O.OL else wo_reg(b)) + t*8+4*R+2*h,2)}, v27 offset:{off}")
                if O.IL7 and st == 6:
                    r_ = list(range(O.IL7, 16)); k_ = (len(r_) + 3) // 4
                    if r_[jj * k_:(jj + 1) * k_]: issue(7, r_[jj * k_:(jj + 1) * k_], False)
                if jj & 1: A.e("s_waitcnt lgkmcnt(0)")
            if O.OL and hh == 0:
                for f in range(NVR, 14):
                    for q in range(2): A.e(f"ds_write_b128 v{V_WO}, {vr(WV+(f-NVR)*8+q*4,4)} offset:{LV(f) + q*1024}")
                    if f == 11: A.e("s_waitcnt lgkmcnt(4)")
                A.e("s_waitcnt lgkmcnt(0)")
                for i in range(16): A.e(f"v_mov_b32 v{WV+i}, v{96+i}\nv_mov_b32 v{112+i}, v{WV+64+i}")
            elif O.OL:
                for q in range(4): A.e(f"ds_write_b128 v{V_WO}, {vr(112+q*4,4)} offset:{LV(14) + q*1024}")
                for q in range(12):
                    A.e(f"ds_write_b128 v{V_WO}, {vr(48+q*4,4)} offset:{LO(0) + q*1024}")
                    if q == 7: A.e("s_waitcnt lgkmcnt(4)")
                A.e("s_waitcnt lgkmcnt(0)")
        else:
            def rd(f, dst, rf=vr):
                jj, t = (f >> 2) & 1, f & 3
                for R in range(2):
                    for h in range(2):
                        off = hh * 16384 + (64 * jj + 32 * R + h) * 128
                        A.e(f"ds_read_b64_tr_b16 {rf(dst+4*R+2*h,2)}, v19 offset:{off + (t>>1)*64 + (t&1)*8}")
            if O.OL:
                for f in range(8 * hh, 8 * hh + 8):
                    rd(f, WVR + f * 8 if f < NVR else WV + (f - NVR) * 8)
                    if f & 3 == 3 or f % 3 == 2: A.e("s_waitcnt lgkmcnt(0)")
            elif O.VO1:
                for f in range(8 * hh, 8 * hh + 8):
                    if f < NVR: rd(f, WVR + f * 8)
                    elif f < 14: rd(f, park(f), ar)
                    else: rd(f, 96 + (f - 14) * 8)
                    if f & 3 == 3 or f % 3 == 2: A.e("s_waitcnt lgkmcnt(0)")
            elif hh == 0:
                for f in range(8):
                    rd(f, vdst(f))
                    if f & 3 == 3: A.e("s_waitcnt lgkmcnt(0)")
            else:
                for f in range(NVR, 8):
                    for q in range(2): A.e(f"ds_write_b128 v{V_WO}, {vr(vdst(f)+q*4,4)} offset:{LV(f) + q*1024}")
                A.e("s_waitcnt lgkmcnt(0)")
                for f0 in (8, 10, 12, 14):
                    for f in (f0, f0 + 1): rd(f, 96 + (f - f0) * 8 + (16 if f0 == 14 else 0))
                    A.e("s_waitcnt lgkmcnt(0)")
                    if f0 < 14:
                        for f in (f0, f0 + 1):
                            for q in range(2): A.e(f"ds_write_b128 v{V_WO}, {vr(96+(f-f0)*8+q*4,4)} offset:{LV(f) + q*1024}")
                        A.e("s_waitcnt lgkmcnt(0)")
                for f in (14, 15):
                    for q in range(2): A.e(f"ds_write_b128 v{V_WO}, {vr(112+(f-14)*8+q*4,4)} offset:{LV(f) + q*1024}")
                for q in range(12): A.e(f"ds_write_b128 v{V_WO}, {vr(48+q*4,4)} offset:{LO(0) + q*1024}")
                A.e("s_waitcnt lgkmcnt(0)")
    npf = {}
    park = lambda f: (160 if f < 10 else 224 - 32) + (f - 6) * 8
    if O.SST: sstamp(A, 15, 0 if O.SSJ else 1)
    issue(0); issue(1)
    for st in range(8):
        A.e(f"s_waitcnt vmcnt({(O.IL7 if O.IL7 and st == 6 else 16) + npf[st+1] if st < 7 else 0})")
        if O.SST and not O.SSJ: sstamp(A, 15, 2 * st)
        read(st)
        if O.SST and st and not O.SSJ: sstamp(A, 15, 2 * st + 1)
        if st + 2 < 8: issue(st + 2, range(O.IL7 if O.IL7 and st == 5 else 16))
        if O.AV and st == 3:
            O.AV[0](A, 9, 20); npf[5] += 1
            A.e(f"v_lshlrev_b32 v10, 12, v22\nv_lshlrev_b32 v11, 1, v21\nv_add_u32 v10, v10, v11\ns_lshl_b32 s64, s59, 6")
            for i, o in enumerate((0, 2048, 32, 2080)): A.e(f"buffer_load_ushort v{32+i}, v10, s[44:47], s64 offen offset:{o}")
            npf[5] += 4
        if O.AV and st == 5:
            O.AV[1](A, 9, 10, 20, {O.PTC[0] - 16: 63}, 2048)
            A.e(f"""
            s_cmp_lg_u32 s89, 0
            s_cselect_b32 s55, 36, 0""")
            ptouch(A, 20, 10, "s55"); npf[7] += 1
        if O.PT and st == O.PT - 1:
            A.srd(92, 2, 256)
            A.e(f"v_min_u32 v9, 31, v20\nv_lshlrev_b32 v9, 2, v9\ns_sub_u32 s64, s88, 64\nbuffer_load_dword v9, v9, s[92:95], s64 offen sc1"); npf[st + 2] += 1
        if O.PT and st == O.PT + 1:
            A.e(f"""
            v_and_b32 v10, 1, v20
            v_cmp_eq_u32 vcc, 1, v10
            v_mov_b32 v10, {32 << 8}
            v_cndmask_b32 v10, -1, v10, vcc
            v_cmp_eq_u32 vcc, v9, v10
            s_and_b32 s64, vcc_lo, 0xffff
            v_readlane_b32 s65, v9, {O.PTC[0]}
            s_cmp_eq_u32 s64, {O.PTC[1]}
            s_cselect_b32 s65, s65, 0
            s_cmp_eq_u32 s56, 2
            s_cselect_b32 s65, s65, 0
            s_cmp_ge_u32 s65, 63
            s_cselect_b32 s55, 36, 0
            s_lshl_b32 s64, s58, 14
            s_lshl_b32 s65, s59, 9
            s_add_u32 s64, s64, s65
            s_add_u32 s64, s64, {R_PL}
            s_lshl_b32 s65, s57, 10
            s_add_u32 s65, s65, {R_O - 4*128}
            s_lshl_b32 s66, s57, 12
            s_add_u32 s66, s66, {R_SX - 12*128}
            v_mov_b32 v10, s66
            v_mov_b32 v11, s65
            v_cmp_gt_u32 vcc, 12, v20
            v_cndmask_b32 v10, v10, v11, vcc
            v_mov_b32 v11, s64
            v_cmp_gt_u32 vcc, 4, v20
            v_cndmask_b32 v10, v10, v11, vcc
            v_lshl_add_u32 v10, v20, 7, v10
            v_cmp_gt_u32 vcc, s55, v20
            v_cndmask_b32 v10, 2.0, v10, vcc
            s_lshl_b32 s64, s50, 19
            buffer_load_dword v11, v10, s[20:23], s64 offen"""); npf[st + 2] += 1
        if O.VO1 and st == 6:
            for f in range(6, 14):
                for q in range(2): A.e(f"ds_write_b128 v{V_WO}, {ar(park(f)+q*4,4)} offset:{LV(f) + q*1024}")
                if f == 11: A.e("s_waitcnt lgkmcnt(0)")
            A.e("s_waitcnt lgkmcnt(0)")
        if O.VO1 and st == 7:
            for f in (14, 15):
                for q in range(2): A.e(f"ds_write_b128 v{V_WO}, {vr(96+(f-14)*8+q*4,4)} offset:{LV(f) + q*1024}")
            for q in range(12):
                A.e(f"ds_write_b128 v{V_WO}, {vr(48+q*4,4)} offset:{LO(0) + q*1024}")
                if q == 7: A.e("s_waitcnt lgkmcnt(2)")
    if O.SST: sstamp_out(A, 15, 57)
    w23 = A.newlabel("w23"); jn = A.newlabel("jn")
    A.e(f"""
    v_and_b32 v23, 1, v21
    v_mov_b32 v{V_IDX}, 0x4444
    v_mov_b32 v24, 0xeeee
    v_cmp_eq_u32 vcc, 1, v23
    v_cndmask_b32 v{V_IDX}, v{V_IDX}, v24, vcc
    v_lshlrev_b32 v23, 1, v22
    v_sub_u32 v23, v21, v23            ; lam - 2g
    v_mov_b32 v{V_SEL}, 0
    v_mov_b32 v24, 0x3f80
    v_cmp_eq_u32 vcc, 0, v23
    v_cndmask_b32 v{V_SEL}, v{V_SEL}, v24, vcc
    v_mov_b32 v24, 0x3f800000
    v_cmp_eq_u32 vcc, 1, v23
    v_cndmask_b32 v{V_SEL}, v{V_SEL}, v24, vcc
    s_and_b32 s64, s50, 1
    s_lshl_b32 s64, s64, 11
    v_lshl_add_u32 v{V_L4}, v20, 2, s64
    v_and_b32 v23, 7, v21              ; i
    v_lshrrev_b32 v24, 3, v21
    v_lshlrev_b32 v25, 8, v24
    v_lshl_add_u32 v25, v22, 6, v25
    v_lshl_add_u32 v{V_PRD}, v23, 2, v25   ; p store: (e>>3)*256 + 2g*32 + (e&7)*4
    v_lshrrev_b32 v25, 1, v22
    v_lshl_add_u32 v25, v25, 3, v23
    v_lshlrev_b32 v25, 5, v25
    v_and_b32 v26, 1, v22
    v_lshl_add_u32 v{V_OST}, v26, 4, v25   ; o store: ((g>>1)*8+i)*32 + (g&1)*16
    v_lshl_add_u32 v27, v22, 3, v23
    v_lshlrev_b32 v27, 4, v27          ; (g*8+i)*16
    s_mov_b32 s80, {f2u(SCL):#x}
    s_mov_b32 s81, 0xfffffffe
    s_mov_b32 s84, {HALF}
    s_mov_b32 s85, {HALF}
    s_mov_b32 s86, -1
    s_mov_b32 s87, 0
    s_cmp_gt_u32 s50, 1
    s_cselect_b32 s82, {HALFH}, -1
    s_cselect_b32 s83, {HALFH}, 0
    s_lshl_b32 m0, s50, 8
    s_cmp_gt_u32 s50, 1
    s_cbranch_scc1 {w23}
    v_lshl_add_u32 v{V_A1}, v24, 9, v27    ; S poll x4
    v_lshrrev_b32 v25, 1, v22
    v_lshl_add_u32 v25, v25, 3, v23
    v_lshlrev_b32 v25, 4, v25
    v_lshl_add_u32 v26, v26, 1, v24
    v_lshl_add_u32 v{V_A2}, v26, 2, v25
    v_add_u32 v{V_A2}, 1024 + 256, v{V_A2}
    v_cndmask_b32 v{V_OST}, 2.0, v{V_OST}, s[84:85]""")
    for i in range(8): A.e(f"v_mov_b32 v{V_C+i}, {'0x3f803f80' if i < 5 else 0}")
    A.e(f"s_branch {jn}")
    A.label(w23)
    A.e(f"""
    s_sub_u32 s64, s50, 2
    s_mul_i32 s64, s64, {4*RS}
    v_lshrrev_b32 v25, 1, v22
    v_mul_u32_u24 v25, {2*RS}, v25
    v_and_b32 v28, 1, v23
    v_mul_u32_u24 v28, {RS}, v28
    v_add_u32 v25, v25, v28
    v_lshrrev_b32 v28, 1, v23
    v_lshl_add_u32 v25, v28, 6, v25
    v_lshl_add_u32 v25, v26, 5, v25
    v_mul_u32_u24 v28, {T_K}, v24
    v_add3_u32 v{V_A1}, v25, v28, s64
    v_cndmask_b32 v{V_A2}, 2.0, v27, s[84:85]""")
    for i in range(4): A.e(f"v_mov_b32 v{V_C+i}, -1")
    A.label(jn)

def rec_bases(A):
    A.e(f"""
    s_lshl_b32 s64, s58, 14
    s_lshl_b32 s65, s50, 12
    s_add_u32 s70, s64, s65
    s_add_u32 s70, s70, {R_PL}
    s_lshl_b32 s65, s59, 9
    s_add_u32 s71, s64, s65
    s_add_u32 s71, s71, {R_PL}
    s_xor_b32 s64, s58, 1
    s_lshl_b32 s64, s64, 15
    s_lshr_b32 s65, s50, 1
    s_lshl_b32 s65, s65, 14
    s_add_u32 s64, s64, s65
    s_and_b32 s65, s50, 1
    s_lshl_b32 s65, s65, 12
    s_add_u32 s64, s64, s65
    s_add_u32 s72, s64, s67
    s_add_u32 s72, s72, {R_PR}
    s_lshl_b32 s64, s58, 15
    s_lshr_b32 s65, s59, 4
    s_lshl_b32 s65, s65, 14
    s_add_u32 s64, s64, s65
    s_and_b32 s65, s59, 15
    s_lshl_b32 s65, s65, 9
    s_add_u32 s64, s64, s65
    s_add_u32 s73, s64, s67
    s_add_u32 s73, s73, {R_PR}
    s_cmp_eq_u32 s50, 1
    s_cselect_b32 s54, 2048 - 256, 0
    s_sub_u32 s71, s71, s54
    s_lshl_b32 s64, s58, 15
    s_lshl_b32 s65, s50, 13
    s_add_u32 s74, s64, s65
    s_add_u32 s74, s74, {R_O}           ; O gather
    s_lshl_b32 s64, s57, 10
    s_and_b32 s65, s50, 1
    s_lshl_b32 s65, s65, 9
    s_cmp_gt_u32 s50, 1
    s_cselect_b32 s65, 0, s65
    s_add_u32 s75, s64, s65
    s_add_u32 s75, s75, {R_O}
    s_lshl_b32 s64, s57, 12
    s_and_b32 s65, s64, 0xffffe000
    s_cmp_eq_u32 s50, 3
    s_cselect_b32 s66, 1536, 0
    s_add_u32 s64, s64, s66
    s_cmp_gt_u32 s50, 1
    s_cselect_b32 s76, s64, s65
    s_add_u32 s76, s76, {R_SX}
    s_lshl_b32 s64, s57, 14
    s_and_b32 s65, s50, 1
    s_lshl_b32 s66, s65, 11
    s_add_u32 s77, s64, s66
    s_cmp_gt_u32 s50, 1
    s_cselect_b32 s66, 0, 4096
    s_add_u32 s77, s77, s66
    s_add_u32 s77, s77, {QKV}
    s_lshl_b32 s66, s65, 9
    s_add_u32 s66, s66, 1024 + 128
    s_lshl_b32 s65, s65, 7
    s_cmp_gt_u32 s50, 1
    s_cselect_b32 s65, s65, s66
    s_add_u32 s78, s64, s65
    s_add_u32 s78, s78, {KVM - 128}
    s_lshl_b32 s64, s57, 6
    s_add_u32 s68, s64, s67
    s_add_u32 s69, s68, s64
    s_add_u32 s69, s69, {F_KVM}
    s_lshl_b32 s64, s50, 14
    s_add_u32 s69, s69, s64
    s_and_b32 s64, s50, 1
    s_lshl_b32 s64, s64, 11
    s_sub_u32 s69, s69, s64
    s_add_u32 s68, s68, {F_QKV}
    s_mov_b32 s79, 0
    s_mov_b32 s91, 0""")

def segoff(A, dst, sstep, add, base):
    A.e(f"""
    s_add_u32 s64, s{sstep}, {add}
    {'s_mov_b32 s64, 0' if (O.FIXX and base == 77) or (O.FIXM and base == 78) else ''}
    s_lshl_b32 s65, s64, 12
    s_and_b32 s65, s65, 0x2000
    s_xor_b32 s65, s65, s67
    {'s_xor_b32 s65, s65, 0x2000' if (O.KPAR and base == 78) else ''}
    s_lshl_b32 s64, s64, 20
    s_add_u32 s65, s65, s64
    s_add_u32 s{dst}, s65, s{base}""")

def rec_loop(A, lst, fin, nsteps=64):
    tail = []
    def stamp(i):
        if isinstance(i, str):
            if i not in O.XS: return
            i = O.XS[i]
        elif i in O.XS.values(): return
        if O.PROF in (1, 2, 5): A.e(f"{'s_memtime' if O.PROF != 1 else 's_memrealtime'} s[{2*i+24}:{2*i+25}]")
    def trace():
        if O.PROF == 6:
            A.e(f"s_memtime s[24:25]\ns_memrealtime s[26:27]\ns_waitcnt lgkmcnt(0)\nv_writelane_b32 v{TA}, s24, 0\nv_writelane_b32 v{TA}, s26, 1\nv_writelane_b32 v{TA}, s90, 2")
            A.e(f"s_lshl_b32 s64, s79, 6\ns_add_u32 s64, s64, s16\nv_lshrrev_b32 v{TB}, 2, v{V_L16}\ns_mov_b64 exec, 0xf\nbuffer_store_dword v{TA}, v{TB}, s[20:23], s64 offen\ns_mov_b64 exec, -1")
            return 6
        if O.PROF != 5: return 0
        A.e("s_waitcnt lgkmcnt(0)")
        for i in range(1, 13): A.e(f"v_writelane_b32 v{TA}, s{24+2*i}, {i}")
        A.e(f"v_writelane_b32 v{TA}, s56, 13\nv_writelane_b32 v{TA}, s51, 14")
        A.e(f"s_lshl_b32 s64, s79, 6\ns_add_u32 s64, s64, s16\nv_lshrrev_b32 v{TB}, 2, v{V_L16}\ns_mov_b64 exec, 0xffff\nbuffer_store_dword v{TA}, v{TB}, s[20:23], s64 offen\ns_mov_b64 exec, -1")
        return 8
    def cnt(k):
        if O.PROF and O.PROF != 6: A.e(f"s_add_u32 s56, s56, {1 << (8*k)}" if k < 4 else "s_add_u32 s51, s51, 1")
    def chk(b, n, nb=1):
        r = AF + b * 4
        o = [f"s_waitcnt vmcnt({n})", f"v_max3_u32 v{TA}, v{r}, v{r+1}, v{r+2}"]
        for q in range(2 * (nb - 1)): o += [f"v_max3_u32 v{TA}, v{TA}, v{r+3+2*q}, v{r+4+2*q}"]
        o += [f"v_max_u32 v{TA}, v{TA}, v{r+4*nb-1}", f"v_cmp_eq_u32 vcc, -1, v{TA}"]
        return o
    def flagwait(add, ret=False):
        ok = A.newlabel("fok"); lp = A.newlabel("flp")
        out = [f"s_add_u32 s64, s79, {add}", f"s_cmp_gt_u32 s91, s64\ns_cbranch_scc0 {lp}\n{ok}:"]
        if not ret:
            for x in out: A.e(x)
        def d():
            A.label(lp)
            A.e(f"""
            buffer_load_dword v{TA}, off, s[20:23], s68 sc1
            s_waitcnt vmcnt(0)
            v_readfirstlane_b32 s91, v{TA}
            s_cmp_gt_u32 s91, s64
            s_cbranch_scc1 {ok}
            s_sleep 2
            s_sub_u32 s90, s90, 1
            s_cmp_gt_i32 s90, 0
            s_cbranch_scc1 {lp}
            s_branch {ok}""")
        tail.append(d)
        return out
    smq = lambda t, b: f"v_smfmac_f32_16x16x64_bf16 {vr(ACC+t*4,4)}, {vr(AF+b*4,4)}, {ar(((b&3)*8+t)*8,8)}, v{V_IDX}"
    def vreg(f): return WVR + f * 8 if f < NVR else ACC + ((f - NVR) & 3) * 8
    smv = lambda i: f"v_smfmac_f32_16x16x64_bf16 {vr(ACC+32+((i>>1)&3)*4,4)}, {vr(AF+((i>>3)+4*(i&1))*4,4)}, {vr(vreg(i>>1),8)}, v{V_IDX}"
    rdV = lambda f: [f"ds_read_b128 {vr(vreg(f)+q*4,4)}, v{V_WO} offset:{LV(f)+q*1024}" for q in range(2)]
    vfill = [x for f in range(NVR, NVR + 4) for x in rdV(f)]
    def epi_v(t):
        a = ACC + 32 + t * 4
        return [f"v_add_f32 v{a}, v{a}, v{a+1}", f"v_add_f32 v{a+2}, v{a+2}, v{a+3}", f"v_cvt_pk_bf16_f32 v{a}, v{a}, v{a+2}",
                f"ds_write_addtid_b32 v{a} offset:{T_V + t*1024}"]
    def vstream(start, fillpos, extra=None, post=[]):
        out = []; extra = extra or {}
        for i in range(start, 32):
            f, r = i >> 1, i & 1
            if f >= NVR and r == 0: out.append(f"s_waitcnt lgkmcnt({2*min(3, 15-f)})")
            out.append(smv(i))
            if fillpos is not None and fillpos <= i < fillpos + 4: out += vfill[2 * (i - fillpos):2 * (i - fillpos) + 2]
            if f >= NVR and r == 1 and f + 4 < 16: out += rdV(f + 4)
            out += extra.get(i, [])
            if f"v{i}" in O.XS and O.PROF in (1, 2, 5): out.append(f"s_memtime s[{2*O.XS[f'v{i}']+24}:{2*O.XS[f'v{i}']+25}]")
            if O.EW == 0:
                if i == 30: out += epi_v(0)[:2]
                if i == 31: out += epi_v(0)[2:]
            else:
                e0 = epi_v(0); e1 = epi_v(1)
                out += {28: e0[:1], 29: e0[1:2], 30: e0[2:3], 31: e0[3:] + e1[:1]}.get(i, [])
        out += post
        if O.EW:
            out += epi_v(1)[1:3] + epi_v(2)[:3] + epi_v(3)[:3] + [epi_v(t)[3] for t in (1, 2, 3)]
        else:
            for t in range(1, 4): out += epi_v(t)
        return out
    ldA = lambda b, r=None: f"buffer_load_dwordx4 {vr(AF+b*4 if r is None else r,4)}, v{V_L16}, s[20:23], s{92 + (b>>2)} offen offset:{(b&3)*1024} sc1"
    def retry(b, br, go, rt, lds, n, k, nb=1):
        def d():
            A.label(rt)
            cnt(k)
            A.e(f"s_sub_u32 s90, s90, 1\ns_cmp_gt_i32 s90, 0\ns_cbranch_scc0 {go}")
            for x in lds: A.e(x)
            for x in chk(b, n, nb): A.e(x)
            A.e(f"s_branch {br}")
        tail.append(d)
    def epi_qk(t):
        a = ACC + t * 4; off = (T_Q if t < 4 else T_K) + (t & 3) * 2 * RS
        return [f"v_add_f32 v{a}, v{a}, v{a+1}", f"v_add_f32 v{a+2}, v{a+2}, v{a+3}",
                f"ds_write_addtid_b32 v{a} offset:{off}", f"ds_write_addtid_b32 v{a+2} offset:{off+RS}"]
    def weave(W, fin_idx, E, pre, per=4):
        seq = []; tm = 0; fin_t = {}
        va = []; oth = list(pre); nxt = 0
        def emit(x):
            nonlocal tm
            seq.append(x); tm += MFMA_WS[0] if "smfmac" in x else 1
        wr_ready = []
        for k, m in enumerate(W):
            emit(m)
            if k in fin_idx: fin_t[fin_idx.index(k)] = tm
            no_ = O.WN
            while no_ > 0 and wr_ready: emit(wr_ready.pop(0)); no_ -= 1
            while no_ > 0 and oth: emit(oth.pop(0)); no_ -= 1
            while nxt < len(E) and nxt in fin_t and tm - fin_t[nxt] >= O.WD:
                va += [(E[nxt][0], E[nxt][2]), (E[nxt][1], E[nxt][3])]; nxt += 1
            for _ in range(O.WV):
                if va: a_, w_ = va.pop(0); emit(a_); wr_ready.append(w_)
        for x in oth: emit(x)
        while nxt < len(E): va += [(E[nxt][0], E[nxt][2]), (E[nxt][1], E[nxt][3])]; nxt += 1
        for x in wr_ready: emit(x)
        for a_, w_ in va: emit(a_)
        for a_, w_ in va: emit(w_)
        for x in seq: A.e(x)
    def chkr(r):
        return [f"v_max3_u32 v{TA}, v{r}, v{r+1}, v{r+2}", f"v_max_u32 v{TA}, v{TA}, v{r+3}", f"v_cmp_eq_u32 vcc, -1, v{TA}"]
    def deferred(blocks, ld, work, back, k, temps, delta, first=True):
        cnt(k)
        for bb in blocks:
            sk = A.newlabel("dsk")
            if len(blocks) > 1: A.e(f"s_bitcmp1_b32 s55, {bb}\ns_cbranch_scc0 {sk}")
            A.e(ld(bb, AF + 4 * bb))
            A.label(sk)
        for bb in blocks:
            sk = A.newlabel("dsk"); go = A.newlabel("dgo"); lp = A.newlabel("dlp")
            T = [AF + 4 * bb] + temps(bb); n = len(T)
            A.e(f"s_bitcmp1_b32 s55, {bb}\ns_cbranch_scc0 {sk}")
            A.e(f"s_waitcnt vmcnt({n-1})")
            for x in chkr(T[0]): A.e(x)
            A.e(f"s_cbranch_vccz {go}")
            for j in range(1, n):
                A.e(f"s_nop {4*delta(bb)-1}" if delta(bb) <= 4 else f"s_nop 15\ns_nop {4*(delta(bb)-4)-1}")
                A.e(ld(bb, T[j]))
            A.label(lp)
            if O.PROF and O.PROF != 6: A.e("s_add_u32 s51, s51, 0x10000")
            cp = [A.newlabel("dcp") for _ in T]
            for j in range(n):
                A.e(f"s_waitcnt vmcnt({n-1})")
                for x in chkr(T[j]): A.e(x)
                A.e(f"s_cbranch_vccz {go if j == 0 else cp[j]}")
                A.e(ld(bb, T[j]))
            A.e(f"s_sub_u32 s90, s90, 1\ns_cmp_gt_i32 s90, 0\ns_cbranch_scc1 {lp}\ns_branch {go}")
            for j in range(1, n):
                A.label(cp[j])
                for i in range(4): A.e(f"v_mov_b32 v{T[0]+i}, v{T[j]+i}")
                A.e("s_nop 1")
                if j < n - 1: A.e(f"s_branch {go}")
            A.label(go)
            for x in work(bb): A.e(x)
            A.label(sk)
        A.e(f"s_mov_b32 s55, 0\ns_branch {back}")
    dummy = f"buffer_load_dword v{TB}, off, s[20:23], s92 sc1"
    def pin(k):
        if k >= 0: A.lines += [".p2align 5"] + ["    s_nop 0"] * k
    jx0 = []
    def phaseA(tiles, win1, nv, prof):
        rsh = O.RSH
        after = {c: [] for c in range(8)}
        TJ = O.TMJ
        pre_r = []
        for j in range(4):
            if O.RP[j] < 0: pre_r.append(4 + j)
            else: after[O.RP[j]].append(4 + j)
        for x in pre_r: A.e(ldA(x))
        rq = O.RQ and len(tiles) == 8
        order = [0, 1, 2, 3] + pre_r; cntn = {}; pref = {}
        for b in range(TJ + 1):
            cntn[b] = len(order) - 1 - order.index(b if b < TJ else 7)
            if b < TJ: order.append(("d", b))
            order += after[b]
            if b == O.KB and not O.NOKVM: order += [("k", 0), ("k", 1)][:1 if O.KE else 2]
            pref[b] = list(order)
        TL = lambda b: tiles[:4] if (rq and b >= 4) else tiles
        W = {b: [smq(t, b) for t in TL(b)] for b in range(8)}
        late = {b: len(W[b]) >= 8 for b in range(8)}
        seg = {b: A.newlabel("seg") for b in range(8)}; seg2 = {b: A.newlabel("segb") for b in range(8)}
        fl = {b: A.newlabel("fl") for b in range(8)}; fl2 = {b: A.newlabel("flb") for b in range(8)}
        slow = A.newlabel("slowA"); done = A.newlabel("doneA")
        xst = lambda b: ([kvm_store, flg_store] if not O.KE else [flg_store] if O.KE in (1, 3) else [kvm_store]) if (b == O.KB and not O.NOKVM) else []
        assert 3 <= O.KB < TJ
        def body(b, nchk, tgt, lt):
            w = W[b]; n = len(w)
            pend = [dummy] + [ldA(x) for x in after[b]] + xst(b) if b < 7 else []
            if nchk is None: pend = []
            c = nchk
            if n >= 8:
                nvv = len(c) - 1
                p = n - O.CKB[b] - (nvv - 3)
                cq = list(c)
                for k in range(n - (1 if lt else 0)):
                    A.e(w[k])
                    for _ in range(2 if len(pend) > p - k else 1):
                        if pend: A.e(pend.pop(0))
                    if k == p - 1:
                        while pend: A.e(pend.pop(0))
                        A.e(cq.pop(0))
                    if k >= p - 1 and cq: A.e(cq.pop(0))
                for x in cq: A.e(x)
            else:
                p = 1
                A.e(w[0])
                while pend: A.e(pend.pop(0))
                for x in c[:2] + [w[p]] + c[2:]: A.e(x)
                for x in w[p + 1:n]: A.e(x)
            A.e(f"s_cbranch_vccnz {tgt}")
        for x in chk(0, cntn[0]): A.e(x)
        A.e(kvm_addr.split("\n")[1] if O.KE in (1, 3) else kvm_addr)
        if prof:
            for x in jx0: A.e(x)
        A.e(f"s_cbranch_vccnz {fl2[0]}")
        nchk = lambda b: chk(b, cntn[b], 1 if b < TJ else 8 - TJ)
        for b in range(TJ + 1):
            A.label(seg[b])
            if b > 0 and late[b - 1]: A.e(W[b - 1][-1])
            A.label(seg2[b])
            if prof and b in (0, 4, TJ): stamp({0: 2, 4: 3, TJ: 4}[b])
            if b < TJ: body(b, nchk(b + 1), fl[b + 1], late[b])
            else:
                V = [smv(i) for i in range(nv)]
                w = []; fin_idx = []
                for t0 in range(0, len(tiles), O.TG):
                    for bb in range(TJ, 8):
                        for t in tiles[t0:t0 + O.TG]: w.append(smq(t, bb))
                    fin_idx += list(range(len(w) - O.TG, len(w)))
                weave(w + V, fin_idx, [epi_qk(t) for t in tiles], win1, O.PER)
        A.label(done)
        back = seg2[TJ]
        def d():
            TM = [XN, XN + 4]
            dfl = {h: A.newlabel("dfl") for h in range(1, 4)}; dseg = {h: A.newlabel("dseg") for h in range(1, 4)}
            lap2 = A.newlabel("lap2"); lfb = A.newlabel("lfb"); Ldone = A.newlabel("Ldone")
            o3 = pref[3]; yd = lambda h: len(o3) - 1 - o3.index(("d", h))
            for b in range(TJ + 1):
                A.label(fl[b])
                if b > 0 and late[b - 1]: A.e(W[b - 1][-1])
                A.label(fl2[b])
                cnt(b >> 2)
                if b < 4:
                    A.e(ldA(b)); A.e(f"s_mov_b32 s55, {1 << b}")
                    for x in after[b]: A.e(ldA(x))
                    for x in xst(b): A.e(x)
                    rp = chk(b, yd(b))
                    if b < 3:
                        for x in chk(b + 1, cntn[b + 1]): A.e(x)
                        A.e(f"s_cbranch_vccnz {dfl[b+1]}")
                        for h in range(b + 1, 4):
                            if h < 3: body(h, chk(h + 1, cntn[h + 1]), dfl[h + 1], False)
                            else: body(h, rp, lfb, False)
                    else:
                        for x in rp: A.e(x)
                        A.e(f"s_cbranch_vccnz {lfb}")
                    A.e("s_mov_b32 s55, 0")
                    w = W[b]; c = nchk(4); p = max(1, len(w) - O.CK)
                    for x in w[:p] + c + w[p:]: A.e(x)
                    A.e(f"s_cbranch_vccnz {fl2[4]}\ns_branch {seg2[4]}")
                elif b < 7:
                    k = 8 - b
                    if b < TJ: A.e(ldA(b))
                    A.e(f"s_mov_b32 s55, {(0xff << b) & 0xff}")
                    o = list(pref[b])
                    if b <= O.KB:
                        for x in xst(O.KB): A.e(x)
                        if b < O.KB and not O.NOKVM: o += [("k", 0), ("k", 1)][:1 if O.KE else 2]
                    lp = A.newlabel("rot")
                    def visit(h, n):
                        dn = A.newlabel("rdn"); fa = A.newlabel("rfa"); nx = A.newlabel("rnx")
                        A.e(f"s_bitcmp1_b32 s55, {h}\ns_cbranch_scc0 {dn}")
                        for x in chk(h, n): A.e(x)
                        A.e(f"s_cbranch_vccnz {fa}")
                        A.e(dummy)
                        A.e(f"s_bitset0_b32 s55, {h}")
                        if h < TJ:
                            for x in W[h]: A.e(x)
                        A.e(f"s_cmp_eq_u32 s55, 0\ns_cbranch_scc1 {back}\ns_branch {nx}")
                        A.label(dn)
                        A.e(dummy); A.e(f"s_branch {nx}")
                        A.label(fa)
                        A.e(ldA(h))
                        A.label(nx)
                    for h in range(b + 1 if b < TJ else b, 8):
                        visit(h, len(o) - 1 - o.index(h)); o.append(("v", h))
                    A.label(lp)
                    if O.PROF and O.PROF != 6: A.e("s_add_u32 s51, s51, 0x10000")
                    for h in range(b, 8): visit(h, k - 1)
                    A.e(f"s_sub_u32 s90, s90, 1\ns_cmp_gt_i32 s90, 0\ns_cbranch_scc1 {lp}\ns_mov_b32 s55, 0\ns_branch {back}")
                else:
                    A.e(f"s_mov_b32 s55, 0x80\ns_branch {slow}")
            for h in range(1, 4):
                A.label(dfl[h])
                A.e(ldA(h)); A.e(f"s_bitset1_b32 s55, {h}")
                for x in after[h]: A.e(ldA(x))
                for x in xst(h): A.e(x)
                if h < 3:
                    for x in chk(h + 1, cntn[h + 1]): A.e(x)
                    A.e(f"s_cbranch_vccnz {dfl[h+1]}\ns_branch {dseg[h+1]}")
                else: A.e(f"s_branch {lap2}")
            for h in range(2, 4):
                A.label(dseg[h])
                if h < 3: body(h, chk(h + 1, cntn[h + 1]), dfl[h + 1], False)
                else:
                    pend = [dummy] + [ldA(x) for x in after[h]] + xst(h)
                    for x in W[h]:
                        A.e(x)
                        if pend: A.e(pend.pop(0))
                    for x in pend: A.e(x)
            A.label(lap2)
            cnt(4)
            for h in range(4):
                sk = A.newlabel("l2s"); fa = A.newlabel("l2f")
                A.e(f"s_bitcmp1_b32 s55, {h}\ns_cbranch_scc0 {sk}")
                for x in chk(h, yd(h)): A.e(x)
                A.e(f"s_cbranch_vccnz {sk}")
                A.e(f"s_bitset0_b32 s55, {h}")
                for x in W[h]: A.e(x)
                A.label(sk)
            A.e(f"s_cmp_eq_u32 s55, 0\ns_cbranch_scc0 {lfb}")
            A.label(Ldone)
            for x in nchk(4): A.e(x)
            A.e(f"s_cbranch_vccnz {fl2[4]}\ns_branch {seg2[4]}")
            A.label(lfb)
            deferred(range(4), ldA, lambda bb: W[bb], Ldone, 4, lambda bb: TM[:O.NPL - 1], lambda bb: O.DPL, False)
            A.label(slow)
            deferred([7], ldA, lambda bb: [], back, 4, lambda bb: TM[:O.NPR - 1], lambda bb: O.DPR, False)
        tail.append(d)
    def zero(lo=0):
        for i in range(8): A.e(f"v_mov_b32 v{XC+i}, v{XN+i}")
        for i in range(lo, 48): A.e(f"v_mov_b32 v{ACC+i}, 0")
    def mzero():
        A.e(f"v_mov_b32 v{TB}, 0")
        for i in range(3): A.e(f"v_mfma_f32_16x16x1_4b_f32 {vr(ACC+16*i,16)}, v{TB}, v{TB}, 0")
    def s_frag():
        for c in range(2):
            for w in range(4): A.e(f"ds_read_b128 {vr(ACC+(c*4+w)*4,4)}, v{V_A1} offset:{w*256 + c*16}")
    def s_frag2():
        for c in range(2):
            b = ACC + c * 16
            A.e(f"s_waitcnt lgkmcnt({6-4*c})\nv_pk_add_f32 {vr(b,2)}, {vr(b,2)}, {vr(b+4,2)}\nv_pk_add_f32 {vr(b+2,2)}, {vr(b+2,2)}, {vr(b+6,2)}")
            A.e(f"s_waitcnt lgkmcnt({4-4*c})\nv_pk_add_f32 {vr(b+8,2)}, {vr(b+8,2)}, {vr(b+12,2)}\nv_pk_add_f32 {vr(b+10,2)}, {vr(b+10,2)}, {vr(b+14,2)}")
            A.e(f"v_pk_add_f32 {vr(b,2)}, {vr(b,2)}, {vr(b+8,2)}\nv_pk_add_f32 {vr(b+2,2)}, {vr(b+2,2)}, {vr(b+10,2)}")
            A.e(f"v_cvt_pk_bf16_f32 v{KEEP+2*c}, v{b}, v{b+1}\nv_cvt_pk_bf16_f32 v{KEEP+2*c+1}, v{b+2}, v{b+3}")
    def vm_read():
        for tt in range(2):
            for h in range(2): A.e(f"ds_read2st64_b32 {vr(KEEP+tt*4+2*h,2)}, v{V_L4} offset0:{(T_V + tt*1024)//256 + 2*h} offset1:{(T_V + tt*1024)//256 + 2*h + 1}")
    def vm_sum():
        for i in range(4): A.e(f"v_mov_b32 v{PK+i}, v{V_SEL}")
        for tt in range(2): A.e(f"v_mfma_f32_16x16x32_bf16 {vr(KEEP+4*tt,4)}, {vr(PK,4)}, {vr(KEEP+4*tt,4)}, 0")
        for i in range(4): A.e(f"v_cvt_pk_bf16_f32 v{KEEP+i}, v{KEEP+2*i}, v{KEEP+2*i+1}")
    kvm_store = f"buffer_store_dwordx4 {vr(KEEP,4)}, v{PK}, s[20:23], s101 offen sc1"
    flg_store = f"buffer_store_dword v{VF}, v{PK+1}, s[20:23], s69 offen sc1"
    kvm_addr = f"v_cndmask_b32 v{PK}, 2.0, v{V_L16}, s[82:83]\nv_cndmask_b32 v{PK+1}, 2.0, v{V_L4}, s[86:87]"
    loop = A.newlabel("loop"); last = A.newlabel("last"); np0 = A.newlabel("np0"); z1 = A.newlabel("z1"); loop0 = A.newlabel("loop0")
    if O.AV:
        assert O.JX
        A.e(f"buffer_load_dword v{KEEP+7}, off, s[20:23], s68 sc1")
    if O.PT2 and lst == "" and not O.AV:
        A.e(f"""
        v_lshrrev_b32 v{TA}, 4, v{V_L16}
        s_lshl_b32 s64, s58, 14
        s_lshl_b32 s65, s59, 9
        s_add_u32 s64, s64, s65
        s_add_u32 s64, s64, {R_PL}
        s_lshl_b32 s65, s57, 10
        s_add_u32 s65, s65, {R_O - 4*128}
        s_lshl_b32 s66, s57, 12
        s_add_u32 s66, s66, {R_SX - 12*128}
        v_mov_b32 v{AF}, s66
        v_mov_b32 v{AF+1}, s65
        v_cmp_gt_u32 vcc, 12, v{TA}
        v_cndmask_b32 v{AF}, v{AF}, v{AF+1}, vcc
        v_mov_b32 v{AF+1}, s64
        v_cmp_gt_u32 vcc, 4, v{TA}
        v_cndmask_b32 v{AF}, v{AF}, v{AF+1}, vcc
        v_lshl_add_u32 v{AF}, v{TA}, 7, v{AF}
        v_cmp_gt_u32 vcc, 36, v{TA}
        v_cndmask_b32 v{AF}, 2.0, v{AF}, vcc
        s_lshl_b32 s64, s50, 19
        buffer_load_dword v{AF+1}, v{AF}, s[20:23], s64 offen""")
    A.e(f"""
    s_mov_b32 s55, 0
    s_cmp_lg_u32 s50, 0
    s_cbranch_scc1 {np0}
    v_mov_b32 v{PK}, 0
    v_mov_b32 v{PK+1}, 0
    s_cmp_lg_u32 s58, 0
    s_cbranch_scc1 {z1}
""")
    if O.AV: A.e(f"v_mov_b32 v{PK}, v32\nv_mov_b32 v{PK+1}, v33\nv_mov_b32 v{PK+2}, v34\nv_mov_b32 v{PK+3}, v35")
    else: A.e(f"""
    v_lshrrev_b32 v{TA}, 6, v{V_L4}
    v_lshlrev_b32 v{TA}, 12, v{TA}
    v_bfe_u32 v{TB}, v{V_L4}, 1, 5
    v_add_u32 v{TA}, v{TA}, v{TB}
    s_lshl_b32 s64, s59, 6
    buffer_load_ushort v{PK}, v{TA}, s[44:47], s64 offen
    buffer_load_ushort v{PK+2}, v{TA}, s[44:47], s64 offen offset:32
    buffer_load_ushort v{PK+1}, v{TA}, s[44:47], s64 offen offset:2048
    buffer_load_ushort v{PK+3}, v{TA}, s[44:47], s64 offen offset:2080
    s_waitcnt vmcnt(0)
""")
    A.e(f"""
    v_lshl_or_b32 v{PK}, v{PK+2}, 16, v{PK}
    v_lshl_or_b32 v{PK+1}, v{PK+3}, 16, v{PK+1}
    v_min_u32 v{PK}, s81, v{PK}
    v_min_u32 v{PK+1}, s81, v{PK+1}""")
    A.label(z1)
    if O.PT2 and not O.AV: A.e("s_waitcnt vmcnt(0)")
    def pstore(sr_, sl_):
        A.e(f"buffer_store_dword v{PK}, v{V_PRD}, s[20:23], s{sl_} offen {lst}\nbuffer_store_dword v{PK+1}, v{V_PRD}, s[20:23], s{sl_} offen offset:32 {lst}")
        A.e(f"buffer_store_dword v{PK}, v{V_PRD}, s[20:23], s{sr_} offen sc1\nbuffer_store_dword v{PK+1}, v{V_PRD}, s[20:23], s{sr_} offen offset:32 sc1")
    pstore(73, 71)
    A.label(np0)
    A.e(f"""
    v_lshrrev_b32 v{TA}, 2, v{V_L16}
    v_bfe_u32 v{TB}, v{TA}, 5, 1
    v_mul_u32_u24 v{TB}, {PODD - 32}, v{TB}
    s_and_b32 s64, s50, 1
    s_lshl_b32 s64, s64, 5
    v_add3_u32 v{V_PRD}, v{TA}, v{TB}, s64""")
    xld = lambda r, sg: f"buffer_load_dwordx4 {vr(r,4)}, v{V_L16}, s[20:23], s{sg} offen\nbuffer_load_dwordx4 {vr(r+4,4)}, v{V_L16}, s[20:23], s{sg} offen offset:1024"
    if O.JX: A.e("s_mov_b32 s61, 1")
    else:
        flagwait(0)
        segoff(A, 99, 79, 0, 77)
        A.e(xld(XN, 99))
    def xentry(n):
        if not O.JX: return
        pe = A.newlabel("pe"); pb = A.newlabel("pb")
        A.e(f"s_cmp_lg_u32 s61, 0\ns_cbranch_scc1 {pe}"); A.label(pb)
        def d():
            A.label(pe)
            A.e(f"s_waitcnt vmcnt({n})\nv_readfirstlane_b32 s91, v{KEEP+7}\ns_cmp_gt_u32 s91, s79\ns_cbranch_scc0 {pb}")
            segoff(A, 62, 79, 0, 77)
            A.e(xld(XC, 62)); A.e(f"s_mov_b32 s61, 0\ns_branch {pb}")
        tail.append(d)
    A.e(f"""
    {f'buffer_load_dword v{KEEP+7}, off, s[20:23], s68 sc1' if O.FF and not O.AV else ''}
    {'' if O.AV else 's_waitcnt vmcnt(0)'}
    s_mov_b32 s92, s70
    s_mov_b32 s93, s72
    s_mov_b32 s94, s76
    s_add_u32 s95, s94, 4096
    s_mov_b32 s96, s74
    s_add_u32 s97, s96, 4096
    s_mov_b32 s98, s75
    s_barrier""")
    zero()
    A.e(f"s_cmp_gt_u32 s50, 1\ns_cbranch_scc0 {loop0}x")
    ja = A.newlabel("ja")
    if O.LAL >= 0: A.lines += [".p2align 6"] + ["    s_nop 0"] * O.LAL
    A.label(loop)
    def early(n, pre=0):
        if O.KE == 3:
            A.e(f"s_max_u32 s66, s79, 1\ns_sub_u32 s66, s66, 1\nv_cndmask_b32 v{VF}, 2.0, v{V_L16}, s[82:83]")
            segoff(A, 101, 66, 0, 78)
            delay(A, pre)
            A.e(f"buffer_store_dwordx4 {vr(KEEP,4)}, v{VF}, s[20:23], s101 offen sc1")
            delay(A, max(0, n - O.KJD - pre)); return
        if O.KJ > 63: delay(A, n); return
        e = A.newlabel("kje"); b = A.newlabel("kjb")
        A.e(f"s_cmp_gt_u32 s79, {O.KJ}\ns_cbranch_scc1 {e}")
        delay(A, n); A.label(b)
        def d():
            A.label(e)
            A.e(f"s_sub_u32 s66, s79, 1\nv_cndmask_b32 v{VF}, 2.0, v{V_L16}, s[82:83]")
            segoff(A, 101, 66, 0, 78)
            A.e(f"buffer_store_dwordx4 {vr(KEEP,4)}, v{VF}, s[20:23], s101 offen sc1")
            delay(A, max(0, n - O.KJD))
            A.e(f"s_branch {b}")
        tail.append(d)
    mzero()
    early(O.DL - 6 - trace(), O.KP23)
    stamp(0)
    def lloads():
        for b in range(4):
            A.e(ldA(b))
            if b < 3 and O.LI: A.e(f"s_nop {O.LI-1}")
    lloads()
    for i in range(8): A.e(f"v_mov_b32 v{XC+i}, v{XN+i}")
    A.e(f"s_branch {ja}")
    pin(O.PL0)
    A.label(loop0 + "x")
    mzero()
    early(O.DL0 - 6 - trace())
    stamp(0)
    lloads()
    A.label(ja)
    pin(O.PJ)
    xentry(5)
    A.e(f"v_mov_b32 v{VF}, s79" if O.KE in (1, 3) else f"s_max_u32 s66, s79, 1\ns_sub_u32 s66, s66, 1" + (f"\ns_cmp_gt_u32 s79, {O.KJ}\ns_cselect_b32 s64, s79, s66\nv_mov_b32 v{VF}, s64" if O.KJ < 64 else f"\nv_mov_b32 v{VF}, s66" if O.KE == 0 else ""))
    fl2 = [f"v_mov_b32 v{TA}, s79", "s_waitcnt vmcnt(3)", f"buffer_store_dword v{TA}, v{PK+1}, s[20:23], s69 offen sc1"] if O.KE == 2 else []
    if O.MEAS: A.e("s_cmp_eq_u32 s79, 9\ns_cselect_b32 s61, s62, s61\ns_memtime s[62:63]")
    if O.KE != 3: segoff(A, 101, 79 if O.KE == 1 else 66, 0, 78)
    A.e(f"s_cmp_eq_u32 s79, {nsteps-1}\ns_cbranch_scc1 {last}")
    if O.PROF in (1, 2, 5): A.e("s_waitcnt lgkmcnt(0)\ns_mov_b32 s26, s24")
    if O.JX:
        assert O.FF and O.LFW
        pq = A.newlabel("pq"); pk_ = A.newlabel("pk"); pl = A.newlabel("pl"); pg = A.newlabel("pg")
        fw = [f"s_cmp_lg_u32 s61, 0\ns_cbranch_scc1 {pq}\n{pk_}:"]
        jx0[:] = [f"v_readfirstlane_b32 s91, v{KEEP+7}", "s_add_u32 s64, s79, 1", "s_cmp_gt_u32 s91, s64\ns_cselect_b32 s99, s99, 2.0\ns_cselect_b32 s63, 0, 1"]
        def d():
            A.label(pq)
            A.e(f"s_cmp_gt_u32 s91, s79\ns_cbranch_scc1 {pg}")
            A.label(pl)
            A.e(f"""
            buffer_load_dword v{TA}, off, s[20:23], s68 sc1
            s_waitcnt vmcnt(0)
            v_readfirstlane_b32 s91, v{TA}
            s_cmp_gt_u32 s91, s79
            s_cbranch_scc1 {pg}
            s_sleep 2
            s_sub_u32 s90, s90, 1
            s_cmp_gt_i32 s90, 0
            s_cbranch_scc1 {pl}""")
            A.label(pg)
            segoff(A, 62, 79, 0, 77)
            A.e(xld(XC, 62)); A.e(f"s_waitcnt vmcnt(0)\ns_branch {pk_}")
        tail.append(d)
    else: fw = flagwait(1, O.LFW)
    segoff(A, 99, 79, 1, 77)
    win1 = (fw if O.LFW else []) + [f"buffer_load_dwordx4 {vr(XN,4)}, v{V_L16}, s[20:23], s99 offen", f"buffer_load_dwordx4 {vr(XN+4,4)}, v{V_L16}, s[20:23], s99 offen offset:1024",
            f"buffer_load_dword v{VF}, off, s[20:23], s68 sc1",
            f"s_add_u32 s64, s79, 2", f"s_and_b32 s64, s64, {XR-1}", f"s_lshl_b32 s100, s64, 19"]
    if O.FF:
        assert O.LFW
        win1 = ([] if O.JX else [f"v_readfirstlane_b32 s91, v{KEEP+7}"]) + [x for x in win1 if "s68" not in x] + (["s_mov_b32 s61, s63"] if O.JX else [])
    if O.NOX: win1 = win1[3:]
    delay(A, O.WL)
    phaseA(list(range(8)), win1, O.NV1, True)
    A.e("s_waitcnt lgkmcnt(0)\ns_barrier")
    stamp(5)
    w23 = A.newlabel("w23"); ogo = A.newlabel("ogo")
    w01 = A.newlabel("w01")
    A.e(f"s_cmp_gt_u32 s50, 1\ns_cbranch_scc0 {w01}" if O.SWP else f"s_cmp_gt_u32 s50, 1\ns_cbranch_scc1 {w23}")
    isw0 = len(A.lines)
    if O.SWP: A.label(w01)
    nf = A.newlabel("nf")
    A.e(smv(O.NV1))
    TSET = [([AF, AF + 16, AF + 4, AF + 20], PK), ([AF + 8, AF + 24, AF + 12, AF + 28], ACC + 28)]
    def ldSet(k):
        TS, M = TSET[k]
        o = [f"buffer_load_dwordx4 {vr(TS[p],4)}, v{V_A1}, s[20:23], s{94+(p>>1)} offen offset:{(p&1)*1536} sc1" for p in range(4)]
        return o + [f"buffer_load_dword v{M+p}, v{V_A2}, s[20:23], s{94+(p>>1)} offen offset:{(p&1)*1536} sc1" for p in range(4)]
    ldS = ldSet(0)
    assert O.DS >= 16
    ex = {}; restS = []
    if fl2: ex[O.NV1 + O.KF] = fl2[:1]; ex[O.NV1 + O.KF + 1] = fl2[1:]
    for k, x in enumerate(ldS):
        if O.DS + k < 32: ex[O.DS + k] = [x]
        else: restS.append(x)
    if O.DS <= 32:
        for x in vstream(O.NV1 + 1, O.VPF, ex, restS): A.e(x)
    else:
        for x in vstream(O.NV1 + 1, O.VPF, ex): A.e(x)
        delay(A, O.DS - 32)
        for x in restS: A.e(x)
    stamp(6)
    if O.S2:
        delay(A, O.DS2)
        for x in ldSet(1): A.e(x)
    stamp("S1iss")
    if O.B2POS == 0: A.e("s_waitcnt lgkmcnt(0)\ns_barrier"); vm_read()
    sp = A.newlabel("sp"); sok = A.newlabel("sok"); srt = A.newlabel("srt")
    mx, t_ = TA, TB
    T = AF; T4 = PK
    DPP8 = "row_ror:8 row_mask:0xf bank_mask:0xf"
    def schk(k, extra):
        TS, M = TSET[k]; U = TS[2]; X = TS[0]
        A.e(f"""
        s_waitcnt vmcnt({6+extra})""")
        if k == 0: stamp("Sarr")
        A.e(f"""
        v_pk_add_f32 {vr(X,2)}, {vr(X,2)}, {vr(TS[1],2)}
        v_pk_add_f32 {vr(X+2,2)}, {vr(X+2,2)}, {vr(TS[1]+2,2)}
        s_waitcnt vmcnt({4+extra})""")
        if k == 0: stamp("Sarr2")
        A.e(f"""
        v_pk_add_f32 {vr(U,2)}, {vr(U,2)}, {vr(TS[3],2)}
        v_pk_add_f32 {vr(U+2,2)}, {vr(U+2,2)}, {vr(TS[3]+2,2)}
        v_pk_add_f32 {vr(X,2)}, {vr(X,2)}, {vr(U,2)}
        v_pk_add_f32 {vr(X+2,2)}, {vr(X+2,2)}, {vr(U+2,2)}
        v_max3_f32 v{mx}, v{X}, v{X+1}, v{X+2}
        v_pk_add_f32 {vr(U,2)}, {vr(X,2)}, {vr(X+2,2)}
        s_waitcnt vmcnt({extra})""")
        if k == 0: stamp("Sarr3")
        A.e(f"""
        v_pk_add_f32 {vr(M,2)}, {vr(M,2)}, {vr(M+2,2)}
        v_add_f32 v{M}, v{M}, v{M+1}
        v_max3_f32 v{mx}, v{mx}, v{X+3}, v{M}
        v_add_f32 v{U}, v{U}, v{M}
        v_cmp_u_f32 vcc, v{U}, v{U+1}
        v_max_f32_dpp v{mx}, v{mx}, v{mx} {DPP8}
        v_mov_b32 v{t_}, v{mx}""")
    pin(O.PS)
    A.label(sp)
    schk(0, 8 if O.S2 else 0)
    A.e(f"s_cbranch_vccnz {srt}")
    A.label(sok)
    def d():
        A.label(srt)
        cnt(2)
        A.e(f"s_sub_u32 s90, s90, 1\ns_cmp_gt_i32 s90, 0\ns_cbranch_scc0 {sok}")
        if O.S2:
            y2 = A.newlabel("y2")
            schk(1, 0)
            A.e(f"s_cbranch_vccnz {y2}")
            for i in range(4): A.e(f"v_mov_b32 v{T+i}, v{TSET[1][0][0]+i}")
            A.e(f"v_mov_b32 v{T4}, v{TSET[1][1]}\ns_branch {sok}")
            A.label(y2)
            for x in ldSet(0): A.e(x)
            delay(A, 4)
            for x in ldSet(1): A.e(x)
        else:
            for x in ldS: A.e(x)
        A.e(f"s_branch {sp}")
    tail.append(d)
    stamp(7)
    PF = ACC; PM = ACC + 4; OD = ACC + 8; SD = ACC + 16
    A.e(f"""
    v_permlane16_swap_b32 v{t_}, v{mx}
    v_max_f32 v{mx}, v{mx}, v{t_}
    v_mov_b32 v{t_}, v{mx}
    v_permlane32_swap_b32 v{t_}, v{mx}
    v_max_f32 v{mx}, v{mx}, v{t_}
    v_mul_f32 v{mx}, s80, v{mx}""")
    vals = [T, T + 1, T + 2, T + 3, T4]
    for v in vals: A.e(f"v_fma_f32 v{v}, v{v}, s80, -v{mx}")
    def b2(pos):
        if O.B2POS == pos: A.e("s_waitcnt lgkmcnt(0)\ns_barrier"); vm_read()
    b2(1)
    stamp("pB2")
    SU = SD + 2
    for v in vals[:4]: A.e(f"v_exp_f32 v{v}, v{v}")
    A.e(f"""
    v_cvt_pk_bf16_f32 v{PF}, v{T}, v{T+1}
    v_cvt_pk_bf16_f32 v{PF+1}, v{T+2}, v{T+3}
    v_exp_f32 v{T4}, v{T4}
    v_mov_b32_dpp v{PF+2}, v{PF} {DPP8}
    v_mov_b32_dpp v{PF+3}, v{PF+1} {DPP8}""")
    b2(2)
    A.e(f"""
    v_mov_b32_dpp v{T4+1}, v{T4} {DPP8}
    v_cvt_pk_bf16_f32 v{PM}, v{T4}, v{T4+1}
    v_mfma_f32_16x16x32_bf16 {vr(SD,4)}, {vr(V_C,4)}, {vr(PF,4)}, 0
    v_mov_b32 v{PM+1}, v{PM}
    v_mfma_f32_16x16x32_bf16 {vr(OD,4)}, {vr(XC,4)}, {vr(PF,4)}, 0
    v_mov_b32 v{PM+2}, v{PM}
    v_mov_b32 v{PM+3}, v{PM}
    v_mfma_f32_16x16x32_bf16 {vr(OD+4,4)}, {vr(XC+4,4)}, {vr(PF,4)}, 0
    v_mfma_f32_16x16x32_bf16 {vr(SD,4)}, {vr(V_C+4,4)}, {vr(PM,4)}, {vr(SD,4)}""")
    stamp("pv1")
    b2(3)
    A.e(f"""
    s_waitcnt lgkmcnt(0)
    v_mfma_f32_16x16x32_bf16 {vr(OD,4)}, {vr(KEEP,4)}, {vr(PM,4)}, {vr(OD,4)}
    v_mfma_f32_16x16x32_bf16 {vr(OD+4,4)}, {vr(KEEP+4,4)}, {vr(PM,4)}, {vr(OD+4,4)}
    v_rcp_f32 v{SU}, v{SD}""")
    stamp("pv2")
    rdW = [f"ds_read_b128 {vr(ACC+q*4,4)}, v{V_WO} offset:{LO(0)+q*1024}" for q in range(12)]
    for i in range(4): A.e(f"v_pk_mul_f32 {vr(OD+2*i,2)}, {vr(OD+2*i,2)}, {vr(SU,2)} op_sel_hi:[1,0]")
    for i in range(4): A.e(f"v_cvt_pk_bf16_f32 v{PK+i}, v{OD+2*i}, v{OD+2*i+1}")
    A.e(f"buffer_store_dwordx4 {vr(PK,4)}, v{V_OST}, s[20:23], s98 offen {lst}")
    stamp(8)
    ldO = lambda b, r=None: f"buffer_load_dwordx4 {vr(AF+b*4 if r is None else r,4)}, v{V_L16}, s[20:23], s{96 + (b>>2)} offen offset:{(b&3)*1024} sc1"
    book = f"""s_add_u32 s79, s79, 1
    s_and_b32 s64, s79, {XR-1}
    s_lshl_b32 s64, s64, 19
    s_lshl_b32 s65, s79, 8
    s_and_b32 s65, s65, 0x2000
    s_lshl_b32 s66, s79, 16
    s_xor_b32 s88, s73, s65
    s_add_u32 s88, s88, s66
    s_sub_u32 s88, s88, s54
    s_add_u32 s89, s71, s64
    s_add_u32 s92, s70, s64
    s_xor_b32 s93, s72, s65
    s_add_u32 s93, s93, s66
    s_add_u32 s94, s76, s64
    s_add_u32 s95, s94, 4096
    s_add_u32 s98, s75, s64
    s_add_u32 s60, s74, s64""".split("\n")
    def oloads(fill):
        fill = list(fill)
        for b in range(8):
            A.e(ldO(b))
            if b < 7 and O.OI:
                n = O.OI
                while n > 0 and fill:
                    x = fill.pop(0); A.e(x); n -= 4 if "mfma" in x else (int(x.split()[1]) + 1 if "s_nop" in x else 1)
                if n > 0: A.e(f"s_nop {n-1}")
        for x in fill: A.e(x)
    A.e("s_barrier")
    for x in rdW + [f"v_mov_b32 v{XC+i}, 0" for i in range(8)]: A.e(x)
    delay(A, O.DO01)
    stamp(9)
    i0 = len(A.lines); vm_sum(); VS = [x.strip() for x in A.lines[i0:]]; del A.lines[i0:]
    oloads(VS[:6] + book + VS[6:])
    if not O.SWP: A.e(f"s_branch {ogo}")
    isw1 = len(A.lines)
    if O.WAL >= 0 and not O.SWP: A.lines += [".p2align 5"] + ["    s_nop 0"] * O.WAL
    A.label(w23)
    s_frag()
    for x in fl2: A.e(x)
    for i in range(O.NV1, O.NV1 + O.NV2): A.e(smv(i))
    stamp("sf1")
    s_frag2()
    stamp("sf2")
    SD2 = [KEEP + 4, PK, V_C + 4]
    A.e(f"""
    v_mfma_f32_16x16x32_bf16 {vr(SD2[0],4)}, {vr(XC,4)}, {vr(KEEP,4)}, 0
    v_mfma_f32_16x16x32_bf16 {vr(SD2[1],4)}, {vr(XC+4,4)}, {vr(KEEP,4)}, 0
    v_mfma_f32_16x16x32_bf16 {vr(SD2[2],4)}, {vr(KEEP,4)}, {vr(KEEP,4)}, 0""")
    for x in vfill[:5]: A.e(x)
    A.e(f"""
    buffer_store_dwordx4 {vr(SD2[0],4)}, v{V_A2}, s[20:23], s94 offen {lst}
    buffer_store_dwordx4 {vr(SD2[1],4)}, v{V_A2}, s[20:23], s94 offen offset:512 {lst}
    buffer_store_dwordx4 {vr(SD2[2],4)}, v{V_A2}, s[20:23], s94 offen offset:1024 {lst}""")
    stamp(6)
    for x in vfill[5:]: A.e(x)
    for x in vstream(O.NV1 + O.NV2, None): A.e(x)
    stamp("vend")
    for i in range(O.KW2): A.e(f"v_mfma_f32_16x16x32_bf16 {vr(AF+16,4)}, {vr(AF,4)}, {vr(AF,4)}, {vr(AF+16,4)}")
    A.e("s_waitcnt lgkmcnt(0)\ns_barrier")
    stamp(7)
    for x in rdW: A.e(x)
    A.e(f"""
    s_add_u32 s65, s76, s100
    s_add_u32 s66, s75, s100
    s_add_u32 s64, s71, s100
    s_cmp_eq_u32 s50, 2
    s_cselect_b32 s66, s66, s64
    buffer_store_dwordx4 {vr(V_C,4)}, v{V_L16}, s[20:23], s65 offen {lst}
    s_cmp_eq_u32 s50, 2
    s_cselect_b32 exec_hi, -1, 0
    buffer_store_dwordx4 {vr(V_C,4)}, v{V_L16}, s[20:23], s66 offen {lst}
    s_mov_b32 exec_hi, 0
    buffer_store_dwordx4 {vr(V_C,4)}, v{V_L16}, s[20:23], s65 offen offset:1024 {lst}
    s_mov_b64 exec, -1""")
    for i in range(8): A.e(f"v_mov_b32 v{XC+i}, 0")
    A.e("s_barrier")
    stamp(8)
    delay(A, O.DO)
    stamp(9)
    oloads(book)
    if O.SWP:
        A.e(f"s_branch {ogo}")
        if O.WAL >= 0: A.lines += [".p2align 5"] + ["    s_nop 0"] * O.WAL
        A.lines[isw0:] = A.lines[isw1:] + A.lines[isw0:isw1]
    pin(O.PO_)
    A.label(ogo)
    A.e("s_waitcnt lgkmcnt(0)")
    delay(A, O.WO)
    smo = lambda t, b: f"v_smfmac_f32_16x16x64_bf16 {vr(XC+t*4,4)}, {vr(AF+b*4,4)}, {vr((ACC+b*16 if b < 3 else wo_reg(b))+t*8,8)}, v{V_IDX}"
    groups = [(0, 2), (2, 2), (4, 2), (6, 1), (7, 1)] if O.OPAIR else [(b, 1) for b in range(8)]
    def ophase():
        F = [A.newlabel("of") for _ in groups]; N = [A.newlabel("on") for _ in groups]
        slow = A.newlabel("oslow"); back = A.newlabel("oback")
        work = lambda gi: [smo(t, bb) for bb in range(groups[gi][0], groups[gi][0] + groups[gi][1]) for t in range(2)]
        gchk = lambda gi, ex: chk(groups[gi][0], 8 - groups[gi][0] - groups[gi][1] + ex, groups[gi][1])
        mask = lambda gi: ((1 << groups[gi][1]) - 1) << groups[gi][0]
        rfl = [] if O.NOX or O.FF else [f"v_readfirstlane_b32 s91, v{VF}"]
        for x in gchk(0, 0): A.e(x)
        A.e(f"s_cbranch_vccnz {F[0]}")
        ng = len(groups)
        for gi in range(ng):
            if gi in (0, ng - 1): stamp(10 if gi == 0 else 11)
            for x in work(gi): A.e(x)
            if gi == 0:
                for x in rfl: A.e(x)
            if gi + 1 < ng:
                for x in gchk(gi + 1, 0): A.e(x)
                A.e(f"s_cbranch_vccnz {F[gi+1]}")
        A.label(back)
        def d():
            lap2 = A.newlabel("olap2")
            yd = lambda h: sum(groups[j][1] for j in range(h + 1, ng))
            dumO = f"buffer_load_dword v{PK}, off, s[20:23], s96 sc1"
            for gi, (b, nb) in enumerate(groups):
                A.label(F[gi])
                cnt(3)
                A.e(f"s_mov_b32 s55, {mask(gi)}")
                if gi == ng - 1: A.e(f"s_branch {slow}"); continue
                for bb in range(b, b + nb): A.e(ldO(bb))
                if gi == 0:
                    for x in rfl: A.e(x)
                ex = nb; stubs = []
                for h in range(gi + 1, ng):
                    st = A.newlabel("ost"); rt = A.newlabel("ort")
                    for x in gchk(h, ex): A.e(x)
                    A.e(f"s_cbranch_vccnz {st}")
                    w = work(h)
                    for k, x in enumerate(w):
                        A.e(x)
                        if k < groups[h][1]: A.e(dumO)
                    A.label(rt)
                    stubs.append((h, st, rt)); ex += groups[h][1]
                nf = A.newlabel("onf")
                for x in chk(b, yd(gi), nb): A.e(x)
                A.e(f"s_cbranch_vccnz {lap2}\ns_andn2_b32 s55, s55, {mask(gi)}")
                for x in work(gi): A.e(x)
                A.e(f"s_cbranch_scc0 {back}\ns_branch {lap2}")
                for h, st, rt in stubs:
                    A.label(st)
                    for bb in range(groups[h][0], groups[h][0] + groups[h][1]): A.e(ldO(bb))
                    A.e(f"s_or_b32 s55, s55, {mask(h)}\ns_branch {rt}")
            A.label(lap2)
            cnt(4)
            for h in range(ng):
                sk = A.newlabel("l2s")
                A.e(f"s_bitcmp1_b32 s55, {groups[h][0]}\ns_cbranch_scc0 {sk}")
                for x in chk(groups[h][0], yd(h), groups[h][1]): A.e(x)
                A.e(f"s_cbranch_vccnz {sk}")
                A.e(f"s_andn2_b32 s55, s55, {mask(h)}")
                for x in work(h): A.e(x)
                A.label(sk)
            A.e(f"s_cmp_eq_u32 s55, 0\ns_cbranch_scc1 {back}")
            A.label(slow)
            deferred(range(8), ldO, lambda bb: [smo(0, bb), smo(1, bb)], back, 4, lambda bb: [KEEP + 4, PK][:O.NPL - 1], lambda bb: O.DPL)
        tail.append(d)
    ophase()
    if O.FF: A.e(f"buffer_load_dword v{KEEP+7}, off, s[20:23], s68 sc1")
    kst = f"v_cndmask_b32 v{TA}, 2.0, v{V_L16}, s[82:83]\nbuffer_store_dwordx4 {vr(KEEP,4)}, v{TA}, s[20:23], s101 offen sc1"
    if O.KE == 1 and O.KEP == 0: A.e(kst)
    for t in range(2):
        a = XC + t * 4
        A.e(f"v_add_f32 v{a}, v{a}, v{a+1}\nv_add_f32 v{a+2}, v{a+2}, v{a+3}")
    for t in range(2):
        for u in range(2): A.e(f"ds_write_addtid_b32 v{XC+t*4+2*u} offset:{T_P + u*PODD + t*1024}")
    if O.KE == 1 and O.KEP == 1: A.e(kst)
    A.e(f"s_mov_b32 s96, s60\ns_add_u32 s97, s60, 4096\ns_cmp_gt_u32 s50, 1\ns_waitcnt lgkmcnt(0)\ns_barrier")
    stamp("B3")
    A.e(f"s_cbranch_scc1 {loop}")
    for w in range(4): A.e(f"ds_read2st64_b32 {vr(ACC+2*w,2)}, v{V_PRD} offset0:{T_P//256 + w} offset1:{T_P//256 + 4 + w}")
    for i in range(8): A.e(f"v_mov_b32 v{XC+i}, v{XN+i}")
    A.e(f"""
    s_waitcnt lgkmcnt(2)
    v_pk_add_f32 {vr(ACC,2)}, {vr(ACC,2)}, {vr(ACC+2,2)}
    s_waitcnt lgkmcnt(0)
    v_pk_add_f32 {vr(ACC+4,2)}, {vr(ACC+4,2)}, {vr(ACC+6,2)}
    v_pk_add_f32 {vr(ACC,2)}, {vr(ACC,2)}, {vr(ACC+4,2)}
    v_cvt_pk_bf16_f32 v{TA}, v{ACC}, v{ACC+1}""")
    pst = [f"buffer_store_dword v{TA}, v{V_L4}, s[20:23], s89 offen {lst}", f"buffer_store_dword v{TA}, v{V_L4}, s[20:23], s88 offen sc1"]
    A.e(pst[O.PORD])
    if O.PN: A.e(f"s_nop {O.PN-1}")
    A.e(pst[1 - O.PORD])
    stamp(12)
    A.e(f"s_branch {loop0}x")
    A.label(last)
    phaseA(list(range(4, 8)), [], 8, False)
    A.e("s_waitcnt vmcnt(0) lgkmcnt(0)")
    for x in fl2: A.e(x)
    if O.FL63 and not fl2 and O.KE != 3: A.e(f"v_mov_b32 v{VF}, {nsteps-1}"); A.e(flg_store)
    segoff(A, 101, 79, 0, 78)
    for x in vstream(8, 8): A.e(x)
    A.e("s_waitcnt lgkmcnt(0)\ns_barrier")
    l23 = A.newlabel("l23"); lj = A.newlabel("lj")
    A.e(f"s_cmp_gt_u32 s50, 1\ns_cbranch_scc1 {l23}")
    vm_read(); A.e("s_waitcnt lgkmcnt(0)"); vm_sum()
    A.e(f"s_branch {lj}")
    A.label(l23)
    s_frag(); s_frag2()
    A.label(lj)
    A.e(kvm_addr)
    A.e(kvm_store)
    A.e(f"s_waitcnt vmcnt(0)\ns_barrier\nv_mov_b32 v{VF}, {nsteps}")
    A.e(flg_store)
    A.e(f"s_branch {fin}")
    for f in tail: f()

def rec_standalone(A, name, par):
    A.begin_kernel(name)
    done = A.newlabel("done"); fin = A.newlabel("fin")
    A.e(f"""
    s_getreg_b32 s51, hwreg(HW_REG_XCC_ID)
    s_and_b32 s51, s51, 7
    s_cmp_ge_u32 s2, 256
    s_cbranch_scc1 {done}
    s_cmp_ge_u32 s51, 2
    s_cbranch_scc1 {done}
    s_load_dwordx8 s[4:11], s[0:1], {ARG['mem0']*8}
    s_load_dwordx2 s[12:13], s[0:1], {ARG['Wo']*8}
    s_load_dwordx2 s[18:19], s[0:1], {ARG['ws']*8}
    v_lshrrev_b32 v2, 6, v0
    s_lshr_b32 s57, s2, 3
    s_lshl_b32 s64, s51, 5
    s_add_u32 s57, s57, s64
    v_readfirstlane_b32 s50, v2
    s_mov_b32 s90, {O.BUDGET}
    s_load_dwordx2 s[16:17], s[0:1], {ARG['dbg']*8}
    s_mov_b32 s56, 0
    s_mov_b32 s51, 0
    s_waitcnt lgkmcnt(0)""")
    A.srd(20, 18, WS_BYTES)
    A.e("s_load_dword s67, s[16:17], 0\ns_waitcnt lgkmcnt(0)")
    rec_setup(A); rec_bases(A)
    A.e("s_barrier\ns_memrealtime s[52:53]\ns_memtime s[14:15]")
    for i in range(24, 44): A.e(f"s_mov_b32 s{i}, 0")
    A.e(f"s_lshl_b32 s16, s57, 2\ns_add_u32 s16, s16, s50\ns_lshl_b32 s16, s16, 12\ns_add_u32 s16, s16, {STAMP + MB}")
    rec_loop(A, "", fin)
    A.label(fin)
    A.e("s_memrealtime s[54:55]\ns_memtime s[16:17]\ns_waitcnt lgkmcnt(0)\nv_mov_b32 v20, 0\ns_sub_u32 s24, s16, s14")
    for i in range(13): A.e(f"v_writelane_b32 v20, s{24+2*i}, {i}")
    for i in range(8): A.e(f"v_writelane_b32 v20, s{26+i}, {17+i}")
    A.e("v_writelane_b32 v20, s14, 25\nv_writelane_b32 v20, s16, 26\ns_sub_u32 s62, s62, s61\nv_writelane_b32 v20, s62, 27")
    A.e(f"v_writelane_b32 v20, s52, 13\nv_writelane_b32 v20, s54, 14\nv_writelane_b32 v20, s{56 if O.PROF else 90}, 15\nv_writelane_b32 v20, s51, 16")
    A.e(f"s_lshl_b32 s64, s57, 2\ns_add_u32 s64, s64, s50\ns_lshl_b32 s64, s64, 7\ns_add_u32 s64, s64, {STAMP}\nv_lshrrev_b32 v21, 2, v{V_L16}\ns_mov_b32 exec_hi, 0\nbuffer_store_dword v20, v21, s[20:23], s64 offen")
    A.label(done)
    A.e("s_endpgm")
    A.end_kernel(512, 102, 256)
    A.launch(name, (256,), (256,), LDS_BYTES)

if __name__ == "__main__":
    out = sys.argv[1]
    A = Asm()
    variants = eval(sys.argv[2]) if len(sys.argv) > 2 else [dict()]
    base = {k: v for k, v in vars(Opt).items() if not k.startswith("_")}
    for i, v in enumerate(variants):
        for k, x in base.items(): setattr(O, k, x)
        par = v.pop("par", 0)
        for k, x in v.items(): setattr(O, k, x)
        if 'DL0' not in v: O.DL0 = max(0, O.DL - 9)
        if 'DO01' not in v: O.DO01 = max(0, O.DO - 7)
        MFMA_WS[0] = O.MWS
        rec_standalone(A, f"r{i}_p{par}_" + "_".join(f"{k}{int(x) if not isinstance(x, tuple) else ''.join('m' if y < 0 else str(y) for y in x)}" for k, x in v.items() if k != "XS") + "_kernel", par)
    A.lines = fix_hazards(A.lines)
    t = A.text()
    open(out, "w").write(t)
    check_hazards(t)
```

```python
import sys
sys.path.insert(0, "..")
from asmgen import *
from lay import *
import rec6
from rec6 import f2u, LOG2E, SCL
NAME = "adaLN_cond__memory_aug_recurrent_mem_tr__mixer_s_mlp__prompt"
GELU_C0 = -2.0 * 0.7978845608028654 * LOG2E
GELU_C1 = GELU_C0 * 0.044715
NEG = 0xff800000
class F:
    PROF = 0; DT = 0; DTK = ('w1', 'w2', 'w3', 'w4'); OSC = 'nt'; BP2 = (); QAV = 5; PPI = 0; PPK = ('wo', 'w1', 'w2', 'w3', 'w4'); PPS = 4; PPT = 0; PTD = 0; PTG = 30; PTK = 3; F2E = 0; F2S = 0; W4F = 0; W4T = 2; L12 = 0; NFL12 = None; NSL = 0; WNT = 'nt'; WNK = ('w1', 'w2', 'w3', 'w4'); SNT = (); LNT = (); MNT = 'nt'; QNT = ''; XNT = ''; FNT = ''; ANT = (); DBGT = 0; BPM = 0; TPF = 0; QPT = 0; DTS = 0; DT2 = (); DTS2 = 2; APE = 1; AV = 3; NFLR = None; NFLO = None; L3 = 0; L4 = 0; BLATE = 0; BSL = 32; B63 = 1; DP = 1; DPS = 1; FW3 = 0; KDP = 1; REP = 1; GAL = 0; DLO = 9; DOO = 7; RAL = -1; AVL = 0; LOC = 3; LOCX = 2; PSL = 4; QD = 5; QM = 46; GD = 6; GM = 22; ABAR = 1; BUD = 40000; FORCE_SLOW = 0; FORCE_FB = 0; VSL = 8; ROT = 0; P2 = 1; GS = 1; NL = 1; G1 = 1; G2 = 9; WB = 12; TC = 8; WV = 1; FB = 8; WE = 8; FH = 1; K3 = 2; XS = 0; SB = 5; LLO = 3; LHI = 30; FP4 = 20; PO = 2; PHI = 62; FDL = 0; RSP = 50; BD = 3; QM4 = 0; PA = 4; TRU = 0; SB1 = 2; EP = 1; SS = 4; HOLD = (); D3 = 1; DW2 = 24; D1N = 50; LWB = (20, 22, 24, 26, 28, 30, 32, 34); POD = 1; RE = 1; PU0 = 0; AT = 2; ATP = 118; ENDS = 0; PM = (True, True); TP = (8, 16, 32, 48); D0 = 3; D1 = 34; DL = 1; DB1 = 0; DB2 = 18; LWD = (4, 6, 8, 10, 12, 14, 16, 18); PPD = 20; R1 = 1; PP2 = 17; PD = 3; FPB = 36; IPF = 1; SYM = 0; PRG = 1; GT = 1; FX = 1; Q1B = 2; Q2B = 26; Q1W = 20; Q2W = 28; Q0S = 8; LWX = (0, 2, 4, 6, 26, 28, 30, 32); LW2 = (1, 3, 5, 7, 9, 11, 13, 15); OW2 = 20; FW2 = 18; DROP = (); Q0 = 14; H3 = 3; OD = 2; WD = 3; PPR = 12; PPN = 20; FP = 16; A0 = 4; WB3 = 8; FD = 44; Q1 = 28; Q2R = 6; Q2N = 22; FREE = 0; XW = 0; SPS = 1; ASL = 4; QROT = 0; BTH = 2; X2 = 0; NFL2 = 2; Q4 = 64; BPF = 1; BORD = [(3,0),(3,2),(3,1),(3,3),(2,3),(2,2)]; WOPF = 0; EXP = ''; KW = 1; GATE = 1; GPRE = 13; VSL2 = 48; NFL = 10; W4G = 1; NMEAS = 8; PF = 1; XMAP = 0x76325410; LATE = 0; OFF = ()
WSRD = "s[20:23]"
D_ = D
XO = (1, 2, 3, 0)

def ldptr(A, s, name): A.e(f"s_load_dwordx2 s[{s}:{s+1}], s[0:1], {ARG[name]*8}")

def row_lanes(A, sj, R):
    A.e(f"""
    v_and_b32 v2, 3, v1                ; row3
    v_lshrrev_b32 v3, 2, v1            ; c
    s_lshl_b32 s64, s{sj}, 2
    v_add_u32 v4, s64, v2
    s_lshl_b32 s65, s50, 9
    v_lshlrev_b32 v5, 4, v3
    v_add_u32 v5, s65, v5
    v_lshl_add_u32 v{R['RM']}, v4, 11, v5
    v_lshlrev_b32 v{R['CO']}, 1, v5
    v_lshrrev_b32 v5, 2, v3            ; f3
    v_and_b32 v3, 3, v3                ; g
    s_lshl_b32 s65, s50, 13
    v_lshlrev_b32 v5, 10, v5
    v_lshl_add_u32 v5, v3, 8, v5
    v_lshl_add_u32 v5, v4, 4, v5
    v_add_u32 v{R['FR']}, s65, v5
    s_lshl_b32 s65, s50, 9
    v_lshlrev_b32 v5, 3, v1
    v_add_u32 v{R['SW']}, s65, v5
    v_lshlrev_b32 v{R['SR']}, 3, v2""")
def load_consts(A, R, idx, dst, tmp, one=False):
    for g in range(4):
        A.e(f"s_mov_b32 s64, {MOD + g*6144*4 + idx*4096}")
        for a in range(2):
            for t in range(2): A.e(f"buffer_load_dwordx4 {vr((dst if g == 0 else tmp + 16*(g-1)) + a*8 + t*4, 4)}, v{R['CO']}, {WSRD}, s64 offen offset:{a*512 + t*16} sc1")
    A.e("s_waitcnt vmcnt(0)")
    sum4(A, dst, tmp, 16, one)
def ln_core(A, V, C1, SB, T, R, lds, PK):
    s1, s2, u1, u2, t = T, T + 1, T + 2, T + 3, T + 4
    A.e(f"v_add_f32 v{s1}, v{V}, v{V+1}\nv_mul_f32 v{s2}, v{V}, v{V}\nv_add_f32 v{u1}, v{V+2}, v{V+3}\nv_mul_f32 v{u2}, v{V+1}, v{V+1}")
    A.e(f"v_fmac_f32 v{s2}, v{V+2}, v{V+2}\nv_fmac_f32 v{u2}, v{V+3}, v{V+3}")
    for i in range(4, 16, 2):
        A.e(f"v_add_f32 v{s1}, v{s1}, v{V+i}\nv_fmac_f32 v{s2}, v{V+i}, v{V+i}\nv_add_f32 v{u1}, v{u1}, v{V+i+1}\nv_fmac_f32 v{u2}, v{V+i+1}, v{V+i+1}")
    A.e(f"v_add_f32 v{s1}, v{s1}, v{u1}\nv_add_f32 v{s2}, v{s2}, v{u2}")
    for ror in (4, 8):
        for s in (s1, s2): A.e(f"v_add_f32_dpp v{s}, v{s}, v{s} row_ror:{ror} row_mask:0xf bank_mask:0xf")
    for sw in ("v_permlane16_swap_b32", "v_permlane32_swap_b32"):
        A.e(f"v_mov_b32 v{u1}, v{s1}\nv_mov_b32 v{u2}, v{s2}\n{sw} v{u1}, v{s1}\n{sw} v{u2}, v{s2}\nv_add_f32 v{s1}, v{s1}, v{u1}\nv_add_f32 v{s2}, v{s2}, v{u2}")
    A.e(f"ds_write_b64 v{R['SW']}, {vr(s1,2)} offset:{lds}\ns_waitcnt lgkmcnt(0)\ns_barrier")
    for w in range(4): A.e(f"ds_read_b64 {vr(t+2*w,2)}, v{R['SR']} offset:{lds + w*512}")
    A.e("s_waitcnt lgkmcnt(0)")
    stats_fin(A, t, s1, s2)
    for i in range(16): A.e(f"v_fma_f32 v{V+i}, v{V+i}, v{s2}, v{s1}")
    for i in range(16): A.e(f"v_fma_f32 v{V+i}, v{V+i}, v{C1+i}, v{SB+i}")
    for i in range(8): A.e(f"v_cvt_pk_bf16_f32 v{PK+i}, v{V+2*i}, v{V+2*i+1}")
def stats_fin(A, t, nm, rs, mode=0):
    A.e(f"""
    v_add_f32 v{t}, v{t}, v{t+2}
    v_add_f32 v{t+1}, v{t+1}, v{t+3}
    v_add_f32 v{t+4}, v{t+4}, v{t+6}
    v_add_f32 v{t+5}, v{t+5}, v{t+7}
    v_add_f32 v{t}, v{t}, v{t+4}
    v_add_f32 v{t+1}, v{t+1}, v{t+5}
    v_mul_f32 v{nm}, {f2u(-1/1024):#x}, v{t}
    v_mul_f32 v{t+2}, v{nm}, v{nm}
    v_mul_f32 v{t+1}, {f2u(1/1024):#x}, v{t+1}
    v_sub_f32 v{t+1}, v{t+1}, v{t+2}
    v_max_f32 v{t+1}, 0, v{t+1}
    v_add_f32 v{t+1}, {f2u(1e-5):#x}, v{t+1}
    v_rsq_f32 v{rs}, v{t+1}""")
    if mode == 0: A.e(f"v_mul_f32 v{nm}, v{nm}, v{rs}")
def unpack(A, src, dst, n):
    for i in range(n): A.e(f"v_lshlrev_b32 v{dst+2*i}, 16, v{src+i}\nv_and_b32 v{dst+2*i+1}, s73, v{src+i}")

C_M, C_M2, C_M3, C_HA, C_HB, C_PAR, C_I, C_QW = range(8)
CB0, CB1 = 64, 192
TICK = 128
def dbg_srd(A, d): A.srd(d, 2, 256)
NCP = [0]
def cpoll(A, L, req, srd=92, place=True, va=16, lds=160 * 1024 - 4096, pre=0, sl=None):
    vp = A.newlabel("vpoll"); ck = A.newlabel("vck"); rt = A.newlabel("vrt"); ok = A.newlabel("vok"); ot = A.newlabel("vot"); fin = A.newlabel("vfin")
    a, d, r, t = va, va + 1, va + 2, va + 3
    NCP[0] += 1; lds += 256 * (NCP[0] % 8)
    dbg_srd(A, srd)
    A.e(f"""
    v_mbcnt_lo_u32_b32 v{a}, -1, 0
    v_mbcnt_hi_u32_b32 v{a}, -1, v{a}
    v_mov_b32 v{r}, 0""")
    for k, val in req.items(): A.e(f"v_cmp_eq_u32 vcc, {16 + k}, v{a}\nv_cndmask_b32 v{r}, v{r}, {val}, vcc")
    A.e(f"""
    v_and_b32 v{t}, 1, v{a}
    v_cmp_eq_u32 vcc, 1, v{t}
    v_mov_b32 v{t}, {32 << 8}
    v_cndmask_b32 v{t}, -1, v{t}, vcc
    v_min_u32 v{a}, 31, v{a}
    v_lshlrev_b32 v{a}, 2, v{a}
    s_sub_u32 s66, s88, 64""")
    def placement(known, bad):
        A.e(f"""
        s_cmp_lg_u32 s56, 2
        s_cbranch_scc1 {known}
        v_cmp_eq_u32 vcc, v{d}, v{t}
        s_and_b32 s64, vcc_lo, 0xffff
        s_cmp_eq_u32 s64, {0x10000 if (F.FORCE_SLOW or F.FORCE_FB) else 0xffff}
        s_cbranch_scc1 {known}
        s_mov_b32 s65, 0""")
        for x in range(8): A.e(f"v_readlane_b32 s64, v{d}, {2*x+1}\ns_lshr_b32 s64, s64, 8\ns_add_u32 s65, s65, s64")
        A.e(f"s_cmp_ge_u32 s65, 256\ns_cbranch_scc1 {bad}")
    if place: A.e(f"s_cmp_lg_u32 s50, 0\ns_cbranch_scc1 {ot}")
    if pre:
        lp = A.newlabel("pre"); A.e(f"s_mov_b32 s64, {pre}"); A.label(lp); A.e(f"s_sleep 32\ns_sub_u32 s64, s64, 1\ns_cmp_gt_i32 s64, 0\ns_cbranch_scc1 {lp}")
    A.label(vp)
    A.e(f"buffer_load_dword v{d}, v{a}, s[{srd}:{srd+3}], s66 offen sc1\ns_waitcnt vmcnt(0)")
    if place: placement(ck, ok); A.e(f"s_branch {rt}")
    A.label(ck)
    A.e(f"v_cmp_gt_u32 vcc, v{r}, v{d}\ns_cbranch_vccz {ok}")
    A.label(rt)
    A.e(f"s_sleep {sl or F.VSL}\ns_sub_u32 s90, s90, 1\ns_cmp_gt_i32 s90, 0\ns_cbranch_scc1 {vp}")
    A.label(ok)
    if place:
        A.e(f"ds_write_b32 v{a}, v{d} offset:{lds & 0xffff}" if lds < 65536 else f"v_add_u32 v{r}, {lds}, v{a}\nds_write_b32 v{r}, v{d}")
        A.e("s_waitcnt lgkmcnt(0)")
        A.label(ot)
        A.e(f"s_barrier\nv_add_u32 v{r}, {lds}, v{a}\nds_read_b32 v{d}, v{r}\ns_waitcnt lgkmcnt(0)")
        placement(fin, L["fb"])
        A.label(fin)
        A.e("s_and_b32 s56, s56, 1")
def verify(A, L, need_par, kind="role"):
    req = {C_I: 63}
    if kind == "qkv": req[C_HA] = 64
    if kind == "mod": req.update({C_M2: 63, C_M3: 1})
    if need_par: req[C_PAR] = 1
    cpoll(A, L, req, lds=0 if kind == "rec" else 160 * 1024 - 4096, sl=F.VSL2 if kind == "mod" else None)
    A.e("s_mov_b32 s67, 0")
    if need_par: A.e(f"v_readlane_b32 s65, v17, {16 + C_PAR}\ns_and_b32 s65, s65, 2\ns_lshl_b32 s67, s65, 12")
def av_issue(A, v, vl):
    dbg_srd(A, 92)
    A.e(f"v_min_u32 v{v}, 31, v{vl}\nv_lshlrev_b32 v{v}, 2, v{v}\ns_sub_u32 s64, s88, 64\nbuffer_load_dword v{v}, v{v}, s[92:95], s64 offen sc1")
def av_eval(A, v, t, vl, req, lds, pw=0):
    sk = A.newlabel("avs")
    A.e(f"""
    v_and_b32 v{t}, 1, v{vl}
    v_cmp_eq_u32 vcc, 1, v{t}
    v_mov_b32 v{t}, {32 << 8}
    v_cndmask_b32 v{t}, -1, v{t}, vcc
    v_cmp_eq_u32 vcc, v{v}, v{t}
    s_and_b32 s64, vcc_lo, 0xffff
    v_readlane_b32 s65, v{v}, {16 + C_PAR}
    s_cmp_eq_u32 s64, {0x10000 if (F.FORCE_SLOW or F.FORCE_FB) else 0xffff}
    s_cselect_b32 s65, s65, 0
    s_cmp_eq_u32 s56, 2
    s_cselect_b32 s65, s65, 0""")
    for k, val in req.items(): A.e(f"v_readlane_b32 s64, v{v}, {16 + k}\ns_cmp_ge_u32 s64, {val}\ns_cselect_b32 s65, s65, 0")
    A.e(f"""
    s_and_b32 s64, s65, 2
    s_lshl_b32 s64, s64, 12
    s_or_b32 s64, s64, 1
    s_cmp_eq_u32 s65, 0
    s_cselect_b32 s65, 0, s64
    v_mov_b32 v{t}, {lds}
    s_cmp_lg_u32 s50, 0
    s_cbranch_scc1 {sk}""")
    if pw: A.e(f"v_and_b32 v{v}, 3, v{vl}\nv_mad_u32_u24 v{t}, v{v}, {pw >> 7}, 0\nv_lshlrev_b32 v{t}, 7, v{t}\nv_add_u32 v{t}, {lds}, v{t}")
    A.e(f"""
    v_mov_b32 v{v}, s65
    ds_write_b32 v{t}, v{v}
    s_waitcnt lgkmcnt(0)""")
    A.label(sk)
    if pw: A.e(f"s_mul_i32 s64, s50, {pw}\ns_add_u32 s64, s64, {lds}\nv_mov_b32 v{t}, s64")
    A.e(f"s_barrier\nds_read_b32 v{v}, v{t}\ns_waitcnt lgkmcnt(0)\nv_readfirstlane_b32 s89, v{v}")
def av_verify(A, L, kind, slow=None):
    sv = A.newlabel("avn"); j = A.newlabel("avj")
    A.e(f"s_cmp_eq_u32 s89, 0\ns_cbranch_scc1 {sv}\ns_mov_b32 s56, 0\ns_and_b32 s67, s89, 0x2000\ns_branch {j}")
    A.label(sv); verify(A, L, True, kind)
    if slow: slow()
    A.label(j)
def signal(A, k, srd=92, vt=16, sel220=None):
    sk = A.newlabel("sig")
    A.e(f"s_waitcnt vmcnt(0)\ns_barrier\ns_cmp_lg_u32 s50, 0\ns_cbranch_scc1 {sk}")
    dbg_srd(A, srd)
    A.e(f"s_add_u32 s64, s88, {4*k}")
    if sel220 is not None: A.e(f"s_add_u32 s65, s88, {4*sel220}\ns_cmp_eq_u32 s58, {GPAR}\ns_cselect_b32 s64, s65, s64")
    A.e(f"v_mov_b32 v{vt}, 1\ns_mov_b64 exec, 1\nbuffer_atomic_add v{vt}, off, s[{srd}:{srd+3}], s64 sc1\ns_mov_b64 exec, -1")
    A.label(sk)
GPAR = 220
PR1 = 8
C_X = 8
def sum4(A, dst, tmp, n, one=False):
    for i in range(0, n, 2): A.e(f"v_pk_add_f32 {vr(dst+i,2)}, {vr(dst+i,2)}, {vr(tmp+i,2)}\nv_pk_add_f32 {vr(tmp+n+i,2)}, {vr(tmp+n+i,2)}, {vr(tmp+2*n+i,2)}")
    for i in range(0, n, 2): A.e(f"v_pk_add_f32 {vr(dst+i,2)}, {vr(dst+i,2)}, {vr(tmp+n+i,2)}")
    for i in range(0, n, 2): A.e(f"v_cvt_pk_bf16_f32 v{tmp+i//2}, v{dst+i}, v{dst+i+1}")
    unpack(A, tmp, dst, n // 2)
    if one:
        for i in range(n): A.e(f"v_add_f32 v{dst+i}, 1.0, v{dst+i}")

def measure_parity(A):
    nm = A.newlabel("nomeas"); pub = A.newlabel("pub"); lp = A.newlabel("mlp")
    A.e(f"""
    s_cmp_lg_u32 s58, {GPAR}
    s_cbranch_scc1 {nm}
    s_cmp_lg_u32 s50, 0
    s_cbranch_scc1 {nm}
    s_mov_b64 exec, 1
    s_mov_b32 s65, 1
    s_cmp_eq_u32 s56, 1
    s_cbranch_scc1 {pub}
    s_mov_b32 s66, {XMEAS}
    s_mov_b32 s67, {XMEAS+8192}
    s_mov_b32 s70, 0x7fffffff
    s_mov_b32 s71, 0x7fffffff
    s_mov_b32 s72, {F.NMEAS}""")
    A.label(lp)
    for (so, acc) in ((66, 70), (67, 71)):
        A.e(f"""
        s_memtime s[94:95]
        s_waitcnt lgkmcnt(0)
        buffer_store_dword v16, off, {WSRD}, s{so} sc1
        s_waitcnt vmcnt(0)
        s_memtime s[96:97]
        s_waitcnt lgkmcnt(0)
        s_sub_u32 s96, s96, s94
        s_min_u32 s{acc}, s{acc}, s96""")
    A.e(f"s_sub_u32 s72, s72, 1\ns_cmp_gt_u32 s72, 0\ns_cbranch_scc1 {lp}\ns_cmp_gt_u32 s71, s70\ns_cselect_b32 s65, 2, 1")
    A.label(pub)
    dbg_srd(A, 92)
    A.e(f"v_mov_b32 v16, s65\ns_add_u32 s64, s88, {4*C_PAR}\nbuffer_store_dword v16, off, s[92:95], s64 sc1")
    if F.PROF: A.e(f"v_mov_b32 v16, s70\nv_mov_b32 v17, s71\ns_mov_b32 s64, {STAMP2 - 64}\nbuffer_store_dwordx2 v[16:17], off, {WSRD}, s64")
    A.e("s_mov_b64 exec, -1")
    A.label(nm)
    A.e("s_barrier")

def duty(A, L, grp):
    nh = 1 + grp
    R = dict(RM=8, CO=9, FR=10, SW=11, SR=12)
    VW, VC, VI, VL = 13, 14, 15, 24; SV = 32; XR_ = 48; AC = 80; W = 96; V = 128; C1 = 96; SB = 112; T = 208; M1 = 28
    A.e(f"s_load_dwordx4 s[4:7], s[0:1], {ARG['c']*8}"); ldptr(A, 8, "x")
    if grp: measure_parity(A)
    A.e(f"""
    s_sub_u32 s59, s58, {128 + 64*grp}
    s_and_b32 s52, s59, 15
    s_lshr_b32 s53, s59, 4
    s_lshl_b32 s64, s50, 6
    v_add_u32 v{VC}, s64, v1            ; thread
    v_lshrrev_b32 v2, 4, v{VC}
    v_and_b32 v3, 15, v{VC}
    v_mul_u32_u24 v{VW}, {16*12288}, v2
    v_lshl_add_u32 v{VW}, v3, 4, v{VW}
    s_mul_i32 s54, s53, {256*12288}
    s_lshl_b32 s64, s52, {8 + grp}
    s_add_u32 s54, s54, s64
    s_add_u32 s54, s54, {4096*grp}
    v_lshlrev_b32 v{VI}, 1, v{VC}
    s_lshl_b32 s55, s53, 9
    s_mov_b32 s60, 0
    s_mov_b32 s73, 0xffff0000
    s_sub_u32 s61, s58, 128
    s_lshl_b32 s61, s61, 15
    v_lshlrev_b32 v25, 6, v2
    v_lshlrev_b32 v{VL}, 4, v1""")
    row_lanes(A, 60, R)
    A.e("s_waitcnt lgkmcnt(0)")
    A.srd(24, 4, 2048); A.srd(28, 6, 1024 * 12288); A.srd(32, 8, S * D_ * 2)
    for i in range(4): A.e(f"v_mov_b32 v{M1+i}, -1\nv_mov_b32 v{20+i}, 0")
    def stf(base, nb, reg=M1, sh=None):
        A.e(f"s_lshl_b32 s64, s62, 2\ns_add_u32 s64, s64, s50")
        if sh: A.e(f"s_lshr_b32 s65, s64, 6\ns_lshl_b32 s65, s65, 19\ns_and_b32 s64, s64, 63")
        A.e(f"s_mul_i32 s64, s64, {nb*1024}\ns_add_u32 s64, s64, {base}")
        if sh: A.e("s_add_u32 s64, s64, s65")
        for i in range(nb):
            if i and i % 4 == 0: A.e("s_add_u32 s64, s64, 4096")
            A.e(f"buffer_store_dwordx4 {vr(reg,4)}, v{VL}, {WSRD}, s64 offen offset:{(i&3)*1024} sc1 {F.FNT}")
            if F.BTH and nb > 4: A.e(f"s_waitcnt vmcnt({F.BTH})")
    def fill1():
        stf(R_PR, PR1 // 4); stf(RING, 2, sh=1); stf(R_SX, 4, sh=1); stf(FLG, 1, 20)
    def fill2():
        if not F.W4F: stf(R_PR + PR1 * 64 * KB, 16 - PR1 // 4)
        stf(XP, 8 if F.SYM == 2 else 6)
        A.e(f"""
        s_and_b32 s64, s62, 31
        s_lshl_b32 s64, s64, 10
        s_add_u32 s64, s64, {G1 - 32768}
        s_bitcmp1_b32 s62, 5
        s_cselect_b32 s65, {(NU+1)*32768}, 0
        s_add_u32 s64, s64, s65
        buffer_store_dwordx4 v[20:23], v{VL}, {WSRD}, s64 offen sc1""")
        if F.DP: A.e(f"s_lshl_b32 s64, s62, 10\ns_add_u32 s64, s64, {X1}\nbuffer_store_dwordx4 {vr(M1,4)}, v{VL}, {WSRD}, s64 offen sc1")
        for k_ in (F.DTK if F.DT else ()):
            b_, u_ = dict(wo=(OB, 128), w1=(H2, 32), w2=(G1, 32), w3=(Y1, 32), w4=(G3, 112))[k_]
            for j in range((F.DT * u_ + 255) // 256):
                A.e(f"s_lshl_b32 s64, s62, 2\ns_add_u32 s64, s64, s50\ns_add_u32 s64, s64, {256*j}\ns_min_u32 s64, s64, {F.DT*u_-1}\ns_lshl_b32 s64, s64, 10\ns_add_u32 s64, s64, {b_ + (NU - F.DT)*u_*1024}\nbuffer_store_dwordx4 {vr(M1,4)}, v{VL}, {WSRD}, s64 offen sc1")
        if F.KDP: A.e(f"s_lshl_b32 s64, s62, 14\ns_lshl_b32 s65, s50, 12\ns_and_b32 s65, s65, 0x2000\ns_add_u32 s64, s64, s65\ns_and_b32 s65, s50, 1\ns_lshl_b32 s65, s65, 10\ns_add_u32 s64, s64, s65\ns_add_u32 s64, s64, {KVM + 63*MB}\nbuffer_store_dwordx4 {vr(M1,4)}, v{VL}, {WSRD}, s64 offen sc1")
    def fills(f):
        f1 = A.newlabel("fl1"); f2 = A.newlabel("fl2")
        A.e(f"s_cmp_eq_u32 s58, {GPAR}\ns_cbranch_scc1 {f2}\ns_mov_b32 s62, s59")
        A.label(f1); f()
        A.e(f"s_cmp_eq_u32 s62, {GPAR + 1 - 192}\ns_mov_b32 s62, {GPAR - 192}\ns_cbranch_scc1 {f1}")
        A.label(f2)
    def bpf():
        np_ = A.newlabel("npf")
        A.e(f"s_load_dwordx8 s[36:43], s[0:1], {ARG['Wq']*8}\ns_cmp_eq_u32 s58, {GPAR}\ns_cbranch_scc1 {np_}\ns_lshl_b32 s64, s59, 2\ns_add_u32 s64, s64, s50\nv_lshlrev_b32 v16, 10, v1\nv_lshlrev_b32 v17, 7, v1\ns_waitcnt lgkmcnt(0)")
        if F.BPM:
            A.e(f"v_lshrrev_b32 v19, 2, v1\nv_mul_u32_u24 v19, 12288, v19\nv_and_b32 v26, 3, v1\nv_lshl_add_u32 v19, v26, 10, v19\ns_sub_u32 s66, s64, {F.BPM - 1}\ns_mul_i32 s65, s66, {16*12288}\ns_add_u32 s65, s65, 384\ns_cmp_ge_u32 s66, 64\ns_cselect_b32 s65, 2.0, s65\nbuffer_load_dword v26, v19, s[28:31], s65 offen")
        for m in range(4): A.srd(92 if m == 3 else 68 + 4 * m, 36 + 2 * m, 8 * MB)
        sr_ = lambda m: "s[92:95]" if m == 3 else f"s[{68+4*m}:{71+4*m}]"
        A.e("s_and_b32 s65, s64, 127\ns_lshl_b32 s65, s65, 16\ns_add_u32 s65, s65, 384\ns_cmp_ge_u32 s64, 128")
        A.e("s_cselect_b64 s[44:45], s[72:73], s[68:69]\ns_cselect_b64 s[46:47], s[74:75], s[70:71]\nbuffer_load_dword v26, v16, s[44:47], s65 offen")
        A.e("s_cselect_b64 s[44:45], s[92:93], s[76:77]\nbuffer_load_dword v26, v16, s[44:47], s65 offen")
        if F.B63:
            A.e("v_lshlrev_b32 v19, 13, v1\ns_and_b32 s65, s64, 15\ns_lshl_b32 s65, s65, 19\ns_add_u32 s65, s65, 8064\ns_cmp_ge_u32 s64, 16\ns_cselect_b64 s[44:45], s[72:73], s[68:69]\ns_cmp_ge_u32 s64, 32\ns_cselect_b64 s[44:45], s[76:77], s[44:45]")
            A.e("s_cmp_ge_u32 s64, 48\ns_cselect_b32 s65, 2.0, s65\nbuffer_load_dword v26, v19, s[44:47], s65 offen")
        A.e("s_lshl_b32 s65, s64, 13")
        for m, q in F.BORD[:F.BPF - 1]:
            if F.BSL: A.e(f"s_sleep {F.BSL}")
            A.e(f"s_add_u32 s66, s65, {q*2*MB}\nbuffer_load_dword v26, v17, {sr_(m)}, s66 offen")
        A.label(np_)
        A.e("s_mov_b32 s73, 0xffff0000")
    if grp and F.BPF and not F.BLATE: bpf()
    if grp:
        fills(fill1)
        signal(A, C_I, sel220=C_X)
        if F.BPF and F.BLATE: bpf()
        if F.BP2:
            np_ = A.newlabel("npf")
            A.e(f"s_cmp_eq_u32 s58, {GPAR}\ns_cbranch_scc1 {np_}\ns_lshl_b32 s64, s59, 2\ns_add_u32 s64, s64, s50\nv_lshlrev_b32 v17, 7, v1\ns_lshl_b32 s65, s64, 13")
            for m, q, sl in F.BP2:
                A.srd(92, 36 + 2 * m, 8 * MB)
                for _ in range(sl): A.e("s_sleep 32")
                A.e(f"s_add_u32 s66, s65, {q*2*MB}\nbuffer_load_dword v26, v17, s[92:95], s66 offen")
            A.label(np_)
        if "b" in F.EXP: A.e("s_endpgm")
        if F.X2: fills(fill2); signal(A, C_M2, sel220=C_M3); A.e("s_endpgm")
        if F.GATE: cpoll(A, L, {C_QW: F.GATE} if F.GATE > 1 else {}, pre=F.GPRE - sum(x[2] for x in F.BP2), sl=F.VSL2)
        if F.EXP: A.e("s_endpgm")
        if F.F2E:
            fills(fill2); signal(A, C_QW, sel220=C_X)
            for _ in range(F.F2S): A.e("s_sleep 32")
    A.e(f"buffer_load_ushort v16, v{VI}, s[24:27], s55 offen")
    for p in range(16):
        for h in range(nh): A.e(f"buffer_load_dwordx4 {vr(W + (h*16+p)*4, 4)}, v{VW}, s[28:31], s54 offen offset:{h*256} {F.MNT}")
        if p < 15: A.e("s_add_u32 s54, s54, 12288")
        if grp and F.BTH: A.e(f"s_waitcnt vmcnt({F.BTH})")
    for q in range(4):
        A.e(f"s_add_u32 s64, s61, {q*8192}")
        for a in range(2): A.e(f"buffer_load_dwordx4 {vr(XR_ + q*8 + a*4, 4)}, v{R['RM']}, s[32:35], s64 offen offset:{a*256} {F.XNT}")
    NI = 0
    nw = 16 * nh
    A.e(f"""
    s_waitcnt vmcnt({nw + 8 + NI})
    v_lshlrev_b32 v16, 16, v16
    v_mul_f32 v17, {f2u(-LOG2E):#x}, v16
    v_exp_f32 v17, v17
    v_add_f32 v17, 1.0, v17
    v_rcp_f32 v17, v17
    v_mul_f32 v17, v17, v16
    v_cvt_pk_bf16_f32 v17, v17, v17
    v_and_b32 v17, s73, v17
    v_lshlrev_b32 v18, 2, v{VC}
    ds_write_b32 v18, v17 offset:8192
    s_waitcnt lgkmcnt(0)
    s_barrier""")
    for i in range(4): A.e(f"ds_read_b128 {vr(SV+4*i,4)}, v25 offset:{8192 + 16*i}")
    for i in range(8 * nh): A.e(f"v_mov_b32 v{AC+i}, 0")
    A.e("s_waitcnt lgkmcnt(0)")
    for p in range(16):
        for h in range(nh):
            A.e(f"s_waitcnt vmcnt({nw - 1 - (p*nh + h) + 8 + NI})")
            w = W + (h * 16 + p) * 4
            for j in range(4):
                t = 16 + 2 * (j & 1)
                A.e(f"v_lshlrev_b32 v{t}, 16, v{w+j}\nv_and_b32 v{t+1}, s73, v{w+j}")
                sel = p & 1
                A.e(f"v_pk_fma_f32 {vr(AC+8*h+2*j,2)}, {vr(t,2)}, {vr(SV+p-sel,2)}, {vr(AC+8*h+2*j,2)} op_sel:[0,{sel},0] op_sel_hi:[1,{sel},1]")
    A.e(f"v_lshlrev_b32 v18, 5, v{VC}")
    for h in range(nh):
        for i in range(2): A.e(f"ds_write_b128 v18, {vr(AC+8*h+4*i,4)} offset:{16384 + h*8192 + 16*i}")
    A.e(f"""
    v_and_b32 v18, 127, v{VC}
    v_lshlrev_b32 v18, 2, v18
    v_lshrrev_b32 v19, 7, v{VC}
    v_lshl_add_u32 v19, v19, {13 if grp else 31}, v18     ; group 0: both thread halves compute the same sums
    s_waitcnt lgkmcnt(0)
    s_barrier""".replace(f"v_lshl_add_u32 v19, v19, 31, v18", "v_mov_b32 v19, v18"))
    for g in range(16):
        A.e(f"ds_read_b32 v{SV+g}, v19 offset:{16384 + g*512}")
        if g == 11: A.e("s_waitcnt lgkmcnt(4)")
    A.e("s_waitcnt lgkmcnt(0)")
    for st in (8, 4, 2):
        for i in range(0, st, 2): A.e(f"v_pk_add_f32 {vr(SV+i,2)}, {vr(SV+i,2)}, {vr(SV+st+i,2)}")
    A.e(f"""
    v_add_f32 v{SV}, v{SV}, v{SV+1}
    s_mul_i32 s64, s53, {6144*4}
    s_lshl_b32 s65, s52, {9 + grp}
    s_add_u32 s64, s64, s65
    s_add_u32 s64, s64, {MOD + 8192*grp}""")
    A.e(f"v_lshlrev_b32 v18, 2, v{VC}" if grp else "")
    A.e(f"buffer_store_dword v{SV}, v18, {WSRD}, s64 offen sc1")
    if grp and not F.F2E: fills(fill2)
    signal(A, C_M2 if grp else C_M, sel220=C_M3 if grp else None)
    if F.PROF: A.e("s_memrealtime s[98:99]")
    for q in range(4): unpack(A, XR_ + 8 * q, V + 16 * q, 8)
    for q in range(4):
        v = V + 16 * q; s1, s2, u1, u2 = T + 4 * q, T + 4 * q + 1, T + 4 * q + 2, T + 4 * q + 3
        A.e(f"v_add_f32 v{s1}, v{v}, v{v+1}\nv_mul_f32 v{s2}, v{v}, v{v}\nv_add_f32 v{u1}, v{v+2}, v{v+3}\nv_mul_f32 v{u2}, v{v+1}, v{v+1}")
        A.e(f"v_fmac_f32 v{s2}, v{v+2}, v{v+2}\nv_fmac_f32 v{u2}, v{v+3}, v{v+3}")
        for i in range(4, 16, 2):
            A.e(f"v_add_f32 v{s1}, v{s1}, v{v+i}\nv_fmac_f32 v{s2}, v{v+i}, v{v+i}\nv_add_f32 v{u1}, v{u1}, v{v+i+1}\nv_fmac_f32 v{u2}, v{v+i+1}, v{v+i+1}")
        A.e(f"v_add_f32 v{s1}, v{s1}, v{u1}\nv_add_f32 v{s2}, v{s2}, v{u2}")
    for ror in (4, 8):
        for q in range(4):
            for s_ in (T + 4 * q, T + 4 * q + 1): A.e(f"v_add_f32_dpp v{s_}, v{s_}, v{s_} row_ror:{ror} row_mask:0xf bank_mask:0xf")
    for sw in ("v_permlane16_swap_b32", "v_permlane32_swap_b32"):
        for q in range(4):
            s1, s2, u1, u2 = T + 4 * q, T + 4 * q + 1, T + 4 * q + 2, T + 4 * q + 3
            A.e(f"v_mov_b32 v{u1}, v{s1}\nv_mov_b32 v{u2}, v{s2}\n{sw} v{u1}, v{s1}\n{sw} v{u2}, v{s2}\nv_add_f32 v{s1}, v{s1}, v{u1}\nv_add_f32 v{s2}, v{s2}, v{u2}")
    for q in range(4): A.e(f"ds_write_b64 v{R['SW']}, {vr(T+4*q,2)} offset:{32768 + q*2048}")
    A.e("s_waitcnt lgkmcnt(0)\ns_barrier")
    for q in range(4):
        for w in range(4): A.e(f"ds_read_b64 {vr(SV+2*w,2)}, v{R['SR']} offset:{32768 + q*2048 + w*512}")
        A.e("s_waitcnt lgkmcnt(0)")
        stats_fin(A, SV, T, T + 1)
        for i in range(16): A.e(f"v_fma_f32 v{V+16*q+i}, v{V+16*q+i}, v{T+1}, v{T}")
    cpoll(A, L, {C_M: 64})
    if F.PROF: A.e("s_memrealtime s[100:101]")
    A.e(f"v_lshlrev_b32 v18, 5, v{VC}")
    for g in range(4):
        A.e(f"s_mov_b32 s64, {MOD + g*6144*4}")
        for i in range(2): A.e(f"buffer_load_dwordx4 {vr(SV + g*8 + 4*i, 4)}, v18, {WSRD}, s64 offen offset:{16*i} sc1")
    A.e("s_cmp_gt_u32 s50, 1\ns_cselect_b32 s64, 1.0, 0\ns_waitcnt vmcnt(0)")
    sum4(A, SV, SV + 8, 8)
    for i in range(8): A.e(f"v_add_f32 v{SV+i}, s64, v{SV+i}")
    for i in range(2): A.e(f"ds_write_b128 v18, {vr(SV+4*i,4)} offset:{16*i}")
    A.e("s_waitcnt lgkmcnt(0)\ns_barrier")
    for k, dst in ((0, SB), (1, C1)):
        for a in range(2):
            for t in range(2): A.e(f"ds_read_b128 {vr(dst + a*8 + t*4, 4)}, v{R['CO']} offset:{k*4096 + a*512 + t*16}")
    A.e(f"s_add_u32 s61, s61, {HB}\ns_add_u32 s62, s61, 4096\ns_waitcnt lgkmcnt(0)")
    for q in range(4):
        v = V + 16 * q
        for i in range(16): A.e(f"v_fma_f32 v{v+i}, v{v+i}, v{C1+i}, v{SB+i}")
        for i in range(8): A.e(f"v_cvt_pk_bf16_f32 v{XR_+8*q+i}, v{v+2*i}, v{v+2*i+1}")
        for a in range(2): A.e(f"buffer_store_dwordx4 {vr(XR_+8*q+4*a,4)}, v{R['FR']}, {WSRD}, s{61+a} offen offset:{64*q} sc1")
    signal(A, C_HB if grp else C_HA)
    if F.PROF:
        A.e(f"""
        s_memrealtime s[96:97]
        s_waitcnt lgkmcnt(0)
        v_mov_b32 v16, s98
        v_mov_b32 v17, s100
        v_mov_b32 v18, s96
        v_mov_b32 v19, s86
        s_lshl_b32 s64, s58, 4
        s_add_u32 s64, s64, {STAMP2 - 8192}
        buffer_store_dwordx4 v[16:19], off, {WSRD}, s64""")

def stamp(A, v, par=None):
    if not F.PROF: return
    A.e(f"s_memrealtime s[84:85]\ns_lshr_b32 m0, s60, 1\ns_waitcnt lgkmcnt(0)\nv_writelane_b32 v{v}, s84, m0")
def tst(A, i):
    if F.PROF >= 2: A.e(f"s_memtime s[{32+2*i}:{33+2*i}]")
def tacc(A, n):
    if F.PROF < 2: return
    A.e("s_waitcnt lgkmcnt(0)")
    for i in range(n - 1): A.e(f"s_sub_u32 s64, s{34+2*i}, s{32+2*i}\ns_add_u32 s{92+i}, s{92+i}, s64")
    A.e(f"s_sub_u32 s64, s32, s48\ns_cmp_eq_u32 s48, 0\ns_cselect_b32 s64, 0, s64\ns_add_u32 s{92+n-1}, s{92+n-1}, s64\ns_mov_b32 s48, s{32+2*(n-1)}")
def tinit(A):
    if F.PROF < 2: return
    for i in range(92, 100): A.e(f"s_mov_b32 s{i}, 0")
    A.e("s_mov_b32 s48, 0\ns_memtime s[46:47]\ns_memrealtime s[100:101]")
def tout(A, v):
    if F.PROF < 2: return
    for i in range(8): A.e(f"v_writelane_b32 v{v}, s{92+i}, {2+i}")
    A.e(f"s_memtime s[32:33]\ns_memrealtime s[34:35]\ns_waitcnt lgkmcnt(0)\ns_sub_u32 s32, s32, s46\ns_sub_u32 s34, s34, s100\nv_writelane_b32 v{v}, s32, 10\nv_writelane_b32 v{v}, s34, 11")
def stamp_out(A, regs):
    if not F.PROF: return
    A.e(f"s_lshl_b32 s64, s58, 2\ns_add_u32 s64, s64, s50\ns_mul_i32 s64, s64, 768\ns_add_u32 s64, s64, {STAMP2}\nv_mbcnt_lo_u32_b32 v16, -1, 0\nv_mbcnt_hi_u32_b32 v16, -1, v16\nv_lshlrev_b32 v16, 2, v16")
    for i, r in enumerate(regs[:3]): A.e(f"buffer_store_dword v{r}, v16, {WSRD}, s64 offen offset:{i*256}")
def flag_store(A, vt, sval, saddr):
    A.e(f"v_mov_b32 v{vt}, {sval}\ns_mov_b64 exec, 1\nbuffer_store_dword v{vt}, off, {WSRD}, s{saddr} sc1\ns_mov_b64 exec, -1")
def poll_loop(A, ld, vF, sneed, sl=None):
    lp = A.newlabel("plp"); ok = A.newlabel("pok")
    A.label(lp)
    A.e(f"""
    {ld}
    s_waitcnt vmcnt(0)
    v_cmp_gt_u32 vcc, s{sneed}, v{vF}
    s_cbranch_vccz {ok}
    s_sleep {sl or F.PSL}
    s_sub_u32 s90, s90, 1
    s_cmp_gt_i32 s90, 0
    s_cbranch_scc1 {lp}""")
    A.label(ok)

def poll_pipe(A, ld, vF, regs, sneed, ok):
    lp = A.newlabel("ppl"); n = len(regs); oks = [A.newlabel("ppk") for _ in regs]
    rl = lambda r: ld.replace(f" v{vF},", f" v{r},", 1)
    for r in regs[:-1]:
        A.e(rl(r))
        if F.PPS: A.e(f"s_sleep {F.PPS}")
    A.label(lp)
    for i in range(n):
        A.e(f"{rl(regs[i - 1])}\ns_waitcnt vmcnt({n - 1})\nv_cmp_gt_u32 vcc, s{sneed}, v{regs[i]}\ns_cbranch_vccz {oks[i]}")
        if F.PPT: A.e(f"s_sleep {F.PPT}")
    A.e(f"s_sub_u32 s90, s90, 1\ns_cmp_gt_i32 s90, 0\ns_cbranch_scc1 {lp}\ns_waitcnt vmcnt(0)")
    for i in range(n): A.label(oks[i]); A.e(f"v_mov_b32 v{vF}, v{regs[i]}\ns_branch {ok}")
def weave(A, M, fill, first=0, per=1):
    fill = list(fill)
    for i, m in enumerate(M):
        A.e(m)
        if i >= first:
            for _ in range(per):
                if fill: A.e(fill.pop(0))
    for x in fill: A.e(x)

class Sched:
    def __init__(self, A): self.A = A; self.q = []; self.done = -1
    def lds(self, ins, tag=None): self.A.e(ins); self.q.append(tag)
    def need(self, tag):
        i = len(self.q) - 1 - self.q[::-1].index(tag)
        if i > self.done:
            n = len(self.q) - 1 - i
            assert n <= 15
            self.A.e(f"s_waitcnt lgkmcnt({n})"); self.done = i
    def copy(self):
        c = Sched(self.A); c.q = list(self.q); c.done = self.done; return c

def stage_weights(A, stages, ld, pf=None, nfl=0, rot=None, rotk=None, hook=None, slp=0, nt=''):
    A.e(f"""
    v_lshrrev_b32 v26, 2, v1
    v_and_b32 v27, 3, v1
    v_mul_u32_u24 v16, {ld}, v26
    v_lshl_add_u32 v16, v27, 4, v16
    v_lshlrev_b32 v17, 6, v25
    v_lshl_add_u32 v17, v24, 4, v17
    v_add_u32 v17, s61, v17""")
    def issue(st):
        srd, pre, rows, _ = stages[st]
        npf = pf(st, -1) if pf else 0
        A.e(pre)
        A.e(f"s_add_u32 m0, s61, {(st&1)*16384}")
        for J in range(rows // 16):
            if rot and J % 4 == 0:
                A.e(f"s_add_u32 s64, s{rot(st)}, {J//4}\ns_and_b32 s64, s64, 3\ns_mul_i32 s65, s64, {64*ld}\ns_add_u32 s63, s62, s65\ns_lshl_b32 s64, s64, 12\ns_add_u32 s64, s64, s61\ns_add_u32 m0, s64, {(st&1)*16384}")
            if rotk and J % 2 == 0:
                A.e(f"s_add_u32 s64, s{rotk}, {J//2}\ns_sub_u32 s65, s64, {rows//32}\ns_cselect_b32 s64, s64, s65\ns_mul_i32 s64, s64, {32*ld}\ns_add_u32 s63, s62, s64")
            sa = 63 if rot or rotk else 62
            A.e(f"buffer_load_dwordx4 v16, s[{srd}:{srd+3}], s{sa} offen {nt} lds")
            if J + 1 < rows // 16: A.e(f"s_add_u32 s{sa}, s{sa}, {16*ld}\ns_add_u32 m0, m0, 1024")
            if pf: npf += pf(st, J)
            if nfl: A.e(f"s_waitcnt vmcnt({nfl})")
            if slp: A.e(f"s_sleep {slp}")
        return rows // 16 + npf
    if F.PROF: rec6.sstamp(A, 30, 1)
    n = [issue(0), issue(1)]
    for st in range(len(stages)):
        if not (hook and st + 1 == len(stages)): A.e(f"s_waitcnt vmcnt({n[st+1] if st + 1 < len(stages) else 0})")
        if F.PROF: rec6.sstamp(A, 30, 2 * st)
        stages[st][3]((st & 1) * 16384)
        A.e("s_waitcnt lgkmcnt(0)")
        if F.PROF and st: rec6.sstamp(A, 30, 2 * st + 1)
        x = hook(st, n) if hook else 0
        if st + 2 < len(stages): n.append(issue(st + 2) + x)
    if F.PROF: rec6.sstamp_out(A, 30, 58)
def lanes(A):
    A.e("""
    v_and_b32 v21, 15, v1              ; lam
    v_lshrrev_b32 v22, 4, v1           ; g
    v_lshrrev_b32 v23, 2, v21          ; r
    v_and_b32 v24, 3, v21              ; c
    s_lshl_b32 s61, s50, 15
    v_lshl_add_u32 v25, v22, 3, v23    ; 8g + r""")
def late(A, n=None):
    n = n or F.LATE
    if n:
        lp = A.newlabel("late"); A.e(f"s_mov_b32 s64, {n}"); A.label(lp); A.e(f"s_sleep 16\ns_sub_u32 s64, s64, 1\ns_cmp_gt_i32 s64, 0\ns_cbranch_scc1 {lp}")
MF = "v_mfma_f32_16x16x32_bf16"

def qkv_role(A, L):
    L16, VR0, VR1, VT = 0, 4, 5, 6; ACC = (32, 44); VH = 56; PK = 60; XW = 64; NW = 16; ST = (8, 10, 11); D = F.QD
    def wr_(ks, t, n=4, o=0):
        i = (ks * 3 + t) * 4 + o
        return ar(i, n) if i < 256 else vr(128 + i - 256, n)
    done = A.newlabel("done")
    lanes(A)
    A.e(f"s_load_dwordx4 s[4:7], s[0:1], {ARG['Wq']*8}"); ldptr(A, 8, "Wv")
    A.e(f"""
    s_lshl_b32 s52, s59, 7
    s_and_b32 s64, s50, 1
    s_lshl_b32 s65, s64, 6
    s_add_u32 s53, s52, s65
    s_lshr_b32 s65, s50, 1
    s_lshl_b32 s65, s65, 6
    s_add_u32 s52, s52, s65
    s_lshl_b32 s54, s64, 3
    s_waitcnt lgkmcnt(0)
    s_cmp_gt_u32 s50, 1
    s_cselect_b64 s[10:11], s[4:5], s[6:7]""")
    A.srd(28, 10, 8 * MB); A.srd(32, 8, 8 * MB)
    def rdp(q):
        def f(buf):
            for kk in range(8):
                for t in range(2):
                    for h in range(2): A.e(f"ds_read_b64_tr_b16 {wr_(8*q+kk,t,2,2*h)}, v17 offset:{buf + (32*kk + 4*h)*64 + 8*t}")
                if kk % 3 == 2: A.e("s_waitcnt lgkmcnt(0)")
        return f
    def rdv(q):
        def f(buf):
            if q == 0: A.e("v_add_u32 v18, s54, v17")
            for kk in range(8):
                for h in range(2): A.e(f"ds_read_b64_tr_b16 {wr_(8*q+kk,2,2,2*h)}, v18 offset:{buf + (32*kk + 4*h)*64}")
                if kk == 5: A.e("s_waitcnt lgkmcnt(0)")
        return f
    stg = []
    for q in range(4):
        stg.append((28, f"s_add_u32 s62, s53, {q*256*8192}", 256, rdp(q)))
        stg.append((32, f"s_add_u32 s62, s52, {q*256*8192}", 256, rdv(q)))
    rec6.help_addr(A, 28, 1, 59, "s_lshl_b32 s65, s64, 3\ns_and_b32 s66, s50, 1\ns_lshl_b32 s55, s66, 2\ns_add_u32 s65, s65, s55\ns_lshl_b32 s66, s66, 5")
    rec6.help_addr(A, 31, 1, 59, "s_lshl_b32 s65, s64, 4\ns_lshl_b32 s55, s50, 2\ns_add_u32 s65, s65, s55\ns_lshl_b32 s66, s50, 5")
    def pf(st, J):
        if not F.PF: return 0
        t = st + 1; i = J // 4
        if J == -1:
            if st: return 0
            for i in (2, 3): A.e(f"s_mov_b32 s64, {i*64*8192}\nbuffer_load_dword v29, v28, s[28:31], s64 offen")
            return 2
        if J % 4 != 1 or t > 7 or (t & 1 and i & 1): return 0
        if t & 1: A.e(f"s_mov_b32 s64, {((t>>1)*256 + (i>>1)*128)*8192}\nbuffer_load_dword v29, v31, s[32:35], s64 offen")
        else: A.e(f"s_mov_b32 s64, {((t>>1)*256 + i*64)*8192}\nbuffer_load_dword v29, v28, s[28:31], s64 offen")
        return 1
    A.e("s_and_b32 s60, s50, 1\ns_lshl_b32 s60, s60, 1")
    U0 = 128 * 1024
    def dma0():
        A.e(f"s_lshl_b32 s64, s50, 13\ns_add_u32 m0, s64, {U0}\ns_add_u32 s64, s64, {HB}\ns_add_u32 s65, s64, 4096\nv_lshlrev_b32 v{L16}, 4, v1")
        for i in range(8):
            A.e(f"buffer_load_dwordx4 v{L16}, {WSRD}, s{64+(i>>2)} offen offset:{(i&3)*1024} lds")
            if i == 3: A.e("s_add_u32 m0, m0, 4096")
    def qpt(real):
        if not F.QPT: return
        A.e(f"s_lshl_b32 s64, s59, 14\ns_lshl_b32 s65, s50, 12\ns_add_u32 s64, s64, s65\ns_add_u32 s64, s64, {QKV}\nv_lshlrev_b32 v{VT}, 6, v1" if real else f"s_mov_b32 s64, {HB}\nv_mov_b32 v{VT}, 0")
        for k in range(F.QPT): A.e(f"buffer_load_dword v{VT+1}, v{VT}, {WSRD}, s64 offen" + (f"\ns_add_u32 s64, s64, {MB}" if real else ""))
    def hook(st, n):
        if st == F.QAV: av_issue(A, 9, 1); return 1
        if st == 6:
            sk = A.newlabel("qe"); j = A.newlabel("qj")
            if F.QAV == 5: A.e(f"s_waitcnt vmcnt({n[7] - 1})")
            av_eval(A, 9, 10, 1, {C_I: 63, C_HA: 64}, U0, 8192)
            A.e(f"s_cmp_eq_u32 s89, 0\ns_cbranch_scc1 {sk}"); dma0(); qpt(True); A.e(f"s_waitcnt vmcnt({8 + F.QPT})\ns_branch {j}")
            A.label(sk); A.e("s_waitcnt vmcnt(0)"); A.label(j)
        return 0
    stage_weights(A, stg, 8192, pf, F.NFL, (lambda st: 50 if st & 1 else 60) if F.QROT else None, hook=hook if F.AV & 2 else None, nt=F.QNT)
    if F.GATE == 9:
        sq = A.newlabel("sq"); sq2 = A.newlabel("sq2")
        A.e(f"s_and_b32 s64, s59, 7\ns_cmp_eq_u32 s64, 3\ns_cbranch_scc1 {sq}\ns_cmp_lg_u32 s59, 63\ns_cbranch_scc1 {sq2}"); A.label(sq); signal(A, C_QW); A.label(sq2)
    elif F.GATE > 1: signal(A, C_QW)
    if F.EXP: A.e("s_endpgm")
    if F.AV & 2: av_verify(A, L, "qkv", lambda: (A.e("s_barrier"), dma0(), qpt(False)))
    else: verify(A, L, True, "qkv")
    A.e(f"""
    s_barrier
    v_lshlrev_b32 v{L16}, 4, v1
    s_mov_b32 s60, 0
    s_lshl_b32 s63, s50, 13
    s_add_u32 s61, s63, {HB}
    s_mov_b32 s70, 0
    s_lshl_b32 s52, s59, 14
    s_and_b32 s64, s50, 1
    s_lshl_b32 s64, s64, 11
    s_add_u32 s53, s52, s64
    s_lshl_b32 s64, s50, 10
    s_add_u32 s52, s52, s64
    s_add_u32 s52, s52, 4096           ; V base
    s_cmp_gt_u32 s50, 1
    s_cselect_b32 s54, 0x2000, 0
    s_lshl_b32 s69, s59, 6
    s_add_u32 s69, s69, s67
    s_add_u32 s69, s69, {F_QKV}
    v_mov_b32 v{VR0}, v{L16}
    v_add_u32 v{VR1}, 32768, v{L16}""")
    if F.AV & 2: A.e(f"s_add_u32 s61, s61, 32768\nv_add_u32 v{VR0}, {U0}, v{L16}\nv_mov_b32 v{VR1}, v{L16}")
    def loads():
        o = ["s_add_u32 m0, s70, s63", "s_add_u32 s62, s61, 4096"]
        for i in range(8):
            o.append(f"buffer_load_dwordx4 v{L16}, {WSRD}, s{61+(i>>2)} offen offset:{(i&3)*1024} lds")
            if i == 3: o.append("s_add_u32 m0, m0, 4096")
        return o + ["s_add_u32 s61, s61, 32768", "s_add_u32 s70, s70, 32768", "s_and_b32 s70, s70, 0x1ffff"]
    def epi(par):
        a = ACC[par]
        o = ["s_sub_u32 s66, s60, 1", "s_lshr_b32 s64, s66, 1", "s_lshl_b32 s65, s64, 12", "s_and_b32 s65, s65, 0x2000", "s_xor_b32 s65, s65, s67", "s_lshl_b32 s64, s64, 20",
             "s_add_u32 s64, s64, s65", "s_add_u32 s65, s64, s52", "s_xor_b32 s64, s64, s54", "s_add_u32 s66, s64, s53"]
        if par: o += ["s_cmp_eq_u32 s60, 0", f"s_cselect_b32 s65, {SCRATCH}, s65", f"s_cselect_b32 s66, {SCRATCH}, s66"]
        o += [f"v_cvt_pk_bf16_f32 v{PK+i}, v{a+2*i}, v{a+2*i+1}" for i in range(4)]
        o += [f"v_cvt_pk_bf16_f32 v{VH+2*par+i}, v{a+8+2*i}, v{a+9+2*i}" for i in range(2)]
        o += [f"buffer_store_dwordx4 {vr(PK,4)}, v{L16}, {WSRD}, s66 offen offset:{par*1024} sc1{' nt' if 'qk' in F.SNT else ''}"]
        if par: o += [f"buffer_store_dwordx4 {vr(VH,4)}, v{L16}, {WSRD}, s65 offen sc1{' nt' if 'v' in F.SNT else ''}"]
        return o
    rd = lambda ks, nxt: f"ds_read_b128 {vr(XW+4*(ks%NW),4)}, v{VR1 if nxt else VR0} offset:{ks*1024}"
    if F.PROF:
        for r in ST: A.e(f"v_mov_b32 v{r}, 0")
        A.e(f"s_memrealtime s[84:85]\ns_waitcnt lgkmcnt(0)\nv_writelane_b32 v{ST[2]}, s84, 0\nv_writelane_b32 v{ST[2]}, s86, 1")
    tinit(A)
    for x in loads() + ([] if F.AV & 2 else loads()): A.e(x)
    A.e(f"s_waitcnt vmcnt({8 + (F.QPT if F.AV & 2 else 0)})\ns_barrier")
    for ks in range(D): A.e(rd(ks, 0))
    top = A.newlabel("top"); tail = []
    A.label(top)
    for par in range(2):
        tst(A, 0)
        fill = {}
        for k, x in enumerate(epi(par ^ 1)): fill.setdefault(3 + k // 2 if k < 13 else k - 3, []).append(x)
        for k, x in enumerate(loads()): fill.setdefault(F.QM + 2 + 2 * k, []).append(x)
        for n in range(96):
            ks, t = divmod(n, 3)
            a = vr(ACC[par] + 4 * t, 4); x = vr(XW + 4 * (ks % NW), 4)
            if t == 0: A.e(f"s_waitcnt lgkmcnt({D-1})")
            A.e(f"{MF} {a}, {x}, {wr_(ks,t)}, {a if ks else 0}" if t == 2 else f"{MF} {a}, {wr_(ks,t)}, {x}, {a if ks else 0}")
            if t == 0: A.e(rd((ks + D) % 32, ks + D >= 32))
            for y in fill.get(n, []): A.e(y)
            if n == F.QM:
                nf = A.newlabel("nf")
                tst(A, 1)
                A.e(f"s_waitcnt vmcnt({2-par})")
                if par == 0:
                    sk = A.newlabel("sk")
                    hb = A.newlabel("hb"); hb2 = A.newlabel("hb2")
                    hc = A.newlabel("hc")
                    A.e(f"s_cmp_eq_u32 s60, 60\ns_cbranch_scc1 {hb}\ns_cmp_eq_u32 s60, {2*PR1}\ns_cbranch_scc1 {hc}"); A.label(hb2)
                    def dh(hb=hb, hb2=hb2, hc=hc):
                        A.label(hb); cpoll(A, L, {C_HB: 64, C_M2: 63}, 28, False, 12); A.e(f"s_branch {hb2}")
                        A.label(hc); cpoll(A, L, {C_QW: 32} if F.W4F else {C_QW if F.F2E else C_M2: 63}, 28, False, 12); A.e(f"s_branch {hb2}")
                    tail.append(dh)
                    A.e(f"s_sub_u32 s64, s60, 2\ns_cmp_gt_u32 s64, {2*F.Q4}\ns_cbranch_scc1 {sk}\ns_waitcnt vmcnt(0)"); A.label(sk)
                    A.e(f"s_cselect_b32 s64, 1, s50")
                else: A.e("s_mov_b32 s64, s50")
                tst(A, 2)
                A.e(f"s_barrier\ns_cmp_ge_u32 s60, {NU-2}\ns_cselect_b32 s61, {HB}, s61\ns_cmp_lg_u32 s64, 0\ns_cbranch_scc1 {nf}\ns_lshr_b32 s64, s60, 1")
                flag_store(A, VT, "s64", 69); A.label(nf)
                tst(A, 3)
        A.e(f"v_mov_b32 v{VR0}, v{VR1}\nv_add_u32 v{VR1}, 32768, v{VR1}\nv_and_b32 v{VR1}, 0x1ffff, v{VR1}")
        if F.PROF: tst(A, 4); tacc(A, 5); stamp(A, ST[par])
        A.e("s_add_u32 s60, s60, 1")
    A.e(f"s_cmp_lt_u32 s60, {NU}\ns_cbranch_scc1 {top}")
    for x in epi(1): A.e(x)
    A.e(f"s_waitcnt vmcnt(0) lgkmcnt(0)\ns_barrier\ns_cmp_lg_u32 s50, 0\ns_cbranch_scc1 {done}")
    flag_store(A, VT, NSEG, 69)
    A.label(done)
    tout(A, ST[2]); stamp_out(A, ST)
    if F.AT: A.e(f"s_cmp_lt_u32 s59, {16*F.AT}\ns_cbranch_scc1 {L['att2']}")
    if F.TPF:
        assert F.AT == 2
        sk = A.newlabel("tpf"); u0 = NU - 4
        A.e(f"""
        s_cmp_lg_u32 s56, 0
        s_cbranch_scc1 {sk}
        s_sub_u32 s64, s59, 32
        s_lshl_b32 s64, s64, 2
        s_add_u32 s64, s64, s50
        v_lshlrev_b32 v2, 7, v1
        s_sub_u32 s65, s64, 64
        s_min_u32 s65, s65, 55
        s_lshl_b32 s65, s65, 13
        s_add_u32 s65, s65, {G3 + u0*112*1024}
        s_lshl_b32 s66, s64, 13
        s_add_u32 s66, s66, {OB + u0*131072}
        s_cmp_lt_u32 s64, 64
        s_cselect_b32 s65, s66, s65
        buffer_load_dword v3, v2, {WSRD}, s65 offen
        s_lshr_b32 s65, s64, 4
        s_cmp_eq_u32 s65, 1
        s_cselect_b32 s66, {G1 + u0*32768}, s66
        s_cmp_eq_u32 s65, 2
        s_cselect_b32 s66, {Y1 + u0*32768}, s66
        s_cmp_eq_u32 s65, 0
        s_cselect_b32 s66, {H2 + u0*32768}, s66
        s_cmp_gt_u32 s65, 2
        s_cbranch_scc1 {sk}
        s_and_b32 s64, s64, 15
        s_lshl_b32 s64, s64, 13
        s_add_u32 s66, s66, s64
        buffer_load_dword v3, v2, {WSRD}, s66 offen""")
        A.label(sk); A.e("s_waitcnt vmcnt(0)")
    A.e("s_endpgm")
    for d in tail: d()

def gemm_role(A, L, kind):
    KS = 7 if kind == "w4" else 8
    stats = kind in ("w1", "w3"); xch = kind in ("wo", "w4"); res = kind == "w2"
    L16, VFA, VA, VRD, VRB, ONE, VF, VT, VO, VSW, VSR = 0, 2, 3, 4, 8, 12, 16, 17, 18, 19, 20
    ACC, FIN, S1, S2, SP, XW, NW, PKT, CS, RES, TM, M1 = 32, 40, 48, 52, 56, 64, 16, 128, 152, 160, 168, 204; ST = (200, 201, 202)
    LST = 128 * 1024; D = F.GD; NF = 4 * KS
    wreg = lambda n, t, k=4, o=0: ar((n * 2 + t) * 4 + o, k)
    done = A.newlabel("done")
    lanes(A)
    arg, ld, nbytes = dict(wo=("Wo", 2048, 8 * MB), w1=("w1", 2048, 2 * MB), w2=("w2", 2048, 2 * MB), w3=("w3", 7168, 7 * MB), w4=("w4", 2048, 7 * MB))[kind]
    ldptr(A, 4, arg)
    if xch: ldptr(A, 6, "x" if kind == "wo" else "out"); A.e("s_lshr_b32 s52, s59, 3\ns_and_b32 s53, s59, 7")
    else: A.e("s_mov_b32 s52, 0\ns_mov_b32 s53, s59")
    A.e(f"s_mul_i32 s54, s52, {NF*32*ld}\ns_lshl_b32 s64, s53, 8\ns_add_u32 s54, s54, s64\ns_lshl_b32 s64, s50, 6\ns_add_u32 s54, s54, s64\ns_waitcnt lgkmcnt(0)")
    A.srd(28, 4, nbytes)
    if xch: A.srd(24, 6, S * D_ * 2)
    def rdw(x):
        def f(buf):
            for kk in range(KS):
                for t in range(2):
                    for h in range(2): A.e(f"ds_read_b64_tr_b16 {wreg(x*KS+kk,t,2,2*h)}, v17 offset:{buf + (32*kk + 4*h)*64 + 8*t}")
                if kk % 3 == 2: A.e("s_waitcnt lgkmcnt(0)")
        return f
    A.e("s_and_b32 s55, s53, 7" + ("\ns_cmp_eq_u32 s55, 7\ns_cselect_b32 s55, 0, s55" if KS == 7 else ""))
    if kind == "w4" and F.W4G: cpoll(A, L, {C_M2: 63}, sl=F.VSL2)
    stage_weights(A, [(28, f"s_xor_b32 s62, s50, {x}\ns_mul_i32 s62, s62, {KS*32*ld}\ns_add_u32 s62, s62, s54", KS * 32, rdw(x)) for x in range(4)], ld, None, F.NFL2, None, 55 if F.ROT else None)
    verify(A, L, False, "mod")
    inb, ust = dict(wo=(OB, 131072), w1=(H2, 32768), w2=(G1, 32768), w3=(Y1, 32768), w4=(G3, 112 * 1024))[kind]
    A.e(f"""
    s_barrier
    v_lshlrev_b32 v{L16}, 4, v1
    s_mov_b32 s60, 0
    s_mov_b32 s70, 0
    s_mov_b32 s72, s55
    s_mov_b32 s55, 0
    s_lshl_b32 s63, s50, 13
    v_mov_b32 v{VA}, v{L16}
    s_mov_b32 s73, 0xffff0000
    s_lshl_b32 s64, s52, 2
    s_add_u32 s64, s64, s50
    s_mul_i32 s61, s64, {KS*1024}
    s_add_u32 s61, s61, {inb}
    s_lshl_b32 s82, s64, 8
    s_add_u32 s82, s82, {dict(wo=F_ATT, w1=F_LN, w2=F_W1, w3=F_W2, w4=F_W3)[kind]}
    s_mov_b32 s68, s82
    s_lshl_b32 s83, s53, 2
    s_add_u32 s83, s83, s50            ; output fragment index""")
    for x in range(4): A.e(f"s_xor_b32 s64, s50, {x}\ns_lshl_b32 s64, s64, 13\nv_add_u32 v{VRB+x}, s64, v{L16}")
    nfl = dict(wo=4, w1=4, w2=8, w3=8, w4=7)[kind]
    A.e(f"v_min_u32 v{VFA}, {nfl-1}, v1\nv_lshlrev_b32 v{VFA}, 2, v{VFA}")
    if res:
        A.e(f"""
        s_lshr_b32 s64, s50, 1
        s_add_u32 s64, s64, 1
        s_sub_u32 s65, 0, s64
        s_bitcmp1_b32 s50, 0
        s_cselect_b32 s64, s64, s65
        s_add_u32 s64, s64, 16
        v_add_u32 v26, s64, v21
        v_lshrrev_b32 v27, 4, v26
        v_and_b32 v26, 15, v26
        v_lshl_add_u32 v26, v22, 4, v26
        v_lshlrev_b32 v26, 4, v26
        v_lshl_add_u32 v{VA}, v27, 15, v26
        s_sub_u32 s61, s61, 32768""")
    VAR = 208
    if F.ROT:
        for i in range(KS): A.e(f"s_add_u32 s64, s72, {i}\ns_sub_u32 s65, s64, {KS}\ns_cselect_b32 s64, s64, s65\ns_lshl_b32 s64, s64, 10\ns_add_u32 s64, s64, {4096 - (i&3)*1024}\nv_add_u32 v{VAR+i}, s64, v{VA}")
        A.e("s_sub_u32 s61, s61, 4096")
    A.e("s_lshl_b32 s66, s83, 10")
    if kind == "w3":
        A.e(f"s_mul_i32 s65, s83, 147\ns_lshr_b32 s65, s65, 10\ns_mul_i32 s69, s65, {256 - 28}\ns_lshl_b32 s64, s83, 2\ns_add_u32 s69, s69, s64\ns_add_u32 s69, s69, {F_W3}")
    else:
        A.e(f"s_lshr_b32 s65, s83, 3\ns_lshl_b32 s65, s65, 8\ns_and_b32 s64, s83, 7\ns_lshl_b32 s64, s64, 2\ns_add_u32 s69, s64, s65\ns_add_u32 s69, s69, {dict(wo=F_WO, w1=F_W1, w2=F_W2, w4=F_W4)[kind]}")
    outb, ost = dict(wo=(X1, 32768), w1=(G1, 32768), w2=(Y1, 32768), w3=(G3, 112 * 1024), w4=(0, 32768))[kind]
    if xch:
        A.e(f"""
        s_lshl_b32 s64, s53, 2
        s_add_u32 s64, s64, s50
        s_mul_i32 s74, s64, {4*6144}
        s_xor_b32 s64, s50, s52
        s_sub_u32 s64, s64, 1
        s_max_i32 s64, s64, 0
        s_lshl_b32 s64, s64, 11
        s_add_u32 s74, s74, s64
        s_add_u32 s74, s74, {XP + (0 if kind == 'wo' else 768*KB)}
        s_mov_b32 s75, 0
        s_mov_b32 s76, 0
        s_mov_b32 s77, 0                   ; pending
        v_lshlrev_b32 v26, 11, v21
        v_lshl_add_u32 v26, v22, 4, v26
        s_lshl_b32 s64, s83, 6
        v_add_u32 v{VO}, s64, v26
        v_lshlrev_b32 v26, 5, v22
        s_lshl_b32 s64, s83, 7
        s_add_u32 s64, s64, {MOD + (2 if kind == 'wo' else 5)*4096}""")
        for g in range(4):
            for i in range(2): A.e(f"buffer_load_dwordx4 {vr((CS if g == 0 else PKT + 8*(g-1)) + 4*i, 4)}, v26, {WSRD}, s64 offen offset:{16*i} sc1")
            A.e(f"s_add_u32 s64, s64, {6144*4}")
        A.e("s_waitcnt vmcnt(0)")
        sum4(A, CS, PKT, 8)
        for i in range(4): A.e(f"v_mov_b32 v{M1+i}, -1")
    if stats:
        A.e(f"""
        s_lshl_b32 s64, s50, 9
        s_add_u32 s64, s64, {LST}
        v_lshlrev_b32 v26, 3, v1
        v_add_u32 v{VSW}, s64, v26
        v_lshl_add_u32 v26, v23, 4, v21
        v_lshlrev_b32 v26, 3, v26
        v_add_u32 v{VSR}, {LST}, v26
        s_mov_b32 s74, 0x22222222
        s_mov_b32 s75, 0x22222222
        s_mov_b32 s76, 0x44444444
        s_mov_b32 s77, 0x44444444
        s_mov_b32 s78, 0x88888888
        s_mov_b32 s79, 0x88888888
        s_mov_b32 s80, {f2u(GELU_C0):#x}
        s_mov_b32 s81, {f2u(GELU_C1):#x}
        v_mov_b32 v{TM+23}, s80""")
        for i in range(4): A.e(f"v_mov_b32 v{ONE+i}, 0x3f803f80")
        for n in range(NF):
            for t in range(2): A.e(f"{MF} {vr(CS+4*t,4)}, {wreg(n,t)}, {vr(ONE,4)}, {vr(CS+4*t,4) if n else 0}")
    def loads():
        o = ["s_add_u32 m0, s70, s63"] + ([] if F.ROT else ["s_add_u32 s62, s61, 4096"])
        for i in range(KS):
            o.append(f"buffer_load_dwordx4 v{VAR+i}, {WSRD}, s61 offen offset:{(i&3)*1024} lds" if F.ROT else f"buffer_load_dwordx4 v{VA}, {WSRD}, s{61+(i>>2)} offen offset:{(i&3)*1024} lds")
            if i == 3: o.append("s_add_u32 m0, m0, 4096")
        return o + [f"s_add_u32 s61, s61, {ust}", "s_add_u32 s70, s70, 32768", "s_and_b32 s70, s70, 0x1ffff"]
    pollld = f"buffer_load_dword v{VF}, v{VFA}, {WSRD}, s68 offen sc1"
    def need(add, d=71):
        if F.FREE: A.e(f"s_cmp_ge_u32 s60, {NU-add}\ns_cselect_b32 s{d}, -1, 0"); return
        A.e(f"s_add_u32 s{d}, s60, {add+1}")
        if res: A.e(f"s_and_b32 s64, s50, 1\ns_add_u32 s{d}, s{d}, s64\ns_min_u32 s{d}, s{d}, {NU}\ns_cmp_ge_u32 s60, {NU-add}\ns_cselect_b32 s{d}, -1, s{d}")
    xr = lambda n: vr(XW + 4 * (n % NW), 4)
    rd = lambda n: f"ds_read_b128 {xr(n)}, v{VRD + n//KS} offset:{(n%KS)*1024}"
    def mm(n):
        o = [f"{MF} {vr(ACC+4*t,4)}, {wreg(n,t)}, {xr(n)}, {vr(ACC+4*t,4) if n else 0}" for t in range(2)]
        if stats and n < KS: o += [f"{MF} {vr(S1,4)}, {vr(ONE,4)}, {xr(n)}, {vr(S1,4) if n else 0}", f"{MF} {vr(S2,4)}, {xr(n)}, {xr(n)}, {vr(S2,4) if n else 0}"]
        return o
    def both(f):
        l1 = A.newlabel("b1"); l2 = A.newlabel("b2")
        A.e(f"s_cmp_eq_u32 s56, 1\ns_cbranch_scc1 {l1}"); f("")
        A.label(l2)
        def d(): A.label(l1); A.e("s_nop 7"); f("sc1"); A.e(f"s_branch {l2}")
        tail.append(d)
    def f1():
        A.e("s_add_u32 s64, s74, s75\ns_add_u32 s65, s64, 4096")
        for i in range(6): A.e(f"buffer_load_dwordx4 {vr(PKT+4*i,4)}, v{L16}, {WSRD}, s{64+(i>>2)} offen offset:{(i&3)*1024} sc1")
    def fres():
        if kind == "wo": A.e(f"s_and_b32 s64, s66, 0xffff8000\nbuffer_load_dwordx4 {vr(RES,4)}, v{VO}, s[24:27], s64 offen")
        else: A.e(f"s_add_u32 s64, s66, {X1}\nbuffer_load_dwordx4 {vr(RES,4)}, v{L16}, {WSRD}, s64 offen\ns_add_u32 s64, s66, {Y1}\nbuffer_load_dwordx4 {vr(RES+4,4)}, v{L16}, {WSRD}, s64 offen")
    def f2():
        ck = A.newlabel("ck"); rt = A.newlabel("rt"); go = A.newlabel("go")
        A.label(ck)
        for i in range(0, 8, 2): A.e(f"v_pk_add_f32 {vr(PKT+i,2)}, {vr(PKT+i,2)}, {vr(PKT+8+i,2)}\nv_pk_add_f32 {vr(PKT+16+i,2)}, {vr(PKT+16+i,2)}, {vr(FIN+i,2)}")
        for i in range(0, 8, 2): A.e(f"v_pk_add_f32 {vr(PKT+i,2)}, {vr(PKT+i,2)}, {vr(PKT+16+i,2)}")
        A.e(f"v_pk_add_f32 {vr(TM,2)}, {vr(PKT,2)}, {vr(PKT+2,2)}\nv_pk_add_f32 {vr(TM+2,2)}, {vr(PKT+4,2)}, {vr(PKT+6,2)}\nv_pk_add_f32 {vr(TM,2)}, {vr(TM,2)}, {vr(TM+2,2)}")
        A.e(f"v_cmp_u_f32 vcc, v{TM}, v{TM+1}\ns_cbranch_vccnz {rt}")
        A.label(go)
        def d():
            A.label(rt)
            A.e(f"s_sub_u32 s90, s90, 1\ns_cmp_gt_i32 s90, 0\ns_cbranch_scc0 {go}"); f1(); A.e(f"s_waitcnt vmcnt(0)\ns_branch {ck}")
        tail.append(d)
        unpack(A, RES, TM, 4)
        if kind == "w4":
            unpack(A, RES + 4, TM + 8, 4)
            for i in range(0, 8, 2): A.e(f"v_pk_add_f32 {vr(PKT+i,2)}, {vr(PKT+i,2)}, {vr(TM+8+i,2)}")
        for i in range(8): A.e(f"v_fma_f32 v{TM+i}, v{PKT+i}, v{CS+i}, v{TM+i}")
        for i in range(4): A.e(f"v_cvt_pk_bf16_f32 v{TM+8+i}, v{TM+2*i}, v{TM+2*i+1}")
        if kind == "wo": A.e(f"s_add_u32 s64, s66, {X1}\nbuffer_store_dwordx4 {vr(TM+8,4)}, v{L16}, {WSRD}, s64 offen sc1")
        else: A.e(f"s_and_b32 s64, s66, 0xffff8000\nbuffer_store_dwordx4 {vr(TM+8,4)}, v{VO}, s[24:27], s64 offen")
        A.e("s_add_u32 s64, s74, s75\ns_add_u32 s65, s64, 4096")
        def rs(fl):
            for i in range(6): A.e(f"buffer_store_dwordx4 {vr(M1,4)}, v{L16}, {WSRD}, s{64+(i>>2)} offen offset:{(i&3)*1024} {fl}")
        both(rs)
        A.e(f"s_add_u32 s66, s66, {ost}\ns_add_u32 s75, s75, 6144\ns_cmp_eq_u32 s75, {4*6144}\ns_cselect_b32 s75, 0, s75\ns_add_u32 s76, s76, 1\ns_mov_b32 s77, 0")
    tail = []
    def loop(fin):
        send = xch and not fin
        NS = 0 if fin else (2 if send else 1)
        flg = (not send) and kind != "w4"
        fl = lambda: flag_store(A, VT, "s76" if fin else "s60", 69) if flg else None
        def dummies():
            for _ in range(NS): A.e(f"buffer_load_dword v{VT}, off, {WSRD}, s69")
        top = A.newlabel("top"); vN = A.newlabel("vN"); join = A.newlabel("join"); slowp = A.newlabel("slowp"); lag = A.newlabel("lag")
        need(0); poll_loop(A, pollld, VF, 71)
        A.label(lag)
        for x in loads(): A.e(x)
        dummies()
        A.e("s_mov_b32 s72, 1\ns_mov_b32 s54, 0")
        A.label(top)
        need(1)
        if F.P2: need(2, 53)
        A.e(pollld)
        ex = 1
        if fin: f1(); fres(); ex += 6 + (1 if kind == "wo" else 2)
        elif res: A.e(f"s_add_u32 s64, s66, {H2}\nbuffer_load_dwordx4 {vr(RES,4)}, v{L16}, {WSRD}, s64 offen"); ex += 1
        for x in range(4): A.e(f"v_add_u32 v{VRD+x}, s55, v{VRB+x}")
        A.e("s_add_u32 s55, s55, 32768\ns_and_b32 s55, s55, 0x1ffff")
        tst(A, 0)
        def head(w):
            Z = Sched(A)
            for i in range(KS):
                if w: A.e(f"s_waitcnt vmcnt({KS-1-i+NS+ex})")
                Z.lds(rd(i), i)
                if i == KS - 1: A.e("s_barrier")
                if i >= 2:
                    Z.need(i - 2)
                    for x in mm(i - 2): A.e(x)
            return Z
        if F.P2:
            tA = A.newlabel("tA"); tC = A.newlabel("tC"); cont = A.newlabel("cont")
            A.e(f"s_cmp_lg_u32 s72, 2\ns_cbranch_scc1 {tC}"); A.label(tA)
            Z = head(False); A.label(cont)
            def dH():
                tB = A.newlabel("tB")
                A.label(tC); A.e(f"s_cmp_eq_u32 s72, 1\ns_cbranch_scc1 {tB}\ns_waitcnt vmcnt({KS+NS+ex})\ns_branch {tA}")
                A.label(tB); head(True); A.e(f"s_branch {cont}")
            tail.append(dH)
        else: Z = head(True)
        tst(A, 1)
        nr = [KS]
        def run(Z, lo, hi, fill={}):
            for n in range(lo, hi):
                while nr[0] < min(NF, n + D + 1) and nr[0] < n + 3: Z.lds(rd(nr[0]), nr[0]); nr[0] += 1
                Z.need(n)
                for k, x in enumerate(mm(n)):
                    A.e(x)
                    if k == 0:
                        for _ in range(2):
                            if nr[0] < min(NF, n + D + 1): Z.lds(rd(nr[0]), nr[0]); nr[0] += 1
                    for y in fill.get((n, k), []):
                        if y.startswith("ds_"): Z.lds(y, y)
                        elif y.startswith("need "): Z.need(y[5:])
                        else: A.e(y)
        fill = {}
        MID = F.GM * NF // 32
        if stats:
            sw = f"ds_write_b64 v{VSW}, {vr(S1,2)}"
            fill[(KS + 3, 0)] = [f"v_cndmask_b32 v{S1+1}, v{S2}, v{S2+1}, s[74:75]"]; fill[(KS + 3, 1)] = [f"v_cndmask_b32 v{S1+1}, v{S1+1}, v{S2+2}, s[76:77]"]
            fill[(KS + 4, 0)] = [f"v_cndmask_b32 v{S1+1}, v{S1+1}, v{S2+3}, s[78:79]"]; fill[(KS + 4, 1)] = [sw]
            srd_ = [f"ds_read_b64 {vr(SP+2*w,2)}, v{VSR} offset:{w*512}" for w in range(4)]
            fill[(KS + 8, 1)] = ["need " + sw, "s_barrier"] + srd_[:2]; fill[(KS + 9, 0)] = srd_[2:]
            i0 = len(A.lines); stats_fin(A, SP, TM + 21, TM + 22, 1); sf = [x.strip() for x in A.lines[i0:]]; del A.lines[i0:]
            sf = ["need " + srd_[3]] + sf
            for k, x in enumerate(sf): fill.setdefault((KS + 13 + k // 2, k & 1), []).append(x)
            assert KS + 13 + len(sf) // 2 < NF
        run(Z, KS - 2, MID, fill)
        tst(A, 2)
        A.e("s_waitcnt vmcnt(0)")
        tst(A, 3)
        if fin:
            np_ = A.newlabel("np"); A.e(f"s_cmp_eq_u32 s77, 0\ns_cbranch_scc1 {np_}"); f2(); A.label(np_)
        else: fl()
        if F.P2:
            vD = A.newlabel("vD"); bk = A.newlabel("bk")
            A.e(f"s_cmp_eq_u32 s54, 0\ns_cselect_b32 s64, s71, s53\nv_cmp_gt_u32 vcc, s64, v{VF}\ns_cbranch_vccnz {vN}\ns_mov_b32 s72, 2\ns_cbranch_scc1 {vD}"); A.label(bk)
            def dD():
                A.label(vD); A.e(f"s_mov_b32 s72, 1\nv_cmp_gt_u32 vcc, s53, v{VF}\ns_cbranch_vccnz {bk}")
                for x in loads(): A.e(x)
                A.e(f"s_mov_b32 s72, 3\ns_mov_b32 s54, 1\ns_branch {bk}")
            tail.append(dD)
        else: A.e(f"v_cmp_gt_u32 vcc, s71, v{VF}\ns_cbranch_vccnz {vN}\ns_mov_b32 s72, 1")
        n0 = nr[0]; Z2 = Z.copy()
        fR = {k: list(v) for k, v in fill.items()}
        sl_ = 0
        for k, x in enumerate(loads()):
            fR.setdefault((MID + sl_ // 2, sl_ & 1), []).append(x); sl_ += F.GS if x.startswith("buffer") else 1
        assert MID + sl_ // 2 <= NF
        run(Z, MID, NF, fR)
        A.label(join)
        def dN():
            A.label(vN); A.e(pollld); nr[0] = n0
            run(Z2, MID, NF, fill)
            if F.P2:
                A.e("s_lshl_b32 s72, s54, 1\ns_mov_b32 s54, 0")
                if fin and flg: A.e("s_waitcnt vmcnt(7)")
            else: A.e("s_mov_b32 s72, 0")
            A.e(f"s_branch {join}")
        tail.append(dN)
        tst(A, 4)
        a = ACC
        if fin:
            for i in range(8): A.e(f"v_mov_b32 v{FIN+i}, v{a+i}")
            A.e("s_mov_b32 s77, 1")
        elif send:
            A.e("s_add_u32 s64, s74, s75")
            both(lambda f_: [A.e(f"buffer_store_dwordx4 {vr(a+4*t,4)}, v{L16}, {WSRD}, s64 offen offset:{t*1024} {f_}") for t in range(2)])
            A.e(f"s_add_u32 s75, s75, 6144\ns_cmp_eq_u32 s75, {4*6144}\ns_cselect_b32 s75, 0, s75")
        else:
            if stats:
                for i in range(8): A.e(f"v_fma_f32 v{a+i}, v{CS+i}, v{TM+21}, v{a+i}")
                for i in range(8): A.e(f"v_mul_f32 v{a+i}, v{a+i}, v{TM+22}")
                for op in ("v_mul_f32 v{t}, v{v}, v{v}", "v_fma_f32 v{t}, v{t}, s81, v%d" % (TM + 23), "v_mul_f32 v{t}, v{t}, v{v}", "v_exp_f32 v{t}, v{t}", "v_add_f32 v{t}, 1.0, v{t}", "v_rcp_f32 v{t}, v{t}", "v_mul_f32 v{v}, v{t}, v{v}"):
                    for i in range(8): A.e(op.format(t=TM + i, v=a + i))
            else:
                unpack(A, RES, TM, 4)
                for i in range(8): A.e(f"v_add_f32 v{a+i}, v{a+i}, v{TM+i}")
            for i in range(4): A.e(f"v_cvt_pk_bf16_f32 v{TM+8+i}, v{a+2*i}, v{a+2*i+1}")
            A.e(f"s_add_u32 s64, s66, {outb}\nbuffer_store_dwordx4 {vr(TM+8,4)}, v{L16}, {WSRD}, s64 offen sc1\ns_add_u32 s66, s66, {ost}")
        if F.PROF:
            tst(A, 5); tacc(A, 6)
            if not fin: stamp2(A, ST)
        A.e(f"s_add_u32 s60, s60, 1\ns_cmp_eq_u32 s72, 0\ns_cbranch_scc1 {slowp}")
        if fin and flg: A.e(f"s_waitcnt vmcnt({6+KS})"); fl()
        A.e(f"s_branch {top}")
        A.label(slowp)
        A.e(f"s_waitcnt vmcnt({NS})")
        if fin: fl()
        A.e(f"v_cmp_gt_u32 vcc, s71, v{VF}\ns_cbranch_vccz {lag}")
        if fin:
            fres(); f1(); A.e("s_waitcnt vmcnt(0)"); f2()
            if flg: A.e("s_waitcnt vmcnt(6)")
        elif flg: A.e("s_waitcnt vmcnt(0)")
        fl()
        A.e(f"s_cmp_ge_u32 s60, {NU}\ns_cbranch_scc1 {done}")
        poll_loop(A, pollld, VF, 71)
        A.e(f"s_branch {lag}")
    def pc(k):
        if F.PROF >= 2: A.e(f"s_add_u32 s{98 + k//4}, s{98 + k//4}, {1 << (8 * (k & 3))}")
    def grab(f):
        i0 = len(A.lines); f(); o = [x.strip() for x in A.lines[i0:]]; del A.lines[i0:]; return o
    def f2chk():
        ck = A.newlabel("ck"); rt = A.newlabel("rt"); go = A.newlabel("go")
        A.label(ck)
        for i in range(0, 8, 2): A.e(f"v_pk_add_f32 {vr(PKT+i,2)}, {vr(PKT+i,2)}, {vr(PKT+8+i,2)}\nv_pk_add_f32 {vr(PKT+16+i,2)}, {vr(PKT+16+i,2)}, {vr(FIN+i,2)}")
        for i in range(0, 8, 2): A.e(f"v_pk_add_f32 {vr(PKT+i,2)}, {vr(PKT+i,2)}, {vr(PKT+16+i,2)}")
        A.e(f"v_pk_add_f32 {vr(TM,2)}, {vr(PKT,2)}, {vr(PKT+2,2)}\nv_pk_add_f32 {vr(TM+2,2)}, {vr(PKT+4,2)}, {vr(PKT+6,2)}\nv_pk_add_f32 {vr(TM,2)}, {vr(TM,2)}, {vr(TM+2,2)}")
        A.e(f"v_cmp_u_f32 vcc, v{TM}, v{TM+1}\ns_cbranch_vccnz {rt}")
        A.label(go)
        def d():
            A.label(rt); pc(6)
            A.e(f"s_sub_u32 s90, s90, 1\ns_cmp_gt_i32 s90, 0\ns_cbranch_scc0 {go}"); f1(); A.e(f"s_waitcnt vmcnt(0)\ns_branch {ck}")
        tail.append(d)
    VX, VOX = 21, 22
    def f2rest():
        o = ["s_cmp_eq_u32 s77, 0\ns_cselect_b32 s57, 2.0, 0", f"v_or_b32 v{VX}, s57, v{L16}"] + ([f"v_or_b32 v{VOX}, s57, v{VO}"] if kind == "w4" else [])
        o += grab(lambda: unpack(A, RES, TM, 4))
        if kind == "w4":
            o += grab(lambda: unpack(A, RES + 4, TM + 8, 4))
            o += [f"v_pk_add_f32 {vr(PKT+i,2)}, {vr(PKT+i,2)}, {vr(TM+8+i,2)}" for i in range(0, 8, 2)]
        o += [f"v_fma_f32 v{TM+i}, v{PKT+i}, v{CS+i}, v{TM+i}" for i in range(8)]
        o += [f"v_cvt_pk_bf16_f32 v{TM+8+i}, v{TM+2*i}, v{TM+2*i+1}" for i in range(4)]
        if kind == "wo": o += [f"s_add_u32 s64, s66, {X1}\nbuffer_store_dwordx4 {vr(TM+8,4)}, v{VX}, {WSRD}, s64 offen sc1"]
        else: o += [f"s_and_b32 s64, s66, 0xffff8000\nbuffer_store_dwordx4 {vr(TM+8,4)}, v{VOX}, s[24:27], s64 offen"]
        for h in range(3):
            def rs(fl, h=h):
                for i in (2 * h, 2 * h + 1): A.e(f"buffer_store_dwordx4 {vr(M1,4)}, v{VX}, {WSRD}, s{64+(i>>2)} offen offset:{(i&3)*1024} {fl}")
            o.append("\n".join(["s_add_u32 s64, s74, s75", "s_add_u32 s65, s64, 4096"] + grab(lambda: both(rs))))
        o += [f"s_mul_i32 s64, s77, {ost}\ns_add_u32 s66, s66, s64\ns_mul_i32 s64, s77, 6144\ns_add_u32 s75, s75, s64", f"s_cmp_eq_u32 s75, {4*6144}\ns_cselect_b32 s75, 0, s75\ns_add_u32 s76, s76, s77"]
        r = grab(fres)
        return o + ["\n".join(r[i:i + 2]) for i in range(0, len(r), 2)]
    def cost(x):
        if x.startswith(("v_exp", "v_rcp")): return F.TC
        if "buffer_" in x: return 8
        return 4 if x.startswith("v_") else 2
    def spread(fill, items, lo, budget, hi):
        while True:
            f = {k: list(v) for k, v in fill.items()}; n, k, c = lo, 0, 0
            for x in items:
                if c and c + cost(x) > budget:
                    k += 1; c = 0
                    if k == len(mm(n)): n += 1; k = 0
                f.setdefault((n, k), []).append(x); c += cost(x)
            if n < hi: return f
            budget += 2
    def loop2(fin):
        send = xch and not fin
        NR = 1 if kind == 'wo' else 2
        NS = 7 + NR if fin else (2 if send else 1)
        flg = (not send) and kind != "w4"
        wv = stats and F.WV
        fl = lambda: flag_store(A, VT, "s76" if fin else "s60", 69) if flg else None
        Q1 = KS + F.G1; Q2 = NF - (F.G2 if KS == 8 else F.G2 - F.G2 // 8)
        top = A.newlabel("top"); vN = A.newlabel("vN"); join = A.newlabel("join"); slowp = A.newlabel("slowp"); lag = A.newlabel("lag")
        topW = A.newlabel("topW"); cont = A.newlabel("cont"); epiI = A.newlabel("epiI")
        ex = 2 if res else 1
        nr = [0]
        def emit(Z, y):
            if y.startswith("ds_"): Z.lds(y, y)
            elif y.startswith("need "): Z.need(y[5:])
            else: A.e(y)
        def run(Z, lo, hi, fill={}):
            for n in range(lo, hi):
                while nr[0] < min(NF, n + D + 1) and nr[0] < n + 3: Z.lds(rd(nr[0]), nr[0]); nr[0] += 1
                Z.need(n)
                for k, x in enumerate(mm(n)):
                    A.e(x)
                    if k == 0:
                        for _ in range(2):
                            if nr[0] < min(NF, n + D + 1): Z.lds(rd(nr[0]), nr[0]); nr[0] += 1
                    for y in fill.get((n, k), []): emit(Z, y)
        def pre():
            need(1); need(2, 53)
            A.e(pollld)
            if res: A.e(f"s_add_u32 s64, s66, {H2}\nbuffer_load_dwordx4 {vr(RES,4)}, v{L16}, {WSRD}, s64 offen")
            for x in range(4): A.e(f"v_add_u32 v{VRD+x}, s55, v{VRB+x}")
            A.e("s_add_u32 s55, s55, 32768\ns_and_b32 s55, s55, 0x1ffff")
            tst(A, 0)
        def head(w, fill={}, early=[]):
            Z = Sched(A)
            for i in range(KS):
                if w: A.e(f"s_waitcnt vmcnt({KS-1-i+NS+ex})")
                Z.lds(rd(i), i)
                if i == KS - 1: A.e("s_barrier")
                if i == 2:
                    for x in early: A.e(x)
                if i >= 2:
                    Z.need(i - 2)
                    for k, x in enumerate(mm(i - 2)):
                        A.e(x)
                        for y in fill.get((i - 2, k), []): emit(Z, y)
            nr[0] = KS
            return Z
        fill = {}
        if stats:
            sw = f"ds_write_b64 v{VSW}, {vr(S1,2)}"
            fill[(KS + 3, 0)] = [f"v_cndmask_b32 v{S1+1}, v{S2}, v{S2+1}, s[74:75]"]; fill[(KS + 3, 1)] = [f"v_cndmask_b32 v{S1+1}, v{S1+1}, v{S2+2}, s[76:77]"]
            fill[(KS + 4, 0)] = [f"v_cndmask_b32 v{S1+1}, v{S1+1}, v{S2+3}, s[78:79]"]; fill[(KS + 4, 1)] = [sw]
            srd_ = [f"ds_read_b64 {vr(SP+2*w,2)}, v{VSR} offset:{w*512}" for w in range(4)]
            fill[(KS + 8, 1)] = ["need " + sw, "s_barrier"] + srd_[:2]; fill[(KS + 9, 0)] = srd_[2:]
            sf = ["need " + srd_[3]] + grab(lambda: stats_fin(A, SP, TM + 21, TM + 22, 1))
            for k, x in enumerate(sf): fill.setdefault((KS + 13 + k // 2, k & 1), []).append(x)
            assert KS + 13 + len(sf) // 2 < NF
        cpy = [f"v_fma_f32 v{FIN+i}, v{CS+i}, v{TM+21}, v{ACC+i}" for i in range(8)]
        def gelu(a):
            o = [f"v_mul_f32 v{a+i}, v{a+i}, v{TM+22}" for i in range(8)]
            for op in ("v_mul_f32 v{t}, v{v}, v{v}", "v_fma_f32 v{t}, v{t}, s81, v%d" % (TM + 23), "v_mul_f32 v{t}, v{t}, v{v}"): o += [op.format(t=TM + i, v=a + i) for i in range(8)]
            e = [f"v_exp_f32 v{TM+i}, v{TM+i}" for i in range(8)]; p = [f"v_add_f32 v{TM+i}, 1.0, v{TM+i}" for i in range(8)]
            r = [f"v_rcp_f32 v{TM+i}, v{TM+i}" for i in range(8)]; m = [f"v_mul_f32 v{a+i}, v{TM+i}, v{a+i}" for i in range(8)]
            o += e[:2] + [x for i in range(2, 8) for x in (e[i], p[i - 2])] + p[6:] + r[:2] + [x for i in range(2, 8) for x in (r[i], m[i - 2])] + m[6:]
            return o
        def outst(a): return [f"v_cvt_pk_bf16_f32 v{TM+8+i}, v{a+2*i}, v{a+2*i+1}" for i in range(4)] + [f"s_add_u32 s64, s66, {outb}\nbuffer_store_dwordx4 {vr(TM+8,4)}, v{L16}, {WSRD}, s64 offen sc1\ns_add_u32 s66, s66, {ost}"]
        if fin: fres()
        need(0); poll_loop(A, pollld, VF, 71)
        A.label(lag); pc(0)
        for x in loads(): A.e(x)
        for _ in range(NS): A.e(f"buffer_load_dword v{VT}, off, {WSRD}, s69")
        A.e("s_mov_b32 s72, 1\ns_mov_b32 s54, 0")
        def first_i(main):
            tA = A.newlabel("tA"); tC = A.newlabel("tC"); c2 = A.newlabel("c2"); tB = A.newlabel("tB")
            A.label(top); pre()
            A.e(f"s_cmp_lg_u32 s72, 2\ns_cbranch_scc1 {tC}"); A.label(tA)
            Z = head(False); A.label(c2)
            def dH():
                n0 = nr[0]
                A.label(tC); A.e(f"s_cmp_eq_u32 s72, 1\ns_cbranch_scc1 {tB}\ns_waitcnt vmcnt({KS+NS+ex})\ns_branch {tA}")
                A.label(tB); pc(4); head(True)
                if flg and F.FH: A.e(f"s_waitcnt vmcnt({ex + (NS - 1 if fin else 0)})"); fl()
                A.e(f"s_branch {c2}"); nr[0] = n0
            tail.append(dH)
            tst(A, 1)
            run(Z, KS - 2, Q1, fill)
            A.e(f"s_waitcnt vmcnt({ex-1})"); fl()
            if wv: A.e("s_mov_b32 s57, 0")
            return Z
        Z = first_i(True)
        if wv:
            A.e(f"s_branch {cont}")
            A.label(topW); pc(3); pre()
            G = gelu(FIN) + outst(FIN)
            fW = spread(fill, G[F.WE:], 0, F.WB, Q1)
            Z = head(False, fW, cpy + G[:F.WE]); tst(A, 1); run(Z, KS - 2, Q1, fW)
            A.e("s_waitcnt vmcnt(1)\ns_mov_b32 s57, 1" if not F.XW & 1 else "s_mov_b32 s57, 1")
        A.label(cont)
        tst(A, 2)
        if fin: f1()
        vD = A.newlabel("vD"); bk = A.newlabel("bk")
        A.e(f"s_cmp_eq_u32 s54, 0\ns_cselect_b32 s64, s71, s53\nv_cmp_gt_u32 vcc, s64, v{VF}\ns_cbranch_vccnz {vN}\ns_mov_b32 s72, 2\ns_cbranch_scc1 {vD}"); A.label(bk)
        def dD():
            A.label(vD); A.e(f"s_mov_b32 s72, 1\nv_cmp_gt_u32 vcc, s53, v{VF}\ns_cbranch_vccnz {bk}")
            pc(1)
            for x in loads(): A.e(x)
            A.e(f"s_mov_b32 s72, 3\ns_mov_b32 s54, 1\ns_branch {bk}")
        tail.append(dD)
        n0 = nr[0]; Z2 = Z.copy()
        def burst(lab, back, post=""):
            def d():
                A.label(lab); pc(7)
                for x in loads(): A.e(x)
                A.e(post); A.e(f"s_branch {back}")
            tail.append(d)
        def second(Z, R):
            f = {k: list(v) for k, v in fill.items()}
            if R:
                L_ = loads(); ns = 2 * (Q2 - Q1); i = 0
                for x in L_:
                    sl_ = min(ns - 1, i * ns // KS); f.setdefault((Q1 + sl_ // 2, sl_ & 1), []).append(x)
                    if x.startswith("buffer"): i += 1
            else: A.e(pollld)
            run(Z, Q1, Q2, f)
            tst(A, 3)
            if R and (fin or wv) and not (wv and F.XW & 2):
                w2_ = A.newlabel("w2"); w3_ = A.newlabel("w3")
                A.e(f"s_cmp_eq_u32 s72, 3\ns_cbranch_scc1 {w2_}\ns_waitcnt vmcnt({KS})"); A.label(w3_)
                def d(): A.label(w2_); A.e(f"s_waitcnt vmcnt({2*KS})\ns_branch {w3_}")
                tail.append(d)
            if not R: A.e("s_waitcnt vmcnt(0)")
            if wv:
                sk = A.newlabel("sk"); A.e(f"s_cmp_eq_u32 s57, 0\ns_cbranch_scc1 {sk}"); fl(); A.label(sk)
            if not R:
                b1 = A.newlabel("bu"); b2 = A.newlabel("bb")
                A.e(f"s_cmp_eq_u32 s54, 0\ns_cselect_b32 s64, s71, s53\nv_cmp_gt_u32 vcc, s64, v{VF}\ns_cbranch_vccz {b1}\ns_lshl_b32 s72, s54, 1\ns_mov_b32 s54, 0")
                A.e(pollld); A.label(b2)
                burst(b1, b2, "s_add_u32 s72, s54, 1")
            f = fill
            if fin:
                sk = A.newlabel("sk"); A.e(f"s_cmp_eq_u32 s77, 0\ns_cbranch_scc1 {sk}"); f2chk(); A.label(sk)
                f = spread(fill, f2rest(), Q2, F.FB, NF)
            run(Z, Q2, NF, f)
            if res and R: A.e(f"s_waitcnt vmcnt({KS})")
            if wv and R and F.XW: A.e(f"s_waitcnt vmcnt({KS+3})")
        second(Z, True)
        A.label(join)
        def dN():
            A.label(vN); pc(2); nr[0] = n0
            second(Z2, False)
            if not fin:
                b1 = A.newlabel("bu")
                A.e(f"s_cmp_lg_u32 s72, 0\ns_cbranch_scc1 {join}\ns_waitcnt vmcnt(0)\nv_cmp_gt_u32 vcc, s71, v{VF}\ns_cbranch_vccz {b1}")
                A.e(pollld)
                burst(b1, join, "s_mov_b32 s72, 1")
            A.e(f"s_branch {join}")
        tail.append(dN)
        tst(A, 4)
        a = ACC
        def prof():
            if F.PROF:
                tst(A, 5); tacc(A, 6)
                if not fin: stamp2(A, ST)
        if fin:
            if F.PROF:
                sk = A.newlabel("sk"); A.e(f"s_cmp_eq_u32 s77, 0\ns_cbranch_scc1 {sk}"); stamp2(A, ST, "s76", 1); A.label(sk); A.e("s_nop 4")
            for i in range(8): A.e(f"v_mov_b32 v{FIN+i}, v{a+i}")
            A.e("s_mov_b32 s77, 1")
        elif send:
            A.e("s_add_u32 s64, s74, s75")
            both(lambda f_: [A.e(f"buffer_store_dwordx4 {vr(a+4*t,4)}, v{L16}, {WSRD}, s64 offen offset:{t*1024} {f_}") for t in range(2)])
            A.e(f"s_add_u32 s75, s75, 6144\ns_cmp_eq_u32 s75, {4*6144}\ns_cselect_b32 s75, 0, s75")
        elif stats:
            if wv:
                A.e(f"s_cmp_lg_u32 s72, 2\ns_cbranch_scc1 {epiI}"); prof(); A.e(f"s_add_u32 s60, s60, 1\ns_branch {topW}"); A.label(epiI); A.e("s_nop 3")
            for x in cpy + gelu(FIN) + outst(FIN): A.e(x)
        else:
            unpack(A, RES, TM, 4)
            for i in range(8): A.e(f"v_add_f32 v{a+i}, v{a+i}, v{TM+i}")
            for x in outst(a): A.e(x)
        prof()
        A.e(f"s_add_u32 s60, s60, 1\ns_cmp_lg_u32 s72, 0\ns_cbranch_scc1 {top}")
        if fin:
            l2 = A.newlabel("l2")
            f1(); A.e("s_waitcnt vmcnt(6)"); fl()
            A.e(f"v_cmp_gt_u32 vcc, s71, v{VF}\ns_cbranch_vccnz {l2}")
            pc(0)
            for x in loads(): A.e(x)
            A.e(f"s_waitcnt vmcnt({KS + flg})")
            def fin_now():
                f2chk()
                for x in f2rest(): A.e(x)
                if F.PROF: stamp2(A, ST, "s76", 1)
                A.e("s_mov_b32 s77, 0")
            fin_now()
            A.e(f"s_mov_b32 s72, 1\ns_branch {top}")
            A.label(l2)
            A.e(f"s_waitcnt vmcnt({0 + flg})"); fin_now()
            if flg: A.e(f"s_waitcnt vmcnt({NS-1})")
        else:
            A.e(f"s_waitcnt vmcnt({NS})\nv_cmp_gt_u32 vcc, s71, v{VF}\ns_cbranch_vccz {lag}")
            if flg: A.e("s_waitcnt vmcnt(0)")
        fl()
        A.e(f"s_cmp_ge_u32 s60, {NU}\ns_cbranch_scc1 {done}")
        pc(5); poll_loop(A, pollld, VF, 71)
        A.e(f"s_branch {lag}")
    if F.PROF:
        for r in ST: A.e(f"v_mov_b32 v{r}, 0")
        A.e(f"s_memrealtime s[84:85]\ns_waitcnt lgkmcnt(0)\nv_writelane_b32 v{ST[2]}, s84, 0\nv_writelane_b32 v{ST[2]}, s86, 1")
        if xch:
            _f2 = f2
            def f2():
                _f2(); stamp2(A, ST, "s76", 1)
    tinit(A)
    lp_ = loop2 if F.NL else loop
    if xch:
        lf = A.newlabel("lfin")
        A.e(f"s_cmp_eq_u32 s50, s52\ns_cbranch_scc1 {lf}")
        lp_(False); A.label(lf); lp_(True)
    else: lp_(False)
    while tail: tail.pop(0)()
    A.label(done)
    tout(A, ST[2]); stamp_out(A, ST)
    A.e("s_endpgm")

class VMQ:
    def __init__(self, A, hist): self.A = A; self.q = list(hist); self.done = -1
    def op(self, ins, tag): self.A.e(ins); self.q.append(tag)
    def need(self, tag):
        i = len(self.q) - 1 - self.q[::-1].index(tag)
        if i > self.done:
            n = len(self.q) - 1 - i; assert n < 64
            self.A.e(f"s_waitcnt vmcnt({n})"); self.done = i
def gemm3_role(A, L, kind):
    KS = 7 if kind == "w4" else 8
    stats = kind in ("w1", "w3"); xch = kind in ("wo", "w4"); res = kind == "w2"
    L16, VFA, VA, VW, VR_, ONE, VF, VT, VO, VSW, VSR, VX, VOX = 0, 2, 3, 4, 7, 12, 16, 17, 18, 19, 20, 21, 22
    ACC, AF, RD, FIN, PKT, CS, RES, TM, M1, S1, S2, SP = 32, 64, 96, 120, 128, 152, 160, 168, 204, 208, 212, 216; ST = (200, 201, 202)
    NF = 4 * KS; H = KS - F.H3; OWN = ACC + 24
    wreg = lambda n, t, k=4, o=0: ar((n * 2 + t) * 4 + o, k)
    done = A.newlabel("done"); tail = []
    lanes(A)
    arg, ld, nbytes = dict(wo=("Wo", 2048, 8 * MB), w1=("w1", 2048, 2 * MB), w2=("w2", 2048, 2 * MB), w3=("w3", 7168, 7 * MB), w4=("w4", 2048, 7 * MB))[kind]
    ldptr(A, 4, arg)
    if xch: ldptr(A, 6, "x" if kind == "wo" else "out"); A.e("s_lshr_b32 s52, s59, 3\ns_and_b32 s53, s59, 7")
    else: A.e("s_mov_b32 s52, 0\ns_mov_b32 s53, s59")
    A.e(f"s_lshl_b32 s64, s52, 2\ns_add_u32 s64, s64, s50\ns_mul_i32 s54, s64, {KS*32*ld}\ns_lshl_b32 s64, s53, 8\ns_add_u32 s54, s54, s64\ns_waitcnt lgkmcnt(0)")
    A.srd(28, 4, nbytes)
    if xch: A.srd(24, 6, S * D_ * 2)
    def rdw(x):
        def f(buf):
            for kk in range(KS):
                for t in range(2):
                    for h in range(2): A.e(f"ds_read_b64_tr_b16 {wreg(x*KS+kk,t,2,2*h)}, v17 offset:{buf + (32*kk + 4*h)*64 + 8*t}")
                if kk % 3 == 2: A.e("s_waitcnt lgkmcnt(0)")
        return f
    if kind == "w4" and F.W4G: cpoll(A, L, {C_M2: 63}, sl=F.VSL2)
    stage_weights(A, [(28, f"s_xor_b32 s62, s50, {XO[x]}\ns_lshl_b32 s62, s62, 6\ns_add_u32 s62, s62, s54", KS * 32, rdw(x)) for x in range(4)], ld, None, F.NFL2)
    verify(A, L, False, "mod")
    inb, ust = dict(wo=(OB, 131072), w1=(H2, 32768), w2=(G1, 32768), w3=(Y1, 32768), w4=(G3, 112 * 1024))[kind]
    A.e(f"""
    s_barrier
    v_lshlrev_b32 v{L16}, 4, v1
    s_mov_b32 s60, 0
    v_mov_b32 v{VA}, v{L16}
    s_mov_b32 s73, 0xffff0000
    s_lshl_b32 s64, s52, 2
    s_add_u32 s64, s64, s50
    s_mul_i32 s61, s64, {KS*1024}
    s_add_u32 s61, s61, {inb}
    s_lshl_b32 s68, s64, 8
    s_add_u32 s68, s68, {dict(wo=F_ATT, w1=F_LN, w2=F_W1, w3=F_W2, w4=F_W3)[kind]}
    s_lshl_b32 s83, s53, 2
    s_add_u32 s83, s83, s50            ; output fragment index
    s_mul_i32 s64, s50, 6144
    v_add_u32 v{VR_}, s64, v{L16}
    s_mov_b32 s63, 0""")
    for p in range(3): A.e(f"s_xor_b32 s64, s50, {XO[p]}\ns_mul_i32 s64, s64, 6144\ns_add_u32 s64, s64, {p*2048}\nv_add_u32 v{VW+p}, s64, v{L16}")
    nfl = dict(wo=4, w1=4, w2=8, w3=8, w4=7)[kind]
    A.e(f"v_min_u32 v{VFA}, {nfl-1}, v1\nv_lshlrev_b32 v{VFA}, 2, v{VFA}")
    if res:
        A.e(f"""
        s_lshr_b32 s64, s50, 1
        s_add_u32 s64, s64, 1
        s_sub_u32 s65, 0, s64
        s_bitcmp1_b32 s50, 0
        s_cselect_b32 s64, s64, s65
        s_add_u32 s64, s64, 16
        v_add_u32 v26, s64, v21
        v_lshrrev_b32 v27, 4, v26
        v_and_b32 v26, 15, v26
        v_lshl_add_u32 v26, v22, 4, v26
        v_lshlrev_b32 v26, 4, v26
        v_lshl_add_u32 v{VA}, v27, 15, v26
        s_sub_u32 s61, s61, 32768""")
    A.e("s_add_u32 s62, s61, 4096\ns_lshl_b32 s66, s83, 10")
    if kind == "w3":
        A.e(f"s_mul_i32 s65, s83, 147\ns_lshr_b32 s65, s65, 10\ns_mul_i32 s69, s65, {256 - 28}\ns_lshl_b32 s64, s83, 2\ns_add_u32 s69, s69, s64\ns_add_u32 s69, s69, {F_W3}")
    else:
        A.e(f"s_lshr_b32 s65, s83, 3\ns_lshl_b32 s65, s65, 8\ns_and_b32 s64, s83, 7\ns_lshl_b32 s64, s64, 2\ns_add_u32 s69, s64, s65\ns_add_u32 s69, s69, {dict(wo=F_WO, w1=F_W1, w2=F_W2, w4=F_W4)[kind]}")
    if res: A.e(f"s_add_u32 s82, s66, {H2}")
    outb, ost = dict(wo=(X1, 32768), w1=(G1, 32768), w2=(Y1, 32768), w3=(G3, 112 * 1024), w4=(0, 32768))[kind]
    if xch:
        A.e(f"""
        s_lshl_b32 s64, s53, 2
        s_add_u32 s64, s64, s50
        s_mul_i32 s74, s64, {4*6144}
        s_xor_b32 s64, s50, s52
        s_sub_u32 s64, s64, 1
        s_max_i32 s64, s64, 0
        s_lshl_b32 s64, s64, 11
        s_add_u32 s74, s74, s64
        s_add_u32 s74, s74, {XP + (0 if kind == 'wo' else 768*KB)}
        s_mov_b32 s75, 0
        s_mov_b32 s77, 0                   ; pending
        v_lshlrev_b32 v26, 11, v21
        v_lshl_add_u32 v26, v22, 4, v26
        s_lshl_b32 s64, s83, 6
        v_add_u32 v{VO}, s64, v26
        v_lshlrev_b32 v26, 5, v22
        s_lshl_b32 s64, s83, 7
        s_add_u32 s64, s64, {MOD + (2 if kind == 'wo' else 5)*4096}""")
        for g in range(4):
            for i in range(2): A.e(f"buffer_load_dwordx4 {vr((CS if g == 0 else PKT + 8*(g-1)) + 4*i, 4)}, v26, {WSRD}, s64 offen offset:{16*i} sc1")
            A.e(f"s_add_u32 s64, s64, {6144*4}")
        A.e("s_waitcnt vmcnt(0)")
        sum4(A, CS, PKT, 8)
        for i in range(4): A.e(f"v_mov_b32 v{M1+i}, -1")
    def grab(f):
        i0 = len(A.lines); f(); o = [x.strip() for x in A.lines[i0:]]; del A.lines[i0:]; return o
    wr = lambda p, t: f"ds_write_b128 v{VW+p}, {vr(ACC+(2*p+t)*4,4)} offset:{t*1024}"
    rds = [f"ds_read_b128 {vr(RD+4*i,4)}, v{VR_} offset:{i*1024}" for i in range(6)]
    def adds(dst):
        o = []
        for p in range(3):
            for t in range(2):
                o.append("need " + rds[2 * p + t])
                o += [f"v_pk_add_f32 {vr(dst+4*t+i,2)}, {vr((OWN if p == 0 else dst)+4*t+i,2)}, {vr(RD+8*p+4*t+i,2)}" for i in (0, 2)]
        return o
    togw = [f"v_xor_b32 v{r}, 0x8000, v{r}" for r in [VW, VW + 1, VW + 2] + ([VSW] if stats else [])]
    togr = [f"v_xor_b32 v{r}, 0x8000, v{r}" for r in [VR_] + ([VSR] if stats else [])]
    if stats:
        A.e(f"""
        s_lshl_b32 s64, s50, 9
        s_add_u32 s64, s64, 24576
        v_lshlrev_b32 v26, 3, v1
        v_add_u32 v{VSW}, s64, v26
        v_lshl_add_u32 v26, v23, 4, v21
        v_lshlrev_b32 v26, 3, v26
        v_add_u32 v{VSR}, 24576, v26
        s_mov_b32 s74, 0x22222222
        s_mov_b32 s75, 0x22222222
        s_mov_b32 s76, 0x44444444
        s_mov_b32 s77, 0x44444444
        s_mov_b32 s78, 0x88888888
        s_mov_b32 s79, 0x88888888
        s_mov_b32 s80, {f2u(GELU_C0):#x}
        s_mov_b32 s81, {f2u(GELU_C1):#x}
        v_mov_b32 v{TM+23}, s80""")
        for i in range(4): A.e(f"v_mov_b32 v{ONE+i}, 0x3f803f80")
        for ks in range(KS):
            for p in range(4):
                for t in range(2): a = vr(ACC + (2 * p + t) * 4, 4); A.e(f"{MF} {a}, {wreg(p*KS+ks,t)}, {vr(ONE,4)}, {a if ks else 0}")
        for p in range(3):
            for t in range(2): A.e(wr(p, t))
        A.e("s_waitcnt lgkmcnt(0)\ns_barrier")
        for x in rds: A.e(x)
        A.e("s_waitcnt lgkmcnt(0)")
        for x in adds(CS) + togw + togr:
            if not x.startswith("need"): A.e(x)
    ldA = lambda i: f"buffer_load_dwordx4 {vr(AF+4*i,4)}, v{VA}, {WSRD}, s{61+(i>>2)} offen offset:{(i&3)*1024}"
    if F.FREE == 2: ust = 0
    adv = f"s_add_u32 s61, s61, {ust}\ns_add_u32 s62, s62, {ust}"
    pollld = f"buffer_load_dword v{VF}, v{VFA}, {WSRD}, s68 offen sc1"
    dummy = f"buffer_load_dword v{VT+6}, off, {WSRD}, s69"
    if F.FREE == 3: ldA = lambda i: dummy
    if F.FREE == 4: ldA = lambda i: dummy; pollld = dummy; ost = 0
    def need(add, d):
        if F.FREE: return f"s_cmp_ge_u32 s60, {NU-add}\ns_cselect_b32 s{d}, -1, 0"
        o = f"s_add_u32 s{d}, s60, {add+1}"
        if res: o += f"\ns_and_b32 s64, s50, 1\ns_add_u32 s{d}, s{d}, s64\ns_min_u32 s{d}, s{d}, {NU}\ns_cmp_ge_u32 s60, {NU-add}\ns_cselect_b32 s{d}, -1, s{d}"
        return o
    def both(f):
        l1 = A.newlabel("b1"); l2 = A.newlabel("b2")
        A.e(f"s_cmp_eq_u32 s56, 1\ns_cbranch_scc1 {l1}"); f("")
        A.label(l2)
        def d(): A.label(l1); A.e("s_nop 7"); f("sc1"); A.e(f"s_branch {l2}")
        tail.append(d)
    def pc(k):
        if F.PROF >= 2: A.e(f"s_add_u32 s{98 + k//4}, s{98 + k//4}, {1 << (8 * (k & 3))}")
    f1s = ["s_add_u32 s84, s74, s75\ns_add_u32 s85, s84, 4096"] + [f"vm:pk:buffer_load_dwordx4 {vr(PKT+4*i,4)}, v{L16}, {WSRD}, s{84+(i>>2)} offen offset:{(i&3)*1024} sc1" for i in range(6)]
    if kind == "wo": fres = [f"vm:rs:s_and_b32 s64, s66, 0xffff8000\nbuffer_load_dwordx4 {vr(RES,4)}, v{VO}, s[24:27], s64 offen"]
    else: fres = [f"vm:rs:s_add_u32 s64, s66, {b}\nbuffer_load_dwordx4 {vr(RES+4*i,4)}, v{L16}, {WSRD}, s64 offen" for i, b in enumerate((X1, Y1))]
    plain = lambda x: x.split(":", 2)[2] if x.startswith("vm") else x
    def f2chk():
        ck = A.newlabel("ck"); rt = A.newlabel("rt"); go = A.newlabel("go")
        A.e(f"s_cmp_eq_u32 s77, 0\ns_cbranch_scc1 {go}")
        A.label(ck)
        for i in range(0, 8, 2): A.e(f"v_pk_add_f32 {vr(PKT+i,2)}, {vr(PKT+i,2)}, {vr(PKT+8+i,2)}\nv_pk_add_f32 {vr(PKT+16+i,2)}, {vr(PKT+16+i,2)}, {vr(FIN+i,2)}")
        for i in range(0, 8, 2): A.e(f"v_pk_add_f32 {vr(PKT+i,2)}, {vr(PKT+i,2)}, {vr(PKT+16+i,2)}")
        A.e(f"v_pk_add_f32 {vr(TM,2)}, {vr(PKT,2)}, {vr(PKT+2,2)}\nv_pk_add_f32 {vr(TM+2,2)}, {vr(PKT+4,2)}, {vr(PKT+6,2)}\nv_pk_add_f32 {vr(TM,2)}, {vr(TM,2)}, {vr(TM+2,2)}")
        A.e(f"v_cmp_u_f32 vcc, v{TM}, v{TM+1}\ns_cbranch_vccnz {rt}")
        A.label(go)
        def d():
            A.label(rt); pc(6)
            A.e(f"s_sub_u32 s90, s90, 1\ns_cmp_gt_i32 s90, 0\ns_cbranch_scc0 {go}")
            for x in f1s: A.e(plain(x))
            A.e(f"s_waitcnt vmcnt(0)\ns_branch {ck}")
        tail.append(d)
    def f2rest():
        o = ["s_cmp_eq_u32 s77, 0\ns_cselect_b32 s57, 2.0, 0", f"v_or_b32 v{VX}, s57, v{L16}"] + ([f"v_or_b32 v{VOX}, s57, v{VO}"] if kind == "w4" else [])
        o += grab(lambda: unpack(A, RES, TM, 4))
        if kind == "w4":
            o += grab(lambda: unpack(A, RES + 4, TM + 8, 4))
            o += [f"v_pk_add_f32 {vr(PKT+i,2)}, {vr(PKT+i,2)}, {vr(TM+8+i,2)}" for i in range(0, 8, 2)]
        o += [f"v_fma_f32 v{TM+i}, v{PKT+i}, v{CS+i}, v{TM+i}" for i in range(8)]
        o += [f"v_cvt_pk_bf16_f32 v{TM+8+i}, v{TM+2*i}, v{TM+2*i+1}" for i in range(4)]
        if kind == "wo": o += [f"vm:out:s_add_u32 s64, s66, {X1}\nbuffer_store_dwordx4 {vr(TM+8,4)}, v{VX}, {WSRD}, s64 offen sc1"]
        else: o += [f"vm:out:s_and_b32 s64, s66, 0xffff8000\nbuffer_store_dwordx4 {vr(TM+8,4)}, v{VOX}, s[24:27], s64 offen"]
        for h in range(3):
            def rs(fl, h=h):
                for i in (2 * h, 2 * h + 1): A.e(f"buffer_store_dwordx4 {vr(M1,4)}, v{VX}, {WSRD}, s{84+(i>>2)} offen offset:{(i&3)*1024} {fl}")
            o.append("vm2:rz:" + "\n".join(grab(lambda: both(rs))))
        o += [f"s_mul_i32 s64, s77, {ost}\ns_add_u32 s66, s66, s64\ns_mul_i32 s64, s77, 6144\ns_add_u32 s75, s75, s64", f"s_cmp_eq_u32 s75, {4*6144}\ns_cselect_b32 s75, 0, s75\ns_add_u32 s63, s63, s77"]
        if F.PROF:
            sk = A.newlabel("sk"); o.append("\n".join([f"s_cmp_eq_u32 s77, 0\ns_cbranch_scc1 {sk}"] + grab(lambda: stamp2(A, ST, "s63", 1, 92 if F.PROF == 1 else 84)) + [f"{sk}:"]))
        return o + ["s_mov_b32 s77, 0"] + fres
    def cost(x):
        x = plain(x)
        if x.startswith(("v_exp", "v_rcp", "v_rsq")): return F.TC
        if "buffer_" in x: return 8 * x.count("buffer_")
        if x.startswith("ds_write"): return 8
        if x.startswith(("need", "vneed")): return 2
        return 4 if x.startswith(("v_", "ds_")) else 2 * (x.count("\n") + 1)
    M = []; first = {}; last = {}; fin_ = {}
    def mf(p, t, ks):
        a = vr(ACC + (2 * p + t) * 4, 4); first.setdefault(ks, len(M)); last[ks] = len(M); fin_[(p, t)] = len(M)
        M.append(f"{MF} {a}, {wreg(p*KS+ks,t)}, {vr(AF+4*ks,4)}, {a if ks else 0}")
    def ms(ks):
        if not stats: return
        x = vr(AF + 4 * ks, 4); first.setdefault(ks, len(M)); last[ks] = len(M) + 1; fin_["s"] = len(M) + 1
        M.append(f"{MF} {vr(S1,4)}, {vr(ONE,4)}, {x}, {vr(S1,4) if ks else 0}"); M.append(f"{MF} {vr(S2,4)}, {x}, {x}, {vr(S2,4) if ks else 0}")
    for ks in range(F.OD):
        for p in range(3): mf(p, 0, ks); mf(p, 1, ks)
        ms(ks)
    own0 = len(M)
    for ks in range(F.OD): mf(3, 0, ks); mf(3, 1, ks)
    for ks in range(F.OD, H):
        for p in range(4): mf(p, 0, ks); mf(p, 1, ks)
        ms(ks)
    for ks in range(H, KS): ms(ks)
    for p in range(4):
        for ks in range(H, KS): mf(p, 0, ks); mf(p, 1, ks)
    NM = len(M)
    def loop(fin):
        send = xch and not fin
        NS = 0 if fin else (2 if send else 1)
        flg = (not send) and kind != "w4"
        flag = lambda sv: "vm:fl:" + "\n".join(grab(lambda: flag_store(A, VT, sv, 69)))
        sw = f"ds_write_b64 v{VSW}, {vr(S1,2)}"
        srd_ = [f"ds_read_b64 {vr(SP+2*w,2)}, v{VSR} offset:{w*512}" for w in range(4)]
        def post():
            r = rds + (srd_ if stats else []) + togr
            ad = adds(FIN); o = ad[6:]
            if fin: o += ["s_mov_b32 s77, 1"]
            elif send:
                t_ = grab(lambda: both(lambda f_: [A.e(f"buffer_store_dwordx4 {vr(FIN+4*t,4)}, v{L16}, {WSRD}, s64 offen offset:{t*1024} {f_}") for t in range(2)]))
                o += ["vm2:out:" + "\n".join(["s_add_u32 s64, s74, s75"] + t_), f"s_add_u32 s75, s75, 6144\ns_cmp_eq_u32 s75, {4*6144}\ns_cselect_b32 s75, 0, s75"]
            else:
                a = FIN
                if stats:
                    o = ["need " + srd_[3]] + grab(lambda: stats_fin(A, SP, TM + 21, TM + 22, 1)) + o
                    o += [f"v_fma_f32 v{a+i}, v{CS+i}, v{TM+21}, v{a+i}" for i in range(8)] + [f"v_mul_f32 v{a+i}, v{a+i}, v{TM+22}" for i in range(8)]
                    for op in ("v_mul_f32 v{t}, v{v}, v{v}", "v_fma_f32 v{t}, v{t}, s81, v%d" % (TM + 23), "v_mul_f32 v{t}, v{t}, v{v}"): o += [op.format(t=TM + i, v=a + i) for i in range(8)]
                    e = [f"v_exp_f32 v{TM+i}, v{TM+i}" for i in range(8)]; p = [f"v_add_f32 v{TM+i}, 1.0, v{TM+i}" for i in range(8)]
                    rc = [f"v_rcp_f32 v{TM+i}, v{TM+i}" for i in range(8)]; m = [f"v_mul_f32 v{a+i}, v{TM+i}, v{a+i}" for i in range(8)]
                    o += e[:2] + [x for i in range(2, 8) for x in (e[i], p[i - 2])] + p[6:] + rc[:2] + [x for i in range(2, 8) for x in (rc[i], m[i - 2])] + m[6:]
                else:
                    o = ["vneed res"] + grab(lambda: unpack(A, RES, TM, 4)) + o + [f"v_pk_add_f32 {vr(a+i,2)}, {vr(a+i,2)}, {vr(TM+i,2)}" for i in range(0, 8, 2)]
                o += [f"v_cvt_pk_bf16_f32 v{TM+8+i}, v{a+2*i}, v{a+2*i+1}" for i in range(4)]
                o += [f"vm:out:s_add_u32 s64, s66, {outb}\nbuffer_store_dwordx4 {vr(TM+8,4)}, v{L16}, {WSRD}, s64 offen sc1", f"s_add_u32 s66, s66, {ost}\ns_add_u32 s63, s63, 1"]
                if F.PROF: o.append("\n".join(grab(lambda: stamp2(A, ST, "s63", 1, 92 if F.PROF == 1 else 84))))
            if send and F.PROF: o.append("\n".join(grab(lambda: stamp2(A, ST, "s60", 1, 92 if F.PROF == 1 else 84))))
            return r, ad[:6], o
        def emit(Z, V, y):
            if y.startswith("ds_"): Z.lds(y, y)
            elif y.startswith("need "): Z.need(y[5:])
            elif y.startswith("vneed "): V.need(y[6:])
            elif y.startswith("vm:"): _, tg, x = y.split(":", 2); V.op(x, tg)
            elif y.startswith("vm2:"): _, tg, x = y.split(":", 2); V.op(x, tg); V.q.append(tg)
            elif y == "f2chk": f2chk()
            else: A.e(y)
        def plan(W, R):
            fill = {i: [] for i in range(NM)}; used = [0] * NM
            def put(i, *xs):
                for x in xs: fill[i].append(x); used[i] += cost(x)
            def spread(items, lo, hi, budget):
                while True:
                    i = lo; u = list(used); pos = []
                    for x in items:
                        while i < hi and u[i] and u[i] + cost(x) > budget: i += 1
                        if i >= hi: break
                        pos.append(i); u[i] += cost(x)
                    if len(pos) == len(items): break
                    budget += 2
                for i, x in zip(pos, items): put(i, x)
                return pos
            put(0, need(1, 71)); put(1, need(2, 53))
            if flg and not fin: put(2, "s_mov_b32 s57, s63")
            for p in range(3):
                for t in range(2): put(min(NM - 1, fin_[(p, 1)] + F.WD + t), wr(p, t))
            if stats:
                k = fin_["s"] + F.WD
                put(k, f"v_cndmask_b32 v{S1+1}, v{S2}, v{S2+1}, s[74:75]", f"v_cndmask_b32 v{S1+1}, v{S1+1}, v{S2+2}, s[76:77]"); put(k + 1, f"v_cndmask_b32 v{S1+1}, v{S1+1}, v{S2+3}, s[78:79]"); put(k + 2, sw)
            if R:
                for ks in range(KS): put(last[ks], f"vm:L{ks}:" + ldA(ks))
                put(NM - 1, adv)
            put(NM * (F.PPR if R else F.PPN) // 32, "vm:poll:" + pollld)
            if flg and not fin: put(F.FP, "vneed out", flag("s57"))
            so = None
            if W or R:
                n_t = len(tail); r, a0, o = post()
                if not W: del tail[n_t:]
                keep = ({k: list(v) for k, v in fill.items()}, list(used))
                pos = spread(o, spread(a0, F.A0, own0, 8)[-1], NM, F.WB3)
                so = [i for i, x in zip(pos, o) if x.startswith(("vm:out", "vm2:out"))]
                if not W:
                    fill, used = keep
                    for i in so:
                        for _ in range(NS): put(i, "vm:out:" + dummy)
                elif flg and not fin and so[0] + F.FD < NM: put(NM - 1 if R else so[0] + F.FD, "vneed out", flag("s63"))
                if not W and flg and not fin and so[0] + F.FD < NM: put(NM - 1, "vm:fl:" + dummy)
            if res: put(max(F.FP + 1, (so[0] + 1) if so else 0, 26), f"vm:res:buffer_load_dwordx4 {vr(RES,4)}, v{L16}, {WSRD}, s82 offen\ns_add_u32 s82, s82, 32768")
            if fin:
                q1 = NM * F.Q1 // 64; q2 = NM - F.Q2R if R else q1 + F.Q2N
                spread(f1s, q1, q1 + 6, 8)
                put(q2, "vneed pk")
                if flg: put(q2, flag("s63"))
                put(q2, "f2chk")
                spread(f2rest(), q2 + 1, NM, 8)
            spread(togw, NM - 1, NM, 64)
            return fill
        def vseq(fill):
            q = []
            for i in range(NM):
                for x in fill[i]:
                    if x.startswith("vm"): q += [x.split(":")[1]] * (2 if x.startswith("vm2:") else 1)
            return q
        n_t = len(tail); histR = vseq(plan(True, True)); del tail[n_t:]
        histB = [f"L{i}" for i in range(KS)] + ["out"] * NS
        def body(W, R):
            fill = plan(W, R)
            if R: assert vseq(fill) == histR, (vseq(fill), histR)
            Z = Sched(A); V = VMQ(A, histR if W else histB)
            if W:
                for x in rds + (srd_ if stats else []) + togr: emit(Z, V, x)
            tst(A, 0)
            fi = {v: k for k, v in first.items()}
            for i, m in enumerate(M):
                if i in fi: V.need(f"L{fi[i]}")
                if i == 16: tst(A, 1)
                if i == NM // 2: tst(A, 2)
                A.e(m)
                for y in fill[i]: emit(Z, V, y)
            tst(A, 3)
            V.need("poll")
            A.e(f"v_cmp_gt_u32 vcc, s{53 if R else 71}, v{VF}\ns_add_u32 s60, s60, 1\ns_waitcnt lgkmcnt(0)\ns_barrier")
            if F.PROF >= 2: tst(A, 4); tst(A, 5); tacc(A, 6)
            if W and R and F.DROP:
                import re
                A.lines[i00:] = [x for x in A.lines[i00:] if not any(re.search(p, x) for p in F.DROP)]
            return V
        WR, WN, BR, BN, lag, dec, nb = [A.newlabel(x) for x in ("WR", "WN", "BR", "BN", "lag", "dec", "nb")]
        if fin:
            for x in fres: A.e(plain(x))
        A.e(need(0, 71)); A.e(need(1, 53))
        poll_loop(A, pollld, VF, 71)
        A.label(lag); pc(0)
        for i in range(KS): A.e(ldA(i))
        A.e(adv)
        for _ in range(NS): A.e(dummy)
        A.label(dec)
        A.e(f"v_cmp_gt_u32 vcc, s53, v{VF}\ns_cbranch_vccnz {BN}")
        A.label(BR); pc(4); body(False, True); A.e(f"s_cbranch_vccnz {WN}")
        A.label(WR); pc(3); body(True, True); A.e(f"s_cbranch_vccz {WR}")
        def ipost(V):
            Z = Sched(A); r, a0, o = post()
            k = len(o)
            if flg and not fin: k = [i for i, x in enumerate(o) if x.startswith("v_pk_add_f32")][7] + 1
            for x in r + a0 + o[:k]: emit(Z, V, x)
            if k < len(o) and "out" in V.q: V.need("out"); emit(Z, V, flag("s63"))
            for x in o[k:]: emit(Z, V, x)
        endN = A.newlabel("endN")
        A.label(WN); pc(2); VW_ = body(True, False); A.e(f"s_branch {endN}")
        A.label(BN); pc(1); VB_ = body(False, False)
        A.label(endN)
        qa, qb = VW_.q[VW_.done + 1:], VB_.q[VB_.done + 1:]
        def rem(tag): return min(len(q) - 1 - max(i for i, x in enumerate(q) if x == tag) for q in (qa, qb) if tag in q) if tag in qa + qb else None
        hist = []
        tg = sorted([(rem(t), t) for t in ("out", "res") if rem(t) is not None], reverse=True)
        for j, (n, t) in enumerate(tg): hist += [t] + ["x"] * (n - (tg[j + 1][0] + 1 if j + 1 < len(tg) else 0))
        def mk():
            V = VMQ(A, ["out", "res"] + hist); V.done = 1; return V
        A.e(f"s_cbranch_vccnz {nb}")
        pc(7); V = mk()
        for i in range(KS): V.op(ldA(i), f"L{i}")
        A.e(adv)
        ipost(V)
        A.e(f"s_branch {dec}")
        A.label(nb)
        V = mk()
        if not fin: V.op(pollld, "poll")
        ipost(V)
        Z = Sched(A)
        if fin:
            for x in f1s + ["vneed pk"] + ([flag("s63")] if flg else []) + ["f2chk", "vm:poll:" + pollld] + f2rest(): emit(Z, V, x)
            V.need("out" if flg else "poll")
        else:
            V.need("poll"); A.e(f"v_cmp_gt_u32 vcc, s71, v{VF}\ns_cbranch_vccz {lag}")
            if flg: V.need("out")
        if flg: emit(Z, V, flag("s63"))
        if fin: A.e(f"v_cmp_gt_u32 vcc, s71, v{VF}\ns_cbranch_vccz {lag}")
        A.e(f"s_cmp_ge_u32 s60, {NU}\ns_cbranch_scc1 {done}")
        pc(5); poll_loop(A, pollld, VF, 71)
        A.e(f"s_branch {lag}")
    if F.PROF:
        for r in ST: A.e(f"v_mov_b32 v{r}, 0")
        A.e(f"s_memrealtime s[84:85]\ns_waitcnt lgkmcnt(0)\nv_writelane_b32 v{ST[2]}, s84, 0\nv_writelane_b32 v{ST[2]}, s86, 1")
    tinit(A)
    i_loop = len(A.lines)
    if xch:
        lf = A.newlabel("lfin")
        A.e(f"s_cmp_eq_u32 s50, s52\ns_cbranch_scc1 {lf}")
        loop(False); A.label(lf); loop(True)
    else: loop(False)
    while tail: tail.pop(0)()
    if F.XS:
        for i in range(i_loop, len(A.lines)):
            x = A.lines[i]
            if (F.XS & 1 and "store_dwordx4" in x) or (F.XS & 2 and "store_dword " in x) or (F.XS & 4 and "load_dword " in x): A.lines[i] = x.replace(" sc1", "")
            if F.XS & 8 and "s_waitcnt vmcnt" in x: A.lines[i] = "s_nop 0"
    A.label(done)
    tout(A, ST[2]); stamp_out(A, ST)
    A.e("s_endpgm")

def cls(x):
    if x in ("f2chk", "mid"): return (0, 2, 3)
    if x == "f2br": return (1, 0, 0)
    if x.startswith(("need ", "vneed ")): return (1, 0, 0)
    if x.startswith("vm"): x = x.split(":", 2)[2]
    ls = x.split("\n"); sc = sum(1 for l in ls if l.startswith(("s_", "need", "vneed")))
    if "buffer_" in x or "ds_write" in x:
        lead = 0
        while ls[lead].startswith("s_"): lead += 1
        return (min(lead, 1), 1 if ("load" in x and len(ls) <= 2) else 2, 1)
    if x.startswith("ds_"): return (0, 1, 1)
    if sc == len(ls): return (sc, 0, 0)
    if len(ls) > 1: return (1, 2, 1)
    return (0, 2 if x.startswith(("v_exp", "v_rcp", "v_rsq")) else 1, 2)
class Gaps:
    def __init__(self, n): self.n = n; self.g = [[] for _ in range(n)]; self.over = []
    def load(self, i):
        s = sum(cls(x)[0] for x in self.g[i]); v = sum(cls(x)[1] for x in self.g[i]); return max(0, s - 1) + v
    def put(self, i, *xs): self.g[i] += xs
    def near(self, i, x, r1=0):
        while i < self.n - 1 and (self.load(i) + cls(x)[1] > 2 or (cls(x)[2] == 1 and any(cls(y)[2] == 1 and not (r1 and y.startswith("ds_read")) for y in self.g[i]))): i += 1
        self.g[i].append(x); return i
    def spread(self, items, lo, hi, mx=8):
        for extra in range(0, mx * (hi - lo) + 1):
            t = [list(x) for x in self.g]; i = lo; pos = []; rank = 0
            cap = lambda i: 2 + extra // (hi - lo) + (1 if (i - lo) < extra % (hi - lo) else 0)
            keep = self.g; self.g = t; ok = True
            for x in items:
                c = cls(x)
                while True:
                    if i >= hi: ok = False; break
                    t[i].append(x)
                    if c[2] == 1 and c[1] == 2 and c[2] >= rank and sum(cls(y)[1] for y in t[i]) == 2: break
                    if c[2] >= rank and self.load(i) <= cap(i) and not (c[2] == 1 and cap(i) < 4 and sum(cls(y)[2] == 1 for y in t[i]) > 1): break
                    t[i].pop(); i += 1; rank = 0
                if not ok: break
                pos.append(i); rank = c[2]
            if ok: return pos
            if mx < 8 and extra == mx * (hi - lo): self.over += items[len(pos):]; return pos
            self.g = keep
        raise ValueError
    def sched(self, items, lo, hi):
        I = [Ins(x, 0) for x in items]
        dep = [[j for j in range(i) if (I[j].w & (I[i].r | I[i].w)) or (I[j].r & I[i].w)] for i in range(len(I))]
        for extra in range(0, 4 * (hi - lo)):
            keep = self.g; self.g = [list(x) for x in keep]; at = {}
            for g in range(lo, hi):
                cap = 2 + extra // (hi - lo) + (1 if (g - lo) < extra % (hi - lo) else 0)
                while True:
                    free = cap - self.load(g)
                    rdy = [i for i in range(len(I)) if i not in at and all(j in at and (at[j] < g or not I[j].is_trans) for j in dep[i])]
                    c = [i for i in rdy if I[i].is_trans and free >= 2] + [i for i in rdy if not I[i].is_trans and free >= 1]
                    if not c: break
                    at[c[0]] = g; self.g[g].append(items[c[0]])
                if len(at) == len(I): return g
            self.g = keep
        raise ValueError
    def gap(self, i): return sorted(self.g[i], key=lambda x: cls(x)[2])
class VMQ2:
    def __init__(self, A, hist): self.A = A; self.q = [list(x) for x in hist]; self.done = -1
    def op(self, ins, tag): self.A.e(ins); self.q.append([tag])
    def need(self, tag):
        ix = [i for i, x in enumerate(self.q) if tag in x]
        if ix and ix[-1] > self.done:
            n = len(self.q) - 1 - ix[-1]; assert n < 64
            self.A.e(f"s_waitcnt vmcnt({n})"); self.done = ix[-1]
def gemm4_role(A, L, kind):
    KS = 7 if kind == "w4" else 8
    stats = kind in ("w1", "w3"); xch = kind in ("wo", "w4"); res = kind == "w2"
    L16, VFA, VA, VRD, VRB, ONE, VF, VT, VO, VSW, VSR, VX, VOX, VD = 0, 2, 3, 4, 8, 12, 16, 17, 18, 19, 20, 21, 22, 23
    ACC, FIN, S1, S2, SP, XW, NW, PKT, CS, RES, TM, M1, KC = 32, 40, 48, 52, 56, 64, 16, 128, 152, 160, 168, 204, 208; ST = (200, 201, 202)
    NM_, RS_, K0_, K1_ = TM + 20, TM + 21, TM + 22, TM + 23
    sym = xch and F.SYM; dfr = sym == 2; ep = dfr and F.EP; RSZ = 8192 if dfr else 6144; VSN, VFR, VFL = 24, 25, 26
    LST = 128 * 1024; D = F.GD; NF = 4 * KS
    wreg = lambda n, t, k=4, o=0: ar((n * 2 + t) * 4 + o, k)
    done = A.newlabel("done"); tail = []
    lanes(A)
    arg, ld, nbytes = dict(wo=("Wo", 2048, 8 * MB), w1=("w1", 2048, 2 * MB), w2=("w2", 2048, 2 * MB), w3=("w3", 7168, 7 * MB), w4=("w4", 2048, 7 * MB))[kind]
    ldptr(A, 4, arg)
    if xch: ldptr(A, 6, "x" if kind == "wo" else "out"); A.e("s_lshr_b32 s52, s59, 3\ns_and_b32 s53, s59, 7")
    else: A.e("s_mov_b32 s52, 0\ns_mov_b32 s53, s59")
    A.e(f"s_mul_i32 s54, s52, {NF*32*ld}\ns_lshl_b32 s64, s53, 8\ns_add_u32 s54, s54, s64\ns_lshl_b32 s64, s50, 6\ns_add_u32 s54, s54, s64\ns_waitcnt lgkmcnt(0)")
    A.srd(28, 4, nbytes)
    if xch: A.srd(24, 6, S * D_ * 2)
    def rdw(x):
        def f(buf):
            for kk in range(KS):
                for t in range(2):
                    for h in range(2): A.e(f"ds_read_b64_tr_b16 {wreg(x*KS+kk,t,2,2*h)}, v17 offset:{buf + (32*kk + 4*h)*64 + 8*t}")
                if kk % 3 == 2: A.e("s_waitcnt lgkmcnt(0)")
        return f
    if kind == "w4" and F.W4F:
        late(A, F.W4F); nb = (64 - PR1) // 2
        A.e(f"s_lshl_b32 s64, s59, 2\ns_add_u32 s64, s64, s50\ns_mul_i32 s64, s64, {nb*1024}\ns_add_u32 s64, s64, {R_PR + PR1*64*KB}\nv_lshlrev_b32 v26, 4, v1")
        for i in range(4): A.e(f"v_mov_b32 v{28+i}, -1")
        for i in range(nb):
            if i and i % 4 == 0: A.e("s_add_u32 s64, s64, 4096")
            A.e(f"buffer_store_dwordx4 v[28:31], v26, {WSRD}, s64 offen offset:{(i&3)*1024} sc1")
            if F.W4T: A.e(f"s_waitcnt vmcnt({F.W4T})")
        signal(A, C_QW)
    if kind == "w4" and F.W4G: cpoll(A, L, {C_M2: 63}, sl=F.VSL2)
    if kind == "wo": late(A)
    if kind == "w3" and F.L3: late(A, F.L3)
    if kind == "w4" and F.L4: late(A, F.L4)
    if kind in ("w1", "w2") and F.L12: late(A, F.L12)
    stage_weights(A, [(28, f"s_xor_b32 s62, s50, {x}\ns_mul_i32 s62, s62, {KS*32*ld}\ns_add_u32 s62, s62, s54", KS * 32, rdw(x)) for x in range(4)], ld, None, F.NFLO if kind == 'wo' and F.NFLO is not None else F.NFL12 if kind in ('w1', 'w2') and F.NFL12 is not None else F.NFL2, slp=F.NSL if kind in ('w3', 'w4') else 0, nt=F.WNT if kind in F.WNK else '')
    verify(A, L, False, "mod")
    inb, ust = dict(wo=(OB, 131072), w1=(H2, 32768), w2=(G1, 32768), w3=(Y1, 32768), w4=(G3, 112 * 1024))[kind]
    if F.FREE == 2: ust = 0
    A.e(f"""
    s_barrier
    v_lshlrev_b32 v{L16}, 4, v1
    s_mov_b32 s60, 0
    s_lshl_b32 s70, s50, 13
    s_mov_b32 s55, 0
    v_mov_b32 v{VA}, v{L16}
    s_mov_b32 s73, 0xffff0000
    s_lshl_b32 s64, s52, 2
    s_add_u32 s64, s64, s50
    s_mul_i32 s61, s64, {KS*1024}
    s_add_u32 s61, s61, {inb}
    s_lshl_b32 s68, s64, 8
    s_add_u32 s68, s68, {dict(wo=F_ATT, w1=F_LN, w2=F_W1, w3=F_W2, w4=F_W3)[kind]}
    s_lshl_b32 s83, s53, 2
    s_add_u32 s83, s83, s50            ; output fragment index
    s_mov_b32 s63, 0""")
    for x in range(4): A.e(f"s_xor_b32 s64, s50, {x}\ns_lshl_b32 s64, s64, 13\nv_add_u32 v{VRB+x}, s64, v{L16}\nv_mov_b32 v{VRD+x}, v{VRB+x}")
    nfl = dict(wo=4 + 4 * F.AT, w1=4, w2=8, w3=8, w4=7)[kind]
    lin = (kind == "w2" and F.LOC & 1) or (kind == "w1" and F.LOC & 2)
    A.e(f"v_min_u32 v{VFA}, {nfl-1}, v1\nv_lshlrev_b32 v{VFA}, {7 if lin else 2}, v{VFA}")
    if kind == "w3" and F.REP > 1: A.e(f"s_and_b32 s64, s59, {F.REP-1}\ns_lshl_b32 s64, s64, 10\ns_lshl_b32 s68, s50, 8\ns_add_u32 s68, s68, s64\ns_add_u32 s68, s68, {F_W2R}")
    if lin: A.e(f"s_mul_i32 s68, s50, {nfl*128}\ns_add_u32 s68, s68, {F_W1L if kind == 'w2' else F_LNL}")
    if res:
        A.e(f"""
        s_lshr_b32 s64, s50, 1
        s_add_u32 s64, s64, 1
        s_sub_u32 s65, 0, s64
        s_bitcmp1_b32 s50, 0
        s_cselect_b32 s64, s64, s65
        s_add_u32 s64, s64, 16
        v_add_u32 v26, s64, v21
        v_lshrrev_b32 v27, 4, v26
        v_and_b32 v26, 15, v26
        v_lshl_add_u32 v26, v22, 4, v26
        v_lshlrev_b32 v26, 4, v26
        v_lshl_add_u32 v{VA}, v27, 15, v26
        s_sub_u32 s61, s61, 32768
        s_and_b32 s64, s50, 1
        s_add_u32 s74, s64, 1
        s_add_u32 s75, s64, 2
        s_add_u32 s76, s64, 3""")
    A.e("s_add_u32 s62, s61, 4096\ns_lshl_b32 s66, s83, 10")
    if kind == "w3":
        A.e(f"s_mul_i32 s65, s83, 147\ns_lshr_b32 s65, s65, 10\ns_mul_i32 s69, s65, {256 - 28}\ns_lshl_b32 s64, s83, 2\ns_add_u32 s69, s69, s64\ns_add_u32 s69, s69, {F_W3}")
    else:
        A.e(f"s_lshr_b32 s65, s83, 3\ns_lshl_b32 s65, s65, 8\ns_and_b32 s64, s83, 7\ns_lshl_b32 s64, s64, 2\ns_add_u32 s69, s64, s65\ns_add_u32 s69, s69, {dict(wo=F_WO, w1=F_W1, w2=F_W2, w4=F_W4)[kind]}")
    if kind == "w2" and F.REP > 1: A.e(f"s_add_u32 s69, s69, {F_W2R - F_W2}")
    if kind == "w1" and F.LOC & 1: A.e(f"s_lshl_b32 s69, s83, 7\ns_add_u32 s69, s69, {F_W1L}")
    if sym: A.e(f"s_lshr_b32 s65, s83, 3\ns_lshl_b32 s65, s65, 8\ns_and_b32 s64, s83, 7\ns_lshl_b32 s64, s64, 2\ns_add_u32 s64, s64, s52\ns_lshl_b32 s64, s64, 2\ns_add_u32 s69, s64, s65\ns_add_u32 s69, s69, {F_WO}")
    A.e(f"s_add_u32 s82, s66, {H2 if res else X1}" if kind != "wo" else "s_mov_b32 s82, 0")
    outb, ost = dict(wo=(X1, 32768), w1=(G1, 32768), w2=(Y1, 32768), w3=(G3, 112 * 1024), w4=(0, 32768))[kind]
    if not xch: A.e(f"s_add_u32 s66, s66, {outb}")
    if sym:
        A.e(f"""
        s_mul_i32 s74, s83, {4*RSZ}
        s_add_u32 s74, s74, {XP + (0 if kind == 'wo' else 128*RSZ)}
        s_mul_i32 s76, s52, {RSZ}
        s_add_u32 s76, s76, s74
        s_mov_b32 s75, 0
        s_mov_b32 s78, 0
        s_mov_b32 s84, s76
        s_mov_b32 s82, 0
        s_mov_b32 s80, s76
        s_mov_b32 s81, s74
        s_mov_b32 s77, 0                   ; pending
        s_lshl_b32 s64, s52, 8
        v_lshlrev_b32 v26, 4, v21
        v_add_u32 v26, s64, v26
        v_mul_u32_u24 v27, {RSZ}, v22
        v_add_u32 v{VSN}, v26, v27
        v_lshl_add_u32 v{VFR}, v22, 2, v26
        v_lshlrev_b32 v26, 11, v21
        v_lshl_add_u32 v26, v22, 2, v26
        s_lshl_b32 s64, s83, 2
        s_add_u32 s64, s64, s52
        s_lshl_b32 s65, s64, 4
        v_add_u32 v{VO}, s65, v26
        v_lshlrev_b32 v26, 3, v22
        s_lshl_b32 s64, s64, 5
        s_add_u32 s64, s64, {MOD + (2 if kind == 'wo' else 5)*4096}""")
        for g_ in range(4): A.e(f"buffer_load_dwordx2 {vr(CS if g_ == 0 else PKT + 2*(g_-1), 2)}, v26, {WSRD}, s64 offen sc1\ns_add_u32 s64, s64, {6144*4}")
        A.e("s_waitcnt vmcnt(0)")
        sum4(A, CS, PKT, 2)
        for i in range(4): A.e(f"v_mov_b32 v{M1+i}, -1")
        A.e("s_mov_b32 s83, 0")
    elif xch:
        A.e(f"""
        s_lshl_b32 s64, s53, 2
        s_add_u32 s64, s64, s50
        s_mul_i32 s74, s64, {4*6144}
        s_xor_b32 s64, s50, s52
        s_sub_u32 s64, s64, 1
        s_max_i32 s64, s64, 0
        s_lshl_b32 s64, s64, 11
        s_add_u32 s74, s74, s64
        s_add_u32 s74, s74, {XP + (0 if kind == 'wo' else 768*KB)}
        s_mov_b32 s75, 0
        s_mov_b32 s77, 0                   ; pending
        v_lshlrev_b32 v26, 11, v21
        v_lshl_add_u32 v26, v22, 4, v26
        s_lshl_b32 s64, s83, 6
        v_add_u32 v{VO}, s64, v26
        v_lshlrev_b32 v26, 5, v22
        s_lshl_b32 s64, s83, 7
        s_add_u32 s64, s64, {MOD + (2 if kind == 'wo' else 5)*4096}""")
        for g in range(4):
            for i in range(2): A.e(f"buffer_load_dwordx4 {vr((CS if g == 0 else PKT + 8*(g-1)) + 4*i, 4)}, v26, {WSRD}, s64 offen offset:{16*i} sc1")
            A.e(f"s_add_u32 s64, s64, {6144*4}")
        A.e("s_waitcnt vmcnt(0)")
        sum4(A, CS, PKT, 8)
        for i in range(4): A.e(f"v_mov_b32 v{M1+i}, -1")
    if stats:
        A.e(f"""
        s_lshl_b32 s64, s50, 9
        s_add_u32 s64, s64, {LST}
        v_lshlrev_b32 v26, 3, v1
        v_add_u32 v{VSW}, s64, v26
        v_lshl_add_u32 v26, v23, 4, v21
        v_lshlrev_b32 v26, 3, v26
        v_add_u32 v{VSR}, {LST}, v26
        s_mov_b32 s74, 0x22222222
        s_mov_b32 s75, 0x22222222
        s_mov_b32 s76, 0x44444444
        s_mov_b32 s77, 0x44444444
        s_mov_b32 s78, 0x88888888
        s_mov_b32 s79, 0x88888888
        v_mov_b32 v{KC}, {f2u(GELU_C1):#x}
        v_mov_b32 v{KC+1}, {f2u(GELU_C0):#x}
        v_mov_b32 v{KC+2}, {f2u(1e-5) if F.GT else f2u(1.0):#x}
        v_mov_b32 v{KC+3}, {f2u(1/1024) if F.GT else f2u(1.0):#x}""")
        for i in range(4): A.e(f"v_mov_b32 v{ONE+i}, 0x3f803f80")
        for n in range(NF):
            for t in range(2): A.e(f"{MF} {vr(CS+4*t,4)}, {wreg(n,t)}, {vr(ONE,4)}, {vr(CS+4*t,4) if n else 0}")
    if kind == "w1" and F.LOC & 1: A.e(f"v_lshlrev_b32 v{VFL}, 2, v1\nv_cmp_gt_u32 vcc, 32, v1\nv_cndmask_b32 v{VFL}, 2.0, v{VFL}, vcc")
    elif kind == "w2" and F.REP > 1: A.e(f"v_lshlrev_b32 v{VFL}, 10, v1\nv_cmp_gt_u32 vcc, {F.REP}, v1\nv_cndmask_b32 v{VFL}, 2.0, v{VFL}, vcc")
    else: A.e(f"v_cmp_eq_u32 vcc, 0, v1\nv_cndmask_b32 v{VFL}, 2.0, 0, vcc")
    LS = ["sc1"]
    ptd = lambda: F.PTD and F.PTK & 1 and LS[0] == ""
    cap = F.DT and dict(wo="", w1="w2", w2="w3", w3="w4", w4="")[kind] in F.DTK; dpl = F.DT and kind in F.DTK; VCAP = 27; rsc = " sc1" if F.DT else ""
    if cap: A.e(f"v_mov_b32 v{VCAP}, {NU - F.DT}")
    if dpl: A.e(f"s_and_b32 s80, s50, {1 if res else 0}\ns_sub_u32 s80, {NU - F.DT}, s80")
    def flag_st(sv):
        if cap: A.e(f"v_min_u32 v{VT}, {sv}, v{VCAP}\nbuffer_store_dword v{VT}, v{VFL}, {WSRD}, s69 offen {LS[0] if F.LOCX & 2 else 'sc1'}")
        elif F.FX: A.e(f"v_mov_b32 v{VT}, {sv}\nbuffer_store_dword v{VT}, v{VFL}, {WSRD}, s69 offen {LS[0] if F.LOCX & 2 else 'sc1'}")
        else: flag_store(A, VT, sv, 69)
    def sfin_gt():
        t = SP
        for a, b in ((0, 2), (1, 3), (4, 6), (5, 7), (0, 4), (1, 5)): A.e(f"v_add_f32 v{t+a}, v{t+a}, v{t+b}")
        A.e(f"""
        v_mul_f32 v{NM_}, {f2u(-1/1024):#x}, v{t}
        v_fma_f32 v{t+2}, v{NM_}, v{NM_}, -v{KC+2}
        v_fma_f32 v{t+1}, v{t+1}, v{KC+3}, -v{t+2}
        v_max_f32 v{t+1}, v{KC+2}, v{t+1}
        v_rsq_f32 v{t+2}, v{t+1}
        v_mul_f32 v{RS_}, v{t+1}, v{t+2}
        v_mul_f32 v{K0_}, v{KC+1}, v{t+2}
        v_mul_f32 v{t+3}, v{t+2}, v{t+2}
        v_mul_f32 v{K1_}, v{KC}, v{t+2}
        v_mul_f32 v{K1_}, v{K1_}, v{t+3}""")
    def grab(f):
        i0 = len(A.lines); f(); o = [x.strip() for x in A.lines[i0:]]; del A.lines[i0:]; return o
    ldA = lambda i: ("s_mov_b32 m0, s70\n" if i == 0 else "s_add_u32 m0, s70, 4096\n" if i == 4 else "") + f"buffer_load_dwordx4 v{VA}, {WSRD}, s{61+(i>>2)} offen offset:{(i&3)*1024}{' nt' if kind in F.ANT else ''} lds"
    adv = [f"s_add_u32 s61, s61, {ust}", f"s_add_u32 s62, s62, {ust}", "s_add_u32 s70, s70, 32768", "s_and_b32 s70, s70, 0x1ffff"]
    pollld = f"buffer_load_dword v{VF}, v{VFA}, {WSRD}, s68 offen sc1"
    dummy = f"buffer_load_dword v{VD}, off, {WSRD}, s66"
    def need(add, d):
        if F.FREE: return f"s_cmp_ge_u32 s60, {NU-add}\ns_cselect_b32 s{d}, -1, 0"
        if res: return f"s_add_u32 s{d}, s60, s{74+add}\ns_cmp_eq_u32 s60, {NU-1-add}\ns_cselect_b32 s{d}, {NU}, s{d}"
        return f"s_add_u32 s{d}, s60, {add+1}"
    def both(f):
        l1 = A.newlabel("b1"); l2 = A.newlabel("b2")
        A.e(f"s_cmp_eq_u32 s56, 1\ns_cbranch_scc1 {l1}"); f("")
        A.label(l2)
        def d(): A.label(l1); A.e("s_nop 7"); f("sc1"); A.e(f"s_branch {l2}")
        tail.append(d)
    def pc(k):
        if F.PROF >= 2: A.e(f"s_add_u32 s{98 + k//4}, s{98 + k//4}, {1 << (8 * (k & 3))}")
    def trs(code):
        sk = A.newlabel("tr")
        return f"""s_sub_u32 s95, s60, {F.TRU}\ns_cmp_ge_u32 s95, 8\ns_cbranch_scc1 {sk}\ns_memrealtime s[92:93]\ns_mov_b32 s95, m0\ns_mov_b32 m0, s94\ns_waitcnt lgkmcnt(0)\ns_lshl_b32 s92, s92, 12\ns_lshl_b32 s93, s60, 4\ns_add_u32 s92, s92, s93\ns_add_u32 s92, s92, {code}\nv_writelane_b32 v{ST[0]}, s92, m0\ns_mov_b32 m0, s95\ns_add_u32 s94, s94, 1\ns_min_u32 s94, s94, 63\n{sk}:"""
    def tr(code):
        if F.TRU: A.e(trs(code))
    f1s = ["s_add_u32 s84, s74, s75", "s_add_u32 s85, s84, 4096"] + [f"vm:pk:buffer_load_dwordx4 {vr(PKT+4*i,4)}, v{L16}, {WSRD}, s{84+(i>>2)} offen offset:{(i&3)*1024} sc1" for i in range(6)]
    if kind == "wo": fres = [f"vm:rs:buffer_load_dwordx4 {vr(RES,4)}, v{VO}, s[24:27], s82 offen", "s_add_u32 s82, s82, 32768"]
    else: fres = [f"vm:rs:buffer_load_dwordx4 {vr(RES,4)}, v{L16}, {WSRD}, s82 offen", f"vm:rs:s_add_u32 s64, s82, {Y1 - X1}\nbuffer_load_dwordx4 {vr(RES+4,4)}, v{L16}, {WSRD}, s64 offen{rsc}", "s_add_u32 s82, s82, 32768"]
    if sym:
        f1s = ["s_add_u32 s84, s76, s75"] + [f"vm:pk:buffer_load_dwordx4 {vr(PKT+4*i,4)}, v{L16}, {WSRD}, s84 offen offset:{i*1024} sc1" for i in range(2)]
        if kind == "wo": fres = [f"vm:rs:buffer_load_dword v{RES}, v{VO}, s[24:27], s82 offen", "s_add_u32 s82, s82, 32768"]
        else: fres = [f"vm:rs:buffer_load_dword v{RES}, v{VFR}, {WSRD}, s82 offen", f"vm:rs:s_add_u32 s64, s82, {Y1 - X1}\nbuffer_load_dword v{RES+1}, v{VFR}, {WSRD}, s64 offen", "s_add_u32 s82, s82, 32768"]
    if dfr:
        f1s[0] = "s_add_u32 s84, s76, s78"
        if ep: f1s = [x.replace("s84", "s80") for x in f1s[1:]]
        if kind == "wo": fres = [f"vm:rs:s_and_b32 s64, s66, 0xffff8000\nbuffer_load_dword v{RES}, v{VO}, s[24:27], s64 offen"]
        else: fres = [f"vm:rs:s_add_u32 s64, s66, {b}\nbuffer_load_dword v{RES+i}, v{VFR}, {WSRD}, s64 offen" for i, b in enumerate((X1, Y1))]
    plain = lambda x: x.split(":", 2)[2] if x.startswith("vm") else x
    def add8(d, a, b, pk):
        if pk: return [f"v_pk_add_f32 {vr(d+i,2)}, {vr(a+i,2)}, {vr(b+i,2)}" for i in range(0, 8, 2)]
        return [f"v_add_f32 v{d+i}, v{a+i}, v{b+i}" for i in range(8)]
    CK = 184
    chkv = [f"v_bitop3_b32 v{CK+i}, v{PKT+2*i}, v{PKT+2*i+1}, s83 bitop3:0x7e" for i in range(4)] + [f"v_or3_b32 v{CK}, v{CK}, v{CK+1}, v{CK+2}", f"v_bitop3_b32 v{CK}, v{CK}, v{CK+3}, 1 bitop3:0xa8", f"v_cmp_ne_u32 vcc, 0, v{CK}"]
    def f2br():
        rt = A.newlabel("rt"); go = A.newlabel("go"); lp = A.newlabel("rl")
        A.e(f"s_cbranch_vccnz {rt}"); A.label(go)
        def d():
            A.label(rt); A.e(f"s_cmp_eq_u32 s77, 0\ns_cbranch_scc1 {go}"); A.label(lp); pc(6)
            A.e(f"s_sub_u32 s90, s90, 1\ns_cmp_gt_i32 s90, 0\ns_cbranch_scc0 {go}")
            for x in f1s: A.e(plain(x))
            A.e("s_waitcnt vmcnt(0)")
            for x in chkv: A.e(x)
            A.e(f"s_cbranch_vccnz {lp}\ns_branch {go}")
        tail.append(d)
    def f2chk():
        if ep:
            for x in chkv: A.e(x)
            return f2br()
        ck = A.newlabel("ck"); rt = A.newlabel("rt"); go = A.newlabel("go")
        A.e(f"s_cmp_eq_u32 s77, 0\ns_cbranch_scc1 {go}")
        A.label(ck)
        TM = 184
        if sym: A.e(f"v_max3_u32 v{TM}, v{PKT}, v{PKT+1}, v{PKT+2}\nv_max3_u32 v{TM+1}, v{PKT+3}, v{PKT+4}, v{PKT+5}\nv_max3_u32 v{TM}, v{TM}, v{PKT+6}, v{PKT+7}\nv_max_u32 v{TM}, v{TM}, v{TM+1}\nv_cmp_eq_u32 vcc, -1, v{TM}\ns_cbranch_vccnz {rt}")
        else:
            for j in range(2): A.e(f"v_max3_u32 v{TM+j}, v{PKT+12*j}, v{PKT+12*j+1}, v{PKT+12*j+2}")
            for q in range(4):
                for j in range(2): A.e(f"v_max3_u32 v{TM+j}, v{TM+j}, v{PKT+12*j+3+2*q}, v{PKT+12*j+4+2*q}")
            A.e(f"v_max3_u32 v{TM}, v{TM}, v{PKT+11}, v{PKT+23}\nv_max_u32 v{TM}, v{TM}, v{TM+1}\nv_cmp_eq_u32 vcc, -1, v{TM}\ns_cbranch_vccnz {rt}")
        A.label(go)
        def d():
            A.label(rt); pc(6)
            A.e(f"s_sub_u32 s90, s90, 1\ns_cmp_gt_i32 s90, 0\ns_cbranch_scc0 {go}")
            for x in f1s: A.e(plain(x))
            A.e(f"s_waitcnt vmcnt(0)\ns_branch {ck}")
        tail.append(d)
    FINP = 212
    def fma8(pk, a):
        if pk: return [f"v_pk_fma_f32 {vr(TM+i,2)}, {vr(a+i,2)}, {vr(CS+i,2)}, {vr(TM+i,2)}" for i in range(0, 8, 2)]
        return [f"v_fma_f32 v{TM+i}, v{a+i}, v{CS+i}, v{TM+i}" for i in range(8)]
    def f2pre(pk, src=FINP):
        if sym:
            o = [f"v_or_b32 v{VX}, s57, v{L16}", f"v_or_b32 v{VOX}, s57, v{VFR if kind == 'wo' else VO}"] + grab(lambda: unpack(A, RES, TM, 1 if kind == "wo" else 2))
            if kind == "w4": o += [f"v_fma_f32 v{TM+i}, v{TM+2+i}, v{CS+i}, v{TM+i}" for i in range(2)]
            return ["vneed rs", "s_cmp_eq_u32 s77, 0\ns_cselect_b32 s57, 2.0, 0"], o
        o = [f"v_or_b32 v{VX}, s57, v{L16}"] + ([f"v_or_b32 v{VOX}, s57, v{VO}"] if kind == "w4" else []) + grab(lambda: unpack(A, RES, TM, 4))
        if kind == "w4": o += grab(lambda: unpack(A, RES + 4, TM + 8, 4)) + add8(src, src, TM + 8, pk)
        return ["vneed rs", "s_cmp_eq_u32 s77, 0\ns_cselect_b32 s57, 2.0, 0"], o + fma8(pk, src)
    def f2rest(pk):
        if sym:
            ad = lambda a, b: f"v_add_f32 v{PKT+a}, v{PKT+a}, v{PKT+b}"
            o = [f"v_permlane32_swap_b32 v{PKT+i}, v{PKT+4+i}" for i in (0, 2, 1, 3)] + [ad(i, i + 4) for i in (0, 2, 1, 3)]
            o += [f"v_permlane16_swap_b32 v{PKT+i}, v{PKT+2+i}" for i in range(2)] + [ad(i, i + 2) for i in range(2)]
            o += [f"v_fma_f32 v{TM+i}, v{PKT+i}, v{CS+i}, v{TM+i}" for i in range(2)] + [f"v_cvt_pk_bf16_f32 v{TM+8}, v{TM}, v{TM+1}"]
            if kind == "wo": o += [f"vm:out:s_add_u32 s64, s66, {X1}\nbuffer_store_dword v{TM+8}, v{VOX}, {WSRD}, s64 offen sc1"]
            else: o += [f"vm:out:s_and_b32 s64, s66, 0xffff8000\nbuffer_store_dword v{TM+8}, v{VOX}, s[24:27], s64 offen"]
            o.append("" if ep else "vm2:rz:" + "\n".join(grab(lambda: both(lambda fl: [A.e(f"buffer_store_dwordx4 {vr(M1,4)}, v{VX}, {WSRD}, s84 offen offset:{i*1024} {fl}") for i in range(2)]))))
            o += [f"s_mul_i32 s64, s77, {ost}\ns_add_u32 s66, s66, s64", "s_lshl_b32 s64, s77, 11\ns_add_u32 s75, s75, s64", f"s_cmp_eq_u32 s75, 6144\ns_cselect_b32 s75, 0, s75", "s_add_u32 s63, s63, s77"]
            if F.PROF:
                sk = A.newlabel("sk"); o.append("\n".join([f"s_cmp_eq_u32 s77, 0\ns_cbranch_scc1 {sk}"] + grab(lambda: stamp2(A, ST, "s63", 1, 92 if F.PROF == 1 else 84)) + [f"{sk}:"]))
            return o + ["s_mov_b32 s77, 0"]
        o = add8(PKT, PKT, PKT + 8, pk) + add8(PKT, PKT, PKT + 16, pk) + fma8(pk, PKT)
        o += [f"v_cvt_pk_bf16_f32 v{TM+8+i}, v{TM+2*i}, v{TM+2*i+1}" for i in range(4)]
        if kind == "wo": o += [f"vm:out:s_add_u32 s64, s66, {X1}\nbuffer_store_dwordx4 {vr(TM+8,4)}, v{VX}, {WSRD}, s64 offen sc1"]
        else: o += [f"vm:out:s_and_b32 s64, s66, 0xffff8000\nbuffer_store_dwordx4 {vr(TM+8,4)}, v{VOX}, s[24:27], s64 offen {F.OSC}"]
        if kind == "wo" and F.DP: o += [f"s_add_u32 s79, s66, {X1 + 65536}", f"vm:st:s_cmp_ge_u32 s63, {NU-2}\ns_cselect_b32 s79, {SCRATCH + 32768}, s79\nbuffer_store_dwordx4 {vr(M1,4)}, v{VX}, {WSRD}, s79 offen sc1"]
        for h in range(3):
            def rs(fl, h=h):
                for i in (2 * h, 2 * h + 1): A.e(f"buffer_store_dwordx4 {vr(M1,4)}, v{VX}, {WSRD}, s{84+(i>>2)} offen offset:{(i&3)*1024} {fl}")
            o.append("vm2:rz:" + "\n".join(grab(lambda: both(rs))))
        o += [f"s_mul_i32 s64, s77, {ost}\ns_add_u32 s66, s66, s64", "s_mul_i32 s64, s77, 6144\ns_add_u32 s75, s75, s64", f"s_cmp_eq_u32 s75, {4*6144}\ns_cselect_b32 s75, 0, s75", "s_add_u32 s63, s63, s77"]
        if F.PROF:
            sk = A.newlabel("sk"); o.append("\n".join([f"s_cmp_eq_u32 s77, 0\ns_cbranch_scc1 {sk}"] + grab(lambda: stamp2(A, ST, "s63", 1, 92 if F.PROF == 1 else 84)) + [f"{sk}:"]))
        return o + ["s_mov_b32 s77, 0"]
    def fz():
        p0, p1 = f2pre(False); o = f2rest(False); k = [i for i, x in enumerate(o) if x.startswith("vm:out")][0]
        P = dict(head=["vneed pk"] + p0, calc=p1 + o[:k], rz=[o[k + 1]])
        P["oad"] = [f"s_add_u32 s79, s66, {X1}" if kind == "wo" else "s_and_b32 s79, s66, 0xffff8000"]
        P["out"] = [f"vm:out:buffer_store_dword v{TM+8}, v{VOX}, " + (f"{WSRD}, s79 offen sc1" if kind == "wo" else "s[24:27], s79 offen")]
        P["book"] = [f"s_mul_i32 s64, s77, {ost}\ns_add_u32 s66, s66, s64", "s_lshl_b32 s64, s77, 11\ns_add_u32 s78, s78, s64", "s_and_b32 s78, s78, 0x1fff"]
        if ep:
            P["rz"] = []; P["calc"] = P["calc"][1:]
            P["book"] = P["book"][:2] + ["s_and_b32 s78, s78, 0x3fff", "s_lshr_b32 s83, s78, 13", "s_and_b32 s80, s78, 0x1fff", "s_add_u32 s80, s80, s76"]
        P["cnt"] = ["s_add_u32 s63, s63, s77"] + ([o[-2]] if F.PROF else [])
        return P
    xr = lambda n: vr(XW + 4 * (n % NW), 4)
    rd = lambda n: f"ds_read_b128 {xr(n)}, v{VRD + n//KS} offset:{(n%KS)*1024}"
    M = []; first = {}
    for n in range(NF):
        first[n] = len(M)
        M += [f"{MF} {vr((FIN if n == NF - 1 else ACC)+4*t,4)}, {wreg(n,t)}, {xr(n)}, {vr(ACC+4*t,4) if n else 0}" for t in range(2)]
        if stats and n < KS: M += [f"{MF} {vr(S1,4)}, {vr(ONE,4)}, {xr(n)}, {vr(S1,4) if n else 0}", f"{MF} {vr(S2,4)}, {xr(n)}, {xr(n)}, {vr(S2,4) if n else 0}"]
    NM = len(M); PRE = 3
    def loop(fin):
        send = xch and not fin
        NS = (5 if ep else 7) if dfr else 2 if sym else 0 if fin else (2 if send or F.IPF else 1)
        flg = (not send) and kind != "w4" and not (kind == "wo" and F.DP)
        flag = lambda sv: "vm:fl:" + "\n".join(grab(lambda: flag_st(sv))) + ("\ns_mov_b64 s[96:97], vcc\n" + trs(6) + "\ns_mov_b64 vcc, s[96:97]" if F.TRU else "")
        def post(pk):
            a = FIN
            if ep:
                o = [f"v_bfi_b32 v{FIN+i}, 1, s82, v{FIN+i}" for i in range(8)]
                for t in range(2): o.append("vm:sn:" + "\n".join(grab(lambda: both(lambda f_: A.e(f"buffer_store_dwordx4 {vr(FIN+4*t,4)}, v{VSN}, {WSRD}, s81 offen offset:{t*1024} {f_}")))))
                return o + ["s_add_u32 s75, s75, 2048", "s_and_b32 s75, s75, 0x3fff", "s_lshr_b32 s82, s75, 13", "s_and_b32 s81, s75, 0x1fff", "s_add_u32 s81, s81, s74"]
            if sym:
                t_ = grab(lambda: both(lambda f_: [A.e(f"buffer_store_dwordx4 {vr(FIN+4*t,4)}, v{VSN}, {WSRD}, s64 offen offset:{t*1024} {f_}") for t in range(2)]))
                if dfr: return ["vm2:sn:" + "\n".join(["s_add_u32 s64, s74, s75"] + t_), "s_add_u32 s75, s75, 2048", "s_and_b32 s75, s75, 0x1fff"]
                return ["vm2:sn:" + "\n".join(["s_add_u32 s64, s74, s75"] + t_), "s_mov_b32 s77, 1"]
            if fin: return ([f"v_mov_b32 v{FINP+i}, v{FIN+i}" for i in range(8)] if pk != 2 else []) + ["s_mov_b32 s77, 1"]
            if send:
                t_ = grab(lambda: both(lambda f_: [A.e(f"buffer_store_dwordx4 {vr(FIN+4*t,4)}, v{L16}, {WSRD}, s64 offen offset:{t*1024} {f_}") for t in range(2)]))
                o = ["vm2:out:" + "\n".join(["s_add_u32 s64, s74, s75"] + t_), "s_add_u32 s75, s75, 6144", f"s_cmp_eq_u32 s75, {4*6144}\ns_cselect_b32 s75, 0, s75"]
                if F.PROF: o.append("\n".join(grab(lambda: stamp2(A, ST, "s60", 1, 92 if F.PROF == 1 else 84))))
                return o
            if stats:
                e = [f"v_exp_f32 v{TM+i}, v{TM+i}" for i in range(8)]; rc = [f"v_rcp_f32 v{TM+i}, v{TM+i}" for i in range(8)]
                if F.GT and pk:
                    P = lambda op, d, *s_, m="": [f"v_pk_{op}_f32 {vr(d+i,2)}, " + ", ".join(vr(x[0] + (i if x[1] else 0), 2) for x in s_) + m for i in range(0, 8, 2)]
                    o = P("fma", a, (CS, 1), (NM_, 0), (a, 1), m=" op_sel_hi:[1,0,1]") + P("mul", TM, (a, 1), (a, 1))
                    o += P("fma", TM, (TM, 1), (K0_, 0), (K0_, 0), m=" op_sel:[0,1,0] op_sel_hi:[1,1,0]") + P("mul", TM, (TM, 1), (a, 1)) + e
                    o += P("fma", TM, (TM, 1), (NM_, 0), (NM_, 0), m=" op_sel:[0,1,1] op_sel_hi:[1,1,1]") + rc + P("mul", a, (TM, 1), (a, 1))
                elif F.GT:
                    o = []
                    for i0 in range(0, 8, 2):
                        for op in ("v_fma_f32 v{v}, v{c}, v%d, v{v}" % NM_, "v_mul_f32 v{t}, v{v}, v{v}", "v_fma_f32 v{t}, v{t}, v%d, v%d" % (K1_, K0_), "v_mul_f32 v{t}, v{t}, v{v}",
                                   "v_exp_f32 v{t}, v{t}", "v_fma_f32 v{t}, v{t}, v%d, v%d" % (RS_, RS_), "v_rcp_f32 v{t}, v{t}", "v_mul_f32 v{v}, v{t}, v{v}"): o += [op.format(t=TM + i, v=a + i, c=CS + i) for i in (i0, i0 + 1)]
                elif pk:
                    P = lambda op, d, *s_, m="": [f"v_pk_{op}_f32 {vr(d+i,2)}, " + ", ".join(vr(x[0] + (i if x[1] else 0), 2) for x in s_) + m for i in range(0, 8, 2)]
                    o = P("fma", a, (CS, 1), (NM_, 0), (a, 1), m=" op_sel_hi:[1,0,1]") + P("mul", a, (a, 1), (NM_, 0), m=" op_sel:[0,1] op_sel_hi:[1,1]") + P("mul", TM, (a, 1), (a, 1))
                    o += P("fma", TM, (TM, 1), (KC, 0), (KC, 0), m=" op_sel:[0,0,1] op_sel_hi:[1,0,1]") + P("mul", TM, (TM, 1), (a, 1)) + e + P("add", TM, (TM, 1), (KC + 2, 0)) + rc + P("mul", a, (TM, 1), (a, 1))
                else:
                    o = []
                    for i0 in range(0, 8, 2):
                        for op in ("v_fma_f32 v{v}, v{c}, v%d, v{v}" % NM_, "v_mul_f32 v{v}, v{v}, v%d" % RS_, "v_mul_f32 v{t}, v{v}, v{v}", "v_fma_f32 v{t}, v{t}, v%d, v%d" % (KC, KC + 1), "v_mul_f32 v{t}, v{t}, v{v}",
                                   "v_exp_f32 v{t}, v{t}", "v_add_f32 v{t}, 1.0, v{t}", "v_rcp_f32 v{t}, v{t}", "v_mul_f32 v{v}, v{t}, v{v}"): o += [op.format(t=TM + i, v=a + i, c=CS + i) for i in (i0, i0 + 1)]
            else: o = add8(a, a, TM, pk)
            o += [f"v_cvt_pk_bf16_f32 v{TM+8+i}, v{a+2*i}, v{a+2*i+1}" for i in range(4)]
            o += [f"vm:out:buffer_store_dwordx4 {vr(TM+8,4)}, v{L16}, {WSRD}, s66 offen {LS[0] if F.LOCX & 1 or (F.PTD and F.PTK & 1) else 'sc1'}{' nt' if kind in F.SNT else ''}", f"s_add_u32 s66, s66, {ost}", "s_add_u32 s63, s63, 1"]
            if F.PROF: o.append("\n".join(grab(lambda: stamp2(A, ST, "s63", 1, 92 if F.PROF == 1 else 84))))
            return o
        def emit(Z, V, y):
            if y.startswith("ds_"): Z.lds(y, y)
            elif y.startswith("need "): Z.need(y[5:])
            elif y.startswith("vneed "): V.need(y[6:])
            elif y.startswith("vm:"): _, tg, x = y.split(":", 2); V.op(x, tg); tr(5) if tg == "out" else None
            elif y.startswith("vm2:"): _, tg, x = y.split(":", 2); V.op(x, tg); V.q.append([tg]); tr(5) if tg == "out" else None
            elif y == "f2chk": f2chk()
            elif y == "f2br": f2br()
            elif y == "mid":
                b1 = A.newlabel("mb"); b2 = A.newlabel("mk")
                A.e(f"v_cmp_gt_u32 vcc, s71, v{VF}\ns_mov_b32 s72, 0\ns_cbranch_vccz {b1}"); A.label(b2)
                def d():
                    A.label(b1); tr(3)
                    for i in range(KS): A.e(ldA(i))
                    for x in adv: A.e(x)
                    A.e(f"s_mov_b32 s72, 1\ns_branch {b2}")
                tail.append(d)
            else: A.e(y)
        def plan(W, R):
            G = Gaps(NM)
            for n in range(1, NF): G.put(first[n] - 1, "need " + rd(n))
            for n in range(PRE if W else F.BD + 1, NF):
                g = first[max(0, n - D)] if n >= D else n - PRE
                if n <= KS and not W: g = first[n - F.BD] - 1
                if n < KS and W and F.PRG and F.PD: g = max(g, first[max(0, n - F.PD)])
                if n < KS and (F.PRG or not W): G.put(g if not W else max([g] + [j + 1 for j in range(NM) if any(y.startswith("ds_read_b128") for y in G.g[j])]), f"vneed P{n}")
                if n == KS: G.put(g, "s_barrier")
                g = max([g] + [j + 1 for j in range(NM) if any(y.startswith("ds_read_b128") for y in G.g[j])]) if n > KS or W else g
                if n == KS and W: G.g[first[max(0, n - D)]].remove("s_barrier"); G.put(g, "s_barrier")
                G.put(g, rd(n))
            lastrd = max(j for j in range(NM) if any(y.startswith("ds_read_b128") for y in G.g[j]))
            if stats:
                sw = f"ds_write_b64 v{VSW}, {vr(S1,2)}"; srd_ = [f"ds_read_b64 {vr(SP+2*w,2)}, v{VSR} offset:{w*512}" for w in range(4)]
                k = first[KS] + 4
                p_ = G.spread([f"v_cndmask_b32 v{S1+1}, v{S2}, v{S2+1}, s[74:75]", f"v_cndmask_b32 v{S1+1}, v{S1+1}, v{S2+2}, s[76:77]", f"v_cndmask_b32 v{S1+1}, v{S1+1}, v{S2+3}, s[78:79]", sw], k, k + 8)
                k = p_[-1] + F.SB
                G.put(k, "need " + sw, "s_barrier"); p_ = G.spread(srd_, k, k + 10)
                sfin = ["need " + srd_[3]] + grab(sfin_gt if F.GT else lambda: stats_fin(A, SP, NM_, RS_, 1)); ksf = p_[-1] + 6
            if dfr and W:
                o = post(False)
                if ep:
                    for t in range(2): G.put(F.POD + 2 + t * F.SS, o[8 + t])
                    G.spread(o[:4], F.POD, F.POD + 2); G.spread(o[4:8], F.POD + 3, F.POD + 2 + F.SS); G.spread(o[10:], F.POD + 3 + F.SS, F.POD + 12 + F.SS)
                else: G.put(F.POD, o[0]); G.put(F.POD + 1, *o[1:])
                if not F.D3 and not ep: G.put(F.D0, "vneed pk", *f2pre(False)[0], "f2chk")
            if dfr and (F.D3 or not W):
                g1 = F.POD + 1 if W else F.DB1
                for y in f1s: g1 = G.near(g1, y, F.R1) + (y[0] == "v") * F.SB1
            elif sym and not dfr: q1 = F.Q1W if W else F.Q1B; g1 = G.spread(f1s, q1, q1 + 12)[-1]
            if R:
                ns = F.LHI * NM // 64 - F.LLO
                lw = (F.LWD if W else F.LWB) if dfr else F.LWX if sym else F.LW2 if res and F.LW2 else [F.LLO + i * ns // KS for i in range(KS)]
                g = -1
                for i in range(KS):
                    x = ldA(i).split("\n"); g = G.near(max(lw[i], g + len(x)), f"vm:L{i}:" + x[-1], F.R1 and not stats)
                    if len(x) > 1: G.put(g - 1, x[0])
            w2n = res and F.LW2
            if ptd(): G.put(G.near(F.PTG, f"vm:pt:buffer_load_dword v{VD}, v{L16}, {WSRD}, s81 offen") + 1, "s_add_u32 s81, s81, 32768")
            if w2n: G.put(G.near(0, f"vm:res:buffer_load_dwordx4 {vr(RES,4)}, v{L16}, {WSRD}, s82 offen{rsc}", F.R1) + 1, "s_add_u32 s82, s82, 32768")
            if R or not F.QM4: G.near(F.PP2 if w2n and W else (F.PPD if W else F.LWB[-1] + 2) if dfr and R else NM * (F.PPR if R else F.PPN) // 32, "vm:poll:" + pollld, F.R1 and not stats)
            else:
                qm = NM * F.QM4 // 64
                G.near(F.PA, "vm:poll:" + pollld); G.put(qm, "vneed poll", "mid"); G.near(qm + 1, "vm:poll:" + pollld)
            G.spread([need(1, 71), need(2, 53)] + (["s_mov_b32 s57, s63"] if flg and not fin else []), 0, 8)
            if w2n and W and F.FW3: gf = 0
            elif flg and not fin and (stats or not W or w2n): gf = G.near(F.FPB * NM // 64 if not W else F.FW2 if w2n else F.FP4, flag("s57")); G.put(gf, "vneed out")
            so = None
            if W and not dfr:
                o = post(False)
                k = [i for i, x in enumerate(o) if not x.startswith("v_")][0]
                g = G.sched(o[:k], F.PO, F.PHI if stats else F.PO + 12) + 1 if k else F.PO
                if w2n: g = max(g, F.OW2, gf + 1)
                o = o[k:]; pos = G.spread(o, g, g + 5)
                so = [i for i, x in zip(pos, o) if x.startswith(("vm:out", "vm2:out"))]
                if stats: assert so[0] > F.FP4 + 4
                if res and not w2n: G.put(G.near(so[0] + F.FD, flag("s63")), "vneed out")
                if w2n and F.FW3: G.put(G.near(F.FW3, flag("s63")), "vneed out")
            if stats:
                if F.GT:
                    lu = lambda r: max([g + 1 for g in range(NM) for y in G.g[g] if f"v{r}" in y], default=0)
                    assert lu(NM_) <= ksf + 2
                    l2 = max(lu(RS_), lu(K0_), lu(K1_))
                    G.put(ksf, sfin[0]); g = G.sched(sfin[1:12], ksf, NM); G.sched(sfin[12:], max(g + 1, l2), NM)
                else:
                    assert not any(f"v{RS_}" in y for g in range(ksf, NM) for y in G.g[g])
                    G.put(ksf, sfin[0]); G.sched(sfin[1:], ksf, NM)
            if res:
                if not w2n: G.put(G.near(F.LLO - 2, f"vm:res:buffer_load_dwordx4 {vr(RES,4)}, v{L16}, {WSRD}, s82 offen") + 1, "s_add_u32 s82, s82, 32768")
                G.put(F.RSP, "vneed res"); G.sched(grab(lambda: unpack(A, RES, TM, 4)), F.RSP, NM)
            if dfr:
                P = fz(); q = (F.DW2 if F.D3 else F.D0) if W else F.DB2
                def seq(items, g):
                    i = 0
                    while i < len(items):
                        if items[i].startswith("vneed"): g = G.near(g, items[i + 1], F.R1); G.put(g, items[i]); i += 2
                        else: g = G.near(g, items[i], F.R1); i += 1
                        g += 1
                    return g
                if ep:
                    G.put(q, P["head"][0]); q = G.spread(chkv, q, NM, 1)[-1] + 1; G.put(q, "f2br"); G.put(q - 2, *P["head"][1:])
                elif F.D3 or not W: G.put(q, *P["head"], "f2chk")
                np_ = len(f2pre(False)[1]) - (1 if ep else 0); early = W and F.RE
                fl_ = ["vneed out", flag("s63")] if flg else []
                if F.D3:
                    p2_ = G.spread(P["calc"][:2], q + 1, NM, 1); P["calc"] = P["calc"][2:]; np_ -= 2
                    grz = seq(P["rz"], p2_[0] + 1); gf_ = seq(fl_, grz); P["rz"] = []; fl_ = []
                ps_ = G.spread(P["calc"][:np_], q + 1, NM, 1); g2 = seq(P["oad"] + P["book"], q + 1)
                if F.D3: g2 = max(g2, grz, gf_)
                if early: g2 = seq(fres, max(g2, ps_[-1] + 1))
                g = G.spread(P["calc"][np_:], ps_[-1], NM, 1)[-1] + 1
                g2 = max(g2, seq(P["rz"], ps_[0] + 1))
                fo = fl_ + P["out"] + P["cnt"]
                ld_ = f1s + ([] if early else fres); k1 = 1 if ep else 2
                if not W: seq(fo + ["s_mov_b32 s77, 0"], max(g, g2))
                elif F.D3:
                    g3 = seq(fo + ["s_mov_b32 s77, 1"], max(g, gf_))
                    if not R: seq(f1s, max(g2, F.D1N * NM // 64))
                elif F.DL and flg: g2 = seq(ld_[:k1], max(g, g2, F.D1 * NM // 64)); g2 = seq(ld_[k1:], g2 + F.SS - 1); seq(fo + ["s_mov_b32 s77, 1"], g2)
                else: seq(fo + ["s_mov_b32 s77, 1"], max(g, g2)); g2 = seq(ld_[:k1], max(g, g2, F.D1 * NM // 64)); seq(ld_[k1:], g2 + F.SS - 1)
                if not ep: G.put(NM - 2, "vneed rz")
            elif fin:
                q1 = NM * F.Q1 // 64; q2 = NM - F.Q2R if R else q1 + F.Q2N; q0 = F.Q0
                if sym: q1 = F.Q1W if W else F.Q1B; q2 = min(q1 + (F.Q2W if W else F.Q2B), NM - 6); q0 = F.Q0S
                if not sym: G.spread(f1s, q1, q1 + 12)
                p0, p1 = f2pre(False); G.put(q0, *p0); g = G.sched(p1, q0 + 1, q2) + 1
                if sym: g = max(g, g1 + 1)
                if sym:
                    for y in fres: g = G.near(g, y, F.R1) + 1
                else: G.spread(fres, g, g + 8)
                G.put(q2, "vneed pk")
                if flg: G.put(q2, flag("s63"))
                G.put(q2, "f2chk")
            nx = ["s_add_u32 s55, s55, 32768", "s_and_b32 s55, s55, 0x1ffff"] + [f"v_add_u32 v{VRD+x}, s55, v{VRB+x}" for x in range(4)]
            if R:
                nx = adv + nx + ([y for n in range(PRE) for y in (f"vneed L{n}", rd(n))] if F.PRG else [f"vneed L{KS-1}"] + [rd(n) for n in range(PRE)])
            G.spread(nx, lastrd + 1, NM)
            if fin and not dfr: G.spread(f2rest(False), q2 + 1, NM, 1)
            return G
        def vseq(G):
            return [t for x in sum([G.gap(i) for i in range(NM)], []) + G.over if x.startswith("vm") for t in [x.split(":")[1]] * (2 if x.startswith("vm2:") else 1)]
        n_t = len(tail); hs = [vseq(plan(w, True)) for w in (True, False)]; del tail[n_t:]
        def merge(hs):
            aft = {t: min(len(q) - 1 - max(i for i, x in enumerate(q) if x == t) for q in hs if t in q) for t in set(sum(hs, []))}
            h = [[] for _ in range(max(aft.values(), default=-1) + 1)]
            for t, n in aft.items(): h[len(h) - 1 - n].append(t)
            return h
        histR = [[("P" + t[1:] if t[0] == "L" else t) for t in x] for x in merge(hs)]
        histB = [["rs"]] + [[f"P{i}"] for i in range(KS)] + ([[t] for t in (("sn", "sn", "out", "fl", "rs") if ep else ("sn", "sn", "out", "rz", "rz", "fl", "rs"))] if dfr else [["out"], ["fl"]] if F.IPF and not xch else [["sn" if sym else "out"]] * NS)
        def body(W, R):
            G = plan(W, R); i00 = len(A.lines)
            Z = Sched(A); V = VMQ2(A, histR if W else histB)
            on = F.PROF == 2 or (F.PROF == 3 and (W, R) == F.PM); tp = [16, NM // 2] if F.PROF == 2 else [x * NM // 64 for x in F.TP]
            if on: tst(A, 0)
            if W: Z.q = [rd(n) for n in range(PRE)]
            else:
                for n in range(F.BD + 1): V.need(f"P{n}"); Z.lds(rd(n), rd(n))
            Z.need(rd(0))
            tr(8 + 2 * W + R)
            for i, m in enumerate(M):
                if on and i in tp: tst(A, 1 + tp.index(i))
                A.e(m)
                if i == NM - 1: V.need("poll"); A.e(f"v_cmp_gt_u32 vcc, s{53 if R else 71}, v{VF}") if not fin else None
                for y in G.gap(i): emit(Z, V, y)
            for y in G.over: emit(Z, V, y)
            if fin: A.e(f"v_cmp_gt_u32 vcc, s{53 if R else 71}, v{VF}")
            if F.PROF == 2: tst(A, 3); tst(A, 4)
            tr(4)
            A.e("s_add_u32 s60, s60, 1")
            if on and F.PROF == 3:
                sk = A.newlabel("pu"); tst(A, 5); A.e(f"s_cmp_le_u32 s60, {F.PU0}\ns_cbranch_scc1 {sk}\ns_mov_b32 s49, s97"); tacc(A, 6); A.e("s_add_u32 s97, s49, 1"); A.label(sk)
            elif on: tst(A, 5); tacc(A, 6)
            if W and R and F.DROP:
                import re
                A.lines[i00:] = [x for x in A.lines[i00:] if not any(re.search(p, x) for p in F.DROP)]
            return V
        WR, WN, BR, BN, lag, dec, nb = [A.newlabel(x) for x in ("WR", "WN", "BR", "BN", "lag", "dec", "nb")]
        if kind in F.HOLD: A.e("s_mov_b32 s71, 128"); poll_loop(A, pollld, VF, 71, 32)
        if ptd():
            A.e("s_mov_b32 s81, s66")
            for _ in range(F.PTD): A.e(f"buffer_load_dword v{VD}, v{L16}, {WSRD}, s81 offen\ns_add_u32 s81, s81, 32768")
        A.e(need(0, 71)); A.e(need(1, 53))
        poll_loop(A, pollld, VF, 71)
        A.label(lag); pc(0); tr(1)
        for i in range(KS): A.e(ldA(i))
        for x in adv: A.e(x)
        for _ in range(NS): A.e(dummy)
        A.label(dec)
        A.e(f"v_cmp_gt_u32 vcc, s53, v{VF}\ns_cbranch_vccnz {BN}")
        A.label(BR); pc(4); body(False, True); A.e(f"s_cbranch_vccnz {WN}")
        if F.GAL >= 0: A.lines += [".p2align 6"] + ["    s_nop 0"] * F.GAL
        A.label(WR); pc(3); body(True, True); A.e(f"s_cbranch_vccz {WR}")
        endN = A.newlabel("endN")
        A.label(WN); pc(2); VW_ = body(True, False); A.e(f"s_branch {endN}")
        A.label(BN); pc(1); VB_ = body(False, False)
        A.label(endN)
        hist = merge([[t[0] if t else "x" for t in V_.q[V_.done + 1:]] for V_ in (VW_, VB_)])
        mk = lambda: VMQ2(A, hist)
        def fza(V, pre, mid=[]):
            Z = Sched(A); P = fz()
            for x in V.q:
                if "out" in x: x[x.index("out")] = "po"
            for x in pre + P["head"] + ["f2chk"] + mid + P["calc"] + P["oad"] + P["out"] + P["rz"] + P["book"] + (["vneed po", flag("s63")] if flg else []) + P["cnt"]: emit(Z, V, x)
        def ipost(V, pk=True):
            Z = Sched(A); o = post(pk)
            if dfr:
                fza(V, o); A.e("s_mov_b32 s77, 1")
                for x in fres: emit(Z, V, x)
                return
            if F.IPF and not xch:
                for x in V.q:
                    if "out" in x: x[x.index("out")] = "po"
                A.e("s_mov_b32 s57, s63")
                for x in o: emit(Z, V, x)
                V.need("po"); emit(Z, V, flag("s57"))
                return
            k = 12 if stats and "out" in sum(hist, []) else len(o)
            for x in o[:k]: emit(Z, V, x)
            if k < len(o): V.need("out"); emit(Z, V, flag("s63"))
            for x in o[k:]: emit(Z, V, x)
        if F.QM4:
            nm_ = A.newlabel("nm")
            A.e(f"s_cmp_eq_u32 s72, 0\ns_cbranch_scc1 {nm_}\ns_nop 3"); ipost(mk()); A.e(f"s_branch {dec}"); A.label(nm_)
        A.e(f"s_cbranch_vccnz {nb}")
        pc(7); tr(2); V = mk()
        for i in range(KS): V.op(ldA(i), f"L{i}")
        for x in adv: A.e(x)
        ipost(V)
        A.e(f"s_branch {dec}")
        A.label(nb)
        V = mk()
        if not fin: V.op(pollld, "poll")
        A.e("s_nop 3")
        ipost(V, 2)
        Z = Sched(A)
        if dfr:
            if F.FDL: A.e(f"s_sleep {F.FDL}")
            fza(V, f1s, ["vm:poll:" + pollld]); A.e("s_mov_b32 s77, 0")
            V.need("out" if flg else "poll")
        elif fin:
            if F.FDL: A.e(f"s_sleep {F.FDL}")
            for x in f1s + sum(f2pre(True, FIN), []) + ["vneed pk"] + ([flag("s63")] if flg else []) + ["f2chk", "vm:poll:" + pollld] + f2rest(True): emit(Z, V, x)
            V.need("out" if flg else "poll")
        else:
            V.need("poll"); A.e(f"v_cmp_gt_u32 vcc, s71, v{VF}\ns_cbranch_vccz {lag}")
            if flg: V.need("out")
        if flg: emit(Z, V, flag("s63"))
        if fin: A.e(f"v_cmp_gt_u32 vcc, s71, v{VF}\ns_cbranch_vccz {lag}")
        A.e(f"s_cmp_ge_u32 s60, {NU}\ns_cbranch_scc1 {done}")
        dp = A.newlabel("dp"); dk = A.newlabel("dk")
        if dpl: A.e(f"s_cmp_ge_u32 s60, s80\ns_cbranch_scc1 {dp}")
        pc(5)
        if F.PPI and kind in F.PPK: poll_pipe(A, pollld, VF, [28, 29, 30, 31][:F.PPI], 71, lag)
        else: poll_loop(A, pollld, VF, 71); A.e(f"s_branch {lag}")
        if dpl:
            def dma(sc):
                for i in range(KS): A.e(ldA(i).replace(" lds", sc + " lds"))
                A.e(f"v_add_u32 v{XW+8}, s70, v{L16}")
                for i in range(KS): A.e(f"s_waitcnt vmcnt({KS-1-i})\nds_read_b32 v{XW+i}, v{XW+8} offset:{i*1024}")
                A.e(f"s_waitcnt lgkmcnt(2)\nv_max3_u32 v{XW}, v{XW}, v{XW+1}, v{XW+2}\nv_max3_u32 v{XW}, v{XW}, v{XW+3}, v{XW+4}\ns_waitcnt lgkmcnt(0)\nv_max3_u32 v{XW}, v{XW}, v{XW+5}, v{XW+6}")
                if KS == 8: A.e(f"v_max_u32 v{XW}, v{XW}, v{XW+7}")
                A.e(f"v_cmp_eq_u32 vcc, -1, v{XW}\ns_cbranch_vccz {dk}")
            A.label(dp); tr(1)
            if kind in F.DT2:
                l1 = A.newlabel("dq"); l2 = A.newlabel("dg"); dp = A.newlabel("dr")
                A.e(f"v_min_u32 v{XW+9}, {KS-1}, v1\nv_lshlrev_b32 v{XW+9}, 10, v{XW+9}")
                A.label(l1)
                A.e(f"buffer_load_dword v{XW}, v{XW+9}, {WSRD}, s61 offen offset:1008 sc1\ns_waitcnt vmcnt(0)\nv_cmp_eq_u32 vcc, -1, v{XW}\ns_cbranch_vccz {l2}\ns_sleep {F.DTS2}\ns_sub_u32 s90, s90, 1\ns_cmp_gt_i32 s90, 0\ns_cbranch_scc1 {l1}")
                A.label(l2); dma(""); A.label(dp)
            dma(" sc1")
            if F.DTS: A.e(f"s_sleep {F.DTS}")
            A.e(f"s_sub_u32 s90, s90, 1\ns_cmp_gt_i32 s90, 0\ns_cbranch_scc1 {dp}")
            A.label(dk)
            for x in adv: A.e(x)
            A.e(f"s_branch {dec}")
    if F.PROF:
        for r in ST: A.e(f"v_mov_b32 v{r}, 0")
        A.e(f"s_memrealtime s[84:85]\ns_waitcnt lgkmcnt(0)\nv_writelane_b32 v{ST[2]}, s84, 0\nv_writelane_b32 v{ST[2]}, s86, 1")
    tinit(A)
    if F.TRU: A.e("s_mov_b32 s94, 0")
    if sym: loop(True)
    elif xch:
        lf = A.newlabel("lfin")
        A.e(f"s_cmp_eq_u32 s50, s52\ns_cbranch_scc1 {lf}")
        loop(False); A.label(lf); loop(True)
    elif kind == "w1" and F.LOC & 1:
        lf = A.newlabel("lfar")
        A.e(f"s_cmp_eq_u32 s56, 1\ns_cbranch_scc1 {lf}")
        LS[0] = ""; loop(False)
        while tail: tail.pop(0)()
        A.label(lf); LS[0] = "sc1"; loop(False)
    else: loop(False)
    while tail: tail.pop(0)()
    A.label(done)
    tout(A, ST[2]); stamp_out(A, ST)
    A.e("s_endpgm")

def stamp2(A, ST, s="s60", sub=0, sr_=84):
    if not F.PROF or F.TRU or F.PROF == 3: return
    l1 = A.newlabel("st1"); l2 = A.newlabel("st2"); l3 = A.newlabel("st3"); l4 = A.newlabel("st4")
    if F.SPS and F.PROF == 1: A.e(f"s_sub_u32 s88, {s}, {sub + 4}\ns_cmp_ge_u32 s88, 116\ns_cbranch_scc1 {l4}\ns_and_b32 s88, s88, 7\ns_cmp_lg_u32 s88, 4\ns_cbranch_scc1 {l3}"); A.label(l4)
    A.e(f"s_memrealtime s[{sr_}:{sr_+1}]\ns_sub_u32 s88, {s}, {sub}\ns_lshr_b32 s89, s88, 1\ns_mov_b32 s87, m0\ns_mov_b32 m0, s89\ns_waitcnt lgkmcnt(0)\ns_bitcmp1_b32 s88, 0\ns_cbranch_scc1 {l1}\nv_writelane_b32 v{ST[0]}, s{sr_}, m0\ns_branch {l2}")
    A.label(l1); A.e(f"v_writelane_b32 v{ST[1]}, s{sr_}, m0"); A.label(l2); A.e("s_mov_b32 m0, s87"); A.label(l3); A.e("s_nop 3")

def ln_role(A, L):
    R = dict(RM=8, CO=9, FR=10, SW=11, SR=12); VFA, VF, VT = 13, 14, 15
    C1, SB = 32, 48; BUF = (64, 72); V = 80; T = 96; PK = 112; ST = (120, 121, 122)
    done = A.newlabel("done")
    A.e("s_mov_b32 s52, s59\ns_mov_b32 s60, 0\ns_mov_b32 s73, 0xffff0000")
    row_lanes(A, 52, R)
    A.e(f"v_and_b32 v{VFA}, {31 if F.SYM and F.K3 == 2 else 7}, v1\nv_lshlrev_b32 v{VFA}, 2, v{VFA}")
    verify(A, L, False, "mod")
    load_consts(A, R, 4, C1, 64, True); load_consts(A, R, 3, SB, 64)
    if "ln2" in F.OFF: A.e("s_endpgm")
    A.e(f"""
    s_mov_b32 s63, {X1}
    s_mov_b32 s66, {H2}
    s_lshl_b32 s64, s50, 8
    s_add_u32 s68, s64, {F_WO}
    s_lshl_b32 s65, s59, 2
    s_add_u32 s69, s64, s65
    s_add_u32 s69, s69, {F_LN}""")
    VFL = 16
    if F.LOC & 2: A.e(f"s_lshl_b32 s64, s50, 9\ns_lshl_b32 s65, s59, 7\ns_add_u32 s69, s64, s65\ns_add_u32 s69, s69, {F_LNL}\nv_lshlrev_b32 v{VFL}, 2, v1\nv_cmp_gt_u32 vcc, 32, v1\nv_cndmask_b32 v{VFL}, 2.0, v{VFL}, vcc")
    NS = 2
    def loads(par):
        A.e(f"s_add_u32 s64, s63, 4096\nbuffer_load_dwordx4 {vr(BUF[par],4)}, v{R['FR']}, {WSRD}, s63 offen\nbuffer_load_dwordx4 {vr(BUF[par]+4,4)}, v{R['FR']}, {WSRD}, s64 offen\ns_add_u32 s63, s63, 32768")
    pollld = f"buffer_load_dword v{VF}, v{VFA}, {WSRD}, s68 offen sc1"
    def dummies():
        for _ in range(NS): A.e(f"buffer_load_dword v{VT}, off, {WSRD}, s68")
    if F.PROF:
        for r in ST: A.e(f"v_mov_b32 v{r}, 0")
    def lnloop(ls):
        ld_ = ls if F.LOCX & 1 else "sc1"
        top = [A.newlabel("top0"), A.newlabel("top1")]
        def flag_store(A, vt, sval, saddr):
            if F.LOC & 2: A.e(f"v_mov_b32 v{vt}, {sval}\nbuffer_store_dword v{vt}, v{VFL}, {WSRD}, s{saddr} offen {ls}")
            else: A.e(f"v_mov_b32 v{vt}, {sval}\ns_mov_b64 exec, 1\nbuffer_store_dword v{vt}, off, {WSRD}, s{saddr} {ls}\ns_mov_b64 exec, -1")
        A.e("s_mov_b32 s71, 1")
        poll_loop(A, pollld, VF, 71)
        loads(0); dummies()
        tail = []
        for par in range(2):
            slowp = A.newlabel("slowp"); p2 = A.newlabel("p2")
            A.label(top[par])
            A.e(pollld)
            A.e(f"s_add_u32 s71, s60, 2\ns_waitcnt vmcnt({NS+1})")
            unpack(A, BUF[par], V, 8)
            i0 = len(A.lines); ln_core(A, V, C1, SB, T, R, par * 2048, PK); body = A.lines[i0:]; del A.lines[i0:]
            k = [i for i, x in enumerate(body) if "s_barrier" in x][0]
            A.lines += body[:k + 1]
            A.e("s_waitcnt vmcnt(0)"); flag_store(A, VT, "s60", 69)
            A.e(f"v_cmp_gt_u32 vcc, s71, v{VF}\ns_mov_b32 s72, 0\ns_cbranch_vccnz {p2}\ns_mov_b32 s72, 1")
            loads(par ^ 1)
            A.label(p2)
            A.lines += body[k + 1:]
            A.e(f"s_add_u32 s64, s66, 4096\nbuffer_store_dwordx4 {vr(PK,4)}, v{R['FR']}, {WSRD}, s66 offen {ld_}\nbuffer_store_dwordx4 {vr(PK+4,4)}, v{R['FR']}, {WSRD}, s64 offen {ld_}")
            stamp(A, ST[par])
            A.e(f"s_add_u32 s66, s66, 32768\ns_add_u32 s60, s60, 1\ns_cmp_eq_u32 s72, 0\ns_cbranch_scc1 {slowp}")
            if par: A.e(f"s_branch {top[0]}")
            def d(par=par, slowp=slowp):
                A.label(slowp)
                A.e(pollld)
                A.e("s_waitcnt vmcnt(1)"); flag_store(A, VT, "s60", 69)
                go = A.newlabel("go")
                A.e(f"s_cmp_ge_u32 s60, {NU}\ns_cbranch_scc1 {done}\ns_waitcnt vmcnt(1)\nv_cmp_gt_u32 vcc, s71, v{VF}\ns_cbranch_vccz {go}")
                poll_loop(A, pollld, VF, 71)
                A.label(go)
                loads(par ^ 1); dummies()
                A.e(f"s_branch {top[par^1]}")
            tail.append(d)
        for d in tail: d()
    def lndp(ls):
        pt_ = F.PTD and F.PTK & 2 and ls == ""; ld_ = ls if F.LOCX & 1 or pt_ else "sc1"; W2 = 4 if pt_ else 2
        def pt(k): A.e(f"s_add_u32 s64, s66, {k*32768}\nbuffer_load_dword v{VT+2}, v{R['FR']}, {WSRD}, s64 offen\ns_add_u32 s64, s64, 4096\nbuffer_load_dword v{VT+2}, v{R['FR']}, {WSRD}, s64 offen")
        top = [A.newlabel("top0"), A.newlabel("top1")]; tail = []
        def flag_(): A.e((f"s_min_u32 s65, s60, {NU - F.DT}\nv_mov_b32 v{VT}, s65" if F.DT and "w1" in F.DTK else f"v_mov_b32 v{VT}, s60") + f"\nbuffer_store_dword v{VT}, v{VFL}, {WSRD}, s69 offen {ls}")
        def ld(par): A.e(f"s_add_u32 s64, s63, 4096\nbuffer_load_dwordx4 {vr(BUF[par],4)}, v{R['FR']}, {WSRD}, s63 offen sc1\nbuffer_load_dwordx4 {vr(BUF[par]+4,4)}, v{R['FR']}, {WSRD}, s64 offen sc1")
        def chk(par):
            b = BUF[par]
            A.e(f"v_max3_u32 v{VF}, v{b}, v{b+1}, v{b+2}\nv_max3_u32 v{VFA}, v{b+3}, v{b+4}, v{b+5}\nv_max3_u32 v{VF}, v{VF}, v{b+6}, v{b+7}\nv_max_u32 v{VF}, v{VF}, v{VFA}\nv_cmp_eq_u32 vcc, -1, v{VF}")
        if pt_:
            for k in range(F.PTD - 1): pt(k)
        ld(0); dummies()
        if pt_: pt(F.PTD - 1)
        for par in range(2):
            rt = A.newlabel("rt"); go = A.newlabel("go"); lp = A.newlabel("lp")
            A.label(top[par])
            A.e(f"s_waitcnt vmcnt({W2})"); chk(par)
            A.e(f"s_cbranch_vccnz {rt}"); A.label(go)
            A.e("s_add_u32 s63, s63, 32768"); ld(par ^ 1)
            unpack(A, BUF[par], V, 8)
            i0 = len(A.lines); ln_core(A, V, C1, SB, T, R, par * 2048, PK); body = A.lines[i0:]; del A.lines[i0:]
            k = [i for i, x in enumerate(body) if "s_barrier" in x][0]
            A.lines += body[:k + 1]
            A.e(f"s_waitcnt vmcnt({W2})"); flag_()
            A.lines += body[k + 1:]
            A.e(f"s_add_u32 s64, s66, 4096\nbuffer_store_dwordx4 {vr(PK,4)}, v{R['FR']}, {WSRD}, s66 offen {ld_}\nbuffer_store_dwordx4 {vr(PK+4,4)}, v{R['FR']}, {WSRD}, s64 offen {ld_}")
            if pt_: pt(F.PTD)
            stamp(A, ST[par])
            A.e(f"s_add_u32 s66, s66, 32768\ns_add_u32 s60, s60, 1")
            if par: A.e(f"s_cmp_lt_u32 s60, {NU}\ns_cbranch_scc1 {top[0]}\ns_waitcnt vmcnt(0)"); flag_(); A.e(f"s_branch {done}")
            def d(par=par, rt=rt, go=go, lp=lp):
                A.label(rt)
                ld(par); A.e(f"s_waitcnt vmcnt({W2})"); flag_(); A.e("s_waitcnt vmcnt(1)"); chk(par)
                A.e(f"s_cbranch_vccz {go}")
                A.label(lp)
                if F.DPS: A.e(f"s_sleep {F.DPS}")
                ld(par); A.e("s_waitcnt vmcnt(0)"); chk(par)
                A.e(f"s_cbranch_vccz {go}\ns_sub_u32 s90, s90, 1\ns_cmp_gt_i32 s90, 0\ns_cbranch_scc1 {lp}\ns_branch {go}")
            tail.append(d)
        for d in tail: d()
    fn = lndp if F.DP else lnloop
    if F.DP: assert F.LOC & 2
    if F.LOC & 2:
        lf = A.newlabel("lfar")
        A.e(f"s_cmp_eq_u32 s56, 1\ns_cbranch_scc1 {lf}")
        fn(""); A.label(lf)
    fn("sc1")
    A.label(done)
    stamp_out(A, ST)
    A.e("s_endpgm")

def att_role(A, L, team=False):
    NUA = NU - 2 * F.AT
    L16, VFA, VKM, VVM, VF, VT, VNEG = 0, 2, 3, 4, 5, 6, 7
    KM, VM, SA, SM, P, TT, OA, PK = 16, 32, 48, 56, 64, 72, 80, 112; ST = (120, 121, 122)
    Q = lambda b, ke: ar(b * 80 + ke * 4, 4)
    K = lambda b, kt, ke: ar(b * 80 + 16 + (kt * 4 + ke) * 4, 4)
    V = lambda b, et: ar(b * 80 + 48 + et * 4, 4)
    if team: A.e(f"s_lshr_b32 s46, s59, 4\ns_and_b32 s59, s59, 15\nv_mbcnt_lo_u32_b32 v1, -1, 0\nv_mbcnt_hi_u32_b32 v1, -1, v1")
    else: verify(A, L, True)
    A.e(f"""
    v_lshlrev_b32 v{L16}, 4, v1
    v_and_b32 v21, 15, v1
    v_lshrrev_b32 v22, 4, v1
    v_and_b32 v23, 7, v21
    v_lshlrev_b32 v23, 4, v23
    v_lshl_add_u32 v{VKM}, v22, 8, v23
    v_and_b32 v23, 31, v1
    v_lshlrev_b32 v{VVM}, 4, v23
    v_and_b32 v23, 3, v1
    v_bfe_u32 v24, v1, 2, 1
    v_lshlrev_b32 v23, 14, v23
    v_lshl_add_u32 v{VFA}, v24, 7, v23
    v_mov_b32 v{VNEG}, {NEG:#x}
    s_and_b32 s54, s50, 1
    s_lshl_b32 s64, s54, 4
    v_lshlrev_b32 v23, 2, v22
    v_sub_u32 v23, v21, v23
    v_add_u32 v23, s64, v23            ; query - 4g""")
    for kt in range(2):
        for r in range(4): A.e(f"v_cmp_le_i32 s[{28+2*(kt*4+r)}:{29+2*(kt*4+r)}], {16*kt+r}, v23")
    A.e(f"""
    s_mov_b32 s44, -1
    s_mov_b32 s45, 0
    s_mov_b32 s80, {f2u(SCL):#x}
    s_lshl_b32 s52, s59, 1
    s_lshr_b32 s64, s50, 1
    s_add_u32 s52, s52, s64            ; head
    s_lshl_b32 s53, s52, 15            ; 2h * 16KB
    s_lshl_b32 s68, s52, 8
    s_add_u32 s68, s68, s67
    s_add_u32 s68, s68, {F_KVM}
    s_lshl_b32 s69, s59, 8
    s_lshl_b32 s64, s64, 2
    s_add_u32 s69, s69, s64
    s_lshl_b32 s64, s54, 3
    s_add_u32 s69, s69, s64
    s_add_u32 s69, s69, {F_ATT}
    s_lshl_b32 s66, s52, 12
    s_lshl_b32 s64, s54, 17
    s_add_u32 s66, s66, s64
    s_add_u32 s66, s66, {OB}
    s_lshl_b32 s55, s54, 10
    s_xor_b32 s55, s55, 0x2000
    s_mov_b32 s60, 0                   ; 2 * segment""")
    def near(dst, add):
        A.e(f"""
        s_add_u32 s64, s60, {2*add}
        s_lshl_b32 s65, s64, 11
        s_and_b32 s65, s65, 0x2000
        s_xor_b32 s65, s65, s67
        s_lshl_b32 s64, s64, 19
        s_add_u32 s64, s64, s65
        s_add_u32 s{dst}, s64, s53""")
    def kq_loads(b, add):
        near(92, add)
        A.e("s_add_u32 s93, s92, 16384\ns_add_u32 s94, s92, 4096\ns_add_u32 s95, s93, 4096\ns_xor_b32 s96, s92, s55\ns_xor_b32 s97, s93, s55")
        for ke in range(4):
            A.e(f"buffer_load_dwordx4 {Q(b,ke)}, v{L16}, {WSRD}, s{96+(ke>>1)} offen offset:{(ke&1)*2048}{' nt' if 'q' in F.LNT else ''}")
            for kt in range(2): A.e(f"buffer_load_dwordx4 {K(b,kt,ke)}, v{L16}, {WSRD}, s{92+(ke>>1)} offen offset:{(ke&1)*2048 + kt*1024}{' nt' if 'k' in F.LNT else ''}")
    def v_loads(b):
        for et in range(8): A.e(f"buffer_load_dwordx4 {V(b,et)}, v{L16}, {WSRD}, s{94+(et>>2)} offen offset:{(et&3)*1024}{' nt' if 'v' in F.LNT else ''}")
    def softmax(vals):
        mx, t, sm, r = TT, TT + 1, TT + 2, TT + 3
        A.e(f"v_max3_f32 v{mx}, v{mx}, v{vals[8]}, v{vals[9]}\nv_max3_f32 v{mx}, v{mx}, v{vals[10]}, v{vals[11]}")
        for sw in ("v_permlane16_swap_b32", "v_permlane32_swap_b32"): A.e(f"v_mov_b32 v{t}, v{mx}\n{sw} v{t}, v{mx}\nv_max_f32 v{mx}, v{mx}, v{t}")
        A.e(f"v_mul_f32 v{mx}, s80, v{mx}")
        for v in vals: A.e(f"v_fma_f32 v{v}, v{v}, s80, -v{mx}")
        for v in vals: A.e(f"v_exp_f32 v{v}, v{v}")
        A.e(f"v_add_f32 v{sm}, v{vals[0]}, v{vals[1]}\nv_add_f32 v{r}, v{vals[2]}, v{vals[3]}")
        for i in range(4, 12, 2): A.e(f"v_add_f32 v{sm}, v{sm}, v{vals[i]}\nv_add_f32 v{r}, v{r}, v{vals[i+1]}")
        A.e(f"v_add_f32 v{sm}, v{sm}, v{r}")
        for sw in ("v_permlane16_swap_b32", "v_permlane32_swap_b32"): A.e(f"v_mov_b32 v{t}, v{sm}\n{sw} v{t}, v{sm}\nv_add_f32 v{sm}, v{sm}, v{t}")
        A.e(f"v_rcp_f32 v{r}, v{sm}")
        for v in vals: A.e(f"v_mul_f32 v{v}, v{v}, v{r}")
        for i in range(6): A.e(f"v_cvt_pk_bf16_f32 v{P+i}, v{vals[2*i]}, v{vals[2*i+1]}")
    pollld = f"buffer_load_dword v{VF}, v{VFA}, {WSRD}, s68 offen sc1"
    if F.PROF:
        for r in ST: A.e(f"v_mov_b32 v{r}, 0")
    if team:
        A.e(f"""
        s_lshl_b32 s60, s46, 1
        s_add_u32 s60, s60, {NUA}
        s_lshl_b32 s64, s60, 17
        s_add_u32 s66, s66, s64
        s_lshl_b32 s47, s52, 7
        s_add_u32 s47, s47, s67
        s_add_u32 s47, s47, {F_QKV}
        v_and_b32 v23, 1, v1
        v_lshlrev_b32 v23, 6, v23
        s_mov_b32 s71, {NSEG}""")
        poll_loop(A, f"buffer_load_dword v{VF}, v23, {WSRD}, s47 offen sc1", VF, 71, 16)
    else:
        for k in range(F.AT): A.e(f"s_add_u32 s64, s69, {16*(k+1)}"); flag_store(A, VT, NUA + 2 * k, 64)
        A.e("s_mov_b32 s71, 1")
        poll_loop(A, pollld, VF, 71, F.ASL)
    avl = F.AVL and not team
    kq_loads(0, 0)
    if not avl: v_loads(0)
    A.e(f"s_waitcnt vmcnt({0 if avl else 8})")
    top = [A.newlabel("top0"), A.newlabel("top1")]
    for b in range(1 if team else 2):
        A.label(top[b])
        for ke in range(4):
            for kt in range(2):
                d = vr(SA + 4 * kt, 4); A.e(f"{MF} {d}, {K(b,kt,ke)}, {Q(b,ke)}, {d if ke else 0}")
        for i in range(8): A.e(f"v_cndmask_b32 v{SA+i}, v{VNEG}, v{SA+i}, s[{28+2*i}:{29+2*i}]")
        A.e(f"v_max3_f32 v{TT}, v{SA}, v{SA+1}, v{SA+2}\nv_max3_f32 v{TT}, v{TT}, v{SA+3}, v{SA+4}\nv_max3_f32 v{TT}, v{TT}, v{SA+5}, v{SA+6}\nv_max_f32 v{TT}, v{TT}, v{SA+7}")
        near(98, 0)
        if team:
            A.e(f"s_mov_b32 s71, {F.ATP}"); poll_loop(A, f"buffer_load_dword v{VF}, off, {WSRD}, s69 sc1", VF, 71, 32)
            A.e("s_lshl_b32 s64, s46, 4\ns_add_u32 s69, s69, s64\ns_add_u32 s69, s69, 16")
        A.e(f"s_add_u32 s98, s98, {KVM}\ns_add_u32 s99, s98, 16384\ns_lshr_b32 s71, s60, 1\ns_add_u32 s71, s71, 1")
        ek = A.newlabel("ek")
        if F.APE and not team: A.e(f"s_waitcnt vmcnt(1)\nv_cmp_gt_u32 vcc, s71, v{VF}\ns_cbranch_vccz {ek}")
        kd = A.newlabel("kd"); kj = A.newlabel("kj")
        if team and F.KDP: A.e(f"s_min_u32 s71, s71, {NSEG-1}")
        poll_loop(A, pollld, VF, 71, F.ASL)
        if team and F.KDP: A.e(f"s_cmp_eq_u32 s60, {NU-2}\ns_cbranch_scc1 {kd}")
        A.label(ek)
        for ke in range(4): A.e(f"buffer_load_dwordx4 {vr(KM+4*ke,4)}, v{VKM}, {WSRD}, s{98+(ke>>1)} offen offset:{(ke&1)*128}")
        if avl: v_loads(b)
        for ke in range(4): A.e(f"buffer_load_dwordx4 {vr(VM+4*ke,4)}, v{VVM}, {WSRD}, s{98+(ke>>1)} offen offset:{1024 + (ke&1)*512}")
        if team and F.KDP:
            A.e(f"s_branch {kj}"); A.label(kd)
            for ke in range(4): A.e(f"buffer_load_dwordx4 {vr(KM+4*ke,4)}, v{VKM}, {WSRD}, s{98+(ke>>1)} offen offset:{(ke&1)*128} sc1")
            for ke in range(4): A.e(f"buffer_load_dwordx4 {vr(VM+4*ke,4)}, v{VVM}, {WSRD}, s{98+(ke>>1)} offen offset:{1024 + (ke&1)*512} sc1")
            A.e("s_waitcnt vmcnt(4)")
            for i in range(2): A.e(f"v_max3_u32 v{VF+i}, v{KM+8*i}, v{KM+8*i+1}, v{KM+8*i+2}")
            for q in range(13):
                if q == 4: A.e("s_waitcnt vmcnt(0)")
                r = [KM + 3, KM + 5, KM + 11, KM + 13, VM, VM + 2, VM + 4, VM + 6, VM + 8, VM + 10, VM + 12, VM + 14][q] if q < 12 else None
                if r: A.e(f"v_max3_u32 v{VF+(q&1)}, v{VF+(q&1)}, v{r}, v{r+1}")
            A.e(f"v_max3_u32 v{VF}, v{VF}, v{KM+7}, v{KM+15}\nv_max_u32 v{VF}, v{VF}, v{VF+1}\nv_cmp_eq_u32 vcc, -1, v{VF}\ns_cbranch_vccz {kj}\ns_sleep {F.KDP}\ns_sub_u32 s90, s90, 1\ns_cmp_gt_i32 s90, 0\ns_cbranch_scc1 {kd}")
            A.label(kj)
        stamp(A, ST[2])
        if F.PROF: A.e(f"s_memtime s[84:85]\ns_waitcnt lgkmcnt(0)\nv_writelane_b32 v{ST[1]}, s84, m0")
        if F.ABAR and not team: A.e("s_barrier")
        def guarded(f, n):
            if team: return
            if b == 0: return f()
            pf = A.newlabel("pf"); j1 = A.newlabel("j1")
            A.e(f"s_cmp_lt_u32 s60, {NUA-2}\ns_cbranch_scc1 {pf}\ns_waitcnt vmcnt({n})\ns_branch {j1}")
            A.label(pf); f(); A.label(j1)
        guarded(lambda: kq_loads(b ^ 1, 1), 0)
        A.e(f"s_waitcnt vmcnt({4 if team else 24 if avl else 16})")
        for ke in range(4): A.e(f"{MF} {vr(SM,4)}, {vr(KM+4*ke,4)}, {Q(b,ke)}, {vr(SM,4) if ke else 0}")
        for r in range(4): A.e(f"v_cndmask_b32 v{SM+r}, v{VNEG}, v{SM+r}, s[44:45]")
        softmax(list(range(SA, SA + 12)))
        for et in range(8):
            if avl and et % 2 == 0: A.e(f"s_waitcnt vmcnt({22 - et})")
            A.e(f"{MF} {vr(OA+4*et,4)}, {V(b,et)}, {vr(P,4)}, 0")
        A.e(f"s_waitcnt vmcnt({0 if team else 12})")
        for et in range(8): A.e(f"v_mfma_f32_16x16x16_bf16 {vr(OA+4*et,4)}, {vr(VM+2*et,2)}, {vr(P+4,2)}, {vr(OA+4*et,4)}")
        for ke in range(4):
            o = PK + 4 * (ke & 1)
            for i in range(4): A.e(f"v_cvt_pk_bf16_f32 v{o+i}, v{OA+8*ke+2*i}, v{OA+8*ke+2*i+1}")
            A.e(f"buffer_store_dwordx4 {vr(o,4)}, v{L16}, {WSRD}, s66 offen offset:{ke*1024} sc1{' nt' if 'att' in F.SNT else ''}")
        stamp(A, ST[0])
        if team:
            A.e("s_waitcnt vmcnt(0)"); flag_store(A, VT, NU, 69); break
        if F.ABAR and not avl: A.e("s_barrier")
        if not avl: guarded(lambda: v_loads(b ^ 1), 0)
        if F.APE: A.e(pollld)
        A.e("s_add_u32 s66, s66, 262144\ns_add_u32 s60, s60, 2\ns_add_u32 s72, s60, s54")
        if b and F.AT: A.e(f"s_cmp_eq_u32 s60, {NUA}\ns_cselect_b32 s72, {NU}, s72")
        A.e(f"s_waitcnt vmcnt({(0 if avl else 8) + F.APE})"); flag_store(A, VT, "s72", 69)
        if b: A.e(f"s_cmp_lt_u32 s60, {NUA}\ns_cbranch_scc1 {top[0]}")
    if F.PROF and F.AT:
        if team: A.e("s_add_u32 s58, s59, 224\ns_lshr_b32 s64, s60, 1\ns_lshl_b64 s[48:49], 1, s64")
        else: A.e(f"s_mov_b32 s48, -1\ns_mov_b32 s49, {(1 << (NUA // 2 - 32)) - 1:#x}")
        i0 = len(A.lines); stamp_out(A, ST); k = [i for i in range(i0, len(A.lines)) if "buffer_store" in A.lines[i]][0]
        A.lines.insert(k, "    s_mov_b64 exec, s[48:49]")
    else: stamp_out(A, ST)
    A.e("s_endpgm")

def flow_kernel(A, name):
    A.begin_kernel(name)
    L = {k: f"fl_{k}" for k in ("fb", "disp0", "disp", "rec", "qkv", "wo", "w4", "w3", "att", "ln2", "w1", "w2", "dutb", "att2")}
    done = A.newlabel("done"); nr = A.newlabel("norole")
    A.e(f"s_cmp_ge_u32 s2, 256\ns_cbranch_scc1 {done}\ns_lshr_b32 s49, s2, 3")
    ldptr(A, 18, "ws"); ldptr(A, 2, "dbg")
    if F.KW: ldptr(A, 4, "x")
    A.e(f"""
    s_getreg_b32 s51, hwreg(HW_REG_XCC_ID)
    v_lshrrev_b32 v2, 6, v0
    v_and_b32 v1, 63, v0
    s_and_b32 s51, s51, 7
    v_readfirstlane_b32 s50, v2
    s_mov_b32 s90, {F.BUD}
    s_mov_b32 s56, 2
    s_mov_b32 s88, {CB0}
    s_lshl_b32 s64, s51, 2
    s_lshr_b32 s64, {F.XMAP:#x}, s64
    s_and_b32 s64, s64, 7
    s_lshl_b32 s58, s64, 5
    s_add_u32 s58, s58, s49""")
    if F.PROF: A.e("s_memrealtime s[86:87]")
    A.e("s_waitcnt lgkmcnt(0)")
    A.srd(20, 18, WS_BYTES)
    A.e(f"s_cmp_lg_u32 s50, 0\ns_cbranch_scc1 {L['disp0']}")
    dbg_srd(A, 92)
    A.e(f"""
    s_lshl_b32 s64, 1, s49
    v_mov_b32 v2, s64
    v_mov_b32 v3, 0x100
    s_lshl_b32 s64, s51, 3
    s_mov_b64 exec, 1
    buffer_atomic_add_x2 v[2:3], off, s[92:95], s64 sc1
    s_mov_b64 exec, -1""")
    A.label(L["disp0"])
    A.e("v_mbcnt_lo_u32_b32 v1, -1, 0\nv_mbcnt_hi_u32_b32 v1, -1, v1")
    f1 = A.newlabel("nx"); f2 = A.newlabel("nx")
    A.e(f"s_sub_u32 s59, s58, 64\ns_cbranch_scc0 {f1}\ns_branch {L['rec']}"); A.label(f1)
    A.e(f"s_cmp_lt_u32 s58, 128\ns_cbranch_scc0 {f2}\ns_branch {L['qkv']}"); A.label(f2)
    A.e(f"s_cmp_ge_u32 s58, 192\ns_cbranch_scc1 {L['dutb']}")
    if "A" in F.EXP: A.e("s_endpgm")
    duty(A, L, 0)
    if "a" in F.EXP or F.X2: A.e("s_endpgm")
    A.e(f"s_branch {L['disp']}")
    A.label(L["dutb"])
    if "B" in F.EXP: A.e("s_endpgm")
    duty(A, L, 1)
    A.label(L["disp"])
    if F.LOC & 2: A.e("s_lshr_b32 s64, s58, 2\ns_sub_u32 s64, s64, 55\ns_andn2_b32 s64, s64, 4\ns_cmp_eq_u32 s64, 0\ns_cselect_b32 s64, 48, 0\ns_xor_b32 s58, s58, s64")
    for lo, role in ((248, "w2"), (240, "w1"), (224, "att"), (220, "ln2"), (192, "w3"), (160, "w4")):
        far = A.newlabel("nx")
        A.e(f"s_sub_u32 s59, s58, {lo}\ns_cbranch_scc1 {far}\ns_branch {L[role]}"); A.label(far)
    A.e(f"s_sub_u32 s59, s58, 128\ns_branch {L['wo']}")
    A.label(L["fb"])
    tp = A.newlabel("tp"); tg = A.newlabel("tg"); sl = A.newlabel("tsl")
    dbg_srd(A, 92)
    A.e(f"""
    s_waitcnt vmcnt(0) lgkmcnt(0)
    s_barrier
    v_mov_b32 v4, 0
    s_cmp_lg_u32 s50, 0
    s_cbranch_scc1 {nr}
    s_mov_b64 exec, 1
    v_mov_b32 v3, 1
    s_lshl_b32 s52, s51, 2
    s_add_u32 s52, s52, {TICK}
    buffer_atomic_add v3, off, s[92:95], s52 sc0 sc1
    s_waitcnt vmcnt(0)
    ds_write_b32 v4, v3
    s_waitcnt lgkmcnt(0)
    s_mov_b64 exec, -1""")
    A.label(nr)
    A.e(f"""
    s_barrier
    ds_read_b32 v3, v4
    v_mbcnt_lo_u32_b32 v16, -1, 0
    v_and_b32 v16, 7, v16
    v_lshlrev_b32 v16, 2, v16
    s_waitcnt lgkmcnt(0)
    v_readfirstlane_b32 s49, v3
    s_barrier""")
    A.label(tp)
    A.e(f"buffer_load_dword v17, v16, s[92:95], 0 offen offset:{TICK} sc1\ns_waitcnt vmcnt(0)")
    for x in range(8): A.e(f"v_readlane_b32 s{72+x}, v17, {x}")
    A.e("s_add_u32 s65, s72, s73")
    for x in range(2, 8): A.e(f"s_add_u32 s65, s65, s{72+x}")
    A.e(f"s_cmp_ge_u32 s65, 256\ns_cbranch_scc1 {tg}\ns_sleep 4\ns_sub_u32 s90, s90, 1\ns_cmp_gt_i32 s90, 0\ns_cbranch_scc1 {tp}")
    A.label(tg)
    A.e("s_min_u32 s65, s72, s73")
    for x in range(2, 8): A.e(f"s_min_u32 s65, s65, s{72+x}")
    A.e(f"""
    s_mov_b32 s88, {CB1}
    s_cmp_lt_u32 s65, {33 if F.FORCE_SLOW else 32}
    s_cbranch_scc1 {sl}
    s_lshl_b32 s64, s51, 2
    s_lshr_b32 s64, {F.XMAP:#x}, s64
    s_and_b32 s64, s64, 7
    s_lshl_b32 s58, s64, 5
    s_add_u32 s58, s58, s49
    s_mov_b32 s56, 0
    s_branch {L['disp0']}""")
    A.label(sl)
    A.e("s_mov_b32 s58, s49")
    for x in range(7): A.e(f"s_cmp_gt_u32 s51, {x}\ns_cselect_b32 s65, s{72+x}, 0\ns_add_u32 s58, s58, s65")
    if F.FORCE_SLOW: A.e("s_mul_i32 s58, s58, 37\ns_add_u32 s58, s58, 11\ns_and_b32 s58, s58, 255")
    A.e(f"s_mov_b32 s56, 1\ns_cmp_lt_u32 s58, 256\ns_cbranch_scc1 {L['disp0']}")
    A.label(done)
    A.e("s_endpgm")
    A.label(L["qkv"]); qkv_role(A, L)
    for role in ("wo", "w4", "w3", "w1", "w2"):
        A.label(L[role])
        if role in F.OFF: A.e("s_endpgm")
        (gemm4_role if F.K3 == 2 else gemm3_role if F.K3 else gemm_role)(A, L, role)
    A.label(L["ln2"]); ln_role(A, L)
    A.label(L["att"])
    if "att" in F.OFF: A.e("s_endpgm")
    att_role(A, L)
    if F.AT: A.label(L["att2"]); att_role(A, L, True)
    MFMA_WS[0] = 1
    A.lines = fix_hazards(A.lines)
    B = Asm(); B.uid = A.uid + 100000
    O = rec6.O; O.MEAS = 0; O.DL0 = max(0, O.DL - F.DLO); O.DO01 = max(0, O.DO - F.DOO)
    MFMA_WS[0] = O.MWS
    if F.RAL >= 0: B.lines += [".p2align 8"] + ["    s_nop 0"] * F.RAL
    B.label(L["rec"])
    B.e(f"s_load_dwordx8 s[4:11], s[0:1], {ARG['mem0']*8}\ns_load_dwordx2 s[12:13], s[0:1], {ARG['Wo']*8}\ns_mov_b32 s57, s58\nv_mov_b32 v0, v1\ns_waitcnt lgkmcnt(0)")
    O.PTC = (16 + C_I, 0x10000 if (F.FORCE_SLOW or F.FORCE_FB) else 0xffff); O.AV = (av_issue, av_eval) if F.AV & 1 else None; O.SST = F.PROF; O.PF = F.PF; O.WOPF = F.WOPF; O.NFL = F.NFL if F.NFLR is None else F.NFLR
    rec6.rec_setup(B)
    if F.EXP: B.e("s_endpgm")
    sl = B.newlabel("recslow"); fin = B.newlabel("recfin")
    if F.AV & 1: av_verify(B, L, 'rec', lambda: (B.e("v_mbcnt_lo_u32_b32 v20, -1, 0\nv_mbcnt_hi_u32_b32 v20, -1, v20"), rec6.ptouch(B, 20, 21, 36), B.e("s_waitcnt vmcnt(0)")))
    else: verify(B, L, True, 'rec')
    rec6.rec_bases(B)
    B.e(f"s_mov_b32 s90, {O.BUDGET}\ns_barrier")
    if F.PROF: B.e("s_memrealtime s[14:15]\ns_memtime s[28:29]")
    if O.PROF: B.e(f"s_lshl_b32 s16, s57, 2\ns_add_u32 s16, s16, s50\ns_lshl_b32 s16, s16, 12\ns_add_u32 s16, s16, {P4}")
    B.e(f"s_cmp_eq_u32 s56, 1\ns_cbranch_scc1 {sl}")
    rec6.rec_loop(B, "", fin)
    B.label(sl)
    rec6.rec_loop(B, "sc1", fin)
    B.label(fin)
    if F.PROF:
        B.e(f"s_memrealtime s[16:17]\ns_memtime s[26:27]\ns_waitcnt lgkmcnt(0)\ns_sub_u32 s26, s26, s28\nv_mov_b32 v20, 0\nv_writelane_b32 v20, s26, 4\nv_writelane_b32 v20, s14, 0\nv_writelane_b32 v20, s16, 1\nv_writelane_b32 v20, s90, 2\nv_writelane_b32 v20, s67, 3\ns_mov_b32 s58, s57")
        stamp_out(B, [20])
        if F.DBGT:
            dk = B.newlabel("dbgk"); dbg_srd(B, 92)
            B.e(f"s_and_b32 s64, s57, 7\ns_cmp_lg_u32 s64, 0\ns_cbranch_scc1 {dk}\ns_cmp_lg_u32 s50, 0\ns_cbranch_scc1 {dk}\ns_sub_u32 s14, s14, s86\ns_sub_u32 s16, s16, s86\nv_mov_b32 v20, s14\nv_mov_b32 v21, s16\nbuffer_store_dwordx2 v[20:21], off, s[92:95], s57 sc1")
            B.label(dk)
    B.e("s_endpgm")
    B.lines = fix_hazards(B.lines)
    A.lines += B.lines
    if F.ENDS:
        first = True; o = []
        for x in A.lines:
            if x.strip() == "s_endpgm" and not first: o += ["    " + y for y in f"s_waitcnt vmcnt(0)\ns_memrealtime s[4:5]\ns_mov_b32 s6, {STAMP2 - 128}\ns_waitcnt lgkmcnt(0)\nv_mov_b32 v2, s4\ns_mov_b64 exec, 1\nbuffer_atomic_umax v2, off, s[20:23], s6 sc1".split("\n")]
            if x.strip() == "s_endpgm": first = False
            o.append(x)
        A.lines = o
    A.end_kernel(512, 102, 256)
    A.launch(name, (256,), (256,), 160 * 1024)

def build(opt=None, ropt=None):
    for k, v in (opt or {}).items(): setattr(F, k, v)
    for k, v in (ropt or {}).items(): setattr(rec6.O, k, v)
    A = Asm()
    hdr = open(f"../../{NAME}.s.ref").read().split("\n")
    A.header = [l for l in hdr if l.startswith(";") and "@launch" not in l and "Override" not in l and "grid=ceil" not in l]
    flow_kernel(A, "flow_kernel")
    return A.text()

if __name__ == "__main__":
    out = sys.argv[1]
    t = build(eval(sys.argv[2]) if len(sys.argv) > 2 else None, eval(sys.argv[3]) if len(sys.argv) > 3 else None)
    open(out, "w").write(t)
    check_hazards(t)
    print(len(t), "bytes")
```
